```python
import torch

def _softmax(x, axis=-1):
    return torch.softmax(x, dim=axis)

def _gelu(x):
    return torch.nn.functional.gelu(x, approximate='tanh')

def _silu(x):
    return torch.nn.functional.silu(x)

def _sigmoid(x):
    return torch.sigmoid(x)

def _layernorm(x, axis=-1, eps=1e-05):
    m = x.mean(dim=axis, keepdim=True)
    v = x.var(dim=axis, keepdim=True, unbiased=False)
    return (x - m) / torch.sqrt(v + eps)

def _scatter_add(tgt, idx, src, axis=0):
    return tgt.clone().index_add_(axis, idx, src)

def _segment_sum(src, seg, n):
    out = torch.zeros((n,) + src.shape[1:], dtype=src.dtype)
    return out.index_add_(0, seg, src)

def _pad(x, pw):
    flat = tuple((v for pair in reversed(pw) for v in pair))
    return torch.nn.functional.pad(x, flat)
kernel_name = 'adaLN_cond__memory_aug_recurrent_mem_tr__dense_activation_relu__prompt'

def setup_inputs():

    _w = lambda a: (lambda t: t.to(torch.bfloat16) if t.is_floating_point() else t)(torch.as_tensor(a))

    def _A_setup():
        B, S, Dm = (1, 2048, 512)
        H, Dh = (32, 128)
        M, seg = (8, 32)
        seg = min(seg, S)
        S = S // seg * seg
        return {'x': _w((lambda *s: torch.randn(*s, dtype=torch.bfloat16) * 0.05)(B, S, Dm)), 'mem0': _w((lambda *s: torch.randn(*s, dtype=torch.bfloat16) * 0.4)(B, M, Dm)), 'Wq': _w((lambda *s: torch.randn(*s, dtype=torch.bfloat16) * 3.2)(Dm, H, Dh) * Dm ** (-0.5)), 'Wk': _w((lambda *s: torch.randn(*s, dtype=torch.bfloat16) * 3.2)(Dm, H, Dh) * Dm ** (-0.5)), 'Wv': _w((lambda *s: torch.randn(*s, dtype=torch.bfloat16) * 0.4)(Dm, H, Dh) * Dm ** (-0.5)), 'Wo': _w((lambda *s: torch.randn(*s, dtype=torch.bfloat16) * 0.4)(H, Dh, Dm) * (H * Dh) ** (-0.5)), 'seg_len': seg}
    _A_in = _A_setup()

    def _B_setup():
        B, S, D, Dff = (1, 2048, 512, 1792)
        return {'x': _w((lambda *s: torch.randn(*s, dtype=torch.bfloat16) * 0.05)(B, S, D)), 'w1': _w((lambda *s: torch.randn(*s, dtype=torch.bfloat16) * 0.05)(D, Dff)), 'w2': _w((lambda *s: torch.randn(*s, dtype=torch.bfloat16) * 0.05)(Dff, D))}
    _B_in = _B_setup()
    return {'A_x': _A_in['x'], 'A_mem0': _A_in['mem0'], 'A_Wq': _A_in['Wq'], 'A_Wk': _A_in['Wk'], 'A_Wv': _A_in['Wv'], 'A_Wo': _A_in['Wo'], 'A_seg_len': _A_in['seg_len'], 'B_x': _B_in['x'], 'B_w1': _B_in['w1'], 'B_w2': _B_in['w2'], 'c': _w((lambda *s: torch.randn(*s, dtype=torch.bfloat16) * 0.1)(1, 512) * 8.0), 'w_mod': _w((lambda *s: torch.randn(*s, dtype=torch.bfloat16) * 0.1)(512, 6 * 512) * 512 ** (-0.5) * 8.0)}

def reference(A_x, A_mem0, A_Wq, A_Wk, A_Wv, A_Wo, A_seg_len, B_x, B_w1, B_w2, c, w_mod):

    def _A_ref(x, mem0, Wq, Wk, Wv, Wo, seg_len):
        B, S, Dm = x.shape
        H, Dh = (Wq.shape[1], Wq.shape[2])
        M = mem0.shape[1]
        scale = Dh ** (-0.5)
        n_seg = S // seg_len
        L = M + seg_len
        idx = torch.arange(L)
        mask = (idx[:, None] < M) | (idx[:, None] >= idx[None, :])
        mem = mem0
        outs = []
        for s in range(n_seg):
            xs = x[:, s * seg_len:(s + 1) * seg_len, :].clone()
            h = torch.concatenate([mem, xs], axis=1)
            q = torch.einsum('btd,dhe->bhte', h, Wq)
            k = torch.einsum('btd,dhe->bhte', h, Wk)
            v = torch.einsum('btd,dhe->bhte', h, Wv)
            scores = torch.einsum('bhqe,bhke->bhqk', q, k) * scale
            scores = torch.where(mask[None, None], scores, -1000000000.0)
            p = _softmax(scores, axis=-1)
            o = torch.einsum('bhqk,bhke->bhqe', p, v)
            o = torch.einsum('bhte,hed->btd', o, Wo)
            mem = o[:, :M, :].clone()
            outs.append(o[:, M:, :])
        return torch.concatenate(outs, axis=1)

    def _B_ref(x, w1, w2):
        h = torch.einsum('bsd,df->bsf', x, w1)
        zero = torch.zeros_like(h)
        h = torch.maximum(h, zero)
        return torch.einsum('bsf,fd->bsd', h, w2)
    x = A_x
    mod = (_silu(c) @ w_mod).reshape(c.shape[0], 6, 1, -1)
    sa, ca, ga, sb, cb, gb = (mod[:, 0].clone(), mod[:, 1].clone(), mod[:, 2].clone(), mod[:, 3].clone(), mod[:, 4].clone(), mod[:, 5].clone())
    h = _layernorm(x, axis=-1) * (1 + ca) + sa
    x = x + ga * _A_ref(h, A_mem0, A_Wq, A_Wk, A_Wv, A_Wo, A_seg_len)
    h = _layernorm(x, axis=-1) * (1 + cb) + sb
    x = x + gb * _B_ref(h, B_w1, B_w2)
    return x
```

```python
import re

class Asm:
    def __init__(self):
        self.lines = []
    def __call__(self, s):
        for ln in s.split('\n'):
            ln = ln.strip()
            if ln:
                self.lines.append(ln)
    def label(self, n):
        self.lines.append(n + ':')
    def extend(self, o):
        self.lines.extend(o.lines if isinstance(o, Asm) else o)
    def text(self):
        out = []
        for l in self.lines:
            if l.startswith(';sec'): continue
            l = l.replace(' ;stamp', '')
            if l.endswith(':') or l.startswith('.') or l.startswith(';'):
                out.append(l)
            else:
                out.append('    ' + l)
        return '\n'.join(out) + '\n'

def R(p, i, n=1):
    return f'{p}{i}' if n == 1 else f'{p}[{i}:{i+n-1}]'
def v(i, n=1): return R('v', i, n)
def a(i, n=1): return R('a', i, n)
def s(i, n=1): return R('s', i, n)

_reg = re.compile(r'(?<![\w.])([vas])(?:\[(\d+):(\d+)\]|(\d+))(?![\w])')
def regs_of(tok):
    out = []
    for m in _reg.finditer(tok):
        p = m.group(1)
        if m.group(2) is not None:
            out += [(p, i) for i in range(int(m.group(2)), int(m.group(3)) + 1)]
        else:
            out.append((p, int(m.group(4))))
    if re.search(r'\bvcc\b', tok): out += [('vcc', 0)]
    if re.search(r'\bexec\b', tok): out += [('exec', 0)]
    if re.search(r'\bm0\b', tok): out += [('m0', 0)]
    return out

TRANS = ('v_exp_f32', 'v_log_f32', 'v_rcp_f32', 'v_rsq_f32', 'v_sqrt_f32', 'v_sin_f32', 'v_cos_f32', 'v_rcp_iflag_f32')

class Ins:
    def __init__(self, line):
        self.line = line
        l = line.split(';')[0].strip()
        parts = l.split(None, 1)
        self.op = parts[0]
        ops = [x.strip() for x in parts[1].split(',')] if len(parts) > 1 else []
        self.ops = ops
        op = self.op
        self.kind = 'other'; self.dst = []; self.src = []; self.passes = 0
        self.cregs = []; self.abregs = []; self.sdata = []
        rr = [regs_of(o) for o in ops]
        if ';stamp' in line:
            self.kind = 'salu'
        elif op.startswith('v_mfma') or op.startswith('v_smfmac'):
            self.kind = 'mfma'
            self.passes = 8 if '32x32' in op else 4
            if '4x4x4' in op: self.passes = 2
            self.dst = rr[0]
            if op.startswith('v_smfmac'):
                self.cregs = rr[0]; self.abregs = rr[1] + rr[2] + rr[3]
            else:
                self.cregs = rr[3]; self.abregs = rr[1] + rr[2]
            self.src = self.cregs + self.abregs
        elif op.startswith('v_'):
            self.kind = 'valu'
            if op.startswith('v_cmp'):
                self.dst = rr[0]; self.src = sum(rr[1:], [])
                if op.startswith('v_cmpx'): self.dst = self.dst + [('exec', 0)]
            elif op.startswith('v_permlane') and 'swap' in op:
                self.dst = rr[0] + rr[1]; self.src = rr[0] + rr[1]
            elif op.startswith(('v_add_co', 'v_sub_co', 'v_addc_co', 'v_subb_co', 'v_div_scale', 'v_mad_u64')):
                self.dst = rr[0] + rr[1]; self.src = sum(rr[2:], [])
            elif op in ('v_nop',):
                pass
            else:
                self.dst = rr[0]; self.src = sum(rr[1:], [])
                if op.startswith(('v_fmac', 'v_mac', 'v_dot2c', 'v_writelane')) or 'dpp' in op or 'row_' in l or 'quad_perm' in l or 'sdwa' in op:
                    self.src = self.src + rr[0]
                if op.startswith('v_div_fmas'): self.src = self.src + [('vcc', 0)]
        elif op.startswith('ds_'):
            if op.startswith(('ds_read', 'ds_bpermute', 'ds_permute', 'ds_swizzle')) or '_rtn' in op:
                self.kind = 'dsr'; self.dst = rr[0]; self.src = sum(rr[1:], [])
            else:
                self.kind = 'dsw'; self.src = sum(rr, [])
        elif op.startswith(('buffer_', 'global_')):
            islds = bool(re.search(r'\blds\b', l)) or '_lds_' in op
            if op in ('buffer_inv', 'buffer_wbl2'):
                self.kind = 'vmst'
            elif islds:
                self.kind = 'vmlds'; self.src = sum(rr, []) + [('m0', 0)]
            elif 'load' in op:
                self.kind = 'vmld'; self.dst = rr[0]; self.src = sum(rr[1:], [])
            elif 'atomic' in op and 'sc0' in l:
                self.kind = 'vmld'; self.dst = rr[0]; self.src = sum(rr, []) if op.startswith('buffer') else sum(rr[1:], [])
            else:
                self.kind = 'vmst'; self.src = sum(rr, [])
                d = rr[0] if op.startswith('buffer') else rr[1]
                if len(d) >= 3: self.sdata = d
        elif ';stamp' in line:
            self.kind = 'salu'
        elif op.startswith(('s_load', 's_buffer_load', 's_memtime', 's_memrealtime', 's_atomic')):
            self.kind = 'smem'; self.dst = rr[0]; self.src = sum(rr[1:], [])
        elif op.startswith('s_'):
            self.kind = 'salu'
            if op.startswith(('s_cmp', 's_waitcnt', 's_barrier', 's_nop', 's_branch', 's_cbranch', 's_endpgm', 's_sleep', 's_setprio', 's_bitcmp')):
                self.src = sum(rr, [])
            else:
                self.dst = rr[0] if rr else []; self.src = sum(rr[1:], [])
                if 'saveexec' in op: self.dst = self.dst + [('exec', 0)]
        self.states = 1
        if op == 's_nop': self.states = int(ops[0], 0) + 1
        if ';stamp' in line: self.states = 0
        self.isdpp = self.kind == 'valu' and ('dpp' in op or 'row_' in l or 'quad_perm' in l)

def check(lines, name='path', quiet=False):
    ins = []
    for l in lines:
        t = l.split(';')[0].strip()
        if not t or t.endswith(':') or t.startswith('.'): continue
        ins.append(Ins(l))
    probs = []
    def ov(x, y): return set(x) & set(y)
    n = len(ins)
    for j, c in enumerate(ins):
        dist = 0
        for i in range(j - 1, max(-1, j - 24), -1):
            p = ins[i]
            need = 0; why = ''
            def req(k, w):
                nonlocal need, why
                if k > need: need, why = k, w
            vg = lambda rs: [r for r in rs if r[0] in 'va' and r[0] != 'vcc']
            sg = lambda rs: [r for r in rs if r[0] in ('s', 'vcc')]
            if p.kind == 'valu':
                if c.kind == 'mfma' and ov(vg(p.dst), c.src): req(2, 'valu->mfma')
                if c.kind == 'valu':
                    if p.op.replace('_e32', '').replace('_e64', '') in TRANS and c.op.replace('_e32', '') not in TRANS and ov(vg(p.dst), c.src): req(1, 'trans->valu')
                    if c.op.startswith('v_permlane') and ov(vg(p.dst), c.src): req(2, 'valu->permlane')
                    if c.isdpp and ov(vg(p.dst), c.src): req(2, 'valu->dpp')
                    if c.op.startswith(('v_readlane', 'v_readfirstlane')) and ov(vg(p.dst), c.src): req(1, 'valu->readlane')
                    if ov(sg(p.dst), c.src): req(2, 'valu sgpr->valu')
                    if c.op.startswith('v_div_fmas') and ('vcc', 0) in p.dst: req(4, 'vcc->div_fmas')
                    if ('exec', 0) in p.dst and (c.isdpp or c.op.startswith(('v_permlane', 'v_read'))): req(5, 'exec->dpp')
                if c.kind in ('vmld', 'vmst', 'vmlds') and ov(sg(p.dst), c.src): req(5, 'valu sgpr->vmem')
                if c.kind == 'mfma' and ('exec', 0) in p.dst: req(4, 'exec->mfma')
            if p.kind == 'mfma':
                big = {2: 5, 4: 8, 8: 12}[p.passes]; mid = {2: 4, 4: 6, 8: 10}[p.passes]; war = {2: 1, 4: 3, 8: 7}[p.passes]
                if c.kind == 'mfma':
                    if ov(p.dst, c.abregs): req(big, 'mfma D->AB')
                    if ov(p.dst, c.cregs):
                        if not (list(p.dst) == list(c.cregs) and p.passes == c.passes): req(mid, 'mfma D->C overlap')
                        elif p.passes == 2: req(2, 'mfma chain')
                    elif ov(p.dst, c.dst): req(mid, 'mfma D->D waw')
                elif c.kind in ('valu', 'dsr', 'dsw', 'vmld', 'vmst', 'vmlds'):
                    if ov(p.dst, c.src + c.dst): req(big, 'mfma D->use')
                    if c.kind == 'valu' and ov(p.cregs, c.dst): req(war, 'mfma C war')
            if p.kind == 'vmst' and p.sdata and ov(p.sdata, c.dst):
                req(2 if c.kind == 'valu' else 1, 'store data war')
            if p.kind == 'salu' and ('m0', 0) in p.dst and c.kind == 'vmlds': req(1, 'm0->ldsdma')
            if need > dist:
                probs.append(f'{name}: [{why}] need {need} have {dist}: "{p.line}" -> "{c.line}"')
            dist += p.states
            if dist >= 20: break
    vm = []; lg = []
    for c in ins:
        if c.op == 's_waitcnt':
            m = re.search(r'vmcnt\((\d+)\)', c.line)
            if m:
                k = int(m.group(1))
                while len(vm) > k: vm.pop(0)
            m = re.search(r'lgkmcnt\((\d+)\)', c.line)
            if m:
                k = int(m.group(1))
                if k > 0 and any(e[1] == 'smem' for e in lg):
                    pass
                else:
                    while len(lg) > k: lg.pop(0)
            continue
        touched = set(c.src) | set(c.dst)
        for q, nm in ((vm, 'vm'), (lg, 'lgkm')):
            for e in q:
                if touched & e[0]:
                    if c.kind == e[1] and not (set(c.src) & e[0]): continue
                    probs.append(f'{name}: [unwaited {nm}] "{e[2]}" -> "{c.line}"')
        if c.kind in ('vmld', 'vmst', 'vmlds'):
            vm.append((set(c.dst), c.kind, c.line))
            if len(vm) > 63: probs.append(f'{name}: vmcnt overflow at "{c.line}"'); vm.pop(0)
        if c.kind in ('dsr', 'dsw', 'smem'):
            lg.append((set(c.dst), c.kind, c.line))
    if not quiet:
        for p in probs: print('HAZARD', p)
    return probs

def weave(main, fill, pattern=None):
    out = []; k = 0
    for i, m in enumerate(main):
        out.append(m)
        cnt = pattern[i] if pattern else 0
        for _ in range(cnt):
            if k < len(fill): out.append(fill[k]); k += 1
    out.extend(fill[k:])
    return out

def fix(lines, name='', verbose=False, vm_init=0):
    out = []; vm = [(set(), 'x')] * vm_init; lg = []
    for l in lines:
        t = l.split(';')[0].strip()
        if not t or t.endswith(':') or t.startswith('.'):
            out.append(l); continue
        c = Ins(l)
        if c.op == 's_waitcnt' and ';stamp' not in l:
            m = re.search(r'vmcnt\((\d+)\)', l)
            if m:
                while len(vm) > int(m.group(1)): vm.pop(0)
            m = re.search(r'lgkmcnt\((\d+)\)', l)
            if m:
                k = int(m.group(1))
                if not (k > 0 and any(e[1] == 'smem' for e in lg)):
                    while len(lg) > k: lg.pop(0)
            out.append(l); continue
        touched = set(c.src) | set(c.dst)
        w = []
        for q, nm, mx in ((vm, 'vmcnt', 63), (lg, 'lgkmcnt', 15)):
            last = -1
            for i, e in enumerate(q):
                if touched & e[0]:
                    if c.kind == e[1] and not (set(c.src) & e[0]): continue
                    last = i
            if last >= 0:
                k = min(len(q) - 1 - last, mx)
                if nm == 'lgkmcnt' and any(e[1] == 'smem' for e in q): k = 0
                w.append(f'{nm}({k})')
                while len(q) > k: q.pop(0)
        if w: out.append('s_waitcnt ' + ' '.join(w))
        if c.kind in ('vmld', 'vmst', 'vmlds'): vm.append((set(c.dst), c.kind))
        if c.kind in ('dsr', 'dsw', 'smem'): lg.append((set(c.dst), c.kind))
        out.append(l)
    res = []; nn = 0
    for l in out:
        t = l.split(';')[0].strip()
        if not t or t.endswith(':') or t.startswith('.'):
            res.append(l); continue
        tail = [x for x in res[-40:]]
        pr = [p for p in check(tail + [l], quiet=True) if p.endswith(f'-> "{l}"') and 'need' in p and 'unwaited' not in p]
        add = 0
        for p in pr:
            m = re.search(r'need (\d+) have (\d+)', p)
            add = max(add, int(m.group(1)) - int(m.group(2)))
        if add:
            nn += add
            if verbose: print(f'  [{name}] nop x{add} before: {l}')
            res.append(f's_nop {add-1}')
        res.append(l)
    if verbose: print(f'  [{name}] total nop states inserted: {nn}, instrs {sum(1 for x in res if not x.endswith(":"))}')
    return res

def simulate(lines, show=False):
    t = 0; valu_ok = 0; mf_ok = 0; last = None; out = []
    for l in lines:
        x = l.split(';')[0].strip()
        if not x or x.endswith(':') or x.startswith('.') or ';stamp' in l: continue
        c = Ins(l)
        st = t
        if c.kind == 'mfma':
            st = max(t, mf_ok); dur = c.passes * 4
            mf_ok = st + dur; valu_ok = st + (12 if c.op.startswith('v_smf') else 8); t = st + 4
        elif c.kind == 'valu':
            st = max(t, valu_ok)
            if c.op.startswith('v_pk_'): st = max(st, mf_ok + 4)
            cost = 8 if (c.op in TRANS or 'swap' in c.op) else (5 if c.op.startswith(('v_cvt_pk', 'v_max3', 'v_pk_', 'v_fma')) and last == 'valu' else 4)
            t = st + cost
        elif c.kind in ('dsr', 'dsw'):
            st = t + (4 if last == 'valu' else 0)
            t = st + (8 if c.kind == 'dsr' else (28 if 'b128' in c.op else 16))
        elif c.kind in ('vmst',):
            t = st + 28
        elif c.kind in ('vmld', 'vmlds'):
            t = st + 12
        elif c.op == 's_nop':
            t = st + 4 * c.states
        elif c.op.startswith('s_cbranch'):
            t = st + 12
        else:
            t = st + 4
        last = c.kind
        if show: out.append(f'{st:5d} {x}')
    if show: print('\n'.join(out))
    return t

def hoist_waits(lines):
    L = list(lines); i = 0
    while i < len(L):
        if L[i].startswith('s_waitcnt') and i + 1 < len(L) and L[i + 1].startswith(('v_mfma', 'v_smfmac')):
            j = i
            while j > 0 and L[j - 1].startswith('v_') and not L[j - 1].startswith(('v_mfma', 'v_smfmac')):
                L[j - 1], L[j] = L[j], L[j - 1]; j -= 1
        i += 1
    return L
```

```python
from asmlib import *
from layout import *
import math, struct
MF32='v_mfma_f32_16x16x32_bf16'; MF16='v_mfma_f32_16x16x16_bf16'; SMF='v_smfmac_f32_16x16x64_bf16'
f2u=lambda x: struct.unpack('<I',struct.pack('<f',x))[0]
WS=4; SRD=8; DBG=12; sB=14; sW=15; sMask=16; sSpin=17
sP=52
PX,PWQ,PWK,PWV,PWO,PW1,PW2,PC,PWM,POUT=[sP+2*i for i in (0,2,3,4,5,8,9,10,11,12)]
sT=40
LN=0; N=1; Gv=2; L16=3
LIM='0x200000'
def common():
    return [f's_load_dwordx16 {s(sP,16)}, s[0:1], 0', f's_load_dwordx8 {s(sP+16,8)}, s[0:1], 64', f's_load_dwordx2 {s(sP+24,2)}, s[0:1], 96',
        f's_load_dwordx2 {s(DBG,2)}, s[0:1], 104', f's_load_dwordx2 {s(WS,2)}, s[0:1], 112',
        'v_lshrrev_b32 v1, 6, v0', f'v_and_b32 {v(LN)}, 63, v0', f'v_readfirstlane_b32 {s(sW)}, v1',
        f's_mov_b32 {s(WS+2)}, {WS_BYTES}', f's_mov_b32 {s(WS+3)}, 0x20000', f's_mov_b32 {s(SRD+3)}, 0x20000',
        f's_mov_b32 {s(sMask)}, 0xffff0000', f's_mov_b32 {s(sSpin)}, 0',
        f'v_and_b32 {v(N)}, 15, {v(LN)}', f'v_lshrrev_b32 {v(Gv)}, 4, {v(LN)}', f'v_lshlrev_b32 {v(L16)}, 4, {v(LN)}', 's_waitcnt lgkmcnt(0)']
def srd(p,size): return [f's_mov_b32 {s(SRD)}, {s(p)}', f's_mov_b32 {s(SRD+1)}, {s(p+1)}', f's_mov_b32 {s(SRD+2)}, {size}']
def rnd(a,b,t): return [f'v_cvt_pk_bf16_f32 {v(t)}, {v(a)}, {v(b)}', f'v_lshlrev_b32 {v(a)}, 16, {v(t)}', f'v_and_b32 {v(b)}, {s(sMask)}, {v(t)}']
def unp(d,src): return [f'v_and_b32 {v(d+1)}, {s(sMask)}, {v(src)}', f'v_lshlrev_b32 {v(d)}, 16, {v(src)}']
def xg(op,a,t):
    return [f'v_mov_b32 {v(t)}, {v(a)}', f'v_permlane32_swap_b32 {v(a)}, {v(t)}', f'{op} {v(a)}, {v(a)}, {v(t)}',
            f'v_mov_b32 {v(t)}, {v(a)}', f'v_permlane16_swap_b32 {v(a)}, {v(t)}', f'{op} {v(a)}, {v(a)}, {v(t)}']
def xrow(a):
    return [f'v_add_f32_dpp {v(a)}, {v(a)}, {v(a)} row_ror:{k} row_mask:0xf bank_mask:0xf' for k in (1,2,4,8)]
_u=[0]
def poll(addr_v, soff, cmp_s, r, off=0):
    _u[0]+=1; k=_u[0]
    return [f'L_po{k}:', f'buffer_load_dword {v(r)}, {v(addr_v)}, {s(WS,4)}, {soff} offen offset:{off} sc1', f's_add_u32 {s(sSpin)}, {s(sSpin)}, 1',
            f's_cmp_gt_u32 {s(sSpin)}, {LIM}', f's_cbranch_scc1 L_pe{k}', 's_waitcnt vmcnt(0)', f'v_cmp_gt_u32 vcc, {cmp_s}, {v(r)}', f's_cbranch_vccnz L_po{k}', f'L_pe{k}:', 's_waitcnt vmcnt(0)']

def mod_phase(sync):
    p=[]; e=p.append
    W_=16; C_=48; AC=56; A0=4; A1=5; T=6
    e(f'v_lshrrev_b32 {v(A0)}, 2, {v(LN)}'); e(f's_lshl_b32 {s(sT)}, {s(sW)}, 4'); e(f'v_add_u32 {v(A0)}, {s(sT)}, {v(A0)}')
    e(f'v_lshlrev_b32 {v(A1)}, 1, {v(A0)}')
    e(f'v_mul_u32_u24 {v(A0)}, 6144, {v(A0)}'); e(f'v_and_b32 {v(T)}, 3, {v(LN)}'); e(f'v_lshl_add_u32 {v(A0)}, {v(T)}, 4, {v(A0)}')
    p+=srd(PWM,512*6144)
    for i in range(8): e(f'global_load_ushort {v(C_+i)}, {v(A1)}, {s(PC,2)} offset:{128*i}')
    e(f's_lshl_b32 {s(sT)}, {s(sB)}, 6')
    for i in range(8):
        e(f'buffer_load_dwordx4 {v(W_+4*i,4)}, {v(A0)}, {s(SRD,4)}, {s(sT)} offen'); e(f's_add_u32 {s(sT)}, {s(sT)}, {64*6144}')
    for i in range(8): e(f'v_lshlrev_b32 {v(C_+i)}, 16, {v(C_+i)}')
    for i in range(8): e(f'v_mul_f32 {v(AC+i)}, {hex(f2u(-math.log2(math.e)))}, {v(C_+i)}')
    for i in range(8): e(f'v_exp_f32 {v(AC+i)}, {v(AC+i)}')
    for i in range(8): e(f'v_add_f32 {v(AC+i)}, 1.0, {v(AC+i)}')
    for i in range(8): e(f'v_rcp_f32 {v(AC+i)}, {v(AC+i)}')
    for i in range(8): e(f'v_mul_f32 {v(C_+i)}, {v(C_+i)}, {v(AC+i)}')
    for i in range(0,8,2): p+=rnd(C_+i,C_+i+1,T)
    for i in range(8):
        for d in range(4):
            p+=unp(8,W_+4*i+d)
            for k in range(2):
                e(f'v_mul_f32 {v(AC+2*d+k)}, {v(C_+i)}, {v(8+k)}' if i==0 else f'v_fmac_f32 {v(AC+2*d+k)}, {v(C_+i)}, {v(8+k)}')
    for k in (4,8):
        for i in range(8): e(f'v_add_f32_dpp {v(AC+i)}, {v(AC+i)}, {v(AC+i)} row_ror:{k} row_mask:0xf bank_mask:0xf')
    e(f's_lshl_b32 {s(sT)}, {s(sW)}, 9'); e(f'v_and_b32 {v(T)}, 3, {v(LN)}'); e(f'v_lshlrev_b32 {v(T)}, 5, {v(T)}')
    e(f'v_lshl_add_u32 {v(T)}, {v(Gv)}, 7, {v(T)}'); e(f'v_add_u32 {v(T)}, {s(sT)}, {v(T)}')
    e(f'ds_write_b128 {v(T)}, {v(AC,4)}'); e(f'ds_write_b128 {v(T)}, {v(AC+4,4)} offset:16')
    e('s_waitcnt lgkmcnt(0)'); e('s_barrier')
    e(f's_cmp_lg_u32 {s(sW)}, 0'); e('s_cbranch_scc1 L_mod_end')
    e(f'v_and_b32 {v(A0)}, 31, {v(LN)}'); e(f'v_lshrrev_b32 {v(A1)}, 5, {v(LN)}'); e(f'v_lshlrev_b32 {v(T)}, 2, {v(A0)}'); e(f'v_lshl_add_u32 {v(T)}, {v(A1)}, 10, {v(T)}')
    for i in range(8): e(f'ds_read_b32 {v(AC+i)}, {v(T)} offset:{128*i}')
    for i in range(1,8): e(f'v_add_f32 {v(AC)}, {v(AC)}, {v(AC+i)}')
    e(f'v_mov_b32 {v(T)}, {v(AC)}'); e(f'v_permlane32_swap_b32 {v(AC)}, {v(T)}'); e(f'v_add_f32 {v(AC)}, {v(AC)}, {v(T)}')
    e(f'v_cvt_pk_bf16_f32 {v(AC)}, {v(AC)}, {v(AC)}')
    e(f'v_lshlrev_b32 {v(A0)}, 1, {v(A0)}'); e(f's_lshl_b32 {s(sT)}, {s(sB)}, 6'); e(f's_add_u32 {s(sT)}, {s(sT)}, {MOD_OFF}')
    e(f'buffer_store_short {v(AC)}, {v(A0)}, {s(WS,4)}, {s(sT)} offen sc1')
    if sync:
        e('s_waitcnt vmcnt(0)')
        e(f's_cmp_lt_u32 {s(sB)}, 32'); e(f's_cselect_b32 {s(sT)}, 128, 132')
        e(f'v_mov_b32 {v(A0)}, {s(sT)}'); e(f'v_mov_b32 {v(A1)}, 1'); e('s_mov_b64 exec, 1')
        e(f'global_atomic_add {v(A0)}, {v(A1)}, {s(DBG,2)}'); e('s_mov_b64 exec, -1')
    p.append('L_mod_end:')
    e('s_barrier')
    return fix(p,'mod')

def dbg_wait(off,val,r):
    _u[0]+=1; k=_u[0]
    return [f'v_mov_b32 {v(r+1)}, {off}', f'L_po{k}:', f'global_load_dword {v(r)}, {v(r+1)}, {s(DBG,2)} sc1', f's_add_u32 {s(sSpin)}, {s(sSpin)}, 1',
            f's_cmp_gt_u32 {s(sSpin)}, {LIM}', f's_cbranch_scc1 L_pe{k}', 's_waitcnt vmcnt(0)', f'v_cmp_gt_u32 vcc, {val}, {v(r)}', f's_cbranch_vccnz L_po{k}', f'L_pe{k}:', 's_waitcnt vmcnt(0)']

def ln_phase(sync):
    p=[]; e=p.append
    XR=16; XF=32; MD=64; A0=4; A1=5; T=6; S=7; Q=8; R_=10; MU=14; sTile=20
    e(f's_sub_u32 {s(sTile)}, {s(sB)}, 96')
    p+=srd(PX,2048*1024)
    e(f'v_lshlrev_b32 {v(A0)}, 10, {v(N)}'); e(f'v_lshl_add_u32 {v(A0)}, {v(Gv)}, 4, {v(A0)}')
    e(f's_lshl_b32 {s(sT)}, {s(sTile)}, 14'); e(f's_lshl_b32 {s(sT+1)}, {s(sW)}, 8'); e(f's_add_u32 {s(sT)}, {s(sT)}, {s(sT+1)}')
    for i in range(4): e(f'buffer_load_dwordx4 {v(XR+4*i,4)}, {v(A0)}, {s(SRD,4)}, {s(sT)} offen offset:{64*i}')
    e(f'v_lshlrev_b32 {v(A1)}, 4, {v(N)}'); e(f's_lshl_b32 {s(sT+2)}, {s(sW)}, 2'); e(f'v_add_u32 {v(A0)}, {s(sT+2)}, {v(A1)}')
    for i in range(16): p+=unp(XF+2*i,XR+i)
    e(f'v_add_f32 {v(S)}, {v(XF)}, {v(XF+1)}')
    for i in range(2,32): e(f'v_add_f32 {v(S)}, {v(S)}, {v(XF+i)}')
    def cross(off):
        o=xg('v_add_f32',S,T)+[f'ds_write_b32 {v(A0)}, {v(S)} offset:{off}','s_waitcnt lgkmcnt(0)','s_barrier',f'ds_read_b128 {v(R_,4)}, {v(A1)} offset:{off}',
           f'v_add_f32 {v(S)}, {v(R_)}, {v(R_+1)}', f'v_add_f32 {v(T)}, {v(R_+2)}, {v(R_+3)}', f'v_add_f32 {v(S)}, {v(S)}, {v(T)}', f'v_mul_f32 {v(S)}, {hex(f2u(1/512))}, {v(S)}']
        return o
    p+=cross(0)
    e(f'v_mov_b32 {v(MU)}, {v(S)}')
    for i in range(32):
        e(f'v_sub_f32 {v(T)}, {v(XF+i)}, {v(MU)}'); e(f'v_mul_f32 {v(S)}, {v(T)}, {v(T)}' if i==0 else f'v_fmac_f32 {v(S)}, {v(T)}, {v(T)}')
    p+=cross(256)
    p+=rnd(MU,S,T)
    e(f'v_add_f32 {v(S)}, {hex(f2u(1e-5))}, {v(S)}'); p+=rnd(S,Q,T)[:2]
    e(f'v_sqrt_f32 {v(S)}, {v(S)}'); p+=rnd(S,Q,T)[:2]
    e(f'v_rcp_f32 {v(S)}, {v(S)}')
    for i in range(0,32,2):
        e(f'v_sub_f32 {v(XF+i)}, {v(XF+i)}, {v(MU)}'); e(f'v_sub_f32 {v(XF+i+1)}, {v(XF+i+1)}, {v(MU)}'); p+=rnd(XF+i,XF+i+1,T)
        e(f'v_mul_f32 {v(XF+i)}, {v(XF+i)}, {v(S)}'); e(f'v_mul_f32 {v(XF+i+1)}, {v(XF+i+1)}, {v(S)}'); p+=rnd(XF+i,XF+i+1,T)
    if sync: p+=dbg_wait(128,32,R_)
    e(f'v_lshlrev_b32 {v(A0)}, 4, {v(Gv)}'); e(f's_add_u32 {s(sT+1)}, {s(sT+1)}, {MOD_OFF}')
    for i in range(4): e(f'buffer_load_dwordx4 {v(MD+4*i,4)}, {v(A0)}, {s(WS,4)}, {s(sT+1)} offen offset:{1024+64*i} sc1')
    for i in range(4): e(f'buffer_load_dwordx4 {v(MD+16+4*i,4)}, {v(A0)}, {s(WS,4)}, {s(sT+1)} offen offset:{64*i} sc1')
    e(f's_lshl_b32 {s(sT)}, {s(sTile)}, 14'); e(f's_lshl_b32 {s(sT+2)}, {s(sW)}, 12'); e(f's_add_u32 {s(sT)}, {s(sT)}, {s(sT+2)}'); e(f's_add_u32 {s(sT)}, {s(sT)}, {H_OFF}')
    for i in range(16):
        a_=XF+2*i
        p+=unp(Q,MD+i); e(f'v_add_f32 {v(Q)}, 1.0, {v(Q)}'); e(f'v_add_f32 {v(Q+1)}, 1.0, {v(Q+1)}'); p+=rnd(Q,Q+1,T)
        e(f'v_mul_f32 {v(a_)}, {v(a_)}, {v(Q)}'); e(f'v_mul_f32 {v(a_+1)}, {v(a_+1)}, {v(Q+1)}'); p+=rnd(a_,a_+1,T)
        p+=unp(Q,MD+16+i); e(f'v_add_f32 {v(a_)}, {v(a_)}, {v(Q)}'); e(f'v_add_f32 {v(a_+1)}, {v(a_+1)}, {v(Q+1)}')
        e(f'v_cvt_pk_bf16_f32 {v(XR+i)}, {v(a_)}, {v(a_+1)}')
        if i%4==3: e(f'buffer_store_dwordx4 {v(XR+i-3,4)}, {v(L16)}, {s(WS,4)}, {s(sT)} offen offset:{1024*(i//4)} sc1')
    if sync:
        p+=dbg_wait(136,1,R_)
        e('s_barrier')
        e(f's_lshl_b32 {s(sT)}, {s(sTile)}, 2'); e(f's_add_u32 {s(sT)}, {s(sT)}, {BF_OFF+BF_H}'); e(f'v_mov_b32 {v(T)}, 1')
        e(f's_cmp_lg_u32 {s(sW)}, 0'); e('s_cbranch_scc1 L_ln_end'); e('s_mov_b64 exec, 1')
        e(f'buffer_store_dword {v(T)}, off, {s(WS,4)}, {s(sT)} sc1'); e('s_mov_b64 exec, -1')
        p.append('L_ln_end:')
    return fix(p,'ln')

def flag_init():
    p=[]; e=p.append
    for i in range(4): e(f'v_mov_b32 {v(8+i)}, 0')
    e(f's_lshl_b32 {s(sT)}, {s(sW)}, 12'); e(f's_add_u32 {s(sT)}, {s(sT)}, {BF_OFF}')
    for i in range(4): e(f'buffer_store_dwordx4 {v(8,4)}, {v(L16)}, {s(WS,4)}, {s(sT)} offen offset:{1024*i} sc1')
    e('s_waitcnt vmcnt(0)'); e('s_barrier')
    e(f'v_mov_b32 v8, 136'); e('v_mov_b32 v9, 1'); e('s_mov_b64 exec, 1'); e(f'global_store_dword v8, v9, {s(DBG,2)} sc1'); e('s_mov_b64 exec, -1')
    return fix(p,'fi')

def wstream(blocks, sRing, pre_issue=None, split=False):
    p=[]; e=p.append; ng=len(blocks)//4; assert len(blocks)%4==0
    def issue(gi):
        for b in range(4):
            su,vo,so,_=blocks[4*gi+b]
            if su: p.extend(su)
            e(f's_add_u32 m0, {s(sRing)}, {((4*gi+b)%32)*1024}'); p.extend(so(sT+7))
            e(f'buffer_load_dwordx4 {v(vo)}, {s(SRD,4)}, {s(sT+7)} offen lds')
    for gi in range(min(8,ng)): issue(gi)
    head=list(p); p.clear()
    for gi in range(ng):
        e(f's_waitcnt vmcnt({4*(min(ng-1,gi+7)-gi)})')
        for b in range(4):
            for dst,tra,off in blocks[4*gi+b][3]: e(f'ds_read_b64_tr_b16 {dst}, {v(tra)} offset:{((4*gi+b)%32)*1024+off}')
        e('s_waitcnt lgkmcnt(0)')
        if gi+8<ng: issue(gi+8)
    return head,p

sHd=21; sR=22; sSeg=23; sRing=24; sCnt=25
VO=4; TRA=5; TRB=6; FA=7
def wreg(m,t,ks):
    i=(m*2+t)*64+4*ks
    return ('a',i) if i<256 else ('v',128+i-256)
def p1_setup():
    p=[]; e=p.append
    e(f's_mul_i32 {s(sHd)}, {s(sB)}, 9363'); e(f's_lshr_b32 {s(sHd)}, {s(sHd)}, 16'); e(f's_mul_i32 {s(sT)}, {s(sHd)}, 7'); e(f's_sub_u32 {s(sR)}, {s(sB)}, {s(sT)}')
    e(f's_lshl_b32 {s(sRing)}, {s(sW)}, 15'); e(f's_add_u32 {s(sRing)}, {s(sRing)}, 32768')
    r=120; c_=121; g1=122
    e(f'v_lshrrev_b32 {v(r)}, 2, {v(N)}'); e(f'v_and_b32 {v(c_)}, 3, {v(N)}'); e(f'v_and_b32 {v(g1)}, 1, {v(Gv)}')
    A,B,C=124,125,126
    e(f'v_lshlrev_b32 {v(B)}, 8, {v(Gv)}'); e(f'v_lshl_add_u32 {v(B)}, {v(r)}, 6, {v(B)}'); e(f'v_lshl_add_u32 {v(B)}, {v(g1)}, 5, {v(B)}')
    e(f'v_lshl_add_u32 {v(B)}, {v(c_)}, 3, {v(B)}'); e(f'v_add_u32 {v(B)}, {s(sRing)}, {v(B)}'); e(f'v_xor_b32 {v(C)}, 32, {v(B)}')
    e(f'v_lshlrev_b32 {v(g1)}, 1, {v(g1)}'); e(f'v_xor_b32 {v(c_)}, {v(c_)}, {v(g1)}'); e(f'v_lshlrev_b32 {v(c_)}, 4, {v(c_)}')
    e(f'v_lshl_add_u32 {v(A)}, {v(Gv)}, 3, {v(r)}'); e(f'v_lshl_add_u32 {v(A)}, {v(A)}, 13, {v(c_)}')
    e(f's_lshl_b32 {s(sT)}, {s(sHd)}, 8'); e(f's_lshl_b32 {s(sT+1)}, {s(sW)}, 6'); e(f's_add_u32 {s(sT)}, {s(sT)}, {s(sT+1)}'); e(f'v_add_u32 {v(A)}, {s(sT)}, {v(A)}')
    blocks=[]
    for m,ptr in ((0,PWK),(1,PWV),(2,PWQ)):
        for ks in range(16):
            for jh in range(2):
                dst=[]
                for t in range(2):
                    pf,b=wreg(m,t,ks); dst.append((R(pf,b+2*jh,2), C if t else B, 0))
                blocks.append((srd(ptr,4<<20) if ks%2==0 and jh==0 else None, A, (lambda reg,o=(32*ks+4*jh)*8192: [f's_mov_b32 {s(reg)}, {o}']), dst))
    head,rest=wstream(blocks,sRing)
    return fix(p+head,'p1a'), fix(rest,'p1b',vm_init=32)

def p1_main(sync):
    p=[]; e=p.append
    AC=16; HF=64; OUT=96; sHsrc=26; sBuf=27; sKo=28; sVo=29; sQo=30; sFl=31; sNext=32
    acc=lambda m,t,mt: AC+((m*2+t)*2+mt)*4
    def hdma():
        o=[]
        if sync:
            o+=[f's_lshl_b32 {s(sT)}, {s(sNext)}, 3', f's_add_u32 {s(sT)}, {s(sT)}, {BF_OFF+BF_H}', f'v_and_b32 {v(FA)}, 1, {v(LN)}', f'v_lshlrev_b32 {v(FA)}, 2, {v(FA)}']+poll(FA,s(sT),'1',8)
        o+=[f's_lshl_b32 {s(sHsrc)}, {s(sNext)}, 15', f's_lshl_b32 {s(sT)}, {s(sW)}, 13', f's_add_u32 {s(sHsrc)}, {s(sHsrc)}, {s(sT)}', f's_add_u32 {s(sHsrc)}, {s(sHsrc)}, {H_OFF}',
            f's_add_u32 m0, {s(sBuf)}, {s(sT)}', f's_add_u32 {s(sT+1)}, {s(sHsrc)}, 4096']
        o+=[f'buffer_load_dwordx4 {v(L16)}, {s(WS,4)}, {s(sHsrc)} offen offset:{1024*i} lds' for i in range(4)]
        o+=['s_add_u32 m0, m0, 4096','s_nop 0']+[f'buffer_load_dwordx4 {v(L16)}, {s(WS,4)}, {s(sT+1)} offen offset:{1024*i} lds' for i in range(4)]
        return o
    e('s_barrier')
    if sync: p+=dbg_wait(136,1,8)
    e(f's_mov_b32 {s(sSeg)}, {s(sR)}'); e(f's_mov_b32 {s(sNext)}, {s(sR)}'); e(f's_mov_b32 {s(sBuf)}, 0'); e(f's_mov_b32 {s(sCnt)}, 0')
    e(f's_lshl_b32 {s(sFl)}, {s(sHd)}, 7'); e(f's_lshl_b32 {s(sT)}, {s(sR)}, 2'); e(f's_add_u32 {s(sFl)}, {s(sFl)}, {s(sT)}'); e(f's_add_u32 {s(sFl)}, {s(sFl)}, {BF_OFF+BF_KV}')
    p+=hdma()
    p.append('L_p1_loop:')
    e('s_waitcnt vmcnt(0)'); e('s_barrier')
    if sync:
        e(f's_cmp_lg_u32 {s(sW)}, 0'); e('s_cbranch_scc1 L_p1_nf'); e(f'v_mov_b32 {v(FA)}, {s(sCnt)}'); e('s_mov_b64 exec, 1')
        e(f'buffer_store_dword {v(FA)}, off, {s(WS,4)}, {s(sFl)} sc1'); e('s_mov_b64 exec, -1'); p.append('L_p1_nf:')
    e(f's_cmp_ge_u32 {s(sSeg)}, 64'); e('s_cbranch_scc1 L_p1_end')
    e(f'v_add_u32 {v(VO)}, {s(sBuf)}, {v(L16)}')
    e(f's_xor_b32 {s(sBuf)}, {s(sBuf)}, 32768'); e(f's_add_u32 {s(sNext)}, {s(sSeg)}, 7')
    e(f's_cmp_ge_u32 {s(sNext)}, 64'); e('s_cbranch_scc1 L_p1_nd')
    p+=hdma()
    p.append('L_p1_nd:')
    hr=lambda ks,mt: f'ds_read_b128 {v(HF+(ks%4)*8+4*mt,4)}, {v(VO)} offset:{(mt*16+ks)*1024}'
    for ks in range(2):
        for mt in range(2): e(hr(ks,mt))
    for ks in range(16):
        mm=[]
        for mt in range(2):
            hf=v(HF+(ks%4)*8+4*mt,4)
            for m in range(3):
                for t in range(2):
                    pf,b=wreg(m,t,ks); w_=R(pf,b,4); c_=v(acc(m,t,mt),4)
                    a_,b_=(hf,w_) if m==1 else (w_,hf)
                    mm.append(f'{MF32} {c_}, {a_}, {b_}, '+(c_ if ks else '0'))
        if ks+2<16:
            mm[1:1]=[hr(ks+2,0)]; mm[4:4]=[hr(ks+2,1)]
        p+=mm
    e(f's_lshl_b32 {s(sT)}, {s(sSeg)}, 5'); e(f's_add_u32 {s(sT)}, {s(sT)}, {s(sHd)}')
    e(f's_lshl_b32 {s(sT+1)}, {s(sW)}, 10'); e(f's_lshl_b32 {s(sKo)}, {s(sT)}, 14'); e(f's_add_u32 {s(sVo)}, {s(sKo)}, {KV_OFF+8192}')
    e(f's_add_u32 {s(sKo)}, {s(sKo)}, {s(sT+1)}'); e(f's_add_u32 {s(sKo)}, {s(sKo)}, {KV_OFF}')
    e(f's_lshl_b32 {s(sQo)}, {s(sT)}, 13'); e(f's_add_u32 {s(sQo)}, {s(sQo)}, {s(sT+1)}'); e(f's_add_u32 {s(sQo)}, {s(sQo)}, {Q_OFF}')
    e(f's_lshl_b32 {s(sT+1)}, {s(sW)}, 11'); e(f's_add_u32 {s(sVo)}, {s(sVo)}, {s(sT+1)}')
    k=0
    for m,so in ((0,sKo),(2,sQo)):
        for mt in range(2):
            for r in range(4): e(f'v_cvt_pk_bf16_f32 {v(OUT+4*k+r)}, {v(acc(m,0,mt)+r)}, {v(acc(m,1,mt)+r)}')
            e(f'buffer_store_dwordx4 {v(OUT+4*k,4)}, {v(L16)}, {s(WS,4)}, {s(so)} offen sc1'); k+=1
            if mt==0: e(f's_add_u32 {s(so)}, {s(so)}, 4096')
    for t in range(2):
        for mt in range(2):
            for j in range(2): e(f'v_cvt_pk_bf16_f32 {v(OUT+4*k+2*mt+j)}, {v(acc(1,t,mt)+2*j)}, {v(acc(1,t,mt)+2*j+1)}')
        e(f'buffer_store_dwordx4 {v(OUT+4*k,4)}, {v(L16)}, {s(WS,4)}, {s(sVo)} offen offset:{1024*t} sc1'); k+=1
    e(f's_add_u32 {s(sSeg)}, {s(sSeg)}, 7'); e(f's_add_u32 {s(sCnt)}, {s(sCnt)}, 1'); e('s_branch L_p1_loop')
    p.append('L_p1_end:')
    return fix(p,'p1')

sGrp=21; sJ=22; sGB=26; sEp=27; sFw=28; sFr=29; sKq=30; sCq=31; sM=32; sEh=33; sScale=34; sLg=35; sFast=36; sQf=37; sMf=38
WO=lambda ks: a(4*ks,4)
W1=lambda t,ks: a(128+64*t+4*ks,4)
W2=lambda ks: v(200+4*ks,4)
MODV=168
IDX=4; KW=5; FA2=6; HRD=7; HSR=8; PSA=9; MSK=10; ZR=12
def p2_setup(sync):
    p=[]; e=p.append
    e('s_barrier')
    e(f's_lshr_b32 {s(sGrp)}, {s(sB)}, 5'); e(f's_and_b32 {s(sJ)}, {s(sB)}, 31')
    e(f's_lshl_b32 {s(sGB)}, {s(sGrp)}, 20'); e(f's_add_u32 {s(sGB)}, {s(sGB)}, {G_OFF}')
    e(f's_lshr_b32 {s(sKq)}, {s(sJ)}, 3'); e(f's_and_b32 {s(sCq)}, {s(sJ)}, 7'); e(f's_and_b32 {s(sM)}, {s(sW)}, 1'); e(f's_lshr_b32 {s(sEh)}, {s(sW)}, 1')
    e(f's_lshl_b32 {s(sFr)}, {s(sGrp)}, 8'); e(f's_add_u32 {s(sFr)}, {s(sFr)}, {BF_OFF+BF_GB}'); e(f's_lshl_b32 {s(sT)}, {s(sJ)}, 2'); e(f's_add_u32 {s(sFw)}, {s(sFr)}, {s(sT)}')
    e(f's_mov_b32 {s(sEp)}, 0'); e(f's_mov_b32 {s(sScale)}, {hex(f2u(128**-0.5))}'); e(f's_mov_b32 {s(sLg)}, {hex(f2u(math.log2(math.e)))}')
    e(f's_lshl_b32 {s(sRing)}, {s(sW)}, 15'); e(f's_add_u32 {s(sRing)}, {s(sRing)}, 32768')
    e(f's_lshl_b32 {s(sMf)}, {s(sJ)}, 7'); e(f's_lshl_b32 {s(sT)}, {s(sGrp)}, 2'); e(f's_add_u32 {s(sQf)}, {s(sMf)}, {s(sT)}')
    e(f's_add_u32 {s(sQf)}, {s(sQf)}, {BF_OFF+BF_KV}'); e(f's_add_u32 {s(sMf)}, {s(sMf)}, {BF_OFF+BF_KVM}')
    e(f's_getreg_b32 {s(sFast)}, hwreg(HW_REG_XCC_ID)'); e(f's_and_b32 {s(sFast)}, {s(sFast)}, 7'); e(f's_add_u32 {s(sFast)}, {s(sFast)}, 1')
    e(f'v_mov_b32 v16, {s(sFast)}'); e('s_mov_b64 exec, 1'); e(f'buffer_store_dword v16, off, {s(WS,4)}, {s(sFw)} offset:{BF_XC-BF_GB} sc1'); e('s_mov_b64 exec, -1')
    t1,t2,r,c_,g1=16,17,18,19,20
    e(f'v_and_b32 {v(t1)}, 1, {v(LN)}'); e(f'v_mul_u32_u24 {v(t1)}, 0xaaaa, {v(t1)}'); e(f'v_add_u32 {v(IDX)}, 0x4444, {v(t1)}')
    e(f'v_bfe_u32 {v(t1)}, {v(N)}, 1, 2'); e(f'v_lshlrev_b32 {v(KW)}, 2, {v(t1)}'); e(f'v_and_b32 {v(t1)}, 1, {v(N)}'); e(f'v_lshl_add_u32 {v(KW)}, {v(t1)}, 4, {v(KW)}')
    e(f'v_lshl_add_u32 {v(KW)}, {v(Gv)}, 6, {v(KW)}'); e(f'v_lshrrev_b32 {v(t1)}, 3, {v(N)}'); e(f'v_lshl_add_u32 {v(KW)}, {v(t1)}, 8, {v(KW)}')
    e(f's_lshl_b32 {s(sT)}, {s(sW)}, 9'); e(f'v_add_u32 {v(KW)}, {s(sT)}, {v(KW)}')
    e(f'v_and_b32 {v(FA2)}, 31, {v(LN)}'); e(f'v_lshlrev_b32 {v(FA2)}, 2, {v(FA2)}')
    e(f'v_lshlrev_b32 {v(t1)}, 1, {v(t1)}'); e(f'v_xor_b32 {v(t1)}, {v(t1)}, {v(Gv)}'); e(f'v_lshlrev_b32 {v(t1)}, 4, {v(t1)}'); e(f'v_lshl_add_u32 {v(HRD)}, {v(N)}, 6, {v(t1)}')
    e(f's_lshl_b32 {s(sT)}, {s(sM)}, 14'); e(f'v_add_u32 {v(HRD)}, {s(sT)}, {v(HRD)}')
    e(f'v_lshrrev_b32 {v(t1)}, 5, {v(LN)}'); e(f'v_lshlrev_b32 {v(t1)}, 1, {v(t1)}'); e(f'v_and_b32 {v(c_)}, 3, {v(LN)}'); e(f'v_xor_b32 {v(t1)}, {v(t1)}, {v(c_)}')
    e(f'v_lshlrev_b32 {v(t1)}, 4, {v(t1)}'); e(f'v_lshrrev_b32 {v(t2)}, 2, {v(LN)}'); e(f'v_lshl_add_u32 {v(HSR)}, {v(t2)}, 10, {v(t1)}')
    e(f'v_lshlrev_b32 {v(PSA)}, 15, {v(Gv)}'); e(f'v_lshl_add_u32 {v(PSA)}, {v(N)}, 2, {v(PSA)}')
    e(f's_lshl_b32 {s(sT)}, {s(sJ)}, 8'); e(f's_lshl_b32 {s(sT+1)}, {s(sW)}, 6'); e(f's_add_u32 {s(sT)}, {s(sT)}, {s(sT+1)}'); e(f'v_add_u32 {v(PSA)}, {s(sT)}, {v(PSA)}')
    e(f'v_lshlrev_b32 {v(t1)}, 2, {v(Gv)}'); e(f'v_sub_u32 {v(MSK)}, {v(N)}, {v(t1)}')
    e(f'v_mov_b32 {v(ZR+1)}, 0')
    A64,B0,B1,A32,C0,C1,A32b=24,25,26,27,28,29,30
    e(f'v_lshrrev_b32 {v(r)}, 2, {v(N)}'); e(f'v_and_b32 {v(g1)}, 1, {v(Gv)}')
    e(f'v_lshlrev_b32 {v(B0)}, 8, {v(Gv)}'); e(f'v_lshl_add_u32 {v(B0)}, {v(c_)}, 3, {v(B0)}'); e(f'v_add_u32 {v(B0)}, {s(sRing)}, {v(B0)}')
    e(f'v_lshl_add_u32 {v(C0)}, {v(r)}, 5, {v(B0)}'); e(f'v_lshl_add_u32 {v(C0)}, {v(g1)}, 7, {v(C0)}'); e(f'v_xor_b32 {v(C1)}, 128, {v(C0)}')
    e(f'v_lshl_add_u32 {v(B0)}, {v(r)}, 6, {v(B0)}'); e(f'v_lshl_add_u32 {v(B0)}, {v(g1)}, 5, {v(B0)}'); e(f'v_xor_b32 {v(B1)}, 32, {v(B0)}')
    e(f'v_lshlrev_b32 {v(t1)}, 1, {v(g1)}'); e(f'v_xor_b32 {v(t1)}, {v(t1)}, {v(c_)}'); e(f'v_lshlrev_b32 {v(t1)}, 4, {v(t1)}')
    e(f'v_lshl_add_u32 {v(A64)}, {v(Gv)}, 3, {v(r)}'); e(f'v_mul_u32_u24 {v(A64)}, 3584, {v(A64)}'); e(f'v_add_u32 {v(A64)}, {v(A64)}, {v(t1)}')
    e(f's_min_u32 {s(sT)}, {s(sJ)}, 27'); e(f's_lshl_b32 {s(sT)}, {s(sT)}, 7'); e(f's_lshl_b32 {s(sT+1)}, {s(sEh)}, 6'); e(f's_add_u32 {s(sT)}, {s(sT)}, {s(sT+1)}'); e(f'v_add_u32 {v(A64)}, {s(sT)}, {v(A64)}')
    e(f'v_lshrrev_b32 {v(t1)}, 3, {v(N)}'); e(f'v_xor_b32 {v(t1)}, {v(t1)}, {v(g1)}'); e(f'v_bfe_u32 {v(t2)}, {v(N)}, 1, 2')
    e(f'v_lshl_add_u32 {v(t2)}, {v(t1)}, 4, {v(t2)}'); e(f'v_lshl_add_u32 {v(t2)}, {v(Gv)}, 2, {v(t2)}'); e(f'v_and_b32 {v(t1)}, 1, {v(N)}'); e(f'v_lshlrev_b32 {v(t1)}, 4, {v(t1)}')
    e(f'v_lshl_add_u32 {v(A32)}, {v(t2)}, 10, {v(t1)}')
    e(f's_lshl_b32 {s(sT)}, {s(sCq)}, 7'); e(f's_lshl_b32 {s(sT+1)}, {s(sW)}, 5'); e(f's_add_u32 {s(sT)}, {s(sT)}, {s(sT+1)}')
    e(f's_mul_i32 {s(sT+1)}, {s(sKq)}, {448*1024}'); e(f's_add_u32 {s(sT+1)}, {s(sT+1)}, {s(sT)}'); e(f'v_add_u32 {v(A32b)}, {s(sT+1)}, {v(A32)}')
    e(f's_lshl_b32 {s(sT+1)}, {s(sKq)}, 20'); e(f's_add_u32 {s(sT+1)}, {s(sT+1)}, {s(sT)}'); e(f'v_add_u32 {v(A32)}, {s(sT+1)}, {v(A32)}')
    blocks=[]
    mv=lambda o: (lambda reg: [f's_mov_b32 {s(reg)}, {o}'])
    for ks in range(32): blocks.append((srd(PWO,4<<20) if ks%4==0 else None, A32, mv(ks*32768), [(a(4*ks,2),C0,0),(a(4*ks+2,2),C1,0)]))
    for ks in range(16):
        for jh in range(2): blocks.append((srd(PW1,512*3584) if ks%2==0 and jh==0 else None, A64, mv((32*ks+4*jh)*3584), [(a(128+4*ks+2*jh,2),B0,0),(a(192+4*ks+2*jh,2),B1,0)]))
    for ks in range(16):
        kk=min(ks,13); blocks.append((srd(PW2,1792*1024) if ks%4==0 else None, A32b, mv(kk*32768), [(v(200+4*ks,2),C0,0),(v(202+4*ks,2),C1,0)] if ks<14 else []))
    head,rest=wstream(blocks,sRing)
    p+=head+rest
    if sync: p+=dbg_wait(132,64,16)
    e(f's_mov_b32 {s(sT)}, {MOD_OFF+2048}')
    for i in range(4): e(f'buffer_load_dwordx4 {v(16+4*i,4)}, {v(L16)}, {s(WS,4)}, {s(sT)} offen offset:{1024*i} sc1')
    for i in range(16): p+=unp(MODV+2*i,16+i)
    for i in range(16,24): e(f'v_add_f32 {v(MODV+i)}, 1.0, {v(MODV+i)}')
    for i in range(16,24,2): p+=rnd(MODV+i,MODV+i+1,16)
    p+=poll(FA2,s(sFr),'1',16,BF_XC-BF_GB)
    e(f'v_cmp_ne_u32 vcc, {s(sFast)}, v16')
    e(f's_mov_b32 {s(sSeg)}, {s(sGrp)}'); e(f's_mov_b32 {s(sCnt)}, 1')
    p+=srd(PX,2048*1024)
    e('s_barrier')
    e('s_cbranch_vccnz L_p2_S')
    return fix(p,'p2s')

def p2_loop(mode, sync):
    sc=' sc1' if mode=='S' else ''
    L=f'L_p2_{mode}'
    p=[L+':']; e=p.append
    nb=[0]
    def gbar():
        nb[0]+=1; k=f'{L}_g{nb[0]}'
        return ['s_waitcnt vmcnt(0)','s_barrier', f's_add_u32 {s(sEp)}, {s(sEp)}, 1', f's_cmp_lg_u32 {s(sW)}, 0', f's_cbranch_scc1 {k}',
                f'v_mov_b32 v14, {s(sEp)}','s_mov_b64 exec, 1', f'buffer_store_dword v14, off, {s(WS,4)}, {s(sFw)}{sc}','s_mov_b64 exec, -1']+poll(FA2,s(sFr),s(sEp),14)+[k+':','s_barrier']
    QF=16; KF=32; VF=64; KV=80; S0=92; OA=104; T=120; MX=121; SUM=122; PXr=124; KM=128; XR=136; X1=140
    if sync: p+=poll(ZR+1,s(sQf),s(sCnt),14)
    e(f's_lshl_b32 {s(sT)}, {s(sSeg)}, 5'); e(f's_add_u32 {s(sT)}, {s(sT)}, {s(sJ)}')
    e(f's_lshl_b32 {s(sT+6)}, {s(sT)}, 10')
    e(f's_lshl_b32 {s(sT+1)}, {s(sT)}, 13'); e(f's_lshl_b32 {s(sT+2)}, {s(sM)}, 12'); e(f's_add_u32 {s(sT+1)}, {s(sT+1)}, {s(sT+2)}'); e(f's_add_u32 {s(sT+1)}, {s(sT+1)}, {Q_OFF}')
    e(f's_lshl_b32 {s(sT+2)}, {s(sT)}, 14'); e(f's_add_u32 {s(sT+2)}, {s(sT+2)}, {KV_OFF}'); e(f's_add_u32 {s(sT+3)}, {s(sT+2)}, 4096')
    e(f's_lshl_b32 {s(sT+4)}, {s(sEh)}, 12'); e(f's_add_u32 {s(sT+4)}, {s(sT+4)}, {s(sT+2)}'); e(f's_add_u32 {s(sT+4)}, {s(sT+4)}, 8192')
    e(f's_lshl_b32 {s(sT+5)}, {s(sT)}, 12'); e(f's_add_u32 {s(sT+5)}, {s(sT+5)}, {KVM_OFF}')
    for i in range(4): e(f'buffer_load_dwordx4 {v(QF+4*i,4)}, {v(L16)}, {s(WS,4)}, {s(sT+1)} offen offset:{1024*i} sc1')
    for i in range(8): e(f'buffer_load_dwordx4 {v(KF+4*i,4)}, {v(L16)}, {s(WS,4)}, {s(sT+2+(i>>2))} offen offset:{1024*(i&3)} sc1')
    for i in range(4): e(f'buffer_load_dwordx4 {v(VF+4*i,4)}, {v(L16)}, {s(WS,4)}, {s(sT+4)} offen offset:{1024*i} sc1')
    e(f'buffer_load_dwordx4 {v(XR,4)}, {v(L16)}, {s(SRD,4)}, {s(sT+6)} offen')
    for m in range(2):
        for ks in range(4): e(f'{MF32} {v(S0+4*m,4)}, {v(KF+16*m+4*ks,4)}, {v(QF+4*ks,4)}, '+(v(S0+4*m,4) if ks else '0'))
    e(f'v_mov_b64 {v(S0+8,2)}, 0'); e(f'v_mov_b64 {v(S0+10,2)}, 0')
    def sround(a_): return rnd(a_,a_+1,T)+[f'v_mul_f32 {v(a_)}, {s(sScale)}, {v(a_)}', f'v_mul_f32 {v(a_+1)}, {s(sScale)}, {v(a_+1)}']+rnd(a_,a_+1,T)
    for i in range(0,8,2): p+=sround(S0+i)
    e(f's_lshl_b32 {s(sT+1)}, {s(sM)}, 4'); e(f'v_add_u32 {v(T)}, {s(sT+1)}, {v(MSK)}'); e(f'v_mov_b32 {v(SUM)}, {hex(f2u(-999292928.0))}')
    for i in range(8):
        e(f'v_cmp_le_i32 vcc, {16*(i>>2)+(i&3)}, {v(T)}'); e(f'v_cndmask_b32 {v(S0+i)}, {v(SUM)}, {v(S0+i)}, vcc')
    e(f'v_max3_f32 {v(MX)}, {v(S0)}, {v(S0+1)}, {v(S0+2)}'); e(f'v_max3_f32 {v(MX)}, {v(MX)}, {v(S0+3)}, {v(S0+4)}'); e(f'v_max3_f32 {v(MX)}, {v(MX)}, {v(S0+5)}, {v(S0+6)}'); e(f'v_max_f32 {v(MX)}, {v(MX)}, {v(S0+7)}')
    if sync:
        e(f's_add_u32 {s(sT+1)}, {s(sSeg)}, 1'); p+=poll(ZR+1,s(sMf),s(sT+1),14)
    e(f's_lshl_b32 {s(sT+1)}, {s(sEh)}, 11'); e(f's_add_u32 {s(sT+1)}, {s(sT+1)}, {s(sT+5)}'); e(f's_lshl_b32 {s(sT+2)}, {s(sW)}, 10'); e(f's_add_u32 {s(sT+2)}, {s(sT+2)}, {s(sT+5)}')
    e(f'buffer_load_dwordx4 {v(KV+8,4)}, {v(L16)}, {s(WS,4)}, {s(sT+2)} offen sc1')
    for i in range(2): e(f'buffer_load_dwordx4 {v(KV+4*i,4)}, {v(L16)}, {s(WS,4)}, {s(sT+1)} offen offset:{1024*i} sc1')
    e(f'ds_write2_b32 {v(KW)}, {v(KV+9)}, {v(KV+11)} offset0:0 offset1:8'); e('s_waitcnt lgkmcnt(0)'); e('s_barrier')
    for k in range(2): e(f'ds_read_b128 {v(KM+4*k,4)}, {v(L16)} offset:{1024*k}')
    for k in range(2): e(f'{SMF} {v(S0+8,4)}, {v(KM+4*k,4)}, {v(QF+8*k,8)}, {v(IDX)}')
    e(f'v_add_f32 {v(S0+8)}, {v(S0+8)}, {v(S0+9)}'); e(f'v_add_f32 {v(S0+9)}, {v(S0+10)}, {v(S0+11)}')
    p+=sround(S0+8)
    e(f'v_max3_f32 {v(MX)}, {v(MX)}, {v(S0+8)}, {v(S0+9)}'); p+=xg('v_max_f32',MX,T)
    for i in range(10): e(f'v_sub_f32 {v(S0+i)}, {v(S0+i)}, {v(MX)}')
    for i in range(10): e(f'v_mul_f32 {v(S0+i)}, {s(sLg)}, {v(S0+i)}')
    for i in range(10): e(f'v_exp_f32 {v(S0+i)}, {v(S0+i)}')
    e(f'v_add_f32 {v(SUM)}, {v(S0)}, {v(S0+1)}')
    for i in range(2,10): e(f'v_add_f32 {v(SUM)}, {v(SUM)}, {v(S0+i)}')
    p+=xg('v_add_f32',SUM,T); e(f'v_rcp_f32 {v(SUM)}, {v(SUM)}')
    for i in range(10): e(f'v_mul_f32 {v(S0+i)}, {v(SUM)}, {v(S0+i)}')
    for i in range(4): e(f'v_cvt_pk_bf16_f32 {v(PXr+i)}, {v(S0+2*i)}, {v(S0+2*i+1)}')
    e(f'v_cvt_pk_bf16_f32 {v(ZR)}, {v(S0+8)}, {v(S0+9)}')
    for i in range(4): e(f'{MF32} {v(OA+4*i,4)}, {v(VF+4*i,4)}, {v(PXr,4)}, 0')
    for i in range(4): e(f'{MF16} {v(OA+4*i,4)}, {v(KV+2*i,2)}, {v(ZR,2)}, {v(OA+4*i,4)}')
    e(f's_lshl_b32 {s(sT+1)}, {s(sJ)}, 13'); e(f's_lshl_b32 {s(sT+2)}, {s(sEh)}, 12'); e(f's_add_u32 {s(sT+1)}, {s(sT+1)}, {s(sT+2)}'); e(f's_lshl_b32 {s(sT+2)}, {s(sM)}, 10')
    e(f's_add_u32 {s(sT+1)}, {s(sT+1)}, {s(sT+2)}'); e(f's_add_u32 {s(sT+1)}, {s(sT+1)}, {s(sGB)}')
    for k in range(2):
        for i in range(4): e(f'v_cvt_pk_bf16_f32 {v(QF+4*k+i)}, {v(OA+8*k+2*i)}, {v(OA+8*k+2*i+1)}')
        e(f'buffer_store_dwordx4 {v(QF+4*k,4)}, {v(L16)}, {s(WS,4)}, {s(sT+1)} offen offset:{G_O+2048*k}{sc}')
    p+=gbar()
    def gemm_part(src_lines, nks, wf, dst_off):
        o=list(src_lines)
        nfr=2*nks; per=nfr//4; nch=(per+3)//4
        sizes=[min(4,per-4*c) for c in range(nch)]
        base=0; starts=[]
        for c,sz in enumerate(sizes):
            starts.append(base)
            o+=[f's_mul_i32 {s(sT+2)}, {s(sW)}, {sz*1024}', f's_add_u32 {s(sT+2)}, {s(sT+2)}, {base*1024}', f's_add_u32 m0, {s(sT+2)}, 4096', f's_add_u32 {s(sT+2)}, {s(sT+2)}, {s(sT+1)}']
            o+=[f'buffer_load_dwordx4 {v(L16)}, {s(WS,4)}, {s(sT+2)} offen offset:{1024*i} sc1 lds' for i in range(sz)]
            base+=4*sz
        o+=[f'v_add_u32 {v(T)}, 4096, {v(L16)}']
        left=per
        for c,sz in enumerate(sizes):
            left-=sz
            o+=[f's_waitcnt vmcnt({left})','s_barrier']
            fr=list(range(starts[c],starts[c]+4*sz))
            rd=lambda f: f'ds_read_b128 {v(QF+4*(f%8),4)}, {v(T)} offset:{1024*f}'
            o+=[rd(f) for f in fr[:4]]
            for i,f in enumerate(fr):
                ac=v(OA+4*(f&1),4)
                o.append(f'{MF32} {ac}, {v(QF+4*(f%8),4)}, {wf(f>>1)}, '+(ac if f>1 else '0'))
                if i+4<len(fr): o.append(rd(fr[i+4]))
        for mt in range(2):
            for r in range(4):
                o+=[f's_add_u32 {s(sT+2)}, {s(sGB)}, {dst_off+(16*mt+r)*8192}', f'buffer_store_dword {v(OA+4*mt+r)}, {v(PSA)}, {s(WS,4)}, {s(sT+2)} offen{sc}']
        return o
    p+=gemm_part([f's_lshl_b32 {s(sT+1)}, {s(sKq)}, 16', f's_add_u32 {s(sT+1)}, {s(sT+1)}, {s(sGB)}'],32,WO,G_P1)
    p+=gbar()
    def rowsum(off):
        o=[f's_lshl_b32 {s(sT+1)}, {s(sJ)}, 13', f's_add_u32 {s(sT+1)}, {s(sT+1)}, {s(sGB)}', f's_add_u32 {s(sT+1)}, {s(sT+1)}, {off}', f's_add_u32 {s(sT+2)}, {s(sT+1)}, 4096', f'v_lshlrev_b32 {v(T)}, 1, {v(L16)}']
        for k in range(4):
            for hf in range(2): o.append(f'buffer_load_dwordx4 {v(QF+8*k+4*hf,4)}, {v(T)}, {s(WS,4)}, {s(sT+1+(k>>1))} offen offset:{2048*(k&1)+16*hf} sc1')
        for k in range(1,4):
            for i in range(8): o.append(f'v_add_f32 {v(QF+i)}, {v(QF+i)}, {v(QF+8*k+i)}')
        for i in range(0,8,2): o+=rnd(QF+i,QF+i+1,T)
        return o
    e(f's_cmp_lg_u32 {s(sW)}, 0'); e(f's_cbranch_scc1 {L}_n1')
    p+=rowsum(G_P1)
    for i in range(4): p+=unp(X1+2*i,XR+i)
    for i in range(8): e(f'v_mul_f32 {v(QF+i)}, {v(QF+i)}, {v(MODV+i)}')
    for i in range(0,8,2): p+=rnd(QF+i,QF+i+1,T)
    for i in range(8): e(f'v_add_f32 {v(X1+i)}, {v(X1+i)}, {v(QF+i)}')
    for i in range(0,8,2): p+=rnd(X1+i,X1+i+1,T)
    e(f'v_add_f32 {v(MX)}, {v(X1)}, {v(X1+1)}')
    for i in range(2,8): e(f'v_add_f32 {v(MX)}, {v(MX)}, {v(X1+i)}')
    p+=xrow(MX)+xg('v_add_f32',MX,T); e(f'v_mul_f32 {v(MX)}, {hex(f2u(1/512))}, {v(MX)}')
    for i in range(8):
        e(f'v_sub_f32 {v(T)}, {v(X1+i)}, {v(MX)}'); e(f'v_mul_f32 {v(SUM)}, {v(T)}, {v(T)}' if i==0 else f'v_fmac_f32 {v(SUM)}, {v(T)}, {v(T)}')
    p+=xrow(SUM)+xg('v_add_f32',SUM,T); e(f'v_mul_f32 {v(SUM)}, {hex(f2u(1/512))}, {v(SUM)}')
    p+=rnd(MX,SUM,T)
    e(f'v_add_f32 {v(SUM)}, {hex(f2u(1e-5))}, {v(SUM)}'); p+=rnd(SUM,SUM,T)[:2]
    e(f'v_sqrt_f32 {v(SUM)}, {v(SUM)}'); p+=rnd(SUM,SUM,T)[:2]
    e(f'v_rcp_f32 {v(SUM)}, {v(SUM)}')
    for i in range(8): e(f'v_sub_f32 {v(QF+i)}, {v(X1+i)}, {v(MX)}')
    for i in range(0,8,2): p+=rnd(QF+i,QF+i+1,T)
    for i in range(8): e(f'v_mul_f32 {v(QF+i)}, {v(QF+i)}, {v(SUM)}')
    for i in range(0,8,2): p+=rnd(QF+i,QF+i+1,T)
    for i in range(8): e(f'v_mul_f32 {v(QF+i)}, {v(QF+i)}, {v(MODV+16+i)}')
    for i in range(0,8,2): p+=rnd(QF+i,QF+i+1,T)
    for i in range(8): e(f'v_add_f32 {v(QF+i)}, {v(QF+i)}, {v(MODV+8+i)}')
    for i in range(4): e(f'v_cvt_pk_bf16_f32 {v(QF+8+i)}, {v(QF+2*i)}, {v(QF+2*i+1)}')
    e(f's_lshl_b32 {s(sT+1)}, {s(sJ)}, 10'); e(f's_add_u32 {s(sT+1)}, {s(sT+1)}, {s(sGB)}'); e(f's_add_u32 {s(sT+1)}, {s(sT+1)}, {G_H2}')
    e(f'buffer_store_dwordx4 {v(QF+8,4)}, {v(L16)}, {s(WS,4)}, {s(sT+1)} offen{sc}')
    p.append(f'{L}_n1:')
    p+=gbar()
    e(f's_cmp_ge_u32 {s(sJ)}, 28'); e(f's_cbranch_scc1 {L}_n2')
    e(f's_lshl_b32 {s(sT+1)}, {s(sEh)}, 14'); e(f's_lshl_b32 {s(sT+2)}, {s(sM)}, 9'); e(f's_add_u32 {s(sT+1)}, {s(sT+1)}, {s(sT+2)}'); e(f's_add_u32 {s(sT+1)}, {s(sT+1)}, {s(sGB)}'); e(f's_add_u32 {s(sT+1)}, {s(sT+1)}, {G_H2}')
    e(f's_lshl_b32 {s(sT+2)}, {s(sEh)}, 14'); e(f's_lshl_b32 {s(sT+3)}, {s(sM)}, 13'); e(f's_add_u32 {s(sT+2)}, {s(sT+2)}, {s(sT+3)}')
    for i in range(8):
        e(f's_add_u32 m0, {s(sT+2)}, {4096+1024*i}'); e(f's_add_u32 {s(sT+3)}, {s(sT+1)}, {64*i}')
        e(f'buffer_load_dwordx4 {v(HSR)}, {s(WS,4)}, {s(sT+3)} offen sc1 lds')
    e('s_waitcnt vmcnt(0)'); e('s_barrier')
    rd=lambda ks: f'ds_read_b128 {v(QF+4*(ks%8),4)}, {v(HRD)} offset:{4096+1024*ks}'
    for ks in range(4): e(rd(ks))
    for ks in range(16):
        for t in range(2): e(f'{MF32} {v(OA+4*t,4)}, {W1(t,ks)}, {v(QF+4*(ks%8),4)}, '+(v(OA+4*t,4) if ks else '0'))
        if ks+4<16: e(rd(ks+4))
    e(f's_lshl_b32 {s(sT+1)}, {s(sJ)}, 12'); e(f's_lshl_b32 {s(sT+2)}, {s(sEh)}, 11'); e(f's_add_u32 {s(sT+1)}, {s(sT+1)}, {s(sT+2)}'); e(f's_lshl_b32 {s(sT+2)}, {s(sM)}, 10')
    e(f's_add_u32 {s(sT+1)}, {s(sT+1)}, {s(sT+2)}'); e(f's_add_u32 {s(sT+1)}, {s(sT+1)}, {s(sGB)}'); e(f's_add_u32 {s(sT+1)}, {s(sT+1)}, {G_F1}')
    for i in range(8): e(f'v_max_f32 {v(OA+i)}, 0, {v(OA+i)}')
    for i in range(4): e(f'v_cvt_pk_bf16_f32 {v(PXr+i)}, {v(OA+2*i)}, {v(OA+2*i+1)}')
    e(f'buffer_store_dwordx4 {v(PXr,4)}, {v(L16)}, {s(WS,4)}, {s(sT+1)} offen{sc}')
    p.append(f'{L}_n2:')
    p+=gbar()
    p+=gemm_part([f's_mul_i32 {s(sT+1)}, {s(sKq)}, 28672', f's_add_u32 {s(sT+1)}, {s(sT+1)}, {s(sGB)}', f's_add_u32 {s(sT+1)}, {s(sT+1)}, {G_F1}'],14,W2,G_P2)
    p+=gbar()
    e(f's_cmp_lg_u32 {s(sW)}, 0'); e(f's_cbranch_scc1 {L}_n3')
    p+=rowsum(G_P2)
    for i in range(8): e(f'v_mul_f32 {v(QF+i)}, {v(QF+i)}, {v(MODV+24+i)}')
    for i in range(0,8,2): p+=rnd(QF+i,QF+i+1,T)
    for i in range(8): e(f'v_add_f32 {v(QF+i)}, {v(QF+i)}, {v(X1+i)}')
    for i in range(4): e(f'v_cvt_pk_bf16_f32 {v(QF+8+i)}, {v(QF+2*i)}, {v(QF+2*i+1)}')
    e(f'v_add_u32 {v(T)}, {s(sT+6)}, {v(L16)}')
    e(f'global_store_dwordx4 {v(T)}, {v(QF+8,4)}, {s(POUT,2)}')
    e('s_nop 1')
    p.append(f'{L}_n3:')
    e(f's_add_u32 {s(sSeg)}, {s(sSeg)}, 7'); e(f's_add_u32 {s(sCnt)}, {s(sCnt)}, 1'); e(f's_cmp_lt_u32 {s(sSeg)}, 64'); e(f's_cbranch_scc1 {L}')
    e('s_endpgm')
    r=fix(p,'p2'+mode); check(r+r,'p2loop')
    return r
```

```python
from asmlib import *
from layout import *
import math, struct

T0=0; IDX=1; L16=2; LW=3; QW=4; QR=5; KW=6; OW=7; ORD=8; PST=9; MPUB=10; H2A=11
ONES=12; PM=16; KVQ=20; QA=24; KA=32; VA=40; M=48; X=80; STG=112; RES=128
L_MEM=0; L_Q=8192; L_K=10240; L_O=12288; L_SEL=14336; L_KX=16384; L_WV=24576; WREG=34816
WS=4; WSRD=8; DBG=12; sH=14; sW=15; sStep=16; sC=17; sKsrc=18; sVsrc=19; sKvm=20
sPst=21
sPin=23
sPrst=25
sPslot=27; sMdst=28; sSpinU=29; sPinB=30
sMemIn0=31; sMemB=32; sMemPub=33; sMemRst=34; sSlot=35; sSpin=36
sKdst=37
sVdst=39
sT=42
sPtr=52
sTime=70
sOne=92
sC2=94
sEx=50; sSpinF=96; sFlag=98; sFlagB=99; sMB=100

SMF='v_smfmac_f32_16x16x64_bf16'; MF32='v_mfma_f32_16x16x32_bf16'; MF16='v_mfma_f32_16x16x16_bf16'

lds_groups=[('q',0),('q',1),('q',2),('q',3),('o',0,0),('o',2,1),('o',3,0),('o',3,1)]
all_groups=[(m,c) for m in 'qkv' for c in range(8)]+[('o',tp,k) for tp in range(4) for k in range(2)]
res_groups=[g for g in all_groups if g not in lds_groups]
gloc={}
for i,g in enumerate(res_groups):
    gloc[g]=('a',16*i) if i<16 else ('v',RES+16*(i-16))
stream={('q',0,0):M+16,('q',0,1):M+24,('q',1,0):KA,('q',1,1):VA,
        ('q',2,0):X,('q',2,1):X+8,('q',3,0):X+16,('q',3,1):X+24,
        ('o',0,0,0):X+8,('o',0,0,1):X+24,('o',2,1,0):X,('o',2,1,1):X+16,('o',3,0,0):KA,('o',3,0,1):VA,('o',3,1,0):X+8,('o',3,1,1):X+24}
def unit(g,t):
    if g in gloc:
        p,b=gloc[g]; return R(p,b+8*t,8)
    return v(stream[g+(t,)],8)
def stream_reads(g,t):
    off=lds_groups.index(g)*4096+t*2048; b=stream[g+(t,)]
    return [f'ds_read_b128 {v(b,4)}, {v(LW)} offset:{off}', f'ds_read_b128 {v(b+4,4)}, {v(LW)} offset:{off+1024}']
def zero(b,n,val='0'):
    return [f'v_mov_b64 {v(b+i,2)}, {val}' for i in range(0,n,2)]

def prologue(A, timing):
    p=[]
    e=p.append
    e(f's_load_dwordx4 {s(sPtr,4)}, s[0:1], 8')
    e(f's_load_dwordx4 {s(sPtr+4,4)}, s[0:1], 24')
    e(f's_load_dwordx2 {s(sPtr+8,2)}, s[0:1], 40')
    e(f's_load_dwordx2 {s(DBG,2)}, s[0:1], 104')
    e(f's_load_dwordx2 {s(WS,2)}, s[0:1], 112')
    if timing: e(f's_memrealtime {s(sTime,2)}')
    e(f'v_lshrrev_b32 {v(X)}, 6, v0')
    e(f'v_and_b32 {v(X+1)}, 63, v0')
    e(f'v_readfirstlane_b32 {s(sW)}, {v(X)}')
    e(f's_mov_b32 {s(WS+2)}, {WS_BYTES}')
    e(f's_mov_b32 {s(WS+3)}, 0x20000')
    e(f's_mov_b32 {s(WSRD+2)}, {4<<20}')
    e(f's_mov_b32 {s(WSRD+3)}, 0x20000')
    ln=X+1; n=X+2; g=X+3; t1=X+4; t2=X+5; VOA=X+16; VOO=X+17; TR0=X+18; TR1=X+19; TRO=X+20
    e(f'v_and_b32 {v(n)}, 15, {v(ln)}')
    e(f'v_lshrrev_b32 {v(g)}, 4, {v(ln)}')
    e(f'v_lshlrev_b32 {v(L16)}, 4, {v(ln)}')
    e(f's_mul_i32 {s(sT)}, {s(sW)}, {WREG}')
    e(f's_add_u32 {s(sT)}, {s(sT)}, {L_WV}')
    e(f'v_add_u32 {v(LW)}, {s(sT)}, {v(L16)}')
    e(f's_add_u32 {s(sVdst)}, {s(sT)}, 32768')
    e(f's_lshl_b32 {s(sT+1)}, {s(sW)}, 11')
    e(f's_add_u32 {s(sKdst)}, {s(sT+1)}, {L_KX}')
    e(f'v_and_b32 {v(t1)}, 1, {v(ln)}')
    e(f'v_mul_u32_u24 {v(t1)}, 0xaaaa, {v(t1)}')
    e(f'v_add_u32 {v(IDX)}, 0x4444, {v(t1)}')
    e(f's_lshl_b32 {s(sT+2)}, {s(sW)}, 9')
    e(f'v_lshrrev_b32 {v(t1)}, 2, {v(n)}')
    e(f'v_lshlrev_b32 {v(QW)}, 7, {v(t1)}')
    e(f'v_and_b32 {v(t1)}, 1, {v(t1)}')
    e(f'v_lshlrev_b32 {v(t1)}, 6, {v(t1)}')
    e(f'v_lshlrev_b32 {v(t2)}, 5, {v(g)}')
    e(f'v_xor_b32 {v(t1)}, {v(t1)}, {v(t2)}')
    e(f'v_add_u32 {v(QW)}, {v(QW)}, {v(t1)}')
    e(f'v_and_b32 {v(t1)}, 3, {v(n)}')
    e(f'v_lshl_add_u32 {v(QW)}, {v(t1)}, 2, {v(QW)}')
    e(f'v_add_u32 {v(QW)}, {s(sT+2)}, {v(QW)}')
    e(f'v_add_u32 {v(QW)}, {L_Q}, {v(QW)}')
    e(f'v_and_b32 {v(t1)}, 1, {v(g)}')
    e(f'v_lshlrev_b32 {v(t1)}, 2, {v(t1)}')
    e(f'v_and_b32 {v(t2)}, 7, {v(n)}')
    e(f'v_xor_b32 {v(t1)}, {v(t1)}, {v(t2)}')
    e(f'v_lshlrev_b32 {v(t1)}, 4, {v(t1)}')
    e(f'v_lshl_add_u32 {v(QR)}, {v(g)}, 7, {v(t1)}')
    e(f'v_lshlrev_b32 {v(t2)}, 4, {v(t2)}')
    e(f'v_lshl_add_u32 {v(OW)}, {v(g)}, 7, {v(t2)}')
    e(f'v_add_u32 {v(OW)}, {s(sT+2)}, {v(OW)}')
    e(f'v_lshlrev_b32 {v(ORD)}, 7, {v(g)}')
    e(f'v_lshrrev_b32 {v(t1)}, 1, {v(n)}')
    e(f'v_lshl_add_u32 {v(ORD)}, {v(t1)}, 4, {v(ORD)}')
    e(f'v_and_b32 {v(t1)}, 3, {v(t1)}')
    e(f'v_lshlrev_b32 {v(KW)}, 2, {v(t1)}')
    e(f'v_and_b32 {v(t1)}, 1, {v(n)}')
    e(f'v_lshl_add_u32 {v(KW)}, {v(t1)}, 4, {v(KW)}')
    e(f'v_lshl_add_u32 {v(KW)}, {v(g)}, 6, {v(KW)}')
    e(f'v_lshrrev_b32 {v(t1)}, 3, {v(n)}')
    e(f'v_lshl_add_u32 {v(KW)}, {v(t1)}, 8, {v(KW)}')
    e(f'v_add_u32 {v(KW)}, {s(sT+2)}, {v(KW)}')
    e(f'v_add_u32 {v(KW)}, {L_K}, {v(KW)}')
    e(f's_lshl_b32 {s(sT+3)}, {s(sW)}, 15')
    e(f's_lshl_b32 {s(sT+4)}, {s(sH)}, 8')
    e(f'v_lshrrev_b32 {v(t1)}, 2, {v(n)}')
    e(f'v_lshlrev_b32 {v(t1)}, 11, {v(t1)}')
    e(f'v_add_u32 {v(t1)}, {s(sT+4)}, {v(t1)}')
    e(f'v_and_b32 {v(t1)}, 0x1fff, {v(t1)}')
    e(f'v_lshl_add_u32 {v(PST)}, {v(g)}, 13, {v(t1)}')
    e(f'v_lshl_add_u32 {v(PST)}, {v(n)}, 4, {v(PST)}')
    e(f'v_add_u32 {v(PST)}, {s(sT+3)}, {v(PST)}')
    Rp=OPT['rep']
    e(f's_and_b32 {s(sFlagB)}, {s(sH)}, {Rp-1}'); e(f's_lshl_b32 {s(sFlagB)}, {s(sFlagB)}, 8'); e(f's_add_u32 {s(sFlagB)}, {s(sFlagB)}, {FLAG_OFF}')
    e(f's_mov_b32 {s(sEx)}, {0x10001 if Rp>1 else 1}'); e(f's_mov_b32 {s(sEx+1)}, {0x10001 if Rp>2 else 0}')
    e(f's_mov_b32 {s(sOne)}, 0x3f803f80'); e(f's_mov_b32 {s(sOne+1)}, 0x3f803f80')
    e(f's_lshl_b32 {s(sFlag)}, {s(sH)}, 2')
    e(f's_add_u32 {s(sFlag)}, {s(sFlag)}, {FLAG_OFF}')
    e(f'v_lshrrev_b32 {v(t1)}, 2, {v(n)}')
    e(f'v_lshlrev_b32 {v(MPUB)}, 6, {v(t1)}')
    e(f'v_lshlrev_b32 {v(H2A)}, 8, {v(t1)}')
    e(f'v_and_b32 {v(t1)}, 1, {v(g)}')
    e(f'v_lshl_add_u32 {v(MPUB)}, {v(t1)}, 5, {v(MPUB)}')
    e(f'v_and_b32 {v(t1)}, 3, {v(n)}')
    e(f'v_lshl_add_u32 {v(MPUB)}, {v(t1)}, 3, {v(MPUB)}')
    e(f'v_lshrrev_b32 {v(t2)}, 1, {v(g)}')
    e(f'v_lshl_add_u32 {v(MPUB)}, {v(t2)}, 31, {v(MPUB)}')
    e(f'v_lshl_add_u32 {v(H2A)}, {v(t1)}, 4, {v(H2A)}')
    e(f'v_lshl_add_u32 {v(H2A)}, {v(g)}, 6, {v(H2A)}')
    r=X+6; cb=X+7
    e(f'v_lshrrev_b32 {v(r)}, 2, {v(n)}')
    e(f'v_and_b32 {v(t2)}, 1, {v(g)}')
    e(f'v_lshlrev_b32 {v(cb)}, 1, {v(t2)}')
    e(f'v_xor_b32 {v(cb)}, {v(cb)}, {v(t1)}')
    e(f'v_lshlrev_b32 {v(cb)}, 4, {v(cb)}')
    e(f'v_lshlrev_b32 {v(TR0)}, 8, {v(g)}')
    e(f'v_lshl_add_u32 {v(TR0)}, {v(r)}, 6, {v(TR0)}')
    e(f'v_lshl_add_u32 {v(TR0)}, {v(t2)}, 5, {v(TR0)}')
    e(f'v_lshl_add_u32 {v(TR0)}, {v(t1)}, 3, {v(TR0)}')
    e(f'v_add_u32 {v(TR0)}, {s(sT)}, {v(TR0)}')
    e(f'v_xor_b32 {v(TR1)}, 32, {v(TR0)}')
    r0=X+8; r1=X+9; g1=X+10
    e(f'v_and_b32 {v(r0)}, 1, {v(r)}')
    e(f'v_lshrrev_b32 {v(r1)}, 1, {v(r)}')
    e(f'v_lshrrev_b32 {v(g1)}, 1, {v(g)}')
    e(f'v_lshl_add_u32 {v(VOA)}, {v(r0)}, 4, {v(t2)}')
    e(f'v_lshl_add_u32 {v(VOA)}, {v(r1)}, 1, {v(VOA)}')
    e(f'v_lshl_add_u32 {v(VOA)}, {v(g1)}, 2, {v(VOA)}')
    e(f'v_lshl_add_u32 {v(VOA)}, {v(VOA)}, 13, {v(cb)}')
    e(f's_lshl_b32 {s(sT+5)}, {s(sW)}, 6')
    e(f's_add_u32 {s(sT+5)}, {s(sT+5)}, {s(sT+4)}')
    e(f'v_add_u32 {v(VOA)}, {s(sT+5)}, {v(VOA)}')
    e(f'v_xor_b32 {v(TRO)}, {v(r1)}, {v(t2)}')
    e(f'v_lshlrev_b32 {v(TRO)}, 5, {v(TRO)}')
    e(f'v_lshl_add_u32 {v(TRO)}, {v(g)}, 8, {v(TRO)}')
    e(f'v_lshl_add_u32 {v(TRO)}, {v(r0)}, 6, {v(TRO)}')
    e(f'v_lshl_add_u32 {v(TRO)}, {v(t1)}, 3, {v(TRO)}')
    e(f'v_add_u32 {v(TRO)}, {s(sT)}, {v(TRO)}')
    e(f'v_lshl_add_u32 {v(VOO)}, {v(t2)}, 4, {v(r)}')
    e(f'v_lshl_add_u32 {v(VOO)}, {v(g1)}, 2, {v(VOO)}')
    e(f'v_lshl_add_u32 {v(VOO)}, {v(VOO)}, 10, {v(cb)}')
    e(f's_lshl_b32 {s(sT+5)}, {s(sW)}, 8')
    e(f's_lshl_b32 {s(sT+6)}, {s(sH)}, 17')
    e(f's_add_u32 {s(sT+5)}, {s(sT+5)}, {s(sT+6)}')
    e(f'v_add_u32 {v(VOO)}, {s(sT+5)}, {v(VOO)}')
    cval=struct.unpack('<I',struct.pack('<f',math.log2(math.e)/math.sqrt(128)))[0]
    e(f's_mov_b32 {s(sC)}, {hex(cval)}')
    e(f's_mov_b32 {s(sStep)}, 0')
    e(f's_mov_b32 {s(sSpin)}, 0')
    e(f's_mov_b32 {s(sC2)}, {hex(cval)}'); e(f's_mov_b32 {s(sC2+1)}, {hex(cval)}')
    e(f's_mov_b32 {s(sSpinU)}, 0'); e(f's_mov_b32 {s(sSpinF)}, 0')
    e(f's_mov_b32 {s(sPslot)}, {3*262144}')
    e(f's_lshl_b32 {s(sT+5)}, {s(sH)}, 13')
    e(f's_add_u32 {s(sPinB)}, {s(sT+5)}, {PART_OFF}')
    e(f's_add_u32 {s(sPrst+1)}, {s(sPinB)}, {s(sT+1)}')
    e(f's_add_u32 {s(sPrst)}, {s(sPrst+1)}, {2*262144}')
    e(f's_add_u32 {s(sMemB)}, {s(sT+4)}, {MEM_OFF}')
    e(f's_lshl_b32 {s(sT+5)}, {s(sH)}, 14')
    e(f's_add_u32 {s(sKsrc)}, {s(sT+5)}, {s(sT+1)}')
    e(f's_add_u32 {s(sKsrc)}, {s(sKsrc)}, {KV_OFF}')
    e(f's_add_u32 {s(sVsrc)}, {s(sKsrc)}, 8192')
    e(f's_lshl_b32 {s(sT+5)}, {s(sH)}, 12')
    e(f's_lshl_b32 {s(sT+6)}, {s(sW)}, 10')
    e(f's_add_u32 {s(sKvm)}, {s(sT+5)}, {s(sT+6)}')
    e(f's_add_u32 {s(sKvm)}, {s(sKvm)}, {KVM_OFF}')
    e(f's_mov_b32 {s(sSlot)}, 0')
    p+=zero(ONES,4,'-1')
    p+=zero(PM,4)
    p+=zero(KVQ,4,'-1')
    e('s_waitcnt lgkmcnt(0)')
    e(f's_lshl_b32 {s(sT+5)}, {s(sW)}, 18')
    e(f's_add_u32 {s(sT+5)}, {s(sT+5)}, {s(sPinB)}')
    e(f's_add_u32 {s(sT+6)}, {s(sT+5)}, 4096')
    for j in range(8):
        e(f'buffer_store_dwordx4 {v(KVQ,4)}, {v(L16)}, {s(WS,4)}, {s(sT+5+(j>>2))} offen offset:{(j&3)*1024} sc1')
    e(f's_lshl_b32 {s(sT+5)}, {s(sW)}, 13')
    e(f's_add_u32 {s(sT+5)}, {s(sT+5)}, {s(sT+4)}')
    e(f's_add_u32 {s(sT+5)}, {s(sT+5)}, {MEM_OFF}')
    e(f'buffer_store_dwordx2 {v(KVQ,2)}, {v(MPUB)}, {s(WS,4)}, {s(sT+5)} offen sc1')
    e(f's_mov_b64 exec, {s(sEx,2)}')
    e(f'buffer_store_dword {v(PM)}, {v(L16)}, {s(WS,4)}, {s(sFlag)} offen sc1')
    e('s_mov_b64 exec, -1')
    mo=X+11
    e(f'v_lshrrev_b32 {v(mo)}, 1, {v(n)}')
    e(f'v_lshlrev_b32 {v(mo)}, 10, {v(mo)}')
    e(f'v_lshl_add_u32 {v(mo)}, {v(g)}, 3, {v(mo)}')
    e(f'v_and_b32 {v(t1)}, 1, {v(n)}')
    e(f'v_lshl_add_u32 {v(mo)}, {v(t1)}, 2, {v(mo)}')
    e(f's_and_b32 {s(sT+5)}, {s(sW)}, 1'); e(f's_lshl_b32 {s(sT+5)}, {s(sT+5)}, 9')
    e(f's_lshr_b32 {s(sT+6)}, {s(sW)}, 1'); e(f's_lshl_b32 {s(sT+6)}, {s(sT+6)}, 7')
    e(f's_add_u32 {s(sT+5)}, {s(sT+5)}, {s(sT+6)}')
    e(f'v_add_u32 {v(mo)}, {s(sT+5)}, {v(mo)}')
    for u in range(2):
        for x in range(4):
            e(f'global_load_dword {v(QA+4*u+x)}, {v(mo)}, {s(sPtr,2)} offset:{256*u+32*x}')
    order=res_groups+lds_groups
    ptr={'q':sPtr+2,'k':sPtr+4,'v':sPtr+6,'o':sPtr+8}
    cur=[None]
    def issue(gi):
        g_=order[gi]; slot0=(4*gi)%32
        if cur[0]!=g_[0]:
            cur[0]=g_[0]
            e(f's_mov_b32 {s(WSRD)}, {s(ptr[g_[0]])}'); e(f's_mov_b32 {s(WSRD+1)}, {s(ptr[g_[0]]+1)}')
        for b in range(4):
            hb,jh=b>>1,b&1
            e(f's_add_u32 m0, {s(sT)}, {(slot0+b)*1024}')
            if g_[0]=='o':
                vo=VOO; e(f's_mov_b32 {s(sT+7)}, {(32*(2*g_[2]+hb)+8*jh)*1024+g_[1]*64}')
            else:
                c=g_[1]; vo=VOA; e(f's_mov_b32 {s(sT+7)}, {(128*(c&3)+64*(c>>2)+32*jh+8*hb)*8192}')
            e(f'buffer_load_dwordx4 {v(vo)}, {s(WSRD,4)}, {s(sT+7)} offen lds')
    for gi in range(8): issue(gi)
    e('s_waitcnt vmcnt(32)')
    e(f's_mov_b32 {s(sT+5)}, 0x05040100'); e(f's_mov_b32 {s(sT+6)}, 0x07060302')
    e(f'v_add_u32 {v(T0)}, {s(sT+1)}, {v(L16)}')
    for u in range(2):
        d=M+4*u; q=QA+4*u
        e(f'v_perm_b32 {v(d)}, {v(q+1)}, {v(q)}, {s(sT+5)}')
        e(f'v_perm_b32 {v(d+1)}, {v(q+3)}, {v(q+2)}, {s(sT+5)}')
        e(f'v_perm_b32 {v(d+2)}, {v(q+1)}, {v(q)}, {s(sT+6)}')
        e(f'v_perm_b32 {v(d+3)}, {v(q+3)}, {v(q+2)}, {s(sT+6)}')
        e(f'ds_write_b128 {v(T0)}, {v(d,4)} offset:{L_MEM+1024*u}')
    e(f'v_and_b32 {v(t1)}, 1, {v(n)}')
    e(f'v_lshlrev_b32 {v(t1)}, 4, {v(t1)}')
    e(f'v_mov_b32 {v(t2)}, 0x3f80')
    e(f'v_lshlrev_b32 {v(t2)}, {v(t1)}, {v(t2)}')
    e(f'v_bfe_u32 {v(t1)}, {v(n)}, 1, 2')
    for jj in range(4):
        e(f'v_cmp_eq_u32 vcc, {jj}, {v(t1)}')
        e(f'v_cndmask_b32 {v(M+16+jj)}, 0, {v(t2)}, vcc')
    e(f'ds_write_b128 {v(L16)}, {v(M+16,4)} offset:{L_SEL}')
    e('s_barrier')
    e(f's_cmp_lg_u32 {s(sW)}, 0')
    e('s_cbranch_scc1 L_ch_noarr')
    e(f's_getreg_b32 {s(sT+5)}, hwreg(HW_REG_XCC_ID)')
    e(f's_and_b32 {s(sT+5)}, {s(sT+5)}, 7')
    e(f's_lshl_b32 {s(sT+5)}, {s(sT+5)}, 3')
    e(f's_lshl_b64 {s(sT+2,2)}, 1, {s(sT+5)}')
    e(f'v_mov_b32 {v(M+20)}, {s(sT+2)}')
    e(f'v_mov_b32 {v(M+21)}, {s(sT+3)}')
    e(f'v_mov_b32 {v(M+22)}, 0')
    e('s_mov_b64 exec, 1')
    e(f'global_atomic_add_x2 {v(M+22)}, {v(M+20,2)}, {s(DBG,2)}')
    e('s_mov_b64 exec, -1')
    p.append('L_ch_noarr:')
    for gi in range(32):
        g_=order[gi]; slot0=(4*gi)%32
        after=min(31,gi+7)-gi
        extra=4 if gi>=26 else 0
        e(f's_waitcnt vmcnt({4*after+extra})')
        if g_ in gloc: pf,b0=gloc[g_]
        else: pf,b0='v',M+16
        for b in range(4):
            for t in range(2):
                if g_[0]=='o': e(f'ds_read_b64_tr_b16 {R(pf,b0+4*b+2*t,2)}, {v(TRO)} offset:{(slot0+b)*1024+128*t}')
                else: e(f'ds_read_b64_tr_b16 {R(pf,b0+8*t+2*b,2)}, {v(TR1 if t else TR0)} offset:{(slot0+b)*1024}')
        e('s_waitcnt lgkmcnt(0)')
        if g_ not in gloc:
            for j in range(4): e(f'ds_write_b128 {v(LW)}, {v(M+16+4*j,4)} offset:{(slot0+j)*1024}')
        if gi+8<32: issue(gi+8)
        if gi==25: p.extend(kv_dma(0))
    for g_ in lds_groups[:4]:
        for t in range(2): p.extend(stream_reads(g_,t))
    p.append('L_ch_hs:')
    e(f'global_load_dwordx2 {v(M,2)}, {v(PM+1)}, {s(DBG,2)} sc1')
    e(f's_add_u32 {s(sSpin)}, {s(sSpin)}, 1')
    e('s_waitcnt vmcnt(0)')
    e(f'v_readfirstlane_b32 {s(sT+2)}, {v(M)}')
    e(f'v_readfirstlane_b32 {s(sT+3)}, {v(M+1)}')
    e(f's_cmp_gt_u32 {s(sSpin)}, 0x100000')
    e('s_cbranch_scc1 L_ch_hsdone')
    e(f's_add_u32 {s(sT+4)}, {s(sT+2)}, {s(sT+3)}')
    e(f's_lshr_b32 {s(sT+5)}, {s(sT+4)}, 16')
    e(f's_add_u32 {s(sT+4)}, {s(sT+4)}, {s(sT+5)}')
    e(f's_lshr_b32 {s(sT+5)}, {s(sT+4)}, 8')
    e(f's_add_u32 {s(sT+4)}, {s(sT+4)}, {s(sT+5)}')
    e(f's_and_b32 {s(sT+4)}, {s(sT+4)}, 0xff')
    e(f's_cmp_lg_u32 {s(sT+4)}, 32')
    e('s_cbranch_scc1 L_ch_hs')
    p.append('L_ch_hsdone:')
    p+=zero(QA,8)
    e(f's_add_u32 {s(sKsrc)}, {s(sKsrc)}, {32*16384}'); e(f's_add_u32 {s(sVsrc)}, {s(sVsrc)}, {32*16384}')
    e(f's_or_b32 {s(sT+2)}, {s(sT+2)}, {s(sT+3)}')
    e(f's_and_b32 {s(sT+2)}, {s(sT+2)}, 0x20202020')
    e('s_waitcnt lgkmcnt(0)')
    if timing:
        e(f's_memrealtime {s(sTime+2,2)}'); e(f's_memtime {s(sTime+6,2)}'); e('s_waitcnt lgkmcnt(0)')
    if STAMPS:
        for i in range(NST): e(f's_mov_b32 {s(sAC+i)}, 0')
    if OPT['solo']:
        e('s_memtime s[60:61]'); e('s_waitcnt lgkmcnt(0)'); e(f's_mov_b32 {s(sSpin)}, 0')
    e('s_barrier')
    e(f's_cmp_eq_u32 {s(sT+2)}, 0')
    e('s_cbranch_scc1 L_ch_S0')
    return fix(p,'prologue')

def kv_dma(par):
    return [f's_mov_b32 m0, {s(sKdst+par)}',
            f'buffer_load_dwordx4 {v(L16)}, {s(WS,4)}, {s(sKsrc)} offen lds',
            f'buffer_load_dwordx4 {v(L16)}, {s(WS,4)}, {s(sKsrc)} offen offset:1024 lds',
            f's_mov_b32 m0, {s(sVdst+par)}',
            f'buffer_load_dwordx4 {v(L16)}, {s(WS,4)}, {s(sVsrc)} offen lds',
            f'buffer_load_dwordx4 {v(L16)}, {s(WS,4)}, {s(sVsrc)} offen offset:1024 lds']

def smf(d,a_,b): return f'{SMF} {v(d,4)}, {v(a_,4)}, {b}, {v(IDX)}'
def mrd(c): return f'ds_read_b128 {v(M+4*c,4)}, {v(L16)} offset:{L_MEM+1024*c}'

STAMPS=False
NST=14; sST=52; sAC=80
STSET=list(range(14))
def stamp(i): return [('s_memrealtime' if OPT['abs'] else 's_memtime')+f' {s(sST+2*STSET.index(i),2)} ;stamp'] if STAMPS and i in STSET else []
OPT=dict(nw=0, d1=16, sl=8, nb=5, pp=2, rep=1, pk=1, hotkv=0, pub=1, rst=1, tr=0, solo=0, cut=99, drop=0, cutm=-1, abs=0, show=0, pad=0, al=0)
LIM='0x80000'
def G(*groups):
    o=[]
    for g_ in groups: o.extend(g_)
    return o
def step(mode, par, verbose=False):
    sc=' sc1' if mode=='S' else ''
    L=f'L_ch_{mode}{par}'
    p=[L+':']; e=p.append
    qk=lambda m,c,t: smf((QA if m=='q' else KA if m=='k' else VA)+4*t, M+4*c, unit((m,c),t))
    Q=lambda c,t: qk('q',c,t); K=lambda c,t: qk('k',c,t); V=lambda c,t: qk('v',c,t)
    W=lambda n: f's_waitcnt lgkmcnt({n})'
    krd=[f'ds_read_b128 {v(X+4*f,4)}, {v(L16)} offset:{L_KX+1024*f}' for f in range(8)]
    kl=[f'buffer_load_dwordx4 {v(STG+4*i,4)}, {v(L16)}, {s(WS,4)}, {s(sVsrc if i>>1 else sKsrc)} offen offset:{1024*(i&1)}' for i in range(4)]
    kw=[f'v_add_u32 {v(T0)}, {s(sKdst)}, {v(L16)}','s_waitcnt vmcnt(2)']+[f'ds_write_b128 {v(T0)}, {v(STG+4*i,4)} offset:{1024*i}' for i in range(2)]+[f'ds_write_b128 {v(LW)}, {v(STG+8+4*i,4)} offset:{32768+1024*i}' for i in range(2)]
    def post(acc,d0,d1,bytok):
        o=[f'v_add_f32 {v(acc)}, {v(acc)}, {v(acc+1)}', f'v_add_f32 {v(acc+2)}, {v(acc+2)}, {v(acc+3)}',
           f'v_add_f32 {v(acc+4)}, {v(acc+4)}, {v(acc+5)}', f'v_add_f32 {v(acc+6)}, {v(acc+6)}, {v(acc+7)}']
        if bytok: o+=[f'v_cvt_pk_bf16_f32 {v(d0)}, {v(acc)}, {v(acc+4)}', f'v_cvt_pk_bf16_f32 {v(d1)}, {v(acc+2)}, {v(acc+6)}']
        else:     o+=[f'v_cvt_pk_bf16_f32 {v(d0)}, {v(acc)}, {v(acc+2)}', f'v_cvt_pk_bf16_f32 {v(d1)}, {v(acc+4)}, {v(acc+6)}']
        return o
    def tr(i,rt=False):
        if not OPT['tr']: return []
        return [('s_memrealtime' if rt else 's_memtime')+f' {s(52+14*par+2*i,2)} ;stamp']
    def trdump():
        if not OPT['tr']: return []
        o=[f'v_mov_b32 {v(M+4+i)}, {s(52+14*(1-par)+2*i)}' for i in range(4)]+[f'v_mov_b32 {v(M+8+i)}, {s(52+14*(1-par)+2*i)}' for i in range(4,7)]
        o+=[f's_lshl_b32 {s(sT+1)}, {s(sSpinU)}, 16', f's_add_u32 {s(sT+1)}, {s(sT+1)}, {s(sSpin)}', f'v_mov_b32 {v(M+15)}, {s(sT+1)}',
            f's_lshl_b32 {s(sT+1)}, {s(sStep)}, 5', f's_add_u32 {s(sT+1)}, {s(sT+1)}, {s(sH)}', f's_lshl_b32 {s(sT+1)}, {s(sT+1)}, 2', f's_add_u32 {s(sT+1)}, {s(sT+1)}, {s(sW)}',
            f's_lshl_b32 {s(sT+1)}, {s(sT+1)}, 5', f's_add_u32 {s(sT+1)}, {s(sT+1)}, {100<<20}', 's_mov_b64 exec, 1',
            f'buffer_store_dwordx4 {v(M+4,4)}, off, {s(WS,4)}, {s(sT+1)}', f'buffer_store_dwordx4 {v(M+12,4)}, off, {s(WS,4)}, {s(sT+1)} offset:16', 's_mov_b64 exec, -1']
        return o
    rstore=lambda r_,j: f'buffer_store_dwordx4 {v(r_,4)}, {v(L16)}, {s(WS,4)}, {s(sPrst)} offen offset:{j*1024}{sc}'
    if not OPT['solo']: p.extend(['s_waitcnt vmcnt(6) lgkmcnt(0)','s_barrier'])
    p.append(';secS')
    for c in range(4): e(mrd(c))
    e(rstore(ONES,1))
    p.append(f'{L}_re:')
    z=zero(KA,16)
    qp=post(QA,QA+1,QA+3,True)+[f'ds_write2_b32 {v(QW)}, {v(QA+1)}, {v(QA+3)} offset0:0 offset1:4']
    kp=post(KA,KVQ+1,KVQ+3,True)+[f'ds_write2_b32 {v(KW)}, {v(KVQ+1)}, {v(KVQ+3)} offset0:0 offset1:8']
    p.extend(G([W(3)],[Q(0,0)],[Q(0,1),W(2)],[Q(1,0),kl[0]],[Q(1,1),W(1)],[Q(2,0),kl[1]],[Q(2,1),W(0),z[0]],[Q(3,0),z[1]],[Q(3,1),kl[2]],
               [K(0,0),z[2]],[K(1,0),kl[3]],[K(2,0),'s_waitcnt vmcnt(7)','s_barrier',z[3]],[K(3,0),mrd(4),z[4]],
               [K(0,1),mrd(5),z[5]],[K(1,1),mrd(6),z[6]],[K(2,1),mrd(7),z[7]],[K(3,1),krd[0],W(4)]))
    p.append(';sec0')
    on=[f'v_mov_b64 {v(ONES+2*i,2)}, {s(sOne,2)}' for i in range(2)]
    p.extend(G([Q(4,0),krd[4],W(4)],[Q(5,0),krd[1],W(4)],[Q(6,0),krd[5],W(4)],[Q(7,0),krd[2],on[0]],
               [Q(4,1),krd[3],on[1]],[Q(5,1),krd[6]],[Q(6,1),krd[7],qp[0]],[Q(7,1),'s_nop 1',qp[1]],
               [K(4,0),'s_nop 2'],[K(5,0),qp[2]],[K(6,0),qp[3]],[K(7,0),'s_nop 1',qp[4]],
               [K(4,1),qp[5]],[K(5,1),qp[6]],[K(6,1),kp[0]],[K(7,1),kp[1]]))
    p.append(';sec1')
    rk=[f'ds_read_b128 {v(X+16*k,4)}, {v(L16)} offset:{L_K+1024*k}' for k in range(2)]
    rq=[f'ds_read_b128 {v(M+4*k,4)}, {v(QR)} offset:{L_Q+512*k}' for k in range(4)]
    VF=[X+4,X+20]
    rv=[f'ds_read_b128 {v(VF[t],4)}, {v(LW)} offset:{32768+1024*t}' for t in range(2)]
    SX=lambda m,ks: f'{MF32} {v(QA+4*m,4)}, {v(X+16*m+4*ks,4)}, {v(M+4*ks,4)}, '+(v(QA+4*m,4) if ks else '0')
    sm=[smf(KA,X+16*k,v(M+8*k,8)) for k in range(2)]
    zk=zero(KA,4)
    mx=PM; tt=KA+3
    c=[f'v_max3_f32 {v(mx)}, {v(QA)}, {v(QA+1)}, {v(QA+2)}', f'v_max3_f32 {v(mx)}, {v(mx)}, {v(QA+3)}, {v(QA+4)}',
       f'v_max3_f32 {v(mx)}, {v(mx)}, {v(QA+5)}, {v(QA+6)}',
       f'v_add_f32 {v(KA)}, {v(KA)}, {v(KA+1)}', f'v_add_f32 {v(KA+1)}, {v(KA+2)}, {v(KA+3)}',
       f'v_max3_f32 {v(mx)}, {v(mx)}, {v(QA+7)}, {v(KA)}', f'v_max_f32 {v(tt)}, {v(mx)}, {v(KA+1)}', f'v_max_f32 {v(mx)}, {v(mx)}, {v(KA+1)}',
       f'v_permlane32_swap_b32 {v(mx)}, {v(tt)}', f'v_max_f32 {v(T0)}, {v(mx)}, {v(tt)}', f'v_max_f32 {v(mx)}, {v(mx)}, {v(tt)}',
       f'v_permlane16_swap_b32 {v(mx)}, {v(T0)}', f'v_max_f32 {v(mx)}, {v(mx)}, {v(T0)}', f'v_mul_f32 {v(T0)}, {s(sC)}, {v(mx)}']
    kadv=0 if OPT['hotkv'] else 32*16384
    bk=[f's_add_u32 {s(sSlot)}, {s(sSlot)}, 8192', f's_and_b32 {s(sSlot)}, {s(sSlot)}, 0x7fff',
        f's_add_u32 {s(sMemIn0)}, {s(sSlot)}, {MEM_OFF}', f's_add_u32 {s(sMemPub)}, {s(sMemB)}, {s(sSlot)}',
        f's_xor_b32 {s(sMemRst)}, {s(sMemPub)}, 16384',
        f's_add_u32 {s(sPslot)}, {s(sPslot)}, 262144', f's_and_b32 {s(sPslot)}, {s(sPslot)}, 0xfffff',
        f's_add_u32 {s(sPrst)}, {s(sPrst+1)}, {s(sPslot)}',
        f's_add_u32 {s(sPst)}, {s(sPslot)}, {PART_OFF}', f's_add_u32 {s(sPst+1)}, {s(sPslot)}, {PART_OFF+131072}',
        f's_add_u32 {s(sPin)}, {s(sPinB)}, {s(sPslot)}', f's_add_u32 {s(sPin+1)}, {s(sPin)}, 4096',
        f's_add_u32 {s(sKsrc)}, {s(sKsrc)}, {kadv}', f's_add_u32 {s(sVsrc)}, {s(sVsrc)}, {kadv}',
        f's_add_u32 {s(sMdst)}, {s(sMemIn0)}, 4096', f's_mov_b32 m0, {L_MEM}', f's_add_u32 {s(sStep)}, {s(sStep)}, 1']
    wo=[]
    for g_ in (('o',0,0),('o',2,1),('o',3,0),('o',3,1)):
        for t in range(2): wo+=stream_reads(g_,t)
    p.extend(G([V(0,0),'s_nop 1',f'v_cmp_u_f32 vcc, {v(QA)}, {v(QA+2)}'],[V(0,1),W(0),'s_barrier',kp[2]],[V(1,0),rq[0],kp[3]],[V(1,1),rq[1],kp[4]],
               [V(2,0),kp[5]],[V(2,1),kp[6]],[V(3,0),rq[2],zk[0]],[V(3,1),rq[3],W(3)],
               [SX(0,0),zk[1]],[SX(1,0)],[SX(0,1),W(0),'s_barrier'],[SX(1,1),rk[0]],
               [SX(0,2),rk[1]],[SX(0,3),rv[0]],[SX(1,2),rv[1]],[SX(1,3),f's_cbranch_vccnz {L}_r2',f'{L}_r2x:',W(2)],
               [sm[0],bk[0],bk[1],c[0]],[sm[1],'s_nop 0'],
               [V(4,0),bk[2],bk[3],c[1]],[V(5,0),bk[4],c[2]],[V(6,0),bk[5],bk[6],c[3],c[4]],[V(7,0),bk[7],bk[16],c[5],c[6],c[7]],
               [V(4,1),wo[0],c[8]],[V(5,1),wo[1],c[9],c[10]],[V(6,1),wo[2],c[11]],[V(7,1),wo[3],c[12],c[13]]))
    if OPT['tr']: p.append(f's_memtime {s(52+14*(1-par)+10,2)} ;stamp')
    p.append(';sec2')
    vp=post(VA,KVQ,KVQ+2,False)
    xp=lambda r_: f'v_exp_f32 {v(r_)}, {v(r_)}'
    PX=KA+4
    e(vp[0]); e(vp[1])
    if OPT['pk']:
        for r_ in (KA,QA,QA+2,QA+4,QA+6):
            e(f'v_pk_fma_f32 {v(r_,2)}, {v(r_,2)}, {s(sC2,2)}, {v(T0,2)} op_sel_hi:[1,1,0] neg_lo:[0,0,1] neg_hi:[0,0,1]')
    else:
        for r_ in [KA,KA+1]+[QA+i for i in range(8)]: e(f'v_fma_f32 {v(r_)}, {v(r_)}, {s(sC)}, -{v(T0)}')
    e(xp(KA)); e(xp(KA+1))
    p.extend([vp[2],vp[3],vp[4],vp[5]])
    e(f'v_cvt_pk_bf16_f32 {v(PM)}, {v(KA)}, {v(KA+1)}')
    e(xp(QA)); e(xp(QA+1))
    ex=[f's_cmp_eq_u32 {s(sStep)}, 64','s_cbranch_scc1 L_ch_last'] if par==1 else []
    p.extend(G([f'{MF16} {v(VA,4)}, {v(KVQ,2)}, {v(PM,2)}, 0',bk[12],xp(QA+2)],
               [f'{MF16} {v(VA+4,4)}, {v(KVQ+2,2)}, {v(PM,2)}, 0',bk[13],xp(QA+3)],
               [f'{MF16} {v(KA,4)}, {v(ONES,2)}, {v(PM,2)}, 0',W(4),xp(QA+4),xp(QA+5),xp(QA+6),xp(QA+7)]))
    for i in range(4): e(f'v_cvt_pk_bf16_f32 {v(PX+i)}, {v(QA+2*i)}, {v(QA+2*i+1)}')
    zq=['s_nop 1']
    wo=[]
    for g_ in (('o',0,0),('o',2,1),('o',3,0),('o',3,1)):
        for t in range(2): wo+=stream_reads(g_,t)
    p.extend(G(zq,[f'{MF32} {v(KA,4)}, {v(ONES,4)}, {v(PX,4)}, {v(KA,4)}']+(ex or ['s_nop 1'])+[bk[8]],
               [f'{MF32} {v(VA,4)}, {v(VF[0],4)}, {v(PX,4)}, {v(VA,4)}',bk[14],bk[15],bk[9]],
               [f'{MF32} {v(VA+4,4)}, {v(VF[1],4)}, {v(PX,4)}, {v(VA+4,4)}',bk[10],f'v_rcp_f32 {v(T0)}, {v(KA)}',bk[11]]))
    if OPT['pk']:
        pm_=[f'v_pk_mul_f32 {v(VA+2*i,2)}, {v(VA+2*i,2)}, {v(T0,2)} op_sel_hi:[1,0]' for i in range(4)]
        cv=[f'v_cvt_pk_bf16_f32 {v(QA+4+i)}, {v(VA+2*i)}, {v(VA+2*i+1)}' for i in range(4)]
        p.extend([pm_[0],pm_[1],cv[0],cv[1],pm_[2],pm_[3],cv[2],cv[3]])
    else:
        for i in range(8): e(f'v_mul_f32 {v(VA+i)}, {v(T0)}, {v(VA+i)}')
        for i in range(4): e(f'v_cvt_pk_bf16_f32 {v(QA+4+i)}, {v(VA+2*i)}, {v(VA+2*i+1)}')
    p.append(';sec3')
    e(f'ds_write_b128 {v(OW)}, {v(QA+4,4)} offset:{L_O}')
    e(f'v_mfma_f32_32x32x8_bf16 {v(M,16)}, {v(PM+2,2)}, {v(PM+2,2)}, 0')
    p.extend(zero(ONES,4,'-1'))
    e('s_waitcnt lgkmcnt(0)')
    e('s_barrier')
    for k in range(4): e(f'ds_read_b128 {v(M+16+4*k,4)}, {v(ORD)} offset:{L_O+512*k}')
    e(f's_cmp_lg_u32 {s(sW)}, 0')
    p.append(';sec4')
    O=lambda tp,k: smf(M+4*tp,M+16+4*k,unit(('o',tp,k>>1),k&1))
    def oc(tp,j):
        q=M+8*(tp>>1)+(tp&1)+2*j
        return f'v_cvt_pk_bf16_f32 {v(q)}, {v(M+4*tp+2*j)}, {v(M+4*tp+2*j+1)}'
    ost=lambda u: f'buffer_store_dwordx4 {v(M+8*u,4)}, {v(PST)}, {s(WS,4)}, {s(sPst+u)} offen{sc}'
    p.extend(G([wo[4],wo[5],W(5)],[O(0,0),wo[6],W(5)],[O(0,1),wo[7],W(5)],[O(0,2),wo[8],W(5)],[O(0,3),wo[9]],
               [O(1,0),wo[10]],[O(1,1),wo[11]],[O(1,2),wo[12],W(5)],[O(1,3),wo[13],oc(0,0)],
               [O(2,0),wo[14],oc(0,1)],[O(2,1),wo[15],'s_nop 0',oc(1,0),oc(1,1)],[O(2,2),ost(0)],[O(2,3),W(4),'s_nop 1'],
               [O(3,0),W(0),'s_nop 1'],[O(3,1),oc(2,0)],[O(3,2),oc(2,1)],[O(3,3)],[oc(3,0),oc(3,1),ost(1)]))
    sr=[]
    for g_,t in ((('q',0),0),(('q',0),1),(('q',1),0),(('q',1),1)): sr+=stream_reads(g_,t)
    xs=[]
    for g_,t in ((('q',2),0),(('q',2),1),(('q',3),0),(('q',3),1)): xs+=stream_reads(g_,t)
    if verbose and par==0:
        fx=fix(p,'main',True); print('model cycles',simulate(fx,OPT['show']), 'inserted waits', len([l for l in fx if l.startswith('s_waitcnt')])-len([l for l in p if l.startswith('s_waitcnt')]))
    if OPT['solo']:
        marks=[i for i,l in enumerate(p) if l.startswith(';sec')]
        if OPT['cutm']>=0:
            marks=[i+1 for i,l in enumerate(p) if l.startswith(('v_mfma','v_smfmac'))]; OPT['cut']=OPT['cutm']
        if OPT['cut']<len(marks):
            rest=p[marks[OPT['cut']]:]
            p[:]=p[:marks[OPT['cut']]]+['s_memtime s[62:63] ;stamp']+[l for l in rest if (l.startswith('s_add') or l.startswith('s_and') or l.startswith('s_cmp') or l.startswith('s_cbranch_scc') or l.endswith(':')) ]
        d=OPT['drop']
        if d&1: p[:]=[l for l in p if not l.startswith('buffer_store')]
        if d&2: p[:]=[l for l in p if not (l.startswith('buffer_load') )]
        if d&16: p[:]=[(l.replace('buffer_load_dwordx4 v2,','buffer_load_dwordx4 v[252:255], v2,').replace(' lds','')+' ;stamp') if l.startswith('buffer_load') else l for l in p]
        if d&4: p[:]=[l for l in p if not l.startswith('s_barrier')]
        if d&8: p[:]=[l for l in p if not l.startswith('s_cbranch_vcc')]
        if OPT['cut']>=len(marks): p.append('s_memtime s[62:63] ;stamp')
        p.extend(['s_waitcnt vmcnt(0)']+kw+sr+weave(xs,zero(QA,8),[0,0,0,0,1,1,1,1]))
        p.extend(['s_waitcnt lgkmcnt(0) vmcnt(0)','s_sub_u32 s62, s62, s60', f's_add_u32 {s(sSpin)}, {s(sSpin)}, s62', 's_barrier', 's_sleep 8', 's_memtime s[60:61] ;stamp', 's_waitcnt lgkmcnt(0)', 's_barrier'])
        if par==1: p.append(f's_branch L_ch_{mode}0')
        return fix(p,f'solo{par}'), [f'{L}_r2:',f's_branch {L}_r2x']
    p.extend(tr(0)+tr(1,True))
    e(f's_cbranch_scc1 {L}_w')
    head=list(p)
    e(f'ds_read_b128 {v(QA+4,4)}, {v(L16)} offset:{L_SEL}')
    e(f'v_mov_b32 {v(M+2)}, {s(sStep)}')
    for i in range(OPT['d1']): e('s_nop 3')
    p.extend(tr(2))
    ld1=[f'buffer_load_dwordx4 {v(X+4*j,4)}, {v(L16)}, {s(WS,4)}, {s(sPin+(j>>2))} offen offset:{(j&3)*1024} sc1' for j in range(8)]
    p.extend(ld1)
    p.extend(sr)
    e(W(8))
    p.append(f'{L}_p1:')
    RM=lambda j: f'{MF32} {v(QA,4)}, {v(QA+4,4)}, {v(X+4*j,4)}, '+(v(QA,4) if j else '0')
    p.extend(['s_waitcnt vmcnt(7)',RM(0),'s_waitcnt vmcnt(6)',f'v_max_u32 {v(M+3)}, {v(X)}, {v(X+4)}',f'v_cmp_eq_u32 vcc, -1, {v(M+3)}',RM(1),
              f's_mov_b64 exec, {s(sEx,2)}', f's_cbranch_vccnz {L}_r0', f'{L}_r0x:',
              f'buffer_store_dword {v(M+2)}, {v(L16)}, {s(WS,4)}, {s(sFlag)} offen{sc}', 's_mov_b64 exec, -1']+tr(3))
    for j in range(2,8):
        e(f's_waitcnt vmcnt({8-j})'); e(RM(j))
    e(f'v_cvt_pk_bf16_f32 {v(M)}, {v(QA)}, {v(QA+1)}')
    e(f'v_cvt_pk_bf16_f32 {v(M+1)}, {v(QA+2)}, {v(QA+3)}')
    e(f'buffer_store_dwordx2 {v(M,2)}, {v(MPUB)}, {s(WS,4)}, {s(sMemPub)} offen{sc}')
    e(f'v_cmp_u_f32 vcc, {v(QA)}, {v(QA)}')
    p.extend(tr(4))
    e(f's_cbranch_vccnz {L}_r1')
    p.append(f'{L}_p1ok:')
    p.extend([kw[0]]+kw[2:])
    p.extend(weave(xs,zero(QA,8),[0,0,0,0,1,1,1,1]))
    p.extend(trdump())
    p.append(f'{L}_b1:')
    e('s_barrier')
    e(f'buffer_store_dwordx4 {v(KVQ,4)}, {v(L16)}, {s(WS,4)}, {s(sKvm)} offen'+(' sc1' if OPT['pub'] else ''))
    e(rstore(ONES,0))
    e(f's_add_u32 {s(sKvm)}, {s(sKvm)}, {32*4096}')
    if par==1: e(f's_branch L_ch_{mode}0')
    body=fix(p,f'step{mode}{par}',verbose)
    ld2=[f'buffer_load_dwordx4 {v(H2A)}, {s(WS,4)}, {s(sMemIn0)} offen offset:{1024*j} sc1 lds' for j in range(4)]
    ld2+=[f's_mov_b32 m0, {L_MEM+4096}','s_nop 0']+[f'buffer_load_dwordx4 {v(H2A)}, {s(WS,4)}, {s(sMdst)} offen offset:{1024*j} sc1 lds' for j in range(4)]
    q=[f'{L}_w:']+kw+trdump()+sr+weave(xs,zero(QA,8),[0,0,0,0,1,1,1,1]); e=q.append
    e(f's_cmp_eq_u32 {s(sW)}, 1')
    e(f's_cbranch_scc1 {L}_fb')
    e(f's_cmp_lg_u32 {s(sW)}, 3')
    e(f's_cbranch_scc1 {L}_b1')
    e(f'buffer_store_dwordx2 {v(ONES,2)}, {v(MPUB)}, {s(WS,4)}, {s(sMemRst)} offen{sc}')
    e(f's_branch {L}_b1')
    q.append(f'{L}_fb:')
    e(f'v_lshrrev_b32 {v(T0)}, 2, {v(L16)}'); e(f'v_and_b32 {v(T0)}, 0x7c, {v(T0)}')
    for i in range(max(0,OPT['sl']-(7 if OPT['tr'] else 0))): e('s_nop 3')
    q.extend(tr(2))
    N=OPT['nb']
    fl=f'buffer_load_dword {v(PM)}, {v(T0)}, {s(WS,4)}, {s(sFlagB)} offen sc1'
    if OPT['nw']: e(f'v_mov_b32 {v(PM)}, 0')
    else:
        for i in range(N-1): e(fl); e(f's_nop {7+OPT["pp"]}')
    q.append(f'{L}_fb2:')
    for i in range(8):
        e(fl)
        if OPT['pp']: e(f's_nop {OPT["pp"]-1}')
        if not OPT['nw']: e(f's_waitcnt vmcnt({N-1})')
        elif i==0: e('s_waitcnt vmcnt(24)')
        e(f'v_cmp_gt_u32 vcc, {s(sStep)}, {v(PM)}'); e(f's_cbranch_vccz {L}_fb3')
    e(f's_add_u32 {s(sSpinF)}, {s(sSpinF)}, 1'); e(f's_cmp_gt_u32 {s(sSpinF)}, {LIM}'); e(f's_cbranch_scc0 {L}_fb2')
    q.append(f'{L}_fb3:')
    q.extend(tr(3)); q.extend(ld2)
    e(f's_branch {L}_b1')
    i=q.index(f'{L}_fb:')
    alt=fix(head+q[:i],f'alt{mode}{par}',False)
    q=alt[alt.index(f'{L}_w:'):]+q[i:]
    e=q.append
    q.append(f'{L}_r0:')
    e(f's_add_u32 {s(sSpin)}, {s(sSpin)}, 1'); e(f's_cmp_gt_u32 {s(sSpin)}, {LIM}'); e(f's_cbranch_scc1 {L}_r0x')
    e('s_mov_b64 exec, -1'); q.extend(ld1); e(f's_branch {L}_p1')
    q.append(f'{L}_r1:')
    e(f's_add_u32 {s(sSpin)}, {s(sSpin)}, 256'); e(f's_cmp_gt_u32 {s(sSpin)}, {LIM}'); e(f's_cbranch_scc1 {L}_p1ok')
    q.extend(ld1); e(f's_branch {L}_p1')
    q.append(f'{L}_r2:')
    e(f's_add_u32 {s(sSpinU)}, {s(sSpinU)}, 1'); e(f's_cmp_gt_u32 {s(sSpinU)}, {LIM}'); e(f's_cbranch_scc1 {L}_r2x')
    e(f's_cmp_eq_u32 {s(sStep)}, 0'); e(f's_cbranch_scc1 {L}_r2x')
    e(f's_mov_b32 m0, {L_MEM}')
    e(f's_cmp_lg_u32 {s(sW)}, 1')
    e('s_waitcnt lgkmcnt(0)'); e('s_barrier')
    e(f's_cbranch_scc1 {L}_r2b')
    q.extend(ld2); q.append(f'{L}_r2b:'); e('s_nop 7'); q.extend(sr); q.extend(xs); q.extend(zero(QA,8))
    e('s_waitcnt vmcnt(0) lgkmcnt(0)'); e('s_barrier')
    for c_ in range(4): e(mrd(c_))
    e(f's_branch {L}_re')
    return body, q

def chain_body(timing=False, verbose=False):
    A=Asm()
    pro=prologue(A,timing)
    F0,f0=step('F',0,verbose); F1,f1=step('F',1,verbose); S0,s0=step('S',0); S1,s1=step('S',1)
    check(pro+F0+F1+F0,'chainF')
    pro=pro+['s_branch L_ch_F0','.p2align 6']+['s_nop 0']*OPT['pad']
    if OPT['al']: F0=F0+['s_branch L_ch_F1','.p2align 6']+['s_nop 0']*OPT['pad']
    for x in (pro,F0,F1,f0,f1,S0,S1,s0,s1): A.extend(x)
    A.label('L_ch_last')
    A(f'buffer_store_dwordx4 {v(KVQ,4)}, {v(L16)}, {s(WS,4)}, {s(sKvm)} offen sc1')
    A(f's_lshl_b32 {s(sSpinU)}, {s(sSpinU)}, 16\ns_add_u32 {s(sSpin)}, {s(sSpin)}, {s(sSpinU)}')
    A.label('L_ch_end')
    if STAMPS:
        A(f'''s_waitcnt lgkmcnt(0)
        s_lshl_b32 {s(sT)}, {s(sH)}, 2
        s_add_u32 {s(sT)}, {s(sT)}, {s(sW)}
        s_lshl_b32 {s(sT)}, {s(sT)}, 6
        s_add_u32 {s(sT)}, {s(sT)}, 1024
        v_mov_b32 v0, {s(sT)}
        s_mov_b32 {s(sAC+13)}, {s(sSpin)}''')
        for i in range(NST): A(f'v_mov_b32 {v(4+i)}, {s(sAC+i)}')
        A('s_mov_b64 exec, 1')
        for i in range(4): A(f'global_store_dwordx4 v0, {v(4+4*i,4)}, {s(DBG,2)} offset:{16*i}')
    if timing:
        A(f'''s_memrealtime {s(sTime+4,2)}
        s_memtime {s(sTime+8,2)}
        s_waitcnt lgkmcnt(0)
        s_sub_u32 {s(sT)}, {s(sTime+2)}, {s(sTime)}
        s_sub_u32 {s(sT+1)}, {s(sTime+4)}, {s(sTime+2)}
        s_sub_u32 {s(sT+2)}, {s(sTime+8)}, {s(sTime+6)}
        v_mov_b32 v4, {s(sT)}
        v_mov_b32 v5, {s(sT+1)}
        v_mov_b32 v6, {s(sT+2)}
        v_mov_b32 v7, {s(sSpin)}
        s_lshl_b32 {s(sT)}, {s(sH)}, 2
        s_add_u32 {s(sT)}, {s(sT)}, {s(sW)}
        s_lshl_b32 {s(sT)}, {s(sT)}, 5
        s_add_u32 {s(sT)}, {s(sT)}, 16384
        s_getreg_b32 {s(sT+1)}, hwreg(HW_REG_HW_ID)
        v_mov_b32 v0, {s(sT)}
        v_mov_b32 v8, {s(sT+1)}
        s_mov_b64 exec, 1
        global_store_dword v0, v8, {s(DBG,2)} offset:16
        global_store_dwordx4 v0, v[4:7], {s(DBG,2)}
        L_ch_notime:''')
    return A

def kernel_text(name, body, vgpr=512, accum=256, sgpr=102):
    return f'''.globl {name}
.p2align 8
.type {name},@function
{name}:
{body.text()}    s_endpgm
'''
def kernel_desc(name, vgpr=512, accum=256, sgpr=102):
    return f'''.p2align 6
.amdhsa_kernel {name}
  .amdhsa_next_free_vgpr {vgpr}
  .amdhsa_next_free_sgpr {sgpr}
  .amdhsa_accum_offset {accum}
  .amdhsa_group_segment_fixed_size 0
  .amdhsa_kernarg_size 120
  .amdhsa_user_sgpr_count 2
  .amdhsa_user_sgpr_kernarg_segment_ptr 1
  .amdhsa_system_sgpr_workgroup_id_x 1
  .amdhsa_float_denorm_mode_32 3
.end_amdhsa_kernel
'''

if __name__=='__main__':
    import sys
    spread = 'spread' in sys.argv
    STAMPS = 'stamps' in sys.argv
    if 'hop' in sys.argv: STSET=[0,1,2,7,8,9,10,'a','b','c','d',11,12,13]
    if 'hop2' in sys.argv: STSET=[0,2,4,7,8,10,'a','b','c','d',11,12,13,14]
    for x in sys.argv:
        if '=' in x: OPT[x.split('=')[0]]=int(x.split('=')[1])
    A=Asm()
    if spread:
        A(f'''s_cmp_ge_u32 s2, 32
        s_cbranch_scc1 L_exit
        s_mov_b32 {s(sH)}, s2''')
    else:
        A(f'''s_cmp_ge_u32 s2, 256
        s_cbranch_scc1 L_exit
        s_and_b32 s3, s2, 7
        s_cmp_lg_u32 s3, 0
        s_cbranch_scc1 L_exit
        s_lshr_b32 {s(sH)}, s2, 3''')
    A.extend(chain_body(timing=not STAMPS, verbose=True))
    A.label('L_exit')
    txt='; @launch kernel=chain_kernel grid=(256,1,1) block=(256,1,1) lds=163840\n.amdgcn_target "amdgcn-amd-amdhsa--gfx950"\n.text\n'
    txt+=kernel_text('chain_kernel',A)+'.section .rodata,"a"\n'+kernel_desc('chain_kernel')
    open(sys.argv[1],'w').write(txt)
```

```python
WS_BYTES = 268435456
KV_OFF   = 0
Q_OFF    = 32 << 20
KVM_OFF  = 49 << 20
G_OFF    = 58 << 20
G_O=0; G_P1=262144; G_P2=524288; G_H2=786432; G_F1=819200
H_OFF    = 74 << 20
PART_OFF = 76 << 20
MEM_OFF  = 77 << 20
FLAG_OFF = (77 << 20) + 65536
BF_OFF   = (77 << 20) + 131072
BF_H=0
BF_KV=1024
BF_KVM=5120
BF_GB=9216
BF_XC=11264
BF_BYTES=16384
MOD_OFF  = 78 << 20
NAME = 'adaLN_cond__memory_aug_recurrent_mem_tr__dense_activation_relu__prompt'
TAG0 = 50
```

```python
import sys
from asmlib import *
from layout import *
import bulk as B, chain as C
def K(name,lines):
    A=Asm(); A.extend(lines); return C.kernel_text(name,A)
sB=B.sB
bid=['s_cmp_ge_u32 s2, 256','s_cbranch_scc1 L_x%d','s_and_b32 s3, s2, 7','s_cmp_eq_u32 s3, 0','s_cbranch_scc1 L_x%d',
     's_sub_u32 s3, s3, 1','s_lshl_b32 s3, s3, 5',f's_lshr_b32 {s(sB)}, s2, 3',f's_add_u32 {s(sB)}, {s(sB)}, s3']
def head(k): return [l%k if '%d' in l else l for l in bid]
k1=['s_cmp_ge_u32 s2, 97','s_cbranch_scc1 L_x1',f's_mov_b32 {s(sB)}, s2']+fix(B.common())+['s_cmp_eq_u32 s2, 96','s_cbranch_scc1 L_fi']+B.mod_phase(False)+['s_endpgm','L_fi:']+B.flag_init()+['L_x1:']
k2=['s_cmp_ge_u32 s2, 128','s_cbranch_scc1 L_x2',f's_add_u32 {s(sB)}, s2, 96']+fix(B.common())+B.ln_phase(False)+['L_x2:']
a_,b_=B.p1_setup()
k3=head(3)+fix(B.common())+a_+b_+B.p1_main(False)+['L_x3:']
C.OPT.update(d1=18,sl=12)
A=Asm(); A(f'''s_cmp_ge_u32 s2, 256
s_cbranch_scc1 L_x4
s_and_b32 s3, s2, 7
s_cmp_lg_u32 s3, 0
s_cbranch_scc1 L_x4
s_lshr_b32 {s(C.sH)}, s2, 3'''); A.extend(C.chain_body()); A.label('L_x4')
k5=head(5)+fix(B.common())+B.p2_setup(False)+B.p2_loop('F',False)+B.p2_loop('S',False)+['L_x5:']
names=['mod_kernel','ln_kernel','qkv_kernel','chain_kernel','post_kernel']
grids=[97,128,256,256,256]; lds=[4096,4096,163840,163840,163840]
txt=''.join(f'; @launch kernel={n} grid=({g},1,1) block=(256,1,1) lds={l}\n' for n,g,l in zip(names,grids,lds))
txt+='.amdgcn_target "amdgcn-amd-amdhsa--gfx950"\n.text\n'
txt+=K(names[0],k1)+K(names[1],k2)+K(names[2],k3)+C.kernel_text(names[3],A)+K(names[4],k5)
txt+='.section .rodata,"a"\n'+''.join(C.kernel_desc(n) for n in names)
open(sys.argv[1],'w').write(txt)
```

```python
from asmlib import *
from layout import *
import math, struct
MF32='v_mfma_f32_16x16x32_bf16'; MF16='v_mfma_f32_16x16x16_bf16'; SMF='v_smfmac_f32_16x16x64_bf16'
f2u=lambda x: struct.unpack('<I',struct.pack('<f',x))[0]
WS=4; SRD=8; DBG=12; sB=14; sW=15; sMask=16; sSpin=17
sP=52
PX,PWQ,PWK,PWV,PWO,PW1,PW2,PC,PWM,POUT=[sP+2*i for i in (0,2,3,4,5,8,9,10,11,12)]
sT=40
LN=0; N=1; Gv=2; L16=3
LIM='0x200000'
OPT={}
STAMP=lambda slot,who: []
def common():
    return [f's_load_dwordx16 {s(sP,16)}, s[0:1], 0', f's_load_dwordx8 {s(sP+16,8)}, s[0:1], 64', f's_load_dwordx2 {s(sP+24,2)}, s[0:1], 96',
        f's_load_dwordx2 {s(DBG,2)}, s[0:1], 104', f's_load_dwordx2 {s(WS,2)}, s[0:1], 112',
        'v_lshrrev_b32 v1, 6, v0', f'v_and_b32 {v(LN)}, 63, v0', f'v_readfirstlane_b32 {s(sW)}, v1',
        f's_mov_b32 {s(WS+2)}, {WS_BYTES}', f's_mov_b32 {s(WS+3)}, 0x20000', f's_mov_b32 {s(SRD+3)}, 0x20000',
        f's_mov_b32 {s(sMask)}, 0xffff0000', f's_mov_b32 {s(sSpin)}, 0',
        f'v_and_b32 {v(N)}, 15, {v(LN)}', f'v_lshrrev_b32 {v(Gv)}, 4, {v(LN)}', f'v_lshlrev_b32 {v(L16)}, 4, {v(LN)}', 's_waitcnt lgkmcnt(0)']
def srd(p,size): return [f's_mov_b32 {s(SRD)}, {s(p)}', f's_mov_b32 {s(SRD+1)}, {s(p+1)}', f's_mov_b32 {s(SRD+2)}, {size}']
def rnd(a,b,t): return [f'v_cvt_pk_bf16_f32 {v(t)}, {v(a)}, {v(b)}', f'v_lshlrev_b32 {v(a)}, 16, {v(t)}', f'v_and_b32 {v(b)}, {s(sMask)}, {v(t)}']
def unp(d,src): return [f'v_and_b32 {v(d+1)}, {s(sMask)}, {v(src)}', f'v_lshlrev_b32 {v(d)}, 16, {v(src)}']
def xg(op,a,t):
    return [f'v_mov_b32 {v(t)}, {v(a)}', f'v_permlane32_swap_b32 {v(a)}, {v(t)}', f'{op} {v(a)}, {v(a)}, {v(t)}',
            f'v_mov_b32 {v(t)}, {v(a)}', f'v_permlane16_swap_b32 {v(a)}, {v(t)}', f'{op} {v(a)}, {v(a)}, {v(t)}']
def xrow(a):
    return [f'v_add_f32_dpp {v(a)}, {v(a)}, {v(a)} row_ror:{k} row_mask:0xf bank_mask:0xf' for k in (1,2,4,8)]
_u=[0]
def poll(addr_v, soff, cmp_s, r, off=0):
    _u[0]+=1; k=_u[0]
    return [f'L_po{k}:', f'buffer_load_dword {v(r)}, {v(addr_v)}, {s(WS,4)}, {soff} offen offset:{off} sc1', f's_add_u32 {s(sSpin)}, {s(sSpin)}, 1',
            f's_cmp_gt_u32 {s(sSpin)}, {LIM}', f's_cbranch_scc1 L_pe{k}', 's_waitcnt vmcnt(0)', f'v_cmp_gt_u32 vcc, {cmp_s}, {v(r)}', f's_cbranch_vccnz L_po{k}', f'L_pe{k}:', 's_waitcnt vmcnt(0)']

def mod_phase(sync):
    p=[]; e=p.append
    W_=16; C_=48; AC=56; A0=4; A1=5; T=6
    e(f'v_lshrrev_b32 {v(A0)}, 2, {v(LN)}'); e(f's_lshl_b32 {s(sT)}, {s(sW)}, 4'); e(f'v_add_u32 {v(A0)}, {s(sT)}, {v(A0)}')
    e(f'v_lshlrev_b32 {v(A1)}, 1, {v(A0)}')
    e(f'v_mul_u32_u24 {v(A0)}, 6144, {v(A0)}'); e(f'v_and_b32 {v(T)}, 3, {v(LN)}'); e(f'v_lshl_add_u32 {v(A0)}, {v(T)}, 4, {v(A0)}')
    p+=srd(PWM,512*6144)
    for i in range(8): e(f'global_load_ushort {v(C_+i)}, {v(A1)}, {s(PC,2)} offset:{128*i}')
    e(f's_lshl_b32 {s(sT)}, {s(sB)}, 6')
    for i in range(8):
        e(f'buffer_load_dwordx4 {v(W_+4*i,4)}, {v(A0)}, {s(SRD,4)}, {s(sT)} offen'); e(f's_add_u32 {s(sT)}, {s(sT)}, {64*6144}')
    for i in range(8): e(f'v_lshlrev_b32 {v(C_+i)}, 16, {v(C_+i)}')
    for i in range(8): e(f'v_mul_f32 {v(AC+i)}, {hex(f2u(-math.log2(math.e)))}, {v(C_+i)}')
    for i in range(8): e(f'v_exp_f32 {v(AC+i)}, {v(AC+i)}')
    for i in range(8): e(f'v_add_f32 {v(AC+i)}, 1.0, {v(AC+i)}')
    for i in range(8): e(f'v_rcp_f32 {v(AC+i)}, {v(AC+i)}')
    for i in range(8): e(f'v_mul_f32 {v(C_+i)}, {v(C_+i)}, {v(AC+i)}')
    for i in range(0,8,2): p+=rnd(C_+i,C_+i+1,T)
    for i in range(8):
        for d in range(4):
            p+=unp(8,W_+4*i+d)
            for k in range(2):
                e(f'v_mul_f32 {v(AC+2*d+k)}, {v(C_+i)}, {v(8+k)}' if i==0 else f'v_fmac_f32 {v(AC+2*d+k)}, {v(C_+i)}, {v(8+k)}')
    for k in (4,8):
        for i in range(8): e(f'v_add_f32_dpp {v(AC+i)}, {v(AC+i)}, {v(AC+i)} row_ror:{k} row_mask:0xf bank_mask:0xf')
    e(f's_lshl_b32 {s(sT)}, {s(sW)}, 9'); e(f'v_and_b32 {v(T)}, 3, {v(LN)}'); e(f'v_lshlrev_b32 {v(T)}, 5, {v(T)}')
    e(f'v_lshl_add_u32 {v(T)}, {v(Gv)}, 7, {v(T)}'); e(f'v_add_u32 {v(T)}, {s(sT)}, {v(T)}')
    e(f'ds_write_b128 {v(T)}, {v(AC,4)}'); e(f'ds_write_b128 {v(T)}, {v(AC+4,4)} offset:16')
    e('s_waitcnt lgkmcnt(0)'); e('s_barrier')
    e(f's_cmp_lg_u32 {s(sW)}, 0'); e('s_cbranch_scc1 L_mod_end')
    e(f'v_and_b32 {v(A0)}, 31, {v(LN)}'); e(f'v_lshrrev_b32 {v(A1)}, 5, {v(LN)}'); e(f'v_lshlrev_b32 {v(T)}, 2, {v(A0)}'); e(f'v_lshl_add_u32 {v(T)}, {v(A1)}, 10, {v(T)}')
    for i in range(8): e(f'ds_read_b32 {v(AC+i)}, {v(T)} offset:{128*i}')
    for i in range(1,8): e(f'v_add_f32 {v(AC)}, {v(AC)}, {v(AC+i)}')
    e(f'v_mov_b32 {v(T)}, {v(AC)}'); e(f'v_permlane32_swap_b32 {v(AC)}, {v(T)}'); e(f'v_add_f32 {v(AC)}, {v(AC)}, {v(T)}')
    e(f'v_cvt_pk_bf16_f32 {v(AC)}, {v(AC)}, {v(AC)}')
    e(f'v_lshlrev_b32 {v(A0)}, 1, {v(A0)}'); e(f's_lshl_b32 {s(sT)}, {s(sB)}, 6'); e(f's_add_u32 {s(sT)}, {s(sT)}, {MOD_OFF}')
    e(f'buffer_store_short {v(AC)}, {v(A0)}, {s(WS,4)}, {s(sT)} offen sc1')
    if sync:
        e('s_waitcnt vmcnt(0)')
        e(f's_cmp_lt_u32 {s(sB)}, 32'); e(f's_cselect_b32 {s(sT)}, 0, 4')
        e(f'v_mov_b32 {v(A0)}, {s(sT)}'); e(f'v_mov_b32 {v(A1)}, 1'); e('s_mov_b64 exec, 1')
        e(f'global_atomic_add {v(A0)}, {v(A1)}, {s(DBG,2)} offset:128'); e('s_mov_b64 exec, -1')
    p.append('L_mod_end:')
    e('s_barrier')
    return fix(p,'mod')

def dbg_wait(off,val,r):
    _u[0]+=1; k=_u[0]
    return [f'v_mov_b32 {v(r+1)}, {off}', f'L_po{k}:', f'global_load_dword {v(r)}, {v(r+1)}, {s(DBG,2)} sc1', f's_add_u32 {s(sSpin)}, {s(sSpin)}, 1',
            f's_cmp_gt_u32 {s(sSpin)}, {LIM}', f's_cbranch_scc1 L_pe{k}', 's_waitcnt vmcnt(0)', f'v_cmp_gt_u32 vcc, {val}, {v(r)}', f's_cbranch_vccnz L_po{k}', f'L_pe{k}:', 's_waitcnt vmcnt(0)']

def ln_phase(sync):
    p=[]; e=p.append
    XR=16; XF=32; MD=64; A0=4; A1=5; T=6; S=7; Q=8; R_=10; MU=14; sTile=20
    e(f's_sub_u32 {s(sTile)}, {s(sB)}, 96')
    p+=srd(PX,2048*1024)
    e(f'v_lshlrev_b32 {v(A0)}, 10, {v(N)}'); e(f'v_lshl_add_u32 {v(A0)}, {v(Gv)}, 4, {v(A0)}')
    e(f's_lshl_b32 {s(sT)}, {s(sTile)}, 14'); e(f's_lshl_b32 {s(sT+1)}, {s(sW)}, 8'); e(f's_add_u32 {s(sT)}, {s(sT)}, {s(sT+1)}')
    for i in range(4): e(f'buffer_load_dwordx4 {v(XR+4*i,4)}, {v(A0)}, {s(SRD,4)}, {s(sT)} offen offset:{64*i}')
    e(f'v_lshlrev_b32 {v(A1)}, 4, {v(N)}'); e(f's_lshl_b32 {s(sT+2)}, {s(sW)}, 2'); e(f'v_add_u32 {v(A0)}, {s(sT+2)}, {v(A1)}')
    for i in range(16): p+=unp(XF+2*i,XR+i)
    e(f'v_add_f32 {v(S)}, {v(XF)}, {v(XF+1)}')
    for i in range(2,32): e(f'v_add_f32 {v(S)}, {v(S)}, {v(XF+i)}')
    def cross(off):
        o=xg('v_add_f32',S,T)+[f'ds_write_b32 {v(A0)}, {v(S)} offset:{off}','s_waitcnt lgkmcnt(0)','s_barrier',f'ds_read_b128 {v(R_,4)}, {v(A1)} offset:{off}',
           f'v_add_f32 {v(S)}, {v(R_)}, {v(R_+1)}', f'v_add_f32 {v(T)}, {v(R_+2)}, {v(R_+3)}', f'v_add_f32 {v(S)}, {v(S)}, {v(T)}', f'v_mul_f32 {v(S)}, {hex(f2u(1/512))}, {v(S)}']
        return o
    p+=cross(0)
    e(f'v_mov_b32 {v(MU)}, {v(S)}')
    for i in range(32):
        e(f'v_sub_f32 {v(T)}, {v(XF+i)}, {v(MU)}'); e(f'v_mul_f32 {v(S)}, {v(T)}, {v(T)}' if i==0 else f'v_fmac_f32 {v(S)}, {v(T)}, {v(T)}')
    p+=cross(256)
    p+=rnd(MU,S,T)
    e(f'v_add_f32 {v(S)}, {hex(f2u(1e-5))}, {v(S)}'); p+=rnd(S,Q,T)[:2]
    e(f'v_sqrt_f32 {v(S)}, {v(S)}'); p+=rnd(S,Q,T)[:2]
    e(f'v_rcp_f32 {v(S)}, {v(S)}')
    for i in range(0,32,2):
        e(f'v_sub_f32 {v(XF+i)}, {v(XF+i)}, {v(MU)}'); e(f'v_sub_f32 {v(XF+i+1)}, {v(XF+i+1)}, {v(MU)}'); p+=rnd(XF+i,XF+i+1,T)
        e(f'v_mul_f32 {v(XF+i)}, {v(XF+i)}, {v(S)}'); e(f'v_mul_f32 {v(XF+i+1)}, {v(XF+i+1)}, {v(S)}'); p+=rnd(XF+i,XF+i+1,T)
    if sync: p+=dbg_wait(128,32,R_)
    e(f'v_lshlrev_b32 {v(A0)}, 4, {v(Gv)}'); e(f's_add_u32 {s(sT+1)}, {s(sT+1)}, {MOD_OFF}')
    for i in range(4): e(f'buffer_load_dwordx4 {v(MD+4*i,4)}, {v(A0)}, {s(WS,4)}, {s(sT+1)} offen offset:{1024+64*i} sc1')
    for i in range(4): e(f'buffer_load_dwordx4 {v(MD+16+4*i,4)}, {v(A0)}, {s(WS,4)}, {s(sT+1)} offen offset:{64*i} sc1')
    e(f's_lshl_b32 {s(sT)}, {s(sTile)}, 14'); e(f's_lshl_b32 {s(sT+2)}, {s(sW)}, 12'); e(f's_add_u32 {s(sT)}, {s(sT)}, {s(sT+2)}'); e(f's_add_u32 {s(sT)}, {s(sT)}, {H_OFF}')
    for i in range(16):
        a_=XF+2*i
        p+=unp(Q,MD+i); e(f'v_add_f32 {v(Q)}, 1.0, {v(Q)}'); e(f'v_add_f32 {v(Q+1)}, 1.0, {v(Q+1)}'); p+=rnd(Q,Q+1,T)
        e(f'v_mul_f32 {v(a_)}, {v(a_)}, {v(Q)}'); e(f'v_mul_f32 {v(a_+1)}, {v(a_+1)}, {v(Q+1)}'); p+=rnd(a_,a_+1,T)
        p+=unp(Q,MD+16+i); e(f'v_add_f32 {v(a_)}, {v(a_)}, {v(Q)}'); e(f'v_add_f32 {v(a_+1)}, {v(a_+1)}, {v(Q+1)}')
        e(f'v_cvt_pk_bf16_f32 {v(XR+i)}, {v(a_)}, {v(a_+1)}')
        if i%4==3: e(f'buffer_store_dwordx4 {v(XR+i-3,4)}, {v(L16)}, {s(WS,4)}, {s(sT)} offen offset:{1024*(i//4)} sc1')
    if sync:
        p+=dbg_wait(136,1,R_)
        e('s_barrier')
        e(f's_lshl_b32 {s(sT)}, {s(sTile)}, 2'); e(f's_add_u32 {s(sT)}, {s(sT)}, {BF_OFF+BF_H}'); e(f'v_mov_b32 {v(T)}, 1')
        e(f's_cmp_lg_u32 {s(sW)}, 0'); e('s_cbranch_scc1 L_ln_end'); e('s_mov_b64 exec, 1')
        e(f'buffer_store_dword {v(T)}, off, {s(WS,4)}, {s(sT)} sc1'); e('s_mov_b64 exec, -1')
        p.append('L_ln_end:')
    return fix(p,'ln')

def flag_init():
    p=[]; e=p.append
    for i in range(4): e(f'v_mov_b32 {v(8+i)}, 0')
    e(f's_lshl_b32 {s(sT)}, {s(sW)}, 12'); e(f's_add_u32 {s(sT)}, {s(sT)}, {BF_OFF}')
    for i in range(4): e(f'buffer_store_dwordx4 {v(8,4)}, {v(L16)}, {s(WS,4)}, {s(sT)} offen offset:{1024*i} sc1')
    e('s_waitcnt vmcnt(0)'); e('s_barrier')
    e(f'v_mov_b32 v8, 136'); e('v_mov_b32 v9, 1'); e('s_mov_b64 exec, 1'); e(f'global_store_dword v8, v9, {s(DBG,2)} sc1'); e('s_mov_b64 exec, -1')
    return fix(p,'fi')

def wstream(blocks, sRing, pre_issue=None, split=False):
    p=[]; e=p.append; ng=len(blocks)//4; assert len(blocks)%4==0
    def issue(gi):
        for b in range(4):
            su,vo,so,_=blocks[4*gi+b]
            if su: p.extend(su)
            e(f's_add_u32 m0, {s(sRing)}, {((4*gi+b)%32)*1024}'); p.extend(so(sT+7))
            e(f'buffer_load_dwordx4 {v(vo)}, {s(SRD,4)}, {s(sT+7)} offen lds')
    for gi in range(min(8,ng)): issue(gi)
    head=list(p); p.clear()
    for gi in range(ng):
        e(f's_waitcnt vmcnt({4*(min(ng-1,gi+7)-gi)})')
        for b in range(4):
            for dst,tra,off in blocks[4*gi+b][3]: e(f'ds_read_b64_tr_b16 {dst}, {v(tra)} offset:{((4*gi+b)%32)*1024+off}')
        e('s_waitcnt lgkmcnt(0)')
        if gi+8<ng: issue(gi+8)
    return head,p

sHd=21; sR=22; sSeg=23; sRing=24; sCnt=25
VO=4; TRA=5; TRB=6; FA=7
def wreg(m,t,ks):
    i=(m*2+t)*64+4*ks
    return ('a',i) if i<256 else ('v',128+i-256)
def p1_setup():
    p=[]; e=p.append
    e(f's_mul_i32 {s(sHd)}, {s(sB)}, 9363'); e(f's_lshr_b32 {s(sHd)}, {s(sHd)}, 16'); e(f's_mul_i32 {s(sT)}, {s(sHd)}, 7'); e(f's_sub_u32 {s(sR)}, {s(sB)}, {s(sT)}')
    e(f's_lshl_b32 {s(sRing)}, {s(sW)}, 15'); e(f's_add_u32 {s(sRing)}, {s(sRing)}, 32768')
    r=120; c_=121; g1=122
    e(f'v_lshrrev_b32 {v(r)}, 2, {v(N)}'); e(f'v_and_b32 {v(c_)}, 3, {v(N)}'); e(f'v_and_b32 {v(g1)}, 1, {v(Gv)}')
    A,B,C=124,125,126
    e(f'v_lshlrev_b32 {v(B)}, 8, {v(Gv)}'); e(f'v_lshl_add_u32 {v(B)}, {v(r)}, 6, {v(B)}'); e(f'v_lshl_add_u32 {v(B)}, {v(g1)}, 5, {v(B)}')
    e(f'v_lshl_add_u32 {v(B)}, {v(c_)}, 3, {v(B)}'); e(f'v_add_u32 {v(B)}, {s(sRing)}, {v(B)}'); e(f'v_xor_b32 {v(C)}, 32, {v(B)}')
    e(f'v_lshlrev_b32 {v(g1)}, 1, {v(g1)}'); e(f'v_xor_b32 {v(c_)}, {v(c_)}, {v(g1)}'); e(f'v_lshlrev_b32 {v(c_)}, 4, {v(c_)}')
    e(f'v_lshl_add_u32 {v(A)}, {v(Gv)}, 3, {v(r)}'); e(f'v_lshl_add_u32 {v(A)}, {v(A)}, 13, {v(c_)}')
    e(f's_lshl_b32 {s(sT)}, {s(sHd)}, 8'); e(f's_lshl_b32 {s(sT+1)}, {s(sW)}, 6'); e(f's_add_u32 {s(sT)}, {s(sT)}, {s(sT+1)}'); e(f'v_add_u32 {v(A)}, {s(sT)}, {v(A)}')
    blocks=[]
    for m,ptr in ((0,PWK),(1,PWV),(2,PWQ)):
        for ks in range(16):
            for jh in range(2):
                dst=[]
                for t in range(2):
                    pf,b=wreg(m,t,ks); dst.append((R(pf,b+2*jh,2), C if t else B, 0))
                blocks.append((srd(ptr,4<<20) if ks%2==0 and jh==0 else None, A, (lambda reg,o=(32*ks+4*jh)*8192: [f's_mov_b32 {s(reg)}, {o}']), dst))
    head,rest=wstream(blocks,sRing)
    return fix(p+head,'p1a'), fix(rest,'p1b',vm_init=32)

def p1_main(sync):
    p=[]; e=p.append
    AC=16; HF=64; OUT=96; sHsrc=26; sBuf=27; sKo=28; sVo=29; sQo=30; sFl=31; sNext=32
    acc=lambda m,t,mt: AC+((m*2+t)*2+mt)*4
    def hdma():
        o=[]
        if sync:
            o+=[f's_lshl_b32 {s(sT)}, {s(sNext)}, 3', f's_add_u32 {s(sT)}, {s(sT)}, {BF_OFF+BF_H}', f'v_and_b32 {v(FA)}, 1, {v(LN)}', f'v_lshlrev_b32 {v(FA)}, 2, {v(FA)}']+poll(FA,s(sT),'1',8)
        o+=[f's_lshl_b32 {s(sHsrc)}, {s(sNext)}, 15', f's_lshl_b32 {s(sT)}, {s(sW)}, 13', f's_add_u32 {s(sHsrc)}, {s(sHsrc)}, {s(sT)}', f's_add_u32 {s(sHsrc)}, {s(sHsrc)}, {H_OFF}',
            f's_add_u32 m0, {s(sBuf)}, {s(sT)}', f's_add_u32 {s(sT+1)}, {s(sHsrc)}, 4096']
        o+=[f'buffer_load_dwordx4 {v(L16)}, {s(WS,4)}, {s(sHsrc)} offen offset:{1024*i} lds' for i in range(4)]
        o+=['s_add_u32 m0, m0, 4096','s_nop 0']+[f'buffer_load_dwordx4 {v(L16)}, {s(WS,4)}, {s(sT+1)} offen offset:{1024*i} lds' for i in range(4)]
        return o
    e('s_barrier')
    if sync: p+=dbg_wait(136,1,8)
    e(f's_mov_b32 {s(sSeg)}, {s(sR)}'); e(f's_mov_b32 {s(sNext)}, {s(sR)}'); e(f's_mov_b32 {s(sBuf)}, 0'); e(f's_mov_b32 {s(sCnt)}, 0')
    e(f's_lshl_b32 {s(sFl)}, {s(sHd)}, 7'); e(f's_lshl_b32 {s(sT)}, {s(sR)}, 2'); e(f's_add_u32 {s(sFl)}, {s(sFl)}, {s(sT)}'); e(f's_add_u32 {s(sFl)}, {s(sFl)}, {BF_OFF+BF_KV}')
    p+=hdma()
    p.append('L_p1_loop:')
    e('s_waitcnt vmcnt(0)'); e('s_barrier')
    if sync:
        e(f's_cmp_lg_u32 {s(sW)}, 0'); e('s_cbranch_scc1 L_p1_nf'); e(f'v_mov_b32 {v(FA)}, {s(sCnt)}'); e('s_mov_b64 exec, 1')
        e(f'buffer_store_dword {v(FA)}, off, {s(WS,4)}, {s(sFl)} sc1'); e('s_mov_b64 exec, -1'); p.append('L_p1_nf:')
    e(f's_cmp_ge_u32 {s(sSeg)}, 64'); e('s_cbranch_scc1 L_p1_end')
    e(f'v_add_u32 {v(VO)}, {s(sBuf)}, {v(L16)}')
    e(f's_xor_b32 {s(sBuf)}, {s(sBuf)}, 32768'); e(f's_add_u32 {s(sNext)}, {s(sSeg)}, 7')
    e(f's_cmp_ge_u32 {s(sNext)}, 64'); e('s_cbranch_scc1 L_p1_nd')
    p+=hdma()
    p.append('L_p1_nd:')
    hr=lambda ks,mt: f'ds_read_b128 {v(HF+(ks%4)*8+4*mt,4)}, {v(VO)} offset:{(mt*16+ks)*1024}'
    for ks in range(2):
        for mt in range(2): e(hr(ks,mt))
    for ks in range(16):
        mm=[]
        for mt in range(2):
            hf=v(HF+(ks%4)*8+4*mt,4)
            for m in range(3):
                for t in range(2):
                    pf,b=wreg(m,t,ks); w_=R(pf,b,4); c_=v(acc(m,t,mt),4)
                    a_,b_=(hf,w_) if m==1 else (w_,hf)
                    mm.append(f'{MF32} {c_}, {a_}, {b_}, '+(c_ if ks else '0'))
        if ks+2<16:
            mm[1:1]=[hr(ks+2,0)]; mm[4:4]=[hr(ks+2,1)]
        p+=mm
    e(f's_lshl_b32 {s(sT)}, {s(sSeg)}, 5'); e(f's_add_u32 {s(sT)}, {s(sT)}, {s(sHd)}')
    e(f's_lshl_b32 {s(sT+1)}, {s(sW)}, 10'); e(f's_lshl_b32 {s(sKo)}, {s(sT)}, 14'); e(f's_add_u32 {s(sVo)}, {s(sKo)}, {KV_OFF+8192}')
    e(f's_add_u32 {s(sKo)}, {s(sKo)}, {s(sT+1)}'); e(f's_add_u32 {s(sKo)}, {s(sKo)}, {KV_OFF}')
    e(f's_lshl_b32 {s(sQo)}, {s(sT)}, 13'); e(f's_add_u32 {s(sQo)}, {s(sQo)}, {s(sT+1)}'); e(f's_add_u32 {s(sQo)}, {s(sQo)}, {Q_OFF}')
    e(f's_lshl_b32 {s(sT+1)}, {s(sW)}, 11'); e(f's_add_u32 {s(sVo)}, {s(sVo)}, {s(sT+1)}')
    k=0
    for m,so in ((0,sKo),(2,sQo)):
        for mt in range(2):
            for r in range(4): e(f'v_cvt_pk_bf16_f32 {v(OUT+4*k+r)}, {v(acc(m,0,mt)+r)}, {v(acc(m,1,mt)+r)}')
            e(f'buffer_store_dwordx4 {v(OUT+4*k,4)}, {v(L16)}, {s(WS,4)}, {s(so)} offen sc1'); k+=1
            if mt==0: e(f's_add_u32 {s(so)}, {s(so)}, 4096')
    for t in range(2):
        for mt in range(2):
            for j in range(2): e(f'v_cvt_pk_bf16_f32 {v(OUT+4*k+2*mt+j)}, {v(acc(1,t,mt)+2*j)}, {v(acc(1,t,mt)+2*j+1)}')
        e(f'buffer_store_dwordx4 {v(OUT+4*k,4)}, {v(L16)}, {s(WS,4)}, {s(sVo)} offen offset:{1024*t} sc1'); k+=1
    e(f's_add_u32 {s(sSeg)}, {s(sSeg)}, 7'); e(f's_add_u32 {s(sCnt)}, {s(sCnt)}, 1'); e('s_branch L_p1_loop')
    p.append('L_p1_end:')
    return fix(p,'p1')

sGrp=21; sJ=22; sGB=26; sEp=27; sFw=28; sFr=29; sKq=30; sCq=31; sM=32; sEh=33; sScale=34; sLg=35; sFast=36; sQf=37; sMf=38
WO=lambda ks: a(4*ks,4)
W1=lambda t,ks: a(128+64*t+4*ks,4)
W2=lambda ks: v(200+4*ks,4)
MODV=168
IDX=4; KW=5; FA2=6; HRD=7; HSR=8; PSA=9; MSK=10; ZR=12
def p2_setup(sync):
    p=[]; e=p.append
    e('s_barrier')
    e(f's_lshr_b32 {s(sGrp)}, {s(sB)}, 5'); e(f's_and_b32 {s(sJ)}, {s(sB)}, 31')
    e(f's_lshl_b32 {s(sGB)}, {s(sGrp)}, 20'); e(f's_add_u32 {s(sGB)}, {s(sGB)}, {G_OFF}')
    e(f's_lshr_b32 {s(sKq)}, {s(sJ)}, 3'); e(f's_and_b32 {s(sCq)}, {s(sJ)}, 7'); e(f's_and_b32 {s(sM)}, {s(sW)}, 1'); e(f's_lshr_b32 {s(sEh)}, {s(sW)}, 1')
    e(f's_lshl_b32 {s(sFr)}, {s(sGrp)}, 8'); e(f's_add_u32 {s(sFr)}, {s(sFr)}, {BF_OFF+BF_GB}'); e(f's_lshl_b32 {s(sT)}, {s(sJ)}, 2'); e(f's_add_u32 {s(sFw)}, {s(sFr)}, {s(sT)}')
    e(f's_mov_b32 {s(sEp)}, 0'); e(f's_mov_b32 {s(sScale)}, {hex(f2u(128**-0.5))}'); e(f's_mov_b32 {s(sLg)}, {hex(f2u(math.log2(math.e)))}')
    e(f's_lshl_b32 {s(sRing)}, {s(sW)}, 15'); e(f's_add_u32 {s(sRing)}, {s(sRing)}, 32768')
    e(f's_lshl_b32 {s(sMf)}, {s(sJ)}, 7'); e(f's_lshl_b32 {s(sT)}, {s(sGrp)}, 2'); e(f's_add_u32 {s(sQf)}, {s(sMf)}, {s(sT)}')
    e(f's_add_u32 {s(sQf)}, {s(sQf)}, {BF_OFF+BF_KV}'); e(f's_add_u32 {s(sMf)}, {s(sMf)}, {BF_OFF+BF_KVM}')
    e(f's_getreg_b32 {s(sFast)}, hwreg(HW_REG_XCC_ID)'); e(f's_and_b32 {s(sFast)}, {s(sFast)}, 7'); e(f's_add_u32 {s(sFast)}, {s(sFast)}, 1')
    e(f'v_mov_b32 v16, {s(sFast)}'); e('s_mov_b64 exec, 1'); e(f'buffer_store_dword v16, off, {s(WS,4)}, {s(sFw)} offset:{BF_XC-BF_GB} sc1'); e('s_mov_b64 exec, -1')
    t1,t2,r,c_,g1=16,17,18,19,20
    e(f'v_and_b32 {v(t1)}, 1, {v(LN)}'); e(f'v_mul_u32_u24 {v(t1)}, 0xaaaa, {v(t1)}'); e(f'v_add_u32 {v(IDX)}, 0x4444, {v(t1)}')
    e(f'v_bfe_u32 {v(t1)}, {v(N)}, 1, 2'); e(f'v_lshlrev_b32 {v(KW)}, 2, {v(t1)}'); e(f'v_and_b32 {v(t1)}, 1, {v(N)}'); e(f'v_lshl_add_u32 {v(KW)}, {v(t1)}, 4, {v(KW)}')
    e(f'v_lshl_add_u32 {v(KW)}, {v(Gv)}, 6, {v(KW)}'); e(f'v_lshrrev_b32 {v(t1)}, 3, {v(N)}'); e(f'v_lshl_add_u32 {v(KW)}, {v(t1)}, 8, {v(KW)}')
    e(f's_lshl_b32 {s(sT)}, {s(sW)}, 9'); e(f'v_add_u32 {v(KW)}, {s(sT)}, {v(KW)}')
    e(f'v_and_b32 {v(FA2)}, 31, {v(LN)}'); e(f'v_lshlrev_b32 {v(FA2)}, 2, {v(FA2)}')
    e(f'v_lshlrev_b32 {v(t1)}, 1, {v(t1)}'); e(f'v_xor_b32 {v(t1)}, {v(t1)}, {v(Gv)}'); e(f'v_lshlrev_b32 {v(t1)}, 4, {v(t1)}'); e(f'v_lshl_add_u32 {v(HRD)}, {v(N)}, 6, {v(t1)}')
    e(f's_lshl_b32 {s(sT)}, {s(sM)}, 14'); e(f'v_add_u32 {v(HRD)}, {s(sT)}, {v(HRD)}')
    e(f'v_lshrrev_b32 {v(t1)}, 5, {v(LN)}'); e(f'v_lshlrev_b32 {v(t1)}, 1, {v(t1)}'); e(f'v_and_b32 {v(c_)}, 3, {v(LN)}'); e(f'v_xor_b32 {v(t1)}, {v(t1)}, {v(c_)}')
    e(f'v_lshlrev_b32 {v(t1)}, 4, {v(t1)}'); e(f'v_lshrrev_b32 {v(t2)}, 2, {v(LN)}'); e(f'v_lshl_add_u32 {v(HSR)}, {v(t2)}, 10, {v(t1)}')
    e(f'v_lshlrev_b32 {v(PSA)}, 15, {v(Gv)}'); e(f'v_lshl_add_u32 {v(PSA)}, {v(N)}, 2, {v(PSA)}')
    e(f's_lshl_b32 {s(sT)}, {s(sJ)}, 8'); e(f's_lshl_b32 {s(sT+1)}, {s(sW)}, 6'); e(f's_add_u32 {s(sT)}, {s(sT)}, {s(sT+1)}'); e(f'v_add_u32 {v(PSA)}, {s(sT)}, {v(PSA)}')
    e(f'v_lshlrev_b32 {v(t1)}, 2, {v(Gv)}'); e(f'v_sub_u32 {v(MSK)}, {v(N)}, {v(t1)}')
    e(f'v_mov_b32 {v(ZR+1)}, 0')
    A64,B0,B1,A32,C0,C1,A32b=24,25,26,27,28,29,30
    e(f'v_lshrrev_b32 {v(r)}, 2, {v(N)}'); e(f'v_and_b32 {v(g1)}, 1, {v(Gv)}')
    e(f'v_lshlrev_b32 {v(B0)}, 8, {v(Gv)}'); e(f'v_lshl_add_u32 {v(B0)}, {v(c_)}, 3, {v(B0)}'); e(f'v_add_u32 {v(B0)}, {s(sRing)}, {v(B0)}')
    e(f'v_lshl_add_u32 {v(C0)}, {v(r)}, 5, {v(B0)}'); e(f'v_lshl_add_u32 {v(C0)}, {v(g1)}, 7, {v(C0)}'); e(f'v_xor_b32 {v(C1)}, 128, {v(C0)}')
    e(f'v_lshl_add_u32 {v(B0)}, {v(r)}, 6, {v(B0)}'); e(f'v_lshl_add_u32 {v(B0)}, {v(g1)}, 5, {v(B0)}'); e(f'v_xor_b32 {v(B1)}, 32, {v(B0)}')
    e(f'v_lshlrev_b32 {v(t1)}, 1, {v(g1)}'); e(f'v_xor_b32 {v(t1)}, {v(t1)}, {v(c_)}'); e(f'v_lshlrev_b32 {v(t1)}, 4, {v(t1)}')
    e(f'v_lshl_add_u32 {v(A64)}, {v(Gv)}, 3, {v(r)}'); e(f'v_mul_u32_u24 {v(A64)}, 3584, {v(A64)}'); e(f'v_add_u32 {v(A64)}, {v(A64)}, {v(t1)}')
    e(f's_min_u32 {s(sT)}, {s(sJ)}, 27'); e(f's_lshl_b32 {s(sT)}, {s(sT)}, 7'); e(f's_lshl_b32 {s(sT+1)}, {s(sEh)}, 6'); e(f's_add_u32 {s(sT)}, {s(sT)}, {s(sT+1)}'); e(f'v_add_u32 {v(A64)}, {s(sT)}, {v(A64)}')
    e(f'v_lshrrev_b32 {v(t1)}, 3, {v(N)}'); e(f'v_xor_b32 {v(t1)}, {v(t1)}, {v(g1)}'); e(f'v_bfe_u32 {v(t2)}, {v(N)}, 1, 2')
    e(f'v_lshl_add_u32 {v(t2)}, {v(t1)}, 4, {v(t2)}'); e(f'v_lshl_add_u32 {v(t2)}, {v(Gv)}, 2, {v(t2)}'); e(f'v_and_b32 {v(t1)}, 1, {v(N)}'); e(f'v_lshlrev_b32 {v(t1)}, 4, {v(t1)}')
    e(f'v_lshl_add_u32 {v(A32)}, {v(t2)}, 10, {v(t1)}')
    e(f's_lshl_b32 {s(sT)}, {s(sCq)}, 7'); e(f's_lshl_b32 {s(sT+1)}, {s(sW)}, 5'); e(f's_add_u32 {s(sT)}, {s(sT)}, {s(sT+1)}')
    e(f's_mul_i32 {s(sT+1)}, {s(sKq)}, {448*1024}'); e(f's_add_u32 {s(sT+1)}, {s(sT+1)}, {s(sT)}'); e(f'v_add_u32 {v(A32b)}, {s(sT+1)}, {v(A32)}')
    e(f's_lshl_b32 {s(sT+1)}, {s(sKq)}, 20'); e(f's_add_u32 {s(sT+1)}, {s(sT+1)}, {s(sT)}'); e(f'v_add_u32 {v(A32)}, {s(sT+1)}, {v(A32)}')
    blocks=[]
    mv=lambda o: (lambda reg: [f's_mov_b32 {s(reg)}, {o}'])
    for ks in range(32): blocks.append((srd(PWO,4<<20) if ks%4==0 else None, A32, mv(ks*32768), [(a(4*ks,2),C0,0),(a(4*ks+2,2),C1,0)]))
    for ks in range(16):
        for jh in range(2): blocks.append((srd(PW1,512*3584) if ks%2==0 and jh==0 else None, A64, mv((32*ks+4*jh)*3584), [(a(128+4*ks+2*jh,2),B0,0),(a(192+4*ks+2*jh,2),B1,0)]))
    for ks in range(16):
        kk=min(ks,13); blocks.append((srd(PW2,1792*1024) if ks%4==0 else None, A32b, mv(kk*32768), [(v(200+4*ks,2),C0,0),(v(202+4*ks,2),C1,0)] if ks<14 else []))
    head,rest=wstream(blocks,sRing)
    p+=head+rest
    if sync: p+=dbg_wait(132,64,16)
    e(f's_mov_b32 {s(sT)}, {MOD_OFF+2048}')
    for i in range(4): e(f'buffer_load_dwordx4 {v(16+4*i,4)}, {v(L16)}, {s(WS,4)}, {s(sT)} offen offset:{1024*i} sc1')
    for i in range(16): p+=unp(MODV+2*i,16+i)
    for i in range(16,24): e(f'v_add_f32 {v(MODV+i)}, 1.0, {v(MODV+i)}')
    for i in range(16,24,2): p+=rnd(MODV+i,MODV+i+1,16)
    p+=poll(FA2,s(sFr),'1',16,BF_XC-BF_GB)
    e(f'v_cmp_ne_u32 vcc, {s(sFast)}, v16')
    e(f's_mov_b32 {s(sSeg)}, {s(sGrp)}'); e(f's_mov_b32 {s(sCnt)}, 1')
    p+=srd(PX,2048*1024)
    p+=STAMP(7,0)
    e('s_barrier')
    e('s_cbranch_vccnz L_p2_S')
    return fix(p,'p2s')

def p2_loop(mode, sync):
    sc=' sc1' if mode=='S' else ''
    L=f'L_p2_{mode}'
    p=[L+':']; e=p.append
    nb=[0]
    def gbar():
        nb[0]+=1; k=f'{L}_g{nb[0]}'
        return ['s_waitcnt vmcnt(0)','s_barrier', f's_add_u32 {s(sEp)}, {s(sEp)}, 1', f's_cmp_lg_u32 {s(sW)}, 0', f's_cbranch_scc1 {k}',
                f'v_mov_b32 v14, {s(sEp)}','s_mov_b64 exec, 1', f'buffer_store_dword v14, off, {s(WS,4)}, {s(sFw)}{sc}','s_mov_b64 exec, -1']+poll(FA2,s(sFr),s(sEp),14)+STAMP(8+nb[0],0)+[k+':','s_barrier']
    QF=16; KF=32; VF=64; KV=80; S0=92; OA=104; T=120; MX=121; SUM=122; PXr=124; KM=128; XR=136; X1=140
    if sync: p+=poll(ZR+1,s(sQf),s(sCnt),14)
    e(f's_lshl_b32 {s(sT)}, {s(sSeg)}, 5'); e(f's_add_u32 {s(sT)}, {s(sT)}, {s(sJ)}')
    e(f's_lshl_b32 {s(sT+6)}, {s(sT)}, 10')
    e(f's_lshl_b32 {s(sT+1)}, {s(sT)}, 13'); e(f's_lshl_b32 {s(sT+2)}, {s(sM)}, 12'); e(f's_add_u32 {s(sT+1)}, {s(sT+1)}, {s(sT+2)}'); e(f's_add_u32 {s(sT+1)}, {s(sT+1)}, {Q_OFF}')
    e(f's_lshl_b32 {s(sT+2)}, {s(sT)}, 14'); e(f's_add_u32 {s(sT+2)}, {s(sT+2)}, {KV_OFF}'); e(f's_add_u32 {s(sT+3)}, {s(sT+2)}, 4096')
    e(f's_lshl_b32 {s(sT+4)}, {s(sEh)}, 12'); e(f's_add_u32 {s(sT+4)}, {s(sT+4)}, {s(sT+2)}'); e(f's_add_u32 {s(sT+4)}, {s(sT+4)}, 8192')
    e(f's_lshl_b32 {s(sT+5)}, {s(sT)}, 12'); e(f's_add_u32 {s(sT+5)}, {s(sT+5)}, {KVM_OFF}')
    for i in range(4): e(f'buffer_load_dwordx4 {v(QF+4*i,4)}, {v(L16)}, {s(WS,4)}, {s(sT+1)} offen offset:{1024*i} sc1')
    for i in range(8): e(f'buffer_load_dwordx4 {v(KF+4*i,4)}, {v(L16)}, {s(WS,4)}, {s(sT+2+(i>>2))} offen offset:{1024*(i&3)} sc1')
    for i in range(4): e(f'buffer_load_dwordx4 {v(VF+4*i,4)}, {v(L16)}, {s(WS,4)}, {s(sT+4)} offen offset:{1024*i} sc1')
    e(f'buffer_load_dwordx4 {v(XR,4)}, {v(L16)}, {s(SRD,4)}, {s(sT+6)} offen')
    for m in range(2):
        for ks in range(4): e(f'{MF32} {v(S0+4*m,4)}, {v(KF+16*m+4*ks,4)}, {v(QF+4*ks,4)}, '+(v(S0+4*m,4) if ks else '0'))
    e(f'v_mov_b64 {v(S0+8,2)}, 0'); e(f'v_mov_b64 {v(S0+10,2)}, 0')
    def sround(a_): return rnd(a_,a_+1,T)+[f'v_mul_f32 {v(a_)}, {s(sScale)}, {v(a_)}', f'v_mul_f32 {v(a_+1)}, {s(sScale)}, {v(a_+1)}']+rnd(a_,a_+1,T)
    for i in range(0,8,2): p+=sround(S0+i)
    e(f's_lshl_b32 {s(sT+1)}, {s(sM)}, 4'); e(f'v_add_u32 {v(T)}, {s(sT+1)}, {v(MSK)}'); e(f'v_mov_b32 {v(SUM)}, {hex(f2u(-999292928.0))}')
    for i in range(8):
        e(f'v_cmp_le_i32 vcc, {16*(i>>2)+(i&3)}, {v(T)}'); e(f'v_cndmask_b32 {v(S0+i)}, {v(SUM)}, {v(S0+i)}, vcc')
    e(f'v_max3_f32 {v(MX)}, {v(S0)}, {v(S0+1)}, {v(S0+2)}'); e(f'v_max3_f32 {v(MX)}, {v(MX)}, {v(S0+3)}, {v(S0+4)}'); e(f'v_max3_f32 {v(MX)}, {v(MX)}, {v(S0+5)}, {v(S0+6)}'); e(f'v_max_f32 {v(MX)}, {v(MX)}, {v(S0+7)}')
    if sync:
        e(f's_add_u32 {s(sT+1)}, {s(sSeg)}, 1'); p+=poll(ZR+1,s(sMf),s(sT+1),14)+STAMP(8,0)
    e(f's_lshl_b32 {s(sT+1)}, {s(sEh)}, 11'); e(f's_add_u32 {s(sT+1)}, {s(sT+1)}, {s(sT+5)}'); e(f's_lshl_b32 {s(sT+2)}, {s(sW)}, 10'); e(f's_add_u32 {s(sT+2)}, {s(sT+2)}, {s(sT+5)}')
    e(f'buffer_load_dwordx4 {v(KV+8,4)}, {v(L16)}, {s(WS,4)}, {s(sT+2)} offen sc1')
    for i in range(2): e(f'buffer_load_dwordx4 {v(KV+4*i,4)}, {v(L16)}, {s(WS,4)}, {s(sT+1)} offen offset:{1024*i} sc1')
    e(f'ds_write2_b32 {v(KW)}, {v(KV+9)}, {v(KV+11)} offset0:0 offset1:8'); e('s_waitcnt lgkmcnt(0)'); e('s_barrier')
    for k in range(2): e(f'ds_read_b128 {v(KM+4*k,4)}, {v(L16)} offset:{1024*k}')
    for k in range(2): e(f'{SMF} {v(S0+8,4)}, {v(KM+4*k,4)}, {v(QF+8*k,8)}, {v(IDX)}')
    e(f'v_add_f32 {v(S0+8)}, {v(S0+8)}, {v(S0+9)}'); e(f'v_add_f32 {v(S0+9)}, {v(S0+10)}, {v(S0+11)}')
    p+=sround(S0+8)
    e(f'v_max3_f32 {v(MX)}, {v(MX)}, {v(S0+8)}, {v(S0+9)}'); p+=xg('v_max_f32',MX,T)
    for i in range(10): e(f'v_sub_f32 {v(S0+i)}, {v(S0+i)}, {v(MX)}')
    for i in range(10): e(f'v_mul_f32 {v(S0+i)}, {s(sLg)}, {v(S0+i)}')
    for i in range(10): e(f'v_exp_f32 {v(S0+i)}, {v(S0+i)}')
    e(f'v_add_f32 {v(SUM)}, {v(S0)}, {v(S0+1)}')
    for i in range(2,10): e(f'v_add_f32 {v(SUM)}, {v(SUM)}, {v(S0+i)}')
    p+=xg('v_add_f32',SUM,T); e(f'v_rcp_f32 {v(SUM)}, {v(SUM)}')
    for i in range(10): e(f'v_mul_f32 {v(S0+i)}, {v(SUM)}, {v(S0+i)}')
    for i in range(4): e(f'v_cvt_pk_bf16_f32 {v(PXr+i)}, {v(S0+2*i)}, {v(S0+2*i+1)}')
    e(f'v_cvt_pk_bf16_f32 {v(ZR)}, {v(S0+8)}, {v(S0+9)}')
    for i in range(4): e(f'{MF32} {v(OA+4*i,4)}, {v(VF+4*i,4)}, {v(PXr,4)}, 0')
    for i in range(4): e(f'{MF16} {v(OA+4*i,4)}, {v(KV+2*i,2)}, {v(ZR,2)}, {v(OA+4*i,4)}')
    e(f's_lshl_b32 {s(sT+1)}, {s(sJ)}, 13'); e(f's_lshl_b32 {s(sT+2)}, {s(sEh)}, 12'); e(f's_add_u32 {s(sT+1)}, {s(sT+1)}, {s(sT+2)}'); e(f's_lshl_b32 {s(sT+2)}, {s(sM)}, 10')
    e(f's_add_u32 {s(sT+1)}, {s(sT+1)}, {s(sT+2)}'); e(f's_add_u32 {s(sT+1)}, {s(sT+1)}, {s(sGB)}')
    for k in range(2):
        for i in range(4): e(f'v_cvt_pk_bf16_f32 {v(QF+4*k+i)}, {v(OA+8*k+2*i)}, {v(OA+8*k+2*i+1)}')
        e(f'buffer_store_dwordx4 {v(QF+4*k,4)}, {v(L16)}, {s(WS,4)}, {s(sT+1)} offen offset:{G_O+2048*k}{sc}')
    p+=gbar()
    def gemm_part(src_lines, nks, wf, dst_off):
        o=list(src_lines)
        nfr=2*nks; per=nfr//4; nch=(per+3)//4
        sizes=[min(4,per-4*c) for c in range(nch)]
        base=0; starts=[]
        for c,sz in enumerate(sizes):
            starts.append(base)
            o+=[f's_mul_i32 {s(sT+2)}, {s(sW)}, {sz*1024}', f's_add_u32 {s(sT+2)}, {s(sT+2)}, {base*1024}', f's_add_u32 m0, {s(sT+2)}, 4096', f's_add_u32 {s(sT+2)}, {s(sT+2)}, {s(sT+1)}']
            o+=[f'buffer_load_dwordx4 {v(L16)}, {s(WS,4)}, {s(sT+2)} offen offset:{1024*i} sc1 lds' for i in range(sz)]
            base+=4*sz
        o+=[f'v_add_u32 {v(T)}, 4096, {v(L16)}']
        left=per
        for c,sz in enumerate(sizes):
            left-=sz
            o+=[f's_waitcnt vmcnt({left})','s_barrier']
            fr=list(range(starts[c],starts[c]+4*sz))
            rd=lambda f: f'ds_read_b128 {v(QF+4*(f%8),4)}, {v(T)} offset:{1024*f}'
            o+=[rd(f) for f in fr[:4]]
            for i,f in enumerate(fr):
                ac=v(OA+4*(f&1),4)
                o.append(f'{MF32} {ac}, {v(QF+4*(f%8),4)}, {wf(f>>1)}, '+(ac if f>1 else '0'))
                if i+4<len(fr): o.append(rd(fr[i+4]))
        for mt in range(2):
            for r in range(4):
                o+=[f's_add_u32 {s(sT+2)}, {s(sGB)}, {dst_off+(16*mt+r)*8192}', f'buffer_store_dword {v(OA+4*mt+r)}, {v(PSA)}, {s(WS,4)}, {s(sT+2)} offen{sc}']
        return o
    p+=gemm_part([f's_lshl_b32 {s(sT+1)}, {s(sKq)}, 16', f's_add_u32 {s(sT+1)}, {s(sT+1)}, {s(sGB)}'],32,WO,G_P1)
    p+=gbar()
    def rowsum(off):
        o=[f's_lshl_b32 {s(sT+1)}, {s(sJ)}, 13', f's_add_u32 {s(sT+1)}, {s(sT+1)}, {s(sGB)}', f's_add_u32 {s(sT+1)}, {s(sT+1)}, {off}', f's_add_u32 {s(sT+2)}, {s(sT+1)}, 4096', f'v_lshlrev_b32 {v(T)}, 1, {v(L16)}']
        for k in range(4):
            for hf in range(2): o.append(f'buffer_load_dwordx4 {v(QF+8*k+4*hf,4)}, {v(T)}, {s(WS,4)}, {s(sT+1+(k>>1))} offen offset:{2048*(k&1)+16*hf} sc1')
        for k in range(1,4):
            for i in range(8): o.append(f'v_add_f32 {v(QF+i)}, {v(QF+i)}, {v(QF+8*k+i)}')
        for i in range(0,8,2): o+=rnd(QF+i,QF+i+1,T)
        return o
    e(f's_cmp_lg_u32 {s(sW)}, 0'); e(f's_cbranch_scc1 {L}_n1')
    p+=rowsum(G_P1)
    for i in range(4): p+=unp(X1+2*i,XR+i)
    for i in range(8): e(f'v_mul_f32 {v(QF+i)}, {v(QF+i)}, {v(MODV+i)}')
    for i in range(0,8,2): p+=rnd(QF+i,QF+i+1,T)
    for i in range(8): e(f'v_add_f32 {v(X1+i)}, {v(X1+i)}, {v(QF+i)}')
    for i in range(0,8,2): p+=rnd(X1+i,X1+i+1,T)
    e(f'v_add_f32 {v(MX)}, {v(X1)}, {v(X1+1)}')
    for i in range(2,8): e(f'v_add_f32 {v(MX)}, {v(MX)}, {v(X1+i)}')
    p+=xrow(MX)+xg('v_add_f32',MX,T); e(f'v_mul_f32 {v(MX)}, {hex(f2u(1/512))}, {v(MX)}')
    for i in range(8):
        e(f'v_sub_f32 {v(T)}, {v(X1+i)}, {v(MX)}'); e(f'v_mul_f32 {v(SUM)}, {v(T)}, {v(T)}' if i==0 else f'v_fmac_f32 {v(SUM)}, {v(T)}, {v(T)}')
    p+=xrow(SUM)+xg('v_add_f32',SUM,T); e(f'v_mul_f32 {v(SUM)}, {hex(f2u(1/512))}, {v(SUM)}')
    p+=rnd(MX,SUM,T)
    e(f'v_add_f32 {v(SUM)}, {hex(f2u(1e-5))}, {v(SUM)}'); p+=rnd(SUM,SUM,T)[:2]
    e(f'v_sqrt_f32 {v(SUM)}, {v(SUM)}'); p+=rnd(SUM,SUM,T)[:2]
    e(f'v_rcp_f32 {v(SUM)}, {v(SUM)}')
    for i in range(8): e(f'v_sub_f32 {v(QF+i)}, {v(X1+i)}, {v(MX)}')
    for i in range(0,8,2): p+=rnd(QF+i,QF+i+1,T)
    for i in range(8): e(f'v_mul_f32 {v(QF+i)}, {v(QF+i)}, {v(SUM)}')
    for i in range(0,8,2): p+=rnd(QF+i,QF+i+1,T)
    for i in range(8): e(f'v_mul_f32 {v(QF+i)}, {v(QF+i)}, {v(MODV+16+i)}')
    for i in range(0,8,2): p+=rnd(QF+i,QF+i+1,T)
    for i in range(8): e(f'v_add_f32 {v(QF+i)}, {v(QF+i)}, {v(MODV+8+i)}')
    for i in range(4): e(f'v_cvt_pk_bf16_f32 {v(QF+8+i)}, {v(QF+2*i)}, {v(QF+2*i+1)}')
    e(f's_lshl_b32 {s(sT+1)}, {s(sJ)}, 10'); e(f's_add_u32 {s(sT+1)}, {s(sT+1)}, {s(sGB)}'); e(f's_add_u32 {s(sT+1)}, {s(sT+1)}, {G_H2}')
    e(f'buffer_store_dwordx4 {v(QF+8,4)}, {v(L16)}, {s(WS,4)}, {s(sT+1)} offen{sc}')
    p.append(f'{L}_n1:')
    p+=gbar()
    e(f's_cmp_ge_u32 {s(sJ)}, 28'); e(f's_cbranch_scc1 {L}_n2')
    e(f's_lshl_b32 {s(sT+1)}, {s(sEh)}, 14'); e(f's_lshl_b32 {s(sT+2)}, {s(sM)}, 9'); e(f's_add_u32 {s(sT+1)}, {s(sT+1)}, {s(sT+2)}'); e(f's_add_u32 {s(sT+1)}, {s(sT+1)}, {s(sGB)}'); e(f's_add_u32 {s(sT+1)}, {s(sT+1)}, {G_H2}')
    e(f's_lshl_b32 {s(sT+2)}, {s(sEh)}, 14'); e(f's_lshl_b32 {s(sT+3)}, {s(sM)}, 13'); e(f's_add_u32 {s(sT+2)}, {s(sT+2)}, {s(sT+3)}')
    for i in range(8):
        e(f's_add_u32 m0, {s(sT+2)}, {4096+1024*i}'); e(f's_add_u32 {s(sT+3)}, {s(sT+1)}, {64*i}')
        e(f'buffer_load_dwordx4 {v(HSR)}, {s(WS,4)}, {s(sT+3)} offen sc1 lds')
    e('s_waitcnt vmcnt(0)'); e('s_barrier')
    rd=lambda ks: f'ds_read_b128 {v(QF+4*(ks%8),4)}, {v(HRD)} offset:{4096+1024*ks}'
    for ks in range(4): e(rd(ks))
    for ks in range(16):
        for t in range(2): e(f'{MF32} {v(OA+4*t,4)}, {W1(t,ks)}, {v(QF+4*(ks%8),4)}, '+(v(OA+4*t,4) if ks else '0'))
        if ks+4<16: e(rd(ks+4))
    e(f's_lshl_b32 {s(sT+1)}, {s(sJ)}, 12'); e(f's_lshl_b32 {s(sT+2)}, {s(sEh)}, 11'); e(f's_add_u32 {s(sT+1)}, {s(sT+1)}, {s(sT+2)}'); e(f's_lshl_b32 {s(sT+2)}, {s(sM)}, 10')
    e(f's_add_u32 {s(sT+1)}, {s(sT+1)}, {s(sT+2)}'); e(f's_add_u32 {s(sT+1)}, {s(sT+1)}, {s(sGB)}'); e(f's_add_u32 {s(sT+1)}, {s(sT+1)}, {G_F1}')
    for i in range(8): e(f'v_max_f32 {v(OA+i)}, 0, {v(OA+i)}')
    for i in range(4): e(f'v_cvt_pk_bf16_f32 {v(PXr+i)}, {v(OA+2*i)}, {v(OA+2*i+1)}')
    e(f'buffer_store_dwordx4 {v(PXr,4)}, {v(L16)}, {s(WS,4)}, {s(sT+1)} offen{sc}')
    p.append(f'{L}_n2:')
    p+=gbar()
    p+=gemm_part([f's_mul_i32 {s(sT+1)}, {s(sKq)}, 28672', f's_add_u32 {s(sT+1)}, {s(sT+1)}, {s(sGB)}', f's_add_u32 {s(sT+1)}, {s(sT+1)}, {G_F1}'],14,W2,G_P2)
    p+=gbar()
    e(f's_cmp_lg_u32 {s(sW)}, 0'); e(f's_cbranch_scc1 {L}_n3')
    p+=rowsum(G_P2)
    for i in range(8): e(f'v_mul_f32 {v(QF+i)}, {v(QF+i)}, {v(MODV+24+i)}')
    for i in range(0,8,2): p+=rnd(QF+i,QF+i+1,T)
    for i in range(8): e(f'v_add_f32 {v(QF+i)}, {v(QF+i)}, {v(X1+i)}')
    for i in range(4): e(f'v_cvt_pk_bf16_f32 {v(QF+8+i)}, {v(QF+2*i)}, {v(QF+2*i+1)}')
    e(f'v_add_u32 {v(T)}, {s(sT+6)}, {v(L16)}')
    e(f'global_store_dwordx4 {v(T)}, {v(QF+8,4)}, {s(POUT,2)}')
    e('s_nop 1')
    p+=STAMP(14,0)
    p.append(f'{L}_n3:')
    e(f's_add_u32 {s(sSeg)}, {s(sSeg)}, 7'); e(f's_add_u32 {s(sCnt)}, {s(sCnt)}, 1'); e(f's_cmp_lt_u32 {s(sSeg)}, 64'); e(f's_cbranch_scc1 {L}')
    e('s_endpgm')
    r=fix(p,'p2'+mode); check(r+r,'p2loop')
    return r
```

```python
from asmlib import *
from layout import *
import math, struct

T0=0; IDX=1; L16=2; LW=3; QW=4; QR=5; KW=6; OW=7; ORD=8; PST=9; MPUB=10; H2A=10; FLG=11; H2T=100
ONES=12; PM=16; KVQ=20; QA=24; KA=32; VA=40; M=48; X=80; STG=112; RES=128
L_MEM=0; L_Q=8192; L_K=10240; L_O=12288; L_SEL=14336; L_KX=16384; L_WV=24576; WREG=34816
WS=4; WSRD=8; DBG=12; sH=14; sW=15; sStep=16; sC=17; sKsrc=18; sVsrc=19; sKvm=20
sPst=21
sPin=23
sPrst=25
sPslot=27; sMdst=28; sSpinU=29; sPinB=30
sMemIn0=31; sMemB=32; sMemPub=33; sMemRst=34; sSlot=35; sSpin=36
sKdst=37; sKvF=38
sVdst=39; sKvmF=40
sT=42
sPtr=52
sTime=70
sOne=92
sC2=94
sEx=50; sSpinF=96; sFlag=98; sFlagB=99; sMB=100

LIM='0x80000'
SMF='v_smfmac_f32_16x16x64_bf16'; MF32='v_mfma_f32_16x16x32_bf16'; MF16='v_mfma_f32_16x16x16_bf16'

lds_groups=[('q',0),('q',1),('q',2),('q',3),('o',0,0),('o',2,1),('o',3,0),('o',3,1)]
all_groups=[(m,c) for m in 'qkv' for c in range(8)]+[('o',tp,k) for tp in range(4) for k in range(2)]
res_groups=[g for g in all_groups if g not in lds_groups]
gloc={}
for i,g in enumerate(res_groups):
    gloc[g]=('a',16*i) if i<16 else ('v',RES+16*(i-16))
stream={('q',0,0):M+16,('q',0,1):M+24,('q',1,0):KA,('q',1,1):VA,
        ('q',2,0):X,('q',2,1):X+8,('q',3,0):X+16,('q',3,1):X+24,
        ('o',0,0,0):X+8,('o',0,0,1):X+24,('o',2,1,0):X,('o',2,1,1):X+16,('o',3,0,0):KA,('o',3,0,1):VA,('o',3,1,0):X+8,('o',3,1,1):X+24}
def unit(g,t):
    if g in gloc:
        p,b=gloc[g]; return R(p,b+8*t,8)
    return v(stream[g+(t,)],8)
def stream_reads(g,t):
    off=lds_groups.index(g)*4096+t*2048; b=stream[g+(t,)]
    return [f'ds_read_b128 {v(b,4)}, {v(LW)} offset:{off}', f'ds_read_b128 {v(b+4,4)}, {v(LW)} offset:{off+1024}']
def zero(b,n,val='0'):
    return [f'v_mov_b64 {v(b+i,2)}, {val}' for i in range(0,n,2)]

def prologue(A, timing):
    p=[]
    e=p.append
    e(f's_load_dwordx4 {s(sPtr,4)}, s[0:1], 8')
    e(f's_load_dwordx4 {s(sPtr+4,4)}, s[0:1], 24')
    e(f's_load_dwordx2 {s(sPtr+8,2)}, s[0:1], 40')
    e(f's_load_dwordx2 {s(DBG,2)}, s[0:1], 104')
    e(f's_load_dwordx2 {s(WS,2)}, s[0:1], 112')
    if timing: e(f's_memrealtime {s(sTime,2)}')
    e(f'v_lshrrev_b32 {v(X)}, 6, v0')
    e(f'v_and_b32 {v(X+1)}, 63, v0')
    e(f'v_readfirstlane_b32 {s(sW)}, {v(X)}')
    e(f's_mov_b32 {s(WS+2)}, {WS_BYTES}')
    e(f's_mov_b32 {s(WS+3)}, 0x20000')
    e(f's_mov_b32 {s(WSRD+2)}, {4<<20}')
    e(f's_mov_b32 {s(WSRD+3)}, 0x20000')
    ln=X+1; n=X+2; g=X+3; t1=X+4; t2=X+5; VOA=X+16; VOO=X+17; TR0=X+18; TR1=X+19; TRO=X+20
    e(f'v_and_b32 {v(n)}, 15, {v(ln)}')
    e(f'v_lshrrev_b32 {v(g)}, 4, {v(ln)}')
    e(f'v_lshlrev_b32 {v(L16)}, 4, {v(ln)}')
    e(f's_mul_i32 {s(sT)}, {s(sW)}, {WREG}')
    e(f's_add_u32 {s(sT)}, {s(sT)}, {L_WV}')
    e(f'v_add_u32 {v(LW)}, {s(sT)}, {v(L16)}')
    e(f's_add_u32 {s(sVdst)}, {s(sT)}, 32768')
    e(f's_lshl_b32 {s(sT+1)}, {s(sW)}, 11')
    e(f's_add_u32 {s(sKdst)}, {s(sT+1)}, {L_KX}')
    e(f'v_and_b32 {v(t1)}, 1, {v(ln)}')
    e(f'v_mul_u32_u24 {v(t1)}, 0xaaaa, {v(t1)}')
    e(f'v_add_u32 {v(IDX)}, 0x4444, {v(t1)}')
    e(f's_lshl_b32 {s(sT+2)}, {s(sW)}, 9')
    e(f'v_lshrrev_b32 {v(t1)}, 2, {v(n)}')
    e(f'v_lshlrev_b32 {v(QW)}, 7, {v(t1)}')
    e(f'v_and_b32 {v(t1)}, 1, {v(t1)}')
    e(f'v_lshlrev_b32 {v(t1)}, 6, {v(t1)}')
    e(f'v_lshlrev_b32 {v(t2)}, 5, {v(g)}')
    e(f'v_xor_b32 {v(t1)}, {v(t1)}, {v(t2)}')
    e(f'v_add_u32 {v(QW)}, {v(QW)}, {v(t1)}')
    e(f'v_and_b32 {v(t1)}, 3, {v(n)}')
    e(f'v_lshl_add_u32 {v(QW)}, {v(t1)}, 2, {v(QW)}')
    e(f'v_add_u32 {v(QW)}, {s(sT+2)}, {v(QW)}')
    e(f'v_add_u32 {v(QW)}, {L_Q}, {v(QW)}')
    e(f'v_and_b32 {v(t1)}, 1, {v(g)}')
    e(f'v_lshlrev_b32 {v(t1)}, 2, {v(t1)}')
    e(f'v_and_b32 {v(t2)}, 7, {v(n)}')
    e(f'v_xor_b32 {v(t1)}, {v(t1)}, {v(t2)}')
    e(f'v_lshlrev_b32 {v(t1)}, 4, {v(t1)}')
    e(f'v_lshl_add_u32 {v(QR)}, {v(g)}, 7, {v(t1)}')
    e(f'v_lshlrev_b32 {v(t2)}, 4, {v(t2)}')
    e(f'v_lshl_add_u32 {v(OW)}, {v(g)}, 7, {v(t2)}')
    e(f'v_add_u32 {v(OW)}, {s(sT+2)}, {v(OW)}')
    e(f'v_lshlrev_b32 {v(ORD)}, 7, {v(g)}')
    e(f'v_lshrrev_b32 {v(t1)}, 1, {v(n)}')
    e(f'v_lshl_add_u32 {v(ORD)}, {v(t1)}, 4, {v(ORD)}')
    e(f'v_and_b32 {v(t1)}, 3, {v(t1)}')
    e(f'v_lshlrev_b32 {v(KW)}, 2, {v(t1)}')
    e(f'v_and_b32 {v(t1)}, 1, {v(n)}')
    e(f'v_lshl_add_u32 {v(KW)}, {v(t1)}, 4, {v(KW)}')
    e(f'v_lshl_add_u32 {v(KW)}, {v(g)}, 6, {v(KW)}')
    e(f'v_lshrrev_b32 {v(t1)}, 3, {v(n)}')
    e(f'v_lshl_add_u32 {v(KW)}, {v(t1)}, 8, {v(KW)}')
    e(f'v_add_u32 {v(KW)}, {s(sT+2)}, {v(KW)}')
    e(f'v_add_u32 {v(KW)}, {L_K}, {v(KW)}')
    e(f's_lshl_b32 {s(sT+3)}, {s(sW)}, 15')
    e(f's_lshl_b32 {s(sT+4)}, {s(sH)}, 8')
    e(f'v_lshrrev_b32 {v(t1)}, 2, {v(n)}')
    e(f'v_lshlrev_b32 {v(t1)}, 11, {v(t1)}')
    e(f'v_add_u32 {v(t1)}, {s(sT+4)}, {v(t1)}')
    e(f'v_and_b32 {v(t1)}, 0x1fff, {v(t1)}')
    e(f'v_lshl_add_u32 {v(PST)}, {v(g)}, 13, {v(t1)}')
    e(f'v_lshl_add_u32 {v(PST)}, {v(n)}, 4, {v(PST)}')
    e(f'v_add_u32 {v(PST)}, {s(sT+3)}, {v(PST)}')
    Rp=OPT['rep']
    e(f's_and_b32 {s(sFlagB)}, {s(sH)}, {Rp-1}'); e(f's_lshl_b32 {s(sFlagB)}, {s(sFlagB)}, 8'); e(f's_add_u32 {s(sFlagB)}, {s(sFlagB)}, {FLAG_OFF}')
    e(f's_mov_b32 {s(sEx)}, {0x10001 if Rp>1 else 1}'); e(f's_mov_b32 {s(sEx+1)}, {0x10001 if Rp>2 else 0}')
    e(f's_mov_b32 {s(sOne)}, 0x3f803f80'); e(f's_mov_b32 {s(sOne+1)}, 0x3f803f80')
    e(f's_lshl_b32 {s(sFlag)}, {s(sH)}, 2')
    e(f's_add_u32 {s(sFlag)}, {s(sFlag)}, {FLAG_OFF}')
    e(f'v_lshrrev_b32 {v(t1)}, 2, {v(n)}')
    e(f'v_lshlrev_b32 {v(MPUB)}, 6, {v(t1)}')
    e(f'v_lshlrev_b32 {v(FLG)}, 8, {v(t1)}')
    e(f'v_and_b32 {v(t1)}, 1, {v(g)}')
    e(f'v_lshl_add_u32 {v(MPUB)}, {v(t1)}, 5, {v(MPUB)}')
    e(f'v_and_b32 {v(t1)}, 3, {v(n)}')
    e(f'v_lshl_add_u32 {v(MPUB)}, {v(t1)}, 3, {v(MPUB)}')
    e(f'v_lshrrev_b32 {v(t2)}, 1, {v(g)}')
    e(f'v_lshl_add_u32 {v(MPUB)}, {v(t2)}, 31, {v(MPUB)}')
    e(f'v_lshl_add_u32 {v(FLG)}, {v(t1)}, 4, {v(FLG)}')
    e(f'v_lshl_add_u32 {v(FLG)}, {v(g)}, 6, {v(FLG)}')
    r=X+6; cb=X+7
    e(f'v_lshrrev_b32 {v(r)}, 2, {v(n)}')
    e(f'v_and_b32 {v(t2)}, 1, {v(g)}')
    e(f'v_lshlrev_b32 {v(cb)}, 1, {v(t2)}')
    e(f'v_xor_b32 {v(cb)}, {v(cb)}, {v(t1)}')
    e(f'v_lshlrev_b32 {v(cb)}, 4, {v(cb)}')
    e(f'v_lshlrev_b32 {v(TR0)}, 8, {v(g)}')
    e(f'v_lshl_add_u32 {v(TR0)}, {v(r)}, 6, {v(TR0)}')
    e(f'v_lshl_add_u32 {v(TR0)}, {v(t2)}, 5, {v(TR0)}')
    e(f'v_lshl_add_u32 {v(TR0)}, {v(t1)}, 3, {v(TR0)}')
    e(f'v_add_u32 {v(TR0)}, {s(sT)}, {v(TR0)}')
    e(f'v_xor_b32 {v(TR1)}, 32, {v(TR0)}')
    r0=X+8; r1=X+9; g1=X+10
    e(f'v_and_b32 {v(r0)}, 1, {v(r)}')
    e(f'v_lshrrev_b32 {v(r1)}, 1, {v(r)}')
    e(f'v_lshrrev_b32 {v(g1)}, 1, {v(g)}')
    e(f'v_lshl_add_u32 {v(VOA)}, {v(r0)}, 4, {v(t2)}')
    e(f'v_lshl_add_u32 {v(VOA)}, {v(r1)}, 1, {v(VOA)}')
    e(f'v_lshl_add_u32 {v(VOA)}, {v(g1)}, 2, {v(VOA)}')
    e(f'v_lshl_add_u32 {v(VOA)}, {v(VOA)}, 13, {v(cb)}')
    e(f's_lshl_b32 {s(sT+5)}, {s(sW)}, 6')
    e(f's_add_u32 {s(sT+5)}, {s(sT+5)}, {s(sT+4)}')
    e(f'v_add_u32 {v(VOA)}, {s(sT+5)}, {v(VOA)}')
    e(f'v_xor_b32 {v(TRO)}, {v(r1)}, {v(t2)}')
    e(f'v_lshlrev_b32 {v(TRO)}, 5, {v(TRO)}')
    e(f'v_lshl_add_u32 {v(TRO)}, {v(g)}, 8, {v(TRO)}')
    e(f'v_lshl_add_u32 {v(TRO)}, {v(r0)}, 6, {v(TRO)}')
    e(f'v_lshl_add_u32 {v(TRO)}, {v(t1)}, 3, {v(TRO)}')
    e(f'v_add_u32 {v(TRO)}, {s(sT)}, {v(TRO)}')
    e(f'v_lshl_add_u32 {v(VOO)}, {v(t2)}, 4, {v(r)}')
    e(f'v_lshl_add_u32 {v(VOO)}, {v(g1)}, 2, {v(VOO)}')
    e(f'v_lshl_add_u32 {v(VOO)}, {v(VOO)}, 10, {v(cb)}')
    e(f's_lshl_b32 {s(sT+5)}, {s(sW)}, 8')
    e(f's_lshl_b32 {s(sT+6)}, {s(sH)}, 17')
    e(f's_add_u32 {s(sT+5)}, {s(sT+5)}, {s(sT+6)}')
    e(f'v_add_u32 {v(VOO)}, {s(sT+5)}, {v(VOO)}')
    cval=struct.unpack('<I',struct.pack('<f',math.log2(math.e)/math.sqrt(128)))[0]
    e(f's_mov_b32 {s(sC)}, {hex(cval)}')
    e(f's_mov_b32 {s(sStep)}, 0')
    e(f's_mov_b32 {s(sSpin)}, 0')
    e(f's_mov_b32 {s(sC2)}, {hex(cval)}'); e(f's_mov_b32 {s(sC2+1)}, {hex(cval)}')
    e(f's_mov_b32 {s(sSpinU)}, 0'); e(f's_mov_b32 {s(sSpinF)}, 0')
    e(f's_mov_b32 {s(sPslot)}, {3*262144}')
    e(f's_lshl_b32 {s(sT+5)}, {s(sH)}, 13')
    e(f's_add_u32 {s(sPinB)}, {s(sT+5)}, {PART_OFF}')
    e(f's_add_u32 {s(sPrst+1)}, {s(sPinB)}, {s(sT+1)}')
    e(f's_add_u32 {s(sPrst)}, {s(sPrst+1)}, {2*262144}')
    e(f's_add_u32 {s(sMemB)}, {s(sT+4)}, {MEM_OFF}')
    e(f's_lshl_b32 {s(sT+5)}, {s(sH)}, 14')
    e(f's_add_u32 {s(sKsrc)}, {s(sT+5)}, {s(sT+1)}')
    e(f's_add_u32 {s(sKsrc)}, {s(sKsrc)}, {KV_OFF}')
    e(f's_add_u32 {s(sVsrc)}, {s(sKsrc)}, 8192')
    e(f's_lshl_b32 {s(sT+5)}, {s(sH)}, 12')
    e(f's_lshl_b32 {s(sT+6)}, {s(sW)}, 10')
    e(f's_add_u32 {s(sKvm)}, {s(sT+5)}, {s(sT+6)}')
    e(f's_add_u32 {s(sKvm)}, {s(sKvm)}, {KVM_OFF}')
    e(f's_mov_b32 {s(sSlot)}, 0')
    p+=zero(ONES,4,'-1')
    p+=zero(PM,4)
    p+=zero(KVQ,4,'-1')
    e('s_waitcnt lgkmcnt(0)')
    e(f's_lshl_b32 {s(sT+5)}, {s(sW)}, 18')
    e(f's_add_u32 {s(sT+5)}, {s(sT+5)}, {s(sPinB)}')
    e(f's_add_u32 {s(sT+6)}, {s(sT+5)}, 4096')
    for j in range(8):
        e(f'buffer_store_dwordx4 {v(KVQ,4)}, {v(L16)}, {s(WS,4)}, {s(sT+5+(j>>2))} offen offset:{(j&3)*1024} sc1')
    e(f's_lshl_b32 {s(sT+5)}, {s(sW)}, 13')
    e(f's_add_u32 {s(sT+5)}, {s(sT+5)}, {s(sT+4)}')
    e(f's_add_u32 {s(sT+5)}, {s(sT+5)}, {MEM_OFF}')
    e(f'buffer_store_dwordx2 {v(KVQ,2)}, {v(MPUB)}, {s(WS,4)}, {s(sT+5)} offen sc1')
    e(f's_mov_b64 exec, {s(sEx,2)}')
    e(f'buffer_store_dword {v(PM)}, {v(L16)}, {s(WS,4)}, {s(sFlag)} offen sc1')
    e('s_mov_b64 exec, -1')
    e(f's_cmp_eq_u32 {s(sW)}, 1'); e('s_cselect_b64 vcc, -1, 0'); e(f'v_cndmask_b32 {v(MPUB)}, {v(MPUB)}, {v(FLG)}, vcc')
    e(f's_lshl_b32 {s(sKvF)}, {s(sH)}, 7'); e(f's_add_u32 {s(sKvmF)}, {s(sKvF)}, {BF_OFF+BF_KVM}'); e(f's_add_u32 {s(sKvF)}, {s(sKvF)}, {BF_OFF+BF_KV}')
    e(f's_cmp_eq_u32 {s(sW)}, 3'); e(f's_cselect_b32 {s(sKvmF)}, {s(sKvmF)}, 0x40000000')
    mo=X+11
    e(f'v_lshrrev_b32 {v(mo)}, 1, {v(n)}')
    e(f'v_lshlrev_b32 {v(mo)}, 10, {v(mo)}')
    e(f'v_lshl_add_u32 {v(mo)}, {v(g)}, 3, {v(mo)}')
    e(f'v_and_b32 {v(t1)}, 1, {v(n)}')
    e(f'v_lshl_add_u32 {v(mo)}, {v(t1)}, 2, {v(mo)}')
    e(f's_and_b32 {s(sT+5)}, {s(sW)}, 1'); e(f's_lshl_b32 {s(sT+5)}, {s(sT+5)}, 9')
    e(f's_lshr_b32 {s(sT+6)}, {s(sW)}, 1'); e(f's_lshl_b32 {s(sT+6)}, {s(sT+6)}, 7')
    e(f's_add_u32 {s(sT+5)}, {s(sT+5)}, {s(sT+6)}')
    e(f'v_add_u32 {v(mo)}, {s(sT+5)}, {v(mo)}')
    for u in range(2):
        for x in range(4):
            e(f'global_load_dword {v(QA+4*u+x)}, {v(mo)}, {s(sPtr,2)} offset:{256*u+32*x}')
    order=res_groups+lds_groups
    ptr={'q':sPtr+2,'k':sPtr+4,'v':sPtr+6,'o':sPtr+8}
    cur=[None]
    def issue(gi):
        g_=order[gi]; slot0=(4*gi)%32
        if cur[0]!=g_[0]:
            cur[0]=g_[0]
            e(f's_mov_b32 {s(WSRD)}, {s(ptr[g_[0]])}'); e(f's_mov_b32 {s(WSRD+1)}, {s(ptr[g_[0]]+1)}')
        for b in range(4):
            hb,jh=b>>1,b&1
            e(f's_add_u32 m0, {s(sT)}, {(slot0+b)*1024}')
            if g_[0]=='o':
                vo=VOO; e(f's_mov_b32 {s(sT+7)}, {(32*(2*g_[2]+hb)+8*jh)*1024+g_[1]*64}')
            else:
                c=g_[1]; vo=VOA; e(f's_mov_b32 {s(sT+7)}, {(128*(c&3)+64*(c>>2)+32*jh+8*hb)*8192}')
            e(f'buffer_load_dwordx4 {v(vo)}, {s(WSRD,4)}, {s(sT+7)} offen lds')
    for gi in range(8): issue(gi)
    e('s_waitcnt vmcnt(32)')
    e(f's_mov_b32 {s(sT+5)}, 0x05040100'); e(f's_mov_b32 {s(sT+6)}, 0x07060302')
    e(f'v_add_u32 {v(T0)}, {s(sT+1)}, {v(L16)}')
    for u in range(2):
        d=M+4*u; q=QA+4*u
        e(f'v_perm_b32 {v(d)}, {v(q+1)}, {v(q)}, {s(sT+5)}')
        e(f'v_perm_b32 {v(d+1)}, {v(q+3)}, {v(q+2)}, {s(sT+5)}')
        e(f'v_perm_b32 {v(d+2)}, {v(q+1)}, {v(q)}, {s(sT+6)}')
        e(f'v_perm_b32 {v(d+3)}, {v(q+3)}, {v(q+2)}, {s(sT+6)}')
        e(f'ds_write_b128 {v(T0)}, {v(d,4)} offset:{L_MEM+1024*u}')
    e(f'v_and_b32 {v(t1)}, 1, {v(n)}')
    e(f'v_lshlrev_b32 {v(t1)}, 4, {v(t1)}')
    e(f'v_mov_b32 {v(t2)}, 0x3f80')
    e(f'v_lshlrev_b32 {v(t2)}, {v(t1)}, {v(t2)}')
    e(f'v_bfe_u32 {v(t1)}, {v(n)}, 1, 2')
    for jj in range(4):
        e(f'v_cmp_eq_u32 vcc, {jj}, {v(t1)}')
        e(f'v_cndmask_b32 {v(M+16+jj)}, 0, {v(t2)}, vcc')
    e(f'ds_write_b128 {v(L16)}, {v(M+16,4)} offset:{L_SEL}')
    e('s_barrier')
    e(f's_cmp_lg_u32 {s(sW)}, 0')
    e('s_cbranch_scc1 L_ch_noarr')
    e(f's_getreg_b32 {s(sT+5)}, hwreg(HW_REG_XCC_ID)')
    e(f's_and_b32 {s(sT+5)}, {s(sT+5)}, 7')
    e(f's_lshl_b32 {s(sT+5)}, {s(sT+5)}, 3')
    e(f's_lshl_b64 {s(sT+2,2)}, 1, {s(sT+5)}')
    e(f'v_mov_b32 {v(M+20)}, {s(sT+2)}')
    e(f'v_mov_b32 {v(M+21)}, {s(sT+3)}')
    e(f'v_mov_b32 {v(M+22)}, 0')
    e('s_mov_b64 exec, 1')
    e(f'global_atomic_add_x2 {v(M+22)}, {v(M+20,2)}, {s(DBG,2)}')
    e('s_mov_b64 exec, -1')
    p.append('L_ch_noarr:')
    for gi in range(32):
        g_=order[gi]; slot0=(4*gi)%32
        after=min(31,gi+7)-gi
        extra=0
        e(f's_waitcnt vmcnt({4*after+extra})')
        if g_ in gloc: pf,b0=gloc[g_]
        else: pf,b0='v',M+16
        for b in range(4):
            for t in range(2):
                if g_[0]=='o': e(f'ds_read_b64_tr_b16 {R(pf,b0+4*b+2*t,2)}, {v(TRO)} offset:{(slot0+b)*1024+128*t}')
                else: e(f'ds_read_b64_tr_b16 {R(pf,b0+8*t+2*b,2)}, {v(TR1 if t else TR0)} offset:{(slot0+b)*1024}')
        e('s_waitcnt lgkmcnt(0)')
        if g_ not in gloc:
            for j in range(4): e(f'ds_write_b128 {v(LW)}, {v(M+16+4*j,4)} offset:{(slot0+j)*1024}')
        if gi+8<32: issue(gi+8)
    for g_ in lds_groups[:4]:
        for t in range(2): p.extend(stream_reads(g_,t))
    if OPT['sync']:
        e(f'v_mov_b32 {v(T0)}, 136')
        p.append('L_ch_iw:')
        e(f'global_load_dword {v(FLG)}, {v(T0)}, {s(DBG,2)} sc1'); e(f's_add_u32 {s(sSpinF)}, {s(sSpinF)}, 1'); e(f's_cmp_gt_u32 {s(sSpinF)}, {LIM}'); e('s_cbranch_scc1 L_ch_iwx')
        e('s_waitcnt vmcnt(0)'); e(f'v_cmp_eq_u32 vcc, 0, {v(FLG)}'); e('s_cbranch_vccnz L_ch_iw')
        p.append('L_ch_iwx:')
        e('s_waitcnt vmcnt(0)'); e(f'v_mov_b32 {v(FLG)}, 0')
        p.extend(kv_check('L_ch_k0')); p.extend(['s_branch L_ch_k0y']+kv_wait('L_ch_k0')+['L_ch_k0y:'])
    p.extend(kv_dma(0))
    p.append('L_ch_hs:')
    e(f'global_load_dwordx2 {v(M,2)}, {v(PM+1)}, {s(DBG,2)} sc1')
    e(f's_add_u32 {s(sSpin)}, {s(sSpin)}, 1')
    e('s_waitcnt vmcnt(0)')
    e(f'v_readfirstlane_b32 {s(sT+2)}, {v(M)}')
    e(f'v_readfirstlane_b32 {s(sT+3)}, {v(M+1)}')
    e(f's_cmp_gt_u32 {s(sSpin)}, 0x100000')
    e('s_cbranch_scc1 L_ch_hsdone')
    e(f's_add_u32 {s(sT+4)}, {s(sT+2)}, {s(sT+3)}')
    e(f's_lshr_b32 {s(sT+5)}, {s(sT+4)}, 16')
    e(f's_add_u32 {s(sT+4)}, {s(sT+4)}, {s(sT+5)}')
    e(f's_lshr_b32 {s(sT+5)}, {s(sT+4)}, 8')
    e(f's_add_u32 {s(sT+4)}, {s(sT+4)}, {s(sT+5)}')
    e(f's_and_b32 {s(sT+4)}, {s(sT+4)}, 0xff')
    e(f's_cmp_lg_u32 {s(sT+4)}, 32')
    e('s_cbranch_scc1 L_ch_hs')
    p.append('L_ch_hsdone:')
    p+=zero(QA,8)+kv_addr()
    e(f's_add_u32 {s(sKsrc)}, {s(sKsrc)}, {32*16384}'); e(f's_add_u32 {s(sVsrc)}, {s(sVsrc)}, {32*16384}')
    e(f's_or_b32 {s(sT+2)}, {s(sT+2)}, {s(sT+3)}')
    e(f's_and_b32 {s(sT+2)}, {s(sT+2)}, 0x20202020')
    e('s_waitcnt lgkmcnt(0)')
    if timing:
        e(f's_memrealtime {s(sTime+2,2)}'); e(f's_memtime {s(sTime+6,2)}'); e('s_waitcnt lgkmcnt(0)')
    if STAMPS:
        for i in range(NST): e(f's_mov_b32 {s(sAC+i)}, 0')
    if OPT['solo']:
        e('s_memtime s[60:61]'); e('s_waitcnt lgkmcnt(0)'); e(f's_mov_b32 {s(sSpin)}, 0')
    e('s_barrier')
    e(f's_cmp_eq_u32 {s(sT+2)}, 0')
    e('s_cbranch_scc1 L_ch_S0')
    return fix(p,'prologue')

def kv_dma(par):
    return [f's_mov_b32 m0, {s(sKdst+par)}',
            f'buffer_load_dwordx4 {v(L16)}, {s(WS,4)}, {s(sKsrc)} offen sc1 lds',
            f'buffer_load_dwordx4 {v(L16)}, {s(WS,4)}, {s(sKsrc)} offen offset:1024 sc1 lds',
            f's_mov_b32 m0, {s(sVdst+par)}',
            f'buffer_load_dwordx4 {v(L16)}, {s(WS,4)}, {s(sVsrc)} offen sc1 lds',
            f'buffer_load_dwordx4 {v(L16)}, {s(WS,4)}, {s(sVsrc)} offen offset:1024 sc1 lds']

def kv_addr(): return [f'v_lshrrev_b32 {v(T0)}, 2, {v(L16)}', f'v_and_b32 {v(T0)}, 28, {v(T0)}', f'v_min_u32 {v(T0)}, 24, {v(T0)}']
def kv_check(L):
    return kv_addr()+[f's_add_u32 {s(sT+3)}, {s(sStep)}, 1', f's_min_u32 {s(sT+3)}, {s(sT+3)}, 63', f's_lshl_b32 {s(sT+3)}, {s(sT+3)}, 2', f'{L}c:',
            f'v_mad_u32_u24 {v(FLG)}, {v(FLG)}, 28, {v(T0)}', f'v_cmp_ge_u32 vcc, {s(sT+3)}, {v(FLG)}', f's_cbranch_vccnz {L}w', f'{L}x:']
def kv_wait(L):
    return [f'{L}w:', f's_add_u32 {s(sSpinF)}, {s(sSpinF)}, 1', f's_cmp_gt_u32 {s(sSpinF)}, {LIM}', f's_cbranch_scc1 {L}x',
            f'buffer_load_dword {v(FLG)}, {v(T0)}, {s(WS,4)}, {s(sKvF)} offen sc1', 's_waitcnt vmcnt(0)', f's_branch {L}c']
def smf(d,a_,b): return f'{SMF} {v(d,4)}, {v(a_,4)}, {b}, {v(IDX)}'
def mrd(c): return f'ds_read_b128 {v(M+4*c,4)}, {v(L16)} offset:{L_MEM+1024*c}'

STAMPS=False
NST=14; sST=52; sAC=80
STSET=list(range(14))
def stamp(i): return [('s_memrealtime' if OPT['abs'] else 's_memtime')+f' {s(sST+2*STSET.index(i),2)} ;stamp'] if STAMPS and i in STSET else []
OPT=dict(sync=0, nw=0, d1=18, sl=12, nb=5, pp=2, rep=1, pk=1, hotkv=0, pub=1, rst=1, tr=0, solo=0, cut=99, drop=0, cutm=-1, abs=0, show=0, pad=0, al=0)
def G(*groups):
    o=[]
    for g_ in groups: o.extend(g_)
    return o
def step(mode, par, verbose=False):
    sc=' sc1' if mode=='S' else ''
    L=f'L_ch_{mode}{par}'
    p=[L+':']; e=p.append
    qk=lambda m,c,t: smf((QA if m=='q' else KA if m=='k' else VA)+4*t, M+4*c, unit((m,c),t))
    Q=lambda c,t: qk('q',c,t); K=lambda c,t: qk('k',c,t); V=lambda c,t: qk('v',c,t)
    W=lambda n: f's_waitcnt lgkmcnt({n})'
    krd=[f'ds_read_b128 {v(X+4*f,4)}, {v(L16)} offset:{L_KX+1024*f}' for f in range(8)]
    kl=[f'buffer_load_dwordx4 {v(STG+4*i,4)}, {v(L16)}, {s(WS,4)}, {s(sVsrc if i>>1 else sKsrc)} offen offset:{1024*(i&1)} sc1' for i in range(4)]
    kw=[f'v_add_u32 {v(T0)}, {s(sKdst)}, {v(L16)}','s_waitcnt vmcnt(2)']+[f'ds_write_b128 {v(T0)}, {v(STG+4*i,4)} offset:{1024*i}' for i in range(2)]+[f'ds_write_b128 {v(LW)}, {v(STG+8+4*i,4)} offset:{32768+1024*i}' for i in range(2)]
    def post(acc,d0,d1,bytok):
        o=[f'v_add_f32 {v(acc)}, {v(acc)}, {v(acc+1)}', f'v_add_f32 {v(acc+2)}, {v(acc+2)}, {v(acc+3)}',
           f'v_add_f32 {v(acc+4)}, {v(acc+4)}, {v(acc+5)}', f'v_add_f32 {v(acc+6)}, {v(acc+6)}, {v(acc+7)}']
        if bytok: o+=[f'v_cvt_pk_bf16_f32 {v(d0)}, {v(acc)}, {v(acc+4)}', f'v_cvt_pk_bf16_f32 {v(d1)}, {v(acc+2)}, {v(acc+6)}']
        else:     o+=[f'v_cvt_pk_bf16_f32 {v(d0)}, {v(acc)}, {v(acc+2)}', f'v_cvt_pk_bf16_f32 {v(d1)}, {v(acc+4)}, {v(acc+6)}']
        return o
    def tr(i,rt=False):
        if not OPT['tr']: return []
        return [('s_memrealtime' if rt else 's_memtime')+f' {s(52+14*par+2*i,2)} ;stamp']
    def trdump():
        if not OPT['tr']: return []
        o=[f'v_mov_b32 {v(M+4+i)}, {s(52+14*(1-par)+2*i)}' for i in range(4)]+[f'v_mov_b32 {v(M+8+i)}, {s(52+14*(1-par)+2*i)}' for i in range(4,7)]
        o+=[f's_lshl_b32 {s(sT+1)}, {s(sSpinU)}, 16', f's_add_u32 {s(sT+1)}, {s(sT+1)}, {s(sSpin)}', f'v_mov_b32 {v(M+15)}, {s(sT+1)}',
            f's_lshl_b32 {s(sT+1)}, {s(sStep)}, 5', f's_add_u32 {s(sT+1)}, {s(sT+1)}, {s(sH)}', f's_lshl_b32 {s(sT+1)}, {s(sT+1)}, 2', f's_add_u32 {s(sT+1)}, {s(sT+1)}, {s(sW)}',
            f's_lshl_b32 {s(sT+1)}, {s(sT+1)}, 5', f's_add_u32 {s(sT+1)}, {s(sT+1)}, {100<<20}', 's_mov_b64 exec, 1',
            f'buffer_store_dwordx4 {v(M+4,4)}, off, {s(WS,4)}, {s(sT+1)}', f'buffer_store_dwordx4 {v(M+12,4)}, off, {s(WS,4)}, {s(sT+1)} offset:16', 's_mov_b64 exec, -1']
        return o
    rstore=lambda r_,j: f'buffer_store_dwordx4 {v(r_,4)}, {v(L16)}, {s(WS,4)}, {s(sPrst)} offen offset:{j*1024}{sc}'
    if not OPT['solo']: p.extend(['s_waitcnt vmcnt(7) lgkmcnt(0)','s_barrier'])
    p.append(';secS')
    for c in range(4): e(mrd(c))
    e(rstore(ONES,1))
    p.append(f'{L}_re:')
    z=zero(KA,16)
    qp=post(QA,QA+1,QA+3,True)+[f'ds_write2_b32 {v(QW)}, {v(QA+1)}, {v(QA+3)} offset0:0 offset1:4']
    kp=post(KA,KVQ+1,KVQ+3,True)+[f'ds_write2_b32 {v(KW)}, {v(KVQ+1)}, {v(KVQ+3)} offset0:0 offset1:8']
    p.extend(G([W(3)],[Q(0,0)],[Q(0,1),W(2)],[Q(1,0),kl[0]],[Q(1,1),W(1)],[Q(2,0),kl[1]],[Q(2,1),W(0),z[0]],[Q(3,0),z[1]],[Q(3,1),kl[2]],
               [K(0,0),z[2]],[K(1,0),kl[3]],[K(2,0),'s_waitcnt vmcnt(8)','s_barrier',z[3]],[K(3,0),mrd(4),z[4]],
               [K(0,1),mrd(5),z[5]],[K(1,1),mrd(6),z[6]],[K(2,1),mrd(7),z[7]],[K(3,1),krd[0],W(4)]))
    p.append(';sec0')
    on=[f'v_mov_b64 {v(ONES+2*i,2)}, {s(sOne,2)}' for i in range(2)]
    p.extend(G([Q(4,0),krd[4],W(4)],[Q(5,0),krd[1],W(4)],[Q(6,0),krd[5],W(4)],[Q(7,0),krd[2],on[0]],
               [Q(4,1),krd[3],on[1]],[Q(5,1),krd[6]],[Q(6,1),krd[7],qp[0]],[Q(7,1),'s_nop 1',qp[1]],
               [K(4,0),f'buffer_load_dword {v(FLG)}, {v(T0)}, {s(WS,4)}, {s(sKvF)} offen sc1'],[K(5,0),'s_nop 1',qp[2]],[K(6,0),qp[3]],[K(7,0),'s_nop 1',qp[4]],
               [K(4,1),qp[5]],[K(5,1),qp[6]],[K(6,1),kp[0]],[K(7,1),kp[1]]))
    p.append(';sec1')
    rk=[f'ds_read_b128 {v(X+16*k,4)}, {v(L16)} offset:{L_K+1024*k}' for k in range(2)]
    rq=[f'ds_read_b128 {v(M+4*k,4)}, {v(QR)} offset:{L_Q+512*k}' for k in range(4)]
    VF=[X+4,X+20]
    rv=[f'ds_read_b128 {v(VF[t],4)}, {v(LW)} offset:{32768+1024*t}' for t in range(2)]
    SX=lambda m,ks: f'{MF32} {v(QA+4*m,4)}, {v(X+16*m+4*ks,4)}, {v(M+4*ks,4)}, '+(v(QA+4*m,4) if ks else '0')
    sm=[smf(KA,X+16*k,v(M+8*k,8)) for k in range(2)]
    zk=zero(KA,4)
    mx=PM; tt=KA+3
    c=[f'v_max3_f32 {v(mx)}, {v(QA)}, {v(QA+1)}, {v(QA+2)}', f'v_max3_f32 {v(mx)}, {v(mx)}, {v(QA+3)}, {v(QA+4)}',
       f'v_max3_f32 {v(mx)}, {v(mx)}, {v(QA+5)}, {v(QA+6)}',
       f'v_add_f32 {v(KA)}, {v(KA)}, {v(KA+1)}', f'v_add_f32 {v(KA+1)}, {v(KA+2)}, {v(KA+3)}',
       f'v_max3_f32 {v(mx)}, {v(mx)}, {v(QA+7)}, {v(KA)}', f'v_max_f32 {v(tt)}, {v(mx)}, {v(KA+1)}', f'v_max_f32 {v(mx)}, {v(mx)}, {v(KA+1)}',
       f'v_permlane32_swap_b32 {v(mx)}, {v(tt)}', f'v_max_f32 {v(T0)}, {v(mx)}, {v(tt)}', f'v_max_f32 {v(mx)}, {v(mx)}, {v(tt)}',
       f'v_permlane16_swap_b32 {v(mx)}, {v(T0)}', f'v_max_f32 {v(mx)}, {v(mx)}, {v(T0)}', f'v_mul_f32 {v(T0)}, {s(sC)}, {v(mx)}']
    kadv=0 if OPT['hotkv'] else 32*16384
    bk=[f's_add_u32 {s(sSlot)}, {s(sSlot)}, 8192', f's_and_b32 {s(sSlot)}, {s(sSlot)}, 0x7fff',
        f's_add_u32 {s(sMemIn0)}, {s(sSlot)}, {MEM_OFF}', f's_add_u32 {s(sMemPub)}, {s(sMemB)}, {s(sSlot)}',
        f's_xor_b32 {s(sMemRst)}, {s(sMemPub)}, 16384',
        f's_add_u32 {s(sPslot)}, {s(sPslot)}, 262144', f's_and_b32 {s(sPslot)}, {s(sPslot)}, 0xfffff',
        f's_add_u32 {s(sPrst)}, {s(sPrst+1)}, {s(sPslot)}',
        f's_add_u32 {s(sPst)}, {s(sPslot)}, {PART_OFF}', f's_add_u32 {s(sPst+1)}, {s(sPslot)}, {PART_OFF+131072}',
        f's_add_u32 {s(sPin)}, {s(sPinB)}, {s(sPslot)}', f's_add_u32 {s(sPin+1)}, {s(sPin)}, 4096',
        f's_add_u32 {s(sKsrc)}, {s(sKsrc)}, {kadv}', f's_add_u32 {s(sVsrc)}, {s(sVsrc)}, {kadv}',
        f's_add_u32 {s(sMdst)}, {s(sMemIn0)}, 4096', f's_mov_b32 m0, {L_MEM}', f's_add_u32 {s(sStep)}, {s(sStep)}, 1']
    wo=[]
    for g_ in (('o',0,0),('o',2,1),('o',3,0),('o',3,1)):
        for t in range(2): wo+=stream_reads(g_,t)
    p.extend(G([V(0,0),'s_nop 1',f'v_cmp_u_f32 vcc, {v(QA)}, {v(QA+2)}'],[V(0,1),W(0),'s_barrier',kp[2]],[V(1,0),rq[0],kp[3]],[V(1,1),rq[1],kp[4]],
               [V(2,0),kp[5]],[V(2,1),kp[6]],[V(3,0),rq[2],zk[0]],[V(3,1),rq[3],W(3)],
               [SX(0,0),zk[1]],[SX(1,0)],[SX(0,1),W(0),'s_barrier'],[SX(1,1),rk[0]],
               [SX(0,2),rk[1]],[SX(0,3),rv[0]],[SX(1,2),rv[1]],[SX(1,3),f's_cbranch_vccnz {L}_r2',f'{L}_r2x:',W(2)],
               [sm[0],bk[0],bk[1],c[0]],[sm[1],'s_nop 0'],
               [V(4,0),bk[2],bk[3],c[1]],[V(5,0),bk[4],c[2]],[V(6,0),bk[5],bk[6],c[3],c[4]],[V(7,0),bk[7],bk[16],c[5],c[6],c[7]],
               [V(4,1),wo[0],c[8]],[V(5,1),wo[1],c[9],c[10]],[V(6,1),wo[2],c[11]],[V(7,1),wo[3],c[12],c[13]]))
    if OPT['tr']: p.append(f's_memtime {s(52+14*(1-par)+10,2)} ;stamp')
    p.append(';sec2')
    vp=post(VA,KVQ,KVQ+2,False)
    xp=lambda r_: f'v_exp_f32 {v(r_)}, {v(r_)}'
    PX=KA+4
    e(vp[0]); e(vp[1])
    if OPT['pk']:
        for r_ in (KA,QA,QA+2,QA+4,QA+6):
            e(f'v_pk_fma_f32 {v(r_,2)}, {v(r_,2)}, {s(sC2,2)}, {v(T0,2)} op_sel_hi:[1,1,0] neg_lo:[0,0,1] neg_hi:[0,0,1]')
    else:
        for r_ in [KA,KA+1]+[QA+i for i in range(8)]: e(f'v_fma_f32 {v(r_)}, {v(r_)}, {s(sC)}, -{v(T0)}')
    e(xp(KA)); e(xp(KA+1))
    p.extend([vp[2],vp[3],vp[4],vp[5]])
    e(f'v_cvt_pk_bf16_f32 {v(PM)}, {v(KA)}, {v(KA+1)}')
    e(xp(QA)); e(xp(QA+1))
    ex=[f's_cmp_eq_u32 {s(sStep)}, 64','s_cbranch_scc1 L_ch_last'] if par==1 else []
    p.extend(G([f'{MF16} {v(VA,4)}, {v(KVQ,2)}, {v(PM,2)}, 0',bk[12],xp(QA+2)],
               [f'{MF16} {v(VA+4,4)}, {v(KVQ+2,2)}, {v(PM,2)}, 0',bk[13],xp(QA+3)],
               [f'{MF16} {v(KA,4)}, {v(ONES,2)}, {v(PM,2)}, 0',W(4),xp(QA+4),xp(QA+5),xp(QA+6),xp(QA+7)]))
    for i in range(4): e(f'v_cvt_pk_bf16_f32 {v(PX+i)}, {v(QA+2*i)}, {v(QA+2*i+1)}')
    zq=['s_nop 1']
    wo=[]
    for g_ in (('o',0,0),('o',2,1),('o',3,0),('o',3,1)):
        for t in range(2): wo+=stream_reads(g_,t)
    p.extend(G(zq,[f'{MF32} {v(KA,4)}, {v(ONES,4)}, {v(PX,4)}, {v(KA,4)}']+(ex or ['s_nop 1'])+[bk[8]],
               [f'{MF32} {v(VA,4)}, {v(VF[0],4)}, {v(PX,4)}, {v(VA,4)}',bk[14],bk[15],bk[9]],
               [f'{MF32} {v(VA+4,4)}, {v(VF[1],4)}, {v(PX,4)}, {v(VA+4,4)}',bk[10],f'v_rcp_f32 {v(T0)}, {v(KA)}',bk[11]]))
    if OPT['pk']:
        pm_=[f'v_pk_mul_f32 {v(VA+2*i,2)}, {v(VA+2*i,2)}, {v(T0,2)} op_sel_hi:[1,0]' for i in range(4)]
        cv=[f'v_cvt_pk_bf16_f32 {v(QA+4+i)}, {v(VA+2*i)}, {v(VA+2*i+1)}' for i in range(4)]
        p.extend([pm_[0],pm_[1],cv[0],cv[1],pm_[2],pm_[3],cv[2],cv[3]])
    else:
        for i in range(8): e(f'v_mul_f32 {v(VA+i)}, {v(T0)}, {v(VA+i)}')
        for i in range(4): e(f'v_cvt_pk_bf16_f32 {v(QA+4+i)}, {v(VA+2*i)}, {v(VA+2*i+1)}')
    p.append(';sec3')
    e(f'ds_write_b128 {v(OW)}, {v(QA+4,4)} offset:{L_O}')
    e(f'v_mfma_f32_32x32x8_bf16 {v(M,16)}, {v(PM+2,2)}, {v(PM+2,2)}, 0')
    p.extend(zero(ONES,4,'-1'))
    e('s_waitcnt lgkmcnt(0)')
    e('s_barrier')
    for k in range(4): e(f'ds_read_b128 {v(M+16+4*k,4)}, {v(ORD)} offset:{L_O+512*k}')
    e(f's_cmp_lg_u32 {s(sW)}, 0')
    p.append(';sec4')
    O=lambda tp,k: smf(M+4*tp,M+16+4*k,unit(('o',tp,k>>1),k&1))
    def oc(tp,j):
        q=M+8*(tp>>1)+(tp&1)+2*j
        return f'v_cvt_pk_bf16_f32 {v(q)}, {v(M+4*tp+2*j)}, {v(M+4*tp+2*j+1)}'
    ost=lambda u: f'buffer_store_dwordx4 {v(M+8*u,4)}, {v(PST)}, {s(WS,4)}, {s(sPst+u)} offen{sc}'
    p.extend(G([wo[4],wo[5],W(5)],[O(0,0),wo[6],W(5)],[O(0,1),wo[7],W(5)],[O(0,2),wo[8],W(5)],[O(0,3),wo[9]],
               [O(1,0),wo[10]],[O(1,1),wo[11]],[O(1,2),wo[12],W(5)],[O(1,3),wo[13],oc(0,0)],
               [O(2,0),wo[14],oc(0,1)],[O(2,1),wo[15],'s_nop 0',oc(1,0),oc(1,1)],[O(2,2),ost(0)],[O(2,3),W(4),'s_nop 1'],
               [O(3,0),W(0),'s_nop 1'],[O(3,1),oc(2,0)],[O(3,2),oc(2,1)],[O(3,3)],[oc(3,0),oc(3,1),ost(1)]))
    sr=[]
    for g_,t in ((('q',0),0),(('q',0),1),(('q',1),0),(('q',1),1)): sr+=stream_reads(g_,t)
    xs=[]
    for g_,t in ((('q',2),0),(('q',2),1),(('q',3),0),(('q',3),1)): xs+=stream_reads(g_,t)
    if verbose and par==0:
        fx=fix(p,'main',True); print('model cycles',simulate(fx,OPT['show']), 'inserted waits', len([l for l in fx if l.startswith('s_waitcnt')])-len([l for l in p if l.startswith('s_waitcnt')]))
    if OPT['solo']:
        marks=[i for i,l in enumerate(p) if l.startswith(';sec')]
        if OPT['cutm']>=0:
            marks=[i+1 for i,l in enumerate(p) if l.startswith(('v_mfma','v_smfmac'))]; OPT['cut']=OPT['cutm']
        if OPT['cut']<len(marks):
            rest=p[marks[OPT['cut']]:]
            p[:]=p[:marks[OPT['cut']]]+['s_memtime s[62:63] ;stamp']+[l for l in rest if (l.startswith('s_add') or l.startswith('s_and') or l.startswith('s_cmp') or l.startswith('s_cbranch_scc') or l.endswith(':')) ]
        d=OPT['drop']
        if d&1: p[:]=[l for l in p if not l.startswith('buffer_store')]
        if d&2: p[:]=[l for l in p if not (l.startswith('buffer_load') )]
        if d&16: p[:]=[(l.replace('buffer_load_dwordx4 v2,','buffer_load_dwordx4 v[252:255], v2,').replace(' lds','')+' ;stamp') if l.startswith('buffer_load') else l for l in p]
        if d&4: p[:]=[l for l in p if not l.startswith('s_barrier')]
        if d&8: p[:]=[l for l in p if not l.startswith('s_cbranch_vcc')]
        if OPT['cut']>=len(marks): p.append('s_memtime s[62:63] ;stamp')
        p.extend(['s_waitcnt vmcnt(0)']+kw+sr+weave(xs,zero(QA,8),[0,0,0,0,1,1,1,1]))
        p.extend(['s_waitcnt lgkmcnt(0) vmcnt(0)','s_sub_u32 s62, s62, s60', f's_add_u32 {s(sSpin)}, {s(sSpin)}, s62', 's_barrier', 's_sleep 8', 's_memtime s[60:61] ;stamp', 's_waitcnt lgkmcnt(0)', 's_barrier'])
        if par==1: p.append(f's_branch L_ch_{mode}0')
        return fix(p,f'solo{par}'), [f'{L}_r2:',f's_branch {L}_r2x']
    p.extend(tr(0)+tr(1,True))
    e(f's_cbranch_scc1 {L}_w')
    head=list(p)
    e(f'ds_read_b128 {v(QA+4,4)}, {v(L16)} offset:{L_SEL}')
    e(f'v_mov_b32 {v(M+2)}, {s(sStep)}')
    for i in range(OPT['d1']): e('s_nop 3')
    p.extend(tr(2))
    ld1=[f'buffer_load_dwordx4 {v(X+4*j,4)}, {v(L16)}, {s(WS,4)}, {s(sPin+(j>>2))} offen offset:{(j&3)*1024} sc1' for j in range(8)]
    p.extend(ld1)
    p.extend(sr)
    e(W(8))
    p.append(f'{L}_p1:')
    RM=lambda j: f'{MF32} {v(QA,4)}, {v(QA+4,4)}, {v(X+4*j,4)}, '+(v(QA,4) if j else '0')
    p.extend(['s_waitcnt vmcnt(7)',RM(0),'s_waitcnt vmcnt(6)',f'v_max_u32 {v(M+3)}, {v(X)}, {v(X+4)}',f'v_cmp_eq_u32 vcc, -1, {v(M+3)}',RM(1),
              f's_mov_b64 exec, {s(sEx,2)}', f's_cbranch_vccnz {L}_r0', f'{L}_r0x:',
              f'buffer_store_dword {v(M+2)}, {v(L16)}, {s(WS,4)}, {s(sFlag)} offen{sc}', 's_mov_b64 exec, -1']+tr(3))
    for j in range(2,8):
        e(f's_waitcnt vmcnt({8-j})'); e(RM(j))
    e(f'v_cvt_pk_bf16_f32 {v(M)}, {v(QA)}, {v(QA+1)}')
    e(f'v_cvt_pk_bf16_f32 {v(M+1)}, {v(QA+2)}, {v(QA+3)}')
    e(f'buffer_store_dwordx2 {v(M,2)}, {v(MPUB)}, {s(WS,4)}, {s(sMemPub)} offen{sc}')
    e(f'v_cmp_u_f32 vcc, {v(QA)}, {v(QA)}')
    p.extend(tr(4))
    e(f's_cbranch_vccnz {L}_r1')
    p.append(f'{L}_p1ok:')
    p.extend([kw[0]]+kw[2:])
    if OPT['sync']: p.extend(kv_check(L+'_ka'))
    p.extend(weave(xs,zero(QA,8),[0,0,0,0,1,1,1,1]))
    p.extend(trdump())
    p.append(f'{L}_b1:')
    e('s_barrier')
    e(f'buffer_store_dwordx4 {v(KVQ,4)}, {v(L16)}, {s(WS,4)}, {s(sKvm)} offen'+(' sc1' if OPT['pub'] else ''))
    e(rstore(ONES,0))
    e(f's_sub_u32 {s(sT+3)}, {s(sStep)}, 1'); e(f'v_mov_b32 {v(FLG)}, {s(sT+3)}'); e('s_mov_b64 exec, 1')
    e(f'buffer_store_dword {v(FLG)}, off, {s(WS,4)}, {s(sKvmF)} sc1'); e('s_mov_b64 exec, -1')
    p.extend(kv_addr())
    e(f's_add_u32 {s(sKvm)}, {s(sKvm)}, {32*4096}')
    if par==1: e(f's_branch L_ch_{mode}0')
    body=fix(p,f'step{mode}{par}',verbose)
    ld2=[f'buffer_load_dwordx4 {v(H2A)}, {s(WS,4)}, {s(sMemIn0)} offen offset:{1024*j} sc1 lds' for j in range(4)]
    ld2+=[f's_mov_b32 m0, {L_MEM+4096}','s_nop 0']+[f'buffer_load_dwordx4 {v(H2A)}, {s(WS,4)}, {s(sMdst)} offen offset:{1024*j} sc1 lds' for j in range(4)]
    q=[f'{L}_w:']+kw+(kv_check(L+'_kb') if OPT['sync'] else [])+trdump()+sr+weave(xs,zero(QA,8),[0,0,0,0,1,1,1,1]); e=q.append
    e(f's_cmp_eq_u32 {s(sW)}, 1')
    e(f's_cbranch_scc1 {L}_fb')
    e(f's_cmp_lg_u32 {s(sW)}, 3')
    e(f's_cbranch_scc1 {L}_b1')
    e(f'buffer_store_dwordx2 {v(ONES,2)}, {v(MPUB)}, {s(WS,4)}, {s(sMemRst)} offen{sc}')
    e(f's_branch {L}_b1')
    q.append(f'{L}_fb:')
    e(f'v_lshrrev_b32 {v(T0)}, 2, {v(L16)}'); e(f'v_and_b32 {v(T0)}, 0x7c, {v(T0)}')
    for i in range(max(0,OPT['sl']-(7 if OPT['tr'] else 0))): e('s_nop 3')
    q.extend(tr(2))
    N=OPT['nb']
    fl=f'buffer_load_dword {v(PM)}, {v(T0)}, {s(WS,4)}, {s(sFlagB)} offen sc1'
    if OPT['nw']: e(f'v_mov_b32 {v(PM)}, 0')
    else:
        for i in range(N-1): e(fl); e(f's_nop {7+OPT["pp"]}')
    q.append(f'{L}_fb2:')
    for i in range(8):
        e(fl)
        if OPT['pp']: e(f's_nop {OPT["pp"]-1}')
        if not OPT['nw']: e(f's_waitcnt vmcnt({N-1})')
        elif i==0: e('s_waitcnt vmcnt(24)')
        e(f'v_cmp_gt_u32 vcc, {s(sStep)}, {v(PM)}'); e(f's_cbranch_vccz {L}_fb3')
    e(f's_add_u32 {s(sSpinF)}, {s(sSpinF)}, 1'); e(f's_cmp_gt_u32 {s(sSpinF)}, {LIM}'); e(f's_cbranch_scc0 {L}_fb2')
    q.append(f'{L}_fb3:')
    q.extend(tr(3)); q.extend(ld2)
    e(f's_branch {L}_b1')
    i=q.index(f'{L}_fb:')
    alt=fix(head+q[:i],f'alt{mode}{par}',False)
    q=alt[alt.index(f'{L}_w:'):]+q[i:]
    e=q.append
    if OPT['sync']: q.extend(kv_wait(L+'_ka')+kv_wait(L+'_kb'))
    q.append(f'{L}_r0:')
    e(f's_add_u32 {s(sSpin)}, {s(sSpin)}, 1'); e(f's_cmp_gt_u32 {s(sSpin)}, {LIM}'); e(f's_cbranch_scc1 {L}_r0x')
    e('s_mov_b64 exec, -1'); q.extend(ld1); e(f's_branch {L}_p1')
    q.append(f'{L}_r1:')
    e(f's_add_u32 {s(sSpin)}, {s(sSpin)}, 256'); e(f's_cmp_gt_u32 {s(sSpin)}, {LIM}'); e(f's_cbranch_scc1 {L}_p1ok')
    q.extend(ld1); e(f's_branch {L}_p1')
    q.append(f'{L}_r2:')
    e(f's_add_u32 {s(sSpinU)}, {s(sSpinU)}, 1'); e(f's_cmp_gt_u32 {s(sSpinU)}, {LIM}'); e(f's_cbranch_scc1 {L}_r2x')
    e(f's_cmp_eq_u32 {s(sStep)}, 0'); e(f's_cbranch_scc1 {L}_r2x')
    e(f's_mov_b32 m0, {L_MEM}')
    e(f's_cmp_lg_u32 {s(sW)}, 1')
    e('s_waitcnt lgkmcnt(0)'); e('s_barrier')
    e(f's_cbranch_scc1 {L}_r2b')
    q.extend(ld2); q.append(f'{L}_r2b:'); e('s_nop 7'); q.extend(sr); q.extend(xs); q.extend(zero(QA,8))
    e('s_waitcnt vmcnt(0) lgkmcnt(0)'); e('s_barrier')
    for c_ in range(4): e(mrd(c_))
    e(f's_branch {L}_re')
    return body, q

def chain_body(timing=False, verbose=False):
    A=Asm()
    pro=prologue(A,timing)
    F0,f0=step('F',0,verbose); F1,f1=step('F',1,verbose); S0,s0=step('S',0); S1,s1=step('S',1)
    check(pro+F0+F1+F0,'chainF')
    pro=pro+['s_branch L_ch_F0','.p2align 6']+['s_nop 0']*OPT['pad']
    if OPT['al']: F0=F0+['s_branch L_ch_F1','.p2align 6']+['s_nop 0']*OPT['pad']
    for x in (pro,F0,F1,f0,f1,S0,S1,s0,s1): A.extend(x)
    A.label('L_ch_last')
    A(f'buffer_store_dwordx4 {v(KVQ,4)}, {v(L16)}, {s(WS,4)}, {s(sKvm)} offen sc1')
    A(f's_waitcnt vmcnt(0)\nv_mov_b32 {v(FLG)}, 64\ns_barrier\ns_mov_b64 exec, 1\nbuffer_store_dword {v(FLG)}, off, {s(WS,4)}, {s(sKvmF)} sc1\ns_mov_b64 exec, -1')
    A(f's_lshl_b32 {s(sSpinU)}, {s(sSpinU)}, 16\ns_add_u32 {s(sSpin)}, {s(sSpin)}, {s(sSpinU)}')
    A.label('L_ch_end')
    if STAMPS:
        A(f'''s_waitcnt lgkmcnt(0)
        s_lshl_b32 {s(sT)}, {s(sH)}, 2
        s_add_u32 {s(sT)}, {s(sT)}, {s(sW)}
        s_lshl_b32 {s(sT)}, {s(sT)}, 6
        s_add_u32 {s(sT)}, {s(sT)}, 1024
        v_mov_b32 v0, {s(sT)}
        s_mov_b32 {s(sAC+13)}, {s(sSpin)}''')
        for i in range(NST): A(f'v_mov_b32 {v(4+i)}, {s(sAC+i)}')
        A('s_mov_b64 exec, 1')
        for i in range(4): A(f'global_store_dwordx4 v0, {v(4+4*i,4)}, {s(DBG,2)} offset:{16*i}')
    if timing:
        A(f'''s_memrealtime {s(sTime+4,2)}
        s_memtime {s(sTime+8,2)}
        s_waitcnt lgkmcnt(0)
        s_sub_u32 {s(sT)}, {s(sTime+2)}, {s(sTime)}
        s_sub_u32 {s(sT+1)}, {s(sTime+4)}, {s(sTime+2)}
        s_sub_u32 {s(sT+2)}, {s(sTime+8)}, {s(sTime+6)}
        v_mov_b32 v4, {s(sT)}
        v_mov_b32 v5, {s(sT+1)}
        v_mov_b32 v6, {s(sT+2)}
        v_mov_b32 v7, {s(sSpin)}
        s_lshl_b32 {s(sT)}, {s(sH)}, 2
        s_add_u32 {s(sT)}, {s(sT)}, {s(sW)}
        s_lshl_b32 {s(sT)}, {s(sT)}, 5
        s_add_u32 {s(sT)}, {s(sT)}, 16384
        s_getreg_b32 {s(sT+1)}, hwreg(HW_REG_HW_ID)
        v_mov_b32 v0, {s(sT)}
        v_mov_b32 v8, {s(sT+1)}
        s_mov_b64 exec, 1
        global_store_dword v0, v8, {s(DBG,2)} offset:16
        global_store_dwordx4 v0, v[4:7], {s(DBG,2)}
        L_ch_notime:''')
    return A

def kernel_text(name, body, vgpr=512, accum=256, sgpr=102):
    return f'''.globl {name}
.p2align 8
.type {name},@function
{name}:
{body.text()}    s_endpgm
'''
def kernel_desc(name, vgpr=512, accum=256, sgpr=102):
    return f'''.p2align 6
.amdhsa_kernel {name}
  .amdhsa_next_free_vgpr {vgpr}
  .amdhsa_next_free_sgpr {sgpr}
  .amdhsa_accum_offset {accum}
  .amdhsa_group_segment_fixed_size 0
  .amdhsa_kernarg_size 120
  .amdhsa_user_sgpr_count 2
  .amdhsa_user_sgpr_kernarg_segment_ptr 1
  .amdhsa_system_sgpr_workgroup_id_x 1
  .amdhsa_float_denorm_mode_32 3
.end_amdhsa_kernel
'''

if __name__=='__main__':
    import sys
    spread = 'spread' in sys.argv
    STAMPS = 'stamps' in sys.argv
    if 'hop' in sys.argv: STSET=[0,1,2,7,8,9,10,'a','b','c','d',11,12,13]
    if 'hop2' in sys.argv: STSET=[0,2,4,7,8,10,'a','b','c','d',11,12,13,14]
    for x in sys.argv:
        if '=' in x: OPT[x.split('=')[0]]=int(x.split('=')[1])
    A=Asm()
    if spread:
        A(f'''s_cmp_ge_u32 s2, 32
        s_cbranch_scc1 L_exit
        s_mov_b32 {s(sH)}, s2''')
    else:
        A(f'''s_cmp_ge_u32 s2, 256
        s_cbranch_scc1 L_exit
        s_and_b32 s3, s2, 7
        s_cmp_lg_u32 s3, 0
        s_cbranch_scc1 L_exit
        s_lshr_b32 {s(sH)}, s2, 3''')
    A.extend(chain_body(timing=not STAMPS, verbose=True))
    A.label('L_exit')
    txt='; @launch kernel=chain_kernel grid=(256,1,1) block=(256,1,1) lds=163840\n.amdgcn_target "amdgcn-amd-amdhsa--gfx950"\n.text\n'
    txt+=kernel_text('chain_kernel',A)+'.section .rodata,"a"\n'+kernel_desc('chain_kernel')
    open(sys.argv[1],'w').write(txt)
```

```python
import sys
from asmlib import *
from layout import *
import bulk as B, chain as C
prof='prof' in sys.argv
C.OPT['sync']=1
for x in sys.argv:
    if '=' in x:
        k,val=x.split('='); (C.OPT if k in C.OPT else B.OPT)[k]=int(val)
sB=B.sB
_n=[0]
def stamp(slot,who,reg,sw,dbg):
    if not prof: return []
    _n[0]+=1; L=f'L_st{_n[0]}'
    return [f's_cmp_lg_u32 {s(reg)}, {who}',f's_cbranch_scc1 {L}',f's_cmp_lg_u32 {s(sw)}, 0',f's_cbranch_scc1 {L}','s_memrealtime s[90:91]','s_waitcnt lgkmcnt(0)',
            'v_mov_b32 v14, s90',f'v_mov_b32 v15, {160+4*slot}','s_mov_b64 exec, 1',f'global_store_dword v15, v14, {s(dbg,2)}','s_mov_b64 exec, -1',L+':']
bs=lambda slot,who: stamp(slot,who,sB,B.sW,B.DBG)
B.STAMP=bs
A=Asm()
A(f'''s_cmp_ge_u32 s2, 256
s_cbranch_scc1 L_exit
s_and_b32 s3, s2, 7
s_cmp_lg_u32 s3, 0
s_cbranch_scc1 L_bulk
s_lshr_b32 {s(C.sH)}, s2, 3''')
A.extend(C.chain_body(timing=prof))
A.label('L_exit'); A('s_endpgm'); A.label('L_bulk')
A(f's_sub_u32 s3, s3, 1\ns_lshl_b32 s3, s3, 5\ns_lshr_b32 {s(sB)}, s2, 3\ns_add_u32 {s(sB)}, {s(sB)}, s3')
A.extend(fix(B.common())); A.extend(bs(0,0))
A(f's_cmp_ge_u32 {s(sB)}, 96\ns_cbranch_scc1 L_ln\ns_cmp_lg_u32 {s(sB)}, 95\ns_cbranch_scc1 L_mod')
A.extend(B.flag_init()); A.label('L_mod'); A.extend(B.mod_phase(True)); A.extend(bs(1,0)); A('s_branch L_p1')
A.label('L_ln'); A.extend(B.ln_phase(True)); A.extend(bs(2,96)); A.label('L_p1')
a_,b_=B.p1_setup(); A.extend(a_); A.extend(b_); A.extend(bs(3,0)); A.extend(bs(4,98))
A.extend(B.p1_main(True)); A.extend(bs(5,0)); A.extend(bs(6,98))
A.extend(B.p2_setup(True)); A.extend(B.p2_loop('F',True)); A.extend(B.p2_loop('S',True))
kn=NAME+'_kernel'
txt='; @launch grid=(256,1,1) block=(256,1,1) lds=163840\n.amdgcn_target "amdgcn-amd-amdhsa--gfx950"\n.text\n'
txt+=C.kernel_text(kn,A)+'.section .rodata,"a"\n'+C.kernel_desc(kn)
open(sys.argv[1],'w').write(txt)
```

```python
from asmlib import *
from layout import *
import math, struct
MF32='v_mfma_f32_16x16x32_bf16'; MF16='v_mfma_f32_16x16x16_bf16'; SMF='v_smfmac_f32_16x16x64_bf16'
f2u=lambda x: struct.unpack('<I',struct.pack('<f',x))[0]
WS=4; SRD=8; DBG=12; sB=14; sW=15; sMask=16; sSpin=17
sP=52
PX,PWQ,PWK,PWV,PWO,PW1,PW2,PC,PWM,POUT=[sP+2*i for i in (0,2,3,4,5,8,9,10,11,12)]
sT=40
sHd=21; sR=22; sZ=39
LN=0; N=1; Gv=2; L16=3
LIM='0x200000'
OPT={}
STAMP=lambda slot,who: []
def common():
    return [f's_load_dwordx16 {s(sP,16)}, s[0:1], 0', f's_load_dwordx8 {s(sP+16,8)}, s[0:1], 64', f's_load_dwordx2 {s(sP+24,2)}, s[0:1], 96',
        f's_load_dwordx2 {s(DBG,2)}, s[0:1], 104', f's_load_dwordx2 {s(WS,2)}, s[0:1], 112',
        'v_lshrrev_b32 v1, 6, v0', f'v_and_b32 {v(LN)}, 63, v0', f'v_readfirstlane_b32 {s(sW)}, v1',
        f's_mov_b32 {s(WS+2)}, {WS_BYTES}', f's_mov_b32 {s(WS+3)}, 0x20000', f's_mov_b32 {s(SRD+3)}, 0x20000',
        f's_mov_b32 {s(sMask)}, 0xffff0000', f's_mov_b32 {s(sSpin)}, 0',
        f'v_and_b32 {v(N)}, 15, {v(LN)}', f'v_lshrrev_b32 {v(Gv)}, 4, {v(LN)}', f'v_lshlrev_b32 {v(L16)}, 4, {v(LN)}', 's_waitcnt lgkmcnt(0)']
def roles():
    return [f's_mul_i32 {s(sHd)}, {s(sB)}, 9363', f's_lshr_b32 {s(sHd)}, {s(sHd)}, 16', f's_mul_i32 {s(sT)}, {s(sHd)}, 7', f's_sub_u32 {s(sR)}, {s(sB)}, {s(sT)}',
            f's_lshl_b32 {s(sZ)}, {s(sR)}, 5', f's_add_u32 {s(sZ)}, {s(sZ)}, {s(sHd)}']
def srd(p,size): return [f's_mov_b32 {s(SRD)}, {s(p)}', f's_mov_b32 {s(SRD+1)}, {s(p+1)}', f's_mov_b32 {s(SRD+2)}, {size}']
def rnd(a,b,t): return [f'v_cvt_pk_bf16_f32 {v(t)}, {v(a)}, {v(b)}', f'v_lshlrev_b32 {v(a)}, 16, {v(t)}', f'v_and_b32 {v(b)}, {s(sMask)}, {v(t)}']
def unp(d,src): return [f'v_and_b32 {v(d+1)}, {s(sMask)}, {v(src)}', f'v_lshlrev_b32 {v(d)}, 16, {v(src)}']
def xg(op,a,t):
    return [f'v_mov_b32 {v(t)}, {v(a)}', f'v_permlane32_swap_b32 {v(a)}, {v(t)}', f'{op} {v(a)}, {v(a)}, {v(t)}',
            f'v_mov_b32 {v(t)}, {v(a)}', f'v_permlane16_swap_b32 {v(a)}, {v(t)}', f'{op} {v(a)}, {v(a)}, {v(t)}']
def xrow(a):
    return [f'v_add_f32_dpp {v(a)}, {v(a)}, {v(a)} row_ror:{k} row_mask:0xf bank_mask:0xf' for k in (1,2,4,8)]
_u=[0]
def poll(addr_v, soff, cmp_s, r, off=0):
    _u[0]+=1; k=_u[0]
    return [f'L_po{k}:', f'buffer_load_dword {v(r)}, {v(addr_v)}, {s(WS,4)}, {soff} offen offset:{off} sc1', f's_add_u32 {s(sSpin)}, {s(sSpin)}, 1',
            f's_cmp_gt_u32 {s(sSpin)}, {LIM}', f's_cbranch_scc1 L_pe{k}', 's_waitcnt vmcnt(0)', f'v_cmp_gt_u32 vcc, {cmp_s}, {v(r)}', f's_cbranch_vccnz L_po{k}', f'L_pe{k}:', 's_waitcnt vmcnt(0)']

def mod_phase(sync):
    p=[]; e=p.append
    W_=16; C_=48; AC=56; A0=4; A1=5; T=6
    e(f'v_lshrrev_b32 {v(A0)}, 2, {v(LN)}'); e(f's_lshl_b32 {s(sT)}, {s(sW)}, 4'); e(f'v_add_u32 {v(A0)}, {s(sT)}, {v(A0)}')
    e(f'v_lshlrev_b32 {v(A1)}, 1, {v(A0)}')
    e(f'v_mul_u32_u24 {v(A0)}, 6144, {v(A0)}'); e(f'v_and_b32 {v(T)}, 3, {v(LN)}'); e(f'v_lshl_add_u32 {v(A0)}, {v(T)}, 4, {v(A0)}')
    p+=srd(PWM,512*6144)
    for i in range(8): e(f'global_load_ushort {v(C_+i)}, {v(A1)}, {s(PC,2)} offset:{128*i}')
    e(f's_lshl_b32 {s(sT)}, {s(sZ)}, 6')
    for i in range(8):
        e(f'buffer_load_dwordx4 {v(W_+4*i,4)}, {v(A0)}, {s(SRD,4)}, {s(sT)} offen'); e(f's_add_u32 {s(sT)}, {s(sT)}, {64*6144}')
    for i in range(8): e(f'v_lshlrev_b32 {v(C_+i)}, 16, {v(C_+i)}')
    for i in range(8): e(f'v_mul_f32 {v(AC+i)}, {hex(f2u(-math.log2(math.e)))}, {v(C_+i)}')
    for i in range(8): e(f'v_exp_f32 {v(AC+i)}, {v(AC+i)}')
    for i in range(8): e(f'v_add_f32 {v(AC+i)}, 1.0, {v(AC+i)}')
    for i in range(8): e(f'v_rcp_f32 {v(AC+i)}, {v(AC+i)}')
    for i in range(8): e(f'v_mul_f32 {v(C_+i)}, {v(C_+i)}, {v(AC+i)}')
    for i in range(0,8,2): p+=rnd(C_+i,C_+i+1,T)
    for i in range(8):
        for d in range(4):
            p+=unp(8,W_+4*i+d)
            for k in range(2):
                e(f'v_mul_f32 {v(AC+2*d+k)}, {v(C_+i)}, {v(8+k)}' if i==0 else f'v_fmac_f32 {v(AC+2*d+k)}, {v(C_+i)}, {v(8+k)}')
    for k in (4,8):
        for i in range(8): e(f'v_add_f32_dpp {v(AC+i)}, {v(AC+i)}, {v(AC+i)} row_ror:{k} row_mask:0xf bank_mask:0xf')
    e(f's_lshl_b32 {s(sT)}, {s(sW)}, 9'); e(f'v_and_b32 {v(T)}, 3, {v(LN)}'); e(f'v_lshlrev_b32 {v(T)}, 5, {v(T)}')
    e(f'v_lshl_add_u32 {v(T)}, {v(Gv)}, 7, {v(T)}'); e(f'v_add_u32 {v(T)}, {s(sT)}, {v(T)}')
    e(f'ds_write_b128 {v(T)}, {v(AC,4)}'); e(f'ds_write_b128 {v(T)}, {v(AC+4,4)} offset:16')
    e('s_waitcnt lgkmcnt(0)'); e('s_barrier')
    e(f's_cmp_lg_u32 {s(sW)}, 0'); e('s_cbranch_scc1 L_mod_end')
    e(f'v_and_b32 {v(A0)}, 31, {v(LN)}'); e(f'v_lshrrev_b32 {v(A1)}, 5, {v(LN)}'); e(f'v_lshlrev_b32 {v(T)}, 2, {v(A0)}'); e(f'v_lshl_add_u32 {v(T)}, {v(A1)}, 10, {v(T)}')
    for i in range(8): e(f'ds_read_b32 {v(AC+i)}, {v(T)} offset:{128*i}')
    for i in range(1,8): e(f'v_add_f32 {v(AC)}, {v(AC)}, {v(AC+i)}')
    e(f'v_mov_b32 {v(T)}, {v(AC)}'); e(f'v_permlane32_swap_b32 {v(AC)}, {v(T)}'); e(f'v_add_f32 {v(AC)}, {v(AC)}, {v(T)}')
    e(f'v_cvt_pk_bf16_f32 {v(AC)}, {v(AC)}, {v(AC)}')
    e(f'v_lshlrev_b32 {v(A0)}, 1, {v(A0)}'); e(f's_lshl_b32 {s(sT)}, {s(sZ)}, 6'); e(f's_add_u32 {s(sT)}, {s(sT)}, {MOD_OFF}')
    e(f'buffer_store_short {v(AC)}, {v(A0)}, {s(WS,4)}, {s(sT)} offen sc1')
    if sync:
        e('s_waitcnt vmcnt(0)')
        e(f's_cmp_lt_u32 {s(sZ)}, 32'); e(f's_cselect_b32 {s(sT)}, 0, 4')
        e(f'v_mov_b32 {v(A0)}, {s(sT)}'); e(f'v_mov_b32 {v(A1)}, 1'); e('s_mov_b64 exec, 1')
        e(f'global_atomic_add {v(A0)}, {v(A1)}, {s(DBG,2)} offset:128'); e('s_mov_b64 exec, -1')
    p.append('L_mod_end:')
    e('s_barrier')
    return fix(p,'mod')

def dbg_wait(off,val,r):
    _u[0]+=1; k=_u[0]
    return [f'v_mov_b32 {v(r+1)}, {off}', f'L_po{k}:', f'global_load_dword {v(r)}, {v(r+1)}, {s(DBG,2)} sc1', f's_add_u32 {s(sSpin)}, {s(sSpin)}, 1',
            f's_cmp_gt_u32 {s(sSpin)}, {LIM}', f's_cbranch_scc1 L_pe{k}', 's_waitcnt vmcnt(0)', f'v_cmp_gt_u32 vcc, {val}, {v(r)}', f's_cbranch_vccnz L_po{k}', f'L_pe{k}:', 's_waitcnt vmcnt(0)']

def ln_phase(sync):
    p=[]; e=p.append
    XR=16; XF=32; MD=64; A0=4; A1=5; T=6; S=7; Q=8; R_=10; MU=14; sTile=20
    e(f's_sub_u32 {s(sTile)}, {s(sZ)}, 96')
    p+=srd(PX,2048*1024)
    e(f'v_lshlrev_b32 {v(A0)}, 10, {v(N)}'); e(f'v_lshl_add_u32 {v(A0)}, {v(Gv)}, 4, {v(A0)}')
    e(f's_lshl_b32 {s(sT)}, {s(sTile)}, 14'); e(f's_lshl_b32 {s(sT+1)}, {s(sW)}, 8'); e(f's_add_u32 {s(sT)}, {s(sT)}, {s(sT+1)}')
    for i in range(4): e(f'buffer_load_dwordx4 {v(XR+4*i,4)}, {v(A0)}, {s(SRD,4)}, {s(sT)} offen offset:{64*i}')
    e(f'v_lshlrev_b32 {v(A1)}, 4, {v(N)}'); e(f's_lshl_b32 {s(sT+2)}, {s(sW)}, 2'); e(f'v_add_u32 {v(A0)}, {s(sT+2)}, {v(A1)}')
    for i in range(16): p+=unp(XF+2*i,XR+i)
    e(f'v_add_f32 {v(S)}, {v(XF)}, {v(XF+1)}')
    for i in range(2,32): e(f'v_add_f32 {v(S)}, {v(S)}, {v(XF+i)}')
    def cross(off):
        o=xg('v_add_f32',S,T)+[f'ds_write_b32 {v(A0)}, {v(S)} offset:{off}','s_waitcnt lgkmcnt(0)','s_barrier',f'ds_read_b128 {v(R_,4)}, {v(A1)} offset:{off}',
           f'v_add_f32 {v(S)}, {v(R_)}, {v(R_+1)}', f'v_add_f32 {v(T)}, {v(R_+2)}, {v(R_+3)}', f'v_add_f32 {v(S)}, {v(S)}, {v(T)}', f'v_mul_f32 {v(S)}, {hex(f2u(1/512))}, {v(S)}']
        return o
    p+=cross(0)
    e(f'v_mov_b32 {v(MU)}, {v(S)}')
    for i in range(32):
        e(f'v_sub_f32 {v(T)}, {v(XF+i)}, {v(MU)}'); e(f'v_mul_f32 {v(S)}, {v(T)}, {v(T)}' if i==0 else f'v_fmac_f32 {v(S)}, {v(T)}, {v(T)}')
    p+=cross(256)
    p+=rnd(MU,S,T)
    e(f'v_add_f32 {v(S)}, {hex(f2u(1e-5))}, {v(S)}'); p+=rnd(S,Q,T)[:2]
    e(f'v_sqrt_f32 {v(S)}, {v(S)}'); p+=rnd(S,Q,T)[:2]
    e(f'v_rcp_f32 {v(S)}, {v(S)}')
    for i in range(0,32,2):
        e(f'v_sub_f32 {v(XF+i)}, {v(XF+i)}, {v(MU)}'); e(f'v_sub_f32 {v(XF+i+1)}, {v(XF+i+1)}, {v(MU)}'); p+=rnd(XF+i,XF+i+1,T)
        e(f'v_mul_f32 {v(XF+i)}, {v(XF+i)}, {v(S)}'); e(f'v_mul_f32 {v(XF+i+1)}, {v(XF+i+1)}, {v(S)}'); p+=rnd(XF+i,XF+i+1,T)
    if sync: p+=dbg_wait(128,32,R_)
    e(f'v_lshlrev_b32 {v(A0)}, 4, {v(Gv)}'); e(f's_add_u32 {s(sT+1)}, {s(sT+1)}, {MOD_OFF}')
    for i in range(4): e(f'buffer_load_dwordx4 {v(MD+4*i,4)}, {v(A0)}, {s(WS,4)}, {s(sT+1)} offen offset:{1024+64*i} sc1')
    for i in range(4): e(f'buffer_load_dwordx4 {v(MD+16+4*i,4)}, {v(A0)}, {s(WS,4)}, {s(sT+1)} offen offset:{64*i} sc1')
    e(f's_lshl_b32 {s(sT)}, {s(sTile)}, 14'); e(f's_lshl_b32 {s(sT+2)}, {s(sW)}, 12'); e(f's_add_u32 {s(sT)}, {s(sT)}, {s(sT+2)}'); e(f's_add_u32 {s(sT)}, {s(sT)}, {H_OFF}')
    for i in range(16):
        a_=XF+2*i
        p+=unp(Q,MD+i); e(f'v_add_f32 {v(Q)}, 1.0, {v(Q)}'); e(f'v_add_f32 {v(Q+1)}, 1.0, {v(Q+1)}'); p+=rnd(Q,Q+1,T)
        e(f'v_mul_f32 {v(a_)}, {v(a_)}, {v(Q)}'); e(f'v_mul_f32 {v(a_+1)}, {v(a_+1)}, {v(Q+1)}'); p+=rnd(a_,a_+1,T)
        p+=unp(Q,MD+16+i); e(f'v_add_f32 {v(a_)}, {v(a_)}, {v(Q)}'); e(f'v_add_f32 {v(a_+1)}, {v(a_+1)}, {v(Q+1)}')
        e(f'v_cvt_pk_bf16_f32 {v(XR+i)}, {v(a_)}, {v(a_+1)}')
        if i%4==3: e(f'buffer_store_dwordx4 {v(XR+i-3,4)}, {v(L16)}, {s(WS,4)}, {s(sT)} offen offset:{1024*(i//4)} sc1')
    if sync:
        p+=dbg_wait(136,1,R_)
        e('s_barrier')
        e(f's_lshl_b32 {s(sT)}, {s(sTile)}, 2'); e(f's_add_u32 {s(sT)}, {s(sT)}, {BF_OFF+BF_H}'); e(f'v_mov_b32 {v(T)}, 1')
        e(f's_cmp_lg_u32 {s(sW)}, 0'); e('s_cbranch_scc1 L_ln_end'); e('s_mov_b64 exec, 1')
        e(f'buffer_store_dword {v(T)}, off, {s(WS,4)}, {s(sT)} sc1'); e('s_mov_b64 exec, -1')
        p.append('L_ln_end:')
    return fix(p,'ln')

def flag_init():
    p=[]; e=p.append
    for i in range(4): e(f'v_mov_b32 {v(8+i)}, 0')
    e(f's_lshl_b32 {s(sT)}, {s(sW)}, 12'); e(f's_add_u32 {s(sT)}, {s(sT)}, {BF_OFF}')
    for i in range(4): e(f'buffer_store_dwordx4 {v(8,4)}, {v(L16)}, {s(WS,4)}, {s(sT)} offen offset:{1024*i} sc1')
    e('s_waitcnt vmcnt(0)'); e('s_barrier')
    e(f'v_mov_b32 v8, 136'); e('v_mov_b32 v9, 1'); e('s_mov_b64 exec, 1'); e(f'global_store_dword v8, v9, {s(DBG,2)} sc1'); e('s_mov_b64 exec, -1')
    return fix(p,'fi')

def wstream(blocks, sRing, pre_issue=None, split=False):
    p=[]; e=p.append; ng=len(blocks)//4; assert len(blocks)%4==0
    def issue(gi):
        for b in range(4):
            su,vo,so,_=blocks[4*gi+b]
            if su: p.extend(su)
            e(f's_add_u32 m0, {s(sRing)}, {((4*gi+b)%32)*1024}'); p.extend(so(sT+7))
            e(f'buffer_load_dwordx4 {v(vo)}, {s(SRD,4)}, {s(sT+7)} offen lds')
    for gi in range(min(8,ng)): issue(gi)
    head=list(p); p.clear()
    for gi in range(ng):
        e(f's_waitcnt vmcnt({4*(min(ng-1,gi+7)-gi)})')
        for b in range(4):
            for dst,tra,off in blocks[4*gi+b][3]: e(f'ds_read_b64_tr_b16 {dst}, {v(tra)} offset:{((4*gi+b)%32)*1024+off}')
        e('s_waitcnt lgkmcnt(0)')
        if gi+8<ng: issue(gi+8)
    return head,p

sSeg=23; sRing=24; sCnt=25
VO=4; TRA=5; TRB=6; FA=7
def wreg(m,t,ks):
    i=(m*2+t)*64+4*ks
    return ('a',i) if i<256 else ('v',128+i-256)
def p1_setup():
    p=[]; e=p.append
    e(f's_lshl_b32 {s(sRing)}, {s(sW)}, 15'); e(f's_add_u32 {s(sRing)}, {s(sRing)}, 32768')
    r=120; c_=121; g1=122
    e(f'v_lshrrev_b32 {v(r)}, 2, {v(N)}'); e(f'v_and_b32 {v(c_)}, 3, {v(N)}'); e(f'v_and_b32 {v(g1)}, 1, {v(Gv)}')
    A,B,C=124,125,126
    e(f'v_lshlrev_b32 {v(B)}, 8, {v(Gv)}'); e(f'v_lshl_add_u32 {v(B)}, {v(r)}, 6, {v(B)}'); e(f'v_lshl_add_u32 {v(B)}, {v(g1)}, 5, {v(B)}')
    e(f'v_lshl_add_u32 {v(B)}, {v(c_)}, 3, {v(B)}'); e(f'v_add_u32 {v(B)}, {s(sRing)}, {v(B)}'); e(f'v_xor_b32 {v(C)}, 32, {v(B)}')
    e(f'v_lshlrev_b32 {v(g1)}, 1, {v(g1)}'); e(f'v_xor_b32 {v(c_)}, {v(c_)}, {v(g1)}'); e(f'v_lshlrev_b32 {v(c_)}, 4, {v(c_)}')
    e(f'v_lshl_add_u32 {v(A)}, {v(Gv)}, 3, {v(r)}'); e(f'v_lshl_add_u32 {v(A)}, {v(A)}, 13, {v(c_)}')
    e(f's_lshl_b32 {s(sT)}, {s(sHd)}, 8'); e(f's_lshl_b32 {s(sT+1)}, {s(sW)}, 6'); e(f's_add_u32 {s(sT)}, {s(sT)}, {s(sT+1)}'); e(f'v_add_u32 {v(A)}, {s(sT)}, {v(A)}')
    blocks=[]
    for m,ptr in ((0,PWK),(1,PWV),(2,PWQ)):
        for ks in range(16):
            for jh in range(2):
                dst=[]
                for t in range(2):
                    pf,b=wreg(m,t,ks); dst.append((R(pf,b+2*jh,2), C if t else B, 0))
                blocks.append((srd(ptr,4<<20) if ks%2==0 and jh==0 else None, A, (lambda reg,o=(32*ks+4*jh)*8192: [f's_mov_b32 {s(reg)}, {o}']), dst))
    head,rest=wstream(blocks,sRing)
    return fix(p+head,'p1a'), fix(rest,'p1b',vm_init=32)

def p1_main(sync):
    p=[]; e=p.append
    AC=16; HF=64; OUT=96; sHsrc=26; sBuf=27; sKo=28; sVo=29; sQo=30; sFl=31; sNext=32
    acc=lambda m,t,mt: AC+((m*2+t)*2+mt)*4
    def hdma():
        o=[]
        o+=[f's_lshl_b32 {s(sHsrc)}, {s(sNext)}, 15', f's_lshl_b32 {s(sT)}, {s(sW)}, 13', f's_add_u32 {s(sHsrc)}, {s(sHsrc)}, {s(sT)}', f's_add_u32 {s(sHsrc)}, {s(sHsrc)}, {H_OFF}',
            f's_add_u32 m0, {s(sBuf)}, {s(sT)}', f's_add_u32 {s(sT+1)}, {s(sHsrc)}, 4096']
        o+=[f'buffer_load_dwordx4 {v(L16)}, {s(WS,4)}, {s(sHsrc)} offen offset:{1024*i} sc1 lds' for i in range(4)]
        o+=['s_add_u32 m0, m0, 4096','s_nop 0']+[f'buffer_load_dwordx4 {v(L16)}, {s(WS,4)}, {s(sT+1)} offen offset:{1024*i} sc1 lds' for i in range(4)]
        return o
    e('s_barrier')
    if sync:
        p+=dbg_wait(136,1,8)
        e(f'v_lshlrev_b32 {v(FA)}, 2, {v(LN)}'); e(f's_mov_b32 {s(sT)}, {BF_OFF+BF_H}')
        p+=poll(FA,s(sT),'1',8)+poll(FA,s(sT),'1',8,256)
    e(f's_mov_b32 {s(sSeg)}, {s(sR)}'); e(f's_mov_b32 {s(sNext)}, {s(sR)}'); e(f's_mov_b32 {s(sBuf)}, 0'); e(f's_mov_b32 {s(sCnt)}, 0')
    e(f's_lshl_b32 {s(sFl)}, {s(sHd)}, 7'); e(f's_lshl_b32 {s(sT)}, {s(sR)}, 2'); e(f's_add_u32 {s(sFl)}, {s(sFl)}, {s(sT)}'); e(f's_add_u32 {s(sFl)}, {s(sFl)}, {BF_OFF+BF_KV}')
    p+=hdma()
    e(f's_mov_b32 {s(sT+5)}, 0')
    p.append('L_p1_loop:')
    e(f's_cmp_ge_u32 {s(sSeg)}, 64'); e(f's_cselect_b32 {s(sT+4)}, 0, {s(sCnt)}'); e(f's_cmp_lt_u32 {s(sT+4)}, 2'); e('s_cbranch_scc0 L_p1_lag')
    e('s_waitcnt vmcnt(0)'); e(f's_mov_b32 {s(sT+5)}, {s(sCnt)}')
    p.append('L_p1_lag:')
    e('s_waitcnt vmcnt(6)'); e('s_barrier')
    if sync:
        e(f's_cmp_lg_u32 {s(sW)}, 0'); e('s_cbranch_scc1 L_p1_nf'); e(f'v_mov_b32 {v(FA)}, {s(sT+5)}'); e('s_mov_b64 exec, 1')
        e(f'buffer_store_dword {v(FA)}, off, {s(WS,4)}, {s(sFl)} sc1'); e('s_mov_b64 exec, -1'); p.append('L_p1_nf:')
    e(f's_mov_b32 {s(sT+5)}, {s(sCnt)}')
    e(f's_cmp_ge_u32 {s(sSeg)}, 64'); e('s_cbranch_scc1 L_p1_end')
    e(f'v_add_u32 {v(VO)}, {s(sBuf)}, {v(L16)}')
    e(f's_xor_b32 {s(sBuf)}, {s(sBuf)}, 32768'); e(f's_add_u32 {s(sNext)}, {s(sSeg)}, 7')
    e(f's_cmp_ge_u32 {s(sNext)}, 64'); e('s_cbranch_scc1 L_p1_nd')
    p+=hdma()
    p.append('L_p1_nd:')
    hr=lambda ks,mt: f'ds_read_b128 {v(HF+(ks%4)*8+4*mt,4)}, {v(VO)} offset:{(mt*16+ks)*1024}'
    for ks in range(2):
        for mt in range(2): e(hr(ks,mt))
    for ks in range(16):
        mm=[]
        for mt in range(2):
            hf=v(HF+(ks%4)*8+4*mt,4)
            for m in range(3):
                for t in range(2):
                    pf,b=wreg(m,t,ks); w_=R(pf,b,4); c_=v(acc(m,t,mt),4)
                    a_,b_=(hf,w_) if m==1 else (w_,hf)
                    mm.append(f'{MF32} {c_}, {a_}, {b_}, '+(c_ if ks else '0'))
        if ks+2<16:
            mm[1:1]=[hr(ks+2,0)]; mm[4:4]=[hr(ks+2,1)]
        p+=mm
    e(f's_lshl_b32 {s(sT)}, {s(sHd)}, 6'); e(f's_add_u32 {s(sT)}, {s(sT)}, {s(sSeg)}')
    e(f's_lshl_b32 {s(sT+1)}, {s(sW)}, 10'); e(f's_lshl_b32 {s(sKo)}, {s(sT)}, 14'); e(f's_add_u32 {s(sVo)}, {s(sKo)}, {KV_OFF+8192}')
    e(f's_add_u32 {s(sKo)}, {s(sKo)}, {s(sT+1)}'); e(f's_add_u32 {s(sKo)}, {s(sKo)}, {KV_OFF}')
    e(f's_lshl_b32 {s(sQo)}, {s(sT)}, 13'); e(f's_add_u32 {s(sQo)}, {s(sQo)}, {s(sT+1)}'); e(f's_add_u32 {s(sQo)}, {s(sQo)}, {Q_OFF}')
    e(f's_lshl_b32 {s(sT+1)}, {s(sW)}, 11'); e(f's_add_u32 {s(sVo)}, {s(sVo)}, {s(sT+1)}')
    k=0
    for m,so in ((0,sKo),(2,sQo)):
        for mt in range(2):
            for r in range(4): e(f'v_cvt_pk_bf16_f32 {v(OUT+4*k+r)}, {v(acc(m,0,mt)+r)}, {v(acc(m,1,mt)+r)}')
            e(f'buffer_store_dwordx4 {v(OUT+4*k,4)}, {v(L16)}, {s(WS,4)}, {s(so)} offen sc1'); k+=1
            if mt==0: e(f's_add_u32 {s(so)}, {s(so)}, 4096')
    for t in range(2):
        for mt in range(2):
            for j in range(2): e(f'v_cvt_pk_bf16_f32 {v(OUT+4*k+2*mt+j)}, {v(acc(1,t,mt)+2*j)}, {v(acc(1,t,mt)+2*j+1)}')
        e(f'buffer_store_dwordx4 {v(OUT+4*k,4)}, {v(L16)}, {s(WS,4)}, {s(sVo)} offen offset:{1024*t} sc1'); k+=1
    e(f's_add_u32 {s(sSeg)}, {s(sSeg)}, 7'); e(f's_add_u32 {s(sCnt)}, {s(sCnt)}, 1'); e('s_branch L_p1_loop')
    p.append('L_p1_end:')
    return fix(p,'p1')

sGrp=21; sJ=22; sGB=26; sEp=27; sFw=28; sFr=29; sKq=30; sCq=31; sM=32; sEh=33; sScale=34; sLg=35; sFast=36; sQf=37; sMf=38
WO=lambda ks: a(4*ks,4)
W1=lambda t,ks: a(128+64*t+4*ks,4)
W2=lambda ks: v(200+4*ks,4)
MODV=168
IDX=4; KW=5; FA2=6; HRD=7; HSR=8; PSA=9; MSK=10; ZR=12
def p2_setup(sync):
    p=[]; e=p.append
    e('s_barrier')
    e(f's_lshr_b32 {s(sGrp)}, {s(sB)}, 5'); e(f's_and_b32 {s(sJ)}, {s(sB)}, 31')
    e(f's_lshl_b32 {s(sGB)}, {s(sGrp)}, 20'); e(f's_add_u32 {s(sGB)}, {s(sGB)}, {G_OFF}')
    e(f's_lshr_b32 {s(sKq)}, {s(sJ)}, 3'); e(f's_and_b32 {s(sCq)}, {s(sJ)}, 7'); e(f's_and_b32 {s(sM)}, {s(sW)}, 1'); e(f's_lshr_b32 {s(sEh)}, {s(sW)}, 1')
    e(f's_lshl_b32 {s(sFr)}, {s(sGrp)}, 8'); e(f's_add_u32 {s(sFr)}, {s(sFr)}, {BF_OFF+BF_GB}'); e(f's_lshl_b32 {s(sT)}, {s(sJ)}, 2'); e(f's_add_u32 {s(sFw)}, {s(sFr)}, {s(sT)}')
    e(f's_mov_b32 {s(sEp)}, 0'); e(f's_mov_b32 {s(sScale)}, {hex(f2u(128**-0.5))}'); e(f's_mov_b32 {s(sLg)}, {hex(f2u(math.log2(math.e)))}')
    e(f's_lshl_b32 {s(sRing)}, {s(sW)}, 15'); e(f's_add_u32 {s(sRing)}, {s(sRing)}, 32768')
    e(f's_lshl_b32 {s(sMf)}, {s(sJ)}, 7'); e(f's_lshl_b32 {s(sT)}, {s(sGrp)}, 2'); e(f's_add_u32 {s(sQf)}, {s(sMf)}, {s(sT)}')
    e(f's_add_u32 {s(sQf)}, {s(sQf)}, {BF_OFF+BF_KV}'); e(f's_add_u32 {s(sMf)}, {s(sMf)}, {BF_OFF+BF_KVM}')
    e(f's_getreg_b32 {s(sFast)}, hwreg(HW_REG_XCC_ID)'); e(f's_and_b32 {s(sFast)}, {s(sFast)}, 7'); e(f's_add_u32 {s(sFast)}, {s(sFast)}, 1')
    e(f'v_mov_b32 v16, {s(sFast)}'); e('s_mov_b64 exec, 1'); e(f'buffer_store_dword v16, off, {s(WS,4)}, {s(sFw)} offset:{BF_XC-BF_GB} sc1'); e('s_mov_b64 exec, -1')
    t1,t2,r,c_,g1=16,17,18,19,20
    e(f'v_and_b32 {v(t1)}, 1, {v(LN)}'); e(f'v_mul_u32_u24 {v(t1)}, 0xaaaa, {v(t1)}'); e(f'v_add_u32 {v(IDX)}, 0x4444, {v(t1)}')
    e(f'v_bfe_u32 {v(t1)}, {v(N)}, 1, 2'); e(f'v_lshlrev_b32 {v(KW)}, 2, {v(t1)}'); e(f'v_and_b32 {v(t1)}, 1, {v(N)}'); e(f'v_lshl_add_u32 {v(KW)}, {v(t1)}, 4, {v(KW)}')
    e(f'v_lshl_add_u32 {v(KW)}, {v(Gv)}, 6, {v(KW)}'); e(f'v_lshrrev_b32 {v(t1)}, 3, {v(N)}'); e(f'v_lshl_add_u32 {v(KW)}, {v(t1)}, 8, {v(KW)}')
    e(f's_lshl_b32 {s(sT)}, {s(sW)}, 9'); e(f'v_add_u32 {v(KW)}, {s(sT)}, {v(KW)}')
    e(f'v_and_b32 {v(FA2)}, 31, {v(LN)}'); e(f'v_lshlrev_b32 {v(FA2)}, 2, {v(FA2)}')
    e(f'v_lshlrev_b32 {v(t1)}, 1, {v(t1)}'); e(f'v_xor_b32 {v(t1)}, {v(t1)}, {v(Gv)}'); e(f'v_lshlrev_b32 {v(t1)}, 4, {v(t1)}'); e(f'v_lshl_add_u32 {v(HRD)}, {v(N)}, 6, {v(t1)}')
    e(f's_lshl_b32 {s(sT)}, {s(sM)}, 14'); e(f'v_add_u32 {v(HRD)}, {s(sT)}, {v(HRD)}')
    e(f'v_lshrrev_b32 {v(t1)}, 5, {v(LN)}'); e(f'v_lshlrev_b32 {v(t1)}, 1, {v(t1)}'); e(f'v_and_b32 {v(c_)}, 3, {v(LN)}'); e(f'v_xor_b32 {v(t1)}, {v(t1)}, {v(c_)}')
    e(f'v_lshlrev_b32 {v(t1)}, 4, {v(t1)}'); e(f'v_lshrrev_b32 {v(t2)}, 2, {v(LN)}'); e(f'v_lshl_add_u32 {v(HSR)}, {v(t2)}, 10, {v(t1)}')
    e(f'v_lshlrev_b32 {v(PSA)}, 15, {v(Gv)}'); e(f'v_lshl_add_u32 {v(PSA)}, {v(N)}, 2, {v(PSA)}')
    e(f's_lshl_b32 {s(sT)}, {s(sJ)}, 8'); e(f's_lshl_b32 {s(sT+1)}, {s(sW)}, 6'); e(f's_add_u32 {s(sT)}, {s(sT)}, {s(sT+1)}'); e(f'v_add_u32 {v(PSA)}, {s(sT)}, {v(PSA)}')
    e(f'v_lshlrev_b32 {v(t1)}, 2, {v(Gv)}'); e(f'v_sub_u32 {v(MSK)}, {v(N)}, {v(t1)}')
    e(f'v_mov_b32 {v(ZR+1)}, 0')
    A64,B0,B1,A32,C0,C1,A32b=24,25,26,27,28,29,30
    e(f'v_lshrrev_b32 {v(r)}, 2, {v(N)}'); e(f'v_and_b32 {v(g1)}, 1, {v(Gv)}')
    e(f'v_lshlrev_b32 {v(B0)}, 8, {v(Gv)}'); e(f'v_lshl_add_u32 {v(B0)}, {v(c_)}, 3, {v(B0)}'); e(f'v_add_u32 {v(B0)}, {s(sRing)}, {v(B0)}')
    e(f'v_lshl_add_u32 {v(C0)}, {v(r)}, 5, {v(B0)}'); e(f'v_lshl_add_u32 {v(C0)}, {v(g1)}, 7, {v(C0)}'); e(f'v_xor_b32 {v(C1)}, 128, {v(C0)}')
    e(f'v_lshl_add_u32 {v(B0)}, {v(r)}, 6, {v(B0)}'); e(f'v_lshl_add_u32 {v(B0)}, {v(g1)}, 5, {v(B0)}'); e(f'v_xor_b32 {v(B1)}, 32, {v(B0)}')
    e(f'v_lshlrev_b32 {v(t1)}, 1, {v(g1)}'); e(f'v_xor_b32 {v(t1)}, {v(t1)}, {v(c_)}'); e(f'v_lshlrev_b32 {v(t1)}, 4, {v(t1)}')
    e(f'v_lshl_add_u32 {v(A64)}, {v(Gv)}, 3, {v(r)}'); e(f'v_mul_u32_u24 {v(A64)}, 3584, {v(A64)}'); e(f'v_add_u32 {v(A64)}, {v(A64)}, {v(t1)}')
    e(f's_min_u32 {s(sT)}, {s(sJ)}, 27'); e(f's_lshl_b32 {s(sT)}, {s(sT)}, 7'); e(f's_lshl_b32 {s(sT+1)}, {s(sEh)}, 6'); e(f's_add_u32 {s(sT)}, {s(sT)}, {s(sT+1)}'); e(f'v_add_u32 {v(A64)}, {s(sT)}, {v(A64)}')
    e(f'v_lshrrev_b32 {v(t1)}, 3, {v(N)}'); e(f'v_xor_b32 {v(t1)}, {v(t1)}, {v(g1)}'); e(f'v_bfe_u32 {v(t2)}, {v(N)}, 1, 2')
    e(f'v_lshl_add_u32 {v(t2)}, {v(t1)}, 4, {v(t2)}'); e(f'v_lshl_add_u32 {v(t2)}, {v(Gv)}, 2, {v(t2)}'); e(f'v_and_b32 {v(t1)}, 1, {v(N)}'); e(f'v_lshlrev_b32 {v(t1)}, 4, {v(t1)}')
    e(f'v_lshl_add_u32 {v(A32)}, {v(t2)}, 10, {v(t1)}')
    e(f's_lshl_b32 {s(sT)}, {s(sCq)}, 7'); e(f's_lshl_b32 {s(sT+1)}, {s(sW)}, 5'); e(f's_add_u32 {s(sT)}, {s(sT)}, {s(sT+1)}')
    e(f's_mul_i32 {s(sT+1)}, {s(sKq)}, {448*1024}'); e(f's_add_u32 {s(sT+1)}, {s(sT+1)}, {s(sT)}'); e(f'v_add_u32 {v(A32b)}, {s(sT+1)}, {v(A32)}')
    e(f's_lshl_b32 {s(sT+1)}, {s(sKq)}, 20'); e(f's_add_u32 {s(sT+1)}, {s(sT+1)}, {s(sT)}'); e(f'v_add_u32 {v(A32)}, {s(sT+1)}, {v(A32)}')
    blocks=[]
    mv=lambda o: (lambda reg: [f's_mov_b32 {s(reg)}, {o}'])
    for ks in range(32): blocks.append((srd(PWO,4<<20) if ks%4==0 else None, A32, mv(ks*32768), [(a(4*ks,2),C0,0),(a(4*ks+2,2),C1,0)]))
    for ks in range(16):
        for jh in range(2): blocks.append((srd(PW1,512*3584) if ks%2==0 and jh==0 else None, A64, mv((32*ks+4*jh)*3584), [(a(128+4*ks+2*jh,2),B0,0),(a(192+4*ks+2*jh,2),B1,0)]))
    for ks in range(16):
        kk=min(ks,13); blocks.append((srd(PW2,1792*1024) if ks%4==0 else None, A32b, mv(kk*32768), [(v(200+4*ks,2),C0,0),(v(202+4*ks,2),C1,0)] if ks<14 else []))
    head,rest=wstream(blocks,sRing)
    p+=head+rest
    if sync: p+=dbg_wait(132,64,16)
    e(f's_mov_b32 {s(sT)}, {MOD_OFF+2048}')
    for i in range(4): e(f'buffer_load_dwordx4 {v(16+4*i,4)}, {v(L16)}, {s(WS,4)}, {s(sT)} offen offset:{1024*i} sc1')
    for i in range(16): p+=unp(MODV+2*i,16+i)
    for i in range(16,24): e(f'v_add_f32 {v(MODV+i)}, 1.0, {v(MODV+i)}')
    for i in range(16,24,2): p+=rnd(MODV+i,MODV+i+1,16)
    p+=poll(FA2,s(sFr),'1',16,BF_XC-BF_GB)
    e(f'v_cmp_ne_u32 vcc, {s(sFast)}, v16')
    e(f's_mov_b32 {s(sSeg)}, {s(sGrp)}'); e(f's_mov_b32 {s(sCnt)}, 1')
    p+=srd(PX,2048*1024)
    p+=STAMP(7,0)
    e('s_barrier')
    e('s_cbranch_vccnz L_p2_S')
    return fix(p,'p2s')

def p2_loop(mode, sync):
    sc=' sc1' if mode=='S' else ''
    L=f'L_p2_{mode}'
    p=[L+':']; e=p.append
    nb=[0]
    def gbar():
        nb[0]+=1; k=f'{L}_g{nb[0]}'
        return ['s_waitcnt vmcnt(0)','s_barrier', f's_add_u32 {s(sEp)}, {s(sEp)}, 1', f's_cmp_lg_u32 {s(sW)}, 0', f's_cbranch_scc1 {k}',
                f'v_mov_b32 v14, {s(sEp)}','s_mov_b64 exec, 1', f'buffer_store_dword v14, off, {s(WS,4)}, {s(sFw)}{sc}','s_mov_b64 exec, -1']+poll(FA2,s(sFr),s(sEp),14)+STAMP(8+nb[0],0)+[k+':','s_barrier']
    QF=16; KF=32; VF=64; KV=80; S0=92; OA=104; T=120; MX=121; SUM=122; PXr=124; KM=128; XR=136; X1=140
    if sync: p+=poll(ZR+1,s(sQf),s(sCnt),14)
    e(f's_lshl_b32 {s(sT)}, {s(sSeg)}, 5'); e(f's_add_u32 {s(sT)}, {s(sT)}, {s(sJ)}')
    e(f's_lshl_b32 {s(sT+6)}, {s(sT)}, 10')
    e(f's_lshl_b32 {s(sT)}, {s(sJ)}, 6'); e(f's_add_u32 {s(sT)}, {s(sT)}, {s(sSeg)}')
    e(f's_lshl_b32 {s(sT+1)}, {s(sT)}, 13'); e(f's_lshl_b32 {s(sT+2)}, {s(sM)}, 12'); e(f's_add_u32 {s(sT+1)}, {s(sT+1)}, {s(sT+2)}'); e(f's_add_u32 {s(sT+1)}, {s(sT+1)}, {Q_OFF}')
    e(f's_lshl_b32 {s(sT+2)}, {s(sT)}, 14'); e(f's_add_u32 {s(sT+2)}, {s(sT+2)}, {KV_OFF}'); e(f's_add_u32 {s(sT+3)}, {s(sT+2)}, 4096')
    e(f's_lshl_b32 {s(sT+4)}, {s(sEh)}, 12'); e(f's_add_u32 {s(sT+4)}, {s(sT+4)}, {s(sT+2)}'); e(f's_add_u32 {s(sT+4)}, {s(sT+4)}, 8192')
    e(f's_lshl_b32 {s(sT+5)}, {s(sT)}, 12'); e(f's_add_u32 {s(sT+5)}, {s(sT+5)}, {KVM_OFF}')
    for i in range(4): e(f'buffer_load_dwordx4 {v(QF+4*i,4)}, {v(L16)}, {s(WS,4)}, {s(sT+1)} offen offset:{1024*i} sc1')
    for i in range(8): e(f'buffer_load_dwordx4 {v(KF+4*i,4)}, {v(L16)}, {s(WS,4)}, {s(sT+2+(i>>2))} offen offset:{1024*(i&3)} sc1')
    for i in range(4): e(f'buffer_load_dwordx4 {v(VF+4*i,4)}, {v(L16)}, {s(WS,4)}, {s(sT+4)} offen offset:{1024*i} sc1')
    e(f'buffer_load_dwordx4 {v(XR,4)}, {v(L16)}, {s(SRD,4)}, {s(sT+6)} offen')
    for m in range(2):
        for ks in range(4): e(f'{MF32} {v(S0+4*m,4)}, {v(KF+16*m+4*ks,4)}, {v(QF+4*ks,4)}, '+(v(S0+4*m,4) if ks else '0'))
    e(f'v_mov_b64 {v(S0+8,2)}, 0'); e(f'v_mov_b64 {v(S0+10,2)}, 0')
    def sround(a_): return rnd(a_,a_+1,T)+[f'v_mul_f32 {v(a_)}, {s(sScale)}, {v(a_)}', f'v_mul_f32 {v(a_+1)}, {s(sScale)}, {v(a_+1)}']+rnd(a_,a_+1,T)
    for i in range(0,8,2): p+=sround(S0+i)
    e(f's_lshl_b32 {s(sT+1)}, {s(sM)}, 4'); e(f'v_add_u32 {v(T)}, {s(sT+1)}, {v(MSK)}'); e(f'v_mov_b32 {v(SUM)}, {hex(f2u(-999292928.0))}')
    for i in range(8):
        e(f'v_cmp_le_i32 vcc, {16*(i>>2)+(i&3)}, {v(T)}'); e(f'v_cndmask_b32 {v(S0+i)}, {v(SUM)}, {v(S0+i)}, vcc')
    e(f'v_max3_f32 {v(MX)}, {v(S0)}, {v(S0+1)}, {v(S0+2)}'); e(f'v_max3_f32 {v(MX)}, {v(MX)}, {v(S0+3)}, {v(S0+4)}'); e(f'v_max3_f32 {v(MX)}, {v(MX)}, {v(S0+5)}, {v(S0+6)}'); e(f'v_max_f32 {v(MX)}, {v(MX)}, {v(S0+7)}')
    if sync:
        e(f's_add_u32 {s(sT+1)}, {s(sSeg)}, 1'); p+=poll(ZR+1,s(sMf),s(sT+1),14)+STAMP(8,0)
    e(f's_lshl_b32 {s(sT+1)}, {s(sEh)}, 11'); e(f's_add_u32 {s(sT+1)}, {s(sT+1)}, {s(sT+5)}'); e(f's_lshl_b32 {s(sT+2)}, {s(sW)}, 10'); e(f's_add_u32 {s(sT+2)}, {s(sT+2)}, {s(sT+5)}')
    e(f'buffer_load_dwordx4 {v(KV+8,4)}, {v(L16)}, {s(WS,4)}, {s(sT+2)} offen sc1')
    for i in range(2): e(f'buffer_load_dwordx4 {v(KV+4*i,4)}, {v(L16)}, {s(WS,4)}, {s(sT+1)} offen offset:{1024*i} sc1')
    e(f'ds_write2_b32 {v(KW)}, {v(KV+9)}, {v(KV+11)} offset0:0 offset1:8'); e('s_waitcnt lgkmcnt(0)'); e('s_barrier')
    for k in range(2): e(f'ds_read_b128 {v(KM+4*k,4)}, {v(L16)} offset:{1024*k}')
    for k in range(2): e(f'{SMF} {v(S0+8,4)}, {v(KM+4*k,4)}, {v(QF+8*k,8)}, {v(IDX)}')
    e(f'v_add_f32 {v(S0+8)}, {v(S0+8)}, {v(S0+9)}'); e(f'v_add_f32 {v(S0+9)}, {v(S0+10)}, {v(S0+11)}')
    p+=sround(S0+8)
    e(f'v_max3_f32 {v(MX)}, {v(MX)}, {v(S0+8)}, {v(S0+9)}'); p+=xg('v_max_f32',MX,T)
    for i in range(10): e(f'v_sub_f32 {v(S0+i)}, {v(S0+i)}, {v(MX)}')
    for i in range(10): e(f'v_mul_f32 {v(S0+i)}, {s(sLg)}, {v(S0+i)}')
    for i in range(10): e(f'v_exp_f32 {v(S0+i)}, {v(S0+i)}')
    e(f'v_add_f32 {v(SUM)}, {v(S0)}, {v(S0+1)}')
    for i in range(2,10): e(f'v_add_f32 {v(SUM)}, {v(SUM)}, {v(S0+i)}')
    p+=xg('v_add_f32',SUM,T); e(f'v_rcp_f32 {v(SUM)}, {v(SUM)}')
    for i in range(10): e(f'v_mul_f32 {v(S0+i)}, {v(SUM)}, {v(S0+i)}')
    for i in range(4): e(f'v_cvt_pk_bf16_f32 {v(PXr+i)}, {v(S0+2*i)}, {v(S0+2*i+1)}')
    e(f'v_cvt_pk_bf16_f32 {v(ZR)}, {v(S0+8)}, {v(S0+9)}')
    for i in range(4): e(f'{MF32} {v(OA+4*i,4)}, {v(VF+4*i,4)}, {v(PXr,4)}, 0')
    for i in range(4): e(f'{MF16} {v(OA+4*i,4)}, {v(KV+2*i,2)}, {v(ZR,2)}, {v(OA+4*i,4)}')
    e(f's_lshl_b32 {s(sT+1)}, {s(sJ)}, 13'); e(f's_lshl_b32 {s(sT+2)}, {s(sEh)}, 12'); e(f's_add_u32 {s(sT+1)}, {s(sT+1)}, {s(sT+2)}'); e(f's_lshl_b32 {s(sT+2)}, {s(sM)}, 10')
    e(f's_add_u32 {s(sT+1)}, {s(sT+1)}, {s(sT+2)}'); e(f's_add_u32 {s(sT+1)}, {s(sT+1)}, {s(sGB)}')
    for k in range(2):
        for i in range(4): e(f'v_cvt_pk_bf16_f32 {v(QF+4*k+i)}, {v(OA+8*k+2*i)}, {v(OA+8*k+2*i+1)}')
        e(f'buffer_store_dwordx4 {v(QF+4*k,4)}, {v(L16)}, {s(WS,4)}, {s(sT+1)} offen offset:{G_O+2048*k}{sc}')
    p+=gbar()
    def gemm_part(src_lines, nks, wf, dst_off):
        o=list(src_lines)
        nfr=2*nks; per=nfr//4; nch=(per+3)//4
        sizes=[min(4,per-4*c) for c in range(nch)]
        base=0; starts=[]
        for c,sz in enumerate(sizes):
            starts.append(base)
            o+=[f's_mul_i32 {s(sT+2)}, {s(sW)}, {sz*1024}', f's_add_u32 {s(sT+2)}, {s(sT+2)}, {base*1024}', f's_add_u32 m0, {s(sT+2)}, 4096', f's_add_u32 {s(sT+2)}, {s(sT+2)}, {s(sT+1)}']
            o+=[f'buffer_load_dwordx4 {v(L16)}, {s(WS,4)}, {s(sT+2)} offen offset:{1024*i} sc1 lds' for i in range(sz)]
            base+=4*sz
        o+=[f'v_add_u32 {v(T)}, 4096, {v(L16)}']
        left=per
        for c,sz in enumerate(sizes):
            left-=sz
            o+=[f's_waitcnt vmcnt({left})','s_barrier']
            fr=list(range(starts[c],starts[c]+4*sz))
            rd=lambda f: f'ds_read_b128 {v(QF+4*(f%8),4)}, {v(T)} offset:{1024*f}'
            o+=[rd(f) for f in fr[:4]]
            for i,f in enumerate(fr):
                ac=v(OA+4*(f&1),4)
                o.append(f'{MF32} {ac}, {v(QF+4*(f%8),4)}, {wf(f>>1)}, '+(ac if f>1 else '0'))
                if i+4<len(fr): o.append(rd(fr[i+4]))
        for mt in range(2):
            for r in range(4):
                o+=[f's_add_u32 {s(sT+2)}, {s(sGB)}, {dst_off+(16*mt+r)*8192}', f'buffer_store_dword {v(OA+4*mt+r)}, {v(PSA)}, {s(WS,4)}, {s(sT+2)} offen{sc}']
        return o
    p+=gemm_part([f's_lshl_b32 {s(sT+1)}, {s(sKq)}, 16', f's_add_u32 {s(sT+1)}, {s(sT+1)}, {s(sGB)}'],32,WO,G_P1)
    p+=gbar()
    def rowsum(off):
        o=[f's_lshl_b32 {s(sT+1)}, {s(sJ)}, 13', f's_add_u32 {s(sT+1)}, {s(sT+1)}, {s(sGB)}', f's_add_u32 {s(sT+1)}, {s(sT+1)}, {off}', f's_add_u32 {s(sT+2)}, {s(sT+1)}, 4096', f'v_lshlrev_b32 {v(T)}, 1, {v(L16)}']
        for k in range(4):
            for hf in range(2): o.append(f'buffer_load_dwordx4 {v(QF+8*k+4*hf,4)}, {v(T)}, {s(WS,4)}, {s(sT+1+(k>>1))} offen offset:{2048*(k&1)+16*hf} sc1')
        for k in range(1,4):
            for i in range(8): o.append(f'v_add_f32 {v(QF+i)}, {v(QF+i)}, {v(QF+8*k+i)}')
        for i in range(0,8,2): o+=rnd(QF+i,QF+i+1,T)
        return o
    e(f's_cmp_lg_u32 {s(sW)}, 0'); e(f's_cbranch_scc1 {L}_n1')
    p+=rowsum(G_P1)
    for i in range(4): p+=unp(X1+2*i,XR+i)
    for i in range(8): e(f'v_mul_f32 {v(QF+i)}, {v(QF+i)}, {v(MODV+i)}')
    for i in range(0,8,2): p+=rnd(QF+i,QF+i+1,T)
    for i in range(8): e(f'v_add_f32 {v(X1+i)}, {v(X1+i)}, {v(QF+i)}')
    for i in range(0,8,2): p+=rnd(X1+i,X1+i+1,T)
    e(f'v_add_f32 {v(MX)}, {v(X1)}, {v(X1+1)}')
    for i in range(2,8): e(f'v_add_f32 {v(MX)}, {v(MX)}, {v(X1+i)}')
    p+=xrow(MX)+xg('v_add_f32',MX,T); e(f'v_mul_f32 {v(MX)}, {hex(f2u(1/512))}, {v(MX)}')
    for i in range(8):
        e(f'v_sub_f32 {v(T)}, {v(X1+i)}, {v(MX)}'); e(f'v_mul_f32 {v(SUM)}, {v(T)}, {v(T)}' if i==0 else f'v_fmac_f32 {v(SUM)}, {v(T)}, {v(T)}')
    p+=xrow(SUM)+xg('v_add_f32',SUM,T); e(f'v_mul_f32 {v(SUM)}, {hex(f2u(1/512))}, {v(SUM)}')
    p+=rnd(MX,SUM,T)
    e(f'v_add_f32 {v(SUM)}, {hex(f2u(1e-5))}, {v(SUM)}'); p+=rnd(SUM,SUM,T)[:2]
    e(f'v_sqrt_f32 {v(SUM)}, {v(SUM)}'); p+=rnd(SUM,SUM,T)[:2]
    e(f'v_rcp_f32 {v(SUM)}, {v(SUM)}')
    for i in range(8): e(f'v_sub_f32 {v(QF+i)}, {v(X1+i)}, {v(MX)}')
    for i in range(0,8,2): p+=rnd(QF+i,QF+i+1,T)
    for i in range(8): e(f'v_mul_f32 {v(QF+i)}, {v(QF+i)}, {v(SUM)}')
    for i in range(0,8,2): p+=rnd(QF+i,QF+i+1,T)
    for i in range(8): e(f'v_mul_f32 {v(QF+i)}, {v(QF+i)}, {v(MODV+16+i)}')
    for i in range(0,8,2): p+=rnd(QF+i,QF+i+1,T)
    for i in range(8): e(f'v_add_f32 {v(QF+i)}, {v(QF+i)}, {v(MODV+8+i)}')
    for i in range(4): e(f'v_cvt_pk_bf16_f32 {v(QF+8+i)}, {v(QF+2*i)}, {v(QF+2*i+1)}')
    e(f's_lshl_b32 {s(sT+1)}, {s(sJ)}, 10'); e(f's_add_u32 {s(sT+1)}, {s(sT+1)}, {s(sGB)}'); e(f's_add_u32 {s(sT+1)}, {s(sT+1)}, {G_H2}')
    e(f'buffer_store_dwordx4 {v(QF+8,4)}, {v(L16)}, {s(WS,4)}, {s(sT+1)} offen{sc}')
    p.append(f'{L}_n1:')
    p+=gbar()
    e(f's_cmp_ge_u32 {s(sJ)}, 28'); e(f's_cbranch_scc1 {L}_n2')
    e(f's_lshl_b32 {s(sT+1)}, {s(sEh)}, 14'); e(f's_lshl_b32 {s(sT+2)}, {s(sM)}, 9'); e(f's_add_u32 {s(sT+1)}, {s(sT+1)}, {s(sT+2)}'); e(f's_add_u32 {s(sT+1)}, {s(sT+1)}, {s(sGB)}'); e(f's_add_u32 {s(sT+1)}, {s(sT+1)}, {G_H2}')
    e(f's_lshl_b32 {s(sT+2)}, {s(sEh)}, 14'); e(f's_lshl_b32 {s(sT+3)}, {s(sM)}, 13'); e(f's_add_u32 {s(sT+2)}, {s(sT+2)}, {s(sT+3)}')
    for i in range(8):
        e(f's_add_u32 m0, {s(sT+2)}, {4096+1024*i}'); e(f's_add_u32 {s(sT+3)}, {s(sT+1)}, {64*i}')
        e(f'buffer_load_dwordx4 {v(HSR)}, {s(WS,4)}, {s(sT+3)} offen sc1 lds')
    e('s_waitcnt vmcnt(0)'); e('s_barrier')
    rd=lambda ks: f'ds_read_b128 {v(QF+4*(ks%8),4)}, {v(HRD)} offset:{4096+1024*ks}'
    for ks in range(4): e(rd(ks))
    for ks in range(16):
        for t in range(2): e(f'{MF32} {v(OA+4*t,4)}, {W1(t,ks)}, {v(QF+4*(ks%8),4)}, '+(v(OA+4*t,4) if ks else '0'))
        if ks+4<16: e(rd(ks+4))
    e(f's_lshl_b32 {s(sT+1)}, {s(sJ)}, 12'); e(f's_lshl_b32 {s(sT+2)}, {s(sEh)}, 11'); e(f's_add_u32 {s(sT+1)}, {s(sT+1)}, {s(sT+2)}'); e(f's_lshl_b32 {s(sT+2)}, {s(sM)}, 10')
    e(f's_add_u32 {s(sT+1)}, {s(sT+1)}, {s(sT+2)}'); e(f's_add_u32 {s(sT+1)}, {s(sT+1)}, {s(sGB)}'); e(f's_add_u32 {s(sT+1)}, {s(sT+1)}, {G_F1}')
    for i in range(8): e(f'v_max_f32 {v(OA+i)}, 0, {v(OA+i)}')
    for i in range(4): e(f'v_cvt_pk_bf16_f32 {v(PXr+i)}, {v(OA+2*i)}, {v(OA+2*i+1)}')
    e(f'buffer_store_dwordx4 {v(PXr,4)}, {v(L16)}, {s(WS,4)}, {s(sT+1)} offen{sc}')
    p.append(f'{L}_n2:')
    p+=gbar()
    p+=gemm_part([f's_mul_i32 {s(sT+1)}, {s(sKq)}, 28672', f's_add_u32 {s(sT+1)}, {s(sT+1)}, {s(sGB)}', f's_add_u32 {s(sT+1)}, {s(sT+1)}, {G_F1}'],14,W2,G_P2)
    p+=gbar()
    e(f's_cmp_lg_u32 {s(sW)}, 0'); e(f's_cbranch_scc1 {L}_n3')
    p+=rowsum(G_P2)
    for i in range(8): e(f'v_mul_f32 {v(QF+i)}, {v(QF+i)}, {v(MODV+24+i)}')
    for i in range(0,8,2): p+=rnd(QF+i,QF+i+1,T)
    for i in range(8): e(f'v_add_f32 {v(QF+i)}, {v(QF+i)}, {v(X1+i)}')
    for i in range(4): e(f'v_cvt_pk_bf16_f32 {v(QF+8+i)}, {v(QF+2*i)}, {v(QF+2*i+1)}')
    e(f'v_add_u32 {v(T)}, {s(sT+6)}, {v(L16)}')
    e(f'global_store_dwordx4 {v(T)}, {v(QF+8,4)}, {s(POUT,2)}')
    e('s_nop 1')
    p+=STAMP(14,0)
    p.append(f'{L}_n3:')
    e(f's_add_u32 {s(sSeg)}, {s(sSeg)}, 7'); e(f's_add_u32 {s(sCnt)}, {s(sCnt)}, 1'); e(f's_cmp_lt_u32 {s(sSeg)}, 64'); e(f's_cbranch_scc1 {L}')
    e('s_endpgm')
    r=fix(p,'p2'+mode); check(r+r,'p2loop')
    return r
```

```python
from asmlib import *
from layout import *
import math, struct

T0=0; IDX=1; L16=2; LW=3; QW=4; QR=5; KW=6; OW=7; ORD=8; PST=9; MPUB=10; H2A=10; FLG=11
ONES=12; PM=16; KVQ=20; QA=24; KA=32; VA=40; M=48; X=80; STG=112; RES=128
L_MEM=0; L_Q=8192; L_K=10240; L_O=12288; L_SEL=14336; L_KX=16384; L_WV=24576; WREG=34816
WS=4; WSRD=8; DBG=12; sH=14; sW=15; sStep=16; sC=17; sKsrc=18; sVsrc=19; sKvm=20
sPst=21; sPin=23; sPrst=25; sPrstB=26; sPslot=27; sMemIn1=28; sSpinU=29; sPinB=30
sMemIn0=31; sMemB=32; sMemPub=33; sMemRst=34; sSlot=35; sSpin=36; sKdst=37; sKvF=38; sVdst=39; sKvmF=40; sReg=41
sT=42
sEx=50; sPtr=52; sRow=64; sTime=70; sOdd=88; sOne=92; sC2=94; sSpinF=96; sFlag=98; sFlagB=99; sWoff=100
LIM='0x80000'
SMF='v_smfmac_f32_16x16x64_bf16'; MF32='v_mfma_f32_16x16x32_bf16'; MF16='v_mfma_f32_16x16x16_bf16'
OPT=dict(sync=0, d1=18, sl=12, nb=6, pp=0, rep=2, hotkv=0, tr=0, solo=0, cut=99, drop=0, cutm=-1, show=0, rp=0, warm=1, sp=0, np=2)

lds_groups=[('q',0),('q',1),('q',2),('q',3),('o',0,3),('o',1,1),('o',1,2),('o',1,3)]
all_groups=[(m,c) for m in 'qkv' for c in range(8)]+[('o',tp,k) for tp in range(2) for k in range(4)]
res_groups=[g for g in all_groups if g not in lds_groups]
gloc={}
for i,g in enumerate(res_groups): gloc[g]=('a',16*i) if i<16 else ('v',RES+16*(i-16))
stream={('q',0,0):M+16,('q',0,1):M+24,('q',1,0):KA,('q',1,1):VA,('q',2,0):X,('q',2,1):X+8,('q',3,0):X+16,('q',3,1):X+24,
        ('o',0,3,0):X+8,('o',0,3,1):X+24,('o',1,1,0):X,('o',1,2,0):X+16,('o',1,3,0):KA,('o',1,1,1):VA,('o',1,2,1):QA,('o',1,3,1):X+8}
def ureg(g,t):
    if g in gloc: return gloc[g][0], gloc[g][1]+8*t
    return 'v', stream[g+(t,)]
def unit(g,t): p,b=ureg(g,t); return R(p,b,8)
def stream_reads(g,t):
    off=lds_groups.index(g)*4096+t*2048; b=stream[g+(t,)]
    return [f'ds_read_b128 {v(b,4)}, {v(LW)} offset:{off}', f'ds_read_b128 {v(b+4,4)}, {v(LW)} offset:{off+1024}']
def zero(b,n,val='0'): return [f'v_mov_b64 {v(b+i,2)}, {val}' for i in range(0,n,2)]
def kv_addr(): return [f'v_lshrrev_b32 {v(T0)}, 2, {v(L16)}', f'v_and_b32 {v(T0)}, 28, {v(T0)}', f'v_min_u32 {v(T0)}, 24, {v(T0)}']
def kv_check(L):
    return kv_addr()+[f's_add_u32 {s(sT+3)}, {s(sStep)}, 1', f's_min_u32 {s(sT+3)}, {s(sT+3)}, 63', f's_lshl_b32 {s(sT+3)}, {s(sT+3)}, 2', f'{L}c:',
            f'v_mad_u32_u24 {v(FLG)}, {v(FLG)}, 28, {v(T0)}', f'v_cmp_ge_u32 vcc, {s(sT+3)}, {v(FLG)}', f's_cbranch_vccnz {L}w', f'{L}x:']
def kv_wait(L):
    return [f'{L}w:', f's_add_u32 {s(sSpinF)}, {s(sSpinF)}, 1', f's_cmp_gt_u32 {s(sSpinF)}, {LIM}', f's_cbranch_scc1 {L}x',
            f'buffer_load_dword {v(FLG)}, {v(T0)}, {s(WS,4)}, {s(sKvF)} offen sc1', 's_waitcnt vmcnt(0)', f's_branch {L}c']
def h2_addr(d,t):
    return [f'v_and_b32 {v(d)}, 0x230, {v(L16)}', f'v_and_b32 {v(t)}, 0xc0, {v(L16)}', f'v_lshl_add_u32 {v(d)}, {v(t)}, 1, {v(d)}',
            f'v_and_b32 {v(t)}, 0x100, {v(L16)}', f'v_lshrrev_b32 {v(t)}, 2, {v(t)}', f'v_or_b32 {v(d)}, {v(d)}, {v(t)}']

def prologue(timing):
    p=[]; e=p.append
    VQ=[]
    def vm(line,tag=None): e(line); VQ.append(tag)
    def wait(tag):
        i=max(k for k,t in enumerate(VQ) if t==tag); e(f's_waitcnt vmcnt({len(VQ)-1-i})')
    e(f's_load_dwordx2 {s(WSRD,2)}, s[0:1], 40')
    e(f's_load_dwordx4 {s(sPtr,4)}, s[0:1], 8')
    e(f's_load_dwordx4 {s(sPtr+4,4)}, s[0:1], 24')
    e(f's_load_dwordx2 {s(DBG,2)}, s[0:1], 104')
    e(f's_load_dwordx2 {s(WS,2)}, s[0:1], 112')
    if timing: e(f's_memrealtime {s(sTime,2)}')
    ln,n,g,t1,t2,g1,VOO,VA0,VA1,TO0,TO1,TA0,TA1,TB0,TB1,r=[STG+i for i in range(16)]
    e(f'v_lshrrev_b32 {v(t1)}, 6, v0'); e(f'v_and_b32 {v(ln)}, 63, v0'); e(f'v_readfirstlane_b32 {s(sW)}, {v(t1)}')
    e(f's_mov_b32 {s(WSRD+2)}, {4<<20}'); e(f's_mov_b32 {s(WSRD+3)}, 0x20000')
    e(f'v_and_b32 {v(n)}, 15, {v(ln)}'); e(f'v_lshrrev_b32 {v(g)}, 4, {v(ln)}'); e(f'v_and_b32 {v(g1)}, 1, {v(g)}')
    e(f's_mul_i32 {s(sReg)}, {s(sW)}, {WREG}'); e(f's_add_u32 {s(sReg)}, {s(sReg)}, {L_WV}')
    e(f'v_lshrrev_b32 {v(t1)}, 3, {v(n)}'); e(f'v_lshl_add_u32 {v(t1)}, {v(g1)}, 4, {v(t1)}'); e(f'v_lshrrev_b32 {v(t2)}, 1, {v(g)}'); e(f'v_lshl_add_u32 {v(t1)}, {v(t2)}, 2, {v(t1)}')
    e(f'v_and_b32 {v(t2)}, 7, {v(n)}'); e(f'v_lshlrev_b32 {v(t2)}, 4, {v(t2)}'); e(f'v_lshlrev_b32 {v(VOO)}, 6, {v(g1)}'); e(f'v_xor_b32 {v(t2)}, {v(t2)}, {v(VOO)}')
    e(f'v_lshl_add_u32 {v(VOO)}, {v(t1)}, 10, {v(t2)}')
    e(f's_lshl_b32 {s(sT)}, {s(sH)}, 17'); e(f's_lshl_b32 {s(sT+1)}, {s(sW)}, 8'); e(f's_add_u32 {s(sT)}, {s(sT)}, {s(sT+1)}')
    for k in range(4):
        e(f's_xor_b32 {s(sRow+k)}, {s(sW)}, {k}'); e(f's_lshl_b32 {s(sRow+k)}, {s(sRow+k)}, 15'); e(f's_add_u32 {s(sRow+k)}, {s(sRow+k)}, {s(sT)}')
    e('s_waitcnt lgkmcnt(0)')
    if timing: e('s_memrealtime s[80:81] ;stamp')
    og=[g_ for g_ in res_groups if g_[0]=='o']+lds_groups[4:]
    for gi,g_ in enumerate(og):
        for b in range(4):
            e(f's_add_u32 m0, {s(sReg)}, {(4*gi+b)*1024}'); e(f's_add_u32 {s(sT+7)}, {s(sRow+g_[2])}, {(8*(b>>1)+2*(b&1))*1024+g_[1]*128}')
            vm(f'buffer_load_dwordx4 {v(VOO)}, {s(WSRD,4)}, {s(sT+7)} offen lds',g_)
        if gi==1: mark=len(p)
    if timing: e('s_memrealtime s[82:83] ;stamp')
    tail=p[mark:]; del p[mark:]
    e(f's_mov_b32 {s(WS+2)}, {WS_BYTES}'); e(f's_mov_b32 {s(WS+3)}, 0x20000')
    e(f'v_lshlrev_b32 {v(L16)}, 4, {v(ln)}'); e(f'v_add_u32 {v(LW)}, {s(sReg)}, {v(L16)}')
    e(f's_add_u32 {s(sVdst)}, {s(sReg)}, 32768')
    e(f's_lshl_b32 {s(sT+1)}, {s(sW)}, 11'); e(f's_add_u32 {s(sKdst)}, {s(sT+1)}, {L_KX}')
    e(f's_lshl_b32 {s(sWoff)}, {s(sW)}, 10')
    e(f'v_and_b32 {v(t1)}, 1, {v(ln)}'); e(f'v_mul_u32_u24 {v(t1)}, 0xaaaa, {v(t1)}'); e(f'v_add_u32 {v(IDX)}, 0x4444, {v(t1)}')
    e(f's_lshl_b32 {s(sT+2)}, {s(sW)}, 9')
    e(f'v_lshrrev_b32 {v(r)}, 2, {v(n)}'); e(f'v_lshlrev_b32 {v(QW)}, 7, {v(r)}'); e(f'v_and_b32 {v(t1)}, 1, {v(r)}'); e(f'v_lshlrev_b32 {v(t1)}, 6, {v(t1)}')
    e(f'v_lshlrev_b32 {v(t2)}, 5, {v(g)}'); e(f'v_xor_b32 {v(t1)}, {v(t1)}, {v(t2)}'); e(f'v_add_u32 {v(QW)}, {v(QW)}, {v(t1)}')
    e(f'v_and_b32 {v(t1)}, 3, {v(n)}'); e(f'v_lshl_add_u32 {v(QW)}, {v(t1)}, 2, {v(QW)}'); e(f'v_add_u32 {v(QW)}, {s(sT+2)}, {v(QW)}'); e(f'v_add_u32 {v(QW)}, {L_Q}, {v(QW)}')
    e(f'v_lshlrev_b32 {v(t1)}, 3, {v(ln)}'); e(f'v_add_u32 {v(OW)}, {s(sT+2)}, {v(t1)}'); e(f'v_and_b32 {v(ORD)}, -9, {v(OW)}')
    e(f'v_and_b32 {v(t1)}, -9, {v(t1)}'); e(f'v_lshlrev_b32 {v(t2)}, 6, {v(g1)}'); e(f'v_xor_b32 {v(QR)}, {v(t1)}, {v(t2)}')
    e(f'v_bfe_u32 {v(t1)}, {v(n)}, 1, 2'); e(f'v_lshlrev_b32 {v(KW)}, 2, {v(t1)}'); e(f'v_and_b32 {v(t1)}, 1, {v(n)}'); e(f'v_lshl_add_u32 {v(KW)}, {v(t1)}, 4, {v(KW)}')
    e(f'v_lshl_add_u32 {v(KW)}, {v(g)}, 6, {v(KW)}'); e(f'v_lshrrev_b32 {v(t1)}, 3, {v(n)}'); e(f'v_lshl_add_u32 {v(KW)}, {v(t1)}, 8, {v(KW)}')
    e(f'v_add_u32 {v(KW)}, {s(sT+2)}, {v(KW)}'); e(f'v_add_u32 {v(KW)}, {L_K}, {v(KW)}')
    e(f'v_lshlrev_b32 {v(MPUB)}, 12, {v(t1)}'); e(f'v_and_b32 {v(t1)}, 1, {v(r)}'); e(f'v_lshl_add_u32 {v(MPUB)}, {v(t1)}, 6, {v(MPUB)}'); e(f'v_lshl_add_u32 {v(MPUB)}, {v(g1)}, 5, {v(MPUB)}')
    e(f'v_and_b32 {v(t1)}, 3, {v(n)}'); e(f'v_lshl_add_u32 {v(MPUB)}, {v(t1)}, 3, {v(MPUB)}'); e(f'v_lshrrev_b32 {v(t2)}, 1, {v(g)}'); e(f'v_lshl_add_u32 {v(MPUB)}, {v(t2)}, 31, {v(MPUB)}')
    e(f'v_lshlrev_b32 {v(TO0)}, 8, {v(g)}'); e(f'v_lshl_add_u32 {v(TO0)}, {v(t1)}, 3, {v(TO0)}'); e(f'v_lshl_add_u32 {v(TO0)}, {v(g1)}, 6, {v(TO0)}')
    e(f'v_and_b32 {v(t2)}, 1, {v(r)}'); e(f'v_lshl_add_u32 {v(TO0)}, {v(t2)}, 7, {v(TO0)}'); e(f'v_lshrrev_b32 {v(t2)}, 1, {v(r)}'); e(f'v_lshl_add_u32 {v(TO0)}, {v(t2)}, 5, {v(TO0)}')
    e(f'v_add_u32 {v(TO0)}, {s(sReg)}, {v(TO0)}'); e(f'v_xor_b32 {v(TO1)}, 64, {v(TO0)}')
    e(f'v_lshl_add_u32 {v(t2)}, {v(g1)}, 2, {v(r)}'); e(f's_lshl_b32 {s(sT+3)}, {s(sW)}, 1'); e(f'v_xor_b32 {v(t2)}, {s(sT+3)}, {v(t2)}')
    e(f'v_lshlrev_b32 {v(TA0)}, 10, {v(g)}'); e(f'v_lshl_add_u32 {v(TA0)}, {v(r)}, 8, {v(TA0)}'); e(f'v_lshl_add_u32 {v(TA0)}, {v(t2)}, 5, {v(TA0)}'); e(f'v_lshl_add_u32 {v(TA0)}, {v(t1)}, 3, {v(TA0)}')
    e(f'v_add_u32 {v(TA0)}, {L_WV}, {v(TA0)}'); e(f'v_xor_b32 {v(TA1)}, 32, {v(TA0)}'); e(f'v_add_u32 {v(TB0)}, {2*WREG}, {v(TA0)}'); e(f'v_add_u32 {v(TB1)}, {2*WREG}, {v(TA1)}')
    e(f's_lshl_b32 {s(sT+4)}, {s(sH)}, 8')
    e(f'v_and_b32 {v(t2)}, 2, {v(g)}'); e(f'v_lshl_add_u32 {v(t2)}, {v(g1)}, 4, {v(t2)}'); e(f'v_lshlrev_b32 {v(t1)}, 1, {v(g)}'); e(f'v_xor_b32 {v(t1)}, {v(t1)}, {v(n)}'); e(f'v_lshlrev_b32 {v(t1)}, 4, {v(t1)}')
    e(f'v_lshl_add_u32 {v(VA0)}, {v(t2)}, 13, {v(t1)}'); e(f's_lshl_b32 {s(sT+3)}, {s(sW)}, 18'); e(f's_add_u32 {s(sT+3)}, {s(sT+3)}, {s(sT+4)}')
    e(f'v_add_u32 {v(VA0)}, {s(sT+3)}, {v(VA0)}'); e(f'v_xor_b32 {v(VA1)}, 128, {v(VA0)}')
    e(f's_lshl_b32 {s(sT+3)}, {s(sW)}, 15'); e(f'v_lshlrev_b32 {v(t1)}, 11, {v(r)}'); e(f'v_add_u32 {v(t1)}, {s(sT+4)}, {v(t1)}'); e(f'v_and_b32 {v(t1)}, 0x1fff, {v(t1)}')
    e(f'v_lshl_add_u32 {v(PST)}, {v(g)}, 13, {v(t1)}'); e(f'v_lshl_add_u32 {v(PST)}, {v(n)}, 4, {v(PST)}'); e(f'v_add_u32 {v(PST)}, {s(sT+3)}, {v(PST)}')
    Rp=OPT['rep']; cval=struct.unpack('<I',struct.pack('<f',math.log2(math.e)/math.sqrt(128)))[0]
    for r_,val in ((sC,cval),(sC2,cval),(sC2+1,cval),(sStep,0),(sSpin,0),(sSpinU,0),(sSpinF,0),(sSlot,0),(sPslot,3*262144),(sOne,0x3f803f80),(sOne+1,0x3f803f80),
                   (sOdd,0xaaaaaaaa),(sOdd+1,0xaaaaaaaa),(sEx,0x10001 if Rp>1 else 1),(sEx+1,0x10001 if Rp>2 else 0)): e(f's_mov_b32 {s(r_)}, {hex(val)}')
    e(f's_and_b32 {s(sFlagB)}, {s(sH)}, {Rp-1}'); e(f's_lshl_b32 {s(sFlagB)}, {s(sFlagB)}, 8'); e(f's_add_u32 {s(sFlagB)}, {s(sFlagB)}, {FLAG_OFF}')
    e(f's_lshl_b32 {s(sFlag)}, {s(sH)}, 2'); e(f's_add_u32 {s(sFlag)}, {s(sFlag)}, {FLAG_OFF}')
    e(f's_lshl_b32 {s(sPinB)}, {s(sH)}, 13'); e(f's_add_u32 {s(sPinB)}, {s(sPinB)}, {PART_OFF}'); e(f's_add_u32 {s(sPrstB)}, {s(sPinB)}, {s(sT+1)}')
    e(f's_bfe_u32 {s(sT+5)}, {s(sH)}, 0x20002'); e(f's_lshl_b32 {s(sMemB)}, {s(sT+5)}, 10'); e(f's_lshr_b32 {s(sT+5)}, {s(sH)}, 4'); e(f's_lshl_b32 {s(sT+5)}, {s(sT+5)}, 9')
    e(f's_add_u32 {s(sMemB)}, {s(sMemB)}, {s(sT+5)}'); e(f's_and_b32 {s(sT+5)}, {s(sH)}, 3'); e(f's_lshl_b32 {s(sT+5)}, {s(sT+5)}, 7'); e(f's_add_u32 {s(sMemB)}, {s(sMemB)}, {s(sT+5)}'); e(f's_add_u32 {s(sMemB)}, {s(sMemB)}, {MEM_OFF}')
    e(f's_lshl_b32 {s(sKsrc)}, {s(sH)}, 20'); e(f's_add_u32 {s(sKsrc)}, {s(sKsrc)}, {s(sT+1)}'); e(f's_add_u32 {s(sKsrc)}, {s(sKsrc)}, {KV_OFF}'); e(f's_add_u32 {s(sVsrc)}, {s(sKsrc)}, 8192')
    e(f's_lshl_b32 {s(sKvm)}, {s(sH)}, 18'); e(f's_add_u32 {s(sKvm)}, {s(sKvm)}, {s(sWoff)}'); e(f's_add_u32 {s(sKvm)}, {s(sKvm)}, {KVM_OFF}')
    e(f's_lshl_b32 {s(sKvF)}, {s(sH)}, 7'); e(f's_add_u32 {s(sKvmF)}, {s(sKvF)}, {BF_OFF+BF_KVM}'); e(f's_add_u32 {s(sKvF)}, {s(sKvF)}, {BF_OFF+BF_KV}')
    p+=zero(PM,4)+zero(ONES,4,'-1')
    e(f'v_and_b32 {v(t1)}, 1, {v(n)}'); e(f'v_lshlrev_b32 {v(t1)}, 4, {v(t1)}'); e(f'v_mov_b32 {v(t2)}, 0x3f80'); e(f'v_lshlrev_b32 {v(t2)}, {v(t1)}, {v(t2)}'); e(f'v_bfe_u32 {v(t1)}, {v(n)}, 1, 2')
    for jj in range(4):
        e(f'v_cmp_eq_u32 vcc, {jj}, {v(t1)}'); e(f'v_cndmask_b32 {v(M+jj)}, 0, {v(t2)}, vcc')
    e(f'ds_write_b128 {v(L16)}, {v(M,4)} offset:{L_SEL}')
    e(f'v_lshrrev_b32 {v(T0)}, 1, {v(n)}'); e(f'v_lshlrev_b32 {v(T0)}, 10, {v(T0)}'); e(f'v_lshl_add_u32 {v(T0)}, {v(g1)}, 3, {v(T0)}')
    e(f'v_and_b32 {v(t1)}, 2, {v(g)}'); e(f'v_lshl_add_u32 {v(T0)}, {v(t1)}, 6, {v(T0)}'); e(f'v_and_b32 {v(t1)}, 1, {v(n)}'); e(f'v_lshl_add_u32 {v(T0)}, {v(t1)}, 2, {v(T0)}')
    e(f's_lshl_b32 {s(sT+5)}, {s(sW)}, 8'); e(f'v_add_u32 {v(T0)}, {s(sT+5)}, {v(T0)}')
    p+=tail
    e(f's_lshl_b32 {s(sT+5)}, {s(sW)}, 18'); e(f's_add_u32 {s(sT+5)}, {s(sT+5)}, {s(sPinB)}'); e(f's_add_u32 {s(sT+6)}, {s(sT+5)}, 4096')
    for j in range(8): vm(f'buffer_store_dwordx4 {v(ONES,4)}, {v(L16)}, {s(WS,4)}, {s(sT+5+(j>>2))} offen offset:{(j&3)*1024} sc1','x')
    e(f's_lshl_b32 {s(sT+5)}, {s(sW)}, 13'); e(f's_add_u32 {s(sT+5)}, {s(sT+5)}, {s(sMemB)}')
    vm(f'buffer_store_dwordx2 {v(ONES,2)}, {v(MPUB)}, {s(WS,4)}, {s(sT+5)} offen sc1','x')
    e(f's_mov_b64 exec, {s(sEx,2)}'); vm(f'buffer_store_dword {v(PM)}, {v(L16)}, {s(WS,4)}, {s(sFlag)} offen sc1','x'); e('s_mov_b64 exec, -1')
    for u in range(2):
        for x in range(4): vm(f'global_load_dword {v(QA+4*u+x)}, {v(T0)}, {s(sPtr,2)} offset:{16*u+32*x}','x')
    if not OPT['rp']:
        p+=h2_addr(FLG,t1); e(f's_cmp_eq_u32 {s(sW)}, 1'); e('s_cselect_b64 vcc, -1, 0'); e(f'v_cndmask_b32 {v(MPUB)}, {v(MPUB)}, {v(FLG)}, vcc')
    qg=[g_ for g_ in res_groups if g_[0]!='o']+lds_groups[:4]
    ptr={'q':sPtr+2,'k':sPtr+4,'v':sPtr+6}
    def issue(bi):
        g_=qg[bi]; c=g_[1]
        e(f's_mov_b32 {s(WSRD)}, {s(ptr[g_[0]])}'); e(f's_mov_b32 {s(WSRD+1)}, {s(ptr[g_[0]]+1)}')
        for i in range(4):
            e(f's_add_u32 m0, {s(sT+6)}, {L_WV+(bi%4)*WREG+1024*i}'); e(f's_mov_b32 {s(sT+7)}, {(128*(c&3)+8*(c>>2)+4*(i>>1)+(i&1))*8192}')
            vm(f'buffer_load_dwordx4 {v(VA1 if i&1 else VA0)}, {s(WSRD,4)}, {s(sT+7)} offen lds',g_)
    def oread(gi):
        g_=og[gi]; wait(g_)
        if timing and gi==0: e('s_memrealtime s[84:85] ;stamp')
        for b in range(4):
            for t in range(2):
                pf,b0=ureg(g_,t) if g_ in gloc else ('v',M+8*t)
                e(f'ds_read_b64_tr_b16 {R(pf,b0+2*b,2)}, {v(TO1 if t else TO0)} offset:{(4*gi+b)*1024}')
        e('s_waitcnt lgkmcnt(0)')
        if g_ not in gloc:
            for j in range(4): e(f'ds_write_b128 {v(LW)}, {v(M+4*j,4)} offset:{(4*gi+j)*1024}')
    for gi in range(4): oread(gi)
    e(f's_lshl_b32 {s(sT+6)}, {s(sW)}, 12')
    e('s_barrier')
    for bi in range(4): issue(bi)
    for gi in range(4,8): oread(gi)
    wait('x')
    e(f's_mov_b32 {s(sT+2)}, 0x05040100'); e(f's_mov_b32 {s(sT+3)}, 0x07060302'); e(f'v_add_u32 {v(T0)}, {s(sWoff)}, {v(L16)}')
    for u in range(2):
        d=X+4*u; q=QA+4*u
        e(f'v_perm_b32 {v(d)}, {v(q+1)}, {v(q)}, {s(sT+2)}'); e(f'v_perm_b32 {v(d+1)}, {v(q+3)}, {v(q+2)}, {s(sT+2)}')
        e(f'v_perm_b32 {v(d+2)}, {v(q+1)}, {v(q)}, {s(sT+3)}'); e(f'v_perm_b32 {v(d+3)}, {v(q+3)}, {v(q+2)}, {s(sT+3)}')
        e(f'ds_write_b128 {v(T0)}, {v(d,4)} offset:{L_MEM+4096*u}')
    for bi in range(24):
        g_=qg[bi]; wait(g_)
        if timing and bi==23: e('s_memrealtime s[86:87] ;stamp')
        e('s_barrier')
        if bi==0:
            e(f's_cmp_lg_u32 {s(sW)}, 0'); e('s_cbranch_scc1 L_ch_noarr')
            e(f's_getreg_b32 {s(sT+5)}, hwreg(HW_REG_XCC_ID)'); e(f's_and_b32 {s(sT+5)}, {s(sT+5)}, 7'); e(f's_lshl_b32 {s(sT+5)}, {s(sT+5)}, 3'); e(f's_lshl_b64 {s(sT+2,2)}, 1, {s(sT+5)}')
            e(f'v_mov_b32 {v(QA)}, {s(sT+2)}'); e(f'v_mov_b32 {v(QA+1)}, {s(sT+3)}'); e('s_mov_b64 exec, 1')
            e(f'global_atomic_add_x2 {v(PM+1)}, {v(QA,2)}, {s(DBG,2)}'); e('s_mov_b64 exec, -1')
            p.append('L_ch_noarr:')
        for b in range(4):
            for t in range(2):
                pf,b0=ureg(g_,t); tra=[[TA0,TA1],[TB0,TB1]][(bi%4)>>1][t]
                e(f'ds_read_b64_tr_b16 {R(pf,b0+2*b,2)}, {v(tra)} offset:{(bi&1)*WREG+b*4096}')
        e('s_waitcnt lgkmcnt(0)')
        if bi+4<24 or bi==23: e('s_barrier')
        if bi+4<24: issue(bi+4)
        if bi==19:
            e(';kvslot')
    for gi,g_ in enumerate(lds_groups[:4]):
        for t in range(2):
            for j in range(2): e(f'ds_write_b128 {v(LW)}, {v(stream[g_+(t,)]+4*j,4)} offset:{gi*4096+t*2048+j*1024}')
    if OPT['sync']:
        e(f'v_mov_b32 {v(T0)}, 136')
        p.append('L_ch_iw:')
        e(f'global_load_dword {v(FLG)}, {v(T0)}, {s(DBG,2)} sc1'); e(f's_add_u32 {s(sSpinF)}, {s(sSpinF)}, 1'); e(f's_cmp_gt_u32 {s(sSpinF)}, {LIM}'); e('s_cbranch_scc1 L_ch_iwx')
        e('s_waitcnt vmcnt(0)'); e(f'v_cmp_eq_u32 vcc, 0, {v(FLG)}'); e('s_cbranch_vccnz L_ch_iw')
        p.append('L_ch_iwx:')
        e('s_waitcnt vmcnt(0)'); e(f'v_mov_b32 {v(FLG)}, 0')
        p.extend(kv_check('L_ch_k0')); p.extend(['s_branch L_ch_k0y']+kv_wait('L_ch_k0')+['L_ch_k0y:'])
    for sd,ss in ((sKdst,sKsrc),(sVdst,sVsrc)):
        e(f's_mov_b32 m0, {s(sd)}')
        for j in range(2): e(f'buffer_load_dwordx4 {v(L16)}, {s(WS,4)}, {s(ss)} offen offset:{1024*j} sc1 lds')
    if OPT['warm']:
        e(f's_lshl_b32 {s(sT+5)}, {s(sW)}, 18'); e(f's_add_u32 {s(sT+5)}, {s(sT+5)}, {s(sPinB)}'); e(f's_add_u32 {s(sT+6)}, {s(sT+5)}, 4096')
        for j in range(8): e(f'buffer_load_dwordx4 {v(STG,4)}, {v(L16)}, {s(WS,4)}, {s(sT+5+(j>>2))} offen offset:{(j&3)*1024} sc1')
    p.append('L_ch_hs:')
    e(f'global_load_dwordx2 {v(M,2)}, {v(PM+1)}, {s(DBG,2)} sc1'); e(f's_add_u32 {s(sSpinF)}, {s(sSpinF)}, 1'); e('s_waitcnt vmcnt(0)')
    e(f'v_readfirstlane_b32 {s(sT+2)}, {v(M)}'); e(f'v_readfirstlane_b32 {s(sT+3)}, {v(M+1)}')
    e(f's_cmp_gt_u32 {s(sSpinF)}, {LIM}'); e('s_cbranch_scc1 L_ch_hsdone')
    e(f's_add_u32 {s(sT+4)}, {s(sT+2)}, {s(sT+3)}'); e(f's_lshr_b32 {s(sT+5)}, {s(sT+4)}, 16'); e(f's_add_u32 {s(sT+4)}, {s(sT+4)}, {s(sT+5)}')
    e(f's_lshr_b32 {s(sT+5)}, {s(sT+4)}, 8'); e(f's_add_u32 {s(sT+4)}, {s(sT+4)}, {s(sT+5)}'); e(f's_and_b32 {s(sT+4)}, {s(sT+4)}, 0xff')
    e(f's_cmp_lg_u32 {s(sT+4)}, 32'); e('s_cbranch_scc1 L_ch_hs')
    p.append('L_ch_hsdone:')
    p+=zero(QA,8)+kv_addr()
    e(f's_add_u32 {s(sKsrc)}, {s(sKsrc)}, 16384'); e(f's_add_u32 {s(sVsrc)}, {s(sVsrc)}, 16384')
    e(f's_add_u32 {s(sPrst)}, {s(sPrstB)}, {2*262144}')
    if OPT['rp']: e(f's_sub_u32 {s(sKvm)}, {s(sKvm)}, 4096')
    e(f's_or_b32 {s(sT+2)}, {s(sT+2)}, {s(sT+3)}'); e(f's_and_b32 {s(sT+2)}, {s(sT+2)}, 0x20202020')
    e('s_waitcnt lgkmcnt(0)')
    if timing: e(f's_memrealtime {s(sTime+2,2)}'); e(f's_memtime {s(sTime+6,2)}'); e('s_waitcnt lgkmcnt(0)')
    if OPT['solo']: e('s_memtime s[60:61]'); e('s_waitcnt lgkmcnt(0)'); e('s_barrier')
    e(f's_cmp_eq_u32 {s(sT+2)}, 0'); e('s_cbranch_scc1 L_ch_S0')
    return fix(p,'prologue')

def smf(d,a_,b): return f'{SMF} {v(d,4)}, {v(a_,4)}, {b}, {v(IDX)}'
def mrd(c): return f'ds_read_b128 {v(M+4*c,4)}, {v(L16)} offset:{L_MEM+1024*c}'
def G(*groups):
    o=[]
    for g_ in groups: o.extend(g_)
    return o

def step(mode, par, verbose=False):
    sc=' sc1' if mode=='S' else ''
    two=OPT['tr'] or OPT['solo']
    L=f'L_ch_{mode}{par}'
    p=[L+':']; e=p.append
    qk=lambda m,c,t: smf((QA if m=='q' else KA if m=='k' else VA)+4*t, M+4*c, unit((m,c),t))
    Q=lambda c,t: qk('q',c,t); K=lambda c,t: qk('k',c,t); V=lambda c,t: qk('v',c,t)
    W=lambda n: f's_waitcnt lgkmcnt({n})'
    krd=[f'ds_read_b128 {v(X+4*f,4)}, {v(L16)} offset:{L_KX+1024*f}' for f in range(8)]
    kl=[f'buffer_load_dwordx4 {v(STG+4*i,4)}, {v(L16)}, {s(WS,4)}, {s(sVsrc if i>>1 else sKsrc)} offen offset:{1024*(i&1)} sc1' for i in range(4)]
    kw=[f'v_add_u32 {v(T0)}, {s(sKdst)}, {v(L16)}','s_waitcnt vmcnt(3)']+[f'ds_write_b128 {v(T0)}, {v(STG+4*i,4)} offset:{1024*i}' for i in range(2)]+[f'ds_write_b128 {v(LW)}, {v(STG+8+4*i,4)} offset:{32768+1024*i}' for i in range(2)]
    def post(acc,d0,d1,bytok):
        o=[f'v_add_f32 {v(acc)}, {v(acc)}, {v(acc+1)}', f'v_add_f32 {v(acc+2)}, {v(acc+2)}, {v(acc+3)}',
           f'v_add_f32 {v(acc+4)}, {v(acc+4)}, {v(acc+5)}', f'v_add_f32 {v(acc+6)}, {v(acc+6)}, {v(acc+7)}']
        if bytok: o+=[f'v_cvt_pk_bf16_f32 {v(d0)}, {v(acc)}, {v(acc+4)}', f'v_cvt_pk_bf16_f32 {v(d1)}, {v(acc+2)}, {v(acc+6)}']
        else:     o+=[f'v_cvt_pk_bf16_f32 {v(d0)}, {v(acc)}, {v(acc+2)}', f'v_cvt_pk_bf16_f32 {v(d1)}, {v(acc+4)}, {v(acc+6)}']
        return o
    def tr(i,rt=False):
        if not OPT['tr']: return []
        return [('s_memrealtime' if rt else 's_memtime')+f' {s(52+14*par+2*i,2)} ;stamp']
    def trdump():
        if not OPT['tr']: return []
        o=[f'v_mov_b32 {v(M+4+i)}, {s(52+14*(1-par)+2*i)}' for i in range(4)]+[f'v_mov_b32 {v(M+8+i)}, {s(52+14*(1-par)+2*i)}' for i in range(4,7)]
        o+=[f's_lshl_b32 {s(sT+1)}, {s(sSpinU)}, 16', f's_add_u32 {s(sT+1)}, {s(sT+1)}, {s(sSpin)}', f'v_mov_b32 {v(M+15)}, {s(sT+1)}',
            f's_lshl_b32 {s(sT+1)}, {s(sStep)}, 5', f's_add_u32 {s(sT+1)}, {s(sT+1)}, {s(sH)}', f's_lshl_b32 {s(sT+1)}, {s(sT+1)}, 2', f's_add_u32 {s(sT+1)}, {s(sT+1)}, {s(sW)}',
            f's_lshl_b32 {s(sT+1)}, {s(sT+1)}, 5', f's_add_u32 {s(sT+1)}, {s(sT+1)}, {100<<20}', 's_mov_b64 exec, 1',
            f'buffer_store_dwordx4 {v(M+4,4)}, off, {s(WS,4)}, {s(sT+1)}', f'buffer_store_dwordx4 {v(M+12,4)}, off, {s(WS,4)}, {s(sT+1)} offset:16', 's_mov_b64 exec, -1']
        return o
    rstore=lambda j: f'buffer_store_dwordx4 {v(ONES,4)}, {v(L16)}, {s(WS,4)}, {s(sPrst)} offen offset:{j*1024}{sc}'
    pub=f'buffer_store_dwordx4 {v(KVQ,4)}, {v(L16)}, {s(WS,4)}, {s(sKvm)} offen sc1'
    if not OPT['solo']: p.extend(['s_waitcnt vmcnt(7) lgkmcnt(0)','s_barrier'])
    p.append(';secS')
    for c in range(4): e(mrd(c))
    p.append(f'{L}_re:')
    z=zero(KA,16)
    qp=post(QA,QA+1,QA+3,True)+[f'ds_write2_b32 {v(QW)}, {v(QA+1)}, {v(QA+3)} offset0:0 offset1:4']
    kp=post(KA,KVQ+1,KVQ+3,True)+[f'ds_write2_b32 {v(KW)}, {v(KVQ+1)}, {v(KVQ+3)} offset0:0 offset1:8']
    p.extend(G([W(3)],[Q(0,0)],[Q(0,1),W(2)],[Q(1,0),kl[0]],[Q(1,1),W(1)],[Q(2,0),kl[1]],[Q(2,1),W(0),z[0]],[Q(3,0),z[1]],[Q(3,1),kl[2]],
               [K(0,0),z[2]],[K(1,0),kl[3]],[K(2,0),'s_waitcnt vmcnt(7)','s_barrier',z[3]],[K(3,0),mrd(4),z[4]],
               [K(0,1),mrd(5),z[5]],[K(1,1),mrd(6),z[6]],[K(2,1),mrd(7),z[7]],[K(3,1),krd[0],W(4)]))
    p.append(';sec0')
    on=[f'v_mov_b64 {v(ONES+2*i,2)}, {s(sOne,2)}' for i in range(2)]
    p.extend(G([Q(4,0),krd[4],W(4)],[Q(5,0),krd[1],W(4)],[Q(6,0),krd[5],W(4)],[Q(7,0),krd[2],on[0]],
               [Q(4,1),krd[3],on[1]],[Q(5,1),krd[6]],[Q(6,1),krd[7],qp[0]],[Q(7,1),'s_nop 1',qp[1]],
               [K(4,0),f'buffer_load_dword {v(FLG)}, {v(T0)}, {s(WS,4)}, {s(sKvF)} offen sc1'],[K(5,0),'s_nop 1',qp[2]],[K(6,0),qp[3]],[K(7,0),'s_nop 1',qp[4]],
               [K(4,1),qp[5]],[K(5,1),qp[6]],[K(6,1),kp[0]],[K(7,1),kp[1]]))
    p.append(';sec1')
    rk=[f'ds_read_b128 {v(X+16*k,4)}, {v(L16)} offset:{L_K+1024*k}' for k in range(2)]
    rq=[f'ds_read_b128 {v(M+4*k,4)}, {v(QR)} offset:{L_Q+512*k}' for k in range(4)]
    VF=[X+4,X+20]
    rv=[f'ds_read_b128 {v(VF[t],4)}, {v(LW)} offset:{32768+1024*t}' for t in range(2)]
    SX=lambda m,ks: f'{MF32} {v(QA+4*m,4)}, {v(X+16*m+4*ks,4)}, {v(M+4*ks,4)}, '+(v(QA+4*m,4) if ks else '0')
    sm=[smf(KA,X+16*k,v(M+8*k,8)) for k in range(2)]
    zk=zero(KA,4)
    mx=PM; tt=KA+3
    c=[f'v_max3_f32 {v(mx)}, {v(QA)}, {v(QA+1)}, {v(QA+2)}', f'v_max3_f32 {v(mx)}, {v(mx)}, {v(QA+3)}, {v(QA+4)}',
       f'v_max3_f32 {v(mx)}, {v(mx)}, {v(QA+5)}, {v(QA+6)}',
       f'v_add_f32 {v(KA)}, {v(KA)}, {v(KA+1)}', f'v_add_f32 {v(KA+1)}, {v(KA+2)}, {v(KA+3)}',
       f'v_max3_f32 {v(mx)}, {v(mx)}, {v(QA+7)}, {v(KA)}', f'v_max_f32 {v(tt)}, {v(mx)}, {v(KA+1)}', f'v_max_f32 {v(mx)}, {v(mx)}, {v(KA+1)}',
       f'v_permlane32_swap_b32 {v(mx)}, {v(tt)}', f'v_max_f32 {v(T0)}, {v(mx)}, {v(tt)}', f'v_max_f32 {v(mx)}, {v(mx)}, {v(tt)}',
       f'v_permlane16_swap_b32 {v(mx)}, {v(T0)}', f'v_max_f32 {v(mx)}, {v(mx)}, {v(T0)}', f'v_mul_f32 {v(T0)}, {s(sC)}, {v(mx)}']
    kadv=0 if OPT['hotkv'] else 16384
    bk=[f's_add_u32 {s(sSlot)}, {s(sSlot)}, 8192', f's_and_b32 {s(sSlot)}, {s(sSlot)}, 0x7fff',
        f's_add_u32 {s(sMemIn0)}, {s(sSlot)}, {MEM_OFF}', f's_add_u32 {s(sMemPub)}, {s(sMemB)}, {s(sSlot)}',
        f's_xor_b32 {s(sMemRst)}, {s(sMemPub)}, 16384',
        f's_add_u32 {s(sPrst)}, {s(sPrstB)}, {s(sPslot)}',
        f's_add_u32 {s(sPslot)}, {s(sPslot)}, 262144', f's_and_b32 {s(sPslot)}, {s(sPslot)}, 0xfffff',
        f's_add_u32 {s(sPst)}, {s(sPslot)}, {PART_OFF}', f's_add_u32 {s(sPst+1)}, {s(sPslot)}, {PART_OFF+131072}',
        f's_add_u32 {s(sPin)}, {s(sPinB)}, {s(sPslot)}', f's_add_u32 {s(sPin+1)}, {s(sPin)}, 4096',
        f's_add_u32 {s(sKsrc)}, {s(sKsrc)}, {kadv}', f's_add_u32 {s(sVsrc)}, {s(sVsrc)}, {kadv}',
        f's_add_u32 {s(sMemIn1)}, {s(sMemIn0)}, 4096', f's_mov_b32 m0, {L_MEM}', f's_add_u32 {s(sStep)}, {s(sStep)}, 1']
    wo=lambda tp,k: stream_reads(('o',tp>>1,k),tp&1)
    p.extend(G([V(0,0),'s_nop 1',f'v_cmp_u_f32 vcc, {v(QA)}, {v(QA+2)}'],[V(0,1),W(0),'s_barrier',kp[2]],[V(1,0),rq[0],kp[3]],[V(1,1),rq[1],kp[4]],
               [V(2,0),kp[5]],[V(2,1),kp[6]],[V(3,0),rq[2],zk[0]],[V(3,1),rq[3],W(3)],
               [SX(0,0),zk[1]],[SX(1,0)],[SX(0,1),W(0),'s_barrier'],[SX(1,1),rk[0]],
               [SX(0,2),rk[1]],[SX(0,3),rv[0]],[SX(1,2),rv[1]],[SX(1,3),f's_cbranch_vccnz {L}_r2',f'{L}_r2x:',W(2)],
               [sm[0],bk[0],bk[1],c[0]],[sm[1],wo(2,1)[0]],
               [V(4,0),bk[2],bk[3],c[1]],[V(5,0),wo(2,2)[0],c[2]],[V(6,0),bk[5],bk[6],c[3],c[4]],[V(7,0),bk[7],bk[16],c[5],c[6],c[7]],
               [V(4,1),wo(0,3)[0],c[8]],[V(5,1),wo(0,3)[1],c[9],c[10]],[V(6,1),wo(1,3)[0],c[11]],[V(7,1),wo(1,3)[1],c[12],c[13]]))
    if OPT['tr']: p.append(f's_memtime {s(52+14*(1-par)+10,2)} ;stamp')
    p.append(';sec2')
    vp=post(VA,KVQ,KVQ+2,False)
    xp=lambda r_: f'v_exp_f32 {v(r_)}, {v(r_)}'
    PX=KA+4; OF=M+16
    e(vp[0]); e(vp[1])
    for r_ in (KA,QA,QA+2,QA+4,QA+6):
        e(f'v_pk_fma_f32 {v(r_,2)}, {v(r_,2)}, {s(sC2,2)}, {v(T0,2)} op_sel_hi:[1,1,0] neg_lo:[0,0,1] neg_hi:[0,0,1]')
    e(f'v_mfma_f32_32x32x8_bf16 {v(M,16)}, {v(PM+2,2)}, {v(PM+2,2)}, 0'); e(bk[12])
    e(xp(KA)); e(xp(KA+1))
    p.extend([vp[2],vp[3],vp[4],vp[5]])
    e(f'v_cvt_pk_bf16_f32 {v(PM)}, {v(KA)}, {v(KA+1)}')
    e(xp(QA)); e(xp(QA+1))
    ex=[f's_cmp_eq_u32 {s(sStep)}, 64','s_cbranch_scc1 L_ch_last'] if (par==1 or not two) else ['s_nop 1']
    p.extend(G([f'{MF16} {v(VA,4)}, {v(KVQ,2)}, {v(PM,2)}, 0',bk[13],xp(QA+2)],
               [f'{MF16} {v(VA+4,4)}, {v(KVQ+2,2)}, {v(PM,2)}, 0',bk[8],xp(QA+3)],
               [f'{MF16} {v(KA,4)}, {v(ONES,2)}, {v(PM,2)}, 0',W(6),xp(QA+4),xp(QA+5),xp(QA+6),xp(QA+7)]))
    for i in range(4): e(f'v_cvt_pk_bf16_f32 {v(PX+i)}, {v(QA+2*i)}, {v(QA+2*i+1)}')
    zo=zero(ONES,4,'-1')
    oa=[f'v_xor_b32 {v(QA+k)}, {512*k}, {v(ORD)}' for k in range(1,4)]
    p.extend(G([oa[0],oa[1]],[f'{MF32} {v(KA,4)}, {v(ONES,4)}, {v(PX,4)}, {v(KA,4)}']+ex+[oa[2]],
               [f'{MF32} {v(VA,4)}, {v(VF[0],4)}, {v(PX,4)}, {v(VA,4)}',bk[14],zo[0],zo[1]],
               [f'{MF32} {v(VA+4,4)}, {v(VF[1],4)}, {v(PX,4)}, {v(VA+4,4)}',bk[15],f'v_rcp_f32 {v(T0)}, {v(KA)}',bk[9],bk[10]]))
    pm_=[f'v_pk_mul_f32 {v(VA+2*i,2)}, {v(VA+2*i,2)}, {v(T0,2)} op_sel_hi:[1,0]' for i in range(4)]
    cv=[f'v_cvt_pk_bf16_f32 {v(OF+i)}, {v(VA+2*i)}, {v(VA+2*i+1)}' for i in range(4)]
    p.extend([pm_[0],pm_[1],cv[0],cv[1],pm_[2],pm_[3],cv[2],cv[3]])
    p.append(';sec3')
    e(f'v_cndmask_b32 {v(QA+4)}, {v(OF)}, {v(OF+2)}, {s(sOdd,2)}'); e(f'v_cndmask_b32 {v(QA+5)}, {v(OF+1)}, {v(OF+3)}, {s(sOdd,2)}')
    O=lambda tp,k: smf(M+4*tp,OF+4*k,unit(('o',tp>>1,k),tp&1))
    def oc(tp,j):
        q=M+8*(tp>>1)+(tp&1)+2*j
        return f'v_cvt_pk_bf16_f32 {v(q)}, {v(M+4*tp+2*j)}, {v(M+4*tp+2*j+1)}'
    ost=lambda u: f'buffer_store_dwordx4 {v(M+8*u,4)}, {v(PST)}, {s(WS,4)}, {s(sPst+u)} offen{sc}'
    ro=[f'ds_read_b128 {v(OF+4*k,4)}, {v(QA+k)} offset:{L_O}' for k in range(1,4)]
    p.extend(G([f'ds_write_b64 {v(OW)}, {v(QA+4,2)} offset:{L_O}'],[O(0,0),rstore(1)],[O(1,0),wo(2,1)[1]],[W(1),'s_barrier',ro[0]],[O(2,0),ro[1],bk[11]],[O(3,0),ro[2],bk[4]],
               [wo(2,2)[1],wo(2,3)[0],W(4)]))
    p.append(';sec4')
    p.extend(G([O(0,1),wo(2,3)[1],W(4)],[O(0,2),wo(3,1)[0],W(4)],[O(0,3),wo(3,1)[1],f's_cmp_lg_u32 {s(sW)}, 0'],
               [O(1,1),wo(3,2)[0],'s_nop 0'],[O(1,2),wo(3,2)[1],W(4)],[O(1,3),wo(3,3)[0],oc(0,0)],
               [O(2,1),wo(3,3)[1],oc(0,1)],[O(2,2),W(4),'s_nop 0',oc(1,0),oc(1,1)],[O(2,3),ost(0)],
               [O(3,1),W(0),'s_nop 1'],[O(3,2),'s_nop 1',oc(2,0)],[O(3,3),'s_nop 1',oc(2,1)],[oc(3,0),oc(3,1),ost(1)]))
    sr=[]
    for g_,t in ((('q',0),0),(('q',0),1),(('q',1),0),(('q',1),1)): sr+=stream_reads(g_,t)
    xs=[]
    for g_,t in ((('q',2),0),(('q',2),1),(('q',3),0),(('q',3),1)): xs+=stream_reads(g_,t)
    xz=weave(xs,zero(QA,8),[0,0,0,0,1,1,1,1])
    if verbose and par==0:
        fx=fix(p,'main',True); print('model cycles',simulate(fx,OPT['show']), 'inserted waits', len([l for l in fx if l.startswith('s_waitcnt')])-len([l for l in p if l.startswith('s_waitcnt')]))
    if OPT['solo']:
        marks=[i for i,l in enumerate(p) if l.startswith(';sec')]
        if OPT['cutm']>=0:
            marks=[i+1 for i,l in enumerate(p) if l.startswith(('v_mfma','v_smfmac'))]; OPT['cut']=OPT['cutm']
        if OPT['cut']<len(marks):
            rest=p[marks[OPT['cut']]:]
            p[:]=p[:marks[OPT['cut']]]+['s_memtime s[62:63] ;stamp']+[l for l in rest if (l.startswith(('s_add','s_and','s_cmp','s_cbranch_scc')) or l.endswith(':'))]
        d=OPT['drop']
        if d&1: p[:]=[l for l in p if not l.startswith('buffer_store')]
        if d&2: p[:]=[l for l in p if not l.startswith('buffer_load')]
        if OPT['cut']>=len(marks): p.append('s_memtime s[62:63] ;stamp')
        p.extend(['s_waitcnt vmcnt(0)']+kw+kv_addr()+sr+xz)
        p.extend(['s_waitcnt lgkmcnt(0) vmcnt(0)','s_sub_u32 s62, s62, s60', f's_add_u32 {s(sSpin)}, {s(sSpin)}, s62', 's_barrier', 's_sleep 8', 's_memtime s[60:61] ;stamp', 's_waitcnt lgkmcnt(0)', 's_barrier'])
        if par==1: p.append(f's_branch L_ch_{mode}0')
        return fix(p,f'solo{par}'), [f'{L}_r2:',f's_branch {L}_r2x']
    kc=lambda x: kv_check(L+x) if OPT['sync'] else []
    p.extend(tr(0)+tr(1,True))
    e(f's_cbranch_scc1 {L}_w')
    head=list(p)
    p.extend(trdump())
    e(f'ds_read_b128 {v(QA+4,4)}, {v(L16)} offset:{L_SEL}')
    e(f'v_mov_b32 {v(M+2)}, {s(sStep)}')
    for i in range(OPT['d1']-(8 if OPT['tr'] else 0)): e('s_nop 3')
    p.extend(tr(2))
    ld1=[f'buffer_load_dwordx4 {v(X+4*j,4)}, {v(L16)}, {s(WS,4)}, {s(sPin+(j>>2))} offen offset:{(j&3)*1024} sc1' for j in range(8)]
    fst=[f's_mov_b64 exec, {s(sEx,2)}', f'buffer_store_dword {v(M+2)}, {v(L16)}, {s(WS,4)}, {s(sFlag)} offen{sc}', 's_mov_b64 exec, -1']
    p.extend(ld1); p.extend(sr); e(W(8))
    p.append(f'{L}_p1:')
    RM=lambda j: f'{MF32} {v(QA,4)}, {v(QA+4,4)}, {v(X+4*j,4)}, '+(v(QA,4) if j else '0')
    p.extend(['s_waitcnt vmcnt(7)',RM(0),'s_waitcnt vmcnt(6)',f'v_max_u32 {v(M+3)}, {v(X)}, {v(X+4)}',f'v_cmp_eq_u32 vcc, -1, {v(M+3)}',RM(1),
              fst[0], f's_cbranch_vccnz {L}_r0', f'{L}_r0x:']+fst[1:]+tr(3))
    for j in range(2,8):
        e(f's_waitcnt vmcnt({8-j})'); e(RM(j))
    e(f'v_cvt_pk_bf16_f32 {v(M)}, {v(QA)}, {v(QA+1)}')
    e(f'v_cvt_pk_bf16_f32 {v(M+1)}, {v(QA+2)}, {v(QA+3)}')
    e(f'buffer_store_dwordx2 {v(M,2)}, {v(MPUB)}, {s(WS,4)}, {s(sMemPub)} offen{sc}')
    e(f'v_cmp_u_f32 vcc, {v(QA)}, {v(QA)}')
    p.extend(tr(4))
    e(f's_cbranch_vccnz {L}_r1')
    p.append(f'{L}_p1ok:')
    p.extend([kw[0]]+kw[2:]+kc('_ka')+xz)
    nxt=f'L_ch_{mode}{1-par if two else 0}'
    tailc=['s_barrier', pub, rstore(0)]
    tail2=kv_addr()+[f's_add_u32 {s(sKvm)}, {s(sKvm)}, 4096', f's_branch {nxt}']
    p.append(f'{L}_b1:')
    p.extend(tailc+tail2)
    body=fix(p,f'step{mode}{par}',verbose)
    ld2=[f'buffer_load_dwordx4 {v(H2A)}, {s(WS,4)}, {s(sMemIn0)} offen offset:{1024*j} sc1 lds' for j in range(4)]
    ld2+=[f's_mov_b32 m0, {L_MEM+4096}','s_nop 0']+[f'buffer_load_dwordx4 {v(H2A)}, {s(WS,4)}, {s(sMemIn1)} offen offset:{1024*j} sc1 lds' for j in range(4)]
    q=[f'{L}_w:']+kw+kc('_kb')+trdump()+sr+xz; e=q.append
    e(f's_cmp_eq_u32 {s(sW)}, 1'); e(f's_cbranch_scc1 {L}_fb')
    e(f's_cmp_lg_u32 {s(sW)}, 3'); e(f's_cbranch_scc1 {L}_b1')
    e(f'buffer_store_dwordx2 {v(ONES,2)}, {v(MPUB)}, {s(WS,4)}, {s(sMemRst)} offen{sc}')
    e(f's_branch {L}_b1')
    q.append(f'{L}_fb:')
    e(f'v_lshrrev_b32 {v(T0)}, 2, {v(L16)}'); e(f'v_and_b32 {v(T0)}, 0x7c, {v(T0)}')
    for i in range(max(0,OPT['sl']-(7 if OPT['tr'] else 0))): e('s_nop 3')
    q.extend(tr(2))
    N=OPT['nb']
    fl=f'buffer_load_dword {v(PM)}, {v(T0)}, {s(WS,4)}, {s(sFlagB)} offen sc1'
    for i in range(N-1): e(fl); e(f's_nop {7+OPT["pp"]}')
    q.append(f'{L}_fb2:')
    for i in range(8):
        e(fl)
        if OPT['pp']: e(f's_nop {OPT["pp"]-1}')
        e(f's_waitcnt vmcnt({N-1})'); e(f'v_cmp_gt_u32 vcc, {s(sStep)}, {v(PM)}'); e(f's_cbranch_vccz {L}_fb3')
    e(f's_add_u32 {s(sSpinF)}, {s(sSpinF)}, 1'); e(f's_cmp_gt_u32 {s(sSpinF)}, {LIM}'); e(f's_cbranch_scc0 {L}_fb2')
    q.append(f'{L}_fb3:')
    q.extend(tr(3)); q.extend(ld2)
    q.extend(tailc+[f's_sub_u32 {s(sT+3)}, {s(sStep)}, 1', f'v_mov_b32 {v(FLG)}, {s(sT+3)}', 's_mov_b64 exec, 1',
        f'buffer_store_dword {v(FLG)}, off, {s(WS,4)}, {s(sKvmF)} sc1', 's_mov_b64 exec, -1']+tail2)
    i=q.index(f'{L}_fb:')
    alt=fix(head+q[:i],f'alt{mode}{par}',False)
    q=alt[alt.index(f'{L}_w:'):]+q[i:]
    e=q.append
    if OPT['sync']: q.extend(kv_wait(L+'_ka')+kv_wait(L+'_kb'))
    q.append(f'{L}_r0:')
    e(f's_add_u32 {s(sSpin)}, {s(sSpin)}, 1'); e(f's_cmp_gt_u32 {s(sSpin)}, {LIM}'); e(f's_cbranch_scc1 {L}_r0x')
    e('s_mov_b64 exec, -1'); q.extend(ld1); e(f's_branch {L}_p1')
    q.append(f'{L}_r1:')
    e(f's_add_u32 {s(sSpin)}, {s(sSpin)}, 256'); e(f's_cmp_gt_u32 {s(sSpin)}, {LIM}'); e(f's_cbranch_scc1 {L}_p1ok')
    q.extend(ld1); e(f's_branch {L}_p1')
    q.append(f'{L}_r2:')
    e(f's_add_u32 {s(sSpinU)}, {s(sSpinU)}, 1'); e(f's_cmp_gt_u32 {s(sSpinU)}, {LIM}'); e(f's_cbranch_scc1 {L}_r2x')
    e(f's_cmp_eq_u32 {s(sStep)}, 0'); e(f's_cbranch_scc1 {L}_r2x')
    e(f's_mov_b32 m0, {L_MEM}'); e(f's_cmp_lg_u32 {s(sW)}, 1')
    e('s_waitcnt lgkmcnt(0)'); e('s_barrier'); e(f's_cbranch_scc1 {L}_r2b')
    q.extend(ld2); q.append(f'{L}_r2b:'); e('s_nop 7'); q.extend(sr); q.extend(xs); q.extend(zero(QA,8))
    e('s_waitcnt vmcnt(0) lgkmcnt(0)'); e('s_barrier')
    for c_ in range(4): e(mrd(c_))
    e(f's_branch {L}_re')
    return body, q

def chain_body(timing=False, verbose=False):
    A=Asm()
    pro=prologue(timing)
    F0,f0=step('F',0,verbose); F1,f1=step('F',1); S0,s0=step('S',0); S1,s1=step('S',1)
    check(pro+F0+F0,'chainF')
    for x in ((pro,F0,F1,f0,f1,S0,S1,s0,s1) if (OPT['tr'] or OPT['solo']) else (pro,F0,f0,S0,s0)): A.extend(x)
    A.label('L_ch_last')
    A(f'''buffer_store_dwordx4 {v(KVQ,4)}, {v(L16)}, {s(WS,4)}, {s(sKvm)} offen sc1
    s_waitcnt vmcnt(0)
    v_mov_b32 {v(FLG)}, 64
    s_barrier
    s_cmp_lg_u32 {s(sW)}, 1
    s_cbranch_scc1 L_ch_nf
    s_mov_b64 exec, 1
    buffer_store_dword {v(FLG)}, off, {s(WS,4)}, {s(sKvmF)} sc1
    s_mov_b64 exec, -1
    L_ch_nf:''')
    if timing:
        A(f'''s_lshl_b32 {s(sSpinU)}, {s(sSpinU)}, 16
        s_add_u32 {s(sSpin)}, {s(sSpin)}, {s(sSpinU)}
        s_memrealtime {s(sTime+4,2)}
        s_memtime {s(sTime+8,2)}
        s_waitcnt lgkmcnt(0)
        s_sub_u32 {s(sT)}, {s(sTime+2)}, {s(sTime)}
        s_sub_u32 {s(sT+1)}, {s(sTime+4)}, {s(sTime+2)}
        s_sub_u32 {s(sT+2)}, {s(sTime+8)}, {s(sTime+6)}
        v_mov_b32 v4, {s(sT)}
        v_mov_b32 v5, {s(sT+1)}
        v_mov_b32 v6, {s(sT+2)}
        v_mov_b32 v7, {s(sSpin)}
        s_lshl_b32 {s(sT)}, {s(sH)}, 2
        s_add_u32 {s(sT)}, {s(sT)}, {s(sW)}
        s_lshl_b32 {s(sT)}, {s(sT)}, 5
        s_add_u32 {s(sT)}, {s(sT)}, 16384
        v_mov_b32 v0, {s(sT)}
        s_sub_u32 s80, s80, {s(sTime)}
        s_sub_u32 s82, s82, {s(sTime)}
        s_sub_u32 s84, s84, {s(sTime)}
        s_sub_u32 s86, s86, {s(sTime)}
        v_mov_b32 v8, s80
        v_mov_b32 v9, s82
        v_mov_b32 v10, s84
        v_mov_b32 v11, s86
        s_mov_b64 exec, 1
        global_store_dwordx4 v0, v[8:11], {s(DBG,2)} offset:16
        global_store_dwordx4 v0, v[4:7], {s(DBG,2)}''')
    return A

def kernel_text(name, body):
    return f'''.globl {name}
.p2align 8
.type {name},@function
{name}:
{body.text()}    s_endpgm
'''
def kernel_desc(name, vgpr=512, accum=256, sgpr=102):
    return f'''.p2align 6
.amdhsa_kernel {name}
  .amdhsa_next_free_vgpr {vgpr}
  .amdhsa_next_free_sgpr {sgpr}
  .amdhsa_accum_offset {accum}
  .amdhsa_group_segment_fixed_size 0
  .amdhsa_kernarg_size 120
  .amdhsa_user_sgpr_count 2
  .amdhsa_user_sgpr_kernarg_segment_ptr 1
  .amdhsa_system_sgpr_workgroup_id_x 1
  .amdhsa_float_denorm_mode_32 3
.end_amdhsa_kernel
'''

if __name__=='__main__':
    import sys
    for x in sys.argv:
        if '=' in x: OPT[x.split('=')[0]]=int(x.split('=')[1])
    A=Asm()
    if 'spread' in sys.argv:
        A(f's_cmp_ge_u32 s2, 32\ns_cbranch_scc1 L_exit\ns_mov_b32 {s(sH)}, s2')
    else:
        A(f's_cmp_ge_u32 s2, 256\ns_cbranch_scc1 L_exit\ns_and_b32 s3, s2, 7\ns_cmp_lg_u32 s3, 0\ns_cbranch_scc1 L_exit\ns_lshr_b32 {s(sH)}, s2, 3')
    A.extend(chain_body(timing=True, verbose=True))
    A.label('L_exit')
    txt='; @launch kernel=chain_kernel grid=(256,1,1) block=(256,1,1) lds=163840\n.amdgcn_target "amdgcn-amd-amdhsa--gfx950"\n.text\n'
    txt+=kernel_text('chain_kernel',A)+'.section .rodata,"a"\n'+kernel_desc('chain_kernel')
    open(sys.argv[1],'w').write(txt)
```

```python
import sys
from asmlib import *
from layout import *
import bulk as B, chain as C
prof='prof' in sys.argv
C.OPT['sync']=1; C.OPT['d1']=20; C.OPT['sl']=14
for x in sys.argv:
    if '=' in x:
        k,val=x.split('='); (C.OPT if k in C.OPT else B.OPT)[k]=int(val)
sB=B.sB
_n=[0]
def stamp(slot,who,reg,sw,dbg):
    if not prof: return []
    _n[0]+=1; L=f'L_st{_n[0]}'
    return [f's_cmp_lg_u32 {s(reg)}, {who}',f's_cbranch_scc1 {L}',f's_cmp_lg_u32 {s(sw)}, 0',f's_cbranch_scc1 {L}','s_memrealtime s[90:91]','s_waitcnt lgkmcnt(0)',
            'v_mov_b32 v14, s90',f'v_mov_b32 v15, {160+4*slot}','s_mov_b64 exec, 1',f'global_store_dword v15, v14, {s(dbg,2)}','s_mov_b64 exec, -1',L+':']
bs=lambda slot,who: stamp(slot,who,sB,B.sW,B.DBG)
B.STAMP=bs
A=Asm()
A(f'''s_cmp_ge_u32 s2, 256
s_cbranch_scc1 L_exit
s_and_b32 s3, s2, 7
s_cmp_lg_u32 s3, 0
s_cbranch_scc1 L_bulk
s_lshr_b32 {s(C.sH)}, s2, 3''')
A.extend(C.chain_body(timing=prof))
A.label('L_exit'); A('s_endpgm'); A.label('L_bulk')
A(f's_sub_u32 s3, s3, 1\ns_lshl_b32 s3, s3, 5\ns_lshr_b32 {s(sB)}, s2, 3\ns_add_u32 {s(sB)}, {s(sB)}, s3')
A.extend(B.roles()); A.extend(fix(B.common())); A.extend(bs(0,0))
A(f's_cmp_ge_u32 {s(B.sZ)}, 96\ns_cbranch_scc1 L_ln\ns_cmp_lg_u32 {s(B.sZ)}, 95\ns_cbranch_scc1 L_mod')
A.extend(B.flag_init()); A.label('L_mod'); A.extend(B.mod_phase(True)); A.extend(bs(1,0)); A('s_branch L_p1')
A.label('L_ln'); A.extend(B.ln_phase(True)); A.extend(bs(2,3)); A.label('L_p1')
a_,b_=B.p1_setup(); A.extend(a_); A.extend(b_); A.extend(bs(3,0)); A.extend(bs(4,3))
A.extend(B.p1_main(True)); A.extend(bs(5,0)); A.extend(bs(6,3))
A.extend(B.p2_setup(True)); A.extend(B.p2_loop('F',True)); A.extend(B.p2_loop('S',True))
kn=NAME+'_kernel'
txt='; @launch grid=(256,1,1) block=(256,1,1) lds=163840\n.amdgcn_target "amdgcn-amd-amdhsa--gfx950"\n.text\n'
txt+=C.kernel_text(kn,A)+'.section .rodata,"a"\n'+C.kernel_desc(kn)
open(sys.argv[1],'w').write(txt)
```

```python
from asmlib import *
from layout import *
import math, struct
MF32='v_mfma_f32_16x16x32_bf16'; MF16='v_mfma_f32_16x16x16_bf16'; SMF='v_smfmac_f32_16x16x64_bf16'
f2u=lambda x: struct.unpack('<I',struct.pack('<f',x))[0]
WS=4; SRD=8; DBG=12; sB=14; sW=15; sMask=16; sSpin=17
sP=52
PX,PWQ,PWK,PWV,PWO,PW1,PW2,PC,PWM,POUT=[sP+2*i for i in (0,2,3,4,5,8,9,10,11,12)]
sT=40
sHd=21; sR=22; sZ=39
LN=0; N=1; Gv=2; L16=3
LIM='0x200000'
OPT={}
STAMP=lambda slot,who: []
def common():
    return [f's_load_dwordx16 {s(sP,16)}, s[0:1], 0', f's_load_dwordx8 {s(sP+16,8)}, s[0:1], 64', f's_load_dwordx2 {s(sP+24,2)}, s[0:1], 96',
        f's_load_dwordx2 {s(DBG,2)}, s[0:1], 104', f's_load_dwordx2 {s(WS,2)}, s[0:1], 112',
        'v_lshrrev_b32 v1, 6, v0', f'v_and_b32 {v(LN)}, 63, v0', f'v_readfirstlane_b32 {s(sW)}, v1',
        f's_mov_b32 {s(WS+2)}, {WS_BYTES}', f's_mov_b32 {s(WS+3)}, 0x20000', f's_mov_b32 {s(SRD+3)}, 0x20000',
        f's_mov_b32 {s(sMask)}, 0xffff0000', f's_mov_b32 {s(sSpin)}, 0',
        f'v_and_b32 {v(N)}, 15, {v(LN)}', f'v_lshrrev_b32 {v(Gv)}, 4, {v(LN)}', f'v_lshlrev_b32 {v(L16)}, 4, {v(LN)}', 's_waitcnt lgkmcnt(0)']
def roles():
    return [f's_mul_i32 {s(sHd)}, {s(sB)}, 21846', f's_lshr_b32 {s(sHd)}, {s(sHd)}, 16', f's_mul_i32 {s(sT)}, {s(sHd)}, 3', f's_sub_u32 {s(sR)}, {s(sB)}, {s(sT)}',
            f's_sub_u32 {s(sT)}, {s(sB)}, 96', f's_and_b32 {s(sT+1)}, {s(sT)}, 3', f's_add_u32 {s(sT+1)}, {s(sT+1)}, 3', f's_lshr_b32 {s(sT)}, {s(sT)}, 2',
            f's_cmp_lt_u32 {s(sB)}, 96', f's_cselect_b32 {s(sHd)}, {s(sHd)}, {s(sT)}', f's_cselect_b32 {s(sR)}, {s(sR)}, {s(sT+1)}', f's_mov_b32 {s(sZ)}, {s(sB)}']
def srd(p,size): return [f's_mov_b32 {s(SRD)}, {s(p)}', f's_mov_b32 {s(SRD+1)}, {s(p+1)}', f's_mov_b32 {s(SRD+2)}, {size}']
def rnd(a,b,t): return [f'v_cvt_pk_bf16_f32 {v(t)}, {v(a)}, {v(b)}', f'v_lshlrev_b32 {v(a)}, 16, {v(t)}', f'v_and_b32 {v(b)}, {s(sMask)}, {v(t)}']
def unp(d,src): return [f'v_and_b32 {v(d+1)}, {s(sMask)}, {v(src)}', f'v_lshlrev_b32 {v(d)}, 16, {v(src)}']
def xg(op,a,t):
    return [f'v_mov_b32 {v(t)}, {v(a)}', f'v_permlane32_swap_b32 {v(a)}, {v(t)}', f'{op} {v(a)}, {v(a)}, {v(t)}',
            f'v_mov_b32 {v(t)}, {v(a)}', f'v_permlane16_swap_b32 {v(a)}, {v(t)}', f'{op} {v(a)}, {v(a)}, {v(t)}']
def xrow(a):
    return [f'v_add_f32_dpp {v(a)}, {v(a)}, {v(a)} row_ror:{k} row_mask:0xf bank_mask:0xf' for k in (1,2,4,8)]
_u=[0]
def poll(addr_v, soff, cmp_s, r, off=0):
    _u[0]+=1; k=_u[0]
    return [f'L_po{k}:', f'buffer_load_dword {v(r)}, {v(addr_v)}, {s(WS,4)}, {soff} offen offset:{off} sc1', f's_add_u32 {s(sSpin)}, {s(sSpin)}, 1',
            f's_cmp_gt_u32 {s(sSpin)}, {LIM}', f's_cbranch_scc1 L_pe{k}', 's_waitcnt vmcnt(0)', f'v_cmp_gt_u32 vcc, {cmp_s}, {v(r)}', f's_cbranch_vccnz L_po{k}', f'L_pe{k}:', 's_waitcnt vmcnt(0)']

def mod_phase(sync):
    p=[]; e=p.append
    W_=16; C_=48; AC=56; A0=4; A1=5; T=6
    e(f'v_lshrrev_b32 {v(A0)}, 2, {v(LN)}'); e(f's_lshl_b32 {s(sT)}, {s(sW)}, 4'); e(f'v_add_u32 {v(A0)}, {s(sT)}, {v(A0)}')
    e(f'v_lshlrev_b32 {v(A1)}, 1, {v(A0)}')
    e(f'v_mul_u32_u24 {v(A0)}, 6144, {v(A0)}'); e(f'v_and_b32 {v(T)}, 3, {v(LN)}'); e(f'v_lshl_add_u32 {v(A0)}, {v(T)}, 4, {v(A0)}')
    p+=srd(PWM,512*6144)
    for i in range(8): e(f'global_load_ushort {v(C_+i)}, {v(A1)}, {s(PC,2)} offset:{128*i}')
    e(f's_lshl_b32 {s(sT)}, {s(sZ)}, 6')
    for i in range(8):
        e(f'buffer_load_dwordx4 {v(W_+4*i,4)}, {v(A0)}, {s(SRD,4)}, {s(sT)} offen'); e(f's_add_u32 {s(sT)}, {s(sT)}, {64*6144}')
    for i in range(8): e(f'v_lshlrev_b32 {v(C_+i)}, 16, {v(C_+i)}')
    for i in range(8): e(f'v_mul_f32 {v(AC+i)}, {hex(f2u(-math.log2(math.e)))}, {v(C_+i)}')
    for i in range(8): e(f'v_exp_f32 {v(AC+i)}, {v(AC+i)}')
    for i in range(8): e(f'v_add_f32 {v(AC+i)}, 1.0, {v(AC+i)}')
    for i in range(8): e(f'v_rcp_f32 {v(AC+i)}, {v(AC+i)}')
    for i in range(8): e(f'v_mul_f32 {v(C_+i)}, {v(C_+i)}, {v(AC+i)}')
    for i in range(0,8,2): p+=rnd(C_+i,C_+i+1,T)
    for i in range(8):
        for d in range(4):
            p+=unp(8,W_+4*i+d)
            for k in range(2):
                e(f'v_mul_f32 {v(AC+2*d+k)}, {v(C_+i)}, {v(8+k)}' if i==0 else f'v_fmac_f32 {v(AC+2*d+k)}, {v(C_+i)}, {v(8+k)}')
    for k in (4,8):
        for i in range(8): e(f'v_add_f32_dpp {v(AC+i)}, {v(AC+i)}, {v(AC+i)} row_ror:{k} row_mask:0xf bank_mask:0xf')
    e(f's_lshl_b32 {s(sT)}, {s(sW)}, 9'); e(f'v_and_b32 {v(T)}, 3, {v(LN)}'); e(f'v_lshlrev_b32 {v(T)}, 5, {v(T)}')
    e(f'v_lshl_add_u32 {v(T)}, {v(Gv)}, 7, {v(T)}'); e(f'v_add_u32 {v(T)}, {s(sT)}, {v(T)}')
    e(f'ds_write_b128 {v(T)}, {v(AC,4)}'); e(f'ds_write_b128 {v(T)}, {v(AC+4,4)} offset:16')
    e('s_waitcnt lgkmcnt(0)'); e('s_barrier')
    e(f's_cmp_lg_u32 {s(sW)}, 0'); e('s_cbranch_scc1 L_mod_end')
    e(f'v_and_b32 {v(A0)}, 31, {v(LN)}'); e(f'v_lshrrev_b32 {v(A1)}, 5, {v(LN)}'); e(f'v_lshlrev_b32 {v(T)}, 2, {v(A0)}'); e(f'v_lshl_add_u32 {v(T)}, {v(A1)}, 10, {v(T)}')
    for i in range(8): e(f'ds_read_b32 {v(AC+i)}, {v(T)} offset:{128*i}')
    for i in range(1,8): e(f'v_add_f32 {v(AC)}, {v(AC)}, {v(AC+i)}')
    e(f'v_mov_b32 {v(T)}, {v(AC)}'); e(f'v_permlane32_swap_b32 {v(AC)}, {v(T)}'); e(f'v_add_f32 {v(AC)}, {v(AC)}, {v(T)}')
    e(f'v_cvt_pk_bf16_f32 {v(AC)}, {v(AC)}, {v(AC)}')
    e(f'v_lshlrev_b32 {v(A0)}, 1, {v(A0)}'); e(f's_lshl_b32 {s(sT)}, {s(sZ)}, 6'); e(f's_add_u32 {s(sT)}, {s(sT)}, {MOD_OFF}')
    e(f'buffer_store_short {v(AC)}, {v(A0)}, {s(WS,4)}, {s(sT)} offen sc1')
    if sync:
        e('s_waitcnt vmcnt(0)')
        e(f's_cmp_lt_u32 {s(sZ)}, 32'); e(f's_cselect_b32 {s(sT)}, 0, 4')
        e(f'v_mov_b32 {v(A0)}, {s(sT)}'); e(f'v_mov_b32 {v(A1)}, 1'); e('s_mov_b64 exec, 1')
        e(f'global_atomic_add {v(A0)}, {v(A1)}, {s(DBG,2)} offset:128'); e('s_mov_b64 exec, -1')
    p.append('L_mod_end:')
    e('s_barrier')
    return fix(p,'mod')

def dbg_wait(off,val,r):
    _u[0]+=1; k=_u[0]
    return [f'v_mov_b32 {v(r+1)}, {off}', f'L_po{k}:', f'global_load_dword {v(r)}, {v(r+1)}, {s(DBG,2)} sc1', f's_add_u32 {s(sSpin)}, {s(sSpin)}, 1',
            f's_cmp_gt_u32 {s(sSpin)}, {LIM}', f's_cbranch_scc1 L_pe{k}', 's_waitcnt vmcnt(0)', f'v_cmp_gt_u32 vcc, {val}, {v(r)}', f's_cbranch_vccnz L_po{k}', f'L_pe{k}:', 's_waitcnt vmcnt(0)']

def ln_phase(sync):
    p=[]; e=p.append
    XR=16; XF=32; MD=64; A0=4; A1=5; T=6; S=7; Q=8; R_=10; MU=14; sTile=20
    e(f's_sub_u32 {s(sTile)}, {s(sZ)}, 96')
    p+=srd(PX,2048*1024)
    e(f'v_lshlrev_b32 {v(A0)}, 10, {v(N)}'); e(f'v_lshl_add_u32 {v(A0)}, {v(Gv)}, 4, {v(A0)}')
    e(f's_lshl_b32 {s(sT)}, {s(sTile)}, 14'); e(f's_lshl_b32 {s(sT+1)}, {s(sW)}, 8'); e(f's_add_u32 {s(sT)}, {s(sT)}, {s(sT+1)}')
    for i in range(4): e(f'buffer_load_dwordx4 {v(XR+4*i,4)}, {v(A0)}, {s(SRD,4)}, {s(sT)} offen offset:{64*i}')
    e(f'v_lshlrev_b32 {v(A1)}, 4, {v(N)}'); e(f's_lshl_b32 {s(sT+2)}, {s(sW)}, 2'); e(f'v_add_u32 {v(A0)}, {s(sT+2)}, {v(A1)}')
    for i in range(16): p+=unp(XF+2*i,XR+i)
    e(f'v_add_f32 {v(S)}, {v(XF)}, {v(XF+1)}')
    for i in range(2,32): e(f'v_add_f32 {v(S)}, {v(S)}, {v(XF+i)}')
    def cross(off):
        o=xg('v_add_f32',S,T)+[f'ds_write_b32 {v(A0)}, {v(S)} offset:{off}','s_waitcnt lgkmcnt(0)','s_barrier',f'ds_read_b128 {v(R_,4)}, {v(A1)} offset:{off}',
           f'v_add_f32 {v(S)}, {v(R_)}, {v(R_+1)}', f'v_add_f32 {v(T)}, {v(R_+2)}, {v(R_+3)}', f'v_add_f32 {v(S)}, {v(S)}, {v(T)}', f'v_mul_f32 {v(S)}, {hex(f2u(1/512))}, {v(S)}']
        return o
    p+=cross(0)
    e(f'v_mov_b32 {v(MU)}, {v(S)}')
    for i in range(32):
        e(f'v_sub_f32 {v(T)}, {v(XF+i)}, {v(MU)}'); e(f'v_mul_f32 {v(S)}, {v(T)}, {v(T)}' if i==0 else f'v_fmac_f32 {v(S)}, {v(T)}, {v(T)}')
    p+=cross(256)
    p+=rnd(MU,S,T)
    e(f'v_add_f32 {v(S)}, {hex(f2u(1e-5))}, {v(S)}'); p+=rnd(S,Q,T)[:2]
    e(f'v_sqrt_f32 {v(S)}, {v(S)}'); p+=rnd(S,Q,T)[:2]
    e(f'v_rcp_f32 {v(S)}, {v(S)}')
    for i in range(0,32,2):
        e(f'v_sub_f32 {v(XF+i)}, {v(XF+i)}, {v(MU)}'); e(f'v_sub_f32 {v(XF+i+1)}, {v(XF+i+1)}, {v(MU)}'); p+=rnd(XF+i,XF+i+1,T)
        e(f'v_mul_f32 {v(XF+i)}, {v(XF+i)}, {v(S)}'); e(f'v_mul_f32 {v(XF+i+1)}, {v(XF+i+1)}, {v(S)}'); p+=rnd(XF+i,XF+i+1,T)
    p+=STAMP(17,96)
    if sync: p+=dbg_wait(128,32,R_)
    p+=STAMP(18,96)
    e(f'v_lshlrev_b32 {v(A0)}, 4, {v(Gv)}'); e(f's_add_u32 {s(sT+1)}, {s(sT+1)}, {MOD_OFF}')
    for i in range(4): e(f'buffer_load_dwordx4 {v(MD+4*i,4)}, {v(A0)}, {s(WS,4)}, {s(sT+1)} offen offset:{1024+64*i} sc1')
    for i in range(4): e(f'buffer_load_dwordx4 {v(MD+16+4*i,4)}, {v(A0)}, {s(WS,4)}, {s(sT+1)} offen offset:{64*i} sc1')
    e(f's_lshl_b32 {s(sT)}, {s(sTile)}, 14'); e(f's_lshl_b32 {s(sT+2)}, {s(sW)}, 12'); e(f's_add_u32 {s(sT)}, {s(sT)}, {s(sT+2)}'); e(f's_add_u32 {s(sT)}, {s(sT)}, {H_OFF}')
    for i in range(16):
        a_=XF+2*i
        p+=unp(Q,MD+i); e(f'v_add_f32 {v(Q)}, 1.0, {v(Q)}'); e(f'v_add_f32 {v(Q+1)}, 1.0, {v(Q+1)}'); p+=rnd(Q,Q+1,T)
        e(f'v_mul_f32 {v(a_)}, {v(a_)}, {v(Q)}'); e(f'v_mul_f32 {v(a_+1)}, {v(a_+1)}, {v(Q+1)}'); p+=rnd(a_,a_+1,T)
        p+=unp(Q,MD+16+i); e(f'v_add_f32 {v(a_)}, {v(a_)}, {v(Q)}'); e(f'v_add_f32 {v(a_+1)}, {v(a_+1)}, {v(Q+1)}')
        e(f'v_cvt_pk_bf16_f32 {v(XR+i)}, {v(a_)}, {v(a_+1)}')
        if i%4==3: e(f'buffer_store_dwordx4 {v(XR+i-3,4)}, {v(L16)}, {s(WS,4)}, {s(sT)} offen offset:{1024*(i//4)} sc1')
    p+=STAMP(19,96)
    if sync:
        p+=dbg_wait(136,1,R_)
        e('s_barrier')
        e(f's_lshl_b32 {s(sT)}, {s(sTile)}, 2'); e(f's_add_u32 {s(sT)}, {s(sT)}, {BF_OFF+BF_H}'); e(f'v_mov_b32 {v(T)}, 1')
        e(f's_cmp_lg_u32 {s(sW)}, 0'); e('s_cbranch_scc1 L_ln_end'); e('s_mov_b64 exec, 1')
        e(f'buffer_store_dword {v(T)}, off, {s(WS,4)}, {s(sT)} sc1'); e('s_mov_b64 exec, -1')
        p.append('L_ln_end:')
    return fix(p,'ln')

def flag_init():
    p=[]; e=p.append
    for i in range(4): e(f'v_mov_b32 {v(8+i)}, 0')
    e(f's_lshl_b32 {s(sT)}, {s(sW)}, 12'); e(f's_add_u32 {s(sT)}, {s(sT)}, {BF_OFF}')
    for i in range(4): e(f'buffer_store_dwordx4 {v(8,4)}, {v(L16)}, {s(WS,4)}, {s(sT)} offen offset:{1024*i} sc1')
    e('s_waitcnt vmcnt(0)'); e('s_barrier')
    e(f'v_mov_b32 v8, 136'); e('v_mov_b32 v9, 1'); e('s_mov_b64 exec, 1'); e(f'global_store_dword v8, v9, {s(DBG,2)} sc1'); e('s_mov_b64 exec, -1')
    return fix(p,'fi')

def wstream(blocks, sRing, pre_issue=None, split=False):
    p=[]; e=p.append; ng=len(blocks)//4; assert len(blocks)%4==0
    def issue(gi):
        for b in range(4):
            su,vo,so,_=blocks[4*gi+b]
            if su: p.extend(su)
            e(f's_add_u32 m0, {s(sRing)}, {((4*gi+b)%32)*1024}'); p.extend(so(sT+7))
            e(f'buffer_load_dwordx4 {v(vo)}, {s(SRD,4)}, {s(sT+7)} offen lds')
    for gi in range(min(8,ng)): issue(gi)
    head=list(p); p.clear()
    for gi in range(ng):
        e(f's_waitcnt vmcnt({4*(min(ng-1,gi+7)-gi)})')
        for b in range(4):
            for dst,tra,off in blocks[4*gi+b][3]: e(f'ds_read_b64_tr_b16 {dst}, {v(tra)} offset:{((4*gi+b)%32)*1024+off}')
        e('s_waitcnt lgkmcnt(0)')
        if gi+8<ng: issue(gi+8)
    return head,p

sSeg=23; sRing=24; sCnt=25
VO=4; TRA=5; TRB=6; FA=7
def wreg(m,t,ks):
    i=(m*2+t)*64+4*ks
    return ('a',i) if i<256 else ('v',128+i-256)
def p1_setup():
    p=[]; e=p.append
    e(f's_lshl_b32 {s(sRing)}, {s(sW)}, 15'); e(f's_add_u32 {s(sRing)}, {s(sRing)}, 32768')
    r=120; c_=121; g1=122
    e(f'v_lshrrev_b32 {v(r)}, 2, {v(N)}'); e(f'v_and_b32 {v(c_)}, 3, {v(N)}'); e(f'v_and_b32 {v(g1)}, 1, {v(Gv)}')
    A,B,C=124,125,126
    e(f'v_lshlrev_b32 {v(B)}, 8, {v(Gv)}'); e(f'v_lshl_add_u32 {v(B)}, {v(r)}, 6, {v(B)}'); e(f'v_lshl_add_u32 {v(B)}, {v(g1)}, 5, {v(B)}')
    e(f'v_lshl_add_u32 {v(B)}, {v(c_)}, 3, {v(B)}'); e(f'v_add_u32 {v(B)}, {s(sRing)}, {v(B)}'); e(f'v_xor_b32 {v(C)}, 32, {v(B)}')
    e(f'v_lshlrev_b32 {v(g1)}, 1, {v(g1)}'); e(f'v_xor_b32 {v(c_)}, {v(c_)}, {v(g1)}'); e(f'v_lshlrev_b32 {v(c_)}, 4, {v(c_)}')
    e(f'v_lshl_add_u32 {v(A)}, {v(Gv)}, 3, {v(r)}'); e(f'v_lshl_add_u32 {v(A)}, {v(A)}, 13, {v(c_)}')
    e(f's_lshl_b32 {s(sT)}, {s(sHd)}, 8'); e(f's_lshl_b32 {s(sT+1)}, {s(sW)}, 6'); e(f's_add_u32 {s(sT)}, {s(sT)}, {s(sT+1)}'); e(f'v_add_u32 {v(A)}, {s(sT)}, {v(A)}')
    blocks=[]
    for m,ptr in ((0,PWK),(1,PWV),(2,PWQ)):
        for ks in range(16):
            for jh in range(2):
                dst=[]
                for t in range(2):
                    pf,b=wreg(m,t,ks); dst.append((R(pf,b+2*jh,2), C if t else B, 0))
                blocks.append((srd(ptr,4<<20) if ks%2==0 and jh==0 else None, A, (lambda reg,o=(32*ks+4*jh)*8192: [f's_mov_b32 {s(reg)}, {o}']), dst))
    head,rest=wstream(blocks,sRing)
    return fix(p+head,'p1a'), fix(rest,'p1b',vm_init=32)

def p1_main(sync):
    p=[]; e=p.append
    AC=16; HF=64; OUT=96; sHsrc=26; sBuf=27; sKo=28; sVo=29; sQo=30; sFl=31; sNext=32
    acc=lambda m,t,mt: AC+((m*2+t)*2+mt)*4
    def hdma():
        o=[]
        o+=[f's_lshl_b32 {s(sHsrc)}, {s(sNext)}, 15', f's_lshl_b32 {s(sT)}, {s(sW)}, 13', f's_add_u32 {s(sHsrc)}, {s(sHsrc)}, {s(sT)}', f's_add_u32 {s(sHsrc)}, {s(sHsrc)}, {H_OFF}',
            f's_add_u32 m0, {s(sBuf)}, {s(sT)}', f's_add_u32 {s(sT+1)}, {s(sHsrc)}, 4096']
        o+=[f'buffer_load_dwordx4 {v(L16)}, {s(WS,4)}, {s(sHsrc)} offen offset:{1024*i} sc1 lds' for i in range(4)]
        o+=['s_add_u32 m0, m0, 4096','s_nop 0']+[f'buffer_load_dwordx4 {v(L16)}, {s(WS,4)}, {s(sT+1)} offen offset:{1024*i} sc1 lds' for i in range(4)]
        return o
    e('s_barrier')
    if sync:
        p+=dbg_wait(136,1,8)
        e(f'v_lshlrev_b32 {v(FA)}, 2, {v(LN)}'); e(f's_mov_b32 {s(sT)}, {BF_OFF+BF_H}')
        p+=poll(FA,s(sT),'1',8)+poll(FA,s(sT),'1',8,256)
    e(f's_mov_b32 {s(sSeg)}, {s(sR)}'); e(f's_mov_b32 {s(sNext)}, {s(sR)}'); e(f's_mov_b32 {s(sBuf)}, 0'); e(f's_mov_b32 {s(sCnt)}, 0')
    e(f's_lshl_b32 {s(sFl)}, {s(sHd)}, 7'); e(f's_lshl_b32 {s(sT)}, {s(sR)}, 2'); e(f's_add_u32 {s(sFl)}, {s(sFl)}, {s(sT)}'); e(f's_add_u32 {s(sFl)}, {s(sFl)}, {BF_OFF+BF_KV}')
    p+=hdma()
    e(f's_mov_b32 {s(sT+5)}, 0')
    p.append('L_p1_loop:')
    e(f's_cmp_ge_u32 {s(sSeg)}, 64'); e(f's_cselect_b32 {s(sT+4)}, 0, {s(sCnt)}'); e(f's_cmp_lt_u32 {s(sT+4)}, 2'); e('s_cbranch_scc0 L_p1_lag')
    e('s_waitcnt vmcnt(0)'); e(f's_mov_b32 {s(sT+5)}, {s(sCnt)}')
    p.append('L_p1_lag:')
    e('s_waitcnt vmcnt(6)'); e('s_barrier')
    if sync:
        e(f's_cmp_lg_u32 {s(sW)}, 0'); e('s_cbranch_scc1 L_p1_nf'); e(f'v_mov_b32 {v(FA)}, {s(sT+5)}'); e('s_mov_b64 exec, 1')
        e(f'buffer_store_dword {v(FA)}, off, {s(WS,4)}, {s(sFl)} sc1'); e('s_mov_b64 exec, -1'); p.append('L_p1_nf:')
    e(f's_mov_b32 {s(sT+5)}, {s(sCnt)}')
    if STAMP(0,0):
        e(f's_cmp_lg_u32 {s(sCnt)}, 0'); e('s_cbranch_scc1 L_p1_s0'); p+=STAMP(15,0); p.append('L_p1_s0:')
        e(f's_cmp_lg_u32 {s(sCnt)}, 1'); e('s_cbranch_scc1 L_p1_s1'); p+=STAMP(16,0); p.append('L_p1_s1:')
    e(f's_cmp_ge_u32 {s(sSeg)}, 64'); e('s_cbranch_scc1 L_p1_end')
    e(f'v_add_u32 {v(VO)}, {s(sBuf)}, {v(L16)}')
    e(f's_xor_b32 {s(sBuf)}, {s(sBuf)}, 32768'); e(f's_add_u32 {s(sNext)}, {s(sSeg)}, 7')
    e(f's_cmp_ge_u32 {s(sNext)}, 64'); e('s_cbranch_scc1 L_p1_nd')
    p+=hdma()
    p.append('L_p1_nd:')
    hr=lambda ks,mt: f'ds_read_b128 {v(HF+(ks%4)*8+4*mt,4)}, {v(VO)} offset:{(mt*16+ks)*1024}'
    for ks in range(2):
        for mt in range(2): e(hr(ks,mt))
    for ks in range(16):
        mm=[]
        for mt in range(2):
            hf=v(HF+(ks%4)*8+4*mt,4)
            for m in range(3):
                for t in range(2):
                    pf,b=wreg(m,t,ks); w_=R(pf,b,4); c_=v(acc(m,t,mt),4)
                    a_,b_=(hf,w_) if m==1 else (w_,hf)
                    mm.append(f'{MF32} {c_}, {a_}, {b_}, '+(c_ if ks else '0'))
        if ks+2<16:
            mm[1:1]=[hr(ks+2,0)]; mm[4:4]=[hr(ks+2,1)]
        p+=mm
    e(f's_lshl_b32 {s(sT)}, {s(sHd)}, 6'); e(f's_add_u32 {s(sT)}, {s(sT)}, {s(sSeg)}')
    e(f's_lshl_b32 {s(sT+1)}, {s(sW)}, 10'); e(f's_lshl_b32 {s(sKo)}, {s(sT)}, 14'); e(f's_add_u32 {s(sVo)}, {s(sKo)}, {KV_OFF+8192}')
    e(f's_add_u32 {s(sKo)}, {s(sKo)}, {s(sT+1)}'); e(f's_add_u32 {s(sKo)}, {s(sKo)}, {KV_OFF}')
    e(f's_lshl_b32 {s(sQo)}, {s(sT)}, 13'); e(f's_add_u32 {s(sQo)}, {s(sQo)}, {s(sT+1)}'); e(f's_add_u32 {s(sQo)}, {s(sQo)}, {Q_OFF}')
    e(f's_lshl_b32 {s(sT+1)}, {s(sW)}, 11'); e(f's_add_u32 {s(sVo)}, {s(sVo)}, {s(sT+1)}')
    k=0
    for m,so in ((0,sKo),(2,sQo)):
        for mt in range(2):
            for r in range(4): e(f'v_cvt_pk_bf16_f32 {v(OUT+4*k+r)}, {v(acc(m,0,mt)+r)}, {v(acc(m,1,mt)+r)}')
            e(f'buffer_store_dwordx4 {v(OUT+4*k,4)}, {v(L16)}, {s(WS,4)}, {s(so)} offen sc1'); k+=1
            if mt==0: e(f's_add_u32 {s(so)}, {s(so)}, 4096')
    for t in range(2):
        for mt in range(2):
            for j in range(2): e(f'v_cvt_pk_bf16_f32 {v(OUT+4*k+2*mt+j)}, {v(acc(1,t,mt)+2*j)}, {v(acc(1,t,mt)+2*j+1)}')
        e(f'buffer_store_dwordx4 {v(OUT+4*k,4)}, {v(L16)}, {s(WS,4)}, {s(sVo)} offen offset:{1024*t} sc1'); k+=1
    e(f's_add_u32 {s(sSeg)}, {s(sSeg)}, 7'); e(f's_add_u32 {s(sCnt)}, {s(sCnt)}, 1'); e('s_branch L_p1_loop')
    p.append('L_p1_end:')
    return fix(p,'p1')

sGrp=21; sJ=22; sGB=26; sEp=27; sFw=28; sFr=29; sKq=30; sCq=31; sM=32; sEh=33; sScale=34; sLg=35; sFast=36; sQf=37; sMf=38
WO=lambda ks: a(4*ks,4)
W1=lambda t,ks: a(128+64*t+4*ks,4)
W2=lambda ks: v(200+4*ks,4)
MODV=168
IDX=4; KW=5; FA2=6; HRD=7; HSR=8; PSA=9; MSK=10; ZR=12
def p2_setup(sync):
    p=[]; e=p.append
    e('s_barrier')
    e(f's_lshr_b32 {s(sGrp)}, {s(sB)}, 5'); e(f's_and_b32 {s(sJ)}, {s(sB)}, 31')
    e(f's_lshl_b32 {s(sGB)}, {s(sGrp)}, 20'); e(f's_add_u32 {s(sGB)}, {s(sGB)}, {G_OFF}')
    e(f's_lshr_b32 {s(sKq)}, {s(sJ)}, 3'); e(f's_and_b32 {s(sCq)}, {s(sJ)}, 7'); e(f's_and_b32 {s(sM)}, {s(sW)}, 1'); e(f's_lshr_b32 {s(sEh)}, {s(sW)}, 1')
    e(f's_lshl_b32 {s(sFr)}, {s(sGrp)}, 8'); e(f's_add_u32 {s(sFr)}, {s(sFr)}, {BF_OFF+BF_GB}'); e(f's_lshl_b32 {s(sT)}, {s(sJ)}, 2'); e(f's_add_u32 {s(sFw)}, {s(sFr)}, {s(sT)}')
    e(f's_mov_b32 {s(sEp)}, 0'); e(f's_mov_b32 {s(sScale)}, {hex(f2u(128**-0.5))}'); e(f's_mov_b32 {s(sLg)}, {hex(f2u(math.log2(math.e)))}')
    e(f's_lshl_b32 {s(sRing)}, {s(sW)}, 15'); e(f's_add_u32 {s(sRing)}, {s(sRing)}, 32768')
    e(f's_lshl_b32 {s(sMf)}, {s(sJ)}, 7'); e(f's_lshl_b32 {s(sT)}, {s(sGrp)}, 2'); e(f's_add_u32 {s(sQf)}, {s(sMf)}, {s(sT)}')
    e(f's_add_u32 {s(sQf)}, {s(sQf)}, {BF_OFF+BF_KV}'); e(f's_add_u32 {s(sMf)}, {s(sMf)}, {BF_OFF+BF_KVM}')
    e(f's_getreg_b32 {s(sFast)}, hwreg(HW_REG_XCC_ID)'); e(f's_and_b32 {s(sFast)}, {s(sFast)}, 7'); e(f's_add_u32 {s(sFast)}, {s(sFast)}, 1')
    e(f'v_mov_b32 v16, {s(sFast)}'); e('s_mov_b64 exec, 1'); e(f'buffer_store_dword v16, off, {s(WS,4)}, {s(sFw)} offset:{BF_XC-BF_GB} sc1'); e('s_mov_b64 exec, -1')
    t1,t2,r,c_,g1=16,17,18,19,20
    e(f'v_and_b32 {v(t1)}, 1, {v(LN)}'); e(f'v_mul_u32_u24 {v(t1)}, 0xaaaa, {v(t1)}'); e(f'v_add_u32 {v(IDX)}, 0x4444, {v(t1)}')
    e(f'v_bfe_u32 {v(t1)}, {v(N)}, 1, 2'); e(f'v_lshlrev_b32 {v(KW)}, 2, {v(t1)}'); e(f'v_and_b32 {v(t1)}, 1, {v(N)}'); e(f'v_lshl_add_u32 {v(KW)}, {v(t1)}, 4, {v(KW)}')
    e(f'v_lshl_add_u32 {v(KW)}, {v(Gv)}, 6, {v(KW)}'); e(f'v_lshrrev_b32 {v(t1)}, 3, {v(N)}'); e(f'v_lshl_add_u32 {v(KW)}, {v(t1)}, 8, {v(KW)}')
    e(f's_lshl_b32 {s(sT)}, {s(sW)}, 9'); e(f'v_add_u32 {v(KW)}, {s(sT)}, {v(KW)}')
    e(f'v_and_b32 {v(FA2)}, 31, {v(LN)}'); e(f'v_lshlrev_b32 {v(FA2)}, 2, {v(FA2)}')
    e(f'v_lshlrev_b32 {v(t1)}, 1, {v(t1)}'); e(f'v_xor_b32 {v(t1)}, {v(t1)}, {v(Gv)}'); e(f'v_lshlrev_b32 {v(t1)}, 4, {v(t1)}'); e(f'v_lshl_add_u32 {v(HRD)}, {v(N)}, 6, {v(t1)}')
    e(f's_lshl_b32 {s(sT)}, {s(sM)}, 14'); e(f'v_add_u32 {v(HRD)}, {s(sT)}, {v(HRD)}')
    e(f'v_lshrrev_b32 {v(t1)}, 5, {v(LN)}'); e(f'v_lshlrev_b32 {v(t1)}, 1, {v(t1)}'); e(f'v_and_b32 {v(c_)}, 3, {v(LN)}'); e(f'v_xor_b32 {v(t1)}, {v(t1)}, {v(c_)}')
    e(f'v_lshlrev_b32 {v(t1)}, 4, {v(t1)}'); e(f'v_lshrrev_b32 {v(t2)}, 2, {v(LN)}'); e(f'v_lshl_add_u32 {v(HSR)}, {v(t2)}, 10, {v(t1)}')
    e(f'v_lshlrev_b32 {v(PSA)}, 15, {v(Gv)}'); e(f'v_lshl_add_u32 {v(PSA)}, {v(N)}, 2, {v(PSA)}')
    e(f's_lshl_b32 {s(sT)}, {s(sJ)}, 8'); e(f's_lshl_b32 {s(sT+1)}, {s(sW)}, 6'); e(f's_add_u32 {s(sT)}, {s(sT)}, {s(sT+1)}'); e(f'v_add_u32 {v(PSA)}, {s(sT)}, {v(PSA)}')
    e(f'v_lshlrev_b32 {v(t1)}, 2, {v(Gv)}'); e(f'v_sub_u32 {v(MSK)}, {v(N)}, {v(t1)}')
    e(f'v_mov_b32 {v(ZR+1)}, 0')
    A64,B0,B1,A32,C0,C1,A32b=24,25,26,27,28,29,30
    e(f'v_lshrrev_b32 {v(r)}, 2, {v(N)}'); e(f'v_and_b32 {v(g1)}, 1, {v(Gv)}')
    e(f'v_lshlrev_b32 {v(B0)}, 8, {v(Gv)}'); e(f'v_lshl_add_u32 {v(B0)}, {v(c_)}, 3, {v(B0)}'); e(f'v_add_u32 {v(B0)}, {s(sRing)}, {v(B0)}')
    e(f'v_lshl_add_u32 {v(C0)}, {v(r)}, 5, {v(B0)}'); e(f'v_lshl_add_u32 {v(C0)}, {v(g1)}, 7, {v(C0)}'); e(f'v_xor_b32 {v(C1)}, 128, {v(C0)}')
    e(f'v_lshl_add_u32 {v(B0)}, {v(r)}, 6, {v(B0)}'); e(f'v_lshl_add_u32 {v(B0)}, {v(g1)}, 5, {v(B0)}'); e(f'v_xor_b32 {v(B1)}, 32, {v(B0)}')
    e(f'v_lshlrev_b32 {v(t1)}, 1, {v(g1)}'); e(f'v_xor_b32 {v(t1)}, {v(t1)}, {v(c_)}'); e(f'v_lshlrev_b32 {v(t1)}, 4, {v(t1)}')
    e(f'v_lshl_add_u32 {v(A64)}, {v(Gv)}, 3, {v(r)}'); e(f'v_mul_u32_u24 {v(A64)}, 3584, {v(A64)}'); e(f'v_add_u32 {v(A64)}, {v(A64)}, {v(t1)}')
    e(f's_min_u32 {s(sT)}, {s(sJ)}, 27'); e(f's_lshl_b32 {s(sT)}, {s(sT)}, 7'); e(f's_lshl_b32 {s(sT+1)}, {s(sEh)}, 6'); e(f's_add_u32 {s(sT)}, {s(sT)}, {s(sT+1)}'); e(f'v_add_u32 {v(A64)}, {s(sT)}, {v(A64)}')
    e(f'v_lshrrev_b32 {v(t1)}, 3, {v(N)}'); e(f'v_xor_b32 {v(t1)}, {v(t1)}, {v(g1)}'); e(f'v_bfe_u32 {v(t2)}, {v(N)}, 1, 2')
    e(f'v_lshl_add_u32 {v(t2)}, {v(t1)}, 4, {v(t2)}'); e(f'v_lshl_add_u32 {v(t2)}, {v(Gv)}, 2, {v(t2)}'); e(f'v_and_b32 {v(t1)}, 1, {v(N)}'); e(f'v_lshlrev_b32 {v(t1)}, 4, {v(t1)}')
    e(f'v_lshl_add_u32 {v(A32)}, {v(t2)}, 10, {v(t1)}')
    e(f's_lshl_b32 {s(sT)}, {s(sCq)}, 7'); e(f's_lshl_b32 {s(sT+1)}, {s(sW)}, 5'); e(f's_add_u32 {s(sT)}, {s(sT)}, {s(sT+1)}')
    e(f's_mul_i32 {s(sT+1)}, {s(sKq)}, {448*1024}'); e(f's_add_u32 {s(sT+1)}, {s(sT+1)}, {s(sT)}'); e(f'v_add_u32 {v(A32b)}, {s(sT+1)}, {v(A32)}')
    e(f's_lshl_b32 {s(sT+1)}, {s(sKq)}, 20'); e(f's_add_u32 {s(sT+1)}, {s(sT+1)}, {s(sT)}'); e(f'v_add_u32 {v(A32)}, {s(sT+1)}, {v(A32)}')
    blocks=[]
    mv=lambda o: (lambda reg: [f's_mov_b32 {s(reg)}, {o}'])
    for ks in range(32): blocks.append((srd(PWO,4<<20) if ks%4==0 else None, A32, mv(ks*32768), [(a(4*ks,2),C0,0),(a(4*ks+2,2),C1,0)]))
    for ks in range(16):
        for jh in range(2): blocks.append((srd(PW1,512*3584) if ks%2==0 and jh==0 else None, A64, mv((32*ks+4*jh)*3584), [(a(128+4*ks+2*jh,2),B0,0),(a(192+4*ks+2*jh,2),B1,0)]))
    for ks in range(16):
        kk=min(ks,13); blocks.append((srd(PW2,1792*1024) if ks%4==0 else None, A32b, mv(kk*32768), [(v(200+4*ks,2),C0,0),(v(202+4*ks,2),C1,0)] if ks<14 else []))
    head,rest=wstream(blocks,sRing)
    p+=head+rest
    if sync: p+=dbg_wait(132,64,16)
    e(f's_mov_b32 {s(sT)}, {MOD_OFF+2048}')
    for i in range(4): e(f'buffer_load_dwordx4 {v(16+4*i,4)}, {v(L16)}, {s(WS,4)}, {s(sT)} offen offset:{1024*i} sc1')
    for i in range(16): p+=unp(MODV+2*i,16+i)
    for i in range(16,24): e(f'v_add_f32 {v(MODV+i)}, 1.0, {v(MODV+i)}')
    for i in range(16,24,2): p+=rnd(MODV+i,MODV+i+1,16)
    p+=poll(FA2,s(sFr),'1',16,BF_XC-BF_GB)
    e(f'v_cmp_ne_u32 vcc, {s(sFast)}, v16')
    e(f's_mov_b32 {s(sSeg)}, {s(sGrp)}'); e(f's_mov_b32 {s(sCnt)}, 1')
    p+=srd(PX,2048*1024)
    p+=STAMP(7,0)
    e('s_barrier')
    e('s_cbranch_vccnz L_p2_S')
    return fix(p,'p2s')

def p2_loop(mode, sync):
    sc=' sc1' if mode=='S' else ''
    L=f'L_p2_{mode}'
    p=[L+':']; e=p.append
    nb=[0]
    def gbar():
        nb[0]+=1; k=f'{L}_g{nb[0]}'
        return ['s_waitcnt vmcnt(0)','s_barrier', f's_add_u32 {s(sEp)}, {s(sEp)}, 1', f's_cmp_lg_u32 {s(sW)}, 0', f's_cbranch_scc1 {k}',
                f'v_mov_b32 v14, {s(sEp)}','s_mov_b64 exec, 1', f'buffer_store_dword v14, off, {s(WS,4)}, {s(sFw)}{sc}','s_mov_b64 exec, -1']+poll(FA2,s(sFr),s(sEp),14)+STAMP(8+nb[0],0)+[k+':','s_barrier']
    QF=16; KF=32; VF=64; KV=80; S0=92; OA=104; T=120; MX=121; SUM=122; PXr=124; KM=128; XR=136; X1=140
    if sync: p+=poll(ZR+1,s(sQf),s(sCnt),14)
    e(f's_lshl_b32 {s(sT)}, {s(sSeg)}, 5'); e(f's_add_u32 {s(sT)}, {s(sT)}, {s(sJ)}')
    e(f's_lshl_b32 {s(sT+6)}, {s(sT)}, 10')
    e(f's_lshl_b32 {s(sT)}, {s(sJ)}, 6'); e(f's_add_u32 {s(sT)}, {s(sT)}, {s(sSeg)}')
    e(f's_lshl_b32 {s(sT+1)}, {s(sT)}, 13'); e(f's_lshl_b32 {s(sT+2)}, {s(sM)}, 12'); e(f's_add_u32 {s(sT+1)}, {s(sT+1)}, {s(sT+2)}'); e(f's_add_u32 {s(sT+1)}, {s(sT+1)}, {Q_OFF}')
    e(f's_lshl_b32 {s(sT+2)}, {s(sT)}, 14'); e(f's_add_u32 {s(sT+2)}, {s(sT+2)}, {KV_OFF}'); e(f's_add_u32 {s(sT+3)}, {s(sT+2)}, 4096')
    e(f's_lshl_b32 {s(sT+4)}, {s(sEh)}, 12'); e(f's_add_u32 {s(sT+4)}, {s(sT+4)}, {s(sT+2)}'); e(f's_add_u32 {s(sT+4)}, {s(sT+4)}, 8192')
    e(f's_lshl_b32 {s(sT+5)}, {s(sT)}, 12'); e(f's_add_u32 {s(sT+5)}, {s(sT+5)}, {KVM_OFF}')
    for i in range(4): e(f'buffer_load_dwordx4 {v(QF+4*i,4)}, {v(L16)}, {s(WS,4)}, {s(sT+1)} offen offset:{1024*i} sc1')
    for i in range(8): e(f'buffer_load_dwordx4 {v(KF+4*i,4)}, {v(L16)}, {s(WS,4)}, {s(sT+2+(i>>2))} offen offset:{1024*(i&3)} sc1')
    for i in range(4): e(f'buffer_load_dwordx4 {v(VF+4*i,4)}, {v(L16)}, {s(WS,4)}, {s(sT+4)} offen offset:{1024*i} sc1')
    e(f'buffer_load_dwordx4 {v(XR,4)}, {v(L16)}, {s(SRD,4)}, {s(sT+6)} offen')
    for m in range(2):
        for ks in range(4): e(f'{MF32} {v(S0+4*m,4)}, {v(KF+16*m+4*ks,4)}, {v(QF+4*ks,4)}, '+(v(S0+4*m,4) if ks else '0'))
    e(f'v_mov_b64 {v(S0+8,2)}, 0'); e(f'v_mov_b64 {v(S0+10,2)}, 0')
    def sround(a_): return rnd(a_,a_+1,T)+[f'v_mul_f32 {v(a_)}, {s(sScale)}, {v(a_)}', f'v_mul_f32 {v(a_+1)}, {s(sScale)}, {v(a_+1)}']+rnd(a_,a_+1,T)
    for i in range(0,8,2): p+=sround(S0+i)
    e(f's_lshl_b32 {s(sT+1)}, {s(sM)}, 4'); e(f'v_add_u32 {v(T)}, {s(sT+1)}, {v(MSK)}'); e(f'v_mov_b32 {v(SUM)}, {hex(f2u(-999292928.0))}')
    for i in range(8):
        e(f'v_cmp_le_i32 vcc, {16*(i>>2)+(i&3)}, {v(T)}'); e(f'v_cndmask_b32 {v(S0+i)}, {v(SUM)}, {v(S0+i)}, vcc')
    e(f'v_max3_f32 {v(MX)}, {v(S0)}, {v(S0+1)}, {v(S0+2)}'); e(f'v_max3_f32 {v(MX)}, {v(MX)}, {v(S0+3)}, {v(S0+4)}'); e(f'v_max3_f32 {v(MX)}, {v(MX)}, {v(S0+5)}, {v(S0+6)}'); e(f'v_max_f32 {v(MX)}, {v(MX)}, {v(S0+7)}')
    if sync:
        e(f's_add_u32 {s(sT+1)}, {s(sSeg)}, 1'); p+=poll(ZR+1,s(sMf),s(sT+1),14)+STAMP(8,0)
    e(f's_lshl_b32 {s(sT+1)}, {s(sEh)}, 11'); e(f's_add_u32 {s(sT+1)}, {s(sT+1)}, {s(sT+5)}'); e(f's_lshl_b32 {s(sT+2)}, {s(sW)}, 10'); e(f's_add_u32 {s(sT+2)}, {s(sT+2)}, {s(sT+5)}')
    e(f'buffer_load_dwordx4 {v(KV+8,4)}, {v(L16)}, {s(WS,4)}, {s(sT+2)} offen sc1')
    for i in range(2): e(f'buffer_load_dwordx4 {v(KV+4*i,4)}, {v(L16)}, {s(WS,4)}, {s(sT+1)} offen offset:{1024*i} sc1')
    e(f'ds_write2_b32 {v(KW)}, {v(KV+9)}, {v(KV+11)} offset0:0 offset1:8'); e('s_waitcnt lgkmcnt(0)'); e('s_barrier')
    for k in range(2): e(f'ds_read_b128 {v(KM+4*k,4)}, {v(L16)} offset:{1024*k}')
    for k in range(2): e(f'{SMF} {v(S0+8,4)}, {v(KM+4*k,4)}, {v(QF+8*k,8)}, {v(IDX)}')
    e(f'v_add_f32 {v(S0+8)}, {v(S0+8)}, {v(S0+9)}'); e(f'v_add_f32 {v(S0+9)}, {v(S0+10)}, {v(S0+11)}')
    p+=sround(S0+8)
    e(f'v_max3_f32 {v(MX)}, {v(MX)}, {v(S0+8)}, {v(S0+9)}'); p+=xg('v_max_f32',MX,T)
    for i in range(10): e(f'v_sub_f32 {v(S0+i)}, {v(S0+i)}, {v(MX)}')
    for i in range(10): e(f'v_mul_f32 {v(S0+i)}, {s(sLg)}, {v(S0+i)}')
    for i in range(10): e(f'v_exp_f32 {v(S0+i)}, {v(S0+i)}')
    e(f'v_add_f32 {v(SUM)}, {v(S0)}, {v(S0+1)}')
    for i in range(2,10): e(f'v_add_f32 {v(SUM)}, {v(SUM)}, {v(S0+i)}')
    p+=xg('v_add_f32',SUM,T); e(f'v_rcp_f32 {v(SUM)}, {v(SUM)}')
    for i in range(10): e(f'v_mul_f32 {v(S0+i)}, {v(SUM)}, {v(S0+i)}')
    for i in range(4): e(f'v_cvt_pk_bf16_f32 {v(PXr+i)}, {v(S0+2*i)}, {v(S0+2*i+1)}')
    e(f'v_cvt_pk_bf16_f32 {v(ZR)}, {v(S0+8)}, {v(S0+9)}')
    for i in range(4): e(f'{MF32} {v(OA+4*i,4)}, {v(VF+4*i,4)}, {v(PXr,4)}, 0')
    for i in range(4): e(f'{MF16} {v(OA+4*i,4)}, {v(KV+2*i,2)}, {v(ZR,2)}, {v(OA+4*i,4)}')
    e(f's_lshl_b32 {s(sT+1)}, {s(sJ)}, 13'); e(f's_lshl_b32 {s(sT+2)}, {s(sEh)}, 12'); e(f's_add_u32 {s(sT+1)}, {s(sT+1)}, {s(sT+2)}'); e(f's_lshl_b32 {s(sT+2)}, {s(sM)}, 10')
    e(f's_add_u32 {s(sT+1)}, {s(sT+1)}, {s(sT+2)}'); e(f's_add_u32 {s(sT+1)}, {s(sT+1)}, {s(sGB)}')
    for k in range(2):
        for i in range(4): e(f'v_cvt_pk_bf16_f32 {v(QF+4*k+i)}, {v(OA+8*k+2*i)}, {v(OA+8*k+2*i+1)}')
        e(f'buffer_store_dwordx4 {v(QF+4*k,4)}, {v(L16)}, {s(WS,4)}, {s(sT+1)} offen offset:{G_O+2048*k}{sc}')
    p+=gbar()
    def gemm_part(src_lines, nks, wf, dst_off):
        o=list(src_lines)
        nfr=2*nks; per=nfr//4; nch=(per+3)//4
        sizes=[min(4,per-4*c) for c in range(nch)]
        base=0; starts=[]
        for c,sz in enumerate(sizes):
            starts.append(base)
            o+=[f's_mul_i32 {s(sT+2)}, {s(sW)}, {sz*1024}', f's_add_u32 {s(sT+2)}, {s(sT+2)}, {base*1024}', f's_add_u32 m0, {s(sT+2)}, 4096', f's_add_u32 {s(sT+2)}, {s(sT+2)}, {s(sT+1)}']
            o+=[f'buffer_load_dwordx4 {v(L16)}, {s(WS,4)}, {s(sT+2)} offen offset:{1024*i} sc1 lds' for i in range(sz)]
            base+=4*sz
        o+=[f'v_add_u32 {v(T)}, 4096, {v(L16)}']
        left=per
        for c,sz in enumerate(sizes):
            left-=sz
            o+=[f's_waitcnt vmcnt({left})','s_barrier']
            fr=list(range(starts[c],starts[c]+4*sz))
            rd=lambda f: f'ds_read_b128 {v(QF+4*(f%8),4)}, {v(T)} offset:{1024*f}'
            o+=[rd(f) for f in fr[:4]]
            for i,f in enumerate(fr):
                ac=v(OA+4*(f&1),4)
                o.append(f'{MF32} {ac}, {v(QF+4*(f%8),4)}, {wf(f>>1)}, '+(ac if f>1 else '0'))
                if i+4<len(fr): o.append(rd(fr[i+4]))
        for mt in range(2):
            for r in range(4):
                o+=[f's_add_u32 {s(sT+2)}, {s(sGB)}, {dst_off+(16*mt+r)*8192}', f'buffer_store_dword {v(OA+4*mt+r)}, {v(PSA)}, {s(WS,4)}, {s(sT+2)} offen{sc}']
        return o
    p+=gemm_part([f's_lshl_b32 {s(sT+1)}, {s(sKq)}, 16', f's_add_u32 {s(sT+1)}, {s(sT+1)}, {s(sGB)}'],32,WO,G_P1)
    p+=gbar()
    def rowsum(off):
        o=[f's_lshl_b32 {s(sT+1)}, {s(sJ)}, 13', f's_add_u32 {s(sT+1)}, {s(sT+1)}, {s(sGB)}', f's_add_u32 {s(sT+1)}, {s(sT+1)}, {off}', f's_add_u32 {s(sT+2)}, {s(sT+1)}, 4096', f'v_lshlrev_b32 {v(T)}, 1, {v(L16)}']
        for k in range(4):
            for hf in range(2): o.append(f'buffer_load_dwordx4 {v(QF+8*k+4*hf,4)}, {v(T)}, {s(WS,4)}, {s(sT+1+(k>>1))} offen offset:{2048*(k&1)+16*hf} sc1')
        for k in range(1,4):
            for i in range(8): o.append(f'v_add_f32 {v(QF+i)}, {v(QF+i)}, {v(QF+8*k+i)}')
        for i in range(0,8,2): o+=rnd(QF+i,QF+i+1,T)
        return o
    e(f's_cmp_lg_u32 {s(sW)}, 0'); e(f's_cbranch_scc1 {L}_n1')
    p+=rowsum(G_P1)
    for i in range(4): p+=unp(X1+2*i,XR+i)
    for i in range(8): e(f'v_mul_f32 {v(QF+i)}, {v(QF+i)}, {v(MODV+i)}')
    for i in range(0,8,2): p+=rnd(QF+i,QF+i+1,T)
    for i in range(8): e(f'v_add_f32 {v(X1+i)}, {v(X1+i)}, {v(QF+i)}')
    for i in range(0,8,2): p+=rnd(X1+i,X1+i+1,T)
    e(f'v_add_f32 {v(MX)}, {v(X1)}, {v(X1+1)}')
    for i in range(2,8): e(f'v_add_f32 {v(MX)}, {v(MX)}, {v(X1+i)}')
    p+=xrow(MX)+xg('v_add_f32',MX,T); e(f'v_mul_f32 {v(MX)}, {hex(f2u(1/512))}, {v(MX)}')
    for i in range(8):
        e(f'v_sub_f32 {v(T)}, {v(X1+i)}, {v(MX)}'); e(f'v_mul_f32 {v(SUM)}, {v(T)}, {v(T)}' if i==0 else f'v_fmac_f32 {v(SUM)}, {v(T)}, {v(T)}')
    p+=xrow(SUM)+xg('v_add_f32',SUM,T); e(f'v_mul_f32 {v(SUM)}, {hex(f2u(1/512))}, {v(SUM)}')
    p+=rnd(MX,SUM,T)
    e(f'v_add_f32 {v(SUM)}, {hex(f2u(1e-5))}, {v(SUM)}'); p+=rnd(SUM,SUM,T)[:2]
    e(f'v_sqrt_f32 {v(SUM)}, {v(SUM)}'); p+=rnd(SUM,SUM,T)[:2]
    e(f'v_rcp_f32 {v(SUM)}, {v(SUM)}')
    for i in range(8): e(f'v_sub_f32 {v(QF+i)}, {v(X1+i)}, {v(MX)}')
    for i in range(0,8,2): p+=rnd(QF+i,QF+i+1,T)
    for i in range(8): e(f'v_mul_f32 {v(QF+i)}, {v(QF+i)}, {v(SUM)}')
    for i in range(0,8,2): p+=rnd(QF+i,QF+i+1,T)
    for i in range(8): e(f'v_mul_f32 {v(QF+i)}, {v(QF+i)}, {v(MODV+16+i)}')
    for i in range(0,8,2): p+=rnd(QF+i,QF+i+1,T)
    for i in range(8): e(f'v_add_f32 {v(QF+i)}, {v(QF+i)}, {v(MODV+8+i)}')
    for i in range(4): e(f'v_cvt_pk_bf16_f32 {v(QF+8+i)}, {v(QF+2*i)}, {v(QF+2*i+1)}')
    e(f's_lshl_b32 {s(sT+1)}, {s(sJ)}, 10'); e(f's_add_u32 {s(sT+1)}, {s(sT+1)}, {s(sGB)}'); e(f's_add_u32 {s(sT+1)}, {s(sT+1)}, {G_H2}')
    e(f'buffer_store_dwordx4 {v(QF+8,4)}, {v(L16)}, {s(WS,4)}, {s(sT+1)} offen{sc}')
    p.append(f'{L}_n1:')
    p+=gbar()
    e(f's_cmp_ge_u32 {s(sJ)}, 28'); e(f's_cbranch_scc1 {L}_n2')
    e(f's_lshl_b32 {s(sT+1)}, {s(sEh)}, 14'); e(f's_lshl_b32 {s(sT+2)}, {s(sM)}, 9'); e(f's_add_u32 {s(sT+1)}, {s(sT+1)}, {s(sT+2)}'); e(f's_add_u32 {s(sT+1)}, {s(sT+1)}, {s(sGB)}'); e(f's_add_u32 {s(sT+1)}, {s(sT+1)}, {G_H2}')
    e(f's_lshl_b32 {s(sT+2)}, {s(sEh)}, 14'); e(f's_lshl_b32 {s(sT+3)}, {s(sM)}, 13'); e(f's_add_u32 {s(sT+2)}, {s(sT+2)}, {s(sT+3)}')
    for i in range(8):
        e(f's_add_u32 m0, {s(sT+2)}, {4096+1024*i}'); e(f's_add_u32 {s(sT+3)}, {s(sT+1)}, {64*i}')
        e(f'buffer_load_dwordx4 {v(HSR)}, {s(WS,4)}, {s(sT+3)} offen sc1 lds')
    e('s_waitcnt vmcnt(0)'); e('s_barrier')
    rd=lambda ks: f'ds_read_b128 {v(QF+4*(ks%8),4)}, {v(HRD)} offset:{4096+1024*ks}'
    for ks in range(4): e(rd(ks))
    for ks in range(16):
        for t in range(2): e(f'{MF32} {v(OA+4*t,4)}, {W1(t,ks)}, {v(QF+4*(ks%8),4)}, '+(v(OA+4*t,4) if ks else '0'))
        if ks+4<16: e(rd(ks+4))
    e(f's_lshl_b32 {s(sT+1)}, {s(sJ)}, 12'); e(f's_lshl_b32 {s(sT+2)}, {s(sEh)}, 11'); e(f's_add_u32 {s(sT+1)}, {s(sT+1)}, {s(sT+2)}'); e(f's_lshl_b32 {s(sT+2)}, {s(sM)}, 10')
    e(f's_add_u32 {s(sT+1)}, {s(sT+1)}, {s(sT+2)}'); e(f's_add_u32 {s(sT+1)}, {s(sT+1)}, {s(sGB)}'); e(f's_add_u32 {s(sT+1)}, {s(sT+1)}, {G_F1}')
    for i in range(8): e(f'v_max_f32 {v(OA+i)}, 0, {v(OA+i)}')
    for i in range(4): e(f'v_cvt_pk_bf16_f32 {v(PXr+i)}, {v(OA+2*i)}, {v(OA+2*i+1)}')
    e(f'buffer_store_dwordx4 {v(PXr,4)}, {v(L16)}, {s(WS,4)}, {s(sT+1)} offen{sc}')
    p.append(f'{L}_n2:')
    p+=gbar()
    p+=gemm_part([f's_mul_i32 {s(sT+1)}, {s(sKq)}, 28672', f's_add_u32 {s(sT+1)}, {s(sT+1)}, {s(sGB)}', f's_add_u32 {s(sT+1)}, {s(sT+1)}, {G_F1}'],14,W2,G_P2)
    p+=gbar()
    e(f's_cmp_lg_u32 {s(sW)}, 0'); e(f's_cbranch_scc1 {L}_n3')
    p+=rowsum(G_P2)
    for i in range(8): e(f'v_mul_f32 {v(QF+i)}, {v(QF+i)}, {v(MODV+24+i)}')
    for i in range(0,8,2): p+=rnd(QF+i,QF+i+1,T)
    for i in range(8): e(f'v_add_f32 {v(QF+i)}, {v(QF+i)}, {v(X1+i)}')
    for i in range(4): e(f'v_cvt_pk_bf16_f32 {v(QF+8+i)}, {v(QF+2*i)}, {v(QF+2*i+1)}')
    e(f'v_add_u32 {v(T)}, {s(sT+6)}, {v(L16)}')
    e(f'global_store_dwordx4 {v(T)}, {v(QF+8,4)}, {s(POUT,2)}')
    e('s_nop 1')
    p+=STAMP(14,0)
    p.append(f'{L}_n3:')
    e(f's_add_u32 {s(sSeg)}, {s(sSeg)}, 7'); e(f's_add_u32 {s(sCnt)}, {s(sCnt)}, 1'); e(f's_cmp_lt_u32 {s(sSeg)}, 64'); e(f's_cbranch_scc1 {L}')
    e('s_endpgm')
    r=fix(p,'p2'+mode); check(r+r,'p2loop')
    return r
```

```python
from asmlib import *
from layout import *
import math, struct, re

T0=0; IDX=1; L16=2; LW=3; QW=4; QR=5; KW=6; OW=7; ORD=8; PST=9; MPUB=10; H2A=10; FLG=11
ONES=12; PM=16; KVQ=20; QA=24; KA=32; VA=40; M=48; X=80; STG=112; RES=128
L_MEM=0; L_Q=8192; L_K=10240; L_O=12288; L_SEL=14336; L_KX=16384; L_WV=24576; WREG=34816
WS=4; WSRD=8; DBG=12; sH=14; sW=15; sStep=16; sC=17; sKsrc=18; sVsrc=19; sKvm=20
sPst=21; sPin=23; sPrst=25; sPrstB=26; sPslot=27; sMemIn1=28; sSpinU=29; sPinB=30
sMemIn0=31; sMemB=32; sMemPub=33; sMemRst=34; sSlot=35; sSpin=36; sKdst=37; sKvF=38; sVdst=39; sKvmF=40; sReg=41
sT=42
sRo1=56; sRo2=60; sEx=50; sPtr=52; sRow=64; sTime=70; sOdd=88; sOne=92; sC2=94; sSpinF=96; sFlag=98; sFlagB=99; sWoff=100
LIM='0x80000'
SMF='v_smfmac_f32_16x16x64_bf16'; MF32='v_mfma_f32_16x16x32_bf16'; MF16='v_mfma_f32_16x16x16_bf16'
OPT=dict(sync=0, d1=20, sl=5, nb=6, pp=0, rep=2, hotkv=0, tr=0, solo=0, cut=99, drop=0, cutm=-1, show=0, nt=1, rs=0, b0=1, ro1=0, ro2=0, rp=0, warm=1, sp=0, np=2, dp=0, ps=24, sw=5)

lds_groups=[('q',0),('q',1),('q',2),('q',3),('o',0,3),('o',1,1),('o',1,2),('o',1,3)]
all_groups=[(m,c) for m in 'qkv' for c in range(8)]+[('o',tp,k) for tp in range(2) for k in range(4)]
res_groups=[g for g in all_groups if g not in lds_groups]
gloc={}
for i,g in enumerate(res_groups): gloc[g]=('a',16*i) if i<16 else ('v',RES+16*(i-16))
stream={('q',0,0):M+16,('q',0,1):M+24,('q',1,0):KA,('q',1,1):VA,('q',2,0):X,('q',2,1):X+8,('q',3,0):X+16,('q',3,1):X+24,
        ('o',0,3,0):X+8,('o',0,3,1):X+24,('o',1,1,0):X,('o',1,2,0):X+16,('o',1,3,0):KA,('o',1,1,1):VA,('o',1,2,1):QA,('o',1,3,1):X+8}
def ureg(g,t):
    if g in gloc: return gloc[g][0], gloc[g][1]+8*t
    return 'v', stream[g+(t,)]
def unit(g,t): p,b=ureg(g,t); return R(p,b,8)
def stream_reads(g,t):
    off=lds_groups.index(g)*4096+t*2048; b=stream[g+(t,)]
    return [f'ds_read_b128 {v(b,4)}, {v(LW)} offset:{off}', f'ds_read_b128 {v(b+4,4)}, {v(LW)} offset:{off+1024}']
def zero(b,n,val='0'): return [f'v_mov_b64 {v(b+i,2)}, {val}' for i in range(0,n,2)]
def kv_addr(): return [f'v_lshrrev_b32 {v(T0)}, 2, {v(L16)}', f'v_and_b32 {v(T0)}, 28, {v(T0)}', f'v_min_u32 {v(T0)}, 24, {v(T0)}']
def kv_check(L):
    return kv_addr()+[f's_add_u32 {s(sT+3)}, {s(sStep)}, 1', f's_min_u32 {s(sT+3)}, {s(sT+3)}, 63', f's_lshl_b32 {s(sT+3)}, {s(sT+3)}, 2', f'{L}c:',
            f'v_mad_u32_u24 {v(FLG)}, {v(FLG)}, 28, {v(T0)}', f'v_cmp_ge_u32 vcc, {s(sT+3)}, {v(FLG)}', f's_cbranch_vccnz {L}w', f'{L}x:']
def kv_wait(L):
    return [f'{L}w:', f's_add_u32 {s(sSpinF)}, {s(sSpinF)}, 1', f's_cmp_gt_u32 {s(sSpinF)}, {LIM}', f's_cbranch_scc1 {L}x',
            f'buffer_load_dword {v(FLG)}, {v(T0)}, {s(WS,4)}, {s(sKvF)} offen sc1', 's_waitcnt vmcnt(0)', f's_branch {L}c']
def h2_addr(d,t):
    return [f'v_and_b32 {v(d)}, 0x230, {v(L16)}', f'v_and_b32 {v(t)}, 0xc0, {v(L16)}', f'v_lshl_add_u32 {v(d)}, {v(t)}, 1, {v(d)}',
            f'v_and_b32 {v(t)}, 0x100, {v(L16)}', f'v_lshrrev_b32 {v(t)}, 2, {v(t)}', f'v_or_b32 {v(d)}, {v(d)}, {v(t)}']

def prologue(timing):
    p=[]; e=p.append
    VQ=[]
    def vm(line,tag=None): e(line); VQ.append(tag)
    def wait(tag):
        i=max(k for k,t in enumerate(VQ) if t==tag); e(f's_waitcnt vmcnt({len(VQ)-1-i})')
    e(f's_load_dwordx2 {s(WSRD,2)}, s[0:1], 40')
    e(f's_load_dwordx4 {s(sPtr,4)}, s[0:1], 8')
    e(f's_load_dwordx4 {s(sPtr+4,4)}, s[0:1], 24')
    e(f's_load_dwordx2 {s(DBG,2)}, s[0:1], 104')
    e(f's_load_dwordx2 {s(WS,2)}, s[0:1], 112')
    if timing: e(f's_memrealtime {s(sTime,2)}')
    ln,n,g,t1,t2,g1,VOO,VA0,VA1,TO0,TO1,TA0,TA1,TB0,TB1,r=[STG+i for i in range(16)]
    e(f'v_lshrrev_b32 {v(t1)}, 6, v0'); e(f'v_and_b32 {v(ln)}, 63, v0'); e(f'v_readfirstlane_b32 {s(sW)}, {v(t1)}')
    e(f's_mov_b32 {s(WSRD+2)}, {4<<20}'); e(f's_mov_b32 {s(WSRD+3)}, 0x20000')
    e(f'v_and_b32 {v(n)}, 15, {v(ln)}'); e(f'v_lshrrev_b32 {v(g)}, 4, {v(ln)}'); e(f'v_and_b32 {v(g1)}, 1, {v(g)}')
    e(f's_mul_i32 {s(sReg)}, {s(sW)}, {WREG}'); e(f's_add_u32 {s(sReg)}, {s(sReg)}, {L_WV}')
    e(f'v_lshrrev_b32 {v(t1)}, 3, {v(n)}'); e(f'v_lshl_add_u32 {v(t1)}, {v(g1)}, 4, {v(t1)}'); e(f'v_lshrrev_b32 {v(t2)}, 1, {v(g)}'); e(f'v_lshl_add_u32 {v(t1)}, {v(t2)}, 2, {v(t1)}')
    e(f'v_and_b32 {v(t2)}, 7, {v(n)}'); e(f'v_lshlrev_b32 {v(t2)}, 4, {v(t2)}'); e(f'v_lshlrev_b32 {v(VOO)}, 6, {v(g1)}'); e(f'v_xor_b32 {v(t2)}, {v(t2)}, {v(VOO)}')
    e(f'v_lshl_add_u32 {v(VOO)}, {v(t1)}, 10, {v(t2)}')
    e(f's_lshl_b32 {s(sT)}, {s(sH)}, 17'); e(f's_lshl_b32 {s(sT+1)}, {s(sW)}, 8'); e(f's_add_u32 {s(sT)}, {s(sT)}, {s(sT+1)}')
    for k in range(4):
        e(f's_xor_b32 {s(sRow+k)}, {s(sW)}, {k}'); e(f's_lshl_b32 {s(sRow+k)}, {s(sRow+k)}, 15'); e(f's_add_u32 {s(sRow+k)}, {s(sRow+k)}, {s(sT)}')
    e('s_waitcnt lgkmcnt(0)')
    if timing: e('s_memrealtime s[80:81] ;stamp')
    og=[g_ for g_ in res_groups if g_[0]=='o']+lds_groups[4:]
    for gi,g_ in enumerate(og):
        for b in range(4):
            e(f's_add_u32 m0, {s(sReg)}, {(4*gi+b)*1024}'); e(f's_add_u32 {s(sT+7)}, {s(sRow+g_[2])}, {(8*(b>>1)+2*(b&1))*1024+g_[1]*128}')
            vm(f'buffer_load_dwordx4 {v(VOO)}, {s(WSRD,4)}, {s(sT+7)} offen'+(' nt' if OPT['nt'] else '')+' lds',g_)
        if gi==1: mark=len(p)
    if timing: e('s_memrealtime s[82:83] ;stamp')
    tail=p[mark:]; del p[mark:]
    e(f's_mov_b32 {s(WS+2)}, {WS_BYTES}'); e(f's_mov_b32 {s(WS+3)}, 0x20000')
    e(f'v_lshlrev_b32 {v(L16)}, 4, {v(ln)}'); e(f'v_add_u32 {v(LW)}, {s(sReg)}, {v(L16)}')
    e(f's_add_u32 {s(sVdst)}, {s(sReg)}, 32768')
    e(f's_lshl_b32 {s(sT+1)}, {s(sW)}, 11'); e(f's_add_u32 {s(sKdst)}, {s(sT+1)}, {L_KX}')
    e(f's_lshl_b32 {s(sWoff)}, {s(sW)}, 10')
    e(f'v_and_b32 {v(t1)}, 1, {v(ln)}'); e(f'v_mul_u32_u24 {v(t1)}, 0xaaaa, {v(t1)}'); e(f'v_add_u32 {v(IDX)}, 0x4444, {v(t1)}')
    e(f's_lshl_b32 {s(sT+2)}, {s(sW)}, 9')
    e(f'v_lshrrev_b32 {v(r)}, 2, {v(n)}'); e(f'v_lshlrev_b32 {v(QW)}, 7, {v(r)}'); e(f'v_and_b32 {v(t1)}, 1, {v(r)}'); e(f'v_lshlrev_b32 {v(t1)}, 6, {v(t1)}')
    e(f'v_lshlrev_b32 {v(t2)}, 5, {v(g)}'); e(f'v_xor_b32 {v(t1)}, {v(t1)}, {v(t2)}'); e(f'v_add_u32 {v(QW)}, {v(QW)}, {v(t1)}')
    e(f'v_and_b32 {v(t1)}, 3, {v(n)}'); e(f'v_lshl_add_u32 {v(QW)}, {v(t1)}, 2, {v(QW)}'); e(f'v_add_u32 {v(QW)}, {s(sT+2)}, {v(QW)}'); e(f'v_add_u32 {v(QW)}, {L_Q}, {v(QW)}')
    e(f'v_lshlrev_b32 {v(t1)}, 3, {v(ln)}'); e(f'v_add_u32 {v(OW)}, {s(sT+2)}, {v(t1)}'); e(f'v_and_b32 {v(ORD)}, -9, {v(OW)}')
    e(f'v_and_b32 {v(t1)}, -9, {v(t1)}'); e(f'v_lshlrev_b32 {v(t2)}, 6, {v(g1)}'); e(f'v_xor_b32 {v(QR)}, {v(t1)}, {v(t2)}')
    e(f'v_bfe_u32 {v(t1)}, {v(n)}, 1, 2'); e(f'v_lshlrev_b32 {v(KW)}, 2, {v(t1)}'); e(f'v_and_b32 {v(t1)}, 1, {v(n)}'); e(f'v_lshl_add_u32 {v(KW)}, {v(t1)}, 4, {v(KW)}')
    e(f'v_lshl_add_u32 {v(KW)}, {v(g)}, 6, {v(KW)}'); e(f'v_lshrrev_b32 {v(t1)}, 3, {v(n)}'); e(f'v_lshl_add_u32 {v(KW)}, {v(t1)}, 8, {v(KW)}')
    e(f'v_add_u32 {v(KW)}, {s(sT+2)}, {v(KW)}'); e(f'v_add_u32 {v(KW)}, {L_K}, {v(KW)}')
    e(f'v_lshlrev_b32 {v(MPUB)}, 12, {v(t1)}'); e(f'v_and_b32 {v(t1)}, 1, {v(r)}'); e(f'v_lshl_add_u32 {v(MPUB)}, {v(t1)}, 6, {v(MPUB)}'); e(f'v_lshl_add_u32 {v(MPUB)}, {v(g1)}, 5, {v(MPUB)}')
    e(f'v_and_b32 {v(t1)}, 3, {v(n)}'); e(f'v_lshl_add_u32 {v(MPUB)}, {v(t1)}, 3, {v(MPUB)}'); e(f'v_lshrrev_b32 {v(t2)}, 1, {v(g)}'); e(f'v_lshl_add_u32 {v(MPUB)}, {v(t2)}, 31, {v(MPUB)}')
    e(f'v_lshlrev_b32 {v(TO0)}, 8, {v(g)}'); e(f'v_lshl_add_u32 {v(TO0)}, {v(t1)}, 3, {v(TO0)}'); e(f'v_lshl_add_u32 {v(TO0)}, {v(g1)}, 6, {v(TO0)}')
    e(f'v_and_b32 {v(t2)}, 1, {v(r)}'); e(f'v_lshl_add_u32 {v(TO0)}, {v(t2)}, 7, {v(TO0)}'); e(f'v_lshrrev_b32 {v(t2)}, 1, {v(r)}'); e(f'v_lshl_add_u32 {v(TO0)}, {v(t2)}, 5, {v(TO0)}')
    e(f'v_add_u32 {v(TO0)}, {s(sReg)}, {v(TO0)}'); e(f'v_xor_b32 {v(TO1)}, 64, {v(TO0)}')
    e(f'v_lshl_add_u32 {v(t2)}, {v(g1)}, 2, {v(r)}'); e(f's_lshl_b32 {s(sT+3)}, {s(sW)}, 1'); e(f'v_xor_b32 {v(t2)}, {s(sT+3)}, {v(t2)}')
    e(f'v_lshlrev_b32 {v(TA0)}, 10, {v(g)}'); e(f'v_lshl_add_u32 {v(TA0)}, {v(r)}, 8, {v(TA0)}'); e(f'v_lshl_add_u32 {v(TA0)}, {v(t2)}, 5, {v(TA0)}'); e(f'v_lshl_add_u32 {v(TA0)}, {v(t1)}, 3, {v(TA0)}')
    e(f'v_add_u32 {v(TA0)}, {L_WV}, {v(TA0)}'); e(f'v_xor_b32 {v(TA1)}, 32, {v(TA0)}'); e(f'v_add_u32 {v(TB0)}, {2*WREG}, {v(TA0)}'); e(f'v_add_u32 {v(TB1)}, {2*WREG}, {v(TA1)}')
    e(f's_lshl_b32 {s(sT+4)}, {s(sH)}, 8')
    e(f'v_and_b32 {v(t2)}, 2, {v(g)}'); e(f'v_lshl_add_u32 {v(t2)}, {v(g1)}, 4, {v(t2)}'); e(f'v_lshlrev_b32 {v(t1)}, 1, {v(g)}'); e(f'v_xor_b32 {v(t1)}, {v(t1)}, {v(n)}'); e(f'v_lshlrev_b32 {v(t1)}, 4, {v(t1)}')
    e(f'v_lshl_add_u32 {v(VA0)}, {v(t2)}, 13, {v(t1)}'); e(f's_lshl_b32 {s(sT+3)}, {s(sW)}, 18'); e(f's_add_u32 {s(sT+3)}, {s(sT+3)}, {s(sT+4)}')
    e(f'v_add_u32 {v(VA0)}, {s(sT+3)}, {v(VA0)}'); e(f'v_xor_b32 {v(VA1)}, 128, {v(VA0)}')
    e(f's_lshl_b32 {s(sT+3)}, {s(sW)}, 15'); e(f'v_lshlrev_b32 {v(t1)}, 11, {v(r)}'); e(f'v_add_u32 {v(t1)}, {s(sT+4)}, {v(t1)}'); e(f'v_and_b32 {v(t1)}, 0x1fff, {v(t1)}')
    e(f'v_lshl_add_u32 {v(PST)}, {v(g)}, 13, {v(t1)}'); e(f'v_lshl_add_u32 {v(PST)}, {v(n)}, 4, {v(PST)}'); e(f'v_add_u32 {v(PST)}, {s(sT+3)}, {v(PST)}')
    Rp=OPT['rep']; cval=struct.unpack('<I',struct.pack('<f',math.log2(math.e)/math.sqrt(128)))[0]
    for r_,val in ((sC,cval),(sC2,cval),(sC2+1,cval),(sStep,0),(sSpin,0),(sSpinU,0),(sSpinF,0),(sSlot,0),(sPslot,3*262144),(sOne,0x3f803f80),(sOne+1,0x3f803f80),
                   (sOdd,0xaaaaaaaa),(sOdd+1,0xaaaaaaaa),(sEx,0x10001 if Rp>1 else 1),(sEx+1,0x10001 if Rp>2 else 0)): e(f's_mov_b32 {s(r_)}, {hex(val)}')
    e(f's_and_b32 {s(sFlagB)}, {s(sH)}, {Rp-1}'); e(f's_lshl_b32 {s(sFlagB)}, {s(sFlagB)}, 8'); e(f's_add_u32 {s(sFlagB)}, {s(sFlagB)}, {FLAG_OFF}')
    e(f's_lshl_b32 {s(sFlag)}, {s(sH)}, 2'); e(f's_add_u32 {s(sFlag)}, {s(sFlag)}, {FLAG_OFF}')
    e(f's_lshl_b32 {s(sPinB)}, {s(sH)}, 13'); e(f's_add_u32 {s(sPinB)}, {s(sPinB)}, {PART_OFF}'); e(f's_add_u32 {s(sPrstB)}, {s(sPinB)}, {s(sT+1)}')
    e(f's_bfe_u32 {s(sT+5)}, {s(sH)}, 0x20002'); e(f's_lshl_b32 {s(sMemB)}, {s(sT+5)}, 10'); e(f's_lshr_b32 {s(sT+5)}, {s(sH)}, 4'); e(f's_lshl_b32 {s(sT+5)}, {s(sT+5)}, 9')
    e(f's_add_u32 {s(sMemB)}, {s(sMemB)}, {s(sT+5)}'); e(f's_and_b32 {s(sT+5)}, {s(sH)}, 3'); e(f's_lshl_b32 {s(sT+5)}, {s(sT+5)}, 7'); e(f's_add_u32 {s(sMemB)}, {s(sMemB)}, {s(sT+5)}'); e(f's_add_u32 {s(sMemB)}, {s(sMemB)}, {MEM_OFF}')
    e(f's_lshl_b32 {s(sKsrc)}, {s(sH)}, 20'); e(f's_add_u32 {s(sKsrc)}, {s(sKsrc)}, {s(sT+1)}'); e(f's_add_u32 {s(sKsrc)}, {s(sKsrc)}, {KV_OFF}'); e(f's_add_u32 {s(sVsrc)}, {s(sKsrc)}, 8192')
    e(f's_lshl_b32 {s(sKvm)}, {s(sH)}, 18'); e(f's_add_u32 {s(sKvm)}, {s(sKvm)}, {s(sWoff)}'); e(f's_add_u32 {s(sKvm)}, {s(sKvm)}, {KVM_OFF}')
    e(f's_lshl_b32 {s(sKvF)}, {s(sH)}, 7'); e(f's_add_u32 {s(sKvmF)}, {s(sKvF)}, {BF_OFF+BF_KVM}'); e(f's_add_u32 {s(sKvF)}, {s(sKvF)}, {BF_OFF+BF_KV}')
    p+=zero(PM,4)+zero(ONES,4,'-1')
    e(f'v_and_b32 {v(t1)}, 1, {v(n)}'); e(f'v_lshlrev_b32 {v(t1)}, 4, {v(t1)}'); e(f'v_mov_b32 {v(t2)}, 0x3f80'); e(f'v_lshlrev_b32 {v(t2)}, {v(t1)}, {v(t2)}'); e(f'v_bfe_u32 {v(t1)}, {v(n)}, 1, 2')
    for jj in range(4):
        e(f'v_cmp_eq_u32 vcc, {jj}, {v(t1)}'); e(f'v_cndmask_b32 {v(M+jj)}, 0, {v(t2)}, vcc')
    e(f'ds_write_b128 {v(L16)}, {v(M,4)} offset:{L_SEL}')
    e(f'v_lshrrev_b32 {v(T0)}, 1, {v(n)}'); e(f'v_lshlrev_b32 {v(T0)}, 10, {v(T0)}'); e(f'v_lshl_add_u32 {v(T0)}, {v(g1)}, 3, {v(T0)}')
    e(f'v_and_b32 {v(t1)}, 2, {v(g)}'); e(f'v_lshl_add_u32 {v(T0)}, {v(t1)}, 6, {v(T0)}'); e(f'v_and_b32 {v(t1)}, 1, {v(n)}'); e(f'v_lshl_add_u32 {v(T0)}, {v(t1)}, 2, {v(T0)}')
    e(f's_lshl_b32 {s(sT+5)}, {s(sW)}, 8'); e(f'v_add_u32 {v(T0)}, {s(sT+5)}, {v(T0)}')
    p+=tail
    e(f's_lshl_b32 {s(sT+5)}, {s(sW)}, 18'); e(f's_add_u32 {s(sT+5)}, {s(sT+5)}, {s(sPinB)}'); e(f's_add_u32 {s(sT+6)}, {s(sT+5)}, 4096')
    for j in range(8): vm(f'buffer_store_dwordx4 {v(ONES,4)}, {v(L16)}, {s(WS,4)}, {s(sT+5+(j>>2))} offen offset:{(j&3)*1024} sc1','x')
    e(f's_lshl_b32 {s(sT+5)}, {s(sW)}, 13'); e(f's_add_u32 {s(sT+5)}, {s(sT+5)}, {s(sMemB)}')
    vm(f'buffer_store_dwordx2 {v(ONES,2)}, {v(MPUB)}, {s(WS,4)}, {s(sT+5)} offen sc1','x')
    e(f's_mov_b64 exec, {s(sEx,2)}'); vm(f'buffer_store_dword {v(PM)}, {v(L16)}, {s(WS,4)}, {s(sFlag)} offen sc1','x'); e('s_mov_b64 exec, -1')
    for u in range(2):
        for x in range(4): vm(f'global_load_dword {v(QA+4*u+x)}, {v(T0)}, {s(sPtr,2)} offset:{16*u+32*x}','x')
    if not OPT['rp']:
        p+=h2_addr(FLG,t1); e(f's_cmp_eq_u32 {s(sW)}, 1'); e('s_cselect_b64 vcc, -1, 0'); e(f'v_cndmask_b32 {v(MPUB)}, {v(MPUB)}, {v(FLG)}, vcc')
    qg=[g_ for g_ in res_groups if g_[0]!='o']+lds_groups[:4]
    ptr={'q':sPtr+2,'k':sPtr+4,'v':sPtr+6}
    def issue(bi):
        g_=qg[bi]; c=g_[1]
        e(f's_mov_b32 {s(WSRD)}, {s(ptr[g_[0]])}'); e(f's_mov_b32 {s(WSRD+1)}, {s(ptr[g_[0]]+1)}')
        for i in range(4):
            e(f's_add_u32 m0, {s(sT+6)}, {L_WV+(bi%4)*WREG+1024*i}'); e(f's_mov_b32 {s(sT+7)}, {(128*(c&3)+8*(c>>2)+4*(i>>1)+(i&1))*8192}')
            vm(f'buffer_load_dwordx4 {v(VA1 if i&1 else VA0)}, {s(WSRD,4)}, {s(sT+7)} offen'+(' nt' if OPT['nt'] else '')+' lds',g_)
    def oread(gi):
        g_=og[gi]; wait(g_)
        if timing and gi==0: e('s_memrealtime s[84:85] ;stamp')
        for b in range(4):
            for t in range(2):
                pf,b0=ureg(g_,t) if g_ in gloc else ('v',M+8*t)
                e(f'ds_read_b64_tr_b16 {R(pf,b0+2*b,2)}, {v(TO1 if t else TO0)} offset:{(4*gi+b)*1024}')
        e('s_waitcnt lgkmcnt(0)')
        if g_ not in gloc:
            for j in range(4): e(f'ds_write_b128 {v(LW)}, {v(M+4*j,4)} offset:{(4*gi+j)*1024}')
    for gi in range(4): oread(gi)
    e(f's_lshl_b32 {s(sT+6)}, {s(sW)}, 12')
    e('s_barrier')
    for bi in range(4): issue(bi)
    for gi in range(4,8): oread(gi)
    wait('x')
    e(f's_mov_b32 {s(sT+2)}, 0x05040100'); e(f's_mov_b32 {s(sT+3)}, 0x07060302'); e(f'v_add_u32 {v(T0)}, {s(sWoff)}, {v(L16)}')
    for u in range(2):
        d=X+4*u; q=QA+4*u
        e(f'v_perm_b32 {v(d)}, {v(q+1)}, {v(q)}, {s(sT+2)}'); e(f'v_perm_b32 {v(d+1)}, {v(q+3)}, {v(q+2)}, {s(sT+2)}')
        e(f'v_perm_b32 {v(d+2)}, {v(q+1)}, {v(q)}, {s(sT+3)}'); e(f'v_perm_b32 {v(d+3)}, {v(q+3)}, {v(q+2)}, {s(sT+3)}')
        e(f'ds_write_b128 {v(T0)}, {v(d,4)} offset:{L_MEM+4096*u}')
    for bi in range(24):
        g_=qg[bi]; wait(g_)
        if timing and bi==23: e('s_memrealtime s[86:87] ;stamp')
        e('s_barrier')
        if bi==0:
            e(f's_cmp_lg_u32 {s(sW)}, 0'); e('s_cbranch_scc1 L_ch_noarr')
            e(f's_getreg_b32 {s(sT+5)}, hwreg(HW_REG_XCC_ID)'); e(f's_and_b32 {s(sT+5)}, {s(sT+5)}, 7'); e(f's_lshl_b32 {s(sT+5)}, {s(sT+5)}, 3'); e(f's_lshl_b64 {s(sT+2,2)}, 1, {s(sT+5)}')
            e(f'v_mov_b32 {v(QA)}, {s(sT+2)}'); e(f'v_mov_b32 {v(QA+1)}, {s(sT+3)}'); e('s_mov_b64 exec, 1')
            e(f'global_atomic_add_x2 {v(PM+1)}, {v(QA,2)}, {s(DBG,2)}'); e('s_mov_b64 exec, -1')
            p.append('L_ch_noarr:')
        for b in range(4):
            for t in range(2):
                pf,b0=ureg(g_,t); tra=[[TA0,TA1],[TB0,TB1]][(bi%4)>>1][t]
                e(f'ds_read_b64_tr_b16 {R(pf,b0+2*b,2)}, {v(tra)} offset:{(bi&1)*WREG+b*4096}')
        e('s_waitcnt lgkmcnt(0)')
        if bi+4<24 or bi==23: e('s_barrier')
        if bi+4<24: issue(bi+4)
        if bi==8 and OPT['sync']:
            e(f'v_mov_b32 {v(T0)}, 136'); vm(f'global_load_dword {v(KVQ)}, {v(T0)}, {s(DBG,2)} sc1 ;stamp','i')
        if bi==14: vm(f'global_load_dwordx2 {v(QA,2)}, {v(PM+1)}, {s(DBG,2)} sc1 ;stamp','h')
        if bi==19:
            wait('h')
            p.append('L_ch_hs:')
            e(f'v_readfirstlane_b32 {s(sT+2)}, {v(QA)}'); e(f'v_readfirstlane_b32 {s(sT+3)}, {v(QA+1)}')
            e(f's_add_u32 {s(sSpinF)}, {s(sSpinF)}, 1'); e(f's_cmp_gt_u32 {s(sSpinF)}, {LIM}'); e('s_cbranch_scc1 L_ch_hsdone')
            e(f's_add_u32 {s(sT+4)}, {s(sT+2)}, {s(sT+3)}'); e(f's_lshr_b32 {s(sT+5)}, {s(sT+4)}, 16'); e(f's_add_u32 {s(sT+4)}, {s(sT+4)}, {s(sT+5)}')
            e(f's_lshr_b32 {s(sT+5)}, {s(sT+4)}, 8'); e(f's_add_u32 {s(sT+4)}, {s(sT+4)}, {s(sT+5)}'); e(f's_and_b32 {s(sT+4)}, {s(sT+4)}, 0xff')
            e(f's_cmp_ge_u32 {s(sT+4)}, 32'); e('s_cbranch_scc1 L_ch_hsdone')
            e(f'global_load_dwordx2 {v(QA,2)}, {v(PM+1)}, {s(DBG,2)} sc1 ;stamp'); e('s_waitcnt vmcnt(0) ;stamp'); e('s_branch L_ch_hs')
            p.append('L_ch_hsdone:')
            e(f's_or_b32 {s(sT+2)}, {s(sT+2)}, {s(sT+3)}'); e(f's_and_b32 {s(sT+2)}, {s(sT+2)}, 0x20202020')
            if OPT['sync']:
                wait('i')
                p.append('L_ch_iw:')
                e(f'v_cmp_eq_u32 vcc, 0, {v(KVQ)}'); e('s_cbranch_vccz L_ch_iwx')
                e(f's_add_u32 {s(sSpinF)}, {s(sSpinF)}, 1'); e(f's_cmp_gt_u32 {s(sSpinF)}, {LIM}'); e('s_cbranch_scc1 L_ch_iwx')
                e(f'global_load_dword {v(KVQ)}, {v(T0)}, {s(DBG,2)} sc1 ;stamp'); e('s_waitcnt vmcnt(0) ;stamp'); e('s_branch L_ch_iw')
                p.append('L_ch_iwx:')
                p.extend(kv_addr()); vm(f'buffer_load_dword {v(FLG)}, {v(T0)}, {s(WS,4)}, {s(sKvF)} offen sc1 ;stamp','f')
            e(f's_lshl_b32 {s(sT+5)}, {s(sW)}, 18'); e(f's_add_u32 {s(sT+5)}, {s(sT+5)}, {s(sPinB)}'); e(f's_add_u32 {s(sT+6)}, {s(sT+5)}, 4096')
            wl=[f'buffer_load_dwordx4 {v(KVQ,4)}, {v(L16)}, {s(WS,4)}, {s(sT+5+(j>>2))} offen offset:{(j&3)*1024} sc1 ;stamp' for j in range(8)]
            nlate=3 if OPT['rs']==0 else 2
            def warm(lst,k):
                for l in lst: vm(l,'w')
            e(f's_lshl_b32 {s(sT+4)}, {s(sH)}, 10'); e(f's_add_u32 {s(sT+4)}, {s(sT+4)}, {MEM_OFF}')
            vm(f'buffer_load_dwordx4 {v(KVQ,4)}, {v(L16)}, {s(WS,4)}, {s(sT+4)} offen sc1 ;stamp','w')
            warm(wl[:8-nlate],0)
    if OPT['sync']:
        wait('f')
        p.extend(kv_check('L_ch_k0')); p.extend(['s_branch L_ch_k0y']+kv_wait('L_ch_k0')+['L_ch_k0y:'])
    for sd,ss in ((sKdst,sKsrc),(sVdst,sVsrc)):
        e(f's_mov_b32 m0, {s(sd)}')
        for j in range(2): e(f'buffer_load_dwordx4 {v(L16)}, {s(WS,4)}, {s(ss)} offen offset:{1024*j} sc1 lds')
    warm([l.replace(v(KVQ,4),v(STG,4)) for l in wl[8-nlate:]],1)
    for gi,g_ in enumerate(lds_groups[:4]):
        for t in range(2):
            for j in range(2): e(f'ds_write_b128 {v(LW)}, {v(stream[g_+(t,)]+4*j,4)} offset:{gi*4096+t*2048+j*1024}')
    p+=zero(QA,8)+kv_addr()
    if OPT['rp']: e(f'v_mov_b32 {v(FLG)}, 0')
    e(f's_add_u32 {s(sKsrc)}, {s(sKsrc)}, 16384'); e(f's_add_u32 {s(sVsrc)}, {s(sVsrc)}, 16384')
    e(f's_add_u32 {s(sPrst)}, {s(sPrstB)}, {2*262144}')
    if not OPT['tr'] and not OPT['solo']:
        for k in range(4):
            e(f's_and_b32 {s(sT+4)}, {s(sH)}, 1'); e(f's_xor_b32 {s(sT+4)}, {s(sT+4)}, {k}'); e(f's_lshl_b32 {s(sRo1+k)}, {s(sT+4)}, 11')
            e(f's_add_u32 {s(sT+4)}, {s(sH)}, {k}'); e(f's_and_b32 {s(sT+4)}, {s(sT+4)}, 3'); e(f's_lshl_b32 {s(sRo2+k)}, {s(sT+4)}, 10')
    e('s_waitcnt lgkmcnt(0)')
    if timing: e(f's_memrealtime {s(sTime+2,2)}'); e(f's_memtime {s(sTime+6,2)}'); e('s_waitcnt lgkmcnt(0)')
    if OPT['solo']: e('s_waitcnt vmcnt(0)'); e('s_memtime s[60:61]'); e('s_waitcnt lgkmcnt(0)'); e('s_barrier')
    if OPT['rp'] and not OPT['solo']:
        e(f's_cmp_eq_u32 {s(sW)}, 1'); e(f's_cselect_b32 {s(sKvmF)}, {s(sKvmF)}, 0x40000000')
        e('s_barrier')
        for c in range(4): e(mrd(c))
        e(f's_cmp_eq_u32 {s(sT+2)}, 0'); e('s_cbranch_scc1 L_ch_S0_re'); e('s_branch L_ch_F0_re'); e('s_waitcnt lgkmcnt(0)')
    e(f's_cmp_eq_u32 {s(sT+2)}, 0'); e('s_cbranch_scc1 L_ch_S0')
    return fix(p,'prologue')

def smf(d,a_,b): return f'{SMF} {v(d,4)}, {v(a_,4)}, {b}, {v(IDX)}'
def mrd(c): return f'ds_read_b128 {v(M+4*c,4)}, {v(L16)} offset:{L_MEM+1024*c}'
def G(*groups):
    o=[]
    for g_ in groups: o.extend(g_)
    return o

def step(mode, par, verbose=False):
    sc=' sc1' if mode=='S' else ''
    two=OPT['tr'] or OPT['solo']
    L=f'L_ch_{mode}{par}'
    p=[L+':']; e=p.append
    qk=lambda m,c,t: smf((QA if m=='q' else KA if m=='k' else VA)+4*t, M+4*c, unit((m,c),t))
    Q=lambda c,t: qk('q',c,t); K=lambda c,t: qk('k',c,t); V=lambda c,t: qk('v',c,t)
    W=lambda n: f's_waitcnt lgkmcnt({n})'
    krd=[f'ds_read_b128 {v(X+4*f,4)}, {v(L16)} offset:{L_KX+1024*f}' for f in range(8)]
    kl=[f'buffer_load_dwordx4 {v(STG+4*i,4)}, {v(L16)}, {s(WS,4)}, {s(sVsrc if i>>1 else sKsrc)} offen offset:{1024*(i&1)} sc1' for i in range(4)]
    kw=[f'v_add_u32 {v(T0)}, {s(sKdst)}, {v(L16)}','s_waitcnt vmcnt(3)']+[f'ds_write_b128 {v(T0)}, {v(STG+4*i,4)} offset:{1024*i}' for i in range(2)]+[f'ds_write_b128 {v(LW)}, {v(STG+8+4*i,4)} offset:{32768+1024*i}' for i in range(2)]
    def post(acc,d0,d1,bytok):
        o=[f'v_add_f32 {v(acc)}, {v(acc)}, {v(acc+1)}', f'v_add_f32 {v(acc+2)}, {v(acc+2)}, {v(acc+3)}',
           f'v_add_f32 {v(acc+4)}, {v(acc+4)}, {v(acc+5)}', f'v_add_f32 {v(acc+6)}, {v(acc+6)}, {v(acc+7)}']
        if bytok: o+=[f'v_cvt_pk_bf16_f32 {v(d0)}, {v(acc)}, {v(acc+4)}', f'v_cvt_pk_bf16_f32 {v(d1)}, {v(acc+2)}, {v(acc+6)}']
        else:     o+=[f'v_cvt_pk_bf16_f32 {v(d0)}, {v(acc)}, {v(acc+2)}', f'v_cvt_pk_bf16_f32 {v(d1)}, {v(acc+4)}, {v(acc+6)}']
        return o
    def tr(i,rt=False):
        if not OPT['tr']: return []
        return [('s_memrealtime' if rt else 's_memtime')+f' {s(52+14*par+2*i,2)} ;stamp']
    def trdump():
        if not OPT['tr']: return []
        o=[f'v_mov_b32 {v(M+4+i)}, {s(52+14*(1-par)+2*i)}' for i in range(4)]+[f'v_mov_b32 {v(M+8+i)}, {s(52+14*(1-par)+2*i)}' for i in range(4,7)]
        o+=[f's_lshl_b32 {s(sT+1)}, {s(sSpinU)}, 16', f's_add_u32 {s(sT+1)}, {s(sT+1)}, {s(sSpin)}', f'v_mov_b32 {v(M+15)}, {s(sT+1)}',
            f's_lshl_b32 {s(sT+1)}, {s(sStep)}, 5', f's_add_u32 {s(sT+1)}, {s(sT+1)}, {s(sH)}', f's_lshl_b32 {s(sT+1)}, {s(sT+1)}, 2', f's_add_u32 {s(sT+1)}, {s(sT+1)}, {s(sW)}',
            f's_lshl_b32 {s(sT+1)}, {s(sT+1)}, 5', f's_add_u32 {s(sT+1)}, {s(sT+1)}, {100<<20}', 's_mov_b64 exec, 1',
            f'buffer_store_dwordx4 {v(M+4,4)}, off, {s(WS,4)}, {s(sT+1)}', f'buffer_store_dwordx4 {v(M+12,4)}, off, {s(WS,4)}, {s(sT+1)} offset:16', 's_mov_b64 exec, -1']
        return o
    rstore=lambda j: f'buffer_store_dwordx4 {v(ONES,4)}, {v(L16)}, {s(WS,4)}, {s(sPrst)} offen offset:{j*1024}{sc}'
    pub=f'buffer_store_dwordx4 {v(KVQ,4)}, {v(L16)}, {s(WS,4)}, {s(sKvm)} offen sc1'
    rp=OPT['rp']; sp=OPT['sp']
    if not OPT['solo']: p.extend(['s_waitcnt lgkmcnt(0)' if rp else f's_waitcnt vmcnt({7 if OPT["rs"]==0 else 6}) lgkmcnt(0)','s_barrier'])
    p.append(';secS')
    for c in range(4): e(mrd(c))
    if OPT['rs']==1: e(rstore(0))
    if rp: e(pub); e(f's_add_u32 {s(sKvm)}, {s(sKvm)}, 4096')
    p.append(f'{L}_re:')
    z=zero(KA,16)
    qp=post(QA,QA+1,QA+3,True)+[f'ds_write2_b32 {v(QW)}, {v(QA+1)}, {v(QA+3)} offset0:0 offset1:4']
    kp=post(KA,KVQ+1,KVQ+3,True)+[f'ds_write2_b32 {v(KW)}, {v(KVQ+1)}, {v(KVQ+3)} offset0:0 offset1:8']
    p.extend(G([W(3)],[Q(0,0)],[Q(0,1),W(2)],[Q(1,0),kl[0]],[Q(1,1),W(1)],[Q(2,0),kl[1]],[Q(2,1),W(0),z[0]],[Q(3,0),z[1]],[Q(3,1),kl[2]],
               [K(0,0),z[2]],[K(1,0),kl[3]],[K(2,0),f's_waitcnt vmcnt({(7 if OPT["rs"]<2 else 6) if not rp else (6 if sp==0 else 5)})','s_barrier',z[3]],[K(3,0),mrd(4),z[4]],
               [K(0,1),mrd(5),z[5]],[K(1,1),mrd(6),z[6]],[K(2,1),mrd(7),z[7]],[K(3,1),krd[0],W(4)]))
    p.append(';sec0')
    on=[f'v_mov_b64 {v(ONES+2*i,2)}, {s(sOne,2)}' for i in range(2)]
    fld=f'buffer_load_dword {v(FLG)}, {v(T0)}, {s(WS,4)}, {s(sKvF)} offen sc1'
    if rp:
        p.extend(G([Q(4,0),krd[4],W(4)],[Q(5,0),krd[1],W(4)],[Q(6,0),krd[5],W(4)],[Q(7,0),krd[2],'s_nop 0'],
               [Q(4,1),krd[3],'s_nop 0'],[Q(5,1),krd[6]],[Q(6,1),krd[7],qp[0]],[Q(7,1)]+([rstore(0),'s_nop 0'] if sp==1 else ['s_nop 1'])+[qp[1]],
               [K(4,0),'s_mov_b64 exec, 1',f'buffer_store_dword {v(FLG)}, off, {s(WS,4)}, {s(sKvmF)} sc1','s_mov_b64 exec, -1'],[K(5,0),qp[2]],[K(6,0),qp[3]],[K(7,0),fld,'s_nop 0',qp[4]],
               [K(4,1),qp[5]],[K(5,1),qp[6]],[K(6,1),kp[0]],[K(7,1),kp[1]]))
    else:
        p.extend(G([Q(4,0),krd[4],W(4)],[Q(5,0),krd[1],W(4)],[Q(6,0),krd[5],W(4)],[Q(7,0),krd[2],on[0] if OPT['rs']<2 else 's_nop 0'],
               [Q(4,1),krd[3],on[1] if OPT['rs']<2 else 's_nop 0'],[Q(5,1),krd[6]],[Q(6,1),krd[7],qp[0]],[Q(7,1),'s_nop 1',qp[1]],
               [K(4,0),fld],[K(5,0),'s_nop 1',qp[2]],[K(6,0),qp[3]],[K(7,0),'s_nop 1',qp[4]],
               [K(4,1),qp[5]],[K(5,1),qp[6]],[K(6,1),kp[0]],[K(7,1),kp[1]]))
    p.append(';sec1')
    rk=[f'ds_read_b128 {v(X+16*k,4)}, {v(L16)} offset:{L_K+1024*k}' for k in range(2)]
    rq=[f'ds_read_b128 {v(M+4*k,4)}, {v(QR)} offset:{L_Q+512*k}' for k in range(4)]
    VF=[X+4,X+20]
    rv=[f'ds_read_b128 {v(VF[t],4)}, {v(LW)} offset:{32768+1024*t}' for t in range(2)]
    SX=lambda m,ks: f'{MF32} {v(QA+4*m,4)}, {v(X+16*m+4*ks,4)}, {v(M+4*ks,4)}, '+(v(QA+4*m,4) if ks else '0')
    sm=[smf(KA,X+16*k,v(M+8*k,8)) for k in range(2)]
    zk=zero(KA,4)
    mx=PM; tt=KA+3
    c=[f'v_max3_f32 {v(mx)}, {v(QA)}, {v(QA+1)}, {v(QA+2)}', f'v_max3_f32 {v(mx)}, {v(mx)}, {v(QA+3)}, {v(QA+4)}',
       f'v_max3_f32 {v(mx)}, {v(mx)}, {v(QA+5)}, {v(QA+6)}',
       f'v_add_f32 {v(KA)}, {v(KA)}, {v(KA+1)}', f'v_add_f32 {v(KA+1)}, {v(KA+2)}, {v(KA+3)}',
       f'v_max3_f32 {v(mx)}, {v(mx)}, {v(QA+7)}, {v(KA)}', f'v_max_f32 {v(tt)}, {v(mx)}, {v(KA+1)}', f'v_max_f32 {v(mx)}, {v(mx)}, {v(KA+1)}',
       f'v_permlane32_swap_b32 {v(mx)}, {v(tt)}', f'v_max_f32 {v(T0)}, {v(mx)}, {v(tt)}', f'v_max_f32 {v(mx)}, {v(mx)}, {v(tt)}',
       f'v_permlane16_swap_b32 {v(mx)}, {v(T0)}', f'v_max_f32 {v(mx)}, {v(mx)}, {v(T0)}', f'v_mul_f32 {v(T0)}, {s(sC)}, {v(mx)}']
    kadv=0 if OPT['hotkv'] else 16384
    bk=[f's_add_u32 {s(sSlot)}, {s(sSlot)}, 8192', f's_and_b32 {s(sSlot)}, {s(sSlot)}, 0x7fff',
        f's_add_u32 {s(sMemIn0)}, {s(sSlot)}, {MEM_OFF}', f's_add_u32 {s(sMemPub)}, {s(sMemB)}, {s(sSlot)}',
        f's_xor_b32 {s(sMemRst)}, {s(sMemPub)}, 16384',
        f's_add_u32 {s(sPrst)}, {s(sPrstB)}, {s(sPslot)}',
        f's_add_u32 {s(sPslot)}, {s(sPslot)}, 262144', f's_and_b32 {s(sPslot)}, {s(sPslot)}, 0xfffff',
        f's_add_u32 {s(sPst)}, {s(sPslot)}, {PART_OFF}', f's_add_u32 {s(sPst+1)}, {s(sPslot)}, {PART_OFF+131072}',
        f's_add_u32 {s(sPin)}, {s(sPinB)}, {s(sPslot)}', f's_add_u32 {s(sPin+1)}, {s(sPin)}, 4096',
        f's_add_u32 {s(sKsrc)}, {s(sKsrc)}, {kadv}', f's_add_u32 {s(sVsrc)}, {s(sVsrc)}, {kadv}',
        f's_add_u32 {s(sMemIn1)}, {s(sMemIn0)}, 4096', f's_mov_b32 m0, {L_MEM}', f's_add_u32 {s(sStep)}, {s(sStep)}, 1']
    wo=lambda tp,k: stream_reads(('o',tp>>1,k),tp&1)
    p.extend(G([V(0,0),'s_nop 1',f'v_cmp_u_f32 vcc, {v(QA)}, {v(QA+2)}'],[V(0,1),W(0),'s_barrier',kp[2]],[V(1,0),rq[0],kp[3]],[V(1,1),rq[1],kp[4]],
               [V(2,0),kp[5]],[V(2,1),kp[6]],[V(3,0),rq[2],zk[0]],[V(3,1),rq[3],W(3)],
               [SX(0,0),zk[1]],[SX(1,0)]+(on if rp else [])+([rstore(0)] if OPT['rs']==2 else []),[SX(0,1),W(0),'s_barrier'],[SX(1,1),rk[0]]+([on[0]] if OPT['rs']==2 else []),
               [SX(0,2),rk[1]]+([on[1]] if OPT['rs']==2 else []),[SX(0,3),rv[0]],[SX(1,2),rv[1]],[SX(1,3),f's_cbranch_vccnz {L}_r2',f'{L}_r2x:',W(2)],
               [sm[0],bk[0],bk[1],c[0]],[sm[1],wo(2,1)[0]],
               [V(4,0),bk[2],bk[3],c[1]],[V(5,0),wo(2,2)[0],c[2]],[V(6,0),bk[5],bk[6],c[3],c[4]],[V(7,0),bk[7],bk[16],c[5],c[6],c[7]],
               [V(4,1),wo(0,3)[0],c[8]],[V(5,1),wo(0,3)[1],c[9],c[10]],[V(6,1),wo(1,3)[0],c[11]],[V(7,1),wo(1,3)[1],c[12],c[13]]))
    if OPT['tr']: p.append(f's_memtime {s(52+14*(1-par)+10,2)} ;stamp')
    p.append(';sec2')
    vp=post(VA,KVQ,KVQ+2,False)
    xp=lambda r_: f'v_exp_f32 {v(r_)}, {v(r_)}'
    PX=KA+4; OF=M+16
    e(vp[0]); e(vp[1])
    for r_ in (KA,QA,QA+2,QA+4,QA+6):
        e(f'v_pk_fma_f32 {v(r_,2)}, {v(r_,2)}, {s(sC2,2)}, {v(T0,2)} op_sel_hi:[1,1,0] neg_lo:[0,0,1] neg_hi:[0,0,1]')
    e(f'v_mfma_f32_32x32x8_bf16 {v(M,16)}, {v(PM+2,2)}, {v(PM+2,2)}, 0'); e(bk[12])
    e(xp(KA)); e(xp(KA+1))
    p.extend([vp[2],vp[3],vp[4],vp[5]])
    e(f'v_cvt_pk_bf16_f32 {v(PM)}, {v(KA)}, {v(KA+1)}')
    e(xp(QA)); e(xp(QA+1))
    ex=[f's_cmp_eq_u32 {s(sStep)}, 64','s_cbranch_scc1 L_ch_last'] if (par==1 or not two) else ['s_nop 1']
    p.extend(G([f'{MF16} {v(VA,4)}, {v(KVQ,2)}, {v(PM,2)}, 0',bk[13],xp(QA+2)],
               [f'{MF16} {v(VA+4,4)}, {v(KVQ+2,2)}, {v(PM,2)}, 0',bk[8],xp(QA+3)],
               [f'{MF16} {v(KA,4)}, {v(ONES,2)}, {v(PM,2)}, 0',W(6),xp(QA+4),xp(QA+5),xp(QA+6),xp(QA+7)]))
    for i in range(4): e(f'v_cvt_pk_bf16_f32 {v(PX+i)}, {v(QA+2*i)}, {v(QA+2*i+1)}')
    zo=zero(ONES,4,'-1')
    oa=[f'v_xor_b32 {v(QA+k)}, {512*k}, {v(ORD)}' for k in range(1,4)]
    p.extend(G([oa[0],oa[1]],[f'{MF32} {v(KA,4)}, {v(ONES,4)}, {v(PX,4)}, {v(KA,4)}']+ex+[oa[2]],
               [f'{MF32} {v(VA,4)}, {v(VF[0],4)}, {v(PX,4)}, {v(VA,4)}',bk[14],zo[0],zo[1]],
               [f'{MF32} {v(VA+4,4)}, {v(VF[1],4)}, {v(PX,4)}, {v(VA+4,4)}',bk[15],f'v_rcp_f32 {v(T0)}, {v(KA)}',bk[9],bk[10]]))
    pm_=[f'v_pk_mul_f32 {v(VA+2*i,2)}, {v(VA+2*i,2)}, {v(T0,2)} op_sel_hi:[1,0]' for i in range(4)]
    cv=[f'v_cvt_pk_bf16_f32 {v(OF+i)}, {v(VA+2*i)}, {v(VA+2*i+1)}' for i in range(4)]
    p.extend([pm_[0],pm_[1],cv[0],cv[1],pm_[2],pm_[3],cv[2],cv[3]])
    p.append(';sec3')
    e(f'v_cndmask_b32 {v(QA+4)}, {v(OF)}, {v(OF+2)}, {s(sOdd,2)}'); e(f'v_cndmask_b32 {v(QA+5)}, {v(OF+1)}, {v(OF+3)}, {s(sOdd,2)}')
    O=lambda tp,k: smf(M+4*tp,OF+4*k,unit(('o',tp>>1,k),tp&1))
    def oc(tp,j):
        q=M+8*(tp>>1)+(tp&1)+2*j
        return f'v_cvt_pk_bf16_f32 {v(q)}, {v(M+4*tp+2*j)}, {v(M+4*tp+2*j+1)}'
    ost=lambda u: f'buffer_store_dwordx4 {v(M+8*u,4)}, {v(PST)}, {s(WS,4)}, {s(sPst+u)} offen{sc}'
    ro=[f'ds_read_b128 {v(OF+4*k,4)}, {v(QA+k)} offset:{L_O}' for k in range(1,4)]
    p.extend(G([f'ds_write_b64 {v(OW)}, {v(QA+4,2)} offset:{L_O}'],[O(0,0),rstore(1)],[O(1,0),wo(2,1)[1]],[W(1),'s_barrier',ro[0]],[O(2,0),ro[1],bk[11]],[O(3,0),ro[2],bk[4]],
               [wo(2,2)[1],wo(2,3)[0],W(4)]))
    p.append(';sec4')
    p.extend(G([O(0,1),wo(2,3)[1],W(4)],[O(0,2),wo(3,1)[0],W(4)],[O(0,3),wo(3,1)[1],f's_cmp_lg_u32 {s(sW)}, 0'],
               [O(1,1),wo(3,2)[0],'s_nop 0'],[O(1,2),wo(3,2)[1],W(4)],[O(1,3),wo(3,3)[0],oc(0,0)],
               [O(2,1),wo(3,3)[1],oc(0,1)],[O(2,2),W(4),'s_nop 0',oc(1,0),oc(1,1)],[O(2,3),ost(0)],
               [O(3,1),W(0),'s_nop 1'],[O(3,2),'s_nop 1',oc(2,0)],[O(3,3),'s_nop 1',oc(2,1)],[oc(3,0),oc(3,1),ost(1)]))
    sr=[]
    for g_,t in ((('q',0),0),(('q',0),1),(('q',1),0),(('q',1),1)): sr+=stream_reads(g_,t)
    xs=[]
    for g_,t in ((('q',2),0),(('q',2),1),(('q',3),0),(('q',3),1)): xs+=stream_reads(g_,t)
    xz=weave(xs,zero(QA,8),[0,0,0,0,1,1,1,1])
    if verbose and par==0:
        fx=fix(p,'main',True); print('model cycles',simulate(fx,OPT['show']), 'inserted waits', len([l for l in fx if l.startswith('s_waitcnt')])-len([l for l in p if l.startswith('s_waitcnt')]))
    if OPT['solo']:
        marks=[i for i,l in enumerate(p) if l.startswith(';sec')]
        if OPT['cutm']>=0:
            marks=[i+1 for i,l in enumerate(p) if l.startswith(('v_mfma','v_smfmac'))]; OPT['cut']=OPT['cutm']
        if OPT['cut']<len(marks):
            rest=p[marks[OPT['cut']]:]
            p[:]=p[:marks[OPT['cut']]]+['s_memtime s[62:63] ;stamp']+[l for l in rest if (l.startswith(('s_add','s_and','s_cmp','s_cbranch_scc')) or l.endswith(':'))]
        d=OPT['drop']
        if d&1: p[:]=[l for l in p if not l.startswith('buffer_store')]
        if d&2: p[:]=[l for l in p if not l.startswith('buffer_load')]
        if OPT['cut']>=len(marks): p.append('s_memtime s[62:63] ;stamp')
        p.extend(['s_waitcnt vmcnt(0)']+kw+kv_addr()+sr+xz)
        p.extend(['s_waitcnt lgkmcnt(0) vmcnt(0)','s_sub_u32 s62, s62, s60', f's_add_u32 {s(sSpin)}, {s(sSpin)}, s62', 's_barrier', 's_sleep 8', 's_memtime s[60:61] ;stamp', 's_waitcnt lgkmcnt(0)', 's_barrier'])
        if par==1: p.append(f's_branch L_ch_{mode}0')
        return fix(p,f'solo{par}'), [f'{L}_r2:',f's_branch {L}_r2x']
    kc=lambda x: kv_check(L+x) if OPT['sync'] else []
    if rp: return window_rp(locals())
    p.extend(tr(0)+tr(1,True))
    e(f's_cbranch_scc1 {L}_w')
    head=list(p)
    p.extend(trdump())
    e(f'ds_read_b128 {v(QA+4,4)}, {v(L16)} offset:{L_SEL}')
    e(f'v_mov_b32 {v(M+2)}, {s(sStep)}')
    for i in range(OPT['d1']-(8 if OPT['tr'] else 0)): e('s_nop 3')
    p.extend(tr(2))
    ld1=[f'buffer_load_dwordx4 {v(X+4*j,4)}, {v(L16)}, {s(WS,4)}, {s(sPin+(j>>2))} offen offset:{(j&3)*1024} sc1' for j in range(8)]
    if OPT['ro1']:
        p[-1:-1]=[f's_add_u32 {s(sT+4+k)}, {s(sPin)}, {s(sRo1+k)}' for k in range(4)]; p.pop()
        ld1=[f'buffer_load_dwordx4 {v(X+4*j,4)}, {v(L16)}, {s(WS,4)}, {s(sT+4+(j>>1))} offen offset:{(j&1)*1024} sc1' for j in range(8)]
    fst=[f's_mov_b64 exec, {s(sEx,2)}', f'buffer_store_dword {v(M+2)}, {v(L16)}, {s(WS,4)}, {s(sFlag)} offen{sc}', 's_mov_b64 exec, -1']
    p.extend(ld1); p.extend(sr); e(W(8))
    p.append(f'{L}_p1:')
    RM=lambda j: f'{MF32} {v(QA,4)}, {v(QA+4,4)}, {v(X+4*j,4)}, '+(v(QA,4) if j else '0')
    p.extend(['s_waitcnt vmcnt(7)',RM(0),'s_waitcnt vmcnt(6)',f'v_cmp_u_f32 vcc, {v(X)}, {v(X+4)}',RM(1),
              fst[0], f's_cbranch_vccnz {L}_r0']+fst[1:]+(['s_barrier'] if OPT['b0'] else [])+tr(3)+[f'{L}_p2:'])
    for j in range(2,8):
        e(f's_waitcnt vmcnt({8-j})'); e(RM(j))
    e(f'v_cvt_pk_bf16_f32 {v(M)}, {v(QA)}, {v(QA+1)}')
    e(f'v_cvt_pk_bf16_f32 {v(M+1)}, {v(QA+2)}, {v(QA+3)}')
    e(f'buffer_store_dwordx2 {v(M,2)}, {v(MPUB)}, {s(WS,4)}, {s(sMemPub)} offen{sc}')
    e(f'v_cmp_u_f32 vcc, {v(QA)}, {v(QA)}')
    p.extend(tr(4))
    e(f's_cbranch_vccnz {L}_r1')
    p.append(f'{L}_p1ok:')
    p.extend([kw[0]]+kw[2:]+kc('_ka')+xz)
    nxt=f'L_ch_{mode}{1-par if two else 0}'
    tailc=['s_barrier', pub]+([rstore(0)] if OPT['rs']==0 else [])
    tail2=kv_addr()+[f's_add_u32 {s(sKvm)}, {s(sKvm)}, 4096', f's_branch {nxt}']
    p.append(f'{L}_b1:')
    p.extend(tailc+tail2)
    body=fix(p,f'step{mode}{par}',verbose)
    ld2=[f'buffer_load_dwordx4 {v(H2A)}, {s(WS,4)}, {s(sMemIn0)} offen offset:{1024*j} sc1 lds' for j in range(4)]
    ld2+=[f's_mov_b32 m0, {L_MEM+4096}','s_nop 0']+[f'buffer_load_dwordx4 {v(H2A)}, {s(WS,4)}, {s(sMemIn1)} offen offset:{1024*j} sc1 lds' for j in range(4)]
    ld2r=ld2
    if OPT['ro2']:
        ld2r=[]
        for j in range(8):
            ld2r+=[f's_add_u32 m0, {s(sRo2+(j&3))}, {L_MEM+4096*(j>>2)}', f's_add_u32 {s(sT+4)}, {s(sRo2+(j&3))}, {s(sMemIn1 if j>>2 else sMemIn0)}',
                   f'buffer_load_dwordx4 {v(H2A)}, {s(WS,4)}, {s(sT+4)} offen sc1 lds']
    q=[f'{L}_w:']+kw+[f's_cmp_lg_u32 {s(sW)}, 3', f's_cbranch_scc1 {L}_w3', f'buffer_store_dwordx2 {v(ONES,2)}, {v(MPUB)}, {s(WS,4)}, {s(sMemRst)} offen{sc}', f'{L}_w3:']+kc('_kb')+trdump()+sr+xz; e=q.append
    e(f's_cmp_eq_u32 {s(sW)}, 1'); e(f's_cbranch_scc1 {L}_fb')
    if OPT['b0']: e('s_barrier')
    e(f's_branch {L}_b1')
    q.append(f'{L}_fb:')
    e(f'v_lshrrev_b32 {v(T0)}, 2, {v(L16)}'); e(f'v_and_b32 {v(T0)}, 0x7c, {v(T0)}')
    if OPT['b0']: e('s_barrier')
    for i in range(max(0,OPT['sl']-(7 if OPT['tr'] and not OPT['b0'] else 0))): e('s_nop 3')
    q.extend(tr(2))
    if OPT['ro2']: q.extend(ld2r[:2]); ld2r=ld2r[2:]
    N=OPT['nb']
    fl=f'buffer_load_dword {v(PM)}, {v(T0)}, {s(WS,4)}, {s(sFlagB)} offen sc1'
    for i in range(N-1): e(fl); e(f's_nop {7+OPT["pp"]}')
    q.append(f'{L}_fb2:')
    for i in range(8):
        e(fl)
        if OPT['pp']: e(f's_nop {OPT["pp"]-1}')
        e(f's_waitcnt vmcnt({N-1})'); e(f'v_cmp_gt_u32 vcc, {s(sStep)}, {v(PM)}'); e(f's_cbranch_vccz {L}_fb3')
    e(f's_add_u32 {s(sSpinF)}, {s(sSpinF)}, 1'); e(f's_cmp_gt_u32 {s(sSpinF)}, {LIM}'); e(f's_cbranch_scc0 {L}_fb2')
    q.append(f'{L}_fb3:')
    q.extend(tr(3)); q.extend(ld2r)
    q.extend(tailc+[f's_sub_u32 {s(sT+3)}, {s(sStep)}, 1', f'v_mov_b32 {v(FLG)}, {s(sT+3)}', 's_mov_b64 exec, 1',
        f'buffer_store_dword {v(FLG)}, off, {s(WS,4)}, {s(sKvmF)} sc1', 's_mov_b64 exec, -1']+tail2)
    i=q.index(f'{L}_fb:')
    alt=fix(head+q[:i],f'alt{mode}{par}',False)
    q=alt[alt.index(f'{L}_w:'):]+q[i:]
    e=q.append
    if OPT['sync']: q.extend(kv_wait(L+'_ka')+kv_wait(L+'_kb'))
    q.append(f'{L}_r0:')
    e('s_mov_b64 exec, -1')
    q.append(f'{L}_r0l:')
    q.extend(ld1); e(f's_add_u32 {s(sSpin)}, {s(sSpin)}, 1'); e(f's_cmp_gt_u32 {s(sSpin)}, {LIM}'); e(f's_cbranch_scc1 {L}_r0g')
    q.extend(['s_waitcnt vmcnt(6)',f'v_cmp_u_f32 vcc, {v(X)}, {v(X+4)}',f's_cbranch_vccnz {L}_r0l', f'{L}_r0g:'])
    for j in range(8): e(f's_waitcnt vmcnt({7-j})'); e(RM(j))
    q.extend(['s_nop 7', f'v_cmp_u_f32 vcc, {v(QA)}, {v(QA)}', f'v_cvt_pk_bf16_f32 {v(M)}, {v(QA)}, {v(QA+1)}', f'v_cvt_pk_bf16_f32 {v(M+1)}, {v(QA+2)}, {v(QA+3)}',
              f's_cbranch_scc1 {L}_r0e', f's_cbranch_vccnz {L}_r0l', f'{L}_r0e:',
              f'buffer_store_dwordx2 {v(M,2)}, {v(MPUB)}, {s(WS,4)}, {s(sMemPub)} offen{sc}']+fst+(['s_barrier'] if OPT['b0'] else [])+tr(3)+tr(4)+[f's_branch {L}_p1ok'])
    q.append(f'{L}_r1:')
    e(f's_add_u32 {s(sSpin)}, {s(sSpin)}, 256'); e(f's_cmp_gt_u32 {s(sSpin)}, {LIM}'); e(f's_cbranch_scc1 {L}_p1ok')
    q.extend(ld1); q.extend(['s_waitcnt vmcnt(0)',RM(0),RM(1)]); e(f's_branch {L}_p2')
    q.append(f'{L}_r2:')
    e(f's_add_u32 {s(sSpinU)}, {s(sSpinU)}, 1'); e(f's_cmp_gt_u32 {s(sSpinU)}, {LIM}'); e(f's_cbranch_scc1 {L}_r2x')
    e(f's_cmp_eq_u32 {s(sStep)}, 0'); e(f's_cbranch_scc1 {L}_r2x')
    e(f's_mov_b32 m0, {L_MEM}'); e(f's_cmp_lg_u32 {s(sW)}, 1')
    e('s_waitcnt lgkmcnt(0)'); e('s_barrier'); e(f's_cbranch_scc1 {L}_r2b')
    q.extend(ld2); q.append(f'{L}_r2b:'); e('s_nop 7'); q.extend(zero(ONES,4,'-1')); q.extend(sr); q.extend(xs); q.extend(zero(QA,8))
    e('s_waitcnt vmcnt(0) lgkmcnt(0)'); e('s_barrier')
    for c_ in range(4): e(mrd(c_))
    e(f's_branch {L}_re')
    return body, q

def window_rp(d):
    L,p,sc,mode,par,two,tr,trdump,kw,kc,sr,xs,xz,W,rstore,sp,verbose=[d[k] for k in 'L p sc mode par two tr trdump kw kc sr xs xz W rstore sp verbose'.split()]
    e=p.append
    p.extend(tr(0)+tr(1,True))
    e(f's_cbranch_scc1 {L}_w')
    head=list(p)
    p.extend(kw+kc('_ka'))
    e(f'ds_read_b128 {v(QA+4,4)}, {v(L16)} offset:{L_SEL}')
    p.extend(sr+trdump())
    for i in range(OPT['d1']-(8 if OPT['tr'] else 0)): e('s_nop 3')
    p.extend(tr(2))
    ld1=[f'buffer_load_dwordx4 {v(X+4*j,4)}, {v(L16)}, {s(WS,4)}, {s(sPin+(j>>2))} offen offset:{(j&3)*1024} sc1' for j in range(8)]
    pre=h2_addr(T0,PM)+[f's_add_u32 {s(sT+4)}, {s(sMemIn0)}, {s(sWoff)}', f's_add_u32 {s(sT+5)}, {s(sMemIn1)}, {s(sWoff)}', f's_add_u32 m0, {s(sWoff)}, {L_MEM+4096}',
         f'v_add_u32 {v(PM)}, {s(sWoff)}, {v(L16)}', f's_sub_u32 {s(sT+3)}, {s(sStep)}, 1', f'v_mov_b32 {v(FLG)}, {s(sT+3)}']
    p.extend(ld1); p.extend(pre); e(W(0))
    p.append(f'{L}_p1:')
    RM=lambda j: f'{MF32} {v(QA,4)}, {v(QA+4,4)}, {v(X+4*j,4)}, '+(v(QA,4) if j else '0')
    p.extend(['s_waitcnt vmcnt(7)',RM(0),'s_waitcnt vmcnt(6)',f'v_cmp_u_f32 vcc, {v(X)}, {v(X+4)}',RM(1),'s_waitcnt vmcnt(5)',RM(2),f's_cbranch_vccnz {L}_r0', f'{L}_r0x:']+tr(3))
    for j in range(3,8):
        e(f's_waitcnt vmcnt({7-j})'); e(RM(j))
    e(f'v_cvt_pk_bf16_f32 {v(M)}, {v(QA)}, {v(QA+1)}')
    e(f'v_cvt_pk_bf16_f32 {v(M+1)}, {v(QA+2)}, {v(QA+3)}')
    e(f'buffer_store_dwordx2 {v(M,2)}, {v(MPUB)}, {s(WS,4)}, {s(sMemPub)} offen{sc}')
    e(f'v_cmp_u_f32 vcc, {v(QA)}, {v(QA)}')
    p.extend(tr(4))
    e(f's_cbranch_vccnz {L}_r1')
    p.append(f'{L}_p1ok:')
    p.extend(xz)
    for i in range(OPT['dp']): e('s_nop 3')
    p.append(f'{L}_b1:')
    body=fix(p,f'step{mode}{par}',verbose)
    e=body.append
    e('s_barrier')
    N=OPT['np']
    pl=f'buffer_load_dwordx4 {v(STG,4)}, {v(T0)}, {s(WS,4)}, {s(sT+4)} offen sc1'
    dm=f'buffer_load_dwordx4 {v(T0)}, {s(WS,4)}, {s(sT+5)} offen sc1 lds'
    def nops(k):
        o=[]
        while k>0: o.append(f's_nop {min(k,16)-1}'); k-=16
        return o
    for i in range(N-1): e(pl); body.extend(nops(OPT['ps']))
    e(pl); e(f's_waitcnt vmcnt({N-1})'); e(f'v_cmp_u_f32 vcc, {v(STG)}, {v(STG+2)}'); e(f's_cbranch_vccnz {L}_pl')
    body.append(f'{L}_plx:')
    e(f'ds_write_b128 {v(PM)}, {v(STG,4)} offset:{L_MEM}'); e(dm); body.extend(tr(6))
    if sp==0: e(rstore(0))
    body.extend(kv_addr()); e(f's_branch L_ch_{mode}{1-par if two else 0}')
    q=[f'{L}_w:',f's_sleep {OPT["sw"]}']+kw; e=q.append
    e(f's_cmp_lg_u32 {s(sW)}, 3'); e(f's_cbranch_scc1 {L}_w3')
    e(f'buffer_store_dwordx2 {v(ONES,2)}, {v(MPUB)}, {s(WS,4)}, {s(sMemRst)} offen{sc}')
    q.extend([f'{L}_w3:']+kc('_kb')+trdump()+sr+xz+pre)
    e(f's_branch {L}_b1')
    alt=fix(head+q,f'alt{mode}{par}',False)
    q=alt[alt.index(f'{L}_w:'):]; e=q.append
    q.append(f'{L}_pl:')
    for i in range(4):
        e(pl); e(f's_waitcnt vmcnt({N-1})'); e(f'v_cmp_u_f32 vcc, {v(STG)}, {v(STG+2)}'); e(f's_cbranch_vccz {L}_plx')
    e(f's_add_u32 {s(sSpinF)}, {s(sSpinF)}, 1'); e(f's_cmp_gt_u32 {s(sSpinF)}, {LIM}'); e(f's_cbranch_scc0 {L}_pl'); e(f's_branch {L}_plx')
    if OPT['sync']: q.extend(kv_wait(L+'_ka')+kv_wait(L+'_kb'))
    q.append(f'{L}_r0:')
    e(f's_add_u32 {s(sSpin)}, {s(sSpin)}, 1'); e(f's_cmp_gt_u32 {s(sSpin)}, {LIM}'); e(f's_cbranch_scc1 {L}_r0x')
    q.extend(ld1); e(f's_branch {L}_p1')
    q.append(f'{L}_r1:')
    e(f's_add_u32 {s(sSpin)}, {s(sSpin)}, 256'); e(f's_cmp_gt_u32 {s(sSpin)}, {LIM}'); e(f's_cbranch_scc1 {L}_p1ok')
    q.extend(ld1); e(f's_branch {L}_p1')
    q.append(f'{L}_r2:')
    e(f's_add_u32 {s(sSpinU)}, {s(sSpinU)}, 1'); e(f's_cmp_gt_u32 {s(sSpinU)}, {LIM}'); e(f's_cbranch_scc1 {L}_r2x')
    e(f's_cmp_eq_u32 {s(sStep)}, 0'); e(f's_cbranch_scc1 {L}_r2x')
    e('s_waitcnt vmcnt(0) lgkmcnt(0)'); e('s_barrier')
    q.extend(pre); e(dm); e(f's_add_u32 m0, {s(sWoff)}, {L_MEM}'); e('s_nop 0'); e(dm.replace(s(sT+5),s(sT+4)))
    q.extend(kv_addr()+zero(ONES,4,'-1')); q.extend(sr); q.extend(xs); q.extend(zero(QA,8))
    e('s_waitcnt vmcnt(0) lgkmcnt(0)'); e('s_barrier')
    for c_ in range(4): e(mrd(c_))
    e(f's_branch {L}_re')
    return body, q

def chain_body(timing=False, verbose=False):
    A=Asm()
    pro=prologue(timing)
    F0,f0=step('F',0,verbose); F1,f1=step('F',1); S0,s0=step('S',0); S1,s1=step('S',1)
    if not OPT['rp']: check(pro+F0+F0,'chainF')
    for x in ((pro,F0,F1,f0,f1,S0,S1,s0,s1) if (OPT['tr'] or OPT['solo']) else (pro,F0,f0,S0,s0)): A.extend(x)
    A.label('L_ch_last')
    A(f'''buffer_store_dwordx4 {v(KVQ,4)}, {v(L16)}, {s(WS,4)}, {s(sKvm)} offen sc1
    s_waitcnt vmcnt(0)
    v_mov_b32 {v(FLG)}, 64
    s_barrier
    s_cmp_lg_u32 {s(sW)}, 1
    s_cbranch_scc1 L_ch_nf
    s_mov_b64 exec, 1
    buffer_store_dword {v(FLG)}, off, {s(WS,4)}, {s(sKvmF)} sc1
    s_mov_b64 exec, -1
    L_ch_nf:''')
    if timing:
        A(f'''s_lshl_b32 {s(sSpinU)}, {s(sSpinU)}, 16
        s_add_u32 {s(sSpin)}, {s(sSpin)}, {s(sSpinU)}
        s_memrealtime {s(sTime+4,2)}
        s_memtime {s(sTime+8,2)}
        s_waitcnt lgkmcnt(0)
        s_sub_u32 {s(sT)}, {s(sTime+2)}, {s(sTime)}
        s_sub_u32 {s(sT+1)}, {s(sTime+4)}, {s(sTime+2)}
        s_sub_u32 {s(sT+2)}, {s(sTime+8)}, {s(sTime+6)}
        v_mov_b32 v4, {s(sT)}
        v_mov_b32 v5, {s(sT+1)}
        v_mov_b32 v6, {s(sT+2)}
        v_mov_b32 v7, {s(sSpin)}
        s_lshl_b32 {s(sT)}, {s(sH)}, 2
        s_add_u32 {s(sT)}, {s(sT)}, {s(sW)}
        s_lshl_b32 {s(sT)}, {s(sT)}, 5
        s_add_u32 {s(sT)}, {s(sT)}, 16384
        v_mov_b32 v0, {s(sT)}
        s_sub_u32 s80, s80, {s(sTime)}
        s_sub_u32 s82, s82, {s(sTime)}
        s_sub_u32 s84, s84, {s(sTime)}
        s_sub_u32 s86, s86, {s(sTime)}
        v_mov_b32 v8, s80
        v_mov_b32 v9, s82
        v_mov_b32 v10, s84
        v_mov_b32 v11, s86
        s_mov_b64 exec, 1
        global_store_dwordx4 v0, v[8:11], {s(DBG,2)} offset:16
        global_store_dwordx4 v0, v[4:7], {s(DBG,2)}''')
    return A

def kernel_text(name, body):
    return f'''.globl {name}
.p2align 8
.type {name},@function
{name}:
{body.text()}    s_endpgm
'''
def kernel_desc(name, vgpr=512, accum=256, sgpr=102):
    return f'''.p2align 6
.amdhsa_kernel {name}
  .amdhsa_next_free_vgpr {vgpr}
  .amdhsa_next_free_sgpr {sgpr}
  .amdhsa_accum_offset {accum}
  .amdhsa_group_segment_fixed_size 0
  .amdhsa_kernarg_size 120
  .amdhsa_user_sgpr_count 2
  .amdhsa_user_sgpr_kernarg_segment_ptr 1
  .amdhsa_system_sgpr_workgroup_id_x 1
  .amdhsa_float_denorm_mode_32 3
.end_amdhsa_kernel
'''

if __name__=='__main__':
    import sys
    for x in sys.argv:
        if '=' in x: OPT[x.split('=')[0]]=int(x.split('=')[1])
    A=Asm()
    if 'spread' in sys.argv:
        A(f's_cmp_ge_u32 s2, 32\ns_cbranch_scc1 L_exit\ns_mov_b32 {s(sH)}, s2')
    else:
        A(f's_cmp_ge_u32 s2, 256\ns_cbranch_scc1 L_exit\ns_and_b32 s3, s2, 7\ns_cmp_lg_u32 s3, 0\ns_cbranch_scc1 L_exit\ns_lshr_b32 {s(sH)}, s2, 3')
    A.extend(chain_body(timing=True, verbose=True))
    A.label('L_exit')
    txt='; @launch kernel=chain_kernel grid=(256,1,1) block=(256,1,1) lds=163840\n.amdgcn_target "amdgcn-amd-amdhsa--gfx950"\n.text\n'
    txt+=kernel_text('chain_kernel',A)+'.section .rodata,"a"\n'+kernel_desc('chain_kernel')
    open(sys.argv[1],'w').write(txt)
```

```python
import sys
from asmlib import *
from layout import *
import bulk as B, chain as C
prof='prof' in sys.argv
C.OPT['sync']=1
for x in sys.argv:
    if '=' in x:
        k,val=x.split('='); (C.OPT if k in C.OPT else B.OPT)[k]=int(val)
sB=B.sB
_n=[0]
def stamp(slot,who,reg,sw,dbg):
    if not prof: return []
    _n[0]+=1; L=f'L_st{_n[0]}'
    return [f's_cmp_lg_u32 {s(reg)}, {who}',f's_cbranch_scc1 {L}',f's_cmp_lg_u32 {s(sw)}, 0',f's_cbranch_scc1 {L}','s_memrealtime s[90:91]','s_waitcnt lgkmcnt(0)',
            'v_mov_b32 v11, s90',f'v_mov_b32 v15, {160+4*slot}','s_mov_b64 exec, 1',f'global_store_dword v15, v11, {s(dbg,2)}','s_mov_b64 exec, -1',L+':']
bs=lambda slot,who: stamp(slot,who,sB,B.sW,B.DBG)
B.STAMP=bs
A=Asm()
A(f'''s_cmp_ge_u32 s2, 256
s_cbranch_scc1 L_exit
s_and_b32 s3, s2, 7
s_cmp_lg_u32 s3, 0
s_cbranch_scc1 L_bulk
s_lshr_b32 {s(C.sH)}, s2, 3''')
A.extend(C.chain_body(timing=prof))
A.label('L_exit'); A('s_endpgm'); A.label('L_bulk')
A(f's_sub_u32 s3, s3, 1\ns_lshl_b32 s3, s3, 5\ns_lshr_b32 {s(sB)}, s2, 3\ns_add_u32 {s(sB)}, {s(sB)}, s3')
A.extend(B.roles()); A.extend(fix(B.common())); A.extend(bs(0,0))
A(f's_cmp_ge_u32 {s(B.sZ)}, 96\ns_cbranch_scc1 L_ln\ns_cmp_lg_u32 {s(B.sZ)}, 95\ns_cbranch_scc1 L_mod')
A.extend(B.flag_init()); A.label('L_mod'); A.extend(B.mod_phase(True)); A.extend(bs(1,0)); A('s_branch L_p1')
A.label('L_ln'); A.extend(B.ln_phase(True)); A.extend(bs(2,96)); A.label('L_p1')
a_,b_=B.p1_setup(); A.extend(a_); A.extend(b_); A.extend(bs(3,0)); A.extend(bs(4,96))
A.extend(B.p1_main(True)); A.extend(bs(5,0)); A.extend(bs(6,96))
A.extend(B.p2_setup(True)); A.extend(B.p2_loop('F',True)); A.extend(B.p2_loop('S',True))
kn=NAME+'_kernel'
txt='; @launch grid=(256,1,1) block=(256,1,1) lds=163840\n.amdgcn_target "amdgcn-amd-amdhsa--gfx950"\n.text\n'
txt+=C.kernel_text(kn,A)+'.section .rodata,"a"\n'+C.kernel_desc(kn)
open(sys.argv[1],'w').write(txt)
```

```python
from asmlib import *
from layout import *
import math, struct
MF32='v_mfma_f32_16x16x32_bf16'; MF16='v_mfma_f32_16x16x16_bf16'; SMF='v_smfmac_f32_16x16x64_bf16'
f2u=lambda x: struct.unpack('<I',struct.pack('<f',x))[0]
WS=4; SRD=8; DBG=12; sB=14; sW=15; sMask=16; sSpin=17
sP=52
PX,PWQ,PWK,PWV,PWO,PW1,PW2,PC,PWM,POUT=[sP+2*i for i in (0,2,3,4,5,8,9,10,11,12)]
sT=40
sHd=21; sR=22; sZ=39
LN=0; N=1; Gv=2; L16=3
LIM='0x400000'
OPT=dict(d2=2, pf2=0, pf1=1, nl=4, dl=0)
STAMP=lambda slot,who: []
def common():
    return [f's_load_dwordx16 {s(sP,16)}, s[0:1], 0', f's_load_dwordx8 {s(sP+16,8)}, s[0:1], 64', f's_load_dwordx2 {s(sP+24,2)}, s[0:1], 96',
        f's_load_dwordx2 {s(DBG,2)}, s[0:1], 104', f's_load_dwordx2 {s(WS,2)}, s[0:1], 112',
        'v_lshrrev_b32 v1, 6, v0', f'v_and_b32 {v(LN)}, 63, v0', f'v_readfirstlane_b32 {s(sW)}, v1',
        f's_mov_b32 {s(WS+2)}, {WS_BYTES}', f's_mov_b32 {s(WS+3)}, 0x20000', f's_mov_b32 {s(SRD+3)}, 0x20000',
        f's_mov_b32 {s(sMask)}, 0xffff0000', f's_mov_b32 {s(sSpin)}, 0',
        f'v_and_b32 {v(N)}, 15, {v(LN)}', f'v_lshrrev_b32 {v(Gv)}, 4, {v(LN)}', f'v_lshlrev_b32 {v(L16)}, 4, {v(LN)}', 's_waitcnt lgkmcnt(0)']
NR=2; NG=5
def roles():
    return [f's_lshr_b32 {s(sHd)}, {s(sB)}, 1', f's_and_b32 {s(sR)}, {s(sB)}, 1', f's_sub_u32 {s(sZ)}, {s(sB)}, 64']
def srd(p,size): return [f's_mov_b32 {s(SRD)}, {s(p)}', f's_mov_b32 {s(SRD+1)}, {s(p+1)}', f's_mov_b32 {s(SRD+2)}, {size}']
def rnd(a,b,t): return [f'v_cvt_pk_bf16_f32 {v(t)}, {v(a)}, {v(b)}', f'v_lshlrev_b32 {v(a)}, 16, {v(t)}', f'v_and_b32 {v(b)}, {s(sMask)}, {v(t)}']
def unp(d,src): return [f'v_and_b32 {v(d+1)}, {s(sMask)}, {v(src)}', f'v_lshlrev_b32 {v(d)}, 16, {v(src)}']
def xg(op,a,t):
    return [f'v_mov_b32 {v(t)}, {v(a)}', f'v_permlane32_swap_b32 {v(a)}, {v(t)}', f'{op} {v(a)}, {v(a)}, {v(t)}',
            f'v_mov_b32 {v(t)}, {v(a)}', f'v_permlane16_swap_b32 {v(a)}, {v(t)}', f'{op} {v(a)}, {v(a)}, {v(t)}']
def xrow(a):
    return [f'v_add_f32_dpp {v(a)}, {v(a)}, {v(a)} row_ror:{k} row_mask:0xf bank_mask:0xf' for k in (1,2,4,8)]
_u=[0]
def poll(addr_v, soff, cmp_s, r, off=0):
    _u[0]+=1; k=_u[0]
    return [f'L_po{k}:', f'buffer_load_dword {v(r)}, {v(addr_v)}, {s(WS,4)}, {soff} offen offset:{off} sc1', f's_add_u32 {s(sSpin)}, {s(sSpin)}, 1',
            f's_cmp_gt_u32 {s(sSpin)}, {LIM}', f's_cbranch_scc1 L_pe{k}', 's_waitcnt vmcnt(0)', f'v_cmp_gt_u32 vcc, {cmp_s}, {v(r)}', f's_cbranch_vccnz L_po{k}', f'L_pe{k}:', 's_waitcnt vmcnt(0)']

def pollp(addr_v, soff, cmp_s, r, N=4):
    _u[0]+=1; k=_u[0]
    ld=f'buffer_load_dword {v(r)}, {v(addr_v)}, {s(WS,4)}, {soff} offen sc1 ;stamp'
    o=[]
    for i in range(N-1): o+=[ld,'s_nop 11']
    o+=[f'L_po{k}:', ld, f's_add_u32 {s(sSpin)}, {s(sSpin)}, 1', f's_cmp_gt_u32 {s(sSpin)}, {LIM}', f's_cbranch_scc1 L_pe{k}', f's_waitcnt vmcnt({N-1}) ;stamp',
        f'v_cmp_gt_u32 vcc, {cmp_s}, {v(r)}', f's_cbranch_vccnz L_po{k}', f'L_pe{k}:']
    return o

def mod_phase(sync):
    p=[]; e=p.append
    W_=16; C_=48; AC=56; A0=4; A1=5; T=6
    p.append('L_mod_top:')
    e(f'v_lshrrev_b32 {v(A0)}, 2, {v(LN)}'); e(f's_lshl_b32 {s(sT)}, {s(sW)}, 4'); e(f'v_add_u32 {v(A0)}, {s(sT)}, {v(A0)}')
    e(f'v_lshlrev_b32 {v(A1)}, 1, {v(A0)}')
    e(f'v_mul_u32_u24 {v(A0)}, 6144, {v(A0)}'); e(f'v_and_b32 {v(T)}, 3, {v(LN)}'); e(f'v_lshl_add_u32 {v(A0)}, {v(T)}, 4, {v(A0)}')
    p+=srd(PWM,512*6144)
    for i in range(8): e(f'global_load_ushort {v(C_+i)}, {v(A1)}, {s(PC,2)} offset:{128*i}')
    e(f's_lshl_b32 {s(sT)}, {s(sZ)}, 6')
    for i in range(8):
        e(f'buffer_load_dwordx4 {v(W_+4*i,4)}, {v(A0)}, {s(SRD,4)}, {s(sT)} offen'); e(f's_add_u32 {s(sT)}, {s(sT)}, {64*6144}')
    for i in range(8): e(f'v_lshlrev_b32 {v(C_+i)}, 16, {v(C_+i)}')
    for i in range(8): e(f'v_mul_f32 {v(AC+i)}, {hex(f2u(-math.log2(math.e)))}, {v(C_+i)}')
    for i in range(8): e(f'v_exp_f32 {v(AC+i)}, {v(AC+i)}')
    for i in range(8): e(f'v_add_f32 {v(AC+i)}, 1.0, {v(AC+i)}')
    for i in range(8): e(f'v_rcp_f32 {v(AC+i)}, {v(AC+i)}')
    for i in range(8): e(f'v_mul_f32 {v(C_+i)}, {v(C_+i)}, {v(AC+i)}')
    for i in range(0,8,2): p+=rnd(C_+i,C_+i+1,T)
    for i in range(8):
        for d in range(4):
            p+=unp(8,W_+4*i+d)
            for k in range(2):
                e(f'v_mul_f32 {v(AC+2*d+k)}, {v(C_+i)}, {v(8+k)}' if i==0 else f'v_fmac_f32 {v(AC+2*d+k)}, {v(C_+i)}, {v(8+k)}')
    for k in (4,8):
        for i in range(8): e(f'v_add_f32_dpp {v(AC+i)}, {v(AC+i)}, {v(AC+i)} row_ror:{k} row_mask:0xf bank_mask:0xf')
    e(f's_lshl_b32 {s(sT)}, {s(sW)}, 9'); e(f'v_and_b32 {v(T)}, 3, {v(LN)}'); e(f'v_lshlrev_b32 {v(T)}, 5, {v(T)}')
    e(f'v_lshl_add_u32 {v(T)}, {v(Gv)}, 7, {v(T)}'); e(f'v_add_u32 {v(T)}, {s(sT)}, {v(T)}')
    e(f'ds_write_b128 {v(T)}, {v(AC,4)}'); e(f'ds_write_b128 {v(T)}, {v(AC+4,4)} offset:16')
    e('s_waitcnt lgkmcnt(0)'); e('s_barrier')
    e(f's_cmp_lg_u32 {s(sW)}, 0'); e('s_cbranch_scc1 L_mod_end')
    e(f'v_and_b32 {v(A0)}, 31, {v(LN)}'); e(f'v_lshrrev_b32 {v(A1)}, 5, {v(LN)}'); e(f'v_lshlrev_b32 {v(T)}, 2, {v(A0)}'); e(f'v_lshl_add_u32 {v(T)}, {v(A1)}, 10, {v(T)}')
    for i in range(8): e(f'ds_read_b32 {v(AC+i)}, {v(T)} offset:{128*i}')
    for i in range(1,8): e(f'v_add_f32 {v(AC)}, {v(AC)}, {v(AC+i)}')
    e(f'v_mov_b32 {v(T)}, {v(AC)}'); e(f'v_permlane32_swap_b32 {v(AC)}, {v(T)}'); e(f'v_add_f32 {v(AC)}, {v(AC)}, {v(T)}')
    e(f'v_cvt_pk_bf16_f32 {v(AC)}, {v(AC)}, {v(AC)}')
    e(f'v_lshlrev_b32 {v(A0)}, 1, {v(A0)}'); e(f's_lshl_b32 {s(sT)}, {s(sZ)}, 6'); e(f's_add_u32 {s(sT)}, {s(sT)}, {MOD_OFF}')
    e(f'buffer_store_short {v(AC)}, {v(A0)}, {s(WS,4)}, {s(sT)} offen sc1')
    if sync:
        e('s_waitcnt vmcnt(0)')
        e(f's_cmp_lt_u32 {s(sZ)}, 32'); e(f's_cselect_b32 {s(sT)}, 0, 4')
        e(f'v_mov_b32 {v(A0)}, {s(sT)}'); e(f'v_mov_b32 {v(A1)}, 1'); e('s_mov_b64 exec, 1')
        e(f'global_atomic_add {v(A0)}, {v(A1)}, {s(DBG,2)} offset:128'); e('s_mov_b64 exec, -1')
    p.append('L_mod_end:')
    e('s_barrier')
    if STAMP(0,0):
        e(f's_cmp_ge_u32 {s(sZ)}, 32'); e('s_cbranch_scc1 L_mod_ns'); p+=STAMP(1,64); p.append('L_mod_ns:')
    e(f's_add_u32 {s(sZ)}, {s(sZ)}, 32'); e(f's_cmp_lt_u32 {s(sZ)}, 96'); e('s_cbranch_scc1 L_mod_top')
    return fix(p,'mod')

def dbg_wait(off,val,r):
    _u[0]+=1; k=_u[0]
    return [f'v_mov_b32 {v(r+1)}, {off}', f'L_po{k}:', f'global_load_dword {v(r)}, {v(r+1)}, {s(DBG,2)} sc1', f's_add_u32 {s(sSpin)}, {s(sSpin)}, 1',
            f's_cmp_gt_u32 {s(sSpin)}, {LIM}', f's_cbranch_scc1 L_pe{k}', 's_waitcnt vmcnt(0)', f'v_cmp_gt_u32 vcc, {val}, {v(r)}', f's_cbranch_vccnz L_po{k}', f'L_pe{k}:', 's_waitcnt vmcnt(0)']

def ln_phase(sync):
    p=[]; e=p.append
    XR=16; XF=32; MD=64; A0=4; A1=5; T=6; S=7; Q=8; R_=10; MU=14; sTile=20
    e(f's_sub_u32 {s(sTile)}, {s(sB)}, 96')
    p+=srd(PX,2048*1024)
    e(f'v_lshlrev_b32 {v(A0)}, 10, {v(N)}'); e(f'v_lshl_add_u32 {v(A0)}, {v(Gv)}, 4, {v(A0)}')
    e(f's_lshl_b32 {s(sT)}, {s(sTile)}, 14'); e(f's_lshl_b32 {s(sT+1)}, {s(sW)}, 8'); e(f's_add_u32 {s(sT)}, {s(sT)}, {s(sT+1)}')
    for i in range(4): e(f'buffer_load_dwordx4 {v(XR+4*i,4)}, {v(A0)}, {s(SRD,4)}, {s(sT)} offen offset:{64*i}')
    if OPT['pf1']:
        e(f's_lshl_b32 {s(sT+3)}, {s(sTile)}, 2'); e(f's_add_u32 {s(sT+3)}, {s(sT+3)}, {s(sW)}'); e(f's_lshl_b32 {s(sT+3)}, {s(sT+3)}, 13'); e(f's_add_u32 {s(sT+4)}, {s(sT+3)}, 4096')
        for ptr in (PWK,PWV,PWQ):
            p+=srd(ptr,4<<20)
            for i in range(8): e(f'buffer_load_dwordx4 {v(100,4)}, {v(L16)}, {s(SRD,4)}, {s(sT+3+(i>>2))} offen offset:{1024*(i&3)}')
    e(f'v_lshlrev_b32 {v(A1)}, 4, {v(N)}'); e(f's_lshl_b32 {s(sT+2)}, {s(sW)}, 2'); e(f'v_add_u32 {v(A0)}, {s(sT+2)}, {v(A1)}')
    for i in range(16): p+=unp(XF+2*i,XR+i)
    e(f'v_add_f32 {v(S)}, {v(XF)}, {v(XF+1)}')
    for i in range(2,32): e(f'v_add_f32 {v(S)}, {v(S)}, {v(XF+i)}')
    def cross(off):
        o=xg('v_add_f32',S,T)+[f'ds_write_b32 {v(A0)}, {v(S)} offset:{off}','s_waitcnt lgkmcnt(0)','s_barrier',f'ds_read_b128 {v(R_,4)}, {v(A1)} offset:{off}',
           f'v_add_f32 {v(S)}, {v(R_)}, {v(R_+1)}', f'v_add_f32 {v(T)}, {v(R_+2)}, {v(R_+3)}', f'v_add_f32 {v(S)}, {v(S)}, {v(T)}', f'v_mul_f32 {v(S)}, {hex(f2u(1/512))}, {v(S)}']
        return o
    p+=cross(0)
    e(f'v_mov_b32 {v(MU)}, {v(S)}')
    for i in range(32):
        e(f'v_sub_f32 {v(T)}, {v(XF+i)}, {v(MU)}'); e(f'v_mul_f32 {v(S)}, {v(T)}, {v(T)}' if i==0 else f'v_fmac_f32 {v(S)}, {v(T)}, {v(T)}')
    p+=cross(256)
    p+=rnd(MU,S,T)
    e(f'v_add_f32 {v(S)}, {hex(f2u(1e-5))}, {v(S)}'); p+=rnd(S,Q,T)[:2]
    e(f'v_sqrt_f32 {v(S)}, {v(S)}'); p+=rnd(S,Q,T)[:2]
    e(f'v_rcp_f32 {v(S)}, {v(S)}')
    for i in range(0,32,2):
        e(f'v_sub_f32 {v(XF+i)}, {v(XF+i)}, {v(MU)}'); e(f'v_sub_f32 {v(XF+i+1)}, {v(XF+i+1)}, {v(MU)}'); p+=rnd(XF+i,XF+i+1,T)
        e(f'v_mul_f32 {v(XF+i)}, {v(XF+i)}, {v(S)}'); e(f'v_mul_f32 {v(XF+i+1)}, {v(XF+i+1)}, {v(S)}'); p+=rnd(XF+i,XF+i+1,T)
    p+=STAMP(17,96)
    if sync: p+=dbg_wait(128,32,R_)
    p+=STAMP(18,96)
    e(f'v_lshlrev_b32 {v(A0)}, 4, {v(Gv)}'); e(f's_add_u32 {s(sT+1)}, {s(sT+1)}, {MOD_OFF}')
    for i in range(4): e(f'buffer_load_dwordx4 {v(MD+4*i,4)}, {v(A0)}, {s(WS,4)}, {s(sT+1)} offen offset:{1024+64*i} sc1')
    for i in range(4): e(f'buffer_load_dwordx4 {v(MD+16+4*i,4)}, {v(A0)}, {s(WS,4)}, {s(sT+1)} offen offset:{64*i} sc1')
    e(f's_lshl_b32 {s(sT)}, {s(sTile)}, 14'); e(f's_lshl_b32 {s(sT+2)}, {s(sW)}, 12'); e(f's_add_u32 {s(sT)}, {s(sT)}, {s(sT+2)}'); e(f's_add_u32 {s(sT)}, {s(sT)}, {H_OFF}')
    for i in range(16):
        a_=XF+2*i
        p+=unp(Q,MD+i); e(f'v_add_f32 {v(Q)}, 1.0, {v(Q)}'); e(f'v_add_f32 {v(Q+1)}, 1.0, {v(Q+1)}'); p+=rnd(Q,Q+1,T)
        e(f'v_mul_f32 {v(a_)}, {v(a_)}, {v(Q)}'); e(f'v_mul_f32 {v(a_+1)}, {v(a_+1)}, {v(Q+1)}'); p+=rnd(a_,a_+1,T)
        p+=unp(Q,MD+16+i); e(f'v_add_f32 {v(a_)}, {v(a_)}, {v(Q)}'); e(f'v_add_f32 {v(a_+1)}, {v(a_+1)}, {v(Q+1)}')
        e(f'v_cvt_pk_bf16_f32 {v(XR+i)}, {v(a_)}, {v(a_+1)}')
        if i%4==3: e(f'buffer_store_dwordx4 {v(XR+i-3,4)}, {v(L16)}, {s(WS,4)}, {s(sT)} offen offset:{1024*(i//4)} sc1')
    p+=STAMP(19,96)
    if sync:
        p+=dbg_wait(136,1,R_)
        e('s_barrier')
        e(f's_lshl_b32 {s(sT)}, {s(sTile)}, 2'); e(f's_add_u32 {s(sT)}, {s(sT)}, {BF_OFF+BF_H}'); e(f'v_mov_b32 {v(T)}, 1')
        e(f's_cmp_lg_u32 {s(sW)}, 0'); e('s_cbranch_scc1 L_ln_end'); e('s_mov_b64 exec, 1')
        e(f'buffer_store_dword {v(T)}, off, {s(WS,4)}, {s(sT)} sc1'); e('s_mov_b64 exec, -1')
        p.append('L_ln_end:')
    return fix(p,'ln')

def flag_init():
    p=[]; e=p.append
    for i in range(4): e(f'v_mov_b32 {v(8+i)}, 0')
    e(f's_lshl_b32 {s(sT)}, {s(sW)}, 12'); e(f's_add_u32 {s(sT)}, {s(sT)}, {BF_OFF}')
    for i in range(4): e(f'buffer_store_dwordx4 {v(8,4)}, {v(L16)}, {s(WS,4)}, {s(sT)} offen offset:{1024*i} sc1')
    e('s_waitcnt vmcnt(0)'); e('s_barrier')
    e(f'v_mov_b32 v8, 136'); e('v_mov_b32 v9, 1'); e('s_mov_b64 exec, 1'); e(f'global_store_dword v8, v9, {s(DBG,2)} sc1'); e('s_mov_b64 exec, -1')
    return fix(p,'fi')

def wstream(blocks, sRing, D=8):
    p=[]; e=p.append; ng=len(blocks)//4; assert len(blocks)%4==0
    def issue(gi):
        for b in range(4):
            su,vo,so,_=blocks[4*gi+b]
            if su: p.extend(su)
            e(f's_add_u32 m0, {s(sRing)}, {((4*gi+b)%32)*1024}'); p.extend(so(sT+7))
            e(f'buffer_load_dwordx4 {v(vo)}, {s(SRD,4)}, {s(sT+7)} offen lds')
    for gi in range(min(D,ng)): issue(gi)
    head=list(p); p.clear()
    for gi in range(ng):
        e(f's_waitcnt vmcnt({4*(min(ng-1,gi+D-1)-gi)})')
        for b in range(4):
            for dst,tra,off in blocks[4*gi+b][3]: e(f'ds_read_b64_tr_b16 {dst}, {v(tra)} offset:{((4*gi+b)%32)*1024+off}')
        e('s_waitcnt lgkmcnt(0)')
        if gi+D<ng: issue(gi+D)
    return head,p

sSeg=23; sRing=24; sCnt=25
VO=4; TRA=5; TRB=6; FA=7
def wreg(m,t,ks):
    i=(m*2+t)*64+4*ks
    return ('a',i) if i<256 else ('v',128+i-256)
def p1_setup():
    p=[]; e=p.append
    e(f's_lshl_b32 {s(sRing)}, {s(sW)}, 15'); e(f's_add_u32 {s(sRing)}, {s(sRing)}, 32768')
    r=120; c_=121; g1=122
    e(f'v_lshrrev_b32 {v(r)}, 2, {v(N)}'); e(f'v_and_b32 {v(c_)}, 3, {v(N)}'); e(f'v_and_b32 {v(g1)}, 1, {v(Gv)}')
    A,B,C=124,125,126
    e(f'v_lshlrev_b32 {v(B)}, 8, {v(Gv)}'); e(f'v_lshl_add_u32 {v(B)}, {v(r)}, 6, {v(B)}'); e(f'v_lshl_add_u32 {v(B)}, {v(g1)}, 5, {v(B)}')
    e(f'v_lshl_add_u32 {v(B)}, {v(c_)}, 3, {v(B)}'); e(f'v_add_u32 {v(B)}, {s(sRing)}, {v(B)}'); e(f'v_xor_b32 {v(C)}, 32, {v(B)}')
    e(f'v_lshlrev_b32 {v(g1)}, 1, {v(g1)}'); e(f'v_xor_b32 {v(c_)}, {v(c_)}, {v(g1)}'); e(f'v_lshlrev_b32 {v(c_)}, 4, {v(c_)}')
    e(f'v_lshl_add_u32 {v(A)}, {v(Gv)}, 3, {v(r)}'); e(f'v_lshl_add_u32 {v(A)}, {v(A)}, 13, {v(c_)}')
    e(f's_lshl_b32 {s(sT)}, {s(sHd)}, 8'); e(f's_lshl_b32 {s(sT+1)}, {s(sW)}, 6'); e(f's_add_u32 {s(sT)}, {s(sT)}, {s(sT+1)}'); e(f'v_add_u32 {v(A)}, {s(sT)}, {v(A)}')
    blocks=[]
    for m,ptr in ((0,PWK),(1,PWV),(2,PWQ)):
        for ks in range(16):
            for jh in range(2):
                dst=[]
                for t in range(2):
                    pf,b=wreg(m,t,ks); dst.append((R(pf,b+2*jh,2), C if t else B, 0))
                blocks.append((srd(ptr,4<<20) if ks%2==0 and jh==0 else None, A, (lambda reg,o=(32*ks+4*jh)*8192: [f's_mov_b32 {s(reg)}, {o}']), dst))
    head,rest=wstream(blocks,sRing)
    i=[k for k,l in enumerate(rest) if l.startswith('s_waitcnt vmcnt')][6]
    rest[i:i]=['v_mov_b32 v9, 136', f'global_load_dword v8, v9, {s(DBG,2)} sc1 ;stamp']
    return fix(p+head,'p1a'), fix(rest,'p1b',vm_init=32)

def p1_main(sync):
    p=[]; e=p.append
    AC=16; HF=64; OUT=96; sHsrc=26; sBuf=27; sKo=28; sVo=29; sQo=30; sFl=31; sNext=32
    acc=lambda m,t,mt: AC+((m*2+t)*2+mt)*4
    def hdma():
        o=[]
        o+=[f's_lshl_b32 {s(sHsrc)}, {s(sNext)}, 15', f's_lshl_b32 {s(sT)}, {s(sW)}, 13', f's_add_u32 {s(sHsrc)}, {s(sHsrc)}, {s(sT)}', f's_add_u32 {s(sHsrc)}, {s(sHsrc)}, {H_OFF}',
            f's_add_u32 m0, {s(sBuf)}, {s(sT)}', f's_add_u32 {s(sT+1)}, {s(sHsrc)}, 4096']
        o+=[f'buffer_load_dwordx4 {v(L16)}, {s(WS,4)}, {s(sHsrc)} offen offset:{1024*i} sc1 lds' for i in range(4)]
        o+=['s_add_u32 m0, m0, 4096','s_nop 0']+[f'buffer_load_dwordx4 {v(L16)}, {s(WS,4)}, {s(sT+1)} offen offset:{1024*i} sc1 lds' for i in range(4)]
        return o
    e('s_barrier')
    if sync:
        e('v_cmp_eq_u32 vcc, 0, v8'); e('s_cbranch_vccz L_p1_in'); p+=dbg_wait(136,1,8); p.append('L_p1_in:')
        e(f'v_lshlrev_b32 {v(FA)}, 3, {v(LN)}'); e(f's_mov_b32 {s(sT)}, {BF_OFF+BF_H}')
        pl=poll(FA,s(sT),'1',8); pl[1]=pl[1].replace('dword v8','dwordx2 v[8:9]'); pl[6:6]=['v_min_u32 v8, v8, v9']
        p+=pl
    e(f's_mov_b32 {s(sSeg)}, {s(sR)}'); e(f's_mov_b32 {s(sNext)}, {s(sR)}'); e(f's_mov_b32 {s(sBuf)}, 0'); e(f's_mov_b32 {s(sCnt)}, 0')
    e(f's_lshl_b32 {s(sFl)}, {s(sHd)}, 7'); e(f's_lshl_b32 {s(sT)}, {s(sR)}, 2'); e(f's_add_u32 {s(sFl)}, {s(sFl)}, {s(sT)}'); e(f's_add_u32 {s(sFl)}, {s(sFl)}, {BF_OFF+BF_KV}')
    p+=hdma()
    e(f's_mov_b32 {s(sT+5)}, 0')
    p.append('L_p1_loop:')
    e(f's_cmp_ge_u32 {s(sSeg)}, 64'); e(f's_cselect_b32 {s(sT+4)}, 0, {s(sCnt)}'); e(f's_cmp_lt_u32 {s(sT+4)}, {OPT["nl"]}'); e('s_cbranch_scc0 L_p1_lag')
    e('s_waitcnt vmcnt(0)'); e(f's_mov_b32 {s(sT+5)}, {s(sCnt)}')
    p.append('L_p1_lag:')
    e('s_waitcnt vmcnt(6)'); e('s_barrier')
    if sync:
        e(f's_cmp_lg_u32 {s(sW)}, 0'); e('s_cbranch_scc1 L_p1_nf'); e(f'v_mov_b32 {v(FA)}, {s(sT+5)}'); e('s_mov_b64 exec, 1')
        e(f'buffer_store_dword {v(FA)}, off, {s(WS,4)}, {s(sFl)} sc1'); e('s_mov_b64 exec, -1'); p.append('L_p1_nf:')
    e(f's_mov_b32 {s(sT+5)}, {s(sCnt)}')
    if STAMP(0,0):
        e(f's_cmp_lg_u32 {s(sCnt)}, 0'); e('s_cbranch_scc1 L_p1_s0'); p+=STAMP(15,0); p.append('L_p1_s0:')
        e(f's_cmp_lg_u32 {s(sCnt)}, 1'); e('s_cbranch_scc1 L_p1_s1'); p+=STAMP(16,0); p.append('L_p1_s1:')
    e(f's_cmp_ge_u32 {s(sSeg)}, 64'); e('s_cbranch_scc1 L_p1_end')
    e(f'v_add_u32 {v(VO)}, {s(sBuf)}, {v(L16)}')
    e(f's_xor_b32 {s(sBuf)}, {s(sBuf)}, 32768'); e(f's_add_u32 {s(sNext)}, {s(sSeg)}, {NR}')
    if OPT['pf2']:
        e(f's_mul_i32 {s(sT)}, {s(sCnt)}, 896'); e(f's_lshl_b32 {s(sT+1)}, {s(sB)}, 2'); e(f's_add_u32 {s(sT)}, {s(sT)}, {s(sT+1)}'); e(f's_add_u32 {s(sT)}, {s(sT)}, {s(sW)}')
        e(f's_cmp_lt_u32 {s(sT)}, 5888'); e(f's_cselect_b64 {s(SRD,2)}, {s(PW1,2)}, {s(PW2,2)}'); e(f's_cselect_b32 {s(sT+1)}, 0, 1792')
        e(f's_add_u32 {s(sT+1)}, {s(sT+1)}, 4096'); e(f's_mov_b32 {s(SRD+2)}, {1792*1024}')
        e(f's_cmp_lt_u32 {s(sT)}, 4096'); e(f's_cselect_b64 {s(SRD,2)}, {s(PWO,2)}, {s(SRD,2)}'); e(f's_cselect_b32 {s(sT+1)}, 0, {s(sT+1)}'); e(f's_cselect_b32 {s(SRD+2)}, {4<<20}, {s(SRD+2)}')
        e(f's_sub_u32 {s(sT)}, {s(sT)}, {s(sT+1)}'); e(f's_lshl_b32 {s(sT)}, {s(sT)}, 10')
        e(f'buffer_load_dwordx4 {v(8,4)}, {v(L16)}, {s(SRD,4)}, {s(sT)} offen')
    e(f's_cmp_ge_u32 {s(sNext)}, 64'); e('s_cbranch_scc1 L_p1_nd')
    p+=hdma()
    p.append('L_p1_nd:')
    hr=lambda ks,mt: f'ds_read_b128 {v(HF+(ks%4)*8+4*mt,4)}, {v(VO)} offset:{(mt*16+ks)*1024}'
    for ks in range(2):
        for mt in range(2): e(hr(ks,mt))
    for ks in range(16):
        mm=[]
        for mt in range(2):
            hf=v(HF+(ks%4)*8+4*mt,4)
            for m in range(3):
                for t in range(2):
                    pf,b=wreg(m,t,ks); w_=R(pf,b,4); c_=v(acc(m,t,mt),4)
                    a_,b_=(hf,w_) if m==1 else (w_,hf)
                    mm.append(f'{MF32} {c_}, {a_}, {b_}, '+(c_ if ks else '0'))
        if ks+2<16:
            mm[1:1]=[hr(ks+2,0)]; mm[4:4]=[hr(ks+2,1)]
        p+=mm
    e(f's_lshl_b32 {s(sT)}, {s(sHd)}, 6'); e(f's_add_u32 {s(sT)}, {s(sT)}, {s(sSeg)}')
    e(f's_lshl_b32 {s(sT+1)}, {s(sW)}, 10'); e(f's_lshl_b32 {s(sKo)}, {s(sT)}, 14'); e(f's_add_u32 {s(sVo)}, {s(sKo)}, {KV_OFF+8192}')
    e(f's_add_u32 {s(sKo)}, {s(sKo)}, {s(sT+1)}'); e(f's_add_u32 {s(sKo)}, {s(sKo)}, {KV_OFF}')
    e(f's_lshl_b32 {s(sQo)}, {s(sT)}, 13'); e(f's_add_u32 {s(sQo)}, {s(sQo)}, {s(sT+1)}'); e(f's_add_u32 {s(sQo)}, {s(sQo)}, {Q_OFF}')
    e(f's_lshl_b32 {s(sT+1)}, {s(sW)}, 11'); e(f's_add_u32 {s(sVo)}, {s(sVo)}, {s(sT+1)}')
    k=0
    for m,so in ((0,sKo),(2,sQo)):
        for mt in range(2):
            for r in range(4): e(f'v_cvt_pk_bf16_f32 {v(OUT+4*k+r)}, {v(acc(m,0,mt)+r)}, {v(acc(m,1,mt)+r)}')
            e(f'buffer_store_dwordx4 {v(OUT+4*k,4)}, {v(L16)}, {s(WS,4)}, {s(so)} offen sc1'); k+=1
            if mt==0: e(f's_add_u32 {s(so)}, {s(so)}, 4096')
    for t in range(2):
        for mt in range(2):
            for j in range(2): e(f'v_cvt_pk_bf16_f32 {v(OUT+4*k+2*mt+j)}, {v(acc(1,t,mt)+2*j)}, {v(acc(1,t,mt)+2*j+1)}')
        e(f'buffer_store_dwordx4 {v(OUT+4*k,4)}, {v(L16)}, {s(WS,4)}, {s(sVo)} offen offset:{1024*t} sc1'); k+=1
    e(f's_add_u32 {s(sSeg)}, {s(sSeg)}, {NR}'); e(f's_add_u32 {s(sCnt)}, {s(sCnt)}, 1'); e('s_branch L_p1_loop')
    p.append('L_p1_end:')
    return fix(p,'p1')

sGrp=21; sJ=22; sGB=26; sEp=27; sFw=28; sFr=29; sKq=30; sCq=31; sM=32; sEh=33; sScale=34; sLg=35; sFast=36; sQf=37; sMf=38
WO=lambda ks: a(4*ks,4)
W1=lambda t,ks: a(128+64*t+4*ks,4)
W2=lambda ks: v(200+4*ks,4)
MODV=168
IDX=4; KW=5; FA2=6; HRD=7; HSR=8; PSA=9; MSK=10; ZR=12
def p2_setup(sync):
    p=[]; e=p.append
    e('s_barrier')
    e(f's_lshr_b32 {s(sGrp)}, {s(sB)}, 5'); e(f's_add_u32 {s(sGrp)}, {s(sGrp)}, 5'); e(f's_cmp_ge_u32 {s(sGrp)}, 7'); e(f's_cselect_b32 {s(sT)}, 7, 0'); e(f's_sub_u32 {s(sGrp)}, {s(sGrp)}, {s(sT)}'); e(f's_and_b32 {s(sJ)}, {s(sB)}, 31')
    if sync: p+=dbg_wait(136,1,16)
    e(f's_lshl_b32 {s(sGB)}, {s(sGrp)}, 20'); e(f's_add_u32 {s(sGB)}, {s(sGB)}, {G_OFF}')
    e(f's_lshr_b32 {s(sKq)}, {s(sJ)}, 3'); e(f's_and_b32 {s(sCq)}, {s(sJ)}, 7'); e(f's_and_b32 {s(sM)}, {s(sW)}, 1'); e(f's_lshr_b32 {s(sEh)}, {s(sW)}, 1')
    e(f's_lshl_b32 {s(sFr)}, {s(sGrp)}, 8'); e(f's_add_u32 {s(sFr)}, {s(sFr)}, {BF_OFF+BF_GB}'); e(f's_lshl_b32 {s(sT)}, {s(sJ)}, 2'); e(f's_add_u32 {s(sFw)}, {s(sFr)}, {s(sT)}')
    e(f's_mov_b32 {s(sEp)}, 0'); e(f's_mov_b32 {s(sScale)}, {hex(f2u(128**-0.5))}'); e(f's_mov_b32 {s(sLg)}, {hex(f2u(math.log2(math.e)))}')
    e(f's_lshl_b32 {s(sRing)}, {s(sW)}, 15'); e(f's_add_u32 {s(sRing)}, {s(sRing)}, 32768')
    e(f's_lshl_b32 {s(sMf)}, {s(sJ)}, 7')
    e(f's_add_u32 {s(sQf)}, {s(sMf)}, {BF_OFF+BF_KV}'); e(f's_add_u32 {s(sMf)}, {s(sMf)}, {BF_OFF+BF_KVM}')
    e(f's_getreg_b32 {s(sFast)}, hwreg(HW_REG_XCC_ID)'); e(f's_and_b32 {s(sFast)}, {s(sFast)}, 7'); e(f's_add_u32 {s(sFast)}, {s(sFast)}, 1')
    e(f'v_mov_b32 v16, {s(sFast)}'); e('s_mov_b64 exec, 1'); e(f'buffer_store_dword v16, off, {s(WS,4)}, {s(sFw)} offset:{BF_XC-BF_GB} sc1'); e('s_mov_b64 exec, -1')
    t1,t2,r,c_,g1=16,17,18,19,20
    e(f'v_and_b32 {v(t1)}, 1, {v(LN)}'); e(f'v_mul_u32_u24 {v(t1)}, 0xaaaa, {v(t1)}'); e(f'v_add_u32 {v(IDX)}, 0x4444, {v(t1)}')
    e(f'v_bfe_u32 {v(t1)}, {v(N)}, 1, 2'); e(f'v_lshlrev_b32 {v(KW)}, 2, {v(t1)}'); e(f'v_and_b32 {v(t1)}, 1, {v(N)}'); e(f'v_lshl_add_u32 {v(KW)}, {v(t1)}, 4, {v(KW)}')
    e(f'v_lshl_add_u32 {v(KW)}, {v(Gv)}, 6, {v(KW)}'); e(f'v_lshrrev_b32 {v(t1)}, 3, {v(N)}'); e(f'v_lshl_add_u32 {v(KW)}, {v(t1)}, 8, {v(KW)}')
    e(f's_lshl_b32 {s(sT)}, {s(sW)}, 9'); e(f'v_add_u32 {v(KW)}, {s(sT)}, {v(KW)}')
    e(f'v_and_b32 {v(FA2)}, 31, {v(LN)}'); e(f'v_lshlrev_b32 {v(FA2)}, 2, {v(FA2)}')
    e(f'v_lshlrev_b32 {v(t1)}, 1, {v(t1)}'); e(f'v_xor_b32 {v(t1)}, {v(t1)}, {v(Gv)}'); e(f'v_lshlrev_b32 {v(t1)}, 4, {v(t1)}'); e(f'v_lshl_add_u32 {v(HRD)}, {v(N)}, 6, {v(t1)}')
    e(f's_lshl_b32 {s(sT)}, {s(sM)}, 14'); e(f'v_add_u32 {v(HRD)}, {s(sT)}, {v(HRD)}')
    e(f'v_lshrrev_b32 {v(t1)}, 5, {v(LN)}'); e(f'v_lshlrev_b32 {v(t1)}, 1, {v(t1)}'); e(f'v_and_b32 {v(c_)}, 3, {v(LN)}'); e(f'v_xor_b32 {v(t1)}, {v(t1)}, {v(c_)}')
    e(f'v_lshlrev_b32 {v(t1)}, 4, {v(t1)}'); e(f'v_lshrrev_b32 {v(t2)}, 2, {v(LN)}'); e(f'v_lshl_add_u32 {v(HSR)}, {v(t2)}, 10, {v(t1)}')
    e(f'v_lshlrev_b32 {v(PSA)}, 15, {v(Gv)}'); e(f'v_lshl_add_u32 {v(PSA)}, {v(N)}, 2, {v(PSA)}')
    e(f's_lshl_b32 {s(sT)}, {s(sJ)}, 8'); e(f's_lshl_b32 {s(sT+1)}, {s(sW)}, 6'); e(f's_add_u32 {s(sT)}, {s(sT)}, {s(sT+1)}'); e(f'v_add_u32 {v(PSA)}, {s(sT)}, {v(PSA)}')
    e(f'v_lshlrev_b32 {v(t1)}, 2, {v(Gv)}'); e(f'v_sub_u32 {v(MSK)}, {v(N)}, {v(t1)}')
    e(f'v_mov_b32 {v(ZR+1)}, 0')
    A64,B0,B1,A32,C0,C1,A32b=24,25,26,27,28,29,30
    e(f'v_lshrrev_b32 {v(r)}, 2, {v(N)}'); e(f'v_and_b32 {v(g1)}, 1, {v(Gv)}')
    e(f'v_lshlrev_b32 {v(B0)}, 8, {v(Gv)}'); e(f'v_lshl_add_u32 {v(B0)}, {v(c_)}, 3, {v(B0)}'); e(f'v_add_u32 {v(B0)}, {s(sRing)}, {v(B0)}')
    e(f'v_lshl_add_u32 {v(C0)}, {v(r)}, 5, {v(B0)}'); e(f'v_lshl_add_u32 {v(C0)}, {v(g1)}, 7, {v(C0)}'); e(f'v_xor_b32 {v(C1)}, 128, {v(C0)}')
    e(f'v_lshl_add_u32 {v(B0)}, {v(r)}, 6, {v(B0)}'); e(f'v_lshl_add_u32 {v(B0)}, {v(g1)}, 5, {v(B0)}'); e(f'v_xor_b32 {v(B1)}, 32, {v(B0)}')
    e(f'v_lshlrev_b32 {v(t1)}, 1, {v(g1)}'); e(f'v_xor_b32 {v(t1)}, {v(t1)}, {v(c_)}'); e(f'v_lshlrev_b32 {v(t1)}, 4, {v(t1)}')
    e(f'v_lshl_add_u32 {v(A64)}, {v(Gv)}, 3, {v(r)}'); e(f'v_mul_u32_u24 {v(A64)}, 3584, {v(A64)}'); e(f'v_add_u32 {v(A64)}, {v(A64)}, {v(t1)}')
    e(f's_min_u32 {s(sT)}, {s(sJ)}, 27'); e(f's_lshl_b32 {s(sT)}, {s(sT)}, 7'); e(f's_lshl_b32 {s(sT+1)}, {s(sEh)}, 6'); e(f's_add_u32 {s(sT)}, {s(sT)}, {s(sT+1)}'); e(f'v_add_u32 {v(A64)}, {s(sT)}, {v(A64)}')
    e(f'v_lshrrev_b32 {v(t1)}, 3, {v(N)}'); e(f'v_xor_b32 {v(t1)}, {v(t1)}, {v(g1)}'); e(f'v_bfe_u32 {v(t2)}, {v(N)}, 1, 2')
    e(f'v_lshl_add_u32 {v(t2)}, {v(t1)}, 4, {v(t2)}'); e(f'v_lshl_add_u32 {v(t2)}, {v(Gv)}, 2, {v(t2)}'); e(f'v_and_b32 {v(t1)}, 1, {v(N)}'); e(f'v_lshlrev_b32 {v(t1)}, 4, {v(t1)}')
    e(f'v_lshl_add_u32 {v(A32)}, {v(t2)}, 10, {v(t1)}')
    e(f's_lshl_b32 {s(sT)}, {s(sCq)}, 7'); e(f's_lshl_b32 {s(sT+1)}, {s(sW)}, 5'); e(f's_add_u32 {s(sT)}, {s(sT)}, {s(sT+1)}')
    e(f's_mul_i32 {s(sT+1)}, {s(sKq)}, {448*1024}'); e(f's_add_u32 {s(sT+1)}, {s(sT+1)}, {s(sT)}'); e(f'v_add_u32 {v(A32b)}, {s(sT+1)}, {v(A32)}')
    e(f's_lshl_b32 {s(sT+1)}, {s(sKq)}, 20'); e(f's_add_u32 {s(sT+1)}, {s(sT+1)}, {s(sT)}'); e(f'v_add_u32 {v(A32)}, {s(sT+1)}, {v(A32)}')
    blocks=[]
    mv=lambda o: (lambda reg: [f's_mov_b32 {s(reg)}, {o}'])
    for ks in range(32): blocks.append((srd(PWO,4<<20) if ks%4==0 else None, A32, mv(ks*32768), [(a(4*ks,2),C0,0),(a(4*ks+2,2),C1,0)]))
    for ks in range(16):
        for jh in range(2): blocks.append((srd(PW1,512*3584) if ks%2==0 and jh==0 else None, A64, mv((32*ks+4*jh)*3584), [(a(128+4*ks+2*jh,2),B0,0),(a(192+4*ks+2*jh,2),B1,0)]))
    for ks in range(16):
        kk=min(ks,13); blocks.append((srd(PW2,1792*1024) if ks%4==0 else None, A32b, mv(kk*32768), [(v(200+4*ks,2),C0,0),(v(202+4*ks,2),C1,0)] if ks<14 else []))
    head,rest=wstream(blocks,sRing,OPT['d2'])
    if OPT['dl']:
        e(f'v_mov_b32 v17, 0'); p+=poll(17,s(sQf),str(OPT['dl']),16)
    p+=head+rest
    if sync: p+=dbg_wait(132,64,16)
    e(f's_mov_b32 {s(sT)}, {MOD_OFF+2048}')
    for i in range(4): e(f'buffer_load_dwordx4 {v(16+4*i,4)}, {v(L16)}, {s(WS,4)}, {s(sT)} offen offset:{1024*i} sc1')
    for i in range(16): p+=unp(MODV+2*i,16+i)
    for i in range(16,24): e(f'v_add_f32 {v(MODV+i)}, 1.0, {v(MODV+i)}')
    for i in range(16,24,2): p+=rnd(MODV+i,MODV+i+1,16)
    p+=poll(FA2,s(sFr),'1',16,BF_XC-BF_GB)
    e(f'v_cmp_ne_u32 vcc, {s(sFast)}, v16')
    e(f's_cmp_ge_u32 {s(sGrp)}, 5'); e(f's_cselect_b32 {s(sT)}, 50, 0'); e(f's_add_u32 {s(sSeg)}, {s(sGrp)}, {s(sT)}')
    p+=srd(PX,2048*1024)
    p+=STAMP(7,160)
    e('s_barrier')
    e('s_cbranch_vccnz L_p2_S')
    return fix(p,'p2s')

def p2_loop(mode, sync):
    sc=' sc1' if mode=='S' else ''
    L=f'L_p2_{mode}'
    p=[L+':']; e=p.append
    nb=[0]
    def gbar():
        nb[0]+=1; k=f'{L}_g{nb[0]}'
        return ['s_waitcnt vmcnt(0)','s_barrier', f's_add_u32 {s(sEp)}, {s(sEp)}, 1', f's_cmp_lg_u32 {s(sW)}, 0', f's_cbranch_scc1 {k}',
                f'v_mov_b32 v14, {s(sEp)}','s_mov_b64 exec, 1', f'buffer_store_dword v14, off, {s(WS,4)}, {s(sFw)}{sc}','s_mov_b64 exec, -1','s_nop 15']+pollp(FA2,s(sFr),s(sEp),PR)+STAMP(8+nb[0],32)+[k+':','s_barrier']
    QF=16; KF=32; VF=64; KV=80; S0=92; OA=104; T=120; MX=121; SUM=122; PXr=124; KM=128; XR=136; X1=140; PR=150
    if sync:
        e(f's_and_b32 {s(sT)}, {s(sSeg)}, 1'); e(f's_lshl_b32 {s(sT)}, {s(sT)}, 2'); e(f's_add_u32 {s(sT)}, {s(sT)}, {s(sQf)}')
        e(f's_lshr_b32 {s(sT+1)}, {s(sSeg)}, 1'); e(f's_add_u32 {s(sT+1)}, {s(sT+1)}, 1')
        p+=poll(ZR+1,s(sT),s(sT+1),14)
    e(f's_lshl_b32 {s(sT)}, {s(sSeg)}, 5'); e(f's_add_u32 {s(sT)}, {s(sT)}, {s(sJ)}')
    e(f's_lshl_b32 {s(sT+6)}, {s(sT)}, 10')
    e(f's_lshl_b32 {s(sT)}, {s(sJ)}, 6'); e(f's_add_u32 {s(sT)}, {s(sT)}, {s(sSeg)}')
    e(f's_lshl_b32 {s(sT+1)}, {s(sT)}, 13'); e(f's_lshl_b32 {s(sT+2)}, {s(sM)}, 12'); e(f's_add_u32 {s(sT+1)}, {s(sT+1)}, {s(sT+2)}'); e(f's_add_u32 {s(sT+1)}, {s(sT+1)}, {Q_OFF}')
    e(f's_lshl_b32 {s(sT+2)}, {s(sT)}, 14'); e(f's_add_u32 {s(sT+2)}, {s(sT+2)}, {KV_OFF}'); e(f's_add_u32 {s(sT+3)}, {s(sT+2)}, 4096')
    e(f's_lshl_b32 {s(sT+4)}, {s(sEh)}, 12'); e(f's_add_u32 {s(sT+4)}, {s(sT+4)}, {s(sT+2)}'); e(f's_add_u32 {s(sT+4)}, {s(sT+4)}, 8192')
    e(f's_lshl_b32 {s(sT+5)}, {s(sT)}, 12'); e(f's_add_u32 {s(sT+5)}, {s(sT+5)}, {KVM_OFF}')
    for i in range(4): e(f'buffer_load_dwordx4 {v(QF+4*i,4)}, {v(L16)}, {s(WS,4)}, {s(sT+1)} offen offset:{1024*i} sc1')
    for i in range(8): e(f'buffer_load_dwordx4 {v(KF+4*i,4)}, {v(L16)}, {s(WS,4)}, {s(sT+2+(i>>2))} offen offset:{1024*(i&3)} sc1')
    for i in range(4): e(f'buffer_load_dwordx4 {v(VF+4*i,4)}, {v(L16)}, {s(WS,4)}, {s(sT+4)} offen offset:{1024*i} sc1')
    e(f'buffer_load_dwordx4 {v(XR,4)}, {v(L16)}, {s(SRD,4)}, {s(sT+6)} offen')
    for m in range(2):
        for ks in range(4): e(f'{MF32} {v(S0+4*m,4)}, {v(KF+16*m+4*ks,4)}, {v(QF+4*ks,4)}, '+(v(S0+4*m,4) if ks else '0'))
    e(f'v_mov_b64 {v(S0+8,2)}, 0'); e(f'v_mov_b64 {v(S0+10,2)}, 0')
    def sround(a_): return rnd(a_,a_+1,T)+[f'v_mul_f32 {v(a_)}, {s(sScale)}, {v(a_)}', f'v_mul_f32 {v(a_+1)}, {s(sScale)}, {v(a_+1)}']+rnd(a_,a_+1,T)
    for i in range(0,8,2): p+=sround(S0+i)
    e(f's_lshl_b32 {s(sT+1)}, {s(sM)}, 4'); e(f'v_add_u32 {v(T)}, {s(sT+1)}, {v(MSK)}'); e(f'v_mov_b32 {v(SUM)}, {hex(f2u(-999292928.0))}')
    for i in range(8):
        e(f'v_cmp_le_i32 vcc, {16*(i>>2)+(i&3)}, {v(T)}'); e(f'v_cndmask_b32 {v(S0+i)}, {v(SUM)}, {v(S0+i)}, vcc')
    e(f'v_max3_f32 {v(MX)}, {v(S0)}, {v(S0+1)}, {v(S0+2)}'); e(f'v_max3_f32 {v(MX)}, {v(MX)}, {v(S0+3)}, {v(S0+4)}'); e(f'v_max3_f32 {v(MX)}, {v(MX)}, {v(S0+5)}, {v(S0+6)}'); e(f'v_max_f32 {v(MX)}, {v(MX)}, {v(S0+7)}')
    if sync:
        e(f's_add_u32 {s(sT+1)}, {s(sSeg)}, 1'); p+=['s_waitcnt vmcnt(0)']+pollp(ZR+1,s(sMf),s(sT+1),PR)+STAMP(8,32)
    e(f's_lshl_b32 {s(sT+1)}, {s(sEh)}, 11'); e(f's_add_u32 {s(sT+1)}, {s(sT+1)}, {s(sT+5)}'); e(f's_lshl_b32 {s(sT+2)}, {s(sW)}, 10'); e(f's_add_u32 {s(sT+2)}, {s(sT+2)}, {s(sT+5)}')
    e(f'buffer_load_dwordx4 {v(KV+8,4)}, {v(L16)}, {s(WS,4)}, {s(sT+2)} offen sc1')
    for i in range(2): e(f'buffer_load_dwordx4 {v(KV+4*i,4)}, {v(L16)}, {s(WS,4)}, {s(sT+1)} offen offset:{1024*i} sc1')
    e(f'ds_write2_b32 {v(KW)}, {v(KV+9)}, {v(KV+11)} offset0:0 offset1:8'); e('s_waitcnt lgkmcnt(0)'); e('s_barrier')
    for k in range(2): e(f'ds_read_b128 {v(KM+4*k,4)}, {v(L16)} offset:{1024*k}')
    for k in range(2): e(f'{SMF} {v(S0+8,4)}, {v(KM+4*k,4)}, {v(QF+8*k,8)}, {v(IDX)}')
    e(f'v_add_f32 {v(S0+8)}, {v(S0+8)}, {v(S0+9)}'); e(f'v_add_f32 {v(S0+9)}, {v(S0+10)}, {v(S0+11)}')
    p+=sround(S0+8)
    e(f'v_max3_f32 {v(MX)}, {v(MX)}, {v(S0+8)}, {v(S0+9)}'); p+=xg('v_max_f32',MX,T)
    for i in range(10): e(f'v_sub_f32 {v(S0+i)}, {v(S0+i)}, {v(MX)}')
    for i in range(10): e(f'v_mul_f32 {v(S0+i)}, {s(sLg)}, {v(S0+i)}')
    for i in range(10): e(f'v_exp_f32 {v(S0+i)}, {v(S0+i)}')
    e(f'v_add_f32 {v(SUM)}, {v(S0)}, {v(S0+1)}')
    for i in range(2,10): e(f'v_add_f32 {v(SUM)}, {v(SUM)}, {v(S0+i)}')
    p+=xg('v_add_f32',SUM,T); e(f'v_rcp_f32 {v(SUM)}, {v(SUM)}')
    for i in range(10): e(f'v_mul_f32 {v(S0+i)}, {v(SUM)}, {v(S0+i)}')
    for i in range(4): e(f'v_cvt_pk_bf16_f32 {v(PXr+i)}, {v(S0+2*i)}, {v(S0+2*i+1)}')
    e(f'v_cvt_pk_bf16_f32 {v(ZR)}, {v(S0+8)}, {v(S0+9)}')
    for i in range(4): e(f'{MF32} {v(OA+4*i,4)}, {v(VF+4*i,4)}, {v(PXr,4)}, 0')
    for i in range(4): e(f'{MF16} {v(OA+4*i,4)}, {v(KV+2*i,2)}, {v(ZR,2)}, {v(OA+4*i,4)}')
    e(f's_lshl_b32 {s(sT+1)}, {s(sJ)}, 13'); e(f's_lshl_b32 {s(sT+2)}, {s(sEh)}, 12'); e(f's_add_u32 {s(sT+1)}, {s(sT+1)}, {s(sT+2)}'); e(f's_lshl_b32 {s(sT+2)}, {s(sM)}, 10')
    e(f's_add_u32 {s(sT+1)}, {s(sT+1)}, {s(sT+2)}'); e(f's_add_u32 {s(sT+1)}, {s(sT+1)}, {s(sGB)}')
    for k in range(2):
        for i in range(4): e(f'v_cvt_pk_bf16_f32 {v(QF+4*k+i)}, {v(OA+8*k+2*i)}, {v(OA+8*k+2*i+1)}')
        e(f'buffer_store_dwordx4 {v(QF+4*k,4)}, {v(L16)}, {s(WS,4)}, {s(sT+1)} offen offset:{G_O+2048*k}{sc}')
    p+=gbar()
    def gemm_part(src_lines, nks, wf, dst_off):
        o=list(src_lines)
        nfr=2*nks; per=nfr//4; nch=(per+3)//4
        sizes=[min(4,per-4*c) for c in range(nch)]
        base=0; starts=[]
        for c,sz in enumerate(sizes):
            starts.append(base)
            o+=[f's_mul_i32 {s(sT+2)}, {s(sW)}, {sz*1024}', f's_add_u32 {s(sT+2)}, {s(sT+2)}, {base*1024}', f's_add_u32 m0, {s(sT+2)}, 4096', f's_add_u32 {s(sT+2)}, {s(sT+2)}, {s(sT+1)}']
            o+=[f'buffer_load_dwordx4 {v(L16)}, {s(WS,4)}, {s(sT+2)} offen offset:{1024*i} sc1 lds' for i in range(sz)]
            base+=4*sz
        o+=[f'v_add_u32 {v(T)}, 4096, {v(L16)}']
        left=per
        for c,sz in enumerate(sizes):
            left-=sz
            o+=[f's_waitcnt vmcnt({left})','s_barrier']
            fr=list(range(starts[c],starts[c]+4*sz))
            rd=lambda f: f'ds_read_b128 {v(QF+4*(f%8),4)}, {v(T)} offset:{1024*f}'
            o+=[rd(f) for f in fr[:4]]
            for i,f in enumerate(fr):
                ac=v(OA+4*(f&1),4)
                o.append(f'{MF32} {ac}, {v(QF+4*(f%8),4)}, {wf(f>>1)}, '+(ac if f>1 else '0'))
                if i+4<len(fr): o.append(rd(fr[i+4]))
        for mt in range(2):
            for r in range(4):
                o+=[f's_add_u32 {s(sT+2)}, {s(sGB)}, {dst_off+(16*mt+r)*8192}', f'buffer_store_dword {v(OA+4*mt+r)}, {v(PSA)}, {s(WS,4)}, {s(sT+2)} offen{sc}']
        return o
    p+=gemm_part([f's_lshl_b32 {s(sT+1)}, {s(sKq)}, 16', f's_add_u32 {s(sT+1)}, {s(sT+1)}, {s(sGB)}'],32,WO,G_P1)
    p+=gbar()
    def rowsum(off):
        o=[f's_lshl_b32 {s(sT+1)}, {s(sJ)}, 13', f's_add_u32 {s(sT+1)}, {s(sT+1)}, {s(sGB)}', f's_add_u32 {s(sT+1)}, {s(sT+1)}, {off}', f's_add_u32 {s(sT+2)}, {s(sT+1)}, 4096', f'v_lshlrev_b32 {v(T)}, 1, {v(L16)}']
        for k in range(4):
            for hf in range(2): o.append(f'buffer_load_dwordx4 {v(QF+8*k+4*hf,4)}, {v(T)}, {s(WS,4)}, {s(sT+1+(k>>1))} offen offset:{2048*(k&1)+16*hf} sc1')
        for k in range(1,4):
            for i in range(8): o.append(f'v_add_f32 {v(QF+i)}, {v(QF+i)}, {v(QF+8*k+i)}')
        for i in range(0,8,2): o+=rnd(QF+i,QF+i+1,T)
        return o
    e(f's_cmp_lg_u32 {s(sW)}, 0'); e(f's_cbranch_scc1 {L}_n1')
    p+=rowsum(G_P1)
    for i in range(4): p+=unp(X1+2*i,XR+i)
    for i in range(8): e(f'v_mul_f32 {v(QF+i)}, {v(QF+i)}, {v(MODV+i)}')
    for i in range(0,8,2): p+=rnd(QF+i,QF+i+1,T)
    for i in range(8): e(f'v_add_f32 {v(X1+i)}, {v(X1+i)}, {v(QF+i)}')
    for i in range(0,8,2): p+=rnd(X1+i,X1+i+1,T)
    e(f'v_add_f32 {v(MX)}, {v(X1)}, {v(X1+1)}')
    for i in range(2,8): e(f'v_add_f32 {v(MX)}, {v(MX)}, {v(X1+i)}')
    p+=xrow(MX)+xg('v_add_f32',MX,T); e(f'v_mul_f32 {v(MX)}, {hex(f2u(1/512))}, {v(MX)}')
    for i in range(8):
        e(f'v_sub_f32 {v(T)}, {v(X1+i)}, {v(MX)}'); e(f'v_mul_f32 {v(SUM)}, {v(T)}, {v(T)}' if i==0 else f'v_fmac_f32 {v(SUM)}, {v(T)}, {v(T)}')
    p+=xrow(SUM)+xg('v_add_f32',SUM,T); e(f'v_mul_f32 {v(SUM)}, {hex(f2u(1/512))}, {v(SUM)}')
    p+=rnd(MX,SUM,T)
    e(f'v_add_f32 {v(SUM)}, {hex(f2u(1e-5))}, {v(SUM)}'); p+=rnd(SUM,SUM,T)[:2]
    e(f'v_sqrt_f32 {v(SUM)}, {v(SUM)}'); p+=rnd(SUM,SUM,T)[:2]
    e(f'v_rcp_f32 {v(SUM)}, {v(SUM)}')
    for i in range(8): e(f'v_sub_f32 {v(QF+i)}, {v(X1+i)}, {v(MX)}')
    for i in range(0,8,2): p+=rnd(QF+i,QF+i+1,T)
    for i in range(8): e(f'v_mul_f32 {v(QF+i)}, {v(QF+i)}, {v(SUM)}')
    for i in range(0,8,2): p+=rnd(QF+i,QF+i+1,T)
    for i in range(8): e(f'v_mul_f32 {v(QF+i)}, {v(QF+i)}, {v(MODV+16+i)}')
    for i in range(0,8,2): p+=rnd(QF+i,QF+i+1,T)
    for i in range(8): e(f'v_add_f32 {v(QF+i)}, {v(QF+i)}, {v(MODV+8+i)}')
    for i in range(4): e(f'v_cvt_pk_bf16_f32 {v(QF+8+i)}, {v(QF+2*i)}, {v(QF+2*i+1)}')
    e(f's_lshl_b32 {s(sT+1)}, {s(sJ)}, 10'); e(f's_add_u32 {s(sT+1)}, {s(sT+1)}, {s(sGB)}'); e(f's_add_u32 {s(sT+1)}, {s(sT+1)}, {G_H2}')
    e(f'buffer_store_dwordx4 {v(QF+8,4)}, {v(L16)}, {s(WS,4)}, {s(sT+1)} offen{sc}')
    p.append(f'{L}_n1:')
    p+=gbar()
    e(f's_cmp_ge_u32 {s(sJ)}, 28'); e(f's_cbranch_scc1 {L}_n2')
    e(f's_lshl_b32 {s(sT+1)}, {s(sEh)}, 14'); e(f's_lshl_b32 {s(sT+2)}, {s(sM)}, 9'); e(f's_add_u32 {s(sT+1)}, {s(sT+1)}, {s(sT+2)}'); e(f's_add_u32 {s(sT+1)}, {s(sT+1)}, {s(sGB)}'); e(f's_add_u32 {s(sT+1)}, {s(sT+1)}, {G_H2}')
    e(f's_lshl_b32 {s(sT+2)}, {s(sEh)}, 14'); e(f's_lshl_b32 {s(sT+3)}, {s(sM)}, 13'); e(f's_add_u32 {s(sT+2)}, {s(sT+2)}, {s(sT+3)}')
    for i in range(8):
        e(f's_add_u32 m0, {s(sT+2)}, {4096+1024*i}'); e(f's_add_u32 {s(sT+3)}, {s(sT+1)}, {64*i}')
        e(f'buffer_load_dwordx4 {v(HSR)}, {s(WS,4)}, {s(sT+3)} offen sc1 lds')
    e('s_waitcnt vmcnt(0)'); e('s_barrier')
    rd=lambda ks: f'ds_read_b128 {v(QF+4*(ks%8),4)}, {v(HRD)} offset:{4096+1024*ks}'
    for ks in range(4): e(rd(ks))
    for ks in range(16):
        for t in range(2): e(f'{MF32} {v(OA+4*t,4)}, {W1(t,ks)}, {v(QF+4*(ks%8),4)}, '+(v(OA+4*t,4) if ks else '0'))
        if ks+4<16: e(rd(ks+4))
    e(f's_lshl_b32 {s(sT+1)}, {s(sJ)}, 12'); e(f's_lshl_b32 {s(sT+2)}, {s(sEh)}, 11'); e(f's_add_u32 {s(sT+1)}, {s(sT+1)}, {s(sT+2)}'); e(f's_lshl_b32 {s(sT+2)}, {s(sM)}, 10')
    e(f's_add_u32 {s(sT+1)}, {s(sT+1)}, {s(sT+2)}'); e(f's_add_u32 {s(sT+1)}, {s(sT+1)}, {s(sGB)}'); e(f's_add_u32 {s(sT+1)}, {s(sT+1)}, {G_F1}')
    for i in range(8): e(f'v_max_f32 {v(OA+i)}, 0, {v(OA+i)}')
    for i in range(4): e(f'v_cvt_pk_bf16_f32 {v(PXr+i)}, {v(OA+2*i)}, {v(OA+2*i+1)}')
    e(f'buffer_store_dwordx4 {v(PXr,4)}, {v(L16)}, {s(WS,4)}, {s(sT+1)} offen{sc}')
    p.append(f'{L}_n2:')
    p+=gbar()
    p+=gemm_part([f's_mul_i32 {s(sT+1)}, {s(sKq)}, 28672', f's_add_u32 {s(sT+1)}, {s(sT+1)}, {s(sGB)}', f's_add_u32 {s(sT+1)}, {s(sT+1)}, {G_F1}'],14,W2,G_P2)
    p+=gbar()
    e(f's_cmp_lg_u32 {s(sW)}, 0'); e(f's_cbranch_scc1 {L}_n3')
    p+=rowsum(G_P2)
    for i in range(8): e(f'v_mul_f32 {v(QF+i)}, {v(QF+i)}, {v(MODV+24+i)}')
    for i in range(0,8,2): p+=rnd(QF+i,QF+i+1,T)
    for i in range(8): e(f'v_add_f32 {v(QF+i)}, {v(QF+i)}, {v(X1+i)}')
    for i in range(4): e(f'v_cvt_pk_bf16_f32 {v(QF+8+i)}, {v(QF+2*i)}, {v(QF+2*i+1)}')
    e(f'v_add_u32 {v(T)}, {s(sT+6)}, {v(L16)}')
    e(f'global_store_dwordx4 {v(T)}, {v(QF+8,4)}, {s(POUT,2)}')
    e('s_nop 1')
    p+=STAMP(14,32)+STAMP(20,96)+STAMP(21,64)+STAMP(22,192)
    p.append(f'{L}_n3:')
    e(f's_cmp_lt_u32 {s(sSeg)}, 50'); e(f's_cselect_b32 {s(sT)}, 5, 7'); e(f's_add_u32 {s(sSeg)}, {s(sSeg)}, {s(sT)}'); e(f's_cmp_lt_u32 {s(sSeg)}, 64'); e(f's_cbranch_scc1 {L}')
    e('s_endpgm')
    r=fix(p,'p2'+mode); check(r+r,'p2loop')
    return r
```

```python
from asmlib import *
from layout import *
import math, struct, re

T0=0; IDX=1; L16=2; LW=3; QW=4; QR=5; KW=6; OW=7; ORD=8; PST=9; MPUB=10; H2A=10; FLG=11
ONES=12; PM=16; KVQ=20; QA=24; KA=32; VA=40; M=48; X=80; STG=112; RES=128
L_MEM=0; L_Q=8192; L_K=10240; L_O=12288; L_SEL=14336; L_KX=16384; L_WV=24576; WREG=34816
WS=4; WSRD=8; DBG=12; sH=14; sW=15; sStep=16; sC=17; sKsrc=18; sVsrc=19; sKvm=20
sPst=21; sPin=23; sPrst=25; sPrstB=26; sPslot=27; sMemIn1=28; sSpinU=29; sPinB=30
sMemIn0=31; sMemB=32; sMemPub=33; sMemRst=34; sSlot=35; sSpin=36; sKdst=37; sKvF=38; sVdst=39; sKvmF=40; sReg=41
sT=42
sRo1=56; sRo2=60; sEx=50; sPtr=52; sRow=64; sTime=70; sOdd=88; sOne=92; sC2=94; sSpinF=96; sFlag=98; sFlagB=99; sWoff=100
LIM='0x80000'
SMF='v_smfmac_f32_16x16x64_bf16'; MF32='v_mfma_f32_16x16x32_bf16'; MF16='v_mfma_f32_16x16x16_bf16'
OPT=dict(sync=0, d1=20, sl=5, nb=6, pp=0, rep=2, hotkv=0, tr=0, solo=0, cut=99, drop=0, cutm=-1, show=0, pub=1, nt=1, rs=0, b0=1, ro1=0, ro2=0, rp=0, warm=1, sp=0, np=2, dp=0, ps=24, sw=5)

lds_groups=[('q',0),('q',1),('q',2),('q',3),('o',0,3),('o',1,1),('o',1,2),('o',1,3)]
all_groups=[(m,c) for m in 'qkv' for c in range(8)]+[('o',tp,k) for tp in range(2) for k in range(4)]
res_groups=[g for g in all_groups if g not in lds_groups]
gloc={}
for i,g in enumerate(res_groups): gloc[g]=('a',16*i) if i<16 else ('v',RES+16*(i-16))
stream={('q',0,0):M+16,('q',0,1):M+24,('q',1,0):KA,('q',1,1):VA,('q',2,0):X,('q',2,1):X+8,('q',3,0):X+16,('q',3,1):X+24,
        ('o',0,3,0):X+8,('o',0,3,1):X+24,('o',1,1,0):X,('o',1,2,0):X+16,('o',1,3,0):KA,('o',1,1,1):VA,('o',1,2,1):QA,('o',1,3,1):X+8}
def ureg(g,t):
    if g in gloc: return gloc[g][0], gloc[g][1]+8*t
    return 'v', stream[g+(t,)]
def unit(g,t): p,b=ureg(g,t); return R(p,b,8)
def stream_reads(g,t):
    off=lds_groups.index(g)*4096+t*2048; b=stream[g+(t,)]
    return [f'ds_read_b128 {v(b,4)}, {v(LW)} offset:{off}', f'ds_read_b128 {v(b+4,4)}, {v(LW)} offset:{off+1024}']
def zero(b,n,val='0'): return [f'v_mov_b64 {v(b+i,2)}, {val}' for i in range(0,n,2)]
def kv_addr(): return [f'v_lshrrev_b32 {v(T0)}, 2, {v(L16)}', f'v_and_b32 {v(T0)}, 4, {v(T0)}']
def kv_check(L):
    return kv_addr()+[f's_add_u32 {s(sT+3)}, {s(sStep)}, 1', f's_min_u32 {s(sT+3)}, {s(sT+3)}, 63', f's_lshl_b32 {s(sT+3)}, {s(sT+3)}, 2', f'{L}c:',
            f'v_lshl_add_u32 {v(FLG)}, {v(FLG)}, 3, {v(T0)}', f'v_cmp_ge_u32 vcc, {s(sT+3)}, {v(FLG)}', f's_cbranch_vccnz {L}w', f'{L}x:']
def kv_wait(L):
    return [f'{L}w:', f's_add_u32 {s(sSpinF)}, {s(sSpinF)}, 1', f's_cmp_gt_u32 {s(sSpinF)}, {LIM}', f's_cbranch_scc1 {L}x',
            f'buffer_load_dword {v(FLG)}, {v(T0)}, {s(WS,4)}, {s(sKvF)} offen sc1', 's_waitcnt vmcnt(0)', f's_branch {L}c']
def h2_addr(d,t):
    return [f'v_and_b32 {v(d)}, 0x230, {v(L16)}', f'v_and_b32 {v(t)}, 0xc0, {v(L16)}', f'v_lshl_add_u32 {v(d)}, {v(t)}, 1, {v(d)}',
            f'v_and_b32 {v(t)}, 0x100, {v(L16)}', f'v_lshrrev_b32 {v(t)}, 2, {v(t)}', f'v_or_b32 {v(d)}, {v(d)}, {v(t)}']

def prologue(timing):
    p=[]; e=p.append
    VQ=[]
    def vm(line,tag=None): e(line); VQ.append(tag)
    def wait(tag):
        i=max(k for k,t in enumerate(VQ) if t==tag); e(f's_waitcnt vmcnt({len(VQ)-1-i})')
    e(f's_load_dwordx2 {s(WSRD,2)}, s[0:1], 40')
    e(f's_load_dwordx4 {s(sPtr,4)}, s[0:1], 8')
    e(f's_load_dwordx4 {s(sPtr+4,4)}, s[0:1], 24')
    e(f's_load_dwordx2 {s(DBG,2)}, s[0:1], 104')
    e(f's_load_dwordx2 {s(WS,2)}, s[0:1], 112')
    if timing: e(f's_memrealtime {s(sTime,2)}')
    ln,n,g,t1,t2,g1,VOO,VA0,VA1,TO0,TO1,TA0,TA1,TB0,TB1,r=[STG+i for i in range(16)]
    e(f'v_lshrrev_b32 {v(t1)}, 6, v0'); e(f'v_and_b32 {v(ln)}, 63, v0'); e(f'v_readfirstlane_b32 {s(sW)}, {v(t1)}')
    e(f's_mov_b32 {s(WSRD+2)}, {4<<20}'); e(f's_mov_b32 {s(WSRD+3)}, 0x20000')
    e(f'v_and_b32 {v(n)}, 15, {v(ln)}'); e(f'v_lshrrev_b32 {v(g)}, 4, {v(ln)}'); e(f'v_and_b32 {v(g1)}, 1, {v(g)}')
    e(f's_mul_i32 {s(sReg)}, {s(sW)}, {WREG}'); e(f's_add_u32 {s(sReg)}, {s(sReg)}, {L_WV}')
    e(f'v_lshrrev_b32 {v(t1)}, 3, {v(n)}'); e(f'v_lshl_add_u32 {v(t1)}, {v(g1)}, 4, {v(t1)}'); e(f'v_lshrrev_b32 {v(t2)}, 1, {v(g)}'); e(f'v_lshl_add_u32 {v(t1)}, {v(t2)}, 2, {v(t1)}')
    e(f'v_and_b32 {v(t2)}, 7, {v(n)}'); e(f'v_lshlrev_b32 {v(t2)}, 4, {v(t2)}'); e(f'v_lshlrev_b32 {v(VOO)}, 6, {v(g1)}'); e(f'v_xor_b32 {v(t2)}, {v(t2)}, {v(VOO)}')
    e(f'v_lshl_add_u32 {v(VOO)}, {v(t1)}, 10, {v(t2)}')
    e(f's_lshl_b32 {s(sT)}, {s(sH)}, 17'); e(f's_lshl_b32 {s(sT+1)}, {s(sW)}, 8'); e(f's_add_u32 {s(sT)}, {s(sT)}, {s(sT+1)}')
    for k in range(4):
        e(f's_xor_b32 {s(sRow+k)}, {s(sW)}, {k}'); e(f's_lshl_b32 {s(sRow+k)}, {s(sRow+k)}, 15'); e(f's_add_u32 {s(sRow+k)}, {s(sRow+k)}, {s(sT)}')
    e('s_waitcnt lgkmcnt(0)')
    if timing: e('s_memrealtime s[80:81] ;stamp')
    og=[g_ for g_ in res_groups if g_[0]=='o']+lds_groups[4:]
    for gi,g_ in enumerate(og):
        for b in range(4):
            e(f's_add_u32 m0, {s(sReg)}, {(4*gi+b)*1024}'); e(f's_add_u32 {s(sT+7)}, {s(sRow+g_[2])}, {(8*(b>>1)+2*(b&1))*1024+g_[1]*128}')
            vm(f'buffer_load_dwordx4 {v(VOO)}, {s(WSRD,4)}, {s(sT+7)} offen'+(' nt' if OPT['nt'] else '')+' lds',g_)
        if gi==1: mark=len(p)
    if timing: e('s_memrealtime s[82:83] ;stamp')
    tail=p[mark:]; del p[mark:]
    e(f's_mov_b32 {s(WS+2)}, {WS_BYTES}'); e(f's_mov_b32 {s(WS+3)}, 0x20000')
    e(f'v_lshlrev_b32 {v(L16)}, 4, {v(ln)}'); e(f'v_add_u32 {v(LW)}, {s(sReg)}, {v(L16)}')
    e(f's_add_u32 {s(sVdst)}, {s(sReg)}, 32768')
    e(f's_lshl_b32 {s(sT+1)}, {s(sW)}, 11'); e(f's_add_u32 {s(sKdst)}, {s(sT+1)}, {L_KX}')
    e(f's_lshl_b32 {s(sWoff)}, {s(sW)}, 10')
    e(f'v_and_b32 {v(t1)}, 1, {v(ln)}'); e(f'v_mul_u32_u24 {v(t1)}, 0xaaaa, {v(t1)}'); e(f'v_add_u32 {v(IDX)}, 0x4444, {v(t1)}')
    e(f's_lshl_b32 {s(sT+2)}, {s(sW)}, 9')
    e(f'v_lshrrev_b32 {v(r)}, 2, {v(n)}'); e(f'v_lshlrev_b32 {v(QW)}, 7, {v(r)}'); e(f'v_and_b32 {v(t1)}, 1, {v(r)}'); e(f'v_lshlrev_b32 {v(t1)}, 6, {v(t1)}')
    e(f'v_lshlrev_b32 {v(t2)}, 5, {v(g)}'); e(f'v_xor_b32 {v(t1)}, {v(t1)}, {v(t2)}'); e(f'v_add_u32 {v(QW)}, {v(QW)}, {v(t1)}')
    e(f'v_and_b32 {v(t1)}, 3, {v(n)}'); e(f'v_lshl_add_u32 {v(QW)}, {v(t1)}, 2, {v(QW)}'); e(f'v_add_u32 {v(QW)}, {s(sT+2)}, {v(QW)}'); e(f'v_add_u32 {v(QW)}, {L_Q}, {v(QW)}')
    e(f'v_lshlrev_b32 {v(t1)}, 3, {v(ln)}'); e(f'v_add_u32 {v(OW)}, {s(sT+2)}, {v(t1)}'); e(f'v_and_b32 {v(ORD)}, -9, {v(OW)}')
    e(f'v_and_b32 {v(t1)}, -9, {v(t1)}'); e(f'v_lshlrev_b32 {v(t2)}, 6, {v(g1)}'); e(f'v_xor_b32 {v(QR)}, {v(t1)}, {v(t2)}')
    e(f'v_bfe_u32 {v(t1)}, {v(n)}, 1, 2'); e(f'v_lshlrev_b32 {v(KW)}, 2, {v(t1)}'); e(f'v_and_b32 {v(t1)}, 1, {v(n)}'); e(f'v_lshl_add_u32 {v(KW)}, {v(t1)}, 4, {v(KW)}')
    e(f'v_lshl_add_u32 {v(KW)}, {v(g)}, 6, {v(KW)}'); e(f'v_lshrrev_b32 {v(t1)}, 3, {v(n)}'); e(f'v_lshl_add_u32 {v(KW)}, {v(t1)}, 8, {v(KW)}')
    e(f'v_add_u32 {v(KW)}, {s(sT+2)}, {v(KW)}'); e(f'v_add_u32 {v(KW)}, {L_K}, {v(KW)}')
    e(f'v_lshlrev_b32 {v(MPUB)}, 12, {v(t1)}'); e(f'v_and_b32 {v(t1)}, 1, {v(r)}'); e(f'v_lshl_add_u32 {v(MPUB)}, {v(t1)}, 6, {v(MPUB)}'); e(f'v_lshl_add_u32 {v(MPUB)}, {v(g1)}, 5, {v(MPUB)}')
    e(f'v_and_b32 {v(t1)}, 3, {v(n)}'); e(f'v_lshl_add_u32 {v(MPUB)}, {v(t1)}, 3, {v(MPUB)}'); e(f'v_lshrrev_b32 {v(t2)}, 1, {v(g)}'); e(f'v_lshl_add_u32 {v(MPUB)}, {v(t2)}, 31, {v(MPUB)}')
    e(f'v_lshlrev_b32 {v(TO0)}, 8, {v(g)}'); e(f'v_lshl_add_u32 {v(TO0)}, {v(t1)}, 3, {v(TO0)}'); e(f'v_lshl_add_u32 {v(TO0)}, {v(g1)}, 6, {v(TO0)}')
    e(f'v_and_b32 {v(t2)}, 1, {v(r)}'); e(f'v_lshl_add_u32 {v(TO0)}, {v(t2)}, 7, {v(TO0)}'); e(f'v_lshrrev_b32 {v(t2)}, 1, {v(r)}'); e(f'v_lshl_add_u32 {v(TO0)}, {v(t2)}, 5, {v(TO0)}')
    e(f'v_add_u32 {v(TO0)}, {s(sReg)}, {v(TO0)}'); e(f'v_xor_b32 {v(TO1)}, 64, {v(TO0)}')
    e(f'v_lshl_add_u32 {v(t2)}, {v(g1)}, 2, {v(r)}'); e(f's_lshl_b32 {s(sT+3)}, {s(sW)}, 1'); e(f'v_xor_b32 {v(t2)}, {s(sT+3)}, {v(t2)}')
    e(f'v_lshlrev_b32 {v(TA0)}, 10, {v(g)}'); e(f'v_lshl_add_u32 {v(TA0)}, {v(r)}, 8, {v(TA0)}'); e(f'v_lshl_add_u32 {v(TA0)}, {v(t2)}, 5, {v(TA0)}'); e(f'v_lshl_add_u32 {v(TA0)}, {v(t1)}, 3, {v(TA0)}')
    e(f'v_add_u32 {v(TA0)}, {L_WV}, {v(TA0)}'); e(f'v_xor_b32 {v(TA1)}, 32, {v(TA0)}'); e(f'v_add_u32 {v(TB0)}, {2*WREG}, {v(TA0)}'); e(f'v_add_u32 {v(TB1)}, {2*WREG}, {v(TA1)}')
    e(f's_lshl_b32 {s(sT+4)}, {s(sH)}, 8')
    e(f'v_and_b32 {v(t2)}, 2, {v(g)}'); e(f'v_lshl_add_u32 {v(t2)}, {v(g1)}, 4, {v(t2)}'); e(f'v_lshlrev_b32 {v(t1)}, 1, {v(g)}'); e(f'v_xor_b32 {v(t1)}, {v(t1)}, {v(n)}'); e(f'v_lshlrev_b32 {v(t1)}, 4, {v(t1)}')
    e(f'v_lshl_add_u32 {v(VA0)}, {v(t2)}, 13, {v(t1)}'); e(f's_lshl_b32 {s(sT+3)}, {s(sW)}, 18'); e(f's_add_u32 {s(sT+3)}, {s(sT+3)}, {s(sT+4)}')
    e(f'v_add_u32 {v(VA0)}, {s(sT+3)}, {v(VA0)}'); e(f'v_xor_b32 {v(VA1)}, 128, {v(VA0)}')
    e(f's_lshl_b32 {s(sT+3)}, {s(sW)}, 15'); e(f'v_lshlrev_b32 {v(t1)}, 11, {v(r)}'); e(f'v_add_u32 {v(t1)}, {s(sT+4)}, {v(t1)}'); e(f'v_and_b32 {v(t1)}, 0x1fff, {v(t1)}')
    e(f'v_lshl_add_u32 {v(PST)}, {v(g)}, 13, {v(t1)}'); e(f'v_lshl_add_u32 {v(PST)}, {v(n)}, 4, {v(PST)}'); e(f'v_add_u32 {v(PST)}, {s(sT+3)}, {v(PST)}')
    Rp=OPT['rep']; cval=struct.unpack('<I',struct.pack('<f',math.log2(math.e)/math.sqrt(128)))[0]
    for r_,val in ((sC,cval),(sC2,cval),(sC2+1,cval),(sStep,0),(sSpin,0),(sSpinU,0),(sSpinF,0),(sSlot,0),(sPslot,3*262144),(sOne,0x3f803f80),(sOne+1,0x3f803f80),
                   (sOdd,0xaaaaaaaa),(sOdd+1,0xaaaaaaaa),(sEx,0x10001 if Rp>1 else 1),(sEx+1,0x10001 if Rp>2 else 0)): e(f's_mov_b32 {s(r_)}, {hex(val)}')
    e(f's_and_b32 {s(sFlagB)}, {s(sH)}, {Rp-1}'); e(f's_lshl_b32 {s(sFlagB)}, {s(sFlagB)}, 8'); e(f's_add_u32 {s(sFlagB)}, {s(sFlagB)}, {FLAG_OFF}')
    e(f's_lshl_b32 {s(sFlag)}, {s(sH)}, 2'); e(f's_add_u32 {s(sFlag)}, {s(sFlag)}, {FLAG_OFF}')
    e(f's_lshl_b32 {s(sPinB)}, {s(sH)}, 13'); e(f's_add_u32 {s(sPinB)}, {s(sPinB)}, {PART_OFF}'); e(f's_add_u32 {s(sPrstB)}, {s(sPinB)}, {s(sT+1)}')
    e(f's_bfe_u32 {s(sT+5)}, {s(sH)}, 0x20002'); e(f's_lshl_b32 {s(sMemB)}, {s(sT+5)}, 10'); e(f's_lshr_b32 {s(sT+5)}, {s(sH)}, 4'); e(f's_lshl_b32 {s(sT+5)}, {s(sT+5)}, 9')
    e(f's_add_u32 {s(sMemB)}, {s(sMemB)}, {s(sT+5)}'); e(f's_and_b32 {s(sT+5)}, {s(sH)}, 3'); e(f's_lshl_b32 {s(sT+5)}, {s(sT+5)}, 7'); e(f's_add_u32 {s(sMemB)}, {s(sMemB)}, {s(sT+5)}'); e(f's_add_u32 {s(sMemB)}, {s(sMemB)}, {MEM_OFF}')
    e(f's_lshl_b32 {s(sKsrc)}, {s(sH)}, 20'); e(f's_add_u32 {s(sKsrc)}, {s(sKsrc)}, {s(sT+1)}'); e(f's_add_u32 {s(sKsrc)}, {s(sKsrc)}, {KV_OFF}'); e(f's_add_u32 {s(sVsrc)}, {s(sKsrc)}, 8192')
    e(f's_lshl_b32 {s(sKvm)}, {s(sH)}, 18'); e(f's_add_u32 {s(sKvm)}, {s(sKvm)}, {s(sWoff)}'); e(f's_add_u32 {s(sKvm)}, {s(sKvm)}, {KVM_OFF}')
    e(f's_lshl_b32 {s(sKvF)}, {s(sH)}, 7'); e(f's_add_u32 {s(sKvmF)}, {s(sKvF)}, {BF_OFF+BF_KVM}'); e(f's_add_u32 {s(sKvF)}, {s(sKvF)}, {BF_OFF+BF_KV}')
    p+=zero(PM,4)+zero(ONES,4,'-1')
    e(f'v_and_b32 {v(t1)}, 2, {v(n)}'); e(f'v_lshlrev_b32 {v(t1)}, 3, {v(t1)}'); e(f'v_mov_b32 {v(t2)}, 0x3f80'); e(f'v_lshlrev_b32 {v(t2)}, {v(t1)}, {v(t2)}'); e(f'v_bfe_u32 {v(t1)}, {v(n)}, 2, 1')
    for jj in range(4):
        e(f'v_cmp_eq_u32 vcc, {jj&1}, {v(t1)}'); e(f'v_cndmask_b32 {v(M+jj)}, 0, {v(t2)}, vcc')
    e(f'ds_write_b128 {v(L16)}, {v(M,4)} offset:{L_SEL}')
    e(f'v_lshrrev_b32 {v(T0)}, 1, {v(n)}'); e(f'v_lshlrev_b32 {v(T0)}, 10, {v(T0)}'); e(f'v_lshl_add_u32 {v(T0)}, {v(g1)}, 3, {v(T0)}')
    e(f'v_and_b32 {v(t1)}, 2, {v(g)}'); e(f'v_lshl_add_u32 {v(T0)}, {v(t1)}, 6, {v(T0)}'); e(f'v_and_b32 {v(t1)}, 1, {v(n)}'); e(f'v_lshl_add_u32 {v(T0)}, {v(t1)}, 2, {v(T0)}')
    e(f's_lshl_b32 {s(sT+5)}, {s(sW)}, 8'); e(f'v_add_u32 {v(T0)}, {s(sT+5)}, {v(T0)}')
    p+=tail
    e(f's_lshl_b32 {s(sT+5)}, {s(sW)}, 18'); e(f's_add_u32 {s(sT+5)}, {s(sT+5)}, {s(sPinB)}'); e(f's_add_u32 {s(sT+6)}, {s(sT+5)}, 4096')
    for j in range(8): vm(f'buffer_store_dwordx4 {v(ONES,4)}, {v(L16)}, {s(WS,4)}, {s(sT+5+(j>>2))} offen offset:{(j&3)*1024} sc1','x')
    e(f's_lshl_b32 {s(sT+5)}, {s(sW)}, 13'); e(f's_add_u32 {s(sT+5)}, {s(sT+5)}, {s(sMemB)}')
    vm(f'buffer_store_dwordx2 {v(ONES,2)}, {v(MPUB)}, {s(WS,4)}, {s(sT+5)} offen sc1','x')
    e(f's_mov_b64 exec, {s(sEx,2)}'); vm(f'buffer_store_dword {v(PM)}, {v(L16)}, {s(WS,4)}, {s(sFlag)} offen sc1','x'); e('s_mov_b64 exec, -1')
    for u in range(2):
        for x in range(4): vm(f'global_load_dword {v(QA+4*u+x)}, {v(T0)}, {s(sPtr,2)} offset:{16*u+32*x}','x')
    if not OPT['rp']:
        p+=h2_addr(FLG,t1); e(f's_cmp_eq_u32 {s(sW)}, 1'); e('s_cselect_b64 vcc, -1, 0'); e(f'v_cndmask_b32 {v(MPUB)}, {v(MPUB)}, {v(FLG)}, vcc')
    qg=[g_ for g_ in res_groups if g_[0]!='o']+lds_groups[:4]
    ptr={'q':sPtr+2,'k':sPtr+4,'v':sPtr+6}
    def issue(bi):
        g_=qg[bi]; c=g_[1]
        e(f's_mov_b32 {s(WSRD)}, {s(ptr[g_[0]])}'); e(f's_mov_b32 {s(WSRD+1)}, {s(ptr[g_[0]]+1)}')
        for i in range(4):
            e(f's_add_u32 m0, {s(sT+6)}, {L_WV+(bi%4)*WREG+1024*i}'); e(f's_mov_b32 {s(sT+7)}, {(128*(c&3)+8*(c>>2)+4*(i>>1)+(i&1))*8192}')
            vm(f'buffer_load_dwordx4 {v(VA1 if i&1 else VA0)}, {s(WSRD,4)}, {s(sT+7)} offen'+(' nt' if OPT['nt'] else '')+' lds',g_)
    def oread(gi):
        g_=og[gi]; wait(g_)
        if timing and gi==0: e('s_memrealtime s[84:85] ;stamp')
        for b in range(4):
            for t in range(2):
                pf,b0=ureg(g_,t) if g_ in gloc else ('v',M+8*t)
                e(f'ds_read_b64_tr_b16 {R(pf,b0+2*b,2)}, {v(TO1 if t else TO0)} offset:{(4*gi+b)*1024}')
        e('s_waitcnt lgkmcnt(0)')
        if g_ not in gloc:
            for j in range(4): e(f'ds_write_b128 {v(LW)}, {v(M+4*j,4)} offset:{(4*gi+j)*1024}')
    for gi in range(4): oread(gi)
    e(f's_lshl_b32 {s(sT+6)}, {s(sW)}, 12')
    e('s_barrier')
    for bi in range(4): issue(bi)
    for gi in range(4,8): oread(gi)
    wait('x')
    e(f's_mov_b32 {s(sT+2)}, 0x05040100'); e(f's_mov_b32 {s(sT+3)}, 0x07060302'); e(f'v_add_u32 {v(T0)}, {s(sWoff)}, {v(L16)}')
    for u in range(2):
        d=X+4*u; q=QA+4*u
        e(f'v_perm_b32 {v(d)}, {v(q+1)}, {v(q)}, {s(sT+2)}'); e(f'v_perm_b32 {v(d+1)}, {v(q+3)}, {v(q+2)}, {s(sT+2)}')
        e(f'v_perm_b32 {v(d+2)}, {v(q+1)}, {v(q)}, {s(sT+3)}'); e(f'v_perm_b32 {v(d+3)}, {v(q+3)}, {v(q+2)}, {s(sT+3)}')
        e(f'ds_write_b128 {v(T0)}, {v(d,4)} offset:{L_MEM+4096*u}')
    for bi in range(24):
        g_=qg[bi]; wait(g_)
        if timing and bi==23: e('s_memrealtime s[86:87] ;stamp')
        e('s_barrier')
        if bi==0:
            e(f's_cmp_lg_u32 {s(sW)}, 0'); e('s_cbranch_scc1 L_ch_noarr')
            e(f's_getreg_b32 {s(sT+5)}, hwreg(HW_REG_XCC_ID)'); e(f's_and_b32 {s(sT+5)}, {s(sT+5)}, 7'); e(f's_lshl_b32 {s(sT+5)}, {s(sT+5)}, 3'); e(f's_lshl_b64 {s(sT+2,2)}, 1, {s(sT+5)}')
            e(f'v_mov_b32 {v(QA)}, {s(sT+2)}'); e(f'v_mov_b32 {v(QA+1)}, {s(sT+3)}'); e('s_mov_b64 exec, 1')
            e(f'global_atomic_add_x2 {v(PM+1)}, {v(QA,2)}, {s(DBG,2)}'); e('s_mov_b64 exec, -1')
            p.append('L_ch_noarr:')
        for b in range(4):
            for t in range(2):
                pf,b0=ureg(g_,t); tra=[[TA0,TA1],[TB0,TB1]][(bi%4)>>1][t]
                e(f'ds_read_b64_tr_b16 {R(pf,b0+2*b,2)}, {v(tra)} offset:{(bi&1)*WREG+b*4096}')
        e('s_waitcnt lgkmcnt(0)')
        if bi+4<24 or bi==23: e('s_barrier')
        if bi+4<24: issue(bi+4)
        if bi==8 and OPT['sync']:
            e(f'v_mov_b32 {v(T0)}, 136'); vm(f'global_load_dword {v(KVQ)}, {v(T0)}, {s(DBG,2)} sc1 ;stamp','i')
        if bi==14: vm(f'global_load_dwordx2 {v(QA,2)}, {v(PM+1)}, {s(DBG,2)} sc1 ;stamp','h')
        if bi==19:
            wait('h')
            p.append('L_ch_hs:')
            e(f'v_readfirstlane_b32 {s(sT+2)}, {v(QA)}'); e(f'v_readfirstlane_b32 {s(sT+3)}, {v(QA+1)}')
            e(f's_add_u32 {s(sSpinF)}, {s(sSpinF)}, 1'); e(f's_cmp_gt_u32 {s(sSpinF)}, {LIM}'); e('s_cbranch_scc1 L_ch_hsdone')
            e(f's_add_u32 {s(sT+4)}, {s(sT+2)}, {s(sT+3)}'); e(f's_lshr_b32 {s(sT+5)}, {s(sT+4)}, 16'); e(f's_add_u32 {s(sT+4)}, {s(sT+4)}, {s(sT+5)}')
            e(f's_lshr_b32 {s(sT+5)}, {s(sT+4)}, 8'); e(f's_add_u32 {s(sT+4)}, {s(sT+4)}, {s(sT+5)}'); e(f's_and_b32 {s(sT+4)}, {s(sT+4)}, 0xff')
            e(f's_cmp_ge_u32 {s(sT+4)}, 32'); e('s_cbranch_scc1 L_ch_hsdone')
            e(f'global_load_dwordx2 {v(QA,2)}, {v(PM+1)}, {s(DBG,2)} sc1 ;stamp'); e('s_waitcnt vmcnt(0) ;stamp'); e('s_branch L_ch_hs')
            p.append('L_ch_hsdone:')
            e(f's_or_b32 {s(sT+2)}, {s(sT+2)}, {s(sT+3)}'); e(f's_and_b32 {s(sT+2)}, {s(sT+2)}, 0x20202020')
            if OPT['sync']:
                wait('i')
                p.append('L_ch_iw:')
                e(f'v_cmp_eq_u32 vcc, 0, {v(KVQ)}'); e('s_cbranch_vccz L_ch_iwx')
                e(f's_add_u32 {s(sSpinF)}, {s(sSpinF)}, 1'); e(f's_cmp_gt_u32 {s(sSpinF)}, {LIM}'); e('s_cbranch_scc1 L_ch_iwx')
                e(f'global_load_dword {v(KVQ)}, {v(T0)}, {s(DBG,2)} sc1 ;stamp'); e('s_waitcnt vmcnt(0) ;stamp'); e('s_branch L_ch_iw')
                p.append('L_ch_iwx:')
                p.extend(kv_addr()); vm(f'buffer_load_dword {v(FLG)}, {v(T0)}, {s(WS,4)}, {s(sKvF)} offen sc1 ;stamp','f')
            e(f's_lshl_b32 {s(sT+5)}, {s(sW)}, 18'); e(f's_add_u32 {s(sT+5)}, {s(sT+5)}, {s(sPinB)}'); e(f's_add_u32 {s(sT+6)}, {s(sT+5)}, 4096')
            wl=[f'buffer_load_dwordx4 {v(KVQ,4)}, {v(L16)}, {s(WS,4)}, {s(sT+5+(j>>2))} offen offset:{(j&3)*1024} sc1 ;stamp' for j in range(8)]
            nlate=3 if OPT['rs']==0 else 2
            def warm(lst,k):
                for l in lst: vm(l,'w')
            e(f's_lshl_b32 {s(sT+4)}, {s(sH)}, 10'); e(f's_add_u32 {s(sT+4)}, {s(sT+4)}, {MEM_OFF}')
            vm(f'buffer_load_dwordx4 {v(KVQ,4)}, {v(L16)}, {s(WS,4)}, {s(sT+4)} offen sc1 ;stamp','w')
            warm(wl[:8-nlate],0)
    if OPT['sync']:
        wait('f')
        p.extend(kv_check('L_ch_k0')); p.extend(['s_branch L_ch_k0y']+kv_wait('L_ch_k0')+['L_ch_k0y:'])
    for sd,ss in ((sKdst,sKsrc),(sVdst,sVsrc)):
        e(f's_mov_b32 m0, {s(sd)}')
        for j in range(2): e(f'buffer_load_dwordx4 {v(L16)}, {s(WS,4)}, {s(ss)} offen offset:{1024*j} sc1 lds')
    warm([l.replace(v(KVQ,4),v(STG,4)) for l in wl[8-nlate:]],1)
    for gi,g_ in enumerate(lds_groups[:4]):
        for t in range(2):
            for j in range(2): e(f'ds_write_b128 {v(LW)}, {v(stream[g_+(t,)]+4*j,4)} offset:{gi*4096+t*2048+j*1024}')
    p+=zero(QA,8)+kv_addr()
    if OPT['rp']: e(f'v_mov_b32 {v(FLG)}, 0')
    e(f's_add_u32 {s(sKsrc)}, {s(sKsrc)}, 16384'); e(f's_add_u32 {s(sVsrc)}, {s(sVsrc)}, 16384')
    e(f's_add_u32 {s(sPrst)}, {s(sPrstB)}, {2*262144}')
    if not OPT['tr'] and not OPT['solo']:
        for k in range(4):
            e(f's_and_b32 {s(sT+4)}, {s(sH)}, 1'); e(f's_xor_b32 {s(sT+4)}, {s(sT+4)}, {k}'); e(f's_lshl_b32 {s(sRo1+k)}, {s(sT+4)}, 11')
            e(f's_add_u32 {s(sT+4)}, {s(sH)}, {k}'); e(f's_and_b32 {s(sT+4)}, {s(sT+4)}, 3'); e(f's_lshl_b32 {s(sRo2+k)}, {s(sT+4)}, 10')
    e('s_waitcnt lgkmcnt(0)')
    if timing: e(f's_memrealtime {s(sTime+2,2)}'); e(f's_memtime {s(sTime+6,2)}'); e('s_waitcnt lgkmcnt(0)')
    if OPT['solo']: e('s_waitcnt vmcnt(0)'); e('s_memtime s[60:61]'); e('s_waitcnt lgkmcnt(0)'); e('s_barrier')
    if OPT['rp'] and not OPT['solo']:
        e(f's_cmp_eq_u32 {s(sW)}, 1'); e(f's_cselect_b32 {s(sKvmF)}, {s(sKvmF)}, 0x40000000')
        e('s_barrier')
        for c in range(4): e(mrd(c))
        e(f's_cmp_eq_u32 {s(sT+2)}, 0'); e('s_cbranch_scc1 L_ch_S0_re'); e('s_branch L_ch_F0_re'); e('s_waitcnt lgkmcnt(0)')
    e(f's_cmp_eq_u32 {s(sT+2)}, 0'); e('s_cbranch_scc1 L_ch_S0')
    return fix(p,'prologue')

def smf(d,a_,b): return f'{SMF} {v(d,4)}, {v(a_,4)}, {b}, {v(IDX)}'
def mrd(c): return f'ds_read_b128 {v(M+4*c,4)}, {v(L16)} offset:{L_MEM+1024*c}'
def G(*groups):
    o=[]
    for g_ in groups: o.extend(g_)
    return o

def step(mode, par, verbose=False):
    sc=' sc1' if mode=='S' else ''
    two=OPT['tr'] or OPT['solo']
    L=f'L_ch_{mode}{par}'
    p=[L+':']; e=p.append
    qk=lambda m,c,t: smf((QA if m=='q' else KA if m=='k' else VA)+4*t, M+4*c, unit((m,c),t))
    Q=lambda c,t: qk('q',c,t); K=lambda c,t: qk('k',c,t); V=lambda c,t: qk('v',c,t)
    W=lambda n: f's_waitcnt lgkmcnt({n})'
    krd=[f'ds_read_b128 {v(X+4*f,4)}, {v(L16)} offset:{L_KX+1024*f}' for f in range(8)]
    kl=[f'buffer_load_dwordx4 {v(STG+4*i,4)}, {v(L16)}, {s(WS,4)}, {s(sVsrc if i>>1 else sKsrc)} offen offset:{1024*(i&1)} sc1' for i in range(4)]
    kw=[f'v_add_u32 {v(T0)}, {s(sKdst)}, {v(L16)}','s_waitcnt vmcnt(3)']+[f'ds_write_b128 {v(T0)}, {v(STG+4*i,4)} offset:{1024*i}' for i in range(2)]+[f'ds_write_b128 {v(LW)}, {v(STG+8+4*i,4)} offset:{32768+1024*i}' for i in range(2)]
    def post(acc,d0,d1,bytok):
        o=[f'v_add_f32 {v(acc)}, {v(acc)}, {v(acc+1)}', f'v_add_f32 {v(acc+2)}, {v(acc+2)}, {v(acc+3)}',
           f'v_add_f32 {v(acc+4)}, {v(acc+4)}, {v(acc+5)}', f'v_add_f32 {v(acc+6)}, {v(acc+6)}, {v(acc+7)}']
        if bytok: o+=[f'v_cvt_pk_bf16_f32 {v(d0)}, {v(acc)}, {v(acc+4)}', f'v_cvt_pk_bf16_f32 {v(d1)}, {v(acc+2)}, {v(acc+6)}']
        else:     o+=[f'v_cvt_pk_bf16_f32 {v(d0)}, {v(acc)}, {v(acc+2)}', f'v_cvt_pk_bf16_f32 {v(d1)}, {v(acc+4)}, {v(acc+6)}']
        return o
    def tr(i,rt=False):
        if not OPT['tr']: return []
        return [('s_memrealtime' if rt else 's_memtime')+f' {s(52+14*par+2*i,2)} ;stamp']
    def trdump():
        if not OPT['tr']: return []
        o=[f'v_mov_b32 {v(M+4+i)}, {s(52+14*(1-par)+2*i)}' for i in range(4)]+[f'v_mov_b32 {v(M+8+i)}, {s(52+14*(1-par)+2*i)}' for i in range(4,7)]
        o+=[f's_lshl_b32 {s(sT+1)}, {s(sSpinU)}, 16', f's_add_u32 {s(sT+1)}, {s(sT+1)}, {s(sSpin)}', f'v_mov_b32 {v(M+15)}, {s(sT+1)}',
            f's_lshl_b32 {s(sT+1)}, {s(sStep)}, 5', f's_add_u32 {s(sT+1)}, {s(sT+1)}, {s(sH)}', f's_lshl_b32 {s(sT+1)}, {s(sT+1)}, 2', f's_add_u32 {s(sT+1)}, {s(sT+1)}, {s(sW)}',
            f's_lshl_b32 {s(sT+1)}, {s(sT+1)}, 5', f's_add_u32 {s(sT+1)}, {s(sT+1)}, {100<<20}', 's_mov_b64 exec, 1',
            f'buffer_store_dwordx4 {v(M+4,4)}, off, {s(WS,4)}, {s(sT+1)}', f'buffer_store_dwordx4 {v(M+12,4)}, off, {s(WS,4)}, {s(sT+1)} offset:16', 's_mov_b64 exec, -1']
        return o
    rstore=lambda j: f'buffer_store_dwordx4 {v(ONES,4)}, {v(L16)}, {s(WS,4)}, {s(sPrst)} offen offset:{j*1024}{sc}'
    pub=f'buffer_store_dwordx4 {v(KVQ,4)}, {v(L16)}, {s(WS,4)}, {s(sKvm)} offen'+(' sc1' if OPT['pub'] else '')
    rp=OPT['rp']; sp=OPT['sp']
    if not OPT['solo']: p.extend(['s_waitcnt lgkmcnt(0)' if rp else f's_waitcnt vmcnt({7 if OPT["rs"]==0 else 6}) lgkmcnt(0)','s_barrier'])
    p.append(';secS')
    for c in range(4): e(mrd(c))
    if OPT['rs']==1: e(rstore(0))
    if rp: e(pub); e(f's_add_u32 {s(sKvm)}, {s(sKvm)}, 4096')
    p.append(f'{L}_re:')
    z=zero(KA,16)
    qp=post(QA,QA+1,QA+3,True)+[f'ds_write2_b32 {v(QW)}, {v(QA+1)}, {v(QA+3)} offset0:0 offset1:4']
    kp=post(KA,KVQ+1,KVQ+3,True)+[f'ds_write2_b32 {v(KW)}, {v(KVQ+1)}, {v(KVQ+3)} offset0:0 offset1:8']
    p.extend(G([W(3)],[Q(0,0)],[Q(0,1),W(2)],[Q(1,0),kl[0]],[Q(1,1),W(1)],[Q(2,0),kl[1]],[Q(2,1),W(0),z[0]],[Q(3,0),z[1]],[Q(3,1),kl[2]],
               [K(0,0),z[2]],[K(1,0),kl[3]],[K(2,0),f's_waitcnt vmcnt({(7 if OPT["rs"]<2 else 6) if not rp else (6 if sp==0 else 5)})','s_barrier',z[3]],[K(3,0),mrd(4),z[4]],
               [K(0,1),mrd(5),z[5]],[K(1,1),mrd(6),z[6]],[K(2,1),mrd(7),z[7]],[K(3,1),krd[0],W(4)]))
    p.append(';sec0')
    on=[f'v_mov_b64 {v(ONES+2*i,2)}, {s(sOne,2)}' for i in range(2)]
    fld=f'buffer_load_dword {v(FLG)}, {v(T0)}, {s(WS,4)}, {s(sKvF)} offen sc1'
    if rp:
        p.extend(G([Q(4,0),krd[4],W(4)],[Q(5,0),krd[1],W(4)],[Q(6,0),krd[5],W(4)],[Q(7,0),krd[2],'s_nop 0'],
               [Q(4,1),krd[3],'s_nop 0'],[Q(5,1),krd[6]],[Q(6,1),krd[7],qp[0]],[Q(7,1)]+([rstore(0),'s_nop 0'] if sp==1 else ['s_nop 1'])+[qp[1]],
               [K(4,0),'s_mov_b64 exec, 1',f'buffer_store_dword {v(FLG)}, off, {s(WS,4)}, {s(sKvmF)} sc1','s_mov_b64 exec, -1'],[K(5,0),qp[2]],[K(6,0),qp[3]],[K(7,0),fld,'s_nop 0',qp[4]],
               [K(4,1),qp[5]],[K(5,1),qp[6]],[K(6,1),kp[0]],[K(7,1),kp[1]]))
    else:
        p.extend(G([Q(4,0),krd[4],W(4)],[Q(5,0),krd[1],W(4)],[Q(6,0),krd[5],W(4)],[Q(7,0),krd[2],on[0] if OPT['rs']<2 else 's_nop 0'],
               [Q(4,1),krd[3],on[1] if OPT['rs']<2 else 's_nop 0'],[Q(5,1),krd[6]],[Q(6,1),krd[7],qp[0]],[Q(7,1),'s_nop 1',qp[1]],
               [K(4,0),fld],[K(5,0),'s_nop 1',qp[2]],[K(6,0),qp[3]],[K(7,0),'s_nop 1',qp[4]],
               [K(4,1),qp[5]],[K(5,1),qp[6]],[K(6,1),kp[0]],[K(7,1),kp[1]]))
    p.append(';sec1')
    rk=[f'ds_read_b128 {v(X+16*k,4)}, {v(L16)} offset:{L_K+1024*k}' for k in range(2)]
    rq=[f'ds_read_b128 {v(M+4*k,4)}, {v(QR)} offset:{L_Q+512*k}' for k in range(4)]
    VF=[X+4,X+20]
    rv=[f'ds_read_b128 {v(VF[t],4)}, {v(LW)} offset:{32768+1024*t}' for t in range(2)]
    SX=lambda m,ks: f'{MF32} {v(QA+4*m,4)}, {v(X+16*m+4*ks,4)}, {v(M+4*ks,4)}, '+(v(QA+4*m,4) if ks else '0')
    sm=[smf(KA,X+16*k,v(M+8*k,8)) for k in range(2)]
    zk=zero(KA,4)
    mx=PM; tt=KA+3
    c=[f'v_max3_f32 {v(mx)}, {v(QA)}, {v(QA+1)}, {v(QA+2)}', f'v_max3_f32 {v(mx)}, {v(mx)}, {v(QA+3)}, {v(QA+4)}',
       f'v_max3_f32 {v(mx)}, {v(mx)}, {v(QA+5)}, {v(QA+6)}',
       f'v_add_f32 {v(KA)}, {v(KA)}, {v(KA+1)}', f'v_add_f32 {v(KA+1)}, {v(KA+2)}, {v(KA+3)}',
       f'v_max3_f32 {v(mx)}, {v(mx)}, {v(QA+7)}, {v(KA)}', f'v_max_f32 {v(tt)}, {v(mx)}, {v(KA+1)}', f'v_max_f32 {v(mx)}, {v(mx)}, {v(KA+1)}',
       f'v_permlane32_swap_b32 {v(mx)}, {v(tt)}', f'v_max_f32 {v(T0)}, {v(mx)}, {v(tt)}', f'v_max_f32 {v(mx)}, {v(mx)}, {v(tt)}',
       f'v_permlane16_swap_b32 {v(mx)}, {v(T0)}', f'v_max_f32 {v(mx)}, {v(mx)}, {v(T0)}', f'v_mul_f32 {v(T0)}, {s(sC)}, {v(mx)}']
    kadv=0 if OPT['hotkv'] else 16384
    bk=[f's_add_u32 {s(sSlot)}, {s(sSlot)}, 8192', f's_and_b32 {s(sSlot)}, {s(sSlot)}, 0x7fff',
        f's_add_u32 {s(sMemIn0)}, {s(sSlot)}, {MEM_OFF}', f's_add_u32 {s(sMemPub)}, {s(sMemB)}, {s(sSlot)}',
        f's_xor_b32 {s(sMemRst)}, {s(sMemPub)}, 16384',
        f's_add_u32 {s(sPrst)}, {s(sPrstB)}, {s(sPslot)}',
        f's_add_u32 {s(sPslot)}, {s(sPslot)}, 262144', f's_and_b32 {s(sPslot)}, {s(sPslot)}, 0xfffff',
        f's_add_u32 {s(sPst)}, {s(sPslot)}, {PART_OFF}', f's_add_u32 {s(sPst+1)}, {s(sPslot)}, {PART_OFF+131072}',
        f's_add_u32 {s(sPin)}, {s(sPinB)}, {s(sPslot)}', f's_add_u32 {s(sPin+1)}, {s(sPin)}, 4096',
        f's_add_u32 {s(sKsrc)}, {s(sKsrc)}, {kadv}', f's_add_u32 {s(sVsrc)}, {s(sVsrc)}, {kadv}',
        f's_add_u32 {s(sMemIn1)}, {s(sMemIn0)}, 4096', f's_mov_b32 m0, {L_MEM}', f's_add_u32 {s(sStep)}, {s(sStep)}, 1']
    wo=lambda tp,k: stream_reads(('o',tp>>1,k),tp&1)
    p.extend(G([V(0,0),'s_nop 1',f'v_cmp_u_f32 vcc, {v(QA)}, {v(QA+2)}'],[V(0,1),W(0),'s_barrier',kp[2]],[V(1,0),rq[0],kp[3]],[V(1,1),rq[1],kp[4]],
               [V(2,0),kp[5]],[V(2,1),kp[6]],[V(3,0),rq[2],zk[0]],[V(3,1),rq[3],W(3)],
               [SX(0,0),zk[1]],[SX(1,0)]+(on if rp else [])+([rstore(0)] if OPT['rs']==2 else []),[SX(0,1),W(0),'s_barrier'],[SX(1,1),rk[0]]+([on[0]] if OPT['rs']==2 else []),
               [SX(0,2),rk[1]]+([on[1]] if OPT['rs']==2 else []),[SX(0,3),rv[0]],[SX(1,2),rv[1]],[SX(1,3),f's_cbranch_vccnz {L}_r2',f'{L}_r2x:',W(2)],
               [sm[0],bk[0],bk[1],c[0]],[sm[1],wo(2,1)[0]],
               [V(4,0),bk[2],bk[3],c[1]],[V(5,0),wo(2,2)[0],c[2]],[V(6,0),bk[5],bk[6],c[3],c[4]],[V(7,0),bk[7],bk[16],c[5],c[6],c[7]],
               [V(4,1),wo(0,3)[0],c[8]],[V(5,1),wo(0,3)[1],c[9],c[10]],[V(6,1),wo(1,3)[0],c[11]],[V(7,1),wo(1,3)[1],c[12],c[13]]))
    if OPT['tr']: p.append(f's_memtime {s(52+14*(1-par)+10,2)} ;stamp')
    p.append(';sec2')
    vp=post(VA,KVQ,KVQ+2,False)
    xp=lambda r_: f'v_exp_f32 {v(r_)}, {v(r_)}'
    PX=KA+4; OF=M+16
    e(vp[0]); e(vp[1])
    for r_ in (KA,QA,QA+2,QA+4,QA+6):
        e(f'v_pk_fma_f32 {v(r_,2)}, {v(r_,2)}, {s(sC2,2)}, {v(T0,2)} op_sel_hi:[1,1,0] neg_lo:[0,0,1] neg_hi:[0,0,1]')
    e(f'v_mfma_f32_32x32x8_bf16 {v(M,16)}, {v(PM+2,2)}, {v(PM+2,2)}, 0'); e(bk[12])
    e(xp(KA)); e(xp(KA+1))
    p.extend([vp[2],vp[3],vp[4],vp[5]])
    e(f'v_cvt_pk_bf16_f32 {v(PM)}, {v(KA)}, {v(KA+1)}')
    e(xp(QA)); e(xp(QA+1))
    ex=[f's_cmp_eq_u32 {s(sStep)}, 64','s_cbranch_scc1 L_ch_last'] if (par==1 or not two) else ['s_nop 1']
    p.extend(G([f'{MF16} {v(VA,4)}, {v(KVQ,2)}, {v(PM,2)}, 0',bk[13],xp(QA+2)],
               [f'{MF16} {v(VA+4,4)}, {v(KVQ+2,2)}, {v(PM,2)}, 0',bk[8],xp(QA+3)],
               [f'{MF16} {v(KA,4)}, {v(ONES,2)}, {v(PM,2)}, 0',W(6),xp(QA+4),xp(QA+5),xp(QA+6),xp(QA+7)]))
    for i in range(4): e(f'v_cvt_pk_bf16_f32 {v(PX+i)}, {v(QA+2*i)}, {v(QA+2*i+1)}')
    zo=zero(ONES,4,'-1')
    oa=[f'v_xor_b32 {v(QA+k)}, {512*k}, {v(ORD)}' for k in range(1,4)]
    p.extend(G([oa[0],oa[1]],[f'{MF32} {v(KA,4)}, {v(ONES,4)}, {v(PX,4)}, {v(KA,4)}']+ex+[oa[2]],
               [f'{MF32} {v(VA,4)}, {v(VF[0],4)}, {v(PX,4)}, {v(VA,4)}',bk[14],zo[0],zo[1]],
               [f'{MF32} {v(VA+4,4)}, {v(VF[1],4)}, {v(PX,4)}, {v(VA+4,4)}',bk[15],f'v_rcp_f32 {v(T0)}, {v(KA)}',bk[9],bk[10]]))
    pm_=[f'v_pk_mul_f32 {v(VA+2*i,2)}, {v(VA+2*i,2)}, {v(T0,2)} op_sel_hi:[1,0]' for i in range(4)]
    cv=[f'v_cvt_pk_bf16_f32 {v(OF+i)}, {v(VA+2*i)}, {v(VA+2*i+1)}' for i in range(4)]
    p.extend([pm_[0],pm_[1],cv[0],cv[1],pm_[2],pm_[3],cv[2],cv[3]])
    p.append(';sec3')
    e(f'v_cndmask_b32 {v(QA+4)}, {v(OF)}, {v(OF+2)}, {s(sOdd,2)}'); e(f'v_cndmask_b32 {v(QA+5)}, {v(OF+1)}, {v(OF+3)}, {s(sOdd,2)}')
    O=lambda tp,k: smf(M+4*tp,OF+4*k,unit(('o',tp>>1,k),tp&1))
    def oc(tp,j):
        q=M+8*(tp>>1)+(tp&1)+2*j
        return f'v_cvt_pk_bf16_f32 {v(q)}, {v(M+4*tp+2*j)}, {v(M+4*tp+2*j+1)}'
    ost=lambda u: f'buffer_store_dwordx4 {v(M+8*u,4)}, {v(PST)}, {s(WS,4)}, {s(sPst+u)} offen{sc}'
    ro=[f'ds_read_b128 {v(OF+4*k,4)}, {v(QA+k)} offset:{L_O}' for k in range(1,4)]
    p.extend(G([f'ds_write_b64 {v(OW)}, {v(QA+4,2)} offset:{L_O}'],[O(0,0),rstore(1)],[O(1,0),wo(2,1)[1]],[W(1),'s_barrier',ro[0]],[O(2,0),ro[1],bk[11]],[O(3,0),ro[2],bk[4]],
               [wo(2,2)[1],wo(2,3)[0],W(4)]))
    p.append(';sec4')
    p.extend(G([O(0,1),wo(2,3)[1],W(4)],[O(0,2),wo(3,1)[0],W(4)],[O(0,3),wo(3,1)[1],f's_cmp_lg_u32 {s(sW)}, 0'],
               [O(1,1),wo(3,2)[0],'s_nop 0'],[O(1,2),wo(3,2)[1],W(4)],[O(1,3),wo(3,3)[0],oc(0,0)],
               [O(2,1),wo(3,3)[1],oc(0,1)],[O(2,2),W(4),'s_nop 0',oc(1,0),oc(1,1)],[O(2,3),ost(0)],
               [O(3,1),W(0),'s_nop 1'],[O(3,2),'s_nop 1',oc(2,0)],[O(3,3),'s_nop 1',oc(2,1)],[oc(3,0),oc(3,1),ost(1)]))
    sr=[]
    for g_,t in ((('q',0),0),(('q',0),1),(('q',1),0),(('q',1),1)): sr+=stream_reads(g_,t)
    xs=[]
    for g_,t in ((('q',2),0),(('q',2),1),(('q',3),0),(('q',3),1)): xs+=stream_reads(g_,t)
    xz=weave(xs,zero(QA,8),[0,0,0,0,1,1,1,1])
    if verbose and par==0:
        fx=fix(p,'main',True); print('model cycles',simulate(fx,OPT['show']), 'inserted waits', len([l for l in fx if l.startswith('s_waitcnt')])-len([l for l in p if l.startswith('s_waitcnt')]))
    if OPT['solo']:
        marks=[i for i,l in enumerate(p) if l.startswith(';sec')]
        if OPT['cutm']>=0:
            marks=[i+1 for i,l in enumerate(p) if l.startswith(('v_mfma','v_smfmac'))]; OPT['cut']=OPT['cutm']
        if OPT['cut']<len(marks):
            rest=p[marks[OPT['cut']]:]
            p[:]=p[:marks[OPT['cut']]]+['s_memtime s[62:63] ;stamp']+[l for l in rest if (l.startswith(('s_add','s_and','s_cmp','s_cbranch_scc')) or l.endswith(':'))]
        d=OPT['drop']
        if d&1: p[:]=[l for l in p if not l.startswith('buffer_store')]
        if d&2: p[:]=[l for l in p if not l.startswith('buffer_load')]
        if OPT['cut']>=len(marks): p.append('s_memtime s[62:63] ;stamp')
        p.extend(['s_waitcnt vmcnt(0)']+kw+kv_addr()+sr+xz)
        p.extend(['s_waitcnt lgkmcnt(0) vmcnt(0)','s_sub_u32 s62, s62, s60', f's_add_u32 {s(sSpin)}, {s(sSpin)}, s62', 's_barrier', 's_sleep 8', 's_memtime s[60:61] ;stamp', 's_waitcnt lgkmcnt(0)', 's_barrier'])
        if par==1: p.append(f's_branch L_ch_{mode}0')
        return fix(p,f'solo{par}'), [f'{L}_r2:',f's_branch {L}_r2x']
    kc=lambda x: kv_check(L+x) if OPT['sync'] else []
    if rp: return window_rp(locals())
    p.extend(tr(0)+tr(1,True))
    e(f's_cbranch_scc1 {L}_w')
    head=list(p)
    p.extend(trdump())
    e(f'ds_read_b128 {v(QA+4,4)}, {v(L16)} offset:{L_SEL}')
    e(f'v_mov_b32 {v(M+2)}, {s(sStep)}')
    for i in range(OPT['d1']-(8 if OPT['tr'] else 0)): e('s_nop 3')
    p.extend(tr(2))
    ld1=[f'buffer_load_dwordx4 {v(X+4*j,4)}, {v(L16)}, {s(WS,4)}, {s(sPin+(j>>2))} offen offset:{(j&3)*1024} sc1' for j in range(8)]
    if OPT['ro1']:
        p[-1:-1]=[f's_add_u32 {s(sT+4+k)}, {s(sPin)}, {s(sRo1+k)}' for k in range(4)]; p.pop()
        ld1=[f'buffer_load_dwordx4 {v(X+4*j,4)}, {v(L16)}, {s(WS,4)}, {s(sT+4+(j>>1))} offen offset:{(j&1)*1024} sc1' for j in range(8)]
    fst=[f's_mov_b64 exec, {s(sEx,2)}', f'buffer_store_dword {v(M+2)}, {v(L16)}, {s(WS,4)}, {s(sFlag)} offen{sc}', 's_mov_b64 exec, -1']
    p.extend(ld1); p.extend(sr+zero(QA,4)); e(W(8))
    p.append(f'{L}_p1:')
    RM=lambda j: smf(QA,QA+4,v(X+8*j,8))
    fin=[f'v_cvt_pk_bf16_f32 {v(M)}, {v(QA)}, {v(QA+2)}', f'v_cvt_pk_bf16_f32 {v(M+1)}, {v(QA+1)}, {v(QA+3)}']
    mpub=f'buffer_store_dwordx2 {v(M,2)}, {v(MPUB)}, {s(WS,4)}, {s(sMemPub)} offen{sc}'
    chk=f'v_cmp_u_f32 vcc, {v(QA)}, {v(QA+1)}'
    p.extend(['s_waitcnt vmcnt(6)',f'v_cmp_u_f32 vcc, {v(X)}, {v(X+4)}',RM(0),
              fst[0], f's_cbranch_vccnz {L}_r0']+fst[1:]+(['s_barrier'] if OPT['b0'] else [])+tr(3)+[f'{L}_p2:'])
    for j in range(1,4):
        e(f's_waitcnt vmcnt({7-2*j})'); e(RM(j))
    p.extend(fin+[mpub,chk])
    p.extend(tr(4))
    e(f's_cbranch_vccnz {L}_r1')
    p.append(f'{L}_p1ok:')
    p.extend([kw[0]]+kw[2:]+kc('_ka')+xz)
    nxt=f'L_ch_{mode}{1-par if two else 0}'
    tailc=['s_barrier', pub]+([rstore(0)] if OPT['rs']==0 else [])
    tail2=kv_addr()+[f's_add_u32 {s(sKvm)}, {s(sKvm)}, 4096', f's_branch {nxt}']
    p.append(f'{L}_b1:')
    p.extend(tailc+tail2)
    body=fix(p,f'step{mode}{par}',verbose)
    ld2=[f'buffer_load_dwordx4 {v(H2A)}, {s(WS,4)}, {s(sMemIn0)} offen offset:{1024*j} sc1 lds' for j in range(4)]
    ld2+=[f's_mov_b32 m0, {L_MEM+4096}','s_nop 0']+[f'buffer_load_dwordx4 {v(H2A)}, {s(WS,4)}, {s(sMemIn1)} offen offset:{1024*j} sc1 lds' for j in range(4)]
    ld2r=ld2
    if OPT['ro2']:
        ld2r=[]
        for j in range(8):
            ld2r+=[f's_add_u32 m0, {s(sRo2+(j&3))}, {L_MEM+4096*(j>>2)}', f's_add_u32 {s(sT+4)}, {s(sRo2+(j&3))}, {s(sMemIn1 if j>>2 else sMemIn0)}',
                   f'buffer_load_dwordx4 {v(H2A)}, {s(WS,4)}, {s(sT+4)} offen sc1 lds']
    q=[f'{L}_w:']+kw+[f's_cmp_lg_u32 {s(sW)}, 3', f's_cbranch_scc1 {L}_w3', f'buffer_store_dwordx2 {v(ONES,2)}, {v(MPUB)}, {s(WS,4)}, {s(sMemRst)} offen{sc}', f'{L}_w3:']+kc('_kb')+trdump()+sr+xz; e=q.append
    e(f's_cmp_eq_u32 {s(sW)}, 1'); e(f's_cbranch_scc1 {L}_fb')
    if OPT['b0']: e('s_barrier')
    e(f's_branch {L}_b1')
    q.append(f'{L}_fb:')
    e(f'v_lshrrev_b32 {v(T0)}, 2, {v(L16)}'); e(f'v_and_b32 {v(T0)}, 0x7c, {v(T0)}')
    if OPT['b0']: e('s_barrier')
    for i in range(max(0,OPT['sl']-(7 if OPT['tr'] and not OPT['b0'] else 0))): e('s_nop 3')
    q.extend(tr(2))
    if OPT['ro2']: q.extend(ld2r[:2]); ld2r=ld2r[2:]
    N=OPT['nb']
    fl=f'buffer_load_dword {v(PM)}, {v(T0)}, {s(WS,4)}, {s(sFlagB)} offen sc1'
    for i in range(N-1): e(fl); e(f's_nop {7+OPT["pp"]}')
    q.append(f'{L}_fb2:')
    for i in range(8):
        e(fl)
        if OPT['pp']: e(f's_nop {OPT["pp"]-1}')
        e(f's_waitcnt vmcnt({N-1})'); e(f'v_cmp_gt_u32 vcc, {s(sStep)}, {v(PM)}'); e(f's_cbranch_vccz {L}_fb3')
    e(f's_add_u32 {s(sSpinF)}, {s(sSpinF)}, 1'); e(f's_cmp_gt_u32 {s(sSpinF)}, {LIM}'); e(f's_cbranch_scc0 {L}_fb2')
    q.append(f'{L}_fb3:')
    q.extend(tr(3)); q.extend(ld2r)
    q.extend(tailc+[f's_sub_u32 {s(sT+3)}, {s(sStep)}, 1', f'v_mov_b32 {v(FLG)}, {s(sT+3)}', 's_mov_b64 exec, 1',
        f'buffer_store_dword {v(FLG)}, off, {s(WS,4)}, {s(sKvmF)} sc1', 's_mov_b64 exec, -1']+tail2)
    i=q.index(f'{L}_fb:')
    alt=fix(head+q[:i],f'alt{mode}{par}',False)
    q=alt[alt.index(f'{L}_w:'):]+q[i:]
    e=q.append
    if OPT['sync']: q.extend(kv_wait(L+'_ka')+kv_wait(L+'_kb'))
    q.append(f'{L}_r0:')
    e('s_mov_b64 exec, -1')
    q.append(f'{L}_r0l:')
    q.extend(ld1); e(f's_add_u32 {s(sSpin)}, {s(sSpin)}, 1'); e(f's_cmp_gt_u32 {s(sSpin)}, {LIM}'); e(f's_cbranch_scc1 {L}_r0g')
    q.extend(['s_waitcnt vmcnt(6)',f'v_cmp_u_f32 vcc, {v(X)}, {v(X+4)}',f's_cbranch_vccnz {L}_r0l', f'{L}_r0g:'])
    q.extend(zero(QA,4)+['s_nop 0'])
    for j in range(4): e(f's_waitcnt vmcnt({6-2*j})'); e(RM(j))
    q.extend(['s_nop 7', chk]+fin+[f's_cbranch_scc1 {L}_r0e', f's_cbranch_vccnz {L}_r0l', f'{L}_r0e:', mpub]+fst+(['s_barrier'] if OPT['b0'] else [])+tr(3)+tr(4)+[f's_branch {L}_p1ok'])
    q.append(f'{L}_r1:')
    e(f's_add_u32 {s(sSpin)}, {s(sSpin)}, 256'); e(f's_cmp_gt_u32 {s(sSpin)}, {LIM}'); e(f's_cbranch_scc1 {L}_p1ok')
    q.extend(zero(QA,4)+ld1); q.extend(['s_waitcnt vmcnt(0)',RM(0)]); e(f's_branch {L}_p2')
    q.append(f'{L}_r2:')
    e(f's_add_u32 {s(sSpinU)}, {s(sSpinU)}, 1'); e(f's_cmp_gt_u32 {s(sSpinU)}, {LIM}'); e(f's_cbranch_scc1 {L}_r2x')
    e(f's_cmp_eq_u32 {s(sStep)}, 0'); e(f's_cbranch_scc1 {L}_r2x')
    e(f's_mov_b32 m0, {L_MEM}'); e(f's_cmp_lg_u32 {s(sW)}, 1')
    e('s_waitcnt lgkmcnt(0)'); e('s_barrier'); e(f's_cbranch_scc1 {L}_r2b')
    q.extend(ld2); q.append(f'{L}_r2b:'); e('s_nop 7'); q.extend(zero(ONES,4,'-1')); q.extend(sr); q.extend(xs); q.extend(zero(QA,8))
    e('s_waitcnt vmcnt(0) lgkmcnt(0)'); e('s_barrier')
    for c_ in range(4): e(mrd(c_))
    e(f's_branch {L}_re')
    return body, q

def window_rp(d):
    L,p,sc,mode,par,two,tr,trdump,kw,kc,sr,xs,xz,W,rstore,sp,verbose=[d[k] for k in 'L p sc mode par two tr trdump kw kc sr xs xz W rstore sp verbose'.split()]
    e=p.append
    p.extend(tr(0)+tr(1,True))
    e(f's_cbranch_scc1 {L}_w')
    head=list(p)
    p.extend(kw+kc('_ka'))
    e(f'ds_read_b128 {v(QA+4,4)}, {v(L16)} offset:{L_SEL}')
    p.extend(sr+trdump())
    for i in range(OPT['d1']-(8 if OPT['tr'] else 0)): e('s_nop 3')
    p.extend(tr(2))
    ld1=[f'buffer_load_dwordx4 {v(X+4*j,4)}, {v(L16)}, {s(WS,4)}, {s(sPin+(j>>2))} offen offset:{(j&3)*1024} sc1' for j in range(8)]
    pre=h2_addr(T0,PM)+[f's_add_u32 {s(sT+4)}, {s(sMemIn0)}, {s(sWoff)}', f's_add_u32 {s(sT+5)}, {s(sMemIn1)}, {s(sWoff)}', f's_add_u32 m0, {s(sWoff)}, {L_MEM+4096}',
         f'v_add_u32 {v(PM)}, {s(sWoff)}, {v(L16)}', f's_sub_u32 {s(sT+3)}, {s(sStep)}, 1', f'v_mov_b32 {v(FLG)}, {s(sT+3)}']
    p.extend(ld1); p.extend(pre); e(W(0))
    p.append(f'{L}_p1:')
    RM=lambda j: f'{MF32} {v(QA,4)}, {v(QA+4,4)}, {v(X+4*j,4)}, '+(v(QA,4) if j else '0')
    p.extend(['s_waitcnt vmcnt(7)',RM(0),'s_waitcnt vmcnt(6)',f'v_cmp_u_f32 vcc, {v(X)}, {v(X+4)}',RM(1),'s_waitcnt vmcnt(5)',RM(2),f's_cbranch_vccnz {L}_r0', f'{L}_r0x:']+tr(3))
    for j in range(3,8):
        e(f's_waitcnt vmcnt({7-j})'); e(RM(j))
    e(f'v_cvt_pk_bf16_f32 {v(M)}, {v(QA)}, {v(QA+1)}')
    e(f'v_cvt_pk_bf16_f32 {v(M+1)}, {v(QA+2)}, {v(QA+3)}')
    e(f'buffer_store_dwordx2 {v(M,2)}, {v(MPUB)}, {s(WS,4)}, {s(sMemPub)} offen{sc}')
    e(f'v_cmp_u_f32 vcc, {v(QA)}, {v(QA)}')
    p.extend(tr(4))
    e(f's_cbranch_vccnz {L}_r1')
    p.append(f'{L}_p1ok:')
    p.extend(xz)
    for i in range(OPT['dp']): e('s_nop 3')
    p.append(f'{L}_b1:')
    body=fix(p,f'step{mode}{par}',verbose)
    e=body.append
    e('s_barrier')
    N=OPT['np']
    pl=f'buffer_load_dwordx4 {v(STG,4)}, {v(T0)}, {s(WS,4)}, {s(sT+4)} offen sc1'
    dm=f'buffer_load_dwordx4 {v(T0)}, {s(WS,4)}, {s(sT+5)} offen sc1 lds'
    def nops(k):
        o=[]
        while k>0: o.append(f's_nop {min(k,16)-1}'); k-=16
        return o
    for i in range(N-1): e(pl); body.extend(nops(OPT['ps']))
    e(pl); e(f's_waitcnt vmcnt({N-1})'); e(f'v_cmp_u_f32 vcc, {v(STG)}, {v(STG+2)}'); e(f's_cbranch_vccnz {L}_pl')
    body.append(f'{L}_plx:')
    e(f'ds_write_b128 {v(PM)}, {v(STG,4)} offset:{L_MEM}'); e(dm); body.extend(tr(6))
    if sp==0: e(rstore(0))
    body.extend(kv_addr()); e(f's_branch L_ch_{mode}{1-par if two else 0}')
    q=[f'{L}_w:',f's_sleep {OPT["sw"]}']+kw; e=q.append
    e(f's_cmp_lg_u32 {s(sW)}, 3'); e(f's_cbranch_scc1 {L}_w3')
    e(f'buffer_store_dwordx2 {v(ONES,2)}, {v(MPUB)}, {s(WS,4)}, {s(sMemRst)} offen{sc}')
    q.extend([f'{L}_w3:']+kc('_kb')+trdump()+sr+xz+pre)
    e(f's_branch {L}_b1')
    alt=fix(head+q,f'alt{mode}{par}',False)
    q=alt[alt.index(f'{L}_w:'):]; e=q.append
    q.append(f'{L}_pl:')
    for i in range(4):
        e(pl); e(f's_waitcnt vmcnt({N-1})'); e(f'v_cmp_u_f32 vcc, {v(STG)}, {v(STG+2)}'); e(f's_cbranch_vccz {L}_plx')
    e(f's_add_u32 {s(sSpinF)}, {s(sSpinF)}, 1'); e(f's_cmp_gt_u32 {s(sSpinF)}, {LIM}'); e(f's_cbranch_scc0 {L}_pl'); e(f's_branch {L}_plx')
    if OPT['sync']: q.extend(kv_wait(L+'_ka')+kv_wait(L+'_kb'))
    q.append(f'{L}_r0:')
    e(f's_add_u32 {s(sSpin)}, {s(sSpin)}, 1'); e(f's_cmp_gt_u32 {s(sSpin)}, {LIM}'); e(f's_cbranch_scc1 {L}_r0x')
    q.extend(ld1); e(f's_branch {L}_p1')
    q.append(f'{L}_r1:')
    e(f's_add_u32 {s(sSpin)}, {s(sSpin)}, 256'); e(f's_cmp_gt_u32 {s(sSpin)}, {LIM}'); e(f's_cbranch_scc1 {L}_p1ok')
    q.extend(ld1); e(f's_branch {L}_p1')
    q.append(f'{L}_r2:')
    e(f's_add_u32 {s(sSpinU)}, {s(sSpinU)}, 1'); e(f's_cmp_gt_u32 {s(sSpinU)}, {LIM}'); e(f's_cbranch_scc1 {L}_r2x')
    e(f's_cmp_eq_u32 {s(sStep)}, 0'); e(f's_cbranch_scc1 {L}_r2x')
    e('s_waitcnt vmcnt(0) lgkmcnt(0)'); e('s_barrier')
    q.extend(pre); e(dm); e(f's_add_u32 m0, {s(sWoff)}, {L_MEM}'); e('s_nop 0'); e(dm.replace(s(sT+5),s(sT+4)))
    q.extend(kv_addr()+zero(ONES,4,'-1')); q.extend(sr); q.extend(xs); q.extend(zero(QA,8))
    e('s_waitcnt vmcnt(0) lgkmcnt(0)'); e('s_barrier')
    for c_ in range(4): e(mrd(c_))
    e(f's_branch {L}_re')
    return body, q

def chain_body(timing=False, verbose=False):
    A=Asm()
    pro=prologue(timing)
    F0,f0=step('F',0,verbose); F1,f1=step('F',1); S0,s0=step('S',0); S1,s1=step('S',1)
    if not OPT['rp']: check(pro+F0+F0,'chainF')
    for x in ((pro,F0,F1,f0,f1,S0,S1,s0,s1) if (OPT['tr'] or OPT['solo']) else (pro,F0,f0,S0,s0)): A.extend(x)
    A.label('L_ch_last')
    A(f'''buffer_store_dwordx4 {v(KVQ,4)}, {v(L16)}, {s(WS,4)}, {s(sKvm)} offen sc1
    s_waitcnt vmcnt(0)
    v_mov_b32 {v(FLG)}, 64
    s_barrier
    s_cmp_lg_u32 {s(sW)}, 1
    s_cbranch_scc1 L_ch_nf
    s_mov_b64 exec, 1
    buffer_store_dword {v(FLG)}, off, {s(WS,4)}, {s(sKvmF)} sc1
    s_mov_b64 exec, -1
    L_ch_nf:''')
    if timing:
        A(f'''s_lshl_b32 {s(sSpinU)}, {s(sSpinU)}, 16
        s_add_u32 {s(sSpin)}, {s(sSpin)}, {s(sSpinU)}
        s_memrealtime {s(sTime+4,2)}
        s_memtime {s(sTime+8,2)}
        s_waitcnt lgkmcnt(0)
        s_sub_u32 {s(sT)}, {s(sTime+2)}, {s(sTime)}
        s_sub_u32 {s(sT+1)}, {s(sTime+4)}, {s(sTime+2)}
        s_sub_u32 {s(sT+2)}, {s(sTime+8)}, {s(sTime+6)}
        v_mov_b32 v4, {s(sT)}
        v_mov_b32 v5, {s(sT+1)}
        v_mov_b32 v6, {s(sT+2)}
        v_mov_b32 v7, {s(sSpin)}
        s_lshl_b32 {s(sT)}, {s(sH)}, 2
        s_add_u32 {s(sT)}, {s(sT)}, {s(sW)}
        s_lshl_b32 {s(sT)}, {s(sT)}, 5
        s_add_u32 {s(sT)}, {s(sT)}, 16384
        v_mov_b32 v0, {s(sT)}
        s_sub_u32 s80, s80, {s(sTime)}
        s_sub_u32 s82, s82, {s(sTime)}
        s_sub_u32 s84, s84, {s(sTime)}
        s_sub_u32 s86, s86, {s(sTime)}
        v_mov_b32 v8, s80
        v_mov_b32 v9, s82
        v_mov_b32 v10, s84
        v_mov_b32 v11, s86
        s_mov_b64 exec, 1
        global_store_dwordx4 v0, v[8:11], {s(DBG,2)} offset:16
        global_store_dwordx4 v0, v[4:7], {s(DBG,2)}''')
    return A

def kernel_text(name, body):
    return f'''.globl {name}
.p2align 8
.type {name},@function
{name}:
{body.text()}    s_endpgm
'''
def kernel_desc(name, vgpr=512, accum=256, sgpr=102):
    return f'''.p2align 6
.amdhsa_kernel {name}
  .amdhsa_next_free_vgpr {vgpr}
  .amdhsa_next_free_sgpr {sgpr}
  .amdhsa_accum_offset {accum}
  .amdhsa_group_segment_fixed_size 0
  .amdhsa_kernarg_size 120
  .amdhsa_user_sgpr_count 2
  .amdhsa_user_sgpr_kernarg_segment_ptr 1
  .amdhsa_system_sgpr_workgroup_id_x 1
  .amdhsa_float_denorm_mode_32 3
.end_amdhsa_kernel
'''

if __name__=='__main__':
    import sys
    for x in sys.argv:
        if '=' in x: OPT[x.split('=')[0]]=int(x.split('=')[1])
    A=Asm()
    if 'spread' in sys.argv:
        A(f's_cmp_ge_u32 s2, 32\ns_cbranch_scc1 L_exit\ns_mov_b32 {s(sH)}, s2')
    else:
        A(f's_cmp_ge_u32 s2, 256\ns_cbranch_scc1 L_exit\ns_and_b32 s3, s2, 7\ns_cmp_lg_u32 s3, 0\ns_cbranch_scc1 L_exit\ns_lshr_b32 {s(sH)}, s2, 3')
    A.extend(chain_body(timing=True, verbose=True))
    A.label('L_exit')
    txt='; @launch kernel=chain_kernel grid=(256,1,1) block=(256,1,1) lds=163840\n.amdgcn_target "amdgcn-amd-amdhsa--gfx950"\n.text\n'
    txt+=kernel_text('chain_kernel',A)+'.section .rodata,"a"\n'+kernel_desc('chain_kernel')
    open(sys.argv[1],'w').write(txt)
```

```python
import sys
from asmlib import *
from layout import *
import bulk as B, chain as C
prof='prof' in sys.argv
C.OPT['sync']=1
for x in sys.argv:
    if '=' in x:
        k,val=x.split('='); (C.OPT if k in C.OPT else B.OPT)[k]=int(val)
sB=B.sB
_n=[0]
def stamp(slot,who,reg,sw,dbg):
    if not prof: return []
    _n[0]+=1; L=f'L_st{_n[0]}'
    return [f's_cmp_lg_u32 {s(reg)}, {who}',f's_cbranch_scc1 {L}',f's_cmp_lg_u32 {s(sw)}, 0',f's_cbranch_scc1 {L}','s_memrealtime s[90:91]','s_waitcnt lgkmcnt(0)',
            'v_mov_b32 v11, s90',f'v_mov_b32 v15, {160+4*slot}','s_mov_b64 exec, 1',f'global_store_dword v15, v11, {s(dbg,2)}','s_mov_b64 exec, -1',L+':']
bs=lambda slot,who: stamp(slot,who,sB,B.sW,B.DBG)
B.STAMP=bs
A=Asm()
A(f'''s_cmp_ge_u32 s2, 256
s_cbranch_scc1 L_exit
s_and_b32 s3, s2, 7
s_cmp_lg_u32 s3, 0
s_cbranch_scc1 L_bulk
s_lshr_b32 {s(C.sH)}, s2, 3''')
A.extend(C.chain_body(timing=prof))
A.label('L_exit'); A('s_endpgm'); A.label('L_bulk')
A(f's_sub_u32 s3, s3, 1\ns_lshl_b32 s3, s3, 5\ns_lshr_b32 {s(sB)}, s2, 3\ns_add_u32 {s(sB)}, {s(sB)}, s3')
A.extend(B.roles()); A.extend(fix(B.common())); A.extend(bs(0,0))
A(f's_cmp_ge_u32 {s(sB)}, 64\ns_cbranch_scc1 L_grp')
a_,b_=B.p1_setup(); A.extend(a_); A.extend(b_); A.extend(bs(3,0)); A.extend(bs(4,2))
A.extend(B.p1_main(True)); A.extend(bs(5,0)); A.extend(bs(6,2)); A('s_branch L_p2')
A.label('L_grp')
A(f's_cmp_ge_u32 {s(sB)}, 96\ns_cbranch_scc1 L_ln')
A.extend(B.mod_phase(True)); A('s_branch L_p2')
A.label('L_ln'); A(f's_cmp_lg_u32 {s(sB)}, 223\ns_cbranch_scc1 L_ln2')
A.extend(B.flag_init()); A.label('L_ln2'); A.extend(B.ln_phase(True)); A.extend(bs(2,96)); A.label('L_p2')
A.extend(B.p2_setup(True)); A.extend(B.p2_loop('F',True)); A.extend(B.p2_loop('S',True))
kn=NAME+'_kernel'
txt='; @launch grid=(256,1,1) block=(256,1,1) lds=163840\n.amdgcn_target "amdgcn-amd-amdhsa--gfx950"\n.text\n'
txt+=C.kernel_text(kn,A)+'.section .rodata,"a"\n'+C.kernel_desc(kn)
open(sys.argv[1],'w').write(txt)
```

```python
from asmlib import *
from layout import *
import math, struct
MF32='v_mfma_f32_16x16x32_bf16'; MF16='v_mfma_f32_16x16x16_bf16'; SMF='v_smfmac_f32_16x16x64_bf16'
f2u=lambda x: struct.unpack('<I',struct.pack('<f',x))[0]
WS=4; SRD=8; DBG=12; sB=14; sW=15; sMask=16; sSpin=17
sP=52
PX,PWQ,PWK,PWV,PWO,PW1,PW2,PC,PWM,POUT=[sP+2*i for i in (0,2,3,4,5,8,9,10,11,12)]
sT=40
sHd=21; sR=22; sZ=39
LN=0; N=1; Gv=2; L16=3
LIM='0x400000'
OPT=dict(d2=2, pf2=0, pf1=0, d1p=7, alt=0, hb=20, nl=4, dl=0, lp=8, pn=2)
STAMP=lambda slot,who: []
def common():
    return [f's_load_dwordx16 {s(sP,16)}, s[0:1], 0', f's_load_dwordx8 {s(sP+16,8)}, s[0:1], 64', f's_load_dwordx2 {s(sP+24,2)}, s[0:1], 96',
        f's_load_dwordx2 {s(DBG,2)}, s[0:1], 104', f's_load_dwordx2 {s(WS,2)}, s[0:1], 112',
        'v_lshrrev_b32 v1, 6, v0', f'v_and_b32 {v(LN)}, 63, v0', f'v_readfirstlane_b32 {s(sW)}, v1',
        f's_mov_b32 {s(WS+2)}, {WS_BYTES}', f's_mov_b32 {s(WS+3)}, 0x20000', f's_mov_b32 {s(SRD+3)}, 0x20000',
        f's_mov_b32 {s(sMask)}, 0xffff0000', f's_mov_b32 {s(sSpin)}, 0',
        f'v_and_b32 {v(N)}, 15, {v(LN)}', f'v_lshrrev_b32 {v(Gv)}, 4, {v(LN)}', f'v_lshlrev_b32 {v(L16)}, 4, {v(LN)}', 's_waitcnt lgkmcnt(0)']
NR=2; NG=5
def roles():
    return [f's_lshr_b32 {s(sHd)}, {s(sB)}, 1', f's_and_b32 {s(sR)}, {s(sB)}, 1', f's_sub_u32 {s(sZ)}, {s(sB)}, 64']
def srd(p,size): return [f's_mov_b32 {s(SRD)}, {s(p)}', f's_mov_b32 {s(SRD+1)}, {s(p+1)}', f's_mov_b32 {s(SRD+2)}, {size}']
def rnd(a,b,t): return [f'v_cvt_pk_bf16_f32 {v(t)}, {v(a)}, {v(b)}', f'v_lshlrev_b32 {v(a)}, 16, {v(t)}', f'v_and_b32 {v(b)}, {s(sMask)}, {v(t)}']
def unp(d,src): return [f'v_and_b32 {v(d+1)}, {s(sMask)}, {v(src)}', f'v_lshlrev_b32 {v(d)}, 16, {v(src)}']
def xg(op,a,t):
    return [f'v_mov_b32 {v(t)}, {v(a)}', f'v_permlane32_swap_b32 {v(a)}, {v(t)}', f'{op} {v(a)}, {v(a)}, {v(t)}',
            f'v_mov_b32 {v(t)}, {v(a)}', f'v_permlane16_swap_b32 {v(a)}, {v(t)}', f'{op} {v(a)}, {v(a)}, {v(t)}']
def xrow(a):
    return [f'v_add_f32_dpp {v(a)}, {v(a)}, {v(a)} row_ror:{k} row_mask:0xf bank_mask:0xf' for k in (1,2,4,8)]
_u=[0]
def poll(addr_v, soff, cmp_s, r, off=0, sleep=0):
    _u[0]+=1; k=_u[0]
    return [f'L_po{k}:', f'buffer_load_dword {v(r)}, {v(addr_v)}, {s(WS,4)}, {soff} offen offset:{off} sc1', f's_add_u32 {s(sSpin)}, {s(sSpin)}, 1',
            f's_cmp_gt_u32 {s(sSpin)}, {LIM}', f's_cbranch_scc1 L_pe{k}', 's_waitcnt vmcnt(0)', f'v_cmp_gt_u32 vcc, {cmp_s}, {v(r)}']+(
            [f's_cbranch_vccz L_pe{k}', f's_sleep {sleep}', f's_branch L_po{k}'] if sleep else [f's_cbranch_vccnz L_po{k}'])+[f'L_pe{k}:', 's_waitcnt vmcnt(0)']

def pollp(addr_v, soff, cmp_s, r, N=4):
    _u[0]+=1; k=_u[0]
    ld=f'buffer_load_dword {v(r)}, {v(addr_v)}, {s(WS,4)}, {soff} offen sc1 ;stamp'
    o=[]
    for i in range(N-1): o+=[ld,'s_nop 11']
    o+=[f'L_po{k}:', ld, f's_add_u32 {s(sSpin)}, {s(sSpin)}, 1', f's_cmp_gt_u32 {s(sSpin)}, {LIM}', f's_cbranch_scc1 L_pe{k}', f's_waitcnt vmcnt({N-1}) ;stamp',
        f'v_cmp_gt_u32 vcc, {cmp_s}, {v(r)}', f's_cbranch_vccnz L_po{k}', f'L_pe{k}:']
    return o

def mod_phase(sync):
    p=[]; e=p.append
    W_=16; C_=48; AC=56; A0=4; A1=5; T=6
    p.append('L_mod_top:')
    e(f'v_lshrrev_b32 {v(A0)}, 2, {v(LN)}'); e(f's_lshl_b32 {s(sT)}, {s(sW)}, 4'); e(f'v_add_u32 {v(A0)}, {s(sT)}, {v(A0)}')
    e(f'v_lshlrev_b32 {v(A1)}, 1, {v(A0)}')
    e(f'v_mul_u32_u24 {v(A0)}, 6144, {v(A0)}'); e(f'v_and_b32 {v(T)}, 3, {v(LN)}'); e(f'v_lshl_add_u32 {v(A0)}, {v(T)}, 4, {v(A0)}')
    p+=srd(PWM,512*6144)
    for i in range(8): e(f'global_load_ushort {v(C_+i)}, {v(A1)}, {s(PC,2)} offset:{128*i}')
    e(f's_lshl_b32 {s(sT)}, {s(sZ)}, 6')
    for i in range(8):
        e(f'buffer_load_dwordx4 {v(W_+4*i,4)}, {v(A0)}, {s(SRD,4)}, {s(sT)} offen'); e(f's_add_u32 {s(sT)}, {s(sT)}, {64*6144}')
    for i in range(8): e(f'v_lshlrev_b32 {v(C_+i)}, 16, {v(C_+i)}')
    for i in range(8): e(f'v_mul_f32 {v(AC+i)}, {hex(f2u(-math.log2(math.e)))}, {v(C_+i)}')
    for i in range(8): e(f'v_exp_f32 {v(AC+i)}, {v(AC+i)}')
    for i in range(8): e(f'v_add_f32 {v(AC+i)}, 1.0, {v(AC+i)}')
    for i in range(8): e(f'v_rcp_f32 {v(AC+i)}, {v(AC+i)}')
    for i in range(8): e(f'v_mul_f32 {v(C_+i)}, {v(C_+i)}, {v(AC+i)}')
    for i in range(0,8,2): p+=rnd(C_+i,C_+i+1,T)
    for i in range(8):
        for d in range(4):
            p+=unp(8,W_+4*i+d)
            for k in range(2):
                e(f'v_mul_f32 {v(AC+2*d+k)}, {v(C_+i)}, {v(8+k)}' if i==0 else f'v_fmac_f32 {v(AC+2*d+k)}, {v(C_+i)}, {v(8+k)}')
    for k in (4,8):
        for i in range(8): e(f'v_add_f32_dpp {v(AC+i)}, {v(AC+i)}, {v(AC+i)} row_ror:{k} row_mask:0xf bank_mask:0xf')
    e(f's_lshl_b32 {s(sT)}, {s(sW)}, 9'); e(f'v_and_b32 {v(T)}, 3, {v(LN)}'); e(f'v_lshlrev_b32 {v(T)}, 5, {v(T)}')
    e(f'v_lshl_add_u32 {v(T)}, {v(Gv)}, 7, {v(T)}'); e(f'v_add_u32 {v(T)}, {s(sT)}, {v(T)}')
    e(f'ds_write_b128 {v(T)}, {v(AC,4)}'); e(f'ds_write_b128 {v(T)}, {v(AC+4,4)} offset:16')
    e('s_waitcnt lgkmcnt(0)'); e('s_barrier')
    e(f's_cmp_lg_u32 {s(sW)}, 0'); e('s_cbranch_scc1 L_mod_end')
    e(f'v_and_b32 {v(A0)}, 31, {v(LN)}'); e(f'v_lshrrev_b32 {v(A1)}, 5, {v(LN)}'); e(f'v_lshlrev_b32 {v(T)}, 2, {v(A0)}'); e(f'v_lshl_add_u32 {v(T)}, {v(A1)}, 10, {v(T)}')
    for i in range(8): e(f'ds_read_b32 {v(AC+i)}, {v(T)} offset:{128*i}')
    for i in range(1,8): e(f'v_add_f32 {v(AC)}, {v(AC)}, {v(AC+i)}')
    e(f'v_mov_b32 {v(T)}, {v(AC)}'); e(f'v_permlane32_swap_b32 {v(AC)}, {v(T)}'); e(f'v_add_f32 {v(AC)}, {v(AC)}, {v(T)}')
    e(f'v_cvt_pk_bf16_f32 {v(AC)}, {v(AC)}, {v(AC)}')
    e(f'v_lshlrev_b32 {v(A0)}, 1, {v(A0)}'); e(f's_lshl_b32 {s(sT)}, {s(sZ)}, 6'); e(f's_add_u32 {s(sT)}, {s(sT)}, {MOD_OFF}')
    e(f'buffer_store_short {v(AC)}, {v(A0)}, {s(WS,4)}, {s(sT)} offen sc1')
    if sync:
        e('s_waitcnt vmcnt(0)')
        e(f's_cmp_lt_u32 {s(sZ)}, 32'); e(f's_cselect_b32 {s(sT)}, 0, 4')
        e(f'v_mov_b32 {v(A0)}, {s(sT)}'); e(f'v_mov_b32 {v(A1)}, 1'); e('s_mov_b64 exec, 1')
        e(f'global_atomic_add {v(A0)}, {v(A1)}, {s(DBG,2)} offset:128'); e('s_mov_b64 exec, -1')
    p.append('L_mod_end:')
    e('s_barrier')
    if STAMP(0,0):
        e(f's_cmp_ge_u32 {s(sZ)}, 32'); e('s_cbranch_scc1 L_mod_ns'); p+=STAMP(1,64); p.append('L_mod_ns:')
    e(f's_add_u32 {s(sZ)}, {s(sZ)}, 32'); e(f's_cmp_lt_u32 {s(sZ)}, 96'); e('s_cbranch_scc1 L_mod_top')
    return fix(p,'mod')

def dbg_wait(off,val,r):
    _u[0]+=1; k=_u[0]
    return [f'v_mov_b32 {v(r+1)}, {off}', f'L_po{k}:', f'global_load_dword {v(r)}, {v(r+1)}, {s(DBG,2)} sc1', f's_add_u32 {s(sSpin)}, {s(sSpin)}, 1',
            f's_cmp_gt_u32 {s(sSpin)}, {LIM}', f's_cbranch_scc1 L_pe{k}', 's_waitcnt vmcnt(0)', f'v_cmp_gt_u32 vcc, {val}, {v(r)}', f's_cbranch_vccnz L_po{k}', f'L_pe{k}:', 's_waitcnt vmcnt(0)']

def ln_phase(sync):
    p=[]; e=p.append
    XR=16; XF=32; MD=64; A0=4; A1=5; T=6; S=7; Q=8; R_=10; MU=14; sTile=20
    e(f's_sub_u32 {s(sTile)}, {s(sB)}, 96')
    p+=srd(PX,2048*1024)
    e(f'v_lshlrev_b32 {v(A0)}, 10, {v(N)}'); e(f'v_lshl_add_u32 {v(A0)}, {v(Gv)}, 4, {v(A0)}')
    e(f's_lshl_b32 {s(sT)}, {s(sTile)}, 14'); e(f's_lshl_b32 {s(sT+1)}, {s(sW)}, 8'); e(f's_add_u32 {s(sT)}, {s(sT)}, {s(sT+1)}')
    for i in range(4): e(f'buffer_load_dwordx4 {v(XR+4*i,4)}, {v(A0)}, {s(SRD,4)}, {s(sT)} offen offset:{64*i}')
    if OPT['pf1']:
        e(f's_lshl_b32 {s(sT+3)}, {s(sTile)}, 2'); e(f's_add_u32 {s(sT+3)}, {s(sT+3)}, {s(sW)}'); e(f's_lshl_b32 {s(sT+3)}, {s(sT+3)}, 13'); e(f's_add_u32 {s(sT+4)}, {s(sT+3)}, 4096')
        for ptr in (PWK,PWV,PWQ):
            p+=srd(ptr,4<<20)
            for i in range(8): e(f'buffer_load_dwordx4 {v(100,4)}, {v(L16)}, {s(SRD,4)}, {s(sT+3+(i>>2))} offen offset:{1024*(i&3)}')
    e(f'v_lshlrev_b32 {v(A1)}, 4, {v(N)}'); e(f's_lshl_b32 {s(sT+2)}, {s(sW)}, 2'); e(f'v_add_u32 {v(A0)}, {s(sT+2)}, {v(A1)}')
    for i in range(16): p+=unp(XF+2*i,XR+i)
    e(f'v_add_f32 {v(S)}, {v(XF)}, {v(XF+1)}')
    for i in range(2,32): e(f'v_add_f32 {v(S)}, {v(S)}, {v(XF+i)}')
    def cross(off):
        o=xg('v_add_f32',S,T)+[f'ds_write_b32 {v(A0)}, {v(S)} offset:{off}','s_waitcnt lgkmcnt(0)','s_barrier',f'ds_read_b128 {v(R_,4)}, {v(A1)} offset:{off}',
           f'v_add_f32 {v(S)}, {v(R_)}, {v(R_+1)}', f'v_add_f32 {v(T)}, {v(R_+2)}, {v(R_+3)}', f'v_add_f32 {v(S)}, {v(S)}, {v(T)}', f'v_mul_f32 {v(S)}, {hex(f2u(1/512))}, {v(S)}']
        return o
    p+=cross(0)
    e(f'v_mov_b32 {v(MU)}, {v(S)}')
    for i in range(32):
        e(f'v_sub_f32 {v(T)}, {v(XF+i)}, {v(MU)}'); e(f'v_mul_f32 {v(S)}, {v(T)}, {v(T)}' if i==0 else f'v_fmac_f32 {v(S)}, {v(T)}, {v(T)}')
    p+=cross(256)
    p+=rnd(MU,S,T)
    e(f'v_add_f32 {v(S)}, {hex(f2u(1e-5))}, {v(S)}'); p+=rnd(S,Q,T)[:2]
    e(f'v_sqrt_f32 {v(S)}, {v(S)}'); p+=rnd(S,Q,T)[:2]
    e(f'v_rcp_f32 {v(S)}, {v(S)}')
    for i in range(0,32,2):
        e(f'v_sub_f32 {v(XF+i)}, {v(XF+i)}, {v(MU)}'); e(f'v_sub_f32 {v(XF+i+1)}, {v(XF+i+1)}, {v(MU)}'); p+=rnd(XF+i,XF+i+1,T)
        e(f'v_mul_f32 {v(XF+i)}, {v(XF+i)}, {v(S)}'); e(f'v_mul_f32 {v(XF+i+1)}, {v(XF+i+1)}, {v(S)}'); p+=rnd(XF+i,XF+i+1,T)
    p+=[]
    if sync: p+=dbg_wait(128,32,R_)
    p+=[]
    e(f'v_lshlrev_b32 {v(A0)}, 4, {v(Gv)}'); e(f's_add_u32 {s(sT+1)}, {s(sT+1)}, {MOD_OFF}')
    for i in range(4): e(f'buffer_load_dwordx4 {v(MD+4*i,4)}, {v(A0)}, {s(WS,4)}, {s(sT+1)} offen offset:{1024+64*i} sc1')
    for i in range(4): e(f'buffer_load_dwordx4 {v(MD+16+4*i,4)}, {v(A0)}, {s(WS,4)}, {s(sT+1)} offen offset:{64*i} sc1')
    e(f's_lshl_b32 {s(sT)}, {s(sTile)}, 14'); e(f's_lshl_b32 {s(sT+2)}, {s(sW)}, 12'); e(f's_add_u32 {s(sT)}, {s(sT)}, {s(sT+2)}'); e(f's_add_u32 {s(sT)}, {s(sT)}, {H_OFF}')
    for i in range(16):
        a_=XF+2*i
        p+=unp(Q,MD+i); e(f'v_add_f32 {v(Q)}, 1.0, {v(Q)}'); e(f'v_add_f32 {v(Q+1)}, 1.0, {v(Q+1)}'); p+=rnd(Q,Q+1,T)
        e(f'v_mul_f32 {v(a_)}, {v(a_)}, {v(Q)}'); e(f'v_mul_f32 {v(a_+1)}, {v(a_+1)}, {v(Q+1)}'); p+=rnd(a_,a_+1,T)
        p+=unp(Q,MD+16+i); e(f'v_add_f32 {v(a_)}, {v(a_)}, {v(Q)}'); e(f'v_add_f32 {v(a_+1)}, {v(a_+1)}, {v(Q+1)}')
        e(f'v_cvt_pk_bf16_f32 {v(XR+i)}, {v(a_)}, {v(a_+1)}')
        if i%4==3: e(f'buffer_store_dwordx4 {v(XR+i-3,4)}, {v(L16)}, {s(WS,4)}, {s(sT)} offen offset:{1024*(i//4)} sc1')
    p+=[]
    if sync:
        p+=dbg_wait(136,1,R_)
        e('s_barrier')
        e(f's_lshl_b32 {s(sT)}, {s(sTile)}, 2'); e(f's_add_u32 {s(sT)}, {s(sT)}, {BF_OFF+BF_H}'); e(f'v_mov_b32 {v(T)}, 1')
        e(f's_cmp_lg_u32 {s(sW)}, 0'); e('s_cbranch_scc1 L_ln_end'); e('s_mov_b64 exec, 1')
        e(f'buffer_store_dword {v(T)}, off, {s(WS,4)}, {s(sT)} sc1'); e('s_mov_b64 exec, -1')
        p.append('L_ln_end:')
    return fix(p,'ln')

def flag_init():
    p=[]; e=p.append
    for i in range(4): e(f'v_mov_b32 {v(8+i)}, 0')
    e(f's_lshl_b32 {s(sT)}, {s(sW)}, 12'); e(f's_add_u32 {s(sT)}, {s(sT)}, {BF_OFF}')
    for i in range(4): e(f'buffer_store_dwordx4 {v(8,4)}, {v(L16)}, {s(WS,4)}, {s(sT)} offen offset:{1024*i} sc1')
    e('s_waitcnt vmcnt(0)'); e('s_barrier')
    e(f'v_mov_b32 v8, 136'); e('v_mov_b32 v9, 1'); e('s_mov_b64 exec, 1'); e(f'global_store_dword v8, v9, {s(DBG,2)} sc1'); e('s_mov_b64 exec, -1')
    return fix(p,'fi')

def wstream(blocks, sRing, D=8, pf=None, lead=0):
    p=[]; e=p.append; ng=len(blocks)//4; assert len(blocks)%4==0
    VQ=[]
    def pre(gi):
        if pf and gi<ng:
            for l in pf(gi):
                e(l)
                if l.startswith('buffer'): VQ.append('p')
    def issue(gi):
        pre(gi+lead)
        for b in range(4):
            su,vo,so,_=blocks[4*gi+b]
            if su: p.extend(su)
            e(f's_add_u32 m0, {s(sRing)}, {((4*gi+b)%32)*1024}'); p.extend(so(sT+7))
            e(f'buffer_load_dwordx4 {v(vo)}, {s(SRD,4)}, {s(sT+7)} offen lds'); VQ.append(gi)
    for gi in range(lead): pre(gi)
    for gi in range(min(D,ng)): issue(gi)
    head=list(p); p.clear()
    for gi in range(ng):
        e(f's_waitcnt vmcnt({len(VQ)-1-max(k for k,t in enumerate(VQ) if t==gi)})')
        for b in range(4):
            for dst,tra,off in blocks[4*gi+b][3]: e(f'ds_read_b64_tr_b16 {dst}, {v(tra)} offset:{((4*gi+b)%32)*1024+off}')
        e('s_waitcnt lgkmcnt(0)')
        if gi+D<ng: issue(gi+D)
    return head,p

sSeg=23; sRing=24; sCnt=25
VO=4; TRA=5; TRB=6; FA=7
def wreg(m,t,ks):
    i=(m*2+t)*64+4*ks
    return ('a',i) if i<256 else ('v',128+i-256)
sHsrc=26; sBuf=27; sNext=32; sGot=33
def hdma():
    o=[f's_lshl_b32 {s(sHsrc)}, {s(sNext)}, 15', f's_lshl_b32 {s(sT)}, {s(sW)}, 13', f's_add_u32 {s(sHsrc)}, {s(sHsrc)}, {s(sT)}', f's_add_u32 {s(sHsrc)}, {s(sHsrc)}, {H_OFF}',
        f's_add_u32 m0, {s(sBuf)}, {s(sT)}', f's_add_u32 {s(sT+1)}, {s(sHsrc)}, 4096']
    o+=[f'buffer_load_dwordx4 {v(L16)}, {s(WS,4)}, {s(sHsrc)} offen offset:{1024*i} sc1 lds' for i in range(4)]
    o+=['s_add_u32 m0, m0, 4096','s_nop 0']+[f'buffer_load_dwordx4 {v(L16)}, {s(WS,4)}, {s(sT+1)} offen offset:{1024*i} sc1 lds' for i in range(4)]
    return o
def p1_setup():
    p=[]; e=p.append
    A0,A1,T0_,T1_,U0,U1,r,c_,t=[112+i for i in range(9)]
    e(f'v_lshlrev_b32 {v(t)}, 1, {v(Gv)}'); e(f'v_xor_b32 {v(t)}, {v(t)}, {v(N)}'); e(f'v_lshlrev_b32 {v(t)}, 4, {v(t)}'); e(f'v_lshl_add_u32 {v(A0)}, {v(Gv)}, 13, {v(t)}')
    e(f's_lshr_b32 {s(sT)}, {s(sW)}, 1'); e(f's_lshl_b32 {s(sT)}, {s(sT)}, 18'); e(f's_and_b32 {s(sT+1)}, {s(sW)}, 1'); e(f's_lshl_b32 {s(sT+1)}, {s(sT+1)}, 15'); e(f's_add_u32 {s(sT)}, {s(sT)}, {s(sT+1)}')
    e(f's_lshl_b32 {s(sT+1)}, {s(sHd)}, 8'); e(f's_add_u32 {s(sT)}, {s(sT)}, {s(sT+1)}'); e(f'v_add_u32 {v(A0)}, {s(sT)}, {v(A0)}'); e(f'v_xor_b32 {v(A1)}, 128, {v(A0)}')
    e(f's_lshl_b32 {s(sRing)}, {s(sW)}, 12'); e(f's_add_u32 {s(sRing)}, {s(sRing)}, 32768')
    e(f'v_lshrrev_b32 {v(r)}, 2, {v(N)}'); e(f'v_and_b32 {v(c_)}, 3, {v(N)}'); e(f'v_and_b32 {v(t)}, 1, {v(Gv)}'); e(f'v_lshl_add_u32 {v(t)}, {v(t)}, 2, {v(r)}')
    e(f's_lshl_b32 {s(sT)}, {s(sW)}, 1'); e(f'v_xor_b32 {v(t)}, {s(sT)}, {v(t)}')
    e(f'v_lshlrev_b32 {v(T0_)}, 10, {v(Gv)}'); e(f'v_lshl_add_u32 {v(T0_)}, {v(r)}, 8, {v(T0_)}'); e(f'v_lshl_add_u32 {v(T0_)}, {v(t)}, 5, {v(T0_)}'); e(f'v_lshl_add_u32 {v(T0_)}, {v(c_)}, 3, {v(T0_)}')
    e(f'v_add_u32 {v(T0_)}, 32768, {v(T0_)}'); e(f'v_xor_b32 {v(T1_)}, 32, {v(T0_)}'); e(f'v_add_u32 {v(U0)}, 65536, {v(T0_)}'); e(f'v_add_u32 {v(U1)}, 65536, {v(T1_)}')
    e(f's_mov_b32 {s(sNext)}, {s(sR)}'); e(f's_mov_b32 {s(sBuf)}, 0'); e(f's_mov_b32 {s(sGot)}, 0'); e(f'v_lshlrev_b32 {v(FA)}, 3, {v(LN)}'); e('v_mov_b32 v9, 136')
    def stream(order,tag):
        q=[]; e=q.append; VQ=[]; D=OPT['d1p']
        bt=[(m,c) for m in order for c in range(8)]
        def issue(bi):
            m,c=bt[bi]; q.extend(srd((PWK,PWV,PWQ)[m],4<<20))
            for i in range(4):
                e(f's_add_u32 m0, {s(sRing)}, {(bi%8)*16384+1024*i}'); e(f's_mov_b32 {s(sT+7)}, {(64*c+8*i)*8192}')
                e(f'buffer_load_dwordx4 {v(A1 if i&1 else A0)}, {s(SRD,4)}, {s(sT+7)} offen lds'); VQ.append(bi)
        wt=lambda x: f's_waitcnt vmcnt({len(VQ)-1-max(k for k,t_ in enumerate(VQ) if t_==x)})'
        for bi in range(D): issue(bi)
        for bi in range(24):
            m,c=bt[bi]
            e(wt(bi)); e('s_barrier')
            if bi>=1 and bi-1+8<24 and D==8: issue(bi-1+8)
            elif D<8 and bi+D<24: issue(bi+D)
            for b_ in range(4):
                for t_ in range(2):
                    pf,b0=wreg(m,t_,2*c+(b_>>1)); tra=[[T0_,T1_],[U0,U1]][(bi%8)>>2][t_]
                    e(f'ds_read_b64_tr_b16 {R(pf,b0+2*(b_&1),2)}, {v(tra)} offset:{(bi%4)*16384+b_*4096}')
            if bi==4: e(f'global_load_dword v8, v9, {s(DBG,2)} sc1 ;stamp'); VQ.append('i')
            if bi==OPT['hb']:
                e(wt('i')); e('v_cmp_eq_u32 vcc, 0, v8'); e(f's_cbranch_vccz L_p1_in{tag}'); q.extend(dbg_wait(136,1,8)); q.append(f'L_p1_in{tag}:')
                e(f's_mov_b32 {s(sT)}, {BF_OFF+BF_H}'); e(f'buffer_load_dwordx2 v[8:9], {v(FA)}, {s(WS,4)}, {s(sT)} offen sc1 ;stamp'); VQ.append('h')
            e('s_waitcnt lgkmcnt(0)')
        e('s_waitcnt vmcnt(0)')
        return q
    if OPT['alt']:
        e(f's_cmp_lg_u32 {s(sR)}, 0'); e('s_cbranch_scc1 L_p1_alt')
        p+=stream((0,1,2),'a')+['s_branch L_p1_ld','L_p1_alt:']+stream((1,0,2) if OPT['alt']==1 else (2,1,0),'b')+['L_p1_ld:']
    else: p+=stream((0,1,2),'a')
    return fix(p,'p1a')

def p1_main(sync):
    p=[]; e=p.append
    AC=16; HF=64; OUT=96; sKo=28; sVo=29; sQo=30; sFl=31
    acc=lambda m,t,mt: AC+((m*2+t)*2+mt)*4
    e('s_barrier')
    if sync:
        e('v_min_u32 v8, v8, v9'); e('v_cmp_gt_u32 vcc, 1, v8'); e('s_cbranch_vccz L_p1_hok')
        e(f's_mov_b32 {s(sT)}, {BF_OFF+BF_H}')
        pl=poll(FA,s(sT),'1',8); pl[1]=pl[1].replace('dword v8','dwordx2 v[8:9]'); pl[6:6]=['v_min_u32 v8, v8, v9']
        p+=pl+['L_p1_hok:']
    e(f's_mov_b32 {s(sSeg)}, {s(sR)}'); e(f's_mov_b32 {s(sNext)}, {s(sR)}'); e(f's_mov_b32 {s(sBuf)}, 0'); e(f's_mov_b32 {s(sCnt)}, 0')
    e(f's_lshl_b32 {s(sFl)}, {s(sHd)}, 7'); e(f's_lshl_b32 {s(sT)}, {s(sR)}, 2'); e(f's_add_u32 {s(sFl)}, {s(sFl)}, {s(sT)}'); e(f's_add_u32 {s(sFl)}, {s(sFl)}, {BF_OFF+BF_KV}')
    p+=hdma()
    e(f's_mov_b32 {s(sT+5)}, 0')
    p.append('L_p1_loop:')
    e(f's_cmp_ge_u32 {s(sSeg)}, 64'); e(f's_cselect_b32 {s(sT+4)}, 0, {s(sCnt)}'); e(f's_cmp_lt_u32 {s(sT+4)}, {OPT["nl"]}'); e('s_cbranch_scc0 L_p1_lag')
    e('s_waitcnt vmcnt(0)'); e(f's_mov_b32 {s(sT+5)}, {s(sCnt)}')
    p.append('L_p1_lag:')
    e('s_waitcnt vmcnt(6)'); e('s_barrier')
    if sync:
        e(f's_cmp_lg_u32 {s(sW)}, 0'); e('s_cbranch_scc1 L_p1_nf'); e(f'v_mov_b32 {v(FA)}, {s(sT+5)}'); e('s_mov_b64 exec, 1')
        e(f'buffer_store_dword {v(FA)}, off, {s(WS,4)}, {s(sFl)} sc1'); e('s_mov_b64 exec, -1'); p.append('L_p1_nf:')
    e(f's_mov_b32 {s(sT+5)}, {s(sCnt)}')
    if STAMP(0,0):
        e(f's_cmp_lg_u32 {s(sCnt)}, 0'); e('s_cbranch_scc1 L_p1_s0'); p+=[]; p.append('L_p1_s0:')
        e(f's_cmp_lg_u32 {s(sCnt)}, 1'); e('s_cbranch_scc1 L_p1_s1'); p+=[]; p.append('L_p1_s1:')
    e(f's_cmp_ge_u32 {s(sSeg)}, 64'); e('s_cbranch_scc1 L_p1_end')
    e(f'v_add_u32 {v(VO)}, {s(sBuf)}, {v(L16)}')
    e(f's_xor_b32 {s(sBuf)}, {s(sBuf)}, 32768'); e(f's_add_u32 {s(sNext)}, {s(sSeg)}, {NR}')
    if OPT['pf2']:
        e(f's_mul_i32 {s(sT)}, {s(sCnt)}, 896'); e(f's_lshl_b32 {s(sT+1)}, {s(sB)}, 2'); e(f's_add_u32 {s(sT)}, {s(sT)}, {s(sT+1)}'); e(f's_add_u32 {s(sT)}, {s(sT)}, {s(sW)}')
        e(f's_cmp_lt_u32 {s(sT)}, 5888'); e(f's_cselect_b64 {s(SRD,2)}, {s(PW1,2)}, {s(PW2,2)}'); e(f's_cselect_b32 {s(sT+1)}, 0, 1792')
        e(f's_add_u32 {s(sT+1)}, {s(sT+1)}, 4096'); e(f's_mov_b32 {s(SRD+2)}, {1792*1024}')
        e(f's_cmp_lt_u32 {s(sT)}, 4096'); e(f's_cselect_b64 {s(SRD,2)}, {s(PWO,2)}, {s(SRD,2)}'); e(f's_cselect_b32 {s(sT+1)}, 0, {s(sT+1)}'); e(f's_cselect_b32 {s(SRD+2)}, {4<<20}, {s(SRD+2)}')
        e(f's_sub_u32 {s(sT)}, {s(sT)}, {s(sT+1)}'); e(f's_lshl_b32 {s(sT)}, {s(sT)}, 10')
        e(f'buffer_load_dwordx4 {v(8,4)}, {v(L16)}, {s(SRD,4)}, {s(sT)} offen')
    e(f's_cmp_ge_u32 {s(sNext)}, 64'); e('s_cbranch_scc1 L_p1_nd')
    p+=hdma()
    p.append('L_p1_nd:')
    hr=lambda ks,mt: f'ds_read_b128 {v(HF+(ks%4)*8+4*mt,4)}, {v(VO)} offset:{(mt*16+ks)*1024}'
    for ks in range(2):
        for mt in range(2): e(hr(ks,mt))
    for ks in range(16):
        mm=[]
        for mt in range(2):
            hf=v(HF+(ks%4)*8+4*mt,4)
            for m in range(3):
                for t in range(2):
                    pf,b=wreg(m,t,ks); w_=R(pf,b,4); c_=v(acc(m,t,mt),4)
                    a_,b_=(hf,w_) if m==1 else (w_,hf)
                    mm.append(f'{MF32} {c_}, {a_}, {b_}, '+(c_ if ks else '0'))
        if ks+2<16:
            mm[1:1]=[hr(ks+2,0)]; mm[4:4]=[hr(ks+2,1)]
        p+=mm
    e(f's_lshl_b32 {s(sT)}, {s(sHd)}, 6'); e(f's_add_u32 {s(sT)}, {s(sT)}, {s(sSeg)}')
    e(f's_lshl_b32 {s(sT+1)}, {s(sW)}, 10'); e(f's_lshl_b32 {s(sKo)}, {s(sT)}, 14'); e(f's_add_u32 {s(sVo)}, {s(sKo)}, {KV_OFF+8192}')
    e(f's_add_u32 {s(sKo)}, {s(sKo)}, {s(sT+1)}'); e(f's_add_u32 {s(sKo)}, {s(sKo)}, {KV_OFF}')
    e(f's_lshl_b32 {s(sQo)}, {s(sT)}, 13'); e(f's_add_u32 {s(sQo)}, {s(sQo)}, {s(sT+1)}'); e(f's_add_u32 {s(sQo)}, {s(sQo)}, {Q_OFF}')
    e(f's_lshl_b32 {s(sT+1)}, {s(sW)}, 11'); e(f's_add_u32 {s(sVo)}, {s(sVo)}, {s(sT+1)}')
    k=0
    for m,so in ((0,sKo),(2,sQo)):
        for mt in range(2):
            for r in range(4): e(f'v_cvt_pk_bf16_f32 {v(OUT+4*k+r)}, {v(acc(m,0,mt)+r)}, {v(acc(m,1,mt)+r)}')
            e(f'buffer_store_dwordx4 {v(OUT+4*k,4)}, {v(L16)}, {s(WS,4)}, {s(so)} offen sc1'); k+=1
            if mt==0: e(f's_add_u32 {s(so)}, {s(so)}, 4096')
    for t in range(2):
        for mt in range(2):
            for j in range(2): e(f'v_cvt_pk_bf16_f32 {v(OUT+4*k+2*mt+j)}, {v(acc(1,t,mt)+2*j)}, {v(acc(1,t,mt)+2*j+1)}')
        e(f'buffer_store_dwordx4 {v(OUT+4*k,4)}, {v(L16)}, {s(WS,4)}, {s(sVo)} offen offset:{1024*t} sc1'); k+=1
    e(f's_add_u32 {s(sSeg)}, {s(sSeg)}, {NR}'); e(f's_add_u32 {s(sCnt)}, {s(sCnt)}, 1'); e('s_branch L_p1_loop')
    p.append('L_p1_end:')
    return fix(p,'p1')

sGrp=21; sJ=22; sGB=26; sEp=27; sFw=28; sFr=29; sKq=30; sCq=31; sM=32; sEh=33; sScale=34; sLg=35; sFast=36; sQf=37; sMf=38
WO=lambda ks: a(4*ks,4)
W1=lambda t,ks: a(128+64*t+4*ks,4)
W2=lambda ks: v(200+4*ks,4)
MODV=168
IDX=4; KW=5; FA2=6; HRD=7; HSR=8; PSA=9; MSK=10; ZR=12; NEG=152
def p2_setup(sync):
    p=[]; e=p.append
    e('s_barrier')
    e(f's_lshr_b32 {s(sGrp)}, {s(sB)}, 5'); e(f's_add_u32 {s(sGrp)}, {s(sGrp)}, 5'); e(f's_cmp_ge_u32 {s(sGrp)}, 7'); e(f's_cselect_b32 {s(sT)}, 7, 0'); e(f's_sub_u32 {s(sGrp)}, {s(sGrp)}, {s(sT)}'); e(f's_and_b32 {s(sJ)}, {s(sB)}, 31')
    if sync: p+=dbg_wait(136,1,16)
    e(f's_lshl_b32 {s(sGB)}, {s(sGrp)}, 20'); e(f's_add_u32 {s(sGB)}, {s(sGB)}, {G_OFF}')
    e(f's_lshr_b32 {s(sKq)}, {s(sJ)}, 3'); e(f's_and_b32 {s(sCq)}, {s(sJ)}, 7'); e(f's_and_b32 {s(sM)}, {s(sW)}, 1'); e(f's_lshr_b32 {s(sEh)}, {s(sW)}, 1')
    e(f's_lshl_b32 {s(sFr)}, {s(sGrp)}, 8'); e(f's_add_u32 {s(sFr)}, {s(sFr)}, {BF_OFF+BF_GB}'); e(f's_lshl_b32 {s(sT)}, {s(sJ)}, 2'); e(f's_add_u32 {s(sFw)}, {s(sFr)}, {s(sT)}')
    e(f's_mov_b32 {s(sEp)}, 0'); e(f's_mov_b32 {s(sScale)}, {hex(f2u(128**-0.5))}'); e(f's_mov_b32 {s(sLg)}, {hex(f2u(math.log2(math.e)))}')
    e(f's_lshl_b32 {s(sRing)}, {s(sW)}, 15'); e(f's_add_u32 {s(sRing)}, {s(sRing)}, 32768')
    e(f's_lshl_b32 {s(sMf)}, {s(sJ)}, 7')
    e(f's_add_u32 {s(sQf)}, {s(sMf)}, {BF_OFF+BF_KV}'); e(f's_add_u32 {s(sMf)}, {s(sMf)}, {BF_OFF+BF_KVM}')
    for i in range(4): e(f'v_mov_b32 {v(NEG+i)}, -1')
    e(f's_lshl_b32 {s(sT)}, {s(sJ)}, 13'); e(f's_add_u32 {s(sT)}, {s(sT)}, {s(sGB)}'); e(f's_lshl_b32 {s(sT+1)}, {s(sW)}, 11'); e(f's_add_u32 {s(sT)}, {s(sT)}, {s(sT+1)}')
    for off in (G_P1,G_P2):
        e(f's_add_u32 {s(sT+1)}, {s(sT)}, {off}')
        for i in range(2): e(f'buffer_store_dwordx4 {v(NEG,4)}, {v(L16)}, {s(WS,4)}, {s(sT+1)} offen offset:{1024*i} sc1')
    e('s_waitcnt vmcnt(0)'); e('s_barrier')
    e(f's_getreg_b32 {s(sFast)}, hwreg(HW_REG_XCC_ID)'); e(f's_and_b32 {s(sFast)}, {s(sFast)}, 7'); e(f's_add_u32 {s(sFast)}, {s(sFast)}, 1')
    e(f'v_mov_b32 v16, {s(sFast)}'); e('s_mov_b64 exec, 1'); e(f'buffer_store_dword v16, off, {s(WS,4)}, {s(sFw)} offset:{BF_XC-BF_GB} sc1'); e('s_mov_b64 exec, -1')
    t1,t2,r,c_,g1=16,17,18,19,20
    e(f'v_and_b32 {v(t1)}, 1, {v(LN)}'); e(f'v_mul_u32_u24 {v(t1)}, 0xaaaa, {v(t1)}'); e(f'v_add_u32 {v(IDX)}, 0x4444, {v(t1)}')
    e(f'v_bfe_u32 {v(t1)}, {v(N)}, 1, 2'); e(f'v_lshlrev_b32 {v(KW)}, 2, {v(t1)}'); e(f'v_and_b32 {v(t1)}, 1, {v(N)}'); e(f'v_lshl_add_u32 {v(KW)}, {v(t1)}, 4, {v(KW)}')
    e(f'v_lshl_add_u32 {v(KW)}, {v(Gv)}, 6, {v(KW)}'); e(f'v_lshrrev_b32 {v(t1)}, 3, {v(N)}'); e(f'v_lshl_add_u32 {v(KW)}, {v(t1)}, 8, {v(KW)}')
    e(f's_lshl_b32 {s(sT)}, {s(sW)}, 9'); e(f'v_add_u32 {v(KW)}, {s(sT)}, {v(KW)}')
    e(f'v_and_b32 {v(FA2)}, 31, {v(LN)}'); e(f'v_lshlrev_b32 {v(FA2)}, 2, {v(FA2)}')
    e(f'v_lshlrev_b32 {v(t1)}, 1, {v(t1)}'); e(f'v_xor_b32 {v(t1)}, {v(t1)}, {v(Gv)}'); e(f'v_lshlrev_b32 {v(t1)}, 4, {v(t1)}'); e(f'v_lshl_add_u32 {v(HRD)}, {v(N)}, 6, {v(t1)}')
    e(f's_lshl_b32 {s(sT)}, {s(sM)}, 14'); e(f'v_add_u32 {v(HRD)}, {s(sT)}, {v(HRD)}')
    e(f'v_lshrrev_b32 {v(t1)}, 5, {v(LN)}'); e(f'v_lshlrev_b32 {v(t1)}, 1, {v(t1)}'); e(f'v_and_b32 {v(c_)}, 3, {v(LN)}'); e(f'v_xor_b32 {v(t1)}, {v(t1)}, {v(c_)}')
    e(f'v_lshlrev_b32 {v(t1)}, 4, {v(t1)}'); e(f'v_lshrrev_b32 {v(t2)}, 2, {v(LN)}'); e(f'v_lshl_add_u32 {v(HSR)}, {v(t2)}, 10, {v(t1)}')
    e(f'v_lshlrev_b32 {v(PSA)}, 15, {v(Gv)}'); e(f'v_lshl_add_u32 {v(PSA)}, {v(N)}, 2, {v(PSA)}')
    e(f's_lshl_b32 {s(sT)}, {s(sJ)}, 8'); e(f's_lshl_b32 {s(sT+1)}, {s(sW)}, 6'); e(f's_add_u32 {s(sT)}, {s(sT)}, {s(sT+1)}'); e(f'v_add_u32 {v(PSA)}, {s(sT)}, {v(PSA)}')
    e(f'v_lshlrev_b32 {v(t1)}, 2, {v(Gv)}'); e(f'v_sub_u32 {v(MSK)}, {v(N)}, {v(t1)}')
    e(f'v_mov_b32 {v(ZR+1)}, 0')
    A64,B0,B1,A32,C0,C1,A32b=24,25,26,27,28,29,30
    e(f'v_lshrrev_b32 {v(r)}, 2, {v(N)}'); e(f'v_and_b32 {v(g1)}, 1, {v(Gv)}')
    e(f'v_lshlrev_b32 {v(B0)}, 8, {v(Gv)}'); e(f'v_lshl_add_u32 {v(B0)}, {v(c_)}, 3, {v(B0)}'); e(f'v_add_u32 {v(B0)}, {s(sRing)}, {v(B0)}')
    e(f'v_lshl_add_u32 {v(C0)}, {v(r)}, 5, {v(B0)}'); e(f'v_lshl_add_u32 {v(C0)}, {v(g1)}, 7, {v(C0)}'); e(f'v_xor_b32 {v(C1)}, 128, {v(C0)}')
    e(f'v_lshl_add_u32 {v(B0)}, {v(r)}, 6, {v(B0)}'); e(f'v_lshl_add_u32 {v(B0)}, {v(g1)}, 5, {v(B0)}'); e(f'v_xor_b32 {v(B1)}, 32, {v(B0)}')
    e(f'v_lshlrev_b32 {v(t1)}, 1, {v(g1)}'); e(f'v_xor_b32 {v(t1)}, {v(t1)}, {v(c_)}'); e(f'v_lshlrev_b32 {v(t1)}, 4, {v(t1)}')
    e(f'v_lshl_add_u32 {v(A64)}, {v(Gv)}, 3, {v(r)}'); e(f'v_mul_u32_u24 {v(A64)}, 3584, {v(A64)}'); e(f'v_add_u32 {v(A64)}, {v(A64)}, {v(t1)}')
    e(f's_min_u32 {s(sT)}, {s(sJ)}, 27'); e(f's_lshl_b32 {s(sT)}, {s(sT)}, 7'); e(f's_lshl_b32 {s(sT+1)}, {s(sEh)}, 6'); e(f's_add_u32 {s(sT)}, {s(sT)}, {s(sT+1)}'); e(f'v_add_u32 {v(A64)}, {s(sT)}, {v(A64)}')
    e(f'v_lshrrev_b32 {v(t1)}, 3, {v(N)}'); e(f'v_xor_b32 {v(t1)}, {v(t1)}, {v(g1)}'); e(f'v_bfe_u32 {v(t2)}, {v(N)}, 1, 2')
    e(f'v_lshl_add_u32 {v(t2)}, {v(t1)}, 4, {v(t2)}'); e(f'v_lshl_add_u32 {v(t2)}, {v(Gv)}, 2, {v(t2)}'); e(f'v_and_b32 {v(t1)}, 1, {v(N)}'); e(f'v_lshlrev_b32 {v(t1)}, 4, {v(t1)}')
    e(f'v_lshl_add_u32 {v(A32)}, {v(t2)}, 10, {v(t1)}')
    e(f's_lshl_b32 {s(sT)}, {s(sCq)}, 7'); e(f's_lshl_b32 {s(sT+1)}, {s(sW)}, 5'); e(f's_add_u32 {s(sT)}, {s(sT)}, {s(sT+1)}')
    e(f's_mul_i32 {s(sT+1)}, {s(sKq)}, {448*1024}'); e(f's_add_u32 {s(sT+1)}, {s(sT+1)}, {s(sT)}'); e(f'v_add_u32 {v(A32b)}, {s(sT+1)}, {v(A32)}')
    e(f's_lshl_b32 {s(sT+1)}, {s(sKq)}, 20'); e(f's_add_u32 {s(sT+1)}, {s(sT+1)}, {s(sT)}'); e(f'v_add_u32 {v(A32)}, {s(sT+1)}, {v(A32)}')
    blocks=[]
    mv=lambda o: (lambda reg: [f's_mov_b32 {s(reg)}, {o}'])
    for ks in range(32): blocks.append((srd(PWO,4<<20) if ks%4==0 else None, A32, mv(ks*32768), [(a(4*ks,2),C0,0),(a(4*ks+2,2),C1,0)]))
    for ks in range(16):
        for jh in range(2): blocks.append((srd(PW1,512*3584) if ks%2==0 and jh==0 else None, A64, mv((32*ks+4*jh)*3584), [(a(128+4*ks+2*jh,2),B0,0),(a(192+4*ks+2*jh,2),B1,0)]))
    for ks in range(16):
        kk=min(ks,13); blocks.append((srd(PW2,1792*1024) if ks%4==0 else None, A32b, mv(kk*32768), [(v(200+4*ks,2),C0,0),(v(202+4*ks,2),C1,0)] if ks<14 else []))
    head,rest=wstream(blocks,sRing,OPT['d2'])
    if OPT['dl']:
        e(f'v_mov_b32 v17, 0'); p+=poll(17,s(sQf),str(OPT['dl']),16)
    p+=head+rest
    if sync: p+=dbg_wait(132,64,16)
    e(f's_mov_b32 {s(sT)}, {MOD_OFF+2048}')
    for i in range(4): e(f'buffer_load_dwordx4 {v(16+4*i,4)}, {v(L16)}, {s(WS,4)}, {s(sT)} offen offset:{1024*i} sc1')
    for i in range(16): p+=unp(MODV+2*i,16+i)
    for i in range(16,24): e(f'v_add_f32 {v(MODV+i)}, 1.0, {v(MODV+i)}')
    for i in range(16,24,2): p+=rnd(MODV+i,MODV+i+1,16)
    p+=poll(FA2,s(sFr),'1',16,BF_XC-BF_GB)
    e(f'v_cmp_ne_u32 vcc, {s(sFast)}, v16')
    e(f's_cmp_ge_u32 {s(sGrp)}, 5'); e(f's_cselect_b32 {s(sT)}, 38, 0'); e(f's_add_u32 {s(sSeg)}, {s(sGrp)}, {s(sT)}')
    e(f's_lshl_b32 {s(sT)}, {s(sJ)}, 15'); e(f's_lshl_b32 {s(sT+1)}, {s(sW)}, 13'); e(f's_add_u32 {s(sT)}, {s(sT)}, {s(sT+1)}'); e(f's_add_u32 {s(sT)}, {s(sT)}, {s(sGB)}'); e(f's_add_u32 {s(sT+1)}, {s(sT)}, 4096')
    for i in range(8): e(f'buffer_load_dwordx4 v[20:23], {v(L16)}, {s(WS,4)}, {s(sT+(i>>2))} offen offset:{1024*(i&3)} sc1')
    e('s_waitcnt vmcnt(0)')
    p+=srd(PX,2048*1024)
    p+=STAMP(7,160)+STAMP(15,32)
    e('s_barrier')
    e('s_cbranch_vccnz L_p2_S')
    return fix(p,'p2s')

def p2_loop(mode, sync):
    sc=' sc1' if mode=='S' else ''
    L=f'L_p2_{mode}'
    p=[L+':']; e=p.append
    nb=[0]
    def gbar():
        nb[0]+=1; k=f'{L}_g{nb[0]}'
        return ['s_waitcnt vmcnt(0)','s_barrier', f's_add_u32 {s(sEp)}, {s(sEp)}, 1', f's_cmp_lg_u32 {s(sW)}, 0', f's_cbranch_scc1 {k}',
                f'v_mov_b32 v14, {s(sEp)}','s_mov_b64 exec, 1', f'buffer_store_dword v14, off, {s(WS,4)}, {s(sFw)}{sc}','s_mov_b64 exec, -1','s_nop 15']+pollp(FA2,s(sFr),s(sEp),PR)+STAMP(8+nb[0],128)+[k+':','s_barrier']
    QF=16; KF=32; VF=64; KV=80; S0=92; OA=104; T=120; MX=121; SUM=122; PXr=124; KM=128; XR=136; X1=140; PR=150
    p+=STAMP(16,128)
    if sync:
        e(f's_and_b32 {s(sT)}, {s(sSeg)}, 1'); e(f's_lshl_b32 {s(sT)}, {s(sT)}, 2'); e(f's_add_u32 {s(sT)}, {s(sT)}, {s(sQf)}')
        e(f's_lshr_b32 {s(sT+1)}, {s(sSeg)}, 1'); e(f's_add_u32 {s(sT+1)}, {s(sT+1)}, 1')
        p+=poll(ZR+1,s(sT),s(sT+1),14)+STAMP(17,128)
    e(f's_lshl_b32 {s(sT)}, {s(sSeg)}, 5'); e(f's_add_u32 {s(sT)}, {s(sT)}, {s(sJ)}')
    e(f's_lshl_b32 {s(sT+6)}, {s(sT)}, 10')
    e(f's_lshl_b32 {s(sT)}, {s(sJ)}, 6'); e(f's_add_u32 {s(sT)}, {s(sT)}, {s(sSeg)}')
    e(f's_lshl_b32 {s(sT+1)}, {s(sT)}, 13'); e(f's_lshl_b32 {s(sT+2)}, {s(sM)}, 12'); e(f's_add_u32 {s(sT+1)}, {s(sT+1)}, {s(sT+2)}'); e(f's_add_u32 {s(sT+1)}, {s(sT+1)}, {Q_OFF}')
    e(f's_lshl_b32 {s(sT+2)}, {s(sT)}, 14'); e(f's_add_u32 {s(sT+2)}, {s(sT+2)}, {KV_OFF}'); e(f's_add_u32 {s(sT+3)}, {s(sT+2)}, 4096')
    e(f's_lshl_b32 {s(sT+4)}, {s(sEh)}, 12'); e(f's_add_u32 {s(sT+4)}, {s(sT+4)}, {s(sT+2)}'); e(f's_add_u32 {s(sT+4)}, {s(sT+4)}, 8192')
    e(f's_lshl_b32 {s(sT+5)}, {s(sT)}, 12'); e(f's_add_u32 {s(sT+5)}, {s(sT+5)}, {KVM_OFF}')
    for i in range(4): e(f'buffer_load_dwordx4 {v(QF+4*i,4)}, {v(L16)}, {s(WS,4)}, {s(sT+1)} offen offset:{1024*i} sc1')
    for i in range(8): e(f'buffer_load_dwordx4 {v(KF+4*i,4)}, {v(L16)}, {s(WS,4)}, {s(sT+2+(i>>2))} offen offset:{1024*(i&3)} sc1')
    for i in range(4): e(f'buffer_load_dwordx4 {v(VF+4*i,4)}, {v(L16)}, {s(WS,4)}, {s(sT+4)} offen offset:{1024*i} sc1')
    e(f'buffer_load_dwordx4 {v(XR,4)}, {v(L16)}, {s(SRD,4)}, {s(sT+6)} offen')
    for m in range(2):
        for ks in range(4): e(f'{MF32} {v(S0+4*m,4)}, {v(KF+16*m+4*ks,4)}, {v(QF+4*ks,4)}, '+(v(S0+4*m,4) if ks else '0'))
    e(f'v_mov_b64 {v(S0+8,2)}, 0'); e(f'v_mov_b64 {v(S0+10,2)}, 0')
    def sround(a_): return rnd(a_,a_+1,T)+[f'v_mul_f32 {v(a_)}, {s(sScale)}, {v(a_)}', f'v_mul_f32 {v(a_+1)}, {s(sScale)}, {v(a_+1)}']+rnd(a_,a_+1,T)
    for i in range(0,8,2): p+=sround(S0+i)
    e(f's_lshl_b32 {s(sT+1)}, {s(sM)}, 4'); e(f'v_add_u32 {v(T)}, {s(sT+1)}, {v(MSK)}'); e(f'v_mov_b32 {v(SUM)}, {hex(f2u(-999292928.0))}')
    for i in range(8):
        e(f'v_cmp_le_i32 vcc, {16*(i>>2)+(i&3)}, {v(T)}'); e(f'v_cndmask_b32 {v(S0+i)}, {v(SUM)}, {v(S0+i)}, vcc')
    e(f'v_max3_f32 {v(MX)}, {v(S0)}, {v(S0+1)}, {v(S0+2)}'); e(f'v_max3_f32 {v(MX)}, {v(MX)}, {v(S0+3)}, {v(S0+4)}'); e(f'v_max3_f32 {v(MX)}, {v(MX)}, {v(S0+5)}, {v(S0+6)}'); e(f'v_max_f32 {v(MX)}, {v(MX)}, {v(S0+7)}')
    if sync:
        e(f's_add_u32 {s(sT+1)}, {s(sSeg)}, 1');
        e(f's_cmp_lg_u32 {s(sW)}, 0'); e(f's_cbranch_scc1 {L}_kw'); e(f's_min_u32 {s(sT+2)}, {s(sSeg)}, 61'); e(f's_cmp_ge_u32 {s(sSeg)}, 62'); e(f's_cselect_b32 {s(sT+1)}, 61, {s(sT+1)}')
        p+=STAMP(18,128)+poll(ZR+1,s(sMf),s(sT+2),PR,0,OPT['lp'])+STAMP(19,128)+pollp(ZR+1,s(sMf),s(sT+1),PR,OPT['pn'])+[f'{L}_kw:','s_barrier']
    e(f's_lshl_b32 {s(sT+1)}, {s(sEh)}, 11'); e(f's_add_u32 {s(sT+1)}, {s(sT+1)}, {s(sT+5)}'); e(f's_lshl_b32 {s(sT+2)}, {s(sM)}, 2')
    p.append(f'{L}_kd:')
    for i in range(2): e(f'buffer_load_dwordx4 {v(KV+4*i,4)}, {v(L16)}, {s(WS,4)}, {s(sT+1)} offen offset:{1024*i} sc1')
    e(f's_add_u32 {s(sSpin)}, {s(sSpin)}, 1'); e(f's_cmp_gt_u32 {s(sSpin)}, {LIM}')
    e(f'v_max3_u32 {v(T)}, {v(KV)}, {v(KV+1)}, {v(KV+2)}'); e(f'v_max3_u32 {v(T)}, {v(T)}, {v(KV+3)}, {v(KV+4)}'); e(f'v_max3_u32 {v(T)}, {v(T)}, {v(KV+5)}, {v(KV+6)}'); e(f'v_max_u32 {v(T)}, {v(T)}, {v(KV+7)}')
    e(f'v_cmp_eq_u32 vcc, -1, {v(T)}'); e(f's_cbranch_scc1 {L}_kx'); e(f's_cbranch_vccnz {L}_kd')
    p.append(f'{L}_kx:')
    p+=STAMP(8,128)
    e(f's_cmp_eq_u32 {s(sM)}, 1'); e('s_cselect_b64 vcc, -1, 0')
    e(f'v_cndmask_b32 {v(KV+9)}, {v(KV+1)}, {v(KV+5)}, vcc'); e(f'v_cndmask_b32 {v(KV+11)}, {v(KV+3)}, {v(KV+7)}, vcc')
    e(f'ds_write2_b32 {v(KW)}, {v(KV+9)}, {v(KV+11)} offset0:0 offset1:8'); e('s_waitcnt lgkmcnt(0)'); e('s_barrier')
    for k in range(2): e(f'ds_read_b128 {v(KM+4*k,4)}, {v(L16)} offset:{1024*k}')
    for k in range(2): e(f'{SMF} {v(S0+8,4)}, {v(KM+4*k,4)}, {v(QF+8*k,8)}, {v(IDX)}')
    e(f'v_add_f32 {v(S0+8)}, {v(S0+8)}, {v(S0+9)}'); e(f'v_add_f32 {v(S0+9)}, {v(S0+10)}, {v(S0+11)}')
    p+=sround(S0+8)
    e(f'v_max3_f32 {v(MX)}, {v(MX)}, {v(S0+8)}, {v(S0+9)}'); p+=xg('v_max_f32',MX,T)
    for i in range(10): e(f'v_sub_f32 {v(S0+i)}, {v(S0+i)}, {v(MX)}')
    for i in range(10): e(f'v_mul_f32 {v(S0+i)}, {s(sLg)}, {v(S0+i)}')
    for i in range(10): e(f'v_exp_f32 {v(S0+i)}, {v(S0+i)}')
    e(f'v_add_f32 {v(SUM)}, {v(S0)}, {v(S0+1)}')
    for i in range(2,10): e(f'v_add_f32 {v(SUM)}, {v(SUM)}, {v(S0+i)}')
    p+=xg('v_add_f32',SUM,T); e(f'v_rcp_f32 {v(SUM)}, {v(SUM)}')
    for i in range(10): e(f'v_mul_f32 {v(S0+i)}, {v(SUM)}, {v(S0+i)}')
    for i in range(4): e(f'v_cvt_pk_bf16_f32 {v(PXr+i)}, {v(S0+2*i)}, {v(S0+2*i+1)}')
    e(f'v_cvt_pk_bf16_f32 {v(ZR)}, {v(S0+8)}, {v(S0+9)}')
    for i in range(4): e(f'{MF32} {v(OA+4*i,4)}, {v(VF+4*i,4)}, {v(PXr,4)}, 0')
    for i in range(4): e(f'{MF16} {v(OA+4*i,4)}, {v(KV+2*i,2)}, {v(ZR,2)}, {v(OA+4*i,4)}')
    e(f's_lshl_b32 {s(sT+1)}, {s(sJ)}, 13'); e(f's_lshl_b32 {s(sT+2)}, {s(sEh)}, 12'); e(f's_add_u32 {s(sT+1)}, {s(sT+1)}, {s(sT+2)}'); e(f's_lshl_b32 {s(sT+2)}, {s(sM)}, 10')
    e(f's_add_u32 {s(sT+1)}, {s(sT+1)}, {s(sT+2)}'); e(f's_add_u32 {s(sT+1)}, {s(sT+1)}, {s(sGB)}')
    for k in range(2):
        for i in range(4): e(f'v_cvt_pk_bf16_f32 {v(QF+4*k+i)}, {v(OA+8*k+2*i)}, {v(OA+8*k+2*i+1)}')
        e(f'buffer_store_dwordx4 {v(QF+4*k,4)}, {v(L16)}, {s(WS,4)}, {s(sT+1)} offen offset:{G_O+2048*k}{sc}')
    p+=gbar()
    def gemm_part(src_lines, nks, wf, dst_off):
        o=list(src_lines)
        nfr=2*nks; per=nfr//4; nch=(per+3)//4
        sizes=[min(4,per-4*c) for c in range(nch)]
        base=0; starts=[]
        for c,sz in enumerate(sizes):
            starts.append(base)
            o+=[f's_mul_i32 {s(sT+2)}, {s(sW)}, {sz*1024}', f's_add_u32 {s(sT+2)}, {s(sT+2)}, {base*1024}', f's_add_u32 m0, {s(sT+2)}, 4096', f's_add_u32 {s(sT+2)}, {s(sT+2)}, {s(sT+1)}']
            o+=[f'buffer_load_dwordx4 {v(L16)}, {s(WS,4)}, {s(sT+2)} offen offset:{1024*i} sc1 lds' for i in range(sz)]
            base+=4*sz
        o+=[f'v_add_u32 {v(T)}, 4096, {v(L16)}']
        left=per
        for c,sz in enumerate(sizes):
            left-=sz
            o+=[f's_waitcnt vmcnt({left})','s_barrier']
            fr=list(range(starts[c],starts[c]+4*sz))
            rd=lambda f: f'ds_read_b128 {v(QF+4*(f%8),4)}, {v(T)} offset:{1024*f}'
            o+=[rd(f) for f in fr[:4]]
            for i,f in enumerate(fr):
                ac=v(OA+4*(f&1),4)
                o.append(f'{MF32} {ac}, {v(QF+4*(f%8),4)}, {wf(f>>1)}, '+(ac if f>1 else '0'))
                if i+4<len(fr): o.append(rd(fr[i+4]))
        for mt in range(2):
            for r in range(4):
                o+=[f's_add_u32 {s(sT+2)}, {s(sGB)}, {dst_off+(16*mt+r)*8192}', f'buffer_store_dword {v(OA+4*mt+r)}, {v(PSA)}, {s(WS,4)}, {s(sT+2)} offen{sc}']
        return o
    p+=gemm_part([f's_lshl_b32 {s(sT+1)}, {s(sKq)}, 16', f's_add_u32 {s(sT+1)}, {s(sT+1)}, {s(sGB)}'],32,WO,G_P1)
    nb[0]+=1
    def rowsum(off,tag):
        k_=f'{L}_{tag}'
        o=[f's_lshl_b32 {s(sT+1)}, {s(sJ)}, 13', f's_add_u32 {s(sT+1)}, {s(sT+1)}, {s(sGB)}', f's_add_u32 {s(sT+1)}, {s(sT+1)}, {off}', f's_add_u32 {s(sT+2)}, {s(sT+1)}, 4096', f'v_lshlrev_b32 {v(T)}, 1, {v(L16)}', k_+':']
        for k in range(4):
            for hf in range(2): o.append(f'buffer_load_dwordx4 {v(QF+8*k+4*hf,4)}, {v(T)}, {s(WS,4)}, {s(sT+1+(k>>1))} offen offset:{2048*(k&1)+16*hf} sc1')
        o+=[f's_add_u32 {s(sSpin)}, {s(sSpin)}, 4', f's_cmp_gt_u32 {s(sSpin)}, {LIM}']
        for k in range(1,4):
            for i in range(0,8,2): o.append(f'v_pk_add_f32 {v(QF+i,2)}, {v(QF+i,2)}, {v(QF+8*k+i,2)}')
        o+=[f'v_pk_add_f32 {v(QF+8,2)}, {v(QF,2)}, {v(QF+2,2)}', f'v_pk_add_f32 {v(QF+10,2)}, {v(QF+4,2)}, {v(QF+6,2)}', f'v_pk_add_f32 {v(QF+8,2)}, {v(QF+8,2)}, {v(QF+10,2)}',
            f'v_cmp_u_f32 vcc, {v(QF+8)}, {v(QF+9)}', f's_cbranch_scc1 {k_}x', f's_cbranch_vccnz {k_}', k_+'x:']
        for i in range(0,8,2): o+=rnd(QF+i,QF+i+1,T)
        return o
    repoison=[f'buffer_store_dwordx4 {v(NEG,4)}, {v(L16)}, {s(WS,4)}, {s(sT+1+(i>>2))} offen offset:{1024*(i&3)}{sc}' for i in range(8)]
    e(f's_cmp_lg_u32 {s(sW)}, 0'); e(f's_cbranch_scc1 {L}_n1')
    p+=rowsum(G_P1,'ra')+STAMP(10,128)
    for i in range(4): p+=unp(X1+2*i,XR+i)
    for i in range(8): e(f'v_mul_f32 {v(QF+i)}, {v(QF+i)}, {v(MODV+i)}')
    for i in range(0,8,2): p+=rnd(QF+i,QF+i+1,T)
    for i in range(8): e(f'v_add_f32 {v(X1+i)}, {v(X1+i)}, {v(QF+i)}')
    for i in range(0,8,2): p+=rnd(X1+i,X1+i+1,T)
    e(f'v_add_f32 {v(MX)}, {v(X1)}, {v(X1+1)}')
    for i in range(2,8): e(f'v_add_f32 {v(MX)}, {v(MX)}, {v(X1+i)}')
    p+=xrow(MX)+xg('v_add_f32',MX,T); e(f'v_mul_f32 {v(MX)}, {hex(f2u(1/512))}, {v(MX)}')
    for i in range(8):
        e(f'v_sub_f32 {v(T)}, {v(X1+i)}, {v(MX)}'); e(f'v_mul_f32 {v(SUM)}, {v(T)}, {v(T)}' if i==0 else f'v_fmac_f32 {v(SUM)}, {v(T)}, {v(T)}')
    p+=xrow(SUM)+xg('v_add_f32',SUM,T); e(f'v_mul_f32 {v(SUM)}, {hex(f2u(1/512))}, {v(SUM)}')
    p+=rnd(MX,SUM,T)
    e(f'v_add_f32 {v(SUM)}, {hex(f2u(1e-5))}, {v(SUM)}'); p+=rnd(SUM,SUM,T)[:2]
    e(f'v_sqrt_f32 {v(SUM)}, {v(SUM)}'); p+=rnd(SUM,SUM,T)[:2]
    e(f'v_rcp_f32 {v(SUM)}, {v(SUM)}')
    for i in range(8): e(f'v_sub_f32 {v(QF+i)}, {v(X1+i)}, {v(MX)}')
    for i in range(0,8,2): p+=rnd(QF+i,QF+i+1,T)
    for i in range(8): e(f'v_mul_f32 {v(QF+i)}, {v(QF+i)}, {v(SUM)}')
    for i in range(0,8,2): p+=rnd(QF+i,QF+i+1,T)
    for i in range(8): e(f'v_mul_f32 {v(QF+i)}, {v(QF+i)}, {v(MODV+16+i)}')
    for i in range(0,8,2): p+=rnd(QF+i,QF+i+1,T)
    for i in range(8): e(f'v_add_f32 {v(QF+i)}, {v(QF+i)}, {v(MODV+8+i)}')
    for i in range(4): e(f'v_cvt_pk_bf16_f32 {v(QF+8+i)}, {v(QF+2*i)}, {v(QF+2*i+1)}')
    e(f's_lshl_b32 {s(sT+1)}, {s(sJ)}, 10'); e(f's_add_u32 {s(sT+1)}, {s(sT+1)}, {s(sGB)}'); e(f's_add_u32 {s(sT+1)}, {s(sT+1)}, {G_H2}')
    e(f'buffer_store_dwordx4 {v(QF+8,4)}, {v(L16)}, {s(WS,4)}, {s(sT+1)} offen{sc}')
    p.append(f'{L}_n1:')
    p+=gbar()
    e(f's_cmp_ge_u32 {s(sJ)}, 28'); e(f's_cbranch_scc1 {L}_n2a')
    e(f's_lshl_b32 {s(sT+1)}, {s(sEh)}, 14'); e(f's_lshl_b32 {s(sT+2)}, {s(sM)}, 9'); e(f's_add_u32 {s(sT+1)}, {s(sT+1)}, {s(sT+2)}'); e(f's_add_u32 {s(sT+1)}, {s(sT+1)}, {s(sGB)}'); e(f's_add_u32 {s(sT+1)}, {s(sT+1)}, {G_H2}')
    e(f's_lshl_b32 {s(sT+2)}, {s(sEh)}, 14'); e(f's_lshl_b32 {s(sT+3)}, {s(sM)}, 13'); e(f's_add_u32 {s(sT+2)}, {s(sT+2)}, {s(sT+3)}')
    for i in range(8):
        e(f's_add_u32 m0, {s(sT+2)}, {4096+1024*i}'); e(f's_add_u32 {s(sT+3)}, {s(sT+1)}, {64*i}')
        e(f'buffer_load_dwordx4 {v(HSR)}, {s(WS,4)}, {s(sT+3)} offen sc1 lds')
    p.append(f'{L}_n2a:')
    e(f's_lshl_b32 {s(sT+1)}, {s(sJ)}, 2'); e(f's_add_u32 {s(sT+1)}, {s(sT+1)}, {s(sW)}'); e(f's_lshl_b32 {s(sT+1)}, {s(sT+1)}, 11'); e(f's_add_u32 {s(sT+1)}, {s(sT+1)}, {s(sGB)}'); e(f's_add_u32 {s(sT+1)}, {s(sT+1)}, {G_P1}')
    p+=repoison[:2]
    e(f's_cmp_ge_u32 {s(sJ)}, 28'); e(f's_cbranch_scc1 {L}_n2')
    e('s_waitcnt vmcnt(2)'); e('s_barrier')
    rd=lambda ks: f'ds_read_b128 {v(QF+4*(ks%8),4)}, {v(HRD)} offset:{4096+1024*ks}'
    for ks in range(4): e(rd(ks))
    for ks in range(16):
        for t in range(2): e(f'{MF32} {v(OA+4*t,4)}, {W1(t,ks)}, {v(QF+4*(ks%8),4)}, '+(v(OA+4*t,4) if ks else '0'))
        if ks+4<16: e(rd(ks+4))
    e(f's_lshl_b32 {s(sT+1)}, {s(sJ)}, 12'); e(f's_lshl_b32 {s(sT+2)}, {s(sEh)}, 11'); e(f's_add_u32 {s(sT+1)}, {s(sT+1)}, {s(sT+2)}'); e(f's_lshl_b32 {s(sT+2)}, {s(sM)}, 10')
    e(f's_add_u32 {s(sT+1)}, {s(sT+1)}, {s(sT+2)}'); e(f's_add_u32 {s(sT+1)}, {s(sT+1)}, {s(sGB)}'); e(f's_add_u32 {s(sT+1)}, {s(sT+1)}, {G_F1}')
    for i in range(8): e(f'v_max_f32 {v(OA+i)}, 0, {v(OA+i)}')
    for i in range(4): e(f'v_cvt_pk_bf16_f32 {v(PXr+i)}, {v(OA+2*i)}, {v(OA+2*i+1)}')
    e(f'buffer_store_dwordx4 {v(PXr,4)}, {v(L16)}, {s(WS,4)}, {s(sT+1)} offen{sc}')
    p.append(f'{L}_n2:')
    p+=gbar()
    p+=gemm_part([f's_mul_i32 {s(sT+1)}, {s(sKq)}, 28672', f's_add_u32 {s(sT+1)}, {s(sT+1)}, {s(sGB)}', f's_add_u32 {s(sT+1)}, {s(sT+1)}, {G_F1}'],14,W2,G_P2)
    nb[0]+=1
    e(f's_cmp_lg_u32 {s(sW)}, 0'); e(f's_cbranch_scc1 {L}_n3')
    p+=rowsum(G_P2,'rb')+STAMP(13,128)
    for i in range(8): e(f'v_mul_f32 {v(QF+i)}, {v(QF+i)}, {v(MODV+24+i)}')
    for i in range(0,8,2): p+=rnd(QF+i,QF+i+1,T)
    for i in range(8): e(f'v_add_f32 {v(QF+i)}, {v(QF+i)}, {v(X1+i)}')
    for i in range(4): e(f'v_cvt_pk_bf16_f32 {v(QF+8+i)}, {v(QF+2*i)}, {v(QF+2*i+1)}')
    e(f'v_add_u32 {v(T)}, {s(sT+6)}, {v(L16)}')
    e(f'global_store_dwordx4 {v(T)}, {v(QF+8,4)}, {s(POUT,2)}')
    p+=repoison
    p+=STAMP(14,128)+STAMP(20,96)+STAMP(21,64)+STAMP(22,32)
    p.append(f'{L}_n3:')
    e(f's_cmp_lt_u32 {s(sSeg)}, 38'); e(f's_cselect_b32 {s(sT)}, 5, 7'); e(f's_add_u32 {s(sSeg)}, {s(sSeg)}, {s(sT)}'); e(f's_cmp_lt_u32 {s(sSeg)}, 64'); e(f's_cbranch_scc1 {L}')
    e('s_endpgm')
    r=fix(p,'p2'+mode); check(r+r,'p2loop')
    return r
```

```python
from asmlib import *
from layout import *
import math, struct, re

T0=0; IDX=1; L16=2; LW=3; QW=4; QR=5; KW=6; OW=7; ORD=8; PST=9; MPUB=10; H2A=10; FLG=11
ONES=12; PM=16; KVQ=20; QA=24; KA=32; VA=40; M=48; X=80; STG=112; RES=128
L_MEM=0; L_Q=8192; L_K=10240; L_O=12288; L_SEL=14336; L_KX=16384; L_WV=24576; WREG=34816
WS=4; WSRD=8; DBG=12; sH=14; sW=15; sStep=16; sC=17; sKsrc=18; sVsrc=19; sKvm=20
sPst=21; sPin=23; sPrst=25; sPrstB=26; sPslot=27; sMemIn1=28; sSpinU=29; sPinB=30
sMemIn0=31; sMemB=32; sMemPub=33; sMemRst=34; sSlot=35; sSpin=36; sKdst=37; sKvF=38; sVdst=39; sKvmF=40; sReg=41
sT=42
sRo1=52; sRo2=56; sEx=50; sPtr=52; sRow=64; sTime=70; sOdd=88; sOne=92; sC2=94; sSpinF=96; sFlag=98; sFlagB=99; sWoff=100
LIM='0x80000'
SMF='v_smfmac_f32_16x16x64_bf16'; MF32='v_mfma_f32_16x16x32_bf16'; MF16='v_mfma_f32_16x16x16_bf16'
OPT=dict(sync=0, d1=20, sl=4, nb=6, pp=0, rep=2, hotkv=0, tr=0, solo=0, cut=99, drop=0, cutm=-1, show=0, ord=3, dc=7, fi=28, de=5, v1=1, pub=1, nt=1, rs=0, b0=1, ro1=0, ro2=0, rp=0, warm=1, sp=0, np=2, dp=0, ps=24, sw=5)

lds_groups=[('q',0),('q',1),('q',2),('q',3),('o',0,3),('o',1,1),('o',1,2),('o',1,3)]
all_groups=[(m,c) for m in 'qkv' for c in range(8)]+[('o',tp,k) for tp in range(2) for k in range(4)]
res_groups=[g for g in all_groups if g not in lds_groups]
gloc={}
for i,g in enumerate(res_groups): gloc[g]=('a',16*i) if i<16 else ('v',RES+16*(i-16))
stream={('q',0,0):M+16,('q',0,1):M+24,('q',1,0):KA,('q',1,1):VA,('q',2,0):X,('q',2,1):X+8,('q',3,0):X+16,('q',3,1):X+24,
        ('o',0,3,0):X+8,('o',0,3,1):X+24,('o',1,1,0):X,('o',1,2,0):X+16,('o',1,3,0):KA,('o',1,1,1):VA,('o',1,2,1):QA,('o',1,3,1):X+8}
def ureg(g,t):
    if g in gloc: return gloc[g][0], gloc[g][1]+8*t
    return 'v', stream[g+(t,)]
def unit(g,t): p,b=ureg(g,t); return R(p,b,8)
def stream_reads(g,t):
    off=lds_groups.index(g)*4096+t*2048; b=stream[g+(t,)]
    return [f'ds_read_b128 {v(b,4)}, {v(LW)} offset:{off}', f'ds_read_b128 {v(b+4,4)}, {v(LW)} offset:{off+1024}']
def zero(b,n,val='0'): return [f'v_mov_b64 {v(b+i,2)}, {val}' for i in range(0,n,2)]
def kv_addr(): return [f'v_lshrrev_b32 {v(T0)}, 2, {v(L16)}', f'v_and_b32 {v(T0)}, 4, {v(T0)}']
def kv_check(L):
    return kv_addr()+[f's_add_u32 {s(sT+3)}, {s(sStep)}, 1', f's_min_u32 {s(sT+3)}, {s(sT+3)}, 63', f's_lshl_b32 {s(sT+3)}, {s(sT+3)}, 2', f'{L}c:',
            f'v_lshl_add_u32 {v(FLG)}, {v(FLG)}, 3, {v(T0)}', f'v_cmp_ge_u32 vcc, {s(sT+3)}, {v(FLG)}', f's_cbranch_vccnz {L}w', f'{L}x:']
def kv_wait(L):
    return [f'{L}w:', f's_add_u32 {s(sSpinF)}, {s(sSpinF)}, 1', f's_cmp_gt_u32 {s(sSpinF)}, {LIM}', f's_cbranch_scc1 {L}x',
            f'buffer_load_dword {v(FLG)}, {v(T0)}, {s(WS,4)}, {s(sKvF)} offen sc1', 's_waitcnt vmcnt(0)', f's_branch {L}c']
def h2_addr(d,t):
    return [f'v_and_b32 {v(d)}, 0x230, {v(L16)}', f'v_and_b32 {v(t)}, 0xc0, {v(L16)}', f'v_lshl_add_u32 {v(d)}, {v(t)}, 1, {v(d)}',
            f'v_and_b32 {v(t)}, 0x100, {v(L16)}', f'v_lshrrev_b32 {v(t)}, 2, {v(t)}', f'v_or_b32 {v(d)}, {v(d)}, {v(t)}']

def prologue(timing):
    p=[]; e=p.append
    VQ=[]
    def vm(line,tag=None): e(line); VQ.append(tag)
    def wait(tag):
        i=max(k for k,t in enumerate(VQ) if t==tag); e(f's_waitcnt vmcnt({len(VQ)-1-i})')
    e(f's_load_dwordx2 {s(WSRD,2)}, s[0:1], 40')
    e(f's_load_dwordx4 {s(sPtr,4)}, s[0:1], 8')
    e(f's_load_dwordx4 {s(sPtr+4,4)}, s[0:1], 24')
    e(f's_load_dwordx2 {s(DBG,2)}, s[0:1], 104')
    e(f's_load_dwordx2 {s(WS,2)}, s[0:1], 112')
    if timing: e(f's_memrealtime {s(sTime,2)}')
    ln,n,g,t1,t2,g1,VOO,VA0,VA1,TO0,TO1,TA0,TA1,TB0,TB1,r=[STG+i for i in range(16)]
    e(f'v_lshrrev_b32 {v(t1)}, 6, v0'); e(f'v_and_b32 {v(ln)}, 63, v0'); e(f'v_readfirstlane_b32 {s(sW)}, {v(t1)}')
    e(f's_mov_b32 {s(WSRD+2)}, {4<<20}'); e(f's_mov_b32 {s(WSRD+3)}, 0x20000')
    e(f'v_and_b32 {v(n)}, 15, {v(ln)}'); e(f'v_lshrrev_b32 {v(g)}, 4, {v(ln)}'); e(f'v_and_b32 {v(g1)}, 1, {v(g)}')
    e(f's_mul_i32 {s(sReg)}, {s(sW)}, {WREG}'); e(f's_add_u32 {s(sReg)}, {s(sReg)}, {L_WV}')
    e(f'v_lshrrev_b32 {v(t1)}, 3, {v(n)}'); e(f'v_lshl_add_u32 {v(t1)}, {v(g1)}, 4, {v(t1)}'); e(f'v_lshrrev_b32 {v(t2)}, 1, {v(g)}'); e(f'v_lshl_add_u32 {v(t1)}, {v(t2)}, 2, {v(t1)}')
    e(f'v_and_b32 {v(t2)}, 7, {v(n)}'); e(f'v_lshlrev_b32 {v(t2)}, 4, {v(t2)}'); e(f'v_lshlrev_b32 {v(VOO)}, 6, {v(g1)}'); e(f'v_xor_b32 {v(t2)}, {v(t2)}, {v(VOO)}')
    e(f'v_lshl_add_u32 {v(VOO)}, {v(t1)}, 10, {v(t2)}')
    e(f's_lshl_b32 {s(sT)}, {s(sH)}, 17'); e(f's_lshl_b32 {s(sT+1)}, {s(sW)}, 8'); e(f's_add_u32 {s(sT)}, {s(sT)}, {s(sT+1)}')
    for k in range(4):
        e(f's_xor_b32 {s(sRow+k)}, {s(sW)}, {k}'); e(f's_lshl_b32 {s(sRow+k)}, {s(sRow+k)}, 15'); e(f's_add_u32 {s(sRow+k)}, {s(sRow+k)}, {s(sT)}')
    e('s_waitcnt lgkmcnt(0)')
    if timing: e('s_memrealtime s[80:81] ;stamp')
    items=[g_ for m_ in 'okvq' for g_ in res_groups if g_[0]==m_]+lds_groups
    SL=[i%8 for i in range(32)]
    k_=OPT['ord']
    if k_:
        items=items[:4]+items[32-k_:]+items[4:32-k_]
        R_=8-k_; n_=28-k_
        SL=[None]*4+list(range(8-k_,8))+[(j-n_)%R_ for j in range(n_)]
        SL[:4]=[(j-4-n_)%R_ for j in range(4)]
    nxt_=[0]
    def pump(it,lim):
        while nxt_[0]<32 and nxt_[0]<=lim and all(j<it for j in range(nxt_[0]) if SL[j]==SL[nxt_[0]]):
            issue(nxt_[0]); nxt_[0]+=1
    ptr={'q':sPtr+2,'k':sPtr+4,'v':sPtr+6,'o':sPtr+8}
    ntf=' nt' if OPT['nt'] else ''
    def issue(i):
        g_=items[i]
        if i>=4: e(f's_mov_b32 {s(WSRD)}, {s(ptr[g_[0]])}'); e(f's_mov_b32 {s(WSRD+1)}, {s(ptr[g_[0]]+1)}')
        for b in range(4):
            e(f's_add_u32 m0, {s(sReg)}, {SL[i]*4096+b*1024}')
            if g_[0]=='o': e(f's_add_u32 {s(sT+7)}, {s(sRow+g_[2])}, {(8*(b>>1)+2*(b&1))*1024+g_[1]*128}'); vo=VOO
            else: e(f's_mov_b32 {s(sT+7)}, {(128*(g_[1]&3)+8*(g_[1]>>2)+4*(b>>1)+(b&1))*8192}'); vo=VA1 if b&1 else VA0
            vm(f'buffer_load_dwordx4 {v(vo)}, {s(WSRD,4)}, {s(sT+7)} offen{ntf} lds',g_)
    pump(0,3)
    e(f's_mov_b32 {s(sPtr+8)}, {s(WSRD)}'); e(f's_mov_b32 {s(sPtr+9)}, {s(WSRD+1)}')
    e(f's_mov_b32 {s(WS+2)}, {WS_BYTES}'); e(f's_mov_b32 {s(WS+3)}, 0x20000')
    e(f'v_lshlrev_b32 {v(L16)}, 4, {v(ln)}'); e(f'v_add_u32 {v(LW)}, {s(sReg)}, {v(L16)}')
    e(f's_add_u32 {s(sVdst)}, {s(sReg)}, 32768')
    e(f's_lshl_b32 {s(sT+1)}, {s(sW)}, 11'); e(f's_add_u32 {s(sKdst)}, {s(sT+1)}, {L_KX}')
    e(f's_lshl_b32 {s(sWoff)}, {s(sW)}, 10')
    e(f'v_and_b32 {v(t1)}, 1, {v(ln)}'); e(f'v_mul_u32_u24 {v(t1)}, 0xaaaa, {v(t1)}'); e(f'v_add_u32 {v(IDX)}, 0x4444, {v(t1)}')
    e(f's_lshl_b32 {s(sT+2)}, {s(sW)}, 9')
    e(f'v_lshrrev_b32 {v(r)}, 2, {v(n)}'); e(f'v_lshlrev_b32 {v(QW)}, 7, {v(r)}'); e(f'v_and_b32 {v(t1)}, 1, {v(r)}'); e(f'v_lshlrev_b32 {v(t1)}, 6, {v(t1)}')
    e(f'v_lshlrev_b32 {v(t2)}, 5, {v(g)}'); e(f'v_xor_b32 {v(t1)}, {v(t1)}, {v(t2)}'); e(f'v_add_u32 {v(QW)}, {v(QW)}, {v(t1)}')
    e(f'v_and_b32 {v(t1)}, 3, {v(n)}'); e(f'v_lshl_add_u32 {v(QW)}, {v(t1)}, 2, {v(QW)}'); e(f'v_add_u32 {v(QW)}, {s(sT+2)}, {v(QW)}'); e(f'v_add_u32 {v(QW)}, {L_Q}, {v(QW)}')
    e(f'v_lshlrev_b32 {v(t1)}, 3, {v(ln)}'); e(f'v_add_u32 {v(OW)}, {s(sT+2)}, {v(t1)}'); e(f'v_and_b32 {v(ORD)}, -9, {v(OW)}')
    e(f'v_and_b32 {v(t1)}, -9, {v(t1)}'); e(f'v_lshlrev_b32 {v(t2)}, 6, {v(g1)}'); e(f'v_xor_b32 {v(QR)}, {v(t1)}, {v(t2)}')
    e(f'v_bfe_u32 {v(t1)}, {v(n)}, 1, 2'); e(f'v_lshlrev_b32 {v(KW)}, 2, {v(t1)}'); e(f'v_and_b32 {v(t1)}, 1, {v(n)}'); e(f'v_lshl_add_u32 {v(KW)}, {v(t1)}, 4, {v(KW)}')
    e(f'v_lshl_add_u32 {v(KW)}, {v(g)}, 6, {v(KW)}'); e(f'v_lshrrev_b32 {v(t1)}, 3, {v(n)}'); e(f'v_lshl_add_u32 {v(KW)}, {v(t1)}, 8, {v(KW)}')
    e(f'v_add_u32 {v(KW)}, {s(sT+2)}, {v(KW)}'); e(f'v_add_u32 {v(KW)}, {L_K}, {v(KW)}')
    e(f'v_lshlrev_b32 {v(MPUB)}, 12, {v(t1)}'); e(f'v_and_b32 {v(t1)}, 1, {v(r)}'); e(f'v_lshl_add_u32 {v(MPUB)}, {v(t1)}, 6, {v(MPUB)}'); e(f'v_lshl_add_u32 {v(MPUB)}, {v(g1)}, 5, {v(MPUB)}')
    e(f'v_and_b32 {v(t1)}, 3, {v(n)}'); e(f'v_lshl_add_u32 {v(MPUB)}, {v(t1)}, 3, {v(MPUB)}'); e(f'v_lshrrev_b32 {v(t2)}, 1, {v(g)}'); e(f'v_lshl_add_u32 {v(MPUB)}, {v(t2)}, 31, {v(MPUB)}')
    e(f'v_lshlrev_b32 {v(TO0)}, 8, {v(g)}'); e(f'v_lshl_add_u32 {v(TO0)}, {v(t1)}, 3, {v(TO0)}'); e(f'v_lshl_add_u32 {v(TO0)}, {v(g1)}, 6, {v(TO0)}')
    e(f'v_and_b32 {v(t2)}, 1, {v(r)}'); e(f'v_lshl_add_u32 {v(TO0)}, {v(t2)}, 7, {v(TO0)}'); e(f'v_lshrrev_b32 {v(t2)}, 1, {v(r)}'); e(f'v_lshl_add_u32 {v(TO0)}, {v(t2)}, 5, {v(TO0)}')
    e(f'v_add_u32 {v(TO0)}, {s(sReg)}, {v(TO0)}'); e(f'v_xor_b32 {v(TO1)}, 64, {v(TO0)}')
    e(f'v_lshl_add_u32 {v(t2)}, {v(g1)}, 2, {v(r)}'); e(f's_lshl_b32 {s(sT+3)}, {s(sW)}, 1'); e(f'v_xor_b32 {v(t2)}, {s(sT+3)}, {v(t2)}')
    e(f'v_lshlrev_b32 {v(TA0)}, 10, {v(g)}'); e(f'v_lshl_add_u32 {v(TA0)}, {v(r)}, 8, {v(TA0)}'); e(f'v_lshl_add_u32 {v(TA0)}, {v(t2)}, 5, {v(TA0)}'); e(f'v_lshl_add_u32 {v(TA0)}, {v(t1)}, 3, {v(TA0)}')
    e(f'v_add_u32 {v(TA0)}, {L_WV}, {v(TA0)}'); e(f'v_xor_b32 {v(TA1)}, 32, {v(TA0)}'); e(f'v_add_u32 {v(TB0)}, {2*WREG}, {v(TA0)}'); e(f'v_add_u32 {v(TB1)}, {2*WREG}, {v(TA1)}')
    e(f's_lshl_b32 {s(sT+4)}, {s(sH)}, 8')
    e(f'v_and_b32 {v(t2)}, 2, {v(g)}'); e(f'v_lshl_add_u32 {v(t2)}, {v(g1)}, 4, {v(t2)}'); e(f'v_lshlrev_b32 {v(t1)}, 1, {v(g)}'); e(f'v_xor_b32 {v(t1)}, {v(t1)}, {v(n)}'); e(f'v_lshlrev_b32 {v(t1)}, 4, {v(t1)}')
    e(f'v_lshl_add_u32 {v(VA0)}, {v(t2)}, 13, {v(t1)}'); e(f's_lshl_b32 {s(sT+3)}, {s(sW)}, 18'); e(f's_add_u32 {s(sT+3)}, {s(sT+3)}, {s(sT+4)}')
    e(f'v_add_u32 {v(VA0)}, {s(sT+3)}, {v(VA0)}'); e(f'v_xor_b32 {v(VA1)}, 128, {v(VA0)}')
    e(f's_lshl_b32 {s(sT+3)}, {s(sW)}, 15'); e(f'v_lshlrev_b32 {v(t1)}, 11, {v(r)}'); e(f'v_add_u32 {v(t1)}, {s(sT+4)}, {v(t1)}'); e(f'v_and_b32 {v(t1)}, 0x1fff, {v(t1)}')
    e(f'v_lshl_add_u32 {v(PST)}, {v(g)}, 13, {v(t1)}'); e(f'v_lshl_add_u32 {v(PST)}, {v(n)}, 4, {v(PST)}'); e(f'v_add_u32 {v(PST)}, {s(sT+3)}, {v(PST)}')
    Rp=OPT['rep']; cval=struct.unpack('<I',struct.pack('<f',math.log2(math.e)/math.sqrt(128)))[0]
    for r_,val in ((sC,cval),(sC2,cval),(sC2+1,cval),(sStep,0),(sSpin,0),(sSpinU,0),(sSpinF,0),(sSlot,0),(sPslot,3*262144),(sOne,0x3f803f80),(sOne+1,0x3f803f80),
                   (sOdd,0xaaaaaaaa),(sOdd+1,0xaaaaaaaa),(sEx,0x10001 if Rp>1 else 1),(sEx+1,0x10001 if Rp>2 else 0)): e(f's_mov_b32 {s(r_)}, {hex(val)}')
    e(f's_and_b32 {s(sFlagB)}, {s(sH)}, {Rp-1}'); e(f's_lshl_b32 {s(sFlagB)}, {s(sFlagB)}, 8'); e(f's_add_u32 {s(sFlagB)}, {s(sFlagB)}, {FLAG_OFF}')
    e(f's_lshl_b32 {s(sFlag)}, {s(sH)}, 2'); e(f's_add_u32 {s(sFlag)}, {s(sFlag)}, {FLAG_OFF}')
    e(f's_lshl_b32 {s(sPinB)}, {s(sH)}, 13'); e(f's_add_u32 {s(sPinB)}, {s(sPinB)}, {PART_OFF}'); e(f's_add_u32 {s(sPrstB)}, {s(sPinB)}, {s(sT+1)}')
    e(f's_bfe_u32 {s(sT+5)}, {s(sH)}, 0x20002'); e(f's_lshl_b32 {s(sMemB)}, {s(sT+5)}, 10'); e(f's_lshr_b32 {s(sT+5)}, {s(sH)}, 4'); e(f's_lshl_b32 {s(sT+5)}, {s(sT+5)}, 9')
    e(f's_add_u32 {s(sMemB)}, {s(sMemB)}, {s(sT+5)}'); e(f's_and_b32 {s(sT+5)}, {s(sH)}, 3'); e(f's_lshl_b32 {s(sT+5)}, {s(sT+5)}, 7'); e(f's_add_u32 {s(sMemB)}, {s(sMemB)}, {s(sT+5)}'); e(f's_add_u32 {s(sMemB)}, {s(sMemB)}, {MEM_OFF}')
    e(f's_lshl_b32 {s(sKsrc)}, {s(sH)}, 20'); e(f's_add_u32 {s(sKsrc)}, {s(sKsrc)}, {s(sT+1)}'); e(f's_add_u32 {s(sKsrc)}, {s(sKsrc)}, {KV_OFF}'); e(f's_add_u32 {s(sVsrc)}, {s(sKsrc)}, 8192')
    e(f's_lshl_b32 {s(sKvm)}, {s(sH)}, 18'); e(f's_add_u32 {s(sKvm)}, {s(sKvm)}, {s(sWoff)}'); e(f's_add_u32 {s(sKvm)}, {s(sKvm)}, {KVM_OFF}')
    e(f's_lshl_b32 {s(sKvF)}, {s(sH)}, 7'); e(f's_add_u32 {s(sKvmF)}, {s(sKvF)}, {BF_OFF+BF_KVM}'); e(f's_add_u32 {s(sKvF)}, {s(sKvF)}, {BF_OFF+BF_KV}')
    p+=zero(PM,4)+zero(ONES,4,'-1')
    e(f'v_and_b32 {v(t1)}, 2, {v(n)}'); e(f'v_lshlrev_b32 {v(t1)}, 3, {v(t1)}'); e(f'v_mov_b32 {v(t2)}, 0x3f80'); e(f'v_lshlrev_b32 {v(t2)}, {v(t1)}, {v(t2)}'); e(f'v_bfe_u32 {v(t1)}, {v(n)}, 2, 1')
    for jj in range(4):
        e(f'v_cmp_eq_u32 vcc, {jj&1}, {v(t1)}'); e(f'v_cndmask_b32 {v(M+jj)}, 0, {v(t2)}, vcc')
    e(f'ds_write_b128 {v(L16)}, {v(M,4)} offset:{L_SEL}')
    e(f'v_lshrrev_b32 {v(T0)}, 1, {v(n)}'); e(f'v_lshlrev_b32 {v(T0)}, 10, {v(T0)}'); e(f'v_lshl_add_u32 {v(T0)}, {v(g1)}, 3, {v(T0)}')
    e(f'v_and_b32 {v(t1)}, 2, {v(g)}'); e(f'v_lshl_add_u32 {v(T0)}, {v(t1)}, 6, {v(T0)}'); e(f'v_and_b32 {v(t1)}, 1, {v(n)}'); e(f'v_lshl_add_u32 {v(T0)}, {v(t1)}, 2, {v(T0)}')
    e(f's_lshl_b32 {s(sT+5)}, {s(sW)}, 8'); e(f'v_add_u32 {v(T0)}, {s(sT+5)}, {v(T0)}')
    D=OPT['dc']
    pump(0,D-1)
    if timing: e('s_memrealtime s[82:83] ;stamp')
    e(f's_lshl_b32 {s(sT+5)}, {s(sW)}, 18'); e(f's_add_u32 {s(sT+5)}, {s(sT+5)}, {s(sPinB)}'); e(f's_add_u32 {s(sT+6)}, {s(sT+5)}, 4096')
    for j in range(8): vm(f'buffer_store_dwordx4 {v(ONES,4)}, {v(L16)}, {s(WS,4)}, {s(sT+5+(j>>2))} offen offset:{(j&3)*1024} sc1','x')
    e(f's_lshl_b32 {s(sT+5)}, {s(sW)}, 13'); e(f's_add_u32 {s(sT+5)}, {s(sT+5)}, {s(sMemB)}')
    vm(f'buffer_store_dwordx2 {v(ONES,2)}, {v(MPUB)}, {s(WS,4)}, {s(sT+5)} offen sc1','x')
    e(f's_mov_b64 exec, {s(sEx,2)}'); vm(f'buffer_store_dword {v(PM)}, {v(L16)}, {s(WS,4)}, {s(sFlag)} offen sc1','x'); e('s_mov_b64 exec, -1')
    for j in (62,63):
        e(f's_add_u32 {s(sT+5)}, {s(sKvm)}, {4096*j}'); vm(f'buffer_store_dwordx4 {v(ONES,4)}, {v(L16)}, {s(WS,4)}, {s(sT+5)} offen sc1','x')
    for u in range(2):
        for x in range(4): vm(f'global_load_dword {v(QA+4*u+x)}, {v(T0)}, {s(sPtr,2)} offset:{16*u+32*x}','x')
    if not OPT['rp']:
        p+=h2_addr(FLG,t1); e(f's_cmp_eq_u32 {s(sW)}, 1'); e('s_cselect_b64 vcc, -1, 0'); e(f'v_cndmask_b32 {v(MPUB)}, {v(MPUB)}, {v(FLG)}, vcc')
    def back(i):
        g_=items[i]
        for t in range(2):
            b0=stream[g_+(t,)] if g_[0]=='q' else M+8*t
            for j in range(2): e(f'ds_write_b128 {v(LW)}, {v(b0+4*j,4)} offset:{SL[i]*4096+t*2048+j*1024}')
        assert SL[i]==lds_groups.index(g_)
    for it in range(32):
        g_=items[it]; bi=it-5
        wait(g_)
        if it==8: wait('x')
        if timing and it==0: e('s_memrealtime s[84:85] ;stamp')
        if timing and it==31: e('s_memrealtime s[86:87] ;stamp')
        e('s_barrier')
        pump(it,it+D)
        if it and items[it-1] in lds_groups[:4]: back(it-1)
        if it==8:
            e(f's_mov_b32 {s(sT+2)}, 0x05040100'); e(f's_mov_b32 {s(sT+3)}, 0x07060302'); e(f'v_add_u32 {v(T0)}, {s(sWoff)}, {v(L16)}')
            for u in range(2):
                d=X+4*u; q=QA+4*u
                e(f'v_perm_b32 {v(d)}, {v(q+1)}, {v(q)}, {s(sT+2)}'); e(f'v_perm_b32 {v(d+1)}, {v(q+3)}, {v(q+2)}, {s(sT+2)}')
                e(f'v_perm_b32 {v(d+2)}, {v(q+1)}, {v(q)}, {s(sT+3)}'); e(f'v_perm_b32 {v(d+3)}, {v(q+3)}, {v(q+2)}, {s(sT+3)}')
                e(f'ds_write_b128 {v(T0)}, {v(d,4)} offset:{L_MEM+4096*u}')
            e(f's_cmp_lg_u32 {s(sW)}, 0'); e('s_cbranch_scc1 L_ch_noarr')
            e(f's_getreg_b32 {s(sT+5)}, hwreg(HW_REG_XCC_ID)'); e(f's_and_b32 {s(sT+5)}, {s(sT+5)}, 7'); e(f's_lshl_b32 {s(sT+5)}, {s(sT+5)}, 3'); e(f's_lshl_b64 {s(sT+2,2)}, 1, {s(sT+5)}')
            e(f'v_mov_b32 {v(QA)}, {s(sT+2)}'); e(f'v_mov_b32 {v(QA+1)}, {s(sT+3)}'); e('s_mov_b64 exec, 1')
            e(f'global_atomic_add_x2 {v(PM+1)}, {v(QA,2)}, {s(DBG,2)}'); e('s_mov_b64 exec, -1')
            p.append('L_ch_noarr:')
        for b in range(4):
            for t in range(2):
                if g_[0]=='o':
                    pf,b0=ureg(g_,t) if g_ in gloc else ('v',M+8*t)
                    e(f'ds_read_b64_tr_b16 {R(pf,b0+2*b,2)}, {v(TO1 if t else TO0)} offset:{SL[it]*4096+b*1024}')
                else:
                    pf,b0=ureg(g_,t); tra=[[TA0,TA1],[TB0,TB1]][b>>1][t]
                    e(f'ds_read_b64_tr_b16 {R(pf,b0+2*b,2)}, {v(tra)} offset:{(b&1)*WREG+SL[it]*4096}')
        e('s_waitcnt lgkmcnt(0)')
        if g_ in lds_groups[4:]: back(it)
        if it==31 and g_[0]=='q': e('s_barrier'); back(it)
        if bi==8 and OPT['sync']:
            e(f'v_mov_b32 {v(T0)}, 136'); vm(f'global_load_dword {v(KVQ)}, {v(T0)}, {s(DBG,2)} sc1 ;stamp','i')
        if it==16: vm(f'global_load_dwordx2 {v(QA,2)}, {v(PM+1)}, {s(DBG,2)} sc1 ;stamp','h')
        if it==OPT['fi']:
            wait('h')
            p.append('L_ch_hs:')
            e(f'v_readfirstlane_b32 {s(sT+2)}, {v(QA)}'); e(f'v_readfirstlane_b32 {s(sT+3)}, {v(QA+1)}')
            e(f's_add_u32 {s(sSpinF)}, {s(sSpinF)}, 1'); e(f's_cmp_gt_u32 {s(sSpinF)}, {LIM}'); e('s_cbranch_scc1 L_ch_hsdone')
            e(f's_add_u32 {s(sT+4)}, {s(sT+2)}, {s(sT+3)}'); e(f's_lshr_b32 {s(sT+5)}, {s(sT+4)}, 16'); e(f's_add_u32 {s(sT+4)}, {s(sT+4)}, {s(sT+5)}')
            e(f's_lshr_b32 {s(sT+5)}, {s(sT+4)}, 8'); e(f's_add_u32 {s(sT+4)}, {s(sT+4)}, {s(sT+5)}'); e(f's_and_b32 {s(sT+4)}, {s(sT+4)}, 0xff')
            e(f's_cmp_ge_u32 {s(sT+4)}, 32'); e('s_cbranch_scc1 L_ch_hsdone')
            e(f'global_load_dwordx2 {v(QA,2)}, {v(PM+1)}, {s(DBG,2)} sc1 ;stamp'); e('s_waitcnt vmcnt(0) ;stamp'); e('s_branch L_ch_hs')
            p.append('L_ch_hsdone:')
            e(f's_or_b32 {s(sT+2)}, {s(sT+2)}, {s(sT+3)}'); e(f's_and_b32 {s(sT+2)}, {s(sT+2)}, 0x20202020')
            if OPT['sync']:
                wait('i')
                p.append('L_ch_iw:')
                e(f'v_cmp_eq_u32 vcc, 0, {v(KVQ)}'); e('s_cbranch_vccz L_ch_iwx')
                e(f's_add_u32 {s(sSpinF)}, {s(sSpinF)}, 1'); e(f's_cmp_gt_u32 {s(sSpinF)}, {LIM}'); e('s_cbranch_scc1 L_ch_iwx')
                e(f'global_load_dword {v(KVQ)}, {v(T0)}, {s(DBG,2)} sc1 ;stamp'); e('s_waitcnt vmcnt(0) ;stamp'); e('s_branch L_ch_iw')
                p.append('L_ch_iwx:')
                p.extend(kv_addr()); vm(f'buffer_load_dword {v(FLG)}, {v(T0)}, {s(WS,4)}, {s(sKvF)} offen sc1 ;stamp','f')
            e(f's_lshl_b32 {s(sT+5)}, {s(sW)}, 18'); e(f's_add_u32 {s(sT+5)}, {s(sT+5)}, {s(sPinB)}'); e(f's_add_u32 {s(sT+6)}, {s(sT+5)}, 4096')
            wl=[f'buffer_load_dwordx4 {v(KVQ,4)}, {v(L16)}, {s(WS,4)}, {s(sT+5+(j>>2))} offen offset:{(j&3)*1024} sc1 ;stamp' for j in range(8)]
            nlate=2 if OPT['rs']==0 else 1
            def warm(lst,k):
                for l in lst: vm(l,'w')
            e(f's_lshl_b32 {s(sT+4)}, {s(sH)}, 10'); e(f's_add_u32 {s(sT+4)}, {s(sT+4)}, {MEM_OFF}')
            vm(f'buffer_load_dwordx4 {v(KVQ,4)}, {v(L16)}, {s(WS,4)}, {s(sT+4)} offen sc1 ;stamp','w')
            warm(wl[:8-nlate],0)
    if OPT['sync']:
        wait('f')
        p.extend(kv_check('L_ch_k0')); p.extend(['s_branch L_ch_k0y']+kv_wait('L_ch_k0')+['L_ch_k0y:'])
    for sd,ss in ((sKdst,sKsrc),(sVdst,sVsrc)):
        e(f's_mov_b32 m0, {s(sd)}')
        for j in range(2): e(f'buffer_load_dwordx4 {v(L16)}, {s(WS,4)}, {s(ss)} offen offset:{1024*j} sc1 lds')
    warm([l.replace(v(KVQ,4),v(STG,4)) for l in wl[8-nlate:]],1)
    p.extend(kv_addr()); e(f'buffer_load_dword {v(FLG)}, {v(T0)}, {s(WS,4)}, {s(sKvF)} offen sc1 ;stamp')
    p+=zero(QA,8)
    if OPT['rp']: e(f'v_mov_b32 {v(FLG)}, 0')
    e(f's_add_u32 {s(sKsrc)}, {s(sKsrc)}, 16384'); e(f's_add_u32 {s(sVsrc)}, {s(sVsrc)}, 16384')
    e(f's_add_u32 {s(sPrst)}, {s(sPrstB)}, {2*262144}')
    if not OPT['tr'] and not OPT['solo']:
        for k in range(4):
            e(f's_and_b32 {s(sT+4)}, {s(sH)}, 1'); e(f's_xor_b32 {s(sT+4)}, {s(sT+4)}, {k}'); e(f's_lshl_b32 {s(sRo1+k)}, {s(sT+4)}, 11')
            e(f's_add_u32 {s(sT+4)}, {s(sH)}, {k}'); e(f's_and_b32 {s(sT+4)}, {s(sT+4)}, 3'); e(f's_lshl_b32 {s(sRo2+k)}, {s(sT+4)}, 10')
    e('s_waitcnt lgkmcnt(0)')
    if timing: e(f's_memrealtime {s(sTime+2,2)}'); e(f's_memtime {s(sTime+6,2)}'); e('s_waitcnt lgkmcnt(0)')
    if OPT['solo']: e('s_waitcnt vmcnt(0)'); e('s_memtime s[60:61]'); e('s_waitcnt lgkmcnt(0)'); e('s_barrier')
    if OPT['rp'] and not OPT['solo']:
        e(f's_cmp_eq_u32 {s(sW)}, 1'); e(f's_cselect_b32 {s(sKvmF)}, {s(sKvmF)}, 0x40000000')
        e('s_barrier')
        for c in range(4): e(mrd(c))
        e(f's_cmp_eq_u32 {s(sT+2)}, 0'); e('s_cbranch_scc1 L_ch_S0_re'); e('s_branch L_ch_F0_re'); e('s_waitcnt lgkmcnt(0)')
    e(f's_cmp_eq_u32 {s(sT+2)}, 0'); e('s_cbranch_scc1 L_ch_S0')
    return fix(p,'prologue')

def smf(d,a_,b): return f'{SMF} {v(d,4)}, {v(a_,4)}, {b}, {v(IDX)}'
def mrd(c): return f'ds_read_b128 {v(M+4*c,4)}, {v(L16)} offset:{L_MEM+1024*c}'
def G(*groups):
    o=[]
    for g_ in groups: o.extend(g_)
    return o

def step(mode, par, verbose=False):
    sc=' sc1' if mode=='S' else ''
    two=OPT['tr'] or OPT['solo']
    L=f'L_ch_{mode}{par}'
    p=[L+':']; e=p.append
    qk=lambda m,c,t: smf((QA if m=='q' else KA if m=='k' else VA)+4*t, M+4*c, unit((m,c),t))
    Q=lambda c,t: qk('q',c,t); K=lambda c,t: qk('k',c,t); V=lambda c,t: qk('v',c,t)
    W=lambda n: f's_waitcnt lgkmcnt({n})'
    krd=[f'ds_read_b128 {v(X+4*f,4)}, {v(L16)} offset:{L_KX+1024*f}' for f in range(8)]
    kl=[f'buffer_load_dwordx4 {v(STG+4*i,4)}, {v(L16)}, {s(WS,4)}, {s(sVsrc if i>>1 else sKsrc)} offen offset:{1024*(i&1)} sc1' for i in range(4)]
    kw=[f'v_add_u32 {v(T0)}, {s(sKdst)}, {v(L16)}','s_waitcnt vmcnt(3)']+[f'ds_write_b128 {v(T0)}, {v(STG+4*i,4)} offset:{1024*i}' for i in range(2)]+[f'ds_write_b128 {v(LW)}, {v(STG+8+4*i,4)} offset:{32768+1024*i}' for i in range(2)]
    def post(acc,d0,d1,bytok):
        o=[f'v_add_f32 {v(acc)}, {v(acc)}, {v(acc+1)}', f'v_add_f32 {v(acc+2)}, {v(acc+2)}, {v(acc+3)}',
           f'v_add_f32 {v(acc+4)}, {v(acc+4)}, {v(acc+5)}', f'v_add_f32 {v(acc+6)}, {v(acc+6)}, {v(acc+7)}']
        if bytok: o+=[f'v_cvt_pk_bf16_f32 {v(d0)}, {v(acc)}, {v(acc+4)}', f'v_cvt_pk_bf16_f32 {v(d1)}, {v(acc+2)}, {v(acc+6)}']
        else:     o+=[f'v_cvt_pk_bf16_f32 {v(d0)}, {v(acc)}, {v(acc+2)}', f'v_cvt_pk_bf16_f32 {v(d1)}, {v(acc+4)}, {v(acc+6)}']
        return o
    def tr(i,rt=False):
        if not OPT['tr']: return []
        return [('s_memrealtime' if rt else 's_memtime')+f' {s(52+14*par+2*i,2)} ;stamp']
    def trdump():
        if not OPT['tr']: return []
        o=[f'v_mov_b32 {v(M+4+i)}, {s(52+14*(1-par)+2*i)}' for i in range(4)]+[f'v_mov_b32 {v(M+8+i)}, {s(52+14*(1-par)+2*i)}' for i in range(4,7)]
        o+=[f's_lshl_b32 {s(sT+1)}, {s(sSpinU)}, 16', f's_add_u32 {s(sT+1)}, {s(sT+1)}, {s(sSpin)}', f'v_mov_b32 {v(M+15)}, {s(sT+1)}',
            f's_lshl_b32 {s(sT+1)}, {s(sStep)}, 5', f's_add_u32 {s(sT+1)}, {s(sT+1)}, {s(sH)}', f's_lshl_b32 {s(sT+1)}, {s(sT+1)}, 2', f's_add_u32 {s(sT+1)}, {s(sT+1)}, {s(sW)}',
            f's_lshl_b32 {s(sT+1)}, {s(sT+1)}, 5', f's_add_u32 {s(sT+1)}, {s(sT+1)}, {100<<20}', 's_mov_b64 exec, 1',
            f'buffer_store_dwordx4 {v(M+4,4)}, off, {s(WS,4)}, {s(sT+1)}', f'buffer_store_dwordx4 {v(M+12,4)}, off, {s(WS,4)}, {s(sT+1)} offset:16', 's_mov_b64 exec, -1']
        return o
    rstore=lambda j: f'buffer_store_dwordx4 {v(ONES,4)}, {v(L16)}, {s(WS,4)}, {s(sPrst)} offen offset:{j*1024}{sc}'
    pub=f'buffer_store_dwordx4 {v(KVQ,4)}, {v(L16)}, {s(WS,4)}, {s(sKvm)} offen'+(' sc1' if OPT['pub'] else '')
    rp=OPT['rp']; sp=OPT['sp']
    if not OPT['solo']: p.extend(['s_waitcnt lgkmcnt(0)' if rp else f's_waitcnt vmcnt({7 if OPT["rs"]==0 else 6}) lgkmcnt(0)','s_barrier'])
    p.append(';secS')
    for c in range(4): e(mrd(c))
    if OPT['rs']==1: e(rstore(0))
    if rp: e(pub); e(f's_add_u32 {s(sKvm)}, {s(sKvm)}, 4096')
    p.append(f'{L}_re:')
    z=zero(KA,16)
    on=[f'v_mov_b64 {v(ONES+2*i,2)}, {s(sOne,2)}' for i in range(2)]
    qp=post(QA,QA+1,QA+3,True)+[f'ds_write2_b32 {v(QW)}, {v(QA+1)}, {v(QA+3)} offset0:0 offset1:4']
    kp=post(KA,KVQ+1,KVQ+3,True)+[f'ds_write2_b32 {v(KW)}, {v(KVQ+1)}, {v(KVQ+3)} offset0:0 offset1:8']
    p.extend(G([kl[0],W(3)],[Q(0,0)],[Q(0,1),W(2)],[Q(1,0),kl[1]],[Q(1,1),W(1)],[Q(2,0),z[0]],[Q(2,1),W(0),z[1]],[Q(3,0),kl[2]],[Q(3,1),z[2]],
               [K(0,0),z[3]],[K(1,0),z[4]],[K(2,0),f's_waitcnt vmcnt({6 if OPT["rs"]<2 else 5})','s_barrier',z[5]],[K(3,0),mrd(4),z[6]],
               [K(0,1),mrd(5),z[7]],[K(1,1),mrd(6),on[0]],[K(2,1),mrd(7),on[1]],[K(3,1),krd[0],W(4)]))
    p.append(';sec0')
    fld=f'buffer_load_dword {v(FLG)}, {v(T0)}, {s(WS,4)}, {s(sKvF)} offen sc1'
    p.extend(G([Q(4,0),krd[4],W(4)],[Q(5,0),krd[1],W(4)],[Q(6,0),krd[5],W(4)],[Q(7,0),kl[3]],
               [Q(4,1),krd[2],'s_nop 0'],[Q(5,1),krd[3]],[Q(6,1),krd[6],qp[0]],[Q(7,1),krd[7],qp[1]],
               [K(4,0),'s_nop 2'],[K(5,0),'s_nop 0',qp[2]],[K(6,0),qp[3]],[K(7,0),'s_nop 1',qp[4]],
               [K(4,1),qp[5]],[K(5,1),qp[6]],[K(6,1),kp[0]],[K(7,1),kp[1]]))
    p.append(';sec1')
    rk=[f'ds_read_b128 {v(X+16*k,4)}, {v(L16)} offset:{L_K+1024*k}' for k in range(2)]
    rq=[f'ds_read_b128 {v(M+4*k,4)}, {v(QR)} offset:{L_Q+512*k}' for k in range(4)]
    VF=[X+4,X+20]
    rv=[f'ds_read_b128 {v(VF[t],4)}, {v(LW)} offset:{32768+1024*t}' for t in range(2)]
    SX=lambda m,ks: f'{MF32} {v(QA+4*m,4)}, {v(X+16*m+4*ks,4)}, {v(M+4*ks,4)}, '+(v(QA+4*m,4) if ks else '0')
    sm=[smf(KA,X+16*k,v(M+8*k,8)) for k in range(2)]
    zk=zero(KA,4)
    mx=PM; tt=KA+3
    c=[f'v_max3_f32 {v(mx)}, {v(QA)}, {v(QA+1)}, {v(QA+2)}', f'v_max3_f32 {v(mx)}, {v(mx)}, {v(QA+3)}, {v(QA+4)}',
       f'v_max3_f32 {v(mx)}, {v(mx)}, {v(QA+5)}, {v(QA+6)}',
       f'v_add_f32 {v(KA)}, {v(KA)}, {v(KA+1)}', f'v_add_f32 {v(KA+1)}, {v(KA+2)}, {v(KA+3)}',
       f'v_max3_f32 {v(mx)}, {v(mx)}, {v(QA+7)}, {v(KA)}', f'v_max_f32 {v(tt)}, {v(mx)}, {v(KA+1)}', f'v_max_f32 {v(mx)}, {v(mx)}, {v(KA+1)}',
       f'v_permlane32_swap_b32 {v(mx)}, {v(tt)}', f'v_max_f32 {v(T0)}, {v(mx)}, {v(tt)}', f'v_max_f32 {v(mx)}, {v(mx)}, {v(tt)}',
       f'v_permlane16_swap_b32 {v(mx)}, {v(T0)}', f'v_max_f32 {v(mx)}, {v(mx)}, {v(T0)}', f'v_mul_f32 {v(T0)}, {s(sC)}, {v(mx)}']
    kadv=0 if OPT['hotkv'] else 16384
    bk=[f's_add_u32 {s(sSlot)}, {s(sSlot)}, 8192', f's_and_b32 {s(sSlot)}, {s(sSlot)}, 0x7fff',
        f's_add_u32 {s(sMemIn0)}, {s(sSlot)}, {MEM_OFF}', f's_add_u32 {s(sMemPub)}, {s(sMemB)}, {s(sSlot)}',
        f's_xor_b32 {s(sMemRst)}, {s(sMemPub)}, 16384',
        f's_add_u32 {s(sPrst)}, {s(sPrstB)}, {s(sPslot)}',
        f's_add_u32 {s(sPslot)}, {s(sPslot)}, 262144', f's_and_b32 {s(sPslot)}, {s(sPslot)}, 0xfffff',
        f's_add_u32 {s(sPst)}, {s(sPslot)}, {PART_OFF}', f's_add_u32 {s(sPst+1)}, {s(sPslot)}, {PART_OFF+131072}',
        f's_add_u32 {s(sPin)}, {s(sPinB)}, {s(sPslot)}', f's_add_u32 {s(sPin+1)}, {s(sPin)}, 4096',
        f's_add_u32 {s(sKsrc)}, {s(sKsrc)}, {kadv}', f's_add_u32 {s(sVsrc)}, {s(sVsrc)}, {kadv}',
        f's_add_u32 {s(sMemIn1)}, {s(sMemIn0)}, 4096', f's_mov_b32 m0, {L_MEM}', f's_add_u32 {s(sStep)}, {s(sStep)}, 1']
    wo=lambda tp,k: stream_reads(('o',tp>>1,k),tp&1)
    p.extend(G([V(0,0),'s_nop 1',f'v_cmp_u_f32 vcc, {v(QA)}, {v(QA+2)}'],[V(0,1),W(0),'s_barrier',kp[2]],[V(1,0),rq[0],kp[3]],[V(1,1),rq[1],kp[4]],
               [V(2,0),kp[5]],[V(2,1),kp[6]],[V(3,0),rq[2],zk[0]],[V(3,1),rq[3],W(3)],
               [SX(0,0),zk[1]],[SX(1,0),f's_cbranch_vccnz {L}_r2',f'{L}_r2x:'],[SX(0,1),W(2),'s_barrier'],[SX(1,1),rk[0],W(1)],
               [SX(0,2),rk[1]],[SX(0,3),rv[0]],[SX(1,2),rv[1]],[SX(1,3),bk[0],bk[1]]+([] if OPT['v1'] else [W(2)]),
               *([[V(4,0),W(2),bk[2],c[0]],[sm[0],bk[3],bk[5],c[1]],[sm[1],wo(2,1)[0],c[2]],[V(5,0),wo(2,2)[0],bk[6]],[V(6,0),bk[7],bk[16],c[3],c[4]],[V(7,0),c[5],c[6],c[7]]] if OPT['v1'] else
                 [[sm[0],'s_nop 0',c[0]],[sm[1],wo(2,1)[0]],[V(4,0),bk[2],bk[3],c[1]],[V(5,0),wo(2,2)[0],c[2]],[V(6,0),bk[5],bk[6],c[3],c[4]],[V(7,0),bk[7],bk[16],c[5],c[6],c[7]]]),
               [V(4,1),wo(0,3)[0],c[8]],[V(5,1),wo(0,3)[1],c[9],c[10]],[V(6,1),wo(1,3)[0],c[11]],[V(7,1),wo(1,3)[1],c[12],c[13]]))
    if OPT['tr']: p.append(f's_memtime {s(52+14*(1-par)+10,2)} ;stamp')
    p.append(';sec2')
    vp=post(VA,KVQ,KVQ+2,False)
    xp=lambda r_: f'v_exp_f32 {v(r_)}, {v(r_)}'
    PX=KA+4; OF=M+16
    e(vp[0]); e(vp[1])
    for r_ in (KA,QA,QA+2,QA+4,QA+6):
        e(f'v_pk_fma_f32 {v(r_,2)}, {v(r_,2)}, {s(sC2,2)}, {v(T0,2)} op_sel_hi:[1,1,0] neg_lo:[0,0,1] neg_hi:[0,0,1]')
    e(f'v_mfma_f32_32x32x8_bf16 {v(M,16)}, {v(PM+2,2)}, {v(PM+2,2)}, 0'); e(bk[12])
    e(xp(KA)); e(xp(KA+1))
    p.extend([vp[2],vp[3],vp[4],vp[5]])
    e(f'v_cvt_pk_bf16_f32 {v(PM)}, {v(KA)}, {v(KA+1)}')
    e(xp(QA)); e(xp(QA+1))
    ex=[f's_cmp_eq_u32 {s(sStep)}, 64','s_cbranch_scc1 L_ch_last'] if (par==1 and OPT['solo']) else ['s_nop 1']
    p.extend(G([f'{MF16} {v(VA,4)}, {v(KVQ,2)}, {v(PM,2)}, 0',bk[13],xp(QA+2)],
               [f'{MF16} {v(VA+4,4)}, {v(KVQ+2,2)}, {v(PM,2)}, 0',bk[8],xp(QA+3)],
               [f'{MF16} {v(KA,4)}, {v(ONES,2)}, {v(PM,2)}, 0',W(6),xp(QA+4),xp(QA+5),xp(QA+6),xp(QA+7)]))
    for i in range(4): e(f'v_cvt_pk_bf16_f32 {v(PX+i)}, {v(QA+2*i)}, {v(QA+2*i+1)}')
    zo=zero(ONES,4,'-1')
    oa=[f'v_xor_b32 {v(QA+k)}, {512*k}, {v(ORD)}' for k in range(1,4)]
    p.extend(G([oa[0],oa[1]],[f'{MF32} {v(KA,4)}, {v(ONES,4)}, {v(PX,4)}, {v(KA,4)}']+ex+[oa[2]],
               [f'{MF32} {v(VA,4)}, {v(VF[0],4)}, {v(PX,4)}, {v(VA,4)}',bk[14],zo[0],zo[1]],
               [f'{MF32} {v(VA+4,4)}, {v(VF[1],4)}, {v(PX,4)}, {v(VA+4,4)}',bk[15],f'v_rcp_f32 {v(T0)}, {v(KA)}',bk[9],bk[10]]))
    pm_=[f'v_pk_mul_f32 {v(VA+2*i,2)}, {v(VA+2*i,2)}, {v(T0,2)} op_sel_hi:[1,0]' for i in range(4)]
    cv=[f'v_cvt_pk_bf16_f32 {v(OF+i)}, {v(VA+2*i)}, {v(VA+2*i+1)}' for i in range(4)]
    p.extend([pm_[0],pm_[1],cv[0],cv[1],pm_[2],pm_[3],cv[2],cv[3]])
    p.append(';sec3')
    e(f'v_cndmask_b32 {v(QA+4)}, {v(OF)}, {v(OF+2)}, {s(sOdd,2)}'); e(f'v_cndmask_b32 {v(QA+5)}, {v(OF+1)}, {v(OF+3)}, {s(sOdd,2)}')
    O=lambda tp,k: smf(M+4*tp,OF+4*k,unit(('o',tp>>1,k),tp&1))
    def oc(tp,j):
        q=M+8*(tp>>1)+(tp&1)+2*j
        return f'v_cvt_pk_bf16_f32 {v(q)}, {v(M+4*tp+2*j)}, {v(M+4*tp+2*j+1)}'
    ost=lambda u: f'buffer_store_dwordx4 {v(M+8*u,4)}, {v(PST)}, {s(WS,4)}, {s(sPst+u)} offen{sc}'
    ro=[f'ds_read_b128 {v(OF+4*k,4)}, {v(QA+k)} offset:{L_O}' for k in range(1,4)]
    p.extend(G([f'ds_write_b64 {v(OW)}, {v(QA+4,2)} offset:{L_O}'],[O(0,0),rstore(1)],[O(1,0),wo(2,1)[1]],[W(1),'s_barrier',ro[0]],[O(2,0),ro[1],bk[11]],[O(3,0),ro[2],bk[4]],
               [wo(2,2)[1],wo(2,3)[0],W(4)]))
    p.append(';sec4')
    p.extend(G([O(0,1),wo(2,3)[1],W(4)],[O(0,2),wo(3,1)[0],W(4)],[O(0,3),wo(3,1)[1],f's_cmp_lg_u32 {s(sW)}, 0'],
               [O(1,1),wo(3,2)[0],'s_nop 0'],[O(1,2),wo(3,2)[1],W(4)],[O(1,3),wo(3,3)[0],oc(0,0)],
               [O(2,1),wo(3,3)[1],oc(0,1)],[O(2,2),W(4),'s_nop 0',oc(1,0),oc(1,1)],[O(2,3),ost(0)],
               [O(3,1),W(0),'s_nop 1'],[O(3,2),'s_nop 1',oc(2,0)],[O(3,3),'s_nop 1',oc(2,1)],[oc(3,0),oc(3,1),ost(1)]))
    sr=[]
    for g_,t in ((('q',0),0),(('q',0),1),(('q',1),0),(('q',1),1)): sr+=stream_reads(g_,t)
    xs=[]
    for g_,t in ((('q',2),0),(('q',2),1),(('q',3),0),(('q',3),1)): xs+=stream_reads(g_,t)
    xz=weave(xs,zero(QA,8),[0,0,0,0,1,1,1,1])
    if verbose and par==0:
        fx=fix(p,'main',True); print('model cycles',simulate(fx,OPT['show']), 'inserted waits', len([l for l in fx if l.startswith('s_waitcnt')])-len([l for l in p if l.startswith('s_waitcnt')]))
    if OPT['solo']:
        marks=[i for i,l in enumerate(p) if l.startswith(';sec')]
        if OPT['cutm']>=0:
            marks=[i+1 for i,l in enumerate(p) if l.startswith(('v_mfma','v_smfmac'))]; OPT['cut']=OPT['cutm']
        if OPT['cut']<len(marks):
            rest=p[marks[OPT['cut']]:]
            p[:]=p[:marks[OPT['cut']]]+['s_memtime s[62:63] ;stamp']+[l for l in rest if (l.startswith(('s_add','s_and','s_cmp','s_cbranch_scc')) or l.endswith(':'))]
        d=OPT['drop']
        if d&1: p[:]=[l for l in p if not l.startswith('buffer_store')]
        if d&2: p[:]=[l for l in p if not l.startswith('buffer_load')]
        if OPT['cut']>=len(marks): p.append('s_memtime s[62:63] ;stamp')
        p.extend(['s_waitcnt vmcnt(0)']+kw+kv_addr()+sr+xz)
        p.extend(['s_waitcnt lgkmcnt(0) vmcnt(0)','s_sub_u32 s62, s62, s60', f's_add_u32 {s(sSpin)}, {s(sSpin)}, s62', 's_barrier', 's_sleep 8', 's_memtime s[60:61] ;stamp', 's_waitcnt lgkmcnt(0)', 's_barrier'])
        if par==1: p.append(f's_branch L_ch_{mode}0')
        return fix(p,f'solo{par}'), [f'{L}_r2:',f's_branch {L}_r2x']
    kc=lambda x: kv_check(L+x) if OPT['sync'] else []
    if rp: return window_rp(locals())
    p.extend(tr(0)+tr(1,True))
    e(f's_cbranch_scc1 {L}_w')
    head=list(p)
    p.extend(trdump())
    e(f'ds_read_b128 {v(QA+4,4)}, {v(L16)} offset:{L_SEL}')
    e(f'v_mov_b32 {v(M+2)}, {s(sStep)}')
    if OPT['de']:
        e(f's_cmp_lt_u32 {s(sH)}, 16'); e(f's_cbranch_scc1 {L}_e'); p.extend(['s_nop 3']*OPT['de']); p.append(f'{L}_e:')
    for i in range(OPT['d1']-OPT['de']-(1 if OPT['de'] else 0)-(8 if OPT['tr'] else 0)): e('s_nop 3')
    p.extend(tr(2))
    ld1=[f'buffer_load_dwordx4 {v(X+4*j,4)}, {v(L16)}, {s(WS,4)}, {s(sPin+(j>>2))} offen offset:{(j&3)*1024} sc1' for j in range(8)]
    if OPT['ro1']:
        p[-1:-1]=[f's_add_u32 {s(sT+4+k)}, {s(sPin)}, {s(sRo1+k)}' for k in range(4)]; p.pop()
        ld1=[f'buffer_load_dwordx4 {v(X+4*j,4)}, {v(L16)}, {s(WS,4)}, {s(sT+4+(j>>1))} offen offset:{(j&1)*1024} sc1' for j in range(8)]
    fst=[f's_mov_b64 exec, {s(sEx,2)}', f'buffer_store_dword {v(M+2)}, {v(L16)}, {s(WS,4)}, {s(sFlag)} offen{sc}', 's_mov_b64 exec, -1']
    p.extend(ld1); p.extend(sr+zero(QA,4)); e(W(8))
    p.append(f'{L}_p1:')
    RM=lambda j: smf(QA,QA+4,v(X+8*j,8))
    fin=[f'v_cvt_pk_bf16_f32 {v(M)}, {v(QA)}, {v(QA+2)}', f'v_cvt_pk_bf16_f32 {v(M+1)}, {v(QA+1)}, {v(QA+3)}']
    mpub=f'buffer_store_dwordx2 {v(M,2)}, {v(MPUB)}, {s(WS,4)}, {s(sMemPub)} offen{sc}'
    chk=f'v_cmp_u_f32 vcc, {v(QA)}, {v(QA+1)}'
    p.extend(['s_waitcnt vmcnt(6)',f'v_cmp_u_f32 vcc, {v(X)}, {v(X+4)}',RM(0),
              fst[0], f's_cbranch_vccnz {L}_r0']+fst[1:]+(['s_barrier'] if OPT['b0'] else [])+tr(3)+[f'{L}_p2:'])
    for j in range(1,4):
        e(f's_waitcnt vmcnt({7-2*j})'); e(RM(j))
    p.extend(fin+[mpub,chk])
    p.extend(tr(4))
    e(f's_cbranch_vccnz {L}_r1')
    p.append(f'{L}_p1ok:')
    p.extend([kw[0]]+kw[2:]+xz)
    nxt=f'L_ch_{mode}{1-par if two else 0}'
    tailc=['s_barrier', pub]+([rstore(0)] if OPT['rs']==0 else [])
    tail2=[f's_add_u32 {s(sKvm)}, {s(sKvm)}, 4096', f's_cmp_lg_u32 {s(sStep)}, 63', f's_cbranch_scc1 {nxt}', 's_branch L_ch_fin']
    p.append(f'{L}_b1:')
    p.extend(tailc+tail2)
    body=fix(p,f'step{mode}{par}',verbose)
    ld2=[f'buffer_load_dwordx4 {v(H2A)}, {s(WS,4)}, {s(sMemIn0)} offen offset:{1024*j} sc1 lds' for j in range(4)]
    ld2+=[f's_mov_b32 m0, {L_MEM+4096}','s_nop 0']+[f'buffer_load_dwordx4 {v(H2A)}, {s(WS,4)}, {s(sMemIn1)} offen offset:{1024*j} sc1 lds' for j in range(4)]
    ld2r=ld2
    if OPT['ro2']:
        ld2r=[]
        for j in range(8):
            ld2r+=[f's_add_u32 m0, {s(sRo2+(j&3))}, {L_MEM+4096*(j>>2)}', f's_add_u32 {s(sT+4)}, {s(sRo2+(j&3))}, {s(sMemIn1 if j>>2 else sMemIn0)}',
                   f'buffer_load_dwordx4 {v(H2A)}, {s(WS,4)}, {s(sT+4)} offen sc1 lds']
    q=[f'{L}_w:']+kw+[f's_cmp_lg_u32 {s(sW)}, 3', f's_cbranch_scc1 {L}_w3', f'buffer_store_dwordx2 {v(ONES,2)}, {v(MPUB)}, {s(WS,4)}, {s(sMemRst)} offen{sc}', f'{L}_w3:']+trdump()+sr+xz; e=q.append
    e(f's_cmp_eq_u32 {s(sW)}, 1'); e(f's_cbranch_scc1 {L}_fb')
    if OPT['b0']: e('s_barrier')
    if OPT['sync']:
        e(f's_cmp_lg_u32 {s(sW)}, 2'); e(f's_cbranch_scc1 {L}_b1')
        q.extend(kc('_kb')+tailc+[fld]+tail2)
    else: e(f's_branch {L}_b1')
    q.append(f'{L}_fb:')
    e(f'v_lshrrev_b32 {v(T0)}, 2, {v(L16)}'); e(f'v_and_b32 {v(T0)}, 0x7c, {v(T0)}')
    if OPT['b0']: e('s_barrier')
    for i in range(max(0,OPT['sl']-(7 if OPT['tr'] and not OPT['b0'] else 0))): e('s_nop 3')
    q.extend(tr(2))
    if OPT['ro2']: q.extend(ld2r[:2]); ld2r=ld2r[2:]
    N=OPT['nb']
    fl=f'buffer_load_dword {v(PM)}, {v(T0)}, {s(WS,4)}, {s(sFlagB)} offen sc1'
    for i in range(N-1): e(fl); e(f's_nop {7+OPT["pp"]}')
    q.append(f'{L}_fb2:')
    for i in range(8):
        e(fl)
        if OPT['pp']: e(f's_nop {OPT["pp"]-1}')
        e(f's_waitcnt vmcnt({N-1})'); e(f'v_cmp_gt_u32 vcc, {s(sStep)}, {v(PM)}'); e(f's_cbranch_vccz {L}_fb3')
    e(f's_add_u32 {s(sSpinF)}, {s(sSpinF)}, 1'); e(f's_cmp_gt_u32 {s(sSpinF)}, {LIM}'); e(f's_cbranch_scc0 {L}_fb2')
    q.append(f'{L}_fb3:')
    q.extend(tr(3)); q.extend(ld2r)
    q.extend(tailc+[f's_sub_u32 {s(sT+3)}, {s(sStep)}, 1', f'v_mov_b32 {v(FLG)}, {s(sT+3)}', 's_mov_b64 exec, 1',
        f'buffer_store_dword {v(FLG)}, off, {s(WS,4)}, {s(sKvmF)} sc1', 's_mov_b64 exec, -1']+tail2)
    i=q.index(f'{L}_fb:')
    alt=fix(head+q[:i],f'alt{mode}{par}',False)
    q=alt[alt.index(f'{L}_w:'):]+q[i:]
    e=q.append
    if OPT['sync']: q.extend(kv_wait(L+'_kb'))
    q.append(f'{L}_r0:')
    e('s_mov_b64 exec, -1')
    q.append(f'{L}_r0l:')
    q.extend(ld1); e(f's_add_u32 {s(sSpin)}, {s(sSpin)}, 1'); e(f's_cmp_gt_u32 {s(sSpin)}, {LIM}'); e(f's_cbranch_scc1 {L}_r0g')
    q.extend(['s_waitcnt vmcnt(6)',f'v_cmp_u_f32 vcc, {v(X)}, {v(X+4)}',f's_cbranch_vccnz {L}_r0l', f'{L}_r0g:'])
    q.extend(zero(QA,4)+['s_nop 0'])
    for j in range(4): e(f's_waitcnt vmcnt({6-2*j})'); e(RM(j))
    q.extend(['s_nop 7', chk]+fin+[f's_cbranch_scc1 {L}_r0e', f's_cbranch_vccnz {L}_r0l', f'{L}_r0e:', mpub]+fst+(['s_barrier'] if OPT['b0'] else [])+tr(3)+tr(4)+[f's_branch {L}_p1ok'])
    q.append(f'{L}_r1:')
    e(f's_add_u32 {s(sSpin)}, {s(sSpin)}, 256'); e(f's_cmp_gt_u32 {s(sSpin)}, {LIM}'); e(f's_cbranch_scc1 {L}_p1ok')
    q.extend(zero(QA,4)+ld1); q.extend(['s_waitcnt vmcnt(0)',RM(0)]); e(f's_branch {L}_p2')
    q.append(f'{L}_r2:')
    e(f's_add_u32 {s(sSpinU)}, {s(sSpinU)}, 1'); e(f's_cmp_gt_u32 {s(sSpinU)}, {LIM}'); e(f's_cbranch_scc1 {L}_r2x')
    e(f's_cmp_eq_u32 {s(sStep)}, 0'); e(f's_cbranch_scc1 {L}_r2x')
    e(f's_mov_b32 m0, {L_MEM}'); e(f's_cmp_lg_u32 {s(sW)}, 1')
    e('s_waitcnt lgkmcnt(0)'); e('s_barrier'); e(f's_cbranch_scc1 {L}_r2b')
    q.extend(ld2); q.append(f'{L}_r2b:'); e('s_nop 7'); q.extend(zero(ONES,4,'-1')); q.extend(sr); q.extend(xs); q.extend(zero(QA,8))
    e('s_waitcnt vmcnt(0) lgkmcnt(0)'); e('s_barrier')
    for c_ in range(4): e(mrd(c_))
    e(f's_branch {L}_re')
    return body, q

def window_rp(d):
    L,p,sc,mode,par,two,tr,trdump,kw,kc,sr,xs,xz,W,rstore,sp,verbose=[d[k] for k in 'L p sc mode par two tr trdump kw kc sr xs xz W rstore sp verbose'.split()]
    e=p.append
    p.extend(tr(0)+tr(1,True))
    e(f's_cbranch_scc1 {L}_w')
    head=list(p)
    p.extend(kw+kc('_ka'))
    e(f'ds_read_b128 {v(QA+4,4)}, {v(L16)} offset:{L_SEL}')
    p.extend(sr+trdump())
    for i in range(OPT['d1']-(8 if OPT['tr'] else 0)): e('s_nop 3')
    p.extend(tr(2))
    ld1=[f'buffer_load_dwordx4 {v(X+4*j,4)}, {v(L16)}, {s(WS,4)}, {s(sPin+(j>>2))} offen offset:{(j&3)*1024} sc1' for j in range(8)]
    pre=h2_addr(T0,PM)+[f's_add_u32 {s(sT+4)}, {s(sMemIn0)}, {s(sWoff)}', f's_add_u32 {s(sT+5)}, {s(sMemIn1)}, {s(sWoff)}', f's_add_u32 m0, {s(sWoff)}, {L_MEM+4096}',
         f'v_add_u32 {v(PM)}, {s(sWoff)}, {v(L16)}', f's_sub_u32 {s(sT+3)}, {s(sStep)}, 1', f'v_mov_b32 {v(FLG)}, {s(sT+3)}']
    p.extend(ld1); p.extend(pre); e(W(0))
    p.append(f'{L}_p1:')
    RM=lambda j: f'{MF32} {v(QA,4)}, {v(QA+4,4)}, {v(X+4*j,4)}, '+(v(QA,4) if j else '0')
    p.extend(['s_waitcnt vmcnt(7)',RM(0),'s_waitcnt vmcnt(6)',f'v_cmp_u_f32 vcc, {v(X)}, {v(X+4)}',RM(1),'s_waitcnt vmcnt(5)',RM(2),f's_cbranch_vccnz {L}_r0', f'{L}_r0x:']+tr(3))
    for j in range(3,8):
        e(f's_waitcnt vmcnt({7-j})'); e(RM(j))
    e(f'v_cvt_pk_bf16_f32 {v(M)}, {v(QA)}, {v(QA+1)}')
    e(f'v_cvt_pk_bf16_f32 {v(M+1)}, {v(QA+2)}, {v(QA+3)}')
    e(f'buffer_store_dwordx2 {v(M,2)}, {v(MPUB)}, {s(WS,4)}, {s(sMemPub)} offen{sc}')
    e(f'v_cmp_u_f32 vcc, {v(QA)}, {v(QA)}')
    p.extend(tr(4))
    e(f's_cbranch_vccnz {L}_r1')
    p.append(f'{L}_p1ok:')
    p.extend(xz)
    for i in range(OPT['dp']): e('s_nop 3')
    p.append(f'{L}_b1:')
    body=fix(p,f'step{mode}{par}',verbose)
    e=body.append
    e('s_barrier')
    N=OPT['np']
    pl=f'buffer_load_dwordx4 {v(STG,4)}, {v(T0)}, {s(WS,4)}, {s(sT+4)} offen sc1'
    dm=f'buffer_load_dwordx4 {v(T0)}, {s(WS,4)}, {s(sT+5)} offen sc1 lds'
    def nops(k):
        o=[]
        while k>0: o.append(f's_nop {min(k,16)-1}'); k-=16
        return o
    for i in range(N-1): e(pl); body.extend(nops(OPT['ps']))
    e(pl); e(f's_waitcnt vmcnt({N-1})'); e(f'v_cmp_u_f32 vcc, {v(STG)}, {v(STG+2)}'); e(f's_cbranch_vccnz {L}_pl')
    body.append(f'{L}_plx:')
    e(f'ds_write_b128 {v(PM)}, {v(STG,4)} offset:{L_MEM}'); e(dm); body.extend(tr(6))
    if sp==0: e(rstore(0))
    body.extend(kv_addr()); e(f's_branch L_ch_{mode}{1-par if two else 0}')
    q=[f'{L}_w:',f's_sleep {OPT["sw"]}']+kw; e=q.append
    e(f's_cmp_lg_u32 {s(sW)}, 3'); e(f's_cbranch_scc1 {L}_w3')
    e(f'buffer_store_dwordx2 {v(ONES,2)}, {v(MPUB)}, {s(WS,4)}, {s(sMemRst)} offen{sc}')
    q.extend([f'{L}_w3:']+kc('_kb')+trdump()+sr+xz+pre)
    e(f's_branch {L}_b1')
    alt=fix(head+q,f'alt{mode}{par}',False)
    q=alt[alt.index(f'{L}_w:'):]; e=q.append
    q.append(f'{L}_pl:')
    for i in range(4):
        e(pl); e(f's_waitcnt vmcnt({N-1})'); e(f'v_cmp_u_f32 vcc, {v(STG)}, {v(STG+2)}'); e(f's_cbranch_vccz {L}_plx')
    e(f's_add_u32 {s(sSpinF)}, {s(sSpinF)}, 1'); e(f's_cmp_gt_u32 {s(sSpinF)}, {LIM}'); e(f's_cbranch_scc0 {L}_pl'); e(f's_branch {L}_plx')
    if OPT['sync']: q.extend(kv_wait(L+'_ka')+kv_wait(L+'_kb'))
    q.append(f'{L}_r0:')
    e(f's_add_u32 {s(sSpin)}, {s(sSpin)}, 1'); e(f's_cmp_gt_u32 {s(sSpin)}, {LIM}'); e(f's_cbranch_scc1 {L}_r0x')
    q.extend(ld1); e(f's_branch {L}_p1')
    q.append(f'{L}_r1:')
    e(f's_add_u32 {s(sSpin)}, {s(sSpin)}, 256'); e(f's_cmp_gt_u32 {s(sSpin)}, {LIM}'); e(f's_cbranch_scc1 {L}_p1ok')
    q.extend(ld1); e(f's_branch {L}_p1')
    q.append(f'{L}_r2:')
    e(f's_add_u32 {s(sSpinU)}, {s(sSpinU)}, 1'); e(f's_cmp_gt_u32 {s(sSpinU)}, {LIM}'); e(f's_cbranch_scc1 {L}_r2x')
    e(f's_cmp_eq_u32 {s(sStep)}, 0'); e(f's_cbranch_scc1 {L}_r2x')
    e('s_waitcnt vmcnt(0) lgkmcnt(0)'); e('s_barrier')
    q.extend(pre); e(dm); e(f's_add_u32 m0, {s(sWoff)}, {L_MEM}'); e('s_nop 0'); e(dm.replace(s(sT+5),s(sT+4)))
    q.extend(kv_addr()+zero(ONES,4,'-1')); q.extend(sr); q.extend(xs); q.extend(zero(QA,8))
    e('s_waitcnt vmcnt(0) lgkmcnt(0)'); e('s_barrier')
    for c_ in range(4): e(mrd(c_))
    e(f's_branch {L}_re')
    return body, q

def chain_body(timing=False, verbose=False):
    A=Asm()
    pro=prologue(timing)
    F0,f0=step('F',0,verbose); F1,f1=step('F',1); S0,s0=step('S',0); S1,s1=step('S',1)
    if not OPT['rp']: check(pro+F0+F0,'chainF')
    for x in ((pro,F0,F1,f0,f1,S0,S1,s0,s1) if (OPT['tr'] or OPT['solo']) else (pro,F0,f0,S0,s0)): A.extend(x)
    f=['L_ch_fin:']+zero(KA,16)+['s_waitcnt vmcnt(3) lgkmcnt(0)','s_barrier','L_ch_fin2:']+[mrd(c) for c in range(8)]
    f[1:1]=['s_waitcnt lgkmcnt(0)']
    for c in range(8):
        for m_,acc in (('k',KA),('v',VA)):
            for t in range(2): f.append(smf(acc+4*t,M+4*c,unit((m_,c),t)))
    f+=[f'v_add_f32 {v(KA+2*i)}, {v(KA+2*i)}, {v(KA+2*i+1)}' for i in range(8)]
    f+=[f'v_cmp_u_f32 vcc, {v(KA)}, {v(KA+2)}', f'v_cvt_pk_bf16_f32 {v(KVQ+1)}, {v(KA)}, {v(KA+4)}', f'v_cvt_pk_bf16_f32 {v(KVQ+3)}, {v(KA+2)}, {v(KA+6)}',
        f'v_cvt_pk_bf16_f32 {v(KVQ)}, {v(VA)}, {v(VA+2)}', f'v_cvt_pk_bf16_f32 {v(KVQ+2)}, {v(VA+4)}, {v(VA+6)}', 's_cbranch_vccz L_ch_last',
        f's_add_u32 {s(sSpinU)}, {s(sSpinU)}, 1', f's_cmp_gt_u32 {s(sSpinU)}, {LIM}', 's_cbranch_scc1 L_ch_last',
        f's_mov_b32 m0, {L_MEM}', f's_cmp_lg_u32 {s(sW)}, 1', 's_barrier', 's_cbranch_scc1 L_ch_fin3']
    f+=[f'buffer_load_dwordx4 {v(H2A)}, {s(WS,4)}, {s(sMemIn0)} offen offset:{1024*j} sc1 lds' for j in range(4)]
    f+=[f's_mov_b32 m0, {L_MEM+4096}','s_nop 0']+[f'buffer_load_dwordx4 {v(H2A)}, {s(WS,4)}, {s(sMemIn1)} offen offset:{1024*j} sc1 lds' for j in range(4)]
    f+=['L_ch_fin3:']+zero(KA,16)+['s_waitcnt vmcnt(0)','s_barrier','s_branch L_ch_fin2']
    A.extend(fix(f,'fin'))
    A.label('L_ch_last')
    A(f'buffer_store_dwordx4 {v(KVQ,4)}, {v(L16)}, {s(WS,4)}, {s(sKvm)} offen sc1')
    if timing:
        A(f'''s_waitcnt vmcnt(0)
        s_lshl_b32 {s(sSpinU)}, {s(sSpinU)}, 16
        s_add_u32 {s(sSpin)}, {s(sSpin)}, {s(sSpinU)}
        s_memrealtime {s(sTime+4,2)}
        s_memtime {s(sTime+8,2)}
        s_waitcnt lgkmcnt(0)
        s_sub_u32 {s(sT)}, {s(sTime+2)}, {s(sTime)}
        s_sub_u32 {s(sT+1)}, {s(sTime+4)}, {s(sTime+2)}
        s_sub_u32 {s(sT+2)}, {s(sTime+8)}, {s(sTime+6)}
        v_mov_b32 v4, {s(sT)}
        v_mov_b32 v5, {s(sT+1)}
        v_mov_b32 v6, {s(sT+2)}
        v_mov_b32 v7, {s(sSpin)}
        s_lshl_b32 {s(sT)}, {s(sH)}, 2
        s_add_u32 {s(sT)}, {s(sT)}, {s(sW)}
        s_lshl_b32 {s(sT)}, {s(sT)}, 5
        s_add_u32 {s(sT)}, {s(sT)}, 16384
        v_mov_b32 v0, {s(sT)}
        s_sub_u32 s80, s80, {s(sTime)}
        s_sub_u32 s82, s82, {s(sTime)}
        s_sub_u32 s84, s84, {s(sTime)}
        s_sub_u32 s86, s86, {s(sTime)}
        v_mov_b32 v8, s80
        v_mov_b32 v9, s82
        v_mov_b32 v10, s84
        v_mov_b32 v11, s86
        s_mov_b64 exec, 1
        global_store_dwordx4 v0, v[8:11], {s(DBG,2)} offset:16
        global_store_dwordx4 v0, v[4:7], {s(DBG,2)}''')
    return A

def kernel_text(name, body):
    return f'''.globl {name}
.p2align 8
.type {name},@function
{name}:
{body.text()}    s_endpgm
'''
def kernel_desc(name, vgpr=512, accum=256, sgpr=102):
    return f'''.p2align 6
.amdhsa_kernel {name}
  .amdhsa_next_free_vgpr {vgpr}
  .amdhsa_next_free_sgpr {sgpr}
  .amdhsa_accum_offset {accum}
  .amdhsa_group_segment_fixed_size 0
  .amdhsa_kernarg_size 120
  .amdhsa_user_sgpr_count 2
  .amdhsa_user_sgpr_kernarg_segment_ptr 1
  .amdhsa_system_sgpr_workgroup_id_x 1
  .amdhsa_float_denorm_mode_32 3
.end_amdhsa_kernel
'''

if __name__=='__main__':
    import sys
    for x in sys.argv:
        if '=' in x: OPT[x.split('=')[0]]=int(x.split('=')[1])
    A=Asm()
    if 'spread' in sys.argv:
        A(f's_cmp_ge_u32 s2, 32\ns_cbranch_scc1 L_exit\ns_mov_b32 {s(sH)}, s2')
    else:
        A(f's_cmp_ge_u32 s2, 256\ns_cbranch_scc1 L_exit\ns_and_b32 s3, s2, 7\ns_cmp_lg_u32 s3, 0\ns_cbranch_scc1 L_exit\ns_lshr_b32 {s(sH)}, s2, 3')
    A.extend(chain_body(timing=True, verbose=True))
    A.label('L_exit')
    txt='; @launch kernel=chain_kernel grid=(256,1,1) block=(256,1,1) lds=163840\n.amdgcn_target "amdgcn-amd-amdhsa--gfx950"\n.text\n'
    txt+=kernel_text('chain_kernel',A)+'.section .rodata,"a"\n'+kernel_desc('chain_kernel')
    open(sys.argv[1],'w').write(txt)
```

```python
import sys
from asmlib import *
from layout import *
import bulk as B, chain as C
prof='prof' in sys.argv
C.OPT['sync']=1
for x in sys.argv:
    if '=' in x:
        k,val=x.split('='); (C.OPT if k in C.OPT else B.OPT)[k]=int(val)
sB=B.sB
_n=[0]
def stamp(slot,who,reg,sw,dbg):
    if not prof: return []
    _n[0]+=1; L=f'L_st{_n[0]}'
    return [f's_cmp_lg_u32 {s(reg)}, {who}',f's_cbranch_scc1 {L}',f's_cmp_lg_u32 {s(sw)}, 0',f's_cbranch_scc1 {L}','s_memrealtime s[90:91]','s_waitcnt lgkmcnt(0)',
            'v_mov_b32 v11, s90',f'v_mov_b32 v123, {160+4*slot}','s_mov_b64 exec, 1',f'global_store_dword v123, v11, {s(dbg,2)}','s_mov_b64 exec, -1',L+':']
bs=lambda slot,who: stamp(slot,who,sB,B.sW,B.DBG)
B.STAMP=bs
A=Asm()
A(f'''s_cmp_ge_u32 s2, 256
s_cbranch_scc1 L_exit
s_and_b32 s3, s2, 7
s_cmp_lg_u32 s3, 0
s_cbranch_scc1 L_bulk
s_lshr_b32 {s(C.sH)}, s2, 3''')
A.extend(C.chain_body(timing=prof))
A.label('L_exit'); A('s_endpgm'); A.label('L_bulk')
perm=[int(c) for c in '%07d'%B.OPT.get('perm',3042156)]
tab=sum(r<<(4*(x+1)) for x,r in enumerate(perm))
A(f's_lshl_b32 s3, s3, 2\ns_lshr_b32 s3, {hex(tab)}, s3\ns_and_b32 s3, s3, 15\ns_lshl_b32 s3, s3, 5\ns_lshr_b32 {s(sB)}, s2, 3\ns_add_u32 {s(sB)}, {s(sB)}, s3')
A.extend(B.roles()); A.extend(fix(B.common())); A.extend(bs(0,0))
A(f's_cmp_ge_u32 {s(sB)}, 64\ns_cbranch_scc1 L_grp')
A.extend(B.p1_setup()); A.extend(bs(3,0)); A.extend(bs(4,2))
A.extend(B.p1_main(True)); A.extend(bs(5,0)); A.extend(bs(6,2)); A('s_branch L_p2')
A.label('L_grp')
A(f's_cmp_ge_u32 {s(sB)}, 96\ns_cbranch_scc1 L_ln')
A.extend(B.mod_phase(True)); A('s_branch L_p2')
A.label('L_ln'); A(f's_cmp_lg_u32 {s(sB)}, 223\ns_cbranch_scc1 L_ln2')
A.extend(B.flag_init()); A.label('L_ln2'); A.extend(B.ln_phase(True)); A.extend(bs(2,96)); A.label('L_p2')
if B.OPT.get('kill'):
    A(f's_and_b32 s3, s2, 7\ns_lshr_b32 s3, {B.OPT["kill"]}, s3\ns_and_b32 s3, s3, 1\ns_cmp_eq_u32 s3, 0\ns_cbranch_scc1 L_p2k\ns_endpgm\nL_p2k:')
A.extend(B.p2_setup(True)); A.extend(B.p2_loop('F',True)); A.extend(B.p2_loop('S',True))
kn=NAME+'_kernel'
if 'wrap' in sys.argv:
    pre=['s_memrealtime s[90:91]','s_load_dwordx2 s[88:89], s[0:1], 112','s_lshl_b32 s3, s2, 3','s_add_u32 s3, s3, %d'%(120<<20),'v_mov_b32 v1, s3','s_waitcnt lgkmcnt(0)','v_mov_b32 v2, s90','global_store_dword v1, v2, s[88:89]']
    end=lambda: ['s_waitcnt vmcnt(0)','s_mov_b64 exec, -1','s_memrealtime s[90:91]','s_load_dwordx2 s[88:89], s[0:1], 112','s_lshl_b32 s3, s2, 3','s_add_u32 s3, s3, %d'%((120<<20)+4),'v_mov_b32 v1, s3','s_waitcnt lgkmcnt(0)','v_mov_b32 v2, s90','global_store_dword v1, v2, s[88:89]','s_endpgm']
    L=[]
    for l in A.lines: L+= end() if l=='s_endpgm' else [l]
    A.lines=pre+L
    def st(name,off):
        S=Asm(); S.extend(['s_memrealtime s[90:91]','s_load_dwordx2 s[88:89], s[0:1], 112','v_mov_b32 v1, %d'%((121<<20)+off),'s_waitcnt lgkmcnt(0)','v_mov_b32 v2, s90','global_store_dword v1, v2, s[88:89]']); return C.kernel_text(name,S)
    txt=f'; @launch kernel=a_kernel grid=(1,1,1) block=(64,1,1) lds=0\n; @launch kernel=m_kernel grid=(256,1,1) block=(256,1,1) lds=163840\n; @launch kernel=b_kernel grid=(1,1,1) block=(64,1,1) lds=0\n; @launch kernel=c_kernel grid=(1,1,1) block=(64,1,1) lds=0\n.amdgcn_target "amdgcn-amd-amdhsa--gfx950"\n.text\n'
    txt+=st('a_kernel',0)+st('b_kernel',4)+st('c_kernel',8)+C.kernel_text('m_kernel',A)+'.section .rodata,"a"\n'+C.kernel_desc('m_kernel')+''.join(C.kernel_desc(k,32,32) for k in ('a_kernel','b_kernel','c_kernel'))
    open(sys.argv[1],'w').write(txt); sys.exit(0)
txt='; @launch grid=(256,1,1) block=(256,1,1) lds=163840\n.amdgcn_target "amdgcn-amd-amdhsa--gfx950"\n.text\n'
txt+=C.kernel_text(kn,A)+'.section .rodata,"a"\n'+C.kernel_desc(kn)
open(sys.argv[1],'w').write(txt)
```

```python
from asmlib import *
from layout import *
import math, struct
MF32='v_mfma_f32_16x16x32_bf16'; MF16='v_mfma_f32_16x16x16_bf16'; SMF='v_smfmac_f32_16x16x64_bf16'
f2u=lambda x: struct.unpack('<I',struct.pack('<f',x))[0]
WS=4; SRD=8; DBG=12; sB=14; sW=15; sMask=16; sSpin=17
sP=52
PX,PWQ,PWK,PWV,PWO,PW1,PW2,PC,PWM,POUT=[sP+2*i for i in (0,2,3,4,5,8,9,10,11,12)]
sT=40
sHd=21; sR=22; sZ=39
LN=0; N=1; Gv=2; L16=3
LIM='0x400000'
OPT=dict(d2=2, pf2=0, pf1=0, d1p=7, alt=0, hb=20, nl=4, dl=0, lp=8, pn=2, rd=4)
STAMP=lambda slot,who: []
def common():
    return [f's_load_dwordx16 {s(sP,16)}, s[0:1], 0', f's_load_dwordx8 {s(sP+16,8)}, s[0:1], 64', f's_load_dwordx2 {s(sP+24,2)}, s[0:1], 96',
        f's_load_dwordx2 {s(DBG,2)}, s[0:1], 104', f's_load_dwordx2 {s(WS,2)}, s[0:1], 112',
        'v_lshrrev_b32 v1, 6, v0', f'v_and_b32 {v(LN)}, 63, v0', f'v_readfirstlane_b32 {s(sW)}, v1',
        f's_mov_b32 {s(WS+2)}, {WS_BYTES}', f's_mov_b32 {s(WS+3)}, 0x20000', f's_mov_b32 {s(SRD+3)}, 0x20000',
        f's_mov_b32 {s(sMask)}, 0xffff0000', f's_mov_b32 {s(sSpin)}, 0',
        f'v_and_b32 {v(N)}, 15, {v(LN)}', f'v_lshrrev_b32 {v(Gv)}, 4, {v(LN)}', f'v_lshlrev_b32 {v(L16)}, 4, {v(LN)}', 's_waitcnt lgkmcnt(0)']
NR=2; NG=5
def roles():
    return [f's_lshr_b32 {s(sHd)}, {s(sB)}, 1', f's_and_b32 {s(sR)}, {s(sB)}, 1', f's_sub_u32 {s(sZ)}, {s(sB)}, 64']
def srd(p,size): return [f's_mov_b32 {s(SRD)}, {s(p)}', f's_mov_b32 {s(SRD+1)}, {s(p+1)}', f's_mov_b32 {s(SRD+2)}, {size}']
def rnd(a,b,t): return [f'v_cvt_pk_bf16_f32 {v(t)}, {v(a)}, {v(b)}', f'v_lshlrev_b32 {v(a)}, 16, {v(t)}', f'v_and_b32 {v(b)}, {s(sMask)}, {v(t)}']
def unp(d,src): return [f'v_and_b32 {v(d+1)}, {s(sMask)}, {v(src)}', f'v_lshlrev_b32 {v(d)}, 16, {v(src)}']
def xg(op,a,t):
    return [f'v_mov_b32 {v(t)}, {v(a)}', f'v_permlane32_swap_b32 {v(a)}, {v(t)}', f'{op} {v(a)}, {v(a)}, {v(t)}',
            f'v_mov_b32 {v(t)}, {v(a)}', f'v_permlane16_swap_b32 {v(a)}, {v(t)}', f'{op} {v(a)}, {v(a)}, {v(t)}']
def xrow(a):
    return [f'v_add_f32_dpp {v(a)}, {v(a)}, {v(a)} row_ror:{k} row_mask:0xf bank_mask:0xf' for k in (1,2,4,8)]
_u=[0]
def poll(addr_v, soff, cmp_s, r, off=0, sleep=0):
    _u[0]+=1; k=_u[0]
    return [f'L_po{k}:', f'buffer_load_dword {v(r)}, {v(addr_v)}, {s(WS,4)}, {soff} offen offset:{off} sc1', f's_add_u32 {s(sSpin)}, {s(sSpin)}, 1',
            f's_cmp_gt_u32 {s(sSpin)}, {LIM}', f's_cbranch_scc1 L_pe{k}', 's_waitcnt vmcnt(0)', f'v_cmp_gt_u32 vcc, {cmp_s}, {v(r)}']+(
            [f's_cbranch_vccz L_pe{k}', f's_sleep {sleep}', f's_branch L_po{k}'] if sleep else [f's_cbranch_vccnz L_po{k}'])+[f'L_pe{k}:', 's_waitcnt vmcnt(0)']

def pollp(addr_v, soff, cmp_s, r, N=4):
    _u[0]+=1; k=_u[0]
    ld=f'buffer_load_dword {v(r)}, {v(addr_v)}, {s(WS,4)}, {soff} offen sc1 ;stamp'
    o=[]
    for i in range(N-1): o+=[ld,'s_nop 11']
    o+=[f'L_po{k}:', ld, f's_add_u32 {s(sSpin)}, {s(sSpin)}, 1', f's_cmp_gt_u32 {s(sSpin)}, {LIM}', f's_cbranch_scc1 L_pe{k}', f's_waitcnt vmcnt({N-1}) ;stamp',
        f'v_cmp_gt_u32 vcc, {cmp_s}, {v(r)}', f's_cbranch_vccnz L_po{k}', f'L_pe{k}:']
    return o

def mod_phase(sync):
    p=[]; e=p.append
    W_=16; C_=48; AC=56; A0=4; A1=5; T=6
    p.append('L_mod_top:')
    e(f'v_lshrrev_b32 {v(A0)}, 2, {v(LN)}'); e(f's_lshl_b32 {s(sT)}, {s(sW)}, 4'); e(f'v_add_u32 {v(A0)}, {s(sT)}, {v(A0)}')
    e(f'v_lshlrev_b32 {v(A1)}, 1, {v(A0)}')
    e(f'v_mul_u32_u24 {v(A0)}, 6144, {v(A0)}'); e(f'v_and_b32 {v(T)}, 3, {v(LN)}'); e(f'v_lshl_add_u32 {v(A0)}, {v(T)}, 4, {v(A0)}')
    p+=srd(PWM,512*6144)
    for i in range(8): e(f'global_load_ushort {v(C_+i)}, {v(A1)}, {s(PC,2)} offset:{128*i}')
    e(f's_lshl_b32 {s(sT)}, {s(sZ)}, 6')
    for i in range(8):
        e(f'buffer_load_dwordx4 {v(W_+4*i,4)}, {v(A0)}, {s(SRD,4)}, {s(sT)} offen'); e(f's_add_u32 {s(sT)}, {s(sT)}, {64*6144}')
    for i in range(8): e(f'v_lshlrev_b32 {v(C_+i)}, 16, {v(C_+i)}')
    for i in range(8): e(f'v_mul_f32 {v(AC+i)}, {hex(f2u(-math.log2(math.e)))}, {v(C_+i)}')
    for i in range(8): e(f'v_exp_f32 {v(AC+i)}, {v(AC+i)}')
    for i in range(8): e(f'v_add_f32 {v(AC+i)}, 1.0, {v(AC+i)}')
    for i in range(8): e(f'v_rcp_f32 {v(AC+i)}, {v(AC+i)}')
    for i in range(8): e(f'v_mul_f32 {v(C_+i)}, {v(C_+i)}, {v(AC+i)}')
    for i in range(0,8,2): p+=rnd(C_+i,C_+i+1,T)
    for i in range(8):
        for d in range(4):
            p+=unp(8,W_+4*i+d)
            for k in range(2):
                e(f'v_mul_f32 {v(AC+2*d+k)}, {v(C_+i)}, {v(8+k)}' if i==0 else f'v_fmac_f32 {v(AC+2*d+k)}, {v(C_+i)}, {v(8+k)}')
    for k in (4,8):
        for i in range(8): e(f'v_add_f32_dpp {v(AC+i)}, {v(AC+i)}, {v(AC+i)} row_ror:{k} row_mask:0xf bank_mask:0xf')
    e(f's_lshl_b32 {s(sT)}, {s(sW)}, 9'); e(f'v_and_b32 {v(T)}, 3, {v(LN)}'); e(f'v_lshlrev_b32 {v(T)}, 5, {v(T)}')
    e(f'v_lshl_add_u32 {v(T)}, {v(Gv)}, 7, {v(T)}'); e(f'v_add_u32 {v(T)}, {s(sT)}, {v(T)}')
    e(f'ds_write_b128 {v(T)}, {v(AC,4)}'); e(f'ds_write_b128 {v(T)}, {v(AC+4,4)} offset:16')
    e('s_waitcnt lgkmcnt(0)'); e('s_barrier')
    e(f's_cmp_lg_u32 {s(sW)}, 0'); e('s_cbranch_scc1 L_mod_end')
    e(f'v_and_b32 {v(A0)}, 31, {v(LN)}'); e(f'v_lshrrev_b32 {v(A1)}, 5, {v(LN)}'); e(f'v_lshlrev_b32 {v(T)}, 2, {v(A0)}'); e(f'v_lshl_add_u32 {v(T)}, {v(A1)}, 10, {v(T)}')
    for i in range(8): e(f'ds_read_b32 {v(AC+i)}, {v(T)} offset:{128*i}')
    for i in range(1,8): e(f'v_add_f32 {v(AC)}, {v(AC)}, {v(AC+i)}')
    e(f'v_mov_b32 {v(T)}, {v(AC)}'); e(f'v_permlane32_swap_b32 {v(AC)}, {v(T)}'); e(f'v_add_f32 {v(AC)}, {v(AC)}, {v(T)}')
    e(f'v_cvt_pk_bf16_f32 {v(AC)}, {v(AC)}, {v(AC)}')
    e(f'v_lshlrev_b32 {v(A0)}, 1, {v(A0)}'); e(f's_lshl_b32 {s(sT)}, {s(sZ)}, 6'); e(f's_add_u32 {s(sT)}, {s(sT)}, {MOD_OFF}')
    e(f'buffer_store_short {v(AC)}, {v(A0)}, {s(WS,4)}, {s(sT)} offen sc1')
    if sync:
        e('s_waitcnt vmcnt(0)')
        e(f's_cmp_lt_u32 {s(sZ)}, 32'); e(f's_cselect_b32 {s(sT)}, 0, 4')
        e(f'v_mov_b32 {v(A0)}, {s(sT)}'); e(f'v_mov_b32 {v(A1)}, 1'); e('s_mov_b64 exec, 1')
        e(f'global_atomic_add {v(A0)}, {v(A1)}, {s(DBG,2)} offset:128'); e('s_mov_b64 exec, -1')
    p.append('L_mod_end:')
    e('s_barrier')
    if STAMP(0,0):
        e(f's_cmp_ge_u32 {s(sZ)}, 32'); e('s_cbranch_scc1 L_mod_ns'); p+=STAMP(1,64); p.append('L_mod_ns:')
    e(f's_add_u32 {s(sZ)}, {s(sZ)}, 32'); e(f's_cmp_lt_u32 {s(sZ)}, 96'); e('s_cbranch_scc1 L_mod_top')
    return fix(p,'mod')

def dbg_wait(off,val,r):
    _u[0]+=1; k=_u[0]
    return [f'v_mov_b32 {v(r+1)}, {off}', f'L_po{k}:', f'global_load_dword {v(r)}, {v(r+1)}, {s(DBG,2)} sc1', f's_add_u32 {s(sSpin)}, {s(sSpin)}, 1',
            f's_cmp_gt_u32 {s(sSpin)}, {LIM}', f's_cbranch_scc1 L_pe{k}', 's_waitcnt vmcnt(0)', f'v_cmp_gt_u32 vcc, {val}, {v(r)}', f's_cbranch_vccnz L_po{k}', f'L_pe{k}:', 's_waitcnt vmcnt(0)']

def ln_phase(sync):
    p=[]; e=p.append
    XR=16; XF=32; MD=64; A0=4; A1=5; T=6; S=7; Q=8; R_=10; MU=14; sTile=20
    e(f's_sub_u32 {s(sTile)}, {s(sB)}, 96')
    p+=srd(PX,2048*1024)
    e(f'v_lshlrev_b32 {v(A0)}, 10, {v(N)}'); e(f'v_lshl_add_u32 {v(A0)}, {v(Gv)}, 4, {v(A0)}')
    e(f's_lshl_b32 {s(sT)}, {s(sTile)}, 14'); e(f's_lshl_b32 {s(sT+1)}, {s(sW)}, 8'); e(f's_add_u32 {s(sT)}, {s(sT)}, {s(sT+1)}')
    for i in range(4): e(f'buffer_load_dwordx4 {v(XR+4*i,4)}, {v(A0)}, {s(SRD,4)}, {s(sT)} offen offset:{64*i}')
    if OPT['pf1']:
        e(f's_lshl_b32 {s(sT+3)}, {s(sTile)}, 2'); e(f's_add_u32 {s(sT+3)}, {s(sT+3)}, {s(sW)}'); e(f's_lshl_b32 {s(sT+3)}, {s(sT+3)}, 13'); e(f's_add_u32 {s(sT+4)}, {s(sT+3)}, 4096')
        for ptr in (PWK,PWV,PWQ):
            p+=srd(ptr,4<<20)
            for i in range(8): e(f'buffer_load_dwordx4 {v(100,4)}, {v(L16)}, {s(SRD,4)}, {s(sT+3+(i>>2))} offen offset:{1024*(i&3)}')
    e(f'v_lshlrev_b32 {v(A1)}, 4, {v(N)}'); e(f's_lshl_b32 {s(sT+2)}, {s(sW)}, 2'); e(f'v_add_u32 {v(A0)}, {s(sT+2)}, {v(A1)}')
    for i in range(16): p+=unp(XF+2*i,XR+i)
    e(f'v_add_f32 {v(S)}, {v(XF)}, {v(XF+1)}')
    for i in range(2,32): e(f'v_add_f32 {v(S)}, {v(S)}, {v(XF+i)}')
    def cross(off):
        o=xg('v_add_f32',S,T)+[f'ds_write_b32 {v(A0)}, {v(S)} offset:{off}','s_waitcnt lgkmcnt(0)','s_barrier',f'ds_read_b128 {v(R_,4)}, {v(A1)} offset:{off}',
           f'v_add_f32 {v(S)}, {v(R_)}, {v(R_+1)}', f'v_add_f32 {v(T)}, {v(R_+2)}, {v(R_+3)}', f'v_add_f32 {v(S)}, {v(S)}, {v(T)}', f'v_mul_f32 {v(S)}, {hex(f2u(1/512))}, {v(S)}']
        return o
    p+=cross(0)
    e(f'v_mov_b32 {v(MU)}, {v(S)}')
    for i in range(32):
        e(f'v_sub_f32 {v(T)}, {v(XF+i)}, {v(MU)}'); e(f'v_mul_f32 {v(S)}, {v(T)}, {v(T)}' if i==0 else f'v_fmac_f32 {v(S)}, {v(T)}, {v(T)}')
    p+=cross(256)
    p+=rnd(MU,S,T)
    e(f'v_add_f32 {v(S)}, {hex(f2u(1e-5))}, {v(S)}'); p+=rnd(S,Q,T)[:2]
    e(f'v_sqrt_f32 {v(S)}, {v(S)}'); p+=rnd(S,Q,T)[:2]
    e(f'v_rcp_f32 {v(S)}, {v(S)}')
    for i in range(0,32,2):
        e(f'v_sub_f32 {v(XF+i)}, {v(XF+i)}, {v(MU)}'); e(f'v_sub_f32 {v(XF+i+1)}, {v(XF+i+1)}, {v(MU)}'); p+=rnd(XF+i,XF+i+1,T)
        e(f'v_mul_f32 {v(XF+i)}, {v(XF+i)}, {v(S)}'); e(f'v_mul_f32 {v(XF+i+1)}, {v(XF+i+1)}, {v(S)}'); p+=rnd(XF+i,XF+i+1,T)
    p+=[]
    if sync: p+=dbg_wait(128,32,R_)
    p+=[]
    e(f'v_lshlrev_b32 {v(A0)}, 4, {v(Gv)}'); e(f's_add_u32 {s(sT+1)}, {s(sT+1)}, {MOD_OFF}')
    for i in range(4): e(f'buffer_load_dwordx4 {v(MD+4*i,4)}, {v(A0)}, {s(WS,4)}, {s(sT+1)} offen offset:{1024+64*i} sc1')
    for i in range(4): e(f'buffer_load_dwordx4 {v(MD+16+4*i,4)}, {v(A0)}, {s(WS,4)}, {s(sT+1)} offen offset:{64*i} sc1')
    e(f's_lshl_b32 {s(sT)}, {s(sTile)}, 14'); e(f's_lshl_b32 {s(sT+2)}, {s(sW)}, 12'); e(f's_add_u32 {s(sT)}, {s(sT)}, {s(sT+2)}'); e(f's_add_u32 {s(sT)}, {s(sT)}, {H_OFF}')
    for i in range(16):
        a_=XF+2*i
        p+=unp(Q,MD+i); e(f'v_add_f32 {v(Q)}, 1.0, {v(Q)}'); e(f'v_add_f32 {v(Q+1)}, 1.0, {v(Q+1)}'); p+=rnd(Q,Q+1,T)
        e(f'v_mul_f32 {v(a_)}, {v(a_)}, {v(Q)}'); e(f'v_mul_f32 {v(a_+1)}, {v(a_+1)}, {v(Q+1)}'); p+=rnd(a_,a_+1,T)
        p+=unp(Q,MD+16+i); e(f'v_add_f32 {v(a_)}, {v(a_)}, {v(Q)}'); e(f'v_add_f32 {v(a_+1)}, {v(a_+1)}, {v(Q+1)}')
        e(f'v_cvt_pk_bf16_f32 {v(XR+i)}, {v(a_)}, {v(a_+1)}')
        if i%4==3: e(f'buffer_store_dwordx4 {v(XR+i-3,4)}, {v(L16)}, {s(WS,4)}, {s(sT)} offen offset:{1024*(i//4)} sc1')
    p+=[]
    if sync:
        p+=dbg_wait(136,1,R_)
        e('s_barrier')
        e(f's_lshl_b32 {s(sT)}, {s(sTile)}, 2'); e(f's_add_u32 {s(sT)}, {s(sT)}, {BF_OFF+BF_H}'); e(f'v_mov_b32 {v(T)}, 1')
        e(f's_cmp_lg_u32 {s(sW)}, 0'); e('s_cbranch_scc1 L_ln_end'); e('s_mov_b64 exec, 1')
        e(f'buffer_store_dword {v(T)}, off, {s(WS,4)}, {s(sT)} sc1'); e('s_mov_b64 exec, -1')
        p.append('L_ln_end:')
    return fix(p,'ln')

def flag_init():
    p=[]; e=p.append
    for i in range(4): e(f'v_mov_b32 {v(8+i)}, 0')
    e(f's_lshl_b32 {s(sT)}, {s(sW)}, 12'); e(f's_add_u32 {s(sT)}, {s(sT)}, {BF_OFF}')
    for i in range(4): e(f'buffer_store_dwordx4 {v(8,4)}, {v(L16)}, {s(WS,4)}, {s(sT)} offen offset:{1024*i} sc1')
    e('s_waitcnt vmcnt(0)'); e('s_barrier')
    e(f'v_mov_b32 v8, 136'); e('v_mov_b32 v9, 1'); e('s_mov_b64 exec, 1'); e(f'global_store_dword v8, v9, {s(DBG,2)} sc1'); e('s_mov_b64 exec, -1')
    return fix(p,'fi')

def wstream(blocks, sRing, D=8, pf=None, lead=0):
    p=[]; e=p.append; ng=len(blocks)//4; assert len(blocks)%4==0
    VQ=[]
    def pre(gi):
        if pf and gi<ng:
            for l in pf(gi):
                e(l)
                if l.startswith('buffer'): VQ.append('p')
    def issue(gi):
        pre(gi+lead)
        for b in range(4):
            su,vo,so,_=blocks[4*gi+b]
            if su: p.extend(su)
            e(f's_add_u32 m0, {s(sRing)}, {((4*gi+b)%32)*1024}'); p.extend(so(sT+7))
            e(f'buffer_load_dwordx4 {v(vo)}, {s(SRD,4)}, {s(sT+7)} offen lds'); VQ.append(gi)
    for gi in range(lead): pre(gi)
    for gi in range(min(D,ng)): issue(gi)
    head=list(p); p.clear()
    for gi in range(ng):
        e(f's_waitcnt vmcnt({len(VQ)-1-max(k for k,t in enumerate(VQ) if t==gi)})')
        for b in range(4):
            for dst,tra,off in blocks[4*gi+b][3]: e(f'ds_read_b64_tr_b16 {dst}, {v(tra)} offset:{((4*gi+b)%32)*1024+off}')
        e('s_waitcnt lgkmcnt(0)')
        if gi+D<ng: issue(gi+D)
    return head,p

sSeg=23; sRing=24; sCnt=25
VO=4; TRA=5; TRB=6; FA=7
def wreg(m,t,ks):
    i=(m*2+t)*64+4*ks
    return ('a',i) if i<256 else ('v',128+i-256)
sHsrc=26; sBuf=27; sNext=32; sGot=33
def hdma():
    o=[f's_lshl_b32 {s(sHsrc)}, {s(sNext)}, 15', f's_lshl_b32 {s(sT)}, {s(sW)}, 13', f's_add_u32 {s(sHsrc)}, {s(sHsrc)}, {s(sT)}', f's_add_u32 {s(sHsrc)}, {s(sHsrc)}, {H_OFF}',
        f's_add_u32 m0, {s(sBuf)}, {s(sT)}', f's_add_u32 {s(sT+1)}, {s(sHsrc)}, 4096']
    o+=[f'buffer_load_dwordx4 {v(L16)}, {s(WS,4)}, {s(sHsrc)} offen offset:{1024*i} sc1 lds' for i in range(4)]
    o+=['s_add_u32 m0, m0, 4096','s_nop 0']+[f'buffer_load_dwordx4 {v(L16)}, {s(WS,4)}, {s(sT+1)} offen offset:{1024*i} sc1 lds' for i in range(4)]
    return o
def p1_setup():
    p=[]; e=p.append
    A0,A1,T0_,T1_,U0,U1,r,c_,t=[112+i for i in range(9)]
    e(f'v_lshlrev_b32 {v(t)}, 1, {v(Gv)}'); e(f'v_xor_b32 {v(t)}, {v(t)}, {v(N)}'); e(f'v_lshlrev_b32 {v(t)}, 4, {v(t)}'); e(f'v_lshl_add_u32 {v(A0)}, {v(Gv)}, 13, {v(t)}')
    e(f's_lshr_b32 {s(sT)}, {s(sW)}, 1'); e(f's_lshl_b32 {s(sT)}, {s(sT)}, 18'); e(f's_and_b32 {s(sT+1)}, {s(sW)}, 1'); e(f's_lshl_b32 {s(sT+1)}, {s(sT+1)}, 15'); e(f's_add_u32 {s(sT)}, {s(sT)}, {s(sT+1)}')
    e(f's_lshl_b32 {s(sT+1)}, {s(sHd)}, 8'); e(f's_add_u32 {s(sT)}, {s(sT)}, {s(sT+1)}'); e(f'v_add_u32 {v(A0)}, {s(sT)}, {v(A0)}'); e(f'v_xor_b32 {v(A1)}, 128, {v(A0)}')
    e(f's_lshl_b32 {s(sRing)}, {s(sW)}, 12'); e(f's_add_u32 {s(sRing)}, {s(sRing)}, 32768')
    e(f'v_lshrrev_b32 {v(r)}, 2, {v(N)}'); e(f'v_and_b32 {v(c_)}, 3, {v(N)}'); e(f'v_and_b32 {v(t)}, 1, {v(Gv)}'); e(f'v_lshl_add_u32 {v(t)}, {v(t)}, 2, {v(r)}')
    e(f's_lshl_b32 {s(sT)}, {s(sW)}, 1'); e(f'v_xor_b32 {v(t)}, {s(sT)}, {v(t)}')
    e(f'v_lshlrev_b32 {v(T0_)}, 10, {v(Gv)}'); e(f'v_lshl_add_u32 {v(T0_)}, {v(r)}, 8, {v(T0_)}'); e(f'v_lshl_add_u32 {v(T0_)}, {v(t)}, 5, {v(T0_)}'); e(f'v_lshl_add_u32 {v(T0_)}, {v(c_)}, 3, {v(T0_)}')
    e(f'v_add_u32 {v(T0_)}, 32768, {v(T0_)}'); e(f'v_xor_b32 {v(T1_)}, 32, {v(T0_)}'); e(f'v_add_u32 {v(U0)}, 65536, {v(T0_)}'); e(f'v_add_u32 {v(U1)}, 65536, {v(T1_)}')
    e(f's_mov_b32 {s(sNext)}, {s(sR)}'); e(f's_mov_b32 {s(sBuf)}, 0'); e(f's_mov_b32 {s(sGot)}, 0'); e(f'v_lshlrev_b32 {v(FA)}, 3, {v(LN)}'); e('v_mov_b32 v9, 136')
    def stream(order,tag):
        q=[]; e=q.append; VQ=[]; D=OPT['d1p']
        bt=[(m,c) for m in order for c in range(8)]
        def issue(bi):
            m,c=bt[bi]; q.extend(srd((PWK,PWV,PWQ)[m],4<<20))
            for i in range(4):
                e(f's_add_u32 m0, {s(sRing)}, {(bi%8)*16384+1024*i}'); e(f's_mov_b32 {s(sT+7)}, {(64*c+8*i)*8192}')
                e(f'buffer_load_dwordx4 {v(A1 if i&1 else A0)}, {s(SRD,4)}, {s(sT+7)} offen lds'); VQ.append(bi)
        wt=lambda x: f's_waitcnt vmcnt({len(VQ)-1-max(k for k,t_ in enumerate(VQ) if t_==x)})'
        for bi in range(D): issue(bi)
        for bi in range(24):
            m,c=bt[bi]
            e(wt(bi)); e('s_barrier')
            if bi>=1 and bi-1+8<24 and D==8: issue(bi-1+8)
            elif D<8 and bi+D<24: issue(bi+D)
            for b_ in range(4):
                for t_ in range(2):
                    pf,b0=wreg(m,t_,2*c+(b_>>1)); tra=[[T0_,T1_],[U0,U1]][(bi%8)>>2][t_]
                    e(f'ds_read_b64_tr_b16 {R(pf,b0+2*(b_&1),2)}, {v(tra)} offset:{(bi%4)*16384+b_*4096}')
            if bi==4: e(f'global_load_dword v8, v9, {s(DBG,2)} sc1 ;stamp'); VQ.append('i')
            if bi==OPT['hb']:
                e(wt('i')); e('v_cmp_eq_u32 vcc, 0, v8'); e(f's_cbranch_vccz L_p1_in{tag}'); q.extend(dbg_wait(136,1,8)); q.append(f'L_p1_in{tag}:')
                e(f's_mov_b32 {s(sT)}, {BF_OFF+BF_H}'); e(f'buffer_load_dwordx2 v[8:9], {v(FA)}, {s(WS,4)}, {s(sT)} offen sc1 ;stamp'); VQ.append('h')
            e('s_waitcnt lgkmcnt(0)')
        e('s_waitcnt vmcnt(0)')
        return q
    if OPT['alt']:
        e(f's_cmp_lg_u32 {s(sR)}, 0'); e('s_cbranch_scc1 L_p1_alt')
        p+=stream((0,1,2),'a')+['s_branch L_p1_ld','L_p1_alt:']+stream((1,0,2) if OPT['alt']==1 else (2,1,0),'b')+['L_p1_ld:']
    else: p+=stream((0,1,2),'a')
    return fix(p,'p1a')

def p1_main(sync):
    p=[]; e=p.append
    AC=16; HF=64; OUT=96; sKo=28; sVo=29; sQo=30; sFl=31
    acc=lambda m,t,mt: AC+((m*2+t)*2+mt)*4
    e('s_barrier')
    if sync:
        e('v_min_u32 v8, v8, v9'); e('v_cmp_gt_u32 vcc, 1, v8'); e('s_cbranch_vccz L_p1_hok')
        e(f's_mov_b32 {s(sT)}, {BF_OFF+BF_H}')
        pl=poll(FA,s(sT),'1',8); pl[1]=pl[1].replace('dword v8','dwordx2 v[8:9]'); pl[6:6]=['v_min_u32 v8, v8, v9']
        p+=pl+['L_p1_hok:']
    e(f's_mov_b32 {s(sSeg)}, {s(sR)}'); e(f's_mov_b32 {s(sNext)}, {s(sR)}'); e(f's_mov_b32 {s(sBuf)}, 0'); e(f's_mov_b32 {s(sCnt)}, 0')
    e(f's_lshl_b32 {s(sFl)}, {s(sHd)}, 7'); e(f's_lshl_b32 {s(sT)}, {s(sR)}, 2'); e(f's_add_u32 {s(sFl)}, {s(sFl)}, {s(sT)}'); e(f's_add_u32 {s(sFl)}, {s(sFl)}, {BF_OFF+BF_KV}')
    p+=hdma()
    e(f's_mov_b32 {s(sT+5)}, 0')
    for i in range(4): e(f'v_mov_b32 v{12+i}, -1')
    p.append('L_p1_loop:')
    e(f's_cmp_ge_u32 {s(sSeg)}, 64'); e(f's_cselect_b32 {s(sT+4)}, 0, {s(sCnt)}'); e(f's_cmp_lt_u32 {s(sT+4)}, {OPT["nl"]}'); e('s_cbranch_scc0 L_p1_lag')
    e('s_waitcnt vmcnt(0)'); e(f's_mov_b32 {s(sT+5)}, {s(sCnt)}')
    p.append('L_p1_lag:')
    e('s_waitcnt vmcnt(7)'); e('s_barrier')
    if sync:
        e(f's_cmp_lg_u32 {s(sW)}, 0'); e('s_cbranch_scc1 L_p1_nf'); e(f'v_mov_b32 {v(FA)}, {s(sT+5)}'); e('s_mov_b64 exec, 1')
        e(f'buffer_store_dword {v(FA)}, off, {s(WS,4)}, {s(sFl)} sc1'); e('s_mov_b64 exec, -1'); p.append('L_p1_nf:')
    e(f's_mov_b32 {s(sT+5)}, {s(sCnt)}')
    if STAMP(0,0):
        e(f's_cmp_lg_u32 {s(sCnt)}, 0'); e('s_cbranch_scc1 L_p1_s0'); p+=[]; p.append('L_p1_s0:')
        e(f's_cmp_lg_u32 {s(sCnt)}, 1'); e('s_cbranch_scc1 L_p1_s1'); p+=[]; p.append('L_p1_s1:')
    e(f's_cmp_ge_u32 {s(sSeg)}, 64'); e('s_cbranch_scc1 L_p1_end')
    e(f'v_add_u32 {v(VO)}, {s(sBuf)}, {v(L16)}')
    e(f's_xor_b32 {s(sBuf)}, {s(sBuf)}, 32768'); e(f's_add_u32 {s(sNext)}, {s(sSeg)}, {NR}')
    if OPT['pf2']:
        e(f's_mul_i32 {s(sT)}, {s(sCnt)}, 896'); e(f's_lshl_b32 {s(sT+1)}, {s(sB)}, 2'); e(f's_add_u32 {s(sT)}, {s(sT)}, {s(sT+1)}'); e(f's_add_u32 {s(sT)}, {s(sT)}, {s(sW)}')
        e(f's_cmp_lt_u32 {s(sT)}, 5888'); e(f's_cselect_b64 {s(SRD,2)}, {s(PW1,2)}, {s(PW2,2)}'); e(f's_cselect_b32 {s(sT+1)}, 0, 1792')
        e(f's_add_u32 {s(sT+1)}, {s(sT+1)}, 4096'); e(f's_mov_b32 {s(SRD+2)}, {1792*1024}')
        e(f's_cmp_lt_u32 {s(sT)}, 4096'); e(f's_cselect_b64 {s(SRD,2)}, {s(PWO,2)}, {s(SRD,2)}'); e(f's_cselect_b32 {s(sT+1)}, 0, {s(sT+1)}'); e(f's_cselect_b32 {s(SRD+2)}, {4<<20}, {s(SRD+2)}')
        e(f's_sub_u32 {s(sT)}, {s(sT)}, {s(sT+1)}'); e(f's_lshl_b32 {s(sT)}, {s(sT)}, 10')
        e(f'buffer_load_dwordx4 {v(8,4)}, {v(L16)}, {s(SRD,4)}, {s(sT)} offen')
    e(f's_cmp_ge_u32 {s(sNext)}, 64'); e('s_cbranch_scc1 L_p1_nd')
    p+=hdma()
    p.append('L_p1_nd:')
    hr=lambda ks,mt: f'ds_read_b128 {v(HF+(ks%4)*8+4*mt,4)}, {v(VO)} offset:{(mt*16+ks)*1024}'
    for ks in range(2):
        for mt in range(2): e(hr(ks,mt))
    for ks in range(16):
        mm=[]
        for mt in range(2):
            hf=v(HF+(ks%4)*8+4*mt,4)
            for m in range(3):
                for t in range(2):
                    pf,b=wreg(m,t,ks); w_=R(pf,b,4); c_=v(acc(m,t,mt),4)
                    a_,b_=(hf,w_) if m==1 else (w_,hf)
                    mm.append(f'{MF32} {c_}, {a_}, {b_}, '+(c_ if ks else '0'))
        if ks+2<16:
            mm[1:1]=[hr(ks+2,0)]; mm[4:4]=[hr(ks+2,1)]
        p+=mm
    e(f's_lshl_b32 {s(sT)}, {s(sHd)}, 6'); e(f's_add_u32 {s(sT)}, {s(sT)}, {s(sSeg)}')
    e(f's_lshl_b32 {s(sT+1)}, {s(sW)}, 10'); e(f's_lshl_b32 {s(sKo)}, {s(sT)}, 14'); e(f's_add_u32 {s(sVo)}, {s(sKo)}, {KV_OFF+8192}')
    e(f's_add_u32 {s(sKo)}, {s(sKo)}, {s(sT+1)}'); e(f's_add_u32 {s(sKo)}, {s(sKo)}, {KV_OFF}')
    e(f's_lshl_b32 {s(sQo)}, {s(sT)}, 13'); e(f's_add_u32 {s(sQo)}, {s(sQo)}, {s(sT+1)}'); e(f's_add_u32 {s(sQo)}, {s(sQo)}, {Q_OFF}')
    e(f's_lshl_b32 {s(sT+1)}, {s(sW)}, 11'); e(f's_add_u32 {s(sVo)}, {s(sVo)}, {s(sT+1)}')
    e(f's_lshl_b32 {s(sT)}, {s(sT)}, 2'); e(f's_add_u32 {s(sT)}, {s(sT)}, {s(sW)}'); e(f's_lshl_b32 {s(sT)}, {s(sT)}, 10'); e(f's_add_u32 {s(sT)}, {s(sT)}, {KVM_OFF}')
    e(f'buffer_store_dwordx4 v[12:15], {v(L16)}, {s(WS,4)}, {s(sT)} offen sc1')
    k=0
    for m,so in ((0,sKo),(2,sQo)):
        for mt in range(2):
            for r in range(4): e(f'v_cvt_pk_bf16_f32 {v(OUT+4*k+r)}, {v(acc(m,0,mt)+r)}, {v(acc(m,1,mt)+r)}')
            e(f'buffer_store_dwordx4 {v(OUT+4*k,4)}, {v(L16)}, {s(WS,4)}, {s(so)} offen sc1'); k+=1
            if mt==0: e(f's_add_u32 {s(so)}, {s(so)}, 4096')
    for t in range(2):
        for mt in range(2):
            for j in range(2): e(f'v_cvt_pk_bf16_f32 {v(OUT+4*k+2*mt+j)}, {v(acc(1,t,mt)+2*j)}, {v(acc(1,t,mt)+2*j+1)}')
        e(f'buffer_store_dwordx4 {v(OUT+4*k,4)}, {v(L16)}, {s(WS,4)}, {s(sVo)} offen offset:{1024*t} sc1'); k+=1
    e(f's_add_u32 {s(sSeg)}, {s(sSeg)}, {NR}'); e(f's_add_u32 {s(sCnt)}, {s(sCnt)}, 1'); e('s_branch L_p1_loop')
    p.append('L_p1_end:')
    return fix(p,'p1')

sGrp=21; sJ=22; sGB=26; sEp=27; sFw=28; sFr=29; sKq=30; sCq=31; sM=32; sEh=33; sScale=34; sLg=35; sFast=36; sQf=37; sMf=38
WO=lambda ks: a(4*ks,4)
W1=lambda t,ks: a(128+64*t+4*ks,4)
W2=lambda ks: v(200+4*ks,4)
MODV=168
IDX=4; KW=5; FA2=6; HRD=7; HSR=8; PSA=9; MSK=10; ZR=12; NEG=152; HRD1=151
def p2_setup(sync):
    p=[]; e=p.append
    e('s_barrier')
    e(f's_lshr_b32 {s(sGrp)}, {s(sB)}, 5'); e(f's_add_u32 {s(sGrp)}, {s(sGrp)}, 5'); e(f's_cmp_ge_u32 {s(sGrp)}, 7'); e(f's_cselect_b32 {s(sT)}, 7, 0'); e(f's_sub_u32 {s(sGrp)}, {s(sGrp)}, {s(sT)}'); e(f's_and_b32 {s(sJ)}, {s(sB)}, 31')
    if sync: p+=dbg_wait(136,1,16)
    e(f's_lshl_b32 {s(sGB)}, {s(sGrp)}, 20'); e(f's_add_u32 {s(sGB)}, {s(sGB)}, {G_OFF}')
    e(f's_lshr_b32 {s(sKq)}, {s(sJ)}, 3'); e(f's_and_b32 {s(sCq)}, {s(sJ)}, 7'); e(f's_and_b32 {s(sM)}, {s(sW)}, 1'); e(f's_lshr_b32 {s(sEh)}, {s(sW)}, 1')
    e(f's_lshl_b32 {s(sFr)}, {s(sGrp)}, 8'); e(f's_add_u32 {s(sFr)}, {s(sFr)}, {BF_OFF+BF_GB}'); e(f's_lshl_b32 {s(sT)}, {s(sJ)}, 2'); e(f's_add_u32 {s(sFw)}, {s(sFr)}, {s(sT)}')
    e(f's_mov_b32 {s(sEp)}, 0'); e(f's_mov_b32 {s(sScale)}, {hex(f2u(128**-0.5))}'); e(f's_mov_b32 {s(sLg)}, {hex(f2u(math.log2(math.e)))}')
    e(f's_lshl_b32 {s(sRing)}, {s(sW)}, 15'); e(f's_add_u32 {s(sRing)}, {s(sRing)}, 32768')
    e(f's_lshl_b32 {s(sMf)}, {s(sJ)}, 7')
    e(f's_add_u32 {s(sQf)}, {s(sMf)}, {BF_OFF+BF_KV}'); e(f's_add_u32 {s(sMf)}, {s(sMf)}, {BF_OFF+BF_KVM}')
    for i in range(4): e(f'v_mov_b32 {v(NEG+i)}, -1')
    e(f's_lshl_b32 {s(sT)}, {s(sJ)}, 13'); e(f's_add_u32 {s(sT)}, {s(sT)}, {s(sGB)}'); e(f's_lshl_b32 {s(sT+1)}, {s(sW)}, 11'); e(f's_add_u32 {s(sT)}, {s(sT)}, {s(sT+1)}')
    for off in (G_P1,G_P2):
        e(f's_add_u32 {s(sT+1)}, {s(sT)}, {off}')
        for i in range(2): e(f'buffer_store_dwordx4 {v(NEG,4)}, {v(L16)}, {s(WS,4)}, {s(sT+1)} offen offset:{1024*i} sc1')
    e('s_waitcnt vmcnt(0)'); e('s_barrier')
    e(f's_getreg_b32 {s(sFast)}, hwreg(HW_REG_XCC_ID)'); e(f's_and_b32 {s(sFast)}, {s(sFast)}, 7'); e(f's_add_u32 {s(sFast)}, {s(sFast)}, 1')
    e(f'v_mov_b32 v16, {s(sFast)}'); e('s_mov_b64 exec, 1'); e(f'buffer_store_dword v16, off, {s(WS,4)}, {s(sFw)} offset:{BF_XC-BF_GB} sc1'); e('s_mov_b64 exec, -1')
    t1,t2,r,c_,g1=16,17,18,19,20
    e(f'v_and_b32 {v(t1)}, 1, {v(LN)}'); e(f'v_mul_u32_u24 {v(t1)}, 0xaaaa, {v(t1)}'); e(f'v_add_u32 {v(IDX)}, 0x4444, {v(t1)}')
    e(f'v_bfe_u32 {v(t1)}, {v(N)}, 1, 2'); e(f'v_lshlrev_b32 {v(KW)}, 2, {v(t1)}'); e(f'v_and_b32 {v(t1)}, 1, {v(N)}'); e(f'v_lshl_add_u32 {v(KW)}, {v(t1)}, 4, {v(KW)}')
    e(f'v_lshl_add_u32 {v(KW)}, {v(Gv)}, 6, {v(KW)}'); e(f'v_lshrrev_b32 {v(t1)}, 3, {v(N)}'); e(f'v_lshl_add_u32 {v(KW)}, {v(t1)}, 8, {v(KW)}')
    e(f's_lshl_b32 {s(sT)}, {s(sW)}, 9'); e(f'v_add_u32 {v(KW)}, {s(sT)}, {v(KW)}')
    e(f'v_and_b32 {v(FA2)}, 31, {v(LN)}'); e(f'v_lshlrev_b32 {v(FA2)}, 2, {v(FA2)}')
    e(f'v_lshrrev_b32 {v(t1)}, 1, {v(N)}'); e(f'v_xor_b32 {v(t1)}, {v(t1)}, {v(Gv)}'); e(f'v_lshlrev_b32 {v(t1)}, 4, {v(t1)}'); e(f'v_lshl_add_u32 {v(HRD)}, {v(N)}, 7, {v(t1)}')
    e(f's_lshl_b32 {s(sT)}, {s(sM)}, 14'); e(f'v_add_u32 {v(HRD)}, {s(sT)}, {v(HRD)}'); e(f'v_xor_b32 {v(HRD1)}, 64, {v(HRD)}')
    e(f'v_and_b32 {v(c_)}, 3, {v(LN)}'); e(f'v_and_b32 {v(t1)}, 7, {v(LN)}'); e(f'v_xor_b32 {v(t1)}, {v(t1)}, {v(Gv)}'); e(f'v_lshlrev_b32 {v(t1)}, 4, {v(t1)}')
    e(f'v_lshrrev_b32 {v(t2)}, 3, {v(LN)}'); e(f'v_lshl_add_u32 {v(HSR)}, {v(t2)}, 10, {v(t1)}'); e(f's_lshl_b32 {s(sT)}, {s(sM)}, 6'); e(f'v_xor_b32 {v(HSR)}, {s(sT)}, {v(HSR)}')
    e(f'v_lshlrev_b32 {v(PSA)}, 15, {v(Gv)}'); e(f'v_lshl_add_u32 {v(PSA)}, {v(N)}, 2, {v(PSA)}')
    e(f's_lshl_b32 {s(sT)}, {s(sJ)}, 8'); e(f's_lshl_b32 {s(sT+1)}, {s(sW)}, 6'); e(f's_add_u32 {s(sT)}, {s(sT)}, {s(sT+1)}'); e(f'v_add_u32 {v(PSA)}, {s(sT)}, {v(PSA)}')
    e(f'v_lshlrev_b32 {v(t1)}, 2, {v(Gv)}'); e(f'v_sub_u32 {v(MSK)}, {v(N)}, {v(t1)}')
    e(f'v_mov_b32 {v(ZR+1)}, 0')
    A64,B0,B1,A32,C0,C1,A32b=24,25,26,27,28,29,30
    e(f'v_lshrrev_b32 {v(r)}, 2, {v(N)}'); e(f'v_and_b32 {v(g1)}, 1, {v(Gv)}')
    e(f'v_lshlrev_b32 {v(B0)}, 8, {v(Gv)}'); e(f'v_lshl_add_u32 {v(B0)}, {v(c_)}, 3, {v(B0)}'); e(f'v_add_u32 {v(B0)}, {s(sRing)}, {v(B0)}')
    e(f'v_lshl_add_u32 {v(C0)}, {v(r)}, 5, {v(B0)}'); e(f'v_lshl_add_u32 {v(C0)}, {v(g1)}, 7, {v(C0)}'); e(f'v_xor_b32 {v(C1)}, 128, {v(C0)}')
    e(f'v_lshl_add_u32 {v(B0)}, {v(r)}, 6, {v(B0)}'); e(f'v_lshl_add_u32 {v(B0)}, {v(g1)}, 5, {v(B0)}'); e(f'v_xor_b32 {v(B1)}, 32, {v(B0)}')
    e(f'v_lshlrev_b32 {v(t1)}, 1, {v(g1)}'); e(f'v_xor_b32 {v(t1)}, {v(t1)}, {v(c_)}'); e(f'v_lshlrev_b32 {v(t1)}, 4, {v(t1)}')
    e(f'v_lshl_add_u32 {v(A64)}, {v(Gv)}, 3, {v(r)}'); e(f'v_mul_u32_u24 {v(A64)}, 3584, {v(A64)}'); e(f'v_add_u32 {v(A64)}, {v(A64)}, {v(t1)}')
    e(f's_min_u32 {s(sT)}, {s(sJ)}, 27'); e(f's_lshl_b32 {s(sT)}, {s(sT)}, 7'); e(f's_lshl_b32 {s(sT+1)}, {s(sEh)}, 6'); e(f's_add_u32 {s(sT)}, {s(sT)}, {s(sT+1)}'); e(f'v_add_u32 {v(A64)}, {s(sT)}, {v(A64)}')
    e(f'v_lshrrev_b32 {v(t1)}, 3, {v(N)}'); e(f'v_xor_b32 {v(t1)}, {v(t1)}, {v(g1)}'); e(f'v_bfe_u32 {v(t2)}, {v(N)}, 1, 2')
    e(f'v_lshl_add_u32 {v(t2)}, {v(t1)}, 4, {v(t2)}'); e(f'v_lshl_add_u32 {v(t2)}, {v(Gv)}, 2, {v(t2)}'); e(f'v_and_b32 {v(t1)}, 1, {v(N)}'); e(f'v_lshlrev_b32 {v(t1)}, 4, {v(t1)}')
    e(f'v_lshl_add_u32 {v(A32)}, {v(t2)}, 10, {v(t1)}')
    e(f's_lshl_b32 {s(sT)}, {s(sCq)}, 7'); e(f's_lshl_b32 {s(sT+1)}, {s(sW)}, 5'); e(f's_add_u32 {s(sT)}, {s(sT)}, {s(sT+1)}')
    e(f's_mul_i32 {s(sT+1)}, {s(sKq)}, {448*1024}'); e(f's_add_u32 {s(sT+1)}, {s(sT+1)}, {s(sT)}'); e(f'v_add_u32 {v(A32b)}, {s(sT+1)}, {v(A32)}')
    e(f's_lshl_b32 {s(sT+1)}, {s(sKq)}, 20'); e(f's_add_u32 {s(sT+1)}, {s(sT+1)}, {s(sT)}'); e(f'v_add_u32 {v(A32)}, {s(sT+1)}, {v(A32)}')
    blocks=[]
    mv=lambda o: (lambda reg: [f's_mov_b32 {s(reg)}, {o}'])
    for ks in range(32): blocks.append((srd(PWO,4<<20) if ks%4==0 else None, A32, mv(ks*32768), [(a(4*ks,2),C0,0),(a(4*ks+2,2),C1,0)]))
    for ks in range(16):
        for jh in range(2): blocks.append((srd(PW1,512*3584) if ks%2==0 and jh==0 else None, A64, mv((32*ks+4*jh)*3584), [(a(128+4*ks+2*jh,2),B0,0),(a(192+4*ks+2*jh,2),B1,0)]))
    for ks in range(16):
        kk=min(ks,13); blocks.append((srd(PW2,1792*1024) if ks%4==0 else None, A32b, mv(kk*32768), [(v(200+4*ks,2),C0,0),(v(202+4*ks,2),C1,0)] if ks<14 else []))
    head,rest=wstream(blocks,sRing,OPT['d2'])
    if OPT['dl']:
        e(f'v_mov_b32 v17, 0'); p+=poll(17,s(sQf),str(OPT['dl']),16)
    p+=head+rest
    if sync: p+=dbg_wait(132,64,16)
    e(f's_mov_b32 {s(sT)}, {MOD_OFF+2048}')
    for i in range(4): e(f'buffer_load_dwordx4 {v(16+4*i,4)}, {v(L16)}, {s(WS,4)}, {s(sT)} offen offset:{1024*i} sc1')
    for i in range(16): p+=unp(MODV+2*i,16+i)
    for i in range(16,24): e(f'v_add_f32 {v(MODV+i)}, 1.0, {v(MODV+i)}')
    for i in range(16,24,2): p+=rnd(MODV+i,MODV+i+1,16)
    p+=poll(FA2,s(sFr),'1',16,BF_XC-BF_GB)
    e(f'v_cmp_ne_u32 vcc, {s(sFast)}, v16')
    e(f's_cmp_ge_u32 {s(sGrp)}, 5'); e(f's_cselect_b32 {s(sT)}, 38, 0'); e(f's_add_u32 {s(sSeg)}, {s(sGrp)}, {s(sT)}')
    e(f's_lshl_b32 {s(sT)}, {s(sJ)}, 15'); e(f's_lshl_b32 {s(sT+1)}, {s(sW)}, 13'); e(f's_add_u32 {s(sT)}, {s(sT)}, {s(sT+1)}'); e(f's_add_u32 {s(sT)}, {s(sT)}, {s(sGB)}'); e(f's_add_u32 {s(sT+1)}, {s(sT)}, 4096')
    for i in range(8): e(f'buffer_load_dwordx4 v[20:23], {v(L16)}, {s(WS,4)}, {s(sT+(i>>2))} offen offset:{1024*(i&3)} sc1')
    e('s_waitcnt vmcnt(0)')
    p+=srd(PX,2048*1024)
    p+=STAMP(7,160)
    e('s_barrier')
    e('s_cbranch_vccnz L_p2_S')
    return fix(p,'p2s')

def p2_loop(mode, sync):
    sc=' sc1' if mode=='S' else ''
    L=f'L_p2_{mode}'
    p=[L+':']; e=p.append
    nb=[0]
    def gbar():
        nb[0]+=1; k=f'{L}_g{nb[0]}'
        return ['s_waitcnt vmcnt(0)','s_barrier', f's_add_u32 {s(sEp)}, {s(sEp)}, 1', f's_cmp_lg_u32 {s(sW)}, 0', f's_cbranch_scc1 {k}',
                f'v_mov_b32 v14, {s(sEp)}','s_mov_b64 exec, 1', f'buffer_store_dword v14, off, {s(WS,4)}, {s(sFw)}{sc}','s_mov_b64 exec, -1','s_nop 15']+pollp(FA2,s(sFr),s(sEp),PR)+STAMP(8+nb[0],128)+[k+':','s_barrier']
    QF=16; KF=32; VF=64; KV=80; S0=92; OA=104; T=120; MX=121; SUM=122; PXr=124; KM=128; XR=136; X1=140; PR=150
    p+=[]
    if sync:
        e(f's_and_b32 {s(sT)}, {s(sSeg)}, 1'); e(f's_lshl_b32 {s(sT)}, {s(sT)}, 2'); e(f's_add_u32 {s(sT)}, {s(sT)}, {s(sQf)}')
        e(f's_lshr_b32 {s(sT+1)}, {s(sSeg)}, 1'); e(f's_add_u32 {s(sT+1)}, {s(sT+1)}, 1')
        p+=poll(ZR+1,s(sT),s(sT+1),14)
    e(f's_lshl_b32 {s(sT)}, {s(sSeg)}, 5'); e(f's_add_u32 {s(sT)}, {s(sT)}, {s(sJ)}')
    e(f's_lshl_b32 {s(sT+6)}, {s(sT)}, 10')
    e(f's_lshl_b32 {s(sT)}, {s(sJ)}, 6'); e(f's_add_u32 {s(sT)}, {s(sT)}, {s(sSeg)}')
    e(f's_lshl_b32 {s(sT+1)}, {s(sT)}, 13'); e(f's_lshl_b32 {s(sT+2)}, {s(sM)}, 12'); e(f's_add_u32 {s(sT+1)}, {s(sT+1)}, {s(sT+2)}'); e(f's_add_u32 {s(sT+1)}, {s(sT+1)}, {Q_OFF}')
    e(f's_lshl_b32 {s(sT+2)}, {s(sT)}, 14'); e(f's_add_u32 {s(sT+2)}, {s(sT+2)}, {KV_OFF}'); e(f's_add_u32 {s(sT+3)}, {s(sT+2)}, 4096')
    e(f's_lshl_b32 {s(sT+4)}, {s(sEh)}, 12'); e(f's_add_u32 {s(sT+4)}, {s(sT+4)}, {s(sT+2)}'); e(f's_add_u32 {s(sT+4)}, {s(sT+4)}, 8192')
    e(f's_lshl_b32 {s(sT+5)}, {s(sT)}, 12'); e(f's_add_u32 {s(sT+5)}, {s(sT+5)}, {KVM_OFF}')
    for i in range(4): e(f'buffer_load_dwordx4 {v(QF+4*i,4)}, {v(L16)}, {s(WS,4)}, {s(sT+1)} offen offset:{1024*i} sc1')
    for i in range(8): e(f'buffer_load_dwordx4 {v(KF+4*i,4)}, {v(L16)}, {s(WS,4)}, {s(sT+2+(i>>2))} offen offset:{1024*(i&3)} sc1')
    for i in range(4): e(f'buffer_load_dwordx4 {v(VF+4*i,4)}, {v(L16)}, {s(WS,4)}, {s(sT+4)} offen offset:{1024*i} sc1')
    e(f'buffer_load_dwordx4 {v(XR,4)}, {v(L16)}, {s(SRD,4)}, {s(sT+6)} offen')
    for m in range(2):
        for ks in range(4): e(f'{MF32} {v(S0+4*m,4)}, {v(KF+16*m+4*ks,4)}, {v(QF+4*ks,4)}, '+(v(S0+4*m,4) if ks else '0'))
    e(f'v_mov_b64 {v(S0+8,2)}, 0'); e(f'v_mov_b64 {v(S0+10,2)}, 0')
    def sround(a_): return rnd(a_,a_+1,T)+[f'v_mul_f32 {v(a_)}, {s(sScale)}, {v(a_)}', f'v_mul_f32 {v(a_+1)}, {s(sScale)}, {v(a_+1)}']+rnd(a_,a_+1,T)
    for i in range(0,8,2): p+=sround(S0+i)
    e(f's_lshl_b32 {s(sT+1)}, {s(sM)}, 4'); e(f'v_add_u32 {v(T)}, {s(sT+1)}, {v(MSK)}'); e(f'v_mov_b32 {v(SUM)}, {hex(f2u(-999292928.0))}')
    for i in range(8):
        e(f'v_cmp_le_i32 vcc, {16*(i>>2)+(i&3)}, {v(T)}'); e(f'v_cndmask_b32 {v(S0+i)}, {v(SUM)}, {v(S0+i)}, vcc')
    e(f'v_max3_f32 {v(MX)}, {v(S0)}, {v(S0+1)}, {v(S0+2)}'); e(f'v_max3_f32 {v(MX)}, {v(MX)}, {v(S0+3)}, {v(S0+4)}'); e(f'v_max3_f32 {v(MX)}, {v(MX)}, {v(S0+5)}, {v(S0+6)}'); e(f'v_max_f32 {v(MX)}, {v(MX)}, {v(S0+7)}')
    p+=xg('v_max_f32',MX,T)
    for i in range(8): e(f'v_sub_f32 {v(S0+i)}, {v(S0+i)}, {v(MX)}')
    for i in range(8): e(f'v_mul_f32 {v(S0+i)}, {s(sLg)}, {v(S0+i)}')
    for i in range(8): e(f'v_exp_f32 {v(S0+i)}, {v(S0+i)}')
    e(f'v_add_f32 {v(SUM)}, {v(S0)}, {v(S0+1)}')
    for i in range(2,8): e(f'v_add_f32 {v(SUM)}, {v(SUM)}, {v(S0+i)}')
    if sync:
        e(f's_cmp_lg_u32 {s(sW)}, 0'); e(f's_cbranch_scc1 {L}_kw'); e(f's_max_u32 {s(sT+2)}, {s(sSeg)}, 1'); e(f's_sub_u32 {s(sT+2)}, {s(sT+2)}, 1'); e(f's_min_u32 {s(sT+2)}, {s(sT+2)}, 61')
        p+=poll(ZR+1,s(sMf),s(sT+2),PR,0,OPT['lp'])+[f'{L}_kw:','s_barrier']
    e(f's_lshl_b32 {s(sT+1)}, {s(sEh)}, 11'); e(f's_add_u32 {s(sT+1)}, {s(sT+1)}, {s(sT+5)}'); e(f's_lshl_b32 {s(sT+2)}, {s(sM)}, 2')
    p.append(f'{L}_kd:')
    for i in range(2): e(f'buffer_load_dwordx4 {v(KV+4*i,4)}, {v(L16)}, {s(WS,4)}, {s(sT+1)} offen offset:{1024*i} sc1')
    e(f's_add_u32 {s(sSpin)}, {s(sSpin)}, 1'); e(f's_cmp_gt_u32 {s(sSpin)}, {LIM}')
    e(f'v_max3_u32 {v(T)}, {v(KV)}, {v(KV+1)}, {v(KV+2)}'); e(f'v_max3_u32 {v(T)}, {v(T)}, {v(KV+3)}, {v(KV+4)}'); e(f'v_max3_u32 {v(T)}, {v(T)}, {v(KV+5)}, {v(KV+6)}'); e(f'v_max_u32 {v(T)}, {v(T)}, {v(KV+7)}')
    e(f'v_cmp_eq_u32 vcc, -1, {v(T)}'); e(f's_cbranch_scc1 {L}_kx'); e(f's_cbranch_vccnz {L}_kd')
    p.append(f'{L}_kx:')
    p+=STAMP(8,128)
    e(f's_cmp_eq_u32 {s(sM)}, 1'); e('s_cselect_b64 vcc, -1, 0')
    e(f'v_cndmask_b32 {v(KV+9)}, {v(KV+1)}, {v(KV+5)}, vcc'); e(f'v_cndmask_b32 {v(KV+11)}, {v(KV+3)}, {v(KV+7)}, vcc')
    e(f'ds_write2_b32 {v(KW)}, {v(KV+9)}, {v(KV+11)} offset0:0 offset1:8'); e('s_waitcnt lgkmcnt(0)'); e('s_barrier')
    for k in range(2): e(f'ds_read_b128 {v(KM+4*k,4)}, {v(L16)} offset:{1024*k}')
    for k in range(2): e(f'{SMF} {v(S0+8,4)}, {v(KM+4*k,4)}, {v(QF+8*k,8)}, {v(IDX)}')
    e(f'v_add_f32 {v(S0+8)}, {v(S0+8)}, {v(S0+9)}'); e(f'v_add_f32 {v(S0+9)}, {v(S0+10)}, {v(S0+11)}')
    p+=sround(S0+8)
    AL=S0+10; M2=S0+11
    e(f'v_max3_f32 {v(M2)}, {v(MX)}, {v(S0+8)}, {v(S0+9)}'); p+=xg('v_max_f32',M2,T)
    e(f'v_sub_f32 {v(S0+8)}, {v(S0+8)}, {v(M2)}'); e(f'v_sub_f32 {v(S0+9)}, {v(S0+9)}, {v(M2)}'); e(f'v_sub_f32 {v(AL)}, {v(MX)}, {v(M2)}')
    for i in range(8,11): e(f'v_mul_f32 {v(S0+i)}, {s(sLg)}, {v(S0+i)}')
    for i in range(8,11): e(f'v_exp_f32 {v(S0+i)}, {v(S0+i)}')
    e(f'v_add_f32 {v(M2)}, {v(S0+8)}, {v(S0+9)}'); e(f'v_fmac_f32 {v(M2)}, {v(AL)}, {v(SUM)}')
    p+=xg('v_add_f32',M2,T); e(f'v_rcp_f32 {v(M2)}, {v(M2)}')
    e(f'v_mul_f32 {v(AL)}, {v(AL)}, {v(M2)}')
    e(f'v_pk_mul_f32 {v(S0+8,2)}, {v(S0+8,2)}, {v(AL,2)} op_sel:[0,1]')
    for i in range(0,8,2): e(f'v_pk_mul_f32 {v(S0+i,2)}, {v(S0+i,2)}, {v(AL,2)} op_sel_hi:[1,0]')
    for i in range(4): e(f'v_cvt_pk_bf16_f32 {v(PXr+i)}, {v(S0+2*i)}, {v(S0+2*i+1)}')
    e(f'v_cvt_pk_bf16_f32 {v(ZR)}, {v(S0+8)}, {v(S0+9)}')
    for i in range(4): e(f'{MF32} {v(OA+4*i,4)}, {v(VF+4*i,4)}, {v(PXr,4)}, 0')
    for i in range(4): e(f'{MF16} {v(OA+4*i,4)}, {v(KV+2*i,2)}, {v(ZR,2)}, {v(OA+4*i,4)}')
    e(f's_lshl_b32 {s(sT+1)}, {s(sJ)}, 13'); e(f's_lshl_b32 {s(sT+2)}, {s(sEh)}, 12'); e(f's_add_u32 {s(sT+1)}, {s(sT+1)}, {s(sT+2)}'); e(f's_lshl_b32 {s(sT+2)}, {s(sM)}, 10')
    e(f's_add_u32 {s(sT+1)}, {s(sT+1)}, {s(sT+2)}'); e(f's_add_u32 {s(sT+1)}, {s(sT+1)}, {s(sGB)}')
    for k in range(2):
        for i in range(4): e(f'v_cvt_pk_bf16_f32 {v(QF+4*k+i)}, {v(OA+8*k+2*i)}, {v(OA+8*k+2*i+1)}')
        e(f'buffer_store_dwordx4 {v(QF+4*k,4)}, {v(L16)}, {s(WS,4)}, {s(sT+1)} offen offset:{G_O+2048*k}{sc}')
    p+=gbar()
    def gemm_part(src_lines, nks, wf, dst_off):
        o=list(src_lines)
        nfr=2*nks; per=nfr//4; nch=(per+3)//4
        sizes=[min(4,per-4*c) for c in range(nch)]
        base=0; starts=[]
        for c,sz in enumerate(sizes):
            starts.append(base)
            o+=[f's_mul_i32 {s(sT+2)}, {s(sW)}, {sz*1024}', f's_add_u32 {s(sT+2)}, {s(sT+2)}, {base*1024}', f's_add_u32 m0, {s(sT+2)}, 4096', f's_add_u32 {s(sT+2)}, {s(sT+2)}, {s(sT+1)}']
            o+=[f'buffer_load_dwordx4 {v(L16)}, {s(WS,4)}, {s(sT+2)} offen offset:{1024*i} sc1 lds' for i in range(sz)]
            base+=4*sz
        o+=[f'v_add_u32 {v(T)}, 4096, {v(L16)}']
        left=per
        for c,sz in enumerate(sizes):
            left-=sz
            o+=[f's_waitcnt vmcnt({left})','s_barrier']
            fr=list(range(starts[c],starts[c]+4*sz))
            rd=lambda f: f'ds_read_b128 {v(QF+4*(f%8),4)}, {v(T)} offset:{1024*f}'
            o+=[rd(f) for f in fr[:4]]
            for i,f in enumerate(fr):
                ac=v(OA+4*(f&1),4)
                o.append(f'{MF32} {ac}, {v(QF+4*(f%8),4)}, {wf(f>>1)}, '+(ac if f>1 else '0'))
                if i+4<len(fr): o.append(rd(fr[i+4]))
        o+=STAMP(16 if nks==32 else 19,128)
        for mt in range(2):
            for r in range(4):
                o+=[f's_add_u32 {s(sT+2)}, {s(sGB)}, {dst_off+(16*mt+r)*8192}', f'buffer_store_dword {v(OA+4*mt+r)}, {v(PSA)}, {s(WS,4)}, {s(sT+2)} offen{sc}']
        return o
    p+=gemm_part([f's_lshl_b32 {s(sT+1)}, {s(sKq)}, 16', f's_add_u32 {s(sT+1)}, {s(sT+1)}, {s(sGB)}'],32,WO,G_P1)
    nb[0]+=1
    def rowsum(off,tag):
        k_=f'{L}_{tag}'
        o=[f's_lshl_b32 {s(sT+1)}, {s(sJ)}, 13', f's_add_u32 {s(sT+1)}, {s(sT+1)}, {s(sGB)}', f's_add_u32 {s(sT+1)}, {s(sT+1)}, {off}', f's_add_u32 {s(sT+2)}, {s(sT+1)}, 4096', f'v_lshlrev_b32 {v(T)}, 1, {v(L16)}']+([f's_sleep {OPT["rd"]}'] if OPT['rd'] else [])+[k_+':']
        for k in range(4):
            for hf in range(2): o.append(f'buffer_load_dwordx4 {v(QF+8*k+4*hf,4)}, {v(T)}, {s(WS,4)}, {s(sT+1+(k>>1))} offen offset:{2048*(k&1)+16*hf} sc1')
        o+=[f's_add_u32 {s(sSpin)}, {s(sSpin)}, 4', f's_cmp_gt_u32 {s(sSpin)}, {LIM}']
        for k in range(1,4):
            for i in range(0,8,2): o.append(f'v_pk_add_f32 {v(QF+i,2)}, {v(QF+i,2)}, {v(QF+8*k+i,2)}')
        o+=[f'v_pk_add_f32 {v(QF+8,2)}, {v(QF,2)}, {v(QF+2,2)}', f'v_pk_add_f32 {v(QF+10,2)}, {v(QF+4,2)}, {v(QF+6,2)}', f'v_pk_add_f32 {v(QF+8,2)}, {v(QF+8,2)}, {v(QF+10,2)}',
            f'v_cmp_u_f32 vcc, {v(QF+8)}, {v(QF+9)}', f's_cbranch_scc1 {k_}x', f's_cbranch_vccnz {k_}', k_+'x:']
        for i in range(0,8,2): o+=rnd(QF+i,QF+i+1,T)
        return o
    repoison=[f'buffer_store_dwordx4 {v(NEG,4)}, {v(L16)}, {s(WS,4)}, {s(sT+1+(i>>2))} offen offset:{1024*(i&3)}{sc}' for i in range(8)]
    e(f's_cmp_lg_u32 {s(sW)}, 0'); e(f's_cbranch_scc1 {L}_n1')
    for i in range(4): p+=unp(X1+2*i,XR+i)
    p+=rowsum(G_P1,'ra')+STAMP(10,128)
    for i in range(0,8,2): e(f'v_pk_mul_f32 {v(QF+i,2)}, {v(QF+i,2)}, {v(MODV+i,2)}')
    for i in range(0,8,2): p+=rnd(QF+i,QF+i+1,T)
    for i in range(0,8,2): e(f'v_pk_add_f32 {v(X1+i,2)}, {v(X1+i,2)}, {v(QF+i,2)}')
    for i in range(0,8,2): p+=rnd(X1+i,X1+i+1,T)
    e(f'v_pk_add_f32 {v(QF,2)}, {v(X1,2)}, {v(X1+2,2)}'); e(f'v_pk_add_f32 {v(QF+2,2)}, {v(X1+4,2)}, {v(X1+6,2)}'); e(f'v_pk_add_f32 {v(QF,2)}, {v(QF,2)}, {v(QF+2,2)}'); e(f'v_add_f32 {v(MX)}, {v(QF)}, {v(QF+1)}')
    p+=xrow(MX)+xg('v_add_f32',MX,T); e(f'v_mul_f32 {v(MX)}, {hex(f2u(1/512))}, {v(MX)}')
    sub=lambda i: f'v_pk_add_f32 {v(QF+i,2)}, {v(X1+i,2)}, {v(MX-1,2)} op_sel:[0,1] neg_lo:[0,1] neg_hi:[0,1]'
    for i in range(0,8,2): e(sub(i))
    e(f'v_pk_mul_f32 {v(QF,2)}, {v(QF,2)}, {v(QF,2)}')
    for i in range(2,8,2): e(f'v_pk_fma_f32 {v(QF,2)}, {v(QF+i,2)}, {v(QF+i,2)}, {v(QF,2)}')
    e(f'v_add_f32 {v(SUM)}, {v(QF)}, {v(QF+1)}')
    p+=xrow(SUM)+xg('v_add_f32',SUM,T); e(f'v_mul_f32 {v(SUM)}, {hex(f2u(1/512))}, {v(SUM)}')
    p+=rnd(MX,SUM,T)
    e(f'v_add_f32 {v(SUM)}, {hex(f2u(1e-5))}, {v(SUM)}'); p+=rnd(SUM,SUM,T)[:2]
    e(f'v_sqrt_f32 {v(SUM)}, {v(SUM)}'); p+=rnd(SUM,SUM,T)[:2]
    e(f'v_rcp_f32 {v(SUM)}, {v(SUM)}')
    for i in range(0,8,2): e(sub(i))
    for i in range(0,8,2): p+=rnd(QF+i,QF+i+1,T)
    for i in range(0,8,2): e(f'v_pk_mul_f32 {v(QF+i,2)}, {v(QF+i,2)}, {v(SUM,2)} op_sel_hi:[1,0]')
    for i in range(0,8,2): p+=rnd(QF+i,QF+i+1,T)
    for i in range(0,8,2): e(f'v_pk_mul_f32 {v(QF+i,2)}, {v(QF+i,2)}, {v(MODV+16+i,2)}')
    for i in range(0,8,2): p+=rnd(QF+i,QF+i+1,T)
    for i in range(0,8,2): e(f'v_pk_add_f32 {v(QF+i,2)}, {v(QF+i,2)}, {v(MODV+8+i,2)}')
    for i in range(4): e(f'v_cvt_pk_bf16_f32 {v(QF+8+i)}, {v(QF+2*i)}, {v(QF+2*i+1)}')
    e(f's_lshl_b32 {s(sT+1)}, {s(sJ)}, 10'); e(f's_add_u32 {s(sT+1)}, {s(sT+1)}, {s(sGB)}'); e(f's_add_u32 {s(sT+1)}, {s(sT+1)}, {G_H2}')
    e(f'buffer_store_dwordx4 {v(QF+8,4)}, {v(L16)}, {s(WS,4)}, {s(sT+1)} offen{sc}')
    p+=STAMP(15,128)
    p.append(f'{L}_n1:')
    p+=gbar()
    e(f's_cmp_ge_u32 {s(sJ)}, 28'); e(f's_cbranch_scc1 {L}_n2')
    e(f's_lshl_b32 {s(sT+1)}, {s(sW)}, 13'); e(f's_add_u32 {s(sT+1)}, {s(sT+1)}, {s(sGB)}'); e(f's_add_u32 {s(sT+1)}, {s(sT+1)}, {G_H2}')
    e(f's_lshl_b32 {s(sT+2)}, {s(sEh)}, 14'); e(f's_lshl_b32 {s(sT+3)}, {s(sM)}, 10'); e(f's_add_u32 {s(sT+2)}, {s(sT+2)}, {s(sT+3)}')
    for i in range(8):
        e(f's_add_u32 m0, {s(sT+2)}, {4096+2048*i}'); e(f's_add_u32 {s(sT+3)}, {s(sT+1)}, {128*i}')
        e(f'buffer_load_dwordx4 {v(HSR)}, {s(WS,4)}, {s(sT+3)} offen sc1 lds')
    rd=lambda ks: f'ds_read_b128 {v(QF+4*(ks%8),4)}, {v(HRD1 if ks&1 else HRD)} offset:{4096+2048*(ks>>1)}'
    for c in range(2):
        e(f's_waitcnt vmcnt({4-4*c})'); e('s_barrier')
        if c==1: p+=STAMP(17,128)
        for ks in range(8*c,8*c+4): e(rd(ks))
        for ks in range(8*c,8*c+8):
            for t in range(2): e(f'{MF32} {v(OA+4*t,4)}, {W1(t,ks)}, {v(QF+4*(ks%8),4)}, '+(v(OA+4*t,4) if ks else '0'))
            if ks+4<8*c+8: e(rd(ks+4))
    e(f's_lshl_b32 {s(sT+1)}, {s(sJ)}, 12'); e(f's_lshl_b32 {s(sT+2)}, {s(sEh)}, 11'); e(f's_add_u32 {s(sT+1)}, {s(sT+1)}, {s(sT+2)}'); e(f's_lshl_b32 {s(sT+2)}, {s(sM)}, 10')
    e(f's_add_u32 {s(sT+1)}, {s(sT+1)}, {s(sT+2)}'); e(f's_add_u32 {s(sT+1)}, {s(sT+1)}, {s(sGB)}'); e(f's_add_u32 {s(sT+1)}, {s(sT+1)}, {G_F1}')
    for i in range(8): e(f'v_max_f32 {v(OA+i)}, 0, {v(OA+i)}')
    for i in range(4): e(f'v_cvt_pk_bf16_f32 {v(PXr+i)}, {v(OA+2*i)}, {v(OA+2*i+1)}')
    e(f'buffer_store_dwordx4 {v(PXr,4)}, {v(L16)}, {s(WS,4)}, {s(sT+1)} offen{sc}')
    p+=STAMP(18,128)
    p.append(f'{L}_n2:')
    p+=gbar()
    p+=gemm_part([f's_mul_i32 {s(sT+1)}, {s(sKq)}, 28672', f's_add_u32 {s(sT+1)}, {s(sT+1)}, {s(sGB)}', f's_add_u32 {s(sT+1)}, {s(sT+1)}, {G_F1}'],14,W2,G_P2)
    nb[0]+=1
    e(f's_cmp_lg_u32 {s(sW)}, 0'); e(f's_cbranch_scc1 {L}_n3')
    p+=rowsum(G_P2,'rb')+STAMP(13,128)
    for i in range(0,8,2): e(f'v_pk_mul_f32 {v(QF+i,2)}, {v(QF+i,2)}, {v(MODV+24+i,2)}')
    for i in range(0,8,2): p+=rnd(QF+i,QF+i+1,T)
    for i in range(0,8,2): e(f'v_pk_add_f32 {v(QF+i,2)}, {v(QF+i,2)}, {v(X1+i,2)}')
    for i in range(4): e(f'v_cvt_pk_bf16_f32 {v(QF+8+i)}, {v(QF+2*i)}, {v(QF+2*i+1)}')
    e(f'v_add_u32 {v(T)}, {s(sT+6)}, {v(L16)}')
    e(f'global_store_dwordx4 {v(T)}, {v(QF+8,4)}, {s(POUT,2)}')
    e(f's_cmp_ge_u32 {s(sSeg)}, 57'); e(f's_cbranch_scc1 {L}_n4')
    p+=repoison+[f'{L}_n4:']
    p+=STAMP(14,128)+STAMP(20,96)+STAMP(21,64)+STAMP(22,32)
    p.append(f'{L}_n3:')
    e(f's_lshl_b32 {s(sT+1)}, {s(sJ)}, 2'); e(f's_add_u32 {s(sT+1)}, {s(sT+1)}, {s(sW)}'); e(f's_lshl_b32 {s(sT+1)}, {s(sT+1)}, 11'); e(f's_add_u32 {s(sT+1)}, {s(sT+1)}, {s(sGB)}'); e(f's_add_u32 {s(sT+1)}, {s(sT+1)}, {G_P1}')
    e(f's_cmp_ge_u32 {s(sSeg)}, 57'); e(f's_cbranch_scc1 {L}_end')
    e('s_barrier')
    p+=repoison[:2]
    e(f's_cmp_lt_u32 {s(sSeg)}, 38'); e(f's_cselect_b32 {s(sT)}, 5, 7'); e(f's_add_u32 {s(sSeg)}, {s(sSeg)}, {s(sT)}'); e(f's_branch {L}')
    p.append(f'{L}_end:')
    e('s_endpgm')
    r=fix(p,'p2'+mode); check(r+r,'p2loop')
    return r
```

```python
from asmlib import *
from layout import *
import math, struct, re

T0=0; IDX=1; L16=2; LW=3; QW=4; QR=5; KW=6; OW=7; ORD=8; PST=9; MPUB=10; H2A=10; FLG=11
ONES=12; PM=16; KVQ=20; QA=24; KA=32; VA=40; M=48; X=80; STG=112; RES=128
L_MEM=0; L_Q=8192; L_K=10240; L_O=12288; L_SEL=14336; L_KX=16384; L_WV=24576; WREG=34816
WS=4; WSRD=8; DBG=12; sH=14; sW=15; sStep=16; sC=17; sKsrc=18; sVsrc=19; sKvm=20
sPst=21; sPin=23; sPrst=25; sPrstB=26; sPslot=27; sMemIn1=28; sSpinU=29; sPinB=30
sMemIn0=31; sMemB=32; sMemPub=33; sMemRst=34; sSlot=35; sSpin=36; sKdst=37; sKvF=38; sVdst=39; sKvmF=40; sReg=41
sT=42
sRo1=52; sRo2=56; sEx=50; sPtr=52; sRow=64; sTime=70; sOdd=88; sOne=92; sC2=94; sSpinF=96; sFlag=98; sFlagB=99; sWoff=100
LIM='0x80000'
SMF='v_smfmac_f32_16x16x64_bf16'; MF32='v_mfma_f32_16x16x32_bf16'; MF16='v_mfma_f32_16x16x16_bf16'
OPT=dict(sync=0, d1=20, sl=4, nb=6, pp=0, rep=2, hotkv=0, tr=0, solo=0, cut=99, drop=0, cutm=-1, show=0, knt=0, ek=1, sw1=0, ord=3, dc=7, fi=28, de=5, v1=1, pub=1, nt=1, rs=0, b0=1, ro1=0, ro2=0, rp=0, warm=1, sp=0, np=2, dp=0, ps=24, sw=5)

lds_groups=[('q',0),('q',1),('q',2),('q',3),('o',0,3),('o',1,1),('o',1,2),('o',1,3)]
all_groups=[(m,c) for m in 'qkv' for c in range(8)]+[('o',tp,k) for tp in range(2) for k in range(4)]
res_groups=[g for g in all_groups if g not in lds_groups]
gloc={}
for i,g in enumerate(res_groups): gloc[g]=('a',16*i) if i<16 else ('v',RES+16*(i-16))
stream={('q',0,0):M+16,('q',0,1):M+24,('q',1,0):KA,('q',1,1):VA,('q',2,0):X,('q',2,1):X+8,('q',3,0):X+16,('q',3,1):X+24,
        ('o',0,3,0):X+8,('o',0,3,1):X+24,('o',1,1,0):X,('o',1,2,0):X+16,('o',1,3,0):KA,('o',1,1,1):VA,('o',1,2,1):QA,('o',1,3,1):X+8}
def ureg(g,t):
    if g in gloc: return gloc[g][0], gloc[g][1]+8*t
    return 'v', stream[g+(t,)]
def unit(g,t): p,b=ureg(g,t); return R(p,b,8)
def stream_reads(g,t):
    off=lds_groups.index(g)*4096+t*2048; b=stream[g+(t,)]
    return [f'ds_read_b128 {v(b,4)}, {v(LW)} offset:{off}', f'ds_read_b128 {v(b+4,4)}, {v(LW)} offset:{off+1024}']
def zero(b,n,val='0'): return [f'v_mov_b64 {v(b+i,2)}, {val}' for i in range(0,n,2)]
def kv_addr(): return [f'v_lshrrev_b32 {v(T0)}, 2, {v(L16)}', f'v_and_b32 {v(T0)}, 4, {v(T0)}']
def kv_check(L):
    return kv_addr()+[f's_add_u32 {s(sT+3)}, {s(sStep)}, 1', f's_min_u32 {s(sT+3)}, {s(sT+3)}, 63', f's_lshl_b32 {s(sT+3)}, {s(sT+3)}, 2', f'{L}c:',
            f'v_lshl_add_u32 {v(FLG)}, {v(FLG)}, 3, {v(T0)}', f'v_cmp_ge_u32 vcc, {s(sT+3)}, {v(FLG)}', f's_cbranch_vccnz {L}w', f'{L}x:']
def kv_wait(L):
    return [f'{L}w:', f's_add_u32 {s(sSpinF)}, {s(sSpinF)}, 1', f's_cmp_gt_u32 {s(sSpinF)}, {LIM}', f's_cbranch_scc1 {L}x',
            f'buffer_load_dword {v(FLG)}, {v(T0)}, {s(WS,4)}, {s(sKvF)} offen sc1', 's_waitcnt vmcnt(0)', f's_branch {L}c']
def h2_addr(d,t):
    return [f'v_and_b32 {v(d)}, 0x230, {v(L16)}', f'v_and_b32 {v(t)}, 0xc0, {v(L16)}', f'v_lshl_add_u32 {v(d)}, {v(t)}, 1, {v(d)}',
            f'v_and_b32 {v(t)}, 0x100, {v(L16)}', f'v_lshrrev_b32 {v(t)}, 2, {v(t)}', f'v_or_b32 {v(d)}, {v(d)}, {v(t)}']

def prologue(timing):
    p=[]; e=p.append
    VQ=[]
    def vm(line,tag=None): e(line); VQ.append(tag)
    def wait(tag):
        i=max(k for k,t in enumerate(VQ) if t==tag); e(f's_waitcnt vmcnt({min(63,len(VQ)-1-i)})')
    e(f's_load_dwordx2 {s(WSRD,2)}, s[0:1], 40')
    e(f's_load_dwordx4 {s(sPtr,4)}, s[0:1], 8')
    e(f's_load_dwordx4 {s(sPtr+4,4)}, s[0:1], 24')
    e(f's_load_dwordx2 {s(DBG,2)}, s[0:1], 104')
    e(f's_load_dwordx2 {s(WS,2)}, s[0:1], 112')
    if timing: e(f's_memrealtime {s(sTime,2)}')
    ln,n,g,t1,t2,g1,VOO,VA0,VA1,TO0,TO1,TA0,TA1,TB0,TB1,r=[STG+i for i in range(16)]
    e(f'v_lshrrev_b32 {v(t1)}, 6, v0'); e(f'v_and_b32 {v(ln)}, 63, v0'); e(f'v_readfirstlane_b32 {s(sW)}, {v(t1)}')
    e(f's_mov_b32 {s(WSRD+2)}, {4<<20}'); e(f's_mov_b32 {s(WSRD+3)}, 0x20000')
    e(f'v_and_b32 {v(n)}, 15, {v(ln)}'); e(f'v_lshrrev_b32 {v(g)}, 4, {v(ln)}'); e(f'v_and_b32 {v(g1)}, 1, {v(g)}')
    e(f's_mul_i32 {s(sReg)}, {s(sW)}, {WREG}'); e(f's_add_u32 {s(sReg)}, {s(sReg)}, {L_WV}')
    e(f'v_lshrrev_b32 {v(t1)}, 3, {v(n)}'); e(f'v_lshl_add_u32 {v(t1)}, {v(g1)}, 4, {v(t1)}'); e(f'v_lshrrev_b32 {v(t2)}, 1, {v(g)}'); e(f'v_lshl_add_u32 {v(t1)}, {v(t2)}, 2, {v(t1)}')
    e(f'v_and_b32 {v(t2)}, 7, {v(n)}'); e(f'v_lshlrev_b32 {v(t2)}, 4, {v(t2)}'); e(f'v_lshlrev_b32 {v(VOO)}, 6, {v(g1)}'); e(f'v_xor_b32 {v(t2)}, {v(t2)}, {v(VOO)}')
    e(f'v_lshl_add_u32 {v(VOO)}, {v(t1)}, 10, {v(t2)}')
    e(f's_lshl_b32 {s(sT)}, {s(sH)}, 17'); e(f's_lshl_b32 {s(sT+1)}, {s(sW)}, 8'); e(f's_add_u32 {s(sT)}, {s(sT)}, {s(sT+1)}')
    for k in range(4):
        e(f's_xor_b32 {s(sRow+k)}, {s(sW)}, {k}'); e(f's_lshl_b32 {s(sRow+k)}, {s(sRow+k)}, 15'); e(f's_add_u32 {s(sRow+k)}, {s(sRow+k)}, {s(sT)}')
    e('s_waitcnt lgkmcnt(0)')
    if timing: e('s_memrealtime s[80:81] ;stamp')
    items=[g_ for m_ in 'okvq' for g_ in res_groups if g_[0]==m_]+lds_groups
    SL=[i%8 for i in range(32)]
    k_=OPT['ord']
    if k_:
        items=items[:4]+items[32-k_:]+items[4:32-k_]
        R_=8-k_; n_=28-k_
        SL=[None]*4+list(range(8-k_,8))+[(j-n_)%R_ for j in range(n_)]
        SL[:4]=[(j-4-n_)%R_ for j in range(4)]
    nxt_=[0]
    def pump(it,lim):
        while nxt_[0]<32 and nxt_[0]<=lim and all(j<it for j in range(nxt_[0]) if SL[j]==SL[nxt_[0]]):
            issue(nxt_[0]); nxt_[0]+=1
    ptr={'q':sPtr+2,'k':sPtr+4,'v':sPtr+6,'o':sPtr+8}
    ntf=' nt' if OPT['nt'] else ''
    def issue(i):
        g_=items[i]
        if i>=4: e(f's_mov_b32 {s(WSRD)}, {s(ptr[g_[0]])}'); e(f's_mov_b32 {s(WSRD+1)}, {s(ptr[g_[0]]+1)}')
        for b in range(4):
            e(f's_add_u32 m0, {s(sReg)}, {SL[i]*4096+b*1024}')
            if g_[0]=='o': e(f's_add_u32 {s(sT+7)}, {s(sRow+g_[2])}, {(8*(b>>1)+2*(b&1))*1024+g_[1]*128}'); vo=VOO
            else: e(f's_mov_b32 {s(sT+7)}, {(128*(g_[1]&3)+8*(g_[1]>>2)+4*(b>>1)+(b&1))*8192}'); vo=VA1 if b&1 else VA0
            vm(f'buffer_load_dwordx4 {v(vo)}, {s(WSRD,4)}, {s(sT+7)} offen{ntf} lds',g_)
    pump(0,3)
    e(f's_mov_b32 {s(sPtr+8)}, {s(WSRD)}'); e(f's_mov_b32 {s(sPtr+9)}, {s(WSRD+1)}')
    e(f's_mov_b32 {s(WS+2)}, {WS_BYTES}'); e(f's_mov_b32 {s(WS+3)}, 0x20000')
    e(f'v_lshlrev_b32 {v(L16)}, 4, {v(ln)}'); e(f'v_add_u32 {v(LW)}, {s(sReg)}, {v(L16)}')
    e(f's_add_u32 {s(sVdst)}, {s(sReg)}, 32768')
    e(f's_lshl_b32 {s(sT+1)}, {s(sW)}, 11'); e(f's_add_u32 {s(sKdst)}, {s(sT+1)}, {L_KX}')
    e(f's_lshl_b32 {s(sWoff)}, {s(sW)}, 10')
    e(f'v_and_b32 {v(t1)}, 1, {v(ln)}'); e(f'v_mul_u32_u24 {v(t1)}, 0xaaaa, {v(t1)}'); e(f'v_add_u32 {v(IDX)}, 0x4444, {v(t1)}')
    e(f's_lshl_b32 {s(sT+2)}, {s(sW)}, 9')
    e(f'v_lshrrev_b32 {v(r)}, 2, {v(n)}'); e(f'v_lshlrev_b32 {v(QW)}, 7, {v(r)}'); e(f'v_and_b32 {v(t1)}, 1, {v(r)}'); e(f'v_lshlrev_b32 {v(t1)}, 6, {v(t1)}')
    e(f'v_lshlrev_b32 {v(t2)}, 5, {v(g)}'); e(f'v_xor_b32 {v(t1)}, {v(t1)}, {v(t2)}'); e(f'v_add_u32 {v(QW)}, {v(QW)}, {v(t1)}')
    e(f'v_and_b32 {v(t1)}, 3, {v(n)}'); e(f'v_lshl_add_u32 {v(QW)}, {v(t1)}, 2, {v(QW)}'); e(f'v_add_u32 {v(QW)}, {s(sT+2)}, {v(QW)}'); e(f'v_add_u32 {v(QW)}, {L_Q}, {v(QW)}')
    e(f'v_lshlrev_b32 {v(t1)}, 3, {v(ln)}'); e(f'v_add_u32 {v(OW)}, {s(sT+2)}, {v(t1)}'); e(f'v_and_b32 {v(ORD)}, -9, {v(OW)}')
    e(f'v_and_b32 {v(t1)}, -9, {v(t1)}'); e(f'v_lshlrev_b32 {v(t2)}, 6, {v(g1)}'); e(f'v_xor_b32 {v(QR)}, {v(t1)}, {v(t2)}')
    e(f'v_bfe_u32 {v(t1)}, {v(n)}, 1, 2'); e(f'v_lshlrev_b32 {v(KW)}, 2, {v(t1)}'); e(f'v_and_b32 {v(t1)}, 1, {v(n)}'); e(f'v_lshl_add_u32 {v(KW)}, {v(t1)}, 4, {v(KW)}')
    e(f'v_lshl_add_u32 {v(KW)}, {v(g)}, 6, {v(KW)}'); e(f'v_lshrrev_b32 {v(t1)}, 3, {v(n)}'); e(f'v_lshl_add_u32 {v(KW)}, {v(t1)}, 8, {v(KW)}')
    e(f'v_add_u32 {v(KW)}, {s(sT+2)}, {v(KW)}'); e(f'v_add_u32 {v(KW)}, {L_K}, {v(KW)}')
    e(f'v_lshlrev_b32 {v(MPUB)}, 12, {v(t1)}'); e(f'v_and_b32 {v(t1)}, 1, {v(r)}'); e(f'v_lshl_add_u32 {v(MPUB)}, {v(t1)}, 6, {v(MPUB)}'); e(f'v_lshl_add_u32 {v(MPUB)}, {v(g1)}, 5, {v(MPUB)}')
    e(f'v_and_b32 {v(t1)}, 3, {v(n)}'); e(f'v_lshl_add_u32 {v(MPUB)}, {v(t1)}, 3, {v(MPUB)}'); e(f'v_lshrrev_b32 {v(t2)}, 1, {v(g)}'); e(f'v_lshl_add_u32 {v(MPUB)}, {v(t2)}, 31, {v(MPUB)}')
    e(f'v_lshlrev_b32 {v(TO0)}, 8, {v(g)}'); e(f'v_lshl_add_u32 {v(TO0)}, {v(t1)}, 3, {v(TO0)}'); e(f'v_lshl_add_u32 {v(TO0)}, {v(g1)}, 6, {v(TO0)}')
    e(f'v_and_b32 {v(t2)}, 1, {v(r)}'); e(f'v_lshl_add_u32 {v(TO0)}, {v(t2)}, 7, {v(TO0)}'); e(f'v_lshrrev_b32 {v(t2)}, 1, {v(r)}'); e(f'v_lshl_add_u32 {v(TO0)}, {v(t2)}, 5, {v(TO0)}')
    e(f'v_add_u32 {v(TO0)}, {s(sReg)}, {v(TO0)}'); e(f'v_xor_b32 {v(TO1)}, 64, {v(TO0)}')
    e(f'v_lshl_add_u32 {v(t2)}, {v(g1)}, 2, {v(r)}'); e(f's_lshl_b32 {s(sT+3)}, {s(sW)}, 1'); e(f'v_xor_b32 {v(t2)}, {s(sT+3)}, {v(t2)}')
    e(f'v_lshlrev_b32 {v(TA0)}, 10, {v(g)}'); e(f'v_lshl_add_u32 {v(TA0)}, {v(r)}, 8, {v(TA0)}'); e(f'v_lshl_add_u32 {v(TA0)}, {v(t2)}, 5, {v(TA0)}'); e(f'v_lshl_add_u32 {v(TA0)}, {v(t1)}, 3, {v(TA0)}')
    e(f'v_add_u32 {v(TA0)}, {L_WV}, {v(TA0)}'); e(f'v_xor_b32 {v(TA1)}, 32, {v(TA0)}'); e(f'v_add_u32 {v(TB0)}, {2*WREG}, {v(TA0)}'); e(f'v_add_u32 {v(TB1)}, {2*WREG}, {v(TA1)}')
    e(f's_lshl_b32 {s(sT+4)}, {s(sH)}, 8')
    e(f'v_and_b32 {v(t2)}, 2, {v(g)}'); e(f'v_lshl_add_u32 {v(t2)}, {v(g1)}, 4, {v(t2)}'); e(f'v_lshlrev_b32 {v(t1)}, 1, {v(g)}'); e(f'v_xor_b32 {v(t1)}, {v(t1)}, {v(n)}'); e(f'v_lshlrev_b32 {v(t1)}, 4, {v(t1)}')
    e(f'v_lshl_add_u32 {v(VA0)}, {v(t2)}, 13, {v(t1)}'); e(f's_lshl_b32 {s(sT+3)}, {s(sW)}, 18'); e(f's_add_u32 {s(sT+3)}, {s(sT+3)}, {s(sT+4)}')
    e(f'v_add_u32 {v(VA0)}, {s(sT+3)}, {v(VA0)}'); e(f'v_xor_b32 {v(VA1)}, 128, {v(VA0)}')
    e(f's_lshl_b32 {s(sT+3)}, {s(sW)}, 15'); e(f'v_lshlrev_b32 {v(t1)}, 11, {v(r)}'); e(f'v_add_u32 {v(t1)}, {s(sT+4)}, {v(t1)}'); e(f'v_and_b32 {v(t1)}, 0x1fff, {v(t1)}')
    e(f'v_lshl_add_u32 {v(PST)}, {v(g)}, 13, {v(t1)}'); e(f'v_lshl_add_u32 {v(PST)}, {v(n)}, 4, {v(PST)}'); e(f'v_add_u32 {v(PST)}, {s(sT+3)}, {v(PST)}')
    Rp=OPT['rep']; cval=struct.unpack('<I',struct.pack('<f',math.log2(math.e)/math.sqrt(128)))[0]
    for r_,val in ((sC,cval),(sC2,cval),(sC2+1,cval),(sStep,0),(sSpin,0),(sSpinU,0),(sSpinF,0),(sSlot,0),(sPslot,3*262144),(sOne,0x3f803f80),(sOne+1,0x3f803f80),
                   (sOdd,0xaaaaaaaa),(sOdd+1,0xaaaaaaaa),(sEx,0x10001 if Rp>1 else 1),(sEx+1,0x10001 if Rp>2 else 0)): e(f's_mov_b32 {s(r_)}, {hex(val)}')
    e(f's_and_b32 {s(sFlagB)}, {s(sH)}, {Rp-1}'); e(f's_lshl_b32 {s(sFlagB)}, {s(sFlagB)}, 8'); e(f's_add_u32 {s(sFlagB)}, {s(sFlagB)}, {FLAG_OFF}')
    e(f's_lshl_b32 {s(sFlag)}, {s(sH)}, 2'); e(f's_add_u32 {s(sFlag)}, {s(sFlag)}, {FLAG_OFF}')
    e(f's_lshl_b32 {s(sPinB)}, {s(sH)}, 13'); e(f's_add_u32 {s(sPinB)}, {s(sPinB)}, {PART_OFF}'); e(f's_add_u32 {s(sPrstB)}, {s(sPinB)}, {s(sT+1)}')
    e(f's_bfe_u32 {s(sT+5)}, {s(sH)}, 0x20002'); e(f's_lshl_b32 {s(sMemB)}, {s(sT+5)}, 10'); e(f's_lshr_b32 {s(sT+5)}, {s(sH)}, 4'); e(f's_lshl_b32 {s(sT+5)}, {s(sT+5)}, 9')
    e(f's_add_u32 {s(sMemB)}, {s(sMemB)}, {s(sT+5)}'); e(f's_and_b32 {s(sT+5)}, {s(sH)}, 3'); e(f's_lshl_b32 {s(sT+5)}, {s(sT+5)}, 7'); e(f's_add_u32 {s(sMemB)}, {s(sMemB)}, {s(sT+5)}'); e(f's_add_u32 {s(sMemB)}, {s(sMemB)}, {MEM_OFF}')
    e(f's_lshl_b32 {s(sKsrc)}, {s(sH)}, 20'); e(f's_add_u32 {s(sKsrc)}, {s(sKsrc)}, {s(sT+1)}'); e(f's_add_u32 {s(sKsrc)}, {s(sKsrc)}, {KV_OFF}'); e(f's_add_u32 {s(sVsrc)}, {s(sKsrc)}, 8192')
    e(f's_lshl_b32 {s(sKvm)}, {s(sH)}, 18'); e(f's_add_u32 {s(sKvm)}, {s(sKvm)}, {s(sWoff)}'); e(f's_add_u32 {s(sKvm)}, {s(sKvm)}, {KVM_OFF}')
    e(f's_lshl_b32 {s(sKvF)}, {s(sH)}, 7'); e(f's_add_u32 {s(sKvmF)}, {s(sKvF)}, {BF_OFF+BF_KVM}'); e(f's_add_u32 {s(sKvF)}, {s(sKvF)}, {BF_OFF+BF_KV}')
    p+=zero(PM,4)+zero(ONES,4,'-1')
    e(f'v_and_b32 {v(t1)}, 2, {v(n)}'); e(f'v_lshlrev_b32 {v(t1)}, 3, {v(t1)}'); e(f'v_mov_b32 {v(t2)}, 0x3f80'); e(f'v_lshlrev_b32 {v(t2)}, {v(t1)}, {v(t2)}'); e(f'v_bfe_u32 {v(t1)}, {v(n)}, 2, 1')
    for jj in range(4):
        e(f'v_cmp_eq_u32 vcc, {jj&1}, {v(t1)}'); e(f'v_cndmask_b32 {v(M+jj)}, 0, {v(t2)}, vcc')
    e(f'ds_write_b128 {v(L16)}, {v(M,4)} offset:{L_SEL}')
    e(f'v_lshrrev_b32 {v(T0)}, 1, {v(n)}'); e(f'v_lshlrev_b32 {v(T0)}, 10, {v(T0)}'); e(f'v_lshl_add_u32 {v(T0)}, {v(g1)}, 3, {v(T0)}')
    e(f'v_and_b32 {v(t1)}, 2, {v(g)}'); e(f'v_lshl_add_u32 {v(T0)}, {v(t1)}, 6, {v(T0)}'); e(f'v_and_b32 {v(t1)}, 1, {v(n)}'); e(f'v_lshl_add_u32 {v(T0)}, {v(t1)}, 2, {v(T0)}')
    e(f's_lshl_b32 {s(sT+5)}, {s(sW)}, 8'); e(f'v_add_u32 {v(T0)}, {s(sT+5)}, {v(T0)}')
    D=OPT['dc']
    pump(0,D-1)
    if timing: e('s_memrealtime s[82:83] ;stamp')
    e(f's_lshl_b32 {s(sT+5)}, {s(sW)}, 18'); e(f's_add_u32 {s(sT+5)}, {s(sT+5)}, {s(sPinB)}'); e(f's_add_u32 {s(sT+6)}, {s(sT+5)}, 4096')
    for j in range(8): vm(f'buffer_store_dwordx4 {v(ONES,4)}, {v(L16)}, {s(WS,4)}, {s(sT+5+(j>>2))} offen offset:{(j&3)*1024} sc1','x')
    e(f's_lshl_b32 {s(sT+5)}, {s(sW)}, 13'); e(f's_add_u32 {s(sT+5)}, {s(sT+5)}, {s(sMemB)}')
    vm(f'buffer_store_dwordx2 {v(ONES,2)}, {v(MPUB)}, {s(WS,4)}, {s(sT+5)} offen sc1','x')
    e(f's_mov_b64 exec, {s(sEx,2)}'); vm(f'buffer_store_dword {v(PM)}, {v(L16)}, {s(WS,4)}, {s(sFlag)} offen sc1','x'); e('s_mov_b64 exec, -1')
    for u in range(2):
        for x in range(4): vm(f'global_load_dword {v(QA+4*u+x)}, {v(T0)}, {s(sPtr,2)} offset:{16*u+32*x}','x')
    if not OPT['rp']:
        p+=h2_addr(FLG,t1); e(f's_cmp_eq_u32 {s(sW)}, 1'); e('s_cselect_b64 vcc, -1, 0'); e(f'v_cndmask_b32 {v(MPUB)}, {v(MPUB)}, {v(FLG)}, vcc')
    def back(i):
        g_=items[i]
        for t in range(2):
            b0=stream[g_+(t,)] if g_[0]=='q' else M+8*t
            for j in range(2): e(f'ds_write_b128 {v(LW)}, {v(b0+4*j,4)} offset:{SL[i]*4096+t*2048+j*1024}')
        assert SL[i]==lds_groups.index(g_)
    for it in range(32):
        g_=items[it]; bi=it-5
        wait(g_)
        if it==8: wait('x')
        if timing and it==0: e('s_memrealtime s[84:85] ;stamp')
        if timing and it==31: e('s_memrealtime s[86:87] ;stamp')
        e('s_barrier')
        pump(it,it+D)
        if it and items[it-1] in lds_groups[:4]: back(it-1)
        if it==8:
            e(f's_mov_b32 {s(sT+2)}, 0x05040100'); e(f's_mov_b32 {s(sT+3)}, 0x07060302'); e(f'v_add_u32 {v(T0)}, {s(sWoff)}, {v(L16)}')
            for u in range(2):
                d=X+4*u; q=QA+4*u
                e(f'v_perm_b32 {v(d)}, {v(q+1)}, {v(q)}, {s(sT+2)}'); e(f'v_perm_b32 {v(d+1)}, {v(q+3)}, {v(q+2)}, {s(sT+2)}')
                e(f'v_perm_b32 {v(d+2)}, {v(q+1)}, {v(q)}, {s(sT+3)}'); e(f'v_perm_b32 {v(d+3)}, {v(q+3)}, {v(q+2)}, {s(sT+3)}')
                e(f'ds_write_b128 {v(T0)}, {v(d,4)} offset:{L_MEM+4096*u}')
            e(f's_cmp_lg_u32 {s(sW)}, 0'); e('s_cbranch_scc1 L_ch_noarr')
            e(f's_getreg_b32 {s(sT+5)}, hwreg(HW_REG_XCC_ID)'); e(f's_and_b32 {s(sT+5)}, {s(sT+5)}, 7'); e(f's_lshl_b32 {s(sT+5)}, {s(sT+5)}, 3'); e(f's_lshl_b64 {s(sT+2,2)}, 1, {s(sT+5)}')
            e(f'v_mov_b32 {v(QA)}, {s(sT+2)}'); e(f'v_mov_b32 {v(QA+1)}, {s(sT+3)}'); e('s_mov_b64 exec, 1')
            e(f'global_atomic_add_x2 {v(PM+1)}, {v(QA,2)}, {s(DBG,2)}'); e('s_mov_b64 exec, -1')
            p.append('L_ch_noarr:')
        for b in range(4):
            for t in range(2):
                if g_[0]=='o':
                    pf,b0=ureg(g_,t) if g_ in gloc else ('v',M+8*t)
                    e(f'ds_read_b64_tr_b16 {R(pf,b0+2*b,2)}, {v(TO1 if t else TO0)} offset:{SL[it]*4096+b*1024}')
                else:
                    pf,b0=ureg(g_,t); tra=[[TA0,TA1],[TB0,TB1]][b>>1][t]
                    e(f'ds_read_b64_tr_b16 {R(pf,b0+2*b,2)}, {v(tra)} offset:{(b&1)*WREG+SL[it]*4096}')
        e('s_waitcnt lgkmcnt(0)')
        if g_ in lds_groups[4:]: back(it)
        if it==31 and g_[0]=='q': e('s_barrier'); back(it)
        if bi==8 and OPT['sync']:
            e(f'v_mov_b32 {v(T0)}, 136'); vm(f'global_load_dword {v(KVQ)}, {v(T0)}, {s(DBG,2)} sc1 ;stamp','i')
        if it==16: vm(f'global_load_dwordx2 {v(QA,2)}, {v(PM+1)}, {s(DBG,2)} sc1 ;stamp','h')
        if it==OPT['fi']:
            wait('h')
            p.append('L_ch_hs:')
            e(f'v_readfirstlane_b32 {s(sT+2)}, {v(QA)}'); e(f'v_readfirstlane_b32 {s(sT+3)}, {v(QA+1)}')
            e(f's_add_u32 {s(sSpinF)}, {s(sSpinF)}, 1'); e(f's_cmp_gt_u32 {s(sSpinF)}, {LIM}'); e('s_cbranch_scc1 L_ch_hsdone')
            e(f's_add_u32 {s(sT+4)}, {s(sT+2)}, {s(sT+3)}'); e(f's_lshr_b32 {s(sT+5)}, {s(sT+4)}, 16'); e(f's_add_u32 {s(sT+4)}, {s(sT+4)}, {s(sT+5)}')
            e(f's_lshr_b32 {s(sT+5)}, {s(sT+4)}, 8'); e(f's_add_u32 {s(sT+4)}, {s(sT+4)}, {s(sT+5)}'); e(f's_and_b32 {s(sT+4)}, {s(sT+4)}, 0xff')
            e(f's_cmp_ge_u32 {s(sT+4)}, 32'); e('s_cbranch_scc1 L_ch_hsdone')
            e(f'global_load_dwordx2 {v(QA,2)}, {v(PM+1)}, {s(DBG,2)} sc1 ;stamp'); e('s_waitcnt vmcnt(0) ;stamp'); e('s_branch L_ch_hs')
            p.append('L_ch_hsdone:')
            e(f's_or_b32 {s(sT+2)}, {s(sT+2)}, {s(sT+3)}'); e(f's_and_b32 {s(sT+2)}, {s(sT+2)}, 0x20202020')
            if OPT['sync']:
                wait('i')
                p.append('L_ch_iw:')
                e(f'v_cmp_eq_u32 vcc, 0, {v(KVQ)}'); e('s_cbranch_vccz L_ch_iwx')
                e(f's_add_u32 {s(sSpinF)}, {s(sSpinF)}, 1'); e(f's_cmp_gt_u32 {s(sSpinF)}, {LIM}'); e('s_cbranch_scc1 L_ch_iwx')
                e(f'global_load_dword {v(KVQ)}, {v(T0)}, {s(DBG,2)} sc1 ;stamp'); e('s_waitcnt vmcnt(0) ;stamp'); e('s_branch L_ch_iw')
                p.append('L_ch_iwx:')
                p.extend(kv_addr()); vm(f'buffer_load_dword {v(FLG)}, {v(T0)}, {s(WS,4)}, {s(sKvF)} offen sc1 ;stamp','f')
            e(f's_lshl_b32 {s(sT+5)}, {s(sW)}, 18'); e(f's_add_u32 {s(sT+5)}, {s(sT+5)}, {s(sPinB)}'); e(f's_add_u32 {s(sT+6)}, {s(sT+5)}, 4096')
            wl=[f'buffer_load_dwordx4 {v(KVQ,4)}, {v(L16)}, {s(WS,4)}, {s(sT+5+(j>>2))} offen offset:{(j&3)*1024} sc1 ;stamp' for j in range(8)]
            nlate=2 if OPT['rs']==0 else 1
            def warm(lst,k):
                for l in lst: vm(l,'w')
            e(f's_lshl_b32 {s(sT+4)}, {s(sH)}, 10'); e(f's_add_u32 {s(sT+4)}, {s(sT+4)}, {MEM_OFF}')
            vm(f'buffer_load_dwordx4 {v(KVQ,4)}, {v(L16)}, {s(WS,4)}, {s(sT+4)} offen sc1 ;stamp','w')
            warm(wl[:8-nlate],0)
    if OPT['sync']:
        wait('f')
        p.extend(kv_check('L_ch_k0')); p.extend(['s_branch L_ch_k0y']+kv_wait('L_ch_k0')+['L_ch_k0y:'])
    for sd,ss in ((sKdst,sKsrc),(sVdst,sVsrc)):
        e(f's_mov_b32 m0, {s(sd)}')
        for j in range(2): e(f'buffer_load_dwordx4 {v(L16)}, {s(WS,4)}, {s(ss)} offen offset:{1024*j} sc1 lds')
    warm([l.replace(v(KVQ,4),v(STG,4)) for l in wl[8-nlate:]],1)
    p.extend(kv_addr()); e(f'buffer_load_dword {v(FLG)}, {v(T0)}, {s(WS,4)}, {s(sKvF)} offen sc1 ;stamp')
    p+=zero(QA,8)
    if OPT['rp']: e(f'v_mov_b32 {v(FLG)}, 0')
    e(f's_add_u32 {s(sKsrc)}, {s(sKsrc)}, 16384'); e(f's_add_u32 {s(sVsrc)}, {s(sVsrc)}, 16384')
    if OPT['ek'] and not OPT['solo']: e(f'buffer_load_dwordx4 {v(STG,4)}, {v(L16)}, {s(WS,4)}, {s(sKsrc)} offen sc1 ;stamp')
    e(f's_add_u32 {s(sPrst)}, {s(sPrstB)}, {2*262144}')
    if not OPT['tr'] and not OPT['solo']:
        for k in range(4):
            e(f's_and_b32 {s(sT+4)}, {s(sH)}, 1'); e(f's_xor_b32 {s(sT+4)}, {s(sT+4)}, {k}'); e(f's_lshl_b32 {s(sRo1+k)}, {s(sT+4)}, 11')
            e(f's_add_u32 {s(sT+4)}, {s(sH)}, {k}'); e(f's_and_b32 {s(sT+4)}, {s(sT+4)}, 3'); e(f's_lshl_b32 {s(sRo2+k)}, {s(sT+4)}, 10')
    e('s_waitcnt lgkmcnt(0)')
    if timing: e(f's_memrealtime {s(sTime+2,2)}'); e(f's_memtime {s(sTime+6,2)}'); e('s_waitcnt lgkmcnt(0)')
    if OPT['solo']: e('s_waitcnt vmcnt(0)'); e('s_memtime s[60:61]'); e('s_waitcnt lgkmcnt(0)'); e('s_barrier')
    if OPT['rp'] and not OPT['solo']:
        e(f's_cmp_eq_u32 {s(sW)}, 1'); e(f's_cselect_b32 {s(sKvmF)}, {s(sKvmF)}, 0x40000000')
        e('s_barrier')
        for c in range(4): e(mrd(c))
        e(f's_cmp_eq_u32 {s(sT+2)}, 0'); e('s_cbranch_scc1 L_ch_S0_re'); e('s_branch L_ch_F0_re'); e('s_waitcnt lgkmcnt(0)')
    e(f's_cmp_eq_u32 {s(sT+2)}, 0'); e('s_cbranch_scc1 L_ch_S0')
    return fix(p,'prologue')

def smf(d,a_,b): return f'{SMF} {v(d,4)}, {v(a_,4)}, {b}, {v(IDX)}'
def mrd(c): return f'ds_read_b128 {v(M+4*c,4)}, {v(L16)} offset:{L_MEM+1024*c}'
def G(*groups):
    o=[]
    for g_ in groups: o.extend(g_)
    return o

def step(mode, par, verbose=False):
    sc=' sc1' if mode=='S' else ''
    two=OPT['tr'] or OPT['solo']
    L=f'L_ch_{mode}{par}'
    p=[L+':']; e=p.append
    qk=lambda m,c,t: smf((QA if m=='q' else KA if m=='k' else VA)+4*t, M+4*c, unit((m,c),t))
    Q=lambda c,t: qk('q',c,t); K=lambda c,t: qk('k',c,t); V=lambda c,t: qk('v',c,t)
    W=lambda n: f's_waitcnt lgkmcnt({n})'
    krd=[f'ds_read_b128 {v(X+4*f,4)}, {v(L16)} offset:{L_KX+1024*f}' for f in range(8)]
    kl=[f'buffer_load_dwordx4 {v(STG+4*i,4)}, {v(L16)}, {s(WS,4)}, {s(sVsrc if i>>1 else sKsrc)} offen offset:{1024*(i&1)} sc1'+(' nt' if OPT['knt'] else '') for i in range(4)]
    kw=[f'v_add_u32 {v(T0)}, {s(sKdst)}, {v(L16)}','s_waitcnt vmcnt(3)']+[f'ds_write_b128 {v(T0)}, {v(STG+4*i,4)} offset:{1024*i}' for i in range(2)]+[f'ds_write_b128 {v(LW)}, {v(STG+8+4*i,4)} offset:{32768+1024*i}' for i in range(2)]
    def post(acc,d0,d1,bytok):
        o=[f'v_add_f32 {v(acc)}, {v(acc)}, {v(acc+1)}', f'v_add_f32 {v(acc+2)}, {v(acc+2)}, {v(acc+3)}',
           f'v_add_f32 {v(acc+4)}, {v(acc+4)}, {v(acc+5)}', f'v_add_f32 {v(acc+6)}, {v(acc+6)}, {v(acc+7)}']
        if bytok: o+=[f'v_cvt_pk_bf16_f32 {v(d0)}, {v(acc)}, {v(acc+4)}', f'v_cvt_pk_bf16_f32 {v(d1)}, {v(acc+2)}, {v(acc+6)}']
        else:     o+=[f'v_cvt_pk_bf16_f32 {v(d0)}, {v(acc)}, {v(acc+2)}', f'v_cvt_pk_bf16_f32 {v(d1)}, {v(acc+4)}, {v(acc+6)}']
        return o
    def tr(i,rt=False):
        if not OPT['tr']: return []
        return [('s_memrealtime' if rt else 's_memtime')+f' {s(52+14*par+2*i,2)} ;stamp']
    def trdump():
        if not OPT['tr']: return []
        o=[f'v_mov_b32 {v(M+4+i)}, {s(52+14*(1-par)+2*i)}' for i in range(4)]+[f'v_mov_b32 {v(M+8+i)}, {s(52+14*(1-par)+2*i)}' for i in range(4,7)]
        o+=[f's_lshl_b32 {s(sT+1)}, {s(sSpinU)}, 16', f's_add_u32 {s(sT+1)}, {s(sT+1)}, {s(sSpin)}', f'v_mov_b32 {v(M+15)}, {s(sT+1)}',
            f's_lshl_b32 {s(sT+1)}, {s(sStep)}, 5', f's_add_u32 {s(sT+1)}, {s(sT+1)}, {s(sH)}', f's_lshl_b32 {s(sT+1)}, {s(sT+1)}, 2', f's_add_u32 {s(sT+1)}, {s(sT+1)}, {s(sW)}',
            f's_lshl_b32 {s(sT+1)}, {s(sT+1)}, 5', f's_add_u32 {s(sT+1)}, {s(sT+1)}, {100<<20}', 's_mov_b64 exec, 1',
            f'buffer_store_dwordx4 {v(M+4,4)}, off, {s(WS,4)}, {s(sT+1)}', f'buffer_store_dwordx4 {v(M+12,4)}, off, {s(WS,4)}, {s(sT+1)} offset:16', 's_mov_b64 exec, -1']
        return o
    rstore=lambda j: f'buffer_store_dwordx4 {v(ONES,4)}, {v(L16)}, {s(WS,4)}, {s(sPrst)} offen offset:{j*1024}{sc}'
    pub=f'buffer_store_dwordx4 {v(KVQ,4)}, {v(L16)}, {s(WS,4)}, {s(sKvm)} offen'+(' sc1' if OPT['pub'] else '')
    rp=OPT['rp']; sp=OPT['sp']
    if not OPT['solo']: p.extend(['s_waitcnt lgkmcnt(0)' if rp else f's_waitcnt vmcnt({7+OPT["ek"]}) lgkmcnt(0)','s_barrier'])
    p.append(';secS')
    for c in range(4): e(mrd(c))
    if OPT['rs']==1: e(rstore(0))
    if rp: e(pub); e(f's_add_u32 {s(sKvm)}, {s(sKvm)}, 4096')
    p.append(f'{L}_re:')
    z=zero(KA,16)
    on=[f'v_mov_b64 {v(ONES+2*i,2)}, {s(sOne,2)}' for i in range(2)]
    qp=post(QA,QA+1,QA+3,True)+[f'ds_write2_b32 {v(QW)}, {v(QA+1)}, {v(QA+3)} offset0:0 offset1:4']
    kp=post(KA,KVQ+1,KVQ+3,True)+[f'ds_write2_b32 {v(KW)}, {v(KVQ+1)}, {v(KVQ+3)} offset0:0 offset1:8']
    ek=OPT['ek'] if not OPT['solo'] else 0
    p.extend(G([kl[ek],W(3)],[Q(0,0)],[Q(0,1),W(2)],[Q(1,0),kl[1+ek]],[Q(1,1),W(1)],[Q(2,0),z[0]],[Q(2,1),W(0),z[1]],[Q(3,0),kl[2+ek]],[Q(3,1),z[2]],
               [K(0,0),z[3]],[K(1,0),z[4]],[K(2,0),f's_waitcnt vmcnt({6+ek})','s_barrier',z[5]],[K(3,0),mrd(4),z[6]],
               [K(0,1),mrd(5),z[7]],[K(1,1),mrd(6),on[0]],[K(2,1),mrd(7),on[1]],[K(3,1),krd[0],W(4)]))
    p.append(';sec0')
    fld=f'buffer_load_dword {v(FLG)}, {v(T0)}, {s(WS,4)}, {s(sKvF)} offen sc1'
    p.extend(G([Q(4,0),krd[4],W(4)],[Q(5,0),krd[1],W(4)],[Q(6,0),krd[5],W(4)],[Q(7,0),'s_nop 0' if ek else kl[3]],
               [Q(4,1),krd[2],'s_nop 0'],[Q(5,1),krd[3]],[Q(6,1),krd[6],qp[0]],[Q(7,1),krd[7],qp[1]],
               [K(4,0),'s_nop 2'],[K(5,0),'s_nop 0',qp[2]],[K(6,0),qp[3]],[K(7,0),'s_nop 1',qp[4]],
               [K(4,1),qp[5]],[K(5,1),qp[6]],[K(6,1),kp[0]],[K(7,1),kp[1]]))
    p.append(';sec1')
    rk=[f'ds_read_b128 {v(X+16*k,4)}, {v(L16)} offset:{L_K+1024*k}' for k in range(2)]
    rq=[f'ds_read_b128 {v(M+4*k,4)}, {v(QR)} offset:{L_Q+512*k}' for k in range(4)]
    VF=[X+4,X+20]
    rv=[f'ds_read_b128 {v(VF[t],4)}, {v(LW)} offset:{32768+1024*t}' for t in range(2)]
    SX=lambda m,ks: f'{MF32} {v(QA+4*m,4)}, {v(X+16*m+4*ks,4)}, {v(M+4*ks,4)}, '+(v(QA+4*m,4) if ks else '0')
    sm=[smf(KA,X+16*k,v(M+8*k,8)) for k in range(2)]
    zk=zero(KA,4)
    mx=PM; tt=KA+3
    c=[f'v_max3_f32 {v(mx)}, {v(QA)}, {v(QA+1)}, {v(QA+2)}', f'v_max3_f32 {v(mx)}, {v(mx)}, {v(QA+3)}, {v(QA+4)}',
       f'v_max3_f32 {v(mx)}, {v(mx)}, {v(QA+5)}, {v(QA+6)}',
       f'v_add_f32 {v(KA)}, {v(KA)}, {v(KA+1)}', f'v_add_f32 {v(KA+1)}, {v(KA+2)}, {v(KA+3)}',
       f'v_max3_f32 {v(mx)}, {v(mx)}, {v(QA+7)}, {v(KA)}', f'v_max_f32 {v(tt)}, {v(mx)}, {v(KA+1)}', f'v_max_f32 {v(mx)}, {v(mx)}, {v(KA+1)}',
       f'v_permlane32_swap_b32 {v(mx)}, {v(tt)}', f'v_max_f32 {v(T0)}, {v(mx)}, {v(tt)}', f'v_max_f32 {v(mx)}, {v(mx)}, {v(tt)}',
       f'v_permlane16_swap_b32 {v(mx)}, {v(T0)}', f'v_max_f32 {v(mx)}, {v(mx)}, {v(T0)}', f'v_mul_f32 {v(T0)}, {s(sC)}, {v(mx)}']
    kadv=0 if OPT['hotkv'] else 16384
    bk=[f's_add_u32 {s(sSlot)}, {s(sSlot)}, 8192', f's_and_b32 {s(sSlot)}, {s(sSlot)}, 0x7fff',
        f's_add_u32 {s(sMemIn0)}, {s(sSlot)}, {MEM_OFF}', f's_add_u32 {s(sMemPub)}, {s(sMemB)}, {s(sSlot)}',
        f's_xor_b32 {s(sMemRst)}, {s(sMemPub)}, 16384',
        f's_add_u32 {s(sPrst)}, {s(sPrstB)}, {s(sPslot)}',
        f's_add_u32 {s(sPslot)}, {s(sPslot)}, 262144', f's_and_b32 {s(sPslot)}, {s(sPslot)}, 0xfffff',
        f's_add_u32 {s(sPst)}, {s(sPslot)}, {PART_OFF}', f's_add_u32 {s(sPst+1)}, {s(sPslot)}, {PART_OFF+131072}',
        f's_add_u32 {s(sPin)}, {s(sPinB)}, {s(sPslot)}', f's_add_u32 {s(sPin+1)}, {s(sPin)}, 4096',
        f's_add_u32 {s(sKsrc)}, {s(sKsrc)}, {kadv}', f's_add_u32 {s(sVsrc)}, {s(sVsrc)}, {kadv}',
        f's_add_u32 {s(sMemIn1)}, {s(sMemIn0)}, 4096', f's_mov_b32 m0, {L_MEM}', f's_add_u32 {s(sStep)}, {s(sStep)}, 1']
    wo=lambda tp,k: stream_reads(('o',tp>>1,k),tp&1)
    p.extend(G([V(0,0),'s_nop 1',f'v_cmp_u_f32 vcc, {v(QA)}, {v(QA+2)}'],[V(0,1),W(0),'s_barrier',kp[2]],[V(1,0),rq[0],kp[3]],[V(1,1),rq[1],kp[4]],
               [V(2,0),kp[5]],[V(2,1),kp[6]],[V(3,0),rq[2],zk[0]],[V(3,1),rq[3],W(3)],
               [SX(0,0),zk[1]],[SX(1,0),f's_cbranch_vccnz {L}_r2',f'{L}_r2x:'],[SX(0,1),W(2),'s_barrier'],[SX(1,1),rk[0],W(1)],
               [SX(0,2),rk[1]],[SX(0,3),rv[0]],[SX(1,2),rv[1]],[SX(1,3),bk[0],bk[1]]+([] if OPT['v1'] else [W(2)]),
               *([[V(4,0),W(2),bk[2],c[0]],[sm[0],bk[3],bk[5],c[1]],[sm[1],wo(2,1)[0],c[2]],[V(5,0),wo(2,2)[0],bk[6]],[V(6,0),bk[7],bk[16],c[3],c[4]],[V(7,0),c[5],c[6],c[7]]] if OPT['v1'] else
                 [[sm[0],'s_nop 0',c[0]],[sm[1],wo(2,1)[0]],[V(4,0),bk[2],bk[3],c[1]],[V(5,0),wo(2,2)[0],c[2]],[V(6,0),bk[5],bk[6],c[3],c[4]],[V(7,0),bk[7],bk[16],c[5],c[6],c[7]]]),
               [V(4,1),wo(0,3)[0],c[8]],[V(5,1),wo(0,3)[1],c[9],c[10]],[V(6,1),wo(1,3)[0],c[11]],[V(7,1),wo(1,3)[1],c[12],c[13]]))
    if OPT['tr']: p.append(f's_memtime {s(52+14*(1-par)+10,2)} ;stamp')
    p.append(';sec2')
    vp=post(VA,KVQ,KVQ+2,False)
    xp=lambda r_: f'v_exp_f32 {v(r_)}, {v(r_)}'
    PX=KA+4; OF=M+16
    e(vp[0]); e(vp[1])
    for r_ in (KA,QA,QA+2,QA+4,QA+6):
        e(f'v_pk_fma_f32 {v(r_,2)}, {v(r_,2)}, {s(sC2,2)}, {v(T0,2)} op_sel_hi:[1,1,0] neg_lo:[0,0,1] neg_hi:[0,0,1]')
    e(f'v_mfma_f32_32x32x8_bf16 {v(M,16)}, {v(PM+2,2)}, {v(PM+2,2)}, 0'); e(bk[12])
    e(xp(KA)); e(xp(KA+1))
    p.extend([vp[2],vp[3],vp[4],vp[5]])
    e(f'v_cvt_pk_bf16_f32 {v(PM)}, {v(KA)}, {v(KA+1)}')
    e(xp(QA)); e(xp(QA+1))
    ex=[f's_cmp_eq_u32 {s(sStep)}, 64','s_cbranch_scc1 L_ch_last'] if (par==1 and OPT['solo']) else ['s_nop 1']
    p.extend(G([f'{MF16} {v(VA,4)}, {v(KVQ,2)}, {v(PM,2)}, 0',bk[13],xp(QA+2)],
               [f'{MF16} {v(VA+4,4)}, {v(KVQ+2,2)}, {v(PM,2)}, 0',bk[8],xp(QA+3)],
               [f'{MF16} {v(KA,4)}, {v(ONES,2)}, {v(PM,2)}, 0',W(6),xp(QA+4),xp(QA+5),xp(QA+6),xp(QA+7)]))
    for i in range(4): e(f'v_cvt_pk_bf16_f32 {v(PX+i)}, {v(QA+2*i)}, {v(QA+2*i+1)}')
    zo=zero(ONES,4,'-1')
    oa=[f'v_xor_b32 {v(QA+k)}, {512*k}, {v(ORD)}' for k in range(1,4)]
    p.extend(G([oa[0],oa[1]],[f'{MF32} {v(KA,4)}, {v(ONES,4)}, {v(PX,4)}, {v(KA,4)}']+ex+[oa[2]],
               [f'{MF32} {v(VA,4)}, {v(VF[0],4)}, {v(PX,4)}, {v(VA,4)}',bk[14],zo[0],zo[1]],
               [f'{MF32} {v(VA+4,4)}, {v(VF[1],4)}, {v(PX,4)}, {v(VA+4,4)}',bk[15],f'v_rcp_f32 {v(T0)}, {v(KA)}',bk[9],bk[10]]))
    pm_=[f'v_pk_mul_f32 {v(VA+2*i,2)}, {v(VA+2*i,2)}, {v(T0,2)} op_sel_hi:[1,0]' for i in range(4)]
    cv=[f'v_cvt_pk_bf16_f32 {v(OF+i)}, {v(VA+2*i)}, {v(VA+2*i+1)}' for i in range(4)]
    p.extend([pm_[0],pm_[1],cv[0],cv[1],pm_[2],pm_[3],cv[2],cv[3]])
    p.append(';sec3')
    e(f'v_cndmask_b32 {v(QA+4)}, {v(OF)}, {v(OF+2)}, {s(sOdd,2)}'); e(f'v_cndmask_b32 {v(QA+5)}, {v(OF+1)}, {v(OF+3)}, {s(sOdd,2)}')
    O=lambda tp,k: smf(M+4*tp,OF+4*k,unit(('o',tp>>1,k),tp&1))
    def oc(tp,j):
        q=M+8*(tp>>1)+(tp&1)+2*j
        return f'v_cvt_pk_bf16_f32 {v(q)}, {v(M+4*tp+2*j)}, {v(M+4*tp+2*j+1)}'
    ost=lambda u: f'buffer_store_dwordx4 {v(M+8*u,4)}, {v(PST)}, {s(WS,4)}, {s(sPst+u)} offen{sc}'
    ro=[f'ds_read_b128 {v(OF+4*k,4)}, {v(QA+k)} offset:{L_O}' for k in range(1,4)]
    p.extend(G([f'ds_write_b64 {v(OW)}, {v(QA+4,2)} offset:{L_O}'],[O(0,0),rstore(1)],[O(1,0),wo(2,1)[1]],[W(1),'s_barrier',ro[0]],[O(2,0),ro[1],bk[11]],[O(3,0),ro[2],bk[4]],
               [wo(2,2)[1],wo(2,3)[0],W(4)]))
    p.append(';sec4')
    p.extend(G([O(0,1),wo(2,3)[1],W(4)],[O(0,2),wo(3,1)[0],W(4)],[O(0,3),wo(3,1)[1],f's_cmp_lg_u32 {s(sW)}, 0'],
               [O(1,1),wo(3,2)[0],'s_nop 0'],[O(1,2),wo(3,2)[1],W(4)],[O(1,3),wo(3,3)[0],oc(0,0)],
               [O(2,1),wo(3,3)[1],oc(0,1)],[O(2,2),W(4),'s_waitcnt vmcnt(1)' if OPT['sw1'] else 's_nop 0',oc(1,0),oc(1,1)],[O(2,3),ost(0)],
               [O(3,1),W(0),'s_nop 1'],[O(3,2),'s_nop 1',oc(2,0)],[O(3,3),'s_nop 1',oc(2,1)],[oc(3,0),oc(3,1),ost(1)]))
    sr=[]
    for g_,t in ((('q',0),0),(('q',0),1),(('q',1),0),(('q',1),1)): sr+=stream_reads(g_,t)
    xs=[]
    for g_,t in ((('q',2),0),(('q',2),1),(('q',3),0),(('q',3),1)): xs+=stream_reads(g_,t)
    xz=weave(xs,zero(QA,8),[0,0,0,0,1,1,1,1])
    if verbose and par==0:
        fx=fix(p,'main',True); print('model cycles',simulate(fx,OPT['show']), 'inserted waits', len([l for l in fx if l.startswith('s_waitcnt')])-len([l for l in p if l.startswith('s_waitcnt')]))
    if OPT['solo']:
        marks=[i for i,l in enumerate(p) if l.startswith(';sec')]
        if OPT['cutm']>=0:
            marks=[i+1 for i,l in enumerate(p) if l.startswith(('v_mfma','v_smfmac'))]; OPT['cut']=OPT['cutm']
        if OPT['cut']<len(marks):
            rest=p[marks[OPT['cut']]:]
            p[:]=p[:marks[OPT['cut']]]+['s_memtime s[62:63] ;stamp']+[l for l in rest if (l.startswith(('s_add','s_and','s_cmp','s_cbranch_scc')) or l.endswith(':'))]
        d=OPT['drop']
        if d&1: p[:]=[l for l in p if not l.startswith('buffer_store')]
        if d&2: p[:]=[l for l in p if not l.startswith('buffer_load')]
        if OPT['cut']>=len(marks): p.append('s_memtime s[62:63] ;stamp')
        p.extend(['s_waitcnt vmcnt(0)']+kw+kv_addr()+sr+xz)
        p.extend(['s_waitcnt lgkmcnt(0) vmcnt(0)','s_sub_u32 s62, s62, s60', f's_add_u32 {s(sSpin)}, {s(sSpin)}, s62', 's_barrier', 's_sleep 8', 's_memtime s[60:61] ;stamp', 's_waitcnt lgkmcnt(0)', 's_barrier'])
        if par==1: p.append(f's_branch L_ch_{mode}0')
        return fix(p,f'solo{par}'), [f'{L}_r2:',f's_branch {L}_r2x']
    kc=lambda x: kv_check(L+x) if OPT['sync'] else []
    if rp: return window_rp(locals())
    p.extend(tr(0)+tr(1,True))
    e(f's_cbranch_scc1 {L}_w')
    head=list(p)
    p.extend(trdump())
    e(f'ds_read_b128 {v(QA+4,4)}, {v(L16)} offset:{L_SEL}')
    e(f'v_mov_b32 {v(M+2)}, {s(sStep)}')
    if OPT['de']:
        e(f's_cmp_lt_u32 {s(sH)}, 16'); e(f's_cbranch_scc1 {L}_e'); p.extend(['s_nop 3']*OPT['de']); p.append(f'{L}_e:')
    for i in range(OPT['d1']-OPT['de']-(1 if OPT['de'] else 0)-(8 if OPT['tr'] else 0)): e('s_nop 3')
    p.extend(tr(2))
    ld1=[f'buffer_load_dwordx4 {v(X+4*j,4)}, {v(L16)}, {s(WS,4)}, {s(sPin+(j>>2))} offen offset:{(j&3)*1024} sc1' for j in range(8)]
    if OPT['ro1']:
        p[-1:-1]=[f's_add_u32 {s(sT+4+k)}, {s(sPin)}, {s(sRo1+k)}' for k in range(4)]; p.pop()
        ld1=[f'buffer_load_dwordx4 {v(X+4*j,4)}, {v(L16)}, {s(WS,4)}, {s(sT+4+(j>>1))} offen offset:{(j&1)*1024} sc1' for j in range(8)]
    fst=[f's_mov_b64 exec, {s(sEx,2)}', f'buffer_store_dword {v(M+2)}, {v(L16)}, {s(WS,4)}, {s(sFlag)} offen{sc}', 's_mov_b64 exec, -1']
    p.extend(ld1); p.extend(sr+zero(QA,4)); e(W(8))
    p.append(f'{L}_p1:')
    RM=lambda j: smf(QA,QA+4,v(X+8*j,8))
    fin=[f'v_cvt_pk_bf16_f32 {v(M)}, {v(QA)}, {v(QA+2)}', f'v_cvt_pk_bf16_f32 {v(M+1)}, {v(QA+1)}, {v(QA+3)}']
    mpub=f'buffer_store_dwordx2 {v(M,2)}, {v(MPUB)}, {s(WS,4)}, {s(sMemPub)} offen{sc}'
    chk=f'v_cmp_u_f32 vcc, {v(QA)}, {v(QA+1)}'
    p.extend(['s_waitcnt vmcnt(6)',f'v_cmp_u_f32 vcc, {v(X)}, {v(X+4)}',RM(0),
              fst[0], f's_cbranch_vccnz {L}_r0']+fst[1:]+(['s_barrier'] if OPT['b0'] else [])+tr(3)+[f'{L}_p2:'])
    for j in range(1,4):
        e(f's_waitcnt vmcnt({7-2*j})'); e(RM(j))
    p.extend(fin+[mpub,chk])
    p.extend(tr(4))
    e(f's_cbranch_vccnz {L}_r1')
    p.append(f'{L}_p1ok:')
    p.extend([kw[0]]+kw[2:]+xz)
    nxt=f'L_ch_{mode}{1-par if two else 0}'
    tailc=['s_barrier']+([kl[0]] if ek else [])+[pub, rstore(0)]
    tail2=[f's_add_u32 {s(sKvm)}, {s(sKvm)}, 4096', f's_cmp_lg_u32 {s(sStep)}, 63', f's_cbranch_scc1 {nxt}', 's_branch L_ch_fin']
    p.append(f'{L}_b1:')
    p.extend(tailc+tail2)
    body=fix(p,f'step{mode}{par}',verbose)
    ld2=[f'buffer_load_dwordx4 {v(H2A)}, {s(WS,4)}, {s(sMemIn0)} offen offset:{1024*j} sc1 lds' for j in range(4)]
    ld2+=[f's_mov_b32 m0, {L_MEM+4096}','s_nop 0']+[f'buffer_load_dwordx4 {v(H2A)}, {s(WS,4)}, {s(sMemIn1)} offen offset:{1024*j} sc1 lds' for j in range(4)]
    ld2r=ld2
    if OPT['ro2']:
        ld2r=[]
        for j in range(8):
            ld2r+=[f's_add_u32 m0, {s(sRo2+(j&3))}, {L_MEM+4096*(j>>2)}', f's_add_u32 {s(sT+4)}, {s(sRo2+(j&3))}, {s(sMemIn1 if j>>2 else sMemIn0)}',
                   f'buffer_load_dwordx4 {v(H2A)}, {s(WS,4)}, {s(sT+4)} offen sc1 lds']
    q=[f'{L}_w:']+kw+[f's_cmp_lg_u32 {s(sW)}, 3', f's_cbranch_scc1 {L}_w3', f'buffer_store_dwordx2 {v(ONES,2)}, {v(MPUB)}, {s(WS,4)}, {s(sMemRst)} offen{sc}', f'{L}_w3:']+trdump()+sr+xz; e=q.append
    e(f's_cmp_eq_u32 {s(sW)}, 1'); e(f's_cbranch_scc1 {L}_fb')
    if OPT['b0']: e('s_barrier')
    if OPT['sync']:
        e(f's_cmp_lg_u32 {s(sW)}, 2'); e(f's_cbranch_scc1 {L}_b1')
        q.extend(kc('_kb')+tailc+[fld]+tail2)
    else: e(f's_branch {L}_b1')
    q.append(f'{L}_fb:')
    e(f'v_lshrrev_b32 {v(T0)}, 2, {v(L16)}'); e(f'v_and_b32 {v(T0)}, 0x7c, {v(T0)}')
    if OPT['b0']: e('s_barrier')
    for i in range(max(0,OPT['sl']-(7 if OPT['tr'] and not OPT['b0'] else 0))): e('s_nop 3')
    q.extend(tr(2))
    if OPT['ro2']: q.extend(ld2r[:2]); ld2r=ld2r[2:]
    N=OPT['nb']
    fl=f'buffer_load_dword {v(PM)}, {v(T0)}, {s(WS,4)}, {s(sFlagB)} offen sc1'
    for i in range(N-1): e(fl); e(f's_nop {7+OPT["pp"]}')
    q.append(f'{L}_fb2:')
    for i in range(8):
        e(fl)
        if OPT['pp']: e(f's_nop {OPT["pp"]-1}')
        e(f's_waitcnt vmcnt({N-1})'); e(f'v_cmp_gt_u32 vcc, {s(sStep)}, {v(PM)}'); e(f's_cbranch_vccz {L}_fb3')
    e(f's_add_u32 {s(sSpinF)}, {s(sSpinF)}, 1'); e(f's_cmp_gt_u32 {s(sSpinF)}, {LIM}'); e(f's_cbranch_scc0 {L}_fb2')
    q.append(f'{L}_fb3:')
    q.extend(tr(3)); q.extend(ld2r)
    q.extend(tailc+[f's_sub_u32 {s(sT+3)}, {s(sStep)}, 1', f'v_mov_b32 {v(FLG)}, {s(sT+3)}', 's_mov_b64 exec, 1',
        f'buffer_store_dword {v(FLG)}, off, {s(WS,4)}, {s(sKvmF)} sc1', 's_mov_b64 exec, -1']+tail2)
    i=q.index(f'{L}_fb:')
    alt=fix(head+q[:i],f'alt{mode}{par}',False)
    q=alt[alt.index(f'{L}_w:'):]+q[i:]
    e=q.append
    if OPT['sync']: q.extend(kv_wait(L+'_kb'))
    q.append(f'{L}_r0:')
    e('s_mov_b64 exec, -1')
    q.append(f'{L}_r0l:')
    q.extend(ld1); e(f's_add_u32 {s(sSpin)}, {s(sSpin)}, 1'); e(f's_cmp_gt_u32 {s(sSpin)}, {LIM}'); e(f's_cbranch_scc1 {L}_r0g')
    q.extend(['s_waitcnt vmcnt(6)',f'v_cmp_u_f32 vcc, {v(X)}, {v(X+4)}',f's_cbranch_vccnz {L}_r0l', f'{L}_r0g:'])
    q.extend(zero(QA,4)+['s_nop 0'])
    for j in range(4): e(f's_waitcnt vmcnt({6-2*j})'); e(RM(j))
    q.extend(['s_nop 7', chk]+fin+[f's_cbranch_scc1 {L}_r0e', f's_cbranch_vccnz {L}_r0l', f'{L}_r0e:', mpub]+fst+(['s_barrier'] if OPT['b0'] else [])+tr(3)+tr(4)+[f's_branch {L}_p1ok'])
    q.append(f'{L}_r1:')
    e(f's_add_u32 {s(sSpin)}, {s(sSpin)}, 256'); e(f's_cmp_gt_u32 {s(sSpin)}, {LIM}'); e(f's_cbranch_scc1 {L}_p1ok')
    q.extend(zero(QA,4)+ld1); q.extend(['s_waitcnt vmcnt(0)',RM(0)]); e(f's_branch {L}_p2')
    q.append(f'{L}_r2:')
    e(f's_add_u32 {s(sSpinU)}, {s(sSpinU)}, 1'); e(f's_cmp_gt_u32 {s(sSpinU)}, {LIM}'); e(f's_cbranch_scc1 {L}_r2x')
    e(f's_cmp_eq_u32 {s(sStep)}, 0'); e(f's_cbranch_scc1 {L}_r2x')
    e(f's_mov_b32 m0, {L_MEM}'); e(f's_cmp_lg_u32 {s(sW)}, 1')
    e('s_waitcnt lgkmcnt(0)'); e('s_barrier'); e(f's_cbranch_scc1 {L}_r2b')
    q.extend(ld2); q.append(f'{L}_r2b:'); e('s_nop 7'); q.extend(zero(ONES,4,'-1')); q.extend(sr); q.extend(xs); q.extend(zero(QA,8))
    e('s_waitcnt vmcnt(0) lgkmcnt(0)'); e('s_barrier')
    for c_ in range(4): e(mrd(c_))
    e(f's_branch {L}_re')
    return body, q

def window_rp(d):
    L,p,sc,mode,par,two,tr,trdump,kw,kc,sr,xs,xz,W,rstore,sp,verbose=[d[k] for k in 'L p sc mode par two tr trdump kw kc sr xs xz W rstore sp verbose'.split()]
    e=p.append
    p.extend(tr(0)+tr(1,True))
    e(f's_cbranch_scc1 {L}_w')
    head=list(p)
    p.extend(kw+kc('_ka'))
    e(f'ds_read_b128 {v(QA+4,4)}, {v(L16)} offset:{L_SEL}')
    p.extend(sr+trdump())
    for i in range(OPT['d1']-(8 if OPT['tr'] else 0)): e('s_nop 3')
    p.extend(tr(2))
    ld1=[f'buffer_load_dwordx4 {v(X+4*j,4)}, {v(L16)}, {s(WS,4)}, {s(sPin+(j>>2))} offen offset:{(j&3)*1024} sc1' for j in range(8)]
    pre=h2_addr(T0,PM)+[f's_add_u32 {s(sT+4)}, {s(sMemIn0)}, {s(sWoff)}', f's_add_u32 {s(sT+5)}, {s(sMemIn1)}, {s(sWoff)}', f's_add_u32 m0, {s(sWoff)}, {L_MEM+4096}',
         f'v_add_u32 {v(PM)}, {s(sWoff)}, {v(L16)}', f's_sub_u32 {s(sT+3)}, {s(sStep)}, 1', f'v_mov_b32 {v(FLG)}, {s(sT+3)}']
    p.extend(ld1); p.extend(pre); e(W(0))
    p.append(f'{L}_p1:')
    RM=lambda j: f'{MF32} {v(QA,4)}, {v(QA+4,4)}, {v(X+4*j,4)}, '+(v(QA,4) if j else '0')
    p.extend(['s_waitcnt vmcnt(7)',RM(0),'s_waitcnt vmcnt(6)',f'v_cmp_u_f32 vcc, {v(X)}, {v(X+4)}',RM(1),'s_waitcnt vmcnt(5)',RM(2),f's_cbranch_vccnz {L}_r0', f'{L}_r0x:']+tr(3))
    for j in range(3,8):
        e(f's_waitcnt vmcnt({7-j})'); e(RM(j))
    e(f'v_cvt_pk_bf16_f32 {v(M)}, {v(QA)}, {v(QA+1)}')
    e(f'v_cvt_pk_bf16_f32 {v(M+1)}, {v(QA+2)}, {v(QA+3)}')
    e(f'buffer_store_dwordx2 {v(M,2)}, {v(MPUB)}, {s(WS,4)}, {s(sMemPub)} offen{sc}')
    e(f'v_cmp_u_f32 vcc, {v(QA)}, {v(QA)}')
    p.extend(tr(4))
    e(f's_cbranch_vccnz {L}_r1')
    p.append(f'{L}_p1ok:')
    p.extend(xz)
    for i in range(OPT['dp']): e('s_nop 3')
    p.append(f'{L}_b1:')
    body=fix(p,f'step{mode}{par}',verbose)
    e=body.append
    e('s_barrier')
    N=OPT['np']
    pl=f'buffer_load_dwordx4 {v(STG,4)}, {v(T0)}, {s(WS,4)}, {s(sT+4)} offen sc1'
    dm=f'buffer_load_dwordx4 {v(T0)}, {s(WS,4)}, {s(sT+5)} offen sc1 lds'
    def nops(k):
        o=[]
        while k>0: o.append(f's_nop {min(k,16)-1}'); k-=16
        return o
    for i in range(N-1): e(pl); body.extend(nops(OPT['ps']))
    e(pl); e(f's_waitcnt vmcnt({N-1})'); e(f'v_cmp_u_f32 vcc, {v(STG)}, {v(STG+2)}'); e(f's_cbranch_vccnz {L}_pl')
    body.append(f'{L}_plx:')
    e(f'ds_write_b128 {v(PM)}, {v(STG,4)} offset:{L_MEM}'); e(dm); body.extend(tr(6))
    if sp==0: e(rstore(0))
    body.extend(kv_addr()); e(f's_branch L_ch_{mode}{1-par if two else 0}')
    q=[f'{L}_w:',f's_sleep {OPT["sw"]}']+kw; e=q.append
    e(f's_cmp_lg_u32 {s(sW)}, 3'); e(f's_cbranch_scc1 {L}_w3')
    e(f'buffer_store_dwordx2 {v(ONES,2)}, {v(MPUB)}, {s(WS,4)}, {s(sMemRst)} offen{sc}')
    q.extend([f'{L}_w3:']+kc('_kb')+trdump()+sr+xz+pre)
    e(f's_branch {L}_b1')
    alt=fix(head+q,f'alt{mode}{par}',False)
    q=alt[alt.index(f'{L}_w:'):]; e=q.append
    q.append(f'{L}_pl:')
    for i in range(4):
        e(pl); e(f's_waitcnt vmcnt({N-1})'); e(f'v_cmp_u_f32 vcc, {v(STG)}, {v(STG+2)}'); e(f's_cbranch_vccz {L}_plx')
    e(f's_add_u32 {s(sSpinF)}, {s(sSpinF)}, 1'); e(f's_cmp_gt_u32 {s(sSpinF)}, {LIM}'); e(f's_cbranch_scc0 {L}_pl'); e(f's_branch {L}_plx')
    if OPT['sync']: q.extend(kv_wait(L+'_ka')+kv_wait(L+'_kb'))
    q.append(f'{L}_r0:')
    e(f's_add_u32 {s(sSpin)}, {s(sSpin)}, 1'); e(f's_cmp_gt_u32 {s(sSpin)}, {LIM}'); e(f's_cbranch_scc1 {L}_r0x')
    q.extend(ld1); e(f's_branch {L}_p1')
    q.append(f'{L}_r1:')
    e(f's_add_u32 {s(sSpin)}, {s(sSpin)}, 256'); e(f's_cmp_gt_u32 {s(sSpin)}, {LIM}'); e(f's_cbranch_scc1 {L}_p1ok')
    q.extend(ld1); e(f's_branch {L}_p1')
    q.append(f'{L}_r2:')
    e(f's_add_u32 {s(sSpinU)}, {s(sSpinU)}, 1'); e(f's_cmp_gt_u32 {s(sSpinU)}, {LIM}'); e(f's_cbranch_scc1 {L}_r2x')
    e(f's_cmp_eq_u32 {s(sStep)}, 0'); e(f's_cbranch_scc1 {L}_r2x')
    e('s_waitcnt vmcnt(0) lgkmcnt(0)'); e('s_barrier')
    q.extend(pre); e(dm); e(f's_add_u32 m0, {s(sWoff)}, {L_MEM}'); e('s_nop 0'); e(dm.replace(s(sT+5),s(sT+4)))
    q.extend(kv_addr()+zero(ONES,4,'-1')); q.extend(sr); q.extend(xs); q.extend(zero(QA,8))
    e('s_waitcnt vmcnt(0) lgkmcnt(0)'); e('s_barrier')
    for c_ in range(4): e(mrd(c_))
    e(f's_branch {L}_re')
    return body, q

def chain_body(timing=False, verbose=False):
    A=Asm()
    pro=prologue(timing)
    F0,f0=step('F',0,verbose); F1,f1=step('F',1); S0,s0=step('S',0); S1,s1=step('S',1)
    if not OPT['rp']: check(pro+F0+F0,'chainF')
    for x in ((pro,F0,F1,f0,f1,S0,S1,s0,s1) if (OPT['tr'] or OPT['solo']) else (pro,F0,f0,S0,s0)): A.extend(x)
    f=['L_ch_fin:']+zero(KA,16)+[f's_waitcnt vmcnt({3+OPT["ek"]}) lgkmcnt(0)','s_barrier','L_ch_fin2:']+[mrd(c) for c in range(8)]
    f[1:1]=['s_waitcnt lgkmcnt(0)']
    for c in range(8):
        for m_,acc in (('k',KA),('v',VA)):
            for t in range(2): f.append(smf(acc+4*t,M+4*c,unit((m_,c),t)))
    f+=[f'v_add_f32 {v(KA+2*i)}, {v(KA+2*i)}, {v(KA+2*i+1)}' for i in range(8)]
    f+=[f'v_cmp_u_f32 vcc, {v(KA)}, {v(KA+2)}', f'v_cvt_pk_bf16_f32 {v(KVQ+1)}, {v(KA)}, {v(KA+4)}', f'v_cvt_pk_bf16_f32 {v(KVQ+3)}, {v(KA+2)}, {v(KA+6)}',
        f'v_cvt_pk_bf16_f32 {v(KVQ)}, {v(VA)}, {v(VA+2)}', f'v_cvt_pk_bf16_f32 {v(KVQ+2)}, {v(VA+4)}, {v(VA+6)}', 's_cbranch_vccz L_ch_last',
        f's_add_u32 {s(sSpinU)}, {s(sSpinU)}, 1', f's_cmp_gt_u32 {s(sSpinU)}, {LIM}', 's_cbranch_scc1 L_ch_last',
        f's_mov_b32 m0, {L_MEM}', f's_cmp_lg_u32 {s(sW)}, 1', 's_barrier', 's_cbranch_scc1 L_ch_fin3']
    f+=[f'buffer_load_dwordx4 {v(H2A)}, {s(WS,4)}, {s(sMemIn0)} offen offset:{1024*j} sc1 lds' for j in range(4)]
    f+=[f's_mov_b32 m0, {L_MEM+4096}','s_nop 0']+[f'buffer_load_dwordx4 {v(H2A)}, {s(WS,4)}, {s(sMemIn1)} offen offset:{1024*j} sc1 lds' for j in range(4)]
    f+=['L_ch_fin3:']+zero(KA,16)+['s_waitcnt vmcnt(0)','s_barrier','s_branch L_ch_fin2']
    A.extend(fix(f,'fin'))
    A.label('L_ch_last')
    A(f'buffer_store_dwordx4 {v(KVQ,4)}, {v(L16)}, {s(WS,4)}, {s(sKvm)} offen sc1')
    if timing:
        A(f'''s_waitcnt vmcnt(0)
        s_lshl_b32 {s(sSpinU)}, {s(sSpinU)}, 16
        s_add_u32 {s(sSpin)}, {s(sSpin)}, {s(sSpinU)}
        s_memrealtime {s(sTime+4,2)}
        s_memtime {s(sTime+8,2)}
        s_waitcnt lgkmcnt(0)
        s_sub_u32 {s(sT)}, {s(sTime+2)}, {s(sTime)}
        s_sub_u32 {s(sT+1)}, {s(sTime+4)}, {s(sTime+2)}
        s_sub_u32 {s(sT+2)}, {s(sTime+8)}, {s(sTime+6)}
        v_mov_b32 v4, {s(sT)}
        v_mov_b32 v5, {s(sT+1)}
        v_mov_b32 v6, {s(sT+2)}
        v_mov_b32 v7, {s(sSpin)}
        s_lshl_b32 {s(sT)}, {s(sH)}, 2
        s_add_u32 {s(sT)}, {s(sT)}, {s(sW)}
        s_lshl_b32 {s(sT)}, {s(sT)}, 5
        s_add_u32 {s(sT)}, {s(sT)}, 16384
        v_mov_b32 v0, {s(sT)}
        s_sub_u32 s80, s80, {s(sTime)}
        s_sub_u32 s82, s82, {s(sTime)}
        s_sub_u32 s84, s84, {s(sTime)}
        s_sub_u32 s86, s86, {s(sTime)}
        v_mov_b32 v8, s80
        v_mov_b32 v9, s82
        v_mov_b32 v10, s84
        v_mov_b32 v11, s86
        s_mov_b64 exec, 1
        global_store_dwordx4 v0, v[8:11], {s(DBG,2)} offset:16
        global_store_dwordx4 v0, v[4:7], {s(DBG,2)}''')
    return A

def kernel_text(name, body):
    return f'''.globl {name}
.p2align 8
.type {name},@function
{name}:
{body.text()}    s_endpgm
'''
def kernel_desc(name, vgpr=512, accum=256, sgpr=102):
    return f'''.p2align 6
.amdhsa_kernel {name}
  .amdhsa_next_free_vgpr {vgpr}
  .amdhsa_next_free_sgpr {sgpr}
  .amdhsa_accum_offset {accum}
  .amdhsa_group_segment_fixed_size 0
  .amdhsa_kernarg_size 120
  .amdhsa_user_sgpr_count 2
  .amdhsa_user_sgpr_kernarg_segment_ptr 1
  .amdhsa_system_sgpr_workgroup_id_x 1
  .amdhsa_float_denorm_mode_32 3
.end_amdhsa_kernel
'''

if __name__=='__main__':
    import sys
    for x in sys.argv:
        if '=' in x: OPT[x.split('=')[0]]=int(x.split('=')[1])
    A=Asm()
    if 'spread' in sys.argv:
        A(f's_cmp_ge_u32 s2, 32\ns_cbranch_scc1 L_exit\ns_mov_b32 {s(sH)}, s2')
    else:
        A(f's_cmp_ge_u32 s2, 256\ns_cbranch_scc1 L_exit\ns_and_b32 s3, s2, 7\ns_cmp_lg_u32 s3, 0\ns_cbranch_scc1 L_exit\ns_lshr_b32 {s(sH)}, s2, 3')
    A.extend(chain_body(timing=True, verbose=True))
    A.label('L_exit')
    txt='; @launch kernel=chain_kernel grid=(256,1,1) block=(256,1,1) lds=163840\n.amdgcn_target "amdgcn-amd-amdhsa--gfx950"\n.text\n'
    txt+=kernel_text('chain_kernel',A)+'.section .rodata,"a"\n'+kernel_desc('chain_kernel')
    open(sys.argv[1],'w').write(txt)
```

```python
from asmlib import *
from layout import *
import math, struct
MF32='v_mfma_f32_16x16x32_bf16'; MF16='v_mfma_f32_16x16x16_bf16'; SMF='v_smfmac_f32_16x16x64_bf16'
f2u=lambda x: struct.unpack('<I',struct.pack('<f',x))[0]
WS=4; SRD=8; DBG=12; sB=14; sW=15; sMask=16; sSpin=17
sP=52
PX,PWQ,PWK,PWV,PWO,PW1,PW2,PC,PWM,POUT=[sP+2*i for i in (0,2,3,4,5,8,9,10,11,12)]
sT=40
sHd=21; sR=22; sZ=39
LN=0; N=1; Gv=2; L16=3
LIM='0x400000'
OPT=dict(d2=2, pf2=0, pf1=0, d1p=7, alt=0, hb=20, nl=4, dl=0, lp=8, pn=2, rd=4)
STAMP=lambda slot,who: []
def common():
    return [f's_load_dwordx16 {s(sP,16)}, s[0:1], 0', f's_load_dwordx8 {s(sP+16,8)}, s[0:1], 64', f's_load_dwordx2 {s(sP+24,2)}, s[0:1], 96',
        f's_load_dwordx2 {s(DBG,2)}, s[0:1], 104', f's_load_dwordx2 {s(WS,2)}, s[0:1], 112',
        'v_lshrrev_b32 v1, 6, v0', f'v_and_b32 {v(LN)}, 63, v0', f'v_readfirstlane_b32 {s(sW)}, v1',
        f's_mov_b32 {s(WS+2)}, {WS_BYTES}', f's_mov_b32 {s(WS+3)}, 0x20000', f's_mov_b32 {s(SRD+3)}, 0x20000',
        f's_mov_b32 {s(sMask)}, 0xffff0000', f's_mov_b32 {s(sSpin)}, 0',
        f'v_and_b32 {v(N)}, 15, {v(LN)}', f'v_lshrrev_b32 {v(Gv)}, 4, {v(LN)}', f'v_lshlrev_b32 {v(L16)}, 4, {v(LN)}', 's_waitcnt lgkmcnt(0)']
NR=2; NG=5
def roles():
    return [f's_lshr_b32 {s(sHd)}, {s(sB)}, 1', f's_and_b32 {s(sR)}, {s(sB)}, 1', f's_sub_u32 {s(sZ)}, {s(sB)}, 64']
def srd(p,size): return [f's_mov_b32 {s(SRD)}, {s(p)}', f's_mov_b32 {s(SRD+1)}, {s(p+1)}', f's_mov_b32 {s(SRD+2)}, {size}']
def rnd(a,b,t): return [f'v_cvt_pk_bf16_f32 {v(t)}, {v(a)}, {v(b)}', f'v_lshlrev_b32 {v(a)}, 16, {v(t)}', f'v_and_b32 {v(b)}, {s(sMask)}, {v(t)}']
def unp(d,src): return [f'v_and_b32 {v(d+1)}, {s(sMask)}, {v(src)}', f'v_lshlrev_b32 {v(d)}, 16, {v(src)}']
def xg(op,a,t):
    return [f'v_mov_b32 {v(t)}, {v(a)}', f'v_permlane32_swap_b32 {v(a)}, {v(t)}', f'{op} {v(a)}, {v(a)}, {v(t)}',
            f'v_mov_b32 {v(t)}, {v(a)}', f'v_permlane16_swap_b32 {v(a)}, {v(t)}', f'{op} {v(a)}, {v(a)}, {v(t)}']
def xrow(a):
    return [f'v_add_f32_dpp {v(a)}, {v(a)}, {v(a)} row_ror:{k} row_mask:0xf bank_mask:0xf' for k in (1,2,4,8)]
_u=[0]
def poll(addr_v, soff, cmp_s, r, off=0, sleep=0):
    _u[0]+=1; k=_u[0]
    return [f'L_po{k}:', f'buffer_load_dword {v(r)}, {v(addr_v)}, {s(WS,4)}, {soff} offen offset:{off} sc1', f's_add_u32 {s(sSpin)}, {s(sSpin)}, 1',
            f's_cmp_gt_u32 {s(sSpin)}, {LIM}', f's_cbranch_scc1 L_pe{k}', 's_waitcnt vmcnt(0)', f'v_cmp_gt_u32 vcc, {cmp_s}, {v(r)}']+(
            [f's_cbranch_vccz L_pe{k}', f's_sleep {sleep}', f's_branch L_po{k}'] if sleep else [f's_cbranch_vccnz L_po{k}'])+[f'L_pe{k}:', 's_waitcnt vmcnt(0)']

def pollp(addr_v, soff, cmp_s, r, N=4):
    _u[0]+=1; k=_u[0]
    ld=f'buffer_load_dword {v(r)}, {v(addr_v)}, {s(WS,4)}, {soff} offen sc1 ;stamp'
    o=[]
    for i in range(N-1): o+=[ld,'s_nop 11']
    o+=[f'L_po{k}:', ld, f's_add_u32 {s(sSpin)}, {s(sSpin)}, 1', f's_cmp_gt_u32 {s(sSpin)}, {LIM}', f's_cbranch_scc1 L_pe{k}', f's_waitcnt vmcnt({N-1}) ;stamp',
        f'v_cmp_gt_u32 vcc, {cmp_s}, {v(r)}', f's_cbranch_vccnz L_po{k}', f'L_pe{k}:']
    return o

def mod_phase(sync):
    p=[]; e=p.append
    W_=16; C_=48; AC=56; A0=4; A1=5; T=6
    p.append('L_mod_top:')
    e(f'v_lshrrev_b32 {v(A0)}, 2, {v(LN)}'); e(f's_lshl_b32 {s(sT)}, {s(sW)}, 4'); e(f'v_add_u32 {v(A0)}, {s(sT)}, {v(A0)}')
    e(f'v_lshlrev_b32 {v(A1)}, 1, {v(A0)}')
    e(f'v_mul_u32_u24 {v(A0)}, 6144, {v(A0)}'); e(f'v_and_b32 {v(T)}, 3, {v(LN)}'); e(f'v_lshl_add_u32 {v(A0)}, {v(T)}, 4, {v(A0)}')
    p+=srd(PWM,512*6144)
    for i in range(8): e(f'global_load_ushort {v(C_+i)}, {v(A1)}, {s(PC,2)} offset:{128*i}')
    e(f's_lshl_b32 {s(sT)}, {s(sZ)}, 6')
    for i in range(8):
        e(f'buffer_load_dwordx4 {v(W_+4*i,4)}, {v(A0)}, {s(SRD,4)}, {s(sT)} offen'); e(f's_add_u32 {s(sT)}, {s(sT)}, {64*6144}')
    for i in range(8): e(f'v_lshlrev_b32 {v(C_+i)}, 16, {v(C_+i)}')
    for i in range(8): e(f'v_mul_f32 {v(AC+i)}, {hex(f2u(-math.log2(math.e)))}, {v(C_+i)}')
    for i in range(8): e(f'v_exp_f32 {v(AC+i)}, {v(AC+i)}')
    for i in range(8): e(f'v_add_f32 {v(AC+i)}, 1.0, {v(AC+i)}')
    for i in range(8): e(f'v_rcp_f32 {v(AC+i)}, {v(AC+i)}')
    for i in range(8): e(f'v_mul_f32 {v(C_+i)}, {v(C_+i)}, {v(AC+i)}')
    for i in range(0,8,2): p+=rnd(C_+i,C_+i+1,T)
    for i in range(8):
        for d in range(4):
            p+=unp(8,W_+4*i+d)
            for k in range(2):
                e(f'v_mul_f32 {v(AC+2*d+k)}, {v(C_+i)}, {v(8+k)}' if i==0 else f'v_fmac_f32 {v(AC+2*d+k)}, {v(C_+i)}, {v(8+k)}')
    for k in (4,8):
        for i in range(8): e(f'v_add_f32_dpp {v(AC+i)}, {v(AC+i)}, {v(AC+i)} row_ror:{k} row_mask:0xf bank_mask:0xf')
    e(f's_lshl_b32 {s(sT)}, {s(sW)}, 9'); e(f'v_and_b32 {v(T)}, 3, {v(LN)}'); e(f'v_lshlrev_b32 {v(T)}, 5, {v(T)}')
    e(f'v_lshl_add_u32 {v(T)}, {v(Gv)}, 7, {v(T)}'); e(f'v_add_u32 {v(T)}, {s(sT)}, {v(T)}')
    e(f'ds_write_b128 {v(T)}, {v(AC,4)}'); e(f'ds_write_b128 {v(T)}, {v(AC+4,4)} offset:16')
    e('s_waitcnt lgkmcnt(0)'); e('s_barrier')
    e(f's_cmp_lg_u32 {s(sW)}, 0'); e('s_cbranch_scc1 L_mod_end')
    e(f'v_and_b32 {v(A0)}, 31, {v(LN)}'); e(f'v_lshrrev_b32 {v(A1)}, 5, {v(LN)}'); e(f'v_lshlrev_b32 {v(T)}, 2, {v(A0)}'); e(f'v_lshl_add_u32 {v(T)}, {v(A1)}, 10, {v(T)}')
    for i in range(8): e(f'ds_read_b32 {v(AC+i)}, {v(T)} offset:{128*i}')
    for i in range(1,8): e(f'v_add_f32 {v(AC)}, {v(AC)}, {v(AC+i)}')
    e(f'v_mov_b32 {v(T)}, {v(AC)}'); e(f'v_permlane32_swap_b32 {v(AC)}, {v(T)}'); e(f'v_add_f32 {v(AC)}, {v(AC)}, {v(T)}')
    e(f'v_cvt_pk_bf16_f32 {v(AC)}, {v(AC)}, {v(AC)}')
    e(f'v_lshlrev_b32 {v(A0)}, 1, {v(A0)}'); e(f's_lshl_b32 {s(sT)}, {s(sZ)}, 6'); e(f's_add_u32 {s(sT)}, {s(sT)}, {MOD_OFF}')
    e(f'buffer_store_short {v(AC)}, {v(A0)}, {s(WS,4)}, {s(sT)} offen sc1')
    if sync:
        e('s_waitcnt vmcnt(0)')
        e(f's_cmp_lt_u32 {s(sZ)}, 32'); e(f's_cselect_b32 {s(sT)}, 0, 4')
        e(f'v_mov_b32 {v(A0)}, {s(sT)}'); e(f'v_mov_b32 {v(A1)}, 1'); e('s_mov_b64 exec, 1')
        e(f'global_atomic_add {v(A0)}, {v(A1)}, {s(DBG,2)} offset:128'); e('s_mov_b64 exec, -1')
    p.append('L_mod_end:')
    e('s_barrier')
    if STAMP(0,0):
        e(f's_cmp_ge_u32 {s(sZ)}, 32'); e('s_cbranch_scc1 L_mod_ns'); p+=STAMP(1,64); p.append('L_mod_ns:')
    e(f's_add_u32 {s(sZ)}, {s(sZ)}, 32'); e(f's_cmp_lt_u32 {s(sZ)}, 96'); e('s_cbranch_scc1 L_mod_top')
    return fix(p,'mod')

def dbg_wait(off,val,r):
    _u[0]+=1; k=_u[0]
    return [f'v_mov_b32 {v(r+1)}, {off}', f'L_po{k}:', f'global_load_dword {v(r)}, {v(r+1)}, {s(DBG,2)} sc1', f's_add_u32 {s(sSpin)}, {s(sSpin)}, 1',
            f's_cmp_gt_u32 {s(sSpin)}, {LIM}', f's_cbranch_scc1 L_pe{k}', 's_waitcnt vmcnt(0)', f'v_cmp_gt_u32 vcc, {val}, {v(r)}', f's_cbranch_vccnz L_po{k}', f'L_pe{k}:', 's_waitcnt vmcnt(0)']

def ln_phase(sync):
    p=[]; e=p.append
    XR=16; XF=32; MD=64; A0=4; A1=5; T=6; S=7; Q=8; R_=10; MU=14; sTile=20
    e(f's_sub_u32 {s(sTile)}, {s(sB)}, 96')
    p+=srd(PX,2048*1024)
    e(f'v_lshlrev_b32 {v(A0)}, 10, {v(N)}'); e(f'v_lshl_add_u32 {v(A0)}, {v(Gv)}, 4, {v(A0)}')
    e(f's_lshl_b32 {s(sT)}, {s(sTile)}, 14'); e(f's_lshl_b32 {s(sT+1)}, {s(sW)}, 8'); e(f's_add_u32 {s(sT)}, {s(sT)}, {s(sT+1)}')
    for i in range(4): e(f'buffer_load_dwordx4 {v(XR+4*i,4)}, {v(A0)}, {s(SRD,4)}, {s(sT)} offen offset:{64*i}')
    if OPT['pf1']:
        e(f's_lshl_b32 {s(sT+3)}, {s(sTile)}, 2'); e(f's_add_u32 {s(sT+3)}, {s(sT+3)}, {s(sW)}'); e(f's_lshl_b32 {s(sT+3)}, {s(sT+3)}, 13'); e(f's_add_u32 {s(sT+4)}, {s(sT+3)}, 4096')
        for ptr in (PWK,PWV,PWQ):
            p+=srd(ptr,4<<20)
            for i in range(8): e(f'buffer_load_dwordx4 {v(100,4)}, {v(L16)}, {s(SRD,4)}, {s(sT+3+(i>>2))} offen offset:{1024*(i&3)}')
    e(f'v_lshlrev_b32 {v(A1)}, 4, {v(N)}'); e(f's_lshl_b32 {s(sT+2)}, {s(sW)}, 2'); e(f'v_add_u32 {v(A0)}, {s(sT+2)}, {v(A1)}')
    for i in range(16): p+=unp(XF+2*i,XR+i)
    e(f'v_add_f32 {v(S)}, {v(XF)}, {v(XF+1)}')
    for i in range(2,32): e(f'v_add_f32 {v(S)}, {v(S)}, {v(XF+i)}')
    def cross(off):
        o=xg('v_add_f32',S,T)+[f'ds_write_b32 {v(A0)}, {v(S)} offset:{off}','s_waitcnt lgkmcnt(0)','s_barrier',f'ds_read_b128 {v(R_,4)}, {v(A1)} offset:{off}',
           f'v_add_f32 {v(S)}, {v(R_)}, {v(R_+1)}', f'v_add_f32 {v(T)}, {v(R_+2)}, {v(R_+3)}', f'v_add_f32 {v(S)}, {v(S)}, {v(T)}', f'v_mul_f32 {v(S)}, {hex(f2u(1/512))}, {v(S)}']
        return o
    p+=cross(0)
    e(f'v_mov_b32 {v(MU)}, {v(S)}')
    for i in range(32):
        e(f'v_sub_f32 {v(T)}, {v(XF+i)}, {v(MU)}'); e(f'v_mul_f32 {v(S)}, {v(T)}, {v(T)}' if i==0 else f'v_fmac_f32 {v(S)}, {v(T)}, {v(T)}')
    p+=cross(256)
    p+=rnd(MU,S,T)
    e(f'v_add_f32 {v(S)}, {hex(f2u(1e-5))}, {v(S)}'); p+=rnd(S,Q,T)[:2]
    e(f'v_sqrt_f32 {v(S)}, {v(S)}'); p+=rnd(S,Q,T)[:2]
    e(f'v_rcp_f32 {v(S)}, {v(S)}')
    for i in range(0,32,2):
        e(f'v_sub_f32 {v(XF+i)}, {v(XF+i)}, {v(MU)}'); e(f'v_sub_f32 {v(XF+i+1)}, {v(XF+i+1)}, {v(MU)}'); p+=rnd(XF+i,XF+i+1,T)
        e(f'v_mul_f32 {v(XF+i)}, {v(XF+i)}, {v(S)}'); e(f'v_mul_f32 {v(XF+i+1)}, {v(XF+i+1)}, {v(S)}'); p+=rnd(XF+i,XF+i+1,T)
    p+=[]
    if sync: p+=dbg_wait(128,32,R_)
    p+=[]
    e(f'v_lshlrev_b32 {v(A0)}, 4, {v(Gv)}'); e(f's_add_u32 {s(sT+1)}, {s(sT+1)}, {MOD_OFF}')
    for i in range(4): e(f'buffer_load_dwordx4 {v(MD+4*i,4)}, {v(A0)}, {s(WS,4)}, {s(sT+1)} offen offset:{1024+64*i} sc1')
    for i in range(4): e(f'buffer_load_dwordx4 {v(MD+16+4*i,4)}, {v(A0)}, {s(WS,4)}, {s(sT+1)} offen offset:{64*i} sc1')
    e(f's_lshl_b32 {s(sT)}, {s(sTile)}, 14'); e(f's_lshl_b32 {s(sT+2)}, {s(sW)}, 12'); e(f's_add_u32 {s(sT)}, {s(sT)}, {s(sT+2)}'); e(f's_add_u32 {s(sT)}, {s(sT)}, {H_OFF}')
    for i in range(16):
        a_=XF+2*i
        p+=unp(Q,MD+i); e(f'v_add_f32 {v(Q)}, 1.0, {v(Q)}'); e(f'v_add_f32 {v(Q+1)}, 1.0, {v(Q+1)}'); p+=rnd(Q,Q+1,T)
        e(f'v_mul_f32 {v(a_)}, {v(a_)}, {v(Q)}'); e(f'v_mul_f32 {v(a_+1)}, {v(a_+1)}, {v(Q+1)}'); p+=rnd(a_,a_+1,T)
        p+=unp(Q,MD+16+i); e(f'v_add_f32 {v(a_)}, {v(a_)}, {v(Q)}'); e(f'v_add_f32 {v(a_+1)}, {v(a_+1)}, {v(Q+1)}')
        e(f'v_cvt_pk_bf16_f32 {v(XR+i)}, {v(a_)}, {v(a_+1)}')
        if i%4==3: e(f'buffer_store_dwordx4 {v(XR+i-3,4)}, {v(L16)}, {s(WS,4)}, {s(sT)} offen offset:{1024*(i//4)} sc1')
    p+=[]
    if sync:
        p+=dbg_wait(136,1,R_)
        e('s_barrier')
        e(f's_lshl_b32 {s(sT)}, {s(sTile)}, 2'); e(f's_add_u32 {s(sT)}, {s(sT)}, {BF_OFF+BF_H}'); e(f'v_mov_b32 {v(T)}, 1')
        e(f's_cmp_lg_u32 {s(sW)}, 0'); e('s_cbranch_scc1 L_ln_end'); e('s_mov_b64 exec, 1')
        e(f'buffer_store_dword {v(T)}, off, {s(WS,4)}, {s(sT)} sc1'); e('s_mov_b64 exec, -1')
        p.append('L_ln_end:')
    return fix(p,'ln')

def flag_init():
    p=[]; e=p.append
    for i in range(4): e(f'v_mov_b32 {v(8+i)}, 0')
    e(f's_lshl_b32 {s(sT)}, {s(sW)}, 12'); e(f's_add_u32 {s(sT)}, {s(sT)}, {BF_OFF}')
    for i in range(4): e(f'buffer_store_dwordx4 {v(8,4)}, {v(L16)}, {s(WS,4)}, {s(sT)} offen offset:{1024*i} sc1')
    e('s_waitcnt vmcnt(0)'); e('s_barrier')
    e(f'v_mov_b32 v8, 136'); e('v_mov_b32 v9, 1'); e('s_mov_b64 exec, 1'); e(f'global_store_dword v8, v9, {s(DBG,2)} sc1'); e('s_mov_b64 exec, -1')
    return fix(p,'fi')

def wstream(blocks, sRing, D=8, pf=None, lead=0):
    p=[]; e=p.append; ng=len(blocks)//4; assert len(blocks)%4==0
    VQ=[]
    def pre(gi):
        if pf and gi<ng:
            for l in pf(gi):
                e(l)
                if l.startswith('buffer'): VQ.append('p')
    def issue(gi):
        pre(gi+lead)
        for b in range(4):
            su,vo,so,_=blocks[4*gi+b]
            if su: p.extend(su)
            e(f's_add_u32 m0, {s(sRing)}, {((4*gi+b)%32)*1024}'); p.extend(so(sT+7))
            e(f'buffer_load_dwordx4 {v(vo)}, {s(SRD,4)}, {s(sT+7)} offen lds'); VQ.append(gi)
    for gi in range(lead): pre(gi)
    for gi in range(min(D,ng)): issue(gi)
    head=list(p); p.clear()
    for gi in range(ng):
        e(f's_waitcnt vmcnt({len(VQ)-1-max(k for k,t in enumerate(VQ) if t==gi)})')
        for b in range(4):
            for dst,tra,off in blocks[4*gi+b][3]: e(f'ds_read_b64_tr_b16 {dst}, {v(tra)} offset:{((4*gi+b)%32)*1024+off}')
        e('s_waitcnt lgkmcnt(0)')
        if gi+D<ng: issue(gi+D)
    return head,p

sSeg=23; sRing=24; sCnt=25
VO=4; TRA=5; TRB=6; FA=7
def wreg(m,t,ks):
    i=(m*2+t)*64+4*ks
    return ('a',i) if i<256 else ('v',128+i-256)
sHsrc=26; sBuf=27; sNext=32; sGot=33
def hdma():
    o=[f's_lshl_b32 {s(sHsrc)}, {s(sNext)}, 15', f's_lshl_b32 {s(sT)}, {s(sW)}, 13', f's_add_u32 {s(sHsrc)}, {s(sHsrc)}, {s(sT)}', f's_add_u32 {s(sHsrc)}, {s(sHsrc)}, {H_OFF}',
        f's_add_u32 m0, {s(sBuf)}, {s(sT)}', f's_add_u32 {s(sT+1)}, {s(sHsrc)}, 4096']
    o+=[f'buffer_load_dwordx4 {v(L16)}, {s(WS,4)}, {s(sHsrc)} offen offset:{1024*i} sc1 lds' for i in range(4)]
    o+=['s_add_u32 m0, m0, 4096','s_nop 0']+[f'buffer_load_dwordx4 {v(L16)}, {s(WS,4)}, {s(sT+1)} offen offset:{1024*i} sc1 lds' for i in range(4)]
    return o
def p1_setup():
    p=[]; e=p.append
    A0,A1,T0_,T1_,U0,U1,r,c_,t=[112+i for i in range(9)]
    e(f'v_lshlrev_b32 {v(t)}, 1, {v(Gv)}'); e(f'v_xor_b32 {v(t)}, {v(t)}, {v(N)}'); e(f'v_lshlrev_b32 {v(t)}, 4, {v(t)}'); e(f'v_lshl_add_u32 {v(A0)}, {v(Gv)}, 13, {v(t)}')
    e(f's_lshr_b32 {s(sT)}, {s(sW)}, 1'); e(f's_lshl_b32 {s(sT)}, {s(sT)}, 18'); e(f's_and_b32 {s(sT+1)}, {s(sW)}, 1'); e(f's_lshl_b32 {s(sT+1)}, {s(sT+1)}, 15'); e(f's_add_u32 {s(sT)}, {s(sT)}, {s(sT+1)}')
    e(f's_lshl_b32 {s(sT+1)}, {s(sHd)}, 8'); e(f's_add_u32 {s(sT)}, {s(sT)}, {s(sT+1)}'); e(f'v_add_u32 {v(A0)}, {s(sT)}, {v(A0)}'); e(f'v_xor_b32 {v(A1)}, 128, {v(A0)}')
    e(f's_lshl_b32 {s(sRing)}, {s(sW)}, 12'); e(f's_add_u32 {s(sRing)}, {s(sRing)}, 32768')
    e(f'v_lshrrev_b32 {v(r)}, 2, {v(N)}'); e(f'v_and_b32 {v(c_)}, 3, {v(N)}'); e(f'v_and_b32 {v(t)}, 1, {v(Gv)}'); e(f'v_lshl_add_u32 {v(t)}, {v(t)}, 2, {v(r)}')
    e(f's_lshl_b32 {s(sT)}, {s(sW)}, 1'); e(f'v_xor_b32 {v(t)}, {s(sT)}, {v(t)}')
    e(f'v_lshlrev_b32 {v(T0_)}, 10, {v(Gv)}'); e(f'v_lshl_add_u32 {v(T0_)}, {v(r)}, 8, {v(T0_)}'); e(f'v_lshl_add_u32 {v(T0_)}, {v(t)}, 5, {v(T0_)}'); e(f'v_lshl_add_u32 {v(T0_)}, {v(c_)}, 3, {v(T0_)}')
    e(f'v_add_u32 {v(T0_)}, 32768, {v(T0_)}'); e(f'v_xor_b32 {v(T1_)}, 32, {v(T0_)}'); e(f'v_add_u32 {v(U0)}, 65536, {v(T0_)}'); e(f'v_add_u32 {v(U1)}, 65536, {v(T1_)}')
    e(f's_mov_b32 {s(sNext)}, {s(sR)}'); e(f's_mov_b32 {s(sBuf)}, 0'); e(f's_mov_b32 {s(sGot)}, 0'); e(f'v_lshlrev_b32 {v(FA)}, 3, {v(LN)}'); e('v_mov_b32 v9, 136')
    def stream(order,tag):
        q=[]; e=q.append; VQ=[]; D=OPT['d1p']
        bt=[(m,c) for m in order for c in range(8)]
        def issue(bi):
            m,c=bt[bi]; q.extend(srd((PWK,PWV,PWQ)[m],4<<20))
            for i in range(4):
                e(f's_add_u32 m0, {s(sRing)}, {(bi%8)*16384+1024*i}'); e(f's_mov_b32 {s(sT+7)}, {(64*c+8*i)*8192}')
                e(f'buffer_load_dwordx4 {v(A1 if i&1 else A0)}, {s(SRD,4)}, {s(sT+7)} offen lds'); VQ.append(bi)
        wt=lambda x: f's_waitcnt vmcnt({len(VQ)-1-max(k for k,t_ in enumerate(VQ) if t_==x)})'
        for bi in range(D): issue(bi)
        for bi in range(24):
            m,c=bt[bi]
            e(wt(bi)); e('s_barrier')
            if bi>=1 and bi-1+8<24 and D==8: issue(bi-1+8)
            elif D<8 and bi+D<24: issue(bi+D)
            for b_ in range(4):
                for t_ in range(2):
                    pf,b0=wreg(m,t_,2*c+(b_>>1)); tra=[[T0_,T1_],[U0,U1]][(bi%8)>>2][t_]
                    e(f'ds_read_b64_tr_b16 {R(pf,b0+2*(b_&1),2)}, {v(tra)} offset:{(bi%4)*16384+b_*4096}')
            if bi==4: e(f'global_load_dword v8, v9, {s(DBG,2)} sc1 ;stamp'); VQ.append('i')
            if bi==OPT['hb']:
                e(wt('i')); e('v_cmp_eq_u32 vcc, 0, v8'); e(f's_cbranch_vccz L_p1_in{tag}'); q.extend(dbg_wait(136,1,8)); q.append(f'L_p1_in{tag}:')
                e(f's_mov_b32 {s(sT)}, {BF_OFF+BF_H}'); e(f'buffer_load_dwordx2 v[8:9], {v(FA)}, {s(WS,4)}, {s(sT)} offen sc1 ;stamp'); VQ.append('h')
            e('s_waitcnt lgkmcnt(0)')
        e('s_waitcnt vmcnt(0)')
        return q
    if OPT['alt']:
        e(f's_cmp_lg_u32 {s(sR)}, 0'); e('s_cbranch_scc1 L_p1_alt')
        p+=stream((0,1,2),'a')+['s_branch L_p1_ld','L_p1_alt:']+stream((1,0,2) if OPT['alt']==1 else (2,1,0),'b')+['L_p1_ld:']
    else: p+=stream((0,1,2),'a')
    return fix(p,'p1a')

def p1_main(sync):
    p=[]; e=p.append
    AC=16; HF=64; OUT=96; sKo=28; sVo=29; sQo=30; sFl=31
    acc=lambda m,t,mt: AC+((m*2+t)*2+mt)*4
    e('s_barrier')
    if sync:
        e('v_min_u32 v8, v8, v9'); e('v_cmp_gt_u32 vcc, 1, v8'); e('s_cbranch_vccz L_p1_hok')
        e(f's_mov_b32 {s(sT)}, {BF_OFF+BF_H}')
        pl=poll(FA,s(sT),'1',8); pl[1]=pl[1].replace('dword v8','dwordx2 v[8:9]'); pl[6:6]=['v_min_u32 v8, v8, v9']
        p+=pl+['L_p1_hok:']
    e(f's_mov_b32 {s(sSeg)}, {s(sR)}'); e(f's_mov_b32 {s(sNext)}, {s(sR)}'); e(f's_mov_b32 {s(sBuf)}, 0'); e(f's_mov_b32 {s(sCnt)}, 0')
    e(f's_lshl_b32 {s(sFl)}, {s(sHd)}, 7'); e(f's_lshl_b32 {s(sT)}, {s(sR)}, 2'); e(f's_add_u32 {s(sFl)}, {s(sFl)}, {s(sT)}'); e(f's_add_u32 {s(sFl)}, {s(sFl)}, {BF_OFF+BF_KV}')
    p+=hdma()
    e(f's_mov_b32 {s(sT+5)}, 0')
    for i in range(4): e(f'v_mov_b32 v{12+i}, -1')
    p.append('L_p1_loop:')
    e(f's_cmp_ge_u32 {s(sSeg)}, 64'); e(f's_cselect_b32 {s(sT+4)}, 0, {s(sCnt)}'); e(f's_cmp_lt_u32 {s(sT+4)}, {OPT["nl"]}'); e('s_cbranch_scc0 L_p1_lag')
    e('s_waitcnt vmcnt(0)'); e(f's_mov_b32 {s(sT+5)}, {s(sCnt)}')
    p.append('L_p1_lag:')
    e('s_waitcnt vmcnt(7)'); e('s_barrier')
    if sync:
        e(f's_cmp_lg_u32 {s(sW)}, 0'); e('s_cbranch_scc1 L_p1_nf'); e(f'v_mov_b32 {v(FA)}, {s(sT+5)}'); e('s_mov_b64 exec, 1')
        e(f'buffer_store_dword {v(FA)}, off, {s(WS,4)}, {s(sFl)} sc1'); e('s_mov_b64 exec, -1'); p.append('L_p1_nf:')
    e(f's_mov_b32 {s(sT+5)}, {s(sCnt)}')
    if STAMP(0,0):
        e(f's_cmp_lg_u32 {s(sCnt)}, 0'); e('s_cbranch_scc1 L_p1_s0'); p+=[]; p.append('L_p1_s0:')
        e(f's_cmp_lg_u32 {s(sCnt)}, 1'); e('s_cbranch_scc1 L_p1_s1'); p+=[]; p.append('L_p1_s1:')
    e(f's_cmp_ge_u32 {s(sSeg)}, 64'); e('s_cbranch_scc1 L_p1_end')
    e(f'v_add_u32 {v(VO)}, {s(sBuf)}, {v(L16)}')
    e(f's_xor_b32 {s(sBuf)}, {s(sBuf)}, 32768'); e(f's_add_u32 {s(sNext)}, {s(sSeg)}, {NR}')
    if OPT['pf2']:
        e(f's_mul_i32 {s(sT)}, {s(sCnt)}, 896'); e(f's_lshl_b32 {s(sT+1)}, {s(sB)}, 2'); e(f's_add_u32 {s(sT)}, {s(sT)}, {s(sT+1)}'); e(f's_add_u32 {s(sT)}, {s(sT)}, {s(sW)}')
        e(f's_cmp_lt_u32 {s(sT)}, 5888'); e(f's_cselect_b64 {s(SRD,2)}, {s(PW1,2)}, {s(PW2,2)}'); e(f's_cselect_b32 {s(sT+1)}, 0, 1792')
        e(f's_add_u32 {s(sT+1)}, {s(sT+1)}, 4096'); e(f's_mov_b32 {s(SRD+2)}, {1792*1024}')
        e(f's_cmp_lt_u32 {s(sT)}, 4096'); e(f's_cselect_b64 {s(SRD,2)}, {s(PWO,2)}, {s(SRD,2)}'); e(f's_cselect_b32 {s(sT+1)}, 0, {s(sT+1)}'); e(f's_cselect_b32 {s(SRD+2)}, {4<<20}, {s(SRD+2)}')
        e(f's_sub_u32 {s(sT)}, {s(sT)}, {s(sT+1)}'); e(f's_lshl_b32 {s(sT)}, {s(sT)}, 10')
        e(f'buffer_load_dwordx4 {v(8,4)}, {v(L16)}, {s(SRD,4)}, {s(sT)} offen')
    e(f's_cmp_ge_u32 {s(sNext)}, 64'); e('s_cbranch_scc1 L_p1_nd')
    p+=hdma()
    p.append('L_p1_nd:')
    hr=lambda ks,mt: f'ds_read_b128 {v(HF+(ks%4)*8+4*mt,4)}, {v(VO)} offset:{(mt*16+ks)*1024}'
    for ks in range(2):
        for mt in range(2): e(hr(ks,mt))
    for ks in range(16):
        mm=[]
        for mt in range(2):
            hf=v(HF+(ks%4)*8+4*mt,4)
            for m in range(3):
                for t in range(2):
                    pf,b=wreg(m,t,ks); w_=R(pf,b,4); c_=v(acc(m,t,mt),4)
                    a_,b_=(hf,w_) if m==1 else (w_,hf)
                    mm.append(f'{MF32} {c_}, {a_}, {b_}, '+(c_ if ks else '0'))
        if ks+2<16:
            mm[1:1]=[hr(ks+2,0)]; mm[4:4]=[hr(ks+2,1)]
        p+=mm
    e(f's_lshl_b32 {s(sT)}, {s(sHd)}, 6'); e(f's_add_u32 {s(sT)}, {s(sT)}, {s(sSeg)}')
    e(f's_lshl_b32 {s(sT+1)}, {s(sW)}, 10'); e(f's_lshl_b32 {s(sKo)}, {s(sT)}, 14'); e(f's_add_u32 {s(sVo)}, {s(sKo)}, {KV_OFF+8192}')
    e(f's_add_u32 {s(sKo)}, {s(sKo)}, {s(sT+1)}'); e(f's_add_u32 {s(sKo)}, {s(sKo)}, {KV_OFF}')
    e(f's_lshl_b32 {s(sQo)}, {s(sT)}, 13'); e(f's_add_u32 {s(sQo)}, {s(sQo)}, {s(sT+1)}'); e(f's_add_u32 {s(sQo)}, {s(sQo)}, {Q_OFF}')
    e(f's_lshl_b32 {s(sT+1)}, {s(sW)}, 11'); e(f's_add_u32 {s(sVo)}, {s(sVo)}, {s(sT+1)}')
    e(f's_lshl_b32 {s(sT)}, {s(sT)}, 2'); e(f's_add_u32 {s(sT)}, {s(sT)}, {s(sW)}'); e(f's_lshl_b32 {s(sT)}, {s(sT)}, 10'); e(f's_add_u32 {s(sT)}, {s(sT)}, {KVM_OFF}')
    e(f'buffer_store_dwordx4 v[12:15], {v(L16)}, {s(WS,4)}, {s(sT)} offen sc1')
    k=0
    for m,so in ((0,sKo),(2,sQo)):
        for mt in range(2):
            for r in range(4): e(f'v_cvt_pk_bf16_f32 {v(OUT+4*k+r)}, {v(acc(m,0,mt)+r)}, {v(acc(m,1,mt)+r)}')
            e(f'buffer_store_dwordx4 {v(OUT+4*k,4)}, {v(L16)}, {s(WS,4)}, {s(so)} offen sc1'); k+=1
            if mt==0: e(f's_add_u32 {s(so)}, {s(so)}, 4096')
    for t in range(2):
        for mt in range(2):
            for j in range(2): e(f'v_cvt_pk_bf16_f32 {v(OUT+4*k+2*mt+j)}, {v(acc(1,t,mt)+2*j)}, {v(acc(1,t,mt)+2*j+1)}')
        e(f'buffer_store_dwordx4 {v(OUT+4*k,4)}, {v(L16)}, {s(WS,4)}, {s(sVo)} offen offset:{1024*t} sc1'); k+=1
    e(f's_add_u32 {s(sSeg)}, {s(sSeg)}, {NR}'); e(f's_add_u32 {s(sCnt)}, {s(sCnt)}, 1'); e('s_branch L_p1_loop')
    p.append('L_p1_end:')
    return fix(p,'p1')

sGrp=21; sJ=22; sGB=26; sEp=27; sFw=28; sFr=29; sKq=30; sCq=31; sM=32; sEh=33; sScale=34; sLg=35; sFast=36; sQf=37; sMf=38
WO=lambda ks: a(4*ks,4)
W1=lambda t,ks: a(128+64*t+4*ks,4)
W2=lambda ks: v(200+4*ks,4)
MODV=168
IDX=4; KW=5; FA2=6; HRD=7; HSR=8; PSA=9; MSK=10; ZR=12; NEG=152; HRD1=151
L_PF=81920
def qkv_fetch(sync, sSg):
    o=[]
    if sync:
        o+=[f's_and_b32 {s(sT)}, {s(sSg)}, 1', f's_lshl_b32 {s(sT)}, {s(sT)}, 2', f's_add_u32 {s(sT)}, {s(sT)}, {s(sQf)}', f's_lshr_b32 {s(sT+1)}, {s(sSg)}, 1', f's_add_u32 {s(sT+1)}, {s(sT+1)}, 1']
        o+=poll(ZR+1,s(sT),s(sT+1),14,0,2)
    o+=[f's_lshl_b32 {s(sT)}, {s(sJ)}, 6', f's_add_u32 {s(sT)}, {s(sT)}, {s(sSg)}', f's_lshl_b32 {s(sT+1)}, {s(sT)}, 13', f's_add_u32 {s(sT+1)}, {s(sT+1)}, {Q_OFF}',
        f's_lshl_b32 {s(sT)}, {s(sT)}, 14', f's_lshl_b32 {s(sT+2)}, {s(sM)}, 13', f's_add_u32 {s(sT)}, {s(sT)}, {s(sT+2)}', f's_add_u32 {s(sT)}, {s(sT)}, {KV_OFF}',
        f's_cmp_eq_u32 {s(sW)}, 1', f's_cselect_b32 {s(sT)}, {s(sT+1)}, {s(sT)}', f's_add_u32 {s(sT+1)}, {s(sT)}, 4096',
        f's_lshl_b32 {s(sT+2)}, {s(sW)}, 13', f's_add_u32 m0, {s(sT+2)}, {L_PF-8192}', 's_nop 0']
    o+=[f'buffer_load_dwordx4 {v(L16)}, {s(WS,4)}, {s(sT)} offen offset:{1024*i} sc1 lds' for i in range(4)]
    o+=['s_add_u32 m0, m0, 4096','s_nop 0']+[f'buffer_load_dwordx4 {v(L16)}, {s(WS,4)}, {s(sT+1)} offen offset:{1024*i} sc1 lds' for i in range(4)]
    return o
def p2_setup(sync):
    p=[]; e=p.append
    e('s_barrier')
    e(f's_lshr_b32 {s(sGrp)}, {s(sB)}, 5'); e(f's_add_u32 {s(sGrp)}, {s(sGrp)}, 5'); e(f's_cmp_ge_u32 {s(sGrp)}, 7'); e(f's_cselect_b32 {s(sT)}, 7, 0'); e(f's_sub_u32 {s(sGrp)}, {s(sGrp)}, {s(sT)}'); e(f's_and_b32 {s(sJ)}, {s(sB)}, 31')
    if sync: p+=dbg_wait(136,1,16)
    e(f's_lshl_b32 {s(sGB)}, {s(sGrp)}, 20'); e(f's_add_u32 {s(sGB)}, {s(sGB)}, {G_OFF}')
    e(f's_lshr_b32 {s(sKq)}, {s(sJ)}, 3'); e(f's_and_b32 {s(sCq)}, {s(sJ)}, 7'); e(f's_and_b32 {s(sM)}, {s(sW)}, 1'); e(f's_lshr_b32 {s(sEh)}, {s(sW)}, 1')
    e(f's_lshl_b32 {s(sFr)}, {s(sGrp)}, 8'); e(f's_add_u32 {s(sFr)}, {s(sFr)}, {BF_OFF+BF_GB}'); e(f's_lshl_b32 {s(sT)}, {s(sJ)}, 2'); e(f's_add_u32 {s(sFw)}, {s(sFr)}, {s(sT)}')
    e(f's_mov_b32 {s(sEp)}, 0'); e(f's_mov_b32 {s(sScale)}, {hex(f2u(128**-0.5))}'); e(f's_mov_b32 {s(sLg)}, {hex(f2u(math.log2(math.e)))}')
    e(f's_lshl_b32 {s(sRing)}, {s(sW)}, 15'); e(f's_add_u32 {s(sRing)}, {s(sRing)}, 32768')
    e(f's_lshl_b32 {s(sMf)}, {s(sJ)}, 7')
    e(f's_add_u32 {s(sQf)}, {s(sMf)}, {BF_OFF+BF_KV}'); e(f's_add_u32 {s(sMf)}, {s(sMf)}, {BF_OFF+BF_KVM}')
    for i in range(4): e(f'v_mov_b32 {v(NEG+i)}, -1')
    e(f's_lshl_b32 {s(sT)}, {s(sJ)}, 13'); e(f's_add_u32 {s(sT)}, {s(sT)}, {s(sGB)}'); e(f's_lshl_b32 {s(sT+1)}, {s(sW)}, 11'); e(f's_add_u32 {s(sT)}, {s(sT)}, {s(sT+1)}')
    for off in (G_P1,G_P2):
        e(f's_add_u32 {s(sT+1)}, {s(sT)}, {off}')
        for i in range(2): e(f'buffer_store_dwordx4 {v(NEG,4)}, {v(L16)}, {s(WS,4)}, {s(sT+1)} offen offset:{1024*i} sc1')
    e('s_waitcnt vmcnt(0)'); e('s_barrier')
    e(f's_getreg_b32 {s(sFast)}, hwreg(HW_REG_XCC_ID)'); e(f's_and_b32 {s(sFast)}, {s(sFast)}, 7'); e(f's_add_u32 {s(sFast)}, {s(sFast)}, 1')
    e(f'v_mov_b32 v16, {s(sFast)}'); e('s_mov_b64 exec, 1'); e(f'buffer_store_dword v16, off, {s(WS,4)}, {s(sFw)} offset:{BF_XC-BF_GB} sc1'); e('s_mov_b64 exec, -1')
    t1,t2,r,c_,g1=16,17,18,19,20
    e(f'v_and_b32 {v(t1)}, 1, {v(LN)}'); e(f'v_mul_u32_u24 {v(t1)}, 0xaaaa, {v(t1)}'); e(f'v_add_u32 {v(IDX)}, 0x4444, {v(t1)}')
    e(f'v_bfe_u32 {v(t1)}, {v(N)}, 1, 2'); e(f'v_lshlrev_b32 {v(KW)}, 2, {v(t1)}'); e(f'v_and_b32 {v(t1)}, 1, {v(N)}'); e(f'v_lshl_add_u32 {v(KW)}, {v(t1)}, 4, {v(KW)}')
    e(f'v_lshl_add_u32 {v(KW)}, {v(Gv)}, 6, {v(KW)}'); e(f'v_lshrrev_b32 {v(t1)}, 3, {v(N)}'); e(f'v_lshl_add_u32 {v(KW)}, {v(t1)}, 8, {v(KW)}')
    e(f's_lshl_b32 {s(sT)}, {s(sW)}, 9'); e(f'v_add_u32 {v(KW)}, {s(sT)}, {v(KW)}')
    e(f'v_and_b32 {v(FA2)}, 31, {v(LN)}'); e(f'v_lshlrev_b32 {v(FA2)}, 2, {v(FA2)}')
    e(f'v_lshrrev_b32 {v(t1)}, 1, {v(N)}'); e(f'v_xor_b32 {v(t1)}, {v(t1)}, {v(Gv)}'); e(f'v_lshlrev_b32 {v(t1)}, 4, {v(t1)}'); e(f'v_lshl_add_u32 {v(HRD)}, {v(N)}, 7, {v(t1)}')
    e(f's_lshl_b32 {s(sT)}, {s(sM)}, 14'); e(f'v_add_u32 {v(HRD)}, {s(sT)}, {v(HRD)}'); e(f'v_xor_b32 {v(HRD1)}, 64, {v(HRD)}')
    e(f'v_and_b32 {v(c_)}, 3, {v(LN)}'); e(f'v_and_b32 {v(t1)}, 7, {v(LN)}'); e(f'v_xor_b32 {v(t1)}, {v(t1)}, {v(Gv)}'); e(f'v_lshlrev_b32 {v(t1)}, 4, {v(t1)}')
    e(f'v_lshrrev_b32 {v(t2)}, 3, {v(LN)}'); e(f'v_lshl_add_u32 {v(HSR)}, {v(t2)}, 10, {v(t1)}'); e(f's_lshl_b32 {s(sT)}, {s(sM)}, 6'); e(f'v_xor_b32 {v(HSR)}, {s(sT)}, {v(HSR)}')
    e(f'v_lshlrev_b32 {v(PSA)}, 15, {v(Gv)}'); e(f'v_lshl_add_u32 {v(PSA)}, {v(N)}, 2, {v(PSA)}')
    e(f's_lshl_b32 {s(sT)}, {s(sJ)}, 8'); e(f's_lshl_b32 {s(sT+1)}, {s(sW)}, 6'); e(f's_add_u32 {s(sT)}, {s(sT)}, {s(sT+1)}'); e(f'v_add_u32 {v(PSA)}, {s(sT)}, {v(PSA)}')
    e(f'v_lshlrev_b32 {v(t1)}, 2, {v(Gv)}'); e(f'v_sub_u32 {v(MSK)}, {v(N)}, {v(t1)}')
    e(f'v_mov_b32 {v(ZR+1)}, 0')
    A64,B0,B1,A32,C0,C1,A32b=24,25,26,27,28,29,30
    e(f'v_lshrrev_b32 {v(r)}, 2, {v(N)}'); e(f'v_and_b32 {v(g1)}, 1, {v(Gv)}')
    e(f'v_lshlrev_b32 {v(B0)}, 8, {v(Gv)}'); e(f'v_lshl_add_u32 {v(B0)}, {v(c_)}, 3, {v(B0)}'); e(f'v_add_u32 {v(B0)}, {s(sRing)}, {v(B0)}')
    e(f'v_lshl_add_u32 {v(C0)}, {v(r)}, 5, {v(B0)}'); e(f'v_lshl_add_u32 {v(C0)}, {v(g1)}, 7, {v(C0)}'); e(f'v_xor_b32 {v(C1)}, 128, {v(C0)}')
    e(f'v_lshl_add_u32 {v(B0)}, {v(r)}, 6, {v(B0)}'); e(f'v_lshl_add_u32 {v(B0)}, {v(g1)}, 5, {v(B0)}'); e(f'v_xor_b32 {v(B1)}, 32, {v(B0)}')
    e(f'v_lshlrev_b32 {v(t1)}, 1, {v(g1)}'); e(f'v_xor_b32 {v(t1)}, {v(t1)}, {v(c_)}'); e(f'v_lshlrev_b32 {v(t1)}, 4, {v(t1)}')
    e(f'v_lshl_add_u32 {v(A64)}, {v(Gv)}, 3, {v(r)}'); e(f'v_mul_u32_u24 {v(A64)}, 3584, {v(A64)}'); e(f'v_add_u32 {v(A64)}, {v(A64)}, {v(t1)}')
    e(f's_min_u32 {s(sT)}, {s(sJ)}, 27'); e(f's_lshl_b32 {s(sT)}, {s(sT)}, 7'); e(f's_lshl_b32 {s(sT+1)}, {s(sEh)}, 6'); e(f's_add_u32 {s(sT)}, {s(sT)}, {s(sT+1)}'); e(f'v_add_u32 {v(A64)}, {s(sT)}, {v(A64)}')
    e(f'v_lshrrev_b32 {v(t1)}, 3, {v(N)}'); e(f'v_xor_b32 {v(t1)}, {v(t1)}, {v(g1)}'); e(f'v_bfe_u32 {v(t2)}, {v(N)}, 1, 2')
    e(f'v_lshl_add_u32 {v(t2)}, {v(t1)}, 4, {v(t2)}'); e(f'v_lshl_add_u32 {v(t2)}, {v(Gv)}, 2, {v(t2)}'); e(f'v_and_b32 {v(t1)}, 1, {v(N)}'); e(f'v_lshlrev_b32 {v(t1)}, 4, {v(t1)}')
    e(f'v_lshl_add_u32 {v(A32)}, {v(t2)}, 10, {v(t1)}')
    e(f's_lshl_b32 {s(sT)}, {s(sCq)}, 7'); e(f's_lshl_b32 {s(sT+1)}, {s(sW)}, 5'); e(f's_add_u32 {s(sT)}, {s(sT)}, {s(sT+1)}')
    e(f's_mul_i32 {s(sT+1)}, {s(sKq)}, {448*1024}'); e(f's_add_u32 {s(sT+1)}, {s(sT+1)}, {s(sT)}'); e(f'v_add_u32 {v(A32b)}, {s(sT+1)}, {v(A32)}')
    e(f's_lshl_b32 {s(sT+1)}, {s(sKq)}, 20'); e(f's_add_u32 {s(sT+1)}, {s(sT+1)}, {s(sT)}'); e(f'v_add_u32 {v(A32)}, {s(sT+1)}, {v(A32)}')
    blocks=[]
    mv=lambda o: (lambda reg: [f's_mov_b32 {s(reg)}, {o}'])
    for ks in range(32): blocks.append((srd(PWO,4<<20) if ks%4==0 else None, A32, mv(ks*32768), [(a(4*ks,2),C0,0),(a(4*ks+2,2),C1,0)]))
    for ks in range(16):
        for jh in range(2): blocks.append((srd(PW1,512*3584) if ks%2==0 and jh==0 else None, A64, mv((32*ks+4*jh)*3584), [(a(128+4*ks+2*jh,2),B0,0),(a(192+4*ks+2*jh,2),B1,0)]))
    for ks in range(16):
        kk=min(ks,13); blocks.append((srd(PW2,1792*1024) if ks%4==0 else None, A32b, mv(kk*32768), [(v(200+4*ks,2),C0,0),(v(202+4*ks,2),C1,0)] if ks<14 else []))
    head,rest=wstream(blocks,sRing,OPT['d2'])
    if OPT['dl']:
        e(f'v_mov_b32 v17, 0'); p+=poll(17,s(sQf),str(OPT['dl']),16)
    p+=head+rest
    if sync: p+=dbg_wait(132,64,16)
    e(f's_mov_b32 {s(sT)}, {MOD_OFF+2048}')
    for i in range(4): e(f'buffer_load_dwordx4 {v(16+4*i,4)}, {v(L16)}, {s(WS,4)}, {s(sT)} offen offset:{1024*i} sc1')
    for i in range(16): p+=unp(MODV+2*i,16+i)
    for i in range(16,24): e(f'v_add_f32 {v(MODV+i)}, 1.0, {v(MODV+i)}')
    for i in range(16,24,2): p+=rnd(MODV+i,MODV+i+1,16)
    p+=poll(FA2,s(sFr),'1',16,BF_XC-BF_GB)
    e(f'v_cmp_ne_u32 vcc, {s(sFast)}, v16')
    e(f's_cmp_ge_u32 {s(sGrp)}, 5'); e(f's_cselect_b32 {s(sT)}, 38, 0'); e(f's_add_u32 {s(sSeg)}, {s(sGrp)}, {s(sT)}')
    e(f's_lshl_b32 {s(sT)}, {s(sJ)}, 15'); e(f's_lshl_b32 {s(sT+1)}, {s(sW)}, 13'); e(f's_add_u32 {s(sT)}, {s(sT)}, {s(sT+1)}'); e(f's_add_u32 {s(sT)}, {s(sT)}, {s(sGB)}'); e(f's_add_u32 {s(sT+1)}, {s(sT)}, 4096')
    for i in range(8): e(f'buffer_load_dwordx4 v[20:23], {v(L16)}, {s(WS,4)}, {s(sT+(i>>2))} offen offset:{1024*(i&3)} sc1')
    e(f's_mov_b64 {s(sT+4,2)}, vcc'); e('s_barrier')
    e(f's_cmp_eq_u32 {s(sW)}, 0'); e('s_cbranch_scc1 L_p2_nf'); p+=qkv_fetch(sync,sSeg); p.append('L_p2_nf:')
    e(f's_mov_b64 vcc, {s(sT+4,2)}')
    e('s_waitcnt vmcnt(0)')
    p+=srd(PX,2048*1024)
    p+=STAMP(7,160)
    e('s_barrier')
    e('s_cbranch_vccnz L_p2_S')
    return fix(p,'p2s')

def p2_loop(mode, sync):
    sc=' sc1' if mode=='S' else ''
    L=f'L_p2_{mode}'
    p=[L+':']; e=p.append
    nb=[0]
    def gbar():
        nb[0]+=1; k=f'{L}_g{nb[0]}'
        return ['s_waitcnt vmcnt(0)','s_barrier', f's_add_u32 {s(sEp)}, {s(sEp)}, 1', f's_cmp_lg_u32 {s(sW)}, 0', f's_cbranch_scc1 {k}',
                f'v_mov_b32 v14, {s(sEp)}','s_mov_b64 exec, 1', f'buffer_store_dword v14, off, {s(WS,4)}, {s(sFw)}{sc}','s_mov_b64 exec, -1','s_nop 15']+pollp(FA2,s(sFr),s(sEp),PR)+STAMP(8+nb[0],128)+[k+':','s_barrier']
    QF=16; KF=32; VF=64; KV=80; S0=92; OA=104; T=120; MX=121; SUM=122; PXr=124; KM=128; XR=136; X1=140; PR=150
    e(f's_lshl_b32 {s(sT)}, {s(sSeg)}, 5'); e(f's_add_u32 {s(sT)}, {s(sT)}, {s(sJ)}'); e(f's_lshl_b32 {s(sT+6)}, {s(sT)}, 10')
    e(f's_lshl_b32 {s(sT)}, {s(sJ)}, 6'); e(f's_add_u32 {s(sT)}, {s(sT)}, {s(sSeg)}'); e(f's_lshl_b32 {s(sT+5)}, {s(sT)}, 12'); e(f's_add_u32 {s(sT+5)}, {s(sT+5)}, {KVM_OFF}')
    e(f'buffer_load_dwordx4 {v(XR,4)}, {v(L16)}, {s(SRD,4)}, {s(sT+6)} offen')
    e(f's_lshl_b32 {s(sT)}, {s(sM)}, 12'); e(f's_add_u32 {s(sT)}, {s(sT)}, {L_PF}'); e(f'v_add_u32 {v(T)}, {s(sT)}, {v(L16)}')
    for i in range(4): e(f'ds_read_b128 {v(QF+4*i,4)}, {v(T)} offset:{1024*i}')
    e(f'v_add_u32 {v(T)}, {L_PF+8192}, {v(L16)}')
    for i in range(8): e(f'ds_read_b128 {v(KF+4*i,4)}, {v(T)} offset:{1024*i}')
    e(f's_lshl_b32 {s(sT)}, {s(sEh)}, 12'); e(f'v_add_u32 {v(T)}, {s(sT)}, {v(T)}')
    for i in range(4): e(f'ds_read_b128 {v(VF+4*i,4)}, {v(T)} offset:{8192+1024*i}')
    for m in range(2):
        for ks in range(4): e(f'{MF32} {v(S0+4*m,4)}, {v(KF+16*m+4*ks,4)}, {v(QF+4*ks,4)}, '+(v(S0+4*m,4) if ks else '0'))
    e(f'v_mov_b64 {v(S0+8,2)}, 0'); e(f'v_mov_b64 {v(S0+10,2)}, 0')
    def sround(a_): return rnd(a_,a_+1,T)+[f'v_mul_f32 {v(a_)}, {s(sScale)}, {v(a_)}', f'v_mul_f32 {v(a_+1)}, {s(sScale)}, {v(a_+1)}']+rnd(a_,a_+1,T)
    for i in range(0,8,2): p+=sround(S0+i)
    e(f's_lshl_b32 {s(sT+1)}, {s(sM)}, 4'); e(f'v_add_u32 {v(T)}, {s(sT+1)}, {v(MSK)}'); e(f'v_mov_b32 {v(SUM)}, {hex(f2u(-999292928.0))}')
    for i in range(8):
        e(f'v_cmp_le_i32 vcc, {16*(i>>2)+(i&3)}, {v(T)}'); e(f'v_cndmask_b32 {v(S0+i)}, {v(SUM)}, {v(S0+i)}, vcc')
    e(f'v_max3_f32 {v(MX)}, {v(S0)}, {v(S0+1)}, {v(S0+2)}'); e(f'v_max3_f32 {v(MX)}, {v(MX)}, {v(S0+3)}, {v(S0+4)}'); e(f'v_max3_f32 {v(MX)}, {v(MX)}, {v(S0+5)}, {v(S0+6)}'); e(f'v_max_f32 {v(MX)}, {v(MX)}, {v(S0+7)}')
    p+=xg('v_max_f32',MX,T)
    for i in range(8): e(f'v_sub_f32 {v(S0+i)}, {v(S0+i)}, {v(MX)}')
    for i in range(8): e(f'v_mul_f32 {v(S0+i)}, {s(sLg)}, {v(S0+i)}')
    for i in range(8): e(f'v_exp_f32 {v(S0+i)}, {v(S0+i)}')
    e(f'v_add_f32 {v(SUM)}, {v(S0)}, {v(S0+1)}')
    for i in range(2,8): e(f'v_add_f32 {v(SUM)}, {v(SUM)}, {v(S0+i)}')
    if sync:
        e(f's_cmp_lg_u32 {s(sW)}, 0'); e(f's_cbranch_scc1 {L}_kw'); e(f's_max_u32 {s(sT+2)}, {s(sSeg)}, 1'); e(f's_sub_u32 {s(sT+2)}, {s(sT+2)}, 1'); e(f's_min_u32 {s(sT+2)}, {s(sT+2)}, 61')
        p+=poll(ZR+1,s(sMf),s(sT+2),PR,0,OPT['lp'])+[f'{L}_kw:','s_barrier']
    e(f's_lshl_b32 {s(sT+1)}, {s(sEh)}, 11'); e(f's_add_u32 {s(sT+1)}, {s(sT+1)}, {s(sT+5)}'); e(f's_lshl_b32 {s(sT+2)}, {s(sM)}, 2')
    p.append(f'{L}_kd:')
    for i in range(2): e(f'buffer_load_dwordx4 {v(KV+4*i,4)}, {v(L16)}, {s(WS,4)}, {s(sT+1)} offen offset:{1024*i} sc1')
    e(f's_add_u32 {s(sSpin)}, {s(sSpin)}, 1'); e(f's_cmp_gt_u32 {s(sSpin)}, {LIM}')
    e(f'v_max3_u32 {v(T)}, {v(KV)}, {v(KV+1)}, {v(KV+2)}'); e(f'v_max3_u32 {v(T)}, {v(T)}, {v(KV+3)}, {v(KV+4)}'); e(f'v_max3_u32 {v(T)}, {v(T)}, {v(KV+5)}, {v(KV+6)}'); e(f'v_max_u32 {v(T)}, {v(T)}, {v(KV+7)}')
    e(f'v_cmp_eq_u32 vcc, -1, {v(T)}'); e(f's_cbranch_scc1 {L}_kx'); e(f's_cbranch_vccnz {L}_kd')
    p.append(f'{L}_kx:')
    p+=STAMP(8,128)
    e(f's_cmp_eq_u32 {s(sM)}, 1'); e('s_cselect_b64 vcc, -1, 0')
    e(f'v_cndmask_b32 {v(KV+9)}, {v(KV+1)}, {v(KV+5)}, vcc'); e(f'v_cndmask_b32 {v(KV+11)}, {v(KV+3)}, {v(KV+7)}, vcc')
    e(f'ds_write2_b32 {v(KW)}, {v(KV+9)}, {v(KV+11)} offset0:0 offset1:8'); e('s_waitcnt lgkmcnt(0)'); e('s_barrier')
    for k in range(2): e(f'ds_read_b128 {v(KM+4*k,4)}, {v(L16)} offset:{1024*k}')
    for k in range(2): e(f'{SMF} {v(S0+8,4)}, {v(KM+4*k,4)}, {v(QF+8*k,8)}, {v(IDX)}')
    e(f'v_add_f32 {v(S0+8)}, {v(S0+8)}, {v(S0+9)}'); e(f'v_add_f32 {v(S0+9)}, {v(S0+10)}, {v(S0+11)}')
    p+=sround(S0+8)
    AL=S0+10; M2=S0+11
    e(f'v_max3_f32 {v(M2)}, {v(MX)}, {v(S0+8)}, {v(S0+9)}'); p+=xg('v_max_f32',M2,T)
    e(f'v_sub_f32 {v(S0+8)}, {v(S0+8)}, {v(M2)}'); e(f'v_sub_f32 {v(S0+9)}, {v(S0+9)}, {v(M2)}'); e(f'v_sub_f32 {v(AL)}, {v(MX)}, {v(M2)}')
    for i in range(8,11): e(f'v_mul_f32 {v(S0+i)}, {s(sLg)}, {v(S0+i)}')
    for i in range(8,11): e(f'v_exp_f32 {v(S0+i)}, {v(S0+i)}')
    e(f'v_add_f32 {v(M2)}, {v(S0+8)}, {v(S0+9)}'); e(f'v_fmac_f32 {v(M2)}, {v(AL)}, {v(SUM)}')
    p+=xg('v_add_f32',M2,T); e(f'v_rcp_f32 {v(M2)}, {v(M2)}')
    e(f'v_mul_f32 {v(AL)}, {v(AL)}, {v(M2)}')
    e(f'v_pk_mul_f32 {v(S0+8,2)}, {v(S0+8,2)}, {v(AL,2)} op_sel:[0,1]')
    for i in range(0,8,2): e(f'v_pk_mul_f32 {v(S0+i,2)}, {v(S0+i,2)}, {v(AL,2)} op_sel_hi:[1,0]')
    for i in range(4): e(f'v_cvt_pk_bf16_f32 {v(PXr+i)}, {v(S0+2*i)}, {v(S0+2*i+1)}')
    e(f'v_cvt_pk_bf16_f32 {v(ZR)}, {v(S0+8)}, {v(S0+9)}')
    for i in range(4): e(f'{MF32} {v(OA+4*i,4)}, {v(VF+4*i,4)}, {v(PXr,4)}, 0')
    for i in range(4): e(f'{MF16} {v(OA+4*i,4)}, {v(KV+2*i,2)}, {v(ZR,2)}, {v(OA+4*i,4)}')
    e(f's_lshl_b32 {s(sT+1)}, {s(sJ)}, 13'); e(f's_lshl_b32 {s(sT+2)}, {s(sEh)}, 12'); e(f's_add_u32 {s(sT+1)}, {s(sT+1)}, {s(sT+2)}'); e(f's_lshl_b32 {s(sT+2)}, {s(sM)}, 10')
    e(f's_add_u32 {s(sT+1)}, {s(sT+1)}, {s(sT+2)}'); e(f's_add_u32 {s(sT+1)}, {s(sT+1)}, {s(sGB)}')
    for k in range(2):
        for i in range(4): e(f'v_cvt_pk_bf16_f32 {v(QF+4*k+i)}, {v(OA+8*k+2*i)}, {v(OA+8*k+2*i+1)}')
        e(f'buffer_store_dwordx4 {v(QF+4*k,4)}, {v(L16)}, {s(WS,4)}, {s(sT+1)} offen offset:{G_O+2048*k}{sc}')
    p+=gbar()
    def gemm_part(src_lines, nks, wf, dst_off):
        o=list(src_lines)
        nfr=2*nks; per=nfr//4; nch=(per+3)//4
        sizes=[min(4,per-4*c) for c in range(nch)]
        base=0; starts=[]
        for c,sz in enumerate(sizes):
            starts.append(base)
            o+=[f's_mul_i32 {s(sT+2)}, {s(sW)}, {sz*1024}', f's_add_u32 {s(sT+2)}, {s(sT+2)}, {base*1024}', f's_add_u32 m0, {s(sT+2)}, 4096', f's_add_u32 {s(sT+2)}, {s(sT+2)}, {s(sT+1)}']
            o+=[f'buffer_load_dwordx4 {v(L16)}, {s(WS,4)}, {s(sT+2)} offen offset:{1024*i} sc1 lds' for i in range(sz)]
            base+=4*sz
        o+=[f'v_add_u32 {v(T)}, 4096, {v(L16)}']
        left=per
        for c,sz in enumerate(sizes):
            left-=sz
            o+=[f's_waitcnt vmcnt({left})','s_barrier']
            fr=list(range(starts[c],starts[c]+4*sz))
            rd=lambda f: f'ds_read_b128 {v(QF+4*(f%8),4)}, {v(T)} offset:{1024*f}'
            o+=[rd(f) for f in fr[:4]]
            for i,f in enumerate(fr):
                ac=v(OA+4*(f&1),4)
                o.append(f'{MF32} {ac}, {v(QF+4*(f%8),4)}, {wf(f>>1)}, '+(ac if f>1 else '0'))
                if i+4<len(fr): o.append(rd(fr[i+4]))
        o+=STAMP(16 if nks==32 else 19,128)
        for mt in range(2):
            for r in range(4):
                o+=[f's_add_u32 {s(sT+2)}, {s(sGB)}, {dst_off+(16*mt+r)*8192}', f'buffer_store_dword {v(OA+4*mt+r)}, {v(PSA)}, {s(WS,4)}, {s(sT+2)} offen{sc}']
        return o
    p+=gemm_part([f's_lshl_b32 {s(sT+1)}, {s(sKq)}, 16', f's_add_u32 {s(sT+1)}, {s(sT+1)}, {s(sGB)}'],32,WO,G_P1)
    nb[0]+=1
    def rowsum(off,tag):
        k_=f'{L}_{tag}'
        o=[f's_lshl_b32 {s(sT+1)}, {s(sJ)}, 13', f's_add_u32 {s(sT+1)}, {s(sT+1)}, {s(sGB)}', f's_add_u32 {s(sT+1)}, {s(sT+1)}, {off}', f's_add_u32 {s(sT+2)}, {s(sT+1)}, 4096', f'v_lshlrev_b32 {v(T)}, 1, {v(L16)}']+([f's_sleep {OPT["rd"]}'] if OPT['rd'] else [])+[k_+':']
        for k in range(4):
            for hf in range(2): o.append(f'buffer_load_dwordx4 {v(QF+8*k+4*hf,4)}, {v(T)}, {s(WS,4)}, {s(sT+1+(k>>1))} offen offset:{2048*(k&1)+16*hf} sc1')
        o+=[f's_add_u32 {s(sSpin)}, {s(sSpin)}, 4', f's_cmp_gt_u32 {s(sSpin)}, {LIM}']
        for k in range(1,4):
            for i in range(0,8,2): o.append(f'v_pk_add_f32 {v(QF+i,2)}, {v(QF+i,2)}, {v(QF+8*k+i,2)}')
        o+=[f'v_pk_add_f32 {v(QF+8,2)}, {v(QF,2)}, {v(QF+2,2)}', f'v_pk_add_f32 {v(QF+10,2)}, {v(QF+4,2)}, {v(QF+6,2)}', f'v_pk_add_f32 {v(QF+8,2)}, {v(QF+8,2)}, {v(QF+10,2)}',
            f'v_cmp_u_f32 vcc, {v(QF+8)}, {v(QF+9)}', f's_cbranch_scc1 {k_}x', f's_cbranch_vccnz {k_}', k_+'x:']
        for i in range(0,8,2): o+=rnd(QF+i,QF+i+1,T)
        return o
    repoison=[f'buffer_store_dwordx4 {v(NEG,4)}, {v(L16)}, {s(WS,4)}, {s(sT+1+(i>>2))} offen offset:{1024*(i&3)}{sc}' for i in range(8)]
    e(f's_cmp_lt_u32 {s(sSeg)}, 38'); e(f's_cselect_b32 {s(sCnt)}, 5, 7'); e(f's_add_u32 {s(sCnt)}, {s(sSeg)}, {s(sCnt)}')
    e(f's_cmp_eq_u32 {s(sW)}, 0'); e(f's_cbranch_scc1 {L}_n0')
    e('s_barrier'); e(f's_cmp_ge_u32 {s(sCnt)}, 64'); e(f's_cbranch_scc1 {L}_n1')
    p+=qkv_fetch(sync,sCnt); e(f's_branch {L}_n1')
    p.append(f'{L}_n0:')
    for i in range(4): p+=unp(X1+2*i,XR+i)
    p+=rowsum(G_P1,'ra')+['s_barrier']+STAMP(10,128)
    for i in range(0,8,2): e(f'v_pk_mul_f32 {v(QF+i,2)}, {v(QF+i,2)}, {v(MODV+i,2)}')
    for i in range(0,8,2): p+=rnd(QF+i,QF+i+1,T)
    for i in range(0,8,2): e(f'v_pk_add_f32 {v(X1+i,2)}, {v(X1+i,2)}, {v(QF+i,2)}')
    for i in range(0,8,2): p+=rnd(X1+i,X1+i+1,T)
    e(f'v_pk_add_f32 {v(QF,2)}, {v(X1,2)}, {v(X1+2,2)}'); e(f'v_pk_add_f32 {v(QF+2,2)}, {v(X1+4,2)}, {v(X1+6,2)}'); e(f'v_pk_add_f32 {v(QF,2)}, {v(QF,2)}, {v(QF+2,2)}'); e(f'v_add_f32 {v(MX)}, {v(QF)}, {v(QF+1)}')
    p+=xrow(MX)+xg('v_add_f32',MX,T); e(f'v_mul_f32 {v(MX)}, {hex(f2u(1/512))}, {v(MX)}')
    sub=lambda i: f'v_pk_add_f32 {v(QF+i,2)}, {v(X1+i,2)}, {v(MX-1,2)} op_sel:[0,1] neg_lo:[0,1] neg_hi:[0,1]'
    for i in range(0,8,2): e(sub(i))
    e(f'v_pk_mul_f32 {v(QF,2)}, {v(QF,2)}, {v(QF,2)}')
    for i in range(2,8,2): e(f'v_pk_fma_f32 {v(QF,2)}, {v(QF+i,2)}, {v(QF+i,2)}, {v(QF,2)}')
    e(f'v_add_f32 {v(SUM)}, {v(QF)}, {v(QF+1)}')
    p+=xrow(SUM)+xg('v_add_f32',SUM,T); e(f'v_mul_f32 {v(SUM)}, {hex(f2u(1/512))}, {v(SUM)}')
    p+=rnd(MX,SUM,T)
    e(f'v_add_f32 {v(SUM)}, {hex(f2u(1e-5))}, {v(SUM)}'); p+=rnd(SUM,SUM,T)[:2]
    e(f'v_sqrt_f32 {v(SUM)}, {v(SUM)}'); p+=rnd(SUM,SUM,T)[:2]
    e(f'v_rcp_f32 {v(SUM)}, {v(SUM)}')
    for i in range(0,8,2): e(sub(i))
    for i in range(0,8,2): p+=rnd(QF+i,QF+i+1,T)
    for i in range(0,8,2): e(f'v_pk_mul_f32 {v(QF+i,2)}, {v(QF+i,2)}, {v(SUM,2)} op_sel_hi:[1,0]')
    for i in range(0,8,2): p+=rnd(QF+i,QF+i+1,T)
    for i in range(0,8,2): e(f'v_pk_mul_f32 {v(QF+i,2)}, {v(QF+i,2)}, {v(MODV+16+i,2)}')
    for i in range(0,8,2): p+=rnd(QF+i,QF+i+1,T)
    for i in range(0,8,2): e(f'v_pk_add_f32 {v(QF+i,2)}, {v(QF+i,2)}, {v(MODV+8+i,2)}')
    for i in range(4): e(f'v_cvt_pk_bf16_f32 {v(QF+8+i)}, {v(QF+2*i)}, {v(QF+2*i+1)}')
    e(f's_lshl_b32 {s(sT+1)}, {s(sJ)}, 10'); e(f's_add_u32 {s(sT+1)}, {s(sT+1)}, {s(sGB)}'); e(f's_add_u32 {s(sT+1)}, {s(sT+1)}, {G_H2}')
    e(f'buffer_store_dwordx4 {v(QF+8,4)}, {v(L16)}, {s(WS,4)}, {s(sT+1)} offen{sc}')
    p+=STAMP(15,128)
    p.append(f'{L}_n1:')
    p+=gbar()
    e(f's_cmp_ge_u32 {s(sJ)}, 28'); e(f's_cbranch_scc1 {L}_n2')
    e(f's_lshl_b32 {s(sT+1)}, {s(sW)}, 13'); e(f's_add_u32 {s(sT+1)}, {s(sT+1)}, {s(sGB)}'); e(f's_add_u32 {s(sT+1)}, {s(sT+1)}, {G_H2}')
    e(f's_lshl_b32 {s(sT+2)}, {s(sEh)}, 14'); e(f's_lshl_b32 {s(sT+3)}, {s(sM)}, 10'); e(f's_add_u32 {s(sT+2)}, {s(sT+2)}, {s(sT+3)}')
    for i in range(8):
        e(f's_add_u32 m0, {s(sT+2)}, {4096+2048*i}'); e(f's_add_u32 {s(sT+3)}, {s(sT+1)}, {128*i}')
        e(f'buffer_load_dwordx4 {v(HSR)}, {s(WS,4)}, {s(sT+3)} offen sc1 lds')
    rd=lambda ks: f'ds_read_b128 {v(QF+4*(ks%8),4)}, {v(HRD1 if ks&1 else HRD)} offset:{4096+2048*(ks>>1)}'
    for c in range(2):
        e(f's_waitcnt vmcnt({4-4*c})'); e('s_barrier')
        if c==1: p+=STAMP(17,128)
        for ks in range(8*c,8*c+4): e(rd(ks))
        for ks in range(8*c,8*c+8):
            for t in range(2): e(f'{MF32} {v(OA+4*t,4)}, {W1(t,ks)}, {v(QF+4*(ks%8),4)}, '+(v(OA+4*t,4) if ks else '0'))
            if ks+4<8*c+8: e(rd(ks+4))
    e(f's_lshl_b32 {s(sT+1)}, {s(sJ)}, 12'); e(f's_lshl_b32 {s(sT+2)}, {s(sEh)}, 11'); e(f's_add_u32 {s(sT+1)}, {s(sT+1)}, {s(sT+2)}'); e(f's_lshl_b32 {s(sT+2)}, {s(sM)}, 10')
    e(f's_add_u32 {s(sT+1)}, {s(sT+1)}, {s(sT+2)}'); e(f's_add_u32 {s(sT+1)}, {s(sT+1)}, {s(sGB)}'); e(f's_add_u32 {s(sT+1)}, {s(sT+1)}, {G_F1}')
    for i in range(8): e(f'v_max_f32 {v(OA+i)}, 0, {v(OA+i)}')
    for i in range(4): e(f'v_cvt_pk_bf16_f32 {v(PXr+i)}, {v(OA+2*i)}, {v(OA+2*i+1)}')
    e(f'buffer_store_dwordx4 {v(PXr,4)}, {v(L16)}, {s(WS,4)}, {s(sT+1)} offen{sc}')
    p+=STAMP(18,128)
    p.append(f'{L}_n2:')
    p+=gbar()
    p+=gemm_part([f's_mul_i32 {s(sT+1)}, {s(sKq)}, 28672', f's_add_u32 {s(sT+1)}, {s(sT+1)}, {s(sGB)}', f's_add_u32 {s(sT+1)}, {s(sT+1)}, {G_F1}'],14,W2,G_P2)
    nb[0]+=1
    e(f's_cmp_lg_u32 {s(sW)}, 0'); e(f's_cbranch_scc1 {L}_n3')
    p+=rowsum(G_P2,'rb')+STAMP(13,128)
    for i in range(0,8,2): e(f'v_pk_mul_f32 {v(QF+i,2)}, {v(QF+i,2)}, {v(MODV+24+i,2)}')
    for i in range(0,8,2): p+=rnd(QF+i,QF+i+1,T)
    for i in range(0,8,2): e(f'v_pk_add_f32 {v(QF+i,2)}, {v(QF+i,2)}, {v(X1+i,2)}')
    for i in range(4): e(f'v_cvt_pk_bf16_f32 {v(QF+8+i)}, {v(QF+2*i)}, {v(QF+2*i+1)}')
    e(f'v_add_u32 {v(T)}, {s(sT+6)}, {v(L16)}')
    e(f'global_store_dwordx4 {v(T)}, {v(QF+8,4)}, {s(POUT,2)}')
    e(f's_cmp_ge_u32 {s(sSeg)}, 57'); e(f's_cbranch_scc1 {L}_n4')
    p+=repoison+[f'{L}_n4:']
    p+=STAMP(14,128)+STAMP(20,96)+STAMP(21,64)+STAMP(22,32)
    p.append(f'{L}_n3:')
    e(f's_lshl_b32 {s(sT+1)}, {s(sJ)}, 2'); e(f's_add_u32 {s(sT+1)}, {s(sT+1)}, {s(sW)}'); e(f's_lshl_b32 {s(sT+1)}, {s(sT+1)}, 11'); e(f's_add_u32 {s(sT+1)}, {s(sT+1)}, {s(sGB)}'); e(f's_add_u32 {s(sT+1)}, {s(sT+1)}, {G_P1}')
    e(f's_cmp_ge_u32 {s(sSeg)}, 57'); e(f's_cbranch_scc1 {L}_end')
    e('s_barrier')
    p+=repoison[:2]
    e(f's_mov_b32 {s(sSeg)}, {s(sCnt)}'); e(f's_branch {L}')
    p.append(f'{L}_end:')
    e('s_endpgm')
    r=fix(p,'p2'+mode); check(r+r,'p2loop')
    return r
```

```python
from asmlib import *
from layout import *
import math, struct, re

T0=0; IDX=1; L16=2; LW=3; QW=4; QR=5; KW=6; OW=7; ORD=8; PST=9; MPUB=10; H2A=10; FLG=11
ONES=12; PM=16; KVQ=20; QA=24; KA=32; VA=40; M=48; X=80; STG=112; RES=128
L_MEM=0; L_Q=8192; L_K=10240; L_O=12288; L_SEL=14336; L_KX=16384; L_WV=24576; WREG=34816
WS=4; WSRD=8; DBG=12; sH=14; sW=15; sStep=16; sC=17; sKsrc=18; sVsrc=19; sKvm=20
sPst=21; sPin=23; sPrst=25; sPrstB=26; sPslot=27; sMemIn1=28; sSpinU=29; sPinB=30
sMemIn0=31; sMemB=32; sMemPub=33; sMemRst=34; sSlot=35; sSpin=36; sKdst=37; sKvF=38; sVdst=39; sKvmF=40; sReg=41
sT=42
sRo1=52; sRo2=56; sEx=50; sPtr=52; sRow=64; sTime=70; sOdd=88; sOne=92; sC2=94; sSpinF=96; sFlag=98; sFlagB=99; sWoff=100
LIM='0x80000'
SMF='v_smfmac_f32_16x16x64_bf16'; MF32='v_mfma_f32_16x16x32_bf16'; MF16='v_mfma_f32_16x16x16_bf16'
OPT=dict(sync=0, d1=20, sl=4, nb=6, pp=0, rep=2, hotkv=0, tr=0, solo=0, cut=99, drop=0, cutm=-1, show=0, eb=1, knt=0, ek=1, sw1=0, ord=4, dc=7, fi=28, de=5, v1=1, pub=1, nt=1, rs=0, b0=1, ro1=0, ro2=0, rp=0, warm=1, sp=0, np=2, dp=0, ps=24, sw=5)

lds_groups=[('q',0),('q',1),('q',2),('q',3),('o',0,3),('o',1,1),('o',1,2),('o',1,3)]
all_groups=[(m,c) for m in 'qkv' for c in range(8)]+[('o',tp,k) for tp in range(2) for k in range(4)]
res_groups=[g for g in all_groups if g not in lds_groups]
gloc={}
for i,g in enumerate(res_groups): gloc[g]=('a',16*i) if i<16 else ('v',RES+16*(i-16))
stream={('q',0,0):M+16,('q',0,1):M+24,('q',1,0):KA,('q',1,1):VA,('q',2,0):X,('q',2,1):X+8,('q',3,0):X+16,('q',3,1):X+24,
        ('o',0,3,0):X+8,('o',0,3,1):X+24,('o',1,1,0):X,('o',1,2,0):X+16,('o',1,3,0):KA,('o',1,1,1):VA,('o',1,2,1):QA,('o',1,3,1):X+8}
def ureg(g,t):
    if g in gloc: return gloc[g][0], gloc[g][1]+8*t
    return 'v', stream[g+(t,)]
def unit(g,t): p,b=ureg(g,t); return R(p,b,8)
def stream_reads(g,t):
    off=lds_groups.index(g)*4096+t*2048; b=stream[g+(t,)]
    return [f'ds_read_b128 {v(b,4)}, {v(LW)} offset:{off}', f'ds_read_b128 {v(b+4,4)}, {v(LW)} offset:{off+1024}']
def zero(b,n,val='0'): return [f'v_mov_b64 {v(b+i,2)}, {val}' for i in range(0,n,2)]
def kv_addr(): return [f'v_lshrrev_b32 {v(T0)}, 2, {v(L16)}', f'v_and_b32 {v(T0)}, 4, {v(T0)}']
def kv_check(L):
    return kv_addr()+[f's_add_u32 {s(sT+3)}, {s(sStep)}, 1', f's_min_u32 {s(sT+3)}, {s(sT+3)}, 63', f's_lshl_b32 {s(sT+3)}, {s(sT+3)}, 2', f'{L}c:',
            f'v_lshl_add_u32 {v(FLG)}, {v(FLG)}, 3, {v(T0)}', f'v_cmp_ge_u32 vcc, {s(sT+3)}, {v(FLG)}', f's_cbranch_vccnz {L}w', f'{L}x:']
def kv_wait(L):
    return [f'{L}w:', f's_add_u32 {s(sSpinF)}, {s(sSpinF)}, 1', f's_cmp_gt_u32 {s(sSpinF)}, {LIM}', f's_cbranch_scc1 {L}x',
            f'buffer_load_dword {v(FLG)}, {v(T0)}, {s(WS,4)}, {s(sKvF)} offen sc1', 's_waitcnt vmcnt(0)', f's_branch {L}c']
def h2_addr(d,t):
    return [f'v_and_b32 {v(d)}, 0x230, {v(L16)}', f'v_and_b32 {v(t)}, 0xc0, {v(L16)}', f'v_lshl_add_u32 {v(d)}, {v(t)}, 1, {v(d)}',
            f'v_and_b32 {v(t)}, 0x100, {v(L16)}', f'v_lshrrev_b32 {v(t)}, 2, {v(t)}', f'v_or_b32 {v(d)}, {v(d)}, {v(t)}']

def prologue(timing):
    p=[]; e=p.append
    VQ=[]
    def vm(line,tag=None): e(line); VQ.append(tag)
    def wait(tag):
        i=max(k for k,t in enumerate(VQ) if t==tag); e(f's_waitcnt vmcnt({min(63,len(VQ)-1-i)})')
    e(f's_load_dwordx2 {s(WSRD,2)}, s[0:1], 40')
    e(f's_load_dwordx4 {s(sPtr,4)}, s[0:1], 8')
    e(f's_load_dwordx4 {s(sPtr+4,4)}, s[0:1], 24')
    e(f's_load_dwordx2 {s(DBG,2)}, s[0:1], 104')
    e(f's_load_dwordx2 {s(WS,2)}, s[0:1], 112')
    if timing: e(f's_memrealtime {s(sTime,2)}')
    ln,n,g,t1,t2,g1,VOO,VA0,VA1,TO0,TO1,TA0,TA1,TB0,TB1,r=[STG+i for i in range(16)]
    e(f'v_lshrrev_b32 {v(t1)}, 6, v0'); e(f'v_and_b32 {v(ln)}, 63, v0'); e(f'v_readfirstlane_b32 {s(sW)}, {v(t1)}')
    e(f's_mov_b32 {s(WSRD+2)}, {4<<20}'); e(f's_mov_b32 {s(WSRD+3)}, 0x20000')
    e(f'v_and_b32 {v(n)}, 15, {v(ln)}'); e(f'v_lshrrev_b32 {v(g)}, 4, {v(ln)}'); e(f'v_and_b32 {v(g1)}, 1, {v(g)}')
    e(f's_mul_i32 {s(sReg)}, {s(sW)}, {WREG}'); e(f's_add_u32 {s(sReg)}, {s(sReg)}, {L_WV}')
    e(f'v_lshrrev_b32 {v(t1)}, 3, {v(n)}'); e(f'v_lshl_add_u32 {v(t1)}, {v(g1)}, 4, {v(t1)}'); e(f'v_lshrrev_b32 {v(t2)}, 1, {v(g)}'); e(f'v_lshl_add_u32 {v(t1)}, {v(t2)}, 2, {v(t1)}')
    e(f'v_and_b32 {v(t2)}, 7, {v(n)}'); e(f'v_lshlrev_b32 {v(t2)}, 4, {v(t2)}'); e(f'v_lshlrev_b32 {v(VOO)}, 6, {v(g1)}'); e(f'v_xor_b32 {v(t2)}, {v(t2)}, {v(VOO)}')
    e(f'v_lshl_add_u32 {v(VOO)}, {v(t1)}, 10, {v(t2)}')
    e(f's_lshl_b32 {s(sT)}, {s(sH)}, 17'); e(f's_lshl_b32 {s(sT+1)}, {s(sW)}, 8'); e(f's_add_u32 {s(sT)}, {s(sT)}, {s(sT+1)}')
    for k in range(4):
        e(f's_xor_b32 {s(sRow+k)}, {s(sW)}, {k}'); e(f's_lshl_b32 {s(sRow+k)}, {s(sRow+k)}, 15'); e(f's_add_u32 {s(sRow+k)}, {s(sRow+k)}, {s(sT)}')
    e('s_waitcnt lgkmcnt(0)')
    if timing: e('s_memrealtime s[80:81] ;stamp')
    items=[g_ for m_ in 'okvq' for g_ in res_groups if g_[0]==m_]+lds_groups
    SL=[i%8 for i in range(32)]
    k_=OPT['ord']
    if k_:
        items=items[:4]+items[32-k_:]+items[4:32-k_]
        R_=8-k_; n_=28-k_
        SL=[None]*4+list(range(8-k_,8))+[(j-n_)%R_ for j in range(n_)]
        SL[:4]=[(j-4-n_)%R_ for j in range(4)]
    nxt_=[0]
    def pump(it,lim):
        while nxt_[0]<32 and nxt_[0]<=lim and all(j<it for j in range(nxt_[0]) if SL[j]==SL[nxt_[0]]):
            issue(nxt_[0]); nxt_[0]+=1
    ptr={'q':sPtr+2,'k':sPtr+4,'v':sPtr+6,'o':sPtr+8}
    ntf=' nt' if OPT['nt'] else ''
    def issue(i):
        g_=items[i]
        if i>=4: e(f's_mov_b32 {s(WSRD)}, {s(ptr[g_[0]])}'); e(f's_mov_b32 {s(WSRD+1)}, {s(ptr[g_[0]]+1)}')
        for b in range(4):
            e(f's_add_u32 m0, {s(sReg)}, {SL[i]*4096+b*1024}')
            if g_[0]=='o': e(f's_add_u32 {s(sT+7)}, {s(sRow+g_[2])}, {(8*(b>>1)+2*(b&1))*1024+g_[1]*128}'); vo=VOO
            else: e(f's_mov_b32 {s(sT+7)}, {(128*(g_[1]&3)+8*(g_[1]>>2)+4*(b>>1)+(b&1))*8192}'); vo=VA1 if b&1 else VA0
            vm(f'buffer_load_dwordx4 {v(vo)}, {s(WSRD,4)}, {s(sT+7)} offen{ntf} lds',g_)
    pump(0,3)
    e(f's_mov_b32 {s(sPtr+8)}, {s(WSRD)}'); e(f's_mov_b32 {s(sPtr+9)}, {s(WSRD+1)}')
    e(f's_mov_b32 {s(WS+2)}, {WS_BYTES}'); e(f's_mov_b32 {s(WS+3)}, 0x20000')
    e(f'v_lshlrev_b32 {v(L16)}, 4, {v(ln)}'); e(f'v_add_u32 {v(LW)}, {s(sReg)}, {v(L16)}')
    e(f's_add_u32 {s(sVdst)}, {s(sReg)}, 32768')
    e(f's_lshl_b32 {s(sT+1)}, {s(sW)}, 11'); e(f's_add_u32 {s(sKdst)}, {s(sT+1)}, {L_KX}')
    e(f's_lshl_b32 {s(sWoff)}, {s(sW)}, 10')
    e(f'v_and_b32 {v(t1)}, 1, {v(ln)}'); e(f'v_mul_u32_u24 {v(t1)}, 0xaaaa, {v(t1)}'); e(f'v_add_u32 {v(IDX)}, 0x4444, {v(t1)}')
    e(f's_lshl_b32 {s(sT+2)}, {s(sW)}, 9')
    e(f'v_lshrrev_b32 {v(r)}, 2, {v(n)}'); e(f'v_lshlrev_b32 {v(QW)}, 7, {v(r)}'); e(f'v_and_b32 {v(t1)}, 1, {v(r)}'); e(f'v_lshlrev_b32 {v(t1)}, 6, {v(t1)}')
    e(f'v_lshlrev_b32 {v(t2)}, 5, {v(g)}'); e(f'v_xor_b32 {v(t1)}, {v(t1)}, {v(t2)}'); e(f'v_add_u32 {v(QW)}, {v(QW)}, {v(t1)}')
    e(f'v_and_b32 {v(t1)}, 3, {v(n)}'); e(f'v_lshl_add_u32 {v(QW)}, {v(t1)}, 2, {v(QW)}'); e(f'v_add_u32 {v(QW)}, {s(sT+2)}, {v(QW)}'); e(f'v_add_u32 {v(QW)}, {L_Q}, {v(QW)}')
    e(f'v_lshlrev_b32 {v(t1)}, 3, {v(ln)}'); e(f'v_add_u32 {v(OW)}, {s(sT+2)}, {v(t1)}'); e(f'v_and_b32 {v(ORD)}, -9, {v(OW)}')
    e(f'v_and_b32 {v(t1)}, -9, {v(t1)}'); e(f'v_lshlrev_b32 {v(t2)}, 6, {v(g1)}'); e(f'v_xor_b32 {v(QR)}, {v(t1)}, {v(t2)}')
    e(f'v_bfe_u32 {v(t1)}, {v(n)}, 1, 2'); e(f'v_lshlrev_b32 {v(KW)}, 2, {v(t1)}'); e(f'v_and_b32 {v(t1)}, 1, {v(n)}'); e(f'v_lshl_add_u32 {v(KW)}, {v(t1)}, 4, {v(KW)}')
    e(f'v_lshl_add_u32 {v(KW)}, {v(g)}, 6, {v(KW)}'); e(f'v_lshrrev_b32 {v(t1)}, 3, {v(n)}'); e(f'v_lshl_add_u32 {v(KW)}, {v(t1)}, 8, {v(KW)}')
    e(f'v_add_u32 {v(KW)}, {s(sT+2)}, {v(KW)}'); e(f'v_add_u32 {v(KW)}, {L_K}, {v(KW)}')
    e(f'v_lshlrev_b32 {v(MPUB)}, 12, {v(t1)}'); e(f'v_and_b32 {v(t1)}, 1, {v(r)}'); e(f'v_lshl_add_u32 {v(MPUB)}, {v(t1)}, 6, {v(MPUB)}'); e(f'v_lshl_add_u32 {v(MPUB)}, {v(g1)}, 5, {v(MPUB)}')
    e(f'v_and_b32 {v(t1)}, 3, {v(n)}'); e(f'v_lshl_add_u32 {v(MPUB)}, {v(t1)}, 3, {v(MPUB)}'); e(f'v_lshrrev_b32 {v(t2)}, 1, {v(g)}'); e(f'v_lshl_add_u32 {v(MPUB)}, {v(t2)}, 31, {v(MPUB)}')
    e(f'v_lshlrev_b32 {v(TO0)}, 8, {v(g)}'); e(f'v_lshl_add_u32 {v(TO0)}, {v(t1)}, 3, {v(TO0)}'); e(f'v_lshl_add_u32 {v(TO0)}, {v(g1)}, 6, {v(TO0)}')
    e(f'v_and_b32 {v(t2)}, 1, {v(r)}'); e(f'v_lshl_add_u32 {v(TO0)}, {v(t2)}, 7, {v(TO0)}'); e(f'v_lshrrev_b32 {v(t2)}, 1, {v(r)}'); e(f'v_lshl_add_u32 {v(TO0)}, {v(t2)}, 5, {v(TO0)}')
    e(f'v_add_u32 {v(TO0)}, {s(sReg)}, {v(TO0)}'); e(f'v_xor_b32 {v(TO1)}, 64, {v(TO0)}')
    e(f'v_lshl_add_u32 {v(t2)}, {v(g1)}, 2, {v(r)}'); e(f's_lshl_b32 {s(sT+3)}, {s(sW)}, 1'); e(f'v_xor_b32 {v(t2)}, {s(sT+3)}, {v(t2)}')
    e(f'v_lshlrev_b32 {v(TA0)}, 10, {v(g)}'); e(f'v_lshl_add_u32 {v(TA0)}, {v(r)}, 8, {v(TA0)}'); e(f'v_lshl_add_u32 {v(TA0)}, {v(t2)}, 5, {v(TA0)}'); e(f'v_lshl_add_u32 {v(TA0)}, {v(t1)}, 3, {v(TA0)}')
    e(f'v_add_u32 {v(TA0)}, {L_WV}, {v(TA0)}'); e(f'v_xor_b32 {v(TA1)}, 32, {v(TA0)}'); e(f'v_add_u32 {v(TB0)}, {2*WREG}, {v(TA0)}'); e(f'v_add_u32 {v(TB1)}, {2*WREG}, {v(TA1)}')
    e(f's_lshl_b32 {s(sT+4)}, {s(sH)}, 8')
    e(f'v_and_b32 {v(t2)}, 2, {v(g)}'); e(f'v_lshl_add_u32 {v(t2)}, {v(g1)}, 4, {v(t2)}'); e(f'v_lshlrev_b32 {v(t1)}, 1, {v(g)}'); e(f'v_xor_b32 {v(t1)}, {v(t1)}, {v(n)}'); e(f'v_lshlrev_b32 {v(t1)}, 4, {v(t1)}')
    e(f'v_lshl_add_u32 {v(VA0)}, {v(t2)}, 13, {v(t1)}'); e(f's_lshl_b32 {s(sT+3)}, {s(sW)}, 18'); e(f's_add_u32 {s(sT+3)}, {s(sT+3)}, {s(sT+4)}')
    e(f'v_add_u32 {v(VA0)}, {s(sT+3)}, {v(VA0)}'); e(f'v_xor_b32 {v(VA1)}, 128, {v(VA0)}')
    e(f's_lshl_b32 {s(sT+3)}, {s(sW)}, 15'); e(f'v_lshlrev_b32 {v(t1)}, 11, {v(r)}'); e(f'v_add_u32 {v(t1)}, {s(sT+4)}, {v(t1)}'); e(f'v_and_b32 {v(t1)}, 0x1fff, {v(t1)}')
    e(f'v_lshl_add_u32 {v(PST)}, {v(g)}, 13, {v(t1)}'); e(f'v_lshl_add_u32 {v(PST)}, {v(n)}, 4, {v(PST)}'); e(f'v_add_u32 {v(PST)}, {s(sT+3)}, {v(PST)}')
    Rp=OPT['rep']; cval=struct.unpack('<I',struct.pack('<f',math.log2(math.e)/math.sqrt(128)))[0]
    for r_,val in ((sC,cval),(sC2,cval),(sC2+1,cval),(sStep,0),(sSpin,0),(sSpinU,0),(sSpinF,0),(sSlot,0),(sPslot,3*262144),(sOne,0x3f803f80),(sOne+1,0x3f803f80),
                   (sOdd,0xaaaaaaaa),(sOdd+1,0xaaaaaaaa),(sEx,0x10001 if Rp>1 else 1),(sEx+1,0x10001 if Rp>2 else 0)): e(f's_mov_b32 {s(r_)}, {hex(val)}')
    e(f's_and_b32 {s(sFlagB)}, {s(sH)}, {Rp-1}'); e(f's_lshl_b32 {s(sFlagB)}, {s(sFlagB)}, 8'); e(f's_add_u32 {s(sFlagB)}, {s(sFlagB)}, {FLAG_OFF}')
    e(f's_lshl_b32 {s(sFlag)}, {s(sH)}, 2'); e(f's_add_u32 {s(sFlag)}, {s(sFlag)}, {FLAG_OFF}')
    e(f's_lshl_b32 {s(sPinB)}, {s(sH)}, 13'); e(f's_add_u32 {s(sPinB)}, {s(sPinB)}, {PART_OFF}'); e(f's_add_u32 {s(sPrstB)}, {s(sPinB)}, {s(sT+1)}')
    e(f's_bfe_u32 {s(sT+5)}, {s(sH)}, 0x20002'); e(f's_lshl_b32 {s(sMemB)}, {s(sT+5)}, 10'); e(f's_lshr_b32 {s(sT+5)}, {s(sH)}, 4'); e(f's_lshl_b32 {s(sT+5)}, {s(sT+5)}, 9')
    e(f's_add_u32 {s(sMemB)}, {s(sMemB)}, {s(sT+5)}'); e(f's_and_b32 {s(sT+5)}, {s(sH)}, 3'); e(f's_lshl_b32 {s(sT+5)}, {s(sT+5)}, 7'); e(f's_add_u32 {s(sMemB)}, {s(sMemB)}, {s(sT+5)}'); e(f's_add_u32 {s(sMemB)}, {s(sMemB)}, {MEM_OFF}')
    e(f's_lshl_b32 {s(sKsrc)}, {s(sH)}, 20'); e(f's_add_u32 {s(sKsrc)}, {s(sKsrc)}, {s(sT+1)}'); e(f's_add_u32 {s(sKsrc)}, {s(sKsrc)}, {KV_OFF}'); e(f's_add_u32 {s(sVsrc)}, {s(sKsrc)}, 8192')
    e(f's_lshl_b32 {s(sKvm)}, {s(sH)}, 18'); e(f's_add_u32 {s(sKvm)}, {s(sKvm)}, {s(sWoff)}'); e(f's_add_u32 {s(sKvm)}, {s(sKvm)}, {KVM_OFF}')
    e(f's_lshl_b32 {s(sKvF)}, {s(sH)}, 7'); e(f's_add_u32 {s(sKvmF)}, {s(sKvF)}, {BF_OFF+BF_KVM}'); e(f's_add_u32 {s(sKvF)}, {s(sKvF)}, {BF_OFF+BF_KV}')
    p+=zero(PM,4)+zero(ONES,4,'-1')
    e(f'v_and_b32 {v(t1)}, 2, {v(n)}'); e(f'v_lshlrev_b32 {v(t1)}, 3, {v(t1)}'); e(f'v_mov_b32 {v(t2)}, 0x3f80'); e(f'v_lshlrev_b32 {v(t2)}, {v(t1)}, {v(t2)}'); e(f'v_bfe_u32 {v(t1)}, {v(n)}, 2, 1')
    for jj in range(4):
        e(f'v_cmp_eq_u32 vcc, {jj&1}, {v(t1)}'); e(f'v_cndmask_b32 {v(M+jj)}, 0, {v(t2)}, vcc')
    e(f'ds_write_b128 {v(L16)}, {v(M,4)} offset:{L_SEL}')
    e(f'v_lshrrev_b32 {v(T0)}, 1, {v(n)}'); e(f'v_lshlrev_b32 {v(T0)}, 10, {v(T0)}'); e(f'v_lshl_add_u32 {v(T0)}, {v(g1)}, 3, {v(T0)}')
    e(f'v_and_b32 {v(t1)}, 2, {v(g)}'); e(f'v_lshl_add_u32 {v(T0)}, {v(t1)}, 6, {v(T0)}'); e(f'v_and_b32 {v(t1)}, 1, {v(n)}'); e(f'v_lshl_add_u32 {v(T0)}, {v(t1)}, 2, {v(T0)}')
    e(f's_lshl_b32 {s(sT+5)}, {s(sW)}, 8'); e(f'v_add_u32 {v(T0)}, {s(sT+5)}, {v(T0)}')
    D=OPT['dc']
    pump(0,D-1)
    if timing: e('s_memrealtime s[82:83] ;stamp')
    e(f's_lshl_b32 {s(sT+5)}, {s(sW)}, 18'); e(f's_add_u32 {s(sT+5)}, {s(sT+5)}, {s(sPinB)}'); e(f's_add_u32 {s(sT+6)}, {s(sT+5)}, 4096')
    for j in range(8): vm(f'buffer_store_dwordx4 {v(ONES,4)}, {v(L16)}, {s(WS,4)}, {s(sT+5+(j>>2))} offen offset:{(j&3)*1024} sc1','x')
    e(f's_lshl_b32 {s(sT+5)}, {s(sW)}, 13'); e(f's_add_u32 {s(sT+5)}, {s(sT+5)}, {s(sMemB)}')
    vm(f'buffer_store_dwordx2 {v(ONES,2)}, {v(MPUB)}, {s(WS,4)}, {s(sT+5)} offen sc1','x')
    e(f's_mov_b64 exec, {s(sEx,2)}'); vm(f'buffer_store_dword {v(PM)}, {v(L16)}, {s(WS,4)}, {s(sFlag)} offen sc1','x'); e('s_mov_b64 exec, -1')
    for u in range(2):
        for x in range(4): vm(f'global_load_dword {v(QA+4*u+x)}, {v(T0)}, {s(sPtr,2)} offset:{16*u+32*x}','x')
    if not OPT['rp']:
        p+=h2_addr(FLG,t1); e(f's_cmp_eq_u32 {s(sW)}, 1'); e('s_cselect_b64 vcc, -1, 0'); e(f'v_cndmask_b32 {v(MPUB)}, {v(MPUB)}, {v(FLG)}, vcc')
    def back(i):
        g_=items[i]
        for t in range(2):
            b0=stream[g_+(t,)] if g_[0]=='q' else M+8*t
            for j in range(2): e(f'ds_write_b128 {v(LW)}, {v(b0+4*j,4)} offset:{SL[i]*4096+t*2048+j*1024}')
        assert SL[i]==lds_groups.index(g_)
    for it in range(32):
        g_=items[it]; bi=it-5
        wait(g_)
        if it==8: wait('x')
        if timing and it==0: e('s_memrealtime s[84:85] ;stamp')
        if timing and it==31: e('s_memrealtime s[86:87] ;stamp')
        e('s_barrier')
        pump(it,it+D)
        if it and items[it-1] in lds_groups[:4]: back(it-1)
        if it==8:
            e(f's_mov_b32 {s(sT+2)}, 0x05040100'); e(f's_mov_b32 {s(sT+3)}, 0x07060302'); e(f'v_add_u32 {v(T0)}, {s(sWoff)}, {v(L16)}')
            for u in range(2):
                d=X+4*u; q=QA+4*u
                e(f'v_perm_b32 {v(d)}, {v(q+1)}, {v(q)}, {s(sT+2)}'); e(f'v_perm_b32 {v(d+1)}, {v(q+3)}, {v(q+2)}, {s(sT+2)}')
                e(f'v_perm_b32 {v(d+2)}, {v(q+1)}, {v(q)}, {s(sT+3)}'); e(f'v_perm_b32 {v(d+3)}, {v(q+3)}, {v(q+2)}, {s(sT+3)}')
                e(f'ds_write_b128 {v(T0)}, {v(d,4)} offset:{L_MEM+4096*u}')
            e(f's_cmp_lg_u32 {s(sW)}, 0'); e('s_cbranch_scc1 L_ch_noarr')
            e(f's_getreg_b32 {s(sT+5)}, hwreg(HW_REG_XCC_ID)'); e(f's_and_b32 {s(sT+5)}, {s(sT+5)}, 7'); e(f's_lshl_b32 {s(sT+5)}, {s(sT+5)}, 3'); e(f's_lshl_b64 {s(sT+2,2)}, 1, {s(sT+5)}')
            e(f'v_mov_b32 {v(QA)}, {s(sT+2)}'); e(f'v_mov_b32 {v(QA+1)}, {s(sT+3)}'); e('s_mov_b64 exec, 1')
            e(f'global_atomic_add_x2 {v(PM+1)}, {v(QA,2)}, {s(DBG,2)}'); e('s_mov_b64 exec, -1')
            p.append('L_ch_noarr:')
        for b in range(4):
            for t in range(2):
                if g_[0]=='o':
                    pf,b0=ureg(g_,t) if g_ in gloc else ('v',M+8*t)
                    e(f'ds_read_b64_tr_b16 {R(pf,b0+2*b,2)}, {v(TO1 if t else TO0)} offset:{SL[it]*4096+b*1024}')
                else:
                    pf,b0=ureg(g_,t); tra=[[TA0,TA1],[TB0,TB1]][b>>1][t]
                    e(f'ds_read_b64_tr_b16 {R(pf,b0+2*b,2)}, {v(tra)} offset:{(b&1)*WREG+SL[it]*4096}')
        e('s_waitcnt lgkmcnt(0)')
        if g_ in lds_groups[4:]: back(it)
        if it==31 and g_[0]=='q': e('s_barrier'); back(it)
        if bi==8 and OPT['sync']:
            e(f'v_mov_b32 {v(T0)}, 136'); vm(f'global_load_dword {v(KVQ)}, {v(T0)}, {s(DBG,2)} sc1 ;stamp','i')
        if it==16: vm(f'global_load_dwordx2 {v(QA,2)}, {v(PM+1)}, {s(DBG,2)} sc1 ;stamp','h')
        if it==OPT['fi']:
            wait('h')
            p.append('L_ch_hs:')
            e(f'v_readfirstlane_b32 {s(sT+2)}, {v(QA)}'); e(f'v_readfirstlane_b32 {s(sT+3)}, {v(QA+1)}')
            e(f's_add_u32 {s(sSpinF)}, {s(sSpinF)}, 1'); e(f's_cmp_gt_u32 {s(sSpinF)}, {LIM}'); e('s_cbranch_scc1 L_ch_hsdone')
            e(f's_add_u32 {s(sT+4)}, {s(sT+2)}, {s(sT+3)}'); e(f's_lshr_b32 {s(sT+5)}, {s(sT+4)}, 16'); e(f's_add_u32 {s(sT+4)}, {s(sT+4)}, {s(sT+5)}')
            e(f's_lshr_b32 {s(sT+5)}, {s(sT+4)}, 8'); e(f's_add_u32 {s(sT+4)}, {s(sT+4)}, {s(sT+5)}'); e(f's_and_b32 {s(sT+4)}, {s(sT+4)}, 0xff')
            e(f's_cmp_ge_u32 {s(sT+4)}, 32'); e('s_cbranch_scc1 L_ch_hsdone')
            e(f'global_load_dwordx2 {v(QA,2)}, {v(PM+1)}, {s(DBG,2)} sc1 ;stamp'); e('s_waitcnt vmcnt(0) ;stamp'); e('s_branch L_ch_hs')
            p.append('L_ch_hsdone:')
            e(f's_or_b32 {s(sT+2)}, {s(sT+2)}, {s(sT+3)}'); e(f's_and_b32 {s(sT+2)}, {s(sT+2)}, 0x20202020')
            if OPT['sync']:
                wait('i')
                p.append('L_ch_iw:')
                e(f'v_cmp_eq_u32 vcc, 0, {v(KVQ)}'); e('s_cbranch_vccz L_ch_iwx')
                e(f's_add_u32 {s(sSpinF)}, {s(sSpinF)}, 1'); e(f's_cmp_gt_u32 {s(sSpinF)}, {LIM}'); e('s_cbranch_scc1 L_ch_iwx')
                e(f'global_load_dword {v(KVQ)}, {v(T0)}, {s(DBG,2)} sc1 ;stamp'); e('s_waitcnt vmcnt(0) ;stamp'); e('s_branch L_ch_iw')
                p.append('L_ch_iwx:')
                p.extend(kv_addr()); vm(f'buffer_load_dword {v(FLG)}, {v(T0)}, {s(WS,4)}, {s(sKvF)} offen sc1 ;stamp','f')
            e(f's_lshl_b32 {s(sT+5)}, {s(sW)}, 18'); e(f's_add_u32 {s(sT+5)}, {s(sT+5)}, {s(sPinB)}'); e(f's_add_u32 {s(sT+6)}, {s(sT+5)}, 4096')
            wl=[f'buffer_load_dwordx4 {v(KVQ,4)}, {v(L16)}, {s(WS,4)}, {s(sT+5+(j>>2))} offen offset:{(j&3)*1024} sc1 ;stamp' for j in range(8)]
            nlate=2 if OPT['rs']==0 else 1
            def warm(lst,k):
                for l in lst: vm(l,'w')
            e(f's_lshl_b32 {s(sT+4)}, {s(sH)}, 10'); e(f's_add_u32 {s(sT+4)}, {s(sT+4)}, {MEM_OFF}')
            vm(f'buffer_load_dwordx4 {v(KVQ,4)}, {v(L16)}, {s(WS,4)}, {s(sT+4)} offen sc1 ;stamp','w')
            warm(wl[:8-nlate],0)
    if OPT['sync']:
        wait('f')
        p.extend(kv_check('L_ch_k0')); p.extend(['s_branch L_ch_k0y']+kv_wait('L_ch_k0')+['L_ch_k0y:'])
    for sd,ss in ((sKdst,sKsrc),(sVdst,sVsrc)):
        e(f's_mov_b32 m0, {s(sd)}')
        for j in range(2): e(f'buffer_load_dwordx4 {v(L16)}, {s(WS,4)}, {s(ss)} offen offset:{1024*j} sc1 lds')
    warm([l.replace(v(KVQ,4),v(STG,4)) for l in wl[8-nlate:]],1)
    p.extend(kv_addr()); e(f'buffer_load_dword {v(FLG)}, {v(T0)}, {s(WS,4)}, {s(sKvF)} offen sc1 ;stamp')
    p+=zero(QA,8)
    if OPT['rp']: e(f'v_mov_b32 {v(FLG)}, 0')
    e(f's_add_u32 {s(sKsrc)}, {s(sKsrc)}, 16384'); e(f's_add_u32 {s(sVsrc)}, {s(sVsrc)}, 16384')
    if OPT['ek'] and not OPT['solo']: e(f'buffer_load_dwordx4 {v(STG,4)}, {v(L16)}, {s(WS,4)}, {s(sKsrc)} offen sc1 ;stamp')
    e(f's_add_u32 {s(sPrst)}, {s(sPrstB)}, {2*262144}')
    if not OPT['tr'] and not OPT['solo']:
        for k in range(4):
            e(f's_and_b32 {s(sT+4)}, {s(sH)}, 1'); e(f's_xor_b32 {s(sT+4)}, {s(sT+4)}, {k}'); e(f's_lshl_b32 {s(sRo1+k)}, {s(sT+4)}, 11')
            e(f's_add_u32 {s(sT+4)}, {s(sH)}, {k}'); e(f's_and_b32 {s(sT+4)}, {s(sT+4)}, 3'); e(f's_lshl_b32 {s(sRo2+k)}, {s(sT+4)}, 10')
    e('s_waitcnt lgkmcnt(0)')
    if timing: e(f's_memrealtime {s(sTime+2,2)}'); e(f's_memtime {s(sTime+6,2)}'); e('s_waitcnt lgkmcnt(0)')
    if OPT['solo']: e('s_waitcnt vmcnt(0)'); e('s_memtime s[60:61]'); e('s_waitcnt lgkmcnt(0)'); e('s_barrier')
    if OPT['rp'] and not OPT['solo']:
        e(f's_cmp_eq_u32 {s(sW)}, 1'); e(f's_cselect_b32 {s(sKvmF)}, {s(sKvmF)}, 0x40000000')
        e('s_barrier')
        for c in range(4): e(mrd(c))
        e(f's_cmp_eq_u32 {s(sT+2)}, 0'); e('s_cbranch_scc1 L_ch_S0_re'); e('s_branch L_ch_F0_re'); e('s_waitcnt lgkmcnt(0)')
    e(f's_cmp_eq_u32 {s(sT+2)}, 0'); e('s_cbranch_scc1 L_ch_S0')
    return fix(p,'prologue')

def smf(d,a_,b): return f'{SMF} {v(d,4)}, {v(a_,4)}, {b}, {v(IDX)}'
def mrd(c): return f'ds_read_b128 {v(M+4*c,4)}, {v(L16)} offset:{L_MEM+1024*c}'
def G(*groups):
    o=[]
    for g_ in groups: o.extend(g_)
    return o

def step(mode, par, verbose=False):
    sc=' sc1' if mode=='S' else ''
    two=OPT['tr'] or OPT['solo']
    L=f'L_ch_{mode}{par}'
    p=[L+':']; e=p.append
    qk=lambda m,c,t: smf((QA if m=='q' else KA if m=='k' else VA)+4*t, M+4*c, unit((m,c),t))
    Q=lambda c,t: qk('q',c,t); K=lambda c,t: qk('k',c,t); V=lambda c,t: qk('v',c,t)
    W=lambda n: f's_waitcnt lgkmcnt({n})'
    krd=[f'ds_read_b128 {v(X+4*f,4)}, {v(L16)} offset:{L_KX+1024*f}' for f in range(8)]
    kl=[f'buffer_load_dwordx4 {v(STG+4*i,4)}, {v(L16)}, {s(WS,4)}, {s(sVsrc if i>>1 else sKsrc)} offen offset:{1024*(i&1)} sc1'+(' nt' if OPT['knt'] else '') for i in range(4)]
    kw=[f'v_add_u32 {v(T0)}, {s(sKdst)}, {v(L16)}','s_waitcnt vmcnt(3)']+[f'ds_write_b128 {v(T0)}, {v(STG+4*i,4)} offset:{1024*i}' for i in range(2)]+[f'ds_write_b128 {v(LW)}, {v(STG+8+4*i,4)} offset:{32768+1024*i}' for i in range(2)]
    def post(acc,d0,d1,bytok):
        o=[f'v_add_f32 {v(acc)}, {v(acc)}, {v(acc+1)}', f'v_add_f32 {v(acc+2)}, {v(acc+2)}, {v(acc+3)}',
           f'v_add_f32 {v(acc+4)}, {v(acc+4)}, {v(acc+5)}', f'v_add_f32 {v(acc+6)}, {v(acc+6)}, {v(acc+7)}']
        if bytok: o+=[f'v_cvt_pk_bf16_f32 {v(d0)}, {v(acc)}, {v(acc+4)}', f'v_cvt_pk_bf16_f32 {v(d1)}, {v(acc+2)}, {v(acc+6)}']
        else:     o+=[f'v_cvt_pk_bf16_f32 {v(d0)}, {v(acc)}, {v(acc+2)}', f'v_cvt_pk_bf16_f32 {v(d1)}, {v(acc+4)}, {v(acc+6)}']
        return o
    def tr(i,rt=False):
        if not OPT['tr']: return []
        return [('s_memrealtime' if rt else 's_memtime')+f' {s(52+14*par+2*i,2)} ;stamp']
    def trdump():
        if not OPT['tr']: return []
        o=[f'v_mov_b32 {v(M+4+i)}, {s(52+14*(1-par)+2*i)}' for i in range(4)]+[f'v_mov_b32 {v(M+8+i)}, {s(52+14*(1-par)+2*i)}' for i in range(4,7)]
        o+=[f's_lshl_b32 {s(sT+1)}, {s(sSpinU)}, 16', f's_add_u32 {s(sT+1)}, {s(sT+1)}, {s(sSpin)}', f'v_mov_b32 {v(M+15)}, {s(sT+1)}',
            f's_lshl_b32 {s(sT+1)}, {s(sStep)}, 5', f's_add_u32 {s(sT+1)}, {s(sT+1)}, {s(sH)}', f's_lshl_b32 {s(sT+1)}, {s(sT+1)}, 2', f's_add_u32 {s(sT+1)}, {s(sT+1)}, {s(sW)}',
            f's_lshl_b32 {s(sT+1)}, {s(sT+1)}, 5', f's_add_u32 {s(sT+1)}, {s(sT+1)}, {100<<20}', 's_mov_b64 exec, 1',
            f'buffer_store_dwordx4 {v(M+4,4)}, off, {s(WS,4)}, {s(sT+1)}', f'buffer_store_dwordx4 {v(M+12,4)}, off, {s(WS,4)}, {s(sT+1)} offset:16', 's_mov_b64 exec, -1']
        return o
    rstore=lambda j: f'buffer_store_dwordx4 {v(ONES,4)}, {v(L16)}, {s(WS,4)}, {s(sPrst)} offen offset:{j*1024}{sc}'
    pub=f'buffer_store_dwordx4 {v(KVQ,4)}, {v(L16)}, {s(WS,4)}, {s(sKvm)} offen'+(' sc1' if OPT['pub'] else '')
    rp=OPT['rp']; sp=OPT['sp']
    if not OPT['solo']: p.extend(['s_waitcnt lgkmcnt(0)' if rp else f's_waitcnt vmcnt({7+OPT["ek"]}) lgkmcnt(0)','s_barrier'])
    p.append(';secS')
    for c in range(4): e(mrd(c))
    if OPT['rs']==1: e(rstore(0))
    if rp: e(pub); e(f's_add_u32 {s(sKvm)}, {s(sKvm)}, 4096')
    p.append(f'{L}_re:')
    z=zero(KA,16)
    on=[f'v_mov_b64 {v(ONES+2*i,2)}, {s(sOne,2)}' for i in range(2)]
    qp=post(QA,QA+1,QA+3,True)+[f'ds_write2_b32 {v(QW)}, {v(QA+1)}, {v(QA+3)} offset0:0 offset1:4']
    kp=post(KA,KVQ+1,KVQ+3,True)+[f'ds_write2_b32 {v(KW)}, {v(KVQ+1)}, {v(KVQ+3)} offset0:0 offset1:8']
    ek=OPT['ek'] if not OPT['solo'] else 0
    p.extend(G([kl[ek],W(3)],[Q(0,0)],[Q(0,1),W(2)],[Q(1,0),kl[1+ek]],[Q(1,1),W(1)],[Q(2,0),z[0]],[Q(2,1),W(0),z[1]],[Q(3,0),kl[2+ek]],[Q(3,1),z[2]],
               [K(0,0),z[3]],[K(1,0),z[4]],[K(2,0),f's_waitcnt vmcnt({6+ek})','s_barrier',z[5]],[K(3,0),mrd(4),z[6]],
               [K(0,1),mrd(5),z[7]],[K(1,1),mrd(6),on[0]],[K(2,1),mrd(7),on[1]],[K(3,1),krd[0],W(4)]))
    p.append(';sec0')
    fld=f'buffer_load_dword {v(FLG)}, {v(T0)}, {s(WS,4)}, {s(sKvF)} offen sc1'
    p.extend(G([Q(4,0),krd[4],W(4)],[Q(5,0),krd[1],W(4)],[Q(6,0),krd[5],W(4)],[Q(7,0),'s_nop 0' if ek else kl[3]],
               [Q(4,1),krd[2],'s_nop 0'],[Q(5,1),krd[3]],[Q(6,1),krd[6],qp[0]],[Q(7,1),krd[7],qp[1]],
               [K(4,0),'s_nop 1',f'v_cmp_u_f32 vcc, {v(QA)}, {v(QA+2)}'],[K(5,0),'s_nop 0',qp[2]],[K(6,0)]+([f's_cbranch_vccnz {L}_r2',f'{L}_r2x:'] if OPT['eb'] else [])+[qp[3]],[K(7,0),'s_nop 1',qp[4]],
               [K(4,1),qp[5]],[K(5,1),qp[6]],[K(6,1),kp[0]],[K(7,1),kp[1]]))
    p.append(';sec1')
    rk=[f'ds_read_b128 {v(X+16*k,4)}, {v(L16)} offset:{L_K+1024*k}' for k in range(2)]
    rq=[f'ds_read_b128 {v(M+4*k,4)}, {v(QR)} offset:{L_Q+512*k}' for k in range(4)]
    VF=[X+4,X+20]
    rv=[f'ds_read_b128 {v(VF[t],4)}, {v(LW)} offset:{32768+1024*t}' for t in range(2)]
    SX=lambda m,ks: f'{MF32} {v(QA+4*m,4)}, {v(X+16*m+4*ks,4)}, {v(M+4*ks,4)}, '+(v(QA+4*m,4) if ks else '0')
    sm=[smf(KA,X+16*k,v(M+8*k,8)) for k in range(2)]
    zk=zero(KA,4)
    mx=PM; tt=KA+3
    c=[f'v_max3_f32 {v(mx)}, {v(QA)}, {v(QA+1)}, {v(QA+2)}', f'v_max3_f32 {v(mx)}, {v(mx)}, {v(QA+3)}, {v(QA+4)}',
       f'v_max3_f32 {v(mx)}, {v(mx)}, {v(QA+5)}, {v(QA+6)}',
       f'v_add_f32 {v(KA)}, {v(KA)}, {v(KA+1)}', f'v_add_f32 {v(KA+1)}, {v(KA+2)}, {v(KA+3)}',
       f'v_max3_f32 {v(mx)}, {v(mx)}, {v(QA+7)}, {v(KA)}', f'v_max_f32 {v(tt)}, {v(mx)}, {v(KA+1)}', f'v_max_f32 {v(mx)}, {v(mx)}, {v(KA+1)}',
       f'v_permlane32_swap_b32 {v(mx)}, {v(tt)}', f'v_max_f32 {v(T0)}, {v(mx)}, {v(tt)}', f'v_max_f32 {v(mx)}, {v(mx)}, {v(tt)}',
       f'v_permlane16_swap_b32 {v(mx)}, {v(T0)}', f'v_max_f32 {v(mx)}, {v(mx)}, {v(T0)}', f'v_mul_f32 {v(T0)}, {s(sC)}, {v(mx)}']
    kadv=0 if OPT['hotkv'] else 16384
    bk=[f's_add_u32 {s(sSlot)}, {s(sSlot)}, 8192', f's_and_b32 {s(sSlot)}, {s(sSlot)}, 0x7fff',
        f's_add_u32 {s(sMemIn0)}, {s(sSlot)}, {MEM_OFF}', f's_add_u32 {s(sMemPub)}, {s(sMemB)}, {s(sSlot)}',
        f's_xor_b32 {s(sMemRst)}, {s(sMemPub)}, 16384',
        f's_add_u32 {s(sPrst)}, {s(sPrstB)}, {s(sPslot)}',
        f's_add_u32 {s(sPslot)}, {s(sPslot)}, 262144', f's_and_b32 {s(sPslot)}, {s(sPslot)}, 0xfffff',
        f's_add_u32 {s(sPst)}, {s(sPslot)}, {PART_OFF}', f's_add_u32 {s(sPst+1)}, {s(sPslot)}, {PART_OFF+131072}',
        f's_add_u32 {s(sPin)}, {s(sPinB)}, {s(sPslot)}', f's_add_u32 {s(sPin+1)}, {s(sPin)}, 4096',
        f's_add_u32 {s(sKsrc)}, {s(sKsrc)}, {kadv}', f's_add_u32 {s(sVsrc)}, {s(sVsrc)}, {kadv}',
        f's_add_u32 {s(sMemIn1)}, {s(sMemIn0)}, 4096', f's_mov_b32 m0, {L_MEM}', f's_add_u32 {s(sStep)}, {s(sStep)}, 1']
    wo=lambda tp,k: stream_reads(('o',tp>>1,k),tp&1)
    p.extend(G([V(0,0),'s_nop 2'],[V(0,1),W(0),'s_barrier',kp[2]],[V(1,0),rq[0],kp[3]],[V(1,1),rq[1],kp[4]],
               [V(2,0),kp[5]],[V(2,1),kp[6]],[V(3,0),rq[2],zk[0]],[V(3,1),rq[3],W(3)],
               [SX(0,0),zk[1]],[SX(1,0)]+([] if OPT['eb'] else [f's_cbranch_vccnz {L}_r2',f'{L}_r2x:']),[SX(0,1),W(2),'s_barrier'],[SX(1,1),rk[0],W(1)],
               [SX(0,2),rk[1]],[SX(0,3),rv[0]],[SX(1,2),rv[1]],[SX(1,3),bk[0],bk[1]]+([] if OPT['v1'] else [W(2)]),
               *([[V(4,0),W(2),bk[2],c[0]],[sm[0],bk[3],bk[5],c[1]],[sm[1],wo(2,1)[0],c[2]],[V(5,0),wo(2,2)[0],bk[6]],[V(6,0),bk[7],bk[16],c[3],c[4]],[V(7,0),c[5],c[6],c[7]]] if OPT['v1'] else
                 [[sm[0],'s_nop 0',c[0]],[sm[1],wo(2,1)[0]],[V(4,0),bk[2],bk[3],c[1]],[V(5,0),wo(2,2)[0],c[2]],[V(6,0),bk[5],bk[6],c[3],c[4]],[V(7,0),bk[7],bk[16],c[5],c[6],c[7]]]),
               [V(4,1),wo(0,3)[0],c[8]],[V(5,1),wo(0,3)[1],c[9],c[10]],[V(6,1),wo(1,3)[0],c[11]],[V(7,1),wo(1,3)[1],c[12],c[13]]))
    if OPT['tr']: p.append(f's_memtime {s(52+14*(1-par)+10,2)} ;stamp')
    p.append(';sec2')
    vp=post(VA,KVQ,KVQ+2,False)
    xp=lambda r_: f'v_exp_f32 {v(r_)}, {v(r_)}'
    PX=KA+4; OF=M+16
    e(vp[0]); e(vp[1])
    for r_ in (KA,QA,QA+2,QA+4,QA+6):
        e(f'v_pk_fma_f32 {v(r_,2)}, {v(r_,2)}, {s(sC2,2)}, {v(T0,2)} op_sel_hi:[1,1,0] neg_lo:[0,0,1] neg_hi:[0,0,1]')
    e(f'v_mfma_f32_32x32x8_bf16 {v(M,16)}, {v(PM+2,2)}, {v(PM+2,2)}, 0'); e(bk[12])
    e(xp(KA)); e(xp(KA+1))
    p.extend([vp[2],vp[3],vp[4],vp[5]])
    e(f'v_cvt_pk_bf16_f32 {v(PM)}, {v(KA)}, {v(KA+1)}')
    e(xp(QA)); e(xp(QA+1))
    ex=[f's_cmp_eq_u32 {s(sStep)}, 64','s_cbranch_scc1 L_ch_last'] if (par==1 and OPT['solo']) else ['s_nop 1']
    p.extend(G([f'{MF16} {v(VA,4)}, {v(KVQ,2)}, {v(PM,2)}, 0',bk[13],xp(QA+2)],
               [f'{MF16} {v(VA+4,4)}, {v(KVQ+2,2)}, {v(PM,2)}, 0',bk[8],xp(QA+3)],
               [f'{MF16} {v(KA,4)}, {v(ONES,2)}, {v(PM,2)}, 0',W(6),xp(QA+4),xp(QA+5),xp(QA+6),xp(QA+7)]))
    for i in range(4): e(f'v_cvt_pk_bf16_f32 {v(PX+i)}, {v(QA+2*i)}, {v(QA+2*i+1)}')
    zo=zero(ONES,4,'-1')
    oa=[f'v_xor_b32 {v(QA+k)}, {512*k}, {v(ORD)}' for k in range(1,4)]
    p.extend(G([oa[0],oa[1]],[f'{MF32} {v(KA,4)}, {v(ONES,4)}, {v(PX,4)}, {v(KA,4)}']+ex+[oa[2]],
               [f'{MF32} {v(VA,4)}, {v(VF[0],4)}, {v(PX,4)}, {v(VA,4)}',bk[14],zo[0],zo[1]],
               [f'{MF32} {v(VA+4,4)}, {v(VF[1],4)}, {v(PX,4)}, {v(VA+4,4)}',bk[15],f'v_rcp_f32 {v(T0)}, {v(KA)}',bk[9],bk[10]]))
    pm_=[f'v_pk_mul_f32 {v(VA+2*i,2)}, {v(VA+2*i,2)}, {v(T0,2)} op_sel_hi:[1,0]' for i in range(4)]
    cv=[f'v_cvt_pk_bf16_f32 {v(OF+i)}, {v(VA+2*i)}, {v(VA+2*i+1)}' for i in range(4)]
    p.extend([pm_[0],pm_[1],cv[0],cv[1],pm_[2],pm_[3],cv[2],cv[3]])
    p.append(';sec3')
    e(f'v_cndmask_b32 {v(QA+4)}, {v(OF)}, {v(OF+2)}, {s(sOdd,2)}'); e(f'v_cndmask_b32 {v(QA+5)}, {v(OF+1)}, {v(OF+3)}, {s(sOdd,2)}')
    O=lambda tp,k: smf(M+4*tp,OF+4*k,unit(('o',tp>>1,k),tp&1))
    def oc(tp,j):
        q=M+8*(tp>>1)+(tp&1)+2*j
        return f'v_cvt_pk_bf16_f32 {v(q)}, {v(M+4*tp+2*j)}, {v(M+4*tp+2*j+1)}'
    ost=lambda u: f'buffer_store_dwordx4 {v(M+8*u,4)}, {v(PST)}, {s(WS,4)}, {s(sPst+u)} offen{sc}'
    ro=[f'ds_read_b128 {v(OF+4*k,4)}, {v(QA+k)} offset:{L_O}' for k in range(1,4)]
    p.extend(G([f'ds_write_b64 {v(OW)}, {v(QA+4,2)} offset:{L_O}'],[O(0,0),rstore(1)],[O(1,0),wo(2,1)[1]],[W(1),'s_barrier',ro[0]],[O(2,0),ro[1],bk[11]],[O(3,0),ro[2],bk[4]],
               [wo(2,2)[1],wo(2,3)[0],W(4)]))
    p.append(';sec4')
    p.extend(G([O(0,1),wo(2,3)[1],W(4)],[O(0,2),wo(3,1)[0],W(4)],[O(0,3),wo(3,1)[1],f's_cmp_lg_u32 {s(sW)}, 0'],
               [O(1,1),wo(3,2)[0],'s_nop 0'],[O(1,2),wo(3,2)[1],W(4)],[O(1,3),wo(3,3)[0],oc(0,0)],
               [O(2,1),wo(3,3)[1],oc(0,1)],[O(2,2),W(4),'s_waitcnt vmcnt(1)' if OPT['sw1'] else 's_nop 0',oc(1,0),oc(1,1)],[O(2,3),ost(0)],
               [O(3,1),W(0),'s_nop 1'],[O(3,2),'s_nop 1',oc(2,0)],[O(3,3),'s_nop 1',oc(2,1)],[oc(3,0),oc(3,1),ost(1)]))
    sr=[]
    for g_,t in ((('q',0),0),(('q',0),1),(('q',1),0),(('q',1),1)): sr+=stream_reads(g_,t)
    xs=[]
    for g_,t in ((('q',2),0),(('q',2),1),(('q',3),0),(('q',3),1)): xs+=stream_reads(g_,t)
    xz=weave(xs,zero(QA,8),[0,0,0,0,1,1,1,1])
    if verbose and par==0:
        fx=fix(p,'main',True); print('model cycles',simulate(fx,OPT['show']), 'inserted waits', len([l for l in fx if l.startswith('s_waitcnt')])-len([l for l in p if l.startswith('s_waitcnt')]))
    if OPT['solo']:
        marks=[i for i,l in enumerate(p) if l.startswith(';sec')]
        if OPT['cutm']>=0:
            marks=[i+1 for i,l in enumerate(p) if l.startswith(('v_mfma','v_smfmac'))]; OPT['cut']=OPT['cutm']
        if OPT['cut']<len(marks):
            rest=p[marks[OPT['cut']]:]
            p[:]=p[:marks[OPT['cut']]]+['s_memtime s[62:63] ;stamp']+[l for l in rest if (l.startswith(('s_add','s_and','s_cmp','s_cbranch_scc')) or l.endswith(':'))]
        d=OPT['drop']
        if d&1: p[:]=[l for l in p if not l.startswith('buffer_store')]
        if d&2: p[:]=[l for l in p if not l.startswith('buffer_load')]
        if OPT['cut']>=len(marks): p.append('s_memtime s[62:63] ;stamp')
        p.extend(['s_waitcnt vmcnt(0)']+kw+kv_addr()+sr+xz)
        p.extend(['s_waitcnt lgkmcnt(0) vmcnt(0)','s_sub_u32 s62, s62, s60', f's_add_u32 {s(sSpin)}, {s(sSpin)}, s62', 's_barrier', 's_sleep 8', 's_memtime s[60:61] ;stamp', 's_waitcnt lgkmcnt(0)', 's_barrier'])
        if par==1: p.append(f's_branch L_ch_{mode}0')
        return fix(p,f'solo{par}'), [f'{L}_r2:',f's_branch {L}_r2x']
    kc=lambda x: kv_check(L+x) if OPT['sync'] else []
    if rp: return window_rp(locals())
    p.extend(tr(0)+tr(1,True))
    e(f's_cbranch_scc1 {L}_w')
    head=list(p)
    p.extend(trdump())
    e(f'ds_read_b128 {v(QA+4,4)}, {v(L16)} offset:{L_SEL}')
    e(f'v_mov_b32 {v(M+2)}, {s(sStep)}')
    if OPT['de']:
        e(f's_cmp_lt_u32 {s(sH)}, 16'); e(f's_cbranch_scc1 {L}_e'); p.extend(['s_nop 3']*OPT['de']); p.append(f'{L}_e:')
    for i in range(OPT['d1']-OPT['de']-(1 if OPT['de'] else 0)-(8 if OPT['tr'] else 0)): e('s_nop 3')
    p.extend(tr(2))
    ld1=[f'buffer_load_dwordx4 {v(X+4*j,4)}, {v(L16)}, {s(WS,4)}, {s(sPin+(j>>2))} offen offset:{(j&3)*1024} sc1' for j in range(8)]
    if OPT['ro1']:
        p[-1:-1]=[f's_add_u32 {s(sT+4+k)}, {s(sPin)}, {s(sRo1+k)}' for k in range(4)]; p.pop()
        ld1=[f'buffer_load_dwordx4 {v(X+4*j,4)}, {v(L16)}, {s(WS,4)}, {s(sT+4+(j>>1))} offen offset:{(j&1)*1024} sc1' for j in range(8)]
    fst=[f's_mov_b64 exec, {s(sEx,2)}', f'buffer_store_dword {v(M+2)}, {v(L16)}, {s(WS,4)}, {s(sFlag)} offen{sc}', 's_mov_b64 exec, -1']
    p.extend(ld1); p.extend(sr+zero(QA,4)); e(W(8))
    p.append(f'{L}_p1:')
    RM=lambda j: smf(QA,QA+4,v(X+8*j,8))
    fin=[f'v_cvt_pk_bf16_f32 {v(M)}, {v(QA)}, {v(QA+2)}', f'v_cvt_pk_bf16_f32 {v(M+1)}, {v(QA+1)}, {v(QA+3)}']
    mpub=f'buffer_store_dwordx2 {v(M,2)}, {v(MPUB)}, {s(WS,4)}, {s(sMemPub)} offen{sc}'
    chk=f'v_cmp_u_f32 vcc, {v(QA)}, {v(QA+1)}'
    p.extend(['s_waitcnt vmcnt(6)',f'v_cmp_u_f32 vcc, {v(X)}, {v(X+4)}',RM(0),
              fst[0], f's_cbranch_vccnz {L}_r0']+fst[1:]+(['s_barrier'] if OPT['b0'] else [])+tr(3)+[f'{L}_p2:'])
    for j in range(1,4):
        e(f's_waitcnt vmcnt({7-2*j})'); e(RM(j))
    p.extend(fin+[mpub,chk])
    p.extend(tr(4))
    e(f's_cbranch_vccnz {L}_r1')
    p.append(f'{L}_p1ok:')
    p.extend([kw[0]]+kw[2:]+xz)
    nxt=f'L_ch_{mode}{1-par if two else 0}'
    tailc=['s_barrier']+([kl[0]] if ek else [])+[pub, rstore(0)]
    tail2=[f's_add_u32 {s(sKvm)}, {s(sKvm)}, 4096', f's_cmp_lg_u32 {s(sStep)}, 63', f's_cbranch_scc1 {nxt}', 's_branch L_ch_fin']
    p.append(f'{L}_b1:')
    p.extend(tailc+tail2)
    body=fix(p,f'step{mode}{par}',verbose)
    ld2=[f'buffer_load_dwordx4 {v(H2A)}, {s(WS,4)}, {s(sMemIn0)} offen offset:{1024*j} sc1 lds' for j in range(4)]
    ld2+=[f's_mov_b32 m0, {L_MEM+4096}','s_nop 0']+[f'buffer_load_dwordx4 {v(H2A)}, {s(WS,4)}, {s(sMemIn1)} offen offset:{1024*j} sc1 lds' for j in range(4)]
    ld2r=ld2
    if OPT['ro2']:
        ld2r=[]
        for j in range(8):
            ld2r+=[f's_add_u32 m0, {s(sRo2+(j&3))}, {L_MEM+4096*(j>>2)}', f's_add_u32 {s(sT+4)}, {s(sRo2+(j&3))}, {s(sMemIn1 if j>>2 else sMemIn0)}',
                   f'buffer_load_dwordx4 {v(H2A)}, {s(WS,4)}, {s(sT+4)} offen sc1 lds']
    q=[f'{L}_w:']+kw+[f's_cmp_lg_u32 {s(sW)}, 3', f's_cbranch_scc1 {L}_w3', f'buffer_store_dwordx2 {v(ONES,2)}, {v(MPUB)}, {s(WS,4)}, {s(sMemRst)} offen{sc}', f'{L}_w3:']+trdump()+sr+xz; e=q.append
    e(f's_cmp_eq_u32 {s(sW)}, 1'); e(f's_cbranch_scc1 {L}_fb')
    if OPT['b0']: e('s_barrier')
    if OPT['sync']:
        e(f's_cmp_lg_u32 {s(sW)}, 2'); e(f's_cbranch_scc1 {L}_b1')
        q.extend(kc('_kb')+tailc+[fld]+tail2)
    else: e(f's_branch {L}_b1')
    q.append(f'{L}_fb:')
    e(f'v_lshrrev_b32 {v(T0)}, 2, {v(L16)}'); e(f'v_and_b32 {v(T0)}, 0x7c, {v(T0)}')
    if OPT['b0']: e('s_barrier')
    for i in range(max(0,OPT['sl']-(7 if OPT['tr'] and not OPT['b0'] else 0))): e('s_nop 3')
    q.extend(tr(2))
    if OPT['ro2']: q.extend(ld2r[:2]); ld2r=ld2r[2:]
    N=OPT['nb']
    fl=f'buffer_load_dword {v(PM)}, {v(T0)}, {s(WS,4)}, {s(sFlagB)} offen sc1'
    for i in range(N-1): e(fl); e(f's_nop {7+OPT["pp"]}')
    q.append(f'{L}_fb2:')
    for i in range(8):
        e(fl)
        if OPT['pp']: e(f's_nop {OPT["pp"]-1}')
        e(f's_waitcnt vmcnt({N-1})'); e(f'v_cmp_gt_u32 vcc, {s(sStep)}, {v(PM)}'); e(f's_cbranch_vccz {L}_fb3')
    e(f's_add_u32 {s(sSpinF)}, {s(sSpinF)}, 1'); e(f's_cmp_gt_u32 {s(sSpinF)}, {LIM}'); e(f's_cbranch_scc0 {L}_fb2')
    q.append(f'{L}_fb3:')
    q.extend(tr(3)); q.extend(ld2r)
    q.extend(tailc+[f's_sub_u32 {s(sT+3)}, {s(sStep)}, 1', f'v_mov_b32 {v(FLG)}, {s(sT+3)}', 's_mov_b64 exec, 1',
        f'buffer_store_dword {v(FLG)}, off, {s(WS,4)}, {s(sKvmF)} sc1', 's_mov_b64 exec, -1']+tail2)
    i=q.index(f'{L}_fb:')
    alt=fix(head+q[:i],f'alt{mode}{par}',False)
    q=alt[alt.index(f'{L}_w:'):]+q[i:]
    e=q.append
    if OPT['sync']: q.extend(kv_wait(L+'_kb'))
    for nm,inc in (('r0',1),('r1',256)):
        q.append(f'{L}_{nm}:')
        if nm=='r0': e('s_mov_b64 exec, -1')
        else: q.extend([f'v_add_u32 {v(M+2)}, -1, {v(M+2)}']+fst+[f'v_add_u32 {v(M+2)}, 1, {v(M+2)}'])
        e(f's_add_u32 {s(sSpin)}, {s(sSpin)}, {inc-1}')
        q.append(f'{L}_{nm}l:')
        q.extend(ld1); e(f's_add_u32 {s(sSpin)}, {s(sSpin)}, 1'); e(f's_cmp_gt_u32 {s(sSpin)}, {LIM}'); e(f's_cbranch_scc1 {L}_{nm}g')
        q.extend(['s_waitcnt vmcnt(6)',f'v_cmp_u_f32 vcc, {v(X)}, {v(X+4)}',f's_cbranch_vccnz {L}_{nm}l', f'{L}_{nm}g:'])
        q.extend(zero(QA,4)+['s_nop 0'])
        for j in range(4): e(f's_waitcnt vmcnt({6-2*j})'); e(RM(j))
        q.extend(['s_nop 7', chk]+fin+[f's_cbranch_scc1 {L}_{nm}e', f's_cbranch_vccnz {L}_{nm}l', f'{L}_{nm}e:', mpub]+fst+(['s_barrier'] if OPT['b0'] and nm=='r0' else [])+tr(3)+tr(4)+[f's_branch {L}_p1ok'])
    q.append(f'{L}_r2:')
    e(f's_add_u32 {s(sSpinU)}, {s(sSpinU)}, 1'); e(f's_cmp_gt_u32 {s(sSpinU)}, {LIM}'); e(f's_cbranch_scc1 {L}_r2x')
    e(f's_cmp_eq_u32 {s(sStep)}, 0'); e(f's_cbranch_scc1 {L}_r2x')
    e(f's_mov_b32 m0, {L_MEM}'); e(f's_cmp_lg_u32 {s(sW)}, 1')
    e('s_waitcnt lgkmcnt(0)'); e('s_barrier'); e(f's_cbranch_scc1 {L}_r2b')
    q.extend(ld2); q.append(f'{L}_r2b:'); e('s_nop 7'); q.extend(zero(ONES,4,'-1')); q.extend(sr); q.extend(xs); q.extend(zero(QA,8))
    e('s_waitcnt vmcnt(0) lgkmcnt(0)'); e('s_barrier')
    for c_ in range(4): e(mrd(c_))
    e(f's_branch {L}_re')
    return body, q

def window_rp(d):
    L,p,sc,mode,par,two,tr,trdump,kw,kc,sr,xs,xz,W,rstore,sp,verbose=[d[k] for k in 'L p sc mode par two tr trdump kw kc sr xs xz W rstore sp verbose'.split()]
    e=p.append
    p.extend(tr(0)+tr(1,True))
    e(f's_cbranch_scc1 {L}_w')
    head=list(p)
    p.extend(kw+kc('_ka'))
    e(f'ds_read_b128 {v(QA+4,4)}, {v(L16)} offset:{L_SEL}')
    p.extend(sr+trdump())
    for i in range(OPT['d1']-(8 if OPT['tr'] else 0)): e('s_nop 3')
    p.extend(tr(2))
    ld1=[f'buffer_load_dwordx4 {v(X+4*j,4)}, {v(L16)}, {s(WS,4)}, {s(sPin+(j>>2))} offen offset:{(j&3)*1024} sc1' for j in range(8)]
    pre=h2_addr(T0,PM)+[f's_add_u32 {s(sT+4)}, {s(sMemIn0)}, {s(sWoff)}', f's_add_u32 {s(sT+5)}, {s(sMemIn1)}, {s(sWoff)}', f's_add_u32 m0, {s(sWoff)}, {L_MEM+4096}',
         f'v_add_u32 {v(PM)}, {s(sWoff)}, {v(L16)}', f's_sub_u32 {s(sT+3)}, {s(sStep)}, 1', f'v_mov_b32 {v(FLG)}, {s(sT+3)}']
    p.extend(ld1); p.extend(pre); e(W(0))
    p.append(f'{L}_p1:')
    RM=lambda j: f'{MF32} {v(QA,4)}, {v(QA+4,4)}, {v(X+4*j,4)}, '+(v(QA,4) if j else '0')
    p.extend(['s_waitcnt vmcnt(7)',RM(0),'s_waitcnt vmcnt(6)',f'v_cmp_u_f32 vcc, {v(X)}, {v(X+4)}',RM(1),'s_waitcnt vmcnt(5)',RM(2),f's_cbranch_vccnz {L}_r0', f'{L}_r0x:']+tr(3))
    for j in range(3,8):
        e(f's_waitcnt vmcnt({7-j})'); e(RM(j))
    e(f'v_cvt_pk_bf16_f32 {v(M)}, {v(QA)}, {v(QA+1)}')
    e(f'v_cvt_pk_bf16_f32 {v(M+1)}, {v(QA+2)}, {v(QA+3)}')
    e(f'buffer_store_dwordx2 {v(M,2)}, {v(MPUB)}, {s(WS,4)}, {s(sMemPub)} offen{sc}')
    e(f'v_cmp_u_f32 vcc, {v(QA)}, {v(QA)}')
    p.extend(tr(4))
    e(f's_cbranch_vccnz {L}_r1')
    p.append(f'{L}_p1ok:')
    p.extend(xz)
    for i in range(OPT['dp']): e('s_nop 3')
    p.append(f'{L}_b1:')
    body=fix(p,f'step{mode}{par}',verbose)
    e=body.append
    e('s_barrier')
    N=OPT['np']
    pl=f'buffer_load_dwordx4 {v(STG,4)}, {v(T0)}, {s(WS,4)}, {s(sT+4)} offen sc1'
    dm=f'buffer_load_dwordx4 {v(T0)}, {s(WS,4)}, {s(sT+5)} offen sc1 lds'
    def nops(k):
        o=[]
        while k>0: o.append(f's_nop {min(k,16)-1}'); k-=16
        return o
    for i in range(N-1): e(pl); body.extend(nops(OPT['ps']))
    e(pl); e(f's_waitcnt vmcnt({N-1})'); e(f'v_cmp_u_f32 vcc, {v(STG)}, {v(STG+2)}'); e(f's_cbranch_vccnz {L}_pl')
    body.append(f'{L}_plx:')
    e(f'ds_write_b128 {v(PM)}, {v(STG,4)} offset:{L_MEM}'); e(dm); body.extend(tr(6))
    if sp==0: e(rstore(0))
    body.extend(kv_addr()); e(f's_branch L_ch_{mode}{1-par if two else 0}')
    q=[f'{L}_w:',f's_sleep {OPT["sw"]}']+kw; e=q.append
    e(f's_cmp_lg_u32 {s(sW)}, 3'); e(f's_cbranch_scc1 {L}_w3')
    e(f'buffer_store_dwordx2 {v(ONES,2)}, {v(MPUB)}, {s(WS,4)}, {s(sMemRst)} offen{sc}')
    q.extend([f'{L}_w3:']+kc('_kb')+trdump()+sr+xz+pre)
    e(f's_branch {L}_b1')
    alt=fix(head+q,f'alt{mode}{par}',False)
    q=alt[alt.index(f'{L}_w:'):]; e=q.append
    q.append(f'{L}_pl:')
    for i in range(4):
        e(pl); e(f's_waitcnt vmcnt({N-1})'); e(f'v_cmp_u_f32 vcc, {v(STG)}, {v(STG+2)}'); e(f's_cbranch_vccz {L}_plx')
    e(f's_add_u32 {s(sSpinF)}, {s(sSpinF)}, 1'); e(f's_cmp_gt_u32 {s(sSpinF)}, {LIM}'); e(f's_cbranch_scc0 {L}_pl'); e(f's_branch {L}_plx')
    if OPT['sync']: q.extend(kv_wait(L+'_ka')+kv_wait(L+'_kb'))
    q.append(f'{L}_r0:')
    e(f's_add_u32 {s(sSpin)}, {s(sSpin)}, 1'); e(f's_cmp_gt_u32 {s(sSpin)}, {LIM}'); e(f's_cbranch_scc1 {L}_r0x')
    q.extend(ld1); e(f's_branch {L}_p1')
    q.append(f'{L}_r1:')
    e(f's_add_u32 {s(sSpin)}, {s(sSpin)}, 256'); e(f's_cmp_gt_u32 {s(sSpin)}, {LIM}'); e(f's_cbranch_scc1 {L}_p1ok')
    q.extend(ld1); e(f's_branch {L}_p1')
    q.append(f'{L}_r2:')
    e(f's_add_u32 {s(sSpinU)}, {s(sSpinU)}, 1'); e(f's_cmp_gt_u32 {s(sSpinU)}, {LIM}'); e(f's_cbranch_scc1 {L}_r2x')
    e(f's_cmp_eq_u32 {s(sStep)}, 0'); e(f's_cbranch_scc1 {L}_r2x')
    e('s_waitcnt vmcnt(0) lgkmcnt(0)'); e('s_barrier')
    q.extend(pre); e(dm); e(f's_add_u32 m0, {s(sWoff)}, {L_MEM}'); e('s_nop 0'); e(dm.replace(s(sT+5),s(sT+4)))
    q.extend(kv_addr()+zero(ONES,4,'-1')); q.extend(sr); q.extend(xs); q.extend(zero(QA,8))
    e('s_waitcnt vmcnt(0) lgkmcnt(0)'); e('s_barrier')
    for c_ in range(4): e(mrd(c_))
    e(f's_branch {L}_re')
    return body, q

def chain_body(timing=False, verbose=False):
    A=Asm()
    pro=prologue(timing)
    F0,f0=step('F',0,verbose); F1,f1=step('F',1); S0,s0=step('S',0); S1,s1=step('S',1)
    if not OPT['rp']: check(pro+F0+F0,'chainF')
    for x in ((pro,F0,F1,f0,f1,S0,S1,s0,s1) if (OPT['tr'] or OPT['solo']) else (pro,F0,f0,S0,s0)): A.extend(x)
    f=['L_ch_fin:']+zero(KA,16)+[f's_waitcnt vmcnt({3+OPT["ek"]}) lgkmcnt(0)','s_barrier','L_ch_fin2:']+[mrd(c) for c in range(8)]
    f[1:1]=['s_waitcnt lgkmcnt(0)']
    for c in range(8):
        for m_,acc in (('k',KA),('v',VA)):
            for t in range(2): f.append(smf(acc+4*t,M+4*c,unit((m_,c),t)))
    f+=[f'v_add_f32 {v(KA+2*i)}, {v(KA+2*i)}, {v(KA+2*i+1)}' for i in range(8)]
    f+=[f'v_cmp_u_f32 vcc, {v(KA)}, {v(KA+2)}', f'v_cvt_pk_bf16_f32 {v(KVQ+1)}, {v(KA)}, {v(KA+4)}', f'v_cvt_pk_bf16_f32 {v(KVQ+3)}, {v(KA+2)}, {v(KA+6)}',
        f'v_cvt_pk_bf16_f32 {v(KVQ)}, {v(VA)}, {v(VA+2)}', f'v_cvt_pk_bf16_f32 {v(KVQ+2)}, {v(VA+4)}, {v(VA+6)}', 's_cbranch_vccz L_ch_last',
        f's_add_u32 {s(sSpinU)}, {s(sSpinU)}, 1', f's_cmp_gt_u32 {s(sSpinU)}, {LIM}', 's_cbranch_scc1 L_ch_last',
        f's_mov_b32 m0, {L_MEM}', f's_cmp_lg_u32 {s(sW)}, 1', 's_barrier', 's_cbranch_scc1 L_ch_fin3']
    f+=[f'buffer_load_dwordx4 {v(H2A)}, {s(WS,4)}, {s(sMemIn0)} offen offset:{1024*j} sc1 lds' for j in range(4)]
    f+=[f's_mov_b32 m0, {L_MEM+4096}','s_nop 0']+[f'buffer_load_dwordx4 {v(H2A)}, {s(WS,4)}, {s(sMemIn1)} offen offset:{1024*j} sc1 lds' for j in range(4)]
    f+=['L_ch_fin3:']+zero(KA,16)+['s_waitcnt vmcnt(0)','s_barrier','s_branch L_ch_fin2']
    A.extend(fix(f,'fin'))
    A.label('L_ch_last')
    A(f'buffer_store_dwordx4 {v(KVQ,4)}, {v(L16)}, {s(WS,4)}, {s(sKvm)} offen sc1')
    if timing:
        A(f'''s_waitcnt vmcnt(0)
        s_lshl_b32 {s(sSpinU)}, {s(sSpinU)}, 16
        s_add_u32 {s(sSpin)}, {s(sSpin)}, {s(sSpinU)}
        s_memrealtime {s(sTime+4,2)}
        s_memtime {s(sTime+8,2)}
        s_waitcnt lgkmcnt(0)
        s_sub_u32 {s(sT)}, {s(sTime+2)}, {s(sTime)}
        s_sub_u32 {s(sT+1)}, {s(sTime+4)}, {s(sTime+2)}
        s_sub_u32 {s(sT+2)}, {s(sTime+8)}, {s(sTime+6)}
        v_mov_b32 v4, {s(sT)}
        v_mov_b32 v5, {s(sT+1)}
        v_mov_b32 v6, {s(sT+2)}
        v_mov_b32 v7, {s(sSpin)}
        s_lshl_b32 {s(sT)}, {s(sH)}, 2
        s_add_u32 {s(sT)}, {s(sT)}, {s(sW)}
        s_lshl_b32 {s(sT)}, {s(sT)}, 5
        s_add_u32 {s(sT)}, {s(sT)}, 16384
        v_mov_b32 v0, {s(sT)}
        s_sub_u32 s80, s80, {s(sTime)}
        s_sub_u32 s82, s82, {s(sTime)}
        s_sub_u32 s84, s84, {s(sTime)}
        s_sub_u32 s86, s86, {s(sTime)}
        v_mov_b32 v8, s80
        v_mov_b32 v9, s82
        v_mov_b32 v10, s84
        v_mov_b32 v11, s86
        s_mov_b64 exec, 1
        global_store_dwordx4 v0, v[8:11], {s(DBG,2)} offset:16
        global_store_dwordx4 v0, v[4:7], {s(DBG,2)}''')
    return A

def kernel_text(name, body):
    return f'''.globl {name}
.p2align 8
.type {name},@function
{name}:
{body.text()}    s_endpgm
'''
def kernel_desc(name, vgpr=512, accum=256, sgpr=102):
    return f'''.p2align 6
.amdhsa_kernel {name}
  .amdhsa_next_free_vgpr {vgpr}
  .amdhsa_next_free_sgpr {sgpr}
  .amdhsa_accum_offset {accum}
  .amdhsa_group_segment_fixed_size 0
  .amdhsa_kernarg_size 120
  .amdhsa_user_sgpr_count 2
  .amdhsa_user_sgpr_kernarg_segment_ptr 1
  .amdhsa_system_sgpr_workgroup_id_x 1
  .amdhsa_float_denorm_mode_32 3
.end_amdhsa_kernel
'''

if __name__=='__main__':
    import sys
    for x in sys.argv:
        if '=' in x: OPT[x.split('=')[0]]=int(x.split('=')[1])
    A=Asm()
    if 'spread' in sys.argv:
        A(f's_cmp_ge_u32 s2, 32\ns_cbranch_scc1 L_exit\ns_mov_b32 {s(sH)}, s2')
    else:
        A(f's_cmp_ge_u32 s2, 256\ns_cbranch_scc1 L_exit\ns_and_b32 s3, s2, 7\ns_cmp_lg_u32 s3, 0\ns_cbranch_scc1 L_exit\ns_lshr_b32 {s(sH)}, s2, 3')
    A.extend(chain_body(timing=True, verbose=True))
    A.label('L_exit')
    txt='; @launch kernel=chain_kernel grid=(256,1,1) block=(256,1,1) lds=163840\n.amdgcn_target "amdgcn-amd-amdhsa--gfx950"\n.text\n'
    txt+=kernel_text('chain_kernel',A)+'.section .rodata,"a"\n'+kernel_desc('chain_kernel')
    open(sys.argv[1],'w').write(txt)
```

```python
import re

class Asm:
    def __init__(self):
        self.lines = []
    def __call__(self, s):
        for ln in s.split('\n'):
            ln = ln.strip()
            if ln:
                self.lines.append(ln)
    def label(self, n):
        self.lines.append(n + ':')
    def extend(self, o):
        self.lines.extend(o.lines if isinstance(o, Asm) else o)
    def text(self):
        out = []
        for l in self.lines:
            if l.startswith(';sec'): continue
            l = l.replace(' ;stamp', '')
            if l.endswith(':') or l.startswith('.') or l.startswith(';'):
                out.append(l)
            else:
                out.append('    ' + l)
        return '\n'.join(out) + '\n'

def R(p, i, n=1):
    return f'{p}{i}' if n == 1 else f'{p}[{i}:{i+n-1}]'
def v(i, n=1): return R('v', i, n)
def a(i, n=1): return R('a', i, n)
def s(i, n=1): return R('s', i, n)

_reg = re.compile(r'(?<![\w.])([vas])(?:\[(\d+):(\d+)\]|(\d+))(?![\w])')
def regs_of(tok):
    out = []
    for m in _reg.finditer(tok):
        p = m.group(1)
        if m.group(2) is not None:
            out += [(p, i) for i in range(int(m.group(2)), int(m.group(3)) + 1)]
        else:
            out.append((p, int(m.group(4))))
    if re.search(r'\bvcc\b', tok): out += [('vcc', 0)]
    if re.search(r'\bexec\b', tok): out += [('exec', 0)]
    if re.search(r'\bm0\b', tok): out += [('m0', 0)]
    return out

TRANS = ('v_exp_f32', 'v_log_f32', 'v_rcp_f32', 'v_rsq_f32', 'v_sqrt_f32', 'v_sin_f32', 'v_cos_f32', 'v_rcp_iflag_f32')

class Ins:
    def __init__(self, line):
        self.line = line
        l = line.split(';')[0].strip()
        parts = l.split(None, 1)
        self.op = parts[0]
        ops = [x.strip() for x in parts[1].split(',')] if len(parts) > 1 else []
        self.ops = ops
        op = self.op
        self.kind = 'other'; self.dst = []; self.src = []; self.passes = 0
        self.cregs = []; self.abregs = []; self.sdata = []
        rr = [regs_of(o) for o in ops]
        if ';stamp' in line:
            self.kind = 'salu'
        elif op.startswith('v_mfma') or op.startswith('v_smfmac'):
            self.kind = 'mfma'
            self.passes = 8 if '32x32' in op else 4
            if '4x4x4' in op: self.passes = 2
            self.dst = rr[0]
            if op.startswith('v_smfmac'):
                self.cregs = rr[0]; self.abregs = rr[1] + rr[2] + rr[3]
            else:
                self.cregs = rr[3]; self.abregs = rr[1] + rr[2]
            self.src = self.cregs + self.abregs
        elif op.startswith('v_'):
            self.kind = 'valu'
            if op.startswith('v_cmp'):
                self.dst = rr[0]; self.src = sum(rr[1:], [])
                if op.startswith('v_cmpx'): self.dst = self.dst + [('exec', 0)]
            elif op.startswith('v_permlane') and 'swap' in op:
                self.dst = rr[0] + rr[1]; self.src = rr[0] + rr[1]
            elif op.startswith(('v_add_co', 'v_sub_co', 'v_addc_co', 'v_subb_co', 'v_div_scale', 'v_mad_u64')):
                self.dst = rr[0] + rr[1]; self.src = sum(rr[2:], [])
            elif op in ('v_nop',):
                pass
            else:
                self.dst = rr[0]; self.src = sum(rr[1:], [])
                if op.startswith(('v_fmac', 'v_mac', 'v_dot2c', 'v_writelane')) or 'dpp' in op or 'row_' in l or 'quad_perm' in l or 'sdwa' in op:
                    self.src = self.src + rr[0]
                if op.startswith('v_div_fmas'): self.src = self.src + [('vcc', 0)]
        elif op.startswith('ds_'):
            if op.startswith(('ds_read', 'ds_bpermute', 'ds_permute', 'ds_swizzle')) or '_rtn' in op:
                self.kind = 'dsr'; self.dst = rr[0]; self.src = sum(rr[1:], [])
            else:
                self.kind = 'dsw'; self.src = sum(rr, [])
        elif op.startswith(('buffer_', 'global_')):
            islds = bool(re.search(r'\blds\b', l)) or '_lds_' in op
            if op in ('buffer_inv', 'buffer_wbl2'):
                self.kind = 'vmst'
            elif islds:
                self.kind = 'vmlds'; self.src = sum(rr, []) + [('m0', 0)]
            elif 'load' in op:
                self.kind = 'vmld'; self.dst = rr[0]; self.src = sum(rr[1:], [])
            elif 'atomic' in op and 'sc0' in l:
                self.kind = 'vmld'; self.dst = rr[0]; self.src = sum(rr, []) if op.startswith('buffer') else sum(rr[1:], [])
            else:
                self.kind = 'vmst'; self.src = sum(rr, [])
                d = rr[0] if op.startswith('buffer') else rr[1]
                if len(d) >= 3: self.sdata = d
        elif ';stamp' in line:
            self.kind = 'salu'
        elif op.startswith(('s_load', 's_buffer_load', 's_memtime', 's_memrealtime', 's_atomic')):
            self.kind = 'smem'; self.dst = rr[0]; self.src = sum(rr[1:], [])
        elif op.startswith('s_'):
            self.kind = 'salu'
            if op.startswith(('s_cmp', 's_waitcnt', 's_barrier', 's_nop', 's_branch', 's_cbranch', 's_endpgm', 's_sleep', 's_setprio', 's_bitcmp')):
                self.src = sum(rr, [])
            else:
                self.dst = rr[0] if rr else []; self.src = sum(rr[1:], [])
                if 'saveexec' in op: self.dst = self.dst + [('exec', 0)]
        self.states = 1
        if op == 's_nop': self.states = int(ops[0], 0) + 1
        if ';stamp' in line: self.states = 0
        self.isdpp = self.kind == 'valu' and ('dpp' in op or 'row_' in l or 'quad_perm' in l)

_cache = {}
def mk(l):
    if l not in _cache: _cache[l] = Ins(l)
    return _cache[l]

def check(lines, name='path', quiet=False, last_only=False):
    ins = []
    for l in lines:
        t = l.split(';')[0].strip()
        if not t or t.endswith(':') or t.startswith('.'): continue
        ins.append(mk(l))
    probs = []
    def ov(x, y): return set(x) & set(y)
    n = len(ins)
    for j, c in enumerate(ins):
        if last_only and j != n - 1: continue
        dist = 0
        for i in range(j - 1, max(-1, j - 24), -1):
            p = ins[i]
            need = 0; why = ''
            def req(k, w):
                nonlocal need, why
                if k > need: need, why = k, w
            vg = lambda rs: [r for r in rs if r[0] in 'va' and r[0] != 'vcc']
            sg = lambda rs: [r for r in rs if r[0] in ('s', 'vcc')]
            if p.kind == 'valu':
                if c.kind == 'mfma' and ov(vg(p.dst), c.src): req(2, 'valu->mfma')
                if c.kind == 'valu':
                    if p.op.replace('_e32', '').replace('_e64', '') in TRANS and c.op.replace('_e32', '') not in TRANS and ov(vg(p.dst), c.src): req(1, 'trans->valu')
                    if c.op.startswith('v_permlane') and ov(vg(p.dst), c.src): req(2, 'valu->permlane')
                    if c.isdpp and ov(vg(p.dst), c.src): req(2, 'valu->dpp')
                    if c.op.startswith(('v_readlane', 'v_readfirstlane')) and ov(vg(p.dst), c.src): req(1, 'valu->readlane')
                    if ov(sg(p.dst), c.src): req(2, 'valu sgpr->valu')
                    if c.op.startswith('v_div_fmas') and ('vcc', 0) in p.dst: req(4, 'vcc->div_fmas')
                    if ('exec', 0) in p.dst and (c.isdpp or c.op.startswith(('v_permlane', 'v_read'))): req(5, 'exec->dpp')
                if c.kind in ('vmld', 'vmst', 'vmlds') and ov(sg(p.dst), c.src): req(5, 'valu sgpr->vmem')
                if c.kind == 'mfma' and ('exec', 0) in p.dst: req(4, 'exec->mfma')
            if p.kind == 'mfma':
                big = {2: 5, 4: 8, 8: 12}[p.passes]; mid = {2: 4, 4: 6, 8: 10}[p.passes]; war = {2: 1, 4: 3, 8: 7}[p.passes]
                if c.kind == 'mfma':
                    if ov(p.dst, c.abregs): req(big, 'mfma D->AB')
                    if ov(p.dst, c.cregs):
                        if not (list(p.dst) == list(c.cregs) and p.passes == c.passes): req(mid, 'mfma D->C overlap')
                        elif p.passes == 2: req(2, 'mfma chain')
                    elif ov(p.dst, c.dst): req(mid, 'mfma D->D waw')
                elif c.kind in ('valu', 'dsr', 'dsw', 'vmld', 'vmst', 'vmlds'):
                    if ov(p.dst, c.src + c.dst): req(big, 'mfma D->use')
                    if c.kind == 'valu' and ov(p.cregs, c.dst): req(war, 'mfma C war')
            if p.kind == 'vmst' and p.sdata and ov(p.sdata, c.dst):
                req(2 if c.kind == 'valu' else 1, 'store data war')
            if p.kind == 'salu' and ('m0', 0) in p.dst and c.kind == 'vmlds': req(1, 'm0->ldsdma')
            if need > dist:
                probs.append(f'{name}: [{why}] need {need} have {dist}: "{p.line}" -> "{c.line}"')
            dist += p.states
            if dist >= 20: break
    if last_only: return probs
    vm = []; lg = []
    for c in ins:
        if c.op == 's_waitcnt':
            m = re.search(r'vmcnt\((\d+)\)', c.line)
            if m:
                k = int(m.group(1))
                while len(vm) > k: vm.pop(0)
            m = re.search(r'lgkmcnt\((\d+)\)', c.line)
            if m:
                k = int(m.group(1))
                if k > 0 and any(e[1] == 'smem' for e in lg):
                    pass
                else:
                    while len(lg) > k: lg.pop(0)
            continue
        touched = set(c.src) | set(c.dst)
        for q, nm in ((vm, 'vm'), (lg, 'lgkm')):
            for e in q:
                if touched & e[0]:
                    if c.kind == e[1] and not (set(c.src) & e[0]): continue
                    probs.append(f'{name}: [unwaited {nm}] "{e[2]}" -> "{c.line}"')
        if c.kind in ('vmld', 'vmst', 'vmlds'):
            vm.append((set(c.dst), c.kind, c.line))
            if len(vm) > 63: probs.append(f'{name}: vmcnt overflow at "{c.line}"'); vm.pop(0)
        if c.kind in ('dsr', 'dsw', 'smem'):
            lg.append((set(c.dst), c.kind, c.line))
    if not quiet:
        for p in probs: print('HAZARD', p)
    return probs

def weave(main, fill, pattern=None):
    out = []; k = 0
    for i, m in enumerate(main):
        out.append(m)
        cnt = pattern[i] if pattern else 0
        for _ in range(cnt):
            if k < len(fill): out.append(fill[k]); k += 1
    out.extend(fill[k:])
    return out

def fix(lines, name='', verbose=False, vm_init=0):
    out = []; vm = [(set(), 'x')] * vm_init; lg = []
    for l in lines:
        t = l.split(';')[0].strip()
        if not t or t.endswith(':') or t.startswith('.'):
            out.append(l); continue
        c = mk(l)
        if c.op == 's_waitcnt' and ';stamp' not in l:
            m = re.search(r'vmcnt\((\d+)\)', l)
            if m:
                while len(vm) > int(m.group(1)): vm.pop(0)
            m = re.search(r'lgkmcnt\((\d+)\)', l)
            if m:
                k = int(m.group(1))
                if not (k > 0 and any(e[1] == 'smem' for e in lg)):
                    while len(lg) > k: lg.pop(0)
            out.append(l); continue
        touched = set(c.src) | set(c.dst)
        w = []
        for q, nm, mx in ((vm, 'vmcnt', 63), (lg, 'lgkmcnt', 15)):
            last = -1
            for i, e in enumerate(q):
                if touched & e[0]:
                    if c.kind == e[1] and not (set(c.src) & e[0]): continue
                    last = i
            if last >= 0:
                k = min(len(q) - 1 - last, mx)
                if nm == 'lgkmcnt' and any(e[1] == 'smem' for e in q): k = 0
                w.append(f'{nm}({k})')
                while len(q) > k: q.pop(0)
        if w: out.append('s_waitcnt ' + ' '.join(w))
        if c.kind in ('vmld', 'vmst', 'vmlds'): vm.append((set(c.dst), c.kind))
        if c.kind in ('dsr', 'dsw', 'smem'): lg.append((set(c.dst), c.kind))
        out.append(l)
    res = []; nn = 0
    for l in out:
        t = l.split(';')[0].strip()
        if not t or t.endswith(':') or t.startswith('.'):
            res.append(l); continue
        tail = [x for x in res[-40:]]
        pr = [p for p in check(tail + [l], quiet=True, last_only=True) if p.endswith(f'-> "{l}"') and 'need' in p and 'unwaited' not in p]
        add = 0
        for p in pr:
            m = re.search(r'need (\d+) have (\d+)', p)
            add = max(add, int(m.group(1)) - int(m.group(2)))
        if add:
            nn += add
            if verbose: print(f'  [{name}] nop x{add} before: {l}')
            res.append(f's_nop {add-1}')
        res.append(l)
    if verbose: print(f'  [{name}] total nop states inserted: {nn}, instrs {sum(1 for x in res if not x.endswith(":"))}')
    return res

def simulate(lines, show=False):
    t = 0; valu_ok = 0; mf_ok = 0; last = None; out = []
    for l in lines:
        x = l.split(';')[0].strip()
        if not x or x.endswith(':') or x.startswith('.') or ';stamp' in l: continue
        c = Ins(l)
        st = t
        if c.kind == 'mfma':
            st = max(t, mf_ok); dur = c.passes * 4
            mf_ok = st + dur; valu_ok = st + (12 if c.op.startswith('v_smf') else 8); t = st + 4
        elif c.kind == 'valu':
            st = max(t, valu_ok)
            if c.op.startswith('v_pk_'): st = max(st, mf_ok + 4)
            cost = 8 if (c.op in TRANS or 'swap' in c.op) else (5 if c.op.startswith(('v_cvt_pk', 'v_max3', 'v_pk_', 'v_fma')) and last == 'valu' else 4)
            t = st + cost
        elif c.kind in ('dsr', 'dsw'):
            st = t + (4 if last == 'valu' else 0)
            t = st + (8 if c.kind == 'dsr' else (28 if 'b128' in c.op else 16))
        elif c.kind in ('vmst',):
            t = st + 28
        elif c.kind in ('vmld', 'vmlds'):
            t = st + 12
        elif c.op == 's_nop':
            t = st + 4 * c.states
        elif c.op.startswith('s_cbranch'):
            t = st + 12
        else:
            t = st + 4
        last = c.kind
        if show: out.append(f'{st:5d} {x}')
    if show: print('\n'.join(out))
    return t

def hoist_waits(lines):
    L = list(lines); i = 0
    while i < len(L):
        if L[i].startswith('s_waitcnt') and i + 1 < len(L) and L[i + 1].startswith(('v_mfma', 'v_smfmac')):
            j = i
            while j > 0 and L[j - 1].startswith('v_') and not L[j - 1].startswith(('v_mfma', 'v_smfmac')):
                L[j - 1], L[j] = L[j], L[j - 1]; j -= 1
        i += 1
    return L
```

```python
from asmlib import *
from layout import *
import math, struct
MF32='v_mfma_f32_16x16x32_bf16'; MF16='v_mfma_f32_16x16x16_bf16'; SMF='v_smfmac_f32_16x16x64_bf16'
f2u=lambda x: struct.unpack('<I',struct.pack('<f',x))[0]
WS=4; SRD=8; DBG=12; sB=14; sW=15; sMask=16; sSpin=17
sP=52
PX,PWQ,PWK,PWV,PWO,PW1,PW2,PC,PWM,POUT=[sP+2*i for i in (0,2,3,4,5,8,9,10,11,12)]
sT=40
sHd=21; sR=22; sZ=39
LN=0; N=1; Gv=2; L16=3
LIM='0x400000'
OPT=dict(d2=2, pf2=0, pf1=0, d1p=7, alt=0, hb=20, nl=4, dl=0, lp=8, pn=2, rd=4, ks=0)
STAMP=lambda slot,who: []
def common():
    return [f's_load_dwordx16 {s(sP,16)}, s[0:1], 0', f's_load_dwordx8 {s(sP+16,8)}, s[0:1], 64', f's_load_dwordx2 {s(sP+24,2)}, s[0:1], 96',
        f's_load_dwordx2 {s(DBG,2)}, s[0:1], 104', f's_load_dwordx2 {s(WS,2)}, s[0:1], 112',
        'v_lshrrev_b32 v1, 6, v0', f'v_and_b32 {v(LN)}, 63, v0', f'v_readfirstlane_b32 {s(sW)}, v1',
        f's_mov_b32 {s(WS+2)}, {WS_BYTES}', f's_mov_b32 {s(WS+3)}, 0x20000', f's_mov_b32 {s(SRD+3)}, 0x20000',
        f's_mov_b32 {s(sMask)}, 0xffff0000', f's_mov_b32 {s(sSpin)}, 0',
        f'v_and_b32 {v(N)}, 15, {v(LN)}', f'v_lshrrev_b32 {v(Gv)}, 4, {v(LN)}', f'v_lshlrev_b32 {v(L16)}, 4, {v(LN)}', 's_waitcnt lgkmcnt(0)']
NR=2; NG=5
def roles():
    return [f's_lshr_b32 {s(sHd)}, {s(sB)}, 1', f's_and_b32 {s(sR)}, {s(sB)}, 1', f's_sub_u32 {s(sZ)}, {s(sB)}, 64']
def srd(p,size): return [f's_mov_b32 {s(SRD)}, {s(p)}', f's_mov_b32 {s(SRD+1)}, {s(p+1)}', f's_mov_b32 {s(SRD+2)}, {size}']
def rnd(a,b,t): return [f'v_cvt_pk_bf16_f32 {v(t)}, {v(a)}, {v(b)}', f'v_lshlrev_b32 {v(a)}, 16, {v(t)}', f'v_and_b32 {v(b)}, {s(sMask)}, {v(t)}']
def unp(d,src): return [f'v_and_b32 {v(d+1)}, {s(sMask)}, {v(src)}', f'v_lshlrev_b32 {v(d)}, 16, {v(src)}']
def xg(op,a,t):
    return [f'v_mov_b32 {v(t)}, {v(a)}', f'v_permlane32_swap_b32 {v(a)}, {v(t)}', f'{op} {v(a)}, {v(a)}, {v(t)}',
            f'v_mov_b32 {v(t)}, {v(a)}', f'v_permlane16_swap_b32 {v(a)}, {v(t)}', f'{op} {v(a)}, {v(a)}, {v(t)}']
def xrow(a):
    return [f'v_add_f32_dpp {v(a)}, {v(a)}, {v(a)} row_ror:{k} row_mask:0xf bank_mask:0xf' for k in (1,2,4,8)]
_u=[0]
def poll(addr_v, soff, cmp_s, r, off=0, sleep=0):
    _u[0]+=1; k=_u[0]
    return [f'L_po{k}:', f'buffer_load_dword {v(r)}, {v(addr_v)}, {s(WS,4)}, {soff} offen offset:{off} sc1', f's_add_u32 {s(sSpin)}, {s(sSpin)}, 1',
            f's_cmp_gt_u32 {s(sSpin)}, {LIM}', f's_cbranch_scc1 L_pe{k}', 's_waitcnt vmcnt(0)', f'v_cmp_gt_u32 vcc, {cmp_s}, {v(r)}']+(
            [f's_cbranch_vccz L_pe{k}', f's_sleep {sleep}', f's_branch L_po{k}'] if sleep else [f's_cbranch_vccnz L_po{k}'])+[f'L_pe{k}:', 's_waitcnt vmcnt(0)']

def pollp(addr_v, soff, cmp_s, r, N=4):
    _u[0]+=1; k=_u[0]
    ld=f'buffer_load_dword {v(r)}, {v(addr_v)}, {s(WS,4)}, {soff} offen sc1 ;stamp'
    o=[]
    for i in range(N-1): o+=[ld,'s_nop 11']
    o+=[f'L_po{k}:', ld, f's_add_u32 {s(sSpin)}, {s(sSpin)}, 1', f's_cmp_gt_u32 {s(sSpin)}, {LIM}', f's_cbranch_scc1 L_pe{k}', f's_waitcnt vmcnt({N-1}) ;stamp',
        f'v_cmp_gt_u32 vcc, {cmp_s}, {v(r)}', f's_cbranch_vccnz L_po{k}', f'L_pe{k}:']
    return o

def mod_phase(sync):
    p=[]; e=p.append
    W_=16; C_=48; AC=56; A0=4; A1=5; T=6
    p.append('L_mod_top:')
    e(f'v_lshrrev_b32 {v(A0)}, 2, {v(LN)}'); e(f's_lshl_b32 {s(sT)}, {s(sW)}, 4'); e(f'v_add_u32 {v(A0)}, {s(sT)}, {v(A0)}')
    e(f'v_lshlrev_b32 {v(A1)}, 1, {v(A0)}')
    e(f'v_mul_u32_u24 {v(A0)}, 6144, {v(A0)}'); e(f'v_and_b32 {v(T)}, 3, {v(LN)}'); e(f'v_lshl_add_u32 {v(A0)}, {v(T)}, 4, {v(A0)}')
    p+=srd(PWM,512*6144)
    for i in range(8): e(f'global_load_ushort {v(C_+i)}, {v(A1)}, {s(PC,2)} offset:{128*i}')
    e(f's_lshl_b32 {s(sT)}, {s(sZ)}, 6')
    for i in range(8):
        e(f'buffer_load_dwordx4 {v(W_+4*i,4)}, {v(A0)}, {s(SRD,4)}, {s(sT)} offen'); e(f's_add_u32 {s(sT)}, {s(sT)}, {64*6144}')
    for i in range(8): e(f'v_lshlrev_b32 {v(C_+i)}, 16, {v(C_+i)}')
    for i in range(8): e(f'v_mul_f32 {v(AC+i)}, {hex(f2u(-math.log2(math.e)))}, {v(C_+i)}')
    for i in range(8): e(f'v_exp_f32 {v(AC+i)}, {v(AC+i)}')
    for i in range(8): e(f'v_add_f32 {v(AC+i)}, 1.0, {v(AC+i)}')
    for i in range(8): e(f'v_rcp_f32 {v(AC+i)}, {v(AC+i)}')
    for i in range(8): e(f'v_mul_f32 {v(C_+i)}, {v(C_+i)}, {v(AC+i)}')
    for i in range(0,8,2): p+=rnd(C_+i,C_+i+1,T)
    for i in range(8):
        for d in range(4):
            p+=unp(8,W_+4*i+d)
            for k in range(2):
                e(f'v_mul_f32 {v(AC+2*d+k)}, {v(C_+i)}, {v(8+k)}' if i==0 else f'v_fmac_f32 {v(AC+2*d+k)}, {v(C_+i)}, {v(8+k)}')
    for k in (4,8):
        for i in range(8): e(f'v_add_f32_dpp {v(AC+i)}, {v(AC+i)}, {v(AC+i)} row_ror:{k} row_mask:0xf bank_mask:0xf')
    e(f's_lshl_b32 {s(sT)}, {s(sW)}, 9'); e(f'v_and_b32 {v(T)}, 3, {v(LN)}'); e(f'v_lshlrev_b32 {v(T)}, 5, {v(T)}')
    e(f'v_lshl_add_u32 {v(T)}, {v(Gv)}, 7, {v(T)}'); e(f'v_add_u32 {v(T)}, {s(sT)}, {v(T)}')
    e(f'ds_write_b128 {v(T)}, {v(AC,4)}'); e(f'ds_write_b128 {v(T)}, {v(AC+4,4)} offset:16')
    e('s_waitcnt lgkmcnt(0)'); e('s_barrier')
    e(f's_cmp_lg_u32 {s(sW)}, 0'); e('s_cbranch_scc1 L_mod_end')
    e(f'v_and_b32 {v(A0)}, 31, {v(LN)}'); e(f'v_lshrrev_b32 {v(A1)}, 5, {v(LN)}'); e(f'v_lshlrev_b32 {v(T)}, 2, {v(A0)}'); e(f'v_lshl_add_u32 {v(T)}, {v(A1)}, 10, {v(T)}')
    for i in range(8): e(f'ds_read_b32 {v(AC+i)}, {v(T)} offset:{128*i}')
    for i in range(1,8): e(f'v_add_f32 {v(AC)}, {v(AC)}, {v(AC+i)}')
    e(f'v_mov_b32 {v(T)}, {v(AC)}'); e(f'v_permlane32_swap_b32 {v(AC)}, {v(T)}'); e(f'v_add_f32 {v(AC)}, {v(AC)}, {v(T)}')
    e(f'v_cvt_pk_bf16_f32 {v(AC)}, {v(AC)}, {v(AC)}')
    e(f'v_lshlrev_b32 {v(A0)}, 1, {v(A0)}'); e(f's_lshl_b32 {s(sT)}, {s(sZ)}, 6'); e(f's_add_u32 {s(sT)}, {s(sT)}, {MOD_OFF}')
    e(f'buffer_store_short {v(AC)}, {v(A0)}, {s(WS,4)}, {s(sT)} offen sc1')
    if sync:
        e('s_waitcnt vmcnt(0)')
        e(f's_cmp_lt_u32 {s(sZ)}, 32'); e(f's_cselect_b32 {s(sT)}, 0, 4')
        e(f'v_mov_b32 {v(A0)}, {s(sT)}'); e(f'v_mov_b32 {v(A1)}, 1'); e('s_mov_b64 exec, 1')
        e(f'global_atomic_add {v(A0)}, {v(A1)}, {s(DBG,2)} offset:128'); e('s_mov_b64 exec, -1')
    p.append('L_mod_end:')
    e('s_barrier')
    if STAMP(0,0):
        e(f's_cmp_ge_u32 {s(sZ)}, 32'); e('s_cbranch_scc1 L_mod_ns'); p+=STAMP(1,64); p.append('L_mod_ns:')
    e(f's_add_u32 {s(sZ)}, {s(sZ)}, 32'); e(f's_cmp_lt_u32 {s(sZ)}, 96'); e('s_cbranch_scc1 L_mod_top')
    return fix(p,'mod')

def dbg_wait(off,val,r):
    _u[0]+=1; k=_u[0]
    return [f'v_mov_b32 {v(r+1)}, {off}', f'L_po{k}:', f'global_load_dword {v(r)}, {v(r+1)}, {s(DBG,2)} sc1', f's_add_u32 {s(sSpin)}, {s(sSpin)}, 1',
            f's_cmp_gt_u32 {s(sSpin)}, {LIM}', f's_cbranch_scc1 L_pe{k}', 's_waitcnt vmcnt(0)', f'v_cmp_gt_u32 vcc, {val}, {v(r)}', f's_cbranch_vccnz L_po{k}', f'L_pe{k}:', 's_waitcnt vmcnt(0)']

def ln_phase(sync):
    p=[]; e=p.append
    XR=16; XF=32; MD=64; A0=4; A1=5; T=6; S=7; Q=8; R_=10; MU=14; sTile=20
    e(f's_sub_u32 {s(sTile)}, {s(sB)}, 96')
    p+=srd(PX,2048*1024)
    e(f'v_lshlrev_b32 {v(A0)}, 10, {v(N)}'); e(f'v_lshl_add_u32 {v(A0)}, {v(Gv)}, 4, {v(A0)}')
    e(f's_lshl_b32 {s(sT)}, {s(sTile)}, 14'); e(f's_lshl_b32 {s(sT+1)}, {s(sW)}, 8'); e(f's_add_u32 {s(sT)}, {s(sT)}, {s(sT+1)}')
    for i in range(4): e(f'buffer_load_dwordx4 {v(XR+4*i,4)}, {v(A0)}, {s(SRD,4)}, {s(sT)} offen offset:{64*i}')
    for i in range(4): e(f'v_mov_b32 {v(104+i)}, -1')
    e(f's_lshl_b32 {s(sT+3)}, {s(sTile)}, 2'); e(f's_add_u32 {s(sT+3)}, {s(sT+3)}, {s(sW)}'); e(f's_lshl_b32 {s(sT+3)}, {s(sT+3)}, 11'); e(f's_add_u32 {s(sT+3)}, {s(sT+3)}, {PART_OFF}')
    for i in range(2): e(f'buffer_store_dwordx4 {v(104,4)}, {v(L16)}, {s(WS,4)}, {s(sT+3)} offen offset:{1024*i} sc1')
    if OPT['pf1']:
        e(f's_lshl_b32 {s(sT+3)}, {s(sTile)}, 2'); e(f's_add_u32 {s(sT+3)}, {s(sT+3)}, {s(sW)}'); e(f's_lshl_b32 {s(sT+3)}, {s(sT+3)}, 13'); e(f's_add_u32 {s(sT+4)}, {s(sT+3)}, 4096')
        for ptr in (PWK,PWV,PWQ):
            p+=srd(ptr,4<<20)
            if OPT['pf1']==1:
                for i in range(8): e(f'buffer_load_dwordx4 {v(100,4)}, {v(L16)}, {s(SRD,4)}, {s(sT+3+(i>>2))} offen offset:{1024*(i&3)}')
            else:
                e(f'v_lshlrev_b32 v99, 10, {v(Gv)}'); e(f'v_lshl_add_u32 v99, {v(N)}, 4, v99')
                for i in range(2): e(f'buffer_load_dwordx4 {v(100,4)}, v99, {s(SRD,4)}, {s(sT+3+i)} offen offset:256')
    e(f'v_lshlrev_b32 {v(A1)}, 4, {v(N)}'); e(f's_lshl_b32 {s(sT+2)}, {s(sW)}, 2'); e(f'v_add_u32 {v(A0)}, {s(sT+2)}, {v(A1)}')
    for i in range(16): p+=unp(XF+2*i,XR+i)
    e(f'v_add_f32 {v(S)}, {v(XF)}, {v(XF+1)}')
    for i in range(2,32): e(f'v_add_f32 {v(S)}, {v(S)}, {v(XF+i)}')
    def cross(off):
        o=xg('v_add_f32',S,T)+[f'ds_write_b32 {v(A0)}, {v(S)} offset:{off}','s_waitcnt lgkmcnt(0)','s_barrier',f'ds_read_b128 {v(R_,4)}, {v(A1)} offset:{off}',
           f'v_add_f32 {v(S)}, {v(R_)}, {v(R_+1)}', f'v_add_f32 {v(T)}, {v(R_+2)}, {v(R_+3)}', f'v_add_f32 {v(S)}, {v(S)}, {v(T)}', f'v_mul_f32 {v(S)}, {hex(f2u(1/512))}, {v(S)}']
        return o
    p+=cross(0)
    e(f'v_mov_b32 {v(MU)}, {v(S)}')
    for i in range(32):
        e(f'v_sub_f32 {v(T)}, {v(XF+i)}, {v(MU)}'); e(f'v_mul_f32 {v(S)}, {v(T)}, {v(T)}' if i==0 else f'v_fmac_f32 {v(S)}, {v(T)}, {v(T)}')
    p+=cross(256)
    p+=rnd(MU,S,T)
    e(f'v_add_f32 {v(S)}, {hex(f2u(1e-5))}, {v(S)}'); p+=rnd(S,Q,T)[:2]
    e(f'v_sqrt_f32 {v(S)}, {v(S)}'); p+=rnd(S,Q,T)[:2]
    e(f'v_rcp_f32 {v(S)}, {v(S)}')
    for i in range(0,32,2):
        e(f'v_sub_f32 {v(XF+i)}, {v(XF+i)}, {v(MU)}'); e(f'v_sub_f32 {v(XF+i+1)}, {v(XF+i+1)}, {v(MU)}'); p+=rnd(XF+i,XF+i+1,T)
        e(f'v_mul_f32 {v(XF+i)}, {v(XF+i)}, {v(S)}'); e(f'v_mul_f32 {v(XF+i+1)}, {v(XF+i+1)}, {v(S)}'); p+=rnd(XF+i,XF+i+1,T)
    p+=[]
    if sync: p+=dbg_wait(128,32,R_)
    p+=[]
    e(f'v_lshlrev_b32 {v(A0)}, 4, {v(Gv)}'); e(f's_add_u32 {s(sT+1)}, {s(sT+1)}, {MOD_OFF}')
    for i in range(4): e(f'buffer_load_dwordx4 {v(MD+4*i,4)}, {v(A0)}, {s(WS,4)}, {s(sT+1)} offen offset:{1024+64*i} sc1')
    for i in range(4): e(f'buffer_load_dwordx4 {v(MD+16+4*i,4)}, {v(A0)}, {s(WS,4)}, {s(sT+1)} offen offset:{64*i} sc1')
    e(f's_lshl_b32 {s(sT)}, {s(sTile)}, 14'); e(f's_lshl_b32 {s(sT+2)}, {s(sW)}, 12'); e(f's_add_u32 {s(sT)}, {s(sT)}, {s(sT+2)}'); e(f's_add_u32 {s(sT)}, {s(sT)}, {H_OFF}')
    for i in range(16):
        a_=XF+2*i
        p+=unp(Q,MD+i); e(f'v_add_f32 {v(Q)}, 1.0, {v(Q)}'); e(f'v_add_f32 {v(Q+1)}, 1.0, {v(Q+1)}'); p+=rnd(Q,Q+1,T)
        e(f'v_mul_f32 {v(a_)}, {v(a_)}, {v(Q)}'); e(f'v_mul_f32 {v(a_+1)}, {v(a_+1)}, {v(Q+1)}'); p+=rnd(a_,a_+1,T)
        p+=unp(Q,MD+16+i); e(f'v_add_f32 {v(a_)}, {v(a_)}, {v(Q)}'); e(f'v_add_f32 {v(a_+1)}, {v(a_+1)}, {v(Q+1)}')
        e(f'v_cvt_pk_bf16_f32 {v(XR+i)}, {v(a_)}, {v(a_+1)}')
        if i%4==3: e(f'buffer_store_dwordx4 {v(XR+i-3,4)}, {v(L16)}, {s(WS,4)}, {s(sT)} offen offset:{1024*(i//4)} sc1')
    p+=[]
    if sync:
        p+=dbg_wait(136,1,R_)
        e('s_barrier')
        e(f's_lshl_b32 {s(sT)}, {s(sTile)}, 2'); e(f's_add_u32 {s(sT)}, {s(sT)}, {BF_OFF+BF_H}'); e(f'v_mov_b32 {v(T)}, 1')
        e(f's_cmp_lg_u32 {s(sW)}, 0'); e('s_cbranch_scc1 L_ln_end'); e('s_mov_b64 exec, 1')
        e(f'buffer_store_dword {v(T)}, off, {s(WS,4)}, {s(sT)} sc1'); e('s_mov_b64 exec, -1')
        p.append('L_ln_end:')
    return fix(p,'ln')

def flag_init():
    p=[]; e=p.append
    for i in range(4): e(f'v_mov_b32 {v(8+i)}, 0')
    e(f's_lshl_b32 {s(sT)}, {s(sW)}, 12'); e(f's_add_u32 {s(sT)}, {s(sT)}, {BF_OFF}')
    for i in range(4): e(f'buffer_store_dwordx4 {v(8,4)}, {v(L16)}, {s(WS,4)}, {s(sT)} offen offset:{1024*i} sc1')
    e(f's_mov_b32 {s(sT)}, {FLAG_OFF}'); e(f'buffer_store_dwordx4 {v(8,4)}, {v(L16)}, {s(WS,4)}, {s(sT)} offen sc1')
    for i in range(4): e(f'v_mov_b32 {v(12+i)}, -1')
    e(f's_lshl_b32 {s(sT)}, {s(sW)}, 13'); e(f's_add_u32 {s(sT)}, {s(sT)}, {MEM_OFF}'); e(f's_add_u32 {s(sT+1)}, {s(sT)}, 4096')
    for i in range(8): e(f'buffer_store_dwordx4 {v(12,4)}, {v(L16)}, {s(WS,4)}, {s(sT+(i>>2))} offen offset:{1024*(i&3)} sc1')
    e('s_waitcnt vmcnt(0)'); e('s_barrier')
    e(f'v_mov_b32 v8, 136'); e('v_mov_b32 v9, 1'); e('s_mov_b64 exec, 1'); e(f'global_store_dword v8, v9, {s(DBG,2)} sc1'); e('s_mov_b64 exec, -1')
    return fix(p,'fi')

def wstream(blocks, sRing, D=8, pf=None, lead=0):
    p=[]; e=p.append; ng=len(blocks)//4; assert len(blocks)%4==0
    VQ=[]
    def pre(gi):
        if pf and gi<ng:
            for l in pf(gi):
                e(l)
                if l.startswith('buffer'): VQ.append('p')
    def issue(gi):
        pre(gi+lead)
        for b in range(4):
            su,vo,so,_=blocks[4*gi+b]
            if su: p.extend(su)
            e(f's_add_u32 m0, {s(sRing)}, {((4*gi+b)%32)*1024}'); p.extend(so(sT+7))
            e(f'buffer_load_dwordx4 {v(vo)}, {s(SRD,4)}, {s(sT+7)} offen lds'); VQ.append(gi)
    for gi in range(lead): pre(gi)
    for gi in range(min(D,ng)): issue(gi)
    head=list(p); p.clear()
    for gi in range(ng):
        e(f's_waitcnt vmcnt({len(VQ)-1-max(k for k,t in enumerate(VQ) if t==gi)})')
        for b in range(4):
            for dst,tra,off in blocks[4*gi+b][3]: e(f'ds_read_b64_tr_b16 {dst}, {v(tra)} offset:{((4*gi+b)%32)*1024+off}')
        e('s_waitcnt lgkmcnt(0)')
        if gi+D<ng: issue(gi+D)
    return head,p

sSeg=23; sRing=24; sCnt=25
VO=4; TRA=5; TRB=6; FA=7
def wreg(m,t,ks):
    i=(m*2+t)*64+4*ks
    return ('a',i) if i<256 else ('v',128+i-256)
sHsrc=26; sBuf=27; sNext=32; sGot=33
def hdma():
    o=[f's_lshl_b32 {s(sHsrc)}, {s(sNext)}, 15', f's_lshl_b32 {s(sT)}, {s(sW)}, 13', f's_add_u32 {s(sHsrc)}, {s(sHsrc)}, {s(sT)}', f's_add_u32 {s(sHsrc)}, {s(sHsrc)}, {H_OFF}',
        f's_add_u32 m0, {s(sBuf)}, {s(sT)}', f's_add_u32 {s(sT+1)}, {s(sHsrc)}, 4096']
    o+=[f'buffer_load_dwordx4 {v(L16)}, {s(WS,4)}, {s(sHsrc)} offen offset:{1024*i} sc1 lds' for i in range(4)]
    o+=['s_add_u32 m0, m0, 4096','s_nop 0']+[f'buffer_load_dwordx4 {v(L16)}, {s(WS,4)}, {s(sT+1)} offen offset:{1024*i} sc1 lds' for i in range(4)]
    return o
def p1_setup():
    p=[]; e=p.append
    A0,A1,T0_,T1_,U0,U1,r,c_,t=[112+i for i in range(9)]
    e(f'v_lshlrev_b32 {v(t)}, 1, {v(Gv)}'); e(f'v_xor_b32 {v(t)}, {v(t)}, {v(N)}'); e(f'v_lshlrev_b32 {v(t)}, 4, {v(t)}'); e(f'v_lshl_add_u32 {v(A0)}, {v(Gv)}, 13, {v(t)}')
    e(f's_lshr_b32 {s(sT)}, {s(sW)}, 1'); e(f's_lshl_b32 {s(sT)}, {s(sT)}, 18'); e(f's_and_b32 {s(sT+1)}, {s(sW)}, 1'); e(f's_lshl_b32 {s(sT+1)}, {s(sT+1)}, 15'); e(f's_add_u32 {s(sT)}, {s(sT)}, {s(sT+1)}')
    e(f's_lshl_b32 {s(sT+1)}, {s(sHd)}, 8'); e(f's_add_u32 {s(sT)}, {s(sT)}, {s(sT+1)}'); e(f'v_add_u32 {v(A0)}, {s(sT)}, {v(A0)}'); e(f'v_xor_b32 {v(A1)}, 128, {v(A0)}')
    e(f's_lshl_b32 {s(sRing)}, {s(sW)}, 12'); e(f's_add_u32 {s(sRing)}, {s(sRing)}, 32768')
    e(f'v_lshrrev_b32 {v(r)}, 2, {v(N)}'); e(f'v_and_b32 {v(c_)}, 3, {v(N)}'); e(f'v_and_b32 {v(t)}, 1, {v(Gv)}'); e(f'v_lshl_add_u32 {v(t)}, {v(t)}, 2, {v(r)}')
    e(f's_lshl_b32 {s(sT)}, {s(sW)}, 1'); e(f'v_xor_b32 {v(t)}, {s(sT)}, {v(t)}')
    e(f'v_lshlrev_b32 {v(T0_)}, 10, {v(Gv)}'); e(f'v_lshl_add_u32 {v(T0_)}, {v(r)}, 8, {v(T0_)}'); e(f'v_lshl_add_u32 {v(T0_)}, {v(t)}, 5, {v(T0_)}'); e(f'v_lshl_add_u32 {v(T0_)}, {v(c_)}, 3, {v(T0_)}')
    e(f'v_add_u32 {v(T0_)}, 32768, {v(T0_)}'); e(f'v_xor_b32 {v(T1_)}, 32, {v(T0_)}'); e(f'v_add_u32 {v(U0)}, 65536, {v(T0_)}'); e(f'v_add_u32 {v(U1)}, 65536, {v(T1_)}')
    e(f's_mov_b32 {s(sNext)}, {s(sR)}'); e(f's_mov_b32 {s(sBuf)}, 0'); e(f's_mov_b32 {s(sGot)}, 0'); e(f'v_lshlrev_b32 {v(FA)}, 3, {v(LN)}'); e('v_mov_b32 v9, 136')
    def stream(order,tag):
        q=[]; e=q.append; VQ=[]; D=OPT['d1p']
        bt=[(m,c) for m in order for c in range(8)]
        def issue(bi):
            m,c=bt[bi]; q.extend(srd((PWK,PWV,PWQ)[m],4<<20))
            for i in range(4):
                e(f's_add_u32 m0, {s(sRing)}, {(bi%8)*16384+1024*i}'); e(f's_mov_b32 {s(sT+7)}, {(64*c+8*i)*8192}')
                e(f'buffer_load_dwordx4 {v(A1 if i&1 else A0)}, {s(SRD,4)}, {s(sT+7)} offen lds'); VQ.append(bi)
        wt=lambda x: f's_waitcnt vmcnt({len(VQ)-1-max(k for k,t_ in enumerate(VQ) if t_==x)})'
        for bi in range(D): issue(bi)
        for bi in range(24):
            m,c=bt[bi]
            e(wt(bi)); e('s_barrier')
            if bi>=1 and bi-1+8<24 and D==8: issue(bi-1+8)
            elif D<8 and bi+D<24: issue(bi+D)
            for b_ in range(4):
                for t_ in range(2):
                    pf,b0=wreg(m,t_,2*c+(b_>>1)); tra=[[T0_,T1_],[U0,U1]][(bi%8)>>2][t_]
                    e(f'ds_read_b64_tr_b16 {R(pf,b0+2*(b_&1),2)}, {v(tra)} offset:{(bi%4)*16384+b_*4096}')
            if bi==4: e(f'global_load_dword v8, v9, {s(DBG,2)} sc1 ;stamp'); VQ.append('i')
            if bi==OPT['hb']:
                e(wt('i')); e('v_cmp_eq_u32 vcc, 0, v8'); e(f's_cbranch_vccz L_p1_in{tag}'); q.extend(dbg_wait(136,1,8)); q.append(f'L_p1_in{tag}:')
                e(f's_mov_b32 {s(sT)}, {BF_OFF+BF_H}'); e(f'buffer_load_dwordx2 v[8:9], {v(FA)}, {s(WS,4)}, {s(sT)} offen sc1 ;stamp'); VQ.append('h')
            e('s_waitcnt lgkmcnt(0)')
        e('s_waitcnt vmcnt(0)')
        return q
    if OPT['alt']:
        e(f's_cmp_lg_u32 {s(sR)}, 0'); e('s_cbranch_scc1 L_p1_alt')
        p+=stream((0,1,2),'a')+['s_branch L_p1_ld','L_p1_alt:']+stream((1,0,2) if OPT['alt']==1 else (2,1,0),'b')+['L_p1_ld:']
    else: p+=stream((0,1,2),'a')
    return fix(p,'p1a')

def p1_main(sync):
    p=[]; e=p.append
    AC=16; HF=64; OUT=96; sKo=28; sVo=29; sQo=30; sFl=31
    acc=lambda m,t,mt: AC+((m*2+t)*2+mt)*4
    e('s_barrier')
    if sync:
        e('v_min_u32 v8, v8, v9'); e('v_cmp_gt_u32 vcc, 1, v8'); e('s_cbranch_vccz L_p1_hok')
        e(f's_mov_b32 {s(sT)}, {BF_OFF+BF_H}')
        pl=poll(FA,s(sT),'1',8); pl[1]=pl[1].replace('dword v8','dwordx2 v[8:9]'); pl[6:6]=['v_min_u32 v8, v8, v9']
        p+=pl+['L_p1_hok:']
    e(f's_mov_b32 {s(sSeg)}, {s(sR)}'); e(f's_mov_b32 {s(sNext)}, {s(sR)}'); e(f's_mov_b32 {s(sBuf)}, 0'); e(f's_mov_b32 {s(sCnt)}, 0')
    e(f's_lshl_b32 {s(sFl)}, {s(sHd)}, 7'); e(f's_lshl_b32 {s(sT)}, {s(sR)}, 2'); e(f's_add_u32 {s(sFl)}, {s(sFl)}, {s(sT)}'); e(f's_add_u32 {s(sFl)}, {s(sFl)}, {BF_OFF+BF_KV}')
    p+=hdma()
    e(f's_mov_b32 {s(sT+5)}, 0')
    for i in range(4): e(f'v_mov_b32 v{12+i}, -1')
    p.append('L_p1_loop:')
    e(f's_cmp_ge_u32 {s(sSeg)}, 64'); e(f's_cselect_b32 {s(sT+4)}, 0, {s(sCnt)}'); e(f's_cmp_lt_u32 {s(sT+4)}, {OPT["nl"]}'); e('s_cbranch_scc0 L_p1_lag')
    e('s_waitcnt vmcnt(0)'); e(f's_mov_b32 {s(sT+5)}, {s(sCnt)}')
    p.append('L_p1_lag:')
    e('s_waitcnt vmcnt(7)'); e('s_barrier')
    if sync:
        e(f's_cmp_lg_u32 {s(sW)}, 0'); e('s_cbranch_scc1 L_p1_nf'); e(f'v_mov_b32 {v(FA)}, {s(sT+5)}'); e('s_mov_b64 exec, 1')
        e(f'buffer_store_dword {v(FA)}, off, {s(WS,4)}, {s(sFl)} sc1'); e('s_mov_b64 exec, -1'); p.append('L_p1_nf:')
    e(f's_mov_b32 {s(sT+5)}, {s(sCnt)}')
    if STAMP(0,0):
        e(f's_cmp_lg_u32 {s(sCnt)}, 0'); e('s_cbranch_scc1 L_p1_s0'); p+=[]; p.append('L_p1_s0:')
        e(f's_cmp_lg_u32 {s(sCnt)}, 1'); e('s_cbranch_scc1 L_p1_s1'); p+=[]; p.append('L_p1_s1:')
    e(f's_cmp_ge_u32 {s(sSeg)}, 64'); e('s_cbranch_scc1 L_p1_end')
    e(f'v_add_u32 {v(VO)}, {s(sBuf)}, {v(L16)}')
    e(f's_xor_b32 {s(sBuf)}, {s(sBuf)}, 32768'); e(f's_add_u32 {s(sNext)}, {s(sSeg)}, {NR}')
    if OPT['pf2']:
        e(f's_mul_i32 {s(sT)}, {s(sCnt)}, 896'); e(f's_lshl_b32 {s(sT+1)}, {s(sB)}, 2'); e(f's_add_u32 {s(sT)}, {s(sT)}, {s(sT+1)}'); e(f's_add_u32 {s(sT)}, {s(sT)}, {s(sW)}')
        e(f's_cmp_lt_u32 {s(sT)}, 5888'); e(f's_cselect_b64 {s(SRD,2)}, {s(PW1,2)}, {s(PW2,2)}'); e(f's_cselect_b32 {s(sT+1)}, 0, 1792')
        e(f's_add_u32 {s(sT+1)}, {s(sT+1)}, 4096'); e(f's_mov_b32 {s(SRD+2)}, {1792*1024}')
        e(f's_cmp_lt_u32 {s(sT)}, 4096'); e(f's_cselect_b64 {s(SRD,2)}, {s(PWO,2)}, {s(SRD,2)}'); e(f's_cselect_b32 {s(sT+1)}, 0, {s(sT+1)}'); e(f's_cselect_b32 {s(SRD+2)}, {4<<20}, {s(SRD+2)}')
        e(f's_sub_u32 {s(sT)}, {s(sT)}, {s(sT+1)}'); e(f's_lshl_b32 {s(sT)}, {s(sT)}, 10')
        e(f'buffer_load_dwordx4 {v(8,4)}, {v(L16)}, {s(SRD,4)}, {s(sT)} offen')
    e(f's_cmp_ge_u32 {s(sNext)}, 64'); e('s_cbranch_scc1 L_p1_nd')
    p+=hdma()
    p.append('L_p1_nd:')
    hr=lambda ks,mt: f'ds_read_b128 {v(HF+(ks%4)*8+4*mt,4)}, {v(VO)} offset:{(mt*16+ks)*1024}'
    for ks in range(2):
        for mt in range(2): e(hr(ks,mt))
    for ks in range(16):
        mm=[]
        for mt in range(2):
            hf=v(HF+(ks%4)*8+4*mt,4)
            for m in range(3):
                for t in range(2):
                    pf,b=wreg(m,t,ks); w_=R(pf,b,4); c_=v(acc(m,t,mt),4)
                    a_,b_=(hf,w_) if m==1 else (w_,hf)
                    mm.append(f'{MF32} {c_}, {a_}, {b_}, '+(c_ if ks else '0'))
        if ks+2<16:
            mm[1:1]=[hr(ks+2,0)]; mm[4:4]=[hr(ks+2,1)]
        p+=mm
    e(f's_lshl_b32 {s(sT)}, {s(sHd)}, 6'); e(f's_add_u32 {s(sT)}, {s(sT)}, {s(sSeg)}')
    e(f's_lshl_b32 {s(sT+1)}, {s(sW)}, 10'); e(f's_lshl_b32 {s(sKo)}, {s(sT)}, 14'); e(f's_add_u32 {s(sVo)}, {s(sKo)}, {KV_OFF+8192}')
    e(f's_add_u32 {s(sKo)}, {s(sKo)}, {s(sT+1)}'); e(f's_add_u32 {s(sKo)}, {s(sKo)}, {KV_OFF}')
    e(f's_lshl_b32 {s(sQo)}, {s(sT)}, 13'); e(f's_add_u32 {s(sQo)}, {s(sQo)}, {s(sT+1)}'); e(f's_add_u32 {s(sQo)}, {s(sQo)}, {Q_OFF}')
    e(f's_lshl_b32 {s(sT+1)}, {s(sW)}, 11'); e(f's_add_u32 {s(sVo)}, {s(sVo)}, {s(sT+1)}')
    e(f's_lshl_b32 {s(sT)}, {s(sT)}, 2'); e(f's_add_u32 {s(sT)}, {s(sT)}, {s(sW)}'); e(f's_lshl_b32 {s(sT)}, {s(sT)}, 10'); e(f's_add_u32 {s(sT)}, {s(sT)}, {KVM_OFF}')
    e(f'buffer_store_dwordx4 v[12:15], {v(L16)}, {s(WS,4)}, {s(sT)} offen sc1')
    k=0
    for m,so in ((0,sKo),(2,sQo)):
        for mt in range(2):
            for r in range(4): e(f'v_cvt_pk_bf16_f32 {v(OUT+4*k+r)}, {v(acc(m,0,mt)+r)}, {v(acc(m,1,mt)+r)}')
            e(f'buffer_store_dwordx4 {v(OUT+4*k,4)}, {v(L16)}, {s(WS,4)}, {s(so)} offen sc1'); k+=1
            if mt==0: e(f's_add_u32 {s(so)}, {s(so)}, 4096')
    for t in range(2):
        for mt in range(2):
            for j in range(2): e(f'v_cvt_pk_bf16_f32 {v(OUT+4*k+2*mt+j)}, {v(acc(1,t,mt)+2*j)}, {v(acc(1,t,mt)+2*j+1)}')
        e(f'buffer_store_dwordx4 {v(OUT+4*k,4)}, {v(L16)}, {s(WS,4)}, {s(sVo)} offen offset:{1024*t} sc1'); k+=1
    e(f's_add_u32 {s(sSeg)}, {s(sSeg)}, {NR}'); e(f's_add_u32 {s(sCnt)}, {s(sCnt)}, 1'); e('s_branch L_p1_loop')
    p.append('L_p1_end:')
    return fix(p,'p1')

sGrp=21; sJ=22; sGB=26; sEp=27; sFw=28; sFr=29; sKq=30; sCq=31; sM=32; sEh=33; sScale=34; sLg=35; sFast=36; sQf=37; sMf=38
WO=lambda ks: a(4*ks,4)
W1=lambda t,ks: a(128+64*t+4*ks,4)
W2=lambda ks: v(200+4*ks,4)
MODV=168
IDX=4; KW=5; FA2=6; HRD=7; HSR=8; PSA=9; MSK=10; ZR=12; NEG=152; HRD1=151
L_PF=81920
def qkv_fetch(sync, sSg):
    o=[]
    if sync:
        o+=[f's_and_b32 {s(sT)}, {s(sSg)}, 1', f's_lshl_b32 {s(sT)}, {s(sT)}, 2', f's_add_u32 {s(sT)}, {s(sT)}, {s(sQf)}', f's_lshr_b32 {s(sT+1)}, {s(sSg)}, 1', f's_add_u32 {s(sT+1)}, {s(sT+1)}, 1']
        o+=poll(ZR+1,s(sT),s(sT+1),14,0,2)
    o+=[f's_lshl_b32 {s(sT)}, {s(sJ)}, 6', f's_add_u32 {s(sT)}, {s(sT)}, {s(sSg)}', f's_lshl_b32 {s(sT+1)}, {s(sT)}, 13', f's_add_u32 {s(sT+1)}, {s(sT+1)}, {Q_OFF}',
        f's_lshl_b32 {s(sT)}, {s(sT)}, 14', f's_lshl_b32 {s(sT+2)}, {s(sM)}, 13', f's_add_u32 {s(sT)}, {s(sT)}, {s(sT+2)}', f's_add_u32 {s(sT)}, {s(sT)}, {KV_OFF}',
        f's_cmp_eq_u32 {s(sW)}, 1', f's_cselect_b32 {s(sT)}, {s(sT+1)}, {s(sT)}', f's_add_u32 {s(sT+1)}, {s(sT)}, 4096',
        f's_lshl_b32 {s(sT+2)}, {s(sW)}, 13', f's_add_u32 m0, {s(sT+2)}, {L_PF-8192}', 's_nop 0']
    o+=[f'buffer_load_dwordx4 {v(L16)}, {s(WS,4)}, {s(sT)} offen offset:{1024*i} sc1 lds' for i in range(4)]
    o+=['s_add_u32 m0, m0, 4096','s_nop 0']+[f'buffer_load_dwordx4 {v(L16)}, {s(WS,4)}, {s(sT+1)} offen offset:{1024*i} sc1 lds' for i in range(4)]
    return o
def p2_setup(sync):
    p=[]; e=p.append
    e('s_barrier')
    e(f's_lshr_b32 {s(sGrp)}, {s(sB)}, 5'); e(f's_add_u32 {s(sGrp)}, {s(sGrp)}, 5'); e(f's_cmp_ge_u32 {s(sGrp)}, 7'); e(f's_cselect_b32 {s(sT)}, 7, 0'); e(f's_sub_u32 {s(sGrp)}, {s(sGrp)}, {s(sT)}'); e(f's_and_b32 {s(sJ)}, {s(sB)}, 31')
    if sync: p+=dbg_wait(136,1,16)
    e(f's_lshl_b32 {s(sGB)}, {s(sGrp)}, 20'); e(f's_add_u32 {s(sGB)}, {s(sGB)}, {G_OFF}')
    e(f's_lshr_b32 {s(sKq)}, {s(sJ)}, 3'); e(f's_and_b32 {s(sCq)}, {s(sJ)}, 7'); e(f's_and_b32 {s(sM)}, {s(sW)}, 1'); e(f's_lshr_b32 {s(sEh)}, {s(sW)}, 1')
    e(f's_lshl_b32 {s(sFr)}, {s(sGrp)}, 8'); e(f's_add_u32 {s(sFr)}, {s(sFr)}, {BF_OFF+BF_GB}'); e(f's_lshl_b32 {s(sT)}, {s(sJ)}, 2'); e(f's_add_u32 {s(sFw)}, {s(sFr)}, {s(sT)}')
    e(f's_mov_b32 {s(sEp)}, 0'); e(f's_mov_b32 {s(sScale)}, {hex(f2u(128**-0.5))}'); e(f's_mov_b32 {s(sLg)}, {hex(f2u(math.log2(math.e)))}')
    e(f's_lshl_b32 {s(sRing)}, {s(sW)}, 15'); e(f's_add_u32 {s(sRing)}, {s(sRing)}, 32768')
    e(f's_lshl_b32 {s(sMf)}, {s(sJ)}, 7')
    e(f's_add_u32 {s(sQf)}, {s(sMf)}, {BF_OFF+BF_KV}'); e(f's_add_u32 {s(sMf)}, {s(sMf)}, {BF_OFF+BF_KVM}')
    for i in range(4): e(f'v_mov_b32 {v(NEG+i)}, -1')
    e(f's_lshl_b32 {s(sT)}, {s(sJ)}, 13'); e(f's_add_u32 {s(sT)}, {s(sT)}, {s(sGB)}'); e(f's_lshl_b32 {s(sT+1)}, {s(sW)}, 11'); e(f's_add_u32 {s(sT)}, {s(sT)}, {s(sT+1)}')
    for off in (G_P1,G_P2):
        e(f's_add_u32 {s(sT+1)}, {s(sT)}, {off}')
        for i in range(2): e(f'buffer_store_dwordx4 {v(NEG,4)}, {v(L16)}, {s(WS,4)}, {s(sT+1)} offen offset:{1024*i} sc1')
    e('s_waitcnt vmcnt(0)'); e('s_barrier')
    e(f's_getreg_b32 {s(sFast)}, hwreg(HW_REG_XCC_ID)'); e(f's_and_b32 {s(sFast)}, {s(sFast)}, 7'); e(f's_add_u32 {s(sFast)}, {s(sFast)}, 1')
    e(f'v_mov_b32 v16, {s(sFast)}'); e('s_mov_b64 exec, 1'); e(f'buffer_store_dword v16, off, {s(WS,4)}, {s(sFw)} offset:{BF_XC-BF_GB} sc1'); e('s_mov_b64 exec, -1')
    t1,t2,r,c_,g1=16,17,18,19,20
    e(f'v_and_b32 {v(t1)}, 1, {v(LN)}'); e(f'v_mul_u32_u24 {v(t1)}, 0xaaaa, {v(t1)}'); e(f'v_add_u32 {v(IDX)}, 0x4444, {v(t1)}')
    e(f'v_bfe_u32 {v(t1)}, {v(N)}, 1, 2'); e(f'v_lshlrev_b32 {v(KW)}, 2, {v(t1)}'); e(f'v_and_b32 {v(t1)}, 1, {v(N)}'); e(f'v_lshl_add_u32 {v(KW)}, {v(t1)}, 4, {v(KW)}')
    e(f'v_lshl_add_u32 {v(KW)}, {v(Gv)}, 6, {v(KW)}'); e(f'v_lshrrev_b32 {v(t1)}, 3, {v(N)}'); e(f'v_lshl_add_u32 {v(KW)}, {v(t1)}, 8, {v(KW)}')
    e(f's_lshl_b32 {s(sT)}, {s(sW)}, 9'); e(f'v_add_u32 {v(KW)}, {s(sT)}, {v(KW)}')
    e(f'v_and_b32 {v(FA2)}, 31, {v(LN)}'); e(f'v_lshlrev_b32 {v(FA2)}, 2, {v(FA2)}')
    e(f'v_lshrrev_b32 {v(t1)}, 1, {v(N)}'); e(f'v_xor_b32 {v(t1)}, {v(t1)}, {v(Gv)}'); e(f'v_lshlrev_b32 {v(t1)}, 4, {v(t1)}'); e(f'v_lshl_add_u32 {v(HRD)}, {v(N)}, 7, {v(t1)}')
    e(f's_lshl_b32 {s(sT)}, {s(sM)}, 14'); e(f'v_add_u32 {v(HRD)}, {s(sT)}, {v(HRD)}'); e(f'v_xor_b32 {v(HRD1)}, 64, {v(HRD)}')
    e(f'v_and_b32 {v(c_)}, 3, {v(LN)}'); e(f'v_and_b32 {v(t1)}, 7, {v(LN)}'); e(f'v_xor_b32 {v(t1)}, {v(t1)}, {v(Gv)}'); e(f'v_lshlrev_b32 {v(t1)}, 4, {v(t1)}')
    e(f'v_lshrrev_b32 {v(t2)}, 3, {v(LN)}'); e(f'v_lshl_add_u32 {v(HSR)}, {v(t2)}, 10, {v(t1)}'); e(f's_lshl_b32 {s(sT)}, {s(sM)}, 6'); e(f'v_xor_b32 {v(HSR)}, {s(sT)}, {v(HSR)}')
    e(f'v_lshlrev_b32 {v(PSA)}, 15, {v(Gv)}'); e(f'v_lshl_add_u32 {v(PSA)}, {v(N)}, 2, {v(PSA)}')
    e(f's_lshl_b32 {s(sT)}, {s(sJ)}, 8'); e(f's_lshl_b32 {s(sT+1)}, {s(sW)}, 6'); e(f's_add_u32 {s(sT)}, {s(sT)}, {s(sT+1)}'); e(f'v_add_u32 {v(PSA)}, {s(sT)}, {v(PSA)}')
    e(f'v_lshlrev_b32 {v(t1)}, 2, {v(Gv)}'); e(f'v_sub_u32 {v(MSK)}, {v(N)}, {v(t1)}')
    e(f'v_mov_b32 {v(ZR+1)}, 0')
    A64,B0,B1,A32,C0,C1,A32b=24,25,26,27,28,29,30
    e(f'v_lshrrev_b32 {v(r)}, 2, {v(N)}'); e(f'v_and_b32 {v(g1)}, 1, {v(Gv)}')
    e(f'v_lshlrev_b32 {v(B0)}, 8, {v(Gv)}'); e(f'v_lshl_add_u32 {v(B0)}, {v(c_)}, 3, {v(B0)}'); e(f'v_add_u32 {v(B0)}, {s(sRing)}, {v(B0)}')
    e(f'v_lshl_add_u32 {v(C0)}, {v(r)}, 5, {v(B0)}'); e(f'v_lshl_add_u32 {v(C0)}, {v(g1)}, 7, {v(C0)}'); e(f'v_xor_b32 {v(C1)}, 128, {v(C0)}')
    e(f'v_lshl_add_u32 {v(B0)}, {v(r)}, 6, {v(B0)}'); e(f'v_lshl_add_u32 {v(B0)}, {v(g1)}, 5, {v(B0)}'); e(f'v_xor_b32 {v(B1)}, 32, {v(B0)}')
    e(f'v_lshlrev_b32 {v(t1)}, 1, {v(g1)}'); e(f'v_xor_b32 {v(t1)}, {v(t1)}, {v(c_)}'); e(f'v_lshlrev_b32 {v(t1)}, 4, {v(t1)}')
    e(f'v_lshl_add_u32 {v(A64)}, {v(Gv)}, 3, {v(r)}'); e(f'v_mul_u32_u24 {v(A64)}, 3584, {v(A64)}'); e(f'v_add_u32 {v(A64)}, {v(A64)}, {v(t1)}')
    e(f's_min_u32 {s(sT)}, {s(sJ)}, 27'); e(f's_lshl_b32 {s(sT)}, {s(sT)}, 7'); e(f's_lshl_b32 {s(sT+1)}, {s(sEh)}, 6'); e(f's_add_u32 {s(sT)}, {s(sT)}, {s(sT+1)}'); e(f'v_add_u32 {v(A64)}, {s(sT)}, {v(A64)}')
    e(f'v_lshrrev_b32 {v(t1)}, 3, {v(N)}'); e(f'v_xor_b32 {v(t1)}, {v(t1)}, {v(g1)}'); e(f'v_bfe_u32 {v(t2)}, {v(N)}, 1, 2')
    e(f'v_lshl_add_u32 {v(t2)}, {v(t1)}, 4, {v(t2)}'); e(f'v_lshl_add_u32 {v(t2)}, {v(Gv)}, 2, {v(t2)}'); e(f'v_and_b32 {v(t1)}, 1, {v(N)}'); e(f'v_lshlrev_b32 {v(t1)}, 4, {v(t1)}')
    e(f'v_lshl_add_u32 {v(A32)}, {v(t2)}, 10, {v(t1)}')
    e(f's_lshl_b32 {s(sT)}, {s(sCq)}, 7'); e(f's_lshl_b32 {s(sT+1)}, {s(sW)}, 5'); e(f's_add_u32 {s(sT)}, {s(sT)}, {s(sT+1)}')
    e(f's_mul_i32 {s(sT+1)}, {s(sKq)}, {448*1024}'); e(f's_add_u32 {s(sT+1)}, {s(sT+1)}, {s(sT)}'); e(f'v_add_u32 {v(A32b)}, {s(sT+1)}, {v(A32)}')
    e(f's_lshl_b32 {s(sT+1)}, {s(sKq)}, 20'); e(f's_add_u32 {s(sT+1)}, {s(sT+1)}, {s(sT)}'); e(f'v_add_u32 {v(A32)}, {s(sT+1)}, {v(A32)}')
    blocks=[]
    mv=lambda o: (lambda reg: [f's_mov_b32 {s(reg)}, {o}'])
    for ks in range(32): blocks.append((srd(PWO,4<<20) if ks%4==0 else None, A32, mv(ks*32768), [(a(4*ks,2),C0,0),(a(4*ks+2,2),C1,0)]))
    for ks in range(16):
        for jh in range(2): blocks.append((srd(PW1,512*3584) if ks%2==0 and jh==0 else None, A64, mv((32*ks+4*jh)*3584), [(a(128+4*ks+2*jh,2),B0,0),(a(192+4*ks+2*jh,2),B1,0)]))
    for ks in range(16):
        kk=min(ks,13); blocks.append((srd(PW2,1792*1024) if ks%4==0 else None, A32b, mv(kk*32768), [(v(200+4*ks,2),C0,0),(v(202+4*ks,2),C1,0)] if ks<14 else []))
    head,rest=wstream(blocks,sRing,OPT['d2'])
    if OPT['dl']:
        e(f'v_mov_b32 v17, 0'); p+=poll(17,s(sQf),str(OPT['dl']),16)
    p+=head+rest
    if sync: p+=dbg_wait(132,64,16)
    e(f's_mov_b32 {s(sT)}, {MOD_OFF+2048}')
    for i in range(4): e(f'buffer_load_dwordx4 {v(16+4*i,4)}, {v(L16)}, {s(WS,4)}, {s(sT)} offen offset:{1024*i} sc1')
    for i in range(16): p+=unp(MODV+2*i,16+i)
    for i in range(16,24): e(f'v_add_f32 {v(MODV+i)}, 1.0, {v(MODV+i)}')
    for i in range(16,24,2): p+=rnd(MODV+i,MODV+i+1,16)
    p+=poll(FA2,s(sFr),'1',16,BF_XC-BF_GB)
    e(f'v_cmp_ne_u32 vcc, {s(sFast)}, v16')
    e(f's_cmp_ge_u32 {s(sGrp)}, 5'); e(f's_cselect_b32 {s(sT)}, 38, 0'); e(f's_add_u32 {s(sSeg)}, {s(sGrp)}, {s(sT)}')
    e(f's_lshl_b32 {s(sT)}, {s(sJ)}, 15'); e(f's_lshl_b32 {s(sT+1)}, {s(sW)}, 13'); e(f's_add_u32 {s(sT)}, {s(sT)}, {s(sT+1)}'); e(f's_add_u32 {s(sT)}, {s(sT)}, {s(sGB)}'); e(f's_add_u32 {s(sT+1)}, {s(sT)}, 4096')
    for i in range(8): e(f'buffer_load_dwordx4 v[20:23], {v(L16)}, {s(WS,4)}, {s(sT+(i>>2))} offen offset:{1024*(i&3)} sc1')
    e(f's_mov_b64 {s(sT+4,2)}, vcc'); e('s_barrier')
    e(f's_cmp_eq_u32 {s(sW)}, 0'); e('s_cbranch_scc1 L_p2_nf'); p+=qkv_fetch(sync,sSeg); p.append('L_p2_nf:')
    e(f's_mov_b64 vcc, {s(sT+4,2)}')
    e('s_waitcnt vmcnt(0)')
    p+=srd(PX,2048*1024)
    p+=STAMP(7,160)
    e('s_barrier')
    e('s_cbranch_vccnz L_p2_S')
    return fix(p,'p2s')

def p2_loop(mode, sync):
    sc=' sc1' if mode=='S' else ''
    L=f'L_p2_{mode}'
    p=[L+':']; e=p.append
    nb=[0]
    def gbar():
        nb[0]+=1; k=f'{L}_g{nb[0]}'
        return ['s_waitcnt vmcnt(0)','s_barrier', f's_add_u32 {s(sEp)}, {s(sEp)}, 1', f's_cmp_lg_u32 {s(sW)}, 0', f's_cbranch_scc1 {k}',
                f'v_mov_b32 v14, {s(sEp)}','s_mov_b64 exec, 1', f'buffer_store_dword v14, off, {s(WS,4)}, {s(sFw)}{sc}','s_mov_b64 exec, -1','s_nop 15']+pollp(FA2,s(sFr),s(sEp),PR)+STAMP(8+nb[0],128)+[k+':','s_barrier']
    QF=16; KF=32; VF=64; KV=80; S0=92; OA=104; T=120; MX=121; SUM=122; PXr=124; KM=128; XR=136; X1=140; PR=150
    e(f's_lshl_b32 {s(sT)}, {s(sSeg)}, 5'); e(f's_add_u32 {s(sT)}, {s(sT)}, {s(sJ)}'); e(f's_lshl_b32 {s(sT+6)}, {s(sT)}, 10')
    e(f's_lshl_b32 {s(sT)}, {s(sJ)}, 6'); e(f's_add_u32 {s(sT)}, {s(sT)}, {s(sSeg)}'); e(f's_lshl_b32 {s(sT+5)}, {s(sT)}, 12'); e(f's_add_u32 {s(sT+5)}, {s(sT+5)}, {KVM_OFF}')
    e(f'buffer_load_dwordx4 {v(XR,4)}, {v(L16)}, {s(SRD,4)}, {s(sT+6)} offen')
    e(f's_lshl_b32 {s(sT)}, {s(sM)}, 12'); e(f's_add_u32 {s(sT)}, {s(sT)}, {L_PF}'); e(f'v_add_u32 {v(T)}, {s(sT)}, {v(L16)}')
    for i in range(4): e(f'ds_read_b128 {v(QF+4*i,4)}, {v(T)} offset:{1024*i}')
    e(f'v_add_u32 {v(T)}, {L_PF+8192}, {v(L16)}')
    for i in range(8): e(f'ds_read_b128 {v(KF+4*i,4)}, {v(T)} offset:{1024*i}')
    e(f's_lshl_b32 {s(sT)}, {s(sEh)}, 12'); e(f'v_add_u32 {v(T)}, {s(sT)}, {v(T)}')
    for i in range(4): e(f'ds_read_b128 {v(VF+4*i,4)}, {v(T)} offset:{8192+1024*i}')
    for m in range(2):
        for ks in range(4): e(f'{MF32} {v(S0+4*m,4)}, {v(KF+16*m+4*ks,4)}, {v(QF+4*ks,4)}, '+(v(S0+4*m,4) if ks else '0'))
    e(f'v_mov_b64 {v(S0+8,2)}, 0'); e(f'v_mov_b64 {v(S0+10,2)}, 0')
    def sround(a_): return rnd(a_,a_+1,T)+[f'v_mul_f32 {v(a_)}, {s(sScale)}, {v(a_)}', f'v_mul_f32 {v(a_+1)}, {s(sScale)}, {v(a_+1)}']+rnd(a_,a_+1,T)
    for i in range(0,8,2): p+=sround(S0+i)
    e(f's_lshl_b32 {s(sT+1)}, {s(sM)}, 4'); e(f'v_add_u32 {v(T)}, {s(sT+1)}, {v(MSK)}'); e(f'v_mov_b32 {v(SUM)}, {hex(f2u(-999292928.0))}')
    for i in range(8):
        e(f'v_cmp_le_i32 vcc, {16*(i>>2)+(i&3)}, {v(T)}'); e(f'v_cndmask_b32 {v(S0+i)}, {v(SUM)}, {v(S0+i)}, vcc')
    e(f'v_max3_f32 {v(MX)}, {v(S0)}, {v(S0+1)}, {v(S0+2)}'); e(f'v_max3_f32 {v(MX)}, {v(MX)}, {v(S0+3)}, {v(S0+4)}'); e(f'v_max3_f32 {v(MX)}, {v(MX)}, {v(S0+5)}, {v(S0+6)}'); e(f'v_max_f32 {v(MX)}, {v(MX)}, {v(S0+7)}')
    p+=xg('v_max_f32',MX,T)
    for i in range(8): e(f'v_sub_f32 {v(S0+i)}, {v(S0+i)}, {v(MX)}')
    for i in range(8): e(f'v_mul_f32 {v(S0+i)}, {s(sLg)}, {v(S0+i)}')
    for i in range(8): e(f'v_exp_f32 {v(S0+i)}, {v(S0+i)}')
    e(f'v_add_f32 {v(SUM)}, {v(S0)}, {v(S0+1)}')
    for i in range(2,8): e(f'v_add_f32 {v(SUM)}, {v(SUM)}, {v(S0+i)}')
    if sync:
        e(f's_cmp_lg_u32 {s(sW)}, 0'); e(f's_cbranch_scc1 {L}_kw'); e(f's_max_u32 {s(sT+2)}, {s(sSeg)}, 1'); e(f's_sub_u32 {s(sT+2)}, {s(sT+2)}, 1'); e(f's_min_u32 {s(sT+2)}, {s(sT+2)}, 61')
        p+=poll(ZR+1,s(sMf),s(sT+2),PR,0,OPT['lp'])+[f'{L}_kw:','s_barrier']
    e(f's_lshl_b32 {s(sT+1)}, {s(sEh)}, 11'); e(f's_add_u32 {s(sT+1)}, {s(sT+1)}, {s(sT+5)}'); e(f's_lshl_b32 {s(sT+2)}, {s(sM)}, 2')
    p.append(f'{L}_kd:')
    for i in range(2): e(f'buffer_load_dwordx4 {v(KV+4*i,4)}, {v(L16)}, {s(WS,4)}, {s(sT+1)} offen offset:{1024*i} sc1')
    e(f's_add_u32 {s(sSpin)}, {s(sSpin)}, 1'); e(f's_cmp_gt_u32 {s(sSpin)}, {LIM}')
    e(f'v_max3_u32 {v(T)}, {v(KV)}, {v(KV+1)}, {v(KV+2)}'); e(f'v_max3_u32 {v(T)}, {v(T)}, {v(KV+3)}, {v(KV+4)}'); e(f'v_max3_u32 {v(T)}, {v(T)}, {v(KV+5)}, {v(KV+6)}'); e(f'v_max_u32 {v(T)}, {v(T)}, {v(KV+7)}')
    e(f'v_cmp_eq_u32 vcc, -1, {v(T)}'); e(f's_cbranch_scc1 {L}_kx')
    if OPT['ks']:
        e(f's_cbranch_vccz {L}_kx'); e(f's_cmp_ge_u32 {s(sSeg)}, 62'); e(f's_cbranch_scc1 {L}_kd'); e(f's_sleep {OPT["ks"]}'); e(f's_branch {L}_kd')
    else: e(f's_cbranch_vccnz {L}_kd')
    p.append(f'{L}_kx:')
    p+=STAMP(8,128)
    e(f's_cmp_eq_u32 {s(sM)}, 1'); e('s_cselect_b64 vcc, -1, 0')
    e(f'v_cndmask_b32 {v(KV+9)}, {v(KV+1)}, {v(KV+5)}, vcc'); e(f'v_cndmask_b32 {v(KV+11)}, {v(KV+3)}, {v(KV+7)}, vcc')
    e(f'ds_write2_b32 {v(KW)}, {v(KV+9)}, {v(KV+11)} offset0:0 offset1:8'); e('s_waitcnt lgkmcnt(0)'); e('s_barrier')
    for k in range(2): e(f'ds_read_b128 {v(KM+4*k,4)}, {v(L16)} offset:{1024*k}')
    for k in range(2): e(f'{SMF} {v(S0+8,4)}, {v(KM+4*k,4)}, {v(QF+8*k,8)}, {v(IDX)}')
    e(f'v_add_f32 {v(S0+8)}, {v(S0+8)}, {v(S0+9)}'); e(f'v_add_f32 {v(S0+9)}, {v(S0+10)}, {v(S0+11)}')
    p+=sround(S0+8)
    AL=S0+10; M2=S0+11
    e(f'v_max3_f32 {v(M2)}, {v(MX)}, {v(S0+8)}, {v(S0+9)}'); p+=xg('v_max_f32',M2,T)
    e(f'v_sub_f32 {v(S0+8)}, {v(S0+8)}, {v(M2)}'); e(f'v_sub_f32 {v(S0+9)}, {v(S0+9)}, {v(M2)}'); e(f'v_sub_f32 {v(AL)}, {v(MX)}, {v(M2)}')
    for i in range(8,11): e(f'v_mul_f32 {v(S0+i)}, {s(sLg)}, {v(S0+i)}')
    for i in range(8,11): e(f'v_exp_f32 {v(S0+i)}, {v(S0+i)}')
    e(f'v_add_f32 {v(M2)}, {v(S0+8)}, {v(S0+9)}'); e(f'v_fmac_f32 {v(M2)}, {v(AL)}, {v(SUM)}')
    p+=xg('v_add_f32',M2,T); e(f'v_rcp_f32 {v(M2)}, {v(M2)}')
    e(f'v_mul_f32 {v(AL)}, {v(AL)}, {v(M2)}')
    e(f'v_pk_mul_f32 {v(S0+8,2)}, {v(S0+8,2)}, {v(AL,2)} op_sel:[0,1]')
    for i in range(0,8,2): e(f'v_pk_mul_f32 {v(S0+i,2)}, {v(S0+i,2)}, {v(AL,2)} op_sel_hi:[1,0]')
    for i in range(4): e(f'v_cvt_pk_bf16_f32 {v(PXr+i)}, {v(S0+2*i)}, {v(S0+2*i+1)}')
    e(f'v_cvt_pk_bf16_f32 {v(ZR)}, {v(S0+8)}, {v(S0+9)}')
    for i in range(4): e(f'{MF32} {v(OA+4*i,4)}, {v(VF+4*i,4)}, {v(PXr,4)}, 0')
    for i in range(4): e(f'{MF16} {v(OA+4*i,4)}, {v(KV+2*i,2)}, {v(ZR,2)}, {v(OA+4*i,4)}')
    e(f's_lshl_b32 {s(sT+1)}, {s(sJ)}, 13'); e(f's_lshl_b32 {s(sT+2)}, {s(sEh)}, 12'); e(f's_add_u32 {s(sT+1)}, {s(sT+1)}, {s(sT+2)}'); e(f's_lshl_b32 {s(sT+2)}, {s(sM)}, 10')
    e(f's_add_u32 {s(sT+1)}, {s(sT+1)}, {s(sT+2)}'); e(f's_add_u32 {s(sT+1)}, {s(sT+1)}, {s(sGB)}')
    for k in range(2):
        for i in range(4): e(f'v_cvt_pk_bf16_f32 {v(QF+4*k+i)}, {v(OA+8*k+2*i)}, {v(OA+8*k+2*i+1)}')
        e(f'buffer_store_dwordx4 {v(QF+4*k,4)}, {v(L16)}, {s(WS,4)}, {s(sT+1)} offen offset:{G_O+2048*k}{sc}')
    p+=gbar()
    def gemm_part(src_lines, nks, wf, dst_off):
        o=list(src_lines)
        nfr=2*nks; per=nfr//4; nch=(per+3)//4
        sizes=[min(4,per-4*c) for c in range(nch)]
        base=0; starts=[]
        for c,sz in enumerate(sizes):
            starts.append(base)
            o+=[f's_mul_i32 {s(sT+2)}, {s(sW)}, {sz*1024}', f's_add_u32 {s(sT+2)}, {s(sT+2)}, {base*1024}', f's_add_u32 m0, {s(sT+2)}, 4096', f's_add_u32 {s(sT+2)}, {s(sT+2)}, {s(sT+1)}']
            o+=[f'buffer_load_dwordx4 {v(L16)}, {s(WS,4)}, {s(sT+2)} offen offset:{1024*i} sc1 lds' for i in range(sz)]
            base+=4*sz
        o+=[f'v_add_u32 {v(T)}, 4096, {v(L16)}']
        left=per
        for c,sz in enumerate(sizes):
            left-=sz
            o+=[f's_waitcnt vmcnt({left})','s_barrier']
            fr=list(range(starts[c],starts[c]+4*sz))
            rd=lambda f: f'ds_read_b128 {v(QF+4*(f%8),4)}, {v(T)} offset:{1024*f}'
            o+=[rd(f) for f in fr[:4]]
            for i,f in enumerate(fr):
                ac=v(OA+4*(f&1),4)
                o.append(f'{MF32} {ac}, {v(QF+4*(f%8),4)}, {wf(f>>1)}, '+(ac if f>1 else '0'))
                if i+4<len(fr): o.append(rd(fr[i+4]))
        o+=STAMP(16 if nks==32 else 19,128)
        for mt in range(2):
            for r in range(4):
                o+=[f's_add_u32 {s(sT+2)}, {s(sGB)}, {dst_off+(16*mt+r)*8192}', f'buffer_store_dword {v(OA+4*mt+r)}, {v(PSA)}, {s(WS,4)}, {s(sT+2)} offen{sc}']
        return o
    p+=gemm_part([f's_lshl_b32 {s(sT+1)}, {s(sKq)}, 16', f's_add_u32 {s(sT+1)}, {s(sT+1)}, {s(sGB)}'],32,WO,G_P1)
    nb[0]+=1
    def rowsum(off,tag):
        k_=f'{L}_{tag}'
        o=[f's_lshl_b32 {s(sT+1)}, {s(sJ)}, 13', f's_add_u32 {s(sT+1)}, {s(sT+1)}, {s(sGB)}', f's_add_u32 {s(sT+1)}, {s(sT+1)}, {off}', f's_add_u32 {s(sT+2)}, {s(sT+1)}, 4096', f'v_lshlrev_b32 {v(T)}, 1, {v(L16)}']+([f's_sleep {OPT["rd"]}'] if OPT['rd'] else [])+[k_+':']
        for k in range(4):
            for hf in range(2): o.append(f'buffer_load_dwordx4 {v(QF+8*k+4*hf,4)}, {v(T)}, {s(WS,4)}, {s(sT+1+(k>>1))} offen offset:{2048*(k&1)+16*hf} sc1')
        o+=[f's_add_u32 {s(sSpin)}, {s(sSpin)}, 4', f's_cmp_gt_u32 {s(sSpin)}, {LIM}']
        for k in range(1,4):
            for i in range(0,8,2): o.append(f'v_pk_add_f32 {v(QF+i,2)}, {v(QF+i,2)}, {v(QF+8*k+i,2)}')
        o+=[f'v_pk_add_f32 {v(QF+8,2)}, {v(QF,2)}, {v(QF+2,2)}', f'v_pk_add_f32 {v(QF+10,2)}, {v(QF+4,2)}, {v(QF+6,2)}', f'v_pk_add_f32 {v(QF+8,2)}, {v(QF+8,2)}, {v(QF+10,2)}',
            f'v_cmp_u_f32 vcc, {v(QF+8)}, {v(QF+9)}', f's_cbranch_scc1 {k_}x', f's_cbranch_vccnz {k_}', k_+'x:']
        for i in range(0,8,2): o+=rnd(QF+i,QF+i+1,T)
        return o
    repoison=[f'buffer_store_dwordx4 {v(NEG,4)}, {v(L16)}, {s(WS,4)}, {s(sT+1+(i>>2))} offen offset:{1024*(i&3)}{sc}' for i in range(8)]
    e(f's_cmp_lt_u32 {s(sSeg)}, 38'); e(f's_cselect_b32 {s(sCnt)}, 5, 7'); e(f's_add_u32 {s(sCnt)}, {s(sSeg)}, {s(sCnt)}')
    e(f's_cmp_eq_u32 {s(sW)}, 0'); e(f's_cbranch_scc1 {L}_n0')
    e('s_barrier'); e(f's_cmp_ge_u32 {s(sCnt)}, 64'); e(f's_cbranch_scc1 {L}_n1')
    p+=qkv_fetch(sync,sCnt); e(f's_branch {L}_n1')
    p.append(f'{L}_n0:')
    for i in range(4): p+=unp(X1+2*i,XR+i)
    p+=rowsum(G_P1,'ra')+['s_barrier']+STAMP(10,128)
    for i in range(0,8,2): e(f'v_pk_mul_f32 {v(QF+i,2)}, {v(QF+i,2)}, {v(MODV+i,2)}')
    for i in range(0,8,2): p+=rnd(QF+i,QF+i+1,T)
    for i in range(0,8,2): e(f'v_pk_add_f32 {v(X1+i,2)}, {v(X1+i,2)}, {v(QF+i,2)}')
    for i in range(0,8,2): p+=rnd(X1+i,X1+i+1,T)
    e(f'v_pk_add_f32 {v(QF,2)}, {v(X1,2)}, {v(X1+2,2)}'); e(f'v_pk_add_f32 {v(QF+2,2)}, {v(X1+4,2)}, {v(X1+6,2)}'); e(f'v_pk_add_f32 {v(QF,2)}, {v(QF,2)}, {v(QF+2,2)}'); e(f'v_add_f32 {v(MX)}, {v(QF)}, {v(QF+1)}')
    p+=xrow(MX)+xg('v_add_f32',MX,T); e(f'v_mul_f32 {v(MX)}, {hex(f2u(1/512))}, {v(MX)}')
    sub=lambda i: f'v_pk_add_f32 {v(QF+i,2)}, {v(X1+i,2)}, {v(MX-1,2)} op_sel:[0,1] neg_lo:[0,1] neg_hi:[0,1]'
    for i in range(0,8,2): e(sub(i))
    e(f'v_pk_mul_f32 {v(QF,2)}, {v(QF,2)}, {v(QF,2)}')
    for i in range(2,8,2): e(f'v_pk_fma_f32 {v(QF,2)}, {v(QF+i,2)}, {v(QF+i,2)}, {v(QF,2)}')
    e(f'v_add_f32 {v(SUM)}, {v(QF)}, {v(QF+1)}')
    p+=xrow(SUM)+xg('v_add_f32',SUM,T); e(f'v_mul_f32 {v(SUM)}, {hex(f2u(1/512))}, {v(SUM)}')
    p+=rnd(MX,SUM,T)
    e(f'v_add_f32 {v(SUM)}, {hex(f2u(1e-5))}, {v(SUM)}'); p+=rnd(SUM,SUM,T)[:2]
    e(f'v_sqrt_f32 {v(SUM)}, {v(SUM)}'); p+=rnd(SUM,SUM,T)[:2]
    e(f'v_rcp_f32 {v(SUM)}, {v(SUM)}')
    for i in range(0,8,2): e(sub(i))
    for i in range(0,8,2): p+=rnd(QF+i,QF+i+1,T)
    for i in range(0,8,2): e(f'v_pk_mul_f32 {v(QF+i,2)}, {v(QF+i,2)}, {v(SUM,2)} op_sel_hi:[1,0]')
    for i in range(0,8,2): p+=rnd(QF+i,QF+i+1,T)
    for i in range(0,8,2): e(f'v_pk_mul_f32 {v(QF+i,2)}, {v(QF+i,2)}, {v(MODV+16+i,2)}')
    for i in range(0,8,2): p+=rnd(QF+i,QF+i+1,T)
    for i in range(0,8,2): e(f'v_pk_add_f32 {v(QF+i,2)}, {v(QF+i,2)}, {v(MODV+8+i,2)}')
    for i in range(4): e(f'v_cvt_pk_bf16_f32 {v(QF+8+i)}, {v(QF+2*i)}, {v(QF+2*i+1)}')
    e(f's_lshl_b32 {s(sT+1)}, {s(sJ)}, 10'); e(f's_add_u32 {s(sT+1)}, {s(sT+1)}, {s(sGB)}'); e(f's_add_u32 {s(sT+1)}, {s(sT+1)}, {G_H2}')
    e(f'buffer_store_dwordx4 {v(QF+8,4)}, {v(L16)}, {s(WS,4)}, {s(sT+1)} offen{sc}')
    p+=STAMP(15,128)
    p.append(f'{L}_n1:')
    p+=gbar()
    e(f's_cmp_ge_u32 {s(sJ)}, 28'); e(f's_cbranch_scc1 {L}_n2')
    e(f's_lshl_b32 {s(sT+1)}, {s(sW)}, 13'); e(f's_add_u32 {s(sT+1)}, {s(sT+1)}, {s(sGB)}'); e(f's_add_u32 {s(sT+1)}, {s(sT+1)}, {G_H2}')
    e(f's_lshl_b32 {s(sT+2)}, {s(sEh)}, 14'); e(f's_lshl_b32 {s(sT+3)}, {s(sM)}, 10'); e(f's_add_u32 {s(sT+2)}, {s(sT+2)}, {s(sT+3)}')
    for i in range(8):
        e(f's_add_u32 m0, {s(sT+2)}, {4096+2048*i}'); e(f's_add_u32 {s(sT+3)}, {s(sT+1)}, {128*i}')
        e(f'buffer_load_dwordx4 {v(HSR)}, {s(WS,4)}, {s(sT+3)} offen sc1 lds')
    rd=lambda ks: f'ds_read_b128 {v(QF+4*(ks%8),4)}, {v(HRD1 if ks&1 else HRD)} offset:{4096+2048*(ks>>1)}'
    for c in range(2):
        e(f's_waitcnt vmcnt({4-4*c})'); e('s_barrier')
        if c==1: p+=STAMP(17,128)
        for ks in range(8*c,8*c+4): e(rd(ks))
        for ks in range(8*c,8*c+8):
            for t in range(2): e(f'{MF32} {v(OA+4*t,4)}, {W1(t,ks)}, {v(QF+4*(ks%8),4)}, '+(v(OA+4*t,4) if ks else '0'))
            if ks+4<8*c+8: e(rd(ks+4))
    e(f's_lshl_b32 {s(sT+1)}, {s(sJ)}, 12'); e(f's_lshl_b32 {s(sT+2)}, {s(sEh)}, 11'); e(f's_add_u32 {s(sT+1)}, {s(sT+1)}, {s(sT+2)}'); e(f's_lshl_b32 {s(sT+2)}, {s(sM)}, 10')
    e(f's_add_u32 {s(sT+1)}, {s(sT+1)}, {s(sT+2)}'); e(f's_add_u32 {s(sT+1)}, {s(sT+1)}, {s(sGB)}'); e(f's_add_u32 {s(sT+1)}, {s(sT+1)}, {G_F1}')
    for i in range(8): e(f'v_max_f32 {v(OA+i)}, 0, {v(OA+i)}')
    for i in range(4): e(f'v_cvt_pk_bf16_f32 {v(PXr+i)}, {v(OA+2*i)}, {v(OA+2*i+1)}')
    e(f'buffer_store_dwordx4 {v(PXr,4)}, {v(L16)}, {s(WS,4)}, {s(sT+1)} offen{sc}')
    p+=STAMP(18,128)
    p.append(f'{L}_n2:')
    p+=gbar()
    p+=gemm_part([f's_mul_i32 {s(sT+1)}, {s(sKq)}, 28672', f's_add_u32 {s(sT+1)}, {s(sT+1)}, {s(sGB)}', f's_add_u32 {s(sT+1)}, {s(sT+1)}, {G_F1}'],14,W2,G_P2)
    nb[0]+=1
    e(f's_cmp_lg_u32 {s(sW)}, 0'); e(f's_cbranch_scc1 {L}_n3')
    p+=rowsum(G_P2,'rb')+STAMP(13,128)
    for i in range(0,8,2): e(f'v_pk_mul_f32 {v(QF+i,2)}, {v(QF+i,2)}, {v(MODV+24+i,2)}')
    for i in range(0,8,2): p+=rnd(QF+i,QF+i+1,T)
    for i in range(0,8,2): e(f'v_pk_add_f32 {v(QF+i,2)}, {v(QF+i,2)}, {v(X1+i,2)}')
    for i in range(4): e(f'v_cvt_pk_bf16_f32 {v(QF+8+i)}, {v(QF+2*i)}, {v(QF+2*i+1)}')
    e(f'v_add_u32 {v(T)}, {s(sT+6)}, {v(L16)}')
    e(f'global_store_dwordx4 {v(T)}, {v(QF+8,4)}, {s(POUT,2)}')
    e(f's_cmp_ge_u32 {s(sSeg)}, 57'); e(f's_cbranch_scc1 {L}_n4')
    p+=repoison+[f'{L}_n4:']
    p+=STAMP(14,128)+STAMP(20,96)+STAMP(21,64)+STAMP(22,32)
    p.append(f'{L}_n3:')
    e(f's_lshl_b32 {s(sT+1)}, {s(sJ)}, 2'); e(f's_add_u32 {s(sT+1)}, {s(sT+1)}, {s(sW)}'); e(f's_lshl_b32 {s(sT+1)}, {s(sT+1)}, 11'); e(f's_add_u32 {s(sT+1)}, {s(sT+1)}, {s(sGB)}'); e(f's_add_u32 {s(sT+1)}, {s(sT+1)}, {G_P1}')
    e(f's_cmp_ge_u32 {s(sSeg)}, 57'); e(f's_cbranch_scc1 {L}_end')
    e('s_barrier')
    p+=repoison[:2]
    e(f's_mov_b32 {s(sSeg)}, {s(sCnt)}'); e(f's_branch {L}')
    p.append(f'{L}_end:')
    e('s_endpgm')
    r=fix(p,'p2'+mode); check(r+r,'p2loop')
    return r
```

```python
from asmlib import *
from layout import *
import math, struct, re

T0=0; IDX=1; L16=2; LW=3; QW=4; QR=5; KW=6; OW=7; ORD=8; PST=9; MPUB=10; H2A=10; FLG=11
ONES=12; PM=16; KVQ=20; QA=24; KA=32; VA=40; M=48; X=80; STG=112; RES=128
L_MEM=0; L_Q=8192; L_K=10240; L_O=12288; L_SEL=14336; L_KX=16384; L_WV=24576; WREG=34816
WS=4; WSRD=8; DBG=12; sH=14; sW=15; sStep=16; sC=17; sKsrc=18; sVsrc=19; sKvm=20
sPst=21; sPin=23; sPrst=25; sPrstB=26; sPslot=27; sMemIn1=28; sSpinU=29; sPinB=30
sMemIn0=31; sMemB=32; sMemPub=33; sMemRst=34; sSlot=35; sSpin=36; sKdst=37; sKvF=38; sVdst=39; sKvmF=40; sReg=41
sT=42
sRo1=52; sRo2=56; sEx=50; sPtr=52; sRow=64; sTime=70; sOdd=88; sOne=92; sC2=94; sSpinF=96; sFlag=98; sFlagB=99; sWoff=100
LIM='0x80000'
SMF='v_smfmac_f32_16x16x64_bf16'; MF32='v_mfma_f32_16x16x32_bf16'; MF16='v_mfma_f32_16x16x16_bf16'
OPT=dict(sync=0, d1=20, sl=4, nb=6, pp=0, rep=2, hotkv=0, tr=0, solo=0, cut=99, drop=0, cutm=-1, show=0, z4=1, bb=0, xl=1, eb=1, knt=0, ek=1, sw1=0, ord=3, dc=7, fi=28, de=5, v1=1, pub=1, nt=1, rs=0, b0=1, ro1=0, ro2=0, rp=0, warm=1, sp=0, np=2, dp=0, ps=24, sw=5)

lds_groups=[('q',0),('q',1),('q',2),('q',3),('o',0,3),('o',1,1),('o',1,2),('o',1,3)]
all_groups=[(m,c) for m in 'qkv' for c in range(8)]+[('o',tp,k) for tp in range(2) for k in range(4)]
res_groups=[g for g in all_groups if g not in lds_groups]
gloc={}
for i,g in enumerate(res_groups): gloc[g]=('a',16*i) if i<16 else ('v',RES+16*(i-16))
stream={('q',0,0):M+16,('q',0,1):M+24,('q',1,0):KA,('q',1,1):VA,('q',2,0):X,('q',2,1):X+8,('q',3,0):X+16,('q',3,1):X+24,
        ('o',0,3,0):X+8,('o',0,3,1):X+24,('o',1,1,0):X,('o',1,2,0):X+16,('o',1,3,0):KA,('o',1,1,1):VA,('o',1,2,1):QA,('o',1,3,1):X+8}
def ureg(g,t):
    if g in gloc: return gloc[g][0], gloc[g][1]+8*t
    return 'v', stream[g+(t,)]
def unit(g,t): p,b=ureg(g,t); return R(p,b,8)
def stream_reads(g,t):
    off=lds_groups.index(g)*4096+t*2048; b=stream[g+(t,)]
    return [f'ds_read_b128 {v(b,4)}, {v(LW)} offset:{off}', f'ds_read_b128 {v(b+4,4)}, {v(LW)} offset:{off+1024}']
def zero(b,n,val='0'): return [f'v_mov_b64 {v(b+i,2)}, {val}' for i in range(0,n,2)]
def kv_addr(): return [f'v_lshrrev_b32 {v(T0)}, 2, {v(L16)}', f'v_and_b32 {v(T0)}, 4, {v(T0)}']
def kv_check(L):
    return kv_addr()+[f's_add_u32 {s(sT+3)}, {s(sStep)}, 1', f's_min_u32 {s(sT+3)}, {s(sT+3)}, 63', f's_lshl_b32 {s(sT+3)}, {s(sT+3)}, 2', f'{L}c:',
            f'v_lshl_add_u32 {v(FLG)}, {v(FLG)}, 3, {v(T0)}', f'v_cmp_ge_u32 vcc, {s(sT+3)}, {v(FLG)}', f's_cbranch_vccnz {L}w', f'{L}x:']
def kv_wait(L):
    return [f'{L}w:', f's_add_u32 {s(sSpinF)}, {s(sSpinF)}, 1', f's_cmp_gt_u32 {s(sSpinF)}, {LIM}', f's_cbranch_scc1 {L}x',
            f'buffer_load_dword {v(FLG)}, {v(T0)}, {s(WS,4)}, {s(sKvF)} offen sc1', 's_waitcnt vmcnt(0)', f's_branch {L}c']
def h2_addr(d,t):
    return [f'v_and_b32 {v(d)}, 0x230, {v(L16)}', f'v_and_b32 {v(t)}, 0xc0, {v(L16)}', f'v_lshl_add_u32 {v(d)}, {v(t)}, 1, {v(d)}',
            f'v_and_b32 {v(t)}, 0x100, {v(L16)}', f'v_lshrrev_b32 {v(t)}, 2, {v(t)}', f'v_or_b32 {v(d)}, {v(d)}, {v(t)}']

def prologue(timing):
    p=[]; e=p.append
    VQ=[]
    def vm(line,tag=None): e(line); VQ.append(tag)
    def wait(tag):
        i=max(k for k,t in enumerate(VQ) if t==tag); e(f's_waitcnt vmcnt({min(63,len(VQ)-1-i)})')
    e(f's_load_dwordx2 {s(WSRD,2)}, s[0:1], 40')
    e(f's_load_dwordx4 {s(sPtr,4)}, s[0:1], 8')
    e(f's_load_dwordx4 {s(sPtr+4,4)}, s[0:1], 24')
    e(f's_load_dwordx2 {s(DBG,2)}, s[0:1], 104')
    e(f's_load_dwordx2 {s(WS,2)}, s[0:1], 112')
    if timing: e(f's_memrealtime {s(sTime,2)}')
    ln,n,g,t1,t2,g1,VOO,VA0,VA1,TO0,TO1,TA0,TA1,TB0,TB1,r=[STG+i for i in range(16)]
    e(f'v_lshrrev_b32 {v(t1)}, 6, v0'); e(f'v_and_b32 {v(ln)}, 63, v0'); e(f'v_readfirstlane_b32 {s(sW)}, {v(t1)}')
    e(f's_mov_b32 {s(WSRD+2)}, {4<<20}'); e(f's_mov_b32 {s(WSRD+3)}, 0x20000')
    e(f'v_and_b32 {v(n)}, 15, {v(ln)}'); e(f'v_lshrrev_b32 {v(g)}, 4, {v(ln)}'); e(f'v_and_b32 {v(g1)}, 1, {v(g)}')
    e(f's_mul_i32 {s(sReg)}, {s(sW)}, {WREG}'); e(f's_add_u32 {s(sReg)}, {s(sReg)}, {L_WV}')
    e(f'v_lshrrev_b32 {v(t1)}, 3, {v(n)}'); e(f'v_lshl_add_u32 {v(t1)}, {v(g1)}, 4, {v(t1)}'); e(f'v_lshrrev_b32 {v(t2)}, 1, {v(g)}'); e(f'v_lshl_add_u32 {v(t1)}, {v(t2)}, 2, {v(t1)}')
    e(f'v_and_b32 {v(t2)}, 7, {v(n)}'); e(f'v_lshlrev_b32 {v(t2)}, 4, {v(t2)}'); e(f'v_lshlrev_b32 {v(VOO)}, 6, {v(g1)}'); e(f'v_xor_b32 {v(t2)}, {v(t2)}, {v(VOO)}')
    e(f'v_lshl_add_u32 {v(VOO)}, {v(t1)}, 10, {v(t2)}')
    e(f's_lshl_b32 {s(sT)}, {s(sH)}, 17'); e(f's_lshl_b32 {s(sT+1)}, {s(sW)}, 8'); e(f's_add_u32 {s(sT)}, {s(sT)}, {s(sT+1)}')
    for k in range(4):
        e(f's_xor_b32 {s(sRow+k)}, {s(sW)}, {k}'); e(f's_lshl_b32 {s(sRow+k)}, {s(sRow+k)}, 15'); e(f's_add_u32 {s(sRow+k)}, {s(sRow+k)}, {s(sT)}')
    e('s_waitcnt lgkmcnt(0)')
    if timing: e('s_memrealtime s[80:81] ;stamp')
    items=[g_ for m_ in 'okvq' for g_ in res_groups if g_[0]==m_]+lds_groups
    SL=[i%8 for i in range(32)]
    k_=OPT['ord']
    if k_:
        items=items[:4]+items[32-k_:]+items[4:32-k_]
        R_=8-k_; n_=28-k_
        SL=[None]*4+list(range(8-k_,8))+[(j-n_)%R_ for j in range(n_)]
        SL[:4]=[(j-4-n_)%R_ for j in range(4)]
    nxt_=[0]
    def pump(it,lim):
        while nxt_[0]<32 and nxt_[0]<=lim and all(j<it for j in range(nxt_[0]) if SL[j]==SL[nxt_[0]]):
            issue(nxt_[0]); nxt_[0]+=1
    ptr={'q':sPtr+2,'k':sPtr+4,'v':sPtr+6,'o':sPtr+8}
    ntf=' nt' if OPT['nt'] else ''
    def issue(i):
        g_=items[i]
        if i>=4: e(f's_mov_b32 {s(WSRD)}, {s(ptr[g_[0]])}'); e(f's_mov_b32 {s(WSRD+1)}, {s(ptr[g_[0]]+1)}')
        for b in range(4):
            e(f's_add_u32 m0, {s(sReg)}, {SL[i]*4096+b*1024}')
            if g_[0]=='o': e(f's_add_u32 {s(sT+7)}, {s(sRow+g_[2])}, {(8*(b>>1)+2*(b&1))*1024+g_[1]*128}'); vo=VOO
            else: e(f's_mov_b32 {s(sT+7)}, {(128*(g_[1]&3)+8*(g_[1]>>2)+4*(b>>1)+(b&1))*8192}'); vo=VA1 if b&1 else VA0
            vm(f'buffer_load_dwordx4 {v(vo)}, {s(WSRD,4)}, {s(sT+7)} offen{ntf} lds',g_)
    pump(0,3)
    e(f's_mov_b32 {s(sPtr+8)}, {s(WSRD)}'); e(f's_mov_b32 {s(sPtr+9)}, {s(WSRD+1)}')
    e(f's_mov_b32 {s(WS+2)}, {WS_BYTES}'); e(f's_mov_b32 {s(WS+3)}, 0x20000')
    e(f'v_lshlrev_b32 {v(L16)}, 4, {v(ln)}'); e(f'v_add_u32 {v(LW)}, {s(sReg)}, {v(L16)}')
    e(f's_add_u32 {s(sVdst)}, {s(sReg)}, 32768')
    e(f's_lshl_b32 {s(sT+1)}, {s(sW)}, 11'); e(f's_add_u32 {s(sKdst)}, {s(sT+1)}, {L_KX}')
    e(f's_lshl_b32 {s(sWoff)}, {s(sW)}, 10')
    e(f'v_and_b32 {v(t1)}, 1, {v(ln)}'); e(f'v_mul_u32_u24 {v(t1)}, 0xaaaa, {v(t1)}'); e(f'v_add_u32 {v(IDX)}, 0x4444, {v(t1)}')
    e(f's_lshl_b32 {s(sT+2)}, {s(sW)}, 9')
    e(f'v_lshrrev_b32 {v(r)}, 2, {v(n)}'); e(f'v_lshlrev_b32 {v(QW)}, 7, {v(r)}'); e(f'v_and_b32 {v(t1)}, 1, {v(r)}'); e(f'v_lshlrev_b32 {v(t1)}, 6, {v(t1)}')
    e(f'v_lshlrev_b32 {v(t2)}, 5, {v(g)}'); e(f'v_xor_b32 {v(t1)}, {v(t1)}, {v(t2)}'); e(f'v_add_u32 {v(QW)}, {v(QW)}, {v(t1)}')
    e(f'v_and_b32 {v(t1)}, 3, {v(n)}'); e(f'v_lshl_add_u32 {v(QW)}, {v(t1)}, 2, {v(QW)}'); e(f'v_add_u32 {v(QW)}, {s(sT+2)}, {v(QW)}'); e(f'v_add_u32 {v(QW)}, {L_Q}, {v(QW)}')
    e(f'v_lshlrev_b32 {v(t1)}, 3, {v(ln)}'); e(f'v_add_u32 {v(OW)}, {s(sT+2)}, {v(t1)}'); e(f'v_and_b32 {v(ORD)}, -9, {v(OW)}')
    e(f'v_and_b32 {v(t1)}, -9, {v(t1)}'); e(f'v_lshlrev_b32 {v(t2)}, 6, {v(g1)}'); e(f'v_xor_b32 {v(QR)}, {v(t1)}, {v(t2)}')
    e(f'v_bfe_u32 {v(t1)}, {v(n)}, 1, 2'); e(f'v_lshlrev_b32 {v(KW)}, 2, {v(t1)}'); e(f'v_and_b32 {v(t1)}, 1, {v(n)}'); e(f'v_lshl_add_u32 {v(KW)}, {v(t1)}, 4, {v(KW)}')
    e(f'v_lshl_add_u32 {v(KW)}, {v(g)}, 6, {v(KW)}'); e(f'v_lshrrev_b32 {v(t1)}, 3, {v(n)}'); e(f'v_lshl_add_u32 {v(KW)}, {v(t1)}, 8, {v(KW)}')
    e(f'v_add_u32 {v(KW)}, {s(sT+2)}, {v(KW)}'); e(f'v_add_u32 {v(KW)}, {L_K}, {v(KW)}')
    e(f'v_lshlrev_b32 {v(MPUB)}, 12, {v(t1)}'); e(f'v_and_b32 {v(t1)}, 1, {v(r)}'); e(f'v_lshl_add_u32 {v(MPUB)}, {v(t1)}, 6, {v(MPUB)}'); e(f'v_lshl_add_u32 {v(MPUB)}, {v(g1)}, 5, {v(MPUB)}')
    e(f'v_and_b32 {v(t1)}, 3, {v(n)}'); e(f'v_lshl_add_u32 {v(MPUB)}, {v(t1)}, 3, {v(MPUB)}'); e(f'v_lshrrev_b32 {v(t2)}, 1, {v(g)}'); e(f'v_lshl_add_u32 {v(MPUB)}, {v(t2)}, 31, {v(MPUB)}')
    e(f'v_lshlrev_b32 {v(TO0)}, 8, {v(g)}'); e(f'v_lshl_add_u32 {v(TO0)}, {v(t1)}, 3, {v(TO0)}'); e(f'v_lshl_add_u32 {v(TO0)}, {v(g1)}, 6, {v(TO0)}')
    e(f'v_and_b32 {v(t2)}, 1, {v(r)}'); e(f'v_lshl_add_u32 {v(TO0)}, {v(t2)}, 7, {v(TO0)}'); e(f'v_lshrrev_b32 {v(t2)}, 1, {v(r)}'); e(f'v_lshl_add_u32 {v(TO0)}, {v(t2)}, 5, {v(TO0)}')
    e(f'v_add_u32 {v(TO0)}, {s(sReg)}, {v(TO0)}'); e(f'v_xor_b32 {v(TO1)}, 64, {v(TO0)}')
    e(f'v_lshl_add_u32 {v(t2)}, {v(g1)}, 2, {v(r)}'); e(f's_lshl_b32 {s(sT+3)}, {s(sW)}, 1'); e(f'v_xor_b32 {v(t2)}, {s(sT+3)}, {v(t2)}')
    e(f'v_lshlrev_b32 {v(TA0)}, 10, {v(g)}'); e(f'v_lshl_add_u32 {v(TA0)}, {v(r)}, 8, {v(TA0)}'); e(f'v_lshl_add_u32 {v(TA0)}, {v(t2)}, 5, {v(TA0)}'); e(f'v_lshl_add_u32 {v(TA0)}, {v(t1)}, 3, {v(TA0)}')
    e(f'v_add_u32 {v(TA0)}, {L_WV}, {v(TA0)}'); e(f'v_xor_b32 {v(TA1)}, 32, {v(TA0)}'); e(f'v_add_u32 {v(TB0)}, {2*WREG}, {v(TA0)}'); e(f'v_add_u32 {v(TB1)}, {2*WREG}, {v(TA1)}')
    e(f's_lshl_b32 {s(sT+4)}, {s(sH)}, 8')
    e(f'v_and_b32 {v(t2)}, 2, {v(g)}'); e(f'v_lshl_add_u32 {v(t2)}, {v(g1)}, 4, {v(t2)}'); e(f'v_lshlrev_b32 {v(t1)}, 1, {v(g)}'); e(f'v_xor_b32 {v(t1)}, {v(t1)}, {v(n)}'); e(f'v_lshlrev_b32 {v(t1)}, 4, {v(t1)}')
    e(f'v_lshl_add_u32 {v(VA0)}, {v(t2)}, 13, {v(t1)}'); e(f's_lshl_b32 {s(sT+3)}, {s(sW)}, 18'); e(f's_add_u32 {s(sT+3)}, {s(sT+3)}, {s(sT+4)}')
    e(f'v_add_u32 {v(VA0)}, {s(sT+3)}, {v(VA0)}'); e(f'v_xor_b32 {v(VA1)}, 128, {v(VA0)}')
    e(f's_lshl_b32 {s(sT+3)}, {s(sW)}, 15'); e(f'v_lshlrev_b32 {v(t1)}, 11, {v(r)}'); e(f'v_add_u32 {v(t1)}, {s(sT+4)}, {v(t1)}'); e(f'v_and_b32 {v(t1)}, 0x1fff, {v(t1)}')
    e(f'v_lshl_add_u32 {v(PST)}, {v(g)}, 13, {v(t1)}'); e(f'v_lshl_add_u32 {v(PST)}, {v(n)}, 4, {v(PST)}'); e(f'v_add_u32 {v(PST)}, {s(sT+3)}, {v(PST)}')
    Rp=OPT['rep']; cval=struct.unpack('<I',struct.pack('<f',math.log2(math.e)/math.sqrt(128)))[0]
    for r_,val in ((sC,cval),(sC2,cval),(sC2+1,cval),(sStep,0),(sSpin,0),(sSpinU,0),(sSpinF,0),(sSlot,0),(sPslot,3*262144),(sOne,0x3f803f80),(sOne+1,0x3f803f80),
                   (sOdd,0xaaaaaaaa),(sOdd+1,0xaaaaaaaa),(sEx,0x10001 if Rp>1 else 1),(sEx+1,0x10001 if Rp>2 else 0)): e(f's_mov_b32 {s(r_)}, {hex(val)}')
    e(f's_and_b32 {s(sFlagB)}, {s(sH)}, {Rp-1}'); e(f's_lshl_b32 {s(sFlagB)}, {s(sFlagB)}, 8'); e(f's_add_u32 {s(sFlagB)}, {s(sFlagB)}, {FLAG_OFF}')
    e(f's_lshl_b32 {s(sFlag)}, {s(sH)}, 2'); e(f's_add_u32 {s(sFlag)}, {s(sFlag)}, {FLAG_OFF}')
    e(f's_lshl_b32 {s(sPinB)}, {s(sH)}, 13'); e(f's_add_u32 {s(sPinB)}, {s(sPinB)}, {PART_OFF}'); e(f's_add_u32 {s(sPrstB)}, {s(sPinB)}, {s(sT+1)}')
    e(f's_bfe_u32 {s(sT+5)}, {s(sH)}, 0x20002'); e(f's_lshl_b32 {s(sMemB)}, {s(sT+5)}, 10'); e(f's_lshr_b32 {s(sT+5)}, {s(sH)}, 4'); e(f's_lshl_b32 {s(sT+5)}, {s(sT+5)}, 9')
    e(f's_add_u32 {s(sMemB)}, {s(sMemB)}, {s(sT+5)}'); e(f's_and_b32 {s(sT+5)}, {s(sH)}, 3'); e(f's_lshl_b32 {s(sT+5)}, {s(sT+5)}, 7'); e(f's_add_u32 {s(sMemB)}, {s(sMemB)}, {s(sT+5)}'); e(f's_add_u32 {s(sMemB)}, {s(sMemB)}, {MEM_OFF}')
    e(f's_lshl_b32 {s(sKsrc)}, {s(sH)}, 20'); e(f's_add_u32 {s(sKsrc)}, {s(sKsrc)}, {s(sT+1)}'); e(f's_add_u32 {s(sKsrc)}, {s(sKsrc)}, {KV_OFF}'); e(f's_add_u32 {s(sVsrc)}, {s(sKsrc)}, 8192')
    e(f's_lshl_b32 {s(sKvm)}, {s(sH)}, 18'); e(f's_add_u32 {s(sKvm)}, {s(sKvm)}, {s(sWoff)}'); e(f's_add_u32 {s(sKvm)}, {s(sKvm)}, {KVM_OFF}')
    e(f's_lshl_b32 {s(sKvF)}, {s(sH)}, 7'); e(f's_add_u32 {s(sKvmF)}, {s(sKvF)}, {BF_OFF+BF_KVM}'); e(f's_add_u32 {s(sKvF)}, {s(sKvF)}, {BF_OFF+BF_KV}')
    p+=zero(PM,4)+zero(ONES,4,'-1')
    e(f'v_and_b32 {v(t1)}, 2, {v(n)}'); e(f'v_lshlrev_b32 {v(t1)}, 3, {v(t1)}'); e(f'v_mov_b32 {v(t2)}, 0x3f80'); e(f'v_lshlrev_b32 {v(t2)}, {v(t1)}, {v(t2)}'); e(f'v_bfe_u32 {v(t1)}, {v(n)}, 2, 1')
    for jj in range(4):
        e(f'v_cmp_eq_u32 vcc, {jj&1}, {v(t1)}'); e(f'v_cndmask_b32 {v(M+jj)}, 0, {v(t2)}, vcc')
    e(f'ds_write_b128 {v(L16)}, {v(M,4)} offset:{L_SEL}')
    e(f'v_lshrrev_b32 {v(T0)}, 1, {v(n)}'); e(f'v_lshlrev_b32 {v(T0)}, 10, {v(T0)}'); e(f'v_lshl_add_u32 {v(T0)}, {v(g1)}, 3, {v(T0)}')
    e(f'v_and_b32 {v(t1)}, 2, {v(g)}'); e(f'v_lshl_add_u32 {v(T0)}, {v(t1)}, 6, {v(T0)}'); e(f'v_and_b32 {v(t1)}, 1, {v(n)}'); e(f'v_lshl_add_u32 {v(T0)}, {v(t1)}, 2, {v(T0)}')
    e(f's_lshl_b32 {s(sT+5)}, {s(sW)}, 8'); e(f'v_add_u32 {v(T0)}, {s(sT+5)}, {v(T0)}')
    D=OPT['dc']
    pump(0,D-1)
    if timing: e('s_memrealtime s[82:83] ;stamp')
    if not OPT['sync']:
        e(f's_lshl_b32 {s(sT+5)}, {s(sW)}, 18'); e(f's_add_u32 {s(sT+5)}, {s(sT+5)}, {s(sPinB)}'); e(f's_add_u32 {s(sT+6)}, {s(sT+5)}, 4096')
        for j in range(8): vm(f'buffer_store_dwordx4 {v(ONES,4)}, {v(L16)}, {s(WS,4)}, {s(sT+5+(j>>2))} offen offset:{(j&3)*1024} sc1','x')
        e(f's_lshl_b32 {s(sT+5)}, {s(sW)}, 13'); e(f's_add_u32 {s(sT+5)}, {s(sT+5)}, {s(sMemB)}')
        vm(f'buffer_store_dwordx2 {v(ONES,2)}, {v(MPUB)}, {s(WS,4)}, {s(sT+5)} offen sc1','x')
        e(f's_mov_b64 exec, {s(sEx,2)}'); vm(f'buffer_store_dword {v(PM)}, {v(L16)}, {s(WS,4)}, {s(sFlag)} offen sc1','x'); e('s_mov_b64 exec, -1')
    for u in range(2):
        for x in range(4): vm(f'global_load_dword {v(QA+4*u+x)}, {v(T0)}, {s(sPtr,2)} offset:{16*u+32*x}','x')
    if not OPT['rp']:
        p+=h2_addr(FLG,t1); e(f's_cmp_eq_u32 {s(sW)}, 1'); e('s_cselect_b64 vcc, -1, 0'); e(f'v_cndmask_b32 {v(MPUB)}, {v(MPUB)}, {v(FLG)}, vcc')
    def back(i):
        g_=items[i]
        for t in range(2):
            b0=stream[g_+(t,)] if g_[0]=='q' else M+8*t
            for j in range(2): e(f'ds_write_b128 {v(LW)}, {v(b0+4*j,4)} offset:{SL[i]*4096+t*2048+j*1024}')
        assert SL[i]==lds_groups.index(g_)
    for it in range(32):
        g_=items[it]; bi=it-5
        wait(g_)
        if it==8: wait('x')
        if timing and it==0: e('s_memrealtime s[84:85] ;stamp')
        if timing and it==31: e('s_memrealtime s[86:87] ;stamp')
        e('s_barrier')
        pump(it,it+D)
        if it and items[it-1] in lds_groups[:4]: back(it-1)
        if it==8:
            e(f's_mov_b32 {s(sT+2)}, 0x05040100'); e(f's_mov_b32 {s(sT+3)}, 0x07060302'); e(f'v_add_u32 {v(T0)}, {s(sWoff)}, {v(L16)}')
            for u in range(2):
                d=X+4*u; q=QA+4*u
                e(f'v_perm_b32 {v(d)}, {v(q+1)}, {v(q)}, {s(sT+2)}'); e(f'v_perm_b32 {v(d+1)}, {v(q+3)}, {v(q+2)}, {s(sT+2)}')
                e(f'v_perm_b32 {v(d+2)}, {v(q+1)}, {v(q)}, {s(sT+3)}'); e(f'v_perm_b32 {v(d+3)}, {v(q+3)}, {v(q+2)}, {s(sT+3)}')
                e(f'ds_write_b128 {v(T0)}, {v(d,4)} offset:{L_MEM+4096*u}')
            e(f's_cmp_lg_u32 {s(sW)}, 0'); e('s_cbranch_scc1 L_ch_noarr')
            e(f's_getreg_b32 {s(sT+5)}, hwreg(HW_REG_XCC_ID)'); e(f's_and_b32 {s(sT+5)}, {s(sT+5)}, 7'); e(f's_lshl_b32 {s(sT+5)}, {s(sT+5)}, 3'); e(f's_lshl_b64 {s(sT+2,2)}, 1, {s(sT+5)}')
            e(f'v_mov_b32 {v(QA)}, {s(sT+2)}'); e(f'v_mov_b32 {v(QA+1)}, {s(sT+3)}'); e('s_mov_b64 exec, 1')
            e(f'global_atomic_add_x2 {v(PM+1)}, {v(QA,2)}, {s(DBG,2)}'); e('s_mov_b64 exec, -1')
            p.append('L_ch_noarr:')
        for b in range(4):
            for t in range(2):
                if g_[0]=='o':
                    pf,b0=ureg(g_,t) if g_ in gloc else ('v',M+8*t)
                    e(f'ds_read_b64_tr_b16 {R(pf,b0+2*b,2)}, {v(TO1 if t else TO0)} offset:{SL[it]*4096+b*1024}')
                else:
                    pf,b0=ureg(g_,t); tra=[[TA0,TA1],[TB0,TB1]][b>>1][t]
                    e(f'ds_read_b64_tr_b16 {R(pf,b0+2*b,2)}, {v(tra)} offset:{(b&1)*WREG+SL[it]*4096}')
        e('s_waitcnt lgkmcnt(0)')
        if g_ in lds_groups[4:]: back(it)
        if it==31 and g_[0]=='q': e('s_barrier'); back(it)
        if bi==8 and OPT['sync']:
            e(f'v_mov_b32 {v(T0)}, 136'); vm(f'global_load_dword {v(KVQ)}, {v(T0)}, {s(DBG,2)} sc1 ;stamp','i')
        if it==16: vm(f'global_load_dwordx2 {v(QA,2)}, {v(PM+1)}, {s(DBG,2)} sc1 ;stamp','h')
        if it==OPT['fi']:
            wait('h')
            p.append('L_ch_hs:')
            e(f'v_readfirstlane_b32 {s(sT+2)}, {v(QA)}'); e(f'v_readfirstlane_b32 {s(sT+3)}, {v(QA+1)}')
            e(f's_add_u32 {s(sSpinF)}, {s(sSpinF)}, 1'); e(f's_cmp_gt_u32 {s(sSpinF)}, {LIM}'); e('s_cbranch_scc1 L_ch_hsdone')
            e(f's_add_u32 {s(sT+4)}, {s(sT+2)}, {s(sT+3)}'); e(f's_lshr_b32 {s(sT+5)}, {s(sT+4)}, 16'); e(f's_add_u32 {s(sT+4)}, {s(sT+4)}, {s(sT+5)}')
            e(f's_lshr_b32 {s(sT+5)}, {s(sT+4)}, 8'); e(f's_add_u32 {s(sT+4)}, {s(sT+4)}, {s(sT+5)}'); e(f's_and_b32 {s(sT+4)}, {s(sT+4)}, 0xff')
            e(f's_cmp_ge_u32 {s(sT+4)}, 32'); e('s_cbranch_scc1 L_ch_hsdone')
            e(f'global_load_dwordx2 {v(QA,2)}, {v(PM+1)}, {s(DBG,2)} sc1 ;stamp'); e('s_waitcnt vmcnt(0) ;stamp'); e('s_branch L_ch_hs')
            p.append('L_ch_hsdone:')
            e(f's_or_b32 {s(sT+2)}, {s(sT+2)}, {s(sT+3)}'); e(f's_and_b32 {s(sT+2)}, {s(sT+2)}, 0x20202020')
            if OPT['sync']:
                wait('i')
                p.append('L_ch_iw:')
                e(f'v_cmp_eq_u32 vcc, 0, {v(KVQ)}'); e('s_cbranch_vccz L_ch_iwx')
                e(f's_add_u32 {s(sSpinF)}, {s(sSpinF)}, 1'); e(f's_cmp_gt_u32 {s(sSpinF)}, {LIM}'); e('s_cbranch_scc1 L_ch_iwx')
                e(f'global_load_dword {v(KVQ)}, {v(T0)}, {s(DBG,2)} sc1 ;stamp'); e('s_waitcnt vmcnt(0) ;stamp'); e('s_branch L_ch_iw')
                p.append('L_ch_iwx:')
                p.extend(kv_addr()); vm(f'buffer_load_dword {v(FLG)}, {v(T0)}, {s(WS,4)}, {s(sKvF)} offen sc1 ;stamp','f')
            e(f's_lshl_b32 {s(sT+5)}, {s(sW)}, 18'); e(f's_add_u32 {s(sT+5)}, {s(sT+5)}, {s(sPinB)}'); e(f's_add_u32 {s(sT+6)}, {s(sT+5)}, 4096')
            wl=[f'buffer_load_dwordx4 {v(KVQ,4)}, {v(L16)}, {s(WS,4)}, {s(sT+5+(j>>2))} offen offset:{(j&3)*1024} sc1 ;stamp' for j in range(8)]
            nlate=2 if OPT['rs']==0 else 1
            def warm(lst,k):
                for l in lst: vm(l,'w')
            e(f's_lshl_b32 {s(sT+4)}, {s(sH)}, 10'); e(f's_add_u32 {s(sT+4)}, {s(sT+4)}, {MEM_OFF}')
            vm(f'buffer_load_dwordx4 {v(KVQ,4)}, {v(L16)}, {s(WS,4)}, {s(sT+4)} offen sc1 ;stamp','w')
            warm(wl[:8-nlate],0)
    if OPT['sync']:
        wait('f')
        p.extend(kv_check('L_ch_k0')); p.extend(['s_branch L_ch_k0y']+kv_wait('L_ch_k0')+['L_ch_k0y:'])
    for sd,ss in ((sKdst,sKsrc),(sVdst,sVsrc)):
        e(f's_mov_b32 m0, {s(sd)}')
        for j in range(2): e(f'buffer_load_dwordx4 {v(L16)}, {s(WS,4)}, {s(ss)} offen offset:{1024*j} sc1 lds')
    warm([l.replace(v(KVQ,4),v(STG,4)) for l in wl[8-nlate:]],1)
    p.extend(kv_addr()); e(f'buffer_load_dword {v(FLG)}, {v(T0)}, {s(WS,4)}, {s(sKvF)} offen sc1 ;stamp')
    p+=zero(QA,8)
    if OPT['rp']: e(f'v_mov_b32 {v(FLG)}, 0')
    e(f's_add_u32 {s(sKsrc)}, {s(sKsrc)}, 16384'); e(f's_add_u32 {s(sVsrc)}, {s(sVsrc)}, 16384')
    if OPT['ek'] and not OPT['solo']: e(f'buffer_load_dwordx4 {v(STG,4)}, {v(L16)}, {s(WS,4)}, {s(sKsrc)} offen sc1 ;stamp')
    e(f's_add_u32 {s(sPrst)}, {s(sPrstB)}, {2*262144}')
    if not OPT['tr'] and not OPT['solo']:
        for k in range(4):
            e(f's_and_b32 {s(sT+4)}, {s(sH)}, 1'); e(f's_xor_b32 {s(sT+4)}, {s(sT+4)}, {k}'); e(f's_lshl_b32 {s(sRo1+k)}, {s(sT+4)}, 11')
            e(f's_add_u32 {s(sT+4)}, {s(sH)}, {k}'); e(f's_and_b32 {s(sT+4)}, {s(sT+4)}, 3'); e(f's_lshl_b32 {s(sRo2+k)}, {s(sT+4)}, 10')
    e('s_waitcnt lgkmcnt(0)')
    if timing: e(f's_memrealtime {s(sTime+2,2)}'); e(f's_memtime {s(sTime+6,2)}'); e('s_waitcnt lgkmcnt(0)')
    if OPT['solo']: e('s_waitcnt vmcnt(0)'); e('s_memtime s[60:61]'); e('s_waitcnt lgkmcnt(0)'); e('s_barrier')
    if OPT['rp'] and not OPT['solo']:
        e(f's_cmp_eq_u32 {s(sW)}, 1'); e(f's_cselect_b32 {s(sKvmF)}, {s(sKvmF)}, 0x40000000')
        e('s_barrier')
        for c in range(4): e(mrd(c))
        e(f's_cmp_eq_u32 {s(sT+2)}, 0'); e('s_cbranch_scc1 L_ch_S0_re'); e('s_branch L_ch_F0_re'); e('s_waitcnt lgkmcnt(0)')
    e(f's_cmp_eq_u32 {s(sT+2)}, 0'); e('s_cbranch_scc1 L_ch_S0')
    return fix(p,'prologue')

def smf(d,a_,b): return f'{SMF} {v(d,4)}, {v(a_,4)}, {b}, {v(IDX)}'
def mrd(c): return f'ds_read_b128 {v(M+4*c,4)}, {v(L16)} offset:{L_MEM+1024*c}'
def G(*groups):
    o=[]
    for g_ in groups: o.extend(g_)
    return o

def step(mode, par, verbose=False):
    sc=' sc1' if mode=='S' else ''
    two=OPT['tr'] or OPT['solo']
    L=f'L_ch_{mode}{par}'
    p=[L+':']; e=p.append
    qk=lambda m,c,t: smf((QA if m=='q' else KA if m=='k' else VA)+4*t, M+4*c, unit((m,c),t))
    Q=lambda c,t: qk('q',c,t); K=lambda c,t: qk('k',c,t); V=lambda c,t: qk('v',c,t)
    W=lambda n: f's_waitcnt lgkmcnt({n})'
    krd=[f'ds_read_b128 {v(X+4*f,4)}, {v(L16)} offset:{L_KX+1024*f}' for f in range(8)]
    kl=[f'buffer_load_dwordx4 {v(STG+4*i,4)}, {v(L16)}, {s(WS,4)}, {s(sVsrc if i>>1 else sKsrc)} offen offset:{1024*(i&1)} sc1'+(' nt' if OPT['knt'] else '') for i in range(4)]
    kw=[f'v_add_u32 {v(T0)}, {s(sKdst)}, {v(L16)}','s_waitcnt vmcnt(3)']+[f'ds_write_b128 {v(T0)}, {v(STG+4*i,4)} offset:{1024*i}' for i in range(2)]+[f'ds_write_b128 {v(LW)}, {v(STG+8+4*i,4)} offset:{32768+1024*i}' for i in range(2)]
    def post(acc,d0,d1,bytok):
        o=[f'v_add_f32 {v(acc)}, {v(acc)}, {v(acc+1)}', f'v_add_f32 {v(acc+2)}, {v(acc+2)}, {v(acc+3)}',
           f'v_add_f32 {v(acc+4)}, {v(acc+4)}, {v(acc+5)}', f'v_add_f32 {v(acc+6)}, {v(acc+6)}, {v(acc+7)}']
        if bytok: o+=[f'v_cvt_pk_bf16_f32 {v(d0)}, {v(acc)}, {v(acc+4)}', f'v_cvt_pk_bf16_f32 {v(d1)}, {v(acc+2)}, {v(acc+6)}']
        else:     o+=[f'v_cvt_pk_bf16_f32 {v(d0)}, {v(acc)}, {v(acc+2)}', f'v_cvt_pk_bf16_f32 {v(d1)}, {v(acc+4)}, {v(acc+6)}']
        return o
    def tr(i,rt=False):
        if not OPT['tr']: return []
        return [('s_memrealtime' if rt else 's_memtime')+f' {s(52+14*par+2*i,2)} ;stamp']
    def trdump():
        if not OPT['tr']: return []
        o=[f'v_mov_b32 {v(M+4+i)}, {s(52+14*(1-par)+2*i)}' for i in range(4)]+[f'v_mov_b32 {v(M+8+i)}, {s(52+14*(1-par)+2*i)}' for i in range(4,7)]
        o+=[f's_lshl_b32 {s(sT+1)}, {s(sSpinU)}, 16', f's_add_u32 {s(sT+1)}, {s(sT+1)}, {s(sSpin)}', f'v_mov_b32 {v(M+15)}, {s(sT+1)}',
            f's_lshl_b32 {s(sT+1)}, {s(sStep)}, 5', f's_add_u32 {s(sT+1)}, {s(sT+1)}, {s(sH)}', f's_lshl_b32 {s(sT+1)}, {s(sT+1)}, 2', f's_add_u32 {s(sT+1)}, {s(sT+1)}, {s(sW)}',
            f's_lshl_b32 {s(sT+1)}, {s(sT+1)}, 5', f's_add_u32 {s(sT+1)}, {s(sT+1)}, {100<<20}', 's_mov_b64 exec, 1',
            f'buffer_store_dwordx4 {v(M+4,4)}, off, {s(WS,4)}, {s(sT+1)}', f'buffer_store_dwordx4 {v(M+12,4)}, off, {s(WS,4)}, {s(sT+1)} offset:16', 's_mov_b64 exec, -1']
        return o
    rstore=lambda j: f'buffer_store_dwordx4 {v(ONES,4)}, {v(L16)}, {s(WS,4)}, {s(sPrst)} offen offset:{j*1024}{sc}'
    pub=f'buffer_store_dwordx4 {v(KVQ,4)}, {v(L16)}, {s(WS,4)}, {s(sKvm)} offen'+(' sc1' if OPT['pub'] else '')
    rp=OPT['rp']; sp=OPT['sp']
    if not OPT['solo']: p.extend(['s_waitcnt lgkmcnt(0)' if rp else f's_waitcnt vmcnt({7+OPT["ek"]}) lgkmcnt(0)']+([f's_memtime {s(52+14*(1-par)+12,2)} ;stamp'] if OPT['tr'] else [])+['s_barrier'])
    p.append(';secS')
    for c in range(4): e(mrd(c))
    if OPT['rs']==1: e(rstore(0))
    if rp: e(pub); e(f's_add_u32 {s(sKvm)}, {s(sKvm)}, 4096')
    p.append(f'{L}_re:')
    z=zero(KA,16)
    on=[f'v_mov_b64 {v(ONES+2*i,2)}, {s(sOne,2)}' for i in range(2)]
    qp=post(QA,QA+1,QA+3,True)+[f'ds_write2_b32 {v(QW)}, {v(QA+1)}, {v(QA+3)} offset0:0 offset1:4']
    kp=post(KA,KVQ+1,KVQ+3,True)+[f'ds_write2_b32 {v(KW)}, {v(KVQ+1)}, {v(KVQ+3)} offset0:0 offset1:8']
    ek=OPT['ek'] if not OPT['solo'] else 0
    z4=f'v_mfma_f32_4x4x4_16b_bf16 {v(KA,4)}, {v(PM+2,2)}, {v(PM+2,2)}, 0'
    if OPT['z4']: g0=[[Q(2,0)],[Q(2,1),W(0)],[z4],[Q(3,0),kl[2+ek]],[Q(3,1),'s_nop 0'],[K(0,0),z[2]],[K(1,0),f's_waitcnt vmcnt({6+ek})',z[3]]]
    else: g0=[[Q(2,0),z[0]],[Q(2,1),W(0),z[1]],[Q(3,0),kl[2+ek]],[Q(3,1),z[2]],[K(0,0),z[3]],[K(1,0),f's_waitcnt vmcnt({6+ek})']]
    p.extend(G([kl[ek],W(3)],[Q(0,0)],[Q(0,1),W(2)],[Q(1,0),kl[1+ek]],[Q(1,1),W(1)],*g0,
               [K(2,0),'s_barrier'],[K(3,0),mrd(4),z[4]],
               [K(0,1),mrd(5),z[5]],[K(1,1),mrd(6),z[6]],[K(2,1),mrd(7),z[7]],[K(3,1),krd[0],W(4)]))
    p.append(';sec0')
    fld=f'buffer_load_dword {v(FLG)}, {v(T0)}, {s(WS,4)}, {s(sKvF)} offen sc1'
    p.extend(G([Q(4,0),krd[4],W(4)],[Q(5,0),krd[1],W(4)],[Q(6,0),krd[5],W(4)],[Q(7,0),'s_nop 0' if ek else kl[3]],
               [Q(4,1),krd[2],on[0]],[Q(5,1),krd[3],on[1]],[Q(6,1),krd[6],qp[0]],[Q(7,1),krd[7],qp[1]],
               [K(4,0),'s_nop 1',f'v_cmp_u_f32 vcc, {v(QA)}, {v(QA+2)}'],[K(5,0),'s_nop 0',qp[2]],[K(6,0)]+([f's_cbranch_vccnz {L}_r2',f'{L}_r2x:'] if OPT['eb'] else [])+[qp[3]],[K(7,0),'s_nop 1',qp[4]],
               [K(4,1),qp[5]],[K(5,1),qp[6]],[K(6,1),kp[0]],[K(7,1),kp[1]]))
    p.append(';sec1')
    rk=[f'ds_read_b128 {v(X+16*k,4)}, {v(L16)} offset:{L_K+1024*k}' for k in range(2)]
    rq=[f'ds_read_b128 {v(M+4*k,4)}, {v(QR)} offset:{L_Q+512*k}' for k in range(4)]
    VF=[X+4,X+20]
    rv=[f'ds_read_b128 {v(VF[t],4)}, {v(LW)} offset:{32768+1024*t}' for t in range(2)]
    SX=lambda m,ks: f'{MF32} {v(QA+4*m,4)}, {v(X+16*m+4*ks,4)}, {v(M+4*ks,4)}, '+(v(QA+4*m,4) if ks else '0')
    sm=[smf(KA,X+16*k,v(M+8*k,8)) for k in range(2)]
    zk=zero(KA,4)
    mx=PM; tt=KA+3
    c=[f'v_max3_f32 {v(mx)}, {v(QA)}, {v(QA+1)}, {v(QA+2)}', f'v_max3_f32 {v(mx)}, {v(mx)}, {v(QA+3)}, {v(QA+4)}',
       f'v_max3_f32 {v(mx)}, {v(mx)}, {v(QA+5)}, {v(QA+6)}',
       f'v_add_f32 {v(KA)}, {v(KA)}, {v(KA+1)}', f'v_add_f32 {v(KA+1)}, {v(KA+2)}, {v(KA+3)}',
       f'v_max3_f32 {v(mx)}, {v(mx)}, {v(QA+7)}, {v(KA)}', f'v_max_f32 {v(tt)}, {v(mx)}, {v(KA+1)}', f'v_max_f32 {v(mx)}, {v(mx)}, {v(KA+1)}',
       f'v_permlane32_swap_b32 {v(mx)}, {v(tt)}', f'v_max_f32 {v(T0)}, {v(mx)}, {v(tt)}', f'v_max_f32 {v(mx)}, {v(mx)}, {v(tt)}',
       f'v_permlane16_swap_b32 {v(mx)}, {v(T0)}', f'v_max_f32 {v(mx)}, {v(mx)}, {v(T0)}', f'v_mul_f32 {v(T0)}, {s(sC)}, {v(mx)}']
    kadv=0 if OPT['hotkv'] else 16384
    bk=[f's_add_u32 {s(sSlot)}, {s(sSlot)}, 8192', f's_and_b32 {s(sSlot)}, {s(sSlot)}, 0x7fff',
        f's_add_u32 {s(sMemIn0)}, {s(sSlot)}, {MEM_OFF}', f's_add_u32 {s(sMemPub)}, {s(sMemB)}, {s(sSlot)}',
        f's_xor_b32 {s(sMemRst)}, {s(sMemPub)}, 16384',
        f's_add_u32 {s(sPrst)}, {s(sPrstB)}, {s(sPslot)}',
        f's_add_u32 {s(sPslot)}, {s(sPslot)}, 262144', f's_and_b32 {s(sPslot)}, {s(sPslot)}, 0xfffff',
        f's_add_u32 {s(sPst)}, {s(sPslot)}, {PART_OFF}', f's_add_u32 {s(sPst+1)}, {s(sPslot)}, {PART_OFF+131072}',
        f's_add_u32 {s(sPin)}, {s(sPinB)}, {s(sPslot)}', f's_add_u32 {s(sPin+1)}, {s(sPin)}, 4096',
        f's_add_u32 {s(sKsrc)}, {s(sKsrc)}, {kadv}', f's_add_u32 {s(sVsrc)}, {s(sVsrc)}, {kadv}',
        f's_add_u32 {s(sMemIn1)}, {s(sMemIn0)}, 4096', f's_mov_b32 m0, {L_MEM}', f's_add_u32 {s(sStep)}, {s(sStep)}, 1']
    wo=lambda tp,k: stream_reads(('o',tp>>1,k),tp&1)
    p.extend(G(*([[V(0,0),'s_nop 1',W(0)],[V(0,1),'s_barrier','s_nop 0',kp[2]]] if OPT['bb'] else [[V(0,0),'s_nop 2'],[V(0,1),W(0),'s_barrier',kp[2]]]),[V(1,0),rq[0],kp[3]],[V(1,1),rq[1],kp[4]],
               [V(2,0),kp[5]],[V(2,1),kp[6]],[V(3,0),rq[2],zk[0]],[V(3,1),rq[3],W(3)],
               [SX(0,0),zk[1]],[SX(1,0)]+([] if OPT['eb'] else [f's_cbranch_vccnz {L}_r2',f'{L}_r2x:'])+(['s_nop 1',W(2)] if OPT['bb'] else []),[SX(0,1)]+([] if OPT['bb'] else [W(2)])+['s_barrier'],[SX(1,1),rk[0],W(1)],
               [SX(0,2),rk[1]],[SX(0,3),rv[0]],[SX(1,2),rv[1]],[SX(1,3),bk[0],bk[1]]+([] if OPT['v1'] else [W(2)]),
               *([[V(4,0),W(2),bk[2],c[0]],[sm[0],bk[3],bk[5],c[1]],[sm[1],wo(2,1)[0],c[2]],[V(5,0),wo(2,2)[0],bk[6]],[V(6,0),bk[7],bk[16],c[3],c[4]],[V(7,0),c[5],c[6],c[7]]] if OPT['v1'] else
                 [[sm[0],'s_nop 0',c[0]],[sm[1],wo(2,1)[0]],[V(4,0),bk[2],bk[3],c[1]],[V(5,0),wo(2,2)[0],c[2]],[V(6,0),bk[5],bk[6],c[3],c[4]],[V(7,0),bk[7],bk[16],c[5],c[6],c[7]]]),
               [V(4,1),wo(0,3)[0],c[8]],[V(5,1),wo(0,3)[1],c[9],c[10]],[V(6,1),wo(1,3)[0],c[11]],[V(7,1),wo(1,3)[1],c[12],c[13]]))
    if OPT['tr']: p.append(f's_memtime {s(52+14*(1-par)+10,2)} ;stamp')
    p.append(';sec2')
    vp=post(VA,KVQ,KVQ+2,False)
    xp=lambda r_: f'v_exp_f32 {v(r_)}, {v(r_)}'
    PX=KA+4; OF=M+16
    e(vp[0]); e(vp[1])
    for r_ in (KA,QA,QA+2,QA+4,QA+6):
        e(f'v_pk_fma_f32 {v(r_,2)}, {v(r_,2)}, {s(sC2,2)}, {v(T0,2)} op_sel_hi:[1,1,0] neg_lo:[0,0,1] neg_hi:[0,0,1]')
    e(f'v_mfma_f32_32x32x8_bf16 {v(M,16)}, {v(PM+2,2)}, {v(PM+2,2)}, 0'); e(bk[12])
    e(xp(KA)); e(xp(KA+1))
    p.extend([vp[2],vp[3],vp[4],vp[5]])
    e(f'v_cvt_pk_bf16_f32 {v(PM)}, {v(KA)}, {v(KA+1)}')
    e(xp(QA)); e(xp(QA+1))
    ex=[f's_cmp_eq_u32 {s(sStep)}, 64','s_cbranch_scc1 L_ch_last'] if (par==1 and OPT['solo']) else ['s_nop 1']
    p.extend(G([f'{MF16} {v(VA,4)}, {v(KVQ,2)}, {v(PM,2)}, 0',bk[13],xp(QA+2)],
               [f'{MF16} {v(VA+4,4)}, {v(KVQ+2,2)}, {v(PM,2)}, 0',bk[8],xp(QA+3)],
               [f'{MF16} {v(KA,4)}, {v(ONES,2)}, {v(PM,2)}, 0',W(6),xp(QA+4),xp(QA+5),xp(QA+6),xp(QA+7)]))
    for i in range(4): e(f'v_cvt_pk_bf16_f32 {v(PX+i)}, {v(QA+2*i)}, {v(QA+2*i+1)}')
    zo=zero(ONES,4,'-1')
    oa=[f'v_xor_b32 {v(QA+k)}, {512*k}, {v(ORD)}' for k in range(1,4)]
    p.extend(G([oa[0],oa[1]],[f'{MF32} {v(KA,4)}, {v(ONES,4)}, {v(PX,4)}, {v(KA,4)}']+ex+[oa[2]],
               [f'{MF32} {v(VA,4)}, {v(VF[0],4)}, {v(PX,4)}, {v(VA,4)}',bk[14],zo[0],zo[1]],
               [f'{MF32} {v(VA+4,4)}, {v(VF[1],4)}, {v(PX,4)}, {v(VA+4,4)}',bk[15],f'v_rcp_f32 {v(T0)}, {v(KA)}',bk[9],bk[10]]))
    pm_=[f'v_pk_mul_f32 {v(VA+2*i,2)}, {v(VA+2*i,2)}, {v(T0,2)} op_sel_hi:[1,0]' for i in range(4)]
    cv=[f'v_cvt_pk_bf16_f32 {v(OF+i)}, {v(VA+2*i)}, {v(VA+2*i+1)}' for i in range(4)]
    p.extend([pm_[0],pm_[1],cv[0],cv[1],pm_[2],pm_[3],cv[2],cv[3]])
    p.append(';sec3')
    e(f'v_cndmask_b32 {v(QA+4)}, {v(OF)}, {v(OF+2)}, {s(sOdd,2)}'); e(f'v_cndmask_b32 {v(QA+5)}, {v(OF+1)}, {v(OF+3)}, {s(sOdd,2)}')
    O=lambda tp,k: smf(M+4*tp,OF+4*k,unit(('o',tp>>1,k),tp&1))
    def oc(tp,j):
        q=M+8*(tp>>1)+(tp&1)+2*j
        return f'v_cvt_pk_bf16_f32 {v(q)}, {v(M+4*tp+2*j)}, {v(M+4*tp+2*j+1)}'
    ost=lambda u: f'buffer_store_dwordx4 {v(M+8*u,4)}, {v(PST)}, {s(WS,4)}, {s(sPst+u)} offen{sc}'
    ro=[f'ds_read_b128 {v(OF+4*k,4)}, {v(QA+k)} offset:{L_O}' for k in range(1,4)]
    p.extend(G([f'ds_write_b64 {v(OW)}, {v(QA+4,2)} offset:{L_O}'],[O(0,0),rstore(1)],[O(1,0),wo(2,1)[1]],[W(1),'s_barrier',ro[0]],[O(2,0),ro[1],bk[11]],[O(3,0),ro[2],bk[4]],
               [wo(2,2)[1],wo(2,3)[0],W(4)]))
    p.append(';sec4')
    p.extend(G([O(0,1),wo(2,3)[1],W(4)],[O(0,2),wo(3,1)[0],W(4)],[O(0,3),wo(3,1)[1],f's_cmp_lg_u32 {s(sW)}, 0'],
               [O(1,1),wo(3,2)[0],'s_nop 0'],[O(1,2),wo(3,2)[1],W(4)],[O(1,3),wo(3,3)[0],oc(0,0)],
               [O(2,1),wo(3,3)[1],oc(0,1)],[O(2,2),W(4),'s_waitcnt vmcnt(1)' if OPT['sw1'] else 's_nop 0',oc(1,0),oc(1,1)],[O(2,3),ost(0)],
               [O(3,1),W(0),'s_nop 1'],[O(3,2),'s_nop 1',oc(2,0)],[O(3,3),'s_nop 1',oc(2,1)],[oc(3,0),oc(3,1),ost(1)]))
    sr=[]
    for g_,t in ((('q',0),0),(('q',0),1),(('q',1),0),(('q',1),1)): sr+=stream_reads(g_,t)
    xs=[]
    for g_,t in ((('q',2),0),(('q',2),1),(('q',3),0),(('q',3),1)): xs+=stream_reads(g_,t)
    xz=weave(xs,zero(QA,8),[0,0,0,0,1,1,1,1])
    if verbose and par==0:
        fx=fix(p,'main',True); print('model cycles',simulate(fx,OPT['show']), 'inserted waits', len([l for l in fx if l.startswith('s_waitcnt')])-len([l for l in p if l.startswith('s_waitcnt')]))
    if OPT['solo']:
        marks=[i for i,l in enumerate(p) if l.startswith(';sec')]
        if OPT['cutm']>=0:
            marks=[i+1 for i,l in enumerate(p) if l.startswith(('v_mfma','v_smfmac'))]; OPT['cut']=OPT['cutm']
        if OPT['cut']<len(marks):
            rest=p[marks[OPT['cut']]:]
            p[:]=p[:marks[OPT['cut']]]+['s_memtime s[62:63] ;stamp']+[l for l in rest if (l.startswith(('s_add','s_and','s_cmp','s_cbranch_scc')) or l.endswith(':'))]
        d=OPT['drop']
        if d&1: p[:]=[l for l in p if not l.startswith('buffer_store')]
        if d&2: p[:]=[l for l in p if not l.startswith('buffer_load')]
        if OPT['cut']>=len(marks): p.append('s_memtime s[62:63] ;stamp')
        p.extend(['s_waitcnt vmcnt(0)']+kw+kv_addr()+sr+xz)
        if d&4: p[:]=['s_nop 1' if (l.startswith('ds_read') and f' {v(LW)} ' in l) else l for l in p]
        if d&8: p[:]=['s_nop 1' if l.startswith('ds_read') else l for l in p]
        if d&16: p[:]=['s_nop 3' if l.startswith(('v_smfmac','v_mfma')) else l for l in p]
        if d&32: p[:]=['s_nop 0' if (l.startswith('v_') and not l.startswith(('v_smfmac','v_mfma'))) else l for l in p]
        if d&64: p[:]=['s_nop 3' if l.startswith('v_mfma') else l for l in p]
        p.extend(['s_waitcnt lgkmcnt(0) vmcnt(0)','s_sub_u32 s62, s62, s60', f's_add_u32 {s(sSpin)}, {s(sSpin)}, s62', 's_barrier', 's_sleep 12', 's_memtime s[60:61] ;stamp', 's_waitcnt lgkmcnt(0)', 's_barrier'])
        if par==1: p.append(f's_branch L_ch_{mode}0')
        return fix(p,f'solo{par}'), [f'{L}_r2:',f's_branch {L}_r2x']
    kc=lambda x: kv_check(L+x) if OPT['sync'] else []
    if rp: return window_rp(locals())
    p.extend(tr(0)+tr(1,True))
    e(f's_cbranch_scc1 {L}_w')
    head=list(p)
    p.extend(trdump())
    e(f'ds_read_b128 {v(QA+4,4)}, {v(L16)} offset:{L_SEL}')
    e(f'v_mov_b32 {v(M+2)}, {s(sStep)}')
    if OPT['de']:
        e(f's_cmp_lt_u32 {s(sH)}, 16'); e(f's_cbranch_scc1 {L}_e'); p.extend(['s_nop 3']*OPT['de']); p.append(f'{L}_e:')
    for i in range(OPT['d1']-OPT['de']-(1 if OPT['de'] else 0)-(8 if OPT['tr'] else 0)): e('s_nop 3')
    p.extend(tr(2))
    ld1=[f'buffer_load_dwordx4 {v(X+4*j,4)}, {v(L16)}, {s(WS,4)}, {s(sPin+(j>>2))} offen offset:{(j&3)*1024} sc1' for j in range(8)]
    if OPT['ro1']:
        p[-1:-1]=[f's_add_u32 {s(sT+4+k)}, {s(sPin)}, {s(sRo1+k)}' for k in range(4)]; p.pop()
        ld1=[f'buffer_load_dwordx4 {v(X+4*j,4)}, {v(L16)}, {s(WS,4)}, {s(sT+4+(j>>1))} offen offset:{(j&1)*1024} sc1' for j in range(8)]
    fst=[f's_mov_b64 exec, {s(sEx,2)}', f'buffer_store_dword {v(M+2)}, {v(L16)}, {s(WS,4)}, {s(sFlag)} offen{sc}', 's_mov_b64 exec, -1']
    p.extend(ld1); p.extend(sr+zero(QA,4)); e(W(8))
    p.append(f'{L}_p1:')
    RM=lambda j: smf(QA,QA+4,v(X+8*j,8))
    fin=[f'v_cvt_pk_bf16_f32 {v(M)}, {v(QA)}, {v(QA+2)}', f'v_cvt_pk_bf16_f32 {v(M+1)}, {v(QA+1)}, {v(QA+3)}']
    mpub=f'buffer_store_dwordx2 {v(M,2)}, {v(MPUB)}, {s(WS,4)}, {s(sMemPub)} offen{sc}'
    chk=f'v_cmp_u_f32 vcc, {v(QA)}, {v(QA+1)}'
    p.extend(['s_waitcnt vmcnt(6)',f'v_cmp_u_f32 vcc, {v(X)}, {v(X+4)}',RM(0),
              fst[0], f's_cbranch_vccnz {L}_r0']+fst[1:]+(['s_barrier'] if OPT['b0'] else [])+tr(3)+[f'{L}_p2:'])
    for j in range(1,4):
        e(f's_waitcnt vmcnt({7-2*j})'); e(RM(j))
    p.extend(fin+[mpub,chk])
    p.extend(tr(4))
    e(f's_cbranch_vccnz {L}_r1')
    p.append(f'{L}_p1ok:')
    p.extend([kw[0]]+kw[2:]+xz)
    nxt=f'L_ch_{mode}{1-par if two else 0}'
    tailc=['s_barrier']+([kl[0]] if ek else [])+[pub, rstore(0)]
    tail2=[f's_add_u32 {s(sKvm)}, {s(sKvm)}, 4096', f's_cmp_lg_u32 {s(sStep)}, 63', f's_cbranch_scc1 {nxt}', 's_branch L_ch_fin']
    p.append(f'{L}_b1:')
    p.extend(tailc+tail2)
    body=fix(p,f'step{mode}{par}',verbose)
    ld2=[f'buffer_load_dwordx4 {v(H2A)}, {s(WS,4)}, {s(sMemIn0)} offen offset:{1024*j} sc1 lds' for j in range(4)]
    ld2+=[f's_mov_b32 m0, {L_MEM+4096}','s_nop 0']+[f'buffer_load_dwordx4 {v(H2A)}, {s(WS,4)}, {s(sMemIn1)} offen offset:{1024*j} sc1 lds' for j in range(4)]
    ld2r=ld2
    if OPT['ro2']:
        ld2r=[]
        for j in range(8):
            ld2r+=[f's_add_u32 m0, {s(sRo2+(j&3))}, {L_MEM+4096*(j>>2)}', f's_add_u32 {s(sT+4)}, {s(sRo2+(j&3))}, {s(sMemIn1 if j>>2 else sMemIn0)}',
                   f'buffer_load_dwordx4 {v(H2A)}, {s(WS,4)}, {s(sT+4)} offen sc1 lds']
    q=[f'{L}_w:']+kw+[f's_cmp_lg_u32 {s(sW)}, 3', f's_cbranch_scc1 {L}_w3', f'buffer_store_dwordx2 {v(ONES,2)}, {v(MPUB)}, {s(WS,4)}, {s(sMemRst)} offen{sc}', f'{L}_w3:']+trdump()+sr+([] if OPT['xl'] else xz); e=q.append
    e(f's_cmp_eq_u32 {s(sW)}, 1'); e(f's_cbranch_scc1 {L}_fb')
    if OPT['b0']: e('s_barrier')
    if OPT['xl']: q.extend(xz)
    if OPT['sync']:
        e(f's_cmp_lg_u32 {s(sW)}, 2'); e(f's_cbranch_scc1 {L}_b1')
        q.extend(kc('_kb')+tailc+[fld]+tail2)
    else: e(f's_branch {L}_b1')
    q.append(f'{L}_fb:')
    if OPT['xl']: q.extend(xz)
    e(f'v_lshrrev_b32 {v(T0)}, 2, {v(L16)}'); e(f'v_and_b32 {v(T0)}, 0x7c, {v(T0)}')
    if OPT['b0']: e('s_barrier')
    for i in range(max(0,OPT['sl']-(7 if OPT['tr'] and not OPT['b0'] else 0))): e('s_nop 3')
    q.extend(tr(2))
    if OPT['ro2']: q.extend(ld2r[:2]); ld2r=ld2r[2:]
    N=OPT['nb']
    fl=f'buffer_load_dword {v(PM)}, {v(T0)}, {s(WS,4)}, {s(sFlagB)} offen sc1'
    for i in range(N-1): e(fl); e(f's_nop {7+OPT["pp"]}')
    q.append(f'{L}_fb2:')
    for i in range(8):
        e(fl)
        if OPT['pp']: e(f's_nop {OPT["pp"]-1}')
        e(f's_waitcnt vmcnt({N-1})'); e(f'v_cmp_gt_u32 vcc, {s(sStep)}, {v(PM)}'); e(f's_cbranch_vccz {L}_fb3')
    e(f's_add_u32 {s(sSpinF)}, {s(sSpinF)}, 1'); e(f's_cmp_gt_u32 {s(sSpinF)}, {LIM}'); e(f's_cbranch_scc0 {L}_fb2')
    q.append(f'{L}_fb3:')
    q.extend(tr(3)); q.extend(ld2r); q.extend(tr(4))
    q.extend(tailc+[f's_sub_u32 {s(sT+3)}, {s(sStep)}, 1', f'v_mov_b32 {v(FLG)}, {s(sT+3)}', 's_mov_b64 exec, 1',
        f'buffer_store_dword {v(FLG)}, off, {s(WS,4)}, {s(sKvmF)} sc1', 's_mov_b64 exec, -1']+tail2)
    i=q.index(f'{L}_fb:')
    alt=fix(head+q[:i],f'alt{mode}{par}',False)
    q=alt[alt.index(f'{L}_w:'):]+q[i:]
    e=q.append
    if OPT['sync']: q.extend(kv_wait(L+'_kb'))
    for nm,inc in (('r0',1),('r1',256)):
        q.append(f'{L}_{nm}:')
        if nm=='r0': e('s_mov_b64 exec, -1')
        else: q.extend([f'v_add_u32 {v(M+2)}, -1, {v(M+2)}']+fst+[f'v_add_u32 {v(M+2)}, 1, {v(M+2)}'])
        e(f's_add_u32 {s(sSpin)}, {s(sSpin)}, {inc-1}')
        q.append(f'{L}_{nm}l:')
        q.extend(ld1); e(f's_add_u32 {s(sSpin)}, {s(sSpin)}, 1'); e(f's_cmp_gt_u32 {s(sSpin)}, {LIM}'); e(f's_cbranch_scc1 {L}_{nm}g')
        q.extend(['s_waitcnt vmcnt(6)',f'v_cmp_u_f32 vcc, {v(X)}, {v(X+4)}',f's_cbranch_vccnz {L}_{nm}l', f'{L}_{nm}g:'])
        q.extend(zero(QA,4)+['s_nop 0'])
        for j in range(4): e(f's_waitcnt vmcnt({6-2*j})'); e(RM(j))
        q.extend(['s_nop 7', chk]+fin+[f's_cbranch_scc1 {L}_{nm}e', f's_cbranch_vccnz {L}_{nm}l', f'{L}_{nm}e:', mpub]+fst+(['s_barrier'] if OPT['b0'] and nm=='r0' else [])+tr(3)+tr(4)+[f's_branch {L}_p1ok'])
    q.append(f'{L}_r2:')
    e(f's_add_u32 {s(sSpinU)}, {s(sSpinU)}, 1'); e(f's_cmp_gt_u32 {s(sSpinU)}, {LIM}'); e(f's_cbranch_scc1 {L}_r2x')
    e(f's_cmp_eq_u32 {s(sStep)}, 0'); e(f's_cbranch_scc1 {L}_r2x')
    e(f's_mov_b32 m0, {L_MEM}'); e(f's_cmp_lg_u32 {s(sW)}, 1')
    e('s_waitcnt lgkmcnt(0)'); e('s_barrier'); e(f's_cbranch_scc1 {L}_r2b')
    q.extend(ld2); q.append(f'{L}_r2b:'); e('s_nop 7'); q.extend(zero(ONES,4,'-1')); q.extend(sr); q.extend(xs); q.extend(zero(QA,8))
    e('s_waitcnt vmcnt(0) lgkmcnt(0)'); e('s_barrier')
    for c_ in range(4): e(mrd(c_))
    e(f's_branch {L}_re')
    return body, q

def window_rp(d):
    L,p,sc,mode,par,two,tr,trdump,kw,kc,sr,xs,xz,W,rstore,sp,verbose=[d[k] for k in 'L p sc mode par two tr trdump kw kc sr xs xz W rstore sp verbose'.split()]
    e=p.append
    p.extend(tr(0)+tr(1,True))
    e(f's_cbranch_scc1 {L}_w')
    head=list(p)
    p.extend(kw+kc('_ka'))
    e(f'ds_read_b128 {v(QA+4,4)}, {v(L16)} offset:{L_SEL}')
    p.extend(sr+trdump())
    for i in range(OPT['d1']-(8 if OPT['tr'] else 0)): e('s_nop 3')
    p.extend(tr(2))
    ld1=[f'buffer_load_dwordx4 {v(X+4*j,4)}, {v(L16)}, {s(WS,4)}, {s(sPin+(j>>2))} offen offset:{(j&3)*1024} sc1' for j in range(8)]
    pre=h2_addr(T0,PM)+[f's_add_u32 {s(sT+4)}, {s(sMemIn0)}, {s(sWoff)}', f's_add_u32 {s(sT+5)}, {s(sMemIn1)}, {s(sWoff)}', f's_add_u32 m0, {s(sWoff)}, {L_MEM+4096}',
         f'v_add_u32 {v(PM)}, {s(sWoff)}, {v(L16)}', f's_sub_u32 {s(sT+3)}, {s(sStep)}, 1', f'v_mov_b32 {v(FLG)}, {s(sT+3)}']
    p.extend(ld1); p.extend(pre); e(W(0))
    p.append(f'{L}_p1:')
    RM=lambda j: f'{MF32} {v(QA,4)}, {v(QA+4,4)}, {v(X+4*j,4)}, '+(v(QA,4) if j else '0')
    p.extend(['s_waitcnt vmcnt(7)',RM(0),'s_waitcnt vmcnt(6)',f'v_cmp_u_f32 vcc, {v(X)}, {v(X+4)}',RM(1),'s_waitcnt vmcnt(5)',RM(2),f's_cbranch_vccnz {L}_r0', f'{L}_r0x:']+tr(3))
    for j in range(3,8):
        e(f's_waitcnt vmcnt({7-j})'); e(RM(j))
    e(f'v_cvt_pk_bf16_f32 {v(M)}, {v(QA)}, {v(QA+1)}')
    e(f'v_cvt_pk_bf16_f32 {v(M+1)}, {v(QA+2)}, {v(QA+3)}')
    e(f'buffer_store_dwordx2 {v(M,2)}, {v(MPUB)}, {s(WS,4)}, {s(sMemPub)} offen{sc}')
    e(f'v_cmp_u_f32 vcc, {v(QA)}, {v(QA)}')
    p.extend(tr(4))
    e(f's_cbranch_vccnz {L}_r1')
    p.append(f'{L}_p1ok:')
    p.extend(xz)
    for i in range(OPT['dp']): e('s_nop 3')
    p.append(f'{L}_b1:')
    body=fix(p,f'step{mode}{par}',verbose)
    e=body.append
    e('s_barrier')
    N=OPT['np']
    pl=f'buffer_load_dwordx4 {v(STG,4)}, {v(T0)}, {s(WS,4)}, {s(sT+4)} offen sc1'
    dm=f'buffer_load_dwordx4 {v(T0)}, {s(WS,4)}, {s(sT+5)} offen sc1 lds'
    def nops(k):
        o=[]
        while k>0: o.append(f's_nop {min(k,16)-1}'); k-=16
        return o
    for i in range(N-1): e(pl); body.extend(nops(OPT['ps']))
    e(pl); e(f's_waitcnt vmcnt({N-1})'); e(f'v_cmp_u_f32 vcc, {v(STG)}, {v(STG+2)}'); e(f's_cbranch_vccnz {L}_pl')
    body.append(f'{L}_plx:')
    e(f'ds_write_b128 {v(PM)}, {v(STG,4)} offset:{L_MEM}'); e(dm); body.extend(tr(6))
    if sp==0: e(rstore(0))
    body.extend(kv_addr()); e(f's_branch L_ch_{mode}{1-par if two else 0}')
    q=[f'{L}_w:',f's_sleep {OPT["sw"]}']+kw; e=q.append
    e(f's_cmp_lg_u32 {s(sW)}, 3'); e(f's_cbranch_scc1 {L}_w3')
    e(f'buffer_store_dwordx2 {v(ONES,2)}, {v(MPUB)}, {s(WS,4)}, {s(sMemRst)} offen{sc}')
    q.extend([f'{L}_w3:']+kc('_kb')+trdump()+sr+xz+pre)
    e(f's_branch {L}_b1')
    alt=fix(head+q,f'alt{mode}{par}',False)
    q=alt[alt.index(f'{L}_w:'):]; e=q.append
    q.append(f'{L}_pl:')
    for i in range(4):
        e(pl); e(f's_waitcnt vmcnt({N-1})'); e(f'v_cmp_u_f32 vcc, {v(STG)}, {v(STG+2)}'); e(f's_cbranch_vccz {L}_plx')
    e(f's_add_u32 {s(sSpinF)}, {s(sSpinF)}, 1'); e(f's_cmp_gt_u32 {s(sSpinF)}, {LIM}'); e(f's_cbranch_scc0 {L}_pl'); e(f's_branch {L}_plx')
    if OPT['sync']: q.extend(kv_wait(L+'_ka')+kv_wait(L+'_kb'))
    q.append(f'{L}_r0:')
    e(f's_add_u32 {s(sSpin)}, {s(sSpin)}, 1'); e(f's_cmp_gt_u32 {s(sSpin)}, {LIM}'); e(f's_cbranch_scc1 {L}_r0x')
    q.extend(ld1); e(f's_branch {L}_p1')
    q.append(f'{L}_r1:')
    e(f's_add_u32 {s(sSpin)}, {s(sSpin)}, 256'); e(f's_cmp_gt_u32 {s(sSpin)}, {LIM}'); e(f's_cbranch_scc1 {L}_p1ok')
    q.extend(ld1); e(f's_branch {L}_p1')
    q.append(f'{L}_r2:')
    e(f's_add_u32 {s(sSpinU)}, {s(sSpinU)}, 1'); e(f's_cmp_gt_u32 {s(sSpinU)}, {LIM}'); e(f's_cbranch_scc1 {L}_r2x')
    e(f's_cmp_eq_u32 {s(sStep)}, 0'); e(f's_cbranch_scc1 {L}_r2x')
    e('s_waitcnt vmcnt(0) lgkmcnt(0)'); e('s_barrier')
    q.extend(pre); e(dm); e(f's_add_u32 m0, {s(sWoff)}, {L_MEM}'); e('s_nop 0'); e(dm.replace(s(sT+5),s(sT+4)))
    q.extend(kv_addr()+zero(ONES,4,'-1')); q.extend(sr); q.extend(xs); q.extend(zero(QA,8))
    e('s_waitcnt vmcnt(0) lgkmcnt(0)'); e('s_barrier')
    for c_ in range(4): e(mrd(c_))
    e(f's_branch {L}_re')
    return body, q

def chain_body(timing=False, verbose=False):
    A=Asm()
    pro=prologue(timing)
    F0,f0=step('F',0,verbose); F1,f1=step('F',1); S0,s0=step('S',0); S1,s1=step('S',1)
    if not OPT['rp']: check(pro+F0+F0,'chainF')
    for x in ((pro,F0,F1,f0,f1,S0,S1,s0,s1) if (OPT['tr'] or OPT['solo']) else (pro,F0,f0,S0,s0)): A.extend(x)
    f=['L_ch_fin:']+zero(KA,16)+[f's_waitcnt vmcnt({3+OPT["ek"]}) lgkmcnt(0)','s_barrier','L_ch_fin2:']+[mrd(c) for c in range(8)]
    f[1:1]=['s_waitcnt lgkmcnt(0)']
    for c in range(8):
        for m_,acc in (('k',KA),('v',VA)):
            for t in range(2): f.append(smf(acc+4*t,M+4*c,unit((m_,c),t)))
    f+=[f'v_add_f32 {v(KA+2*i)}, {v(KA+2*i)}, {v(KA+2*i+1)}' for i in range(8)]
    f+=[f'v_cmp_u_f32 vcc, {v(KA)}, {v(KA+2)}', f'v_cvt_pk_bf16_f32 {v(KVQ+1)}, {v(KA)}, {v(KA+4)}', f'v_cvt_pk_bf16_f32 {v(KVQ+3)}, {v(KA+2)}, {v(KA+6)}',
        f'v_cvt_pk_bf16_f32 {v(KVQ)}, {v(VA)}, {v(VA+2)}', f'v_cvt_pk_bf16_f32 {v(KVQ+2)}, {v(VA+4)}, {v(VA+6)}', 's_cbranch_vccz L_ch_last',
        f's_add_u32 {s(sSpinU)}, {s(sSpinU)}, 1', f's_cmp_gt_u32 {s(sSpinU)}, {LIM}', 's_cbranch_scc1 L_ch_last',
        f's_mov_b32 m0, {L_MEM}', f's_cmp_lg_u32 {s(sW)}, 1', 's_barrier', 's_cbranch_scc1 L_ch_fin3']
    f+=[f'buffer_load_dwordx4 {v(H2A)}, {s(WS,4)}, {s(sMemIn0)} offen offset:{1024*j} sc1 lds' for j in range(4)]
    f+=[f's_mov_b32 m0, {L_MEM+4096}','s_nop 0']+[f'buffer_load_dwordx4 {v(H2A)}, {s(WS,4)}, {s(sMemIn1)} offen offset:{1024*j} sc1 lds' for j in range(4)]
    f+=['L_ch_fin3:']+zero(KA,16)+['s_waitcnt vmcnt(0)','s_barrier','s_branch L_ch_fin2']
    A.extend(fix(f,'fin'))
    A.label('L_ch_last')
    A(f'buffer_store_dwordx4 {v(KVQ,4)}, {v(L16)}, {s(WS,4)}, {s(sKvm)} offen sc1')
    if timing:
        A(f'''s_waitcnt vmcnt(0)
        s_lshl_b32 {s(sSpinU)}, {s(sSpinU)}, 16
        s_add_u32 {s(sSpin)}, {s(sSpin)}, {s(sSpinU)}
        s_memrealtime {s(sTime+4,2)}
        s_memtime {s(sTime+8,2)}
        s_waitcnt lgkmcnt(0)
        s_sub_u32 {s(sT)}, {s(sTime+2)}, {s(sTime)}
        s_sub_u32 {s(sT+1)}, {s(sTime+4)}, {s(sTime+2)}
        s_sub_u32 {s(sT+2)}, {s(sTime+8)}, {s(sTime+6)}
        v_mov_b32 v4, {s(sT)}
        v_mov_b32 v5, {s(sT+1)}
        v_mov_b32 v6, {s(sT+2)}
        v_mov_b32 v7, {s(sSpin)}
        s_lshl_b32 {s(sT)}, {s(sH)}, 2
        s_add_u32 {s(sT)}, {s(sT)}, {s(sW)}
        s_lshl_b32 {s(sT)}, {s(sT)}, 5
        s_add_u32 {s(sT)}, {s(sT)}, 16384
        v_mov_b32 v0, {s(sT)}
        s_sub_u32 s80, s80, {s(sTime)}
        s_sub_u32 s82, s82, {s(sTime)}
        s_sub_u32 s84, s84, {s(sTime)}
        s_sub_u32 s86, s86, {s(sTime)}
        v_mov_b32 v8, s80
        v_mov_b32 v9, s82
        v_mov_b32 v10, s84
        v_mov_b32 v11, s86
        s_mov_b64 exec, 1
        global_store_dwordx4 v0, v[8:11], {s(DBG,2)} offset:16
        global_store_dwordx4 v0, v[4:7], {s(DBG,2)}''')
    return A

def kernel_text(name, body):
    return f'''.globl {name}
.p2align 8
.type {name},@function
{name}:
{body.text()}    s_endpgm
'''
def kernel_desc(name, vgpr=512, accum=256, sgpr=102):
    return f'''.p2align 6
.amdhsa_kernel {name}
  .amdhsa_next_free_vgpr {vgpr}
  .amdhsa_next_free_sgpr {sgpr}
  .amdhsa_accum_offset {accum}
  .amdhsa_group_segment_fixed_size 0
  .amdhsa_kernarg_size 120
  .amdhsa_user_sgpr_count 2
  .amdhsa_user_sgpr_kernarg_segment_ptr 1
  .amdhsa_system_sgpr_workgroup_id_x 1
  .amdhsa_float_denorm_mode_32 3
.end_amdhsa_kernel
'''

if __name__=='__main__':
    import sys
    for x in sys.argv:
        if '=' in x: OPT[x.split('=')[0]]=int(x.split('=')[1])
    A=Asm()
    if 'spread' in sys.argv:
        A(f's_cmp_ge_u32 s2, 32\ns_cbranch_scc1 L_exit\ns_mov_b32 {s(sH)}, s2')
    else:
        A(f's_cmp_ge_u32 s2, 256\ns_cbranch_scc1 L_exit\ns_and_b32 s3, s2, 7\ns_cmp_lg_u32 s3, 0\ns_cbranch_scc1 L_exit\ns_lshr_b32 {s(sH)}, s2, 3')
    A.extend(chain_body(timing=True, verbose=True))
    A.label('L_exit')
    txt='; @launch kernel=chain_kernel grid=(256,1,1) block=(256,1,1) lds=163840\n.amdgcn_target "amdgcn-amd-amdhsa--gfx950"\n.text\n'
    txt+=kernel_text('chain_kernel',A)+'.section .rodata,"a"\n'+kernel_desc('chain_kernel')
    open(sys.argv[1],'w').write(txt)
```

```python
from asmlib import *
from layout import *
import math, struct
MF32='v_mfma_f32_16x16x32_bf16'; MF16='v_mfma_f32_16x16x16_bf16'; SMF='v_smfmac_f32_16x16x64_bf16'
f2u=lambda x: struct.unpack('<I',struct.pack('<f',x))[0]
WS=4; SRD=8; DBG=12; sB=14; sW=15; sMask=16; sSpin=17
sP=52
PX,PWQ,PWK,PWV,PWO,PW1,PW2,PC,PWM,POUT=[sP+2*i for i in (0,2,3,4,5,8,9,10,11,12)]
sT=40
sHd=21; sR=22; sZ=39
LN=0; N=1; Gv=2; L16=3
LIM='0x400000'
OPT=dict(d2=2, pf2=0, pf1=0, d1p=7, alt=0, hb=20, nl=4, dl=0, lp=8, pn=2, rd=4, ks=0, pf3=2)
STAMP=lambda slot,who: []
def common():
    return [f's_load_dwordx16 {s(sP,16)}, s[0:1], 0', f's_load_dwordx8 {s(sP+16,8)}, s[0:1], 64', f's_load_dwordx2 {s(sP+24,2)}, s[0:1], 96',
        f's_load_dwordx2 {s(DBG,2)}, s[0:1], 104', f's_load_dwordx2 {s(WS,2)}, s[0:1], 112',
        'v_lshrrev_b32 v1, 6, v0', f'v_and_b32 {v(LN)}, 63, v0', f'v_readfirstlane_b32 {s(sW)}, v1',
        f's_mov_b32 {s(WS+2)}, {WS_BYTES}', f's_mov_b32 {s(WS+3)}, 0x20000', f's_mov_b32 {s(SRD+3)}, 0x20000',
        f's_mov_b32 {s(sMask)}, 0xffff0000', f's_mov_b32 {s(sSpin)}, 0',
        f'v_and_b32 {v(N)}, 15, {v(LN)}', f'v_lshrrev_b32 {v(Gv)}, 4, {v(LN)}', f'v_lshlrev_b32 {v(L16)}, 4, {v(LN)}', 's_waitcnt lgkmcnt(0)']
NR=2; NG=5
def roles():
    return [f's_lshr_b32 {s(sHd)}, {s(sB)}, 1', f's_and_b32 {s(sR)}, {s(sB)}, 1', f's_sub_u32 {s(sZ)}, {s(sB)}, 64']
def srd(p,size): return [f's_mov_b32 {s(SRD)}, {s(p)}', f's_mov_b32 {s(SRD+1)}, {s(p+1)}', f's_mov_b32 {s(SRD+2)}, {size}']
def rnd(a,b,t): return [f'v_cvt_pk_bf16_f32 {v(t)}, {v(a)}, {v(b)}', f'v_lshlrev_b32 {v(a)}, 16, {v(t)}', f'v_and_b32 {v(b)}, {s(sMask)}, {v(t)}']
def unp(d,src): return [f'v_and_b32 {v(d+1)}, {s(sMask)}, {v(src)}', f'v_lshlrev_b32 {v(d)}, 16, {v(src)}']
def xg(op,a,t):
    return [f'v_mov_b32 {v(t)}, {v(a)}', f'v_permlane32_swap_b32 {v(a)}, {v(t)}', f'{op} {v(a)}, {v(a)}, {v(t)}',
            f'v_mov_b32 {v(t)}, {v(a)}', f'v_permlane16_swap_b32 {v(a)}, {v(t)}', f'{op} {v(a)}, {v(a)}, {v(t)}']
def xrow(a):
    return [f'v_add_f32_dpp {v(a)}, {v(a)}, {v(a)} row_ror:{k} row_mask:0xf bank_mask:0xf' for k in (1,2,4,8)]
_u=[0]
def poll(addr_v, soff, cmp_s, r, off=0, sleep=0):
    _u[0]+=1; k=_u[0]
    return [f'L_po{k}:', f'buffer_load_dword {v(r)}, {v(addr_v)}, {s(WS,4)}, {soff} offen offset:{off} sc1', f's_add_u32 {s(sSpin)}, {s(sSpin)}, 1',
            f's_cmp_gt_u32 {s(sSpin)}, {LIM}', f's_cbranch_scc1 L_pe{k}', 's_waitcnt vmcnt(0)', f'v_cmp_gt_u32 vcc, {cmp_s}, {v(r)}']+(
            [f's_cbranch_vccz L_pe{k}', f's_sleep {sleep}', f's_branch L_po{k}'] if sleep else [f's_cbranch_vccnz L_po{k}'])+[f'L_pe{k}:', 's_waitcnt vmcnt(0)']

def pollp(addr_v, soff, cmp_s, r, N=4):
    _u[0]+=1; k=_u[0]
    ld=f'buffer_load_dword {v(r)}, {v(addr_v)}, {s(WS,4)}, {soff} offen sc1 ;stamp'
    o=[]
    for i in range(N-1): o+=[ld,'s_nop 11']
    o+=[f'L_po{k}:', ld, f's_add_u32 {s(sSpin)}, {s(sSpin)}, 1', f's_cmp_gt_u32 {s(sSpin)}, {LIM}', f's_cbranch_scc1 L_pe{k}', f's_waitcnt vmcnt({N-1}) ;stamp',
        f'v_cmp_gt_u32 vcc, {cmp_s}, {v(r)}', f's_cbranch_vccnz L_po{k}', f'L_pe{k}:']
    return o

def mod_phase(sync):
    p=[]; e=p.append
    W_=16; C_=48; AC=56; A0=4; A1=5; T=6
    p.append('L_mod_top:')
    e(f'v_lshrrev_b32 {v(A0)}, 2, {v(LN)}'); e(f's_lshl_b32 {s(sT)}, {s(sW)}, 4'); e(f'v_add_u32 {v(A0)}, {s(sT)}, {v(A0)}')
    e(f'v_lshlrev_b32 {v(A1)}, 1, {v(A0)}')
    e(f'v_mul_u32_u24 {v(A0)}, 6144, {v(A0)}'); e(f'v_and_b32 {v(T)}, 3, {v(LN)}'); e(f'v_lshl_add_u32 {v(A0)}, {v(T)}, 4, {v(A0)}')
    p+=srd(PWM,512*6144)
    for i in range(8): e(f'global_load_ushort {v(C_+i)}, {v(A1)}, {s(PC,2)} offset:{128*i}')
    e(f's_lshl_b32 {s(sT)}, {s(sZ)}, 6')
    for i in range(8):
        e(f'buffer_load_dwordx4 {v(W_+4*i,4)}, {v(A0)}, {s(SRD,4)}, {s(sT)} offen'); e(f's_add_u32 {s(sT)}, {s(sT)}, {64*6144}')
    for i in range(8): e(f'v_lshlrev_b32 {v(C_+i)}, 16, {v(C_+i)}')
    for i in range(8): e(f'v_mul_f32 {v(AC+i)}, {hex(f2u(-math.log2(math.e)))}, {v(C_+i)}')
    for i in range(8): e(f'v_exp_f32 {v(AC+i)}, {v(AC+i)}')
    for i in range(8): e(f'v_add_f32 {v(AC+i)}, 1.0, {v(AC+i)}')
    for i in range(8): e(f'v_rcp_f32 {v(AC+i)}, {v(AC+i)}')
    for i in range(8): e(f'v_mul_f32 {v(C_+i)}, {v(C_+i)}, {v(AC+i)}')
    for i in range(0,8,2): p+=rnd(C_+i,C_+i+1,T)
    for i in range(8):
        for d in range(4):
            p+=unp(8,W_+4*i+d)
            for k in range(2):
                e(f'v_mul_f32 {v(AC+2*d+k)}, {v(C_+i)}, {v(8+k)}' if i==0 else f'v_fmac_f32 {v(AC+2*d+k)}, {v(C_+i)}, {v(8+k)}')
    for k in (4,8):
        for i in range(8): e(f'v_add_f32_dpp {v(AC+i)}, {v(AC+i)}, {v(AC+i)} row_ror:{k} row_mask:0xf bank_mask:0xf')
    e(f's_lshl_b32 {s(sT)}, {s(sW)}, 9'); e(f'v_and_b32 {v(T)}, 3, {v(LN)}'); e(f'v_lshlrev_b32 {v(T)}, 5, {v(T)}')
    e(f'v_lshl_add_u32 {v(T)}, {v(Gv)}, 7, {v(T)}'); e(f'v_add_u32 {v(T)}, {s(sT)}, {v(T)}')
    e(f'ds_write_b128 {v(T)}, {v(AC,4)}'); e(f'ds_write_b128 {v(T)}, {v(AC+4,4)} offset:16')
    e('s_waitcnt lgkmcnt(0)'); e('s_barrier')
    e(f's_cmp_lg_u32 {s(sW)}, 0'); e('s_cbranch_scc1 L_mod_end')
    e(f'v_and_b32 {v(A0)}, 31, {v(LN)}'); e(f'v_lshrrev_b32 {v(A1)}, 5, {v(LN)}'); e(f'v_lshlrev_b32 {v(T)}, 2, {v(A0)}'); e(f'v_lshl_add_u32 {v(T)}, {v(A1)}, 10, {v(T)}')
    for i in range(8): e(f'ds_read_b32 {v(AC+i)}, {v(T)} offset:{128*i}')
    for i in range(1,8): e(f'v_add_f32 {v(AC)}, {v(AC)}, {v(AC+i)}')
    e(f'v_mov_b32 {v(T)}, {v(AC)}'); e(f'v_permlane32_swap_b32 {v(AC)}, {v(T)}'); e(f'v_add_f32 {v(AC)}, {v(AC)}, {v(T)}')
    e(f'v_cvt_pk_bf16_f32 {v(AC)}, {v(AC)}, {v(AC)}')
    e(f'v_lshlrev_b32 {v(A0)}, 1, {v(A0)}'); e(f's_lshl_b32 {s(sT)}, {s(sZ)}, 6'); e(f's_add_u32 {s(sT)}, {s(sT)}, {MOD_OFF}')
    e(f'buffer_store_short {v(AC)}, {v(A0)}, {s(WS,4)}, {s(sT)} offen sc1')
    if sync:
        e('s_waitcnt vmcnt(0)')
        e(f's_cmp_lt_u32 {s(sZ)}, 32'); e(f's_cselect_b32 {s(sT)}, 0, 4')
        e(f'v_mov_b32 {v(A0)}, {s(sT)}'); e(f'v_mov_b32 {v(A1)}, 1'); e('s_mov_b64 exec, 1')
        e(f'global_atomic_add {v(A0)}, {v(A1)}, {s(DBG,2)} offset:128'); e('s_mov_b64 exec, -1')
    p.append('L_mod_end:')
    e('s_barrier')
    if STAMP(0,0):
        e(f's_cmp_ge_u32 {s(sZ)}, 32'); e('s_cbranch_scc1 L_mod_ns'); p+=STAMP(1,64); p.append('L_mod_ns:')
    if OPT['pf3']:
        e(f's_cmp_ge_u32 {s(sZ)}, 32'); e('s_cbranch_scc1 L_mod_np')
        e(f'v_lshlrev_b32 v99, 10, {v(Gv)}'); e(f'v_lshl_add_u32 v99, {v(N)}, 4, v99')
        e(f's_lshl_b32 {s(sT+3)}, {s(sZ)}, 2'); e(f's_add_u32 {s(sT+3)}, {s(sT+3)}, {s(sW)}'); e(f's_lshl_b32 {s(sT+3)}, {s(sT+3)}, 12')
        for ptr in ((PWV,PWQ) if OPT['pf3']==1 else (PWK,PWV,PWQ)):
            p+=srd(ptr,4<<20)
            for i in range(8):
                e(f's_add_u32 {s(sT+4)}, {s(sT+3)}, {i*64*8192}'); e(f'buffer_load_dwordx4 v[100:103], v99, {s(SRD,4)}, {s(sT+4)} offen offset:256 ;stamp')
        p.append('L_mod_np:')
    e(f's_add_u32 {s(sZ)}, {s(sZ)}, 32'); e(f's_cmp_lt_u32 {s(sZ)}, 96'); e('s_cbranch_scc1 L_mod_top')
    return fix(p,'mod')

def dbg_wait(off,val,r):
    _u[0]+=1; k=_u[0]
    return [f'v_mov_b32 {v(r+1)}, {off}', f'L_po{k}:', f'global_load_dword {v(r)}, {v(r+1)}, {s(DBG,2)} sc1', f's_add_u32 {s(sSpin)}, {s(sSpin)}, 1',
            f's_cmp_gt_u32 {s(sSpin)}, {LIM}', f's_cbranch_scc1 L_pe{k}', 's_waitcnt vmcnt(0)', f'v_cmp_gt_u32 vcc, {val}, {v(r)}', f's_cbranch_vccnz L_po{k}', f'L_pe{k}:', 's_waitcnt vmcnt(0)']

def ln_phase(sync):
    p=[]; e=p.append
    XR=16; XF=32; MD=64; A0=4; A1=5; T=6; S=7; Q=8; R_=10; MU=14; sTile=20
    e(f's_sub_u32 {s(sTile)}, {s(sB)}, 96')
    p+=srd(PX,2048*1024)
    e(f'v_lshlrev_b32 {v(A0)}, 10, {v(N)}'); e(f'v_lshl_add_u32 {v(A0)}, {v(Gv)}, 4, {v(A0)}')
    e(f's_lshl_b32 {s(sT)}, {s(sTile)}, 14'); e(f's_lshl_b32 {s(sT+1)}, {s(sW)}, 8'); e(f's_add_u32 {s(sT)}, {s(sT)}, {s(sT+1)}')
    for i in range(4): e(f'buffer_load_dwordx4 {v(XR+4*i,4)}, {v(A0)}, {s(SRD,4)}, {s(sT)} offen offset:{64*i}')
    for i in range(4): e(f'v_mov_b32 {v(104+i)}, -1')
    e(f's_lshl_b32 {s(sT+3)}, {s(sTile)}, 2'); e(f's_add_u32 {s(sT+3)}, {s(sT+3)}, {s(sW)}'); e(f's_lshl_b32 {s(sT+3)}, {s(sT+3)}, 11'); e(f's_add_u32 {s(sT+3)}, {s(sT+3)}, {PART_OFF}')
    for i in range(2): e(f'buffer_store_dwordx4 {v(104,4)}, {v(L16)}, {s(WS,4)}, {s(sT+3)} offen offset:{1024*i} sc1')
    if OPT['pf1']:
        e(f's_lshl_b32 {s(sT+3)}, {s(sTile)}, 2'); e(f's_add_u32 {s(sT+3)}, {s(sT+3)}, {s(sW)}'); e(f's_lshl_b32 {s(sT+3)}, {s(sT+3)}, 13'); e(f's_add_u32 {s(sT+4)}, {s(sT+3)}, 4096')
        for ptr in (PWK,PWV,PWQ):
            p+=srd(ptr,4<<20)
            if OPT['pf1']==1:
                for i in range(8): e(f'buffer_load_dwordx4 {v(100,4)}, {v(L16)}, {s(SRD,4)}, {s(sT+3+(i>>2))} offen offset:{1024*(i&3)}')
            else:
                e(f'v_lshlrev_b32 v99, 10, {v(Gv)}'); e(f'v_lshl_add_u32 v99, {v(N)}, 4, v99')
                for i in range(2): e(f'buffer_load_dwordx4 {v(100,4)}, v99, {s(SRD,4)}, {s(sT+3+i)} offen offset:256')
    e(f'v_lshlrev_b32 {v(A1)}, 4, {v(N)}'); e(f's_lshl_b32 {s(sT+2)}, {s(sW)}, 2'); e(f'v_add_u32 {v(A0)}, {s(sT+2)}, {v(A1)}')
    for i in range(16): p+=unp(XF+2*i,XR+i)
    e(f'v_add_f32 {v(S)}, {v(XF)}, {v(XF+1)}')
    for i in range(2,32): e(f'v_add_f32 {v(S)}, {v(S)}, {v(XF+i)}')
    def cross(off):
        o=xg('v_add_f32',S,T)+[f'ds_write_b32 {v(A0)}, {v(S)} offset:{off}','s_waitcnt lgkmcnt(0)','s_barrier',f'ds_read_b128 {v(R_,4)}, {v(A1)} offset:{off}',
           f'v_add_f32 {v(S)}, {v(R_)}, {v(R_+1)}', f'v_add_f32 {v(T)}, {v(R_+2)}, {v(R_+3)}', f'v_add_f32 {v(S)}, {v(S)}, {v(T)}', f'v_mul_f32 {v(S)}, {hex(f2u(1/512))}, {v(S)}']
        return o
    p+=cross(0)
    e(f'v_mov_b32 {v(MU)}, {v(S)}')
    for i in range(32):
        e(f'v_sub_f32 {v(T)}, {v(XF+i)}, {v(MU)}'); e(f'v_mul_f32 {v(S)}, {v(T)}, {v(T)}' if i==0 else f'v_fmac_f32 {v(S)}, {v(T)}, {v(T)}')
    p+=cross(256)
    p+=rnd(MU,S,T)
    e(f'v_add_f32 {v(S)}, {hex(f2u(1e-5))}, {v(S)}'); p+=rnd(S,Q,T)[:2]
    e(f'v_sqrt_f32 {v(S)}, {v(S)}'); p+=rnd(S,Q,T)[:2]
    e(f'v_rcp_f32 {v(S)}, {v(S)}')
    for i in range(0,32,2):
        e(f'v_sub_f32 {v(XF+i)}, {v(XF+i)}, {v(MU)}'); e(f'v_sub_f32 {v(XF+i+1)}, {v(XF+i+1)}, {v(MU)}'); p+=rnd(XF+i,XF+i+1,T)
        e(f'v_mul_f32 {v(XF+i)}, {v(XF+i)}, {v(S)}'); e(f'v_mul_f32 {v(XF+i+1)}, {v(XF+i+1)}, {v(S)}'); p+=rnd(XF+i,XF+i+1,T)
    p+=[]
    if sync: p+=dbg_wait(128,32,R_)
    p+=[]
    e(f'v_lshlrev_b32 {v(A0)}, 4, {v(Gv)}'); e(f's_add_u32 {s(sT+1)}, {s(sT+1)}, {MOD_OFF}')
    for i in range(4): e(f'buffer_load_dwordx4 {v(MD+4*i,4)}, {v(A0)}, {s(WS,4)}, {s(sT+1)} offen offset:{1024+64*i} sc1')
    for i in range(4): e(f'buffer_load_dwordx4 {v(MD+16+4*i,4)}, {v(A0)}, {s(WS,4)}, {s(sT+1)} offen offset:{64*i} sc1')
    e(f's_lshl_b32 {s(sT)}, {s(sTile)}, 14'); e(f's_lshl_b32 {s(sT+2)}, {s(sW)}, 12'); e(f's_add_u32 {s(sT)}, {s(sT)}, {s(sT+2)}'); e(f's_add_u32 {s(sT)}, {s(sT)}, {H_OFF}')
    for i in range(16):
        a_=XF+2*i
        p+=unp(Q,MD+i); e(f'v_add_f32 {v(Q)}, 1.0, {v(Q)}'); e(f'v_add_f32 {v(Q+1)}, 1.0, {v(Q+1)}'); p+=rnd(Q,Q+1,T)
        e(f'v_mul_f32 {v(a_)}, {v(a_)}, {v(Q)}'); e(f'v_mul_f32 {v(a_+1)}, {v(a_+1)}, {v(Q+1)}'); p+=rnd(a_,a_+1,T)
        p+=unp(Q,MD+16+i); e(f'v_add_f32 {v(a_)}, {v(a_)}, {v(Q)}'); e(f'v_add_f32 {v(a_+1)}, {v(a_+1)}, {v(Q+1)}')
        e(f'v_cvt_pk_bf16_f32 {v(XR+i)}, {v(a_)}, {v(a_+1)}')
        if i%4==3: e(f'buffer_store_dwordx4 {v(XR+i-3,4)}, {v(L16)}, {s(WS,4)}, {s(sT)} offen offset:{1024*(i//4)} sc1')
    p+=[]
    if sync:
        p+=dbg_wait(136,1,R_)
        e('s_barrier')
        e(f's_lshl_b32 {s(sT)}, {s(sTile)}, 2'); e(f's_add_u32 {s(sT)}, {s(sT)}, {BF_OFF+BF_H}'); e(f'v_mov_b32 {v(T)}, 1')
        e(f's_cmp_lg_u32 {s(sW)}, 0'); e('s_cbranch_scc1 L_ln_end'); e('s_mov_b64 exec, 1')
        e(f'buffer_store_dword {v(T)}, off, {s(WS,4)}, {s(sT)} sc1'); e('s_mov_b64 exec, -1')
        p.append('L_ln_end:')
    return fix(p,'ln')

def flag_init():
    p=[]; e=p.append
    for i in range(4): e(f'v_mov_b32 {v(8+i)}, 0')
    e(f's_lshl_b32 {s(sT)}, {s(sW)}, 12'); e(f's_add_u32 {s(sT)}, {s(sT)}, {BF_OFF}')
    for i in range(4): e(f'buffer_store_dwordx4 {v(8,4)}, {v(L16)}, {s(WS,4)}, {s(sT)} offen offset:{1024*i} sc1')
    e(f's_mov_b32 {s(sT)}, {FLAG_OFF}'); e(f'buffer_store_dwordx4 {v(8,4)}, {v(L16)}, {s(WS,4)}, {s(sT)} offen sc1')
    for i in range(4): e(f'v_mov_b32 {v(12+i)}, -1')
    e(f's_lshl_b32 {s(sT)}, {s(sW)}, 13'); e(f's_add_u32 {s(sT)}, {s(sT)}, {MEM_OFF}'); e(f's_add_u32 {s(sT+1)}, {s(sT)}, 4096')
    for i in range(8): e(f'buffer_store_dwordx4 {v(12,4)}, {v(L16)}, {s(WS,4)}, {s(sT+(i>>2))} offen offset:{1024*(i&3)} sc1')
    e('s_waitcnt vmcnt(0)'); e('s_barrier')
    e(f'v_mov_b32 v8, 136'); e('v_mov_b32 v9, 1'); e('s_mov_b64 exec, 1'); e(f'global_store_dword v8, v9, {s(DBG,2)} sc1'); e('s_mov_b64 exec, -1')
    return fix(p,'fi')

def wstream(blocks, sRing, D=8, pf=None, lead=0):
    p=[]; e=p.append; ng=len(blocks)//4; assert len(blocks)%4==0
    VQ=[]
    def pre(gi):
        if pf and gi<ng:
            for l in pf(gi):
                e(l)
                if l.startswith('buffer'): VQ.append('p')
    def issue(gi):
        pre(gi+lead)
        for b in range(4):
            su,vo,so,_=blocks[4*gi+b]
            if su: p.extend(su)
            e(f's_add_u32 m0, {s(sRing)}, {((4*gi+b)%32)*1024}'); p.extend(so(sT+7))
            e(f'buffer_load_dwordx4 {v(vo)}, {s(SRD,4)}, {s(sT+7)} offen lds'); VQ.append(gi)
    for gi in range(lead): pre(gi)
    for gi in range(min(D,ng)): issue(gi)
    head=list(p); p.clear()
    for gi in range(ng):
        e(f's_waitcnt vmcnt({len(VQ)-1-max(k for k,t in enumerate(VQ) if t==gi)})')
        for b in range(4):
            for dst,tra,off in blocks[4*gi+b][3]: e(f'ds_read_b64_tr_b16 {dst}, {v(tra)} offset:{((4*gi+b)%32)*1024+off}')
        e('s_waitcnt lgkmcnt(0)')
        if gi+D<ng: issue(gi+D)
    return head,p

sSeg=23; sRing=24; sCnt=25
VO=4; TRA=5; TRB=6; FA=7
def wreg(m,t,ks):
    i=(m*2+t)*64+4*ks
    return ('a',i) if i<256 else ('v',128+i-256)
sHsrc=26; sBuf=27; sNext=32; sGot=33
def hdma():
    o=[f's_lshl_b32 {s(sHsrc)}, {s(sNext)}, 15', f's_lshl_b32 {s(sT)}, {s(sW)}, 13', f's_add_u32 {s(sHsrc)}, {s(sHsrc)}, {s(sT)}', f's_add_u32 {s(sHsrc)}, {s(sHsrc)}, {H_OFF}',
        f's_add_u32 m0, {s(sBuf)}, {s(sT)}', f's_add_u32 {s(sT+1)}, {s(sHsrc)}, 4096']
    o+=[f'buffer_load_dwordx4 {v(L16)}, {s(WS,4)}, {s(sHsrc)} offen offset:{1024*i} sc1 lds' for i in range(4)]
    o+=['s_add_u32 m0, m0, 4096','s_nop 0']+[f'buffer_load_dwordx4 {v(L16)}, {s(WS,4)}, {s(sT+1)} offen offset:{1024*i} sc1 lds' for i in range(4)]
    return o
def p1_setup():
    p=[]; e=p.append
    A0,A1,T0_,T1_,U0,U1,r,c_,t=[112+i for i in range(9)]
    e(f'v_lshlrev_b32 {v(t)}, 1, {v(Gv)}'); e(f'v_xor_b32 {v(t)}, {v(t)}, {v(N)}'); e(f'v_lshlrev_b32 {v(t)}, 4, {v(t)}'); e(f'v_lshl_add_u32 {v(A0)}, {v(Gv)}, 13, {v(t)}')
    e(f's_lshr_b32 {s(sT)}, {s(sW)}, 1'); e(f's_lshl_b32 {s(sT)}, {s(sT)}, 18'); e(f's_and_b32 {s(sT+1)}, {s(sW)}, 1'); e(f's_lshl_b32 {s(sT+1)}, {s(sT+1)}, 15'); e(f's_add_u32 {s(sT)}, {s(sT)}, {s(sT+1)}')
    e(f's_lshl_b32 {s(sT+1)}, {s(sHd)}, 8'); e(f's_add_u32 {s(sT)}, {s(sT)}, {s(sT+1)}'); e(f'v_add_u32 {v(A0)}, {s(sT)}, {v(A0)}'); e(f'v_xor_b32 {v(A1)}, 128, {v(A0)}')
    e(f's_lshl_b32 {s(sRing)}, {s(sW)}, 12'); e(f's_add_u32 {s(sRing)}, {s(sRing)}, 32768')
    e(f'v_lshrrev_b32 {v(r)}, 2, {v(N)}'); e(f'v_and_b32 {v(c_)}, 3, {v(N)}'); e(f'v_and_b32 {v(t)}, 1, {v(Gv)}'); e(f'v_lshl_add_u32 {v(t)}, {v(t)}, 2, {v(r)}')
    e(f's_lshl_b32 {s(sT)}, {s(sW)}, 1'); e(f'v_xor_b32 {v(t)}, {s(sT)}, {v(t)}')
    e(f'v_lshlrev_b32 {v(T0_)}, 10, {v(Gv)}'); e(f'v_lshl_add_u32 {v(T0_)}, {v(r)}, 8, {v(T0_)}'); e(f'v_lshl_add_u32 {v(T0_)}, {v(t)}, 5, {v(T0_)}'); e(f'v_lshl_add_u32 {v(T0_)}, {v(c_)}, 3, {v(T0_)}')
    e(f'v_add_u32 {v(T0_)}, 32768, {v(T0_)}'); e(f'v_xor_b32 {v(T1_)}, 32, {v(T0_)}'); e(f'v_add_u32 {v(U0)}, 65536, {v(T0_)}'); e(f'v_add_u32 {v(U1)}, 65536, {v(T1_)}')
    e(f's_mov_b32 {s(sNext)}, {s(sR)}'); e(f's_mov_b32 {s(sBuf)}, 0'); e(f's_mov_b32 {s(sGot)}, 0'); e(f'v_lshlrev_b32 {v(FA)}, 3, {v(LN)}'); e('v_mov_b32 v9, 136')
    def stream(order,tag):
        q=[]; e=q.append; VQ=[]; D=OPT['d1p']
        bt=[(m,c) for m in order for c in range(8)]
        def issue(bi):
            m,c=bt[bi]; q.extend(srd((PWK,PWV,PWQ)[m],4<<20))
            for i in range(4):
                e(f's_add_u32 m0, {s(sRing)}, {(bi%8)*16384+1024*i}'); e(f's_mov_b32 {s(sT+7)}, {(64*c+8*i)*8192}')
                e(f'buffer_load_dwordx4 {v(A1 if i&1 else A0)}, {s(SRD,4)}, {s(sT+7)} offen lds'); VQ.append(bi)
        wt=lambda x: f's_waitcnt vmcnt({len(VQ)-1-max(k for k,t_ in enumerate(VQ) if t_==x)})'
        for bi in range(D): issue(bi)
        for bi in range(24):
            m,c=bt[bi]
            e(wt(bi)); e('s_barrier')
            if bi>=1 and bi-1+8<24 and D==8: issue(bi-1+8)
            elif D<8 and bi+D<24: issue(bi+D)
            for b_ in range(4):
                for t_ in range(2):
                    pf,b0=wreg(m,t_,2*c+(b_>>1)); tra=[[T0_,T1_],[U0,U1]][(bi%8)>>2][t_]
                    e(f'ds_read_b64_tr_b16 {R(pf,b0+2*(b_&1),2)}, {v(tra)} offset:{(bi%4)*16384+b_*4096}')
            if bi==4: e(f'global_load_dword v8, v9, {s(DBG,2)} sc1 ;stamp'); VQ.append('i')
            if bi==OPT['hb']:
                e(wt('i')); e('v_cmp_eq_u32 vcc, 0, v8'); e(f's_cbranch_vccz L_p1_in{tag}'); q.extend(dbg_wait(136,1,8)); q.append(f'L_p1_in{tag}:')
                e(f's_mov_b32 {s(sT)}, {BF_OFF+BF_H}'); e(f'buffer_load_dwordx2 v[8:9], {v(FA)}, {s(WS,4)}, {s(sT)} offen sc1 ;stamp'); VQ.append('h')
            e('s_waitcnt lgkmcnt(0)')
        e('s_waitcnt vmcnt(0)')
        return q
    if OPT['alt']:
        e(f's_cmp_lg_u32 {s(sR)}, 0'); e('s_cbranch_scc1 L_p1_alt')
        p+=stream((0,1,2),'a')+['s_branch L_p1_ld','L_p1_alt:']+stream((1,0,2) if OPT['alt']==1 else (2,1,0),'b')+['L_p1_ld:']
    else: p+=stream((0,1,2),'a')
    return fix(p,'p1a')

def p1_main(sync):
    p=[]; e=p.append
    AC=16; HF=64; OUT=96; sKo=28; sVo=29; sQo=30; sFl=31
    acc=lambda m,t,mt: AC+((m*2+t)*2+mt)*4
    e('s_barrier')
    if sync:
        e('v_min_u32 v8, v8, v9'); e('v_cmp_gt_u32 vcc, 1, v8'); e('s_cbranch_vccz L_p1_hok')
        e(f's_mov_b32 {s(sT)}, {BF_OFF+BF_H}')
        pl=poll(FA,s(sT),'1',8); pl[1]=pl[1].replace('dword v8','dwordx2 v[8:9]'); pl[6:6]=['v_min_u32 v8, v8, v9']
        p+=pl+['L_p1_hok:']
    e(f's_mov_b32 {s(sSeg)}, {s(sR)}'); e(f's_mov_b32 {s(sNext)}, {s(sR)}'); e(f's_mov_b32 {s(sBuf)}, 0'); e(f's_mov_b32 {s(sCnt)}, 0')
    e(f's_lshl_b32 {s(sFl)}, {s(sHd)}, 7'); e(f's_lshl_b32 {s(sT)}, {s(sR)}, 2'); e(f's_add_u32 {s(sFl)}, {s(sFl)}, {s(sT)}'); e(f's_add_u32 {s(sFl)}, {s(sFl)}, {BF_OFF+BF_KV}')
    p+=hdma()
    for i in range(4): e(f'v_mov_b32 v{12+i}, -1')
    def flag(L_,val):
        return [f's_cmp_lg_u32 {s(sW)}, 0', f's_cbranch_scc1 {L_}', f'v_mov_b32 {v(FA)}, {val}', 's_mov_b64 exec, 1',
                f'buffer_store_dword {v(FA)}, off, {s(WS,4)}, {s(sFl)} sc1', 's_mov_b64 exec, -1', L_+':'] if sync else []
    e('s_waitcnt vmcnt(0)')
    p.append('L_p1_loop:')
    e('s_waitcnt vmcnt(2)'); e('s_barrier')
    p+=flag('L_p1_nf',s(sCnt))
    e(f's_cmp_ge_u32 {s(sSeg)}, 64'); e('s_cbranch_scc1 L_p1_end')
    e(f'v_add_u32 {v(VO)}, {s(sBuf)}, {v(L16)}')
    e(f's_xor_b32 {s(sBuf)}, {s(sBuf)}, 32768'); e(f's_add_u32 {s(sNext)}, {s(sSeg)}, {NR}')
    e(f's_cmp_ge_u32 {s(sNext)}, 64'); e('s_cbranch_scc1 L_p1_nd')
    p+=hdma()
    p.append('L_p1_nd:')
    hr=lambda ks,mt: f'ds_read_b128 {v(HF+(ks%4)*8+4*mt,4)}, {v(VO)} offset:{(mt*16+(ks%16))*1024}'
    sc_=[f's_lshl_b32 {s(sT)}, {s(sHd)}, 6', f's_add_u32 {s(sT)}, {s(sT)}, {s(sSeg)}',
        f's_lshl_b32 {s(sT+1)}, {s(sW)}, 10', f's_lshl_b32 {s(sKo)}, {s(sT)}, 14', f's_add_u32 {s(sVo)}, {s(sKo)}, {KV_OFF+8192}',
        f's_add_u32 {s(sKo)}, {s(sKo)}, {s(sT+1)}', f's_add_u32 {s(sKo)}, {s(sKo)}, {KV_OFF}', f's_add_u32 {s(sT+2)}, {s(sKo)}, 4096',
        f's_lshl_b32 {s(sQo)}, {s(sT)}, 13', f's_add_u32 {s(sQo)}, {s(sQo)}, {s(sT+1)}', f's_add_u32 {s(sQo)}, {s(sQo)}, {Q_OFF}', f's_add_u32 {s(sT+3)}, {s(sQo)}, 4096',
        f's_lshl_b32 {s(sT+1)}, {s(sW)}, 11', f's_add_u32 {s(sVo)}, {s(sVo)}, {s(sT+1)}',
        f's_lshl_b32 {s(sT)}, {s(sT)}, 2', f's_add_u32 {s(sT)}, {s(sT)}, {s(sW)}', f's_lshl_b32 {s(sT)}, {s(sT)}, 10', f's_add_u32 {s(sT)}, {s(sT)}, {KVM_OFF}',
        f'buffer_store_dwordx4 v[12:15], {v(L16)}, {s(WS,4)}, {s(sT)} offen sc1']
    def outk(m,sos,k):
        o=[]
        for mt in range(2):
            o+=[f'v_cvt_pk_bf16_f32 {v(OUT+4*(k+mt)+r)}, {v(acc(m,0,mt)+r)}, {v(acc(m,1,mt)+r)}' for r in range(4)]
            o+=[f'buffer_store_dwordx4 {v(OUT+4*(k+mt),4)}, {v(L16)}, {s(WS,4)}, {s(sos[mt])} offen sc1']
        return o
    kvout=outk(0,(sKo,sT+2),0)
    for t in range(2):
        kvout+=[f'v_cvt_pk_bf16_f32 {v(OUT+8+4*t+2*mt+j)}, {v(acc(1,t,mt)+2*j)}, {v(acc(1,t,mt)+2*j+1)}' for mt in range(2) for j in range(2)]
        kvout+=[f'buffer_store_dwordx4 {v(OUT+8+4*t,4)}, {v(L16)}, {s(WS,4)}, {s(sVo)} offen offset:{1024*t} sc1']
    for ks in range(2):
        for mt in range(2): e(hr(ks,mt))
    for kk in range(32):
        ks=kk%16; mm=[]
        for mt in range(2):
            hf=v(HF+(ks%4)*8+4*mt,4)
            for m in ((0,1) if kk<16 else (2,)):
                for t in range(2):
                    pf,b=wreg(m,t,ks); w_=R(pf,b,4); c_=v(acc(m,t,mt),4)
                    a_,b_=(hf,w_) if m==1 else (w_,hf)
                    mm.append([f'{MF32} {c_}, {a_}, {b_}, '+(c_ if ks else '0')])
        if kk+2<32: mm[0].append(hr(kk+2,0)); mm[2].append(hr(kk+2,1))
        if kk<16:
            for j in (4,5):
                if sc_: mm[j].append(sc_.pop(0))
        elif kk>=18:
            for j in (1,1,3,3):
                if kvout: mm[j].append(kvout.pop(0))
        p+=sum(mm,[])
    assert not sc_ and not kvout
    p+=outk(2,(sQo,sT+3),4)
    e(f's_add_u32 {s(sSeg)}, {s(sSeg)}, {NR}'); e(f's_add_u32 {s(sCnt)}, {s(sCnt)}, 1'); e('s_branch L_p1_loop')
    p.append('L_p1_end:')
    e('s_waitcnt vmcnt(0)'); e('s_barrier'); p+=flag('L_p1_nf2','33')
    r=fix(p,'p1'); i=r.index('L_p1_loop:'); j=r.index('L_p1_end:'); check(r[:j]+r[i:],'p1loop')
    return r

sGrp=21; sJ=22; sGB=26; sEp=27; sFw=28; sFr=29; sKq=30; sCq=31; sM=32; sEh=33; sScale=34; sLg=35; sFast=36; sQf=37; sMf=38
WO=lambda ks: a(4*ks,4)
W1=lambda t,ks: a(128+64*t+4*ks,4)
W2=lambda ks: v(200+4*ks,4)
MODV=168
IDX=4; KW=5; FA2=6; HRD=7; HSR=8; PSA=9; MSK=10; ZR=12; NEG=152; HRD1=151
L_PF=81920
def qkv_fetch(sync, sSg):
    o=[]
    if sync:
        o+=[f's_and_b32 {s(sT)}, {s(sSg)}, 1', f's_lshl_b32 {s(sT)}, {s(sT)}, 2', f's_add_u32 {s(sT)}, {s(sT)}, {s(sQf)}', f's_lshr_b32 {s(sT+1)}, {s(sSg)}, 1', f's_add_u32 {s(sT+1)}, {s(sT+1)}, 2']
        o+=poll(ZR+1,s(sT),s(sT+1),14,0,2)
    o+=[f's_lshl_b32 {s(sT)}, {s(sJ)}, 6', f's_add_u32 {s(sT)}, {s(sT)}, {s(sSg)}', f's_lshl_b32 {s(sT+1)}, {s(sT)}, 13', f's_add_u32 {s(sT+1)}, {s(sT+1)}, {Q_OFF}',
        f's_lshl_b32 {s(sT)}, {s(sT)}, 14', f's_lshl_b32 {s(sT+2)}, {s(sM)}, 13', f's_add_u32 {s(sT)}, {s(sT)}, {s(sT+2)}', f's_add_u32 {s(sT)}, {s(sT)}, {KV_OFF}',
        f's_cmp_eq_u32 {s(sW)}, 1', f's_cselect_b32 {s(sT)}, {s(sT+1)}, {s(sT)}', f's_add_u32 {s(sT+1)}, {s(sT)}, 4096',
        f's_lshl_b32 {s(sT+2)}, {s(sW)}, 13', f's_add_u32 m0, {s(sT+2)}, {L_PF-8192}', 's_nop 0']
    o+=[f'buffer_load_dwordx4 {v(L16)}, {s(WS,4)}, {s(sT)} offen offset:{1024*i} sc1 lds' for i in range(4)]
    o+=['s_add_u32 m0, m0, 4096','s_nop 0']+[f'buffer_load_dwordx4 {v(L16)}, {s(WS,4)}, {s(sT+1)} offen offset:{1024*i} sc1 lds' for i in range(4)]
    return o
def p2_setup(sync):
    p=[]; e=p.append
    e('s_barrier')
    e(f's_lshr_b32 {s(sGrp)}, {s(sB)}, 5'); e(f's_add_u32 {s(sGrp)}, {s(sGrp)}, 5'); e(f's_cmp_ge_u32 {s(sGrp)}, 7'); e(f's_cselect_b32 {s(sT)}, 7, 0'); e(f's_sub_u32 {s(sGrp)}, {s(sGrp)}, {s(sT)}'); e(f's_and_b32 {s(sJ)}, {s(sB)}, 31')
    if sync: p+=dbg_wait(136,1,16)
    e(f's_lshl_b32 {s(sGB)}, {s(sGrp)}, 20'); e(f's_add_u32 {s(sGB)}, {s(sGB)}, {G_OFF}')
    e(f's_lshr_b32 {s(sKq)}, {s(sJ)}, 3'); e(f's_and_b32 {s(sCq)}, {s(sJ)}, 7'); e(f's_and_b32 {s(sM)}, {s(sW)}, 1'); e(f's_lshr_b32 {s(sEh)}, {s(sW)}, 1')
    e(f's_lshl_b32 {s(sFr)}, {s(sGrp)}, 8'); e(f's_add_u32 {s(sFr)}, {s(sFr)}, {BF_OFF+BF_GB}'); e(f's_lshl_b32 {s(sT)}, {s(sJ)}, 2'); e(f's_add_u32 {s(sFw)}, {s(sFr)}, {s(sT)}')
    e(f's_mov_b32 {s(sEp)}, 0'); e(f's_mov_b32 {s(sScale)}, {hex(f2u(128**-0.5))}'); e(f's_mov_b32 {s(sLg)}, {hex(f2u(math.log2(math.e)))}')
    e(f's_lshl_b32 {s(sRing)}, {s(sW)}, 15'); e(f's_add_u32 {s(sRing)}, {s(sRing)}, 32768')
    e(f's_lshl_b32 {s(sMf)}, {s(sJ)}, 7')
    e(f's_add_u32 {s(sQf)}, {s(sMf)}, {BF_OFF+BF_KV}'); e(f's_add_u32 {s(sMf)}, {s(sMf)}, {BF_OFF+BF_KVM}')
    for i in range(4): e(f'v_mov_b32 {v(NEG+i)}, -1')
    e(f's_lshl_b32 {s(sT)}, {s(sJ)}, 13'); e(f's_add_u32 {s(sT)}, {s(sT)}, {s(sGB)}'); e(f's_lshl_b32 {s(sT+1)}, {s(sW)}, 11'); e(f's_add_u32 {s(sT)}, {s(sT)}, {s(sT+1)}')
    for off in (G_P1,G_P2):
        e(f's_add_u32 {s(sT+1)}, {s(sT)}, {off}')
        for i in range(2): e(f'buffer_store_dwordx4 {v(NEG,4)}, {v(L16)}, {s(WS,4)}, {s(sT+1)} offen offset:{1024*i} sc1')
    e('s_waitcnt vmcnt(0)'); e('s_barrier')
    e(f's_getreg_b32 {s(sFast)}, hwreg(HW_REG_XCC_ID)'); e(f's_and_b32 {s(sFast)}, {s(sFast)}, 7'); e(f's_add_u32 {s(sFast)}, {s(sFast)}, 1')
    e(f'v_mov_b32 v16, {s(sFast)}'); e('s_mov_b64 exec, 1'); e(f'buffer_store_dword v16, off, {s(WS,4)}, {s(sFw)} offset:{BF_XC-BF_GB} sc1'); e('s_mov_b64 exec, -1')
    t1,t2,r,c_,g1=16,17,18,19,20
    e(f'v_and_b32 {v(t1)}, 1, {v(LN)}'); e(f'v_mul_u32_u24 {v(t1)}, 0xaaaa, {v(t1)}'); e(f'v_add_u32 {v(IDX)}, 0x4444, {v(t1)}')
    e(f'v_bfe_u32 {v(t1)}, {v(N)}, 1, 2'); e(f'v_lshlrev_b32 {v(KW)}, 2, {v(t1)}'); e(f'v_and_b32 {v(t1)}, 1, {v(N)}'); e(f'v_lshl_add_u32 {v(KW)}, {v(t1)}, 4, {v(KW)}')
    e(f'v_lshl_add_u32 {v(KW)}, {v(Gv)}, 6, {v(KW)}'); e(f'v_lshrrev_b32 {v(t1)}, 3, {v(N)}'); e(f'v_lshl_add_u32 {v(KW)}, {v(t1)}, 8, {v(KW)}')
    e(f's_lshl_b32 {s(sT)}, {s(sW)}, 9'); e(f'v_add_u32 {v(KW)}, {s(sT)}, {v(KW)}')
    e(f'v_and_b32 {v(FA2)}, 31, {v(LN)}'); e(f'v_lshlrev_b32 {v(FA2)}, 2, {v(FA2)}')
    e(f'v_lshrrev_b32 {v(t1)}, 1, {v(N)}'); e(f'v_xor_b32 {v(t1)}, {v(t1)}, {v(Gv)}'); e(f'v_lshlrev_b32 {v(t1)}, 4, {v(t1)}'); e(f'v_lshl_add_u32 {v(HRD)}, {v(N)}, 7, {v(t1)}')
    e(f's_lshl_b32 {s(sT)}, {s(sM)}, 14'); e(f'v_add_u32 {v(HRD)}, {s(sT)}, {v(HRD)}'); e(f'v_xor_b32 {v(HRD1)}, 64, {v(HRD)}')
    e(f'v_and_b32 {v(c_)}, 3, {v(LN)}'); e(f'v_and_b32 {v(t1)}, 7, {v(LN)}'); e(f'v_xor_b32 {v(t1)}, {v(t1)}, {v(Gv)}'); e(f'v_lshlrev_b32 {v(t1)}, 4, {v(t1)}')
    e(f'v_lshrrev_b32 {v(t2)}, 3, {v(LN)}'); e(f'v_lshl_add_u32 {v(HSR)}, {v(t2)}, 10, {v(t1)}'); e(f's_lshl_b32 {s(sT)}, {s(sM)}, 6'); e(f'v_xor_b32 {v(HSR)}, {s(sT)}, {v(HSR)}')
    e(f'v_lshlrev_b32 {v(PSA)}, 15, {v(Gv)}'); e(f'v_lshl_add_u32 {v(PSA)}, {v(N)}, 2, {v(PSA)}')
    e(f's_lshl_b32 {s(sT)}, {s(sJ)}, 8'); e(f's_lshl_b32 {s(sT+1)}, {s(sW)}, 6'); e(f's_add_u32 {s(sT)}, {s(sT)}, {s(sT+1)}'); e(f'v_add_u32 {v(PSA)}, {s(sT)}, {v(PSA)}')
    e(f'v_lshlrev_b32 {v(t1)}, 2, {v(Gv)}'); e(f'v_sub_u32 {v(MSK)}, {v(N)}, {v(t1)}')
    e(f'v_mov_b32 {v(ZR+1)}, 0')
    A64,B0,B1,A32,C0,C1,A32b=24,25,26,27,28,29,30
    e(f'v_lshrrev_b32 {v(r)}, 2, {v(N)}'); e(f'v_and_b32 {v(g1)}, 1, {v(Gv)}')
    e(f'v_lshlrev_b32 {v(B0)}, 8, {v(Gv)}'); e(f'v_lshl_add_u32 {v(B0)}, {v(c_)}, 3, {v(B0)}'); e(f'v_add_u32 {v(B0)}, {s(sRing)}, {v(B0)}')
    e(f'v_lshl_add_u32 {v(C0)}, {v(r)}, 5, {v(B0)}'); e(f'v_lshl_add_u32 {v(C0)}, {v(g1)}, 7, {v(C0)}'); e(f'v_xor_b32 {v(C1)}, 128, {v(C0)}')
    e(f'v_lshl_add_u32 {v(B0)}, {v(r)}, 6, {v(B0)}'); e(f'v_lshl_add_u32 {v(B0)}, {v(g1)}, 5, {v(B0)}'); e(f'v_xor_b32 {v(B1)}, 32, {v(B0)}')
    e(f'v_lshlrev_b32 {v(t1)}, 1, {v(g1)}'); e(f'v_xor_b32 {v(t1)}, {v(t1)}, {v(c_)}'); e(f'v_lshlrev_b32 {v(t1)}, 4, {v(t1)}')
    e(f'v_lshl_add_u32 {v(A64)}, {v(Gv)}, 3, {v(r)}'); e(f'v_mul_u32_u24 {v(A64)}, 3584, {v(A64)}'); e(f'v_add_u32 {v(A64)}, {v(A64)}, {v(t1)}')
    e(f's_min_u32 {s(sT)}, {s(sJ)}, 27'); e(f's_lshl_b32 {s(sT)}, {s(sT)}, 7'); e(f's_lshl_b32 {s(sT+1)}, {s(sEh)}, 6'); e(f's_add_u32 {s(sT)}, {s(sT)}, {s(sT+1)}'); e(f'v_add_u32 {v(A64)}, {s(sT)}, {v(A64)}')
    e(f'v_lshrrev_b32 {v(t1)}, 3, {v(N)}'); e(f'v_xor_b32 {v(t1)}, {v(t1)}, {v(g1)}'); e(f'v_bfe_u32 {v(t2)}, {v(N)}, 1, 2')
    e(f'v_lshl_add_u32 {v(t2)}, {v(t1)}, 4, {v(t2)}'); e(f'v_lshl_add_u32 {v(t2)}, {v(Gv)}, 2, {v(t2)}'); e(f'v_and_b32 {v(t1)}, 1, {v(N)}'); e(f'v_lshlrev_b32 {v(t1)}, 4, {v(t1)}')
    e(f'v_lshl_add_u32 {v(A32)}, {v(t2)}, 10, {v(t1)}')
    e(f's_lshl_b32 {s(sT)}, {s(sCq)}, 7'); e(f's_lshl_b32 {s(sT+1)}, {s(sW)}, 5'); e(f's_add_u32 {s(sT)}, {s(sT)}, {s(sT+1)}')
    e(f's_mul_i32 {s(sT+1)}, {s(sKq)}, {448*1024}'); e(f's_add_u32 {s(sT+1)}, {s(sT+1)}, {s(sT)}'); e(f'v_add_u32 {v(A32b)}, {s(sT+1)}, {v(A32)}')
    e(f's_lshl_b32 {s(sT+1)}, {s(sKq)}, 20'); e(f's_add_u32 {s(sT+1)}, {s(sT+1)}, {s(sT)}'); e(f'v_add_u32 {v(A32)}, {s(sT+1)}, {v(A32)}')
    blocks=[]
    mv=lambda o: (lambda reg: [f's_mov_b32 {s(reg)}, {o}'])
    for ks in range(32): blocks.append((srd(PWO,4<<20) if ks%4==0 else None, A32, mv(ks*32768), [(a(4*ks,2),C0,0),(a(4*ks+2,2),C1,0)]))
    for ks in range(16):
        for jh in range(2): blocks.append((srd(PW1,512*3584) if ks%2==0 and jh==0 else None, A64, mv((32*ks+4*jh)*3584), [(a(128+4*ks+2*jh,2),B0,0),(a(192+4*ks+2*jh,2),B1,0)]))
    for ks in range(16):
        kk=min(ks,13); blocks.append((srd(PW2,1792*1024) if ks%4==0 else None, A32b, mv(kk*32768), [(v(200+4*ks,2),C0,0),(v(202+4*ks,2),C1,0)] if ks<14 else []))
    head,rest=wstream(blocks,sRing,OPT['d2'])
    if OPT['dl']:
        e(f'v_mov_b32 v17, 0'); p+=poll(17,s(sQf),str(OPT['dl']),16)
    p+=head+rest
    if sync: p+=dbg_wait(132,64,16)
    e(f's_mov_b32 {s(sT)}, {MOD_OFF+2048}')
    for i in range(4): e(f'buffer_load_dwordx4 {v(16+4*i,4)}, {v(L16)}, {s(WS,4)}, {s(sT)} offen offset:{1024*i} sc1')
    for i in range(16): p+=unp(MODV+2*i,16+i)
    for i in range(16,24): e(f'v_add_f32 {v(MODV+i)}, 1.0, {v(MODV+i)}')
    for i in range(16,24,2): p+=rnd(MODV+i,MODV+i+1,16)
    p+=poll(FA2,s(sFr),'1',16,BF_XC-BF_GB)
    e(f'v_cmp_ne_u32 vcc, {s(sFast)}, v16')
    e(f's_cmp_ge_u32 {s(sGrp)}, 5'); e(f's_cselect_b32 {s(sT)}, 38, 0'); e(f's_add_u32 {s(sSeg)}, {s(sGrp)}, {s(sT)}')
    e(f's_lshl_b32 {s(sT)}, {s(sJ)}, 15'); e(f's_lshl_b32 {s(sT+1)}, {s(sW)}, 13'); e(f's_add_u32 {s(sT)}, {s(sT)}, {s(sT+1)}'); e(f's_add_u32 {s(sT)}, {s(sT)}, {s(sGB)}'); e(f's_add_u32 {s(sT+1)}, {s(sT)}, 4096')
    for i in range(8): e(f'buffer_load_dwordx4 v[20:23], {v(L16)}, {s(WS,4)}, {s(sT+(i>>2))} offen offset:{1024*(i&3)} sc1')
    e(f's_mov_b64 {s(sT+4,2)}, vcc'); e('s_barrier')
    e(f's_cmp_eq_u32 {s(sW)}, 0'); e('s_cbranch_scc1 L_p2_nf'); p+=qkv_fetch(sync,sSeg); p.append('L_p2_nf:')
    e(f's_mov_b64 vcc, {s(sT+4,2)}')
    e('s_waitcnt vmcnt(0)')
    p+=srd(PX,2048*1024)
    p+=STAMP(7,160)
    e('s_barrier')
    e('s_cbranch_vccnz L_p2_S')
    return fix(p,'p2s')

def p2_loop(mode, sync):
    sc=' sc1' if mode=='S' else ''
    L=f'L_p2_{mode}'
    p=[L+':']; e=p.append
    nb=[0]
    def gbar():
        nb[0]+=1; k=f'{L}_g{nb[0]}'
        return ['s_waitcnt vmcnt(0)','s_barrier', f's_add_u32 {s(sEp)}, {s(sEp)}, 1', f's_cmp_lg_u32 {s(sW)}, 0', f's_cbranch_scc1 {k}',
                f'v_mov_b32 v14, {s(sEp)}','s_mov_b64 exec, 1', f'buffer_store_dword v14, off, {s(WS,4)}, {s(sFw)}{sc}','s_mov_b64 exec, -1','s_nop 15']+pollp(FA2,s(sFr),s(sEp),PR)+STAMP(8+nb[0],128)+[k+':','s_barrier']
    QF=16; KF=32; VF=64; KV=80; S0=92; OA=104; T=120; MX=121; SUM=122; PXr=124; KM=128; XR=136; X1=140; PR=150
    e(f's_lshl_b32 {s(sT)}, {s(sSeg)}, 5'); e(f's_add_u32 {s(sT)}, {s(sT)}, {s(sJ)}'); e(f's_lshl_b32 {s(sT+6)}, {s(sT)}, 10')
    e(f's_lshl_b32 {s(sT)}, {s(sJ)}, 6'); e(f's_add_u32 {s(sT)}, {s(sT)}, {s(sSeg)}'); e(f's_lshl_b32 {s(sT+5)}, {s(sT)}, 12'); e(f's_add_u32 {s(sT+5)}, {s(sT+5)}, {KVM_OFF}')
    e(f'buffer_load_dwordx4 {v(XR,4)}, {v(L16)}, {s(SRD,4)}, {s(sT+6)} offen')
    e(f's_lshl_b32 {s(sT)}, {s(sM)}, 12'); e(f's_add_u32 {s(sT)}, {s(sT)}, {L_PF}'); e(f'v_add_u32 {v(T)}, {s(sT)}, {v(L16)}')
    for i in range(4): e(f'ds_read_b128 {v(QF+4*i,4)}, {v(T)} offset:{1024*i}')
    e(f'v_add_u32 {v(T)}, {L_PF+8192}, {v(L16)}')
    for i in range(8): e(f'ds_read_b128 {v(KF+4*i,4)}, {v(T)} offset:{1024*i}')
    e(f's_lshl_b32 {s(sT)}, {s(sEh)}, 12'); e(f'v_add_u32 {v(T)}, {s(sT)}, {v(T)}')
    for i in range(4): e(f'ds_read_b128 {v(VF+4*i,4)}, {v(T)} offset:{8192+1024*i}')
    for m in range(2):
        for ks in range(4): e(f'{MF32} {v(S0+4*m,4)}, {v(KF+16*m+4*ks,4)}, {v(QF+4*ks,4)}, '+(v(S0+4*m,4) if ks else '0'))
    e(f'v_mov_b64 {v(S0+8,2)}, 0'); e(f'v_mov_b64 {v(S0+10,2)}, 0')
    def sround(a_): return rnd(a_,a_+1,T)+[f'v_mul_f32 {v(a_)}, {s(sScale)}, {v(a_)}', f'v_mul_f32 {v(a_+1)}, {s(sScale)}, {v(a_+1)}']+rnd(a_,a_+1,T)
    for i in range(0,8,2): p+=sround(S0+i)
    e(f's_lshl_b32 {s(sT+1)}, {s(sM)}, 4'); e(f'v_add_u32 {v(T)}, {s(sT+1)}, {v(MSK)}'); e(f'v_mov_b32 {v(SUM)}, {hex(f2u(-999292928.0))}')
    for i in range(8):
        e(f'v_cmp_le_i32 vcc, {16*(i>>2)+(i&3)}, {v(T)}'); e(f'v_cndmask_b32 {v(S0+i)}, {v(SUM)}, {v(S0+i)}, vcc')
    e(f'v_max3_f32 {v(MX)}, {v(S0)}, {v(S0+1)}, {v(S0+2)}'); e(f'v_max3_f32 {v(MX)}, {v(MX)}, {v(S0+3)}, {v(S0+4)}'); e(f'v_max3_f32 {v(MX)}, {v(MX)}, {v(S0+5)}, {v(S0+6)}'); e(f'v_max_f32 {v(MX)}, {v(MX)}, {v(S0+7)}')
    p+=xg('v_max_f32',MX,T)
    for i in range(8): e(f'v_sub_f32 {v(S0+i)}, {v(S0+i)}, {v(MX)}')
    for i in range(8): e(f'v_mul_f32 {v(S0+i)}, {s(sLg)}, {v(S0+i)}')
    for i in range(8): e(f'v_exp_f32 {v(S0+i)}, {v(S0+i)}')
    e(f'v_add_f32 {v(SUM)}, {v(S0)}, {v(S0+1)}')
    for i in range(2,8): e(f'v_add_f32 {v(SUM)}, {v(SUM)}, {v(S0+i)}')
    if sync:
        e(f's_cmp_lg_u32 {s(sW)}, 0'); e(f's_cbranch_scc1 {L}_kw'); e(f's_max_u32 {s(sT+2)}, {s(sSeg)}, 1'); e(f's_sub_u32 {s(sT+2)}, {s(sT+2)}, 1'); e(f's_min_u32 {s(sT+2)}, {s(sT+2)}, 61')
        p+=poll(ZR+1,s(sMf),s(sT+2),PR,0,OPT['lp'])+[f'{L}_kw:','s_barrier']
    e(f's_lshl_b32 {s(sT+1)}, {s(sEh)}, 11'); e(f's_add_u32 {s(sT+1)}, {s(sT+1)}, {s(sT+5)}'); e(f's_lshl_b32 {s(sT+2)}, {s(sM)}, 2')
    p.append(f'{L}_kd:')
    for i in range(2): e(f'buffer_load_dwordx4 {v(KV+4*i,4)}, {v(L16)}, {s(WS,4)}, {s(sT+1)} offen offset:{1024*i} sc1')
    e(f's_add_u32 {s(sSpin)}, {s(sSpin)}, 1'); e(f's_cmp_gt_u32 {s(sSpin)}, {LIM}')
    e(f'v_max3_u32 {v(T)}, {v(KV)}, {v(KV+1)}, {v(KV+2)}'); e(f'v_max3_u32 {v(T)}, {v(T)}, {v(KV+3)}, {v(KV+4)}'); e(f'v_max3_u32 {v(T)}, {v(T)}, {v(KV+5)}, {v(KV+6)}'); e(f'v_max_u32 {v(T)}, {v(T)}, {v(KV+7)}')
    e(f'v_cmp_eq_u32 vcc, -1, {v(T)}'); e(f's_cbranch_scc1 {L}_kx')
    if OPT['ks']:
        e(f's_cbranch_vccz {L}_kx'); e(f's_cmp_ge_u32 {s(sSeg)}, 62'); e(f's_cbranch_scc1 {L}_kd'); e(f's_sleep {OPT["ks"]}'); e(f's_branch {L}_kd')
    else: e(f's_cbranch_vccnz {L}_kd')
    p.append(f'{L}_kx:')
    p+=STAMP(8,128)
    e(f's_cmp_eq_u32 {s(sM)}, 1'); e('s_cselect_b64 vcc, -1, 0')
    e(f'v_cndmask_b32 {v(KV+9)}, {v(KV+1)}, {v(KV+5)}, vcc'); e(f'v_cndmask_b32 {v(KV+11)}, {v(KV+3)}, {v(KV+7)}, vcc')
    e(f'ds_write2_b32 {v(KW)}, {v(KV+9)}, {v(KV+11)} offset0:0 offset1:8'); e('s_waitcnt lgkmcnt(0)'); e('s_barrier')
    for k in range(2): e(f'ds_read_b128 {v(KM+4*k,4)}, {v(L16)} offset:{1024*k}')
    for k in range(2): e(f'{SMF} {v(S0+8,4)}, {v(KM+4*k,4)}, {v(QF+8*k,8)}, {v(IDX)}')
    e(f'v_add_f32 {v(S0+8)}, {v(S0+8)}, {v(S0+9)}'); e(f'v_add_f32 {v(S0+9)}, {v(S0+10)}, {v(S0+11)}')
    p+=sround(S0+8)
    AL=S0+10; M2=S0+11
    e(f'v_max3_f32 {v(M2)}, {v(MX)}, {v(S0+8)}, {v(S0+9)}'); p+=xg('v_max_f32',M2,T)
    e(f'v_sub_f32 {v(S0+8)}, {v(S0+8)}, {v(M2)}'); e(f'v_sub_f32 {v(S0+9)}, {v(S0+9)}, {v(M2)}'); e(f'v_sub_f32 {v(AL)}, {v(MX)}, {v(M2)}')
    for i in range(8,11): e(f'v_mul_f32 {v(S0+i)}, {s(sLg)}, {v(S0+i)}')
    for i in range(8,11): e(f'v_exp_f32 {v(S0+i)}, {v(S0+i)}')
    e(f'v_add_f32 {v(M2)}, {v(S0+8)}, {v(S0+9)}'); e(f'v_fmac_f32 {v(M2)}, {v(AL)}, {v(SUM)}')
    p+=xg('v_add_f32',M2,T); e(f'v_rcp_f32 {v(M2)}, {v(M2)}')
    e(f'v_mul_f32 {v(AL)}, {v(AL)}, {v(M2)}')
    e(f'v_pk_mul_f32 {v(S0+8,2)}, {v(S0+8,2)}, {v(AL,2)} op_sel:[0,1]')
    for i in range(0,8,2): e(f'v_pk_mul_f32 {v(S0+i,2)}, {v(S0+i,2)}, {v(AL,2)} op_sel_hi:[1,0]')
    for i in range(4): e(f'v_cvt_pk_bf16_f32 {v(PXr+i)}, {v(S0+2*i)}, {v(S0+2*i+1)}')
    e(f'v_cvt_pk_bf16_f32 {v(ZR)}, {v(S0+8)}, {v(S0+9)}')
    for i in range(4): e(f'{MF32} {v(OA+4*i,4)}, {v(VF+4*i,4)}, {v(PXr,4)}, 0')
    for i in range(4): e(f'{MF16} {v(OA+4*i,4)}, {v(KV+2*i,2)}, {v(ZR,2)}, {v(OA+4*i,4)}')
    e(f's_lshl_b32 {s(sT+1)}, {s(sJ)}, 13'); e(f's_lshl_b32 {s(sT+2)}, {s(sEh)}, 12'); e(f's_add_u32 {s(sT+1)}, {s(sT+1)}, {s(sT+2)}'); e(f's_lshl_b32 {s(sT+2)}, {s(sM)}, 10')
    e(f's_add_u32 {s(sT+1)}, {s(sT+1)}, {s(sT+2)}'); e(f's_add_u32 {s(sT+1)}, {s(sT+1)}, {s(sGB)}')
    for k in range(2):
        for i in range(4): e(f'v_cvt_pk_bf16_f32 {v(QF+4*k+i)}, {v(OA+8*k+2*i)}, {v(OA+8*k+2*i+1)}')
        e(f'buffer_store_dwordx4 {v(QF+4*k,4)}, {v(L16)}, {s(WS,4)}, {s(sT+1)} offen offset:{G_O+2048*k}{sc}')
    p+=gbar()
    def gemm_part(src_lines, nks, wf, dst_off):
        o=list(src_lines)
        nfr=2*nks; per=nfr//4; nch=(per+3)//4
        sizes=[min(4,per-4*c) for c in range(nch)]
        base=0; starts=[]
        for c,sz in enumerate(sizes):
            starts.append(base)
            o+=[f's_mul_i32 {s(sT+2)}, {s(sW)}, {sz*1024}', f's_add_u32 {s(sT+2)}, {s(sT+2)}, {base*1024}', f's_add_u32 m0, {s(sT+2)}, 4096', f's_add_u32 {s(sT+2)}, {s(sT+2)}, {s(sT+1)}']
            o+=[f'buffer_load_dwordx4 {v(L16)}, {s(WS,4)}, {s(sT+2)} offen offset:{1024*i} sc1 lds' for i in range(sz)]
            base+=4*sz
        o+=[f'v_add_u32 {v(T)}, 4096, {v(L16)}']
        left=per
        for c,sz in enumerate(sizes):
            left-=sz
            o+=[f's_waitcnt vmcnt({left})','s_barrier']
            fr=list(range(starts[c],starts[c]+4*sz))
            rd=lambda f: f'ds_read_b128 {v(QF+4*(f%8),4)}, {v(T)} offset:{1024*f}'
            o+=[rd(f) for f in fr[:4]]
            for i,f in enumerate(fr):
                ac=v(OA+4*(f&1),4)
                o.append(f'{MF32} {ac}, {v(QF+4*(f%8),4)}, {wf(f>>1)}, '+(ac if f>1 else '0'))
                if i+4<len(fr): o.append(rd(fr[i+4]))
        o+=STAMP(16 if nks==32 else 19,128)
        for mt in range(2):
            for r in range(4):
                o+=[f's_add_u32 {s(sT+2)}, {s(sGB)}, {dst_off+(16*mt+r)*8192}', f'buffer_store_dword {v(OA+4*mt+r)}, {v(PSA)}, {s(WS,4)}, {s(sT+2)} offen{sc}']
        return o
    p+=gemm_part([f's_lshl_b32 {s(sT+1)}, {s(sKq)}, 16', f's_add_u32 {s(sT+1)}, {s(sT+1)}, {s(sGB)}'],32,WO,G_P1)
    nb[0]+=1
    def rowsum(off,tag):
        k_=f'{L}_{tag}'
        o=[f's_lshl_b32 {s(sT+1)}, {s(sJ)}, 13', f's_add_u32 {s(sT+1)}, {s(sT+1)}, {s(sGB)}', f's_add_u32 {s(sT+1)}, {s(sT+1)}, {off}', f's_add_u32 {s(sT+2)}, {s(sT+1)}, 4096', f'v_lshlrev_b32 {v(T)}, 1, {v(L16)}']+([f's_sleep {OPT["rd"]}'] if OPT['rd'] else [])+[k_+':']
        for k in range(4):
            for hf in range(2): o.append(f'buffer_load_dwordx4 {v(QF+8*k+4*hf,4)}, {v(T)}, {s(WS,4)}, {s(sT+1+(k>>1))} offen offset:{2048*(k&1)+16*hf} sc1')
        o+=[f's_add_u32 {s(sSpin)}, {s(sSpin)}, 4', f's_cmp_gt_u32 {s(sSpin)}, {LIM}']
        for k in range(1,4):
            for i in range(0,8,2): o.append(f'v_pk_add_f32 {v(QF+i,2)}, {v(QF+i,2)}, {v(QF+8*k+i,2)}')
        o+=[f'v_pk_add_f32 {v(QF+8,2)}, {v(QF,2)}, {v(QF+2,2)}', f'v_pk_add_f32 {v(QF+10,2)}, {v(QF+4,2)}, {v(QF+6,2)}', f'v_pk_add_f32 {v(QF+8,2)}, {v(QF+8,2)}, {v(QF+10,2)}',
            f'v_cmp_u_f32 vcc, {v(QF+8)}, {v(QF+9)}', f's_cbranch_scc1 {k_}x', f's_cbranch_vccnz {k_}', k_+'x:']
        for i in range(0,8,2): o+=rnd(QF+i,QF+i+1,T)
        return o
    repoison=[f'buffer_store_dwordx4 {v(NEG,4)}, {v(L16)}, {s(WS,4)}, {s(sT+1+(i>>2))} offen offset:{1024*(i&3)}{sc}' for i in range(8)]
    e(f's_cmp_lt_u32 {s(sSeg)}, 38'); e(f's_cselect_b32 {s(sCnt)}, 5, 7'); e(f's_add_u32 {s(sCnt)}, {s(sSeg)}, {s(sCnt)}')
    e(f's_cmp_eq_u32 {s(sW)}, 0'); e(f's_cbranch_scc1 {L}_n0')
    e('s_barrier'); e(f's_cmp_ge_u32 {s(sCnt)}, 64'); e(f's_cbranch_scc1 {L}_n1')
    p+=qkv_fetch(sync,sCnt); e(f's_branch {L}_n1')
    p.append(f'{L}_n0:')
    for i in range(4): p+=unp(X1+2*i,XR+i)
    p+=rowsum(G_P1,'ra')+['s_barrier']+STAMP(10,128)
    for i in range(0,8,2): e(f'v_pk_mul_f32 {v(QF+i,2)}, {v(QF+i,2)}, {v(MODV+i,2)}')
    for i in range(0,8,2): p+=rnd(QF+i,QF+i+1,T)
    for i in range(0,8,2): e(f'v_pk_add_f32 {v(X1+i,2)}, {v(X1+i,2)}, {v(QF+i,2)}')
    for i in range(0,8,2): p+=rnd(X1+i,X1+i+1,T)
    e(f'v_pk_add_f32 {v(QF,2)}, {v(X1,2)}, {v(X1+2,2)}'); e(f'v_pk_add_f32 {v(QF+2,2)}, {v(X1+4,2)}, {v(X1+6,2)}'); e(f'v_pk_add_f32 {v(QF,2)}, {v(QF,2)}, {v(QF+2,2)}'); e(f'v_add_f32 {v(MX)}, {v(QF)}, {v(QF+1)}')
    p+=xrow(MX)+xg('v_add_f32',MX,T); e(f'v_mul_f32 {v(MX)}, {hex(f2u(1/512))}, {v(MX)}')
    sub=lambda i: f'v_pk_add_f32 {v(QF+i,2)}, {v(X1+i,2)}, {v(MX-1,2)} op_sel:[0,1] neg_lo:[0,1] neg_hi:[0,1]'
    for i in range(0,8,2): e(sub(i))
    e(f'v_pk_mul_f32 {v(QF,2)}, {v(QF,2)}, {v(QF,2)}')
    for i in range(2,8,2): e(f'v_pk_fma_f32 {v(QF,2)}, {v(QF+i,2)}, {v(QF+i,2)}, {v(QF,2)}')
    e(f'v_add_f32 {v(SUM)}, {v(QF)}, {v(QF+1)}')
    p+=xrow(SUM)+xg('v_add_f32',SUM,T); e(f'v_mul_f32 {v(SUM)}, {hex(f2u(1/512))}, {v(SUM)}')
    p+=rnd(MX,SUM,T)
    e(f'v_add_f32 {v(SUM)}, {hex(f2u(1e-5))}, {v(SUM)}'); p+=rnd(SUM,SUM,T)[:2]
    e(f'v_sqrt_f32 {v(SUM)}, {v(SUM)}'); p+=rnd(SUM,SUM,T)[:2]
    e(f'v_rcp_f32 {v(SUM)}, {v(SUM)}')
    for i in range(0,8,2): e(sub(i))
    for i in range(0,8,2): p+=rnd(QF+i,QF+i+1,T)
    for i in range(0,8,2): e(f'v_pk_mul_f32 {v(QF+i,2)}, {v(QF+i,2)}, {v(SUM,2)} op_sel_hi:[1,0]')
    for i in range(0,8,2): p+=rnd(QF+i,QF+i+1,T)
    for i in range(0,8,2): e(f'v_pk_mul_f32 {v(QF+i,2)}, {v(QF+i,2)}, {v(MODV+16+i,2)}')
    for i in range(0,8,2): p+=rnd(QF+i,QF+i+1,T)
    for i in range(0,8,2): e(f'v_pk_add_f32 {v(QF+i,2)}, {v(QF+i,2)}, {v(MODV+8+i,2)}')
    for i in range(4): e(f'v_cvt_pk_bf16_f32 {v(QF+8+i)}, {v(QF+2*i)}, {v(QF+2*i+1)}')
    e(f's_lshl_b32 {s(sT+1)}, {s(sJ)}, 10'); e(f's_add_u32 {s(sT+1)}, {s(sT+1)}, {s(sGB)}'); e(f's_add_u32 {s(sT+1)}, {s(sT+1)}, {G_H2}')
    e(f'buffer_store_dwordx4 {v(QF+8,4)}, {v(L16)}, {s(WS,4)}, {s(sT+1)} offen{sc}')
    p+=STAMP(15,128)
    p.append(f'{L}_n1:')
    p+=gbar()
    e(f's_cmp_ge_u32 {s(sJ)}, 28'); e(f's_cbranch_scc1 {L}_n2')
    e(f's_lshl_b32 {s(sT+1)}, {s(sW)}, 13'); e(f's_add_u32 {s(sT+1)}, {s(sT+1)}, {s(sGB)}'); e(f's_add_u32 {s(sT+1)}, {s(sT+1)}, {G_H2}')
    e(f's_lshl_b32 {s(sT+2)}, {s(sEh)}, 14'); e(f's_lshl_b32 {s(sT+3)}, {s(sM)}, 10'); e(f's_add_u32 {s(sT+2)}, {s(sT+2)}, {s(sT+3)}')
    for i in range(8):
        e(f's_add_u32 m0, {s(sT+2)}, {4096+2048*i}'); e(f's_add_u32 {s(sT+3)}, {s(sT+1)}, {128*i}')
        e(f'buffer_load_dwordx4 {v(HSR)}, {s(WS,4)}, {s(sT+3)} offen sc1 lds')
    rd=lambda ks: f'ds_read_b128 {v(QF+4*(ks%8),4)}, {v(HRD1 if ks&1 else HRD)} offset:{4096+2048*(ks>>1)}'
    for c in range(2):
        e(f's_waitcnt vmcnt({4-4*c})'); e('s_barrier')
        if c==1: p+=STAMP(17,128)
        for ks in range(8*c,8*c+4): e(rd(ks))
        for ks in range(8*c,8*c+8):
            for t in range(2): e(f'{MF32} {v(OA+4*t,4)}, {W1(t,ks)}, {v(QF+4*(ks%8),4)}, '+(v(OA+4*t,4) if ks else '0'))
            if ks+4<8*c+8: e(rd(ks+4))
    e(f's_lshl_b32 {s(sT+1)}, {s(sJ)}, 12'); e(f's_lshl_b32 {s(sT+2)}, {s(sEh)}, 11'); e(f's_add_u32 {s(sT+1)}, {s(sT+1)}, {s(sT+2)}'); e(f's_lshl_b32 {s(sT+2)}, {s(sM)}, 10')
    e(f's_add_u32 {s(sT+1)}, {s(sT+1)}, {s(sT+2)}'); e(f's_add_u32 {s(sT+1)}, {s(sT+1)}, {s(sGB)}'); e(f's_add_u32 {s(sT+1)}, {s(sT+1)}, {G_F1}')
    for i in range(8): e(f'v_max_f32 {v(OA+i)}, 0, {v(OA+i)}')
    for i in range(4): e(f'v_cvt_pk_bf16_f32 {v(PXr+i)}, {v(OA+2*i)}, {v(OA+2*i+1)}')
    e(f'buffer_store_dwordx4 {v(PXr,4)}, {v(L16)}, {s(WS,4)}, {s(sT+1)} offen{sc}')
    p+=STAMP(18,128)
    p.append(f'{L}_n2:')
    p+=gbar()
    p+=gemm_part([f's_mul_i32 {s(sT+1)}, {s(sKq)}, 28672', f's_add_u32 {s(sT+1)}, {s(sT+1)}, {s(sGB)}', f's_add_u32 {s(sT+1)}, {s(sT+1)}, {G_F1}'],14,W2,G_P2)
    nb[0]+=1
    e(f's_cmp_lg_u32 {s(sW)}, 0'); e(f's_cbranch_scc1 {L}_n3')
    p+=rowsum(G_P2,'rb')+STAMP(13,128)
    for i in range(0,8,2): e(f'v_pk_mul_f32 {v(QF+i,2)}, {v(QF+i,2)}, {v(MODV+24+i,2)}')
    for i in range(0,8,2): p+=rnd(QF+i,QF+i+1,T)
    for i in range(0,8,2): e(f'v_pk_add_f32 {v(QF+i,2)}, {v(QF+i,2)}, {v(X1+i,2)}')
    for i in range(4): e(f'v_cvt_pk_bf16_f32 {v(QF+8+i)}, {v(QF+2*i)}, {v(QF+2*i+1)}')
    e(f'v_add_u32 {v(T)}, {s(sT+6)}, {v(L16)}')
    e(f'global_store_dwordx4 {v(T)}, {v(QF+8,4)}, {s(POUT,2)}')
    e(f's_cmp_ge_u32 {s(sSeg)}, 57'); e(f's_cbranch_scc1 {L}_n4')
    p+=repoison+[f'{L}_n4:']
    p+=STAMP(14,128)+STAMP(20,96)+STAMP(21,64)+STAMP(22,32)
    p.append(f'{L}_n3:')
    e(f's_lshl_b32 {s(sT+1)}, {s(sJ)}, 2'); e(f's_add_u32 {s(sT+1)}, {s(sT+1)}, {s(sW)}'); e(f's_lshl_b32 {s(sT+1)}, {s(sT+1)}, 11'); e(f's_add_u32 {s(sT+1)}, {s(sT+1)}, {s(sGB)}'); e(f's_add_u32 {s(sT+1)}, {s(sT+1)}, {G_P1}')
    e(f's_cmp_ge_u32 {s(sSeg)}, 57'); e(f's_cbranch_scc1 {L}_end')
    e('s_barrier')
    p+=repoison[:2]
    e(f's_mov_b32 {s(sSeg)}, {s(sCnt)}'); e(f's_branch {L}')
    p.append(f'{L}_end:')
    e('s_endpgm')
    r=fix(p,'p2'+mode); check(r+r,'p2loop')
    return r
```

```python
from asmlib import *
from layout import *
import math, struct, re

T0=0; IDX=1; L16=2; LW=3; QW=4; QR=5; KW=6; OW=7; ORD=8; PST=9; MPUB=10; H2A=10; FLG=11
ONES=12; PM=16; KVQ=20; QA=24; KA=32; VA=40; M=48; X=80; STG=112; RES=128
L_MEM=0; L_Q=8192; L_K=10240; L_O=12288; L_SEL=14336; L_KX=16384; L_WV=24576; WREG=34816
WS=4; WSRD=8; DBG=12; sH=14; sW=15; sStep=16; sC=17; sKsrc=18; sVsrc=19; sKvm=20
sPst=21; sPin=23; sPrst=25; sPrstB=26; sPslot=27; sMemIn1=28; sSpinU=29; sPinB=30
sMemIn0=31; sMemB=32; sMemPub=33; sMemRst=34; sSlot=35; sSpin=36; sKdst=37; sKvF=38; sVdst=39; sKvmF=40; sReg=41
sT=42
sRo1=52; sRo2=56; sEx=50; sPtr=52; sRow=64; sTime=70; sOdd=88; sOne=92; sC2=94; sSpinF=96; sFlag=98; sFlagB=99; sWoff=100
LIM='0x80000'
SMF='v_smfmac_f32_16x16x64_bf16'; MF32='v_mfma_f32_16x16x32_bf16'; MF16='v_mfma_f32_16x16x16_bf16'
OPT=dict(sync=0, d1=22, sl=4, nb=6, pp=0, rep=2, hotkv=0, tr=0, solo=0, cut=99, drop=0, cutm=-1, show=0, pfi=22, pfn=1, th=0, mr=0, t1=1, dd=2, el=2, bl=3, ca=8, z4=1, bb=0, xl=1, eb=1, knt=0, ek=1, sw1=0, ord=3, dc=7, fi=28, de=5, v1=1, pub=1, nt=1, rs=0, b0=1, ro1=0, ro2=0, rp=0, warm=1, sp=0, np=2, dp=0, ps=24, sw=5)

lds_groups=[('q',0),('q',1),('q',2),('q',3),('o',0,3),('o',1,1),('o',1,2),('o',1,3)]
all_groups=[(m,c) for m in 'qkv' for c in range(8)]+[('o',tp,k) for tp in range(2) for k in range(4)]
res_groups=[g for g in all_groups if g not in lds_groups]
gloc={}
for i,g in enumerate(res_groups): gloc[g]=('a',16*i) if i<16 else ('v',RES+16*(i-16))
stream={('q',0,0):M+16,('q',0,1):M+24,('q',1,0):KA,('q',1,1):VA,('q',2,0):X,('q',2,1):X+8,('q',3,0):X+16,('q',3,1):X+24,
        ('o',0,3,0):X+8,('o',0,3,1):X+24,('o',1,1,0):X,('o',1,2,0):X+16,('o',1,3,0):KA,('o',1,1,1):VA,('o',1,2,1):QA,('o',1,3,1):X+8}
def ureg(g,t):
    if g in gloc: return gloc[g][0], gloc[g][1]+8*t
    return 'v', stream[g+(t,)]
def unit(g,t): p,b=ureg(g,t); return R(p,b,8)
def stream_reads(g,t):
    off=lds_groups.index(g)*4096+t*2048; b=stream[g+(t,)]
    return [f'ds_read_b128 {v(b,4)}, {v(LW)} offset:{off}', f'ds_read_b128 {v(b+4,4)}, {v(LW)} offset:{off+1024}']
def zero(b,n,val='0'): return [f'v_mov_b64 {v(b+i,2)}, {val}' for i in range(0,n,2)]
def kv_addr(): return [f'v_lshrrev_b32 {v(T0)}, 2, {v(L16)}', f'v_and_b32 {v(T0)}, 4, {v(T0)}']
def kv_check(L):
    return kv_addr()+[f's_add_u32 {s(sT+3)}, {s(sStep)}, 1', f's_min_u32 {s(sT+3)}, {s(sT+3)}, 63', f's_lshl_b32 {s(sT+3)}, {s(sT+3)}, 2', f'{L}c:',
            f'v_lshl_add_u32 {v(FLG)}, {v(FLG)}, 3, {v(T0)}', f'v_cmp_ge_u32 vcc, {s(sT+3)}, {v(FLG)}', f's_cbranch_vccnz {L}w', f'{L}x:']
def kv_wait(L):
    return [f'{L}w:', f's_add_u32 {s(sSpinF)}, {s(sSpinF)}, 1', f's_cmp_gt_u32 {s(sSpinF)}, {LIM}', f's_cbranch_scc1 {L}x',
            f'buffer_load_dword {v(FLG)}, {v(T0)}, {s(WS,4)}, {s(sKvF)} offen sc1', 's_waitcnt vmcnt(0)', f's_branch {L}c']
def h2_addr(d,t):
    if OPT['el']:
        return [f'v_and_b32 {v(d)}, 0x30, {v(L16)}', f'v_and_b32 {v(t)}, 0xc0, {v(L16)}', f'v_lshl_add_u32 {v(d)}, {v(t)}, 2, {v(d)}',
                f'v_and_b32 {v(t)}, 0x300, {v(L16)}', f'v_lshrrev_b32 {v(t)}, 2, {v(t)}', f'v_or_b32 {v(d)}, {v(d)}, {v(t)}']
    return [f'v_and_b32 {v(d)}, 0x230, {v(L16)}', f'v_and_b32 {v(t)}, 0xc0, {v(L16)}', f'v_lshl_add_u32 {v(d)}, {v(t)}, 1, {v(d)}',
            f'v_and_b32 {v(t)}, 0x100, {v(L16)}', f'v_lshrrev_b32 {v(t)}, 2, {v(t)}', f'v_or_b32 {v(d)}, {v(d)}, {v(t)}']

def prologue(timing):
    p=[]; e=p.append
    VQ=[]
    def vm(line,tag=None): e(line); VQ.append(tag)
    def wait(tag):
        i=max(k for k,t in enumerate(VQ) if t==tag); e(f's_waitcnt vmcnt({min(63,len(VQ)-1-i)})')
    e(f's_load_dwordx2 {s(WSRD,2)}, s[0:1], 40')
    e(f's_load_dwordx4 {s(sPtr,4)}, s[0:1], 8')
    e(f's_load_dwordx4 {s(sPtr+4,4)}, s[0:1], 24')
    e(f's_load_dwordx2 {s(DBG,2)}, s[0:1], 104')
    e(f's_load_dwordx2 {s(WS,2)}, s[0:1], 112')
    if timing: e(f's_memrealtime {s(sTime,2)}')
    ln,n,g,t1,t2,g1,VOO,VA0,VA1,TO0,TO1,TA0,TA1,TB0,TB1,r=[STG+i for i in range(16)]
    e(f'v_lshrrev_b32 {v(t1)}, 6, v0'); e(f'v_and_b32 {v(ln)}, 63, v0'); e(f'v_readfirstlane_b32 {s(sW)}, {v(t1)}')
    e(f's_mov_b32 {s(WSRD+2)}, {4<<20}'); e(f's_mov_b32 {s(WSRD+3)}, 0x20000')
    e(f'v_and_b32 {v(n)}, 15, {v(ln)}'); e(f'v_lshrrev_b32 {v(g)}, 4, {v(ln)}'); e(f'v_and_b32 {v(g1)}, 1, {v(g)}')
    e(f's_mul_i32 {s(sReg)}, {s(sW)}, {WREG}'); e(f's_add_u32 {s(sReg)}, {s(sReg)}, {L_WV}')
    e(f'v_lshrrev_b32 {v(t1)}, 3, {v(n)}'); e(f'v_lshl_add_u32 {v(t1)}, {v(g1)}, 4, {v(t1)}'); e(f'v_lshrrev_b32 {v(t2)}, 1, {v(g)}'); e(f'v_lshl_add_u32 {v(t1)}, {v(t2)}, 2, {v(t1)}')
    e(f'v_and_b32 {v(t2)}, 7, {v(n)}'); e(f'v_lshlrev_b32 {v(t2)}, 4, {v(t2)}'); e(f'v_lshlrev_b32 {v(VOO)}, 6, {v(g1)}'); e(f'v_xor_b32 {v(t2)}, {v(t2)}, {v(VOO)}')
    e(f'v_lshl_add_u32 {v(VOO)}, {v(t1)}, 10, {v(t2)}')
    e(f's_lshl_b32 {s(sT)}, {s(sH)}, 17'); e(f's_lshl_b32 {s(sT+1)}, {s(sW)}, 8'); e(f's_add_u32 {s(sT)}, {s(sT)}, {s(sT+1)}')
    for k in range(4):
        e(f's_xor_b32 {s(sRow+k)}, {s(sW)}, {k}'); e(f's_lshl_b32 {s(sRow+k)}, {s(sRow+k)}, 15'); e(f's_add_u32 {s(sRow+k)}, {s(sRow+k)}, {s(sT)}')
    e('s_waitcnt lgkmcnt(0)')
    if timing: e('s_memrealtime s[80:81] ;stamp')
    items=[g_ for m_ in 'okvq' for g_ in res_groups if g_[0]==m_]+lds_groups
    SL=[i%8 for i in range(32)]
    k_=OPT['ord']
    if k_:
        items=items[:4]+items[32-k_:]+items[4:32-k_]
        R_=8-k_; n_=28-k_
        SL=[None]*4+list(range(8-k_,8))+[(j-n_)%R_ for j in range(n_)]
        SL[:4]=[(j-4-n_)%R_ for j in range(4)]
    nxt_=[0]
    def pump(it,lim):
        while nxt_[0]<32 and nxt_[0]<=lim and all(j<it for j in range(nxt_[0]) if SL[j]==SL[nxt_[0]]):
            issue(nxt_[0]); nxt_[0]+=1
    ptr={'q':sPtr+2,'k':sPtr+4,'v':sPtr+6,'o':sPtr+8}
    ntf=' nt' if OPT['nt'] else ''
    def issue(i):
        g_=items[i]
        if i>=4: e(f's_mov_b32 {s(WSRD)}, {s(ptr[g_[0]])}'); e(f's_mov_b32 {s(WSRD+1)}, {s(ptr[g_[0]]+1)}')
        for b in range(4):
            e(f's_add_u32 m0, {s(sReg)}, {SL[i]*4096+b*1024}')
            if g_[0]=='o': e(f's_add_u32 {s(sT+7)}, {s(sRow+g_[2])}, {(8*(b>>1)+2*(b&1))*1024+g_[1]*128}'); vo=VOO
            else: e(f's_mov_b32 {s(sT+7)}, {(128*(g_[1]&3)+(64 if OPT["el"] else 8)*(g_[1]>>2)+4*(b>>1)+(b&1))*8192}'); vo=VA1 if b&1 else VA0
            vm(f'buffer_load_dwordx4 {v(vo)}, {s(WSRD,4)}, {s(sT+7)} offen{ntf} lds',g_)
    pump(0,3)
    e(f's_mov_b32 {s(sPtr+8)}, {s(WSRD)}'); e(f's_mov_b32 {s(sPtr+9)}, {s(WSRD+1)}')
    e(f's_mov_b32 {s(WS+2)}, {WS_BYTES}'); e(f's_mov_b32 {s(WS+3)}, 0x20000')
    e(f'v_lshlrev_b32 {v(L16)}, 4, {v(ln)}'); e(f'v_add_u32 {v(LW)}, {s(sReg)}, {v(L16)}')
    e(f's_add_u32 {s(sVdst)}, {s(sReg)}, 32768')
    e(f's_lshl_b32 {s(sT+1)}, {s(sW)}, 11'); e(f's_add_u32 {s(sKdst)}, {s(sT+1)}, {L_KX}')
    e(f's_lshl_b32 {s(sWoff)}, {s(sW)}, 10')
    e(f'v_and_b32 {v(t1)}, 1, {v(ln)}'); e(f'v_mul_u32_u24 {v(t1)}, 0xaaaa, {v(t1)}'); e(f'v_add_u32 {v(IDX)}, 0x4444, {v(t1)}')
    e(f's_lshl_b32 {s(sT+2)}, {s(sW)}, 9')
    e(f'v_lshrrev_b32 {v(r)}, 2, {v(n)}'); e(f'v_lshlrev_b32 {v(QW)}, 7, {v(r)}'); e(f'v_and_b32 {v(t1)}, 1, {v(r)}'); e(f'v_lshlrev_b32 {v(t1)}, 6, {v(t1)}')
    e(f'v_lshlrev_b32 {v(t2)}, 5, {v(g)}'); e(f'v_xor_b32 {v(t1)}, {v(t1)}, {v(t2)}'); e(f'v_add_u32 {v(QW)}, {v(QW)}, {v(t1)}')
    e(f'v_and_b32 {v(t1)}, 3, {v(n)}'); e(f'v_lshl_add_u32 {v(QW)}, {v(t1)}, 2, {v(QW)}'); e(f'v_add_u32 {v(QW)}, {s(sT+2)}, {v(QW)}'); e(f'v_add_u32 {v(QW)}, {L_Q}, {v(QW)}')
    e(f'v_lshlrev_b32 {v(t1)}, 3, {v(ln)}'); e(f'v_add_u32 {v(OW)}, {s(sT+2)}, {v(t1)}'); e(f'v_and_b32 {v(ORD)}, -9, {v(OW)}')
    e(f'v_and_b32 {v(t1)}, -9, {v(t1)}'); e(f'v_lshlrev_b32 {v(t2)}, 6, {v(g1)}'); e(f'v_xor_b32 {v(QR)}, {v(t1)}, {v(t2)}')
    e(f'v_bfe_u32 {v(t1)}, {v(n)}, 1, 2'); e(f'v_lshlrev_b32 {v(KW)}, 2, {v(t1)}'); e(f'v_and_b32 {v(t1)}, 1, {v(n)}'); e(f'v_lshl_add_u32 {v(KW)}, {v(t1)}, 4, {v(KW)}')
    e(f'v_lshl_add_u32 {v(KW)}, {v(g)}, 6, {v(KW)}'); e(f'v_lshrrev_b32 {v(t1)}, 3, {v(n)}'); e(f'v_lshl_add_u32 {v(KW)}, {v(t1)}, 8, {v(KW)}')
    e(f'v_add_u32 {v(KW)}, {s(sT+2)}, {v(KW)}'); e(f'v_add_u32 {v(KW)}, {L_K}, {v(KW)}')
    e(f'v_lshlrev_b32 {v(MPUB)}, {7 if OPT["el"] else 12}, {v(t1)}'); e(f'v_and_b32 {v(t1)}, 1, {v(r)}'); e(f'v_lshl_add_u32 {v(MPUB)}, {v(t1)}, 6, {v(MPUB)}'); e(f'v_lshl_add_u32 {v(MPUB)}, {v(g1)}, 5, {v(MPUB)}')
    e(f'v_and_b32 {v(t1)}, 3, {v(n)}'); e(f'v_lshl_add_u32 {v(MPUB)}, {v(t1)}, 3, {v(MPUB)}'); e(f'v_lshrrev_b32 {v(t2)}, 1, {v(g)}'); e(f'v_lshl_add_u32 {v(MPUB)}, {v(t2)}, 31, {v(MPUB)}')
    e(f'v_lshlrev_b32 {v(TO0)}, 8, {v(g)}'); e(f'v_lshl_add_u32 {v(TO0)}, {v(t1)}, 3, {v(TO0)}'); e(f'v_lshl_add_u32 {v(TO0)}, {v(g1)}, 6, {v(TO0)}')
    e(f'v_and_b32 {v(t2)}, 1, {v(r)}'); e(f'v_lshl_add_u32 {v(TO0)}, {v(t2)}, 7, {v(TO0)}'); e(f'v_lshrrev_b32 {v(t2)}, 1, {v(r)}'); e(f'v_lshl_add_u32 {v(TO0)}, {v(t2)}, 5, {v(TO0)}')
    e(f'v_add_u32 {v(TO0)}, {s(sReg)}, {v(TO0)}'); e(f'v_xor_b32 {v(TO1)}, 64, {v(TO0)}')
    e(f'v_lshl_add_u32 {v(t2)}, {v(g1)}, 2, {v(r)}'); e(f's_lshl_b32 {s(sT+3)}, {s(sW)}, 1'); e(f'v_xor_b32 {v(t2)}, {s(sT+3)}, {v(t2)}')
    e(f'v_lshlrev_b32 {v(TA0)}, 10, {v(g)}'); e(f'v_lshl_add_u32 {v(TA0)}, {v(r)}, 8, {v(TA0)}'); e(f'v_lshl_add_u32 {v(TA0)}, {v(t2)}, 5, {v(TA0)}'); e(f'v_lshl_add_u32 {v(TA0)}, {v(t1)}, 3, {v(TA0)}')
    e(f'v_add_u32 {v(TA0)}, {L_WV}, {v(TA0)}'); e(f'v_xor_b32 {v(TA1)}, 32, {v(TA0)}'); e(f'v_add_u32 {v(TB0)}, {2*WREG}, {v(TA0)}'); e(f'v_add_u32 {v(TB1)}, {2*WREG}, {v(TA1)}')
    e(f's_lshl_b32 {s(sT+4)}, {s(sH)}, 8')
    e(f'v_and_b32 {v(t2)}, 2, {v(g)}'); e(f'v_lshl_add_u32 {v(t2)}, {v(g1)}, 4, {v(t2)}'); e(f'v_lshlrev_b32 {v(t1)}, 1, {v(g)}'); e(f'v_xor_b32 {v(t1)}, {v(t1)}, {v(n)}'); e(f'v_lshlrev_b32 {v(t1)}, 4, {v(t1)}')
    e(f'v_lshl_add_u32 {v(VA0)}, {v(t2)}, 13, {v(t1)}'); e(f's_lshl_b32 {s(sT+3)}, {s(sW)}, 18')
    if OPT['el']: e(f's_and_b32 {s(sT+3)}, {s(sT+3)}, {1<<18}'); e(f's_lshr_b32 {s(sT+5)}, {s(sW)}, 1'); e(f's_lshl_b32 {s(sT+5)}, {s(sT+5)}, 16'); e(f's_add_u32 {s(sT+3)}, {s(sT+3)}, {s(sT+5)}')
    e(f's_add_u32 {s(sT+3)}, {s(sT+3)}, {s(sT+4)}')
    e(f'v_add_u32 {v(VA0)}, {s(sT+3)}, {v(VA0)}'); e(f'v_xor_b32 {v(VA1)}, 128, {v(VA0)}')
    e(f's_lshl_b32 {s(sT+3)}, {s(sW)}, 15'); e(f'v_lshlrev_b32 {v(t1)}, 11, {v(r)}'); e(f'v_add_u32 {v(t1)}, {s(sT+4)}, {v(t1)}'); e(f'v_and_b32 {v(t1)}, 0x1fff, {v(t1)}')
    e(f'v_lshl_add_u32 {v(PST)}, {v(g)}, 13, {v(t1)}'); e(f'v_lshl_add_u32 {v(PST)}, {v(n)}, 4, {v(PST)}'); e(f'v_add_u32 {v(PST)}, {s(sT+3)}, {v(PST)}')
    Rp=OPT['rep']; cval=struct.unpack('<I',struct.pack('<f',math.log2(math.e)/math.sqrt(128)))[0]
    for r_,val in ((sC,cval),(sC2,cval),(sC2+1,cval),(sStep,0),(sSpin,0),(sSpinU,0),(sSpinF,0),(sSlot,0),(sPslot,3*262144),(sOne,0x3f803f80),(sOne+1,0x3f803f80),
                   (sOdd,0xaaaaaaaa),(sOdd+1,0xaaaaaaaa),(sEx,0x10001 if Rp>1 else 1),(sEx+1,0x10001 if Rp>2 else 0)): e(f's_mov_b32 {s(r_)}, {hex(val)}')
    e(f's_and_b32 {s(sFlagB)}, {s(sH)}, {Rp-1}'); e(f's_lshl_b32 {s(sFlagB)}, {s(sFlagB)}, 8'); e(f's_add_u32 {s(sFlagB)}, {s(sFlagB)}, {FLAG_OFF}')
    e(f's_lshl_b32 {s(sFlag)}, {s(sH)}, 2'); e(f's_add_u32 {s(sFlag)}, {s(sFlag)}, {FLAG_OFF}')
    e(f's_lshl_b32 {s(sPinB)}, {s(sH)}, 13'); e(f's_add_u32 {s(sPinB)}, {s(sPinB)}, {PART_OFF}'); e(f's_add_u32 {s(sPrstB)}, {s(sPinB)}, {s(sT+1)}')
    e(f's_bfe_u32 {s(sT+5)}, {s(sH)}, 0x20002'); e(f's_lshl_b32 {s(sMemB)}, {s(sT+5)}, 10'); e(f's_lshr_b32 {s(sT+5)}, {s(sH)}, 4'); e(f's_lshl_b32 {s(sT+5)}, {s(sT+5)}, 9')
    e(f's_add_u32 {s(sMemB)}, {s(sMemB)}, {s(sT+5)}'); e(f's_and_b32 {s(sT+5)}, {s(sH)}, 3'); e(f's_lshl_b32 {s(sT+5)}, {s(sT+5)}, 7'); e(f's_add_u32 {s(sMemB)}, {s(sMemB)}, {s(sT+5)}'); e(f's_add_u32 {s(sMemB)}, {s(sMemB)}, {MEM_OFF}')
    if OPT['el']: e(f's_add_u32 {s(sMemB)}, {s(sT+4)}, {MEM_OFF}')
    e(f's_lshl_b32 {s(sKsrc)}, {s(sH)}, 20'); e(f's_add_u32 {s(sKsrc)}, {s(sKsrc)}, {s(sT+1)}'); e(f's_add_u32 {s(sKsrc)}, {s(sKsrc)}, {KV_OFF}'); e(f's_add_u32 {s(sVsrc)}, {s(sKsrc)}, 8192')
    e(f's_lshl_b32 {s(sKvm)}, {s(sH)}, 18'); e(f's_add_u32 {s(sKvm)}, {s(sKvm)}, {s(sWoff)}'); e(f's_add_u32 {s(sKvm)}, {s(sKvm)}, {KVM_OFF}')
    e(f's_lshl_b32 {s(sKvF)}, {s(sH)}, 7'); e(f's_add_u32 {s(sKvmF)}, {s(sKvF)}, {BF_OFF+BF_KVM}'); e(f's_add_u32 {s(sKvF)}, {s(sKvF)}, {BF_OFF+BF_KV}')
    p+=zero(PM,4)+zero(ONES,4,'-1')
    e(f'v_and_b32 {v(t1)}, 2, {v(n)}'); e(f'v_lshlrev_b32 {v(t1)}, 3, {v(t1)}'); e(f'v_mov_b32 {v(t2)}, 0x3f80'); e(f'v_lshlrev_b32 {v(t2)}, {v(t1)}, {v(t2)}'); e(f'v_bfe_u32 {v(t1)}, {v(n)}, 2, 1')
    for jj in range(4):
        e(f'v_cmp_eq_u32 vcc, {jj&1}, {v(t1)}'); e(f'v_cndmask_b32 {v(M+jj)}, 0, {v(t2)}, vcc')
    e(f'ds_write_b128 {v(L16)}, {v(M,4)} offset:{L_SEL}')
    e(f'v_lshrrev_b32 {v(T0)}, 1, {v(n)}'); e(f'v_lshlrev_b32 {v(T0)}, 10, {v(T0)}'); e(f'v_lshl_add_u32 {v(T0)}, {v(g1)}, 3, {v(T0)}')
    e(f'v_and_b32 {v(t1)}, 2, {v(g)}'); e(f'v_lshl_add_u32 {v(T0)}, {v(t1)}, {3 if OPT["el"] else 6}, {v(T0)}'); e(f'v_and_b32 {v(t1)}, 1, {v(n)}'); e(f'v_lshl_add_u32 {v(T0)}, {v(t1)}, 2, {v(T0)}')
    e(f's_lshl_b32 {s(sT+5)}, {s(sW)}, 8'); e(f'v_add_u32 {v(T0)}, {s(sT+5)}, {v(T0)}')
    D=OPT['dc']
    pump(0,D-1)
    if timing: e('s_memrealtime s[82:83] ;stamp')
    if not OPT['sync']:
        e(f's_lshl_b32 {s(sT+5)}, {s(sW)}, 18'); e(f's_add_u32 {s(sT+5)}, {s(sT+5)}, {s(sPinB)}'); e(f's_add_u32 {s(sT+6)}, {s(sT+5)}, 4096')
        for j in range(8): vm(f'buffer_store_dwordx4 {v(ONES,4)}, {v(L16)}, {s(WS,4)}, {s(sT+5+(j>>2))} offen offset:{(j&3)*1024} sc1','x')
        e(f's_lshl_b32 {s(sT+5)}, {s(sW)}, 13'); e(f's_add_u32 {s(sT+5)}, {s(sT+5)}, {s(sMemB)}')
        vm(f'buffer_store_dwordx2 {v(ONES,2)}, {v(MPUB)}, {s(WS,4)}, {s(sT+5)} offen sc1','x')
        e(f's_mov_b64 exec, {s(sEx,2)}'); vm(f'buffer_store_dword {v(PM)}, {v(L16)}, {s(WS,4)}, {s(sFlag)} offen sc1','x'); e('s_mov_b64 exec, -1')
    for u in range(2):
        for x in range(4): vm(f'global_load_dword {v(QA+4*u+x)}, {v(T0)}, {s(sPtr,2)} offset:{(128 if OPT["el"] else 16)*u+32*x}','x')
    if not OPT['rp']:
        p+=h2_addr(FLG,t1); e(f's_cmp_eq_u32 {s(sW)}, 1'); e('s_cselect_b64 vcc, -1, 0'); e(f'v_cndmask_b32 {v(MPUB)}, {v(MPUB)}, {v(FLG)}, vcc')
    if OPT['th']:
        e(f's_lshr_b32 {s(sT+4)}, 0xa2222222, {s(sH)}'); e(f's_and_b32 {s(sT+4)}, {s(sT+4)}, 1'); e('s_cselect_b64 vcc, -1, 0')
    def back(i):
        g_=items[i]
        for t in range(2):
            b0=stream[g_+(t,)] if g_[0]=='q' else M+8*t
            for j in range(2): e(f'ds_write_b128 {v(LW)}, {v(b0+4*j,4)} offset:{SL[i]*4096+t*2048+j*1024}')
        assert SL[i]==lds_groups.index(g_)
    for it in range(32):
        g_=items[it]; bi=it-5
        wait(g_)
        if it==8: wait('x')
        if timing and it==0: e('s_memrealtime s[84:85] ;stamp')
        if timing and it==31: e('s_memrealtime s[86:87] ;stamp')
        e('s_barrier')
        if OPT['th'] and nxt_[0]<32 and it>=2:
            e(f's_cbranch_vccnz L_ch_th{it}'); e(f's_waitcnt vmcnt({OPT["th"]}) ;stamp'); p.append(f'L_ch_th{it}:')
        pump(it,it+D)
        if it and items[it-1] in lds_groups[:4]: back(it-1)
        if it==8:
            e(f's_mov_b32 {s(sT+2)}, 0x05040100'); e(f's_mov_b32 {s(sT+3)}, 0x07060302'); e(f'v_add_u32 {v(T0)}, {s(sWoff)}, {v(L16)}')
            for u in range(2):
                d=X+4*u; q=QA+4*u
                e(f'v_perm_b32 {v(d)}, {v(q+1)}, {v(q)}, {s(sT+2)}'); e(f'v_perm_b32 {v(d+1)}, {v(q+3)}, {v(q+2)}, {s(sT+2)}')
                e(f'v_perm_b32 {v(d+2)}, {v(q+1)}, {v(q)}, {s(sT+3)}'); e(f'v_perm_b32 {v(d+3)}, {v(q+3)}, {v(q+2)}, {s(sT+3)}')
                e(f'ds_write_b128 {v(T0)}, {v(d,4)} offset:{L_MEM+4096*u}')
            e(f's_cmp_lg_u32 {s(sW)}, 0'); e('s_cbranch_scc1 L_ch_noarr')
            e(f's_getreg_b32 {s(sT+5)}, hwreg(HW_REG_XCC_ID)'); e(f's_and_b32 {s(sT+5)}, {s(sT+5)}, 7'); e(f's_lshl_b32 {s(sT+5)}, {s(sT+5)}, 3'); e(f's_lshl_b64 {s(sT+2,2)}, 1, {s(sT+5)}')
            e(f'v_mov_b32 {v(QA)}, {s(sT+2)}'); e(f'v_mov_b32 {v(QA+1)}, {s(sT+3)}'); e('s_mov_b64 exec, 1')
            e(f'global_atomic_add_x2 {v(PM+1)}, {v(QA,2)}, {s(DBG,2)}'); e('s_mov_b64 exec, -1')
            p.append('L_ch_noarr:')
        for b in range(4):
            for t in range(2):
                if g_[0]=='o':
                    pf,b0=ureg(g_,t) if g_ in gloc else ('v',M+8*t)
                    e(f'ds_read_b64_tr_b16 {R(pf,b0+2*b,2)}, {v(TO1 if t else TO0)} offset:{SL[it]*4096+b*1024}')
                else:
                    pf,b0=ureg(g_,t); tra=[[TA0,TA1],[TB0,TB1]][b>>1][t]
                    e(f'ds_read_b64_tr_b16 {R(pf,b0+2*b,2)}, {v(tra)} offset:{(b&1)*WREG+SL[it]*4096}')
        e('s_waitcnt lgkmcnt(0)')
        if g_ in lds_groups[4:]: back(it)
        if it==31 and g_[0]=='q': e('s_barrier'); back(it)
        if bi==8 and OPT['sync']:
            e(f'v_mov_b32 {v(T0)}, 136'); vm(f'global_load_dword {v(KVQ)}, {v(T0)}, {s(DBG,2)} sc1 ;stamp','i')
        if OPT['pfi'] and it in range(OPT['pfi'],OPT['pfi']+3*OPT['pfn'],3):
            k_=(it-OPT['pfi'])//3; qi=[g_ for g_ in items if g_[0]=='q'][::-1][3*(OPT['pfn']-1-k_):][:3]
            base=lambda c: (128*(c&3)+(64 if OPT['el'] else 8)*(c>>2))*8192
            e(f's_and_b32 {s(sT+4)}, {s(sH)}, 3'); e(f's_mov_b32 {s(sT+5)}, 0x40000000')
            for r_,g2 in zip((0,2,3),qi):
                e(f's_cmp_eq_u32 {s(sT+4)}, {r_}'); e(f's_cselect_b32 {s(sT+5)}, {(base(g2[1])+(1-r_)*256+8192)&0xffffffff}, {s(sT+5)}')
            e(f's_mov_b32 {s(WSRD)}, {s(ptr["q"])}'); e(f's_mov_b32 {s(WSRD+1)}, {s(ptr["q"]+1)}')
            e(f'v_subrev_u32 {v(M+4)}, 8192, {v(VA0)}') if False else None
            for b in range(4):
                e(f's_add_u32 {s(sT+7)}, {s(sT+5)}, {((4*(b>>1)+(b&1))*8192-8192)&0xffffffff}')
                vm(f'buffer_load_dwordx4 {v(M,4)}, {v(VA0)}, {s(WSRD,4)}, {s(sT+7)} offen ;stamp','pf')
        if it==16: vm(f'global_load_dwordx2 {v(QA,2)}, {v(PM+1)}, {s(DBG,2)} sc1 ;stamp','h')
        if it==OPT['fi']:
            wait('h')
            p.append('L_ch_hs:')
            e(f'v_readfirstlane_b32 {s(sT+2)}, {v(QA)}'); e(f'v_readfirstlane_b32 {s(sT+3)}, {v(QA+1)}')
            e(f's_add_u32 {s(sSpinF)}, {s(sSpinF)}, 1'); e(f's_cmp_gt_u32 {s(sSpinF)}, {LIM}'); e('s_cbranch_scc1 L_ch_hsdone')
            e(f's_add_u32 {s(sT+4)}, {s(sT+2)}, {s(sT+3)}'); e(f's_lshr_b32 {s(sT+5)}, {s(sT+4)}, 16'); e(f's_add_u32 {s(sT+4)}, {s(sT+4)}, {s(sT+5)}')
            e(f's_lshr_b32 {s(sT+5)}, {s(sT+4)}, 8'); e(f's_add_u32 {s(sT+4)}, {s(sT+4)}, {s(sT+5)}'); e(f's_and_b32 {s(sT+4)}, {s(sT+4)}, 0xff')
            e(f's_cmp_ge_u32 {s(sT+4)}, 32'); e('s_cbranch_scc1 L_ch_hsdone')
            e(f'global_load_dwordx2 {v(QA,2)}, {v(PM+1)}, {s(DBG,2)} sc1 ;stamp'); e('s_waitcnt vmcnt(0) ;stamp'); e('s_branch L_ch_hs')
            p.append('L_ch_hsdone:')
            e(f's_or_b32 {s(sT+2)}, {s(sT+2)}, {s(sT+3)}'); e(f's_and_b32 {s(sT+2)}, {s(sT+2)}, 0x20202020')
            if OPT['sync']:
                wait('i')
                p.append('L_ch_iw:')
                e(f'v_cmp_eq_u32 vcc, 0, {v(KVQ)}'); e('s_cbranch_vccz L_ch_iwx')
                e(f's_add_u32 {s(sSpinF)}, {s(sSpinF)}, 1'); e(f's_cmp_gt_u32 {s(sSpinF)}, {LIM}'); e('s_cbranch_scc1 L_ch_iwx')
                e(f'global_load_dword {v(KVQ)}, {v(T0)}, {s(DBG,2)} sc1 ;stamp'); e('s_waitcnt vmcnt(0) ;stamp'); e('s_branch L_ch_iw')
                p.append('L_ch_iwx:')
                p.extend(kv_addr()); vm(f'buffer_load_dword {v(FLG)}, {v(T0)}, {s(WS,4)}, {s(sKvF)} offen sc1 ;stamp','f')
            e(f's_lshl_b32 {s(sT+5)}, {s(sW)}, 18'); e(f's_add_u32 {s(sT+5)}, {s(sT+5)}, {s(sPinB)}'); e(f's_add_u32 {s(sT+6)}, {s(sT+5)}, 4096')
            wl=[f'buffer_load_dwordx4 {v(KVQ,4)}, {v(L16)}, {s(WS,4)}, {s(sT+5+(j>>2))} offen offset:{(j&3)*1024} sc1 ;stamp' for j in range(8)]
            nlate=2-OPT['mr']
            def warm(lst,k):
                for l in lst: vm(l,'w')
            e(f's_lshl_b32 {s(sT+4)}, {s(sH)}, 10'); e(f's_add_u32 {s(sT+4)}, {s(sT+4)}, {MEM_OFF}')
            vm(f'buffer_load_dwordx4 {v(KVQ,4)}, {v(L16)}, {s(WS,4)}, {s(sT+4)} offen sc1 ;stamp','w')
            warm(wl[:8-nlate],0)
    if OPT['sync']:
        wait('f')
        p.extend(kv_check('L_ch_k0')); p.extend(['s_branch L_ch_k0y']+kv_wait('L_ch_k0')+['L_ch_k0y:'])
    for sd,ss in ((sKdst,sKsrc),(sVdst,sVsrc)):
        e(f's_mov_b32 m0, {s(sd)}')
        for j in range(2): e(f'buffer_load_dwordx4 {v(L16)}, {s(WS,4)}, {s(ss)} offen offset:{1024*j} sc1 lds')
    warm([l.replace(v(KVQ,4),v(STG,4)) for l in wl[8-nlate:]],1)
    p.extend(kv_addr()); e(f'buffer_load_dword {v(FLG)}, {v(T0)}, {s(WS,4)}, {s(sKvF)} offen sc1 ;stamp')
    p+=zero(QA,8)
    if OPT['rp']: e(f'v_mov_b32 {v(FLG)}, 0')
    e(f's_add_u32 {s(sKsrc)}, {s(sKsrc)}, 16384'); e(f's_add_u32 {s(sVsrc)}, {s(sVsrc)}, 16384')
    if OPT['ek'] and not OPT['solo']: e(f'buffer_load_dwordx4 {v(STG,4)}, {v(L16)}, {s(WS,4)}, {s(sKsrc)} offen sc1 ;stamp')
    e(f's_add_u32 {s(sPrst)}, {s(sPrstB)}, {2*262144}')
    if not OPT['tr'] and not OPT['solo']:
        for k in range(4):
            e(f's_and_b32 {s(sT+4)}, {s(sH)}, 1'); e(f's_xor_b32 {s(sT+4)}, {s(sT+4)}, {k}'); e(f's_lshl_b32 {s(sRo1+k)}, {s(sT+4)}, 11')
            e(f's_add_u32 {s(sT+4)}, {s(sH)}, {k}'); e(f's_and_b32 {s(sT+4)}, {s(sT+4)}, 3'); e(f's_lshl_b32 {s(sRo2+k)}, {s(sT+4)}, 10')
    e('s_waitcnt lgkmcnt(0)')
    if timing: e(f's_memrealtime {s(sTime+2,2)}'); e(f's_memtime {s(sTime+6,2)}'); e('s_waitcnt lgkmcnt(0)')
    if OPT['solo']: e('s_waitcnt vmcnt(0)'); e('s_memtime s[60:61]'); e('s_waitcnt lgkmcnt(0)'); e('s_barrier')
    if OPT['rp'] and not OPT['solo']:
        e(f's_cmp_eq_u32 {s(sW)}, 1'); e(f's_cselect_b32 {s(sKvmF)}, {s(sKvmF)}, 0x40000000')
        e('s_barrier')
        for c in range(4): e(mrd(c))
        e(f's_cmp_eq_u32 {s(sT+2)}, 0'); e('s_cbranch_scc1 L_ch_S0_re'); e('s_branch L_ch_F0_re'); e('s_waitcnt lgkmcnt(0)')
    e(f's_cmp_eq_u32 {s(sT+2)}, 0'); e('s_cbranch_scc1 L_ch_S0')
    return fix(p,'prologue')

def smf(d,a_,b): return f'{SMF} {v(d,4)}, {v(a_,4)}, {b}, {v(IDX)}'
def mrd(c): return f'ds_read_b128 {v(M+4*c,4)}, {v(L16)} offset:{L_MEM+1024*c}'
def G(*groups):
    o=[]
    for g_ in groups: o.extend(g_)
    return o

def step(mode, par, verbose=False):
    sc=' sc1' if mode=='S' else ''
    two=OPT['tr'] or OPT['solo']
    L=f'L_ch_{mode}{par}'
    p=[L+':']; e=p.append
    qk=lambda m,c,t: smf((QA if m=='q' else KA if m=='k' else VA)+4*t, M+4*c, unit((m,c),t))
    Q=lambda c,t: qk('q',c,t); K=lambda c,t: qk('k',c,t); V=lambda c,t: qk('v',c,t)
    W=lambda n: f's_waitcnt lgkmcnt({n})'
    krd=[f'ds_read_b128 {v(X+4*f,4)}, {v(L16)} offset:{L_KX+1024*f}' for f in range(8)]
    kl=[f'buffer_load_dwordx4 {v(STG+4*i,4)}, {v(L16)}, {s(WS,4)}, {s(sVsrc if i>>1 else sKsrc)} offen offset:{1024*(i&1)} sc1'+(' nt' if OPT['knt'] else '') for i in range(4)]
    kw=[f'v_add_u32 {v(T0)}, {s(sKdst)}, {v(L16)}','s_waitcnt vmcnt(3)']+[f'ds_write_b128 {v(T0)}, {v(STG+4*i,4)} offset:{1024*i}' for i in range(2)]+[f'ds_write_b128 {v(LW)}, {v(STG+8+4*i,4)} offset:{32768+1024*i}' for i in range(2)]
    def post(acc,d0,d1,bytok):
        o=[f'v_add_f32 {v(acc)}, {v(acc)}, {v(acc+1)}', f'v_add_f32 {v(acc+2)}, {v(acc+2)}, {v(acc+3)}',
           f'v_add_f32 {v(acc+4)}, {v(acc+4)}, {v(acc+5)}', f'v_add_f32 {v(acc+6)}, {v(acc+6)}, {v(acc+7)}']
        if bytok: o+=[f'v_cvt_pk_bf16_f32 {v(d0)}, {v(acc)}, {v(acc+4)}', f'v_cvt_pk_bf16_f32 {v(d1)}, {v(acc+2)}, {v(acc+6)}']
        else:     o+=[f'v_cvt_pk_bf16_f32 {v(d0)}, {v(acc)}, {v(acc+2)}', f'v_cvt_pk_bf16_f32 {v(d1)}, {v(acc+4)}, {v(acc+6)}']
        return o
    def tr(i,rt=False):
        if not OPT['tr']: return []
        return [('s_memrealtime' if rt else 's_memtime')+f' {s(52+14*par+2*i,2)} ;stamp']
    def trdump():
        if not OPT['tr']: return []
        o=[f'v_mov_b32 {v(M+4+i)}, {s(52+14*(1-par)+2*i)}' for i in range(4)]+[f'v_mov_b32 {v(M+8+i)}, {s(52+14*(1-par)+2*i)}' for i in range(4,7)]
        o+=[f's_lshl_b32 {s(sT+1)}, {s(sSpinU)}, 16', f's_add_u32 {s(sT+1)}, {s(sT+1)}, {s(sSpin)}', f'v_mov_b32 {v(M+15)}, {s(sT+1)}',
            f's_lshl_b32 {s(sT+1)}, {s(sStep)}, 5', f's_add_u32 {s(sT+1)}, {s(sT+1)}, {s(sH)}', f's_lshl_b32 {s(sT+1)}, {s(sT+1)}, 2', f's_add_u32 {s(sT+1)}, {s(sT+1)}, {s(sW)}',
            f's_lshl_b32 {s(sT+1)}, {s(sT+1)}, 5', f's_add_u32 {s(sT+1)}, {s(sT+1)}, {100<<20}', 's_mov_b64 exec, 1',
            f'buffer_store_dwordx4 {v(M+4,4)}, off, {s(WS,4)}, {s(sT+1)}', f'buffer_store_dwordx4 {v(M+12,4)}, off, {s(WS,4)}, {s(sT+1)} offset:16', 's_mov_b64 exec, -1']
        return o
    rstore=lambda j: f'buffer_store_dwordx4 {v(ONES,4)}, {v(L16)}, {s(WS,4)}, {s(sPrst)} offen offset:{j*1024}{sc}'
    pub=f'buffer_store_dwordx4 {v(KVQ,4)}, {v(L16)}, {s(WS,4)}, {s(sKvm)} offen'+(' sc1' if OPT['pub'] else '')
    rp=OPT['rp']; sp=OPT['sp']
    if not OPT['solo']: p.extend(['s_waitcnt lgkmcnt(0)' if rp else f's_waitcnt vmcnt({7+OPT["ek"]+OPT["mr"]}) lgkmcnt(0)']+([f's_memtime {s(52+14*(1-par)+12,2)} ;stamp'] if OPT['tr'] else [])+['s_barrier'])
    p.append(';secS')
    for c in range(4): e(mrd(c))
    if OPT['rs']==1: e(rstore(0))
    if rp: e(pub); e(f's_add_u32 {s(sKvm)}, {s(sKvm)}, 4096')
    p.append(f'{L}_re:')
    z=zero(KA,16)
    on=[f'v_mov_b64 {v(ONES+2*i,2)}, {s(sOne,2)}' for i in range(2)]
    qp=post(QA,QA+1,QA+3,True)+[f'ds_write2_b32 {v(QW)}, {v(QA+1)}, {v(QA+3)} offset0:0 offset1:4']
    kp=post(KA,KVQ+1,KVQ+3,True)+[f'ds_write2_b32 {v(KW)}, {v(KVQ+1)}, {v(KVQ+3)} offset0:0 offset1:8']
    ek=OPT['ek'] if not OPT['solo'] else 0
    z4=f'v_mfma_f32_4x4x4_16b_bf16 {v(KA,4)}, {v(PM+2,2)}, {v(PM+2,2)}, 0'
    if OPT['z4']: g0=[[Q(2,0)],[Q(2,1),W(0)],[z4],[Q(3,0),kl[2+ek]],[Q(3,1),'s_nop 0'],[K(0,0),z[2]],[K(1,0),f's_waitcnt vmcnt({6+ek-OPT["mr"]})',z[3]]]
    else: g0=[[Q(2,0),z[0]],[Q(2,1),W(0),z[1]],[Q(3,0),kl[2+ek]],[Q(3,1),z[2]],[K(0,0),z[3]],[K(1,0),f's_waitcnt vmcnt({6+ek-OPT["mr"]})']]
    p.extend(G([kl[ek],W(3)],[Q(0,0)],[Q(0,1),W(2)],[Q(1,0),kl[1+ek]],[Q(1,1),W(1)],*g0,
               [K(2,0),'s_barrier'],[K(3,0),mrd(4),z[4]],
               [K(0,1),mrd(5),z[5]],[K(1,1),mrd(6),z[6]],[K(2,1),mrd(7),z[7]],[K(3,1),krd[0],W(4)]))
    p.append(';sec0')
    fld=f'buffer_load_dword {v(FLG)}, {v(T0)}, {s(WS,4)}, {s(sKvF)} offen sc1'
    p.extend(G([Q(4,0),krd[4],W(4)],[Q(5,0),krd[1],W(4)],[Q(6,0),krd[5],W(4)],[Q(7,0),'s_nop 0' if ek else kl[3]],
               [Q(4,1),krd[2],on[0]],[Q(5,1),krd[3],on[1]],[Q(6,1),krd[6],qp[0]],[Q(7,1),krd[7],qp[1]],
               [K(4,0),'s_nop 1',f'v_cmp_u_f32 vcc, {v(QA)}, {v(QA+2)}'],[K(5,0),'s_nop 0',qp[2]],[K(6,0)]+([f's_cbranch_vccnz {L}_r2',f'{L}_r2x:'] if OPT['eb'] else [])+[qp[3]],[K(7,0),'s_nop 1',qp[4]],
               [K(4,1),qp[5]],[K(5,1),qp[6]],[K(6,1),kp[0]],[K(7,1),kp[1]]))
    p.append(';sec1')
    rk=[f'ds_read_b128 {v(X+16*k,4)}, {v(L16)} offset:{L_K+1024*k}' for k in range(2)]
    rq=[f'ds_read_b128 {v(M+4*k,4)}, {v(QR)} offset:{L_Q+512*k}' for k in range(4)]
    VF=[X+4,X+20]
    rv=[f'ds_read_b128 {v(VF[t],4)}, {v(LW)} offset:{32768+1024*t}' for t in range(2)]
    SX=lambda m,ks: f'{MF32} {v(QA+4*m,4)}, {v(X+16*m+4*ks,4)}, {v(M+4*ks,4)}, '+(v(QA+4*m,4) if ks else '0')
    sm=[smf(KA,X+16*k,v(M+8*k,8)) for k in range(2)]
    zk=zero(KA,4)
    mx=PM; tt=KA+3
    c=[f'v_max3_f32 {v(mx)}, {v(QA)}, {v(QA+1)}, {v(QA+2)}', f'v_max3_f32 {v(mx)}, {v(mx)}, {v(QA+3)}, {v(QA+4)}',
       f'v_max3_f32 {v(mx)}, {v(mx)}, {v(QA+5)}, {v(QA+6)}',
       f'v_add_f32 {v(KA)}, {v(KA)}, {v(KA+1)}', f'v_add_f32 {v(KA+1)}, {v(KA+2)}, {v(KA+3)}',
       f'v_max3_f32 {v(mx)}, {v(mx)}, {v(QA+7)}, {v(KA)}', f'v_max_f32 {v(tt)}, {v(mx)}, {v(KA+1)}', f'v_max_f32 {v(mx)}, {v(mx)}, {v(KA+1)}',
       f'v_permlane32_swap_b32 {v(mx)}, {v(tt)}', f'v_max_f32 {v(T0)}, {v(mx)}, {v(tt)}', f'v_max_f32 {v(mx)}, {v(mx)}, {v(tt)}',
       f'v_permlane16_swap_b32 {v(mx)}, {v(T0)}', f'v_max_f32 {v(mx)}, {v(mx)}, {v(T0)}', f'v_mul_f32 {v(T0)}, {s(sC)}, {v(mx)}']
    kadv=0 if OPT['hotkv'] else 16384
    bk=[f's_add_u32 {s(sSlot)}, {s(sSlot)}, 8192', f's_and_b32 {s(sSlot)}, {s(sSlot)}, 0x7fff',
        f's_add_u32 {s(sMemIn0)}, {s(sSlot)}, {MEM_OFF}', f's_add_u32 {s(sMemPub)}, {s(sMemB)}, {s(sSlot)}',
        f's_xor_b32 {s(sMemRst)}, {s(sMemPub)}, 16384',
        f's_add_u32 {s(sPrst)}, {s(sPrstB)}, {s(sPslot)}',
        f's_add_u32 {s(sPslot)}, {s(sPslot)}, 262144', f's_and_b32 {s(sPslot)}, {s(sPslot)}, 0xfffff',
        f's_add_u32 {s(sPst)}, {s(sPslot)}, {PART_OFF}', f's_add_u32 {s(sPst+1)}, {s(sPslot)}, {PART_OFF+131072}',
        f's_add_u32 {s(sPin)}, {s(sPinB)}, {s(sPslot)}', f's_add_u32 {s(sPin+1)}, {s(sPin)}, 4096',
        f's_add_u32 {s(sKsrc)}, {s(sKsrc)}, {kadv}', f's_add_u32 {s(sVsrc)}, {s(sVsrc)}, {kadv}',
        f's_add_u32 {s(sMemIn1)}, {s(sMemIn0)}, 4096', f's_mov_b32 m0, {L_MEM}', f's_add_u32 {s(sStep)}, {s(sStep)}, 1']
    wo=lambda tp,k: stream_reads(('o',tp>>1,k),tp&1)
    p.extend(G(*([[V(0,0),'s_nop 1',W(0)],[V(0,1),'s_barrier','s_nop 0',kp[2]]] if OPT['bb'] else [[V(0,0),'s_nop 2'],[V(0,1),W(0),'s_barrier',kp[2]]]),[V(1,0),rq[0],kp[3]],[V(1,1),rq[1],kp[4]],
               [V(2,0),kp[5]],[V(2,1),kp[6]],[V(3,0),rq[2],zk[0]],[V(3,1),rq[3],W(3)],
               [SX(0,0),zk[1]],[SX(1,0)]+([] if OPT['eb'] else [f's_cbranch_vccnz {L}_r2',f'{L}_r2x:'])+(['s_nop 1',W(2)] if OPT['bb'] else []),[SX(0,1)]+([] if OPT['bb'] else [W(2)])+['s_barrier'],[SX(1,1),rk[0],W(1)],
               [SX(0,2),rk[1]],[SX(0,3),rv[0]],[SX(1,2),rv[1]],[SX(1,3),bk[0],bk[1]]+([] if OPT['v1'] else [W(2)]),
               *([[V(4,0),W(2),bk[2],c[0]],[sm[0],bk[3],bk[5],c[1]],[sm[1],wo(2,1)[0],c[2]],[V(5,0),wo(2,2)[0],bk[6]],[V(6,0),bk[7],bk[16],c[3],c[4]],[V(7,0),c[5],c[6],c[7]]] if OPT['v1'] else
                 [[sm[0],'s_nop 0',c[0]],[sm[1],wo(2,1)[0]],[V(4,0),bk[2],bk[3],c[1]],[V(5,0),wo(2,2)[0],c[2]],[V(6,0),bk[5],bk[6],c[3],c[4]],[V(7,0),bk[7],bk[16],c[5],c[6],c[7]]]),
               [V(4,1),wo(0,3)[0],c[8]],[V(5,1),wo(0,3)[1],c[9],c[10]],[V(6,1),wo(1,3)[0],c[11]],[V(7,1),wo(1,3)[1],c[12],c[13]]))
    if OPT['tr']: p.append(f's_memtime {s(52+14*(1-par)+10,2)} ;stamp')
    p.append(';sec2')
    vp=post(VA,KVQ,KVQ+2,False)
    xp=lambda r_: f'v_exp_f32 {v(r_)}, {v(r_)}'
    PX=KA+4; OF=M+16
    e(vp[0]); e(vp[1])
    for r_ in (KA,QA,QA+2,QA+4,QA+6):
        e(f'v_pk_fma_f32 {v(r_,2)}, {v(r_,2)}, {s(sC2,2)}, {v(T0,2)} op_sel_hi:[1,1,0] neg_lo:[0,0,1] neg_hi:[0,0,1]')
    e(f'v_mfma_f32_32x32x8_bf16 {v(M,16)}, {v(PM+2,2)}, {v(PM+2,2)}, 0'); e(bk[12])
    e(xp(KA)); e(xp(KA+1))
    p.extend([vp[2],vp[3],vp[4],vp[5]])
    e(f'v_cvt_pk_bf16_f32 {v(PM)}, {v(KA)}, {v(KA+1)}')
    e(xp(QA)); e(xp(QA+1))
    ex=[f's_cmp_eq_u32 {s(sStep)}, 64','s_cbranch_scc1 L_ch_last'] if (par==1 and OPT['solo']) else ['s_nop 1']
    p.extend(G([f'{MF16} {v(VA,4)}, {v(KVQ,2)}, {v(PM,2)}, 0',bk[13],xp(QA+2)],
               [f'{MF16} {v(VA+4,4)}, {v(KVQ+2,2)}, {v(PM,2)}, 0',bk[8],xp(QA+3)],
               [f'{MF16} {v(KA,4)}, {v(ONES,2)}, {v(PM,2)}, 0',W(6),xp(QA+4),xp(QA+5),xp(QA+6),xp(QA+7)]))
    for i in range(4): e(f'v_cvt_pk_bf16_f32 {v(PX+i)}, {v(QA+2*i)}, {v(QA+2*i+1)}')
    zo=zero(ONES,4,'-1')
    oa=[f'v_xor_b32 {v(QA+k)}, {512*k}, {v(ORD)}' for k in range(1,4)]
    p.extend(G([oa[0],oa[1]],[f'{MF32} {v(KA,4)}, {v(ONES,4)}, {v(PX,4)}, {v(KA,4)}']+ex+[oa[2]],
               [f'{MF32} {v(VA,4)}, {v(VF[0],4)}, {v(PX,4)}, {v(VA,4)}',bk[14],zo[0],zo[1]],
               [f'{MF32} {v(VA+4,4)}, {v(VF[1],4)}, {v(PX,4)}, {v(VA+4,4)}',bk[15],f'v_rcp_f32 {v(T0)}, {v(KA)}',bk[9],bk[10]]))
    pm_=[f'v_pk_mul_f32 {v(VA+2*i,2)}, {v(VA+2*i,2)}, {v(T0,2)} op_sel_hi:[1,0]' for i in range(4)]
    cv=[f'v_cvt_pk_bf16_f32 {v(OF+i)}, {v(VA+2*i)}, {v(VA+2*i+1)}' for i in range(4)]
    p.extend([pm_[0],pm_[1],cv[0],cv[1],pm_[2],pm_[3],cv[2],cv[3]])
    p.append(';sec3')
    e(f'v_cndmask_b32 {v(QA+4)}, {v(OF)}, {v(OF+2)}, {s(sOdd,2)}'); e(f'v_cndmask_b32 {v(QA+5)}, {v(OF+1)}, {v(OF+3)}, {s(sOdd,2)}')
    O=lambda tp,k: smf(M+4*tp,OF+4*k,unit(('o',tp>>1,k),tp&1))
    def oc(tp,j):
        q=M+8*(tp>>1)+(tp&1)+2*j
        return f'v_cvt_pk_bf16_f32 {v(q)}, {v(M+4*tp+2*j)}, {v(M+4*tp+2*j+1)}'
    ost=lambda u: f'buffer_store_dwordx4 {v(M+8*u,4)}, {v(PST)}, {s(WS,4)}, {s(sPst+u)} offen{sc}'
    ro=[f'ds_read_b128 {v(OF+4*k,4)}, {v(QA+k)} offset:{L_O}' for k in range(1,4)]
    p.extend(G([f'ds_write_b64 {v(OW)}, {v(QA+4,2)} offset:{L_O}'],[O(0,0),rstore(1)],[O(1,0),wo(2,1)[1]],[W(1),'s_barrier',ro[0]],[O(2,0),ro[1],bk[11]],[O(3,0),ro[2],bk[4]],
               [wo(2,2)[1],wo(2,3)[0],W(4)]))
    p.append(';sec4')
    p.extend(G([O(0,1),wo(2,3)[1],W(4)],[O(0,2),wo(3,1)[0],W(4)],[O(0,3),wo(3,1)[1],f's_cmp_lg_u32 {s(sW)}, 0'],
               [O(1,1),wo(3,2)[0],'s_nop 0'],[O(1,2),wo(3,2)[1],W(4)],[O(1,3),wo(3,3)[0],oc(0,0)],
               [O(2,1),wo(3,3)[1],oc(0,1)],[O(2,2),W(4),'s_waitcnt vmcnt(1)' if OPT['sw1'] else 's_nop 0',oc(1,0),oc(1,1)],[O(2,3),ost(0)],
               [O(3,1),W(0),'s_nop 1'],[O(3,2),'s_nop 1',oc(2,0)],[O(3,3),'s_nop 1',oc(2,1)],[oc(3,0),oc(3,1),ost(1)]))
    sr=[]
    for g_,t in ((('q',0),0),(('q',0),1),(('q',1),0),(('q',1),1)): sr+=stream_reads(g_,t)
    xs=[]
    for g_,t in ((('q',2),0),(('q',2),1),(('q',3),0),(('q',3),1)): xs+=stream_reads(g_,t)
    xz=weave(xs,zero(QA,8),[0,0,0,0,1,1,1,1])
    if verbose and par==0:
        fx=fix(p,'main',True); print('model cycles',simulate(fx,OPT['show']), 'inserted waits', len([l for l in fx if l.startswith('s_waitcnt')])-len([l for l in p if l.startswith('s_waitcnt')]))
    if OPT['solo']:
        marks=[i for i,l in enumerate(p) if l.startswith(';sec')]
        if OPT['cutm']>=0:
            marks=[i+1 for i,l in enumerate(p) if l.startswith(('v_mfma','v_smfmac'))]; OPT['cut']=OPT['cutm']
        if OPT['cut']<len(marks):
            rest=p[marks[OPT['cut']]:]
            p[:]=p[:marks[OPT['cut']]]+['s_memtime s[62:63] ;stamp']+[l for l in rest if (l.startswith(('s_add','s_and','s_cmp','s_cbranch_scc')) or l.endswith(':'))]
        d=OPT['drop']
        if d&1: p[:]=[l for l in p if not l.startswith('buffer_store')]
        if d&2: p[:]=[l for l in p if not l.startswith('buffer_load')]
        if OPT['cut']>=len(marks): p.append('s_memtime s[62:63] ;stamp')
        p.extend(['s_waitcnt vmcnt(0)']+kw+kv_addr()+sr+xz)
        if d&4: p[:]=['s_nop 1' if (l.startswith('ds_read') and f' {v(LW)} ' in l) else l for l in p]
        if d&8: p[:]=['s_nop 1' if l.startswith('ds_read') else l for l in p]
        if d&16: p[:]=['s_nop 3' if l.startswith(('v_smfmac','v_mfma')) else l for l in p]
        if d&32: p[:]=['s_nop 0' if (l.startswith('v_') and not l.startswith(('v_smfmac','v_mfma'))) else l for l in p]
        if d&64: p[:]=['s_nop 3' if l.startswith('v_mfma') else l for l in p]
        p.extend(['s_waitcnt lgkmcnt(0) vmcnt(0)','s_sub_u32 s62, s62, s60', f's_add_u32 {s(sSpin)}, {s(sSpin)}, s62', 's_barrier', 's_sleep 12', 's_memtime s[60:61] ;stamp', 's_waitcnt lgkmcnt(0)', 's_barrier'])
        if par==1: p.append(f's_branch L_ch_{mode}0')
        return fix(p,f'solo{par}'), [f'{L}_r2:',f's_branch {L}_r2x']
    kc=lambda x: kv_check(L+x) if OPT['sync'] else []
    if rp: return window_rp(locals())
    p.extend(tr(0)+tr(1,True))
    e(f's_cbranch_scc1 {L}_w')
    head=list(p)
    p.extend(trdump())
    e(f'ds_read_b128 {v(QA+4,4)}, {v(L16)} offset:{L_SEL}')
    e(f'v_mov_b32 {v(M+2)}, {s(sStep)}')
    if OPT['de']:
        e(f's_cmp_lt_u32 {s(sH)}, 16'); e(f's_cbranch_scc1 {L}_e'); p.extend(['s_nop 3']*OPT['de']); p.append(f'{L}_e:')
    for i in range(OPT['d1']-OPT['de']-(1 if OPT['de'] else 0)-(8 if OPT['tr'] else 0)): e('s_nop 3')
    p.extend(tr(2))
    ld1=[f'buffer_load_dwordx4 {v(X+4*j,4)}, {v(L16)}, {s(WS,4)}, {s(sPin+(j>>2))} offen offset:{(j&3)*1024} sc1' for j in range(8)]
    if OPT['ro1']:
        p[-1:-1]=[f's_add_u32 {s(sT+4+k)}, {s(sPin)}, {s(sRo1+k)}' for k in range(4)]; p.pop()
        ld1=[f'buffer_load_dwordx4 {v(X+4*j,4)}, {v(L16)}, {s(WS,4)}, {s(sT+4+(j>>1))} offen offset:{(j&1)*1024} sc1' for j in range(8)]
    fst=[f's_mov_b64 exec, {s(sEx,2)}', f'buffer_store_dword {v(M+2)}, {v(L16)}, {s(WS,4)}, {s(sFlag)} offen{sc}', 's_mov_b64 exec, -1']
    ca=OPT['ca']
    if ca:
        k=max(i for i,l in enumerate(p) if l=='s_nop 3')
        p[k-ca+1:k+1]=ld1[:2]+['s_nop 3']*(ca-2)
    p.extend(ld1); p.extend(sr+zero(QA,4)); e(W(8))
    el=OPT['el']==1
    B0=['s_barrier'] if OPT['b0'] else []
    if el:
        p.extend([f's_cmp_lt_u32 {s(sH)}, 16', f's_cbranch_scc1 {L}_p1']+['s_nop 3']*OPT['bl']+['s_barrier'])
        B0=[f's_cbranch_scc0 {L}_p2','s_barrier']
    p.append(f'{L}_p1:')
    RM=lambda j: smf(QA,QA+4,v(X+8*j,8))
    fin=[f'v_cvt_pk_bf16_f32 {v(M)}, {v(QA)}, {v(QA+2)}', f'v_cvt_pk_bf16_f32 {v(M+1)}, {v(QA+1)}, {v(QA+3)}']
    mpub=f'buffer_store_dwordx2 {v(M,2)}, {v(MPUB)}, {s(WS,4)}, {s(sMemPub)} offen{sc}'
    chk=f'v_cmp_u_f32 vcc, {v(QA)}, {v(QA+1)}'
    can=f'v_cmp_u_f32 vcc, {v(X)}, {v(X+4)}'
    if ca: first=['s_waitcnt vmcnt(8)',can+' ;stamp',fst[0],f's_cbranch_vccnz {L}_cb',f'{L}_cbx:']+fst[1:]
    else: first=['s_waitcnt vmcnt(6)',can,RM(0),fst[0], f's_cbranch_vccnz {L}_r0']+fst[1:]
    p.extend(first+tr(3)+B0+[f'{L}_p2:'])
    for j in range(0 if ca else 1,4):
        e(f's_waitcnt vmcnt({7-2*j})'); e(RM(j))
    p.extend(fin+[mpub,chk])
    p.extend(tr(4))
    e(f's_cbranch_vccnz {L}_r1')
    p.append(f'{L}_p1ok:')
    p.extend([kw[0]]+kw[2:]+xz)
    nxt=f'L_ch_{mode}{1-par if two else 0}'
    tailc=['s_barrier']+([kl[0]] if ek else [])+[pub, rstore(0)]
    t1=OPT['t1']
    kf=[f's_sub_u32 {s(sT+3)}, {s(sStep)}, 1', f'v_mov_b32 {v(FLG)}, {s(sT+3)}', 's_mov_b64 exec, 1', f'buffer_store_dword {v(FLG)}, off, {s(WS,4)}, {s(sKvmF)} sc1', 's_mov_b64 exec, -1']
    ops=[[pub],kf[2:]] if OPT['mr'] else [[pub],[rstore(0)],kf[2:]]
    tail1=G(*ops[:t1])+['s_barrier']+([kl[0]] if ek else [])+G(*ops[t1:])
    tail2=[f's_add_u32 {s(sKvm)}, {s(sKvm)}, 4096', f's_cmp_lg_u32 {s(sStep)}, 63', f's_cbranch_scc1 {nxt}', 's_branch L_ch_fin']
    p.append(f'{L}_b1:')
    p.extend(tailc+tail2)
    body=fix(p,f'step{mode}{par}',verbose)
    ld2=[f'buffer_load_dwordx4 {v(H2A)}, {s(WS,4)}, {s(sMemIn0)} offen offset:{1024*j} sc1 lds' for j in range(4)]
    ld2+=[f's_mov_b32 m0, {L_MEM+4096}','s_nop 0']+[f'buffer_load_dwordx4 {v(H2A)}, {s(WS,4)}, {s(sMemIn1)} offen offset:{1024*j} sc1 lds' for j in range(4)]
    ld2r=ld2
    if OPT['ro2']:
        ld2r=[]
        for j in range(8):
            ld2r+=[f's_add_u32 m0, {s(sRo2+(j&3))}, {L_MEM+4096*(j>>2)}', f's_add_u32 {s(sT+4)}, {s(sRo2+(j&3))}, {s(sMemIn1 if j>>2 else sMemIn0)}',
                   f'buffer_load_dwordx4 {v(H2A)}, {s(WS,4)}, {s(sT+4)} offen sc1 lds']
    q=[f'{L}_w:']+kw+[f's_cmp_lg_u32 {s(sW)}, 3', f's_cbranch_scc1 {L}_w3', f'buffer_store_dwordx2 {v(ONES,2)}, {v(MPUB)}, {s(WS,4)}, {s(sMemRst)} offen{sc}', f'{L}_w3:']+trdump()+sr+([] if OPT['xl'] else xz); e=q.append
    e(f's_cmp_eq_u32 {s(sW)}, 1'); e(f's_cbranch_scc1 {L}_fb')
    if OPT['b0']: e('s_barrier')
    if OPT['xl']: q.extend(xz)
    if OPT['sync']:
        e(f's_cmp_lg_u32 {s(sW)}, 2'); e(f's_cbranch_scc1 {L}_b1')
        q.extend(kc('_kb')+(tailc[:-1] if OPT['mr'] else tailc)+[fld]+tail2)
    else: e(f's_branch {L}_b1')
    q.append(f'{L}_fb:')
    if OPT['xl']: q.extend(xz)
    e(f'v_lshrrev_b32 {v(T0)}, 2, {v(L16)}'); e(f'v_and_b32 {v(T0)}, 0x7c, {v(T0)}')
    if el: e(f'v_cmp_gt_u32 vcc, 64, {v(T0)}'); e(f'v_mov_b32 {v(FLG)}, {s(sStep)}'); e('s_nop 0'); e(f'v_cndmask_b32 {v(FLG)}, 0, {v(FLG)}, vcc')
    if not el: q.extend(kf[:2])
    if OPT['b0']: e('s_barrier')
    for i in range(max(0,OPT['sl']-(7 if OPT['tr'] and not OPT['b0'] else 0))): e('s_nop 3')
    q.extend(tr(2))
    if OPT['ro2']: q.extend(ld2r[:2]); ld2r=ld2r[2:]
    N=OPT['nb']
    fl=f'buffer_load_dword {v(PM)}, {v(T0)}, {s(WS,4)}, {s(sFlagB)} offen sc1'
    for i in range(N-1): e(fl); e(f's_nop {7+OPT["pp"]}')
    def ploop(a_,b_,extra=0):
        q.append(f'{L}_{a_}:')
        for i in range(8):
            e(fl)
            if OPT['pp']: e(f's_nop {OPT["pp"]-1}')
            e(f's_waitcnt vmcnt({N-1+(extra if i<N-1 else 0)})'); e(f'v_cmp_gt_u32 vcc, {s(sStep)}, {v(PM)}'); e(f's_cbranch_vccz {L}_{b_}')
        e(f's_add_u32 {s(sSpinF)}, {s(sSpinF)}, 1'); e(f's_cmp_gt_u32 {s(sSpinF)}, {LIM}'); e(f's_cbranch_scc0 {L}_{a_}')
        q.append(f'{L}_{b_}:')
    if el:
        i0=len(q); ploop('fb2','fb3')
        q[i0:]=[l.replace(f'vcc, {s(sStep)}, {v(PM)}',f'vcc, {v(FLG)}, {v(PM)}') for l in q[i0:]]
        q.extend(tr(3)); q.extend(ld2[:5]); ploop('fb4','fb5',4); q.extend(tr(4)); q.extend(ld2[6:])
    else:
        ploop('fb2','fb3'); q.extend(tr(3)); q.extend(ld2r[:5]+([rstore(0),rstore(2)] if OPT['mr'] else [])+['s_nop 3']*OPT['dd']+ld2r[5:]); q.extend(tr(4))
    q.extend(tail1+tail2)
    i=q.index(f'{L}_fb:')
    alt=fix(head+q[:i],f'alt{mode}{par}',False)
    q=alt[alt.index(f'{L}_w:'):]+q[i:]
    e=q.append
    if OPT['sync']: q.extend(kv_wait(L+'_kb'))
    if ca: q.extend([f'{L}_cb:','s_mov_b64 exec, -1','s_waitcnt vmcnt(6)',can,fst[0],f's_cbranch_vccz {L}_cbx'])
    for nm,inc in (('r0',1),('r1',256)):
        q.append(f'{L}_{nm}:')
        if nm=='r0': e('s_mov_b64 exec, -1')
        else: q.extend([f'v_add_u32 {v(M+2)}, -1, {v(M+2)}']+fst+[f'v_add_u32 {v(M+2)}, 1, {v(M+2)}'])
        e(f's_add_u32 {s(sSpin)}, {s(sSpin)}, {inc-1}')
        q.append(f'{L}_{nm}l:')
        q.extend(ld1); e(f's_add_u32 {s(sSpin)}, {s(sSpin)}, 1'); e(f's_cmp_gt_u32 {s(sSpin)}, {LIM}'); e(f's_cbranch_scc1 {L}_{nm}g')
        q.extend(['s_waitcnt vmcnt(6)',f'v_cmp_u_f32 vcc, {v(X)}, {v(X+4)}',f's_cbranch_vccnz {L}_{nm}l', f'{L}_{nm}g:'])
        q.extend(zero(QA,4)+['s_nop 0'])
        for j in range(4): e(f's_waitcnt vmcnt({6-2*j})'); e(RM(j))
        q.extend(['s_nop 7', chk]+fin+[f's_cbranch_scc1 {L}_{nm}e', f's_cbranch_vccnz {L}_{nm}l', f'{L}_{nm}e:', mpub]+fst+tr(3)+tr(4)+(([f's_cmp_lt_u32 {s(sH)}, 16', f's_cbranch_scc0 {L}_p1ok'] if el else [])+['s_barrier'] if nm=='r0' else [])+[f's_branch {L}_p1ok'])
    q.append(f'{L}_r2:')
    e(f's_add_u32 {s(sSpinU)}, {s(sSpinU)}, 1'); e(f's_cmp_gt_u32 {s(sSpinU)}, {LIM}'); e(f's_cbranch_scc1 {L}_r2x')
    e(f's_cmp_eq_u32 {s(sStep)}, 0'); e(f's_cbranch_scc1 {L}_r2x')
    e(f's_mov_b32 m0, {L_MEM}'); e(f's_cmp_lg_u32 {s(sW)}, 1')
    e('s_waitcnt lgkmcnt(0)'); e('s_barrier'); e(f's_cbranch_scc1 {L}_r2b')
    q.extend(ld2); q.append(f'{L}_r2b:'); e('s_nop 7'); q.extend(zero(ONES,4,'-1')); q.extend(sr); q.extend(xs); q.extend(zero(QA,8))
    e('s_waitcnt vmcnt(0) lgkmcnt(0)'); e('s_barrier')
    for c_ in range(4): e(mrd(c_))
    e(f's_branch {L}_re')
    return body, q

def window_rp(d):
    L,p,sc,mode,par,two,tr,trdump,kw,kc,sr,xs,xz,W,rstore,sp,verbose=[d[k] for k in 'L p sc mode par two tr trdump kw kc sr xs xz W rstore sp verbose'.split()]
    e=p.append
    p.extend(tr(0)+tr(1,True))
    e(f's_cbranch_scc1 {L}_w')
    head=list(p)
    p.extend(kw+kc('_ka'))
    e(f'ds_read_b128 {v(QA+4,4)}, {v(L16)} offset:{L_SEL}')
    p.extend(sr+trdump())
    for i in range(OPT['d1']-(8 if OPT['tr'] else 0)): e('s_nop 3')
    p.extend(tr(2))
    ld1=[f'buffer_load_dwordx4 {v(X+4*j,4)}, {v(L16)}, {s(WS,4)}, {s(sPin+(j>>2))} offen offset:{(j&3)*1024} sc1' for j in range(8)]
    pre=h2_addr(T0,PM)+[f's_add_u32 {s(sT+4)}, {s(sMemIn0)}, {s(sWoff)}', f's_add_u32 {s(sT+5)}, {s(sMemIn1)}, {s(sWoff)}', f's_add_u32 m0, {s(sWoff)}, {L_MEM+4096}',
         f'v_add_u32 {v(PM)}, {s(sWoff)}, {v(L16)}', f's_sub_u32 {s(sT+3)}, {s(sStep)}, 1', f'v_mov_b32 {v(FLG)}, {s(sT+3)}']
    p.extend(ld1); p.extend(pre); e(W(0))
    p.append(f'{L}_p1:')
    RM=lambda j: f'{MF32} {v(QA,4)}, {v(QA+4,4)}, {v(X+4*j,4)}, '+(v(QA,4) if j else '0')
    p.extend(['s_waitcnt vmcnt(7)',RM(0),'s_waitcnt vmcnt(6)',f'v_cmp_u_f32 vcc, {v(X)}, {v(X+4)}',RM(1),'s_waitcnt vmcnt(5)',RM(2),f's_cbranch_vccnz {L}_r0', f'{L}_r0x:']+tr(3))
    for j in range(3,8):
        e(f's_waitcnt vmcnt({7-j})'); e(RM(j))
    e(f'v_cvt_pk_bf16_f32 {v(M)}, {v(QA)}, {v(QA+1)}')
    e(f'v_cvt_pk_bf16_f32 {v(M+1)}, {v(QA+2)}, {v(QA+3)}')
    e(f'buffer_store_dwordx2 {v(M,2)}, {v(MPUB)}, {s(WS,4)}, {s(sMemPub)} offen{sc}')
    e(f'v_cmp_u_f32 vcc, {v(QA)}, {v(QA)}')
    p.extend(tr(4))
    e(f's_cbranch_vccnz {L}_r1')
    p.append(f'{L}_p1ok:')
    p.extend(xz)
    for i in range(OPT['dp']): e('s_nop 3')
    p.append(f'{L}_b1:')
    body=fix(p,f'step{mode}{par}',verbose)
    e=body.append
    e('s_barrier')
    N=OPT['np']
    pl=f'buffer_load_dwordx4 {v(STG,4)}, {v(T0)}, {s(WS,4)}, {s(sT+4)} offen sc1'
    dm=f'buffer_load_dwordx4 {v(T0)}, {s(WS,4)}, {s(sT+5)} offen sc1 lds'
    def nops(k):
        o=[]
        while k>0: o.append(f's_nop {min(k,16)-1}'); k-=16
        return o
    for i in range(N-1): e(pl); body.extend(nops(OPT['ps']))
    e(pl); e(f's_waitcnt vmcnt({N-1})'); e(f'v_cmp_u_f32 vcc, {v(STG)}, {v(STG+2)}'); e(f's_cbranch_vccnz {L}_pl')
    body.append(f'{L}_plx:')
    e(f'ds_write_b128 {v(PM)}, {v(STG,4)} offset:{L_MEM}'); e(dm); body.extend(tr(6))
    if sp==0: e(rstore(0))
    body.extend(kv_addr()); e(f's_branch L_ch_{mode}{1-par if two else 0}')
    q=[f'{L}_w:',f's_sleep {OPT["sw"]}']+kw; e=q.append
    e(f's_cmp_lg_u32 {s(sW)}, 3'); e(f's_cbranch_scc1 {L}_w3')
    e(f'buffer_store_dwordx2 {v(ONES,2)}, {v(MPUB)}, {s(WS,4)}, {s(sMemRst)} offen{sc}')
    q.extend([f'{L}_w3:']+kc('_kb')+trdump()+sr+xz+pre)
    e(f's_branch {L}_b1')
    alt=fix(head+q,f'alt{mode}{par}',False)
    q=alt[alt.index(f'{L}_w:'):]; e=q.append
    q.append(f'{L}_pl:')
    for i in range(4):
        e(pl); e(f's_waitcnt vmcnt({N-1})'); e(f'v_cmp_u_f32 vcc, {v(STG)}, {v(STG+2)}'); e(f's_cbranch_vccz {L}_plx')
    e(f's_add_u32 {s(sSpinF)}, {s(sSpinF)}, 1'); e(f's_cmp_gt_u32 {s(sSpinF)}, {LIM}'); e(f's_cbranch_scc0 {L}_pl'); e(f's_branch {L}_plx')
    if OPT['sync']: q.extend(kv_wait(L+'_ka')+kv_wait(L+'_kb'))
    q.append(f'{L}_r0:')
    e(f's_add_u32 {s(sSpin)}, {s(sSpin)}, 1'); e(f's_cmp_gt_u32 {s(sSpin)}, {LIM}'); e(f's_cbranch_scc1 {L}_r0x')
    q.extend(ld1); e(f's_branch {L}_p1')
    q.append(f'{L}_r1:')
    e(f's_add_u32 {s(sSpin)}, {s(sSpin)}, 256'); e(f's_cmp_gt_u32 {s(sSpin)}, {LIM}'); e(f's_cbranch_scc1 {L}_p1ok')
    q.extend(ld1); e(f's_branch {L}_p1')
    q.append(f'{L}_r2:')
    e(f's_add_u32 {s(sSpinU)}, {s(sSpinU)}, 1'); e(f's_cmp_gt_u32 {s(sSpinU)}, {LIM}'); e(f's_cbranch_scc1 {L}_r2x')
    e(f's_cmp_eq_u32 {s(sStep)}, 0'); e(f's_cbranch_scc1 {L}_r2x')
    e('s_waitcnt vmcnt(0) lgkmcnt(0)'); e('s_barrier')
    q.extend(pre); e(dm); e(f's_add_u32 m0, {s(sWoff)}, {L_MEM}'); e('s_nop 0'); e(dm.replace(s(sT+5),s(sT+4)))
    q.extend(kv_addr()+zero(ONES,4,'-1')); q.extend(sr); q.extend(xs); q.extend(zero(QA,8))
    e('s_waitcnt vmcnt(0) lgkmcnt(0)'); e('s_barrier')
    for c_ in range(4): e(mrd(c_))
    e(f's_branch {L}_re')
    return body, q

def chain_body(timing=False, verbose=False):
    A=Asm()
    pro=prologue(timing)
    F0,f0=step('F',0,verbose); F1,f1=step('F',1); S0,s0=step('S',0); S1,s1=step('S',1)
    if not OPT['rp']: check(pro+F0+F0,'chainF')
    for x in ((pro,F0,F1,f0,f1,S0,S1,s0,s1) if (OPT['tr'] or OPT['solo']) else (pro,F0,f0,S0,s0)): A.extend(x)
    f=['L_ch_fin:']+zero(KA,16)+[f's_waitcnt vmcnt({3+OPT["ek"]-OPT["mr"]}) lgkmcnt(0)','s_barrier','L_ch_fin2:']+[mrd(c) for c in range(8)]
    f[1:1]=['s_waitcnt lgkmcnt(0)']
    for c in range(8):
        for m_,acc in (('k',KA),('v',VA)):
            for t in range(2): f.append(smf(acc+4*t,M+4*c,unit((m_,c),t)))
    f+=[f'v_add_f32 {v(KA+2*i)}, {v(KA+2*i)}, {v(KA+2*i+1)}' for i in range(8)]
    f+=[f'v_cmp_u_f32 vcc, {v(KA)}, {v(KA+2)}', f'v_cvt_pk_bf16_f32 {v(KVQ+1)}, {v(KA)}, {v(KA+4)}', f'v_cvt_pk_bf16_f32 {v(KVQ+3)}, {v(KA+2)}, {v(KA+6)}',
        f'v_cvt_pk_bf16_f32 {v(KVQ)}, {v(VA)}, {v(VA+2)}', f'v_cvt_pk_bf16_f32 {v(KVQ+2)}, {v(VA+4)}, {v(VA+6)}', 's_cbranch_vccz L_ch_last',
        f's_add_u32 {s(sSpinU)}, {s(sSpinU)}, 1', f's_cmp_gt_u32 {s(sSpinU)}, {LIM}', 's_cbranch_scc1 L_ch_last',
        f's_mov_b32 m0, {L_MEM}', f's_cmp_lg_u32 {s(sW)}, 1', 's_barrier', 's_cbranch_scc1 L_ch_fin3']
    f+=[f'buffer_load_dwordx4 {v(H2A)}, {s(WS,4)}, {s(sMemIn0)} offen offset:{1024*j} sc1 lds' for j in range(4)]
    f+=[f's_mov_b32 m0, {L_MEM+4096}','s_nop 0']+[f'buffer_load_dwordx4 {v(H2A)}, {s(WS,4)}, {s(sMemIn1)} offen offset:{1024*j} sc1 lds' for j in range(4)]
    f+=['L_ch_fin3:']+zero(KA,16)+['s_waitcnt vmcnt(0)','s_barrier','s_branch L_ch_fin2']
    A.extend(fix(f,'fin'))
    A.label('L_ch_last')
    A(f'buffer_store_dwordx4 {v(KVQ,4)}, {v(L16)}, {s(WS,4)}, {s(sKvm)} offen sc1')
    if timing:
        A(f'''s_waitcnt vmcnt(0)
        s_lshl_b32 {s(sSpinU)}, {s(sSpinU)}, 16
        s_add_u32 {s(sSpin)}, {s(sSpin)}, {s(sSpinU)}
        s_memrealtime {s(sTime+4,2)}
        s_memtime {s(sTime+8,2)}
        s_waitcnt lgkmcnt(0)
        s_sub_u32 {s(sT)}, {s(sTime+2)}, {s(sTime)}
        s_sub_u32 {s(sT+1)}, {s(sTime+4)}, {s(sTime+2)}
        s_sub_u32 {s(sT+2)}, {s(sTime+8)}, {s(sTime+6)}
        v_mov_b32 v4, {s(sT)}
        v_mov_b32 v5, {s(sT+1)}
        v_mov_b32 v6, {s(sT+2)}
        v_mov_b32 v7, {s(sSpin)}
        s_lshl_b32 {s(sT)}, {s(sH)}, 2
        s_add_u32 {s(sT)}, {s(sT)}, {s(sW)}
        s_lshl_b32 {s(sT)}, {s(sT)}, 5
        s_add_u32 {s(sT)}, {s(sT)}, 16384
        v_mov_b32 v0, {s(sT)}
        s_sub_u32 s80, s80, {s(sTime)}
        s_sub_u32 s82, s82, {s(sTime)}
        s_sub_u32 s84, s84, {s(sTime)}
        s_sub_u32 s86, s86, {s(sTime)}
        v_mov_b32 v8, s80
        v_mov_b32 v9, s82
        v_mov_b32 v10, s84
        v_mov_b32 v11, s86
        s_mov_b64 exec, 1
        global_store_dwordx4 v0, v[8:11], {s(DBG,2)} offset:16
        global_store_dwordx4 v0, v[4:7], {s(DBG,2)}''')
    return A

def kernel_text(name, body):
    return f'''.globl {name}
.p2align 8
.type {name},@function
{name}:
{body.text()}    s_endpgm
'''
def kernel_desc(name, vgpr=512, accum=256, sgpr=102):
    return f'''.p2align 6
.amdhsa_kernel {name}
  .amdhsa_next_free_vgpr {vgpr}
  .amdhsa_next_free_sgpr {sgpr}
  .amdhsa_accum_offset {accum}
  .amdhsa_group_segment_fixed_size 0
  .amdhsa_kernarg_size 120
  .amdhsa_user_sgpr_count 2
  .amdhsa_user_sgpr_kernarg_segment_ptr 1
  .amdhsa_system_sgpr_workgroup_id_x 1
  .amdhsa_float_denorm_mode_32 3
.end_amdhsa_kernel
'''

if __name__=='__main__':
    import sys
    for x in sys.argv:
        if '=' in x: OPT[x.split('=')[0]]=int(x.split('=')[1])
    A=Asm()
    if 'spread' in sys.argv:
        A(f's_cmp_ge_u32 s2, 32\ns_cbranch_scc1 L_exit\ns_mov_b32 {s(sH)}, s2')
    else:
        A(f's_cmp_ge_u32 s2, 256\ns_cbranch_scc1 L_exit\ns_and_b32 s3, s2, 7\ns_cmp_lg_u32 s3, 0\ns_cbranch_scc1 L_exit\ns_lshr_b32 {s(sH)}, s2, 3')
    A.extend(chain_body(timing=True, verbose=True))
    A.label('L_exit')
    txt='; @launch kernel=chain_kernel grid=(256,1,1) block=(256,1,1) lds=163840\n.amdgcn_target "amdgcn-amd-amdhsa--gfx950"\n.text\n'
    txt+=kernel_text('chain_kernel',A)+'.section .rodata,"a"\n'+kernel_desc('chain_kernel')
    open(sys.argv[1],'w').write(txt)
```

```python
import sys
from asmlib import *
from layout import *
import bulk as B, chain as C
prof='prof' in sys.argv
C.OPT['sync']=1
for x in sys.argv:
    if '=' in x:
        k,val=x.split('='); (C.OPT if k in C.OPT else B.OPT)[k]=int(val)
sB=B.sB
_n=[0]
def stamp(slot,who,reg,sw,dbg):
    if not prof: return []
    _n[0]+=1; L=f'L_st{_n[0]}'
    return [f's_cmp_lg_u32 {s(reg)}, {who}',f's_cbranch_scc1 {L}',f's_cmp_lg_u32 {s(sw)}, 0',f's_cbranch_scc1 {L}','s_memrealtime s[90:91]','s_waitcnt lgkmcnt(0)',
            'v_mov_b32 v11, s90',f'v_mov_b32 v123, {160+4*slot}','s_mov_b64 exec, 1',f'global_store_dword v123, v11, {s(dbg,2)}','s_mov_b64 exec, -1',L+':']
bs=lambda slot,who: stamp(slot,who,sB,B.sW,B.DBG)
B.STAMP=bs
A=Asm()
A(f'''s_cmp_ge_u32 s2, 256
s_cbranch_scc1 L_exit
s_and_b32 s3, s2, 7
s_cmp_lg_u32 s3, 0
s_cbranch_scc1 L_bulk
s_lshr_b32 {s(C.sH)}, s2, 3''')
if B.OPT.get('dly')==1: A('s_sleep 75')
A.extend(C.chain_body(timing=prof))
A.label('L_exit'); A('s_endpgm'); A.label('L_bulk')
perm=[int(c) for c in '%07d'%B.OPT.get('perm',3042156)]
tab=sum(r<<(4*(x+1)) for x,r in enumerate(perm))
A(f's_lshl_b32 s3, s3, 2\ns_lshr_b32 s3, {hex(tab)}, s3\ns_and_b32 s3, s3, 15\ns_lshl_b32 s3, s3, 5\ns_lshr_b32 {s(sB)}, s2, 3\ns_add_u32 {s(sB)}, {s(sB)}, s3')
A.extend(B.roles()); A.extend(fix(B.common())); A.extend(bs(0,0))
A(f's_cmp_ge_u32 {s(sB)}, 64\ns_cbranch_scc1 L_grp')
A('s_sleep 75' if B.OPT.get('dly')==2 else ''); A.extend(B.p1_setup()); A.extend(bs(3,0)); A.extend(bs(4,2))
A.extend(B.p1_main(True)); A.extend(bs(5,0)); A.extend(bs(6,2)); A('s_branch L_p2')
A.label('L_grp')
A(f's_cmp_ge_u32 {s(sB)}, 96\ns_cbranch_scc1 L_ln')
A('s_sleep 75' if B.OPT.get('dly')==3 else ''); A.extend(B.mod_phase(True)); A('s_branch L_p2')
A.label('L_ln'); A(f's_cmp_lg_u32 {s(sB)}, 223\ns_cbranch_scc1 L_ln2')
A.extend(B.flag_init()); A.label('L_ln2'); A.extend(B.ln_phase(True)); A.extend(bs(2,96)); A.label('L_p2')
if B.OPT.get('kill'):
    A(f's_and_b32 s3, s2, 7\ns_lshr_b32 s3, {B.OPT["kill"]}, s3\ns_and_b32 s3, s3, 1\ns_cmp_eq_u32 s3, 0\ns_cbranch_scc1 L_p2k\ns_endpgm\nL_p2k:')
A('s_sleep 120' if B.OPT.get('dly')==4 else ''); A.extend(B.p2_setup(True)); A.extend(B.p2_loop('F',True)); A.extend(B.p2_loop('S',True))
kn=NAME+'_kernel'
if 'wrap' in sys.argv:
    pre=['s_memrealtime s[90:91]','s_load_dwordx2 s[88:89], s[0:1], 112','s_lshl_b32 s3, s2, 3','s_add_u32 s3, s3, %d'%(120<<20),'v_mov_b32 v1, s3','s_waitcnt lgkmcnt(0)','v_mov_b32 v2, s90','global_store_dword v1, v2, s[88:89]']
    end=lambda: ['s_waitcnt vmcnt(0)','s_mov_b64 exec, -1','s_memrealtime s[90:91]','s_load_dwordx2 s[88:89], s[0:1], 112','s_lshl_b32 s3, s2, 3','s_add_u32 s3, s3, %d'%((120<<20)+4),'v_mov_b32 v1, s3','s_waitcnt lgkmcnt(0)','v_mov_b32 v2, s90','global_store_dword v1, v2, s[88:89]','s_endpgm']
    L=[]
    for l in A.lines: L+= end() if l=='s_endpgm' else [l]
    A.lines=pre+L
    def st(name,off):
        S=Asm(); S.extend(['s_memrealtime s[90:91]','s_load_dwordx2 s[88:89], s[0:1], 112','v_mov_b32 v1, %d'%((121<<20)+off),'s_waitcnt lgkmcnt(0)','v_mov_b32 v2, s90','global_store_dword v1, v2, s[88:89]']); return C.kernel_text(name,S)
    txt=f'; @launch kernel=a_kernel grid=(1,1,1) block=(64,1,1) lds=0\n; @launch kernel=m_kernel grid=(256,1,1) block=(256,1,1) lds=163840\n; @launch kernel=b_kernel grid=(1,1,1) block=(64,1,1) lds=0\n; @launch kernel=c_kernel grid=(1,1,1) block=(64,1,1) lds=0\n.amdgcn_target "amdgcn-amd-amdhsa--gfx950"\n.text\n'
    txt+=st('a_kernel',0)+st('b_kernel',4)+st('c_kernel',8)+C.kernel_text('m_kernel',A)+'.section .rodata,"a"\n'+C.kernel_desc('m_kernel')+''.join(C.kernel_desc(k,32,32) for k in ('a_kernel','b_kernel','c_kernel'))
    open(sys.argv[1],'w').write(txt); sys.exit(0)
txt='; @launch grid=(256,1,1) block=(256,1,1) lds=163840\n.amdgcn_target "amdgcn-amd-amdhsa--gfx950"\n.text\n'
txt+=C.kernel_text(kn,A)+'.section .rodata,"a"\n'+C.kernel_desc(kn)
open(sys.argv[1],'w').write(txt)
```

```python
from asmlib import *
from layout import *
import math, struct
MF32='v_mfma_f32_16x16x32_bf16'; MF16='v_mfma_f32_16x16x16_bf16'; SMF='v_smfmac_f32_16x16x64_bf16'
f2u=lambda x: struct.unpack('<I',struct.pack('<f',x))[0]
WS=4; SRD=8; DBG=12; sB=14; sW=15; sMask=16; sSpin=17
sP=52
PX,PWQ,PWK,PWV,PWO,PW1,PW2,PC,PWM,POUT=[sP+2*i for i in (0,2,3,4,5,8,9,10,11,12)]
sT=40
sHd=21; sR=22; sZ=39
LN=0; N=1; Gv=2; L16=3
LIM='0x400000'
OPT=dict(d2=2, pf2=0, pf1=0, d1p=7, alt=0, hb=20, nl=4, dl=0, lp=8, pn=2, rd=4, ks=0, pf3=2, dw=0)
STAMP=lambda slot,who: []
def common():
    return [f's_load_dwordx16 {s(sP,16)}, s[0:1], 0', f's_load_dwordx8 {s(sP+16,8)}, s[0:1], 64', f's_load_dwordx2 {s(sP+24,2)}, s[0:1], 96',
        f's_load_dwordx2 {s(DBG,2)}, s[0:1], 104', f's_load_dwordx2 {s(WS,2)}, s[0:1], 112',
        'v_lshrrev_b32 v1, 6, v0', f'v_and_b32 {v(LN)}, 63, v0', f'v_readfirstlane_b32 {s(sW)}, v1',
        f's_mov_b32 {s(WS+2)}, {WS_BYTES}', f's_mov_b32 {s(WS+3)}, 0x20000', f's_mov_b32 {s(SRD+3)}, 0x20000',
        f's_mov_b32 {s(sMask)}, 0xffff0000', f's_mov_b32 {s(sSpin)}, 0',
        f'v_and_b32 {v(N)}, 15, {v(LN)}', f'v_lshrrev_b32 {v(Gv)}, 4, {v(LN)}', f'v_lshlrev_b32 {v(L16)}, 4, {v(LN)}', 's_waitcnt lgkmcnt(0)']
NR=2; NG=5
def roles():
    return [f's_lshr_b32 {s(sHd)}, {s(sB)}, 1', f's_and_b32 {s(sR)}, {s(sB)}, 1', f's_sub_u32 {s(sZ)}, {s(sB)}, 64']
def srd(p,size): return [f's_mov_b32 {s(SRD)}, {s(p)}', f's_mov_b32 {s(SRD+1)}, {s(p+1)}', f's_mov_b32 {s(SRD+2)}, {size}']
def rnd(a,b,t): return [f'v_cvt_pk_bf16_f32 {v(t)}, {v(a)}, {v(b)}', f'v_lshlrev_b32 {v(a)}, 16, {v(t)}', f'v_and_b32 {v(b)}, {s(sMask)}, {v(t)}']
def unp(d,src): return [f'v_and_b32 {v(d+1)}, {s(sMask)}, {v(src)}', f'v_lshlrev_b32 {v(d)}, 16, {v(src)}']
def xg(op,a,t):
    return [f'v_mov_b32 {v(t)}, {v(a)}', f'v_permlane32_swap_b32 {v(a)}, {v(t)}', f'{op} {v(a)}, {v(a)}, {v(t)}',
            f'v_mov_b32 {v(t)}, {v(a)}', f'v_permlane16_swap_b32 {v(a)}, {v(t)}', f'{op} {v(a)}, {v(a)}, {v(t)}']
def xrow(a):
    return [f'v_add_f32_dpp {v(a)}, {v(a)}, {v(a)} row_ror:{k} row_mask:0xf bank_mask:0xf' for k in (1,2,4,8)]
_u=[0]
def poll(addr_v, soff, cmp_s, r, off=0, sleep=0):
    _u[0]+=1; k=_u[0]
    return [f'L_po{k}:', f'buffer_load_dword {v(r)}, {v(addr_v)}, {s(WS,4)}, {soff} offen offset:{off} sc1', f's_add_u32 {s(sSpin)}, {s(sSpin)}, 1',
            f's_cmp_gt_u32 {s(sSpin)}, {LIM}', f's_cbranch_scc1 L_pe{k}', 's_waitcnt vmcnt(0)', f'v_cmp_gt_u32 vcc, {cmp_s}, {v(r)}']+(
            [f's_cbranch_vccz L_pe{k}', f's_sleep {sleep}', f's_branch L_po{k}'] if sleep else [f's_cbranch_vccnz L_po{k}'])+[f'L_pe{k}:', 's_waitcnt vmcnt(0)']

def pollp(addr_v, soff, cmp_s, r, N=4):
    _u[0]+=1; k=_u[0]
    ld=f'buffer_load_dword {v(r)}, {v(addr_v)}, {s(WS,4)}, {soff} offen sc1 ;stamp'
    o=[]
    for i in range(N-1): o+=[ld,'s_nop 11']
    o+=[f'L_po{k}:', ld, f's_add_u32 {s(sSpin)}, {s(sSpin)}, 1', f's_cmp_gt_u32 {s(sSpin)}, {LIM}', f's_cbranch_scc1 L_pe{k}', f's_waitcnt vmcnt({N-1}) ;stamp',
        f'v_cmp_gt_u32 vcc, {cmp_s}, {v(r)}', f's_cbranch_vccnz L_po{k}', f'L_pe{k}:']
    return o

def mod_phase(sync):
    p=[]; e=p.append
    W_=16; C_=48; AC=56; A0=4; A1=5; T=6
    p.append('L_mod_top:')
    e(f'v_lshrrev_b32 {v(A0)}, 2, {v(LN)}'); e(f's_lshl_b32 {s(sT)}, {s(sW)}, 4'); e(f'v_add_u32 {v(A0)}, {s(sT)}, {v(A0)}')
    e(f'v_lshlrev_b32 {v(A1)}, 1, {v(A0)}')
    e(f'v_mul_u32_u24 {v(A0)}, 6144, {v(A0)}'); e(f'v_and_b32 {v(T)}, 3, {v(LN)}'); e(f'v_lshl_add_u32 {v(A0)}, {v(T)}, 4, {v(A0)}')
    p+=srd(PWM,512*6144)
    for i in range(8): e(f'global_load_ushort {v(C_+i)}, {v(A1)}, {s(PC,2)} offset:{128*i}')
    e(f's_lshl_b32 {s(sT)}, {s(sZ)}, 6')
    for i in range(8):
        e(f'buffer_load_dwordx4 {v(W_+4*i,4)}, {v(A0)}, {s(SRD,4)}, {s(sT)} offen'); e(f's_add_u32 {s(sT)}, {s(sT)}, {64*6144}')
    e('v_mov_b32 v10, 140'); e(f'global_load_dword v10, v10, {s(DBG,2)} sc1')
    for i in range(8): e(f'v_lshlrev_b32 {v(C_+i)}, 16, {v(C_+i)}')
    for i in range(8): e(f'v_mul_f32 {v(AC+i)}, {hex(f2u(-math.log2(math.e)))}, {v(C_+i)}')
    for i in range(8): e(f'v_exp_f32 {v(AC+i)}, {v(AC+i)}')
    for i in range(8): e(f'v_add_f32 {v(AC+i)}, 1.0, {v(AC+i)}')
    for i in range(8): e(f'v_rcp_f32 {v(AC+i)}, {v(AC+i)}')
    for i in range(8): e(f'v_mul_f32 {v(C_+i)}, {v(C_+i)}, {v(AC+i)}')
    for i in range(0,8,2): p+=rnd(C_+i,C_+i+1,T)
    for i in range(8):
        for d in range(4):
            p+=unp(8,W_+4*i+d)
            for k in range(2):
                e(f'v_mul_f32 {v(AC+2*d+k)}, {v(C_+i)}, {v(8+k)}' if i==0 else f'v_fmac_f32 {v(AC+2*d+k)}, {v(C_+i)}, {v(8+k)}')
    for k in (4,8):
        for i in range(8): e(f'v_add_f32_dpp {v(AC+i)}, {v(AC+i)}, {v(AC+i)} row_ror:{k} row_mask:0xf bank_mask:0xf')
    p+=verify('m',10,DBG,sSpin,sT)
    e(f's_lshl_b32 {s(sT)}, {s(sW)}, 9'); e(f'v_and_b32 {v(T)}, 3, {v(LN)}'); e(f'v_lshlrev_b32 {v(T)}, 5, {v(T)}')
    e(f'v_lshl_add_u32 {v(T)}, {v(Gv)}, 7, {v(T)}'); e(f'v_add_u32 {v(T)}, {s(sT)}, {v(T)}')
    e(f'ds_write_b128 {v(T)}, {v(AC,4)}'); e(f'ds_write_b128 {v(T)}, {v(AC+4,4)} offset:16')
    e('s_waitcnt lgkmcnt(0)'); e('s_barrier')
    e(f's_cmp_lg_u32 {s(sW)}, 0'); e('s_cbranch_scc1 L_mod_end')
    e(f'v_and_b32 {v(A0)}, 31, {v(LN)}'); e(f'v_lshrrev_b32 {v(A1)}, 5, {v(LN)}'); e(f'v_lshlrev_b32 {v(T)}, 2, {v(A0)}'); e(f'v_lshl_add_u32 {v(T)}, {v(A1)}, 10, {v(T)}')
    for i in range(8): e(f'ds_read_b32 {v(AC+i)}, {v(T)} offset:{128*i}')
    for i in range(1,8): e(f'v_add_f32 {v(AC)}, {v(AC)}, {v(AC+i)}')
    e(f'v_mov_b32 {v(T)}, {v(AC)}'); e(f'v_permlane32_swap_b32 {v(AC)}, {v(T)}'); e(f'v_add_f32 {v(AC)}, {v(AC)}, {v(T)}')
    e(f'v_cvt_pk_bf16_f32 {v(AC)}, {v(AC)}, {v(AC)}')
    e(f'v_lshlrev_b32 {v(A0)}, 1, {v(A0)}'); e(f's_lshl_b32 {s(sT)}, {s(sZ)}, 6'); e(f's_add_u32 {s(sT)}, {s(sT)}, {MOD_OFF}')
    e(f'buffer_store_short {v(AC)}, {v(A0)}, {s(WS,4)}, {s(sT)} offen sc1')
    if sync:
        e('s_waitcnt vmcnt(0)')
        e(f's_cmp_lt_u32 {s(sZ)}, 32'); e(f's_cselect_b32 {s(sT)}, 0, 4')
        e(f'v_mov_b32 {v(A0)}, {s(sT)}'); e(f'v_mov_b32 {v(A1)}, 1'); e('s_mov_b64 exec, 1')
        e(f'global_atomic_add {v(A0)}, {v(A1)}, {s(DBG,2)} offset:128'); e('s_mov_b64 exec, -1')
    p.append('L_mod_end:')
    e('s_barrier')
    if STAMP(0,0):
        e(f's_cmp_ge_u32 {s(sZ)}, 32'); e('s_cbranch_scc1 L_mod_ns'); p+=STAMP(1,64); p.append('L_mod_ns:')
    if OPT['pf3']:
        e(f's_cmp_ge_u32 {s(sZ)}, 32'); e('s_cbranch_scc1 L_mod_np')
        e(f'v_lshlrev_b32 v99, 10, {v(Gv)}'); e(f'v_lshl_add_u32 v99, {v(N)}, 4, v99')
        e(f's_lshl_b32 {s(sT+3)}, {s(sZ)}, 2'); e(f's_add_u32 {s(sT+3)}, {s(sT+3)}, {s(sW)}'); e(f's_lshl_b32 {s(sT+3)}, {s(sT+3)}, 12')
        for ptr in ((PWV,PWQ) if OPT['pf3']==1 else (PWK,PWV,PWQ)):
            p+=srd(ptr,4<<20)
            for i in range(8):
                e(f's_add_u32 {s(sT+4)}, {s(sT+3)}, {i*64*8192}'); e(f'buffer_load_dwordx4 v[100:103], v99, {s(SRD,4)}, {s(sT+4)} offen offset:256 ;stamp')
        p.append('L_mod_np:')
    e(f's_add_u32 {s(sZ)}, {s(sZ)}, 32'); e(f's_cmp_lt_u32 {s(sZ)}, 96'); e('s_cbranch_scc1 L_mod_top')
    return fix(p,'mod')

def dbg_wait(off,val,r):
    _u[0]+=1; k=_u[0]
    return [f'v_mov_b32 {v(r+1)}, {off}', f'L_po{k}:', f'global_load_dword {v(r)}, {v(r+1)}, {s(DBG,2)} sc1', f's_add_u32 {s(sSpin)}, {s(sSpin)}, 1',
            f's_cmp_gt_u32 {s(sSpin)}, {LIM}', f's_cbranch_scc1 L_pe{k}', 's_waitcnt vmcnt(0)', f'v_cmp_gt_u32 vcc, {val}, {v(r)}', f's_cbranch_vccnz L_po{k}', f'L_pe{k}:', 's_waitcnt vmcnt(0)']

def ln_phase(sync):
    p=[]; e=p.append
    XR=16; XF=32; MD=64; A0=4; A1=5; T=6; S=7; Q=8; R_=10; MU=14; sTile=20
    e(f's_sub_u32 {s(sTile)}, {s(sB)}, 96')
    p+=srd(PX,2048*1024)
    e(f'v_lshlrev_b32 {v(A0)}, 10, {v(N)}'); e(f'v_lshl_add_u32 {v(A0)}, {v(Gv)}, 4, {v(A0)}')
    e(f's_lshl_b32 {s(sT)}, {s(sTile)}, 14'); e(f's_lshl_b32 {s(sT+1)}, {s(sW)}, 8'); e(f's_add_u32 {s(sT)}, {s(sT)}, {s(sT+1)}')
    for i in range(4): e(f'buffer_load_dwordx4 {v(XR+4*i,4)}, {v(A0)}, {s(SRD,4)}, {s(sT)} offen offset:{64*i}')
    e('v_mov_b32 v9, 140'); e(f'global_load_dword v9, v9, {s(DBG,2)} sc1')
    if OPT['pf1']:
        e(f's_lshl_b32 {s(sT+3)}, {s(sTile)}, 2'); e(f's_add_u32 {s(sT+3)}, {s(sT+3)}, {s(sW)}'); e(f's_lshl_b32 {s(sT+3)}, {s(sT+3)}, 13'); e(f's_add_u32 {s(sT+4)}, {s(sT+3)}, 4096')
        for ptr in (PWK,PWV,PWQ):
            p+=srd(ptr,4<<20)
            if OPT['pf1']==1:
                for i in range(8): e(f'buffer_load_dwordx4 {v(100,4)}, {v(L16)}, {s(SRD,4)}, {s(sT+3+(i>>2))} offen offset:{1024*(i&3)}')
            else:
                e(f'v_lshlrev_b32 v99, 10, {v(Gv)}'); e(f'v_lshl_add_u32 v99, {v(N)}, 4, v99')
                for i in range(2): e(f'buffer_load_dwordx4 {v(100,4)}, v99, {s(SRD,4)}, {s(sT+3+i)} offen offset:256')
    e(f'v_lshlrev_b32 {v(A1)}, 4, {v(N)}'); e(f's_lshl_b32 {s(sT+2)}, {s(sW)}, 2'); e(f'v_add_u32 {v(A0)}, {s(sT+2)}, {v(A1)}')
    for i in range(16): p+=unp(XF+2*i,XR+i)
    e(f'v_add_f32 {v(S)}, {v(XF)}, {v(XF+1)}')
    for i in range(2,32): e(f'v_add_f32 {v(S)}, {v(S)}, {v(XF+i)}')
    def cross(off):
        o=xg('v_add_f32',S,T)+[f'ds_write_b32 {v(A0)}, {v(S)} offset:{off}','s_waitcnt lgkmcnt(0)','s_barrier',f'ds_read_b128 {v(R_,4)}, {v(A1)} offset:{off}',
           f'v_add_f32 {v(S)}, {v(R_)}, {v(R_+1)}', f'v_add_f32 {v(T)}, {v(R_+2)}, {v(R_+3)}', f'v_add_f32 {v(S)}, {v(S)}, {v(T)}', f'v_mul_f32 {v(S)}, {hex(f2u(1/512))}, {v(S)}']
        return o
    p+=verify('l',9,DBG,sSpin,sT+3)
    e(f's_cmp_lg_u32 {s(sB)}, 223'); e('s_cbranch_scc1 L_ln2'); p+=flag_init(); p.append('L_ln2:')
    for i in range(4): e(f'v_mov_b32 {v(104+i)}, -1')
    e(f's_lshl_b32 {s(sT+3)}, {s(sTile)}, 2'); e(f's_add_u32 {s(sT+3)}, {s(sT+3)}, {s(sW)}'); e(f's_lshl_b32 {s(sT+3)}, {s(sT+3)}, 11'); e(f's_add_u32 {s(sT+3)}, {s(sT+3)}, {PART_OFF}')
    for i in range(2): e(f'buffer_store_dwordx4 {v(104,4)}, {v(L16)}, {s(WS,4)}, {s(sT+3)} offen offset:{1024*i} sc1')
    p+=cross(0)
    e(f'v_mov_b32 {v(MU)}, {v(S)}')
    for i in range(32):
        e(f'v_sub_f32 {v(T)}, {v(XF+i)}, {v(MU)}'); e(f'v_mul_f32 {v(S)}, {v(T)}, {v(T)}' if i==0 else f'v_fmac_f32 {v(S)}, {v(T)}, {v(T)}')
    p+=cross(256)
    p+=rnd(MU,S,T)
    e(f'v_add_f32 {v(S)}, {hex(f2u(1e-5))}, {v(S)}'); p+=rnd(S,Q,T)[:2]
    e(f'v_sqrt_f32 {v(S)}, {v(S)}'); p+=rnd(S,Q,T)[:2]
    e(f'v_rcp_f32 {v(S)}, {v(S)}')
    for i in range(0,32,2):
        e(f'v_sub_f32 {v(XF+i)}, {v(XF+i)}, {v(MU)}'); e(f'v_sub_f32 {v(XF+i+1)}, {v(XF+i+1)}, {v(MU)}'); p+=rnd(XF+i,XF+i+1,T)
        e(f'v_mul_f32 {v(XF+i)}, {v(XF+i)}, {v(S)}'); e(f'v_mul_f32 {v(XF+i+1)}, {v(XF+i+1)}, {v(S)}'); p+=rnd(XF+i,XF+i+1,T)
    p+=[]
    if sync: p+=dbg_wait(128,32,R_)
    p+=[]
    e(f'v_lshlrev_b32 {v(A0)}, 4, {v(Gv)}'); e(f's_add_u32 {s(sT+1)}, {s(sT+1)}, {MOD_OFF}')
    for i in range(4): e(f'buffer_load_dwordx4 {v(MD+4*i,4)}, {v(A0)}, {s(WS,4)}, {s(sT+1)} offen offset:{1024+64*i} sc1')
    for i in range(4): e(f'buffer_load_dwordx4 {v(MD+16+4*i,4)}, {v(A0)}, {s(WS,4)}, {s(sT+1)} offen offset:{64*i} sc1')
    e(f's_lshl_b32 {s(sT)}, {s(sTile)}, 14'); e(f's_lshl_b32 {s(sT+2)}, {s(sW)}, 12'); e(f's_add_u32 {s(sT)}, {s(sT)}, {s(sT+2)}'); e(f's_add_u32 {s(sT)}, {s(sT)}, {H_OFF}')
    for i in range(16):
        a_=XF+2*i
        p+=unp(Q,MD+i); e(f'v_add_f32 {v(Q)}, 1.0, {v(Q)}'); e(f'v_add_f32 {v(Q+1)}, 1.0, {v(Q+1)}'); p+=rnd(Q,Q+1,T)
        e(f'v_mul_f32 {v(a_)}, {v(a_)}, {v(Q)}'); e(f'v_mul_f32 {v(a_+1)}, {v(a_+1)}, {v(Q+1)}'); p+=rnd(a_,a_+1,T)
        p+=unp(Q,MD+16+i); e(f'v_add_f32 {v(a_)}, {v(a_)}, {v(Q)}'); e(f'v_add_f32 {v(a_+1)}, {v(a_+1)}, {v(Q+1)}')
        e(f'v_cvt_pk_bf16_f32 {v(XR+i)}, {v(a_)}, {v(a_+1)}')
        if i%4==3: e(f'buffer_store_dwordx4 {v(XR+i-3,4)}, {v(L16)}, {s(WS,4)}, {s(sT)} offen offset:{1024*(i//4)} sc1')
    p+=[]
    if sync:
        p+=dbg_wait(136,1,R_)
        e('s_barrier')
        e(f's_lshl_b32 {s(sT)}, {s(sTile)}, 2'); e(f's_add_u32 {s(sT)}, {s(sT)}, {BF_OFF+BF_H}'); e(f'v_mov_b32 {v(T)}, 1')
        e(f's_cmp_lg_u32 {s(sW)}, 0'); e('s_cbranch_scc1 L_ln_end'); e('s_mov_b64 exec, 1')
        e(f'buffer_store_dword {v(T)}, off, {s(WS,4)}, {s(sT)} sc1'); e('s_mov_b64 exec, -1')
        p.append('L_ln_end:')
    return fix(p,'ln')

def flag_init():
    p=[]; e=p.append
    for i in range(4): e(f'v_mov_b32 {v(108+i)}, 0')
    e(f's_lshl_b32 {s(sT+5)}, {s(sW)}, 12'); e(f's_add_u32 {s(sT+5)}, {s(sT+5)}, {BF_OFF}')
    for i in range(4): e(f'buffer_store_dwordx4 {v(108,4)}, {v(L16)}, {s(WS,4)}, {s(sT+5)} offen offset:{1024*i} sc1')
    e(f's_mov_b32 {s(sT+5)}, {FLAG_OFF}'); e(f'buffer_store_dwordx4 {v(108,4)}, {v(L16)}, {s(WS,4)}, {s(sT+5)} offen sc1')
    for i in range(4): e(f'v_mov_b32 {v(112+i)}, -1')
    e(f's_lshl_b32 {s(sT+5)}, {s(sW)}, 13'); e(f's_add_u32 {s(sT+5)}, {s(sT+5)}, {MEM_OFF}'); e(f's_add_u32 {s(sT+6)}, {s(sT+5)}, 4096')
    for i in range(8): e(f'buffer_store_dwordx4 {v(112,4)}, {v(L16)}, {s(WS,4)}, {s(sT+5+(i>>2))} offen offset:{1024*(i&3)} sc1')
    e('s_waitcnt vmcnt(0)'); e('s_barrier')
    e(f'v_mov_b32 v108, 136'); e('v_mov_b32 v109, 1'); e('s_mov_b64 exec, 1'); e(f'global_store_dword v108, v109, {s(DBG,2)} sc1'); e('s_mov_b64 exec, -1')
    return fix(p,'fi')

def wstream(blocks, sRing, D=8, pf=None, lead=0):
    p=[]; e=p.append; ng=len(blocks)//4; assert len(blocks)%4==0
    VQ=[]
    def pre(gi):
        if pf and gi<ng:
            for l in pf(gi):
                e(l)
                if l.startswith('buffer'): VQ.append('p')
    def issue(gi):
        pre(gi+lead)
        for b in range(4):
            su,vo,so,_=blocks[4*gi+b]
            if su: p.extend(su)
            e(f's_add_u32 m0, {s(sRing)}, {((4*gi+b)%32)*1024}'); p.extend(so(sT+7))
            e(f'buffer_load_dwordx4 {v(vo)}, {s(SRD,4)}, {s(sT+7)} offen lds'); VQ.append(gi)
    for gi in range(lead): pre(gi)
    for gi in range(min(D,ng)): issue(gi)
    head=list(p); p.clear()
    for gi in range(ng):
        e(f's_waitcnt vmcnt({len(VQ)-1-max(k for k,t in enumerate(VQ) if t==gi)})')
        for b in range(4):
            for dst,tra,off in blocks[4*gi+b][3]: e(f'ds_read_b64_tr_b16 {dst}, {v(tra)} offset:{((4*gi+b)%32)*1024+off}')
        e('s_waitcnt lgkmcnt(0)')
        if gi+D<ng: issue(gi+D)
    return head,p

sSeg=23; sRing=24; sCnt=25
VO=4; TRA=5; TRB=6; FA=7
def wreg(m,t,ks):
    i=(m*2+t)*64+4*ks
    return ('a',i) if i<256 else ('v',128+i-256)
sHsrc=26; sBuf=27; sNext=32; sGot=33
def hdma():
    o=[f's_lshl_b32 {s(sHsrc)}, {s(sNext)}, 15', f's_lshl_b32 {s(sT)}, {s(sW)}, 13', f's_add_u32 {s(sHsrc)}, {s(sHsrc)}, {s(sT)}', f's_add_u32 {s(sHsrc)}, {s(sHsrc)}, {H_OFF}',
        f's_add_u32 m0, {s(sBuf)}, {s(sT)}', f's_add_u32 {s(sT+1)}, {s(sHsrc)}, 4096']
    o+=[f'buffer_load_dwordx4 {v(L16)}, {s(WS,4)}, {s(sHsrc)} offen offset:{1024*i} sc1 lds' for i in range(4)]
    o+=['s_add_u32 m0, m0, 4096','s_nop 0']+[f'buffer_load_dwordx4 {v(L16)}, {s(WS,4)}, {s(sT+1)} offen offset:{1024*i} sc1 lds' for i in range(4)]
    return o
def p1_setup():
    p=[]; e=p.append
    A0,A1,T0_,T1_,U0,U1,r,c_,t=[112+i for i in range(9)]
    e(f'v_lshlrev_b32 {v(t)}, 1, {v(Gv)}'); e(f'v_xor_b32 {v(t)}, {v(t)}, {v(N)}'); e(f'v_lshlrev_b32 {v(t)}, 4, {v(t)}'); e(f'v_lshl_add_u32 {v(A0)}, {v(Gv)}, 13, {v(t)}')
    e(f's_lshr_b32 {s(sT)}, {s(sW)}, 1'); e(f's_lshl_b32 {s(sT)}, {s(sT)}, 18'); e(f's_and_b32 {s(sT+1)}, {s(sW)}, 1'); e(f's_lshl_b32 {s(sT+1)}, {s(sT+1)}, 15'); e(f's_add_u32 {s(sT)}, {s(sT)}, {s(sT+1)}')
    e(f's_lshl_b32 {s(sT+1)}, {s(sHd)}, 8'); e(f's_add_u32 {s(sT)}, {s(sT)}, {s(sT+1)}'); e(f'v_add_u32 {v(A0)}, {s(sT)}, {v(A0)}'); e(f'v_xor_b32 {v(A1)}, 128, {v(A0)}')
    e(f's_lshl_b32 {s(sRing)}, {s(sW)}, 12'); e(f's_add_u32 {s(sRing)}, {s(sRing)}, 32768')
    e(f'v_lshrrev_b32 {v(r)}, 2, {v(N)}'); e(f'v_and_b32 {v(c_)}, 3, {v(N)}'); e(f'v_and_b32 {v(t)}, 1, {v(Gv)}'); e(f'v_lshl_add_u32 {v(t)}, {v(t)}, 2, {v(r)}')
    e(f's_lshl_b32 {s(sT)}, {s(sW)}, 1'); e(f'v_xor_b32 {v(t)}, {s(sT)}, {v(t)}')
    e(f'v_lshlrev_b32 {v(T0_)}, 10, {v(Gv)}'); e(f'v_lshl_add_u32 {v(T0_)}, {v(r)}, 8, {v(T0_)}'); e(f'v_lshl_add_u32 {v(T0_)}, {v(t)}, 5, {v(T0_)}'); e(f'v_lshl_add_u32 {v(T0_)}, {v(c_)}, 3, {v(T0_)}')
    e(f'v_add_u32 {v(T0_)}, 32768, {v(T0_)}'); e(f'v_xor_b32 {v(T1_)}, 32, {v(T0_)}'); e(f'v_add_u32 {v(U0)}, 65536, {v(T0_)}'); e(f'v_add_u32 {v(U1)}, 65536, {v(T1_)}')
    e(f's_mov_b32 {s(sNext)}, {s(sR)}'); e(f's_mov_b32 {s(sBuf)}, 0'); e(f's_mov_b32 {s(sGot)}, 0'); e(f'v_lshlrev_b32 {v(FA)}, 3, {v(LN)}'); e('v_mov_b32 v9, 136')
    if OPT['dw']: p+=dbg_wait(136 if OPT['dw']==1 else 128, 1, 8)+['v_mov_b32 v9, 136']
    def stream(order,tag):
        q=[]; e=q.append; VQ=[]; D=OPT['d1p']
        bt=[(m,c) for m in order for c in range(8)]
        def issue(bi):
            m,c=bt[bi]; q.extend(srd((PWK,PWV,PWQ)[m],4<<20))
            for i in range(4):
                e(f's_add_u32 m0, {s(sRing)}, {(bi%8)*16384+1024*i}'); e(f's_mov_b32 {s(sT+7)}, {(64*c+8*i)*8192}')
                e(f'buffer_load_dwordx4 {v(A1 if i&1 else A0)}, {s(SRD,4)}, {s(sT+7)} offen lds'); VQ.append(bi)
        wt=lambda x: f's_waitcnt vmcnt({min(63,len(VQ)-1-max(k for k,t_ in enumerate(VQ) if t_==x))})'
        for bi in range(D): issue(bi)
        for bi in range(24):
            m,c=bt[bi]
            e(wt(bi)); e('s_barrier')
            if bi>=1 and bi-1+8<24 and D==8: issue(bi-1+8)
            elif D<8 and bi+D<24: issue(bi+D)
            for b_ in range(4):
                for t_ in range(2):
                    pf,b0=wreg(m,t_,2*c+(b_>>1)); tra=[[T0_,T1_],[U0,U1]][(bi%8)>>2][t_]
                    e(f'ds_read_b64_tr_b16 {R(pf,b0+2*(b_&1),2)}, {v(tra)} offset:{(bi%4)*16384+b_*4096}')
            if bi==12: e(f'global_load_dwordx2 v[8:9], v9, {s(DBG,2)} sc1 ;stamp'); VQ.append('i')
            if bi==OPT['hb']:
                e(wt('i')); q.extend(verify('p'+tag,9,DBG,sSpin,sT)); e('v_cmp_eq_u32 vcc, 0, v8'); e(f's_cbranch_vccz L_p1_in{tag}'); q.extend(dbg_wait(136,1,8)); q.append(f'L_p1_in{tag}:')
                e(f's_mov_b32 {s(sT)}, {BF_OFF+BF_H}'); e(f'buffer_load_dwordx2 v[8:9], {v(FA)}, {s(WS,4)}, {s(sT)} offen sc1 ;stamp'); VQ.append('h')
            e('s_waitcnt lgkmcnt(0)')
        e('s_waitcnt vmcnt(0)')
        return q
    if OPT['alt']:
        e(f's_cmp_lg_u32 {s(sR)}, 0'); e('s_cbranch_scc1 L_p1_alt')
        p+=stream((0,1,2),'a')+['s_branch L_p1_ld','L_p1_alt:']+stream((1,0,2) if OPT['alt']==1 else (2,1,0),'b')+['L_p1_ld:']
    else: p+=stream((0,1,2),'a')
    return fix(p,'p1a')

def p1_main(sync):
    p=[]; e=p.append
    AC=16; HF=64; OUT=96; sKo=28; sVo=29; sQo=30; sFl=31
    acc=lambda m,t,mt: AC+((m*2+t)*2+mt)*4
    e('s_barrier')
    if sync:
        e('v_min_u32 v8, v8, v9'); e('v_cmp_gt_u32 vcc, 1, v8'); e('s_cbranch_vccz L_p1_hok')
        e(f's_mov_b32 {s(sT)}, {BF_OFF+BF_H}')
        pl=poll(FA,s(sT),'1',8); pl[1]=pl[1].replace('dword v8','dwordx2 v[8:9]'); pl[6:6]=['v_min_u32 v8, v8, v9']
        p+=pl+['L_p1_hok:']
    e(f's_mov_b32 {s(sSeg)}, {s(sR)}'); e(f's_mov_b32 {s(sNext)}, {s(sR)}'); e(f's_mov_b32 {s(sBuf)}, 0'); e(f's_mov_b32 {s(sCnt)}, 0')
    e(f's_lshl_b32 {s(sFl)}, {s(sHd)}, 7'); e(f's_lshl_b32 {s(sT)}, {s(sR)}, 2'); e(f's_add_u32 {s(sFl)}, {s(sFl)}, {s(sT)}'); e(f's_add_u32 {s(sFl)}, {s(sFl)}, {BF_OFF+BF_KV}')
    p+=hdma()
    for i in range(4): e(f'v_mov_b32 v{12+i}, -1')
    def flag(L_,val):
        return [f's_cmp_lg_u32 {s(sW)}, 0', f's_cbranch_scc1 {L_}', f'v_mov_b32 {v(FA)}, {val}', 's_mov_b64 exec, 1',
                f'buffer_store_dword {v(FA)}, off, {s(WS,4)}, {s(sFl)} sc1', 's_mov_b64 exec, -1', L_+':'] if sync else []
    e('s_waitcnt vmcnt(0)')
    p.append('L_p1_loop:')
    e('s_waitcnt vmcnt(2)'); e('s_barrier')
    p+=flag('L_p1_nf',s(sCnt))
    e(f's_cmp_ge_u32 {s(sSeg)}, 64'); e('s_cbranch_scc1 L_p1_end')
    e(f'v_add_u32 {v(VO)}, {s(sBuf)}, {v(L16)}')
    e(f's_xor_b32 {s(sBuf)}, {s(sBuf)}, 32768'); e(f's_add_u32 {s(sNext)}, {s(sSeg)}, {NR}')
    e(f's_cmp_ge_u32 {s(sNext)}, 64'); e('s_cbranch_scc1 L_p1_nd')
    p+=hdma()
    p.append('L_p1_nd:')
    hr=lambda ks,mt: f'ds_read_b128 {v(HF+(ks%4)*8+4*mt,4)}, {v(VO)} offset:{(mt*16+(ks%16))*1024}'
    sc_=[f's_lshl_b32 {s(sT)}, {s(sHd)}, 6', f's_add_u32 {s(sT)}, {s(sT)}, {s(sSeg)}',
        f's_lshl_b32 {s(sT+1)}, {s(sW)}, 10', f's_lshl_b32 {s(sKo)}, {s(sT)}, 14', f's_add_u32 {s(sVo)}, {s(sKo)}, {KV_OFF+8192}',
        f's_add_u32 {s(sKo)}, {s(sKo)}, {s(sT+1)}', f's_add_u32 {s(sKo)}, {s(sKo)}, {KV_OFF}', f's_add_u32 {s(sT+2)}, {s(sKo)}, 4096',
        f's_lshl_b32 {s(sQo)}, {s(sT)}, 13', f's_add_u32 {s(sQo)}, {s(sQo)}, {s(sT+1)}', f's_add_u32 {s(sQo)}, {s(sQo)}, {Q_OFF}', f's_add_u32 {s(sT+3)}, {s(sQo)}, 4096',
        f's_lshl_b32 {s(sT+1)}, {s(sW)}, 11', f's_add_u32 {s(sVo)}, {s(sVo)}, {s(sT+1)}',
        f's_lshl_b32 {s(sT)}, {s(sT)}, 2', f's_add_u32 {s(sT)}, {s(sT)}, {s(sW)}', f's_lshl_b32 {s(sT)}, {s(sT)}, 10', f's_add_u32 {s(sT)}, {s(sT)}, {KVM_OFF}',
        f'buffer_store_dwordx4 v[12:15], {v(L16)}, {s(WS,4)}, {s(sT)} offen sc1']
    def outk(m,sos,k):
        o=[]
        for mt in range(2):
            o+=[f'v_cvt_pk_bf16_f32 {v(OUT+4*(k+mt)+r)}, {v(acc(m,0,mt)+r)}, {v(acc(m,1,mt)+r)}' for r in range(4)]
            o+=[f'buffer_store_dwordx4 {v(OUT+4*(k+mt),4)}, {v(L16)}, {s(WS,4)}, {s(sos[mt])} offen sc1']
        return o
    kvout=outk(0,(sKo,sT+2),0)
    for t in range(2):
        kvout+=[f'v_cvt_pk_bf16_f32 {v(OUT+8+4*t+2*mt+j)}, {v(acc(1,t,mt)+2*j)}, {v(acc(1,t,mt)+2*j+1)}' for mt in range(2) for j in range(2)]
        kvout+=[f'buffer_store_dwordx4 {v(OUT+8+4*t,4)}, {v(L16)}, {s(WS,4)}, {s(sVo)} offen offset:{1024*t} sc1']
    for ks in range(2):
        for mt in range(2): e(hr(ks,mt))
    for kk in range(32):
        ks=kk%16; mm=[]
        for mt in range(2):
            hf=v(HF+(ks%4)*8+4*mt,4)
            for m in ((0,1) if kk<16 else (2,)):
                for t in range(2):
                    pf,b=wreg(m,t,ks); w_=R(pf,b,4); c_=v(acc(m,t,mt),4)
                    a_,b_=(hf,w_) if m==1 else (w_,hf)
                    mm.append([f'{MF32} {c_}, {a_}, {b_}, '+(c_ if ks else '0')])
        if kk+2<32: mm[0].append(hr(kk+2,0)); mm[2].append(hr(kk+2,1))
        if kk<16:
            for j in (4,5):
                if sc_: mm[j].append(sc_.pop(0))
        elif kk>=18:
            for j in (1,1,3,3):
                if kvout: mm[j].append(kvout.pop(0))
        p+=sum(mm,[])
    assert not sc_ and not kvout
    p+=outk(2,(sQo,sT+3),4)
    e(f's_add_u32 {s(sSeg)}, {s(sSeg)}, {NR}'); e(f's_add_u32 {s(sCnt)}, {s(sCnt)}, 1'); e('s_branch L_p1_loop')
    p.append('L_p1_end:')
    e('s_waitcnt vmcnt(0)'); e('s_barrier'); p+=flag('L_p1_nf2','33')
    r=fix(p,'p1'); i=r.index('L_p1_loop:'); j=r.index('L_p1_end:'); check(r[:j]+r[i:],'p1loop')
    return r

sGrp=21; sJ=22; sGB=26; sEp=27; sFw=28; sFr=29; sKq=30; sCq=31; sM=32; sEh=33; sScale=34; sLg=35; sFast=36; sQf=37; sMf=38
WO=lambda ks: a(4*ks,4)
W1=lambda t,ks: a(128+64*t+4*ks,4)
W2=lambda ks: v(200+4*ks,4)
MODV=168
IDX=4; KW=5; FA2=6; HRD=7; HSR=8; PSA=9; MSK=10; ZR=12; NEG=152; HRD1=151
L_PF=81920
def qkv_fetch(sync, sSg):
    o=[]
    if sync:
        o+=[f's_and_b32 {s(sT)}, {s(sSg)}, 1', f's_lshl_b32 {s(sT)}, {s(sT)}, 2', f's_add_u32 {s(sT)}, {s(sT)}, {s(sQf)}', f's_lshr_b32 {s(sT+1)}, {s(sSg)}, 1', f's_add_u32 {s(sT+1)}, {s(sT+1)}, 2']
        o+=poll(ZR+1,s(sT),s(sT+1),14,0,2)
    o+=[f's_lshl_b32 {s(sT)}, {s(sJ)}, 6', f's_add_u32 {s(sT)}, {s(sT)}, {s(sSg)}', f's_lshl_b32 {s(sT+1)}, {s(sT)}, 13', f's_add_u32 {s(sT+1)}, {s(sT+1)}, {Q_OFF}',
        f's_lshl_b32 {s(sT)}, {s(sT)}, 14', f's_lshl_b32 {s(sT+2)}, {s(sM)}, 13', f's_add_u32 {s(sT)}, {s(sT)}, {s(sT+2)}', f's_add_u32 {s(sT)}, {s(sT)}, {KV_OFF}',
        f's_cmp_eq_u32 {s(sW)}, 1', f's_cselect_b32 {s(sT)}, {s(sT+1)}, {s(sT)}', f's_add_u32 {s(sT+1)}, {s(sT)}, 4096',
        f's_lshl_b32 {s(sT+2)}, {s(sW)}, 13', f's_add_u32 m0, {s(sT+2)}, {L_PF-8192}', 's_nop 0']
    o+=[f'buffer_load_dwordx4 {v(L16)}, {s(WS,4)}, {s(sT)} offen offset:{1024*i} sc1 lds' for i in range(4)]
    o+=['s_add_u32 m0, m0, 4096','s_nop 0']+[f'buffer_load_dwordx4 {v(L16)}, {s(WS,4)}, {s(sT+1)} offen offset:{1024*i} sc1 lds' for i in range(4)]
    return o
def p2_setup(sync):
    p=[]; e=p.append
    e('s_barrier')
    e(f's_lshr_b32 {s(sGrp)}, {s(sB)}, 5'); e(f's_add_u32 {s(sGrp)}, {s(sGrp)}, 5'); e(f's_cmp_ge_u32 {s(sGrp)}, 7'); e(f's_cselect_b32 {s(sT)}, 7, 0'); e(f's_sub_u32 {s(sGrp)}, {s(sGrp)}, {s(sT)}'); e(f's_and_b32 {s(sJ)}, {s(sB)}, 31')
    if sync: p+=dbg_wait(136,1,16)
    e(f's_lshl_b32 {s(sGB)}, {s(sGrp)}, 20'); e(f's_add_u32 {s(sGB)}, {s(sGB)}, {G_OFF}')
    e(f's_lshr_b32 {s(sKq)}, {s(sJ)}, 3'); e(f's_and_b32 {s(sCq)}, {s(sJ)}, 7'); e(f's_and_b32 {s(sM)}, {s(sW)}, 1'); e(f's_lshr_b32 {s(sEh)}, {s(sW)}, 1')
    e(f's_lshl_b32 {s(sFr)}, {s(sGrp)}, 8'); e(f's_add_u32 {s(sFr)}, {s(sFr)}, {BF_OFF+BF_GB}'); e(f's_lshl_b32 {s(sT)}, {s(sJ)}, 2'); e(f's_add_u32 {s(sFw)}, {s(sFr)}, {s(sT)}')
    e(f's_mov_b32 {s(sEp)}, 0'); e(f's_mov_b32 {s(sScale)}, {hex(f2u(128**-0.5))}'); e(f's_mov_b32 {s(sLg)}, {hex(f2u(math.log2(math.e)))}')
    e(f's_lshl_b32 {s(sRing)}, {s(sW)}, 15'); e(f's_add_u32 {s(sRing)}, {s(sRing)}, 32768')
    e(f's_lshl_b32 {s(sMf)}, {s(sJ)}, 7')
    e(f's_add_u32 {s(sQf)}, {s(sMf)}, {BF_OFF+BF_KV}'); e(f's_add_u32 {s(sMf)}, {s(sMf)}, {BF_OFF+BF_KVM}')
    for i in range(4): e(f'v_mov_b32 {v(NEG+i)}, -1')
    e(f's_lshl_b32 {s(sT)}, {s(sJ)}, 13'); e(f's_add_u32 {s(sT)}, {s(sT)}, {s(sGB)}'); e(f's_lshl_b32 {s(sT+1)}, {s(sW)}, 11'); e(f's_add_u32 {s(sT)}, {s(sT)}, {s(sT+1)}')
    for off in (G_P1,G_P2):
        e(f's_add_u32 {s(sT+1)}, {s(sT)}, {off}')
        for i in range(2): e(f'buffer_store_dwordx4 {v(NEG,4)}, {v(L16)}, {s(WS,4)}, {s(sT+1)} offen offset:{1024*i} sc1')
    e('s_waitcnt vmcnt(0)'); e('s_barrier')
    e(f's_getreg_b32 {s(sFast)}, hwreg(HW_REG_XCC_ID)'); e(f's_and_b32 {s(sFast)}, {s(sFast)}, 7'); e(f's_add_u32 {s(sFast)}, {s(sFast)}, 1')
    e(f'v_mov_b32 v16, {s(sFast)}'); e('s_mov_b64 exec, 1'); e(f'buffer_store_dword v16, off, {s(WS,4)}, {s(sFw)} offset:{BF_XC-BF_GB} sc1'); e('s_mov_b64 exec, -1')
    t1,t2,r,c_,g1=16,17,18,19,20
    e(f'v_and_b32 {v(t1)}, 1, {v(LN)}'); e(f'v_mul_u32_u24 {v(t1)}, 0xaaaa, {v(t1)}'); e(f'v_add_u32 {v(IDX)}, 0x4444, {v(t1)}')
    e(f'v_bfe_u32 {v(t1)}, {v(N)}, 1, 2'); e(f'v_lshlrev_b32 {v(KW)}, 2, {v(t1)}'); e(f'v_and_b32 {v(t1)}, 1, {v(N)}'); e(f'v_lshl_add_u32 {v(KW)}, {v(t1)}, 4, {v(KW)}')
    e(f'v_lshl_add_u32 {v(KW)}, {v(Gv)}, 6, {v(KW)}'); e(f'v_lshrrev_b32 {v(t1)}, 3, {v(N)}'); e(f'v_lshl_add_u32 {v(KW)}, {v(t1)}, 8, {v(KW)}')
    e(f's_lshl_b32 {s(sT)}, {s(sW)}, 9'); e(f'v_add_u32 {v(KW)}, {s(sT)}, {v(KW)}')
    e(f'v_and_b32 {v(FA2)}, 31, {v(LN)}'); e(f'v_lshlrev_b32 {v(FA2)}, 2, {v(FA2)}')
    e(f'v_lshrrev_b32 {v(t1)}, 1, {v(N)}'); e(f'v_xor_b32 {v(t1)}, {v(t1)}, {v(Gv)}'); e(f'v_lshlrev_b32 {v(t1)}, 4, {v(t1)}'); e(f'v_lshl_add_u32 {v(HRD)}, {v(N)}, 7, {v(t1)}')
    e(f's_lshl_b32 {s(sT)}, {s(sM)}, 14'); e(f'v_add_u32 {v(HRD)}, {s(sT)}, {v(HRD)}'); e(f'v_xor_b32 {v(HRD1)}, 64, {v(HRD)}')
    e(f'v_and_b32 {v(c_)}, 3, {v(LN)}'); e(f'v_and_b32 {v(t1)}, 7, {v(LN)}'); e(f'v_xor_b32 {v(t1)}, {v(t1)}, {v(Gv)}'); e(f'v_lshlrev_b32 {v(t1)}, 4, {v(t1)}')
    e(f'v_lshrrev_b32 {v(t2)}, 3, {v(LN)}'); e(f'v_lshl_add_u32 {v(HSR)}, {v(t2)}, 10, {v(t1)}'); e(f's_lshl_b32 {s(sT)}, {s(sM)}, 6'); e(f'v_xor_b32 {v(HSR)}, {s(sT)}, {v(HSR)}')
    e(f'v_lshlrev_b32 {v(PSA)}, 15, {v(Gv)}'); e(f'v_lshl_add_u32 {v(PSA)}, {v(N)}, 2, {v(PSA)}')
    e(f's_lshl_b32 {s(sT)}, {s(sJ)}, 8'); e(f's_lshl_b32 {s(sT+1)}, {s(sW)}, 6'); e(f's_add_u32 {s(sT)}, {s(sT)}, {s(sT+1)}'); e(f'v_add_u32 {v(PSA)}, {s(sT)}, {v(PSA)}')
    e(f'v_lshlrev_b32 {v(t1)}, 2, {v(Gv)}'); e(f'v_sub_u32 {v(MSK)}, {v(N)}, {v(t1)}')
    e(f'v_mov_b32 {v(ZR+1)}, 0')
    A64,B0,B1,A32,C0,C1,A32b=24,25,26,27,28,29,30
    e(f'v_lshrrev_b32 {v(r)}, 2, {v(N)}'); e(f'v_and_b32 {v(g1)}, 1, {v(Gv)}')
    e(f'v_lshlrev_b32 {v(B0)}, 8, {v(Gv)}'); e(f'v_lshl_add_u32 {v(B0)}, {v(c_)}, 3, {v(B0)}'); e(f'v_add_u32 {v(B0)}, {s(sRing)}, {v(B0)}')
    e(f'v_lshl_add_u32 {v(C0)}, {v(r)}, 5, {v(B0)}'); e(f'v_lshl_add_u32 {v(C0)}, {v(g1)}, 7, {v(C0)}'); e(f'v_xor_b32 {v(C1)}, 128, {v(C0)}')
    e(f'v_lshl_add_u32 {v(B0)}, {v(r)}, 6, {v(B0)}'); e(f'v_lshl_add_u32 {v(B0)}, {v(g1)}, 5, {v(B0)}'); e(f'v_xor_b32 {v(B1)}, 32, {v(B0)}')
    e(f'v_lshlrev_b32 {v(t1)}, 1, {v(g1)}'); e(f'v_xor_b32 {v(t1)}, {v(t1)}, {v(c_)}'); e(f'v_lshlrev_b32 {v(t1)}, 4, {v(t1)}')
    e(f'v_lshl_add_u32 {v(A64)}, {v(Gv)}, 3, {v(r)}'); e(f'v_mul_u32_u24 {v(A64)}, 3584, {v(A64)}'); e(f'v_add_u32 {v(A64)}, {v(A64)}, {v(t1)}')
    e(f's_min_u32 {s(sT)}, {s(sJ)}, 27'); e(f's_lshl_b32 {s(sT)}, {s(sT)}, 7'); e(f's_lshl_b32 {s(sT+1)}, {s(sEh)}, 6'); e(f's_add_u32 {s(sT)}, {s(sT)}, {s(sT+1)}'); e(f'v_add_u32 {v(A64)}, {s(sT)}, {v(A64)}')
    e(f'v_lshrrev_b32 {v(t1)}, 3, {v(N)}'); e(f'v_xor_b32 {v(t1)}, {v(t1)}, {v(g1)}'); e(f'v_bfe_u32 {v(t2)}, {v(N)}, 1, 2')
    e(f'v_lshl_add_u32 {v(t2)}, {v(t1)}, 4, {v(t2)}'); e(f'v_lshl_add_u32 {v(t2)}, {v(Gv)}, 2, {v(t2)}'); e(f'v_and_b32 {v(t1)}, 1, {v(N)}'); e(f'v_lshlrev_b32 {v(t1)}, 4, {v(t1)}')
    e(f'v_lshl_add_u32 {v(A32)}, {v(t2)}, 10, {v(t1)}')
    e(f's_lshl_b32 {s(sT)}, {s(sCq)}, 7'); e(f's_lshl_b32 {s(sT+1)}, {s(sW)}, 5'); e(f's_add_u32 {s(sT)}, {s(sT)}, {s(sT+1)}')
    e(f's_mul_i32 {s(sT+1)}, {s(sKq)}, {448*1024}'); e(f's_add_u32 {s(sT+1)}, {s(sT+1)}, {s(sT)}'); e(f'v_add_u32 {v(A32b)}, {s(sT+1)}, {v(A32)}')
    e(f's_lshl_b32 {s(sT+1)}, {s(sKq)}, 20'); e(f's_add_u32 {s(sT+1)}, {s(sT+1)}, {s(sT)}'); e(f'v_add_u32 {v(A32)}, {s(sT+1)}, {v(A32)}')
    blocks=[]
    mv=lambda o: (lambda reg: [f's_mov_b32 {s(reg)}, {o}'])
    for ks in range(32): blocks.append((srd(PWO,4<<20) if ks%4==0 else None, A32, mv(ks*32768), [(a(4*ks,2),C0,0),(a(4*ks+2,2),C1,0)]))
    for ks in range(16):
        for jh in range(2): blocks.append((srd(PW1,512*3584) if ks%2==0 and jh==0 else None, A64, mv((32*ks+4*jh)*3584), [(a(128+4*ks+2*jh,2),B0,0),(a(192+4*ks+2*jh,2),B1,0)]))
    for ks in range(16):
        kk=min(ks,13); blocks.append((srd(PW2,1792*1024) if ks%4==0 else None, A32b, mv(kk*32768), [(v(200+4*ks,2),C0,0),(v(202+4*ks,2),C1,0)] if ks<14 else []))
    head,rest=wstream(blocks,sRing,OPT['d2'])
    if OPT['dl']:
        e(f'v_mov_b32 v17, 0'); p+=poll(17,s(sQf),str(OPT['dl']),16)
    p+=head+rest
    if sync: p+=dbg_wait(132,64,16)
    e(f's_mov_b32 {s(sT)}, {MOD_OFF+2048}')
    for i in range(4): e(f'buffer_load_dwordx4 {v(16+4*i,4)}, {v(L16)}, {s(WS,4)}, {s(sT)} offen offset:{1024*i} sc1')
    for i in range(16): p+=unp(MODV+2*i,16+i)
    for i in range(16,24): e(f'v_add_f32 {v(MODV+i)}, 1.0, {v(MODV+i)}')
    for i in range(16,24,2): p+=rnd(MODV+i,MODV+i+1,16)
    p+=poll(FA2,s(sFr),'1',16,BF_XC-BF_GB)
    e(f'v_cmp_ne_u32 vcc, {s(sFast)}, v16')
    e(f's_cmp_ge_u32 {s(sGrp)}, 5'); e(f's_cselect_b32 {s(sT)}, 38, 0'); e(f's_add_u32 {s(sSeg)}, {s(sGrp)}, {s(sT)}')
    e(f's_lshl_b32 {s(sT)}, {s(sJ)}, 15'); e(f's_lshl_b32 {s(sT+1)}, {s(sW)}, 13'); e(f's_add_u32 {s(sT)}, {s(sT)}, {s(sT+1)}'); e(f's_add_u32 {s(sT)}, {s(sT)}, {s(sGB)}'); e(f's_add_u32 {s(sT+1)}, {s(sT)}, 4096')
    for i in range(8): e(f'buffer_load_dwordx4 v[20:23], {v(L16)}, {s(WS,4)}, {s(sT+(i>>2))} offen offset:{1024*(i&3)} sc1')
    e(f's_mov_b64 {s(sT+4,2)}, vcc'); e('s_barrier')
    e(f's_cmp_eq_u32 {s(sW)}, 0'); e('s_cbranch_scc1 L_p2_nf'); p+=qkv_fetch(sync,sSeg); p.append('L_p2_nf:')
    e(f's_mov_b64 vcc, {s(sT+4,2)}')
    e('s_waitcnt vmcnt(0)')
    p+=srd(PX,2048*1024)
    p+=STAMP(7,160)
    e('s_barrier')
    e('s_cbranch_vccnz L_p2_S')
    return fix(p,'p2s')

def p2_loop(mode, sync):
    sc=' sc1' if mode=='S' else ''
    L=f'L_p2_{mode}'
    p=[L+':']; e=p.append
    nb=[0]
    def gbar():
        nb[0]+=1; k=f'{L}_g{nb[0]}'
        return ['s_waitcnt vmcnt(0)','s_barrier', f's_add_u32 {s(sEp)}, {s(sEp)}, 1', f's_cmp_lg_u32 {s(sW)}, 0', f's_cbranch_scc1 {k}',
                f'v_mov_b32 v14, {s(sEp)}','s_mov_b64 exec, 1', f'buffer_store_dword v14, off, {s(WS,4)}, {s(sFw)}{sc}','s_mov_b64 exec, -1','s_nop 15']+pollp(FA2,s(sFr),s(sEp),PR)+STAMP(8+nb[0],128)+[k+':','s_barrier']
    QF=16; KF=32; VF=64; KV=80; S0=92; OA=104; T=120; MX=121; SUM=122; PXr=124; KM=128; XR=136; X1=140; PR=150
    e(f's_lshl_b32 {s(sT)}, {s(sSeg)}, 5'); e(f's_add_u32 {s(sT)}, {s(sT)}, {s(sJ)}'); e(f's_lshl_b32 {s(sT+6)}, {s(sT)}, 10')
    e(f's_lshl_b32 {s(sT)}, {s(sJ)}, 6'); e(f's_add_u32 {s(sT)}, {s(sT)}, {s(sSeg)}'); e(f's_lshl_b32 {s(sT+5)}, {s(sT)}, 12'); e(f's_add_u32 {s(sT+5)}, {s(sT+5)}, {KVM_OFF}')
    e(f'buffer_load_dwordx4 {v(XR,4)}, {v(L16)}, {s(SRD,4)}, {s(sT+6)} offen')
    e(f's_lshl_b32 {s(sT)}, {s(sM)}, 12'); e(f's_add_u32 {s(sT)}, {s(sT)}, {L_PF}'); e(f'v_add_u32 {v(T)}, {s(sT)}, {v(L16)}')
    for i in range(4): e(f'ds_read_b128 {v(QF+4*i,4)}, {v(T)} offset:{1024*i}')
    e(f'v_add_u32 {v(T)}, {L_PF+8192}, {v(L16)}')
    for i in range(8): e(f'ds_read_b128 {v(KF+4*i,4)}, {v(T)} offset:{1024*i}')
    e(f's_lshl_b32 {s(sT)}, {s(sEh)}, 12'); e(f'v_add_u32 {v(T)}, {s(sT)}, {v(T)}')
    for i in range(4): e(f'ds_read_b128 {v(VF+4*i,4)}, {v(T)} offset:{8192+1024*i}')
    for m in range(2):
        for ks in range(4): e(f'{MF32} {v(S0+4*m,4)}, {v(KF+16*m+4*ks,4)}, {v(QF+4*ks,4)}, '+(v(S0+4*m,4) if ks else '0'))
    e(f'v_mov_b64 {v(S0+8,2)}, 0'); e(f'v_mov_b64 {v(S0+10,2)}, 0')
    def sround(a_): return rnd(a_,a_+1,T)+[f'v_mul_f32 {v(a_)}, {s(sScale)}, {v(a_)}', f'v_mul_f32 {v(a_+1)}, {s(sScale)}, {v(a_+1)}']+rnd(a_,a_+1,T)
    for i in range(0,8,2): p+=sround(S0+i)
    e(f's_lshl_b32 {s(sT+1)}, {s(sM)}, 4'); e(f'v_add_u32 {v(T)}, {s(sT+1)}, {v(MSK)}'); e(f'v_mov_b32 {v(SUM)}, {hex(f2u(-999292928.0))}')
    for i in range(8):
        e(f'v_cmp_le_i32 vcc, {16*(i>>2)+(i&3)}, {v(T)}'); e(f'v_cndmask_b32 {v(S0+i)}, {v(SUM)}, {v(S0+i)}, vcc')
    e(f'v_max3_f32 {v(MX)}, {v(S0)}, {v(S0+1)}, {v(S0+2)}'); e(f'v_max3_f32 {v(MX)}, {v(MX)}, {v(S0+3)}, {v(S0+4)}'); e(f'v_max3_f32 {v(MX)}, {v(MX)}, {v(S0+5)}, {v(S0+6)}'); e(f'v_max_f32 {v(MX)}, {v(MX)}, {v(S0+7)}')
    p+=xg('v_max_f32',MX,T)
    for i in range(8): e(f'v_sub_f32 {v(S0+i)}, {v(S0+i)}, {v(MX)}')
    for i in range(8): e(f'v_mul_f32 {v(S0+i)}, {s(sLg)}, {v(S0+i)}')
    for i in range(8): e(f'v_exp_f32 {v(S0+i)}, {v(S0+i)}')
    e(f'v_add_f32 {v(SUM)}, {v(S0)}, {v(S0+1)}')
    for i in range(2,8): e(f'v_add_f32 {v(SUM)}, {v(SUM)}, {v(S0+i)}')
    if sync:
        e(f's_cmp_lg_u32 {s(sW)}, 0'); e(f's_cbranch_scc1 {L}_kw'); e(f's_max_u32 {s(sT+2)}, {s(sSeg)}, 1'); e(f's_sub_u32 {s(sT+2)}, {s(sT+2)}, 1'); e(f's_min_u32 {s(sT+2)}, {s(sT+2)}, 61')
        p+=poll(ZR+1,s(sMf),s(sT+2),PR,0,OPT['lp'])+[f'{L}_kw:','s_barrier']
    e(f's_lshl_b32 {s(sT+1)}, {s(sEh)}, 11'); e(f's_add_u32 {s(sT+1)}, {s(sT+1)}, {s(sT+5)}'); e(f's_lshl_b32 {s(sT+2)}, {s(sM)}, 2')
    p.append(f'{L}_kd:')
    for i in range(2): e(f'buffer_load_dwordx4 {v(KV+4*i,4)}, {v(L16)}, {s(WS,4)}, {s(sT+1)} offen offset:{1024*i} sc1')
    e(f's_add_u32 {s(sSpin)}, {s(sSpin)}, 1'); e(f's_cmp_gt_u32 {s(sSpin)}, {LIM}')
    e(f'v_max3_u32 {v(T)}, {v(KV)}, {v(KV+1)}, {v(KV+2)}'); e(f'v_max3_u32 {v(T)}, {v(T)}, {v(KV+3)}, {v(KV+4)}'); e(f'v_max3_u32 {v(T)}, {v(T)}, {v(KV+5)}, {v(KV+6)}'); e(f'v_max_u32 {v(T)}, {v(T)}, {v(KV+7)}')
    e(f'v_cmp_eq_u32 vcc, -1, {v(T)}'); e(f's_cbranch_scc1 {L}_kx')
    if OPT['ks']:
        e(f's_cbranch_vccz {L}_kx'); e(f's_cmp_ge_u32 {s(sSeg)}, 62'); e(f's_cbranch_scc1 {L}_kd'); e(f's_sleep {OPT["ks"]}'); e(f's_branch {L}_kd')
    else: e(f's_cbranch_vccnz {L}_kd')
    p.append(f'{L}_kx:')
    p+=STAMP(8,128)
    e(f's_cmp_eq_u32 {s(sM)}, 1'); e('s_cselect_b64 vcc, -1, 0')
    e(f'v_cndmask_b32 {v(KV+9)}, {v(KV+1)}, {v(KV+5)}, vcc'); e(f'v_cndmask_b32 {v(KV+11)}, {v(KV+3)}, {v(KV+7)}, vcc')
    e(f'ds_write2_b32 {v(KW)}, {v(KV+9)}, {v(KV+11)} offset0:0 offset1:8'); e('s_waitcnt lgkmcnt(0)'); e('s_barrier')
    for k in range(2): e(f'ds_read_b128 {v(KM+4*k,4)}, {v(L16)} offset:{1024*k}')
    for k in range(2): e(f'{SMF} {v(S0+8,4)}, {v(KM+4*k,4)}, {v(QF+8*k,8)}, {v(IDX)}')
    e(f'v_add_f32 {v(S0+8)}, {v(S0+8)}, {v(S0+9)}'); e(f'v_add_f32 {v(S0+9)}, {v(S0+10)}, {v(S0+11)}')
    p+=sround(S0+8)
    AL=S0+10; M2=S0+11
    e(f'v_max3_f32 {v(M2)}, {v(MX)}, {v(S0+8)}, {v(S0+9)}'); p+=xg('v_max_f32',M2,T)
    e(f'v_sub_f32 {v(S0+8)}, {v(S0+8)}, {v(M2)}'); e(f'v_sub_f32 {v(S0+9)}, {v(S0+9)}, {v(M2)}'); e(f'v_sub_f32 {v(AL)}, {v(MX)}, {v(M2)}')
    for i in range(8,11): e(f'v_mul_f32 {v(S0+i)}, {s(sLg)}, {v(S0+i)}')
    for i in range(8,11): e(f'v_exp_f32 {v(S0+i)}, {v(S0+i)}')
    e(f'v_add_f32 {v(M2)}, {v(S0+8)}, {v(S0+9)}'); e(f'v_fmac_f32 {v(M2)}, {v(AL)}, {v(SUM)}')
    p+=xg('v_add_f32',M2,T); e(f'v_rcp_f32 {v(M2)}, {v(M2)}')
    e(f'v_mul_f32 {v(AL)}, {v(AL)}, {v(M2)}')
    e(f'v_pk_mul_f32 {v(S0+8,2)}, {v(S0+8,2)}, {v(AL,2)} op_sel:[0,1]')
    for i in range(0,8,2): e(f'v_pk_mul_f32 {v(S0+i,2)}, {v(S0+i,2)}, {v(AL,2)} op_sel_hi:[1,0]')
    for i in range(4): e(f'v_cvt_pk_bf16_f32 {v(PXr+i)}, {v(S0+2*i)}, {v(S0+2*i+1)}')
    e(f'v_cvt_pk_bf16_f32 {v(ZR)}, {v(S0+8)}, {v(S0+9)}')
    for i in range(4): e(f'{MF32} {v(OA+4*i,4)}, {v(VF+4*i,4)}, {v(PXr,4)}, 0')
    for i in range(4): e(f'{MF16} {v(OA+4*i,4)}, {v(KV+2*i,2)}, {v(ZR,2)}, {v(OA+4*i,4)}')
    e(f's_lshl_b32 {s(sT+1)}, {s(sJ)}, 13'); e(f's_lshl_b32 {s(sT+2)}, {s(sEh)}, 12'); e(f's_add_u32 {s(sT+1)}, {s(sT+1)}, {s(sT+2)}'); e(f's_lshl_b32 {s(sT+2)}, {s(sM)}, 10')
    e(f's_add_u32 {s(sT+1)}, {s(sT+1)}, {s(sT+2)}'); e(f's_add_u32 {s(sT+1)}, {s(sT+1)}, {s(sGB)}')
    for k in range(2):
        for i in range(4): e(f'v_cvt_pk_bf16_f32 {v(QF+4*k+i)}, {v(OA+8*k+2*i)}, {v(OA+8*k+2*i+1)}')
        e(f'buffer_store_dwordx4 {v(QF+4*k,4)}, {v(L16)}, {s(WS,4)}, {s(sT+1)} offen offset:{G_O+2048*k}{sc}')
    p+=gbar()
    def gemm_part(src_lines, nks, wf, dst_off):
        o=list(src_lines)
        nfr=2*nks; per=nfr//4; nch=(per+3)//4
        sizes=[min(4,per-4*c) for c in range(nch)]
        base=0; starts=[]
        for c,sz in enumerate(sizes):
            starts.append(base)
            o+=[f's_mul_i32 {s(sT+2)}, {s(sW)}, {sz*1024}', f's_add_u32 {s(sT+2)}, {s(sT+2)}, {base*1024}', f's_add_u32 m0, {s(sT+2)}, 4096', f's_add_u32 {s(sT+2)}, {s(sT+2)}, {s(sT+1)}']
            o+=[f'buffer_load_dwordx4 {v(L16)}, {s(WS,4)}, {s(sT+2)} offen offset:{1024*i} sc1 lds' for i in range(sz)]
            base+=4*sz
        o+=[f'v_add_u32 {v(T)}, 4096, {v(L16)}']
        left=per
        for c,sz in enumerate(sizes):
            left-=sz
            o+=[f's_waitcnt vmcnt({left})','s_barrier']
            fr=list(range(starts[c],starts[c]+4*sz))
            rd=lambda f: f'ds_read_b128 {v(QF+4*(f%8),4)}, {v(T)} offset:{1024*f}'
            o+=[rd(f) for f in fr[:4]]
            for i,f in enumerate(fr):
                ac=v(OA+4*(f&1),4)
                o.append(f'{MF32} {ac}, {v(QF+4*(f%8),4)}, {wf(f>>1)}, '+(ac if f>1 else '0'))
                if i+4<len(fr): o.append(rd(fr[i+4]))
        o+=STAMP(16 if nks==32 else 19,128)
        for mt in range(2):
            for r in range(4):
                o+=[f's_add_u32 {s(sT+2)}, {s(sGB)}, {dst_off+(16*mt+r)*8192}', f'buffer_store_dword {v(OA+4*mt+r)}, {v(PSA)}, {s(WS,4)}, {s(sT+2)} offen{sc}']
        return o
    p+=gemm_part([f's_lshl_b32 {s(sT+1)}, {s(sKq)}, 16', f's_add_u32 {s(sT+1)}, {s(sT+1)}, {s(sGB)}'],32,WO,G_P1)
    nb[0]+=1
    def rowsum(off,tag):
        k_=f'{L}_{tag}'
        o=[f's_lshl_b32 {s(sT+1)}, {s(sJ)}, 13', f's_add_u32 {s(sT+1)}, {s(sT+1)}, {s(sGB)}', f's_add_u32 {s(sT+1)}, {s(sT+1)}, {off}', f's_add_u32 {s(sT+2)}, {s(sT+1)}, 4096', f'v_lshlrev_b32 {v(T)}, 1, {v(L16)}']+([f's_sleep {OPT["rd"]}'] if OPT['rd'] else [])+[k_+':']
        for k in range(4):
            for hf in range(2): o.append(f'buffer_load_dwordx4 {v(QF+8*k+4*hf,4)}, {v(T)}, {s(WS,4)}, {s(sT+1+(k>>1))} offen offset:{2048*(k&1)+16*hf} sc1')
        o+=[f's_add_u32 {s(sSpin)}, {s(sSpin)}, 4', f's_cmp_gt_u32 {s(sSpin)}, {LIM}']
        for k in range(1,4):
            for i in range(0,8,2): o.append(f'v_pk_add_f32 {v(QF+i,2)}, {v(QF+i,2)}, {v(QF+8*k+i,2)}')
        o+=[f'v_pk_add_f32 {v(QF+8,2)}, {v(QF,2)}, {v(QF+2,2)}', f'v_pk_add_f32 {v(QF+10,2)}, {v(QF+4,2)}, {v(QF+6,2)}', f'v_pk_add_f32 {v(QF+8,2)}, {v(QF+8,2)}, {v(QF+10,2)}',
            f'v_cmp_u_f32 vcc, {v(QF+8)}, {v(QF+9)}', f's_cbranch_scc1 {k_}x', f's_cbranch_vccnz {k_}', k_+'x:']
        for i in range(0,8,2): o+=rnd(QF+i,QF+i+1,T)
        return o
    repoison=[f'buffer_store_dwordx4 {v(NEG,4)}, {v(L16)}, {s(WS,4)}, {s(sT+1+(i>>2))} offen offset:{1024*(i&3)}{sc}' for i in range(8)]
    e(f's_cmp_lt_u32 {s(sSeg)}, 38'); e(f's_cselect_b32 {s(sCnt)}, 5, 7'); e(f's_add_u32 {s(sCnt)}, {s(sSeg)}, {s(sCnt)}')
    e(f's_cmp_eq_u32 {s(sW)}, 0'); e(f's_cbranch_scc1 {L}_n0')
    e('s_barrier'); e(f's_cmp_ge_u32 {s(sCnt)}, 64'); e(f's_cbranch_scc1 {L}_n1')
    p+=qkv_fetch(sync,sCnt); e(f's_branch {L}_n1')
    p.append(f'{L}_n0:')
    for i in range(4): p+=unp(X1+2*i,XR+i)
    p+=rowsum(G_P1,'ra')+['s_barrier']+STAMP(10,128)
    for i in range(0,8,2): e(f'v_pk_mul_f32 {v(QF+i,2)}, {v(QF+i,2)}, {v(MODV+i,2)}')
    for i in range(0,8,2): p+=rnd(QF+i,QF+i+1,T)
    for i in range(0,8,2): e(f'v_pk_add_f32 {v(X1+i,2)}, {v(X1+i,2)}, {v(QF+i,2)}')
    for i in range(0,8,2): p+=rnd(X1+i,X1+i+1,T)
    e(f'v_pk_add_f32 {v(QF,2)}, {v(X1,2)}, {v(X1+2,2)}'); e(f'v_pk_add_f32 {v(QF+2,2)}, {v(X1+4,2)}, {v(X1+6,2)}'); e(f'v_pk_add_f32 {v(QF,2)}, {v(QF,2)}, {v(QF+2,2)}'); e(f'v_add_f32 {v(MX)}, {v(QF)}, {v(QF+1)}')
    p+=xrow(MX)+xg('v_add_f32',MX,T); e(f'v_mul_f32 {v(MX)}, {hex(f2u(1/512))}, {v(MX)}')
    sub=lambda i: f'v_pk_add_f32 {v(QF+i,2)}, {v(X1+i,2)}, {v(MX-1,2)} op_sel:[0,1] neg_lo:[0,1] neg_hi:[0,1]'
    for i in range(0,8,2): e(sub(i))
    e(f'v_pk_mul_f32 {v(QF,2)}, {v(QF,2)}, {v(QF,2)}')
    for i in range(2,8,2): e(f'v_pk_fma_f32 {v(QF,2)}, {v(QF+i,2)}, {v(QF+i,2)}, {v(QF,2)}')
    e(f'v_add_f32 {v(SUM)}, {v(QF)}, {v(QF+1)}')
    p+=xrow(SUM)+xg('v_add_f32',SUM,T); e(f'v_mul_f32 {v(SUM)}, {hex(f2u(1/512))}, {v(SUM)}')
    p+=rnd(MX,SUM,T)
    e(f'v_add_f32 {v(SUM)}, {hex(f2u(1e-5))}, {v(SUM)}'); p+=rnd(SUM,SUM,T)[:2]
    e(f'v_sqrt_f32 {v(SUM)}, {v(SUM)}'); p+=rnd(SUM,SUM,T)[:2]
    e(f'v_rcp_f32 {v(SUM)}, {v(SUM)}')
    for i in range(0,8,2): e(sub(i))
    for i in range(0,8,2): p+=rnd(QF+i,QF+i+1,T)
    for i in range(0,8,2): e(f'v_pk_mul_f32 {v(QF+i,2)}, {v(QF+i,2)}, {v(SUM,2)} op_sel_hi:[1,0]')
    for i in range(0,8,2): p+=rnd(QF+i,QF+i+1,T)
    for i in range(0,8,2): e(f'v_pk_mul_f32 {v(QF+i,2)}, {v(QF+i,2)}, {v(MODV+16+i,2)}')
    for i in range(0,8,2): p+=rnd(QF+i,QF+i+1,T)
    for i in range(0,8,2): e(f'v_pk_add_f32 {v(QF+i,2)}, {v(QF+i,2)}, {v(MODV+8+i,2)}')
    for i in range(4): e(f'v_cvt_pk_bf16_f32 {v(QF+8+i)}, {v(QF+2*i)}, {v(QF+2*i+1)}')
    e(f's_lshl_b32 {s(sT+1)}, {s(sJ)}, 10'); e(f's_add_u32 {s(sT+1)}, {s(sT+1)}, {s(sGB)}'); e(f's_add_u32 {s(sT+1)}, {s(sT+1)}, {G_H2}')
    e(f'buffer_store_dwordx4 {v(QF+8,4)}, {v(L16)}, {s(WS,4)}, {s(sT+1)} offen{sc}')
    p+=STAMP(15,128)
    p.append(f'{L}_n1:')
    p+=gbar()
    e(f's_cmp_ge_u32 {s(sJ)}, 28'); e(f's_cbranch_scc1 {L}_n2')
    e(f's_lshl_b32 {s(sT+1)}, {s(sW)}, 13'); e(f's_add_u32 {s(sT+1)}, {s(sT+1)}, {s(sGB)}'); e(f's_add_u32 {s(sT+1)}, {s(sT+1)}, {G_H2}')
    e(f's_lshl_b32 {s(sT+2)}, {s(sEh)}, 14'); e(f's_lshl_b32 {s(sT+3)}, {s(sM)}, 10'); e(f's_add_u32 {s(sT+2)}, {s(sT+2)}, {s(sT+3)}')
    for i in range(8):
        e(f's_add_u32 m0, {s(sT+2)}, {4096+2048*i}'); e(f's_add_u32 {s(sT+3)}, {s(sT+1)}, {128*i}')
        e(f'buffer_load_dwordx4 {v(HSR)}, {s(WS,4)}, {s(sT+3)} offen sc1 lds')
    rd=lambda ks: f'ds_read_b128 {v(QF+4*(ks%8),4)}, {v(HRD1 if ks&1 else HRD)} offset:{4096+2048*(ks>>1)}'
    for c in range(2):
        e(f's_waitcnt vmcnt({4-4*c})'); e('s_barrier')
        if c==1: p+=STAMP(17,128)
        for ks in range(8*c,8*c+4): e(rd(ks))
        for ks in range(8*c,8*c+8):
            for t in range(2): e(f'{MF32} {v(OA+4*t,4)}, {W1(t,ks)}, {v(QF+4*(ks%8),4)}, '+(v(OA+4*t,4) if ks else '0'))
            if ks+4<8*c+8: e(rd(ks+4))
    e(f's_lshl_b32 {s(sT+1)}, {s(sJ)}, 12'); e(f's_lshl_b32 {s(sT+2)}, {s(sEh)}, 11'); e(f's_add_u32 {s(sT+1)}, {s(sT+1)}, {s(sT+2)}'); e(f's_lshl_b32 {s(sT+2)}, {s(sM)}, 10')
    e(f's_add_u32 {s(sT+1)}, {s(sT+1)}, {s(sT+2)}'); e(f's_add_u32 {s(sT+1)}, {s(sT+1)}, {s(sGB)}'); e(f's_add_u32 {s(sT+1)}, {s(sT+1)}, {G_F1}')
    for i in range(8): e(f'v_max_f32 {v(OA+i)}, 0, {v(OA+i)}')
    for i in range(4): e(f'v_cvt_pk_bf16_f32 {v(PXr+i)}, {v(OA+2*i)}, {v(OA+2*i+1)}')
    e(f'buffer_store_dwordx4 {v(PXr,4)}, {v(L16)}, {s(WS,4)}, {s(sT+1)} offen{sc}')
    p+=STAMP(18,128)
    p.append(f'{L}_n2:')
    p+=gbar()
    p+=gemm_part([f's_mul_i32 {s(sT+1)}, {s(sKq)}, 28672', f's_add_u32 {s(sT+1)}, {s(sT+1)}, {s(sGB)}', f's_add_u32 {s(sT+1)}, {s(sT+1)}, {G_F1}'],14,W2,G_P2)
    nb[0]+=1
    e(f's_cmp_lg_u32 {s(sW)}, 0'); e(f's_cbranch_scc1 {L}_n3')
    p+=rowsum(G_P2,'rb')+STAMP(13,128)
    for i in range(0,8,2): e(f'v_pk_mul_f32 {v(QF+i,2)}, {v(QF+i,2)}, {v(MODV+24+i,2)}')
    for i in range(0,8,2): p+=rnd(QF+i,QF+i+1,T)
    for i in range(0,8,2): e(f'v_pk_add_f32 {v(QF+i,2)}, {v(QF+i,2)}, {v(X1+i,2)}')
    for i in range(4): e(f'v_cvt_pk_bf16_f32 {v(QF+8+i)}, {v(QF+2*i)}, {v(QF+2*i+1)}')
    e(f'v_add_u32 {v(T)}, {s(sT+6)}, {v(L16)}')
    e(f'global_store_dwordx4 {v(T)}, {v(QF+8,4)}, {s(POUT,2)}')
    e(f's_cmp_ge_u32 {s(sSeg)}, 57'); e(f's_cbranch_scc1 {L}_n4')
    p+=repoison+[f'{L}_n4:']
    p+=STAMP(14,128)+STAMP(20,96)+STAMP(21,64)+STAMP(22,32)
    p.append(f'{L}_n3:')
    e(f's_lshl_b32 {s(sT+1)}, {s(sJ)}, 2'); e(f's_add_u32 {s(sT+1)}, {s(sT+1)}, {s(sW)}'); e(f's_lshl_b32 {s(sT+1)}, {s(sT+1)}, 11'); e(f's_add_u32 {s(sT+1)}, {s(sT+1)}, {s(sGB)}'); e(f's_add_u32 {s(sT+1)}, {s(sT+1)}, {G_P1}')
    e(f's_cmp_ge_u32 {s(sSeg)}, 57'); e(f's_cbranch_scc1 {L}_end')
    e('s_barrier')
    p+=repoison[:2]
    e(f's_mov_b32 {s(sSeg)}, {s(sCnt)}'); e(f's_branch {L}')
    p.append(f'{L}_end:')
    e('s_endpgm')
    r=fix(p,'p2'+mode); check(r+r,'p2loop')
    return r
```

```python
from asmlib import *
from layout import *
import math, struct, re

T0=0; IDX=1; L16=2; LW=3; QW=4; QR=5; KW=6; OW=7; ORD=8; PST=9; MPUB=10; H2A=10; FLG=11
ONES=12; PM=16; KVQ=20; QA=24; KA=32; VA=40; M=48; X=80; STG=112; RES=128
L_MEM=0; L_Q=8192; L_K=10240; L_O=12288; L_SEL=14336; L_KX=16384; L_WV=24576; WREG=34816
WS=4; WSRD=8; DBG=12; sH=14; sW=15; sStep=16; sC=17; sKsrc=18; sVsrc=19; sKvm=20
sPst=21; sPin=23; sPrst=25; sPrstB=26; sPslot=27; sMemIn1=28; sSpinU=29; sPinB=30
sMemIn0=31; sMemB=32; sMemPub=33; sMemRst=34; sSlot=35; sSpin=36; sKdst=37; sKvF=38; sVdst=39; sKvmF=40; sReg=41
sT=42
sRo1=52; sRo2=56; sEx=50; sPtr=52; sRow=64; sTime=70; sOdd=88; sOne=92; sC2=94; sSpinF=96; sFlag=98; sFlagB=99; sWoff=100
LIM='0x80000'
SMF='v_smfmac_f32_16x16x64_bf16'; MF32='v_mfma_f32_16x16x32_bf16'; MF16='v_mfma_f32_16x16x16_bf16'
OPT=dict(sync=0, d1=22, sl=4, nb=6, pp=0, rep=2, hotkv=0, tr=0, solo=0, cut=99, drop=0, cutm=-1, show=0, pfi=22, pfn=1, th=0, mr=0, t1=1, dd=2, el=2, bl=3, ca=8, z4=1, bb=0, xl=1, eb=1, knt=0, ek=1, sw1=0, ord=3, dc=7, fi=28, de=5, v1=1, pub=1, nt=1, rs=0, b0=1, ro1=0, ro2=0, rp=0, warm=1, sp=0, np=2, dp=0, ps=24, sw=5)

lds_groups=[('q',0),('q',1),('q',2),('q',3),('o',0,3),('o',1,1),('o',1,2),('o',1,3)]
all_groups=[(m,c) for m in 'qkv' for c in range(8)]+[('o',tp,k) for tp in range(2) for k in range(4)]
res_groups=[g for g in all_groups if g not in lds_groups]
gloc={}
for i,g in enumerate(res_groups): gloc[g]=('a',16*i) if i<16 else ('v',RES+16*(i-16))
stream={('q',0,0):M+16,('q',0,1):M+24,('q',1,0):KA,('q',1,1):VA,('q',2,0):X,('q',2,1):X+8,('q',3,0):X+16,('q',3,1):X+24,
        ('o',0,3,0):X+8,('o',0,3,1):X+24,('o',1,1,0):X,('o',1,2,0):X+16,('o',1,3,0):KA,('o',1,1,1):VA,('o',1,2,1):QA,('o',1,3,1):X+8}
def ureg(g,t):
    if g in gloc: return gloc[g][0], gloc[g][1]+8*t
    return 'v', stream[g+(t,)]
def unit(g,t): p,b=ureg(g,t); return R(p,b,8)
def stream_reads(g,t):
    off=lds_groups.index(g)*4096+t*2048; b=stream[g+(t,)]
    return [f'ds_read_b128 {v(b,4)}, {v(LW)} offset:{off}', f'ds_read_b128 {v(b+4,4)}, {v(LW)} offset:{off+1024}']
def zero(b,n,val='0'): return [f'v_mov_b64 {v(b+i,2)}, {val}' for i in range(0,n,2)]
def kv_addr(): return [f'v_lshrrev_b32 {v(T0)}, 2, {v(L16)}', f'v_and_b32 {v(T0)}, 4, {v(T0)}']
def kv_check(L):
    return kv_addr()+[f's_add_u32 {s(sT+3)}, {s(sStep)}, 1', f's_min_u32 {s(sT+3)}, {s(sT+3)}, 63', f's_lshl_b32 {s(sT+3)}, {s(sT+3)}, 2', f'{L}c:',
            f'v_lshl_add_u32 {v(FLG)}, {v(FLG)}, 3, {v(T0)}', f'v_cmp_ge_u32 vcc, {s(sT+3)}, {v(FLG)}', f's_cbranch_vccnz {L}w', f'{L}x:']
def kv_wait(L):
    return [f'{L}w:', f's_add_u32 {s(sSpinF)}, {s(sSpinF)}, 1', f's_cmp_gt_u32 {s(sSpinF)}, {LIM}', f's_cbranch_scc1 {L}x',
            f'buffer_load_dword {v(FLG)}, {v(T0)}, {s(WS,4)}, {s(sKvF)} offen sc1', 's_waitcnt vmcnt(0)', f's_branch {L}c']
def h2_addr(d,t):
    if OPT['el']:
        return [f'v_and_b32 {v(d)}, 0x30, {v(L16)}', f'v_and_b32 {v(t)}, 0xc0, {v(L16)}', f'v_lshl_add_u32 {v(d)}, {v(t)}, 2, {v(d)}',
                f'v_and_b32 {v(t)}, 0x300, {v(L16)}', f'v_lshrrev_b32 {v(t)}, 2, {v(t)}', f'v_or_b32 {v(d)}, {v(d)}, {v(t)}']
    return [f'v_and_b32 {v(d)}, 0x230, {v(L16)}', f'v_and_b32 {v(t)}, 0xc0, {v(L16)}', f'v_lshl_add_u32 {v(d)}, {v(t)}, 1, {v(d)}',
            f'v_and_b32 {v(t)}, 0x100, {v(L16)}', f'v_lshrrev_b32 {v(t)}, 2, {v(t)}', f'v_or_b32 {v(d)}, {v(d)}, {v(t)}']

def prologue(timing):
    p=[]; e=p.append
    VQ=[]
    def vm(line,tag=None): e(line); VQ.append(tag)
    def wait(tag):
        i=max(k for k,t in enumerate(VQ) if t==tag); e(f's_waitcnt vmcnt({min(63,len(VQ)-1-i)})')
    e(f's_load_dwordx2 {s(WSRD,2)}, s[0:1], 40')
    e(f's_load_dwordx4 {s(sPtr,4)}, s[0:1], 8')
    e(f's_load_dwordx4 {s(sPtr+4,4)}, s[0:1], 24')
    e(f's_load_dwordx2 {s(DBG,2)}, s[0:1], 104')
    e(f's_load_dwordx2 {s(WS,2)}, s[0:1], 112')
    if timing: e(f's_memrealtime {s(sTime,2)}')
    ln,n,g,t1,t2,g1,VOO,VA0,VA1,TO0,TO1,TA0,TA1,TB0,TB1,r=[STG+i for i in range(16)]
    e(f'v_lshrrev_b32 {v(t1)}, 6, v0'); e(f'v_and_b32 {v(ln)}, 63, v0'); e(f'v_readfirstlane_b32 {s(sW)}, {v(t1)}')
    e(f's_mov_b32 {s(WSRD+2)}, {4<<20}'); e(f's_mov_b32 {s(WSRD+3)}, 0x20000')
    e(f'v_and_b32 {v(n)}, 15, {v(ln)}'); e(f'v_lshrrev_b32 {v(g)}, 4, {v(ln)}'); e(f'v_and_b32 {v(g1)}, 1, {v(g)}')
    e(f's_mul_i32 {s(sReg)}, {s(sW)}, {WREG}'); e(f's_add_u32 {s(sReg)}, {s(sReg)}, {L_WV}')
    e(f'v_lshrrev_b32 {v(t1)}, 3, {v(n)}'); e(f'v_lshl_add_u32 {v(t1)}, {v(g1)}, 4, {v(t1)}'); e(f'v_lshrrev_b32 {v(t2)}, 1, {v(g)}'); e(f'v_lshl_add_u32 {v(t1)}, {v(t2)}, 2, {v(t1)}')
    e(f'v_and_b32 {v(t2)}, 7, {v(n)}'); e(f'v_lshlrev_b32 {v(t2)}, 4, {v(t2)}'); e(f'v_lshlrev_b32 {v(VOO)}, 6, {v(g1)}'); e(f'v_xor_b32 {v(t2)}, {v(t2)}, {v(VOO)}')
    e(f'v_lshl_add_u32 {v(VOO)}, {v(t1)}, 10, {v(t2)}')
    e(f's_lshl_b32 {s(sT)}, {s(sH)}, 17'); e(f's_lshl_b32 {s(sT+1)}, {s(sW)}, 8'); e(f's_add_u32 {s(sT)}, {s(sT)}, {s(sT+1)}')
    for k in range(4):
        e(f's_xor_b32 {s(sRow+k)}, {s(sW)}, {k}'); e(f's_lshl_b32 {s(sRow+k)}, {s(sRow+k)}, 15'); e(f's_add_u32 {s(sRow+k)}, {s(sRow+k)}, {s(sT)}')
    e('s_waitcnt lgkmcnt(0)')
    if timing: e('s_memrealtime s[80:81] ;stamp')
    items=[g_ for m_ in 'okvq' for g_ in res_groups if g_[0]==m_]+lds_groups
    SL=[i%8 for i in range(32)]
    k_=OPT['ord']
    if k_:
        items=items[:4]+items[32-k_:]+items[4:32-k_]
        R_=8-k_; n_=28-k_
        SL=[None]*4+list(range(8-k_,8))+[(j-n_)%R_ for j in range(n_)]
        SL[:4]=[(j-4-n_)%R_ for j in range(4)]
    nxt_=[0]
    def pump(it,lim):
        while nxt_[0]<32 and nxt_[0]<=lim and all(j<it for j in range(nxt_[0]) if SL[j]==SL[nxt_[0]]):
            issue(nxt_[0]); nxt_[0]+=1
    ptr={'q':sPtr+2,'k':sPtr+4,'v':sPtr+6,'o':sPtr+8}
    ntf=' nt' if OPT['nt'] else ''
    def issue(i):
        g_=items[i]
        if i>=4: e(f's_mov_b32 {s(WSRD)}, {s(ptr[g_[0]])}'); e(f's_mov_b32 {s(WSRD+1)}, {s(ptr[g_[0]]+1)}')
        for b in range(4):
            e(f's_add_u32 m0, {s(sReg)}, {SL[i]*4096+b*1024}')
            if g_[0]=='o': e(f's_add_u32 {s(sT+7)}, {s(sRow+g_[2])}, {(8*(b>>1)+2*(b&1))*1024+g_[1]*128}'); vo=VOO
            else: e(f's_mov_b32 {s(sT+7)}, {(128*(g_[1]&3)+(64 if OPT["el"] else 8)*(g_[1]>>2)+4*(b>>1)+(b&1))*8192}'); vo=VA1 if b&1 else VA0
            vm(f'buffer_load_dwordx4 {v(vo)}, {s(WSRD,4)}, {s(sT+7)} offen{ntf} lds',g_)
    pump(0,3)
    e(f's_mov_b32 {s(sPtr+8)}, {s(WSRD)}'); e(f's_mov_b32 {s(sPtr+9)}, {s(WSRD+1)}')
    e(f's_mov_b32 {s(WS+2)}, {WS_BYTES}'); e(f's_mov_b32 {s(WS+3)}, 0x20000')
    e(f'v_lshlrev_b32 {v(L16)}, 4, {v(ln)}'); e(f'v_add_u32 {v(LW)}, {s(sReg)}, {v(L16)}')
    e(f's_add_u32 {s(sVdst)}, {s(sReg)}, 32768')
    e(f's_lshl_b32 {s(sT+1)}, {s(sW)}, 11'); e(f's_add_u32 {s(sKdst)}, {s(sT+1)}, {L_KX}')
    e(f's_lshl_b32 {s(sWoff)}, {s(sW)}, 10')
    e(f'v_and_b32 {v(t1)}, 1, {v(ln)}'); e(f'v_mul_u32_u24 {v(t1)}, 0xaaaa, {v(t1)}'); e(f'v_add_u32 {v(IDX)}, 0x4444, {v(t1)}')
    e(f's_lshl_b32 {s(sT+2)}, {s(sW)}, 9')
    e(f'v_lshrrev_b32 {v(r)}, 2, {v(n)}'); e(f'v_lshlrev_b32 {v(QW)}, 7, {v(r)}'); e(f'v_and_b32 {v(t1)}, 1, {v(r)}'); e(f'v_lshlrev_b32 {v(t1)}, 6, {v(t1)}')
    e(f'v_lshlrev_b32 {v(t2)}, 5, {v(g)}'); e(f'v_xor_b32 {v(t1)}, {v(t1)}, {v(t2)}'); e(f'v_add_u32 {v(QW)}, {v(QW)}, {v(t1)}')
    e(f'v_and_b32 {v(t1)}, 3, {v(n)}'); e(f'v_lshl_add_u32 {v(QW)}, {v(t1)}, 2, {v(QW)}'); e(f'v_add_u32 {v(QW)}, {s(sT+2)}, {v(QW)}'); e(f'v_add_u32 {v(QW)}, {L_Q}, {v(QW)}')
    e(f'v_lshlrev_b32 {v(t1)}, 3, {v(ln)}'); e(f'v_add_u32 {v(OW)}, {s(sT+2)}, {v(t1)}'); e(f'v_and_b32 {v(ORD)}, -9, {v(OW)}')
    e(f'v_and_b32 {v(t1)}, -9, {v(t1)}'); e(f'v_lshlrev_b32 {v(t2)}, 6, {v(g1)}'); e(f'v_xor_b32 {v(QR)}, {v(t1)}, {v(t2)}')
    e(f'v_bfe_u32 {v(t1)}, {v(n)}, 1, 2'); e(f'v_lshlrev_b32 {v(KW)}, 2, {v(t1)}'); e(f'v_and_b32 {v(t1)}, 1, {v(n)}'); e(f'v_lshl_add_u32 {v(KW)}, {v(t1)}, 4, {v(KW)}')
    e(f'v_lshl_add_u32 {v(KW)}, {v(g)}, 6, {v(KW)}'); e(f'v_lshrrev_b32 {v(t1)}, 3, {v(n)}'); e(f'v_lshl_add_u32 {v(KW)}, {v(t1)}, 8, {v(KW)}')
    e(f'v_add_u32 {v(KW)}, {s(sT+2)}, {v(KW)}'); e(f'v_add_u32 {v(KW)}, {L_K}, {v(KW)}')
    e(f'v_lshlrev_b32 {v(MPUB)}, {7 if OPT["el"] else 12}, {v(t1)}'); e(f'v_and_b32 {v(t1)}, 1, {v(r)}'); e(f'v_lshl_add_u32 {v(MPUB)}, {v(t1)}, 6, {v(MPUB)}'); e(f'v_lshl_add_u32 {v(MPUB)}, {v(g1)}, 5, {v(MPUB)}')
    e(f'v_and_b32 {v(t1)}, 3, {v(n)}'); e(f'v_lshl_add_u32 {v(MPUB)}, {v(t1)}, 3, {v(MPUB)}'); e(f'v_lshrrev_b32 {v(t2)}, 1, {v(g)}'); e(f'v_lshl_add_u32 {v(MPUB)}, {v(t2)}, 31, {v(MPUB)}')
    e(f'v_lshlrev_b32 {v(TO0)}, 8, {v(g)}'); e(f'v_lshl_add_u32 {v(TO0)}, {v(t1)}, 3, {v(TO0)}'); e(f'v_lshl_add_u32 {v(TO0)}, {v(g1)}, 6, {v(TO0)}')
    e(f'v_and_b32 {v(t2)}, 1, {v(r)}'); e(f'v_lshl_add_u32 {v(TO0)}, {v(t2)}, 7, {v(TO0)}'); e(f'v_lshrrev_b32 {v(t2)}, 1, {v(r)}'); e(f'v_lshl_add_u32 {v(TO0)}, {v(t2)}, 5, {v(TO0)}')
    e(f'v_add_u32 {v(TO0)}, {s(sReg)}, {v(TO0)}'); e(f'v_xor_b32 {v(TO1)}, 64, {v(TO0)}')
    e(f'v_lshl_add_u32 {v(t2)}, {v(g1)}, 2, {v(r)}'); e(f's_lshl_b32 {s(sT+3)}, {s(sW)}, 1'); e(f'v_xor_b32 {v(t2)}, {s(sT+3)}, {v(t2)}')
    e(f'v_lshlrev_b32 {v(TA0)}, 10, {v(g)}'); e(f'v_lshl_add_u32 {v(TA0)}, {v(r)}, 8, {v(TA0)}'); e(f'v_lshl_add_u32 {v(TA0)}, {v(t2)}, 5, {v(TA0)}'); e(f'v_lshl_add_u32 {v(TA0)}, {v(t1)}, 3, {v(TA0)}')
    e(f'v_add_u32 {v(TA0)}, {L_WV}, {v(TA0)}'); e(f'v_xor_b32 {v(TA1)}, 32, {v(TA0)}'); e(f'v_add_u32 {v(TB0)}, {2*WREG}, {v(TA0)}'); e(f'v_add_u32 {v(TB1)}, {2*WREG}, {v(TA1)}')
    e(f's_lshl_b32 {s(sT+4)}, {s(sH)}, 8')
    e(f'v_and_b32 {v(t2)}, 2, {v(g)}'); e(f'v_lshl_add_u32 {v(t2)}, {v(g1)}, 4, {v(t2)}'); e(f'v_lshlrev_b32 {v(t1)}, 1, {v(g)}'); e(f'v_xor_b32 {v(t1)}, {v(t1)}, {v(n)}'); e(f'v_lshlrev_b32 {v(t1)}, 4, {v(t1)}')
    e(f'v_lshl_add_u32 {v(VA0)}, {v(t2)}, 13, {v(t1)}'); e(f's_lshl_b32 {s(sT+3)}, {s(sW)}, 18')
    if OPT['el']: e(f's_and_b32 {s(sT+3)}, {s(sT+3)}, {1<<18}'); e(f's_lshr_b32 {s(sT+5)}, {s(sW)}, 1'); e(f's_lshl_b32 {s(sT+5)}, {s(sT+5)}, 16'); e(f's_add_u32 {s(sT+3)}, {s(sT+3)}, {s(sT+5)}')
    e(f's_add_u32 {s(sT+3)}, {s(sT+3)}, {s(sT+4)}')
    e(f'v_add_u32 {v(VA0)}, {s(sT+3)}, {v(VA0)}'); e(f'v_xor_b32 {v(VA1)}, 128, {v(VA0)}')
    e(f's_lshl_b32 {s(sT+3)}, {s(sW)}, 15'); e(f'v_lshlrev_b32 {v(t1)}, 11, {v(r)}'); e(f'v_add_u32 {v(t1)}, {s(sT+4)}, {v(t1)}'); e(f'v_and_b32 {v(t1)}, 0x1fff, {v(t1)}')
    e(f'v_lshl_add_u32 {v(PST)}, {v(g)}, 13, {v(t1)}'); e(f'v_lshl_add_u32 {v(PST)}, {v(n)}, 4, {v(PST)}'); e(f'v_add_u32 {v(PST)}, {s(sT+3)}, {v(PST)}')
    Rp=OPT['rep']; cval=struct.unpack('<I',struct.pack('<f',math.log2(math.e)/math.sqrt(128)))[0]
    for r_,val in ((sC,cval),(sC2,cval),(sC2+1,cval),(sStep,0),(sSpin,0),(sSpinU,0),(sSpinF,0),(sSlot,0),(sPslot,3*262144),(sOne,0x3f803f80),(sOne+1,0x3f803f80),
                   (sOdd,0xaaaaaaaa),(sOdd+1,0xaaaaaaaa),(sEx,0x10001 if Rp>1 else 1),(sEx+1,0x10001 if Rp>2 else 0)): e(f's_mov_b32 {s(r_)}, {hex(val)}')
    e(f's_and_b32 {s(sFlagB)}, {s(sH)}, {Rp-1}'); e(f's_lshl_b32 {s(sFlagB)}, {s(sFlagB)}, 8'); e(f's_add_u32 {s(sFlagB)}, {s(sFlagB)}, {FLAG_OFF}')
    e(f's_lshl_b32 {s(sFlag)}, {s(sH)}, 2'); e(f's_add_u32 {s(sFlag)}, {s(sFlag)}, {FLAG_OFF}')
    e(f's_lshl_b32 {s(sPinB)}, {s(sH)}, 13'); e(f's_add_u32 {s(sPinB)}, {s(sPinB)}, {PART_OFF}'); e(f's_add_u32 {s(sPrstB)}, {s(sPinB)}, {s(sT+1)}')
    e(f's_bfe_u32 {s(sT+5)}, {s(sH)}, 0x20002'); e(f's_lshl_b32 {s(sMemB)}, {s(sT+5)}, 10'); e(f's_lshr_b32 {s(sT+5)}, {s(sH)}, 4'); e(f's_lshl_b32 {s(sT+5)}, {s(sT+5)}, 9')
    e(f's_add_u32 {s(sMemB)}, {s(sMemB)}, {s(sT+5)}'); e(f's_and_b32 {s(sT+5)}, {s(sH)}, 3'); e(f's_lshl_b32 {s(sT+5)}, {s(sT+5)}, 7'); e(f's_add_u32 {s(sMemB)}, {s(sMemB)}, {s(sT+5)}'); e(f's_add_u32 {s(sMemB)}, {s(sMemB)}, {MEM_OFF}')
    if OPT['el']: e(f's_add_u32 {s(sMemB)}, {s(sT+4)}, {MEM_OFF}')
    e(f's_lshl_b32 {s(sKsrc)}, {s(sH)}, 20'); e(f's_add_u32 {s(sKsrc)}, {s(sKsrc)}, {s(sT+1)}'); e(f's_add_u32 {s(sKsrc)}, {s(sKsrc)}, {KV_OFF}'); e(f's_add_u32 {s(sVsrc)}, {s(sKsrc)}, 8192')
    e(f's_lshl_b32 {s(sKvm)}, {s(sH)}, 18'); e(f's_add_u32 {s(sKvm)}, {s(sKvm)}, {s(sWoff)}'); e(f's_add_u32 {s(sKvm)}, {s(sKvm)}, {KVM_OFF}')
    e(f's_lshl_b32 {s(sKvF)}, {s(sH)}, 7'); e(f's_add_u32 {s(sKvmF)}, {s(sKvF)}, {BF_OFF+BF_KVM}'); e(f's_add_u32 {s(sKvF)}, {s(sKvF)}, {BF_OFF+BF_KV}')
    p+=zero(PM,4)+zero(ONES,4,'-1')
    e(f'v_and_b32 {v(t1)}, 2, {v(n)}'); e(f'v_lshlrev_b32 {v(t1)}, 3, {v(t1)}'); e(f'v_mov_b32 {v(t2)}, 0x3f80'); e(f'v_lshlrev_b32 {v(t2)}, {v(t1)}, {v(t2)}'); e(f'v_bfe_u32 {v(t1)}, {v(n)}, 2, 1')
    for jj in range(4):
        e(f'v_cmp_eq_u32 vcc, {jj&1}, {v(t1)}'); e(f'v_cndmask_b32 {v(M+jj)}, 0, {v(t2)}, vcc')
    e(f'ds_write_b128 {v(L16)}, {v(M,4)} offset:{L_SEL}')
    e(f'v_lshrrev_b32 {v(T0)}, 1, {v(n)}'); e(f'v_lshlrev_b32 {v(T0)}, 10, {v(T0)}'); e(f'v_lshl_add_u32 {v(T0)}, {v(g1)}, 3, {v(T0)}')
    e(f'v_and_b32 {v(t1)}, 2, {v(g)}'); e(f'v_lshl_add_u32 {v(T0)}, {v(t1)}, {3 if OPT["el"] else 6}, {v(T0)}'); e(f'v_and_b32 {v(t1)}, 1, {v(n)}'); e(f'v_lshl_add_u32 {v(T0)}, {v(t1)}, 2, {v(T0)}')
    e(f's_lshl_b32 {s(sT+5)}, {s(sW)}, 8'); e(f'v_add_u32 {v(T0)}, {s(sT+5)}, {v(T0)}')
    D=OPT['dc']
    pump(0,D-1)
    if timing: e('s_memrealtime s[82:83] ;stamp')
    if not OPT['sync']:
        e(f's_lshl_b32 {s(sT+5)}, {s(sW)}, 18'); e(f's_add_u32 {s(sT+5)}, {s(sT+5)}, {s(sPinB)}'); e(f's_add_u32 {s(sT+6)}, {s(sT+5)}, 4096')
        for j in range(8): vm(f'buffer_store_dwordx4 {v(ONES,4)}, {v(L16)}, {s(WS,4)}, {s(sT+5+(j>>2))} offen offset:{(j&3)*1024} sc1','x')
        e(f's_lshl_b32 {s(sT+5)}, {s(sW)}, 13'); e(f's_add_u32 {s(sT+5)}, {s(sT+5)}, {s(sMemB)}')
        vm(f'buffer_store_dwordx2 {v(ONES,2)}, {v(MPUB)}, {s(WS,4)}, {s(sT+5)} offen sc1','x')
        e(f's_mov_b64 exec, {s(sEx,2)}'); vm(f'buffer_store_dword {v(PM)}, {v(L16)}, {s(WS,4)}, {s(sFlag)} offen sc1','x'); e('s_mov_b64 exec, -1')
    for u in range(2):
        for x in range(4): vm(f'global_load_dword {v(QA+4*u+x)}, {v(T0)}, {s(sPtr,2)} offset:{(128 if OPT["el"] else 16)*u+32*x}','x')
    if OPT['sync']: e(f'v_mov_b32 {v(KVQ+1)}, 140'); vm(f'global_load_dword {v(KVQ+1)}, {v(KVQ+1)}, {s(DBG,2)} sc1 ;stamp','x')
    if not OPT['rp']:
        p+=h2_addr(FLG,t1); e(f's_cmp_eq_u32 {s(sW)}, 1'); e('s_cselect_b64 vcc, -1, 0'); e(f'v_cndmask_b32 {v(MPUB)}, {v(MPUB)}, {v(FLG)}, vcc')
    if OPT['th']:
        e(f's_lshr_b32 {s(sT+4)}, 0xa2222222, {s(sH)}'); e(f's_and_b32 {s(sT+4)}, {s(sT+4)}, 1'); e('s_cselect_b64 vcc, -1, 0')
    def back(i):
        g_=items[i]
        for t in range(2):
            b0=stream[g_+(t,)] if g_[0]=='q' else M+8*t
            for j in range(2): e(f'ds_write_b128 {v(LW)}, {v(b0+4*j,4)} offset:{SL[i]*4096+t*2048+j*1024}')
        assert SL[i]==lds_groups.index(g_)
    for it in range(32):
        g_=items[it]; bi=it-5
        wait(g_)
        if it==8:
            wait('x')
            if OPT['sync']: p.extend(verify('c',KVQ+1,DBG,sSpinF,sT+2))
        if timing and it==0: e('s_memrealtime s[84:85] ;stamp')
        if timing and it==31: e('s_memrealtime s[86:87] ;stamp')
        e('s_barrier')
        if OPT['th'] and nxt_[0]<32 and it>=2:
            e(f's_cbranch_vccnz L_ch_th{it}'); e(f's_waitcnt vmcnt({OPT["th"]}) ;stamp'); p.append(f'L_ch_th{it}:')
        pump(it,it+D)
        if it and items[it-1] in lds_groups[:4]: back(it-1)
        if it==8:
            e(f's_mov_b32 {s(sT+2)}, 0x05040100'); e(f's_mov_b32 {s(sT+3)}, 0x07060302'); e(f'v_add_u32 {v(T0)}, {s(sWoff)}, {v(L16)}')
            for u in range(2):
                d=X+4*u; q=QA+4*u
                e(f'v_perm_b32 {v(d)}, {v(q+1)}, {v(q)}, {s(sT+2)}'); e(f'v_perm_b32 {v(d+1)}, {v(q+3)}, {v(q+2)}, {s(sT+2)}')
                e(f'v_perm_b32 {v(d+2)}, {v(q+1)}, {v(q)}, {s(sT+3)}'); e(f'v_perm_b32 {v(d+3)}, {v(q+3)}, {v(q+2)}, {s(sT+3)}')
                e(f'ds_write_b128 {v(T0)}, {v(d,4)} offset:{L_MEM+4096*u}')
            e(f's_cmp_lg_u32 {s(sW)}, 0'); e('s_cbranch_scc1 L_ch_noarr')
            e(f's_getreg_b32 {s(sT+5)}, hwreg(HW_REG_XCC_ID)'); e(f's_and_b32 {s(sT+5)}, {s(sT+5)}, 7'); e(f's_lshl_b32 {s(sT+5)}, {s(sT+5)}, 3'); e(f's_lshl_b64 {s(sT+2,2)}, 1, {s(sT+5)}')
            e(f'v_mov_b32 {v(QA)}, {s(sT+2)}'); e(f'v_mov_b32 {v(QA+1)}, {s(sT+3)}'); e('s_mov_b64 exec, 1')
            e(f'global_atomic_add_x2 {v(PM+1)}, {v(QA,2)}, {s(DBG,2)}'); e('s_mov_b64 exec, -1')
            p.append('L_ch_noarr:')
        for b in range(4):
            for t in range(2):
                if g_[0]=='o':
                    pf,b0=ureg(g_,t) if g_ in gloc else ('v',M+8*t)
                    e(f'ds_read_b64_tr_b16 {R(pf,b0+2*b,2)}, {v(TO1 if t else TO0)} offset:{SL[it]*4096+b*1024}')
                else:
                    pf,b0=ureg(g_,t); tra=[[TA0,TA1],[TB0,TB1]][b>>1][t]
                    e(f'ds_read_b64_tr_b16 {R(pf,b0+2*b,2)}, {v(tra)} offset:{(b&1)*WREG+SL[it]*4096}')
        e('s_waitcnt lgkmcnt(0)')
        if g_ in lds_groups[4:]: back(it)
        if it==31 and g_[0]=='q': e('s_barrier'); back(it)
        if bi==8 and OPT['sync']:
            e(f'v_mov_b32 {v(T0)}, 136'); vm(f'global_load_dword {v(KVQ)}, {v(T0)}, {s(DBG,2)} sc1 ;stamp','i')
        if OPT['pfi'] and it in range(OPT['pfi'],OPT['pfi']+3*OPT['pfn'],3):
            k_=(it-OPT['pfi'])//3; qi=[g_ for g_ in items if g_[0]=='q'][::-1][3*(OPT['pfn']-1-k_):][:3]
            base=lambda c: (128*(c&3)+(64 if OPT['el'] else 8)*(c>>2))*8192
            e(f's_and_b32 {s(sT+4)}, {s(sH)}, 3'); e(f's_mov_b32 {s(sT+5)}, 0x40000000')
            for r_,g2 in zip((0,2,3),qi):
                e(f's_cmp_eq_u32 {s(sT+4)}, {r_}'); e(f's_cselect_b32 {s(sT+5)}, {(base(g2[1])+(1-r_)*256+8192)&0xffffffff}, {s(sT+5)}')
            e(f's_mov_b32 {s(WSRD)}, {s(ptr["q"])}'); e(f's_mov_b32 {s(WSRD+1)}, {s(ptr["q"]+1)}')
            e(f'v_subrev_u32 {v(M+4)}, 8192, {v(VA0)}') if False else None
            for b in range(4):
                e(f's_add_u32 {s(sT+7)}, {s(sT+5)}, {((4*(b>>1)+(b&1))*8192-8192)&0xffffffff}')
                vm(f'buffer_load_dwordx4 {v(M,4)}, {v(VA0)}, {s(WSRD,4)}, {s(sT+7)} offen ;stamp','pf')
        if it==16: vm(f'global_load_dwordx2 {v(QA,2)}, {v(PM+1)}, {s(DBG,2)} sc1 ;stamp','h')
        if it==OPT['fi']:
            wait('h')
            p.append('L_ch_hs:')
            e(f'v_readfirstlane_b32 {s(sT+2)}, {v(QA)}'); e(f'v_readfirstlane_b32 {s(sT+3)}, {v(QA+1)}')
            e(f's_add_u32 {s(sSpinF)}, {s(sSpinF)}, 1'); e(f's_cmp_gt_u32 {s(sSpinF)}, {LIM}'); e('s_cbranch_scc1 L_ch_hsdone')
            e(f's_add_u32 {s(sT+4)}, {s(sT+2)}, {s(sT+3)}'); e(f's_lshr_b32 {s(sT+5)}, {s(sT+4)}, 16'); e(f's_add_u32 {s(sT+4)}, {s(sT+4)}, {s(sT+5)}')
            e(f's_lshr_b32 {s(sT+5)}, {s(sT+4)}, 8'); e(f's_add_u32 {s(sT+4)}, {s(sT+4)}, {s(sT+5)}'); e(f's_and_b32 {s(sT+4)}, {s(sT+4)}, 0xff')
            e(f's_cmp_ge_u32 {s(sT+4)}, 32'); e('s_cbranch_scc1 L_ch_hsdone')
            e(f'global_load_dwordx2 {v(QA,2)}, {v(PM+1)}, {s(DBG,2)} sc1 ;stamp'); e('s_waitcnt vmcnt(0) ;stamp'); e('s_branch L_ch_hs')
            p.append('L_ch_hsdone:')
            e(f's_or_b32 {s(sT+2)}, {s(sT+2)}, {s(sT+3)}'); e(f's_and_b32 {s(sT+2)}, {s(sT+2)}, 0x20202020')
            if OPT['sync']:
                wait('i')
                p.append('L_ch_iw:')
                e(f'v_cmp_eq_u32 vcc, 0, {v(KVQ)}'); e('s_cbranch_vccz L_ch_iwx')
                e(f's_add_u32 {s(sSpinF)}, {s(sSpinF)}, 1'); e(f's_cmp_gt_u32 {s(sSpinF)}, {LIM}'); e('s_cbranch_scc1 L_ch_iwx')
                e(f'global_load_dword {v(KVQ)}, {v(T0)}, {s(DBG,2)} sc1 ;stamp'); e('s_waitcnt vmcnt(0) ;stamp'); e('s_branch L_ch_iw')
                p.append('L_ch_iwx:')
                p.extend(kv_addr()); vm(f'buffer_load_dword {v(FLG)}, {v(T0)}, {s(WS,4)}, {s(sKvF)} offen sc1 ;stamp','f')
            e(f's_lshl_b32 {s(sT+5)}, {s(sW)}, 18'); e(f's_add_u32 {s(sT+5)}, {s(sT+5)}, {s(sPinB)}'); e(f's_add_u32 {s(sT+6)}, {s(sT+5)}, 4096')
            wl=[f'buffer_load_dwordx4 {v(KVQ,4)}, {v(L16)}, {s(WS,4)}, {s(sT+5+(j>>2))} offen offset:{(j&3)*1024} sc1 ;stamp' for j in range(8)]
            nlate=2-OPT['mr']
            def warm(lst,k):
                for l in lst: vm(l,'w')
            e(f's_lshl_b32 {s(sT+4)}, {s(sH)}, 10'); e(f's_add_u32 {s(sT+4)}, {s(sT+4)}, {MEM_OFF}')
            vm(f'buffer_load_dwordx4 {v(KVQ,4)}, {v(L16)}, {s(WS,4)}, {s(sT+4)} offen sc1 ;stamp','w')
            warm(wl[:8-nlate],0)
    if OPT['sync']:
        wait('f')
        p.extend(kv_check('L_ch_k0')); p.extend(['s_branch L_ch_k0y']+kv_wait('L_ch_k0')+['L_ch_k0y:'])
    for sd,ss in ((sKdst,sKsrc),(sVdst,sVsrc)):
        e(f's_mov_b32 m0, {s(sd)}')
        for j in range(2): e(f'buffer_load_dwordx4 {v(L16)}, {s(WS,4)}, {s(ss)} offen offset:{1024*j} sc1 lds')
    warm([l.replace(v(KVQ,4),v(STG,4)) for l in wl[8-nlate:]],1)
    p.extend(kv_addr()); e(f'buffer_load_dword {v(FLG)}, {v(T0)}, {s(WS,4)}, {s(sKvF)} offen sc1 ;stamp')
    p+=zero(QA,8)
    if OPT['rp']: e(f'v_mov_b32 {v(FLG)}, 0')
    e(f's_add_u32 {s(sKsrc)}, {s(sKsrc)}, 16384'); e(f's_add_u32 {s(sVsrc)}, {s(sVsrc)}, 16384')
    if OPT['ek'] and not OPT['solo']: e(f'buffer_load_dwordx4 {v(STG,4)}, {v(L16)}, {s(WS,4)}, {s(sKsrc)} offen sc1 ;stamp')
    e(f's_add_u32 {s(sPrst)}, {s(sPrstB)}, {2*262144}')
    if not OPT['tr'] and not OPT['solo']:
        for k in range(4):
            e(f's_and_b32 {s(sT+4)}, {s(sH)}, 1'); e(f's_xor_b32 {s(sT+4)}, {s(sT+4)}, {k}'); e(f's_lshl_b32 {s(sRo1+k)}, {s(sT+4)}, 11')
            e(f's_add_u32 {s(sT+4)}, {s(sH)}, {k}'); e(f's_and_b32 {s(sT+4)}, {s(sT+4)}, 3'); e(f's_lshl_b32 {s(sRo2+k)}, {s(sT+4)}, 10')
    e('s_waitcnt lgkmcnt(0)')
    if timing: e(f's_memrealtime {s(sTime+2,2)}'); e(f's_memtime {s(sTime+6,2)}'); e('s_waitcnt lgkmcnt(0)')
    if OPT['solo']: e('s_waitcnt vmcnt(0)'); e('s_memtime s[60:61]'); e('s_waitcnt lgkmcnt(0)'); e('s_barrier')
    if OPT['rp'] and not OPT['solo']:
        e(f's_cmp_eq_u32 {s(sW)}, 1'); e(f's_cselect_b32 {s(sKvmF)}, {s(sKvmF)}, 0x40000000')
        e('s_barrier')
        for c in range(4): e(mrd(c))
        e(f's_cmp_eq_u32 {s(sT+2)}, 0'); e('s_cbranch_scc1 L_ch_S0_re'); e('s_branch L_ch_F0_re'); e('s_waitcnt lgkmcnt(0)')
    e(f's_cmp_eq_u32 {s(sT+2)}, 0'); e('s_cbranch_scc1 L_ch_S0')
    return fix(p,'prologue')

def smf(d,a_,b): return f'{SMF} {v(d,4)}, {v(a_,4)}, {b}, {v(IDX)}'
def mrd(c): return f'ds_read_b128 {v(M+4*c,4)}, {v(L16)} offset:{L_MEM+1024*c}'
def G(*groups):
    o=[]
    for g_ in groups: o.extend(g_)
    return o

def step(mode, par, verbose=False):
    sc=' sc1' if mode=='S' else ''
    two=OPT['tr'] or OPT['solo']
    L=f'L_ch_{mode}{par}'
    p=[L+':']; e=p.append
    qk=lambda m,c,t: smf((QA if m=='q' else KA if m=='k' else VA)+4*t, M+4*c, unit((m,c),t))
    Q=lambda c,t: qk('q',c,t); K=lambda c,t: qk('k',c,t); V=lambda c,t: qk('v',c,t)
    W=lambda n: f's_waitcnt lgkmcnt({n})'
    krd=[f'ds_read_b128 {v(X+4*f,4)}, {v(L16)} offset:{L_KX+1024*f}' for f in range(8)]
    kl=[f'buffer_load_dwordx4 {v(STG+4*i,4)}, {v(L16)}, {s(WS,4)}, {s(sVsrc if i>>1 else sKsrc)} offen offset:{1024*(i&1)} sc1'+(' nt' if OPT['knt'] else '') for i in range(4)]
    kw=[f'v_add_u32 {v(T0)}, {s(sKdst)}, {v(L16)}','s_waitcnt vmcnt(3)']+[f'ds_write_b128 {v(T0)}, {v(STG+4*i,4)} offset:{1024*i}' for i in range(2)]+[f'ds_write_b128 {v(LW)}, {v(STG+8+4*i,4)} offset:{32768+1024*i}' for i in range(2)]
    def post(acc,d0,d1,bytok):
        o=[f'v_add_f32 {v(acc)}, {v(acc)}, {v(acc+1)}', f'v_add_f32 {v(acc+2)}, {v(acc+2)}, {v(acc+3)}',
           f'v_add_f32 {v(acc+4)}, {v(acc+4)}, {v(acc+5)}', f'v_add_f32 {v(acc+6)}, {v(acc+6)}, {v(acc+7)}']
        if bytok: o+=[f'v_cvt_pk_bf16_f32 {v(d0)}, {v(acc)}, {v(acc+4)}', f'v_cvt_pk_bf16_f32 {v(d1)}, {v(acc+2)}, {v(acc+6)}']
        else:     o+=[f'v_cvt_pk_bf16_f32 {v(d0)}, {v(acc)}, {v(acc+2)}', f'v_cvt_pk_bf16_f32 {v(d1)}, {v(acc+4)}, {v(acc+6)}']
        return o
    def tr(i,rt=False):
        if not OPT['tr']: return []
        return [('s_memrealtime' if rt else 's_memtime')+f' {s(52+14*par+2*i,2)} ;stamp']
    def trdump():
        if not OPT['tr']: return []
        o=[f'v_mov_b32 {v(M+4+i)}, {s(52+14*(1-par)+2*i)}' for i in range(4)]+[f'v_mov_b32 {v(M+8+i)}, {s(52+14*(1-par)+2*i)}' for i in range(4,7)]
        o+=[f's_lshl_b32 {s(sT+1)}, {s(sSpinU)}, 16', f's_add_u32 {s(sT+1)}, {s(sT+1)}, {s(sSpin)}', f'v_mov_b32 {v(M+15)}, {s(sT+1)}',
            f's_lshl_b32 {s(sT+1)}, {s(sStep)}, 5', f's_add_u32 {s(sT+1)}, {s(sT+1)}, {s(sH)}', f's_lshl_b32 {s(sT+1)}, {s(sT+1)}, 2', f's_add_u32 {s(sT+1)}, {s(sT+1)}, {s(sW)}',
            f's_lshl_b32 {s(sT+1)}, {s(sT+1)}, 5', f's_add_u32 {s(sT+1)}, {s(sT+1)}, {100<<20}', 's_mov_b64 exec, 1',
            f'buffer_store_dwordx4 {v(M+4,4)}, off, {s(WS,4)}, {s(sT+1)}', f'buffer_store_dwordx4 {v(M+12,4)}, off, {s(WS,4)}, {s(sT+1)} offset:16', 's_mov_b64 exec, -1']
        return o
    rstore=lambda j: f'buffer_store_dwordx4 {v(ONES,4)}, {v(L16)}, {s(WS,4)}, {s(sPrst)} offen offset:{j*1024}{sc}'
    pub=f'buffer_store_dwordx4 {v(KVQ,4)}, {v(L16)}, {s(WS,4)}, {s(sKvm)} offen'+(' sc1' if OPT['pub'] else '')
    rp=OPT['rp']; sp=OPT['sp']
    if not OPT['solo']: p.extend(['s_waitcnt lgkmcnt(0)' if rp else f's_waitcnt vmcnt({7+OPT["ek"]+OPT["mr"]}) lgkmcnt(0)']+([f's_memtime {s(52+14*(1-par)+12,2)} ;stamp'] if OPT['tr'] else [])+['s_barrier'])
    p.append(';secS')
    for c in range(4): e(mrd(c))
    if OPT['rs']==1: e(rstore(0))
    if rp: e(pub); e(f's_add_u32 {s(sKvm)}, {s(sKvm)}, 4096')
    p.append(f'{L}_re:')
    z=zero(KA,16)
    on=[f'v_mov_b64 {v(ONES+2*i,2)}, {s(sOne,2)}' for i in range(2)]
    qp=post(QA,QA+1,QA+3,True)+[f'ds_write2_b32 {v(QW)}, {v(QA+1)}, {v(QA+3)} offset0:0 offset1:4']
    kp=post(KA,KVQ+1,KVQ+3,True)+[f'ds_write2_b32 {v(KW)}, {v(KVQ+1)}, {v(KVQ+3)} offset0:0 offset1:8']
    ek=OPT['ek'] if not OPT['solo'] else 0
    z4=f'v_mfma_f32_4x4x4_16b_bf16 {v(KA,4)}, {v(PM+2,2)}, {v(PM+2,2)}, 0'
    if OPT['z4']: g0=[[Q(2,0)],[Q(2,1),W(0)],[z4],[Q(3,0),kl[2+ek]],[Q(3,1),'s_nop 0'],[K(0,0),z[2]],[K(1,0),f's_waitcnt vmcnt({6+ek-OPT["mr"]})',z[3]]]
    else: g0=[[Q(2,0),z[0]],[Q(2,1),W(0),z[1]],[Q(3,0),kl[2+ek]],[Q(3,1),z[2]],[K(0,0),z[3]],[K(1,0),f's_waitcnt vmcnt({6+ek-OPT["mr"]})']]
    p.extend(G([kl[ek],W(3)],[Q(0,0)],[Q(0,1),W(2)],[Q(1,0),kl[1+ek]],[Q(1,1),W(1)],*g0,
               [K(2,0),'s_barrier'],[K(3,0),mrd(4),z[4]],
               [K(0,1),mrd(5),z[5]],[K(1,1),mrd(6),z[6]],[K(2,1),mrd(7),z[7]],[K(3,1),krd[0],W(4)]))
    p.append(';sec0')
    fld=f'buffer_load_dword {v(FLG)}, {v(T0)}, {s(WS,4)}, {s(sKvF)} offen sc1'
    p.extend(G([Q(4,0),krd[4],W(4)],[Q(5,0),krd[1],W(4)],[Q(6,0),krd[5],W(4)],[Q(7,0),'s_nop 0' if ek else kl[3]],
               [Q(4,1),krd[2],on[0]],[Q(5,1),krd[3],on[1]],[Q(6,1),krd[6],qp[0]],[Q(7,1),krd[7],qp[1]],
               [K(4,0),'s_nop 1',f'v_cmp_u_f32 vcc, {v(QA)}, {v(QA+2)}'],[K(5,0),'s_nop 0',qp[2]],[K(6,0)]+([f's_cbranch_vccnz {L}_r2',f'{L}_r2x:'] if OPT['eb'] else [])+[qp[3]],[K(7,0),'s_nop 1',qp[4]],
               [K(4,1),qp[5]],[K(5,1),qp[6]],[K(6,1),kp[0]],[K(7,1),kp[1]]))
    p.append(';sec1')
    rk=[f'ds_read_b128 {v(X+16*k,4)}, {v(L16)} offset:{L_K+1024*k}' for k in range(2)]
    rq=[f'ds_read_b128 {v(M+4*k,4)}, {v(QR)} offset:{L_Q+512*k}' for k in range(4)]
    VF=[X+4,X+20]
    rv=[f'ds_read_b128 {v(VF[t],4)}, {v(LW)} offset:{32768+1024*t}' for t in range(2)]
    SX=lambda m,ks: f'{MF32} {v(QA+4*m,4)}, {v(X+16*m+4*ks,4)}, {v(M+4*ks,4)}, '+(v(QA+4*m,4) if ks else '0')
    sm=[smf(KA,X+16*k,v(M+8*k,8)) for k in range(2)]
    zk=zero(KA,4)
    mx=PM; tt=KA+3
    c=[f'v_max3_f32 {v(mx)}, {v(QA)}, {v(QA+1)}, {v(QA+2)}', f'v_max3_f32 {v(mx)}, {v(mx)}, {v(QA+3)}, {v(QA+4)}',
       f'v_max3_f32 {v(mx)}, {v(mx)}, {v(QA+5)}, {v(QA+6)}',
       f'v_add_f32 {v(KA)}, {v(KA)}, {v(KA+1)}', f'v_add_f32 {v(KA+1)}, {v(KA+2)}, {v(KA+3)}',
       f'v_max3_f32 {v(mx)}, {v(mx)}, {v(QA+7)}, {v(KA)}', f'v_max_f32 {v(tt)}, {v(mx)}, {v(KA+1)}', f'v_max_f32 {v(mx)}, {v(mx)}, {v(KA+1)}',
       f'v_permlane32_swap_b32 {v(mx)}, {v(tt)}', f'v_max_f32 {v(T0)}, {v(mx)}, {v(tt)}', f'v_max_f32 {v(mx)}, {v(mx)}, {v(tt)}',
       f'v_permlane16_swap_b32 {v(mx)}, {v(T0)}', f'v_max_f32 {v(mx)}, {v(mx)}, {v(T0)}', f'v_mul_f32 {v(T0)}, {s(sC)}, {v(mx)}']
    kadv=0 if OPT['hotkv'] else 16384
    bk=[f's_add_u32 {s(sSlot)}, {s(sSlot)}, 8192', f's_and_b32 {s(sSlot)}, {s(sSlot)}, 0x7fff',
        f's_add_u32 {s(sMemIn0)}, {s(sSlot)}, {MEM_OFF}', f's_add_u32 {s(sMemPub)}, {s(sMemB)}, {s(sSlot)}',
        f's_xor_b32 {s(sMemRst)}, {s(sMemPub)}, 16384',
        f's_add_u32 {s(sPrst)}, {s(sPrstB)}, {s(sPslot)}',
        f's_add_u32 {s(sPslot)}, {s(sPslot)}, 262144', f's_and_b32 {s(sPslot)}, {s(sPslot)}, 0xfffff',
        f's_add_u32 {s(sPst)}, {s(sPslot)}, {PART_OFF}', f's_add_u32 {s(sPst+1)}, {s(sPslot)}, {PART_OFF+131072}',
        f's_add_u32 {s(sPin)}, {s(sPinB)}, {s(sPslot)}', f's_add_u32 {s(sPin+1)}, {s(sPin)}, 4096',
        f's_add_u32 {s(sKsrc)}, {s(sKsrc)}, {kadv}', f's_add_u32 {s(sVsrc)}, {s(sVsrc)}, {kadv}',
        f's_add_u32 {s(sMemIn1)}, {s(sMemIn0)}, 4096', f's_mov_b32 m0, {L_MEM}', f's_add_u32 {s(sStep)}, {s(sStep)}, 1']
    wo=lambda tp,k: stream_reads(('o',tp>>1,k),tp&1)
    p.extend(G(*([[V(0,0),'s_nop 1',W(0)],[V(0,1),'s_barrier','s_nop 0',kp[2]]] if OPT['bb'] else [[V(0,0),'s_nop 2'],[V(0,1),W(0),'s_barrier',kp[2]]]),[V(1,0),rq[0],kp[3]],[V(1,1),rq[1],kp[4]],
               [V(2,0),kp[5]],[V(2,1),kp[6]],[V(3,0),rq[2],zk[0]],[V(3,1),rq[3],W(3)],
               [SX(0,0),zk[1]],[SX(1,0)]+([] if OPT['eb'] else [f's_cbranch_vccnz {L}_r2',f'{L}_r2x:'])+(['s_nop 1',W(2)] if OPT['bb'] else []),[SX(0,1)]+([] if OPT['bb'] else [W(2)])+['s_barrier'],[SX(1,1),rk[0],W(1)],
               [SX(0,2),rk[1]],[SX(0,3),rv[0]],[SX(1,2),rv[1]],[SX(1,3),bk[0],bk[1]]+([] if OPT['v1'] else [W(2)]),
               *([[V(4,0),W(2),bk[2],c[0]],[sm[0],bk[3],bk[5],c[1]],[sm[1],wo(2,1)[0],c[2]],[V(5,0),wo(2,2)[0],bk[6]],[V(6,0),bk[7],bk[16],c[3],c[4]],[V(7,0),c[5],c[6],c[7]]] if OPT['v1'] else
                 [[sm[0],'s_nop 0',c[0]],[sm[1],wo(2,1)[0]],[V(4,0),bk[2],bk[3],c[1]],[V(5,0),wo(2,2)[0],c[2]],[V(6,0),bk[5],bk[6],c[3],c[4]],[V(7,0),bk[7],bk[16],c[5],c[6],c[7]]]),
               [V(4,1),wo(0,3)[0],c[8]],[V(5,1),wo(0,3)[1],c[9],c[10]],[V(6,1),wo(1,3)[0],c[11]],[V(7,1),wo(1,3)[1],c[12],c[13]]))
    if OPT['tr']: p.append(f's_memtime {s(52+14*(1-par)+10,2)} ;stamp')
    p.append(';sec2')
    vp=post(VA,KVQ,KVQ+2,False)
    xp=lambda r_: f'v_exp_f32 {v(r_)}, {v(r_)}'
    PX=KA+4; OF=M+16
    e(vp[0]); e(vp[1])
    for r_ in (KA,QA,QA+2,QA+4,QA+6):
        e(f'v_pk_fma_f32 {v(r_,2)}, {v(r_,2)}, {s(sC2,2)}, {v(T0,2)} op_sel_hi:[1,1,0] neg_lo:[0,0,1] neg_hi:[0,0,1]')
    e(f'v_mfma_f32_32x32x8_bf16 {v(M,16)}, {v(PM+2,2)}, {v(PM+2,2)}, 0'); e(bk[12])
    e(xp(KA)); e(xp(KA+1))
    p.extend([vp[2],vp[3],vp[4],vp[5]])
    e(f'v_cvt_pk_bf16_f32 {v(PM)}, {v(KA)}, {v(KA+1)}')
    e(xp(QA)); e(xp(QA+1))
    ex=[f's_cmp_eq_u32 {s(sStep)}, 64','s_cbranch_scc1 L_ch_last'] if (par==1 and OPT['solo']) else ['s_nop 1']
    p.extend(G([f'{MF16} {v(VA,4)}, {v(KVQ,2)}, {v(PM,2)}, 0',bk[13],xp(QA+2)],
               [f'{MF16} {v(VA+4,4)}, {v(KVQ+2,2)}, {v(PM,2)}, 0',bk[8],xp(QA+3)],
               [f'{MF16} {v(KA,4)}, {v(ONES,2)}, {v(PM,2)}, 0',W(6),xp(QA+4),xp(QA+5),xp(QA+6),xp(QA+7)]))
    for i in range(4): e(f'v_cvt_pk_bf16_f32 {v(PX+i)}, {v(QA+2*i)}, {v(QA+2*i+1)}')
    zo=zero(ONES,4,'-1')
    oa=[f'v_xor_b32 {v(QA+k)}, {512*k}, {v(ORD)}' for k in range(1,4)]
    p.extend(G([oa[0],oa[1]],[f'{MF32} {v(KA,4)}, {v(ONES,4)}, {v(PX,4)}, {v(KA,4)}']+ex+[oa[2]],
               [f'{MF32} {v(VA,4)}, {v(VF[0],4)}, {v(PX,4)}, {v(VA,4)}',bk[14],zo[0],zo[1]],
               [f'{MF32} {v(VA+4,4)}, {v(VF[1],4)}, {v(PX,4)}, {v(VA+4,4)}',bk[15],f'v_rcp_f32 {v(T0)}, {v(KA)}',bk[9],bk[10]]))
    pm_=[f'v_pk_mul_f32 {v(VA+2*i,2)}, {v(VA+2*i,2)}, {v(T0,2)} op_sel_hi:[1,0]' for i in range(4)]
    cv=[f'v_cvt_pk_bf16_f32 {v(OF+i)}, {v(VA+2*i)}, {v(VA+2*i+1)}' for i in range(4)]
    p.extend([pm_[0],pm_[1],cv[0],cv[1],pm_[2],pm_[3],cv[2],cv[3]])
    p.append(';sec3')
    e(f'v_cndmask_b32 {v(QA+4)}, {v(OF)}, {v(OF+2)}, {s(sOdd,2)}'); e(f'v_cndmask_b32 {v(QA+5)}, {v(OF+1)}, {v(OF+3)}, {s(sOdd,2)}')
    O=lambda tp,k: smf(M+4*tp,OF+4*k,unit(('o',tp>>1,k),tp&1))
    def oc(tp,j):
        q=M+8*(tp>>1)+(tp&1)+2*j
        return f'v_cvt_pk_bf16_f32 {v(q)}, {v(M+4*tp+2*j)}, {v(M+4*tp+2*j+1)}'
    ost=lambda u: f'buffer_store_dwordx4 {v(M+8*u,4)}, {v(PST)}, {s(WS,4)}, {s(sPst+u)} offen{sc}'
    ro=[f'ds_read_b128 {v(OF+4*k,4)}, {v(QA+k)} offset:{L_O}' for k in range(1,4)]
    p.extend(G([f'ds_write_b64 {v(OW)}, {v(QA+4,2)} offset:{L_O}'],[O(0,0),rstore(1)],[O(1,0),wo(2,1)[1]],[W(1),'s_barrier',ro[0]],[O(2,0),ro[1],bk[11]],[O(3,0),ro[2],bk[4]],
               [wo(2,2)[1],wo(2,3)[0],W(4)]))
    p.append(';sec4')
    p.extend(G([O(0,1),wo(2,3)[1],W(4)],[O(0,2),wo(3,1)[0],W(4)],[O(0,3),wo(3,1)[1],f's_cmp_lg_u32 {s(sW)}, 0'],
               [O(1,1),wo(3,2)[0],'s_nop 0'],[O(1,2),wo(3,2)[1],W(4)],[O(1,3),wo(3,3)[0],oc(0,0)],
               [O(2,1),wo(3,3)[1],oc(0,1)],[O(2,2),W(4),'s_waitcnt vmcnt(1)' if OPT['sw1'] else 's_nop 0',oc(1,0),oc(1,1)],[O(2,3),ost(0)],
               [O(3,1),W(0),'s_nop 1'],[O(3,2),'s_nop 1',oc(2,0)],[O(3,3),'s_nop 1',oc(2,1)],[oc(3,0),oc(3,1),ost(1)]))
    sr=[]
    for g_,t in ((('q',0),0),(('q',0),1),(('q',1),0),(('q',1),1)): sr+=stream_reads(g_,t)
    xs=[]
    for g_,t in ((('q',2),0),(('q',2),1),(('q',3),0),(('q',3),1)): xs+=stream_reads(g_,t)
    xz=weave(xs,zero(QA,8),[0,0,0,0,1,1,1,1])
    if verbose and par==0:
        fx=fix(p,'main',True); print('model cycles',simulate(fx,OPT['show']), 'inserted waits', len([l for l in fx if l.startswith('s_waitcnt')])-len([l for l in p if l.startswith('s_waitcnt')]))
    if OPT['solo']:
        marks=[i for i,l in enumerate(p) if l.startswith(';sec')]
        if OPT['cutm']>=0:
            marks=[i+1 for i,l in enumerate(p) if l.startswith(('v_mfma','v_smfmac'))]; OPT['cut']=OPT['cutm']
        if OPT['cut']<len(marks):
            rest=p[marks[OPT['cut']]:]
            p[:]=p[:marks[OPT['cut']]]+['s_memtime s[62:63] ;stamp']+[l for l in rest if (l.startswith(('s_add','s_and','s_cmp','s_cbranch_scc')) or l.endswith(':'))]
        d=OPT['drop']
        if d&1: p[:]=[l for l in p if not l.startswith('buffer_store')]
        if d&2: p[:]=[l for l in p if not l.startswith('buffer_load')]
        if OPT['cut']>=len(marks): p.append('s_memtime s[62:63] ;stamp')
        p.extend(['s_waitcnt vmcnt(0)']+kw+kv_addr()+sr+xz)
        if d&4: p[:]=['s_nop 1' if (l.startswith('ds_read') and f' {v(LW)} ' in l) else l for l in p]
        if d&8: p[:]=['s_nop 1' if l.startswith('ds_read') else l for l in p]
        if d&16: p[:]=['s_nop 3' if l.startswith(('v_smfmac','v_mfma')) else l for l in p]
        if d&32: p[:]=['s_nop 0' if (l.startswith('v_') and not l.startswith(('v_smfmac','v_mfma'))) else l for l in p]
        if d&64: p[:]=['s_nop 3' if l.startswith('v_mfma') else l for l in p]
        p.extend(['s_waitcnt lgkmcnt(0) vmcnt(0)','s_sub_u32 s62, s62, s60', f's_add_u32 {s(sSpin)}, {s(sSpin)}, s62', 's_barrier', 's_sleep 12', 's_memtime s[60:61] ;stamp', 's_waitcnt lgkmcnt(0)', 's_barrier'])
        if par==1: p.append(f's_branch L_ch_{mode}0')
        return fix(p,f'solo{par}'), [f'{L}_r2:',f's_branch {L}_r2x']
    kc=lambda x: kv_check(L+x) if OPT['sync'] else []
    if rp: return window_rp(locals())
    p.extend(tr(0)+tr(1,True))
    e(f's_cbranch_scc1 {L}_w')
    head=list(p)
    p.extend(trdump())
    e(f'ds_read_b128 {v(QA+4,4)}, {v(L16)} offset:{L_SEL}')
    e(f'v_mov_b32 {v(M+2)}, {s(sStep)}')
    if OPT['de']:
        e(f's_cmp_lt_u32 {s(sH)}, 16'); e(f's_cbranch_scc1 {L}_e'); p.extend(['s_nop 3']*OPT['de']); p.append(f'{L}_e:')
    for i in range(OPT['d1']-OPT['de']-(1 if OPT['de'] else 0)-(8 if OPT['tr'] else 0)): e('s_nop 3')
    p.extend(tr(2))
    ld1=[f'buffer_load_dwordx4 {v(X+4*j,4)}, {v(L16)}, {s(WS,4)}, {s(sPin+(j>>2))} offen offset:{(j&3)*1024} sc1' for j in range(8)]
    if OPT['ro1']:
        p[-1:-1]=[f's_add_u32 {s(sT+4+k)}, {s(sPin)}, {s(sRo1+k)}' for k in range(4)]; p.pop()
        ld1=[f'buffer_load_dwordx4 {v(X+4*j,4)}, {v(L16)}, {s(WS,4)}, {s(sT+4+(j>>1))} offen offset:{(j&1)*1024} sc1' for j in range(8)]
    fst=[f's_mov_b64 exec, {s(sEx,2)}', f'buffer_store_dword {v(M+2)}, {v(L16)}, {s(WS,4)}, {s(sFlag)} offen{sc}', 's_mov_b64 exec, -1']
    ca=OPT['ca']
    if ca:
        k=max(i for i,l in enumerate(p) if l=='s_nop 3')
        p[k-ca+1:k+1]=ld1[:2]+['s_nop 3']*(ca-2)
    p.extend(ld1); p.extend(sr+zero(QA,4)); e(W(8))
    el=OPT['el']==1
    B0=['s_barrier'] if OPT['b0'] else []
    if el:
        p.extend([f's_cmp_lt_u32 {s(sH)}, 16', f's_cbranch_scc1 {L}_p1']+['s_nop 3']*OPT['bl']+['s_barrier'])
        B0=[f's_cbranch_scc0 {L}_p2','s_barrier']
    p.append(f'{L}_p1:')
    RM=lambda j: smf(QA,QA+4,v(X+8*j,8))
    fin=[f'v_cvt_pk_bf16_f32 {v(M)}, {v(QA)}, {v(QA+2)}', f'v_cvt_pk_bf16_f32 {v(M+1)}, {v(QA+1)}, {v(QA+3)}']
    mpub=f'buffer_store_dwordx2 {v(M,2)}, {v(MPUB)}, {s(WS,4)}, {s(sMemPub)} offen{sc}'
    chk=f'v_cmp_u_f32 vcc, {v(QA)}, {v(QA+1)}'
    can=f'v_cmp_u_f32 vcc, {v(X)}, {v(X+4)}'
    if ca: first=['s_waitcnt vmcnt(8)',can+' ;stamp',fst[0],f's_cbranch_vccnz {L}_cb',f'{L}_cbx:']+fst[1:]
    else: first=['s_waitcnt vmcnt(6)',can,RM(0),fst[0], f's_cbranch_vccnz {L}_r0']+fst[1:]
    p.extend(first+tr(3)+B0+[f'{L}_p2:'])
    for j in range(0 if ca else 1,4):
        e(f's_waitcnt vmcnt({7-2*j})'); e(RM(j))
    p.extend(fin+[mpub,chk])
    p.extend(tr(4))
    e(f's_cbranch_vccnz {L}_r1')
    p.append(f'{L}_p1ok:')
    p.extend([kw[0]]+kw[2:]+xz)
    nxt=f'L_ch_{mode}{1-par if two else 0}'
    tailc=['s_barrier']+([kl[0]] if ek else [])+[pub, rstore(0)]
    t1=OPT['t1']
    kf=[f's_sub_u32 {s(sT+3)}, {s(sStep)}, 1', f'v_mov_b32 {v(FLG)}, {s(sT+3)}', 's_mov_b64 exec, 1', f'buffer_store_dword {v(FLG)}, off, {s(WS,4)}, {s(sKvmF)} sc1', 's_mov_b64 exec, -1']
    ops=[[pub],kf[2:]] if OPT['mr'] else [[pub],[rstore(0)],kf[2:]]
    tail1=G(*ops[:t1])+['s_barrier']+([kl[0]] if ek else [])+G(*ops[t1:])
    tail2=[f's_add_u32 {s(sKvm)}, {s(sKvm)}, 4096', f's_cmp_lg_u32 {s(sStep)}, 63', f's_cbranch_scc1 {nxt}', 's_branch L_ch_fin']
    p.append(f'{L}_b1:')
    p.extend(tailc+tail2)
    body=fix(p,f'step{mode}{par}',verbose)
    ld2=[f'buffer_load_dwordx4 {v(H2A)}, {s(WS,4)}, {s(sMemIn0)} offen offset:{1024*j} sc1 lds' for j in range(4)]
    ld2+=[f's_mov_b32 m0, {L_MEM+4096}','s_nop 0']+[f'buffer_load_dwordx4 {v(H2A)}, {s(WS,4)}, {s(sMemIn1)} offen offset:{1024*j} sc1 lds' for j in range(4)]
    ld2r=ld2
    if OPT['ro2']:
        ld2r=[]
        for j in range(8):
            ld2r+=[f's_add_u32 m0, {s(sRo2+(j&3))}, {L_MEM+4096*(j>>2)}', f's_add_u32 {s(sT+4)}, {s(sRo2+(j&3))}, {s(sMemIn1 if j>>2 else sMemIn0)}',
                   f'buffer_load_dwordx4 {v(H2A)}, {s(WS,4)}, {s(sT+4)} offen sc1 lds']
    q=[f'{L}_w:']+kw+[f's_cmp_lg_u32 {s(sW)}, 3', f's_cbranch_scc1 {L}_w3', f'buffer_store_dwordx2 {v(ONES,2)}, {v(MPUB)}, {s(WS,4)}, {s(sMemRst)} offen{sc}', f'{L}_w3:']+trdump()+sr+([] if OPT['xl'] else xz); e=q.append
    e(f's_cmp_eq_u32 {s(sW)}, 1'); e(f's_cbranch_scc1 {L}_fb')
    if OPT['b0']: e('s_barrier')
    if OPT['xl']: q.extend(xz)
    if OPT['sync']:
        e(f's_cmp_lg_u32 {s(sW)}, 2'); e(f's_cbranch_scc1 {L}_b1')
        q.extend(kc('_kb')+(tailc[:-1] if OPT['mr'] else tailc)+[fld]+tail2)
    else: e(f's_branch {L}_b1')
    q.append(f'{L}_fb:')
    if OPT['xl']: q.extend(xz)
    e(f'v_lshrrev_b32 {v(T0)}, 2, {v(L16)}'); e(f'v_and_b32 {v(T0)}, 0x7c, {v(T0)}')
    if el: e(f'v_cmp_gt_u32 vcc, 64, {v(T0)}'); e(f'v_mov_b32 {v(FLG)}, {s(sStep)}'); e('s_nop 0'); e(f'v_cndmask_b32 {v(FLG)}, 0, {v(FLG)}, vcc')
    if not el: q.extend(kf[:2])
    if OPT['b0']: e('s_barrier')
    for i in range(max(0,OPT['sl']-(7 if OPT['tr'] and not OPT['b0'] else 0))): e('s_nop 3')
    q.extend(tr(2))
    if OPT['ro2']: q.extend(ld2r[:2]); ld2r=ld2r[2:]
    N=OPT['nb']
    fl=f'buffer_load_dword {v(PM)}, {v(T0)}, {s(WS,4)}, {s(sFlagB)} offen sc1'
    for i in range(N-1): e(fl); e(f's_nop {7+OPT["pp"]}')
    def ploop(a_,b_,extra=0):
        q.append(f'{L}_{a_}:')
        for i in range(8):
            e(fl)
            if OPT['pp']: e(f's_nop {OPT["pp"]-1}')
            e(f's_waitcnt vmcnt({N-1+(extra if i<N-1 else 0)})'); e(f'v_cmp_gt_u32 vcc, {s(sStep)}, {v(PM)}'); e(f's_cbranch_vccz {L}_{b_}')
        e(f's_add_u32 {s(sSpinF)}, {s(sSpinF)}, 1'); e(f's_cmp_gt_u32 {s(sSpinF)}, {LIM}'); e(f's_cbranch_scc0 {L}_{a_}')
        q.append(f'{L}_{b_}:')
    if el:
        i0=len(q); ploop('fb2','fb3')
        q[i0:]=[l.replace(f'vcc, {s(sStep)}, {v(PM)}',f'vcc, {v(FLG)}, {v(PM)}') for l in q[i0:]]
        q.extend(tr(3)); q.extend(ld2[:5]); ploop('fb4','fb5',4); q.extend(tr(4)); q.extend(ld2[6:])
    else:
        ploop('fb2','fb3'); q.extend(tr(3)); q.extend(ld2r[:5]+([rstore(0),rstore(2)] if OPT['mr'] else [])+['s_nop 3']*OPT['dd']+ld2r[5:]); q.extend(tr(4))
    q.extend(tail1+tail2)
    i=q.index(f'{L}_fb:')
    alt=fix(head+q[:i],f'alt{mode}{par}',False)
    q=alt[alt.index(f'{L}_w:'):]+q[i:]
    e=q.append
    if OPT['sync']: q.extend(kv_wait(L+'_kb'))
    if ca: q.extend([f'{L}_cb:','s_mov_b64 exec, -1','s_waitcnt vmcnt(6)',can,fst[0],f's_cbranch_vccz {L}_cbx'])
    for nm,inc in (('r0',1),('r1',256)):
        q.append(f'{L}_{nm}:')
        if nm=='r0': e('s_mov_b64 exec, -1')
        else: q.extend([f'v_add_u32 {v(M+2)}, -1, {v(M+2)}']+fst+[f'v_add_u32 {v(M+2)}, 1, {v(M+2)}'])
        e(f's_add_u32 {s(sSpin)}, {s(sSpin)}, {inc-1}')
        q.append(f'{L}_{nm}l:')
        q.extend(ld1); e(f's_add_u32 {s(sSpin)}, {s(sSpin)}, 1'); e(f's_cmp_gt_u32 {s(sSpin)}, {LIM}'); e(f's_cbranch_scc1 {L}_{nm}g')
        q.extend(['s_waitcnt vmcnt(6)',f'v_cmp_u_f32 vcc, {v(X)}, {v(X+4)}',f's_cbranch_vccnz {L}_{nm}l', f'{L}_{nm}g:'])
        q.extend(zero(QA,4)+['s_nop 0'])
        for j in range(4): e(f's_waitcnt vmcnt({6-2*j})'); e(RM(j))
        q.extend(['s_nop 7', chk]+fin+[f's_cbranch_scc1 {L}_{nm}e', f's_cbranch_vccnz {L}_{nm}l', f'{L}_{nm}e:', mpub]+fst+tr(3)+tr(4)+(([f's_cmp_lt_u32 {s(sH)}, 16', f's_cbranch_scc0 {L}_p1ok'] if el else [])+['s_barrier'] if nm=='r0' else [])+[f's_branch {L}_p1ok'])
    q.append(f'{L}_r2:')
    e(f's_add_u32 {s(sSpinU)}, {s(sSpinU)}, 1'); e(f's_cmp_gt_u32 {s(sSpinU)}, {LIM}'); e(f's_cbranch_scc1 {L}_r2x')
    e(f's_cmp_eq_u32 {s(sStep)}, 0'); e(f's_cbranch_scc1 {L}_r2x')
    e(f's_mov_b32 m0, {L_MEM}'); e(f's_cmp_lg_u32 {s(sW)}, 1')
    e('s_waitcnt lgkmcnt(0)'); e('s_barrier'); e(f's_cbranch_scc1 {L}_r2b')
    q.extend(ld2); q.append(f'{L}_r2b:'); e('s_nop 7'); q.extend(zero(ONES,4,'-1')); q.extend(sr); q.extend(xs); q.extend(zero(QA,8))
    e('s_waitcnt vmcnt(0) lgkmcnt(0)'); e('s_barrier')
    for c_ in range(4): e(mrd(c_))
    e(f's_branch {L}_re')
    return body, q

def window_rp(d):
    L,p,sc,mode,par,two,tr,trdump,kw,kc,sr,xs,xz,W,rstore,sp,verbose=[d[k] for k in 'L p sc mode par two tr trdump kw kc sr xs xz W rstore sp verbose'.split()]
    e=p.append
    p.extend(tr(0)+tr(1,True))
    e(f's_cbranch_scc1 {L}_w')
    head=list(p)
    p.extend(kw+kc('_ka'))
    e(f'ds_read_b128 {v(QA+4,4)}, {v(L16)} offset:{L_SEL}')
    p.extend(sr+trdump())
    for i in range(OPT['d1']-(8 if OPT['tr'] else 0)): e('s_nop 3')
    p.extend(tr(2))
    ld1=[f'buffer_load_dwordx4 {v(X+4*j,4)}, {v(L16)}, {s(WS,4)}, {s(sPin+(j>>2))} offen offset:{(j&3)*1024} sc1' for j in range(8)]
    pre=h2_addr(T0,PM)+[f's_add_u32 {s(sT+4)}, {s(sMemIn0)}, {s(sWoff)}', f's_add_u32 {s(sT+5)}, {s(sMemIn1)}, {s(sWoff)}', f's_add_u32 m0, {s(sWoff)}, {L_MEM+4096}',
         f'v_add_u32 {v(PM)}, {s(sWoff)}, {v(L16)}', f's_sub_u32 {s(sT+3)}, {s(sStep)}, 1', f'v_mov_b32 {v(FLG)}, {s(sT+3)}']
    p.extend(ld1); p.extend(pre); e(W(0))
    p.append(f'{L}_p1:')
    RM=lambda j: f'{MF32} {v(QA,4)}, {v(QA+4,4)}, {v(X+4*j,4)}, '+(v(QA,4) if j else '0')
    p.extend(['s_waitcnt vmcnt(7)',RM(0),'s_waitcnt vmcnt(6)',f'v_cmp_u_f32 vcc, {v(X)}, {v(X+4)}',RM(1),'s_waitcnt vmcnt(5)',RM(2),f's_cbranch_vccnz {L}_r0', f'{L}_r0x:']+tr(3))
    for j in range(3,8):
        e(f's_waitcnt vmcnt({7-j})'); e(RM(j))
    e(f'v_cvt_pk_bf16_f32 {v(M)}, {v(QA)}, {v(QA+1)}')
    e(f'v_cvt_pk_bf16_f32 {v(M+1)}, {v(QA+2)}, {v(QA+3)}')
    e(f'buffer_store_dwordx2 {v(M,2)}, {v(MPUB)}, {s(WS,4)}, {s(sMemPub)} offen{sc}')
    e(f'v_cmp_u_f32 vcc, {v(QA)}, {v(QA)}')
    p.extend(tr(4))
    e(f's_cbranch_vccnz {L}_r1')
    p.append(f'{L}_p1ok:')
    p.extend(xz)
    for i in range(OPT['dp']): e('s_nop 3')
    p.append(f'{L}_b1:')
    body=fix(p,f'step{mode}{par}',verbose)
    e=body.append
    e('s_barrier')
    N=OPT['np']
    pl=f'buffer_load_dwordx4 {v(STG,4)}, {v(T0)}, {s(WS,4)}, {s(sT+4)} offen sc1'
    dm=f'buffer_load_dwordx4 {v(T0)}, {s(WS,4)}, {s(sT+5)} offen sc1 lds'
    def nops(k):
        o=[]
        while k>0: o.append(f's_nop {min(k,16)-1}'); k-=16
        return o
    for i in range(N-1): e(pl); body.extend(nops(OPT['ps']))
    e(pl); e(f's_waitcnt vmcnt({N-1})'); e(f'v_cmp_u_f32 vcc, {v(STG)}, {v(STG+2)}'); e(f's_cbranch_vccnz {L}_pl')
    body.append(f'{L}_plx:')
    e(f'ds_write_b128 {v(PM)}, {v(STG,4)} offset:{L_MEM}'); e(dm); body.extend(tr(6))
    if sp==0: e(rstore(0))
    body.extend(kv_addr()); e(f's_branch L_ch_{mode}{1-par if two else 0}')
    q=[f'{L}_w:',f's_sleep {OPT["sw"]}']+kw; e=q.append
    e(f's_cmp_lg_u32 {s(sW)}, 3'); e(f's_cbranch_scc1 {L}_w3')
    e(f'buffer_store_dwordx2 {v(ONES,2)}, {v(MPUB)}, {s(WS,4)}, {s(sMemRst)} offen{sc}')
    q.extend([f'{L}_w3:']+kc('_kb')+trdump()+sr+xz+pre)
    e(f's_branch {L}_b1')
    alt=fix(head+q,f'alt{mode}{par}',False)
    q=alt[alt.index(f'{L}_w:'):]; e=q.append
    q.append(f'{L}_pl:')
    for i in range(4):
        e(pl); e(f's_waitcnt vmcnt({N-1})'); e(f'v_cmp_u_f32 vcc, {v(STG)}, {v(STG+2)}'); e(f's_cbranch_vccz {L}_plx')
    e(f's_add_u32 {s(sSpinF)}, {s(sSpinF)}, 1'); e(f's_cmp_gt_u32 {s(sSpinF)}, {LIM}'); e(f's_cbranch_scc0 {L}_pl'); e(f's_branch {L}_plx')
    if OPT['sync']: q.extend(kv_wait(L+'_ka')+kv_wait(L+'_kb'))
    q.append(f'{L}_r0:')
    e(f's_add_u32 {s(sSpin)}, {s(sSpin)}, 1'); e(f's_cmp_gt_u32 {s(sSpin)}, {LIM}'); e(f's_cbranch_scc1 {L}_r0x')
    q.extend(ld1); e(f's_branch {L}_p1')
    q.append(f'{L}_r1:')
    e(f's_add_u32 {s(sSpin)}, {s(sSpin)}, 256'); e(f's_cmp_gt_u32 {s(sSpin)}, {LIM}'); e(f's_cbranch_scc1 {L}_p1ok')
    q.extend(ld1); e(f's_branch {L}_p1')
    q.append(f'{L}_r2:')
    e(f's_add_u32 {s(sSpinU)}, {s(sSpinU)}, 1'); e(f's_cmp_gt_u32 {s(sSpinU)}, {LIM}'); e(f's_cbranch_scc1 {L}_r2x')
    e(f's_cmp_eq_u32 {s(sStep)}, 0'); e(f's_cbranch_scc1 {L}_r2x')
    e('s_waitcnt vmcnt(0) lgkmcnt(0)'); e('s_barrier')
    q.extend(pre); e(dm); e(f's_add_u32 m0, {s(sWoff)}, {L_MEM}'); e('s_nop 0'); e(dm.replace(s(sT+5),s(sT+4)))
    q.extend(kv_addr()+zero(ONES,4,'-1')); q.extend(sr); q.extend(xs); q.extend(zero(QA,8))
    e('s_waitcnt vmcnt(0) lgkmcnt(0)'); e('s_barrier')
    for c_ in range(4): e(mrd(c_))
    e(f's_branch {L}_re')
    return body, q

def chain_body(timing=False, verbose=False):
    A=Asm()
    pro=prologue(timing)
    F0,f0=step('F',0,verbose); F1,f1=step('F',1); S0,s0=step('S',0); S1,s1=step('S',1)
    if not OPT['rp']: check(pro+F0+F0,'chainF')
    for x in ((pro,F0,F1,f0,f1,S0,S1,s0,s1) if (OPT['tr'] or OPT['solo']) else (pro,F0,f0,S0,s0)): A.extend(x)
    f=['L_ch_fin:']+zero(KA,16)+[f's_waitcnt vmcnt({3+OPT["ek"]-OPT["mr"]}) lgkmcnt(0)','s_barrier','L_ch_fin2:']+[mrd(c) for c in range(8)]
    f[1:1]=['s_waitcnt lgkmcnt(0)']
    for c in range(8):
        for m_,acc in (('k',KA),('v',VA)):
            for t in range(2): f.append(smf(acc+4*t,M+4*c,unit((m_,c),t)))
    f+=[f'v_add_f32 {v(KA+2*i)}, {v(KA+2*i)}, {v(KA+2*i+1)}' for i in range(8)]
    f+=[f'v_cmp_u_f32 vcc, {v(KA)}, {v(KA+2)}', f'v_cvt_pk_bf16_f32 {v(KVQ+1)}, {v(KA)}, {v(KA+4)}', f'v_cvt_pk_bf16_f32 {v(KVQ+3)}, {v(KA+2)}, {v(KA+6)}',
        f'v_cvt_pk_bf16_f32 {v(KVQ)}, {v(VA)}, {v(VA+2)}', f'v_cvt_pk_bf16_f32 {v(KVQ+2)}, {v(VA+4)}, {v(VA+6)}', 's_cbranch_vccz L_ch_last',
        f's_add_u32 {s(sSpinU)}, {s(sSpinU)}, 1', f's_cmp_gt_u32 {s(sSpinU)}, {LIM}', 's_cbranch_scc1 L_ch_last',
        f's_mov_b32 m0, {L_MEM}', f's_cmp_lg_u32 {s(sW)}, 1', 's_barrier', 's_cbranch_scc1 L_ch_fin3']
    f+=[f'buffer_load_dwordx4 {v(H2A)}, {s(WS,4)}, {s(sMemIn0)} offen offset:{1024*j} sc1 lds' for j in range(4)]
    f+=[f's_mov_b32 m0, {L_MEM+4096}','s_nop 0']+[f'buffer_load_dwordx4 {v(H2A)}, {s(WS,4)}, {s(sMemIn1)} offen offset:{1024*j} sc1 lds' for j in range(4)]
    f+=['L_ch_fin3:']+zero(KA,16)+['s_waitcnt vmcnt(0)','s_barrier','s_branch L_ch_fin2']
    A.extend(fix(f,'fin'))
    A.label('L_ch_last')
    A(f'buffer_store_dwordx4 {v(KVQ,4)}, {v(L16)}, {s(WS,4)}, {s(sKvm)} offen sc1')
    if timing:
        A(f'''s_waitcnt vmcnt(0)
        s_lshl_b32 {s(sSpinU)}, {s(sSpinU)}, 16
        s_add_u32 {s(sSpin)}, {s(sSpin)}, {s(sSpinU)}
        s_memrealtime {s(sTime+4,2)}
        s_memtime {s(sTime+8,2)}
        s_waitcnt lgkmcnt(0)
        s_sub_u32 {s(sT)}, {s(sTime+2)}, {s(sTime)}
        s_sub_u32 {s(sT+1)}, {s(sTime+4)}, {s(sTime+2)}
        s_sub_u32 {s(sT+2)}, {s(sTime+8)}, {s(sTime+6)}
        v_mov_b32 v4, {s(sT)}
        v_mov_b32 v5, {s(sT+1)}
        v_mov_b32 v6, {s(sT+2)}
        v_mov_b32 v7, {s(sSpin)}
        s_lshl_b32 {s(sT)}, {s(sH)}, 2
        s_add_u32 {s(sT)}, {s(sT)}, {s(sW)}
        s_lshl_b32 {s(sT)}, {s(sT)}, 5
        s_add_u32 {s(sT)}, {s(sT)}, 16384
        v_mov_b32 v0, {s(sT)}
        s_sub_u32 s80, s80, {s(sTime)}
        s_sub_u32 s82, s82, {s(sTime)}
        s_sub_u32 s84, s84, {s(sTime)}
        s_sub_u32 s86, s86, {s(sTime)}
        v_mov_b32 v8, s80
        v_mov_b32 v9, s82
        v_mov_b32 v10, s84
        v_mov_b32 v11, s86
        s_mov_b64 exec, 1
        global_store_dwordx4 v0, v[8:11], {s(DBG,2)} offset:16
        global_store_dwordx4 v0, v[4:7], {s(DBG,2)}''')
    return A

def kernel_text(name, body):
    return f'''.globl {name}
.p2align 8
.type {name},@function
{name}:
{body.text()}    s_endpgm
'''
def kernel_desc(name, vgpr=512, accum=256, sgpr=102):
    return f'''.p2align 6
.amdhsa_kernel {name}
  .amdhsa_next_free_vgpr {vgpr}
  .amdhsa_next_free_sgpr {sgpr}
  .amdhsa_accum_offset {accum}
  .amdhsa_group_segment_fixed_size 0
  .amdhsa_kernarg_size 120
  .amdhsa_user_sgpr_count 2
  .amdhsa_user_sgpr_kernarg_segment_ptr 1
  .amdhsa_system_sgpr_workgroup_id_x 1
  .amdhsa_float_denorm_mode_32 3
.end_amdhsa_kernel
'''

if __name__=='__main__':
    import sys
    for x in sys.argv:
        if '=' in x: OPT[x.split('=')[0]]=int(x.split('=')[1])
    A=Asm()
    if 'spread' in sys.argv:
        A(f's_cmp_ge_u32 s2, 32\ns_cbranch_scc1 L_exit\ns_mov_b32 {s(sH)}, s2')
    else:
        A(f's_cmp_ge_u32 s2, 256\ns_cbranch_scc1 L_exit\ns_and_b32 s3, s2, 7\ns_cmp_lg_u32 s3, 0\ns_cbranch_scc1 L_exit\ns_lshr_b32 {s(sH)}, s2, 3')
    A.extend(chain_body(timing=True, verbose=True))
    A.label('L_exit')
    txt='; @launch kernel=chain_kernel grid=(256,1,1) block=(256,1,1) lds=163840\n.amdgcn_target "amdgcn-amd-amdhsa--gfx950"\n.text\n'
    txt+=kernel_text('chain_kernel',A)+'.section .rodata,"a"\n'+kernel_desc('chain_kernel')
    open(sys.argv[1],'w').write(txt)
```

```python
WS_BYTES = 268435456
KV_OFF   = 0
Q_OFF    = 32 << 20
KVM_OFF  = 49 << 20
G_OFF    = 58 << 20
G_O=0; G_P1=262144; G_P2=524288; G_H2=786432; G_F1=819200
H_OFF    = 74 << 20
PART_OFF = 76 << 20
MEM_OFF  = 77 << 20
FLAG_OFF = (77 << 20) + 65536
BF_OFF   = (77 << 20) + 131072
BF_H=0
BF_KV=1024
BF_KVM=5120
BF_GB=9216
BF_XC=11264
BF_BYTES=16384
MOD_OFF  = 78 << 20
NAME = 'adaLN_cond__memory_aug_recurrent_mem_tr__dense_activation_relu__prompt'
TAG0 = 50

sK = 101
def verify(tag, r, dbg, spin, tmp):
    return [f'L_vf{tag}:', f'v_readfirstlane_b32 s{tmp}, v{r}', f's_add_u32 s{spin}, s{spin}, 1', f's_cmp_gt_u32 s{spin}, 0x80000', f's_cbranch_scc1 L_vx{tag}',
            f's_cmp_lg_u32 s{tmp}, 0', f's_cbranch_scc1 L_vg{tag}',
            f'v_mov_b32 v{r}, 140', f'global_load_dword v{r}, v{r}, s[{dbg}:{dbg+1}] sc1 ;stamp', 's_waitcnt vmcnt(0) ;stamp', f's_branch L_vf{tag}',
            f'L_vg{tag}:', f's_sub_u32 s{tmp}, s{tmp}, 1', f's_and_b32 s{tmp}, s{tmp}, 7', f's_cmp_eq_u32 s{tmp}, s{sK}', f's_cbranch_scc1 L_vx{tag}',
            f's_mov_b32 s{sK}, s{tmp}', 's_branch L_restart', f'L_vx{tag}:']
```

```python
import sys
from asmlib import *
from layout import *
import bulk as B, chain as C
prof='prof' in sys.argv
C.OPT['sync']=1
for x in sys.argv:
    if '=' in x:
        k,val=x.split('='); (C.OPT if k in C.OPT else B.OPT)[k]=int(val)
sB=B.sB
_n=[0]
def stamp(slot,who,reg,sw,dbg):
    if not prof: return []
    _n[0]+=1; L=f'L_st{_n[0]}'
    return [f's_cmp_lg_u32 {s(reg)}, {who}',f's_cbranch_scc1 {L}',f's_cmp_lg_u32 {s(sw)}, 0',f's_cbranch_scc1 {L}','s_memrealtime s[90:91]','s_waitcnt lgkmcnt(0)',
            'v_mov_b32 v11, s90',f'v_mov_b32 v123, {160+4*slot}','s_mov_b64 exec, 1',f'global_store_dword v123, v11, {s(dbg,2)}','s_mov_b64 exec, -1',L+':']
bs=lambda slot,who: stamp(slot,who,sB,B.sW,B.DBG)
B.STAMP=bs
A=Asm()
A(f'''s_cmp_ge_u32 s2, 256
s_cbranch_scc1 L_exit
s_getreg_b32 s{sK}, hwreg(HW_REG_XCC_ID)
s_sub_u32 s{sK}, s{sK}, s2
s_and_b32 s{sK}, s{sK}, 7
s_cmp_lg_u32 s2, 0
s_cbranch_scc1 L_disp
s_load_dwordx2 s[12:13], s[0:1], 104
s_add_u32 s3, s{sK}, 1
v_mov_b32 v1, 140
v_mov_b32 v2, s3
s_waitcnt lgkmcnt(0)
s_mov_b64 exec, 1
global_store_dword v1, v2, s[12:13] sc1
s_mov_b64 exec, -1
L_disp:
s_add_u32 s3, s2, s{sK}
s_sub_u32 s3, s3, {B.OPT.get('cx',3)}
s_and_b32 s3, s3, 7
s_cmp_lg_u32 s3, 0
s_cbranch_scc1 L_bulk
s_lshr_b32 {s(C.sH)}, s2, 3''')
if B.OPT.get('hp',0): A(f's_bfe_u32 s3, s2, 0x20005\ns_and_b32 {s(C.sH)}, {s(C.sH)}, 16\ns_add_u32 {s(C.sH)}, {s(C.sH)}, s3\ns_bfe_u32 s3, s2, 0x20003\ns_lshl_b32 s3, s3, 2\ns_add_u32 {s(C.sH)}, {s(C.sH)}, s3')
if B.OPT.get('dly')==1: A('s_sleep 75')
A.extend(C.chain_body(timing=prof))
A.label('L_exit'); A('s_endpgm')
A('''L_restart:
s_waitcnt vmcnt(0) lgkmcnt(0)
s_barrier
s_lshl_b32 s3, s15, 6
v_mbcnt_lo_u32_b32 v0, -1, 0
v_mbcnt_hi_u32_b32 v0, -1, v0
v_add_u32 v0, s3, v0
s_branch L_disp''')
A.label('L_bulk')
perm=[int(c) for c in '%07d'%B.OPT.get('perm',3042156)]
tab=sum(r<<(4*(x+1)) for x,r in enumerate(perm))
A(f's_lshl_b32 s3, s3, 2\ns_lshr_b32 s3, {hex(tab)}, s3\ns_and_b32 s3, s3, 15\ns_lshl_b32 s3, s3, 5\ns_lshr_b32 {s(sB)}, s2, 3\ns_add_u32 {s(sB)}, {s(sB)}, s3')
A.extend(B.roles()); A.extend(fix(B.common())); A.extend(bs(0,0))
A(f's_cmp_ge_u32 {s(sB)}, 64\ns_cbranch_scc1 L_grp')
A('s_sleep 75' if B.OPT.get('dly')==2 else ''); A.extend(B.p1_setup()); A.extend(bs(3,0)); A.extend(bs(4,2))
A.extend(B.p1_main(True)); A.extend(bs(5,0)); A.extend(bs(6,2)); A('s_branch L_p2')
A.label('L_grp')
A(f's_cmp_ge_u32 {s(sB)}, 96\ns_cbranch_scc1 L_ln')
A('s_sleep 75' if B.OPT.get('dly')==3 else ''); A.extend(B.mod_phase(True)); A('s_branch L_p2')
A.label('L_ln'); A.extend(B.ln_phase(True)); A.extend(bs(2,96)); A.label('L_p2')
if B.OPT.get('kill'):
    A(f's_and_b32 s3, s2, 7\ns_lshr_b32 s3, {B.OPT["kill"]}, s3\ns_and_b32 s3, s3, 1\ns_cmp_eq_u32 s3, 0\ns_cbranch_scc1 L_p2k\ns_endpgm\nL_p2k:')
A('s_sleep 120' if B.OPT.get('dly')==4 else ''); A.extend(B.p2_setup(True)); A.extend(B.p2_loop('F',True)); A.extend(B.p2_loop('S',True))
kn=NAME+'_kernel'
if 'wrap' in sys.argv:
    pre=['s_memrealtime s[90:91]','s_load_dwordx2 s[88:89], s[0:1], 112','s_lshl_b32 s3, s2, 3','s_add_u32 s3, s3, %d'%(120<<20),'v_mov_b32 v1, s3','s_waitcnt lgkmcnt(0)','v_mov_b32 v2, s90','global_store_dword v1, v2, s[88:89]']
    end=lambda: ['s_waitcnt vmcnt(0)','s_mov_b64 exec, -1','s_memrealtime s[90:91]','s_load_dwordx2 s[88:89], s[0:1], 112','s_lshl_b32 s3, s2, 3','s_add_u32 s3, s3, %d'%((120<<20)+4),'v_mov_b32 v1, s3','s_waitcnt lgkmcnt(0)','v_mov_b32 v2, s90','global_store_dword v1, v2, s[88:89]','s_endpgm']
    L=[]
    for l in A.lines: L+= end() if l=='s_endpgm' else [l]
    A.lines=pre+L
    def st(name,off):
        S=Asm(); S.extend(['s_memrealtime s[90:91]','s_load_dwordx2 s[88:89], s[0:1], 112','v_mov_b32 v1, %d'%((121<<20)+off),'s_waitcnt lgkmcnt(0)','v_mov_b32 v2, s90','global_store_dword v1, v2, s[88:89]']); return C.kernel_text(name,S)
    txt=f'; @launch kernel=a_kernel grid=(1,1,1) block=(64,1,1) lds=0\n; @launch kernel=m_kernel grid=(256,1,1) block=(256,1,1) lds=163840\n; @launch kernel=b_kernel grid=(1,1,1) block=(64,1,1) lds=0\n; @launch kernel=c_kernel grid=(1,1,1) block=(64,1,1) lds=0\n.amdgcn_target "amdgcn-amd-amdhsa--gfx950"\n.text\n'
    txt+=st('a_kernel',0)+st('b_kernel',4)+st('c_kernel',8)+C.kernel_text('m_kernel',A)+'.section .rodata,"a"\n'+C.kernel_desc('m_kernel')+''.join(C.kernel_desc(k,32,32) for k in ('a_kernel','b_kernel','c_kernel'))
    open(sys.argv[1],'w').write(txt); sys.exit(0)
txt='; @launch grid=(256,1,1) block=(256,1,1) lds=163840\n.amdgcn_target "amdgcn-amd-amdhsa--gfx950"\n.text\n'
txt+=C.kernel_text(kn,A)+'.section .rodata,"a"\n'+C.kernel_desc(kn)
open(sys.argv[1],'w').write(txt)
```

```python
from asmlib import *
from layout import *
import math, struct
MF32='v_mfma_f32_16x16x32_bf16'; MF16='v_mfma_f32_16x16x16_bf16'; SMF='v_smfmac_f32_16x16x64_bf16'
f2u=lambda x: struct.unpack('<I',struct.pack('<f',x))[0]
WS=4; SRD=8; DBG=12; sB=14; sW=15; sMask=16; sSpin=17
sP=52
PX,PWQ,PWK,PWV,PWO,PW1,PW2,PC,PWM,POUT=[sP+2*i for i in (0,2,3,4,5,8,9,10,11,12)]
sT=40
sHd=21; sR=22; sZ=39
LN=0; N=1; Gv=2; L16=3
LIM='0x400000'
OPT=dict(d2=2, pf2=0, pf1=0, d1p=7, alt=0, hb=20, nl=4, dl=0, lp=8, pn=2, rd=4, ks=0, pf3=2, dw=0, ga=6, gs=2)
STAMP=lambda slot,who: []
def common():
    return [f's_load_dwordx16 {s(sP,16)}, s[0:1], 0', f's_load_dwordx8 {s(sP+16,8)}, s[0:1], 64', f's_load_dwordx2 {s(sP+24,2)}, s[0:1], 96',
        f's_load_dwordx2 {s(DBG,2)}, s[0:1], 104', f's_load_dwordx2 {s(WS,2)}, s[0:1], 112',
        'v_lshrrev_b32 v1, 6, v0', f'v_and_b32 {v(LN)}, 63, v0', f'v_readfirstlane_b32 {s(sW)}, v1',
        f's_mov_b32 {s(WS+2)}, {WS_BYTES}', f's_mov_b32 {s(WS+3)}, 0x20000', f's_mov_b32 {s(SRD+3)}, 0x20000',
        f's_mov_b32 {s(sMask)}, 0xffff0000', f's_mov_b32 {s(sSpin)}, 0',
        f'v_and_b32 {v(N)}, 15, {v(LN)}', f'v_lshrrev_b32 {v(Gv)}, 4, {v(LN)}', f'v_lshlrev_b32 {v(L16)}, 4, {v(LN)}', 's_waitcnt lgkmcnt(0)']
NR=2; NG=5
def roles():
    return [f's_lshr_b32 {s(sHd)}, {s(sB)}, 1', f's_and_b32 {s(sR)}, {s(sB)}, 1', f's_sub_u32 {s(sZ)}, {s(sB)}, 64']
def srd(p,size): return [f's_mov_b32 {s(SRD)}, {s(p)}', f's_mov_b32 {s(SRD+1)}, {s(p+1)}', f's_mov_b32 {s(SRD+2)}, {size}']
def rnd(a,b,t): return [f'v_cvt_pk_bf16_f32 {v(t)}, {v(a)}, {v(b)}', f'v_lshlrev_b32 {v(a)}, 16, {v(t)}', f'v_and_b32 {v(b)}, {s(sMask)}, {v(t)}']
def unp(d,src): return [f'v_and_b32 {v(d+1)}, {s(sMask)}, {v(src)}', f'v_lshlrev_b32 {v(d)}, 16, {v(src)}']
def xg(op,a,t):
    return [f'v_mov_b32 {v(t)}, {v(a)}', f'v_permlane32_swap_b32 {v(a)}, {v(t)}', f'{op} {v(a)}, {v(a)}, {v(t)}',
            f'v_mov_b32 {v(t)}, {v(a)}', f'v_permlane16_swap_b32 {v(a)}, {v(t)}', f'{op} {v(a)}, {v(a)}, {v(t)}']
def xrow(a):
    return [f'v_add_f32_dpp {v(a)}, {v(a)}, {v(a)} row_ror:{k} row_mask:0xf bank_mask:0xf' for k in (1,2,4,8)]
_u=[0]
def poll(addr_v, soff, cmp_s, r, off=0, sleep=0):
    _u[0]+=1; k=_u[0]
    return [f'L_po{k}:', f'buffer_load_dword {v(r)}, {v(addr_v)}, {s(WS,4)}, {soff} offen offset:{off} sc1', f's_add_u32 {s(sSpin)}, {s(sSpin)}, 1',
            f's_cmp_gt_u32 {s(sSpin)}, {LIM}', f's_cbranch_scc1 L_pe{k}', 's_waitcnt vmcnt(0)', f'v_cmp_gt_u32 vcc, {cmp_s}, {v(r)}']+(
            [f's_cbranch_vccz L_pe{k}', f's_sleep {sleep}', f's_branch L_po{k}'] if sleep else [f's_cbranch_vccnz L_po{k}'])+[f'L_pe{k}:', 's_waitcnt vmcnt(0)']

def pollp(addr_v, soff, cmp_s, r, N=4):
    _u[0]+=1; k=_u[0]
    ld=f'buffer_load_dword {v(r)}, {v(addr_v)}, {s(WS,4)}, {soff} offen sc1 ;stamp'
    o=[]
    for i in range(N-1): o+=[ld,'s_nop 11']
    o+=[f'L_po{k}:', ld, f's_add_u32 {s(sSpin)}, {s(sSpin)}, 1', f's_cmp_gt_u32 {s(sSpin)}, {LIM}', f's_cbranch_scc1 L_pe{k}', f's_waitcnt vmcnt({N-1}) ;stamp',
        f'v_cmp_gt_u32 vcc, {cmp_s}, {v(r)}', f's_cbranch_vccnz L_po{k}', f'L_pe{k}:']
    return o

def mod_phase(sync):
    p=[]; e=p.append
    W_=16; C_=48; AC=56; A0=4; A1=5; T=6
    p.append('L_mod_top:')
    e(f'v_lshrrev_b32 {v(A0)}, 2, {v(LN)}'); e(f's_lshl_b32 {s(sT)}, {s(sW)}, 4'); e(f'v_add_u32 {v(A0)}, {s(sT)}, {v(A0)}')
    e(f'v_lshlrev_b32 {v(A1)}, 1, {v(A0)}')
    e(f'v_mul_u32_u24 {v(A0)}, 6144, {v(A0)}'); e(f'v_and_b32 {v(T)}, 3, {v(LN)}'); e(f'v_lshl_add_u32 {v(A0)}, {v(T)}, 4, {v(A0)}')
    p+=srd(PWM,512*6144)
    for i in range(8): e(f'global_load_ushort {v(C_+i)}, {v(A1)}, {s(PC,2)} offset:{128*i}')
    e(f's_lshl_b32 {s(sT)}, {s(sZ)}, 6')
    for i in range(8):
        e(f'buffer_load_dwordx4 {v(W_+4*i,4)}, {v(A0)}, {s(SRD,4)}, {s(sT)} offen'); e(f's_add_u32 {s(sT)}, {s(sT)}, {64*6144}')
    e('v_mov_b32 v10, 140'); e(f'global_load_dword v10, v10, {s(DBG,2)} sc1')
    for i in range(8): e(f'v_lshlrev_b32 {v(C_+i)}, 16, {v(C_+i)}')
    for i in range(8): e(f'v_mul_f32 {v(AC+i)}, {hex(f2u(-math.log2(math.e)))}, {v(C_+i)}')
    for i in range(8): e(f'v_exp_f32 {v(AC+i)}, {v(AC+i)}')
    for i in range(8): e(f'v_add_f32 {v(AC+i)}, 1.0, {v(AC+i)}')
    for i in range(8): e(f'v_rcp_f32 {v(AC+i)}, {v(AC+i)}')
    for i in range(8): e(f'v_mul_f32 {v(C_+i)}, {v(C_+i)}, {v(AC+i)}')
    for i in range(0,8,2): p+=rnd(C_+i,C_+i+1,T)
    for i in range(8):
        for d in range(4):
            p+=unp(8,W_+4*i+d)
            for k in range(2):
                e(f'v_mul_f32 {v(AC+2*d+k)}, {v(C_+i)}, {v(8+k)}' if i==0 else f'v_fmac_f32 {v(AC+2*d+k)}, {v(C_+i)}, {v(8+k)}')
    for k in (4,8):
        for i in range(8): e(f'v_add_f32_dpp {v(AC+i)}, {v(AC+i)}, {v(AC+i)} row_ror:{k} row_mask:0xf bank_mask:0xf')
    p+=verify('m',10,DBG,sSpin,sT)
    e(f's_lshl_b32 {s(sT)}, {s(sW)}, 9'); e(f'v_and_b32 {v(T)}, 3, {v(LN)}'); e(f'v_lshlrev_b32 {v(T)}, 5, {v(T)}')
    e(f'v_lshl_add_u32 {v(T)}, {v(Gv)}, 7, {v(T)}'); e(f'v_add_u32 {v(T)}, {s(sT)}, {v(T)}')
    e(f'ds_write_b128 {v(T)}, {v(AC,4)}'); e(f'ds_write_b128 {v(T)}, {v(AC+4,4)} offset:16')
    e('s_waitcnt lgkmcnt(0)'); e('s_barrier')
    e(f's_cmp_lg_u32 {s(sW)}, 0'); e('s_cbranch_scc1 L_mod_end')
    e(f'v_and_b32 {v(A0)}, 31, {v(LN)}'); e(f'v_lshrrev_b32 {v(A1)}, 5, {v(LN)}'); e(f'v_lshlrev_b32 {v(T)}, 2, {v(A0)}'); e(f'v_lshl_add_u32 {v(T)}, {v(A1)}, 10, {v(T)}')
    for i in range(8): e(f'ds_read_b32 {v(AC+i)}, {v(T)} offset:{128*i}')
    for i in range(1,8): e(f'v_add_f32 {v(AC)}, {v(AC)}, {v(AC+i)}')
    e(f'v_mov_b32 {v(T)}, {v(AC)}'); e(f'v_permlane32_swap_b32 {v(AC)}, {v(T)}'); e(f'v_add_f32 {v(AC)}, {v(AC)}, {v(T)}')
    e(f'v_cvt_pk_bf16_f32 {v(AC)}, {v(AC)}, {v(AC)}')
    e(f'v_lshlrev_b32 {v(A0)}, 1, {v(A0)}'); e(f's_lshl_b32 {s(sT)}, {s(sZ)}, 6'); e(f's_add_u32 {s(sT)}, {s(sT)}, {MOD_OFF}')
    e(f'buffer_store_short {v(AC)}, {v(A0)}, {s(WS,4)}, {s(sT)} offen sc1')
    if sync:
        e('s_waitcnt vmcnt(0)')
        e(f's_cmp_lt_u32 {s(sZ)}, 32'); e(f's_cselect_b32 {s(sT)}, 0, 4')
        e(f'v_mov_b32 {v(A0)}, {s(sT)}'); e(f'v_mov_b32 {v(A1)}, 1'); e('s_mov_b64 exec, 1')
        e(f'global_atomic_add {v(A0)}, {v(A1)}, {s(DBG,2)} offset:128'); e('s_mov_b64 exec, -1')
    p.append('L_mod_end:')
    e('s_barrier')
    if STAMP(0,0):
        e(f's_cmp_ge_u32 {s(sZ)}, 32'); e('s_cbranch_scc1 L_mod_ns'); p+=STAMP(1,64); p.append('L_mod_ns:')
    if OPT['pf3']:
        e(f's_cmp_ge_u32 {s(sZ)}, 32'); e('s_cbranch_scc1 L_mod_np')
        e(f'v_lshlrev_b32 v99, 10, {v(Gv)}'); e(f'v_lshl_add_u32 v99, {v(N)}, 4, v99')
        e(f's_lshl_b32 {s(sT+3)}, {s(sZ)}, 2'); e(f's_add_u32 {s(sT+3)}, {s(sT+3)}, {s(sW)}'); e(f's_lshl_b32 {s(sT+3)}, {s(sT+3)}, 12')
        for ptr in ((PWV,PWQ) if OPT['pf3']==1 else (PWK,PWV,PWQ)):
            p+=srd(ptr,4<<20)
            for i in range(8):
                e(f's_add_u32 {s(sT+4)}, {s(sT+3)}, {i*64*8192}'); e(f'buffer_load_dwordx4 v[100:103], v99, {s(SRD,4)}, {s(sT+4)} offen offset:256 ;stamp')
        p.append('L_mod_np:')
    e(f's_add_u32 {s(sZ)}, {s(sZ)}, 32'); e(f's_cmp_lt_u32 {s(sZ)}, 96'); e('s_cbranch_scc1 L_mod_top')
    return fix(p,'mod')

def dbg_wait(off,val,r):
    _u[0]+=1; k=_u[0]
    return [f'v_mov_b32 {v(r+1)}, {off}', f'L_po{k}:', f'global_load_dword {v(r)}, {v(r+1)}, {s(DBG,2)} sc1', f's_add_u32 {s(sSpin)}, {s(sSpin)}, 1',
            f's_cmp_gt_u32 {s(sSpin)}, {LIM}', f's_cbranch_scc1 L_pe{k}', 's_waitcnt vmcnt(0)', f'v_cmp_gt_u32 vcc, {val}, {v(r)}', f's_cbranch_vccnz L_po{k}', f'L_pe{k}:', 's_waitcnt vmcnt(0)']

def ln_phase(sync):
    p=[]; e=p.append
    XR=16; XF=32; MD=64; A0=4; A1=5; T=6; S=7; Q=8; R_=10; MU=14; sTile=20
    e(f's_sub_u32 {s(sTile)}, {s(sB)}, 96')
    p+=srd(PX,2048*1024)
    e(f'v_lshlrev_b32 {v(A0)}, 10, {v(N)}'); e(f'v_lshl_add_u32 {v(A0)}, {v(Gv)}, 4, {v(A0)}')
    e(f's_lshl_b32 {s(sT)}, {s(sTile)}, 14'); e(f's_lshl_b32 {s(sT+1)}, {s(sW)}, 8'); e(f's_add_u32 {s(sT)}, {s(sT)}, {s(sT+1)}')
    for i in range(4): e(f'buffer_load_dwordx4 {v(XR+4*i,4)}, {v(A0)}, {s(SRD,4)}, {s(sT)} offen offset:{64*i}')
    e('v_mov_b32 v9, 140'); e(f'global_load_dword v9, v9, {s(DBG,2)} sc1')
    if OPT['pf1']:
        e(f's_lshl_b32 {s(sT+3)}, {s(sTile)}, 2'); e(f's_add_u32 {s(sT+3)}, {s(sT+3)}, {s(sW)}'); e(f's_lshl_b32 {s(sT+3)}, {s(sT+3)}, 13'); e(f's_add_u32 {s(sT+4)}, {s(sT+3)}, 4096')
        for ptr in (PWK,PWV,PWQ):
            p+=srd(ptr,4<<20)
            if OPT['pf1']==1:
                for i in range(8): e(f'buffer_load_dwordx4 {v(100,4)}, {v(L16)}, {s(SRD,4)}, {s(sT+3+(i>>2))} offen offset:{1024*(i&3)}')
            else:
                e(f'v_lshlrev_b32 v99, 10, {v(Gv)}'); e(f'v_lshl_add_u32 v99, {v(N)}, 4, v99')
                for i in range(2): e(f'buffer_load_dwordx4 {v(100,4)}, v99, {s(SRD,4)}, {s(sT+3+i)} offen offset:256')
    e(f'v_lshlrev_b32 {v(A1)}, 4, {v(N)}'); e(f's_lshl_b32 {s(sT+2)}, {s(sW)}, 2'); e(f'v_add_u32 {v(A0)}, {s(sT+2)}, {v(A1)}')
    for i in range(16): p+=unp(XF+2*i,XR+i)
    e(f'v_add_f32 {v(S)}, {v(XF)}, {v(XF+1)}')
    for i in range(2,32): e(f'v_add_f32 {v(S)}, {v(S)}, {v(XF+i)}')
    def cross(off):
        o=xg('v_add_f32',S,T)+[f'ds_write_b32 {v(A0)}, {v(S)} offset:{off}','s_waitcnt lgkmcnt(0)','s_barrier',f'ds_read_b128 {v(R_,4)}, {v(A1)} offset:{off}',
           f'v_add_f32 {v(S)}, {v(R_)}, {v(R_+1)}', f'v_add_f32 {v(T)}, {v(R_+2)}, {v(R_+3)}', f'v_add_f32 {v(S)}, {v(S)}, {v(T)}', f'v_mul_f32 {v(S)}, {hex(f2u(1/512))}, {v(S)}']
        return o
    p+=verify('l',9,DBG,sSpin,sT+3)
    e(f's_cmp_lg_u32 {s(sB)}, 223'); e('s_cbranch_scc1 L_ln2'); p+=flag_init(); p.append('L_ln2:')
    for i in range(4): e(f'v_mov_b32 {v(104+i)}, -1')
    e(f's_lshl_b32 {s(sT+3)}, {s(sTile)}, 2'); e(f's_add_u32 {s(sT+3)}, {s(sT+3)}, {s(sW)}'); e(f's_lshl_b32 {s(sT+3)}, {s(sT+3)}, 11'); e(f's_add_u32 {s(sT+3)}, {s(sT+3)}, {PART_OFF}')
    for i in range(2): e(f'buffer_store_dwordx4 {v(104,4)}, {v(L16)}, {s(WS,4)}, {s(sT+3)} offen offset:{1024*i} sc1')
    p+=cross(0)
    e(f'v_mov_b32 {v(MU)}, {v(S)}')
    for i in range(32):
        e(f'v_sub_f32 {v(T)}, {v(XF+i)}, {v(MU)}'); e(f'v_mul_f32 {v(S)}, {v(T)}, {v(T)}' if i==0 else f'v_fmac_f32 {v(S)}, {v(T)}, {v(T)}')
    p+=cross(256)
    p+=rnd(MU,S,T)
    e(f'v_add_f32 {v(S)}, {hex(f2u(1e-5))}, {v(S)}'); p+=rnd(S,Q,T)[:2]
    e(f'v_sqrt_f32 {v(S)}, {v(S)}'); p+=rnd(S,Q,T)[:2]
    e(f'v_rcp_f32 {v(S)}, {v(S)}')
    for i in range(0,32,2):
        e(f'v_sub_f32 {v(XF+i)}, {v(XF+i)}, {v(MU)}'); e(f'v_sub_f32 {v(XF+i+1)}, {v(XF+i+1)}, {v(MU)}'); p+=rnd(XF+i,XF+i+1,T)
        e(f'v_mul_f32 {v(XF+i)}, {v(XF+i)}, {v(S)}'); e(f'v_mul_f32 {v(XF+i+1)}, {v(XF+i+1)}, {v(S)}'); p+=rnd(XF+i,XF+i+1,T)
    p+=[]
    if sync: p+=dbg_wait(128,32,R_)
    p+=[]
    e(f'v_lshlrev_b32 {v(A0)}, 4, {v(Gv)}'); e(f's_add_u32 {s(sT+1)}, {s(sT+1)}, {MOD_OFF}')
    for i in range(4): e(f'buffer_load_dwordx4 {v(MD+4*i,4)}, {v(A0)}, {s(WS,4)}, {s(sT+1)} offen offset:{1024+64*i} sc1')
    for i in range(4): e(f'buffer_load_dwordx4 {v(MD+16+4*i,4)}, {v(A0)}, {s(WS,4)}, {s(sT+1)} offen offset:{64*i} sc1')
    e(f's_lshl_b32 {s(sT)}, {s(sTile)}, 14'); e(f's_lshl_b32 {s(sT+2)}, {s(sW)}, 12'); e(f's_add_u32 {s(sT)}, {s(sT)}, {s(sT+2)}'); e(f's_add_u32 {s(sT)}, {s(sT)}, {H_OFF}')
    for i in range(16):
        a_=XF+2*i
        p+=unp(Q,MD+i); e(f'v_add_f32 {v(Q)}, 1.0, {v(Q)}'); e(f'v_add_f32 {v(Q+1)}, 1.0, {v(Q+1)}'); p+=rnd(Q,Q+1,T)
        e(f'v_mul_f32 {v(a_)}, {v(a_)}, {v(Q)}'); e(f'v_mul_f32 {v(a_+1)}, {v(a_+1)}, {v(Q+1)}'); p+=rnd(a_,a_+1,T)
        p+=unp(Q,MD+16+i); e(f'v_add_f32 {v(a_)}, {v(a_)}, {v(Q)}'); e(f'v_add_f32 {v(a_+1)}, {v(a_+1)}, {v(Q+1)}')
        e(f'v_cvt_pk_bf16_f32 {v(XR+i)}, {v(a_)}, {v(a_+1)}')
        if i%4==3: e(f'buffer_store_dwordx4 {v(XR+i-3,4)}, {v(L16)}, {s(WS,4)}, {s(sT)} offen offset:{1024*(i//4)} sc1')
    p+=[]
    if sync:
        p+=dbg_wait(136,1,R_)
        e('s_barrier')
        e(f's_lshl_b32 {s(sT)}, {s(sTile)}, 2'); e(f's_add_u32 {s(sT)}, {s(sT)}, {BF_OFF+BF_H}'); e(f'v_mov_b32 {v(T)}, 1')
        e(f's_cmp_lg_u32 {s(sW)}, 0'); e('s_cbranch_scc1 L_ln_end'); e('s_mov_b64 exec, 1')
        e(f'buffer_store_dword {v(T)}, off, {s(WS,4)}, {s(sT)} sc1'); e('s_mov_b64 exec, -1')
        p.append('L_ln_end:')
    return fix(p,'ln')

def flag_init():
    p=[]; e=p.append
    for i in range(4): e(f'v_mov_b32 {v(108+i)}, 0')
    e(f's_lshl_b32 {s(sT+5)}, {s(sW)}, 12'); e(f's_add_u32 {s(sT+5)}, {s(sT+5)}, {BF_OFF}')
    for i in range(4): e(f'buffer_store_dwordx4 {v(108,4)}, {v(L16)}, {s(WS,4)}, {s(sT+5)} offen offset:{1024*i} sc1')
    e(f's_mov_b32 {s(sT+5)}, {FLAG_OFF}'); e(f'buffer_store_dwordx4 {v(108,4)}, {v(L16)}, {s(WS,4)}, {s(sT+5)} offen sc1')
    for i in range(4): e(f'v_mov_b32 {v(112+i)}, -1')
    e(f's_lshl_b32 {s(sT+5)}, {s(sW)}, 13'); e(f's_add_u32 {s(sT+5)}, {s(sT+5)}, {MEM_OFF}'); e(f's_add_u32 {s(sT+6)}, {s(sT+5)}, 4096')
    for i in range(8): e(f'buffer_store_dwordx4 {v(112,4)}, {v(L16)}, {s(WS,4)}, {s(sT+5+(i>>2))} offen offset:{1024*(i&3)} sc1')
    e('s_waitcnt vmcnt(0)'); e('s_barrier')
    e(f'v_mov_b32 v108, 136'); e('v_mov_b32 v109, 1'); e('s_mov_b64 exec, 1'); e(f'global_store_dword v108, v109, {s(DBG,2)} sc1'); e('s_mov_b64 exec, -1')
    return fix(p,'fi')

def wstream(blocks, sRing, D=8, pf=None, lead=0):
    p=[]; e=p.append; ng=len(blocks)//4; assert len(blocks)%4==0
    VQ=[]
    def pre(gi):
        if pf and gi<ng:
            for l in pf(gi):
                e(l)
                if l.startswith('buffer'): VQ.append('p')
    def issue(gi):
        pre(gi+lead)
        for b in range(4):
            su,vo,so,_=blocks[4*gi+b]
            if su: p.extend(su)
            e(f's_add_u32 m0, {s(sRing)}, {((4*gi+b)%32)*1024}'); p.extend(so(sT+7))
            e(f'buffer_load_dwordx4 {v(vo)}, {s(SRD,4)}, {s(sT+7)} offen lds'); VQ.append(gi)
    for gi in range(lead): pre(gi)
    for gi in range(min(D,ng)): issue(gi)
    head=list(p); p.clear()
    for gi in range(ng):
        e(f's_waitcnt vmcnt({len(VQ)-1-max(k for k,t in enumerate(VQ) if t==gi)})')
        for b in range(4):
            for dst,tra,off in blocks[4*gi+b][3]: e(f'ds_read_b64_tr_b16 {dst}, {v(tra)} offset:{((4*gi+b)%32)*1024+off}')
        e('s_waitcnt lgkmcnt(0)')
        if gi+D<ng: issue(gi+D)
    return head,p

sSeg=23; sRing=24; sCnt=25
VO=4; TRA=5; TRB=6; FA=7
def wreg(m,t,ks):
    i=(m*2+t)*64+4*ks
    return ('a',i) if i<256 else ('v',128+i-256)
sHsrc=26; sBuf=27; sNext=32; sGot=33
def hdma():
    o=[f's_lshl_b32 {s(sHsrc)}, {s(sNext)}, 15', f's_lshl_b32 {s(sT)}, {s(sW)}, 13', f's_add_u32 {s(sHsrc)}, {s(sHsrc)}, {s(sT)}', f's_add_u32 {s(sHsrc)}, {s(sHsrc)}, {H_OFF}',
        f's_add_u32 m0, {s(sBuf)}, {s(sT)}', f's_add_u32 {s(sT+1)}, {s(sHsrc)}, 4096']
    o+=[f'buffer_load_dwordx4 {v(L16)}, {s(WS,4)}, {s(sHsrc)} offen offset:{1024*i} sc1 lds' for i in range(4)]
    o+=['s_add_u32 m0, m0, 4096','s_nop 0']+[f'buffer_load_dwordx4 {v(L16)}, {s(WS,4)}, {s(sT+1)} offen offset:{1024*i} sc1 lds' for i in range(4)]
    return o
def p1_setup():
    p=[]; e=p.append
    A0,A1,T0_,T1_,U0,U1,r,c_,t=[112+i for i in range(9)]
    e(f'v_lshlrev_b32 {v(t)}, 1, {v(Gv)}'); e(f'v_xor_b32 {v(t)}, {v(t)}, {v(N)}'); e(f'v_lshlrev_b32 {v(t)}, 4, {v(t)}'); e(f'v_lshl_add_u32 {v(A0)}, {v(Gv)}, 13, {v(t)}')
    e(f's_lshr_b32 {s(sT)}, {s(sW)}, 1'); e(f's_lshl_b32 {s(sT)}, {s(sT)}, 18'); e(f's_and_b32 {s(sT+1)}, {s(sW)}, 1'); e(f's_lshl_b32 {s(sT+1)}, {s(sT+1)}, 15'); e(f's_add_u32 {s(sT)}, {s(sT)}, {s(sT+1)}')
    e(f's_lshl_b32 {s(sT+1)}, {s(sHd)}, 8'); e(f's_add_u32 {s(sT)}, {s(sT)}, {s(sT+1)}'); e(f'v_add_u32 {v(A0)}, {s(sT)}, {v(A0)}'); e(f'v_xor_b32 {v(A1)}, 128, {v(A0)}')
    e(f's_lshl_b32 {s(sRing)}, {s(sW)}, 12'); e(f's_add_u32 {s(sRing)}, {s(sRing)}, 32768')
    e(f'v_lshrrev_b32 {v(r)}, 2, {v(N)}'); e(f'v_and_b32 {v(c_)}, 3, {v(N)}'); e(f'v_and_b32 {v(t)}, 1, {v(Gv)}'); e(f'v_lshl_add_u32 {v(t)}, {v(t)}, 2, {v(r)}')
    e(f's_lshl_b32 {s(sT)}, {s(sW)}, 1'); e(f'v_xor_b32 {v(t)}, {s(sT)}, {v(t)}')
    e(f'v_lshlrev_b32 {v(T0_)}, 10, {v(Gv)}'); e(f'v_lshl_add_u32 {v(T0_)}, {v(r)}, 8, {v(T0_)}'); e(f'v_lshl_add_u32 {v(T0_)}, {v(t)}, 5, {v(T0_)}'); e(f'v_lshl_add_u32 {v(T0_)}, {v(c_)}, 3, {v(T0_)}')
    e(f'v_add_u32 {v(T0_)}, 32768, {v(T0_)}'); e(f'v_xor_b32 {v(T1_)}, 32, {v(T0_)}'); e(f'v_add_u32 {v(U0)}, 65536, {v(T0_)}'); e(f'v_add_u32 {v(U1)}, 65536, {v(T1_)}')
    e(f's_mov_b32 {s(sNext)}, {s(sR)}'); e(f's_mov_b32 {s(sBuf)}, 0'); e(f's_mov_b32 {s(sGot)}, 0'); e(f'v_lshlrev_b32 {v(FA)}, 3, {v(LN)}'); e('v_mov_b32 v9, 136')
    if OPT['dw']: p+=dbg_wait(136 if OPT['dw']==1 else 128, 1, 8)+['v_mov_b32 v9, 136']
    def stream(order,tag):
        q=[]; e=q.append; VQ=[]; D=OPT['d1p']
        bt=[(m,c) for m in order for c in range(8)]
        def issue(bi):
            m,c=bt[bi]; q.extend(srd((PWK,PWV,PWQ)[m],4<<20))
            for i in range(4):
                e(f's_add_u32 m0, {s(sRing)}, {(bi%8)*16384+1024*i}'); e(f's_mov_b32 {s(sT+7)}, {(64*c+8*i)*8192}')
                e(f'buffer_load_dwordx4 {v(A1 if i&1 else A0)}, {s(SRD,4)}, {s(sT+7)} offen lds'); VQ.append(bi)
        wt=lambda x: f's_waitcnt vmcnt({min(63,len(VQ)-1-max(k for k,t_ in enumerate(VQ) if t_==x))})'
        for bi in range(D): issue(bi)
        for bi in range(24):
            m,c=bt[bi]
            e(wt(bi)); e('s_barrier')
            if bi>=1 and bi-1+8<24 and D==8: issue(bi-1+8)
            elif D<8 and bi+D<24: issue(bi+D)
            for b_ in range(4):
                for t_ in range(2):
                    pf,b0=wreg(m,t_,2*c+(b_>>1)); tra=[[T0_,T1_],[U0,U1]][(bi%8)>>2][t_]
                    e(f'ds_read_b64_tr_b16 {R(pf,b0+2*(b_&1),2)}, {v(tra)} offset:{(bi%4)*16384+b_*4096}')
            if bi==12: e(f'global_load_dwordx2 v[8:9], v9, {s(DBG,2)} sc1 ;stamp'); VQ.append('i')
            if bi==OPT['hb']:
                e(wt('i')); q.extend(verify('p'+tag,9,DBG,sSpin,sT)); e('v_cmp_eq_u32 vcc, 0, v8'); e(f's_cbranch_vccz L_p1_in{tag}'); q.extend(dbg_wait(136,1,8)); q.append(f'L_p1_in{tag}:')
                e(f's_mov_b32 {s(sT)}, {BF_OFF+BF_H}'); e(f'buffer_load_dwordx2 v[8:9], {v(FA)}, {s(WS,4)}, {s(sT)} offen sc1 ;stamp'); VQ.append('h')
            e('s_waitcnt lgkmcnt(0)')
        e('s_waitcnt vmcnt(0)')
        return q
    if OPT['alt']:
        e(f's_cmp_lg_u32 {s(sR)}, 0'); e('s_cbranch_scc1 L_p1_alt')
        p+=stream((0,1,2),'a')+['s_branch L_p1_ld','L_p1_alt:']+stream((1,0,2) if OPT['alt']==1 else (2,1,0),'b')+['L_p1_ld:']
    else: p+=stream((0,1,2),'a')
    return fix(p,'p1a')

def p1_main(sync):
    p=[]; e=p.append
    AC=16; HF=64; OUT=96; sKo=28; sVo=29; sQo=30; sFl=31
    acc=lambda m,t,mt: AC+((m*2+t)*2+mt)*4
    e('s_barrier')
    if sync:
        e('v_min_u32 v8, v8, v9'); e('v_cmp_gt_u32 vcc, 1, v8'); e('s_cbranch_vccz L_p1_hok')
        e(f's_mov_b32 {s(sT)}, {BF_OFF+BF_H}')
        pl=poll(FA,s(sT),'1',8); pl[1]=pl[1].replace('dword v8','dwordx2 v[8:9]'); pl[6:6]=['v_min_u32 v8, v8, v9']
        p+=pl+['L_p1_hok:']
    e(f's_mov_b32 {s(sSeg)}, {s(sR)}'); e(f's_mov_b32 {s(sNext)}, {s(sR)}'); e(f's_mov_b32 {s(sBuf)}, 0'); e(f's_mov_b32 {s(sCnt)}, 0')
    e(f's_lshl_b32 {s(sFl)}, {s(sHd)}, 7'); e(f's_lshl_b32 {s(sT)}, {s(sR)}, 2'); e(f's_add_u32 {s(sFl)}, {s(sFl)}, {s(sT)}'); e(f's_add_u32 {s(sFl)}, {s(sFl)}, {BF_OFF+BF_KV}')
    p+=hdma()
    for i in range(4): e(f'v_mov_b32 v{12+i}, -1')
    def flag(L_,val):
        return [f's_cmp_lg_u32 {s(sW)}, 0', f's_cbranch_scc1 {L_}', f'v_mov_b32 {v(FA)}, {val}', 's_mov_b64 exec, 1',
                f'buffer_store_dword {v(FA)}, off, {s(WS,4)}, {s(sFl)} sc1', 's_mov_b64 exec, -1', L_+':'] if sync else []
    e('s_waitcnt vmcnt(0)')
    p.append('L_p1_loop:')
    e('s_waitcnt vmcnt(2)'); e('s_barrier')
    p+=flag('L_p1_nf',s(sCnt))
    e(f's_cmp_ge_u32 {s(sSeg)}, 64'); e('s_cbranch_scc1 L_p1_end')
    e(f'v_add_u32 {v(VO)}, {s(sBuf)}, {v(L16)}')
    e(f's_xor_b32 {s(sBuf)}, {s(sBuf)}, 32768'); e(f's_add_u32 {s(sNext)}, {s(sSeg)}, {NR}')
    e(f's_cmp_ge_u32 {s(sNext)}, 64'); e('s_cbranch_scc1 L_p1_nd')
    p+=hdma()
    p.append('L_p1_nd:')
    hr=lambda ks,mt: f'ds_read_b128 {v(HF+(ks%4)*8+4*mt,4)}, {v(VO)} offset:{(mt*16+(ks%16))*1024}'
    sc_=[f's_lshl_b32 {s(sT)}, {s(sHd)}, 6', f's_add_u32 {s(sT)}, {s(sT)}, {s(sSeg)}',
        f's_lshl_b32 {s(sT+1)}, {s(sW)}, 10', f's_lshl_b32 {s(sKo)}, {s(sT)}, 14', f's_add_u32 {s(sVo)}, {s(sKo)}, {KV_OFF+8192}',
        f's_add_u32 {s(sKo)}, {s(sKo)}, {s(sT+1)}', f's_add_u32 {s(sKo)}, {s(sKo)}, {KV_OFF}', f's_add_u32 {s(sT+2)}, {s(sKo)}, 4096',
        f's_lshl_b32 {s(sQo)}, {s(sT)}, 13', f's_add_u32 {s(sQo)}, {s(sQo)}, {s(sT+1)}', f's_add_u32 {s(sQo)}, {s(sQo)}, {Q_OFF}', f's_add_u32 {s(sT+3)}, {s(sQo)}, 4096',
        f's_lshl_b32 {s(sT+1)}, {s(sW)}, 11', f's_add_u32 {s(sVo)}, {s(sVo)}, {s(sT+1)}',
        f's_lshl_b32 {s(sT)}, {s(sT)}, 2', f's_add_u32 {s(sT)}, {s(sT)}, {s(sW)}', f's_lshl_b32 {s(sT)}, {s(sT)}, 10', f's_add_u32 {s(sT)}, {s(sT)}, {KVM_OFF}',
        f'buffer_store_dwordx4 v[12:15], {v(L16)}, {s(WS,4)}, {s(sT)} offen sc1']
    def outk(m,sos,k):
        o=[]
        for mt in range(2):
            o+=[f'v_cvt_pk_bf16_f32 {v(OUT+4*(k+mt)+r)}, {v(acc(m,0,mt)+r)}, {v(acc(m,1,mt)+r)}' for r in range(4)]
            o+=[f'buffer_store_dwordx4 {v(OUT+4*(k+mt),4)}, {v(L16)}, {s(WS,4)}, {s(sos[mt])} offen sc1']
        return o
    kvout=outk(0,(sKo,sT+2),0)
    for t in range(2):
        kvout+=[f'v_cvt_pk_bf16_f32 {v(OUT+8+4*t+2*mt+j)}, {v(acc(1,t,mt)+2*j)}, {v(acc(1,t,mt)+2*j+1)}' for mt in range(2) for j in range(2)]
        kvout+=[f'buffer_store_dwordx4 {v(OUT+8+4*t,4)}, {v(L16)}, {s(WS,4)}, {s(sVo)} offen offset:{1024*t} sc1']
    for ks in range(2):
        for mt in range(2): e(hr(ks,mt))
    for kk in range(32):
        ks=kk%16; mm=[]
        for mt in range(2):
            hf=v(HF+(ks%4)*8+4*mt,4)
            for m in ((0,1) if kk<16 else (2,)):
                for t in range(2):
                    pf,b=wreg(m,t,ks); w_=R(pf,b,4); c_=v(acc(m,t,mt),4)
                    a_,b_=(hf,w_) if m==1 else (w_,hf)
                    mm.append([f'{MF32} {c_}, {a_}, {b_}, '+(c_ if ks else '0')])
        if kk+2<32: mm[0].append(hr(kk+2,0)); mm[2].append(hr(kk+2,1))
        if kk<16:
            for j in (4,5):
                if sc_: mm[j].append(sc_.pop(0))
        elif kk>=18:
            for j in (1,1,3,3):
                if kvout: mm[j].append(kvout.pop(0))
        p+=sum(mm,[])
    assert not sc_ and not kvout
    p+=outk(2,(sQo,sT+3),4)
    if OPT.get('dp1'): e(f's_sleep {OPT["dp1"]}')
    e(f's_add_u32 {s(sSeg)}, {s(sSeg)}, {NR}'); e(f's_add_u32 {s(sCnt)}, {s(sCnt)}, 1'); e('s_branch L_p1_loop')
    p.append('L_p1_end:')
    e('s_waitcnt vmcnt(0)'); e('s_barrier'); p+=flag('L_p1_nf2','33')
    r=fix(p,'p1'); i=r.index('L_p1_loop:'); j=r.index('L_p1_end:'); check(r[:j]+r[i:],'p1loop')
    return r

sGrp=21; sJ=22; sGB=26; sEp=27; sFw=28; sFr=29; sKq=30; sCq=31; sM=32; sEh=33; sScale=34; sLg=35; sFast=36; sQf=37; sMf=38
WO=lambda ks: a(4*ks,4)
W1=lambda t,ks: a(128+64*t+4*ks,4)
W2=lambda ks: v(200+4*ks,4)
MODV=168
IDX=4; KW=5; FA2=6; HRD=7; HSR=8; PSA=9; MSK=10; ZR=12; NEG=152; HRD1=151; L8=149
L_PF=81920
def qkv_fetch(sync, sSg):
    o=[]
    if sync:
        o+=[f's_and_b32 {s(sT)}, {s(sSg)}, 1', f's_lshl_b32 {s(sT)}, {s(sT)}, 2', f's_add_u32 {s(sT)}, {s(sT)}, {s(sQf)}', f's_lshr_b32 {s(sT+1)}, {s(sSg)}, 1', f's_add_u32 {s(sT+1)}, {s(sT+1)}, 2']
        o+=poll(ZR+1,s(sT),s(sT+1),14,0,2)
    o+=[f's_lshl_b32 {s(sT)}, {s(sJ)}, 6', f's_add_u32 {s(sT)}, {s(sT)}, {s(sSg)}', f's_lshl_b32 {s(sT+1)}, {s(sT)}, 13', f's_add_u32 {s(sT+1)}, {s(sT+1)}, {Q_OFF}',
        f's_lshl_b32 {s(sT)}, {s(sT)}, 14', f's_lshl_b32 {s(sT+2)}, {s(sM)}, 13', f's_add_u32 {s(sT)}, {s(sT)}, {s(sT+2)}', f's_add_u32 {s(sT)}, {s(sT)}, {KV_OFF}',
        f's_cmp_eq_u32 {s(sW)}, 1', f's_cselect_b32 {s(sT)}, {s(sT+1)}, {s(sT)}', f's_add_u32 {s(sT+1)}, {s(sT)}, 4096',
        f's_lshl_b32 {s(sT+2)}, {s(sW)}, 13', f's_add_u32 m0, {s(sT+2)}, {L_PF-8192}', 's_nop 0']
    o+=[f'buffer_load_dwordx4 {v(L16)}, {s(WS,4)}, {s(sT)} offen offset:{1024*i} sc1 lds' for i in range(4)]
    o+=['s_add_u32 m0, m0, 4096','s_nop 0']+[f'buffer_load_dwordx4 {v(L16)}, {s(WS,4)}, {s(sT+1)} offen offset:{1024*i} sc1 lds' for i in range(4)]
    return o
def p2_setup(sync):
    p=[]; e=p.append
    e('s_barrier')
    e(f's_lshr_b32 {s(sGrp)}, {s(sB)}, 5'); e(f's_add_u32 {s(sGrp)}, {s(sGrp)}, 5'); e(f's_cmp_ge_u32 {s(sGrp)}, 7'); e(f's_cselect_b32 {s(sT)}, 7, 0'); e(f's_sub_u32 {s(sGrp)}, {s(sGrp)}, {s(sT)}'); e(f's_and_b32 {s(sJ)}, {s(sB)}, 31')
    if sync: p+=dbg_wait(136,1,16)
    e(f's_lshl_b32 {s(sGB)}, {s(sGrp)}, 20'); e(f's_add_u32 {s(sGB)}, {s(sGB)}, {G_OFF}')
    e(f's_lshr_b32 {s(sKq)}, {s(sJ)}, 3'); e(f's_and_b32 {s(sCq)}, {s(sJ)}, 7'); e(f's_and_b32 {s(sM)}, {s(sW)}, 1'); e(f's_lshr_b32 {s(sEh)}, {s(sW)}, 1')
    e(f's_lshl_b32 {s(sFr)}, {s(sGrp)}, 8'); e(f's_add_u32 {s(sFr)}, {s(sFr)}, {BF_OFF+BF_GB}'); e(f's_lshl_b32 {s(sT)}, {s(sJ)}, 2'); e(f's_add_u32 {s(sFw)}, {s(sFr)}, {s(sT)}')
    e(f's_mov_b32 {s(sEp)}, 0'); e(f's_mov_b32 {s(sScale)}, {hex(f2u(128**-0.5))}'); e(f's_mov_b32 {s(sLg)}, {hex(f2u(math.log2(math.e)))}')
    e(f's_lshl_b32 {s(sRing)}, {s(sW)}, 15'); e(f's_add_u32 {s(sRing)}, {s(sRing)}, 32768')
    e(f's_lshl_b32 {s(sMf)}, {s(sJ)}, 7')
    e(f's_add_u32 {s(sQf)}, {s(sMf)}, {BF_OFF+BF_KV}'); e(f's_add_u32 {s(sMf)}, {s(sMf)}, {BF_OFF+BF_KVM}')
    for i in range(4): e(f'v_mov_b32 {v(NEG+i)}, -1')
    e(f's_lshl_b32 {s(sT)}, {s(sJ)}, 13'); e(f's_add_u32 {s(sT)}, {s(sT)}, {s(sGB)}'); e(f's_lshl_b32 {s(sT+1)}, {s(sW)}, 11'); e(f's_add_u32 {s(sT)}, {s(sT)}, {s(sT+1)}')
    for off in (G_P1,G_P2):
        e(f's_add_u32 {s(sT+1)}, {s(sT)}, {off}')
        for i in range(2): e(f'buffer_store_dwordx4 {v(NEG,4)}, {v(L16)}, {s(WS,4)}, {s(sT+1)} offen offset:{1024*i} sc1')
    e('s_waitcnt vmcnt(0)'); e('s_barrier')
    e(f's_getreg_b32 {s(sFast)}, hwreg(HW_REG_XCC_ID)'); e(f's_and_b32 {s(sFast)}, {s(sFast)}, 7'); e(f's_add_u32 {s(sFast)}, {s(sFast)}, 1')
    e(f'v_mov_b32 v16, {s(sFast)}'); e('s_mov_b64 exec, 1'); e(f'buffer_store_dword v16, off, {s(WS,4)}, {s(sFw)} offset:{BF_XC-BF_GB} sc1'); e('s_mov_b64 exec, -1')
    t1,t2,r,c_,g1=16,17,18,19,20
    e(f'v_and_b32 {v(t1)}, 1, {v(LN)}'); e(f'v_mul_u32_u24 {v(t1)}, 0xaaaa, {v(t1)}'); e(f'v_add_u32 {v(IDX)}, 0x4444, {v(t1)}')
    e(f'v_bfe_u32 {v(t1)}, {v(N)}, 1, 2'); e(f'v_lshlrev_b32 {v(KW)}, 2, {v(t1)}'); e(f'v_and_b32 {v(t1)}, 1, {v(N)}'); e(f'v_lshl_add_u32 {v(KW)}, {v(t1)}, 4, {v(KW)}')
    e(f'v_lshl_add_u32 {v(KW)}, {v(Gv)}, 6, {v(KW)}'); e(f'v_lshrrev_b32 {v(t1)}, 3, {v(N)}'); e(f'v_lshl_add_u32 {v(KW)}, {v(t1)}, 8, {v(KW)}')
    e(f's_lshl_b32 {s(sT)}, {s(sW)}, 9'); e(f'v_add_u32 {v(KW)}, {s(sT)}, {v(KW)}')
    e(f'v_and_b32 {v(FA2)}, 31, {v(LN)}'); e(f'v_lshlrev_b32 {v(FA2)}, 2, {v(FA2)}')
    e(f'v_lshrrev_b32 {v(t1)}, 1, {v(N)}'); e(f'v_xor_b32 {v(t1)}, {v(t1)}, {v(Gv)}'); e(f'v_lshlrev_b32 {v(t1)}, 4, {v(t1)}'); e(f'v_lshl_add_u32 {v(HRD)}, {v(N)}, 7, {v(t1)}')
    e(f's_lshl_b32 {s(sT)}, {s(sM)}, 14'); e(f'v_add_u32 {v(HRD)}, {s(sT)}, {v(HRD)}'); e(f'v_xor_b32 {v(HRD1)}, 64, {v(HRD)}')
    e(f'v_and_b32 {v(c_)}, 3, {v(LN)}'); e(f'v_and_b32 {v(t1)}, 7, {v(LN)}'); e(f'v_xor_b32 {v(t1)}, {v(t1)}, {v(Gv)}'); e(f'v_lshlrev_b32 {v(t1)}, 4, {v(t1)}')
    e(f'v_lshrrev_b32 {v(t2)}, 3, {v(LN)}'); e(f'v_lshl_add_u32 {v(HSR)}, {v(t2)}, 10, {v(t1)}'); e(f's_lshl_b32 {s(sT)}, {s(sM)}, 6'); e(f'v_xor_b32 {v(HSR)}, {s(sT)}, {v(HSR)}')
    e(f'v_lshlrev_b32 {v(PSA)}, 15, {v(Gv)}'); e(f'v_lshl_add_u32 {v(PSA)}, {v(N)}, 2, {v(PSA)}')
    e(f's_lshl_b32 {s(sT)}, {s(sJ)}, 8'); e(f's_lshl_b32 {s(sT+1)}, {s(sW)}, 6'); e(f's_add_u32 {s(sT)}, {s(sT)}, {s(sT+1)}'); e(f'v_add_u32 {v(PSA)}, {s(sT)}, {v(PSA)}')
    e(f'v_lshlrev_b32 {v(t1)}, 2, {v(Gv)}'); e(f'v_sub_u32 {v(MSK)}, {v(N)}, {v(t1)}')
    e(f'v_mov_b32 {v(ZR+1)}, 0')
    A64,B0,B1,A32,C0,C1,A32b=24,25,26,27,28,29,30
    e(f'v_lshrrev_b32 {v(r)}, 2, {v(N)}'); e(f'v_and_b32 {v(g1)}, 1, {v(Gv)}')
    e(f'v_lshlrev_b32 {v(B0)}, 8, {v(Gv)}'); e(f'v_lshl_add_u32 {v(B0)}, {v(c_)}, 3, {v(B0)}'); e(f'v_add_u32 {v(B0)}, {s(sRing)}, {v(B0)}')
    e(f'v_lshl_add_u32 {v(C0)}, {v(r)}, 5, {v(B0)}'); e(f'v_lshl_add_u32 {v(C0)}, {v(g1)}, 7, {v(C0)}'); e(f'v_xor_b32 {v(C1)}, 128, {v(C0)}')
    e(f'v_lshl_add_u32 {v(B0)}, {v(r)}, 6, {v(B0)}'); e(f'v_lshl_add_u32 {v(B0)}, {v(g1)}, 5, {v(B0)}'); e(f'v_xor_b32 {v(B1)}, 32, {v(B0)}')
    e(f'v_lshlrev_b32 {v(t1)}, 1, {v(g1)}'); e(f'v_xor_b32 {v(t1)}, {v(t1)}, {v(c_)}'); e(f'v_lshlrev_b32 {v(t1)}, 4, {v(t1)}')
    e(f'v_lshl_add_u32 {v(A64)}, {v(Gv)}, 3, {v(r)}'); e(f'v_mul_u32_u24 {v(A64)}, 3584, {v(A64)}'); e(f'v_add_u32 {v(A64)}, {v(A64)}, {v(t1)}')
    e(f's_min_u32 {s(sT)}, {s(sJ)}, 27'); e(f's_lshl_b32 {s(sT)}, {s(sT)}, 7'); e(f's_lshl_b32 {s(sT+1)}, {s(sEh)}, 6'); e(f's_add_u32 {s(sT)}, {s(sT)}, {s(sT+1)}'); e(f'v_add_u32 {v(A64)}, {s(sT)}, {v(A64)}')
    e(f'v_lshrrev_b32 {v(t1)}, 3, {v(N)}'); e(f'v_xor_b32 {v(t1)}, {v(t1)}, {v(g1)}'); e(f'v_bfe_u32 {v(t2)}, {v(N)}, 1, 2')
    e(f'v_lshl_add_u32 {v(t2)}, {v(t1)}, 4, {v(t2)}'); e(f'v_lshl_add_u32 {v(t2)}, {v(Gv)}, 2, {v(t2)}'); e(f'v_and_b32 {v(t1)}, 1, {v(N)}'); e(f'v_lshlrev_b32 {v(t1)}, 4, {v(t1)}')
    e(f'v_lshl_add_u32 {v(A32)}, {v(t2)}, 10, {v(t1)}')
    e(f's_lshl_b32 {s(sT)}, {s(sCq)}, 7'); e(f's_lshl_b32 {s(sT+1)}, {s(sW)}, 5'); e(f's_add_u32 {s(sT)}, {s(sT)}, {s(sT+1)}')
    e(f's_mul_i32 {s(sT+1)}, {s(sKq)}, {448*1024}'); e(f's_add_u32 {s(sT+1)}, {s(sT+1)}, {s(sT)}'); e(f'v_add_u32 {v(A32b)}, {s(sT+1)}, {v(A32)}')
    e(f's_lshl_b32 {s(sT+1)}, {s(sKq)}, 20'); e(f's_add_u32 {s(sT+1)}, {s(sT+1)}, {s(sT)}'); e(f'v_add_u32 {v(A32)}, {s(sT+1)}, {v(A32)}')
    blocks=[]
    mv=lambda o: (lambda reg: [f's_mov_b32 {s(reg)}, {o}'])
    for ks in range(32): blocks.append((srd(PWO,4<<20) if ks%4==0 else None, A32, mv(ks*32768), [(a(4*ks,2),C0,0),(a(4*ks+2,2),C1,0)]))
    for ks in range(16):
        for jh in range(2): blocks.append((srd(PW1,512*3584) if ks%2==0 and jh==0 else None, A64, mv((32*ks+4*jh)*3584), [(a(128+4*ks+2*jh,2),B0,0),(a(192+4*ks+2*jh,2),B1,0)]))
    for ks in range(16):
        kk=min(ks,13); blocks.append((srd(PW2,1792*1024) if ks%4==0 else None, A32b, mv(kk*32768), [(v(200+4*ks,2),C0,0),(v(202+4*ks,2),C1,0)] if ks<14 else []))
    head,rest=wstream(blocks,sRing,OPT['d2'])
    if OPT['dl']:
        e(f'v_mov_b32 v17, 0'); p+=poll(17,s(sQf),str(OPT['dl']),16)
    p+=head+rest
    if sync: p+=dbg_wait(132,64,16)
    e(f's_mov_b32 {s(sT)}, {MOD_OFF+2048}')
    e(f'v_lshlrev_b32 {v(L8)}, 3, {v(LN)}')
    for i in range(8): e(f'buffer_load_dwordx2 {v(16+2*i,2)}, {v(L8)}, {s(WS,4)}, {s(sT)} offen offset:{512*i} sc1')
    for i in range(16): p+=unp(MODV+2*i,16+i)
    for i in range(16,24): e(f'v_add_f32 {v(MODV+i)}, 1.0, {v(MODV+i)}')
    for i in range(16,24,2): p+=rnd(MODV+i,MODV+i+1,16)
    p+=poll(FA2,s(sFr),'1',16,BF_XC-BF_GB)
    e(f'v_cmp_ne_u32 vcc, {s(sFast)}, v16')
    e(f's_cmp_ge_u32 {s(sGrp)}, 5'); e(f's_cselect_b32 {s(sT)}, 38, 0'); e(f's_add_u32 {s(sSeg)}, {s(sGrp)}, {s(sT)}')
    e(f's_lshl_b32 {s(sT)}, {s(sJ)}, 15'); e(f's_lshl_b32 {s(sT+1)}, {s(sW)}, 13'); e(f's_add_u32 {s(sT)}, {s(sT)}, {s(sT+1)}'); e(f's_add_u32 {s(sT)}, {s(sT)}, {s(sGB)}'); e(f's_add_u32 {s(sT+1)}, {s(sT)}, 4096')
    for i in range(8): e(f'buffer_load_dwordx4 v[20:23], {v(L16)}, {s(WS,4)}, {s(sT+(i>>2))} offen offset:{1024*(i&3)} sc1')
    e(f's_mov_b64 {s(sT+4,2)}, vcc'); e('s_barrier')
    e(f's_cmp_eq_u32 {s(sW)}, 0'); e('s_cbranch_scc1 L_p2_nf'); p+=qkv_fetch(sync,sSeg); p.append('L_p2_nf:')
    e(f's_mov_b64 vcc, {s(sT+4,2)}')
    e('s_waitcnt vmcnt(0)')
    p+=srd(PX,2048*1024)
    p+=STAMP(7,160)
    e('s_barrier')
    e('s_cbranch_vccnz L_p2_S')
    return fix(p,'p2s')

def p2_loop(mode, sync):
    sc=' sc1' if mode=='S' else ''
    L=f'L_p2_{mode}'
    p=[L+':']; e=p.append
    nb=[0]
    def gbar():
        nb[0]+=1; k=f'{L}_g{nb[0]}'
        return ['s_waitcnt vmcnt(0)','s_barrier', f's_add_u32 {s(sEp)}, {s(sEp)}, 1', f's_cmp_lg_u32 {s(sW)}, 0', f's_cbranch_scc1 {k}',
                f'v_mov_b32 v14, {s(sEp)}','s_mov_b64 exec, 1', f'buffer_store_dword v14, off, {s(WS,4)}, {s(sFw)}{sc}','s_mov_b64 exec, -1','s_nop 15']+pollp(FA2,s(sFr),s(sEp),PR)+STAMP(8+nb[0],128)+[k+':','s_barrier']
    QF=16; KF=32; VF=64; KV=80; S0=92; OA=104; T=120; MX=121; SUM=122; PXr=124; KM=128; XR=136; X1=140; PR=150
    e(f's_lshl_b32 {s(sT)}, {s(sSeg)}, 5'); e(f's_add_u32 {s(sT)}, {s(sT)}, {s(sJ)}'); e(f's_lshl_b32 {s(sT+6)}, {s(sT)}, 10')
    e(f's_lshl_b32 {s(sT)}, {s(sJ)}, 6'); e(f's_add_u32 {s(sT)}, {s(sT)}, {s(sSeg)}'); e(f's_lshl_b32 {s(sT+5)}, {s(sT)}, 12'); e(f's_add_u32 {s(sT+5)}, {s(sT+5)}, {KVM_OFF}')
    for i in range(2): e(f'buffer_load_dwordx2 {v(XR+2*i,2)}, {v(L8)}, {s(SRD,4)}, {s(sT+6)} offen offset:{512*i}')
    e(f's_lshl_b32 {s(sT)}, {s(sM)}, 12'); e(f's_add_u32 {s(sT)}, {s(sT)}, {L_PF}'); e(f'v_add_u32 {v(T)}, {s(sT)}, {v(L16)}')
    for i in range(4): e(f'ds_read_b128 {v(QF+4*i,4)}, {v(T)} offset:{1024*i}')
    e(f'v_add_u32 {v(T)}, {L_PF+8192}, {v(L16)}')
    for i in range(8): e(f'ds_read_b128 {v(KF+4*i,4)}, {v(T)} offset:{1024*i}')
    e(f's_lshl_b32 {s(sT)}, {s(sEh)}, 12'); e(f'v_add_u32 {v(T)}, {s(sT)}, {v(T)}')
    for i in range(4): e(f'ds_read_b128 {v(VF+4*i,4)}, {v(T)} offset:{8192+1024*i}')
    for m in range(2):
        for ks in range(4): e(f'{MF32} {v(S0+4*m,4)}, {v(KF+16*m+4*ks,4)}, {v(QF+4*ks,4)}, '+(v(S0+4*m,4) if ks else '0'))
    e(f'v_mov_b64 {v(S0+8,2)}, 0'); e(f'v_mov_b64 {v(S0+10,2)}, 0')
    def sround(a_): return rnd(a_,a_+1,T)+[f'v_mul_f32 {v(a_)}, {s(sScale)}, {v(a_)}', f'v_mul_f32 {v(a_+1)}, {s(sScale)}, {v(a_+1)}']+rnd(a_,a_+1,T)
    for i in range(0,8,2): p+=sround(S0+i)
    e(f's_lshl_b32 {s(sT+1)}, {s(sM)}, 4'); e(f'v_add_u32 {v(T)}, {s(sT+1)}, {v(MSK)}'); e(f'v_mov_b32 {v(SUM)}, {hex(f2u(-999292928.0))}')
    for i in range(8):
        e(f'v_cmp_le_i32 vcc, {16*(i>>2)+(i&3)}, {v(T)}'); e(f'v_cndmask_b32 {v(S0+i)}, {v(SUM)}, {v(S0+i)}, vcc')
    e(f'v_max3_f32 {v(MX)}, {v(S0)}, {v(S0+1)}, {v(S0+2)}'); e(f'v_max3_f32 {v(MX)}, {v(MX)}, {v(S0+3)}, {v(S0+4)}'); e(f'v_max3_f32 {v(MX)}, {v(MX)}, {v(S0+5)}, {v(S0+6)}'); e(f'v_max_f32 {v(MX)}, {v(MX)}, {v(S0+7)}')
    p+=xg('v_max_f32',MX,T)
    for i in range(8): e(f'v_sub_f32 {v(S0+i)}, {v(S0+i)}, {v(MX)}')
    for i in range(8): e(f'v_mul_f32 {v(S0+i)}, {s(sLg)}, {v(S0+i)}')
    for i in range(8): e(f'v_exp_f32 {v(S0+i)}, {v(S0+i)}')
    e(f'v_add_f32 {v(SUM)}, {v(S0)}, {v(S0+1)}')
    for i in range(2,8): e(f'v_add_f32 {v(SUM)}, {v(SUM)}, {v(S0+i)}')
    if sync:
        e(f's_cmp_lg_u32 {s(sW)}, 0'); e(f's_cbranch_scc1 {L}_kw'); e(f's_max_u32 {s(sT+2)}, {s(sSeg)}, 1'); e(f's_sub_u32 {s(sT+2)}, {s(sT+2)}, 1'); e(f's_min_u32 {s(sT+2)}, {s(sT+2)}, 61')
        p+=poll(ZR+1,s(sMf),s(sT+2),PR,0,OPT['lp'])+[f'{L}_kw:','s_barrier']
    e(f's_lshl_b32 {s(sT+1)}, {s(sEh)}, 11'); e(f's_add_u32 {s(sT+1)}, {s(sT+1)}, {s(sT+5)}'); e(f's_lshl_b32 {s(sT+2)}, {s(sM)}, 2')
    p.append(f'{L}_kd:')
    for i in range(2): e(f'buffer_load_dwordx4 {v(KV+4*i,4)}, {v(L16)}, {s(WS,4)}, {s(sT+1)} offen offset:{1024*i} sc1')
    e(f's_add_u32 {s(sSpin)}, {s(sSpin)}, 1'); e(f's_cmp_gt_u32 {s(sSpin)}, {LIM}')
    e(f'v_max3_u32 {v(T)}, {v(KV)}, {v(KV+1)}, {v(KV+2)}'); e(f'v_max3_u32 {v(T)}, {v(T)}, {v(KV+3)}, {v(KV+4)}'); e(f'v_max3_u32 {v(T)}, {v(T)}, {v(KV+5)}, {v(KV+6)}'); e(f'v_max_u32 {v(T)}, {v(T)}, {v(KV+7)}')
    e(f'v_cmp_eq_u32 vcc, -1, {v(T)}'); e(f's_cbranch_scc1 {L}_kx')
    if OPT['ks']:
        e(f's_cbranch_vccz {L}_kx'); e(f's_cmp_ge_u32 {s(sSeg)}, 62'); e(f's_cbranch_scc1 {L}_kd'); e(f's_sleep {OPT["ks"]}'); e(f's_branch {L}_kd')
    else: e(f's_cbranch_vccnz {L}_kd')
    p.append(f'{L}_kx:')
    p+=STAMP(8,128)
    e(f's_cmp_eq_u32 {s(sM)}, 1'); e('s_cselect_b64 vcc, -1, 0')
    e(f'v_cndmask_b32 {v(KV+9)}, {v(KV+1)}, {v(KV+5)}, vcc'); e(f'v_cndmask_b32 {v(KV+11)}, {v(KV+3)}, {v(KV+7)}, vcc')
    e(f'ds_write2_b32 {v(KW)}, {v(KV+9)}, {v(KV+11)} offset0:0 offset1:8'); e('s_waitcnt lgkmcnt(0)'); e('s_barrier')
    for k in range(2): e(f'ds_read_b128 {v(KM+4*k,4)}, {v(L16)} offset:{1024*k}')
    for k in range(2): e(f'{SMF} {v(S0+8,4)}, {v(KM+4*k,4)}, {v(QF+8*k,8)}, {v(IDX)}')
    e(f'v_add_f32 {v(S0+8)}, {v(S0+8)}, {v(S0+9)}'); e(f'v_add_f32 {v(S0+9)}, {v(S0+10)}, {v(S0+11)}')
    p+=sround(S0+8)
    AL=S0+10; M2=S0+11
    e(f'v_max3_f32 {v(M2)}, {v(MX)}, {v(S0+8)}, {v(S0+9)}'); p+=xg('v_max_f32',M2,T)
    e(f'v_sub_f32 {v(S0+8)}, {v(S0+8)}, {v(M2)}'); e(f'v_sub_f32 {v(S0+9)}, {v(S0+9)}, {v(M2)}'); e(f'v_sub_f32 {v(AL)}, {v(MX)}, {v(M2)}')
    for i in range(8,11): e(f'v_mul_f32 {v(S0+i)}, {s(sLg)}, {v(S0+i)}')
    for i in range(8,11): e(f'v_exp_f32 {v(S0+i)}, {v(S0+i)}')
    e(f'v_add_f32 {v(M2)}, {v(S0+8)}, {v(S0+9)}'); e(f'v_fmac_f32 {v(M2)}, {v(AL)}, {v(SUM)}')
    p+=xg('v_add_f32',M2,T); e(f'v_rcp_f32 {v(M2)}, {v(M2)}')
    e(f'v_mul_f32 {v(AL)}, {v(AL)}, {v(M2)}')
    e(f'v_pk_mul_f32 {v(S0+8,2)}, {v(S0+8,2)}, {v(AL,2)} op_sel:[0,1]')
    for i in range(0,8,2): e(f'v_pk_mul_f32 {v(S0+i,2)}, {v(S0+i,2)}, {v(AL,2)} op_sel_hi:[1,0]')
    for i in range(4): e(f'v_cvt_pk_bf16_f32 {v(PXr+i)}, {v(S0+2*i)}, {v(S0+2*i+1)}')
    e(f'v_cvt_pk_bf16_f32 {v(ZR)}, {v(S0+8)}, {v(S0+9)}')
    for i in range(4): e(f'{MF32} {v(OA+4*i,4)}, {v(VF+4*i,4)}, {v(PXr,4)}, 0')
    for i in range(4): e(f'{MF16} {v(OA+4*i,4)}, {v(KV+2*i,2)}, {v(ZR,2)}, {v(OA+4*i,4)}')
    e(f's_lshl_b32 {s(sT+1)}, {s(sJ)}, 13'); e(f's_lshl_b32 {s(sT+2)}, {s(sEh)}, 12'); e(f's_add_u32 {s(sT+1)}, {s(sT+1)}, {s(sT+2)}'); e(f's_lshl_b32 {s(sT+2)}, {s(sM)}, 10')
    e(f's_add_u32 {s(sT+1)}, {s(sT+1)}, {s(sT+2)}'); e(f's_add_u32 {s(sT+1)}, {s(sT+1)}, {s(sGB)}')
    for k in range(2):
        for i in range(4): e(f'v_cvt_pk_bf16_f32 {v(QF+4*k+i)}, {v(OA+8*k+2*i)}, {v(OA+8*k+2*i+1)}')
        e(f'buffer_store_dwordx4 {v(QF+4*k,4)}, {v(L16)}, {s(WS,4)}, {s(sT+1)} offen offset:{G_O+2048*k}{sc}')
    p+=gbar()
    def gemm_part(src_lines, nks, wf, dst_off):
        o=list(src_lines)
        nfr=2*nks; nr=nfr//4; A_=OPT['ga']; S_=OPT['gs']
        o+=[f's_lshl_b32 {s(sT+2)}, {s(sW)}, 10', f's_add_u32 {s(sT+1)}, {s(sT+1)}, {s(sT+2)}', f's_add_u32 m0, {s(sT+2)}, 4096', f'v_add_u32 {v(T)}, 4096, {v(L16)}']
        dma=[f'buffer_load_dwordx4 {v(L16)}, {s(WS,4)}, {s(sT+1)} offen sc1 lds', 's_add_u32 m0, m0, 4096', f's_add_u32 {s(sT+1)}, {s(sT+1)}, 4096']
        iss=0
        for r in range(min(A_,nr)):
            o+=dma; iss+=1
            if r%2==1: o.append('s_barrier')
        def rd(f):
            x=[]
            if f%(4*S_)==0: x=[f's_waitcnt vmcnt({iss-min(nr,f//4+S_)})','s_barrier']; assert iss>=min(nr,f//4+S_)
            return x+[f'ds_read_b128 {v(QF+4*(f%8),4)}, {v(T)} offset:{1024*f}']
        for f in range(4): o+=rd(f)
        for f in range(nfr):
            ac=v(OA+4*(f&1),4)
            o.append(f'{MF32} {ac}, {v(QF+4*(f%8),4)}, {wf(f>>1)}, '+(ac if f>1 else '0'))
            if f+4<nfr: o+=rd(f+4)
            if f%4==1 and iss<nr: o+=dma; iss+=1
        o+=STAMP(16 if nks==32 else 19,128)
        for mt in range(2):
            for r in range(4):
                o+=[f's_add_u32 {s(sT+2)}, {s(sGB)}, {dst_off+(16*mt+r)*8192}', f'buffer_store_dword {v(OA+4*mt+r)}, {v(PSA)}, {s(WS,4)}, {s(sT+2)} offen{sc}']
        return o
    p+=gemm_part([f's_lshl_b32 {s(sT+1)}, {s(sKq)}, 16', f's_add_u32 {s(sT+1)}, {s(sT+1)}, {s(sGB)}'],32,WO,G_P1)
    nb[0]+=1
    def rowsum(off,tag):
        k_=f'{L}_{tag}'
        o=[f's_lshl_b32 {s(sT+1)}, {s(sJ)}, 13', f's_add_u32 {s(sT+1)}, {s(sT+1)}, {s(sGB)}', f's_add_u32 {s(sT+1)}, {s(sT+1)}, {off}', f's_add_u32 {s(sT+2)}, {s(sT+1)}, 4096']+([f's_sleep {OPT["rd"]}'] if OPT['rd'] else [])+[k_+':']
        for k in range(4):
            for hf in range(2): o.append(f'buffer_load_dwordx4 {v(QF+8*k+4*hf,4)}, {v(L16)}, {s(WS,4)}, {s(sT+1+(k>>1))} offen offset:{2048*(k&1)+1024*hf} sc1')
        o+=[f's_add_u32 {s(sSpin)}, {s(sSpin)}, 4', f's_cmp_gt_u32 {s(sSpin)}, {LIM}']
        for k in range(1,4):
            for i in range(0,8,2): o.append(f'v_pk_add_f32 {v(QF+i,2)}, {v(QF+i,2)}, {v(QF+8*k+i,2)}')
        o+=[f'v_pk_add_f32 {v(QF+8,2)}, {v(QF,2)}, {v(QF+2,2)}', f'v_pk_add_f32 {v(QF+10,2)}, {v(QF+4,2)}, {v(QF+6,2)}', f'v_pk_add_f32 {v(QF+8,2)}, {v(QF+8,2)}, {v(QF+10,2)}',
            f'v_cmp_u_f32 vcc, {v(QF+8)}, {v(QF+9)}', f's_cbranch_scc1 {k_}x', f's_cbranch_vccnz {k_}', k_+'x:']
        for i in range(0,8,2): o+=rnd(QF+i,QF+i+1,T)
        return o
    repoison=[f'buffer_store_dwordx4 {v(NEG,4)}, {v(L16)}, {s(WS,4)}, {s(sT+1+(i>>2))} offen offset:{1024*(i&3)}{sc}' for i in range(8)]
    e(f's_cmp_lt_u32 {s(sSeg)}, 38'); e(f's_cselect_b32 {s(sCnt)}, 5, 7'); e(f's_add_u32 {s(sCnt)}, {s(sSeg)}, {s(sCnt)}')
    e(f's_cmp_eq_u32 {s(sW)}, 0'); e(f's_cbranch_scc1 {L}_n0')
    e('s_barrier'); e(f's_cmp_ge_u32 {s(sCnt)}, 64'); e(f's_cbranch_scc1 {L}_n1')
    p+=qkv_fetch(sync,sCnt); e(f's_branch {L}_n1')
    p.append(f'{L}_n0:')
    for i in range(4): p+=unp(X1+2*i,XR+i)
    p+=rowsum(G_P1,'ra')+['s_barrier']+STAMP(10,128)
    for i in range(0,8,2): e(f'v_pk_mul_f32 {v(QF+i,2)}, {v(QF+i,2)}, {v(MODV+i,2)}')
    for i in range(0,8,2): p+=rnd(QF+i,QF+i+1,T)
    for i in range(0,8,2): e(f'v_pk_add_f32 {v(X1+i,2)}, {v(X1+i,2)}, {v(QF+i,2)}')
    for i in range(0,8,2): p+=rnd(X1+i,X1+i+1,T)
    e(f'v_pk_add_f32 {v(QF,2)}, {v(X1,2)}, {v(X1+2,2)}'); e(f'v_pk_add_f32 {v(QF+2,2)}, {v(X1+4,2)}, {v(X1+6,2)}'); e(f'v_pk_add_f32 {v(QF,2)}, {v(QF,2)}, {v(QF+2,2)}'); e(f'v_add_f32 {v(MX)}, {v(QF)}, {v(QF+1)}')
    p+=xrow(MX)+xg('v_add_f32',MX,T); e(f'v_mul_f32 {v(MX)}, {hex(f2u(1/512))}, {v(MX)}')
    sub=lambda i: f'v_pk_add_f32 {v(QF+i,2)}, {v(X1+i,2)}, {v(MX-1,2)} op_sel:[0,1] neg_lo:[0,1] neg_hi:[0,1]'
    for i in range(0,8,2): e(sub(i))
    e(f'v_pk_mul_f32 {v(QF,2)}, {v(QF,2)}, {v(QF,2)}')
    for i in range(2,8,2): e(f'v_pk_fma_f32 {v(QF,2)}, {v(QF+i,2)}, {v(QF+i,2)}, {v(QF,2)}')
    e(f'v_add_f32 {v(SUM)}, {v(QF)}, {v(QF+1)}')
    p+=xrow(SUM)+xg('v_add_f32',SUM,T); e(f'v_mul_f32 {v(SUM)}, {hex(f2u(1/512))}, {v(SUM)}')
    p+=rnd(MX,SUM,T)
    e(f'v_add_f32 {v(SUM)}, {hex(f2u(1e-5))}, {v(SUM)}'); p+=rnd(SUM,SUM,T)[:2]
    e(f'v_sqrt_f32 {v(SUM)}, {v(SUM)}'); p+=rnd(SUM,SUM,T)[:2]
    e(f'v_rcp_f32 {v(SUM)}, {v(SUM)}')
    for i in range(0,8,2): e(sub(i))
    for i in range(0,8,2): p+=rnd(QF+i,QF+i+1,T)
    for i in range(0,8,2): e(f'v_pk_mul_f32 {v(QF+i,2)}, {v(QF+i,2)}, {v(SUM,2)} op_sel_hi:[1,0]')
    for i in range(0,8,2): p+=rnd(QF+i,QF+i+1,T)
    for i in range(0,8,2): e(f'v_pk_mul_f32 {v(QF+i,2)}, {v(QF+i,2)}, {v(MODV+16+i,2)}')
    for i in range(0,8,2): p+=rnd(QF+i,QF+i+1,T)
    for i in range(0,8,2): e(f'v_pk_add_f32 {v(QF+i,2)}, {v(QF+i,2)}, {v(MODV+8+i,2)}')
    for i in range(4): e(f'v_cvt_pk_bf16_f32 {v(QF+8+i)}, {v(QF+2*i)}, {v(QF+2*i+1)}')
    e(f's_lshl_b32 {s(sT+1)}, {s(sJ)}, 10'); e(f's_add_u32 {s(sT+1)}, {s(sT+1)}, {s(sGB)}'); e(f's_add_u32 {s(sT+1)}, {s(sT+1)}, {G_H2}')
    for i in range(2): e(f'buffer_store_dwordx2 {v(QF+8+2*i,2)}, {v(L8)}, {s(WS,4)}, {s(sT+1)} offen offset:{512*i}{sc}')
    p+=STAMP(15,128)
    p.append(f'{L}_n1:')
    p+=gbar()
    if OPT.get('dp2'): e(f's_sleep {OPT["dp2"]}')
    e(f's_cmp_ge_u32 {s(sJ)}, 28'); e(f's_cbranch_scc1 {L}_n2')
    e(f's_lshl_b32 {s(sT+1)}, {s(sW)}, 13'); e(f's_add_u32 {s(sT+1)}, {s(sT+1)}, {s(sGB)}'); e(f's_add_u32 {s(sT+1)}, {s(sT+1)}, {G_H2}')
    e(f's_lshl_b32 {s(sT+2)}, {s(sEh)}, 14'); e(f's_lshl_b32 {s(sT+3)}, {s(sM)}, 10'); e(f's_add_u32 {s(sT+2)}, {s(sT+2)}, {s(sT+3)}')
    for i in range(8):
        e(f's_add_u32 m0, {s(sT+2)}, {4096+2048*i}'); e(f's_add_u32 {s(sT+3)}, {s(sT+1)}, {128*i}')
        e(f'buffer_load_dwordx4 {v(HSR)}, {s(WS,4)}, {s(sT+3)} offen sc1 lds')
        if i in (1,3,5): e('s_barrier')
    rd=lambda ks: f'ds_read_b128 {v(QF+4*(ks%8),4)}, {v(HRD1 if ks&1 else HRD)} offset:{4096+2048*(ks>>1)}'
    rdw=lambda ks: ([f's_waitcnt vmcnt({6-ks//2})','s_barrier'] if ks%4==0 else [])+[rd(ks)]
    for ks in range(3): p+=rdw(ks)
    for ks in range(16):
        e(f'{MF32} {v(OA,4)}, {W1(0,ks)}, {v(QF+4*(ks%8),4)}, '+(v(OA,4) if ks else '0'))
        if ks+3<16: p+=rdw(ks+3)
        e(f'{MF32} {v(OA+4,4)}, {W1(1,ks)}, {v(QF+4*(ks%8),4)}, '+(v(OA+4,4) if ks else '0'))
    p+=STAMP(17,128)
    e(f's_lshl_b32 {s(sT+1)}, {s(sJ)}, 12'); e(f's_lshl_b32 {s(sT+2)}, {s(sEh)}, 11'); e(f's_add_u32 {s(sT+1)}, {s(sT+1)}, {s(sT+2)}'); e(f's_lshl_b32 {s(sT+2)}, {s(sM)}, 10')
    e(f's_add_u32 {s(sT+1)}, {s(sT+1)}, {s(sT+2)}'); e(f's_add_u32 {s(sT+1)}, {s(sT+1)}, {s(sGB)}'); e(f's_add_u32 {s(sT+1)}, {s(sT+1)}, {G_F1}')
    for i in range(8): e(f'v_max_f32 {v(OA+i)}, 0, {v(OA+i)}')
    for i in range(4): e(f'v_cvt_pk_bf16_f32 {v(PXr+i)}, {v(OA+2*i)}, {v(OA+2*i+1)}')
    e(f'buffer_store_dwordx4 {v(PXr,4)}, {v(L16)}, {s(WS,4)}, {s(sT+1)} offen{sc}')
    p+=STAMP(18,128)
    p.append(f'{L}_n2:')
    p+=gbar()
    p+=gemm_part([f's_mul_i32 {s(sT+1)}, {s(sKq)}, 28672', f's_add_u32 {s(sT+1)}, {s(sT+1)}, {s(sGB)}', f's_add_u32 {s(sT+1)}, {s(sT+1)}, {G_F1}'],14,W2,G_P2)
    nb[0]+=1
    e(f's_cmp_lg_u32 {s(sW)}, 0'); e(f's_cbranch_scc1 {L}_n3')
    p+=rowsum(G_P2,'rb')+STAMP(13,128)
    for i in range(0,8,2): e(f'v_pk_mul_f32 {v(QF+i,2)}, {v(QF+i,2)}, {v(MODV+24+i,2)}')
    for i in range(0,8,2): p+=rnd(QF+i,QF+i+1,T)
    for i in range(0,8,2): e(f'v_pk_add_f32 {v(QF+i,2)}, {v(QF+i,2)}, {v(X1+i,2)}')
    for i in range(4): e(f'v_cvt_pk_bf16_f32 {v(QF+8+i)}, {v(QF+2*i)}, {v(QF+2*i+1)}')
    e(f'v_add_u32 {v(T)}, {s(sT+6)}, {v(L8)}')
    for i in range(2): e(f'global_store_dwordx2 {v(T)}, {v(QF+8+2*i,2)}, {s(POUT,2)} offset:{512*i}')
    e(f's_cmp_ge_u32 {s(sSeg)}, 57'); e(f's_cbranch_scc1 {L}_n4')
    p+=repoison+[f'{L}_n4:']
    p+=STAMP(14,128)+STAMP(20,96)+STAMP(21,64)+STAMP(22,32)
    p.append(f'{L}_n3:')
    e(f's_lshl_b32 {s(sT+1)}, {s(sJ)}, 2'); e(f's_add_u32 {s(sT+1)}, {s(sT+1)}, {s(sW)}'); e(f's_lshl_b32 {s(sT+1)}, {s(sT+1)}, 11'); e(f's_add_u32 {s(sT+1)}, {s(sT+1)}, {s(sGB)}'); e(f's_add_u32 {s(sT+1)}, {s(sT+1)}, {G_P1}')
    e(f's_cmp_ge_u32 {s(sSeg)}, 57'); e(f's_cbranch_scc1 {L}_end')
    e('s_barrier')
    p+=repoison[:2]
    e(f's_mov_b32 {s(sSeg)}, {s(sCnt)}'); e(f's_branch {L}')
    p.append(f'{L}_end:')
    e('s_endpgm')
    r=fix(p,'p2'+mode); check(r+r,'p2loop')
    return r
```

```python
from asmlib import *
from layout import *
import math, struct, re

T0=0; IDX=1; L16=2; LW=3; QW=4; QR=5; KW=6; OW=7; ORD=8; PST=9; MPUB=10; H2A=10; FLG=11
ONES=12; PM=16; KVQ=20; QA=24; KA=32; VA=40; M=48; X=80; STG=112; RES=128
L_MEM=0; L_Q=8192; L_K=10240; L_O=12288; L_SEL=14336; L_KX=16384; L_WV=24576; WREG=34816
WS=4; WSRD=8; DBG=12; sH=14; sW=15; sStep=16; sC=17; sKsrc=18; sVsrc=19; sKvm=20
sPst=21; sPin=23; sPrst=25; sPrstB=26; sPslot=27; sMemIn1=28; sSpinU=29; sPinB=30
sMemIn0=31; sMemB=32; sMemPub=33; sMemRst=34; sSlot=35; sSpin=36; sKdst=37; sKvF=38; sVdst=39; sKvmF=40; sReg=41
sT=42
sRo1=52; sRo2=56; sEx=50; sPtr=52; sRow=64; sTime=70; sOdd=88; sOne=92; sC2=94; sSpinF=96; sFlag=98; sFlagB=99; sWoff=100
LIM='0x80000'
SMF='v_smfmac_f32_16x16x64_bf16'; MF32='v_mfma_f32_16x16x32_bf16'; MF16='v_mfma_f32_16x16x16_bf16'
OPT=dict(sync=0, d1=19, sl=4, nb=6, pp=0, rep=2, hotkv=0, tr=0, solo=0, cut=99, drop=0, cutm=-1, show=0, al=63, pad=7, m4=0, lt=16, nf=4, mid=0, dq=3, s4=1, s0=0, wd=5, ep=1, c2=0, ko=2, dch=0, pfi=22, pfn=1, th=0, mr=0, t1=1, dd=2, el=2, bl=3, ca=8, z4=1, bb=0, xl=2, eb=1, knt=0, ek=1, sw1=0, ord=3, dc=7, fi=28, de=9, v1=1, pub=1, nt=1, rs=0, b0=1, ro1=0, ro2=0, rp=0, warm=1, sp=0, np=2, dp=0, ps=24, sw=5)

lds_groups=[('q',0),('q',1),('q',2),('q',3),('o',0,3),('o',1,1),('o',1,2),('o',1,3)]
all_groups=[(m,c) for m in 'qkv' for c in range(8)]+[('o',tp,k) for tp in range(2) for k in range(4)]
res_groups=[g for g in all_groups if g not in lds_groups]
gloc={}
for i,g in enumerate(res_groups): gloc[g]=('a',16*i) if i<16 else ('v',RES+16*(i-16))
stream={('q',0,0):M+16,('q',0,1):M+24,('q',1,0):KA,('q',1,1):VA,('q',2,0):X,('q',2,1):X+8,('q',3,0):X+16,('q',3,1):X+24,
        ('o',0,3,0):X+8,('o',0,3,1):X+24,('o',1,1,0):X,('o',1,2,0):X+16,('o',1,3,0):KA,('o',1,1,1):VA,('o',1,2,1):QA,('o',1,3,1):X+8}
def ureg(g,t):
    if g in gloc: return gloc[g][0], gloc[g][1]+8*t
    return 'v', stream[g+(t,)]
def unit(g,t): p,b=ureg(g,t); return R(p,b,8)
def stream_reads(g,t):
    off=lds_groups.index(g)*4096+t*2048; b=stream[g+(t,)]
    return [f'ds_read_b128 {v(b,4)}, {v(LW)} offset:{off}', f'ds_read_b128 {v(b+4,4)}, {v(LW)} offset:{off+1024}']
def zero(b,n,val='0'): return [f'v_mov_b64 {v(b+i,2)}, {val}' for i in range(0,n,2)]
def kv_addr(): return [f'v_lshrrev_b32 {v(T0)}, 2, {v(L16)}', f'v_and_b32 {v(T0)}, 4, {v(T0)}']
def kv_check(L):
    return kv_addr()+[f's_add_u32 {s(sT+3)}, {s(sStep)}, 1', f's_min_u32 {s(sT+3)}, {s(sT+3)}, 63', f's_lshl_b32 {s(sT+3)}, {s(sT+3)}, 2', f'{L}c:',
            f'v_lshl_add_u32 {v(FLG)}, {v(FLG)}, 3, {v(T0)}', f'v_cmp_ge_u32 vcc, {s(sT+3)}, {v(FLG)}', f's_cbranch_vccnz {L}w', f'{L}x:']
def kv_wait(L):
    return [f'{L}w:', f's_add_u32 {s(sSpinF)}, {s(sSpinF)}, 1', f's_cmp_gt_u32 {s(sSpinF)}, {LIM}', f's_cbranch_scc1 {L}x',
            f'buffer_load_dword {v(FLG)}, {v(T0)}, {s(WS,4)}, {s(sKvF)} offen sc1', 's_waitcnt vmcnt(0)', f's_branch {L}c']
def h2_addr(d,t):
    if OPT['s4']:
        return [f'v_and_b32 {v(d)}, 0x270, {v(L16)}', f'v_and_b32 {v(t)}, 0x80, {v(L16)}', f'v_lshl_add_u32 {v(d)}, {v(t)}, 1, {v(d)}',
                f'v_and_b32 {v(t)}, 0x100, {v(L16)}', f'v_lshrrev_b32 {v(t)}, 1, {v(t)}', f'v_or_b32 {v(d)}, {v(d)}, {v(t)}']
    if OPT['el']:
        return [f'v_and_b32 {v(d)}, 0x30, {v(L16)}', f'v_and_b32 {v(t)}, 0xc0, {v(L16)}', f'v_lshl_add_u32 {v(d)}, {v(t)}, 2, {v(d)}',
                f'v_and_b32 {v(t)}, 0x300, {v(L16)}', f'v_lshrrev_b32 {v(t)}, 2, {v(t)}', f'v_or_b32 {v(d)}, {v(d)}, {v(t)}']
    return [f'v_and_b32 {v(d)}, 0x230, {v(L16)}', f'v_and_b32 {v(t)}, 0xc0, {v(L16)}', f'v_lshl_add_u32 {v(d)}, {v(t)}, 1, {v(d)}',
            f'v_and_b32 {v(t)}, 0x100, {v(L16)}', f'v_lshrrev_b32 {v(t)}, 2, {v(t)}', f'v_or_b32 {v(d)}, {v(d)}, {v(t)}']

def prologue(timing):
    p=[]; e=p.append
    VQ=[]
    def vm(line,tag=None): e(line); VQ.append(tag)
    def wait(tag):
        i=max(k for k,t in enumerate(VQ) if t==tag); e(f's_waitcnt vmcnt({min(63,len(VQ)-1-i)})')
    e(f's_load_dwordx2 {s(WSRD,2)}, s[0:1], 40')
    e(f's_load_dwordx4 {s(sPtr,4)}, s[0:1], 8')
    e(f's_load_dwordx4 {s(sPtr+4,4)}, s[0:1], 24')
    e(f's_load_dwordx2 {s(DBG,2)}, s[0:1], 104')
    e(f's_load_dwordx2 {s(WS,2)}, s[0:1], 112')
    if timing: e(f's_memrealtime {s(sTime,2)}')
    ln,n,g,t1,t2,g1,VOO,VA0,VA1,TO0,TO1,TA0,TA1,TB0,TB1,r=[STG+i for i in range(16)]
    e(f'v_lshrrev_b32 {v(t1)}, 6, v0'); e(f'v_and_b32 {v(ln)}, 63, v0'); e(f'v_readfirstlane_b32 {s(sW)}, {v(t1)}')
    e(f's_mov_b32 {s(WSRD+2)}, {4<<20}'); e(f's_mov_b32 {s(WSRD+3)}, 0x20000')
    e(f'v_and_b32 {v(n)}, 15, {v(ln)}'); e(f'v_lshrrev_b32 {v(g)}, 4, {v(ln)}'); e(f'v_and_b32 {v(g1)}, 1, {v(g)}')
    e(f's_mul_i32 {s(sReg)}, {s(sW)}, {WREG}'); e(f's_add_u32 {s(sReg)}, {s(sReg)}, {L_WV}')
    e(f'v_lshrrev_b32 {v(t1)}, 3, {v(n)}'); e(f'v_lshl_add_u32 {v(t1)}, {v(g1)}, 4, {v(t1)}'); e(f'v_lshrrev_b32 {v(t2)}, 1, {v(g)}'); e(f'v_lshl_add_u32 {v(t1)}, {v(t2)}, 2, {v(t1)}')
    e(f'v_and_b32 {v(t2)}, 7, {v(n)}'); e(f'v_lshlrev_b32 {v(t2)}, 4, {v(t2)}'); e(f'v_lshlrev_b32 {v(VOO)}, 6, {v(g1)}'); e(f'v_xor_b32 {v(t2)}, {v(t2)}, {v(VOO)}')
    e(f'v_lshl_add_u32 {v(VOO)}, {v(t1)}, 10, {v(t2)}')
    e(f's_lshl_b32 {s(sT)}, {s(sH)}, 17'); e(f's_lshl_b32 {s(sT+1)}, {s(sW)}, 8'); e(f's_add_u32 {s(sT)}, {s(sT)}, {s(sT+1)}')
    for k in range(4):
        e(f's_xor_b32 {s(sRow+k)}, {s(sW)}, {k}'); e(f's_lshl_b32 {s(sRow+k)}, {s(sRow+k)}, 15'); e(f's_add_u32 {s(sRow+k)}, {s(sRow+k)}, {s(sT)}')
    e('s_waitcnt lgkmcnt(0)')
    if timing: e('s_memrealtime s[80:81] ;stamp')
    items=[g_ for m_ in 'okvq' for g_ in res_groups if g_[0]==m_]+lds_groups
    SL=[i%8 for i in range(32)]
    k_=OPT['ord']
    if k_:
        items=items[:4]+items[32-k_:]+items[4:32-k_]
        R_=8-k_; n_=28-k_
        SL=[None]*4+list(range(8-k_,8))+[(j-n_)%R_ for j in range(n_)]
        SL[:4]=[(j-4-n_)%R_ for j in range(4)]
    nxt_=[0]
    def pump(it,lim):
        while nxt_[0]<32 and nxt_[0]<=lim and all(j<it for j in range(nxt_[0]) if SL[j]==SL[nxt_[0]]):
            issue(nxt_[0]); nxt_[0]+=1
    ptr={'q':sPtr+2,'k':sPtr+4,'v':sPtr+6,'o':sPtr+8}
    ntf=' nt' if OPT['nt'] else ''
    m4=OPT['m4']; cbase=(lambda c: 256*(c&1)+32*(c>>1)) if m4 else (lambda c: 128*(c&3)+(64 if OPT['el'] else 8)*(c>>2))
    s4=OPT['s4']; rowi=(lambda b: 8*(b>>1)+2*(b&1)) if s4 else (lambda b: 4*(b>>1)+(b&1))
    def issue(i):
        g_=items[i]
        if i>=4: e(f's_mov_b32 {s(WSRD)}, {s(ptr[g_[0]])}'); e(f's_mov_b32 {s(WSRD+1)}, {s(ptr[g_[0]]+1)}')
        for b in range(4):
            e(f's_add_u32 m0, {s(sReg)}, {SL[i]*4096+b*1024}')
            if g_[0]=='o': e(f's_add_u32 {s(sT+7)}, {s(sRow+g_[2])}, {(8*(b>>1)+2*(b&1))*1024+g_[1]*128}'); vo=VOO
            else: e(f's_mov_b32 {s(sT+7)}, {(cbase(g_[1])+rowi(b))*8192}'); vo=VA1 if b&1 else VA0
            vm(f'buffer_load_dwordx4 {v(vo)}, {s(WSRD,4)}, {s(sT+7)} offen{ntf} lds',g_)
    pump(0,3)
    e(f's_mov_b32 {s(sPtr+8)}, {s(WSRD)}'); e(f's_mov_b32 {s(sPtr+9)}, {s(WSRD+1)}')
    e(f's_mov_b32 {s(WS+2)}, {WS_BYTES}'); e(f's_mov_b32 {s(WS+3)}, 0x20000')
    e(f'v_lshlrev_b32 {v(L16)}, 4, {v(ln)}'); e(f'v_add_u32 {v(LW)}, {s(sReg)}, {v(L16)}')
    e(f's_add_u32 {s(sVdst)}, {s(sReg)}, 32768')
    e(f's_lshl_b32 {s(sT+1)}, {s(sW)}, 11'); e(f's_add_u32 {s(sKdst)}, {s(sT+1)}, {L_KX}')
    e(f's_lshl_b32 {s(sWoff)}, {s(sW)}, 10')
    e(f'v_and_b32 {v(t1)}, 1, {v(ln)}'); e(f'v_mul_u32_u24 {v(t1)}, 0xaaaa, {v(t1)}'); e(f'v_add_u32 {v(IDX)}, 0x4444, {v(t1)}')
    e(f's_lshl_b32 {s(sT+2)}, {s(sW)}, 9')
    e(f'v_lshrrev_b32 {v(r)}, 2, {v(n)}'); e(f'v_lshlrev_b32 {v(QW)}, 7, {v(r)}'); e(f'v_and_b32 {v(t1)}, 1, {v(r)}'); e(f'v_lshlrev_b32 {v(t1)}, 6, {v(t1)}')
    e(f'v_lshlrev_b32 {v(t2)}, 5, {v(g)}'); e(f'v_xor_b32 {v(t1)}, {v(t1)}, {v(t2)}'); e(f'v_add_u32 {v(QW)}, {v(QW)}, {v(t1)}')
    e(f'v_and_b32 {v(t1)}, 3, {v(n)}'); e(f'v_lshl_add_u32 {v(QW)}, {v(t1)}, 2, {v(QW)}'); e(f'v_add_u32 {v(QW)}, {s(sT+2)}, {v(QW)}'); e(f'v_add_u32 {v(QW)}, {L_Q}, {v(QW)}')
    e(f'v_lshlrev_b32 {v(t1)}, 3, {v(ln)}'); e(f'v_add_u32 {v(OW)}, {s(sT+2)}, {v(t1)}'); e(f'v_and_b32 {v(ORD)}, -9, {v(OW)}')
    e(f'v_and_b32 {v(t1)}, -9, {v(t1)}'); e(f'v_lshlrev_b32 {v(t2)}, 6, {v(g1)}'); e(f'v_xor_b32 {v(QR)}, {v(t1)}, {v(t2)}')
    e(f'v_bfe_u32 {v(t1)}, {v(n)}, 1, 2'); e(f'v_lshlrev_b32 {v(KW)}, 2, {v(t1)}'); e(f'v_and_b32 {v(t1)}, 1, {v(n)}'); e(f'v_lshl_add_u32 {v(KW)}, {v(t1)}, 4, {v(KW)}')
    e(f'v_lshl_add_u32 {v(KW)}, {v(g)}, 6, {v(KW)}'); e(f'v_lshrrev_b32 {v(t1)}, 3, {v(n)}'); e(f'v_lshl_add_u32 {v(KW)}, {v(t1)}, 8, {v(KW)}')
    e(f'v_add_u32 {v(KW)}, {s(sT+2)}, {v(KW)}'); e(f'v_add_u32 {v(KW)}, {L_K}, {v(KW)}')
    e(f'v_lshlrev_b32 {v(MPUB)}, {6 if s4 else 7 if OPT["el"] else 12}, {v(t1)}'); e(f'v_and_b32 {v(t1)}, 1, {v(r)}'); e(f'v_lshl_add_u32 {v(MPUB)}, {v(t1)}, {7 if s4 else 6}, {v(MPUB)}'); e(f'v_lshl_add_u32 {v(MPUB)}, {v(g1)}, 5, {v(MPUB)}')
    e(f'v_and_b32 {v(t1)}, 3, {v(n)}'); e(f'v_lshl_add_u32 {v(MPUB)}, {v(t1)}, 3, {v(MPUB)}'); e(f'v_lshrrev_b32 {v(t2)}, 1, {v(g)}'); e(f'v_lshl_add_u32 {v(MPUB)}, {v(t2)}, 31, {v(MPUB)}')
    e(f'v_lshlrev_b32 {v(TO0)}, 8, {v(g)}'); e(f'v_lshl_add_u32 {v(TO0)}, {v(t1)}, 3, {v(TO0)}'); e(f'v_lshl_add_u32 {v(TO0)}, {v(g1)}, 6, {v(TO0)}')
    e(f'v_and_b32 {v(t2)}, 1, {v(r)}'); e(f'v_lshl_add_u32 {v(TO0)}, {v(t2)}, 7, {v(TO0)}'); e(f'v_lshrrev_b32 {v(t2)}, 1, {v(r)}'); e(f'v_lshl_add_u32 {v(TO0)}, {v(t2)}, 5, {v(TO0)}')
    e(f'v_add_u32 {v(TO0)}, {s(sReg)}, {v(TO0)}'); e(f'v_xor_b32 {v(TO1)}, 64, {v(TO0)}')
    e(f'v_lshl_add_u32 {v(t2)}, {v(g1)}, 2, {v(r)}'); e(f's_lshl_b32 {s(sT+3)}, {s(sW)}, 1'); e(f'v_xor_b32 {v(t2)}, {s(sT+3)}, {v(t2)}')
    e(f'v_lshlrev_b32 {v(TA0)}, 10, {v(g)}'); e(f'v_lshl_add_u32 {v(TA0)}, {v(r)}, 8, {v(TA0)}'); e(f'v_lshl_add_u32 {v(TA0)}, {v(t2)}, 5, {v(TA0)}'); e(f'v_lshl_add_u32 {v(TA0)}, {v(t1)}, 3, {v(TA0)}')
    e(f'v_add_u32 {v(TA0)}, {L_WV}, {v(TA0)}'); e(f'v_xor_b32 {v(TA1)}, 32, {v(TA0)}'); e(f'v_add_u32 {v(TB0)}, {2*WREG}, {v(TA0)}'); e(f'v_add_u32 {v(TB1)}, {2*WREG}, {v(TA1)}')
    e(f's_lshl_b32 {s(sT+4)}, {s(sH)}, 8')
    e(f'v_and_b32 {v(t2)}, 2, {v(g)}'); e(f'v_lshlrev_b32 {v(t2)}, {s4}, {v(t2)}'); e(f'v_lshl_add_u32 {v(t2)}, {v(g1)}, 4, {v(t2)}'); e(f'v_lshlrev_b32 {v(t1)}, 1, {v(g)}'); e(f'v_xor_b32 {v(t1)}, {v(t1)}, {v(n)}'); e(f'v_lshlrev_b32 {v(t1)}, 4, {v(t1)}')
    e(f'v_lshl_add_u32 {v(VA0)}, {v(t2)}, 13, {v(t1)}'); e(f's_lshl_b32 {s(sT+3)}, {s(sW)}, 18')
    if s4: e(f's_and_b32 {s(sT+3)}, {s(sW)}, 1'); e(f's_lshl_b32 {s(sT+3)}, {s(sT+3)}, 13'); e(f's_lshr_b32 {s(sT+5)}, {s(sW)}, 1'); e(f's_lshl_b32 {s(sT+5)}, {s(sT+5)}, {20 if m4 else 18}'); e(f's_add_u32 {s(sT+3)}, {s(sT+3)}, {s(sT+5)}')
    elif OPT['el']: e(f's_and_b32 {s(sT+3)}, {s(sT+3)}, {1<<18}'); e(f's_lshr_b32 {s(sT+5)}, {s(sW)}, 1'); e(f's_lshl_b32 {s(sT+5)}, {s(sT+5)}, 16'); e(f's_add_u32 {s(sT+3)}, {s(sT+3)}, {s(sT+5)}')
    e(f's_add_u32 {s(sT+3)}, {s(sT+3)}, {s(sT+4)}')
    e(f'v_add_u32 {v(VA0)}, {s(sT+3)}, {v(VA0)}'); e(f'v_xor_b32 {v(VA1)}, 128, {v(VA0)}')
    e(f's_lshl_b32 {s(sT+3)}, {s(sW)}, 15'); e(f'v_lshlrev_b32 {v(t1)}, 11, {v(r)}'); e(f'v_add_u32 {v(t1)}, {s(sT+4)}, {v(t1)}'); e(f'v_and_b32 {v(t1)}, 0x1fff, {v(t1)}')
    e(f'v_lshl_add_u32 {v(PST)}, {v(g)}, 13, {v(t1)}'); e(f'v_lshl_add_u32 {v(PST)}, {v(n)}, 4, {v(PST)}'); e(f'v_add_u32 {v(PST)}, {s(sT+3)}, {v(PST)}')
    if s4:
        e(f'v_bfe_u32 {v(t1)}, {v(ln)}, 3, 2'); e(f'v_lshlrev_b32 {v(t1)}, 11, {v(t1)}'); e(f'v_add_u32 {v(t1)}, {s(sT+4)}, {v(t1)}'); e(f'v_and_b32 {v(t1)}, 0x1fff, {v(t1)}')
        e(f'v_lshrrev_b32 {v(t2)}, 5, {v(ln)}'); e(f'v_lshl_add_u32 {v(PST)}, {v(t2)}, 13, {v(t1)}'); e(f'v_and_b32 {v(t2)}, 31, {v(ln)}'); e(f'v_lshl_add_u32 {v(PST)}, {v(t2)}, 3, {v(PST)}')
        e(f's_lshl_b32 {s(sT+3)}, {s(sW)}, 14'); e(f'v_add_u32 {v(PST)}, {s(sT+3)}, {v(PST)}')
    Rp=OPT['rep']; cval=struct.unpack('<I',struct.pack('<f',math.log2(math.e)/math.sqrt(128)))[0]
    for r_,val in ((sC,cval),(sC2,cval),(sC2+1,cval),(sStep,0),(sSpin,0),(sSpinU,0),(sSpinF,0),(sSlot,0),(sPslot,3*262144),(sOne,0x3f803f80),(sOne+1,0x3f803f80),
                   (sOdd,0xaaaaaaaa),(sOdd+1,0xaaaaaaaa),(sEx,0x10001 if Rp>1 else 1),(sEx+1,0x10001 if Rp>2 else 0)): e(f's_mov_b32 {s(r_)}, {hex(val)}')
    e(f's_and_b32 {s(sFlagB)}, {s(sH)}, {Rp-1}'); e(f's_lshl_b32 {s(sFlagB)}, {s(sFlagB)}, 8'); e(f's_add_u32 {s(sFlagB)}, {s(sFlagB)}, {FLAG_OFF}')
    e(f's_lshl_b32 {s(sFlag)}, {s(sH)}, 2'); e(f's_add_u32 {s(sFlag)}, {s(sFlag)}, {FLAG_OFF}')
    e(f's_lshl_b32 {s(sPinB)}, {s(sH)}, 13'); e(f's_add_u32 {s(sPinB)}, {s(sPinB)}, {PART_OFF}'); e(f's_add_u32 {s(sPrstB)}, {s(sPinB)}, {s(sT+1)}')
    e(f's_bfe_u32 {s(sT+5)}, {s(sH)}, 0x20002'); e(f's_lshl_b32 {s(sMemB)}, {s(sT+5)}, 10'); e(f's_lshr_b32 {s(sT+5)}, {s(sH)}, 4'); e(f's_lshl_b32 {s(sT+5)}, {s(sT+5)}, 9')
    e(f's_add_u32 {s(sMemB)}, {s(sMemB)}, {s(sT+5)}'); e(f's_and_b32 {s(sT+5)}, {s(sH)}, 3'); e(f's_lshl_b32 {s(sT+5)}, {s(sT+5)}, 7'); e(f's_add_u32 {s(sMemB)}, {s(sMemB)}, {s(sT+5)}'); e(f's_add_u32 {s(sMemB)}, {s(sMemB)}, {MEM_OFF}')
    if OPT['el']: e(f's_add_u32 {s(sMemB)}, {s(sT+4)}, {MEM_OFF}')
    if s4 and not m4:
        e(f's_and_b32 {s(sMemB)}, {s(sH)}, 17'); e(f's_lshl_b32 {s(sMemB)}, {s(sMemB)}, 8'); e(f's_and_b32 {s(sT+5)}, {s(sH)}, 6'); e(f's_lshl_b32 {s(sT+5)}, {s(sT+5)}, 9'); e(f's_add_u32 {s(sMemB)}, {s(sMemB)}, {s(sT+5)}')
        e(f's_and_b32 {s(sT+5)}, {s(sH)}, 8'); e(f's_lshl_b32 {s(sT+5)}, {s(sT+5)}, 6'); e(f's_add_u32 {s(sMemB)}, {s(sMemB)}, {s(sT+5)}'); e(f's_add_u32 {s(sMemB)}, {s(sMemB)}, {MEM_OFF}')
    e(f's_lshl_b32 {s(sKsrc)}, {s(sH)}, 20'); e(f's_add_u32 {s(sKsrc)}, {s(sKsrc)}, {s(sT+1)}'); e(f's_add_u32 {s(sKsrc)}, {s(sKsrc)}, {KV_OFF}'); e(f's_add_u32 {s(sVsrc)}, {s(sKsrc)}, 8192')
    e(f's_lshl_b32 {s(sKvm)}, {s(sH)}, 18'); e(f's_add_u32 {s(sKvm)}, {s(sKvm)}, {s(sWoff)}'); e(f's_add_u32 {s(sKvm)}, {s(sKvm)}, {KVM_OFF}')
    e(f's_lshl_b32 {s(sKvF)}, {s(sH)}, 7'); e(f's_add_u32 {s(sKvmF)}, {s(sKvF)}, {BF_OFF+BF_KVM}'); e(f's_add_u32 {s(sKvF)}, {s(sKvF)}, {BF_OFF+BF_KV}')
    p+=zero(PM,4)+zero(ONES,4,'-1')
    e(f'v_and_b32 {v(t1)}, {4 if s4 else 2}, {v(n)}'); e(f'v_lshlrev_b32 {v(t1)}, {2 if s4 else 3}, {v(t1)}'); e(f'v_mov_b32 {v(t2)}, 0x3f80'); e(f'v_lshlrev_b32 {v(t2)}, {v(t1)}, {v(t2)}'); e(f'v_bfe_u32 {v(t1)}, {v(n)}, {1 if s4 else 2}, 1')
    for jj in range(4):
        e(f'v_cmp_eq_u32 vcc, {jj&1}, {v(t1)}'); e(f'v_cndmask_b32 {v(M+jj)}, 0, {v(t2)}, vcc')
    e(f'ds_write_b128 {v(L16)}, {v(M,4)} offset:{L_SEL}')
    e(f'v_lshrrev_b32 {v(T0)}, 1, {v(n)}'); e(f'v_lshlrev_b32 {v(T0)}, 10, {v(T0)}'); e(f'v_lshl_add_u32 {v(T0)}, {v(g1)}, {4 if s4 else 3}, {v(T0)}')
    e(f'v_and_b32 {v(t1)}, 2, {v(g)}'); e(f'v_lshl_add_u32 {v(T0)}, {v(t1)}, {7 if m4 else 5 if s4 else 3 if OPT["el"] else 6}, {v(T0)}'); e(f'v_and_b32 {v(t1)}, 1, {v(n)}'); e(f'v_lshl_add_u32 {v(T0)}, {v(t1)}, {3 if s4 else 2}, {v(T0)}')
    e(f's_lshl_b32 {s(sT+5)}, {s(sW)}, 8')
    if m4: e(f's_and_b32 {s(sT+5)}, {s(sW)}, 1'); e(f's_lshl_b32 {s(sT+5)}, {s(sT+5)}, 9'); e(f's_lshr_b32 {s(sT+6)}, {s(sW)}, 1'); e(f's_lshl_b32 {s(sT+6)}, {s(sT+6)}, 6'); e(f's_add_u32 {s(sT+5)}, {s(sT+5)}, {s(sT+6)}')
    e(f'v_add_u32 {v(T0)}, {s(sT+5)}, {v(T0)}')
    D=OPT['dc']
    pump(0,D-1)
    if timing: e('s_memrealtime s[82:83] ;stamp')
    if not OPT['sync']:
        e(f's_lshl_b32 {s(sT+5)}, {s(sW)}, 18'); e(f's_add_u32 {s(sT+5)}, {s(sT+5)}, {s(sPinB)}'); e(f's_add_u32 {s(sT+6)}, {s(sT+5)}, 4096')
        for j in range(8): vm(f'buffer_store_dwordx4 {v(ONES,4)}, {v(L16)}, {s(WS,4)}, {s(sT+5+(j>>2))} offen offset:{(j&3)*1024} sc1','x')
        e(f's_lshl_b32 {s(sT+5)}, {s(sW)}, 13'); e(f's_add_u32 {s(sT+5)}, {s(sT+5)}, {s(sMemB)}')
        vm(f'buffer_store_dwordx2 {v(ONES,2)}, {v(MPUB)}, {s(WS,4)}, {s(sT+5)} offen sc1','x')
        e(f's_mov_b64 exec, {s(sEx,2)}'); vm(f'buffer_store_dword {v(PM)}, {v(L16)}, {s(WS,4)}, {s(sFlag)} offen sc1','x'); e('s_mov_b64 exec, -1')
    for u in range(2):
        for x in range(4): vm(f'global_load_dword {v(QA+4*u+x)}, {v(T0)}, {s(sPtr,2)} offset:{(128 if OPT["el"] else 16)*u+(32*(x&1)+4*(x>>1) if s4 else 32*x)}','x')
    if OPT['sync']: e(f'v_mov_b32 {v(KVQ+1)}, 140'); vm(f'global_load_dword {v(KVQ+1)}, {v(KVQ+1)}, {s(DBG,2)} sc1 ;stamp','x')
    if not OPT['rp']:
        p+=h2_addr(FLG,t1); e(f's_cmp_eq_u32 {s(sW)}, 1'); e('s_cselect_b64 vcc, -1, 0'); e(f'v_cndmask_b32 {v(MPUB)}, {v(MPUB)}, {v(FLG)}, vcc')
    if OPT['th']:
        e(f's_lshr_b32 {s(sT+4)}, 0xa2222222, {s(sH)}'); e(f's_and_b32 {s(sT+4)}, {s(sT+4)}, 1'); e('s_cselect_b64 vcc, -1, 0')
    def back(i):
        g_=items[i]
        for t in range(2):
            b0=stream[g_+(t,)] if g_[0]=='q' else M+8*t
            for j in range(2): e(f'ds_write_b128 {v(LW)}, {v(b0+4*j,4)} offset:{SL[i]*4096+t*2048+j*1024}')
        assert SL[i]==lds_groups.index(g_)
    for it in range(32):
        g_=items[it]; bi=it-5
        wait(g_)
        if it==8:
            wait('x')
            if OPT['sync']: p.extend(verify('c',KVQ+1,DBG,sSpinF,sT+2))
        if timing and it==0: e('s_memrealtime s[84:85] ;stamp')
        if timing and it==31: e('s_memrealtime s[86:87] ;stamp')
        e('s_barrier')
        if OPT['th'] and nxt_[0]<32 and it>=2:
            e(f's_cbranch_vccnz L_ch_th{it}'); e(f's_waitcnt vmcnt({OPT["th"]}) ;stamp'); p.append(f'L_ch_th{it}:')
        pump(it,it+D)
        if it and items[it-1] in lds_groups[:4]: back(it-1)
        if it==8:
            e(f's_mov_b32 {s(sT+2)}, 0x05040100'); e(f's_mov_b32 {s(sT+3)}, 0x07060302'); e(f'v_add_u32 {v(T0)}, {s(sWoff)}, {v(L16)}')
            for u in range(2):
                d=X+4*u; q=QA+4*u
                e(f'v_perm_b32 {v(d)}, {v(q+1)}, {v(q)}, {s(sT+2)}'); e(f'v_perm_b32 {v(d+(2 if s4 else 1))}, {v(q+3)}, {v(q+2)}, {s(sT+2)}')
                e(f'v_perm_b32 {v(d+(1 if s4 else 2))}, {v(q+1)}, {v(q)}, {s(sT+3)}'); e(f'v_perm_b32 {v(d+3)}, {v(q+3)}, {v(q+2)}, {s(sT+3)}')
                e(f'ds_write_b128 {v(T0)}, {v(d,4)} offset:{L_MEM+4096*u}')
            e(f's_cmp_lg_u32 {s(sW)}, 0'); e('s_cbranch_scc1 L_ch_noarr')
            e(f's_getreg_b32 {s(sT+5)}, hwreg(HW_REG_XCC_ID)'); e(f's_and_b32 {s(sT+5)}, {s(sT+5)}, 7'); e(f's_lshl_b32 {s(sT+5)}, {s(sT+5)}, 3'); e(f's_lshl_b64 {s(sT+2,2)}, 1, {s(sT+5)}')
            e(f'v_mov_b32 {v(QA)}, {s(sT+2)}'); e(f'v_mov_b32 {v(QA+1)}, {s(sT+3)}'); e('s_mov_b64 exec, 1')
            e(f'global_atomic_add_x2 {v(PM+1)}, {v(QA,2)}, {s(DBG,2)}'); e('s_mov_b64 exec, -1')
            p.append('L_ch_noarr:')
        for b in range(4):
            for t in range(2):
                if g_[0]=='o':
                    pf,b0=ureg(g_,t) if g_ in gloc else ('v',M+8*t)
                    e(f'ds_read_b64_tr_b16 {R(pf,b0+2*b,2)}, {v(TO1 if t else TO0)} offset:{SL[it]*4096+b*1024}')
                else:
                    pf,b0=ureg(g_,t); tra=[[TA0,TA1],[TB0,TB1]][b>>1][t]
                    e(f'ds_read_b64_tr_b16 {R(pf,b0+2*b,2)}, {v(tra)} offset:{(b&1)*WREG+SL[it]*4096}')
        e('s_waitcnt lgkmcnt(0)')
        if g_ in lds_groups[4:]: back(it)
        if it==31 and g_[0]=='q': e('s_barrier'); back(it)
        if bi==8 and OPT['sync']:
            e(f'v_mov_b32 {v(T0)}, 136'); vm(f'global_load_dword {v(KVQ)}, {v(T0)}, {s(DBG,2)} sc1 ;stamp','i')
        if OPT['pfi'] and it in range(OPT['pfi'],OPT['pfi']+3*OPT['pfn'],3):
            k_=(it-OPT['pfi'])//3; qi=[g_ for g_ in items if g_[0]=='q'][::-1][3*(OPT['pfn']-1-k_):][:3]
            base=lambda c: cbase(c)*8192
            e(f's_and_b32 {s(sT+4)}, {s(sH)}, 3'); e(f's_mov_b32 {s(sT+5)}, 0x40000000')
            for r_,g2 in zip((0,2,3),qi):
                e(f's_cmp_eq_u32 {s(sT+4)}, {r_}'); e(f's_cselect_b32 {s(sT+5)}, {(base(g2[1])+(1-r_)*256+8192)&0xffffffff}, {s(sT+5)}')
            e(f's_mov_b32 {s(WSRD)}, {s(ptr["q"])}'); e(f's_mov_b32 {s(WSRD+1)}, {s(ptr["q"]+1)}')
            e(f'v_subrev_u32 {v(M+4)}, 8192, {v(VA0)}') if False else None
            for b in range(4):
                e(f's_add_u32 {s(sT+7)}, {s(sT+5)}, {(rowi(b)*8192-8192)&0xffffffff}')
                vm(f'buffer_load_dwordx4 {v(M,4)}, {v(VA0)}, {s(WSRD,4)}, {s(sT+7)} offen ;stamp','pf')
        if it==16: vm(f'global_load_dwordx2 {v(QA,2)}, {v(PM+1)}, {s(DBG,2)} sc1 ;stamp','h')
        if it==OPT['fi']:
            wait('h')
            p.append('L_ch_hs:')
            e(f'v_readfirstlane_b32 {s(sT+2)}, {v(QA)}'); e(f'v_readfirstlane_b32 {s(sT+3)}, {v(QA+1)}')
            e(f's_add_u32 {s(sSpinF)}, {s(sSpinF)}, 1'); e(f's_cmp_gt_u32 {s(sSpinF)}, {LIM}'); e('s_cbranch_scc1 L_ch_hsdone')
            e(f's_add_u32 {s(sT+4)}, {s(sT+2)}, {s(sT+3)}'); e(f's_lshr_b32 {s(sT+5)}, {s(sT+4)}, 16'); e(f's_add_u32 {s(sT+4)}, {s(sT+4)}, {s(sT+5)}')
            e(f's_lshr_b32 {s(sT+5)}, {s(sT+4)}, 8'); e(f's_add_u32 {s(sT+4)}, {s(sT+4)}, {s(sT+5)}'); e(f's_and_b32 {s(sT+4)}, {s(sT+4)}, 0xff')
            e(f's_cmp_ge_u32 {s(sT+4)}, 32'); e('s_cbranch_scc1 L_ch_hsdone')
            e(f'global_load_dwordx2 {v(QA,2)}, {v(PM+1)}, {s(DBG,2)} sc1 ;stamp'); e('s_waitcnt vmcnt(0) ;stamp'); e('s_branch L_ch_hs')
            p.append('L_ch_hsdone:')
            e(f's_or_b32 {s(sT+2)}, {s(sT+2)}, {s(sT+3)}'); e(f's_and_b32 {s(sT+2)}, {s(sT+2)}, 0x20202020')
            if OPT['sync']:
                wait('i')
                p.append('L_ch_iw:')
                e(f'v_cmp_eq_u32 vcc, 0, {v(KVQ)}'); e('s_cbranch_vccz L_ch_iwx')
                e(f's_add_u32 {s(sSpinF)}, {s(sSpinF)}, 1'); e(f's_cmp_gt_u32 {s(sSpinF)}, {LIM}'); e('s_cbranch_scc1 L_ch_iwx')
                e(f'global_load_dword {v(KVQ)}, {v(T0)}, {s(DBG,2)} sc1 ;stamp'); e('s_waitcnt vmcnt(0) ;stamp'); e('s_branch L_ch_iw')
                p.append('L_ch_iwx:')
                p.extend(kv_addr()); vm(f'buffer_load_dword {v(FLG)}, {v(T0)}, {s(WS,4)}, {s(sKvF)} offen sc1 ;stamp','f')
            e(f's_lshl_b32 {s(sT+5)}, {s(sW)}, 18'); e(f's_add_u32 {s(sT+5)}, {s(sT+5)}, {s(sPinB)}'); e(f's_add_u32 {s(sT+6)}, {s(sT+5)}, 4096')
            wl=[f'buffer_load_dwordx4 {v(KVQ,4)}, {v(L16)}, {s(WS,4)}, {s(sT+5+(j>>2))} offen offset:{(j&3)*1024} sc1 ;stamp' for j in range(8)]
            nlate=2-OPT['mr']
            def warm(lst,k):
                for l in lst: vm(l,'w')
            e(f's_lshl_b32 {s(sT+4)}, {s(sH)}, 10'); e(f's_add_u32 {s(sT+4)}, {s(sT+4)}, {MEM_OFF}')
            vm(f'buffer_load_dwordx4 {v(KVQ,4)}, {v(L16)}, {s(WS,4)}, {s(sT+4)} offen sc1 ;stamp','w')
            warm(wl[:8-nlate],0)
    if OPT['sync']:
        wait('f')
        p.extend(kv_check('L_ch_k0')); p.extend(['s_branch L_ch_k0y']+kv_wait('L_ch_k0')+['L_ch_k0y:'])
    for sd,ss in ((sKdst,sKsrc),(sVdst,sVsrc)):
        e(f's_mov_b32 m0, {s(sd)}')
        for j in range(2): e(f'buffer_load_dwordx4 {v(L16)}, {s(WS,4)}, {s(ss)} offen offset:{1024*j} sc1 lds')
    warm([l.replace(v(KVQ,4),v(STG,4)) for l in wl[8-nlate:]],1)
    p.extend(kv_addr()); e(f'buffer_load_dword {v(FLG)}, {v(T0)}, {s(WS,4)}, {s(sKvF)} offen sc1 ;stamp')
    p+=zero(QA,8)
    if OPT['rp']: e(f'v_mov_b32 {v(FLG)}, 0')
    e(f's_add_u32 {s(sKsrc)}, {s(sKsrc)}, 16384'); e(f's_add_u32 {s(sVsrc)}, {s(sVsrc)}, 16384')
    if OPT['ek'] and not OPT['solo']: e(f'buffer_load_dwordx4 {v(STG,4)}, {v(L16)}, {s(WS,4)}, {s(sKsrc)} offen sc1 ;stamp')
    e(f's_add_u32 {s(sPrst)}, {s(sPrstB)}, {2*262144}')
    if not OPT['tr'] and not OPT['solo']:
        for k in range(4):
            e(f's_and_b32 {s(sT+4)}, {s(sH)}, 1'); e(f's_xor_b32 {s(sT+4)}, {s(sT+4)}, {k}'); e(f's_lshl_b32 {s(sRo1+k)}, {s(sT+4)}, 11')
            e(f's_add_u32 {s(sT+4)}, {s(sH)}, {k}'); e(f's_and_b32 {s(sT+4)}, {s(sT+4)}, 3'); e(f's_lshl_b32 {s(sRo2+k)}, {s(sT+4)}, 10')
    e('s_waitcnt lgkmcnt(0)')
    if timing: e(f's_memrealtime {s(sTime+2,2)}'); e(f's_memtime {s(sTime+6,2)}'); e('s_waitcnt lgkmcnt(0)')
    if OPT['solo']: e('s_waitcnt vmcnt(0)'); e('s_memtime s[60:61]'); e('s_waitcnt lgkmcnt(0)'); e('s_barrier')
    if OPT['rp'] and not OPT['solo']:
        e(f's_cmp_eq_u32 {s(sW)}, 1'); e(f's_cselect_b32 {s(sKvmF)}, {s(sKvmF)}, 0x40000000')
        e('s_barrier')
        for c in range(4): e(mrd(c))
        e(f's_cmp_eq_u32 {s(sT+2)}, 0'); e('s_cbranch_scc1 L_ch_S0_re'); e('s_branch L_ch_F0_re'); e('s_waitcnt lgkmcnt(0)')
    e(f's_cmp_eq_u32 {s(sT+2)}, 0'); e('s_cbranch_scc1 L_ch_S0')
    return fix(p,'prologue')

def smf(d,a_,b): return f'{SMF} {v(d,4)}, {v(a_,4)}, {b}, {v(IDX)}'
def mrd(c): return f'ds_read_b128 {v(M+4*c,4)}, {v(L16)} offset:{L_MEM+1024*c}'
def G(*groups):
    o=[]
    for g_ in groups: o.extend(g_)
    return o

def step(mode, par, verbose=False):
    sc=' sc1' if mode=='S' else ''
    two=OPT['tr'] or OPT['solo']
    L=f'L_ch_{mode}{par}'
    p=[L+':']; e=p.append
    qk=lambda m,c,t: smf((QA if m=='q' else KA if m=='k' else VA)+4*t, M+4*c, unit((m,c),t))
    Q=lambda c,t: qk('q',c,t); K=lambda c,t: qk('k',c,t); V=lambda c,t: qk('v',c,t)
    W=lambda n: f's_waitcnt lgkmcnt({n})'
    krd=[f'ds_read_b128 {v(X+4*f,4)}, {v(L16)} offset:{L_KX+1024*f}' for f in range(8)]
    kl=[f'buffer_load_dwordx4 {v(STG+4*i,4)}, {v(L16)}, {s(WS,4)}, {s(sVsrc if i>>1 else sKsrc)} offen offset:{1024*(i&1)} sc1'+(' nt' if OPT['knt'] else '') for i in range(4)]
    kw=[f'v_add_u32 {v(T0)}, {s(sKdst)}, {v(L16)}',f's_waitcnt vmcnt({5 if OPT["s4"] else 3})']+[f'ds_write_b128 {v(T0)}, {v(STG+4*i,4)} offset:{1024*i}' for i in range(2)]+[f'ds_write_b128 {v(LW)}, {v(STG+8+4*i,4)} offset:{32768+1024*i}' for i in range(2)]
    def post(acc,d0,d1,bytok):
        o=[f'v_add_f32 {v(acc)}, {v(acc)}, {v(acc+1)}', f'v_add_f32 {v(acc+2)}, {v(acc+2)}, {v(acc+3)}',
           f'v_add_f32 {v(acc+4)}, {v(acc+4)}, {v(acc+5)}', f'v_add_f32 {v(acc+6)}, {v(acc+6)}, {v(acc+7)}']
        if bytok: o+=[f'v_cvt_pk_bf16_f32 {v(d0)}, {v(acc)}, {v(acc+4)}', f'v_cvt_pk_bf16_f32 {v(d1)}, {v(acc+2)}, {v(acc+6)}']
        else:     o+=[f'v_cvt_pk_bf16_f32 {v(d0)}, {v(acc)}, {v(acc+2)}', f'v_cvt_pk_bf16_f32 {v(d1)}, {v(acc+4)}, {v(acc+6)}']
        return o
    def tr(i,rt=False):
        if not OPT['tr']: return []
        return [('s_memrealtime' if rt else 's_memtime')+f' {s(52+14*par+2*i,2)} ;stamp']
    def trdump():
        if not OPT['tr']: return []
        o=[f'v_mov_b32 {v(M+4+i)}, {s(52+14*(1-par)+2*i)}' for i in range(4)]+[f'v_mov_b32 {v(M+8+i)}, {s(52+14*(1-par)+2*i)}' for i in range(4,7)]
        o+=[f's_lshl_b32 {s(sT+1)}, {s(sSpinU)}, 16', f's_add_u32 {s(sT+1)}, {s(sT+1)}, {s(sSpin)}', f'v_mov_b32 {v(M+15)}, {s(sT+1)}',
            f's_lshl_b32 {s(sT+1)}, {s(sStep)}, 5', f's_add_u32 {s(sT+1)}, {s(sT+1)}, {s(sH)}', f's_lshl_b32 {s(sT+1)}, {s(sT+1)}, 2', f's_add_u32 {s(sT+1)}, {s(sT+1)}, {s(sW)}',
            f's_lshl_b32 {s(sT+1)}, {s(sT+1)}, 5', f's_add_u32 {s(sT+1)}, {s(sT+1)}, {100<<20}', 's_mov_b64 exec, 1',
            f'buffer_store_dwordx4 {v(M+4,4)}, off, {s(WS,4)}, {s(sT+1)}', f'buffer_store_dwordx4 {v(M+12,4)}, off, {s(WS,4)}, {s(sT+1)} offset:16', 's_mov_b64 exec, -1']
        return o
    rstore=lambda j: f'buffer_store_dwordx4 {v(ONES,4)}, {v(L16)}, {s(WS,4)}, {s(sPrst)} offen offset:{j*1024}{sc}'
    pub=f'buffer_store_dwordx4 {v(KVQ,4)}, {v(L16)}, {s(WS,4)}, {s(sKvm)} offen'+(' sc1' if OPT['pub'] else '')
    rp=OPT['rp']; sp=OPT['sp']
    if not OPT['solo']: p.extend(['s_waitcnt lgkmcnt(0)' if rp else f's_waitcnt vmcnt({7+OPT["ek"]+OPT["mr"]}) lgkmcnt(0)']+([f's_memtime {s(52+14*(1-par)+12,2)} ;stamp'] if OPT['tr'] else [])+['s_barrier'])
    p.append(';secS')
    for c in range(4): e(mrd(c))
    if OPT['rs']==1: e(rstore(0))
    if rp: e(pub); e(f's_add_u32 {s(sKvm)}, {s(sKvm)}, 4096')
    p.append(f'{L}_re:')
    z=zero(KA,16)
    on=[f'v_mov_b64 {v(ONES+2*i,2)}, {s(sOne,2)}' for i in range(2)]
    qp=post(QA,QA+1,QA+3,True)+[f'ds_write2_b32 {v(QW)}, {v(QA+1)}, {v(QA+3)} offset0:0 offset1:4']
    kp=post(KA,KVQ+1,KVQ+3,True)+[f'ds_write2_b32 {v(KW)}, {v(KVQ+1)}, {v(KVQ+3)} offset0:0 offset1:8']
    ek=OPT['ek'] if not OPT['solo'] else 0
    z4=f'v_mfma_f32_4x4x4_16b_bf16 {v(KA,4)}, {v(PM+2,2)}, {v(PM+2,2)}, 0'
    if OPT['z4']: g0=[[Q(2,0)],[Q(2,1),W(0)],[z4],[Q(3,0),kl[2+ek]],[Q(3,1),'s_nop 0'],[K(0,0),z[2]],[K(1,0),f's_waitcnt vmcnt({6+ek-OPT["mr"]})',z[3]]]
    else: g0=[[Q(2,0),z[0]],[Q(2,1),W(0),z[1]],[Q(3,0),kl[2+ek]],[Q(3,1),z[2]],[K(0,0),z[3]],[K(1,0),f's_waitcnt vmcnt({6+ek-OPT["mr"]})']]
    p.extend(G([kl[ek],W(3)],[Q(0,0)],[Q(0,1),W(2)],[Q(1,0),kl[1+ek]],[Q(1,1),W(1)],*g0,
               [K(2,0),'s_barrier'],[K(3,0),mrd(4),z[4]],
               [K(0,1),mrd(5),z[5]],[K(1,1),mrd(6),z[6]],[K(2,1),mrd(7),z[7]],[K(3,1),krd[0],W(4)]))
    p.append(';sec0')
    fld=f'buffer_load_dword {v(FLG)}, {v(T0)}, {s(WS,4)}, {s(sKvF)} offen sc1'
    p.extend(G([Q(4,0),krd[4],W(4)],[Q(5,0),krd[1],W(4)],[Q(6,0),krd[5],W(4)],[Q(7,0),'s_nop 0' if ek else kl[3]],
               [Q(4,1),krd[2],on[0]],[Q(5,1),krd[3],on[1]],[Q(6,1),krd[6],qp[0]],[Q(7,1),krd[7],qp[1]],
               [K(4,0),'s_nop 1',f'v_cmp_u_f32 vcc, {v(QA)}, {v(QA+2)}'],[K(5,0),'s_nop 0',qp[2]],[K(6,0)]+([f's_cbranch_vccnz {L}_r2',f'{L}_r2x:'] if OPT['eb'] else [])+[qp[3]],[K(7,0),'s_nop 1',qp[4]],
               [K(4,1),qp[5]],[K(5,1),qp[6]],[K(6,1),kp[0]],[K(7,1),kp[1]]))
    p.append(';sec1')
    rk=[f'ds_read_b128 {v(X+16*k,4)}, {v(L16)} offset:{L_K+1024*k}' for k in range(2)]
    rq=[f'ds_read_b128 {v(M+4*k,4)}, {v(QR)} offset:{L_Q+512*k}' for k in range(4)]
    VF=[X+4,X+20]
    rv=[f'ds_read_b128 {v(VF[t],4)}, {v(LW)} offset:{32768+1024*t}' for t in range(2)]
    SX=lambda m,ks: f'{MF32} {v(QA+4*m,4)}, {v(X+16*m+4*ks,4)}, {v(M+4*ks,4)}, '+(v(QA+4*m,4) if ks else '0')
    sm=[smf(KA,X+16*k,v(M+8*k,8)) for k in range(2)]
    zk=zero(KA,4)
    mx=PM; tt=KA+3
    c=[f'v_max3_f32 {v(mx)}, {v(QA)}, {v(QA+1)}, {v(QA+2)}', f'v_max3_f32 {v(mx)}, {v(mx)}, {v(QA+3)}, {v(QA+4)}',
       f'v_max3_f32 {v(mx)}, {v(mx)}, {v(QA+5)}, {v(QA+6)}',
       f'v_add_f32 {v(KA)}, {v(KA)}, {v(KA+1)}', f'v_add_f32 {v(KA+1)}, {v(KA+2)}, {v(KA+3)}',
       f'v_max3_f32 {v(mx)}, {v(mx)}, {v(QA+7)}, {v(KA)}', f'v_max_f32 {v(tt)}, {v(mx)}, {v(KA+1)}', f'v_max_f32 {v(mx)}, {v(mx)}, {v(KA+1)}',
       f'v_permlane32_swap_b32 {v(mx)}, {v(tt)}', f'v_max_f32 {v(T0)}, {v(mx)}, {v(tt)}', f'v_max_f32 {v(mx)}, {v(mx)}, {v(tt)}',
       f'v_permlane16_swap_b32 {v(mx)}, {v(T0)}', f'v_max_f32 {v(mx)}, {v(mx)}, {v(T0)}', f'v_mul_f32 {v(T0)}, {s(sC)}, {v(mx)}']
    kadv=0 if OPT['hotkv'] else 16384
    bk=[f's_add_u32 {s(sSlot)}, {s(sSlot)}, 8192', f's_and_b32 {s(sSlot)}, {s(sSlot)}, 0x7fff',
        f's_add_u32 {s(sMemIn0)}, {s(sSlot)}, {MEM_OFF}', f's_add_u32 {s(sMemPub)}, {s(sMemB)}, {s(sSlot)}',
        f's_xor_b32 {s(sMemRst)}, {s(sMemPub)}, 16384',
        f's_add_u32 {s(sPrst)}, {s(sPrstB)}, {s(sPslot)}',
        f's_add_u32 {s(sPslot)}, {s(sPslot)}, 262144', f's_and_b32 {s(sPslot)}, {s(sPslot)}, 0xfffff',
        f's_add_u32 {s(sPst)}, {s(sPslot)}, {PART_OFF}', f's_add_u32 {s(sPst+1)}, {s(sPslot)}, {PART_OFF+131072}',
        f's_add_u32 {s(sPin)}, {s(sPinB)}, {s(sPslot)}', f's_add_u32 {s(sPin+1)}, {s(sPin)}, 4096',
        f's_add_u32 {s(sKsrc)}, {s(sKsrc)}, {kadv}', f's_add_u32 {s(sVsrc)}, {s(sVsrc)}, {kadv}',
        f's_add_u32 {s(sMemIn1)}, {s(sMemIn0)}, 4096', f's_mov_b32 m0, {L_MEM}', f's_add_u32 {s(sStep)}, {s(sStep)}, 1']
    wo=lambda tp,k: stream_reads(('o',tp>>1,k),tp&1)
    p.extend(G(*([[V(0,0),'s_nop 1',W(0)],[V(0,1),'s_barrier','s_nop 0',kp[2]]] if OPT['bb'] else [[V(0,0),'s_nop 2'],[V(0,1),W(0),'s_barrier',kp[2]]]),[V(1,0),rq[0],kp[3]],[V(1,1),rq[1],kp[4]],
               [V(2,0),kp[5]],[V(2,1),kp[6]],[V(3,0),rq[2],zk[0]],[V(3,1),rq[3],W(3)],
               [SX(0,0),zk[1]],[SX(1,0)]+([] if OPT['eb'] else [f's_cbranch_vccnz {L}_r2',f'{L}_r2x:'])+(['s_nop 1',W(2)] if OPT['bb'] else []),[SX(0,1)]+([] if OPT['bb'] else [W(2)])+['s_barrier'],[SX(1,1),rk[0],W(1)],
               [SX(0,2),rk[1]],[SX(0,3),rv[0]],[SX(1,2),rv[1]],[SX(1,3),bk[0],bk[1]]+([] if OPT['v1'] else [W(2)]),
               *([[V(4,0),W(2),bk[2],c[0]],[sm[0],bk[3],bk[5],c[1]],[sm[1],wo(2,1)[0],c[2]],[V(5,0),wo(2,2)[0],bk[6]],[V(6,0),bk[7],bk[16],c[3],c[4]],[V(7,0),c[5],c[6],c[7]]] if OPT['v1'] else
                 [[sm[0],'s_nop 0',c[0]],[sm[1],wo(2,1)[0]],[V(4,0),bk[2],bk[3],c[1]],[V(5,0),wo(2,2)[0],c[2]],[V(6,0),bk[5],bk[6],c[3],c[4]],[V(7,0),bk[7],bk[16],c[5],c[6],c[7]]]),
               [V(4,1),wo(0,3)[0],c[8]],[V(5,1),wo(0,3)[1],c[9],c[10]],[V(6,1),wo(1,3)[0],c[11]],[V(7,1),wo(1,3)[1],c[12],c[13]]))
    if OPT['tr']: p.append(f's_memtime {s(52+14*(1-par)+10,2)} ;stamp')
    p.append(';sec2')
    p.extend(['s_nop 15']*OPT.get('dch',0))
    vp=post(VA,KVQ,KVQ+2,False)
    xp=lambda r_: f'v_exp_f32 {v(r_)}, {v(r_)}'
    PX=KA+4; OF=M+16
    e(vp[0]); e(vp[1])
    for r_ in (KA,QA,QA+2,QA+4,QA+6):
        e(f'v_pk_fma_f32 {v(r_,2)}, {v(r_,2)}, {s(sC2,2)}, {v(T0,2)} op_sel_hi:[1,1,0] neg_lo:[0,0,1] neg_hi:[0,0,1]')
    e(f'v_mfma_f32_32x32x8_bf16 {v(M,16)}, {v(PM+2,2)}, {v(PM+2,2)}, 0'); e(bk[12])
    e(xp(KA)); e(xp(KA+1))
    p.extend([vp[2],vp[3],vp[4],vp[5]])
    e(f'v_cvt_pk_bf16_f32 {v(PM)}, {v(KA)}, {v(KA+1)}')
    e(xp(QA)); e(xp(QA+1))
    ex=[f's_cmp_eq_u32 {s(sStep)}, 64','s_cbranch_scc1 L_ch_last'] if (par==1 and OPT['solo']) else ['s_nop 1']
    p.extend(G([f'{MF16} {v(VA,4)}, {v(KVQ,2)}, {v(PM,2)}, 0',bk[13],xp(QA+2)],
               [f'{MF16} {v(VA+4,4)}, {v(KVQ+2,2)}, {v(PM,2)}, 0',bk[8],xp(QA+3)],
               [f'{MF16} {v(KA,4)}, {v(ONES,2)}, {v(PM,2)}, 0',W(6),xp(QA+4),xp(QA+5),xp(QA+6),xp(QA+7)]))
    for i in range(4): e(f'v_cvt_pk_bf16_f32 {v(PX+i)}, {v(QA+2*i)}, {v(QA+2*i+1)}')
    zo=zero(ONES,4,'-1')
    oa=[f'v_xor_b32 {v(QA+k)}, {512*k}, {v(ORD)}' for k in range(1,4)]
    p.extend(G([oa[0],oa[1]],[f'{MF32} {v(KA,4)}, {v(ONES,4)}, {v(PX,4)}, {v(KA,4)}']+ex+[oa[2]],
               [f'{MF32} {v(VA,4)}, {v(VF[0],4)}, {v(PX,4)}, {v(VA,4)}',bk[14],zo[0],zo[1]],
               [f'{MF32} {v(VA+4,4)}, {v(VF[1],4)}, {v(PX,4)}, {v(VA+4,4)}',bk[15],f'v_rcp_f32 {v(T0)}, {v(KA)}',bk[9],bk[10]]))
    pm_=[f'v_pk_mul_f32 {v(VA+2*i,2)}, {v(VA+2*i,2)}, {v(T0,2)} op_sel_hi:[1,0]' for i in range(4)]
    cv=[f'v_cvt_pk_bf16_f32 {v(OF+i)}, {v(VA+2*i)}, {v(VA+2*i+1)}' for i in range(4)]
    p.extend([pm_[0],pm_[1],cv[0],cv[1],pm_[2],pm_[3],cv[2],cv[3]])
    p.append(';sec3')
    e(f'v_cndmask_b32 {v(QA+4)}, {v(OF)}, {v(OF+2)}, {s(sOdd,2)}'); e(f'v_cndmask_b32 {v(QA+5)}, {v(OF+1)}, {v(OF+3)}, {s(sOdd,2)}')
    O=lambda tp,k: smf(M+4*tp,OF+4*k,unit(('o',tp>>1,k),tp&1))
    def oc(tp,j):
        q=M+8*(tp>>1)+(tp&1)+2*j
        return f'v_cvt_pk_bf16_f32 {v(q)}, {v(M+4*tp+2*j)}, {v(M+4*tp+2*j+1)}'
    ost=lambda u: f'buffer_store_dwordx4 {v(M+8*u,4)}, {v(PST)}, {s(WS,4)}, {s(sPst+u)} offen{sc}'
    ro=[f'ds_read_b128 {v(OF+4*k,4)}, {v(QA+k)} offset:{L_O}' for k in range(1,4)]
    p.extend(G([f'ds_write_b64 {v(OW)}, {v(QA+4,2)} offset:{L_O}'],[O(0,0),rstore(1)],[O(1,0),wo(2,1)[1]],[W(1),'s_barrier',ro[0]],[O(2,0),ro[1],bk[11]],[O(3,0),ro[2],bk[4]],
               [wo(2,2)[1],wo(2,3)[0],W(4)]))
    p.append(';sec4')
    if OPT['s4']:
        oc4=lambda tp,j: f'v_cvt_pk_bf16_f32 {v(M+4*tp+j)}, {v(M+4*tp+j)}, {v(M+4*tp+2+j)}'
        so4=[sPst,sT+5,sPst+1,sT+6]
        os4=lambda tp: f'buffer_store_dwordx2 {v(M+4*tp,2)}, {v(PST)}, {s(WS,4)}, {s(so4[tp])} offen{sc}'
        ad=lambda k: f's_add_u32 {s(sT+5+k)}, {s(sPst+k)}, 65536'
        p.extend(G([O(0,1),wo(2,3)[1],W(4)],[O(0,2),wo(3,1)[0],W(4)],[O(0,3),wo(3,1)[1],ad(0)],
               [O(1,1),wo(3,2)[0],ad(1)],[O(1,2),W(3),f's_cmp_lg_u32 {s(sW)}, 0',oc4(0,0),oc4(0,1)],[O(1,3),os4(0)],
               [O(2,1),wo(3,2)[1],wo(3,3)[0]],[O(2,2),wo(3,3)[1],W(4),'s_nop 0',oc4(1,0),oc4(1,1)],[O(2,3),os4(1)],
               [O(3,1),W(2),'s_nop 1'],[O(3,2),W(0),'s_nop 0',oc4(2,0),oc4(2,1)],[O(3,3),os4(2)],[oc4(3,0),oc4(3,1),os4(3)]))
    else:
        p.extend(G([O(0,1),wo(2,3)[1],W(4)],[O(0,2),wo(3,1)[0],W(4)],[O(0,3),wo(3,1)[1],f's_cmp_lg_u32 {s(sW)}, 0'],
                   [O(1,1),wo(3,2)[0],'s_nop 0'],[O(1,2),wo(3,2)[1],W(4)],[O(1,3),wo(3,3)[0],oc(0,0)],
                   [O(2,1),wo(3,3)[1],oc(0,1)],[O(2,2),W(4),'s_waitcnt vmcnt(1)' if OPT['sw1'] else 's_nop 0',oc(1,0),oc(1,1)],[O(2,3),ost(0)],
                   [O(3,1),W(0),'s_nop 1'],[O(3,2),'s_nop 1',oc(2,0)],[O(3,3),'s_nop 1',oc(2,1)],[oc(3,0),oc(3,1),ost(1)]))
    sr=[]
    for g_,t in ((('q',0),0),(('q',0),1),(('q',1),0),(('q',1),1)): sr+=stream_reads(g_,t)
    xs=[]
    for g_,t in ((('q',2),0),(('q',2),1),(('q',3),0),(('q',3),1)): xs+=stream_reads(g_,t)
    xz=weave(xs,zero(QA,8),[0,0,0,0,1,1,1,1])
    if verbose and par==0:
        fx=fix(p,'main',True); print('model cycles',simulate(fx,OPT['show']), 'inserted waits', len([l for l in fx if l.startswith('s_waitcnt')])-len([l for l in p if l.startswith('s_waitcnt')]))
    if OPT['solo']:
        marks=[i for i,l in enumerate(p) if l.startswith(';sec')]
        if OPT['cutm']>=0:
            marks=[i+1 for i,l in enumerate(p) if l.startswith(('v_mfma','v_smfmac'))]; OPT['cut']=OPT['cutm']
        if OPT['cut']<len(marks):
            rest=p[marks[OPT['cut']]:]
            p[:]=p[:marks[OPT['cut']]]+['s_memtime s[62:63] ;stamp']+[l for l in rest if (l.startswith(('s_add','s_and','s_cmp','s_cbranch_scc')) or l.endswith(':'))]
        d=OPT['drop']
        if d&1: p[:]=[l for l in p if not l.startswith('buffer_store')]
        if d&2: p[:]=[l for l in p if not l.startswith('buffer_load')]
        if OPT['cut']>=len(marks): p.append('s_memtime s[62:63] ;stamp')
        p.extend(['s_waitcnt vmcnt(0)']+kw+kv_addr()+sr+xz)
        if d&4: p[:]=['s_nop 1' if (l.startswith('ds_read') and f' {v(LW)} ' in l) else l for l in p]
        if d&8: p[:]=['s_nop 1' if l.startswith('ds_read') else l for l in p]
        if d&16: p[:]=['s_nop 3' if l.startswith(('v_smfmac','v_mfma')) else l for l in p]
        if d&32: p[:]=['s_nop 0' if (l.startswith('v_') and not l.startswith(('v_smfmac','v_mfma'))) else l for l in p]
        if d&64: p[:]=['s_nop 3' if l.startswith('v_mfma') else l for l in p]
        p.extend(['s_waitcnt lgkmcnt(0) vmcnt(0)','s_sub_u32 s62, s62, s60', f's_add_u32 {s(sSpin)}, {s(sSpin)}, s62', 's_barrier', 's_sleep 12', 's_memtime s[60:61] ;stamp', 's_waitcnt lgkmcnt(0)', 's_barrier'])
        if par==1: p.append(f's_branch L_ch_{mode}0')
        return fix(p,f'solo{par}'), [f'{L}_r2:',f's_branch {L}_r2x']
    kc=lambda x: kv_check(L+x) if OPT['sync'] else []
    if rp: return window_rp(locals())
    p.extend(tr(0)+tr(1,True))
    e(f's_cbranch_scc1 {L}_w')
    head=list(p)
    p.extend(trdump())
    e(f'ds_read_b128 {v(QA+4,4)}, {v(L16)} offset:{L_SEL}')
    e(f'v_mov_b32 {v(M+2)}, {s(sStep)}')
    s0=OPT['s0']; srl=[] if s0 else sr; wl_=W(0) if s0 else W(8); sub=(8 if OPT['tr'] else 0)+(4 if s0 else 0)
    if s0: p.extend(sr)
    if OPT['dq']:
        e(f's_bitcmp1_b32 {s(sH)}, 3'); e(f's_cbranch_scc0 {L}_q'); p.extend(['s_nop 2']*OPT['dq']); p.append(f'{L}_q:'); sub+=(12*OPT['dq']+16)//16
    ep=OPT['ep']
    if ep: e(f's_cmp_lt_u32 {s(sH)}, 16'); e(f's_cbranch_scc1 {L}_e'); p.extend(['s_nop 3']*OPT['de'])
    elif OPT['de']:
        e(f's_cmp_lt_u32 {s(sH)}, 16'); e(f's_cbranch_scc1 {L}_e'); p.extend(['s_nop 3']*OPT['de']); p.append(f'{L}_e:')
    for i in range(OPT['d1']-OPT['de']-(1 if OPT['de'] else 0)-sub): e('s_nop 3')
    p.extend(tr(2))
    ld1=[f'buffer_load_dwordx4 {v(X+4*j,4)}, {v(L16)}, {s(WS,4)}, {s(sPin+(j>>2))} offen offset:{(j&3)*1024} sc1' for j in range(8)]
    if OPT['ro1']:
        p[-1:-1]=[f's_add_u32 {s(sT+4+k)}, {s(sPin)}, {s(sRo1+k)}' for k in range(4)]; p.pop()
        ld1=[f'buffer_load_dwordx4 {v(X+4*j,4)}, {v(L16)}, {s(WS,4)}, {s(sT+4+(j>>1))} offen offset:{(j&1)*1024} sc1' for j in range(8)]
    fst=[f's_mov_b64 exec, {s(sEx,2)}', f'buffer_store_dword {v(M+2)}, {v(L16)}, {s(WS,4)}, {s(sFlag)} offen{sc}', 's_mov_b64 exec, -1']
    ca=OPT['ca']
    if ca:
        k=max(i for i,l in enumerate(p) if l=='s_nop 3')
        c2=OPT['c2']
        p[k-ca+1:k+1]=(ld1[:2]+['s_nop 3']*(ca-c2-2)+ld1[:2]+['s_nop 3']*(c2-2)) if c2 else ld1[:2]+['s_nop 3']*(ca-2)
    p.extend(ld1); p.extend(srl+zero(QA,4)); e(wl_)
    el=OPT['el']==1
    B0=['s_barrier'] if OPT['b0'] else []
    if el:
        p.extend([f's_cmp_lt_u32 {s(sH)}, {OPT["lt"]}', f's_cbranch_scc1 {L}_p1']+['s_nop 3']*OPT['bl']+['s_barrier'])
        B0=[f's_cbranch_scc0 {L}_p2','s_barrier']
    p.append(f'{L}_p1:')
    RM=lambda j: smf(QA,QA+4,v(X+8*j,8))
    fin=[f'v_cvt_pk_bf16_f32 {v(M)}, {v(QA)}, {v(QA+2)}', f'v_cvt_pk_bf16_f32 {v(M+1)}, {v(QA+1)}, {v(QA+3)}']
    if OPT['s4']: fin=[f'v_cvt_pk_bf16_f32 {v(M)}, {v(QA)}, {v(QA+1)}', f'v_cvt_pk_bf16_f32 {v(M+1)}, {v(QA+2)}, {v(QA+3)}']
    mpub=f'buffer_store_dwordx2 {v(M,2)}, {v(MPUB)}, {s(WS,4)}, {s(sMemPub)} offen{sc}'
    chk=f'v_cmp_u_f32 vcc, {v(QA)}, {v(QA+1)}'
    can=f'v_cmp_u_f32 vcc, {v(X)}, {v(X+4)}'
    if ca: first=[f's_waitcnt vmcnt({10 if c2 else 8})',can+' ;stamp',fst[0],f's_cbranch_vccnz {L}_cb',f'{L}_cbx:']+fst[1:]
    else: first=['s_waitcnt vmcnt(6)',can,RM(0),fst[0], f's_cbranch_vccnz {L}_r0']+fst[1:]
    p.extend(first+tr(3)+B0+[f'{L}_p2:'])
    for j in range(0 if ca else 1,4):
        e(f's_waitcnt vmcnt({7-2*j})'); e(RM(j))
    p.extend(fin+[mpub,chk])
    p.extend(tr(4))
    e(f's_cbranch_vccnz {L}_r1')
    p.append(f'{L}_p1ok:')
    p.extend([kw[0]]+kw[2:]+xz)
    nxt=f'L_ch_{mode}{1-par if two else 0}'
    tailc=['s_barrier']+([kl[0]] if ek else [])+[pub, rstore(0)]
    t1=OPT['t1']
    kf=[f's_sub_u32 {s(sT+3)}, {s(sStep)}, 1', f'v_mov_b32 {v(FLG)}, {s(sT+3)}', 's_mov_b64 exec, 1', f'buffer_store_dword {v(FLG)}, off, {s(WS,4)}, {s(sKvmF)} sc1', 's_mov_b64 exec, -1']
    ops=[[pub],kf[2:]] if OPT['mr'] else [[pub],[rstore(0)],kf[2:]]
    tail1=G(*ops[:t1])+['s_barrier']+([kl[0]] if ek else [])+G(*ops[t1:])
    tail2=[f's_add_u32 {s(sKvm)}, {s(sKvm)}, 4096', f's_cmp_lg_u32 {s(sStep)}, 63', f's_cbranch_scc1 {nxt}', 's_branch L_ch_fin']
    p.append(f'{L}_b1:')
    mid=[f's_cmp_lg_u32 {s(sStep)}, 10', f's_cbranch_scc1 {L}_m1', 's_memtime s[80:81] ;stamp', f'{L}_m1:', f's_cmp_lg_u32 {s(sStep)}, 40', f's_cbranch_scc1 {L}_m2', 's_memtime s[82:83] ;stamp', f'{L}_m2:'] if OPT.get('mid') else []
    p.extend(tailc+mid+tail2)
    body=fix(p,f'step{mode}{par}',verbose)
    ld2=[f'buffer_load_dwordx4 {v(H2A)}, {s(WS,4)}, {s(sMemIn0)} offen offset:{1024*j} sc1 lds' for j in range(4)]
    ld2+=[f's_mov_b32 m0, {L_MEM+4096}','s_nop 0']+[f'buffer_load_dwordx4 {v(H2A)}, {s(WS,4)}, {s(sMemIn1)} offen offset:{1024*j} sc1 lds' for j in range(4)]
    ld2r=ld2
    if OPT['ro2']:
        ld2r=[]
        for j in range(8):
            ld2r+=[f's_add_u32 m0, {s(sRo2+(j&3))}, {L_MEM+4096*(j>>2)}', f's_add_u32 {s(sT+4)}, {s(sRo2+(j&3))}, {s(sMemIn1 if j>>2 else sMemIn0)}',
                   f'buffer_load_dwordx4 {v(H2A)}, {s(WS,4)}, {s(sT+4)} offen sc1 lds']
    mrst=[f's_cmp_lg_u32 {s(sW)}, 3', f's_cbranch_scc1 {L}_w3', f'buffer_store_dwordx2 {v(ONES,2)}, {v(MPUB)}, {s(WS,4)}, {s(sMemRst)} offen{sc}', f'{L}_w3:']
    ko=OPT['ko']
    if OPT['tr'] and ko: kw=[l.replace('vmcnt(5)','vmcnt(7)').replace('vmcnt(3)','vmcnt(5)') for l in kw]
    q=[f'{L}_w:']+(['s_nop 3']*OPT['wd'] if s0 and not OPT['tr'] else [])+([] if ko else kw+mrst)+trdump()+(sr if OPT['xl']<2 else [])+([] if OPT['xl'] else xz); e=q.append
    e(f's_cmp_eq_u32 {s(sW)}, 1'); e(f's_cbranch_scc1 {L}_fb')
    if ko==1: q.extend(kw+mrst)
    if ko==2: q.extend(mrst)
    if OPT['b0']: e('s_barrier')
    if ko==2: q.extend(kw)
    if OPT['xl']==2: q.extend(sr)
    if OPT['xl']: q.extend(xz)
    if OPT['sync']:
        e(f's_cmp_lg_u32 {s(sW)}, 2'); e(f's_cbranch_scc1 {L}_b1')
        q.extend(kc('_kb')+(tailc[:-1] if OPT['mr'] else tailc)+[fld]+tail2)
    else: e(f's_branch {L}_b1')
    q.append(f'{L}_fb:')
    if OPT['xl']==2: q.extend(sr)
    if OPT['xl']: q.extend(xz)
    if ko: q.extend(kw)
    e(f'v_lshrrev_b32 {v(T0)}, 2, {v(L16)}'); e(f'v_and_b32 {v(T0)}, 0x7c, {v(T0)}')
    if el: e(f'v_cmp_gt_u32 vcc, {4*OPT["lt"]}, {v(T0)}'); e(f'v_mov_b32 {v(FLG)}, {s(sStep)}'); e('s_nop 0'); e(f'v_cndmask_b32 {v(FLG)}, 0, {v(FLG)}, vcc')
    if not el: q.extend(kf[:2])
    if OPT['b0']: e('s_barrier')
    for i in range(max(0,OPT['sl']-(7 if OPT['tr'] and not OPT['b0'] else 0))): e('s_nop 3')
    q.extend(tr(2))
    if OPT['ro2']: q.extend(ld2r[:2]); ld2r=ld2r[2:]
    N=OPT['nb']
    fl=f'buffer_load_dword {v(PM)}, {v(T0)}, {s(WS,4)}, {s(sFlagB)} offen sc1'
    for i in range(N-1): e(fl); e(f's_nop {7+OPT["pp"]}')
    def ploop(a_,b_,extra=0):
        q.append(f'{L}_{a_}:')
        for i in range(8):
            e(fl)
            if OPT['pp']: e(f's_nop {OPT["pp"]-1}')
            e(f's_waitcnt vmcnt({N-1+(extra if i<N-1 else 0)})'); e(f'v_cmp_gt_u32 vcc, {s(sStep)}, {v(PM)}'); e(f's_cbranch_vccz {L}_{b_}')
        e(f's_add_u32 {s(sSpinF)}, {s(sSpinF)}, 1'); e(f's_cmp_gt_u32 {s(sSpinF)}, {LIM}'); e(f's_cbranch_scc0 {L}_{a_}')
        q.append(f'{L}_{b_}:')
    if el:
        i0=len(q); ploop('fb2','fb3')
        q[i0:]=[l.replace(f'vcc, {s(sStep)}, {v(PM)}',f'vcc, {v(FLG)}, {v(PM)}') for l in q[i0:]]
        nf=OPT['nf']; cut=5 if nf==4 else nf+2
        q.extend(tr(3)); q.extend(ld2[:cut]+kf[:2]+[f'v_cmp_gt_u32 vcc, {s(sStep)}, {v(PM)}', f's_cbranch_vccz {L}_fb5']); ploop('fb4','fb5',nf); q.extend(tr(4)); q.extend(ld2[max(cut,6):])
    else:
        ploop('fb2','fb3'); q.extend(tr(3)); q.extend((ld2r[:8]+['s_nop 3']*OPT['dd']+ld2r[8:]) if OPT['m4'] else ld2r[:5]+([rstore(0),rstore(2)] if OPT['mr'] else [])+['s_nop 3']*OPT['dd']+ld2r[5:]); q.extend(tr(4))
    q.extend(tail1+tail2)
    i=q.index(f'{L}_fb:')
    alt=fix(head+q[:i],f'alt{mode}{par}',False)
    q=alt[alt.index(f'{L}_w:'):]+q[i:]
    e=q.append
    if OPT['sync']: q.extend(kv_wait(L+'_kb'))
    if ep: q.extend([f'{L}_e:']+['s_nop 3']*(OPT['d1']-OPT['de']-1-sub)+tr(2)+ld1+srl+zero(QA,4)+[wl_,f's_branch {L}_cl'])
    if ca: q.extend([f'{L}_cb:']+(['s_mov_b64 exec, -1','s_waitcnt vmcnt(8)',can,fst[0],f's_cbranch_vccz {L}_cbx'] if c2 else [])+['s_mov_b64 exec, -1',f'{L}_cl:','s_waitcnt vmcnt(6)',can,fst[0],f's_cbranch_vccz {L}_cbx'])
    for nm,inc in (('r0',1),('r1',256)):
        q.append(f'{L}_{nm}:')
        if nm=='r0': e('s_mov_b64 exec, -1')
        else: q.extend([f'v_add_u32 {v(M+2)}, -1, {v(M+2)}']+fst+[f'v_add_u32 {v(M+2)}, 1, {v(M+2)}'])
        e(f's_add_u32 {s(sSpin)}, {s(sSpin)}, {inc-1}')
        q.append(f'{L}_{nm}l:')
        q.extend(ld1); e(f's_add_u32 {s(sSpin)}, {s(sSpin)}, 1'); e(f's_cmp_gt_u32 {s(sSpin)}, {LIM}'); e(f's_cbranch_scc1 {L}_{nm}g')
        q.extend(['s_waitcnt vmcnt(6)',f'v_cmp_u_f32 vcc, {v(X)}, {v(X+4)}',f's_cbranch_vccnz {L}_{nm}l', f'{L}_{nm}g:'])
        q.extend(zero(QA,4)+['s_nop 0'])
        for j in range(4): e(f's_waitcnt vmcnt({6-2*j})'); e(RM(j))
        q.extend(['s_nop 7', chk]+fin+[f's_cbranch_scc1 {L}_{nm}e', f's_cbranch_vccnz {L}_{nm}l', f'{L}_{nm}e:', mpub]+fst+tr(3)+tr(4)+(([f's_cmp_lt_u32 {s(sH)}, {OPT["lt"]}', f's_cbranch_scc0 {L}_p1ok'] if el else [])+['s_barrier'] if nm=='r0' else [])+[f's_branch {L}_p1ok'])
    q.append(f'{L}_r2:')
    e(f's_add_u32 {s(sSpinU)}, {s(sSpinU)}, 1'); e(f's_cmp_gt_u32 {s(sSpinU)}, {LIM}'); e(f's_cbranch_scc1 {L}_r2x')
    e(f's_cmp_eq_u32 {s(sStep)}, 0'); e(f's_cbranch_scc1 {L}_r2x')
    e(f's_mov_b32 m0, {L_MEM}'); e(f's_cmp_lg_u32 {s(sW)}, 1')
    e('s_waitcnt lgkmcnt(0)'); e('s_barrier'); e(f's_cbranch_scc1 {L}_r2b')
    q.extend(ld2); q.append(f'{L}_r2b:'); e('s_nop 7'); q.extend(zero(ONES,4,'-1')); q.extend(sr); q.extend(xs); q.extend(zero(QA,8))
    e('s_waitcnt vmcnt(0) lgkmcnt(0)'); e('s_barrier')
    for c_ in range(4): e(mrd(c_))
    e(f's_branch {L}_re')
    return body, q

def window_rp(d):
    L,p,sc,mode,par,two,tr,trdump,kw,kc,sr,xs,xz,W,rstore,sp,verbose=[d[k] for k in 'L p sc mode par two tr trdump kw kc sr xs xz W rstore sp verbose'.split()]
    e=p.append
    p.extend(tr(0)+tr(1,True))
    e(f's_cbranch_scc1 {L}_w')
    head=list(p)
    p.extend(kw+kc('_ka'))
    e(f'ds_read_b128 {v(QA+4,4)}, {v(L16)} offset:{L_SEL}')
    p.extend(sr+trdump())
    for i in range(OPT['d1']-(8 if OPT['tr'] else 0)): e('s_nop 3')
    p.extend(tr(2))
    ld1=[f'buffer_load_dwordx4 {v(X+4*j,4)}, {v(L16)}, {s(WS,4)}, {s(sPin+(j>>2))} offen offset:{(j&3)*1024} sc1' for j in range(8)]
    pre=h2_addr(T0,PM)+[f's_add_u32 {s(sT+4)}, {s(sMemIn0)}, {s(sWoff)}', f's_add_u32 {s(sT+5)}, {s(sMemIn1)}, {s(sWoff)}', f's_add_u32 m0, {s(sWoff)}, {L_MEM+4096}',
         f'v_add_u32 {v(PM)}, {s(sWoff)}, {v(L16)}', f's_sub_u32 {s(sT+3)}, {s(sStep)}, 1', f'v_mov_b32 {v(FLG)}, {s(sT+3)}']
    p.extend(ld1); p.extend(pre); e(W(0))
    p.append(f'{L}_p1:')
    RM=lambda j: f'{MF32} {v(QA,4)}, {v(QA+4,4)}, {v(X+4*j,4)}, '+(v(QA,4) if j else '0')
    p.extend(['s_waitcnt vmcnt(7)',RM(0),'s_waitcnt vmcnt(6)',f'v_cmp_u_f32 vcc, {v(X)}, {v(X+4)}',RM(1),'s_waitcnt vmcnt(5)',RM(2),f's_cbranch_vccnz {L}_r0', f'{L}_r0x:']+tr(3))
    for j in range(3,8):
        e(f's_waitcnt vmcnt({7-j})'); e(RM(j))
    e(f'v_cvt_pk_bf16_f32 {v(M)}, {v(QA)}, {v(QA+1)}')
    e(f'v_cvt_pk_bf16_f32 {v(M+1)}, {v(QA+2)}, {v(QA+3)}')
    e(f'buffer_store_dwordx2 {v(M,2)}, {v(MPUB)}, {s(WS,4)}, {s(sMemPub)} offen{sc}')
    e(f'v_cmp_u_f32 vcc, {v(QA)}, {v(QA)}')
    p.extend(tr(4))
    e(f's_cbranch_vccnz {L}_r1')
    p.append(f'{L}_p1ok:')
    p.extend(xz)
    for i in range(OPT['dp']): e('s_nop 3')
    p.append(f'{L}_b1:')
    body=fix(p,f'step{mode}{par}',verbose)
    e=body.append
    e('s_barrier')
    N=OPT['np']
    pl=f'buffer_load_dwordx4 {v(STG,4)}, {v(T0)}, {s(WS,4)}, {s(sT+4)} offen sc1'
    dm=f'buffer_load_dwordx4 {v(T0)}, {s(WS,4)}, {s(sT+5)} offen sc1 lds'
    def nops(k):
        o=[]
        while k>0: o.append(f's_nop {min(k,16)-1}'); k-=16
        return o
    for i in range(N-1): e(pl); body.extend(nops(OPT['ps']))
    e(pl); e(f's_waitcnt vmcnt({N-1})'); e(f'v_cmp_u_f32 vcc, {v(STG)}, {v(STG+2)}'); e(f's_cbranch_vccnz {L}_pl')
    body.append(f'{L}_plx:')
    e(f'ds_write_b128 {v(PM)}, {v(STG,4)} offset:{L_MEM}'); e(dm); body.extend(tr(6))
    if sp==0: e(rstore(0))
    body.extend(kv_addr()); e(f's_branch L_ch_{mode}{1-par if two else 0}')
    q=[f'{L}_w:',f's_sleep {OPT["sw"]}']+kw; e=q.append
    e(f's_cmp_lg_u32 {s(sW)}, 3'); e(f's_cbranch_scc1 {L}_w3')
    e(f'buffer_store_dwordx2 {v(ONES,2)}, {v(MPUB)}, {s(WS,4)}, {s(sMemRst)} offen{sc}')
    q.extend([f'{L}_w3:']+kc('_kb')+trdump()+sr+xz+pre)
    e(f's_branch {L}_b1')
    alt=fix(head+q,f'alt{mode}{par}',False)
    q=alt[alt.index(f'{L}_w:'):]; e=q.append
    q.append(f'{L}_pl:')
    for i in range(4):
        e(pl); e(f's_waitcnt vmcnt({N-1})'); e(f'v_cmp_u_f32 vcc, {v(STG)}, {v(STG+2)}'); e(f's_cbranch_vccz {L}_plx')
    e(f's_add_u32 {s(sSpinF)}, {s(sSpinF)}, 1'); e(f's_cmp_gt_u32 {s(sSpinF)}, {LIM}'); e(f's_cbranch_scc0 {L}_pl'); e(f's_branch {L}_plx')
    if OPT['sync']: q.extend(kv_wait(L+'_ka')+kv_wait(L+'_kb'))
    q.append(f'{L}_r0:')
    e(f's_add_u32 {s(sSpin)}, {s(sSpin)}, 1'); e(f's_cmp_gt_u32 {s(sSpin)}, {LIM}'); e(f's_cbranch_scc1 {L}_r0x')
    q.extend(ld1); e(f's_branch {L}_p1')
    q.append(f'{L}_r1:')
    e(f's_add_u32 {s(sSpin)}, {s(sSpin)}, 256'); e(f's_cmp_gt_u32 {s(sSpin)}, {LIM}'); e(f's_cbranch_scc1 {L}_p1ok')
    q.extend(ld1); e(f's_branch {L}_p1')
    q.append(f'{L}_r2:')
    e(f's_add_u32 {s(sSpinU)}, {s(sSpinU)}, 1'); e(f's_cmp_gt_u32 {s(sSpinU)}, {LIM}'); e(f's_cbranch_scc1 {L}_r2x')
    e(f's_cmp_eq_u32 {s(sStep)}, 0'); e(f's_cbranch_scc1 {L}_r2x')
    e('s_waitcnt vmcnt(0) lgkmcnt(0)'); e('s_barrier')
    q.extend(pre); e(dm); e(f's_add_u32 m0, {s(sWoff)}, {L_MEM}'); e('s_nop 0'); e(dm.replace(s(sT+5),s(sT+4)))
    q.extend(kv_addr()+zero(ONES,4,'-1')); q.extend(sr); q.extend(xs); q.extend(zero(QA,8))
    e('s_waitcnt vmcnt(0) lgkmcnt(0)'); e('s_barrier')
    for c_ in range(4): e(mrd(c_))
    e(f's_branch {L}_re')
    return body, q

def chain_body(timing=False, verbose=False):
    A=Asm()
    pro=prologue(timing)
    F0,f0=step('F',0,verbose); F1,f1=step('F',1); S0,s0=step('S',0); S1,s1=step('S',1)
    if not OPT['rp']: check(pro+F0+F0,'chainF')
    if OPT['al']&1: pro=pro+['s_branch L_ch_F0','.p2align 6']+['s_nop 0']*OPT['pad']
    for bit,lab in ((2,'_w'),(4,'_fb'),(16,'_e'),(32,'_cb')):
        if OPT['al']&bit:
            i=f0.index(f'L_ch_F0{lab}:'); f0[i:i]=['.p2align 6']
    if OPT['al']&8:
        i=f0.index('L_ch_F0_fb3:'); f0[i:i]=['s_branch L_ch_F0_fb3','.p2align 6']
    for x in ((pro,F0,F1,f0,f1,S0,S1,s0,s1) if (OPT['tr'] or OPT['solo']) else (pro,F0,f0,S0,s0)): A.extend(x)
    f=['L_ch_fin:']+zero(KA,16)+[f's_waitcnt vmcnt({3+OPT["ek"]-OPT["mr"]}) lgkmcnt(0)','s_barrier','L_ch_fin2:']+[mrd(c) for c in range(8)]
    f[1:1]=['s_waitcnt lgkmcnt(0)']
    for c in range(8):
        for m_,acc in (('k',KA),('v',VA)):
            for t in range(2): f.append(smf(acc+4*t,M+4*c,unit((m_,c),t)))
    f+=[f'v_add_f32 {v(KA+2*i)}, {v(KA+2*i)}, {v(KA+2*i+1)}' for i in range(8)]
    f+=[f'v_cmp_u_f32 vcc, {v(KA)}, {v(KA+2)}', f'v_cvt_pk_bf16_f32 {v(KVQ+1)}, {v(KA)}, {v(KA+4)}', f'v_cvt_pk_bf16_f32 {v(KVQ+3)}, {v(KA+2)}, {v(KA+6)}',
        f'v_cvt_pk_bf16_f32 {v(KVQ)}, {v(VA)}, {v(VA+2)}', f'v_cvt_pk_bf16_f32 {v(KVQ+2)}, {v(VA+4)}, {v(VA+6)}', 's_cbranch_vccz L_ch_last',
        f's_add_u32 {s(sSpinU)}, {s(sSpinU)}, 1', f's_cmp_gt_u32 {s(sSpinU)}, {LIM}', 's_cbranch_scc1 L_ch_last',
        f's_mov_b32 m0, {L_MEM}', f's_cmp_lg_u32 {s(sW)}, 1', 's_barrier', 's_cbranch_scc1 L_ch_fin3']
    f+=[f'buffer_load_dwordx4 {v(H2A)}, {s(WS,4)}, {s(sMemIn0)} offen offset:{1024*j} sc1 lds' for j in range(4)]
    f+=[f's_mov_b32 m0, {L_MEM+4096}','s_nop 0']+[f'buffer_load_dwordx4 {v(H2A)}, {s(WS,4)}, {s(sMemIn1)} offen offset:{1024*j} sc1 lds' for j in range(4)]
    f+=['L_ch_fin3:']+zero(KA,16)+['s_waitcnt vmcnt(0)','s_barrier','s_branch L_ch_fin2']
    A.extend(fix(f,'fin'))
    A.label('L_ch_last')
    A(f'buffer_store_dwordx4 {v(KVQ,4)}, {v(L16)}, {s(WS,4)}, {s(sKvm)} offen sc1')
    if timing:
        A(f'''s_waitcnt vmcnt(0)
        s_lshl_b32 {s(sSpinU)}, {s(sSpinU)}, 16
        s_add_u32 {s(sSpin)}, {s(sSpin)}, {s(sSpinU)}
        s_memrealtime {s(sTime+4,2)}
        s_memtime {s(sTime+8,2)}
        s_waitcnt lgkmcnt(0)
        s_sub_u32 {s(sT)}, {s(sTime+2)}, {s(sTime)}
        s_sub_u32 {s(sT+1)}, {s(sTime+4)}, {s(sTime+2)}
        s_sub_u32 {s(sT+2)}, {s(sTime+8)}, {s(sTime+6)}
        v_mov_b32 v4, {s(sT)}
        v_mov_b32 v5, {s(sT+1)}
        v_mov_b32 v6, {s(sT+2)}
        v_mov_b32 v7, {s(sSpin)}
        s_lshl_b32 {s(sT)}, {s(sH)}, 2
        s_add_u32 {s(sT)}, {s(sT)}, {s(sW)}
        s_lshl_b32 {s(sT)}, {s(sT)}, 5
        s_add_u32 {s(sT)}, {s(sT)}, 16384
        v_mov_b32 v0, {s(sT)}
        s_sub_u32 s80, s80, {s(sTime)}
        s_sub_u32 s82, s82, {s(sTime)}
        s_sub_u32 s84, s84, {s(sTime)}
        s_sub_u32 s86, s86, {s(sTime)}
        v_mov_b32 v8, s80
        v_mov_b32 v9, s82
        v_mov_b32 v10, s84
        v_mov_b32 v11, s86
        s_mov_b64 exec, 1
        global_store_dwordx4 v0, v[8:11], {s(DBG,2)} offset:16
        global_store_dwordx4 v0, v[4:7], {s(DBG,2)}''')
    return A

def kernel_text(name, body):
    return f'''.globl {name}
.p2align 8
.type {name},@function
{name}:
{body.text()}    s_endpgm
'''
def kernel_desc(name, vgpr=512, accum=256, sgpr=102):
    return f'''.p2align 6
.amdhsa_kernel {name}
  .amdhsa_next_free_vgpr {vgpr}
  .amdhsa_next_free_sgpr {sgpr}
  .amdhsa_accum_offset {accum}
  .amdhsa_group_segment_fixed_size 0
  .amdhsa_kernarg_size 120
  .amdhsa_user_sgpr_count 2
  .amdhsa_user_sgpr_kernarg_segment_ptr 1
  .amdhsa_system_sgpr_workgroup_id_x 1
  .amdhsa_float_denorm_mode_32 3
.end_amdhsa_kernel
'''

if __name__=='__main__':
    import sys
    for x in sys.argv:
        if '=' in x: OPT[x.split('=')[0]]=int(x.split('=')[1])
    A=Asm()
    if 'spread' in sys.argv:
        A(f's_cmp_ge_u32 s2, 32\ns_cbranch_scc1 L_exit\ns_mov_b32 {s(sH)}, s2')
    else:
        A(f's_cmp_ge_u32 s2, 256\ns_cbranch_scc1 L_exit\ns_and_b32 s3, s2, 7\ns_cmp_lg_u32 s3, 0\ns_cbranch_scc1 L_exit\ns_lshr_b32 {s(sH)}, s2, 3')
    A.extend(chain_body(timing=True, verbose=True))
    A.label('L_exit')
    txt='; @launch kernel=chain_kernel grid=(256,1,1) block=(256,1,1) lds=163840\n.amdgcn_target "amdgcn-amd-amdhsa--gfx950"\n.text\n'
    txt+=kernel_text('chain_kernel',A)+'.section .rodata,"a"\n'+kernel_desc('chain_kernel')
    open(sys.argv[1],'w').write(txt)
```

```python
WS_BYTES = 268435456
KV_OFF   = 0
Q_OFF    = 32 << 20
KVM_OFF  = 49 << 20
G_OFF    = 58 << 20
G_O=0; G_P1=262144; G_P2=524288; G_H2=786432; G_F1=819200
H_OFF    = 74 << 20
PART_OFF = 76 << 20
MEM_OFF  = 77 << 20
FLAG_OFF = (77 << 20) + 65536
BF_OFF   = (77 << 20) + 131072
BF_H=0
BF_KV=1024
BF_KVM=5120
BF_GB=9216
BF_XC=11264
BF_BYTES=16384
MOD_OFF  = 78 << 20
NAME = 'adaLN_cond__memory_aug_recurrent_mem_tr__dense_activation_relu__prompt'
TAG0 = 50

sK = 101
def verify(tag, r, dbg, spin, tmp):
    return [f'L_vf{tag}:', f'v_readfirstlane_b32 s{tmp}, v{r}', f's_add_u32 s{spin}, s{spin}, 1', f's_cmp_gt_u32 s{spin}, 0x200000', f's_cbranch_scc1 L_vx{tag}',
            f's_cmp_lg_u32 s{tmp}, 0', f's_cbranch_scc1 L_vg{tag}',
            f'v_mov_b32 v{r}, 140', f'global_load_dword v{r}, v{r}, s[{dbg}:{dbg+1}] sc1 ;stamp', 's_waitcnt vmcnt(0) ;stamp', f's_branch L_vf{tag}',
            f'L_vg{tag}:', f's_sub_u32 s{tmp}, s{tmp}, 1', f's_and_b32 s{tmp}, s{tmp}, 7', f's_cmp_eq_u32 s{tmp}, s{sK}', f's_cbranch_scc1 L_vx{tag}',
            f's_mov_b32 s{sK}, s{tmp}', 's_branch L_restart', f'L_vx{tag}:']
```

```python
from asmlib import *
from layout import *
import math, struct
MF32='v_mfma_f32_16x16x32_bf16'; MF16='v_mfma_f32_16x16x16_bf16'; SMF='v_smfmac_f32_16x16x64_bf16'
f2u=lambda x: struct.unpack('<I',struct.pack('<f',x))[0]
WS=4; SRD=8; DBG=12; sB=14; sW=15; sMask=16; sSpin=17
sP=52
PX,PWQ,PWK,PWV,PWO,PW1,PW2,PC,PWM,POUT=[sP+2*i for i in (0,2,3,4,5,8,9,10,11,12)]
sT=40
sHd=21; sR=22; sZ=39
LN=0; N=1; Gv=2; L16=3
LIM='0x400000'
OPT=dict(d2=4, pf2=0, pf1=0, d1p=7, alt=0, hb=20, nl=4, dl=0, lp=8, pn=2, rd=4, ks=6, pf3=2, dw=0, ga=6, gs=2, nk=0, hf=1, cw2=0, mp=0)
STAMP=lambda slot,who: []
def common():
    return [f's_load_dwordx16 {s(sP,16)}, s[0:1], 0', f's_load_dwordx8 {s(sP+16,8)}, s[0:1], 64', f's_load_dwordx2 {s(sP+24,2)}, s[0:1], 96',
        f's_load_dwordx2 {s(DBG,2)}, s[0:1], 104', f's_load_dwordx2 {s(WS,2)}, s[0:1], 112',
        'v_lshrrev_b32 v1, 6, v0', f'v_and_b32 {v(LN)}, 63, v0', f'v_readfirstlane_b32 {s(sW)}, v1',
        f's_mov_b32 {s(WS+2)}, {WS_BYTES}', f's_mov_b32 {s(WS+3)}, 0x20000', f's_mov_b32 {s(SRD+3)}, 0x20000',
        f's_mov_b32 {s(sMask)}, 0xffff0000', f's_mov_b32 {s(sSpin)}, 0',
        f'v_and_b32 {v(N)}, 15, {v(LN)}', f'v_lshrrev_b32 {v(Gv)}, 4, {v(LN)}', f'v_lshlrev_b32 {v(L16)}, 4, {v(LN)}', 's_waitcnt lgkmcnt(0)']
NR=2; NG=5
def roles():
    return [f's_lshr_b32 {s(sHd)}, {s(sB)}, 1', f's_and_b32 {s(sR)}, {s(sB)}, 1', f's_sub_u32 {s(sZ)}, {s(sB)}, 64']
def srd(p,size): return [f's_mov_b32 {s(SRD)}, {s(p)}', f's_mov_b32 {s(SRD+1)}, {s(p+1)}', f's_mov_b32 {s(SRD+2)}, {size}']
def rnd(a,b,t): return [f'v_cvt_pk_bf16_f32 {v(t)}, {v(a)}, {v(b)}', f'v_lshlrev_b32 {v(a)}, 16, {v(t)}', f'v_and_b32 {v(b)}, {s(sMask)}, {v(t)}']
def unp(d,src): return [f'v_and_b32 {v(d+1)}, {s(sMask)}, {v(src)}', f'v_lshlrev_b32 {v(d)}, 16, {v(src)}']
def xg(op,a,t):
    return [f'v_mov_b32 {v(t)}, {v(a)}', f'v_permlane32_swap_b32 {v(a)}, {v(t)}', f'{op} {v(a)}, {v(a)}, {v(t)}',
            f'v_mov_b32 {v(t)}, {v(a)}', f'v_permlane16_swap_b32 {v(a)}, {v(t)}', f'{op} {v(a)}, {v(a)}, {v(t)}']
def xrow(a):
    return [f'v_add_f32_dpp {v(a)}, {v(a)}, {v(a)} row_ror:{k} row_mask:0xf bank_mask:0xf' for k in (1,2,4,8)]
_u=[0]
def poll(addr_v, soff, cmp_s, r, off=0, sleep=0):
    _u[0]+=1; k=_u[0]
    return [f'L_po{k}:', f'buffer_load_dword {v(r)}, {v(addr_v)}, {s(WS,4)}, {soff} offen offset:{off} sc1', f's_add_u32 {s(sSpin)}, {s(sSpin)}, 1',
            f's_cmp_gt_u32 {s(sSpin)}, {LIM}', f's_cbranch_scc1 L_pe{k}', 's_waitcnt vmcnt(0)', f'v_cmp_gt_u32 vcc, {cmp_s}, {v(r)}']+(
            [f's_cbranch_vccz L_pe{k}', f's_sleep {sleep}', f's_branch L_po{k}'] if sleep else [f's_cbranch_vccnz L_po{k}'])+[f'L_pe{k}:', 's_waitcnt vmcnt(0)']

def pollp(addr_v, soff, cmp_s, r, N=4):
    _u[0]+=1; k=_u[0]
    ld=f'buffer_load_dword {v(r)}, {v(addr_v)}, {s(WS,4)}, {soff} offen sc1 ;stamp'
    o=[]
    for i in range(N-1): o+=[ld,'s_nop 11']
    o+=[f'L_po{k}:', ld, f's_add_u32 {s(sSpin)}, {s(sSpin)}, 1', f's_cmp_gt_u32 {s(sSpin)}, {LIM}', f's_cbranch_scc1 L_pe{k}', f's_waitcnt vmcnt({N-1}) ;stamp',
        f'v_cmp_gt_u32 vcc, {cmp_s}, {v(r)}', f's_cbranch_vccnz L_po{k}', f'L_pe{k}:']
    return o

def mod_phase(sync):
    p=[]; e=p.append
    W_=16; C_=48; AC=56; A0=4; A1=5; T=6
    p.append('L_mod_top:')
    e(f'v_lshrrev_b32 {v(A0)}, 2, {v(LN)}'); e(f's_lshl_b32 {s(sT)}, {s(sW)}, 4'); e(f'v_add_u32 {v(A0)}, {s(sT)}, {v(A0)}')
    e(f'v_lshlrev_b32 {v(A1)}, 1, {v(A0)}')
    e(f'v_mul_u32_u24 {v(A0)}, 6144, {v(A0)}'); e(f'v_and_b32 {v(T)}, 3, {v(LN)}'); e(f'v_lshl_add_u32 {v(A0)}, {v(T)}, 4, {v(A0)}')
    p+=srd(PWM,512*6144)
    for i in range(8): e(f'global_load_ushort {v(C_+i)}, {v(A1)}, {s(PC,2)} offset:{128*i}')
    e(f's_lshl_b32 {s(sT)}, {s(sZ)}, 6')
    for i in range(8):
        e(f'buffer_load_dwordx4 {v(W_+4*i,4)}, {v(A0)}, {s(SRD,4)}, {s(sT)} offen'); e(f's_add_u32 {s(sT)}, {s(sT)}, {64*6144}')
    e('v_mov_b32 v10, 140'); e(f'global_load_dword v10, v10, {s(DBG,2)} sc1')
    if OPT['mp']:
        e(f's_cmp_lt_u32 {s(sZ)}, 32'); e(f's_cselect_b32 {s(sT+1)}, 0, 0x40000000'); e(f's_lshl_b32 {s(sT)}, {s(sZ)}, 6'); e(f's_add_u32 {s(sT)}, {s(sT)}, {s(sT+1)}'); e(f's_add_u32 {s(sT)}, {s(sT)}, 2048')
        for i in range(8):
            for k in range(2): e(f'buffer_load_dword v{100+k}, {v(A0)}, {s(SRD,4)}, {s(sT)} offen offset:{2048*k}')
            e(f's_add_u32 {s(sT)}, {s(sT)}, {64*6144}')
    for i in range(8): e(f'v_lshlrev_b32 {v(C_+i)}, 16, {v(C_+i)}')
    for i in range(8): e(f'v_mul_f32 {v(AC+i)}, {hex(f2u(-math.log2(math.e)))}, {v(C_+i)}')
    for i in range(8): e(f'v_exp_f32 {v(AC+i)}, {v(AC+i)}')
    for i in range(8): e(f'v_add_f32 {v(AC+i)}, 1.0, {v(AC+i)}')
    for i in range(8): e(f'v_rcp_f32 {v(AC+i)}, {v(AC+i)}')
    for i in range(8): e(f'v_mul_f32 {v(C_+i)}, {v(C_+i)}, {v(AC+i)}')
    for i in range(0,8,2): p+=rnd(C_+i,C_+i+1,T)
    for i in range(8):
        for d in range(4):
            p+=unp(8,W_+4*i+d)
            for k in range(2):
                e(f'v_mul_f32 {v(AC+2*d+k)}, {v(C_+i)}, {v(8+k)}' if i==0 else f'v_fmac_f32 {v(AC+2*d+k)}, {v(C_+i)}, {v(8+k)}')
    for k in (4,8):
        for i in range(8): e(f'v_add_f32_dpp {v(AC+i)}, {v(AC+i)}, {v(AC+i)} row_ror:{k} row_mask:0xf bank_mask:0xf')
    p+=verify('m',10,DBG,sSpin,sT)
    e(f's_lshl_b32 {s(sT)}, {s(sW)}, 9'); e(f'v_and_b32 {v(T)}, 3, {v(LN)}'); e(f'v_lshlrev_b32 {v(T)}, 5, {v(T)}')
    e(f'v_lshl_add_u32 {v(T)}, {v(Gv)}, 7, {v(T)}'); e(f'v_add_u32 {v(T)}, {s(sT)}, {v(T)}')
    e(f'ds_write_b128 {v(T)}, {v(AC,4)}'); e(f'ds_write_b128 {v(T)}, {v(AC+4,4)} offset:16')
    e('s_waitcnt lgkmcnt(0)'); e('s_barrier')
    e(f's_cmp_lg_u32 {s(sW)}, 0'); e('s_cbranch_scc1 L_mod_end')
    e(f'v_and_b32 {v(A0)}, 31, {v(LN)}'); e(f'v_lshrrev_b32 {v(A1)}, 5, {v(LN)}'); e(f'v_lshlrev_b32 {v(T)}, 2, {v(A0)}'); e(f'v_lshl_add_u32 {v(T)}, {v(A1)}, 10, {v(T)}')
    for i in range(8): e(f'ds_read_b32 {v(AC+i)}, {v(T)} offset:{128*i}')
    for i in range(1,8): e(f'v_add_f32 {v(AC)}, {v(AC)}, {v(AC+i)}')
    e(f'v_mov_b32 {v(T)}, {v(AC)}'); e(f'v_permlane32_swap_b32 {v(AC)}, {v(T)}'); e(f'v_add_f32 {v(AC)}, {v(AC)}, {v(T)}')
    e(f'v_cvt_pk_bf16_f32 {v(AC)}, {v(AC)}, {v(AC)}')
    e(f'v_lshlrev_b32 {v(A0)}, 1, {v(A0)}'); e(f's_lshl_b32 {s(sT)}, {s(sZ)}, 6'); e(f's_add_u32 {s(sT)}, {s(sT)}, {MOD_OFF}')
    e(f'buffer_store_short {v(AC)}, {v(A0)}, {s(WS,4)}, {s(sT)} offen sc1')
    if sync:
        e('s_waitcnt vmcnt(0)')
        e(f's_cmp_lt_u32 {s(sZ)}, 32'); e(f's_cselect_b32 {s(sT)}, 0, 4')
        e(f'v_mov_b32 {v(A0)}, {s(sT)}'); e(f'v_mov_b32 {v(A1)}, 1'); e('s_mov_b64 exec, 1')
        e(f'global_atomic_add {v(A0)}, {v(A1)}, {s(DBG,2)} offset:128'); e('s_mov_b64 exec, -1')
    p.append('L_mod_end:')
    e('s_barrier')
    if STAMP(0,0):
        e(f's_cmp_ge_u32 {s(sZ)}, 32'); e('s_cbranch_scc1 L_mod_ns'); p+=STAMP(1,64); p.append('L_mod_ns:')
    if OPT['pf3']:
        e(f's_cmp_ge_u32 {s(sZ)}, 32'); e('s_cbranch_scc1 L_mod_np')
        e(f'v_lshlrev_b32 v99, 10, {v(Gv)}'); e(f'v_lshl_add_u32 v99, {v(N)}, 4, v99')
        e(f's_lshl_b32 {s(sT+3)}, {s(sZ)}, 2'); e(f's_add_u32 {s(sT+3)}, {s(sT+3)}, {s(sW)}'); e(f's_lshl_b32 {s(sT+3)}, {s(sT+3)}, 12')
        for ptr in ((PWV,PWQ) if OPT['pf3']==1 else (PWK,PWV,PWQ)):
            p+=srd(ptr,4<<20)
            for i in range(8):
                e(f's_add_u32 {s(sT+4)}, {s(sT+3)}, {i*64*8192}'); e(f'buffer_load_dwordx4 v[100:103], v99, {s(SRD,4)}, {s(sT+4)} offen offset:256 ;stamp')
        p.append('L_mod_np:')
    e(f's_add_u32 {s(sZ)}, {s(sZ)}, 32'); e(f's_cmp_lt_u32 {s(sZ)}, 96'); e('s_cbranch_scc1 L_mod_top')
    return fix(p,'mod')

def dbg_wait(off,val,r):
    _u[0]+=1; k=_u[0]
    return [f'v_mov_b32 {v(r+1)}, {off}', f'L_po{k}:', f'global_load_dword {v(r)}, {v(r+1)}, {s(DBG,2)} sc1', f's_add_u32 {s(sSpin)}, {s(sSpin)}, 1',
            f's_cmp_gt_u32 {s(sSpin)}, {LIM}', f's_cbranch_scc1 L_pe{k}', 's_waitcnt vmcnt(0)', f'v_cmp_gt_u32 vcc, {val}, {v(r)}', f's_cbranch_vccnz L_po{k}', f'L_pe{k}:', 's_waitcnt vmcnt(0)']

def ln_phase(sync):
    p=[]; e=p.append
    XR=16; XF=32; MD=64; A0=4; A1=5; T=6; S=7; Q=8; R_=10; MU=14; sTile=20
    e(f's_sub_u32 {s(sTile)}, {s(sB)}, 96')
    p+=srd(PX,2048*1024)
    e(f'v_lshlrev_b32 {v(A0)}, 10, {v(N)}'); e(f'v_lshl_add_u32 {v(A0)}, {v(Gv)}, 4, {v(A0)}')
    e(f's_lshl_b32 {s(sT)}, {s(sTile)}, 14'); e(f's_lshl_b32 {s(sT+1)}, {s(sW)}, 8'); e(f's_add_u32 {s(sT)}, {s(sT)}, {s(sT+1)}')
    for i in range(4): e(f'buffer_load_dwordx4 {v(XR+4*i,4)}, {v(A0)}, {s(SRD,4)}, {s(sT)} offen offset:{64*i}')
    e('v_mov_b32 v9, 140'); e(f'global_load_dword v9, v9, {s(DBG,2)} sc1')
    if OPT['pf1']:
        e(f's_lshl_b32 {s(sT+3)}, {s(sTile)}, 2'); e(f's_add_u32 {s(sT+3)}, {s(sT+3)}, {s(sW)}'); e(f's_lshl_b32 {s(sT+3)}, {s(sT+3)}, 13'); e(f's_add_u32 {s(sT+4)}, {s(sT+3)}, 4096')
        for ptr in (PWK,PWV,PWQ):
            p+=srd(ptr,4<<20)
            if OPT['pf1']==1:
                for i in range(8): e(f'buffer_load_dwordx4 {v(100,4)}, {v(L16)}, {s(SRD,4)}, {s(sT+3+(i>>2))} offen offset:{1024*(i&3)}')
            else:
                e(f'v_lshlrev_b32 v99, 10, {v(Gv)}'); e(f'v_lshl_add_u32 v99, {v(N)}, 4, v99')
                for i in range(2): e(f'buffer_load_dwordx4 {v(100,4)}, v99, {s(SRD,4)}, {s(sT+3+i)} offen offset:256')
    e(f'v_lshlrev_b32 {v(A1)}, 4, {v(N)}'); e(f's_lshl_b32 {s(sT+2)}, {s(sW)}, 2'); e(f'v_add_u32 {v(A0)}, {s(sT+2)}, {v(A1)}')
    for i in range(16): p+=unp(XF+2*i,XR+i)
    e(f'v_add_f32 {v(S)}, {v(XF)}, {v(XF+1)}')
    for i in range(2,32): e(f'v_add_f32 {v(S)}, {v(S)}, {v(XF+i)}')
    def cross(off):
        o=xg('v_add_f32',S,T)+[f'ds_write_b32 {v(A0)}, {v(S)} offset:{off}','s_waitcnt lgkmcnt(0)','s_barrier',f'ds_read_b128 {v(R_,4)}, {v(A1)} offset:{off}',
           f'v_add_f32 {v(S)}, {v(R_)}, {v(R_+1)}', f'v_add_f32 {v(T)}, {v(R_+2)}, {v(R_+3)}', f'v_add_f32 {v(S)}, {v(S)}, {v(T)}', f'v_mul_f32 {v(S)}, {hex(f2u(1/512))}, {v(S)}']
        return o
    p+=verify('l',9,DBG,sSpin,sT+3)
    e(f's_cmp_lg_u32 {s(sB)}, 223'); e('s_cbranch_scc1 L_ln2'); p+=flag_init(); p.append('L_ln2:')
    for i in range(4): e(f'v_mov_b32 {v(104+i)}, -1')
    e(f's_lshl_b32 {s(sT+3)}, {s(sTile)}, 2'); e(f's_add_u32 {s(sT+3)}, {s(sT+3)}, {s(sW)}'); e(f's_lshl_b32 {s(sT+3)}, {s(sT+3)}, 11'); e(f's_add_u32 {s(sT+3)}, {s(sT+3)}, {PART_OFF}')
    for i in range(2): e(f'buffer_store_dwordx4 {v(104,4)}, {v(L16)}, {s(WS,4)}, {s(sT+3)} offen offset:{1024*i} sc1')
    p+=cross(0)
    e(f'v_mov_b32 {v(MU)}, {v(S)}')
    for i in range(32):
        e(f'v_sub_f32 {v(T)}, {v(XF+i)}, {v(MU)}'); e(f'v_mul_f32 {v(S)}, {v(T)}, {v(T)}' if i==0 else f'v_fmac_f32 {v(S)}, {v(T)}, {v(T)}')
    p+=cross(256)
    p+=rnd(MU,S,T)
    e(f'v_add_f32 {v(S)}, {hex(f2u(1e-5))}, {v(S)}'); p+=rnd(S,Q,T)[:2]
    e(f'v_sqrt_f32 {v(S)}, {v(S)}'); p+=rnd(S,Q,T)[:2]
    e(f'v_rcp_f32 {v(S)}, {v(S)}')
    for i in range(0,32,2):
        e(f'v_sub_f32 {v(XF+i)}, {v(XF+i)}, {v(MU)}'); e(f'v_sub_f32 {v(XF+i+1)}, {v(XF+i+1)}, {v(MU)}'); p+=rnd(XF+i,XF+i+1,T)
        e(f'v_mul_f32 {v(XF+i)}, {v(XF+i)}, {v(S)}'); e(f'v_mul_f32 {v(XF+i+1)}, {v(XF+i+1)}, {v(S)}'); p+=rnd(XF+i,XF+i+1,T)
    p+=[]
    if sync: p+=dbg_wait(128,32,R_)
    p+=[]
    e(f'v_lshlrev_b32 {v(A0)}, 4, {v(Gv)}'); e(f's_add_u32 {s(sT+1)}, {s(sT+1)}, {MOD_OFF}')
    for i in range(4): e(f'buffer_load_dwordx4 {v(MD+4*i,4)}, {v(A0)}, {s(WS,4)}, {s(sT+1)} offen offset:{1024+64*i} sc1')
    for i in range(4): e(f'buffer_load_dwordx4 {v(MD+16+4*i,4)}, {v(A0)}, {s(WS,4)}, {s(sT+1)} offen offset:{64*i} sc1')
    e(f's_lshl_b32 {s(sT)}, {s(sTile)}, 14'); e(f's_lshl_b32 {s(sT+2)}, {s(sW)}, 12'); e(f's_add_u32 {s(sT)}, {s(sT)}, {s(sT+2)}'); e(f's_add_u32 {s(sT)}, {s(sT)}, {H_OFF}')
    for i in range(16):
        a_=XF+2*i
        p+=unp(Q,MD+i); e(f'v_add_f32 {v(Q)}, 1.0, {v(Q)}'); e(f'v_add_f32 {v(Q+1)}, 1.0, {v(Q+1)}'); p+=rnd(Q,Q+1,T)
        e(f'v_mul_f32 {v(a_)}, {v(a_)}, {v(Q)}'); e(f'v_mul_f32 {v(a_+1)}, {v(a_+1)}, {v(Q+1)}'); p+=rnd(a_,a_+1,T)
        p+=unp(Q,MD+16+i); e(f'v_add_f32 {v(a_)}, {v(a_)}, {v(Q)}'); e(f'v_add_f32 {v(a_+1)}, {v(a_+1)}, {v(Q+1)}')
        e(f'v_cvt_pk_bf16_f32 {v(XR+i)}, {v(a_)}, {v(a_+1)}')
        if i%4==3: e(f'buffer_store_dwordx4 {v(XR+i-3,4)}, {v(L16)}, {s(WS,4)}, {s(sT)} offen offset:{1024*(i//4)} sc1')
    p+=[]
    if sync:
        p+=dbg_wait(136,1,R_)
        e('s_barrier')
        e(f's_lshl_b32 {s(sT)}, {s(sTile)}, 2'); e(f's_add_u32 {s(sT)}, {s(sT)}, {BF_OFF+BF_H}'); e(f'v_mov_b32 {v(T)}, 1')
        e(f's_cmp_lg_u32 {s(sW)}, 0'); e('s_cbranch_scc1 L_ln_end'); e('s_mov_b64 exec, 1')
        e(f'buffer_store_dword {v(T)}, off, {s(WS,4)}, {s(sT)} sc1'); e('s_mov_b64 exec, -1')
        p.append('L_ln_end:')
    return fix(p,'ln')

def flag_init():
    p=[]; e=p.append
    for i in range(4): e(f'v_mov_b32 {v(108+i)}, 0')
    e(f's_lshl_b32 {s(sT+5)}, {s(sW)}, 12'); e(f's_add_u32 {s(sT+5)}, {s(sT+5)}, {BF_OFF}')
    for i in range(4): e(f'buffer_store_dwordx4 {v(108,4)}, {v(L16)}, {s(WS,4)}, {s(sT+5)} offen offset:{1024*i} sc1')
    e(f's_mov_b32 {s(sT+5)}, {FLAG_OFF}'); e(f'buffer_store_dwordx4 {v(108,4)}, {v(L16)}, {s(WS,4)}, {s(sT+5)} offen sc1')
    for i in range(4): e(f'v_mov_b32 {v(112+i)}, -1')
    e(f's_lshl_b32 {s(sT+5)}, {s(sW)}, 13'); e(f's_add_u32 {s(sT+5)}, {s(sT+5)}, {MEM_OFF}'); e(f's_add_u32 {s(sT+6)}, {s(sT+5)}, 4096')
    for i in range(8): e(f'buffer_store_dwordx4 {v(112,4)}, {v(L16)}, {s(WS,4)}, {s(sT+5+(i>>2))} offen offset:{1024*(i&3)} sc1')
    e('s_waitcnt vmcnt(0)'); e('s_barrier')
    e(f'v_mov_b32 v108, 136'); e('v_mov_b32 v109, 1'); e('s_mov_b64 exec, 1'); e(f'global_store_dword v108, v109, {s(DBG,2)} sc1'); e('s_mov_b64 exec, -1')
    return fix(p,'fi')

def wstream(blocks, sRing, D=8, pf=None, lead=0):
    p=[]; e=p.append; ng=len(blocks)//4; assert len(blocks)%4==0
    VQ=[]
    def pre(gi):
        if pf and gi<ng:
            for l in pf(gi):
                e(l)
                if l.startswith('buffer'): VQ.append('p')
    def issue(gi):
        pre(gi+lead)
        for b in range(4):
            su,vo,so,_=blocks[4*gi+b]
            if su: p.extend(su)
            e(f's_add_u32 m0, {s(sRing)}, {((4*gi+b)%32)*1024}'); p.extend(so(sT+7))
            e(f'buffer_load_dwordx4 {v(vo)}, {s(SRD,4)}, {s(sT+7)} offen lds'); VQ.append(gi)
    for gi in range(lead): pre(gi)
    for gi in range(min(D,ng)): issue(gi)
    head=list(p); p.clear()
    for gi in range(ng):
        e(f's_waitcnt vmcnt({len(VQ)-1-max(k for k,t in enumerate(VQ) if t==gi)})')
        for b in range(4):
            for dst,tra,off in blocks[4*gi+b][3]: e(f'ds_read_b64_tr_b16 {dst}, {v(tra)} offset:{((4*gi+b)%32)*1024+off}')
        e('s_waitcnt lgkmcnt(0)')
        if gi+D<ng: issue(gi+D)
    return head,p

sSeg=23; sRing=24; sCnt=25
VO=4; TRA=5; TRB=6; FA=7
def wreg(m,t,ks):
    i=(m*2+t)*64+4*ks
    return ('a',i) if i<256 else ('v',128+i-256)
sHsrc=26; sBuf=27; sNext=32; sGot=33
def hdma():
    o=[f's_lshl_b32 {s(sHsrc)}, {s(sNext)}, 15', f's_lshl_b32 {s(sT)}, {s(sW)}, 13', f's_add_u32 {s(sHsrc)}, {s(sHsrc)}, {s(sT)}', f's_add_u32 {s(sHsrc)}, {s(sHsrc)}, {H_OFF}',
        f's_add_u32 m0, {s(sBuf)}, {s(sT)}', f's_add_u32 {s(sT+1)}, {s(sHsrc)}, 4096']
    o+=[f'buffer_load_dwordx4 {v(L16)}, {s(WS,4)}, {s(sHsrc)} offen offset:{1024*i} sc1 lds' for i in range(4)]
    o+=['s_add_u32 m0, m0, 4096','s_nop 0']+[f'buffer_load_dwordx4 {v(L16)}, {s(WS,4)}, {s(sT+1)} offen offset:{1024*i} sc1 lds' for i in range(4)]
    return o
def p1_setup():
    p=[]; e=p.append
    A0,A1,T0_,T1_,U0,U1,r,c_,t=[112+i for i in range(9)]
    e(f'v_lshlrev_b32 {v(t)}, 1, {v(Gv)}'); e(f'v_xor_b32 {v(t)}, {v(t)}, {v(N)}'); e(f'v_lshlrev_b32 {v(t)}, 4, {v(t)}'); e(f'v_lshl_add_u32 {v(A0)}, {v(Gv)}, 13, {v(t)}')
    e(f's_lshr_b32 {s(sT)}, {s(sW)}, 1'); e(f's_lshl_b32 {s(sT)}, {s(sT)}, 18'); e(f's_and_b32 {s(sT+1)}, {s(sW)}, 1'); e(f's_lshl_b32 {s(sT+1)}, {s(sT+1)}, 15'); e(f's_add_u32 {s(sT)}, {s(sT)}, {s(sT+1)}')
    e(f's_lshl_b32 {s(sT+1)}, {s(sHd)}, 8'); e(f's_add_u32 {s(sT)}, {s(sT)}, {s(sT+1)}'); e(f'v_add_u32 {v(A0)}, {s(sT)}, {v(A0)}'); e(f'v_xor_b32 {v(A1)}, 128, {v(A0)}')
    e(f's_lshl_b32 {s(sRing)}, {s(sW)}, 12'); e(f's_add_u32 {s(sRing)}, {s(sRing)}, 32768')
    e(f'v_lshrrev_b32 {v(r)}, 2, {v(N)}'); e(f'v_and_b32 {v(c_)}, 3, {v(N)}'); e(f'v_and_b32 {v(t)}, 1, {v(Gv)}'); e(f'v_lshl_add_u32 {v(t)}, {v(t)}, 2, {v(r)}')
    e(f's_lshl_b32 {s(sT)}, {s(sW)}, 1'); e(f'v_xor_b32 {v(t)}, {s(sT)}, {v(t)}')
    e(f'v_lshlrev_b32 {v(T0_)}, 10, {v(Gv)}'); e(f'v_lshl_add_u32 {v(T0_)}, {v(r)}, 8, {v(T0_)}'); e(f'v_lshl_add_u32 {v(T0_)}, {v(t)}, 5, {v(T0_)}'); e(f'v_lshl_add_u32 {v(T0_)}, {v(c_)}, 3, {v(T0_)}')
    e(f'v_add_u32 {v(T0_)}, 32768, {v(T0_)}'); e(f'v_xor_b32 {v(T1_)}, 32, {v(T0_)}'); e(f'v_add_u32 {v(U0)}, 65536, {v(T0_)}'); e(f'v_add_u32 {v(U1)}, 65536, {v(T1_)}')
    e(f's_mov_b32 {s(sNext)}, {s(sR)}'); e(f's_mov_b32 {s(sBuf)}, 0'); e(f's_mov_b32 {s(sGot)}, 0'); e(f'v_lshlrev_b32 {v(FA)}, 3, {v(LN)}'); e('v_mov_b32 v9, 136')
    if OPT['dw']: p+=dbg_wait(136 if OPT['dw']==1 else 128, 1, 8)+['v_mov_b32 v9, 136']
    def stream(order,tag):
        q=[]; e=q.append; VQ=[]; D=OPT['d1p']
        bt=[(m,c) for m in order for c in range(8)]
        def issue(bi):
            m,c=bt[bi]; q.extend(srd((PWK,PWV,PWQ)[m],4<<20))
            for i in range(4):
                e(f's_add_u32 m0, {s(sRing)}, {(bi%8)*16384+1024*i}'); e(f's_mov_b32 {s(sT+7)}, {(64*c+8*i)*8192}')
                e(f'buffer_load_dwordx4 {v(A1 if i&1 else A0)}, {s(SRD,4)}, {s(sT+7)} offen lds'); VQ.append(bi)
        wt=lambda x: f's_waitcnt vmcnt({min(63,len(VQ)-1-max(k for k,t_ in enumerate(VQ) if t_==x))})'
        for bi in range(D): issue(bi)
        for bi in range(24):
            m,c=bt[bi]
            e(wt(bi)); e('s_barrier')
            if bi>=1 and bi-1+8<24 and D==8: issue(bi-1+8)
            elif D<8 and bi+D<24: issue(bi+D)
            for b_ in range(4):
                for t_ in range(2):
                    pf,b0=wreg(m,t_,2*c+(b_>>1)); tra=[[T0_,T1_],[U0,U1]][(bi%8)>>2][t_]
                    e(f'ds_read_b64_tr_b16 {R(pf,b0+2*(b_&1),2)}, {v(tra)} offset:{(bi%4)*16384+b_*4096}')
            if bi==12: e(f'global_load_dwordx2 v[8:9], v9, {s(DBG,2)} sc1 ;stamp'); VQ.append('i')
            if bi==OPT['hb']:
                e(wt('i')); q.extend(verify('p'+tag,9,DBG,sSpin,sT)); e('v_cmp_eq_u32 vcc, 0, v8'); e(f's_cbranch_vccz L_p1_in{tag}'); q.extend(dbg_wait(136,1,8)); q.append(f'L_p1_in{tag}:')
                e(f's_mov_b32 {s(sT)}, {BF_OFF+BF_H}'); e(f'buffer_load_dwordx2 v[8:9], {v(FA)}, {s(WS,4)}, {s(sT)} offen sc1 ;stamp'); VQ.append('h')
            e('s_waitcnt lgkmcnt(0)')
        e('s_waitcnt vmcnt(0)')
        return q
    if OPT['alt']:
        e(f's_cmp_lg_u32 {s(sR)}, 0'); e('s_cbranch_scc1 L_p1_alt')
        p+=stream((0,1,2),'a')+['s_branch L_p1_ld','L_p1_alt:']+stream((1,0,2) if OPT['alt']==1 else (2,1,0),'b')+['L_p1_ld:']
    else: p+=stream((0,1,2),'a')
    return fix(p,'p1a')

def p1_main(sync):
    p=[]; e=p.append
    AC=16; HF=64; OUT=96; sKo=28; sVo=29; sQo=30; sFl=31
    acc=lambda m,t,mt: AC+((m*2+t)*2+mt)*4
    e('s_barrier')
    if sync:
        e('v_min_u32 v8, v8, v9'); e('v_cmp_gt_u32 vcc, 1, v8'); e('s_cbranch_vccz L_p1_hok')
        e(f's_mov_b32 {s(sT)}, {BF_OFF+BF_H}')
        pl=poll(FA,s(sT),'1',8); pl[1]=pl[1].replace('dword v8','dwordx2 v[8:9]'); pl[6:6]=['v_min_u32 v8, v8, v9']
        p+=pl+['L_p1_hok:']
    e(f's_mov_b32 {s(sSeg)}, {s(sR)}'); e(f's_mov_b32 {s(sNext)}, {s(sR)}'); e(f's_mov_b32 {s(sBuf)}, 0'); e(f's_mov_b32 {s(sCnt)}, 0')
    e(f's_lshl_b32 {s(sFl)}, {s(sHd)}, 7'); e(f's_lshl_b32 {s(sT)}, {s(sR)}, 2'); e(f's_add_u32 {s(sFl)}, {s(sFl)}, {s(sT)}'); e(f's_add_u32 {s(sFl)}, {s(sFl)}, {BF_OFF+BF_KV}')
    p+=hdma()
    for i in range(4): e(f'v_mov_b32 v{12+i}, -1')
    def flag(L_,val):
        return [f's_cmp_lg_u32 {s(sW)}, 0', f's_cbranch_scc1 {L_}', f'v_mov_b32 {v(FA)}, {val}', 's_mov_b64 exec, 1',
                f'buffer_store_dword {v(FA)}, off, {s(WS,4)}, {s(sFl)} sc1', 's_mov_b64 exec, -1', L_+':'] if sync else []
    e('s_waitcnt vmcnt(0)')
    p.append('L_p1_loop:')
    e('s_waitcnt vmcnt(2)'); e('s_barrier')
    p+=flag('L_p1_nf',s(sCnt))
    e(f's_cmp_ge_u32 {s(sSeg)}, 64'); e('s_cbranch_scc1 L_p1_end')
    e(f'v_add_u32 {v(VO)}, {s(sBuf)}, {v(L16)}')
    e(f's_xor_b32 {s(sBuf)}, {s(sBuf)}, 32768'); e(f's_add_u32 {s(sNext)}, {s(sSeg)}, {NR}')
    e(f's_cmp_ge_u32 {s(sNext)}, 64'); e('s_cbranch_scc1 L_p1_nd')
    p+=hdma()
    p.append('L_p1_nd:')
    hr=lambda ks,mt: f'ds_read_b128 {v(HF+(ks%4)*8+4*mt,4)}, {v(VO)} offset:{(mt*16+(ks%16))*1024}'
    sc_=[f's_lshl_b32 {s(sT)}, {s(sHd)}, 6', f's_add_u32 {s(sT)}, {s(sT)}, {s(sSeg)}',
        f's_lshl_b32 {s(sT+1)}, {s(sW)}, 10', f's_lshl_b32 {s(sKo)}, {s(sT)}, 14', f's_add_u32 {s(sVo)}, {s(sKo)}, {KV_OFF+8192}',
        f's_add_u32 {s(sKo)}, {s(sKo)}, {s(sT+1)}', f's_add_u32 {s(sKo)}, {s(sKo)}, {KV_OFF}', f's_add_u32 {s(sT+2)}, {s(sKo)}, 4096',
        f's_lshl_b32 {s(sQo)}, {s(sT)}, 13', f's_add_u32 {s(sQo)}, {s(sQo)}, {s(sT+1)}', f's_add_u32 {s(sQo)}, {s(sQo)}, {Q_OFF}', f's_add_u32 {s(sT+3)}, {s(sQo)}, 4096',
        f's_lshl_b32 {s(sT+1)}, {s(sW)}, 11', f's_add_u32 {s(sVo)}, {s(sVo)}, {s(sT+1)}',
        f's_lshl_b32 {s(sT)}, {s(sT)}, 2', f's_add_u32 {s(sT)}, {s(sT)}, {s(sW)}', f's_lshl_b32 {s(sT)}, {s(sT)}, 10', f's_add_u32 {s(sT)}, {s(sT)}, {KVM_OFF}',
        f'buffer_store_dwordx4 v[12:15], {v(L16)}, {s(WS,4)}, {s(sT)} offen sc1']
    def outk(m,sos,k):
        o=[]
        for mt in range(2):
            o+=[f'v_cvt_pk_bf16_f32 {v(OUT+4*(k+mt)+r)}, {v(acc(m,0,mt)+r)}, {v(acc(m,1,mt)+r)}' for r in range(4)]
            o+=[f'buffer_store_dwordx4 {v(OUT+4*(k+mt),4)}, {v(L16)}, {s(WS,4)}, {s(sos[mt])} offen sc1']
        return o
    kvout=outk(0,(sKo,sT+2),0)
    for t in range(2):
        kvout+=[f'v_cvt_pk_bf16_f32 {v(OUT+8+4*t+2*mt+j)}, {v(acc(1,t,mt)+2*j)}, {v(acc(1,t,mt)+2*j+1)}' for mt in range(2) for j in range(2)]
        kvout+=[f'buffer_store_dwordx4 {v(OUT+8+4*t,4)}, {v(L16)}, {s(WS,4)}, {s(sVo)} offen offset:{1024*t} sc1']
    for ks in range(2):
        for mt in range(2): e(hr(ks,mt))
    for kk in range(32):
        ks=kk%16; mm=[]
        for mt in range(2):
            hf=v(HF+(ks%4)*8+4*mt,4)
            for m in ((0,1) if kk<16 else (2,)):
                for t in range(2):
                    pf,b=wreg(m,t,ks); w_=R(pf,b,4); c_=v(acc(m,t,mt),4)
                    a_,b_=(hf,w_) if m==1 else (w_,hf)
                    mm.append([f'{MF32} {c_}, {a_}, {b_}, '+(c_ if ks else '0')])
        if kk+2<32: mm[0].append(hr(kk+2,0)); mm[2].append(hr(kk+2,1))
        if kk<16:
            for j in (4,5):
                if sc_: mm[j].append(sc_.pop(0))
        elif kk>=18:
            for j in (1,1,3,3):
                if kvout: mm[j].append(kvout.pop(0))
        p+=sum(mm,[])
    assert not sc_ and not kvout
    p+=outk(2,(sQo,sT+3),4)
    if OPT.get('dp1'): e(f's_sleep {OPT["dp1"]}')
    e(f's_add_u32 {s(sSeg)}, {s(sSeg)}, {NR}'); e(f's_add_u32 {s(sCnt)}, {s(sCnt)}, 1'); e('s_branch L_p1_loop')
    p.append('L_p1_end:')
    e('s_waitcnt vmcnt(0)'); e('s_barrier'); p+=flag('L_p1_nf2','33')
    r=fix(p,'p1'); i=r.index('L_p1_loop:'); j=r.index('L_p1_end:'); check(r[:j]+r[i:],'p1loop')
    return r

sGrp=21; sJ=22; sGB=26; sEp=27; sFw=28; sFr=29; sKq=30; sCq=31; sM=32; sEh=33; sScale=34; sLg=35; sFast=36; sQf=37; sMf=38; sMA=18; sOB=19; sAct=20
WO=lambda ks: a(4*ks,4)
W1=lambda t,ks: a(128+64*t+4*ks,4)
W2=lambda ks: v(200+4*ks,4)
MODV=168
IDX=4; KW=5; FA2=6; HRD=7; HSR=8; PSA=9; MSK=10; ZR=12; NEG=152; HRD1=151; L8=149
L_PF=81920
def qkv_fetch(sync, sSg):
    o=[]
    if sync:
        o+=[f's_and_b32 {s(sT)}, {s(sSg)}, 1', f's_lshl_b32 {s(sT)}, {s(sT)}, 2', f's_add_u32 {s(sT)}, {s(sT)}, {s(sQf)}', f's_lshr_b32 {s(sT+1)}, {s(sSg)}, 1', f's_add_u32 {s(sT+1)}, {s(sT+1)}, 2']
        o+=poll(ZR+1,s(sT),s(sT+1),14,0,2)
    o+=[f's_lshl_b32 {s(sT)}, {s(sJ)}, 6', f's_add_u32 {s(sT)}, {s(sT)}, {s(sSg)}', f's_lshl_b32 {s(sT+1)}, {s(sT)}, 13', f's_add_u32 {s(sT+1)}, {s(sT+1)}, {Q_OFF}',
        f's_lshl_b32 {s(sT)}, {s(sT)}, 14', f's_lshl_b32 {s(sT+2)}, {s(sM)}, 13', f's_add_u32 {s(sT)}, {s(sT)}, {s(sT+2)}', f's_add_u32 {s(sT)}, {s(sT)}, {KV_OFF}',
        f's_cmp_eq_u32 {s(sW)}, 1', f's_cselect_b32 {s(sT)}, {s(sT+1)}, {s(sT)}', f's_add_u32 {s(sT+1)}, {s(sT)}, 4096',
        f's_lshl_b32 {s(sT+2)}, {s(sW)}, 13', f's_add_u32 m0, {s(sT+2)}, {L_PF-8192}', 's_nop 0']
    o+=[f'buffer_load_dwordx4 {v(L16)}, {s(WS,4)}, {s(sT)} offen offset:{1024*i} sc1 lds' for i in range(4)]
    o+=['s_add_u32 m0, m0, 4096','s_nop 0']+[f'buffer_load_dwordx4 {v(L16)}, {s(WS,4)}, {s(sT+1)} offen offset:{1024*i} sc1 lds' for i in range(4)]
    return o
SS=[0]
def slog():
    if not OPT.get('slog'): return []
    _u[0]+=1; L_=f'L_lg{_u[0]}'; SS[0]+=1
    return [f's_cmp_lg_u32 {s(sW)}, 1', f's_cbranch_scc1 {L_}', 's_memrealtime s[90:91]', f's_lshl_b32 s92, {s(sB)}, 5', f's_add_u32 s92, s92, {(123<<20)+4*(SS[0]-1)}', 's_waitcnt lgkmcnt(0)',
            'v_mov_b32 v11, s90', f'buffer_store_dword v11, off, {s(WS,4)}, s92 ;stamp', L_+':']
def p2_setup(sync):
    p=[]; e=p.append
    p+=slog()
    e('s_barrier')
    e(f's_lshr_b32 {s(sGrp)}, {s(sB)}, 5'); e(f's_lshl_b32 {s(sGrp)}, {s(sGrp)}, 2'); e(f's_lshr_b32 {s(sGrp)}, 0x3210465, {s(sGrp)}'); e(f's_and_b32 {s(sGrp)}, {s(sGrp)}, 15'); e(f's_and_b32 {s(sJ)}, {s(sB)}, 31')
    if sync: p+=dbg_wait(136,1,16)
    e(f's_lshl_b32 {s(sGB)}, {s(sGrp)}, 20'); e(f's_add_u32 {s(sGB)}, {s(sGB)}, {G_OFF}')
    e(f's_lshr_b32 {s(sKq)}, {s(sJ)}, 3'); e(f's_and_b32 {s(sCq)}, {s(sJ)}, 7'); e(f's_and_b32 {s(sM)}, {s(sW)}, 1'); e(f's_lshr_b32 {s(sEh)}, {s(sW)}, 1')
    e(f's_lshl_b32 {s(sFr)}, {s(sGrp)}, 8'); e(f's_add_u32 {s(sFr)}, {s(sFr)}, {BF_OFF+BF_GB}'); e(f's_lshl_b32 {s(sT)}, {s(sJ)}, 2'); e(f's_add_u32 {s(sFw)}, {s(sFr)}, {s(sT)}')
    e(f's_mov_b32 {s(sEp)}, 0'); e(f's_mov_b32 {s(sScale)}, {hex(f2u(128**-0.5))}'); e(f's_mov_b32 {s(sLg)}, {hex(f2u(math.log2(math.e)))}')
    e(f's_lshl_b32 {s(sRing)}, {s(sW)}, 15'); e(f's_add_u32 {s(sRing)}, {s(sRing)}, 32768')
    e(f's_lshl_b32 {s(sMf)}, {s(sJ)}, 7')
    e(f's_add_u32 {s(sQf)}, {s(sMf)}, {BF_OFF+BF_KV}'); e(f's_add_u32 {s(sMf)}, {s(sMf)}, {BF_OFF+BF_KVM}')
    for i in range(4): e(f'v_mov_b32 {v(NEG+i)}, -1')
    e(f's_lshl_b32 {s(sT)}, {s(sJ)}, 13'); e(f's_add_u32 {s(sT)}, {s(sT)}, {s(sGB)}'); e(f's_lshl_b32 {s(sT+1)}, {s(sW)}, 11'); e(f's_add_u32 {s(sT)}, {s(sT)}, {s(sT+1)}')
    for off in (G_P1,G_P2):
        e(f's_add_u32 {s(sT+1)}, {s(sT)}, {off}')
        for i in range(2): e(f'buffer_store_dwordx4 {v(NEG,4)}, {v(L16)}, {s(WS,4)}, {s(sT+1)} offen offset:{1024*i} sc1')
    e('s_waitcnt vmcnt(0)'); e('s_barrier')
    p+=slog()
    e(f's_getreg_b32 {s(sFast)}, hwreg(HW_REG_XCC_ID)'); e(f's_and_b32 {s(sFast)}, {s(sFast)}, 7'); e(f's_add_u32 {s(sFast)}, {s(sFast)}, 1')
    e(f'v_mov_b32 v16, {s(sFast)}'); e('s_mov_b64 exec, 1'); e(f'buffer_store_dword v16, off, {s(WS,4)}, {s(sFw)} offset:{BF_XC-BF_GB} sc1'); e('s_mov_b64 exec, -1')
    t1,t2,r,c_,g1=16,17,18,19,20
    e(f'v_and_b32 {v(t1)}, 1, {v(LN)}'); e(f'v_mul_u32_u24 {v(t1)}, 0xaaaa, {v(t1)}'); e(f'v_add_u32 {v(IDX)}, 0x4444, {v(t1)}')
    e(f'v_bfe_u32 {v(t1)}, {v(N)}, 1, 2'); e(f'v_lshlrev_b32 {v(KW)}, 2, {v(t1)}'); e(f'v_and_b32 {v(t1)}, 1, {v(N)}'); e(f'v_lshl_add_u32 {v(KW)}, {v(t1)}, 4, {v(KW)}')
    e(f'v_lshl_add_u32 {v(KW)}, {v(Gv)}, 6, {v(KW)}'); e(f'v_lshrrev_b32 {v(t1)}, 3, {v(N)}'); e(f'v_lshl_add_u32 {v(KW)}, {v(t1)}, 8, {v(KW)}')
    e(f's_lshl_b32 {s(sT)}, {s(sW)}, 9'); e(f'v_add_u32 {v(KW)}, {s(sT)}, {v(KW)}')
    e(f'v_and_b32 {v(FA2)}, 31, {v(LN)}'); e(f'v_lshlrev_b32 {v(FA2)}, 2, {v(FA2)}')
    e(f'v_lshrrev_b32 {v(t1)}, 1, {v(N)}'); e(f'v_xor_b32 {v(t1)}, {v(t1)}, {v(Gv)}'); e(f'v_lshlrev_b32 {v(t1)}, 4, {v(t1)}'); e(f'v_lshl_add_u32 {v(HRD)}, {v(N)}, 7, {v(t1)}')
    e(f's_lshl_b32 {s(sT)}, {s(sM)}, 14'); e(f'v_add_u32 {v(HRD)}, {s(sT)}, {v(HRD)}'); e(f'v_xor_b32 {v(HRD1)}, 64, {v(HRD)}')
    e(f'v_and_b32 {v(c_)}, 3, {v(LN)}'); e(f'v_and_b32 {v(t1)}, 7, {v(LN)}'); e(f'v_xor_b32 {v(t1)}, {v(t1)}, {v(Gv)}'); e(f'v_lshlrev_b32 {v(t1)}, 4, {v(t1)}')
    e(f'v_lshrrev_b32 {v(t2)}, 3, {v(LN)}'); e(f'v_lshl_add_u32 {v(HSR)}, {v(t2)}, 10, {v(t1)}'); e(f's_lshl_b32 {s(sT)}, {s(sM)}, 6'); e(f'v_xor_b32 {v(HSR)}, {s(sT)}, {v(HSR)}')
    e(f'v_lshlrev_b32 {v(PSA)}, 15, {v(Gv)}'); e(f'v_lshl_add_u32 {v(PSA)}, {v(N)}, 2, {v(PSA)}')
    e(f's_lshl_b32 {s(sT)}, {s(sJ)}, 8'); e(f's_lshl_b32 {s(sT+1)}, {s(sW)}, 6'); e(f's_add_u32 {s(sT)}, {s(sT)}, {s(sT+1)}'); e(f'v_add_u32 {v(PSA)}, {s(sT)}, {v(PSA)}')
    e(f'v_lshlrev_b32 {v(t1)}, 2, {v(Gv)}'); e(f'v_sub_u32 {v(MSK)}, {v(N)}, {v(t1)}')
    e(f'v_mov_b32 {v(ZR+1)}, 0')
    AO,A1,A2,TO,TO2,T1,T12=24,25,26,27,28,29,30
    e(f'v_lshrrev_b32 {v(t2)}, 3, {v(LN)}')
    e(f'v_bfe_u32 {v(t1)}, {v(LN)}, 4, 1'); e(f's_lshl_b32 {s(sT)}, {s(sM)}, 1'); e(f'v_or_b32 {v(t1)}, {s(sT)}, {v(t1)}'); e(f'v_lshlrev_b32 {v(t1)}, 1, {v(t1)}')
    e(f'v_and_b32 {v(r)}, 7, {v(LN)}'); e(f'v_xor_b32 {v(t1)}, {v(t1)}, {v(r)}'); e(f'v_lshlrev_b32 {v(t1)}, 4, {v(t1)}')
    e(f's_lshl_b32 {s(sT)}, {s(sW)}, 3'); e(f'v_add_u32 {v(A1)}, {s(sT)}, {v(t2)}'); e(f'v_mul_u32_u24 {v(A1)}, 3584, {v(A1)}'); e(f'v_add_u32 {v(A1)}, {v(A1)}, {v(t1)}')
    e(f's_min_u32 {s(sT)}, {s(sJ)}, 27'); e(f's_lshl_b32 {s(sT)}, {s(sT)}, 7'); e(f'v_add_u32 {v(A1)}, {s(sT)}, {v(A1)}')
    e(f'v_and_b32 {v(r)}, 3, {v(t2)}'); e(f'v_lshrrev_b32 {v(t2)}, 2, {v(t2)}'); e(f'v_lshl_add_u32 {v(t2)}, {v(t2)}, 4, {v(r)}'); e(f'v_lshl_add_u32 {v(AO)}, {v(t2)}, 10, {v(t1)}')
    e(f's_lshl_b32 {s(sT)}, {s(sCq)}, 7'); e(f's_lshl_b32 {s(sT+1)}, {s(sW)}, 12'); e(f's_add_u32 {s(sT)}, {s(sT)}, {s(sT+1)}')
    e(f's_mul_i32 {s(sT+1)}, {s(sKq)}, {448*1024}'); e(f's_add_u32 {s(sT+1)}, {s(sT+1)}, {s(sT)}'); e(f'v_add_u32 {v(A2)}, {s(sT+1)}, {v(AO)}')
    e(f's_lshl_b32 {s(sT+1)}, {s(sKq)}, 20'); e(f's_add_u32 {s(sT+1)}, {s(sT+1)}, {s(sT)}'); e(f'v_add_u32 {v(AO)}, {s(sT+1)}, {v(AO)}')
    e(f'v_lshrrev_b32 {v(r)}, 2, {v(N)}'); e(f'v_and_b32 {v(g1)}, 1, {v(Gv)}'); e(f'v_lshrrev_b32 {v(t1)}, 1, {v(r)}'); e(f'v_lshl_add_u32 {v(t1)}, {v(g1)}, 1, {v(t1)}')
    e(f'v_lshlrev_b32 {v(t2)}, 10, {v(Gv)}'); e(f'v_lshl_add_u32 {v(t2)}, {v(r)}, 7, {v(t2)}'); e(f'v_lshl_add_u32 {v(t2)}, {v(c_)}, 3, {v(t2)}'); e(f'v_lshl_add_u32 {v(t2)}, {v(t1)}, 5, {v(t2)}'); e(f'v_add_u32 {v(t2)}, 32768, {v(t2)}')
    e(f's_lshl_b32 {s(sT)}, {s(sW)}, 5'); e(f'v_xor_b32 {v(TO)}, {s(sT)}, {v(t2)}'); e(f'v_add_u32 {v(TO2)}, 65536, {v(TO)}')
    e(f's_lshl_b32 {s(sT)}, {s(sEh)}, 6'); e(f'v_xor_b32 {v(T1)}, {s(sT)}, {v(t2)}'); e(f'v_xor_b32 {v(T12)}, 32, {v(T1)}')
    e(f's_lshl_b32 {s(sRing)}, {s(sW)}, 10'); e(f's_add_u32 {s(sRing)}, {s(sRing)}, 32768')
    if OPT['dl']:
        e(f'v_mov_b32 v17, 0'); p+=poll(17,s(sQf),str(OPT['dl']),16)
    bt=[('o',k) for k in range(8)]+[('1',k) for k in range(4)]+[('2',k) for k in range(4)]
    D=OPT['d2']; VQ=[]
    def issue(bi):
        m_,k=bt[bi]; p.extend(srd(*{'o':(PWO,4<<20),'1':(PW1,512*3584),'2':(PW2,1792*1024)}[m_]))
        for i in range(4):
            ks=4*k+i
            if m_=='2' and ks>13: continue
            e(f's_add_u32 m0, {s(sRing)}, {(bi%8)*16384+4096*i}'); e(f's_mov_b32 {s(sT+7)}, {ks*32*(3584 if m_=="1" else 1024)}')
            e(f'buffer_load_dwordx4 {v({"o":AO,"1":A1,"2":A2}[m_])}, {s(SRD,4)}, {s(sT+7)} offen lds'); VQ.append(bi)
    for bi in range(D): issue(bi)
    for bi in range(16):
        m_,k=bt[bi]
        e(f's_waitcnt vmcnt({len(VQ)-1-max(x for x,t_ in enumerate(VQ) if t_==bi)})'); e('s_barrier')
        if bi+D<16: issue(bi+D)
        for i in range(4):
            ks=4*k+i
            if m_=='2' and ks>13: continue
            for jh in range(2):
                off=(bi%4)*16384+4096*i+512*jh
                if m_=='1':
                    for t in range(2): e(f'ds_read_b64_tr_b16 {a(128+64*t+4*ks+2*jh,2)}, {v(T12 if t else T1)} offset:{off}')
                else: e(f'ds_read_b64_tr_b16 {a(4*ks+2*jh,2) if m_=="o" else v(200+4*ks+2*jh,2)}, {v(TO2 if (bi%8)>=4 else TO)} offset:{off}')
        e('s_waitcnt lgkmcnt(0)')
    p+=slog()
    if sync: p+=dbg_wait(132,64,16)
    e(f's_mov_b32 {s(sT)}, {MOD_OFF+2048}')
    e(f'v_lshlrev_b32 {v(L8)}, 3, {v(LN)}')
    for i in range(8): e(f'buffer_load_dwordx2 {v(16+2*i,2)}, {v(L8)}, {s(WS,4)}, {s(sT)} offen offset:{512*i} sc1')
    for i in range(16): p+=unp(MODV+2*i,16+i)
    for i in range(16,24): e(f'v_add_f32 {v(MODV+i)}, 1.0, {v(MODV+i)}')
    for i in range(16,24,2): p+=rnd(MODV+i,MODV+i+1,16)
    p+=slog()
    p+=poll(FA2,s(sFr),'1',16,BF_XC-BF_GB)
    e(f'v_cmp_ne_u32 vcc, {s(sFast)}, v16')
    e(f's_cmp_ge_u32 {s(sGrp)}, 5'); e(f's_cselect_b32 {s(sT)}, 38, 0'); e(f's_add_u32 {s(sSeg)}, {s(sGrp)}, {s(sT)}')
    p+=slog()
    e(f's_lshl_b32 {s(sT)}, {s(sJ)}, 15'); e(f's_lshl_b32 {s(sT+1)}, {s(sW)}, 13'); e(f's_add_u32 {s(sT)}, {s(sT)}, {s(sT+1)}'); e(f's_add_u32 {s(sT)}, {s(sT)}, {s(sGB)}'); e(f's_add_u32 {s(sT+1)}, {s(sT)}, 4096')
    for i in range(8): e(f'buffer_load_dwordx4 v[20:23], {v(L16)}, {s(WS,4)}, {s(sT+(i>>2))} offen offset:{1024*(i&3)} sc1')
    if OPT['cw2']:
        e(f's_getpc_b64 {s(sT+2,2)}'); e(f's_lshl_b32 {s(sT)}, {s(sJ)}, 2'); e(f's_add_u32 {s(sT)}, {s(sT)}, {s(sW)}'); e(f's_and_b32 {s(sT)}, {s(sT)}, 15'); e(f's_min_u32 {s(sT)}, {s(sT)}, 10'); e(f's_lshl_b32 {s(sT)}, {s(sT)}, 10')
        e(f'v_add_u32 v24, {s(sT)}, {v(L16)}'); e(f'global_load_dword v24, v24, {s(sT+2,2)}')
    e(f's_mov_b64 {s(sT+4,2)}, vcc'); e('s_barrier')
    e(f's_cmp_eq_u32 {s(sW)}, 0'); e('s_cbranch_scc1 L_p2_nf'); p+=qkv_fetch(sync,sSeg); p.append('L_p2_nf:')
    e(f's_mov_b64 vcc, {s(sT+4,2)}')
    e('s_waitcnt vmcnt(0)')
    p+=slog()
    p+=srd(PX,2048*1024)
    p+=STAMP(7,128)
    e('s_barrier')
    e('s_cbranch_vccnz L_p2_S')
    return fix(p,'p2s')

def seglog(k):
    if not OPT.get('log'): return []
    _u[0]+=1; L_=f'L_lg{_u[0]}'
    return [f's_or_b32 s90, {s(sJ)}, {s(sW)}', f's_cbranch_scc1 {L_}', 's_memrealtime s[90:91]', f's_lshl_b32 s92, {s(sSeg)}, 3', f's_lshr_b32 s93, {s(sMA)}, 1', 's_add_u32 s92, s92, s93', f's_add_u32 s92, s92, {(122<<20)+4*k}', 's_waitcnt lgkmcnt(0)',
            'v_mov_b32 v11, s90', f'buffer_store_dword v11, off, {s(WS,4)}, s92', L_+':']
def p2_loop(mode, sync):
    sc=' sc1' if mode=='S' else ''
    L=f'L_p2_{mode}'
    p=[L+':']; e=p.append
    nb=[0]; ool=[]
    def gbar():
        nb[0]+=1; k=f'{L}_g{nb[0]}'
        return ['s_waitcnt vmcnt(0)','s_barrier', f's_add_u32 {s(sEp)}, {s(sEp)}, 1', f's_cmp_lg_u32 {s(sW)}, 0', f's_cbranch_scc1 {k}',
                f'v_mov_b32 v14, {s(sEp)}','s_mov_b64 exec, 1', f'buffer_store_dword v14, off, {s(WS,4)}, {s(sFw)}{sc}','s_mov_b64 exec, -1','s_nop 15']+pollp(FA2,s(sFr),s(sEp),PR)+STAMP(8+nb[0],160)+[k+':','s_barrier']
    QF=16; KF=32; VF=64; KV=80; S0=92; OA=104; T=120; MX=121; SUM=122; PXr=124; KM=128; XR=136; X1=140; PR=150
    e(f's_cmp_ge_u32 {s(sGrp)}, 5'); e(f's_cselect_b32 {s(sMA)}, 1024, 0'); e(f's_cmp_ge_u32 {s(sSeg)}, {64-OPT["hf"]}'); e(f's_cselect_b32 {s(sMA)}, {s(sMA)}, 0')
    e(f's_cselect_b32 {s(sOB)}, 0x40000000, 0'); e(f's_cselect_b32 {s(sAct)}, 16, 0'); e(f's_add_u32 {s(sOB)}, {s(sOB)}, 1024')
    e(f's_lshr_b32 {s(sT)}, {s(sMA)}, 6'); e(f's_xor_b32 {s(sT)}, {s(sT)}, {s(sJ)}'); e(f's_and_b32 {s(sAct)}, {s(sAct)}, {s(sT)}')
    e(f's_lshl_b32 {s(sT)}, {s(sSeg)}, 5'); e(f's_add_u32 {s(sT)}, {s(sT)}, {s(sJ)}'); e(f's_lshl_b32 {s(sT+6)}, {s(sT)}, 10')
    e(f's_lshl_b32 {s(sT)}, {s(sJ)}, 6'); e(f's_add_u32 {s(sT)}, {s(sT)}, {s(sSeg)}'); e(f's_lshl_b32 {s(sT+5)}, {s(sT)}, 12'); e(f's_add_u32 {s(sT+5)}, {s(sT+5)}, {KVM_OFF}')
    e(f's_lshl_b32 {s(sT)}, {s(sEh)}, 11'); e(f's_add_u32 {s(sT+5)}, {s(sT+5)}, {s(sT)}')
    kvl=[f'buffer_load_dwordx4 {v(KV+4*i,4)}, {v(L16)}, {s(WS,4)}, {s(sT+5)} offen offset:{1024*i} sc1' for i in range(2)]
    p+=kvl
    for i in range(2): e(f'buffer_load_dwordx2 {v(XR+2*i,2)}, {v(L8)}, {s(SRD,4)}, {s(sT+6)} offen offset:{512*i}')
    e(f's_lshl_b32 {s(sT)}, {s(sM)}, 12'); e(f's_add_u32 {s(sT)}, {s(sT)}, {L_PF}'); e(f'v_add_u32 {v(T)}, {s(sT)}, {v(L16)}')
    for i in range(4): e(f'ds_read_b128 {v(QF+4*i,4)}, {v(T)} offset:{1024*i}')
    e(f'v_add_u32 {v(T)}, {L_PF+8192}, {v(L16)}')
    for i in range(8): e(f'ds_read_b128 {v(KF+4*i,4)}, {v(T)} offset:{1024*i}')
    e(f's_lshl_b32 {s(sT)}, {s(sEh)}, 12'); e(f'v_add_u32 {v(T)}, {s(sT)}, {v(T)}')
    for i in range(4): e(f'ds_read_b128 {v(VF+4*i,4)}, {v(T)} offset:{8192+1024*i}')
    for m in range(2):
        for ks in range(4): e(f'{MF32} {v(S0+4*m,4)}, {v(KF+16*m+4*ks,4)}, {v(QF+4*ks,4)}, '+(v(S0+4*m,4) if ks else '0'))
    e(f'v_mov_b64 {v(S0+8,2)}, 0'); e(f'v_mov_b64 {v(S0+10,2)}, 0')
    def sround(a_): return rnd(a_,a_+1,T)+[f'v_mul_f32 {v(a_)}, {s(sScale)}, {v(a_)}', f'v_mul_f32 {v(a_+1)}, {s(sScale)}, {v(a_+1)}']+rnd(a_,a_+1,T)
    for i in range(0,8,2): p+=sround(S0+i)
    e(f's_lshl_b32 {s(sT+1)}, {s(sM)}, 4'); e(f'v_add_u32 {v(T)}, {s(sT+1)}, {v(MSK)}'); e(f'v_mov_b32 {v(SUM)}, {hex(f2u(-999292928.0))}')
    for i in range(8):
        e(f'v_cmp_le_i32 vcc, {16*(i>>2)+(i&3)}, {v(T)}'); e(f'v_cndmask_b32 {v(S0+i)}, {v(SUM)}, {v(S0+i)}, vcc')
    e(f'v_max3_f32 {v(MX)}, {v(S0)}, {v(S0+1)}, {v(S0+2)}'); e(f'v_max3_f32 {v(MX)}, {v(MX)}, {v(S0+3)}, {v(S0+4)}'); e(f'v_max3_f32 {v(MX)}, {v(MX)}, {v(S0+5)}, {v(S0+6)}'); e(f'v_max_f32 {v(MX)}, {v(MX)}, {v(S0+7)}')
    p+=xg('v_max_f32',MX,T)
    for i in range(8): e(f'v_sub_f32 {v(S0+i)}, {v(S0+i)}, {v(MX)}')
    for i in range(8): e(f'v_mul_f32 {v(S0+i)}, {s(sLg)}, {v(S0+i)}')
    for i in range(8): e(f'v_exp_f32 {v(S0+i)}, {v(S0+i)}')
    e(f'v_add_f32 {v(SUM)}, {v(S0)}, {v(S0+1)}')
    for i in range(2,8): e(f'v_add_f32 {v(SUM)}, {v(SUM)}, {v(S0+i)}')
    p.append(f'{L}_kc:')
    e('s_waitcnt vmcnt(0)')
    e(f's_add_u32 {s(sSpin)}, {s(sSpin)}, 1'); e(f's_cmp_gt_u32 {s(sSpin)}, {LIM}')
    e(f'v_max3_u32 {v(T)}, {v(KV)}, {v(KV+1)}, {v(KV+2)}'); e(f'v_max3_u32 {v(T)}, {v(T)}, {v(KV+3)}, {v(KV+4)}'); e(f'v_max3_u32 {v(T)}, {v(T)}, {v(KV+5)}, {v(KV+6)}'); e(f'v_max_u32 {v(T)}, {v(T)}, {v(KV+7)}')
    e(f'v_cmp_eq_u32 vcc, -1, {v(T)}'); e(f's_cbranch_scc1 {L}_kx')
    e(f's_cbranch_vccnz {L}_kd')
    ool.extend([f'{L}_kd:', f's_cmp_ge_u32 {s(sSeg)}, 62', f's_cbranch_scc1 {L}_ke', f's_sleep {OPT["ks"]}', f'{L}_ke:']+kvl+[f's_branch {L}_kc'])
    p.append(f'{L}_kx:')
    p+=STAMP(8,160)+seglog(0)
    e(f's_cmp_eq_u32 {s(sM)}, 1'); e('s_cselect_b64 vcc, -1, 0')
    e(f'v_cndmask_b32 {v(KV+9)}, {v(KV+1)}, {v(KV+5)}, vcc'); e(f'v_cndmask_b32 {v(KV+11)}, {v(KV+3)}, {v(KV+7)}, vcc')
    e(f'ds_write2_b32 {v(KW)}, {v(KV+9)}, {v(KV+11)} offset0:0 offset1:8'); e('s_waitcnt lgkmcnt(0)'); e('s_barrier')
    for k in range(2): e(f'ds_read_b128 {v(KM+4*k,4)}, {v(L16)} offset:{1024*k}')
    for k in range(2): e(f'{SMF} {v(S0+8,4)}, {v(KM+4*k,4)}, {v(QF+8*k,8)}, {v(IDX)}')
    e(f'v_add_f32 {v(S0+8)}, {v(S0+8)}, {v(S0+9)}'); e(f'v_add_f32 {v(S0+9)}, {v(S0+10)}, {v(S0+11)}')
    p+=sround(S0+8)
    AL=S0+10; M2=S0+11
    e(f'v_max3_f32 {v(M2)}, {v(MX)}, {v(S0+8)}, {v(S0+9)}'); p+=xg('v_max_f32',M2,T)
    e(f'v_sub_f32 {v(S0+8)}, {v(S0+8)}, {v(M2)}'); e(f'v_sub_f32 {v(S0+9)}, {v(S0+9)}, {v(M2)}'); e(f'v_sub_f32 {v(AL)}, {v(MX)}, {v(M2)}')
    for i in range(8,11): e(f'v_mul_f32 {v(S0+i)}, {s(sLg)}, {v(S0+i)}')
    for i in range(8,11): e(f'v_exp_f32 {v(S0+i)}, {v(S0+i)}')
    e(f'v_add_f32 {v(M2)}, {v(S0+8)}, {v(S0+9)}'); e(f'v_fmac_f32 {v(M2)}, {v(AL)}, {v(SUM)}')
    p+=xg('v_add_f32',M2,T); e(f'v_rcp_f32 {v(M2)}, {v(M2)}')
    e(f'v_mul_f32 {v(AL)}, {v(AL)}, {v(M2)}')
    e(f'v_pk_mul_f32 {v(S0+8,2)}, {v(S0+8,2)}, {v(AL,2)} op_sel:[0,1]')
    for i in range(0,8,2): e(f'v_pk_mul_f32 {v(S0+i,2)}, {v(S0+i,2)}, {v(AL,2)} op_sel_hi:[1,0]')
    for i in range(4): e(f'v_cvt_pk_bf16_f32 {v(PXr+i)}, {v(S0+2*i)}, {v(S0+2*i+1)}')
    e(f'v_cvt_pk_bf16_f32 {v(ZR)}, {v(S0+8)}, {v(S0+9)}')
    for i in range(4): e(f'{MF32} {v(OA+4*i,4)}, {v(VF+4*i,4)}, {v(PXr,4)}, 0')
    for i in range(4): e(f'{MF16} {v(OA+4*i,4)}, {v(KV+2*i,2)}, {v(ZR,2)}, {v(OA+4*i,4)}')
    e(f's_lshl_b32 {s(sT+1)}, {s(sJ)}, 13'); e(f's_lshl_b32 {s(sT+2)}, {s(sEh)}, 12'); e(f's_add_u32 {s(sT+1)}, {s(sT+1)}, {s(sT+2)}'); e(f's_lshl_b32 {s(sT+2)}, {s(sM)}, 10')
    e(f's_add_u32 {s(sT+1)}, {s(sT+1)}, {s(sT+2)}'); e(f's_add_u32 {s(sT+1)}, {s(sT+1)}, {s(sGB)}')
    for k in range(2):
        for i in range(4): e(f'v_cvt_pk_bf16_f32 {v(QF+4*k+i)}, {v(OA+8*k+2*i)}, {v(OA+8*k+2*i+1)}')
        e(f'buffer_store_dwordx4 {v(QF+4*k,4)}, {v(L16)}, {s(WS,4)}, {s(sT+1)} offen offset:{G_O+2048*k}{sc}')
    p+=gbar()
    def gemm_part(src_lines, nks, wf, dst_off, tag):
        o=list(src_lines)
        nrt=(nks+3)//4; nr=2*nrt; A_=OPT['ga']; S_=OPT['gs']; VQ=[]
        o+=[f's_lshl_b32 {s(sT+2)}, {s(sW)}, 11', f's_add_u32 {s(sT+1)}, {s(sT+1)}, {s(sT+2)}', f's_add_u32 {s(sT+3)}, {s(sT+1)}, {s(sOB)}', f's_add_u32 {s(sT+1)}, {s(sT+1)}, {s(sMA)}',
            f's_lshl_b32 {s(sT+2)}, {s(sW)}, 10', f's_add_u32 m0, {s(sT+2)}, 4096', f'v_add_u32 {v(T)}, 4096, {v(L16)}']
        def dma():
            r=len([x for x in VQ if x!='s']); VQ.append(r)
            return [f'buffer_load_dwordx4 {v(L16)}, {s(WS,4)}, {s(sT+1)} offen sc1 lds', 's_add_u32 m0, m0, 4096', f's_mov_b32 {s(sT+1)}, {s(sT+3)}' if r==nrt-1 else f's_add_u32 {s(sT+1)}, {s(sT+1)}, 8192']
        for r in range(min(A_,nr)):
            o+=dma()
            if r%2==1: o.append('s_barrier')
        o+=[f's_lshl_b32 {s(sT+4)}, {s(sMA)}, 7', f's_add_u32 {s(sT+4)}, {s(sT+4)}, {s(sGB)}', f's_add_u32 {s(sT+4)}, {s(sT+4)}, {dst_off}']
        seq=[(t,ks) for t in range(2) for ks in range(nks)]; slot=lambda i: seq[i][0]*4*nrt+seq[i][1]
        def rd(i):
            x=[]; f=slot(i)
            if f%(4*S_)==0: x=[f's_waitcnt vmcnt({len(VQ)-1-VQ.index(min(nr,f//4+S_)-1)})','s_barrier']
            return x+[f'ds_read_b128 {v(QF+4*(i%8),4)}, {v(T)} offset:{1024*f}']
        st=lambda t,r: [f'buffer_store_dword {v(OA+4*t+r)}, {v(PSA)}, {s(WS,4)}, {s(sT+4)} offen{sc}', f's_add_u32 {s(sT+4)}, {s(sT+4)}, {8192 if r<3 else 13*8192}']
        for i in range(4): o+=rd(i)
        for i,(t,ks) in enumerate(seq):
            ac=v(OA+4*t,4)
            o.append(f'{MF32} {ac}, {v(QF+4*(i%8),4)}, {wf(ks)}, '+(ac if ks else '0'))
            if i==nks-1: o+=[f's_cmp_lg_u32 {s(sOB)}, 1024', f's_cbranch_scc1 {L}_{tag}h']
            if i+4<len(seq): o+=rd(i+4)
            if ks%4==1 and len([x for x in VQ if x!='s'])<nr: o+=dma()
            if t==1 and ks in (3,5,7,9): o+=st(0,(ks-3)//2); VQ.append('s')
        for r in range(4): o+=st(1,r)
        o+=[f'{L}_{tag}x:']+STAMP(16 if nks==32 else 19,160)
        ool.extend([f'{L}_{tag}h:','s_nop 5']+sum([st(0,r) for r in range(4)],[])+['s_waitcnt lgkmcnt(0)',f's_branch {L}_{tag}x'])
        return o
    p+=gemm_part([f's_lshl_b32 {s(sT+1)}, {s(sKq)}, 16', f's_add_u32 {s(sT+1)}, {s(sT+1)}, {s(sGB)}'],32,WO,G_P1,'ga')
    nb[0]+=1
    def rowsum(off,tag):
        k_=f'{L}_{tag}'
        o=[f's_lshl_b32 {s(sT+1)}, {s(sJ)}, 13', f's_add_u32 {s(sT+1)}, {s(sT+1)}, {s(sGB)}', f's_add_u32 {s(sT+1)}, {s(sT+1)}, {off}', f's_add_u32 {s(sT+2)}, {s(sT+1)}, 4096']+([f's_sleep {OPT["rd"]}'] if OPT['rd'] else [])+[k_+':']
        for k in range(4):
            for hf in range(2): o.append(f'buffer_load_dwordx4 {v(QF+8*k+4*hf,4)}, {v(L16)}, {s(WS,4)}, {s(sT+1+(k>>1))} offen offset:{2048*(k&1)+1024*hf} sc1')
        o+=[f's_add_u32 {s(sSpin)}, {s(sSpin)}, 4', f's_cmp_gt_u32 {s(sSpin)}, {LIM}']
        for k in range(1,4):
            for i in range(0,8,2): o.append(f'v_pk_add_f32 {v(QF+i,2)}, {v(QF+i,2)}, {v(QF+8*k+i,2)}')
        o+=[f'v_pk_add_f32 {v(QF+8,2)}, {v(QF,2)}, {v(QF+2,2)}', f'v_pk_add_f32 {v(QF+10,2)}, {v(QF+4,2)}, {v(QF+6,2)}', f'v_pk_add_f32 {v(QF+8,2)}, {v(QF+8,2)}, {v(QF+10,2)}',
            f'v_cmp_u_f32 vcc, {v(QF+8)}, {v(QF+9)}', f's_cbranch_scc1 {k_}x', f's_cbranch_vccnz {k_}', k_+'x:']
        for i in range(0,8,2): o+=rnd(QF+i,QF+i+1,T)
        return o
    repoison=[f'buffer_store_dwordx4 {v(NEG,4)}, {v(L16)}, {s(WS,4)}, {s(sT+1+(i>>2))} offen offset:{1024*(i&3)}{sc}' for i in range(8)]
    e(f's_cmp_lt_u32 {s(sSeg)}, 38'); e(f's_cselect_b32 {s(sCnt)}, 5, 7')
    if OPT['hf']: e(f's_cmp_ge_u32 {s(sSeg)}, 57'); e(f's_cselect_b32 {s(sCnt)}, {7-OPT["hf"]}, {s(sCnt)}')
    e(f's_add_u32 {s(sCnt)}, {s(sSeg)}, {s(sCnt)}')
    e(f's_cmp_eq_u32 {s(sW)}, 0'); e(f's_cbranch_scc1 {L}_n0')
    e('s_barrier'); e(f's_cmp_ge_u32 {s(sCnt)}, 64'); e(f's_cbranch_scc1 {L}_n1')
    p+=qkv_fetch(sync,sCnt); e(f's_branch {L}_n1')
    p.append(f'{L}_n0:')
    e(f's_cmp_eq_u32 {s(sAct)}, 0'); e(f's_cbranch_scc1 {L}_n5'); e('s_barrier'); e(f's_branch {L}_n1'); p.append(f'{L}_n5:')
    for i in range(4): p+=unp(X1+2*i,XR+i)
    p+=rowsum(G_P1,'ra')+['s_barrier']+STAMP(10,160)
    for i in range(0,8,2): e(f'v_pk_mul_f32 {v(QF+i,2)}, {v(QF+i,2)}, {v(MODV+i,2)}')
    for i in range(0,8,2): p+=rnd(QF+i,QF+i+1,T)
    for i in range(0,8,2): e(f'v_pk_add_f32 {v(X1+i,2)}, {v(X1+i,2)}, {v(QF+i,2)}')
    for i in range(0,8,2): p+=rnd(X1+i,X1+i+1,T)
    e(f'v_pk_add_f32 {v(QF,2)}, {v(X1,2)}, {v(X1+2,2)}'); e(f'v_pk_add_f32 {v(QF+2,2)}, {v(X1+4,2)}, {v(X1+6,2)}'); e(f'v_pk_add_f32 {v(QF,2)}, {v(QF,2)}, {v(QF+2,2)}'); e(f'v_add_f32 {v(MX)}, {v(QF)}, {v(QF+1)}')
    p+=xrow(MX)+xg('v_add_f32',MX,T); e(f'v_mul_f32 {v(MX)}, {hex(f2u(1/512))}, {v(MX)}')
    sub=lambda i: f'v_pk_add_f32 {v(QF+i,2)}, {v(X1+i,2)}, {v(MX-1,2)} op_sel:[0,1] neg_lo:[0,1] neg_hi:[0,1]'
    for i in range(0,8,2): e(sub(i))
    e(f'v_pk_mul_f32 {v(QF,2)}, {v(QF,2)}, {v(QF,2)}')
    for i in range(2,8,2): e(f'v_pk_fma_f32 {v(QF,2)}, {v(QF+i,2)}, {v(QF+i,2)}, {v(QF,2)}')
    e(f'v_add_f32 {v(SUM)}, {v(QF)}, {v(QF+1)}')
    p+=xrow(SUM)+xg('v_add_f32',SUM,T); e(f'v_mul_f32 {v(SUM)}, {hex(f2u(1/512))}, {v(SUM)}')
    p+=rnd(MX,SUM,T)
    e(f'v_add_f32 {v(SUM)}, {hex(f2u(1e-5))}, {v(SUM)}'); p+=rnd(SUM,SUM,T)[:2]
    e(f'v_sqrt_f32 {v(SUM)}, {v(SUM)}'); p+=rnd(SUM,SUM,T)[:2]
    e(f'v_rcp_f32 {v(SUM)}, {v(SUM)}')
    for i in range(0,8,2): e(sub(i))
    for i in range(0,8,2): p+=rnd(QF+i,QF+i+1,T)
    for i in range(0,8,2): e(f'v_pk_mul_f32 {v(QF+i,2)}, {v(QF+i,2)}, {v(SUM,2)} op_sel_hi:[1,0]')
    for i in range(0,8,2): p+=rnd(QF+i,QF+i+1,T)
    for i in range(0,8,2): e(f'v_pk_mul_f32 {v(QF+i,2)}, {v(QF+i,2)}, {v(MODV+16+i,2)}')
    for i in range(0,8,2): p+=rnd(QF+i,QF+i+1,T)
    for i in range(0,8,2): e(f'v_pk_add_f32 {v(QF+i,2)}, {v(QF+i,2)}, {v(MODV+8+i,2)}')
    for i in range(4): e(f'v_cvt_pk_bf16_f32 {v(QF+8+i)}, {v(QF+2*i)}, {v(QF+2*i+1)}')
    e(f's_lshl_b32 {s(sT+1)}, {s(sJ)}, 10'); e(f's_add_u32 {s(sT+1)}, {s(sT+1)}, {s(sGB)}'); e(f's_add_u32 {s(sT+1)}, {s(sT+1)}, {G_H2}')
    for i in range(2): e(f'buffer_store_dwordx2 {v(QF+8+2*i,2)}, {v(L8)}, {s(WS,4)}, {s(sT+1)} offen offset:{512*i}{sc}')
    p+=STAMP(15,160)
    p.append(f'{L}_n1:')
    p+=gbar()
    if OPT.get('dp2'): e(f's_sleep {OPT["dp2"]}')
    e(f's_cmp_ge_u32 {s(sJ)}, 28'); e(f's_cbranch_scc1 {L}_n2')
    e(f's_lshl_b32 {s(sT+1)}, {s(sW)}, 13'); e(f's_add_u32 {s(sT+1)}, {s(sT+1)}, {s(sGB)}'); e(f's_add_u32 {s(sT+1)}, {s(sT+1)}, {G_H2}')
    e(f's_lshl_b32 {s(sT+2)}, {s(sEh)}, 10'); e(f's_cmp_eq_u32 {s(sT+2)}, {s(sMA)}'); e(f's_cselect_b32 {s(sT+2)}, 0, {s(sOB)}'); e(f's_and_b32 {s(sT+2)}, {s(sT+2)}, 0x40000000'); e(f's_add_u32 {s(sT+1)}, {s(sT+1)}, {s(sT+2)}')
    e(f's_lshl_b32 {s(sT+2)}, {s(sEh)}, 14'); e(f's_lshl_b32 {s(sT+3)}, {s(sM)}, 10'); e(f's_add_u32 {s(sT+2)}, {s(sT+2)}, {s(sT+3)}')
    for i in range(8):
        e(f's_add_u32 m0, {s(sT+2)}, {4096+2048*i}'); e(f's_add_u32 {s(sT+3)}, {s(sT+1)}, {128*i}')
        e(f'buffer_load_dwordx4 {v(HSR)}, {s(WS,4)}, {s(sT+3)} offen sc1 lds')
        if i in (1,3,5): e('s_barrier')
    rd=lambda ks: f'ds_read_b128 {v(QF+4*(ks%8),4)}, {v(HRD1 if ks&1 else HRD)} offset:{4096+2048*(ks>>1)}'
    rdw=lambda ks: ([f's_waitcnt vmcnt({6-ks//2})','s_barrier'] if ks%4==0 else [])+[rd(ks)]
    for ks in range(3): p+=rdw(ks)
    for ks in range(16):
        e(f'{MF32} {v(OA,4)}, {W1(0,ks)}, {v(QF+4*(ks%8),4)}, '+(v(OA,4) if ks else '0'))
        if ks+3<16: p+=rdw(ks+3)
        e(f'{MF32} {v(OA+4,4)}, {W1(1,ks)}, {v(QF+4*(ks%8),4)}, '+(v(OA+4,4) if ks else '0'))
    p+=STAMP(17,160)
    e(f's_lshl_b32 {s(sT+1)}, {s(sJ)}, 12'); e(f's_lshl_b32 {s(sT+2)}, {s(sEh)}, 11'); e(f's_add_u32 {s(sT+1)}, {s(sT+1)}, {s(sT+2)}'); e(f's_lshl_b32 {s(sT+2)}, {s(sM)}, 10')
    e(f's_add_u32 {s(sT+1)}, {s(sT+1)}, {s(sT+2)}'); e(f's_add_u32 {s(sT+1)}, {s(sT+1)}, {s(sGB)}'); e(f's_add_u32 {s(sT+1)}, {s(sT+1)}, {G_F1}')
    for i in range(8): e(f'v_max_f32 {v(OA+i)}, 0, {v(OA+i)}')
    for i in range(4): e(f'v_cvt_pk_bf16_f32 {v(PXr+i)}, {v(OA+2*i)}, {v(OA+2*i+1)}')
    e(f'buffer_store_dwordx4 {v(PXr,4)}, {v(L16)}, {s(WS,4)}, {s(sT+1)} offen{sc}')
    p+=STAMP(18,160)
    p.append(f'{L}_n2:')
    p+=gbar()
    p+=gemm_part([f's_mul_i32 {s(sT+1)}, {s(sKq)}, 28672', f's_add_u32 {s(sT+1)}, {s(sT+1)}, {s(sGB)}', f's_add_u32 {s(sT+1)}, {s(sT+1)}, {G_F1}'],14,W2,G_P2,'gb')
    nb[0]+=1
    e(f's_or_b32 {s(sT)}, {s(sW)}, {s(sAct)}'); e(f's_cbranch_scc1 {L}_n3')
    p+=rowsum(G_P2,'rb')+STAMP(13,160)
    for i in range(0,8,2): e(f'v_pk_mul_f32 {v(QF+i,2)}, {v(QF+i,2)}, {v(MODV+24+i,2)}')
    for i in range(0,8,2): p+=rnd(QF+i,QF+i+1,T)
    for i in range(0,8,2): e(f'v_pk_add_f32 {v(QF+i,2)}, {v(QF+i,2)}, {v(X1+i,2)}')
    for i in range(4): e(f'v_cvt_pk_bf16_f32 {v(QF+8+i)}, {v(QF+2*i)}, {v(QF+2*i+1)}')
    e(f'v_add_u32 {v(T)}, {s(sT+6)}, {v(L8)}')
    for i in range(2): e(f'global_store_dwordx2 {v(T)}, {v(QF+8+2*i,2)}, {s(POUT,2)} offset:{512*i}')
    e(f's_cmp_ge_u32 {s(sCnt)}, 64'); e(f's_cbranch_scc1 {L}_n4')
    p+=repoison+[f'{L}_n4:']
    p+=STAMP(14,160)+STAMP(20,96)+STAMP(21,64)+STAMP(22,32)
    p.append(f'{L}_n3:')
    p+=seglog(1)
    e(f's_lshl_b32 {s(sT+1)}, {s(sJ)}, 2'); e(f's_add_u32 {s(sT+1)}, {s(sT+1)}, {s(sW)}'); e(f's_lshl_b32 {s(sT+1)}, {s(sT+1)}, 11'); e(f's_add_u32 {s(sT+1)}, {s(sT+1)}, {s(sGB)}'); e(f's_add_u32 {s(sT+1)}, {s(sT+1)}, {G_P1}')
    e(f's_cmp_ge_u32 {s(sCnt)}, 64'); e(f's_cbranch_scc1 {L}_end')
    e('s_barrier')
    p+=repoison[:2]
    e(f's_mov_b32 {s(sSeg)}, {s(sCnt)}'); e(f's_branch {L}')
    p.append(f'{L}_end:')
    e('s_endpgm')
    r=fix(p,'p2'+mode); check(r+r,'p2loop')
    return r+ool
```

```python
from asmlib import *
from layout import *
import math, struct, re

T0=0; IDX=1; L16=2; LW=3; QW=4; QR=5; KW=6; OW=7; ORD=8; PST=9; MPUB=10; H2A=10; FLG=11
ONES=12; PM=16; KVQ=20; QA=24; KA=32; VA=40; M=48; X=80; STG=112; RES=128
L_MEM=0; L_Q=8192; L_K=10240; L_O=12288; L_SEL=14336; L_KX=16384; L_WV=24576; WREG=34816
WS=4; WSRD=8; DBG=12; sH=14; sW=15; sStep=16; sC=17; sKsrc=18; sVsrc=19; sKvm=20
sPst=21; sPin=23; sPrst=25; sPrstB=26; sPslot=27; sMemIn1=28; sSpinU=29; sPinB=30
sMemIn0=31; sMemB=32; sMemPub=33; sMemRst=34; sSlot=35; sSpin=36; sKdst=37; sKvF=38; sVdst=39; sKvmF=40; sReg=41
sT=42
sRo1=52; sRo2=56; sEx=50; sPtr=52; sRow=64; sTime=70; sOdd=88; sPs2=90; sOne=92; sC2=94; sSpinF=96; sFlag=98; sFlagB=99; sWoff=100
LIM='0x200000'
SMF='v_smfmac_f32_16x16x64_bf16'; MF32='v_mfma_f32_16x16x32_bf16'; MF16='v_mfma_f32_16x16x16_bf16'
OPT=dict(sync=0, d1=17, sl=4, nb=6, pp=0, rep=2, hotkv=0, tr=0, solo=0, cut=99, drop=0, cutm=-1, show=0, po=0, nk=1, bw=0, r1p=0, ob=0, bt=1, al=63, pad=7, m4=0, lt=16, nf=4, mid=0, dq=3, s4=1, s0=0, wd=5, ep=1, c2=0, ko=2, dch=0, pfi=22, pfn=1, th=0, mr=0, t1=0, dd=2, el=2, bl=3, ca=6, z4=1, bb=0, xl=2, eb=1, knt=0, ek=1, sw1=0, ord=3, dc=7, fi=28, de=9, v1=1, pub=1, nt=1, rs=0, b0=1, ro1=0, ro2=0, rp=0, warm=1, sp=0, np=2, dp=0, ps=24, sw=5)

lds_groups=[('q',0),('q',1),('q',2),('q',3),('o',0,3),('o',1,1),('o',1,2),('o',1,3)]
all_groups=[(m,c) for m in 'qkv' for c in range(8)]+[('o',tp,k) for tp in range(2) for k in range(4)]
res_groups=[g for g in all_groups if g not in lds_groups]
gloc={}
for i,g in enumerate(res_groups): gloc[g]=('a',16*i) if i<16 else ('v',RES+16*(i-16))
stream={('q',0,0):M+16,('q',0,1):M+24,('q',1,0):KA,('q',1,1):VA,('q',2,0):X,('q',2,1):X+8,('q',3,0):X+16,('q',3,1):X+24,
        ('o',0,3,0):X+8,('o',0,3,1):X+24,('o',1,1,0):X,('o',1,2,0):X+16,('o',1,3,0):KA,('o',1,1,1):VA,('o',1,2,1):QA,('o',1,3,1):X+8}
def ureg(g,t):
    if g in gloc: return gloc[g][0], gloc[g][1]+8*t
    return 'v', stream[g+(t,)]
def unit(g,t): p,b=ureg(g,t); return R(p,b,8)
def stream_reads(g,t):
    off=lds_groups.index(g)*4096+t*2048; b=stream[g+(t,)]
    return [f'ds_read_b128 {v(b,4)}, {v(LW)} offset:{off}', f'ds_read_b128 {v(b+4,4)}, {v(LW)} offset:{off+1024}']
def zero(b,n,val='0'): return [f'v_mov_b64 {v(b+i,2)}, {val}' for i in range(0,n,2)]
def kv_addr(): return [f'v_lshrrev_b32 {v(T0)}, 2, {v(L16)}', f'v_and_b32 {v(T0)}, 4, {v(T0)}']
def kv_check(L):
    return kv_addr()+[f's_add_u32 {s(sT+3)}, {s(sStep)}, 1', f's_min_u32 {s(sT+3)}, {s(sT+3)}, 63', f's_lshl_b32 {s(sT+3)}, {s(sT+3)}, 2', f'{L}c:',
            f'v_lshl_add_u32 {v(FLG)}, {v(FLG)}, 3, {v(T0)}', f'v_cmp_ge_u32 vcc, {s(sT+3)}, {v(FLG)}', f's_cbranch_vccnz {L}w', f'{L}x:']
def kv_wait(L):
    return [f'{L}w:', f's_add_u32 {s(sSpinF)}, {s(sSpinF)}, 1', f's_cmp_gt_u32 {s(sSpinF)}, {LIM}', f's_cbranch_scc1 {L}x',
            f'buffer_load_dword {v(FLG)}, {v(T0)}, {s(WS,4)}, {s(sKvF)} offen sc1', 's_waitcnt vmcnt(0)', f's_branch {L}c']
def h2_addr(d,t):
    if OPT['s4']:
        return [f'v_and_b32 {v(d)}, 0x270, {v(L16)}', f'v_and_b32 {v(t)}, 0x80, {v(L16)}', f'v_lshl_add_u32 {v(d)}, {v(t)}, 1, {v(d)}',
                f'v_and_b32 {v(t)}, 0x100, {v(L16)}', f'v_lshrrev_b32 {v(t)}, 1, {v(t)}', f'v_or_b32 {v(d)}, {v(d)}, {v(t)}']
    if OPT['el']:
        return [f'v_and_b32 {v(d)}, 0x30, {v(L16)}', f'v_and_b32 {v(t)}, 0xc0, {v(L16)}', f'v_lshl_add_u32 {v(d)}, {v(t)}, 2, {v(d)}',
                f'v_and_b32 {v(t)}, 0x300, {v(L16)}', f'v_lshrrev_b32 {v(t)}, 2, {v(t)}', f'v_or_b32 {v(d)}, {v(d)}, {v(t)}']
    return [f'v_and_b32 {v(d)}, 0x230, {v(L16)}', f'v_and_b32 {v(t)}, 0xc0, {v(L16)}', f'v_lshl_add_u32 {v(d)}, {v(t)}, 1, {v(d)}',
            f'v_and_b32 {v(t)}, 0x100, {v(L16)}', f'v_lshrrev_b32 {v(t)}, 2, {v(t)}', f'v_or_b32 {v(d)}, {v(d)}, {v(t)}']

def prologue(timing):
    p=[]; e=p.append
    VQ=[]
    def vm(line,tag=None): e(line); VQ.append(tag)
    def wait(tag):
        i=max(k for k,t in enumerate(VQ) if t==tag); e(f's_waitcnt vmcnt({min(63,len(VQ)-1-i)})')
    e(f's_load_dwordx2 {s(WSRD,2)}, s[0:1], 40')
    e(f's_load_dwordx4 {s(sPtr,4)}, s[0:1], 8')
    e(f's_load_dwordx4 {s(sPtr+4,4)}, s[0:1], 24')
    e(f's_load_dwordx2 {s(DBG,2)}, s[0:1], 104')
    e(f's_load_dwordx2 {s(WS,2)}, s[0:1], 112')
    if timing: e(f's_memrealtime {s(sTime,2)}')
    ln,n,g,t1,t2,g1,VOO,VA0,VA1,TO0,TO1,TA0,TA1,TB0,TB1,r=[STG+i for i in range(16)]
    e(f'v_lshrrev_b32 {v(t1)}, 6, v0'); e(f'v_and_b32 {v(ln)}, 63, v0'); e(f'v_readfirstlane_b32 {s(sW)}, {v(t1)}')
    e(f's_mov_b32 {s(WSRD+2)}, {4<<20}'); e(f's_mov_b32 {s(WSRD+3)}, 0x20000')
    e(f'v_and_b32 {v(n)}, 15, {v(ln)}'); e(f'v_lshrrev_b32 {v(g)}, 4, {v(ln)}'); e(f'v_and_b32 {v(g1)}, 1, {v(g)}')
    e(f's_mul_i32 {s(sReg)}, {s(sW)}, {WREG}'); e(f's_add_u32 {s(sReg)}, {s(sReg)}, {L_WV}')
    e(f'v_lshrrev_b32 {v(t1)}, 3, {v(n)}'); e(f'v_lshl_add_u32 {v(t1)}, {v(g1)}, 4, {v(t1)}'); e(f'v_lshrrev_b32 {v(t2)}, 1, {v(g)}'); e(f'v_lshl_add_u32 {v(t1)}, {v(t2)}, 2, {v(t1)}')
    e(f'v_and_b32 {v(t2)}, 7, {v(n)}'); e(f'v_lshlrev_b32 {v(t2)}, 4, {v(t2)}'); e(f'v_lshlrev_b32 {v(VOO)}, 6, {v(g1)}'); e(f'v_xor_b32 {v(t2)}, {v(t2)}, {v(VOO)}')
    e(f'v_lshl_add_u32 {v(VOO)}, {v(t1)}, 10, {v(t2)}')
    e(f's_lshl_b32 {s(sT)}, {s(sH)}, 17'); e(f's_lshl_b32 {s(sT+1)}, {s(sW)}, 8'); e(f's_add_u32 {s(sT)}, {s(sT)}, {s(sT+1)}')
    for k in range(4):
        e(f's_xor_b32 {s(sRow+k)}, {s(sW)}, {k}'); e(f's_lshl_b32 {s(sRow+k)}, {s(sRow+k)}, 15'); e(f's_add_u32 {s(sRow+k)}, {s(sRow+k)}, {s(sT)}')
    e('s_waitcnt lgkmcnt(0)')
    if timing: e('s_memrealtime s[80:81] ;stamp')
    items=[g_ for m_ in 'okvq' for g_ in res_groups if g_[0]==m_]+lds_groups
    SL=[i%8 for i in range(32)]
    k_=OPT['ord']
    if k_:
        items=items[:4]+items[32-k_:]+items[4:32-k_]
        R_=8-k_; n_=28-k_
        SL=[None]*4+list(range(8-k_,8))+[(j-n_)%R_ for j in range(n_)]
        SL[:4]=[(j-4-n_)%R_ for j in range(4)]
    nxt_=[0]
    def pump(it,lim):
        while nxt_[0]<32 and nxt_[0]<=lim and all(j<it for j in range(nxt_[0]) if SL[j]==SL[nxt_[0]]):
            issue(nxt_[0]); nxt_[0]+=1
    ptr={'q':sPtr+2,'k':sPtr+4,'v':sPtr+6,'o':sPtr+8}
    ntf=' nt' if OPT['nt'] else ''
    m4=OPT['m4']; cbase=(lambda c: 256*(c&1)+32*(c>>1)) if m4 else (lambda c: 128*(c&3)+(64 if OPT['el'] else 8)*(c>>2))
    s4=OPT['s4']; rowi=(lambda b: 8*(b>>1)+2*(b&1)) if s4 else (lambda b: 4*(b>>1)+(b&1))
    def issue(i):
        g_=items[i]
        if i>=4: e(f's_mov_b32 {s(WSRD)}, {s(ptr[g_[0]])}'); e(f's_mov_b32 {s(WSRD+1)}, {s(ptr[g_[0]]+1)}')
        for b in range(4):
            e(f's_add_u32 m0, {s(sReg)}, {SL[i]*4096+b*1024}')
            if g_[0]=='o': e(f's_add_u32 {s(sT+7)}, {s(sRow+g_[2])}, {(8*(b>>1)+2*(b&1))*1024+g_[1]*128}'); vo=VOO
            else: e(f's_mov_b32 {s(sT+7)}, {(cbase(g_[1])+rowi(b))*8192}'); vo=VA1 if b&1 else VA0
            vm(f'buffer_load_dwordx4 {v(vo)}, {s(WSRD,4)}, {s(sT+7)} offen{ntf} lds',g_)
    pump(0,3)
    e(f's_mov_b32 {s(sPtr+8)}, {s(WSRD)}'); e(f's_mov_b32 {s(sPtr+9)}, {s(WSRD+1)}')
    e(f's_mov_b32 {s(WS+2)}, {WS_BYTES}'); e(f's_mov_b32 {s(WS+3)}, 0x20000')
    e(f'v_lshlrev_b32 {v(L16)}, 4, {v(ln)}'); e(f'v_add_u32 {v(LW)}, {s(sReg)}, {v(L16)}')
    e(f's_add_u32 {s(sVdst)}, {s(sReg)}, 32768')
    e(f's_lshl_b32 {s(sT+1)}, {s(sW)}, 11'); e(f's_add_u32 {s(sKdst)}, {s(sT+1)}, {L_KX}')
    e(f's_lshl_b32 {s(sWoff)}, {s(sW)}, 10')
    e(f'v_and_b32 {v(t1)}, 1, {v(ln)}'); e(f'v_mul_u32_u24 {v(t1)}, 0xaaaa, {v(t1)}'); e(f'v_add_u32 {v(IDX)}, 0x4444, {v(t1)}')
    e(f's_lshl_b32 {s(sT+2)}, {s(sW)}, 9')
    e(f'v_lshrrev_b32 {v(r)}, 2, {v(n)}'); e(f'v_lshlrev_b32 {v(QW)}, 7, {v(r)}'); e(f'v_and_b32 {v(t1)}, 1, {v(r)}'); e(f'v_lshlrev_b32 {v(t1)}, 6, {v(t1)}')
    e(f'v_lshlrev_b32 {v(t2)}, 5, {v(g)}'); e(f'v_xor_b32 {v(t1)}, {v(t1)}, {v(t2)}'); e(f'v_add_u32 {v(QW)}, {v(QW)}, {v(t1)}')
    e(f'v_and_b32 {v(t1)}, 3, {v(n)}'); e(f'v_lshl_add_u32 {v(QW)}, {v(t1)}, 2, {v(QW)}'); e(f'v_add_u32 {v(QW)}, {s(sT+2)}, {v(QW)}'); e(f'v_add_u32 {v(QW)}, {L_Q}, {v(QW)}')
    e(f'v_lshlrev_b32 {v(t1)}, 3, {v(ln)}'); e(f'v_add_u32 {v(OW)}, {s(sT+2)}, {v(t1)}'); e(f'v_and_b32 {v(ORD)}, -9, {v(OW)}')
    e(f'v_and_b32 {v(t1)}, -9, {v(t1)}'); e(f'v_lshlrev_b32 {v(t2)}, 6, {v(g1)}'); e(f'v_xor_b32 {v(QR)}, {v(t1)}, {v(t2)}')
    e(f'v_bfe_u32 {v(t1)}, {v(n)}, 1, 2'); e(f'v_lshlrev_b32 {v(KW)}, 2, {v(t1)}'); e(f'v_and_b32 {v(t1)}, 1, {v(n)}'); e(f'v_lshl_add_u32 {v(KW)}, {v(t1)}, 4, {v(KW)}')
    e(f'v_lshl_add_u32 {v(KW)}, {v(g)}, 6, {v(KW)}'); e(f'v_lshrrev_b32 {v(t1)}, 3, {v(n)}'); e(f'v_lshl_add_u32 {v(KW)}, {v(t1)}, 8, {v(KW)}')
    e(f'v_add_u32 {v(KW)}, {s(sT+2)}, {v(KW)}'); e(f'v_add_u32 {v(KW)}, {L_K}, {v(KW)}')
    e(f'v_lshlrev_b32 {v(MPUB)}, {6 if s4 else 7 if OPT["el"] else 12}, {v(t1)}'); e(f'v_and_b32 {v(t1)}, 1, {v(r)}'); e(f'v_lshl_add_u32 {v(MPUB)}, {v(t1)}, {7 if s4 else 6}, {v(MPUB)}'); e(f'v_lshl_add_u32 {v(MPUB)}, {v(g1)}, 5, {v(MPUB)}')
    e(f'v_and_b32 {v(t1)}, 3, {v(n)}'); e(f'v_lshl_add_u32 {v(MPUB)}, {v(t1)}, 3, {v(MPUB)}'); e(f'v_lshrrev_b32 {v(t2)}, 1, {v(g)}'); e(f'v_lshl_add_u32 {v(MPUB)}, {v(t2)}, 31, {v(MPUB)}')
    e(f'v_lshlrev_b32 {v(TO0)}, 8, {v(g)}'); e(f'v_lshl_add_u32 {v(TO0)}, {v(t1)}, 3, {v(TO0)}'); e(f'v_lshl_add_u32 {v(TO0)}, {v(g1)}, 6, {v(TO0)}')
    e(f'v_and_b32 {v(t2)}, 1, {v(r)}'); e(f'v_lshl_add_u32 {v(TO0)}, {v(t2)}, 7, {v(TO0)}'); e(f'v_lshrrev_b32 {v(t2)}, 1, {v(r)}'); e(f'v_lshl_add_u32 {v(TO0)}, {v(t2)}, 5, {v(TO0)}')
    e(f'v_add_u32 {v(TO0)}, {s(sReg)}, {v(TO0)}'); e(f'v_xor_b32 {v(TO1)}, 64, {v(TO0)}')
    e(f'v_lshl_add_u32 {v(t2)}, {v(g1)}, 2, {v(r)}'); e(f's_lshl_b32 {s(sT+3)}, {s(sW)}, 1'); e(f'v_xor_b32 {v(t2)}, {s(sT+3)}, {v(t2)}')
    e(f'v_lshlrev_b32 {v(TA0)}, 10, {v(g)}'); e(f'v_lshl_add_u32 {v(TA0)}, {v(r)}, 8, {v(TA0)}'); e(f'v_lshl_add_u32 {v(TA0)}, {v(t2)}, 5, {v(TA0)}'); e(f'v_lshl_add_u32 {v(TA0)}, {v(t1)}, 3, {v(TA0)}')
    e(f'v_add_u32 {v(TA0)}, {L_WV}, {v(TA0)}'); e(f'v_xor_b32 {v(TA1)}, 32, {v(TA0)}'); e(f'v_add_u32 {v(TB0)}, {2*WREG}, {v(TA0)}'); e(f'v_add_u32 {v(TB1)}, {2*WREG}, {v(TA1)}')
    e(f's_lshl_b32 {s(sT+4)}, {s(sH)}, 8')
    e(f'v_and_b32 {v(t2)}, 2, {v(g)}'); e(f'v_lshlrev_b32 {v(t2)}, {s4}, {v(t2)}'); e(f'v_lshl_add_u32 {v(t2)}, {v(g1)}, 4, {v(t2)}'); e(f'v_lshlrev_b32 {v(t1)}, 1, {v(g)}'); e(f'v_xor_b32 {v(t1)}, {v(t1)}, {v(n)}'); e(f'v_lshlrev_b32 {v(t1)}, 4, {v(t1)}')
    e(f'v_lshl_add_u32 {v(VA0)}, {v(t2)}, 13, {v(t1)}'); e(f's_lshl_b32 {s(sT+3)}, {s(sW)}, 18')
    if s4: e(f's_and_b32 {s(sT+3)}, {s(sW)}, 1'); e(f's_lshl_b32 {s(sT+3)}, {s(sT+3)}, 13'); e(f's_lshr_b32 {s(sT+5)}, {s(sW)}, 1'); e(f's_lshl_b32 {s(sT+5)}, {s(sT+5)}, {20 if m4 else 18}'); e(f's_add_u32 {s(sT+3)}, {s(sT+3)}, {s(sT+5)}')
    elif OPT['el']: e(f's_and_b32 {s(sT+3)}, {s(sT+3)}, {1<<18}'); e(f's_lshr_b32 {s(sT+5)}, {s(sW)}, 1'); e(f's_lshl_b32 {s(sT+5)}, {s(sT+5)}, 16'); e(f's_add_u32 {s(sT+3)}, {s(sT+3)}, {s(sT+5)}')
    e(f's_add_u32 {s(sT+3)}, {s(sT+3)}, {s(sT+4)}')
    e(f'v_add_u32 {v(VA0)}, {s(sT+3)}, {v(VA0)}'); e(f'v_xor_b32 {v(VA1)}, 128, {v(VA0)}')
    e(f's_lshl_b32 {s(sT+3)}, {s(sW)}, 15'); e(f'v_lshlrev_b32 {v(t1)}, 11, {v(r)}'); e(f'v_add_u32 {v(t1)}, {s(sT+4)}, {v(t1)}'); e(f'v_and_b32 {v(t1)}, 0x1fff, {v(t1)}')
    e(f'v_lshl_add_u32 {v(PST)}, {v(g)}, 13, {v(t1)}'); e(f'v_lshl_add_u32 {v(PST)}, {v(n)}, 4, {v(PST)}'); e(f'v_add_u32 {v(PST)}, {s(sT+3)}, {v(PST)}')
    if s4:
        e(f'v_bfe_u32 {v(t1)}, {v(ln)}, 3, 2'); e(f'v_lshlrev_b32 {v(t1)}, 11, {v(t1)}'); e(f'v_add_u32 {v(t1)}, {s(sT+4)}, {v(t1)}'); e(f'v_and_b32 {v(t1)}, 0x1fff, {v(t1)}')
        e(f'v_lshrrev_b32 {v(t2)}, 5, {v(ln)}'); e(f'v_lshl_add_u32 {v(PST)}, {v(t2)}, 13, {v(t1)}'); e(f'v_and_b32 {v(t2)}, 31, {v(ln)}'); e(f'v_lshl_add_u32 {v(PST)}, {v(t2)}, 3, {v(PST)}')
        e(f's_lshl_b32 {s(sT+3)}, {s(sW)}, 14'); e(f'v_add_u32 {v(PST)}, {s(sT+3)}, {v(PST)}')
    Rp=OPT['rep']; cval=struct.unpack('<I',struct.pack('<f',math.log2(math.e)/math.sqrt(128)))[0]
    for r_,val in ((sC,cval),(sC2,cval),(sC2+1,cval),(sStep,0),(sSpin,0),(sSpinU,0),(sSpinF,0),(sSlot,0),(sPslot,3*262144),(sOne,0x3f803f80),(sOne+1,0x3f803f80),
                   (sOdd,0xaaaaaaaa),(sOdd+1,0xaaaaaaaa),(sEx,0x10001 if Rp>1 else 1),(sEx+1,0x10001 if Rp>2 else 0)): e(f's_mov_b32 {s(r_)}, {hex(val)}')
    e(f's_and_b32 {s(sFlagB)}, {s(sH)}, {Rp-1}'); e(f's_lshl_b32 {s(sFlagB)}, {s(sFlagB)}, 8'); e(f's_add_u32 {s(sFlagB)}, {s(sFlagB)}, {FLAG_OFF}')
    e(f's_lshl_b32 {s(sFlag)}, {s(sH)}, 2'); e(f's_add_u32 {s(sFlag)}, {s(sFlag)}, {FLAG_OFF}')
    e(f's_lshl_b32 {s(sPinB)}, {s(sH)}, 13'); e(f's_add_u32 {s(sPinB)}, {s(sPinB)}, {PART_OFF}'); e(f's_add_u32 {s(sPrstB)}, {s(sPinB)}, {s(sT+1)}')
    e(f's_bfe_u32 {s(sT+5)}, {s(sH)}, 0x20002'); e(f's_lshl_b32 {s(sMemB)}, {s(sT+5)}, 10'); e(f's_lshr_b32 {s(sT+5)}, {s(sH)}, 4'); e(f's_lshl_b32 {s(sT+5)}, {s(sT+5)}, 9')
    e(f's_add_u32 {s(sMemB)}, {s(sMemB)}, {s(sT+5)}'); e(f's_and_b32 {s(sT+5)}, {s(sH)}, 3'); e(f's_lshl_b32 {s(sT+5)}, {s(sT+5)}, 7'); e(f's_add_u32 {s(sMemB)}, {s(sMemB)}, {s(sT+5)}'); e(f's_add_u32 {s(sMemB)}, {s(sMemB)}, {MEM_OFF}')
    if OPT['el']: e(f's_add_u32 {s(sMemB)}, {s(sT+4)}, {MEM_OFF}')
    if s4 and not m4:
        e(f's_and_b32 {s(sMemB)}, {s(sH)}, 17'); e(f's_lshl_b32 {s(sMemB)}, {s(sMemB)}, 8'); e(f's_and_b32 {s(sT+5)}, {s(sH)}, 6'); e(f's_lshl_b32 {s(sT+5)}, {s(sT+5)}, 9'); e(f's_add_u32 {s(sMemB)}, {s(sMemB)}, {s(sT+5)}')
        e(f's_and_b32 {s(sT+5)}, {s(sH)}, 8'); e(f's_lshl_b32 {s(sT+5)}, {s(sT+5)}, 6'); e(f's_add_u32 {s(sMemB)}, {s(sMemB)}, {s(sT+5)}'); e(f's_add_u32 {s(sMemB)}, {s(sMemB)}, {MEM_OFF}')
    e(f's_lshl_b32 {s(sKsrc)}, {s(sH)}, 20'); e(f's_add_u32 {s(sKsrc)}, {s(sKsrc)}, {s(sT+1)}'); e(f's_add_u32 {s(sKsrc)}, {s(sKsrc)}, {KV_OFF}'); e(f's_add_u32 {s(sVsrc)}, {s(sKsrc)}, 8192')
    e(f's_lshl_b32 {s(sKvm)}, {s(sH)}, 18'); e(f's_add_u32 {s(sKvm)}, {s(sKvm)}, {s(sWoff)}'); e(f's_add_u32 {s(sKvm)}, {s(sKvm)}, {KVM_OFF}')
    e(f's_lshl_b32 {s(sKvF)}, {s(sH)}, 7'); e(f's_add_u32 {s(sKvmF)}, {s(sKvF)}, {BF_OFF+BF_KVM}'); e(f's_add_u32 {s(sKvF)}, {s(sKvF)}, {BF_OFF+BF_KV}')
    p+=zero(PM,4)+zero(ONES,4,'-1')
    e(f'v_and_b32 {v(t1)}, {4 if s4 else 2}, {v(n)}'); e(f'v_lshlrev_b32 {v(t1)}, {2 if s4 else 3}, {v(t1)}'); e(f'v_mov_b32 {v(t2)}, 0x3f80'); e(f'v_lshlrev_b32 {v(t2)}, {v(t1)}, {v(t2)}'); e(f'v_bfe_u32 {v(t1)}, {v(n)}, {1 if s4 else 2}, 1')
    for jj in range(4):
        e(f'v_cmp_eq_u32 vcc, {jj&1}, {v(t1)}'); e(f'v_cndmask_b32 {v(M+jj)}, 0, {v(t2)}, vcc')
    e(f'ds_write_b128 {v(L16)}, {v(M,4)} offset:{L_SEL}')
    e(f'v_lshrrev_b32 {v(T0)}, 1, {v(n)}'); e(f'v_lshlrev_b32 {v(T0)}, 10, {v(T0)}'); e(f'v_lshl_add_u32 {v(T0)}, {v(g1)}, {4 if s4 else 3}, {v(T0)}')
    e(f'v_and_b32 {v(t1)}, 2, {v(g)}'); e(f'v_lshl_add_u32 {v(T0)}, {v(t1)}, {7 if m4 else 5 if s4 else 3 if OPT["el"] else 6}, {v(T0)}'); e(f'v_and_b32 {v(t1)}, 1, {v(n)}'); e(f'v_lshl_add_u32 {v(T0)}, {v(t1)}, {3 if s4 else 2}, {v(T0)}')
    e(f's_lshl_b32 {s(sT+5)}, {s(sW)}, 8')
    if m4: e(f's_and_b32 {s(sT+5)}, {s(sW)}, 1'); e(f's_lshl_b32 {s(sT+5)}, {s(sT+5)}, 9'); e(f's_lshr_b32 {s(sT+6)}, {s(sW)}, 1'); e(f's_lshl_b32 {s(sT+6)}, {s(sT+6)}, 6'); e(f's_add_u32 {s(sT+5)}, {s(sT+5)}, {s(sT+6)}')
    e(f'v_add_u32 {v(T0)}, {s(sT+5)}, {v(T0)}')
    D=OPT['dc']
    pump(0,D-1)
    if timing: e('s_memrealtime s[82:83] ;stamp')
    if not OPT['sync']:
        e(f's_lshl_b32 {s(sT+5)}, {s(sW)}, 18'); e(f's_add_u32 {s(sT+5)}, {s(sT+5)}, {s(sPinB)}'); e(f's_add_u32 {s(sT+6)}, {s(sT+5)}, 4096')
        for j in range(8): vm(f'buffer_store_dwordx4 {v(ONES,4)}, {v(L16)}, {s(WS,4)}, {s(sT+5+(j>>2))} offen offset:{(j&3)*1024} sc1','x')
        e(f's_lshl_b32 {s(sT+5)}, {s(sW)}, 13'); e(f's_add_u32 {s(sT+5)}, {s(sT+5)}, {s(sMemB)}')
        vm(f'buffer_store_dwordx2 {v(ONES,2)}, {v(MPUB)}, {s(WS,4)}, {s(sT+5)} offen sc1','x')
        e(f's_mov_b64 exec, {s(sEx,2)}'); vm(f'buffer_store_dword {v(PM)}, {v(L16)}, {s(WS,4)}, {s(sFlag)} offen sc1','x'); e('s_mov_b64 exec, -1')
    for u in range(2):
        for x in range(4): vm(f'global_load_dword {v(QA+4*u+x)}, {v(T0)}, {s(sPtr,2)} offset:{(128 if OPT["el"] else 16)*u+(32*(x&1)+4*(x>>1) if s4 else 32*x)}','x')
    if OPT['sync']: e(f'v_mov_b32 {v(KVQ+1)}, 140'); vm(f'global_load_dword {v(KVQ+1)}, {v(KVQ+1)}, {s(DBG,2)} sc1 ;stamp','x')
    if not OPT['rp']:
        p+=h2_addr(FLG,t1); e(f's_cmp_eq_u32 {s(sW)}, 1'); e('s_cselect_b64 vcc, -1, 0'); e(f'v_cndmask_b32 {v(MPUB)}, {v(MPUB)}, {v(FLG)}, vcc')
    if OPT['th']:
        e(f's_lshr_b32 {s(sT+4)}, 0xa2222222, {s(sH)}'); e(f's_and_b32 {s(sT+4)}, {s(sT+4)}, 1'); e('s_cselect_b64 vcc, -1, 0')
    def back(i):
        g_=items[i]
        for t in range(2):
            b0=stream[g_+(t,)] if g_[0]=='q' else M+8*t
            for j in range(2): e(f'ds_write_b128 {v(LW)}, {v(b0+4*j,4)} offset:{SL[i]*4096+t*2048+j*1024}')
        assert SL[i]==lds_groups.index(g_)
    for it in range(32):
        g_=items[it]; bi=it-5
        wait(g_)
        if it==8:
            wait('x')
            if OPT['sync']: p.extend(verify('c',KVQ+1,DBG,sSpinF,sT+2))
        if timing and it==0: e('s_memrealtime s[84:85] ;stamp')
        if timing and it==31: e('s_memrealtime s[86:87] ;stamp')
        e('s_barrier')
        if OPT['th'] and nxt_[0]<32 and it>=2:
            e(f's_cbranch_vccnz L_ch_th{it}'); e(f's_waitcnt vmcnt({OPT["th"]}) ;stamp'); p.append(f'L_ch_th{it}:')
        pump(it,it+D)
        if it and items[it-1] in lds_groups[:4]: back(it-1)
        if it==8:
            e(f's_mov_b32 {s(sT+2)}, 0x05040100'); e(f's_mov_b32 {s(sT+3)}, 0x07060302'); e(f'v_add_u32 {v(T0)}, {s(sWoff)}, {v(L16)}')
            for u in range(2):
                d=X+4*u; q=QA+4*u
                e(f'v_perm_b32 {v(d)}, {v(q+1)}, {v(q)}, {s(sT+2)}'); e(f'v_perm_b32 {v(d+(2 if s4 else 1))}, {v(q+3)}, {v(q+2)}, {s(sT+2)}')
                e(f'v_perm_b32 {v(d+(1 if s4 else 2))}, {v(q+1)}, {v(q)}, {s(sT+3)}'); e(f'v_perm_b32 {v(d+3)}, {v(q+3)}, {v(q+2)}, {s(sT+3)}')
                e(f'ds_write_b128 {v(T0)}, {v(d,4)} offset:{L_MEM+4096*u}')
            e(f's_cmp_lg_u32 {s(sW)}, 0'); e('s_cbranch_scc1 L_ch_noarr')
            e(f's_getreg_b32 {s(sT+5)}, hwreg(HW_REG_XCC_ID)'); e(f's_and_b32 {s(sT+5)}, {s(sT+5)}, 7'); e(f's_lshl_b32 {s(sT+5)}, {s(sT+5)}, 3'); e(f's_lshl_b64 {s(sT+2,2)}, 1, {s(sT+5)}')
            e(f'v_mov_b32 {v(QA)}, {s(sT+2)}'); e(f'v_mov_b32 {v(QA+1)}, {s(sT+3)}'); e('s_mov_b64 exec, 1')
            e(f'global_atomic_add_x2 {v(PM+1)}, {v(QA,2)}, {s(DBG,2)}'); e('s_mov_b64 exec, -1')
            p.append('L_ch_noarr:')
        for b in range(4):
            for t in range(2):
                if g_[0]=='o':
                    pf,b0=ureg(g_,t) if g_ in gloc else ('v',M+8*t)
                    e(f'ds_read_b64_tr_b16 {R(pf,b0+2*b,2)}, {v(TO1 if t else TO0)} offset:{SL[it]*4096+b*1024}')
                else:
                    pf,b0=ureg(g_,t); tra=[[TA0,TA1],[TB0,TB1]][b>>1][t]
                    e(f'ds_read_b64_tr_b16 {R(pf,b0+2*b,2)}, {v(tra)} offset:{(b&1)*WREG+SL[it]*4096}')
        e('s_waitcnt lgkmcnt(0)')
        if g_ in lds_groups[4:]: back(it)
        if it==31 and g_[0]=='q': e('s_barrier'); back(it)
        if bi==8 and OPT['sync']:
            e(f'v_mov_b32 {v(T0)}, 136'); vm(f'global_load_dword {v(KVQ)}, {v(T0)}, {s(DBG,2)} sc1 ;stamp','i')
        if OPT['pfi'] and it in range(OPT['pfi'],OPT['pfi']+3*OPT['pfn'],3):
            k_=(it-OPT['pfi'])//3; qi=[g_ for g_ in items if g_[0]=='q'][::-1][3*(OPT['pfn']-1-k_):][:3]
            base=lambda c: cbase(c)*8192
            e(f's_and_b32 {s(sT+4)}, {s(sH)}, 3'); e(f's_mov_b32 {s(sT+5)}, 0x40000000')
            for r_,g2 in zip((0,2,3),qi):
                e(f's_cmp_eq_u32 {s(sT+4)}, {r_}'); e(f's_cselect_b32 {s(sT+5)}, {(base(g2[1])+(1-r_)*256+8192)&0xffffffff}, {s(sT+5)}')
            e(f's_mov_b32 {s(WSRD)}, {s(ptr["q"])}'); e(f's_mov_b32 {s(WSRD+1)}, {s(ptr["q"]+1)}')
            e(f'v_subrev_u32 {v(M+4)}, 8192, {v(VA0)}') if False else None
            for b in range(4):
                e(f's_add_u32 {s(sT+7)}, {s(sT+5)}, {(rowi(b)*8192-8192)&0xffffffff}')
                vm(f'buffer_load_dwordx4 {v(M,4)}, {v(VA0)}, {s(WSRD,4)}, {s(sT+7)} offen ;stamp','pf')
        if it==16: vm(f'global_load_dwordx2 {v(QA,2)}, {v(PM+1)}, {s(DBG,2)} sc1 ;stamp','h')
        if it==OPT['fi']:
            wait('h')
            p.append('L_ch_hs:')
            e(f'v_readfirstlane_b32 {s(sT+2)}, {v(QA)}'); e(f'v_readfirstlane_b32 {s(sT+3)}, {v(QA+1)}')
            e(f's_add_u32 {s(sSpinF)}, {s(sSpinF)}, 1'); e(f's_cmp_gt_u32 {s(sSpinF)}, {LIM}'); e('s_cbranch_scc1 L_ch_hsdone')
            e(f's_add_u32 {s(sT+4)}, {s(sT+2)}, {s(sT+3)}'); e(f's_lshr_b32 {s(sT+5)}, {s(sT+4)}, 16'); e(f's_add_u32 {s(sT+4)}, {s(sT+4)}, {s(sT+5)}')
            e(f's_lshr_b32 {s(sT+5)}, {s(sT+4)}, 8'); e(f's_add_u32 {s(sT+4)}, {s(sT+4)}, {s(sT+5)}'); e(f's_and_b32 {s(sT+4)}, {s(sT+4)}, 0xff')
            e(f's_cmp_ge_u32 {s(sT+4)}, 32'); e('s_cbranch_scc1 L_ch_hsdone')
            e(f'global_load_dwordx2 {v(QA,2)}, {v(PM+1)}, {s(DBG,2)} sc1 ;stamp'); e('s_waitcnt vmcnt(0) ;stamp'); e('s_branch L_ch_hs')
            p.append('L_ch_hsdone:')
            e(f's_or_b32 {s(sT+2)}, {s(sT+2)}, {s(sT+3)}'); e(f's_and_b32 {s(sT+2)}, {s(sT+2)}, 0x20202020')
            if OPT['sync']:
                wait('i')
                p.append('L_ch_iw:')
                e(f'v_cmp_eq_u32 vcc, 0, {v(KVQ)}'); e('s_cbranch_vccz L_ch_iwx')
                e(f's_add_u32 {s(sSpinF)}, {s(sSpinF)}, 1'); e(f's_cmp_gt_u32 {s(sSpinF)}, {LIM}'); e('s_cbranch_scc1 L_ch_iwx')
                e(f'global_load_dword {v(KVQ)}, {v(T0)}, {s(DBG,2)} sc1 ;stamp'); e('s_waitcnt vmcnt(0) ;stamp'); e('s_branch L_ch_iw')
                p.append('L_ch_iwx:')
                p.extend(kv_addr()); vm(f'buffer_load_dword {v(FLG)}, {v(T0)}, {s(WS,4)}, {s(sKvF)} offen sc1 ;stamp','f')
            e(f's_lshl_b32 {s(sT+5)}, {s(sW)}, 18'); e(f's_add_u32 {s(sT+5)}, {s(sT+5)}, {s(sPinB)}'); e(f's_add_u32 {s(sT+6)}, {s(sT+5)}, 4096')
            wl=[f'buffer_load_dwordx4 {v(KVQ,4)}, {v(L16)}, {s(WS,4)}, {s(sT+5+(j>>2))} offen offset:{(j&3)*1024} sc1 ;stamp' for j in range(8)]
            nlate=2-OPT['mr']
            def warm(lst,k):
                for l in lst: vm(l,'w')
            e(f's_lshl_b32 {s(sT+4)}, {s(sH)}, 10'); e(f's_add_u32 {s(sT+4)}, {s(sT+4)}, {MEM_OFF}')
            vm(f'buffer_load_dwordx4 {v(KVQ,4)}, {v(L16)}, {s(WS,4)}, {s(sT+4)} offen sc1 ;stamp','w')
            warm(wl[:8-nlate],0)
    if OPT['sync']:
        wait('f')
        p.extend(kv_check('L_ch_k0')); p.extend(['s_branch L_ch_k0y']+kv_wait('L_ch_k0')+['L_ch_k0y:'])
    for sd,ss in ((sKdst,sKsrc),(sVdst,sVsrc)):
        e(f's_mov_b32 m0, {s(sd)}')
        for j in range(2): e(f'buffer_load_dwordx4 {v(L16)}, {s(WS,4)}, {s(ss)} offen offset:{1024*j} sc1 lds')
    warm([l.replace(v(KVQ,4),v(STG,4)) for l in wl[8-nlate:]],1)
    p.extend(kv_addr()); e(f'buffer_load_dword {v(FLG)}, {v(T0)}, {s(WS,4)}, {s(sKvF)} offen sc1 ;stamp')
    p+=zero(QA,8)
    if OPT['rp']: e(f'v_mov_b32 {v(FLG)}, 0')
    e(f's_add_u32 {s(sKsrc)}, {s(sKsrc)}, 16384'); e(f's_add_u32 {s(sVsrc)}, {s(sVsrc)}, 16384')
    if OPT['ek'] and not OPT['solo']: e(f'buffer_load_dwordx4 {v(STG,4)}, {v(L16)}, {s(WS,4)}, {s(sKsrc)} offen sc1 ;stamp')
    for k_,r_ in enumerate((sPst,sPs2,sPst+1,sPs2+1)): e(f's_mov_b32 {s(r_)}, {PART_OFF+65536*k_}')
    e(f's_add_u32 {s(sPrst)}, {s(sPrstB)}, {2*262144}')
    if not OPT['tr'] and not OPT['solo']:
        for k in range(4):
            e(f's_and_b32 {s(sT+4)}, {s(sH)}, 1'); e(f's_xor_b32 {s(sT+4)}, {s(sT+4)}, {k}'); e(f's_lshl_b32 {s(sRo1+k)}, {s(sT+4)}, 11')
            e(f's_add_u32 {s(sT+4)}, {s(sH)}, {k}'); e(f's_and_b32 {s(sT+4)}, {s(sT+4)}, 3'); e(f's_lshl_b32 {s(sRo2+k)}, {s(sT+4)}, 10')
    e('s_waitcnt lgkmcnt(0)')
    if timing: e(f's_memrealtime {s(sTime+2,2)}'); e(f's_memtime {s(sTime+6,2)}'); e('s_waitcnt lgkmcnt(0)')
    if OPT['solo']: e('s_waitcnt vmcnt(0)'); e('s_memtime s[60:61]'); e('s_waitcnt lgkmcnt(0)'); e('s_barrier')
    if OPT['rp'] and not OPT['solo']:
        e(f's_cmp_eq_u32 {s(sW)}, 1'); e(f's_cselect_b32 {s(sKvmF)}, {s(sKvmF)}, 0x40000000')
        e('s_barrier')
        for c in range(4): e(mrd(c))
        e(f's_cmp_eq_u32 {s(sT+2)}, 0'); e('s_cbranch_scc1 L_ch_S0_re'); e('s_branch L_ch_F0_re'); e('s_waitcnt lgkmcnt(0)')
    e(f's_cmp_eq_u32 {s(sT+2)}, 0'); e('s_cbranch_scc1 L_ch_S0')
    return fix(p,'prologue')

def smf(d,a_,b): return f'{SMF} {v(d,4)}, {v(a_,4)}, {b}, {v(IDX)}'
def mrd(c): return f'ds_read_b128 {v(M+4*c,4)}, {v(L16)} offset:{L_MEM+1024*c}'
def G(*groups):
    o=[]
    for g_ in groups: o.extend(g_)
    return o

def step(mode, par, verbose=False):
    sc=' sc1' if mode=='S' else ''
    two=OPT['tr'] or OPT['solo']
    L=f'L_ch_{mode}{par}'
    p=[L+':']; e=p.append
    qk=lambda m,c,t: smf((QA if m=='q' else KA if m=='k' else VA)+4*t, M+4*c, unit((m,c),t))
    Q=lambda c,t: qk('q',c,t); K=lambda c,t: qk('k',c,t); V=lambda c,t: qk('v',c,t)
    W=lambda n: f's_waitcnt lgkmcnt({n})'
    krd=[f'ds_read_b128 {v(X+4*f,4)}, {v(L16)} offset:{L_KX+1024*f}' for f in range(8)]
    kl=[f'buffer_load_dwordx4 {v(STG+4*i,4)}, {v(L16)}, {s(WS,4)}, {s(sVsrc if i>>1 else sKsrc)} offen offset:{1024*(i&1)} sc1'+(' nt' if OPT['knt'] else '') for i in range(4)]
    kw=[f'v_add_u32 {v(T0)}, {s(sKdst)}, {v(L16)}',f's_waitcnt vmcnt({(5 if OPT["s4"] else 3)-(1 if OPT["r1p"] or OPT["bw"] else 0)})']+[f'ds_write_b128 {v(T0)}, {v(STG+4*i,4)} offset:{1024*i}' for i in range(2)]+[f'ds_write_b128 {v(LW)}, {v(STG+8+4*i,4)} offset:{32768+1024*i}' for i in range(2)]
    def post(acc,d0,d1,bytok):
        o=[f'v_add_f32 {v(acc)}, {v(acc)}, {v(acc+1)}', f'v_add_f32 {v(acc+2)}, {v(acc+2)}, {v(acc+3)}',
           f'v_add_f32 {v(acc+4)}, {v(acc+4)}, {v(acc+5)}', f'v_add_f32 {v(acc+6)}, {v(acc+6)}, {v(acc+7)}']
        if bytok: o+=[f'v_cvt_pk_bf16_f32 {v(d0)}, {v(acc)}, {v(acc+4)}', f'v_cvt_pk_bf16_f32 {v(d1)}, {v(acc+2)}, {v(acc+6)}']
        else:     o+=[f'v_cvt_pk_bf16_f32 {v(d0)}, {v(acc)}, {v(acc+2)}', f'v_cvt_pk_bf16_f32 {v(d1)}, {v(acc+4)}, {v(acc+6)}']
        return o
    def tr(i,rt=False):
        if not OPT['tr']: return []
        return [('s_memrealtime' if rt else 's_memtime')+f' {s(52+14*par+2*i,2)} ;stamp']
    def trdump():
        if not OPT['tr']: return []
        o=[f'v_mov_b32 {v(M+4+i)}, {s(52+14*(1-par)+2*i)}' for i in range(4)]+[f'v_mov_b32 {v(M+8+i)}, {s(52+14*(1-par)+2*i)}' for i in range(4,7)]
        o+=[f's_lshl_b32 {s(sT+1)}, {s(sSpinU)}, 16', f's_add_u32 {s(sT+1)}, {s(sT+1)}, {s(sSpin)}', f'v_mov_b32 {v(M+15)}, {s(sT+1)}',
            f's_lshl_b32 {s(sT+1)}, {s(sStep)}, 5', f's_add_u32 {s(sT+1)}, {s(sT+1)}, {s(sH)}', f's_lshl_b32 {s(sT+1)}, {s(sT+1)}, 2', f's_add_u32 {s(sT+1)}, {s(sT+1)}, {s(sW)}',
            f's_lshl_b32 {s(sT+1)}, {s(sT+1)}, 5', f's_add_u32 {s(sT+1)}, {s(sT+1)}, {100<<20}', 's_mov_b64 exec, 1',
            f'buffer_store_dwordx4 {v(M+4,4)}, off, {s(WS,4)}, {s(sT+1)}', f'buffer_store_dwordx4 {v(M+12,4)}, off, {s(WS,4)}, {s(sT+1)} offset:16', 's_mov_b64 exec, -1']
        return o
    rstore=lambda j: f'buffer_store_dwordx4 {v(ONES,4)}, {v(L16)}, {s(WS,4)}, {s(sPrst)} offen offset:{j*1024}{sc}'
    pub=f'buffer_store_dwordx4 {v(KVQ,4)}, {v(L16)}, {s(WS,4)}, {s(sKvm)} offen'+(' sc1' if OPT['pub'] else '')
    rp=OPT['rp']; sp=OPT['sp']
    if not OPT['solo']: p.extend(['s_waitcnt lgkmcnt(0)' if rp else f's_waitcnt vmcnt({7+OPT["ek"]+OPT["mr"]}) lgkmcnt(0)']+([f's_memtime {s(52+14*(1-par)+12,2)} ;stamp'] if OPT['tr'] else [])+['s_barrier'])
    p.append(';secS')
    for c in range(4): e(mrd(c))
    if OPT['rs']==1: e(rstore(0))
    if rp: e(pub); e(f's_add_u32 {s(sKvm)}, {s(sKvm)}, 4096')
    p.append(f'{L}_re:')
    z=zero(KA,16)
    on=[f'v_mov_b64 {v(ONES+2*i,2)}, {s(sOne,2)}' for i in range(2)]
    qp=post(QA,QA+1,QA+3,True)+[f'ds_write2_b32 {v(QW)}, {v(QA+1)}, {v(QA+3)} offset0:0 offset1:4']
    kp=post(KA,KVQ+1,KVQ+3,True)+[f'ds_write2_b32 {v(KW)}, {v(KVQ+1)}, {v(KVQ+3)} offset0:0 offset1:8']
    ek=OPT['ek'] if not OPT['solo'] else 0
    z4=f'v_mfma_f32_4x4x4_16b_bf16 {v(KA,4)}, {v(PM+2,2)}, {v(PM+2,2)}, 0'
    if OPT['z4']: g0=[[Q(2,0)],[Q(2,1),W(0)],[z4],[Q(3,0),kl[2+ek]],[Q(3,1),'s_nop 0'],[K(0,0),z[2]],[K(1,0),f's_waitcnt vmcnt({6+ek-OPT["mr"]})',z[3]]]
    else: g0=[[Q(2,0),z[0]],[Q(2,1),W(0),z[1]],[Q(3,0),kl[2+ek]],[Q(3,1),z[2]],[K(0,0),z[3]],[K(1,0),f's_waitcnt vmcnt({6+ek-OPT["mr"]})']]
    p.extend(G([kl[ek],W(3)],[Q(0,0)],[Q(0,1),W(2)],[Q(1,0),kl[1+ek]],[Q(1,1),W(1)],*g0,
               [K(2,0),'s_barrier'],[K(3,0),mrd(4),z[4]],
               [K(0,1),mrd(5),z[5]],[K(1,1),mrd(6),z[6]],[K(2,1),mrd(7),z[7]],[K(3,1),krd[0],W(4)]))
    p.append(';sec0')
    fld=f'buffer_load_dword {v(FLG)}, {v(T0)}, {s(WS,4)}, {s(sKvF)} offen sc1'
    p.extend(G([Q(4,0),krd[4],W(4)],[Q(5,0),krd[1],W(4)],[Q(6,0),krd[5],W(4)],[Q(7,0),rstore(1) if OPT['r1p']==2 else 's_nop 0' if ek else kl[3]],
               [Q(4,1),krd[2],on[0] if OPT['r1p'] in (0,2) else 's_nop 0'],[Q(5,1),krd[3],on[1] if OPT['r1p'] in (0,2) else 's_nop 0'],[Q(6,1),krd[6],qp[0]],[Q(7,1),krd[7],qp[1]],
               [K(4,0),'s_nop 1',f'v_cmp_u_f32 vcc, {v(QA)}, {v(QA+2)}'],[K(5,0),'s_nop 0',qp[2]],[K(6,0)]+([f's_cbranch_vccnz {L}_r2',f'{L}_r2x:'] if OPT['eb'] else [])+[qp[3]],[K(7,0),'s_nop 1',qp[4]],
               [K(4,1),qp[5]],[K(5,1),qp[6]],[K(6,1),kp[0]],[K(7,1),kp[1]]))
    p.append(';sec1')
    rk=[f'ds_read_b128 {v(X+16*k,4)}, {v(L16)} offset:{L_K+1024*k}' for k in range(2)]
    rq=[f'ds_read_b128 {v(M+4*k,4)}, {v(QR)} offset:{L_Q+512*k}' for k in range(4)]
    VF=[X+4,X+20]
    rv=[f'ds_read_b128 {v(VF[t],4)}, {v(LW)} offset:{32768+1024*t}' for t in range(2)]
    SX=lambda m,ks: f'{MF32} {v(QA+4*m,4)}, {v(X+16*m+4*ks,4)}, {v(M+4*ks,4)}, '+(v(QA+4*m,4) if ks else '0')
    sm=[smf(KA,X+16*k,v(M+8*k,8)) for k in range(2)]
    zk=zero(KA,4)
    mx=PM; tt=KA+3
    c=[f'v_max3_f32 {v(mx)}, {v(QA)}, {v(QA+1)}, {v(QA+2)}', f'v_max3_f32 {v(mx)}, {v(mx)}, {v(QA+3)}, {v(QA+4)}',
       f'v_max3_f32 {v(mx)}, {v(mx)}, {v(QA+5)}, {v(QA+6)}',
       f'v_add_f32 {v(KA)}, {v(KA)}, {v(KA+1)}', f'v_add_f32 {v(KA+1)}, {v(KA+2)}, {v(KA+3)}',
       f'v_max3_f32 {v(mx)}, {v(mx)}, {v(QA+7)}, {v(KA)}', f'v_max_f32 {v(tt)}, {v(mx)}, {v(KA+1)}', f'v_max_f32 {v(mx)}, {v(mx)}, {v(KA+1)}',
       f'v_permlane32_swap_b32 {v(mx)}, {v(tt)}', f'v_max_f32 {v(T0)}, {v(mx)}, {v(tt)}', f'v_max_f32 {v(mx)}, {v(mx)}, {v(tt)}',
       f'v_permlane16_swap_b32 {v(mx)}, {v(T0)}', f'v_max_f32 {v(mx)}, {v(mx)}, {v(T0)}', f'v_mul_f32 {v(T0)}, {s(sC)}, {v(mx)}']
    kadv=0 if OPT['hotkv'] else 16384
    bk=[f's_add_u32 {s(sSlot)}, {s(sSlot)}, 8192', f's_and_b32 {s(sSlot)}, {s(sSlot)}, 0x7fff',
        f's_add_u32 {s(sMemIn0)}, {s(sSlot)}, {MEM_OFF}', f's_add_u32 {s(sMemPub)}, {s(sMemB)}, {s(sSlot)}',
        f's_xor_b32 {s(sMemRst)}, {s(sMemPub)}, 16384',
        f's_add_u32 {s(sPrst)}, {s(sPrstB)}, {s(sPslot)}',
        f's_add_u32 {s(sPslot)}, {s(sPslot)}, 262144', f's_and_b32 {s(sPslot)}, {s(sPslot)}, 0xfffff',
        f's_add_u32 {s(sPst)}, {s(sPslot)}, {PART_OFF}', f's_add_u32 {s(sPst+1)}, {s(sPslot)}, {PART_OFF+131072}',
        f's_add_u32 {s(sPin)}, {s(sPinB)}, {s(sPslot)}', f's_add_u32 {s(sPin+1)}, {s(sPin)}, 4096',
        f's_add_u32 {s(sKsrc)}, {s(sKsrc)}, {kadv}', f's_add_u32 {s(sVsrc)}, {s(sVsrc)}, {kadv}',
        f's_add_u32 {s(sMemIn1)}, {s(sMemIn0)}, 4096', f's_mov_b32 m0, {L_MEM}', f's_add_u32 {s(sStep)}, {s(sStep)}, 1']
    bkw=[]
    if OPT['bw'] and not OPT['solo']:
        bkw=bk[:8]+bk[10:]+[f's_add_u32 {s(sPst)}, {s(sPslot)}, 262144', f's_and_b32 {s(sPst)}, {s(sPst)}, 0xfffff', f's_add_u32 {s(sPst)}, {s(sPst)}, {PART_OFF}',
             f's_add_u32 {s(sPst+1)}, {s(sPst)}, 131072', f's_add_u32 {s(sPs2)}, {s(sPst)}, 65536', f's_add_u32 {s(sPs2+1)}, {s(sPst+1)}, 65536', f's_cmp_lg_u32 {s(sW)}, 0']
        bk=['s_nop 0']*len(bk)
    wo=lambda tp,k: stream_reads(('o',tp>>1,k),tp&1)
    p.extend(G(*([[V(0,0),'s_nop 1',W(0)],[V(0,1),'s_barrier','s_nop 0',kp[2]]] if OPT['bb'] else [[V(0,0),'s_nop 2'],[V(0,1),W(0),'s_barrier',kp[2]]]),[V(1,0),rq[0],kp[3]],[V(1,1),rq[1],kp[4]],
               [V(2,0),kp[5]],[V(2,1),kp[6]],[V(3,0),rq[2],zk[0]],[V(3,1),rq[3],W(3)],
               [SX(0,0),zk[1]],[SX(1,0)]+([rstore(1)] if OPT['r1p']==1 else [])+([] if OPT['eb'] else [f's_cbranch_vccnz {L}_r2',f'{L}_r2x:'])+(['s_nop 1',W(2)] if OPT['bb'] else []),[SX(0,1)]+([] if OPT['bb'] else [W(2)])+['s_barrier'],[SX(1,1),rk[0],W(1)],
               [SX(0,2),rk[1]]+([on[0]] if OPT['r1p']==1 else []),[SX(0,3),rv[0]]+([on[1]] if OPT['r1p']==1 else []),[SX(1,2),rv[1]],[SX(1,3),bk[0],bk[1]]+([] if OPT['v1'] else [W(2)]),
               *([[V(4,0),W(2),bk[2],c[0]],[sm[0],bk[3],bk[5],c[1]],[sm[1],wo(2,1)[0],c[2]],[V(5,0),wo(2,2)[0],bk[6]],[V(6,0),bk[7],bk[16],c[3],c[4]],[V(7,0),c[5],c[6],c[7]]] if OPT['v1'] else
                 [[sm[0],'s_nop 0',c[0]],[sm[1],wo(2,1)[0]],[V(4,0),bk[2],bk[3],c[1]],[V(5,0),wo(2,2)[0],c[2]],[V(6,0),bk[5],bk[6],c[3],c[4]],[V(7,0),bk[7],bk[16],c[5],c[6],c[7]]]),
               [V(4,1),wo(0,3)[0],c[8]],[V(5,1),wo(0,3)[1],c[9],c[10]],[V(6,1),wo(1,3)[0],c[11]],[V(7,1),wo(1,3)[1],c[12],c[13]]))
    if OPT['tr']: p.append(f's_memtime {s(52+14*(1-par)+10,2)} ;stamp')
    p.append(';sec2')
    p.extend(['s_nop 15']*OPT.get('dch',0))
    vp=post(VA,KVQ,KVQ+2,False)
    xp=lambda r_: f'v_exp_f32 {v(r_)}, {v(r_)}'
    PX=KA+4; OF=M+16
    e(vp[0]); e(vp[1])
    for r_ in (KA,QA,QA+2,QA+4,QA+6):
        e(f'v_pk_fma_f32 {v(r_,2)}, {v(r_,2)}, {s(sC2,2)}, {v(T0,2)} op_sel_hi:[1,1,0] neg_lo:[0,0,1] neg_hi:[0,0,1]')
    e(f'v_mfma_f32_32x32x8_bf16 {v(M,16)}, {v(PM+2,2)}, {v(PM+2,2)}, 0'); e(bk[12])
    e(xp(KA)); e(xp(KA+1))
    p.extend([vp[2],vp[3],vp[4],vp[5]])
    e(f'v_cvt_pk_bf16_f32 {v(PM)}, {v(KA)}, {v(KA+1)}')
    e(xp(QA)); e(xp(QA+1))
    ex=[f's_cmp_eq_u32 {s(sStep)}, 64','s_cbranch_scc1 L_ch_last'] if (par==1 and OPT['solo']) else ['s_nop 1']
    p.extend(G([f'{MF16} {v(VA,4)}, {v(KVQ,2)}, {v(PM,2)}, 0',bk[13],xp(QA+2)],
               [f'{MF16} {v(VA+4,4)}, {v(KVQ+2,2)}, {v(PM,2)}, 0',bk[8],xp(QA+3)],
               [f'{MF16} {v(KA,4)}, {v(ONES,2)}, {v(PM,2)}, 0',W(6),xp(QA+4),xp(QA+5),xp(QA+6),xp(QA+7)]))
    for i in range(4): e(f'v_cvt_pk_bf16_f32 {v(PX+i)}, {v(QA+2*i)}, {v(QA+2*i+1)}')
    zo=zero(ONES,4,'-1')
    oa=[f'v_xor_b32 {v(QA+k)}, {512*k}, {v(ORD)}' for k in range(1,4)]
    p.extend(G([oa[0],oa[1]],[f'{MF32} {v(KA,4)}, {v(ONES,4)}, {v(PX,4)}, {v(KA,4)}']+ex+[oa[2]],
               [f'{MF32} {v(VA,4)}, {v(VF[0],4)}, {v(PX,4)}, {v(VA,4)}',bk[14],zo[0],zo[1]],
               [f'{MF32} {v(VA+4,4)}, {v(VF[1],4)}, {v(PX,4)}, {v(VA+4,4)}',bk[15],f'v_rcp_f32 {v(T0)}, {v(KA)}',bk[9],bk[10]]))
    pm_=[f'v_pk_mul_f32 {v(VA+2*i,2)}, {v(VA+2*i,2)}, {v(T0,2)} op_sel_hi:[1,0]' for i in range(4)]
    cv=[f'v_cvt_pk_bf16_f32 {v(OF+i)}, {v(VA+2*i)}, {v(VA+2*i+1)}' for i in range(4)]
    p.extend([pm_[0],pm_[1],cv[0],cv[1],pm_[2],pm_[3],cv[2],cv[3]])
    p.append(';sec3')
    e(f'v_cndmask_b32 {v(QA+4)}, {v(OF)}, {v(OF+2)}, {s(sOdd,2)}'); e(f'v_cndmask_b32 {v(QA+5)}, {v(OF+1)}, {v(OF+3)}, {s(sOdd,2)}')
    O=lambda tp,k: smf(M+4*tp,OF+4*k,unit(('o',tp>>1,k),tp&1))
    def oc(tp,j):
        q=M+8*(tp>>1)+(tp&1)+2*j
        return f'v_cvt_pk_bf16_f32 {v(q)}, {v(M+4*tp+2*j)}, {v(M+4*tp+2*j+1)}'
    ost=lambda u: f'buffer_store_dwordx4 {v(M+8*u,4)}, {v(PST)}, {s(WS,4)}, {s(sPst+u)} offen{sc}'
    ro=[f'ds_read_b128 {v(OF+4*k,4)}, {v(QA+k)} offset:{L_O}' for k in range(1,4)]
    r1=[rstore(1)] if OPT['r1p']==0 else []
    if OPT['po']: r1=[pub]; pub=rstore(1)
    ow=[f'ds_write_b64 {v(OW)}, {v(QA+4,2)} offset:{L_O}']
    if OPT['ob']==2: p.extend(G(ow,[O(0,0)]+r1,[O(1,0),wo(2,1)[1]],[W(1),'s_barrier',ro[0]],[O(2,0),ro[1],bk[11]],[O(3,0),ro[2],bk[4]],[wo(2,2)[1],wo(2,3)[0],W(4)]))
    if OPT['ob']==3: p.extend(G(ow,[O(0,0)]+r1,[O(1,0),wo(2,1)[1]],[O(2,0),bk[11],bk[4]],[W(1),'s_barrier',ro[0]],[O(3,0),ro[1],ro[2]],[wo(2,2)[1],wo(2,3)[0],W(4)]))
    if OPT['ob']==4: p.extend(G(ow,[O(0,0)]+r1,[O(1,0),wo(2,1)[1]],[O(2,0),bk[11],bk[4]],[O(3,0),W(1),'s_barrier'],ro,[wo(2,2)[1],wo(2,3)[0],W(4)]))
    if OPT['ob']==0: p.extend(G(ow,r1,[W(0),'s_barrier',ro[0]],[O(0,0),ro[1],bk[11]],[O(1,0),ro[2],bk[4]],[O(2,0),wo(2,1)[1]],[O(3,0),wo(2,2)[1],W(4)]))
    if OPT['ob']==5: p.extend(G(ow,[O(0,0)]+r1,[W(0),'s_barrier',ro[0]],[O(1,0),ro[1],bk[11]],[O(2,0),ro[2],bk[4]],[O(3,0),wo(2,1)[1]],[wo(2,2)[1],W(4)]))
    if OPT['ob']==6: p.extend(G([O(0,0)]+ow,r1,[W(0),'s_barrier',ro[0]],[O(1,0),ro[1],bk[11]],[O(2,0),ro[2],bk[4]],[O(3,0),wo(2,1)[1]],[wo(2,2)[1],W(4)]))
    if OPT['ob']==1: p.extend(G(ow,[O(0,0)]+r1+[wo(2,1)[1]],[W(1),'s_barrier',ro[0]],[O(1,0),ro[1],bk[11]],[O(2,0),ro[2],bk[4]],[O(3,0),wo(2,2)[1]],[wo(2,3)[0],W(4)]))
    p.append(';sec4')
    if OPT['s4']:
        oc4=lambda tp,j: f'v_cvt_pk_bf16_f32 {v(M+4*tp+j)}, {v(M+4*tp+j)}, {v(M+4*tp+2+j)}'
        so4=[sPst,sPs2,sPst+1,sPs2+1]
        os4=lambda tp: f'buffer_store_dwordx2 {v(M+4*tp,2)}, {v(PST)}, {s(WS,4)}, {s(so4[tp])} offen{sc}'
        ad=lambda k: 's_nop 0' if bkw else f's_add_u32 {s(sPs2+k)}, {s(sPst+k)}, 65536'
        if OPT['ob'] in (0,5,6):
            p.extend(G([O(0,1),wo(2,3)[0],W(4)],[O(0,2),wo(2,3)[1],W(4)],[O(0,3),wo(3,1)[0],ad(0)],
               [O(1,1),wo(3,1)[1],ad(1)],[O(1,2),wo(3,2)[0],W(3),oc4(0,0),oc4(0,1)],[O(1,3),os4(0)],
               [O(2,1),wo(3,2)[1],wo(3,3)[0]],[O(2,2),wo(3,3)[1],W(4),f's_cmp_lg_u32 {s(sW)}, 0',oc4(1,0),oc4(1,1)],[O(2,3),os4(1)],
               [O(3,1),W(2),'s_nop 1'],[O(3,2),W(0),'s_nop 0',oc4(2,0),oc4(2,1)],[O(3,3),os4(2)],[oc4(3,0),oc4(3,1),os4(3)]))
        else:
            p.extend(G([O(0,1),wo(2,3)[1],W(4)],[O(0,2),wo(3,1)[0],W(4)],[O(0,3),wo(3,1)[1],ad(0)],
                   [O(1,1),wo(3,2)[0],ad(1)],[O(1,2),W(3),f's_cmp_lg_u32 {s(sW)}, 0',oc4(0,0),oc4(0,1)],[O(1,3),os4(0)],
                   [O(2,1),wo(3,2)[1],wo(3,3)[0]],[O(2,2),wo(3,3)[1],W(4),'s_nop 0',oc4(1,0),oc4(1,1)],[O(2,3),os4(1)],
                   [O(3,1),W(2),'s_nop 1'],[O(3,2),W(0),'s_nop 0',oc4(2,0),oc4(2,1)],[O(3,3),os4(2)],[oc4(3,0),oc4(3,1),os4(3)]))
    else:
        p.extend(G([O(0,1),wo(2,3)[1],W(4)],[O(0,2),wo(3,1)[0],W(4)],[O(0,3),wo(3,1)[1],f's_cmp_lg_u32 {s(sW)}, 0'],
                   [O(1,1),wo(3,2)[0],'s_nop 0'],[O(1,2),wo(3,2)[1],W(4)],[O(1,3),wo(3,3)[0],oc(0,0)],
                   [O(2,1),wo(3,3)[1],oc(0,1)],[O(2,2),W(4),'s_waitcnt vmcnt(1)' if OPT['sw1'] else 's_nop 0',oc(1,0),oc(1,1)],[O(2,3),ost(0)],
                   [O(3,1),W(0),'s_nop 1'],[O(3,2),'s_nop 1',oc(2,0)],[O(3,3),'s_nop 1',oc(2,1)],[oc(3,0),oc(3,1),ost(1)]))
    sr=[]
    for g_,t in ((('q',0),0),(('q',0),1),(('q',1),0),(('q',1),1)): sr+=stream_reads(g_,t)
    xs=[]
    for g_,t in ((('q',2),0),(('q',2),1),(('q',3),0),(('q',3),1)): xs+=stream_reads(g_,t)
    xz=weave(xs,zero(QA,8),[0,0,0,0,1,1,1,1])
    if verbose and par==0:
        fx=fix(p,'main',True); print('model cycles',simulate(fx,OPT['show']), 'inserted waits', len([l for l in fx if l.startswith('s_waitcnt')])-len([l for l in p if l.startswith('s_waitcnt')]))
    if OPT['solo']:
        marks=[i for i,l in enumerate(p) if l.startswith(';sec')]
        if OPT['cutm']>=0:
            marks=[i+1 for i,l in enumerate(p) if l.startswith(('v_mfma','v_smfmac'))]; OPT['cut']=OPT['cutm']
        if OPT['cut']<len(marks):
            rest=p[marks[OPT['cut']]:]
            p[:]=p[:marks[OPT['cut']]]+['s_memtime s[62:63] ;stamp']+[l for l in rest if (l.startswith(('s_add','s_and','s_cmp','s_cbranch_scc')) or l.endswith(':'))]
        d=OPT['drop']
        if d&1: p[:]=[l for l in p if not l.startswith('buffer_store')]
        if d&2: p[:]=[l for l in p if not l.startswith('buffer_load')]
        if OPT['cut']>=len(marks): p.append('s_memtime s[62:63] ;stamp')
        p.extend(['s_waitcnt vmcnt(0)']+kw+kv_addr()+sr+xz)
        if d&4: p[:]=['s_nop 1' if (l.startswith('ds_read') and f' {v(LW)} ' in l) else l for l in p]
        if d&8: p[:]=['s_nop 1' if l.startswith('ds_read') else l for l in p]
        if d&16: p[:]=['s_nop 3' if l.startswith(('v_smfmac','v_mfma')) else l for l in p]
        if d&32: p[:]=['s_nop 0' if (l.startswith('v_') and not l.startswith(('v_smfmac','v_mfma'))) else l for l in p]
        if d&64: p[:]=['s_nop 3' if l.startswith('v_mfma') else l for l in p]
        p.extend(['s_waitcnt lgkmcnt(0) vmcnt(0)','s_sub_u32 s62, s62, s60', f's_add_u32 {s(sSpin)}, {s(sSpin)}, s62', 's_barrier', 's_sleep 12', 's_memtime s[60:61] ;stamp', 's_waitcnt lgkmcnt(0)', 's_barrier'])
        if par==1: p.append(f's_branch L_ch_{mode}0')
        return fix(p,f'solo{par}'), [f'{L}_r2:',f's_branch {L}_r2x']
    kc=lambda x: kv_check(L+x) if OPT['sync'] else []
    if rp: return window_rp(locals())
    p.extend(tr(0)+tr(1,True))
    if OPT['bt']: e('s_barrier')
    p.extend(bkw)
    e(f's_cbranch_scc1 {L}_w')
    head=list(p)
    p.extend(trdump())
    e(f'ds_read_b128 {v(QA+4,4)}, {v(L16)} offset:{L_SEL}')
    e(f'v_mov_b32 {v(M+2)}, {s(sStep)}')
    s0=OPT['s0']; srl=[] if s0 else sr; wl_=W(0) if s0 else W(8); sub=(OPT['bw'] if bkw else 0)+(8 if OPT['tr'] else 0)+(4 if s0==1 else 0)
    if s0==1: p.extend(sr)
    if OPT['dq']:
        e(f's_bitcmp1_b32 {s(sH)}, 3'); e(f's_cbranch_scc0 {L}_q'); p.extend(['s_nop 2']*OPT['dq']); p.append(f'{L}_q:'); sub+=(12*OPT['dq']+16)//16
    ep=OPT['ep']
    if ep: e(f's_cmp_lt_u32 {s(sH)}, 16'); e(f's_cbranch_scc1 {L}_e'); p.extend(['s_nop 3']*OPT['de'])
    elif OPT['de']:
        e(f's_cmp_lt_u32 {s(sH)}, 16'); e(f's_cbranch_scc1 {L}_e'); p.extend(['s_nop 3']*OPT['de']); p.append(f'{L}_e:')
    for i in range(OPT['d1']-OPT['de']-(1 if OPT['de'] else 0)-sub): e('s_nop 3')
    p.extend(tr(2))
    ld1=[f'buffer_load_dwordx4 {v(X+4*j,4)}, {v(L16)}, {s(WS,4)}, {s(sPin+(j>>2))} offen offset:{(j&3)*1024} sc1' for j in range(8)]
    if OPT['ro1']:
        p[-1:-1]=[f's_add_u32 {s(sT+4+k)}, {s(sPin)}, {s(sRo1+k)}' for k in range(4)]; p.pop()
        ld1=[f'buffer_load_dwordx4 {v(X+4*j,4)}, {v(L16)}, {s(WS,4)}, {s(sT+4+(j>>1))} offen offset:{(j&1)*1024} sc1' for j in range(8)]
    fst=[f's_mov_b64 exec, {s(sEx,2)}', f'buffer_store_dword {v(M+2)}, {v(L16)}, {s(WS,4)}, {s(sFlag)} offen{sc}', 's_mov_b64 exec, -1']
    ca=OPT['ca']
    if ca:
        k=max(i for i,l in enumerate(p) if l=='s_nop 3')
        c2=OPT['c2']
        p[k-ca+1:k+1]=(ld1[:2]+['s_nop 3']*(ca-c2-2)+ld1[:2]+['s_nop 3']*(c2-2)) if c2 else ld1[:2]+(sr+['s_nop 3']*(ca-6) if s0>=2 else ['s_nop 3']*(ca-2))
    p.extend(ld1); p.extend(srl+zero(QA,4)); e(wl_)
    el=OPT['el']==1
    B0=['s_barrier'] if OPT['b0'] else []
    if el:
        p.extend([f's_cmp_lt_u32 {s(sH)}, {OPT["lt"]}', f's_cbranch_scc1 {L}_p1']+['s_nop 3']*OPT['bl']+['s_barrier'])
        B0=[f's_cbranch_scc0 {L}_p2','s_barrier']
    p.append(f'{L}_p1:')
    RM=lambda j: smf(QA,QA+4,v(X+8*j,8))
    fin=[f'v_cvt_pk_bf16_f32 {v(M)}, {v(QA)}, {v(QA+2)}', f'v_cvt_pk_bf16_f32 {v(M+1)}, {v(QA+1)}, {v(QA+3)}']
    if OPT['s4']: fin=[f'v_cvt_pk_bf16_f32 {v(M)}, {v(QA)}, {v(QA+1)}', f'v_cvt_pk_bf16_f32 {v(M+1)}, {v(QA+2)}, {v(QA+3)}']
    mpub=f'buffer_store_dwordx2 {v(M,2)}, {v(MPUB)}, {s(WS,4)}, {s(sMemPub)} offen{sc}'
    chk=f'v_cmp_u_f32 vcc, {v(QA)}, {v(QA+1)}'
    can=f'v_cmp_u_f32 vcc, {v(X)}, {v(X+4)}'
    if ca: first=[f's_waitcnt vmcnt({10 if c2 else 8})',can+' ;stamp',fst[0],f's_cbranch_vccnz {L}_cb',f'{L}_cbx:']+fst[1:]
    else: first=['s_waitcnt vmcnt(6)',can,RM(0),fst[0], f's_cbranch_vccnz {L}_r0']+fst[1:]
    p.extend(first+tr(3)+B0+[f'{L}_p2:'])
    for j in range(0 if ca else 1,4):
        e(f's_waitcnt vmcnt({7-2*j})'); e(RM(j))
    p.extend(fin+[mpub,chk])
    p.extend(tr(4))
    e(f's_cbranch_vccnz {L}_r1')
    p.append(f'{L}_p1ok:')
    p.extend([kw[0]]+kw[2:]+xz)
    nxt=f'L_ch_{mode}{1-par if two else 0}'
    tailc=['s_barrier']+([kl[0]] if ek else [])+[pub, rstore(0)]
    t1=OPT['t1']
    kf=[f's_sub_u32 {s(sT+3)}, {s(sStep)}, 1', f'v_mov_b32 {v(FLG)}, {s(sT+3)}', 's_mov_b64 exec, 1', f'buffer_store_dword {v(FLG)}, off, {s(WS,4)}, {s(sKvmF)} sc1', 's_mov_b64 exec, -1']
    ops=[[pub],kf[2:]] if OPT['mr'] else [[pub],[rstore(0)],kf[2:]]
    if OPT['nk']: ops=[[pub],[rstore(0)],[fld.replace(f'{v(T0)},',f'{v(M)},')]]
    tail1=G(*ops[:t1])+['s_barrier']+([kl[0]] if ek else [])+G(*ops[t1:])
    tail2=[f's_add_u32 {s(sKvm)}, {s(sKvm)}, 4096', f's_cmp_lg_u32 {s(sStep)}, 63', f's_cbranch_scc1 {nxt}', 's_branch L_ch_fin']
    p.append(f'{L}_b1:')
    mid=[f's_cmp_lg_u32 {s(sStep)}, 10', f's_cbranch_scc1 {L}_m1', 's_memtime s[80:81] ;stamp', f'{L}_m1:', f's_cmp_lg_u32 {s(sStep)}, 40', f's_cbranch_scc1 {L}_m2', 's_memtime s[82:83] ;stamp', f'{L}_m2:'] if OPT.get('mid') else []
    p.extend(tailc+mid+tail2)
    body=fix(p,f'step{mode}{par}',verbose)
    ld2=[f'buffer_load_dwordx4 {v(H2A)}, {s(WS,4)}, {s(sMemIn0)} offen offset:{1024*j} sc1 lds' for j in range(4)]
    ld2+=[f's_mov_b32 m0, {L_MEM+4096}','s_nop 0']+[f'buffer_load_dwordx4 {v(H2A)}, {s(WS,4)}, {s(sMemIn1)} offen offset:{1024*j} sc1 lds' for j in range(4)]
    ld2r=ld2
    if OPT['ro2']:
        ld2r=[]
        for j in range(8):
            ld2r+=[f's_add_u32 m0, {s(sRo2+(j&3))}, {L_MEM+4096*(j>>2)}', f's_add_u32 {s(sT+4)}, {s(sRo2+(j&3))}, {s(sMemIn1 if j>>2 else sMemIn0)}',
                   f'buffer_load_dwordx4 {v(H2A)}, {s(WS,4)}, {s(sT+4)} offen sc1 lds']
    mrst=[f's_cmp_lg_u32 {s(sW)}, 3', f's_cbranch_scc1 {L}_w3', f'buffer_store_dwordx2 {v(ONES,2)}, {v(MPUB)}, {s(WS,4)}, {s(sMemRst)} offen{sc}', f'{L}_w3:']
    ko=OPT['ko']
    if OPT['tr'] and ko: kw=[l.replace('vmcnt(5)','vmcnt(7)').replace('vmcnt(3)','vmcnt(5)') for l in kw]
    q=[f'{L}_w:']+(['s_nop 3']*OPT['wd'] if s0==1 and not OPT['tr'] else [])+([] if ko else kw+mrst)+trdump()+(sr if OPT['xl']<2 else [])+([] if OPT['xl'] else xz); e=q.append
    e(f's_cmp_eq_u32 {s(sW)}, 1'); e(f's_cbranch_scc1 {L}_fb')
    if ko==1: q.extend(kw+mrst)
    if ko==2: q.extend(mrst)
    if OPT['b0']: e('s_barrier')
    if ko==2: q.extend(kw)
    if OPT['xl']==2: q.extend(sr)
    if OPT['xl']: q.extend(xz)
    if OPT['sync'] and not OPT['nk']:
        e(f's_cmp_lg_u32 {s(sW)}, 2'); e(f's_cbranch_scc1 {L}_b1')
        q.extend(kc('_kb')+(tailc[:-1] if OPT['mr'] else tailc)+[fld]+tail2)
    else: e(f's_branch {L}_b1')
    q.append(f'{L}_fb:')
    if OPT['xl']==2: q.extend(sr)
    if OPT['xl']: q.extend(xz)
    if ko: q.extend(kw)
    if OPT['nk']: q.extend((kc('_kb') or kv_addr())+[f'v_mov_b32 {v(M)}, {v(T0)}'])
    e(f'v_lshrrev_b32 {v(T0)}, 2, {v(L16)}'); e(f'v_and_b32 {v(T0)}, 0x7c, {v(T0)}')
    if el: e(f'v_cmp_gt_u32 vcc, {4*OPT["lt"]}, {v(T0)}'); e(f'v_mov_b32 {v(FLG)}, {s(sStep)}'); e('s_nop 0'); e(f'v_cndmask_b32 {v(FLG)}, 0, {v(FLG)}, vcc')
    if not el and not OPT['nk']: q.extend(kf[:2])
    if OPT['b0']: e('s_barrier')
    for i in range(max(0,OPT['sl']-(7 if OPT['tr'] and not OPT['b0'] else 0))): e('s_nop 3')
    q.extend(tr(2))
    if OPT['ro2']: q.extend(ld2r[:2]); ld2r=ld2r[2:]
    N=OPT['nb']
    fl=f'buffer_load_dword {v(PM)}, {v(T0)}, {s(WS,4)}, {s(sFlagB)} offen sc1'
    for i in range(N-1): e(fl); e(f's_nop {7+OPT["pp"]}')
    def ploop(a_,b_,extra=0):
        q.append(f'{L}_{a_}:')
        for i in range(8):
            e(fl)
            if OPT['pp']: e(f's_nop {OPT["pp"]-1}')
            e(f's_waitcnt vmcnt({N-1+(extra if i<N-1 else 0)})'); e(f'v_cmp_gt_u32 vcc, {s(sStep)}, {v(PM)}'); e(f's_cbranch_vccz {L}_{b_}')
        e(f's_add_u32 {s(sSpinF)}, {s(sSpinF)}, 1'); e(f's_cmp_gt_u32 {s(sSpinF)}, {LIM}'); e(f's_cbranch_scc0 {L}_{a_}')
        q.append(f'{L}_{b_}:')
    if el:
        i0=len(q); ploop('fb2','fb3')
        q[i0:]=[l.replace(f'vcc, {s(sStep)}, {v(PM)}',f'vcc, {v(FLG)}, {v(PM)}') for l in q[i0:]]
        nf=OPT['nf']; cut=5 if nf==4 else nf+2
        q.extend(tr(3)); q.extend(ld2[:cut]+kf[:2]+[f'v_cmp_gt_u32 vcc, {s(sStep)}, {v(PM)}', f's_cbranch_vccz {L}_fb5']); ploop('fb4','fb5',nf); q.extend(tr(4)); q.extend(ld2[max(cut,6):])
    else:
        ploop('fb2','fb3'); q.extend(tr(3)); q.extend((ld2r[:8]+['s_nop 3']*OPT['dd']+ld2r[8:]) if OPT['m4'] else ld2r[:5]+([rstore(0),rstore(2)] if OPT['mr'] else [])+['s_nop 3']*OPT['dd']+ld2r[5:]); q.extend(tr(4))
    q.extend(tail1+tail2)
    i=q.index(f'{L}_fb:')
    alt=fix(head+q[:i],f'alt{mode}{par}',False)
    q=alt[alt.index(f'{L}_w:'):]+q[i:]
    e=q.append
    if OPT['sync']: q.extend(kv_wait(L+'_kb'))
    if ep: q.extend([f'{L}_e:']+(sr+['s_nop 3']*max(0,OPT['d1']-OPT['de']-5-sub) if s0==2 else ['s_nop 3']*(OPT['d1']-OPT['de']-1-sub))+tr(2)+ld1+(sr if s0==3 else srl)+zero(QA,4)+[W(8) if s0==3 else wl_,f's_branch {L}_cl'])
    if ca: q.extend([f'{L}_cb:']+(['s_mov_b64 exec, -1','s_waitcnt vmcnt(8)',can,fst[0],f's_cbranch_vccz {L}_cbx'] if c2 else [])+['s_mov_b64 exec, -1',f'{L}_cl:','s_waitcnt vmcnt(6)',can,fst[0],f's_cbranch_vccz {L}_cbx'])
    for nm,inc in (('r0',1),('r1',256)):
        q.append(f'{L}_{nm}:')
        if nm=='r0': e('s_mov_b64 exec, -1')
        else: q.extend([f'v_add_u32 {v(M+2)}, -1, {v(M+2)}']+fst+[f'v_add_u32 {v(M+2)}, 1, {v(M+2)}'])
        e(f's_add_u32 {s(sSpin)}, {s(sSpin)}, {inc-1}')
        q.append(f'{L}_{nm}l:')
        q.extend(ld1); e(f's_add_u32 {s(sSpin)}, {s(sSpin)}, 1'); e(f's_cmp_gt_u32 {s(sSpin)}, {LIM}'); e(f's_cbranch_scc1 {L}_{nm}g')
        q.extend(['s_waitcnt vmcnt(6)',f'v_cmp_u_f32 vcc, {v(X)}, {v(X+4)}',f's_cbranch_vccnz {L}_{nm}l', f'{L}_{nm}g:'])
        q.extend(zero(QA,4)+['s_nop 0'])
        for j in range(4): e(f's_waitcnt vmcnt({6-2*j})'); e(RM(j))
        q.extend(['s_nop 7', chk]+fin+[f's_cbranch_scc1 {L}_{nm}e', f's_cbranch_vccnz {L}_{nm}l', f'{L}_{nm}e:', mpub]+fst+tr(3)+tr(4)+(([f's_cmp_lt_u32 {s(sH)}, {OPT["lt"]}', f's_cbranch_scc0 {L}_p1ok'] if el else [])+['s_barrier'] if nm=='r0' else [])+[f's_branch {L}_p1ok'])
    q.append(f'{L}_r2:')
    e(f's_add_u32 {s(sSpinU)}, {s(sSpinU)}, 1'); e(f's_cmp_gt_u32 {s(sSpinU)}, {LIM}'); e(f's_cbranch_scc1 {L}_r2x')
    e(f's_cmp_eq_u32 {s(sStep)}, 0'); e(f's_cbranch_scc1 {L}_r2x')
    e(f's_mov_b32 m0, {L_MEM}'); e(f's_cmp_lg_u32 {s(sW)}, 1')
    e('s_waitcnt lgkmcnt(0)'); e('s_barrier'); e(f's_cbranch_scc1 {L}_r2b')
    q.extend(ld2); q.append(f'{L}_r2b:'); e('s_nop 7'); q.extend(zero(ONES,4,'-1')); q.extend(sr); q.extend(xs); q.extend(zero(QA,8))
    e('s_waitcnt vmcnt(0) lgkmcnt(0)'); e('s_barrier')
    for c_ in range(4): e(mrd(c_))
    e(f's_branch {L}_re')
    return body, q

def window_rp(d):
    L,p,sc,mode,par,two,tr,trdump,kw,kc,sr,xs,xz,W,rstore,sp,verbose=[d[k] for k in 'L p sc mode par two tr trdump kw kc sr xs xz W rstore sp verbose'.split()]
    e=p.append
    p.extend(tr(0)+tr(1,True))
    e(f's_cbranch_scc1 {L}_w')
    head=list(p)
    p.extend(kw+kc('_ka'))
    e(f'ds_read_b128 {v(QA+4,4)}, {v(L16)} offset:{L_SEL}')
    p.extend(sr+trdump())
    for i in range(OPT['d1']-(8 if OPT['tr'] else 0)): e('s_nop 3')
    p.extend(tr(2))
    ld1=[f'buffer_load_dwordx4 {v(X+4*j,4)}, {v(L16)}, {s(WS,4)}, {s(sPin+(j>>2))} offen offset:{(j&3)*1024} sc1' for j in range(8)]
    pre=h2_addr(T0,PM)+[f's_add_u32 {s(sT+4)}, {s(sMemIn0)}, {s(sWoff)}', f's_add_u32 {s(sT+5)}, {s(sMemIn1)}, {s(sWoff)}', f's_add_u32 m0, {s(sWoff)}, {L_MEM+4096}',
         f'v_add_u32 {v(PM)}, {s(sWoff)}, {v(L16)}', f's_sub_u32 {s(sT+3)}, {s(sStep)}, 1', f'v_mov_b32 {v(FLG)}, {s(sT+3)}']
    p.extend(ld1); p.extend(pre); e(W(0))
    p.append(f'{L}_p1:')
    RM=lambda j: f'{MF32} {v(QA,4)}, {v(QA+4,4)}, {v(X+4*j,4)}, '+(v(QA,4) if j else '0')
    p.extend(['s_waitcnt vmcnt(7)',RM(0),'s_waitcnt vmcnt(6)',f'v_cmp_u_f32 vcc, {v(X)}, {v(X+4)}',RM(1),'s_waitcnt vmcnt(5)',RM(2),f's_cbranch_vccnz {L}_r0', f'{L}_r0x:']+tr(3))
    for j in range(3,8):
        e(f's_waitcnt vmcnt({7-j})'); e(RM(j))
    e(f'v_cvt_pk_bf16_f32 {v(M)}, {v(QA)}, {v(QA+1)}')
    e(f'v_cvt_pk_bf16_f32 {v(M+1)}, {v(QA+2)}, {v(QA+3)}')
    e(f'buffer_store_dwordx2 {v(M,2)}, {v(MPUB)}, {s(WS,4)}, {s(sMemPub)} offen{sc}')
    e(f'v_cmp_u_f32 vcc, {v(QA)}, {v(QA)}')
    p.extend(tr(4))
    e(f's_cbranch_vccnz {L}_r1')
    p.append(f'{L}_p1ok:')
    p.extend(xz)
    for i in range(OPT['dp']): e('s_nop 3')
    p.append(f'{L}_b1:')
    body=fix(p,f'step{mode}{par}',verbose)
    e=body.append
    e('s_barrier')
    N=OPT['np']
    pl=f'buffer_load_dwordx4 {v(STG,4)}, {v(T0)}, {s(WS,4)}, {s(sT+4)} offen sc1'
    dm=f'buffer_load_dwordx4 {v(T0)}, {s(WS,4)}, {s(sT+5)} offen sc1 lds'
    def nops(k):
        o=[]
        while k>0: o.append(f's_nop {min(k,16)-1}'); k-=16
        return o
    for i in range(N-1): e(pl); body.extend(nops(OPT['ps']))
    e(pl); e(f's_waitcnt vmcnt({N-1})'); e(f'v_cmp_u_f32 vcc, {v(STG)}, {v(STG+2)}'); e(f's_cbranch_vccnz {L}_pl')
    body.append(f'{L}_plx:')
    e(f'ds_write_b128 {v(PM)}, {v(STG,4)} offset:{L_MEM}'); e(dm); body.extend(tr(6))
    if sp==0: e(rstore(0))
    body.extend(kv_addr()); e(f's_branch L_ch_{mode}{1-par if two else 0}')
    q=[f'{L}_w:',f's_sleep {OPT["sw"]}']+kw; e=q.append
    e(f's_cmp_lg_u32 {s(sW)}, 3'); e(f's_cbranch_scc1 {L}_w3')
    e(f'buffer_store_dwordx2 {v(ONES,2)}, {v(MPUB)}, {s(WS,4)}, {s(sMemRst)} offen{sc}')
    q.extend([f'{L}_w3:']+kc('_kb')+trdump()+sr+xz+pre)
    e(f's_branch {L}_b1')
    alt=fix(head+q,f'alt{mode}{par}',False)
    q=alt[alt.index(f'{L}_w:'):]; e=q.append
    q.append(f'{L}_pl:')
    for i in range(4):
        e(pl); e(f's_waitcnt vmcnt({N-1})'); e(f'v_cmp_u_f32 vcc, {v(STG)}, {v(STG+2)}'); e(f's_cbranch_vccz {L}_plx')
    e(f's_add_u32 {s(sSpinF)}, {s(sSpinF)}, 1'); e(f's_cmp_gt_u32 {s(sSpinF)}, {LIM}'); e(f's_cbranch_scc0 {L}_pl'); e(f's_branch {L}_plx')
    if OPT['sync']: q.extend(kv_wait(L+'_ka')+kv_wait(L+'_kb'))
    q.append(f'{L}_r0:')
    e(f's_add_u32 {s(sSpin)}, {s(sSpin)}, 1'); e(f's_cmp_gt_u32 {s(sSpin)}, {LIM}'); e(f's_cbranch_scc1 {L}_r0x')
    q.extend(ld1); e(f's_branch {L}_p1')
    q.append(f'{L}_r1:')
    e(f's_add_u32 {s(sSpin)}, {s(sSpin)}, 256'); e(f's_cmp_gt_u32 {s(sSpin)}, {LIM}'); e(f's_cbranch_scc1 {L}_p1ok')
    q.extend(ld1); e(f's_branch {L}_p1')
    q.append(f'{L}_r2:')
    e(f's_add_u32 {s(sSpinU)}, {s(sSpinU)}, 1'); e(f's_cmp_gt_u32 {s(sSpinU)}, {LIM}'); e(f's_cbranch_scc1 {L}_r2x')
    e(f's_cmp_eq_u32 {s(sStep)}, 0'); e(f's_cbranch_scc1 {L}_r2x')
    e('s_waitcnt vmcnt(0) lgkmcnt(0)'); e('s_barrier')
    q.extend(pre); e(dm); e(f's_add_u32 m0, {s(sWoff)}, {L_MEM}'); e('s_nop 0'); e(dm.replace(s(sT+5),s(sT+4)))
    q.extend(kv_addr()+zero(ONES,4,'-1')); q.extend(sr); q.extend(xs); q.extend(zero(QA,8))
    e('s_waitcnt vmcnt(0) lgkmcnt(0)'); e('s_barrier')
    for c_ in range(4): e(mrd(c_))
    e(f's_branch {L}_re')
    return body, q

def chain_body(timing=False, verbose=False):
    A=Asm()
    pro=prologue(timing)
    F0,f0=step('F',0,verbose); F1,f1=step('F',1); S0,s0=step('S',0); S1,s1=step('S',1)
    if not OPT['rp']: check(pro+F0+F0,'chainF')
    if OPT['al']&1: pro=pro+['s_branch L_ch_F0','.p2align 6']+['s_nop 0']*OPT['pad']
    for bit,lab in ((2,'_w'),(4,'_fb'),(16,'_e'),(32,'_cb')):
        if OPT['al']&bit:
            i=f0.index(f'L_ch_F0{lab}:'); f0[i:i]=['.p2align 6']
    if OPT['al']&8:
        i=f0.index('L_ch_F0_fb3:'); f0[i:i]=['s_branch L_ch_F0_fb3','.p2align 6']
    for x in ((pro,F0,F1,f0,f1,S0,S1,s0,s1) if (OPT['tr'] or OPT['solo']) else (pro,F0,f0,S0,s0)): A.extend(x)
    f=['L_ch_fin:']+zero(KA,16)+[f's_waitcnt vmcnt({3+OPT["ek"]-OPT["mr"]}) lgkmcnt(0)','s_barrier','L_ch_fin2:']+[mrd(c) for c in range(8)]
    f[1:1]=['s_waitcnt lgkmcnt(0)']
    for c in range(8):
        for m_,acc in (('k',KA),('v',VA)):
            for t in range(2): f.append(smf(acc+4*t,M+4*c,unit((m_,c),t)))
    f+=[f'v_add_f32 {v(KA+2*i)}, {v(KA+2*i)}, {v(KA+2*i+1)}' for i in range(8)]
    f+=[f'v_cmp_u_f32 vcc, {v(KA)}, {v(KA+2)}', f'v_cvt_pk_bf16_f32 {v(KVQ+1)}, {v(KA)}, {v(KA+4)}', f'v_cvt_pk_bf16_f32 {v(KVQ+3)}, {v(KA+2)}, {v(KA+6)}',
        f'v_cvt_pk_bf16_f32 {v(KVQ)}, {v(VA)}, {v(VA+2)}', f'v_cvt_pk_bf16_f32 {v(KVQ+2)}, {v(VA+4)}, {v(VA+6)}', 's_cbranch_vccz L_ch_last',
        f's_add_u32 {s(sSpinU)}, {s(sSpinU)}, 1', f's_cmp_gt_u32 {s(sSpinU)}, {LIM}', 's_cbranch_scc1 L_ch_last',
        f's_mov_b32 m0, {L_MEM}', f's_cmp_lg_u32 {s(sW)}, 1', 's_barrier', 's_cbranch_scc1 L_ch_fin3']
    f+=[f'buffer_load_dwordx4 {v(H2A)}, {s(WS,4)}, {s(sMemIn0)} offen offset:{1024*j} sc1 lds' for j in range(4)]
    f+=[f's_mov_b32 m0, {L_MEM+4096}','s_nop 0']+[f'buffer_load_dwordx4 {v(H2A)}, {s(WS,4)}, {s(sMemIn1)} offen offset:{1024*j} sc1 lds' for j in range(4)]
    f+=['L_ch_fin3:']+zero(KA,16)+['s_waitcnt vmcnt(0)','s_barrier','s_branch L_ch_fin2']
    A.extend(fix(f,'fin'))
    A.label('L_ch_last')
    A(f'buffer_store_dwordx4 {v(KVQ,4)}, {v(L16)}, {s(WS,4)}, {s(sKvm)} offen sc1')
    if timing:
        A(f'''s_waitcnt vmcnt(0)
        s_lshl_b32 {s(sSpinU)}, {s(sSpinU)}, 16
        s_add_u32 {s(sSpin)}, {s(sSpin)}, {s(sSpinU)}
        s_memrealtime {s(sTime+4,2)}
        s_memtime {s(sTime+8,2)}
        s_waitcnt lgkmcnt(0)
        s_sub_u32 {s(sT)}, {s(sTime+2)}, {s(sTime)}
        s_sub_u32 {s(sT+1)}, {s(sTime+4)}, {s(sTime+2)}
        s_sub_u32 {s(sT+2)}, {s(sTime+8)}, {s(sTime+6)}
        v_mov_b32 v4, {s(sT)}
        v_mov_b32 v5, {s(sT+1)}
        v_mov_b32 v6, {s(sT+2)}
        v_mov_b32 v7, {s(sSpin)}
        s_lshl_b32 {s(sT)}, {s(sH)}, 2
        s_add_u32 {s(sT)}, {s(sT)}, {s(sW)}
        s_lshl_b32 {s(sT)}, {s(sT)}, 5
        s_add_u32 {s(sT)}, {s(sT)}, 16384
        v_mov_b32 v0, {s(sT)}
        s_sub_u32 s80, s80, {s(sTime)}
        s_sub_u32 s82, s82, {s(sTime)}
        s_sub_u32 s84, s84, {s(sTime)}
        s_sub_u32 s86, s86, {s(sTime)}
        v_mov_b32 v8, s80
        v_mov_b32 v9, s82
        v_mov_b32 v10, s84
        v_mov_b32 v11, s86
        s_mov_b64 exec, 1
        global_store_dwordx4 v0, v[8:11], {s(DBG,2)} offset:16
        global_store_dwordx4 v0, v[4:7], {s(DBG,2)}''')
    return A

def kernel_text(name, body):
    return f'''.globl {name}
.p2align 8
.type {name},@function
{name}:
{body.text()}    s_endpgm
'''
def kernel_desc(name, vgpr=512, accum=256, sgpr=102):
    return f'''.p2align 6
.amdhsa_kernel {name}
  .amdhsa_next_free_vgpr {vgpr}
  .amdhsa_next_free_sgpr {sgpr}
  .amdhsa_accum_offset {accum}
  .amdhsa_group_segment_fixed_size 0
  .amdhsa_kernarg_size 120
  .amdhsa_user_sgpr_count 2
  .amdhsa_user_sgpr_kernarg_segment_ptr 1
  .amdhsa_system_sgpr_workgroup_id_x 1
  .amdhsa_float_denorm_mode_32 3
.end_amdhsa_kernel
'''

if __name__=='__main__':
    import sys
    for x in sys.argv:
        if '=' in x: OPT[x.split('=')[0]]=int(x.split('=')[1])
    A=Asm()
    if 'spread' in sys.argv:
        A(f's_cmp_ge_u32 s2, 32\ns_cbranch_scc1 L_exit\ns_mov_b32 {s(sH)}, s2')
    else:
        A(f's_cmp_ge_u32 s2, 256\ns_cbranch_scc1 L_exit\ns_and_b32 s3, s2, 7\ns_cmp_lg_u32 s3, 0\ns_cbranch_scc1 L_exit\ns_lshr_b32 {s(sH)}, s2, 3')
    A.extend(chain_body(timing=True, verbose=True))
    A.label('L_exit')
    txt='; @launch kernel=chain_kernel grid=(256,1,1) block=(256,1,1) lds=163840\n.amdgcn_target "amdgcn-amd-amdhsa--gfx950"\n.text\n'
    txt+=kernel_text('chain_kernel',A)+'.section .rodata,"a"\n'+kernel_desc('chain_kernel')
    open(sys.argv[1],'w').write(txt)
```

```python
import sys
from asmlib import *
from layout import *
import bulk as B, chain as C
prof='prof' in sys.argv
C.OPT['sync']=1
for x in sys.argv:
    if '=' in x:
        k,val=x.split('='); (C.OPT if k in C.OPT else B.OPT)[k]=int(val)
B.OPT['nk']=C.OPT['nk']
sB=B.sB
_n=[0]
def stamp(slot,who,reg,sw,dbg):
    if not prof: return []
    _n[0]+=1; L=f'L_st{_n[0]}'
    return [f's_cmp_lg_u32 {s(reg)}, {who}',f's_cbranch_scc1 {L}',f's_cmp_lg_u32 {s(sw)}, 0',f's_cbranch_scc1 {L}','s_memrealtime s[90:91]','s_waitcnt lgkmcnt(0)',
            'v_mov_b32 v11, s90',f'v_mov_b32 v123, {160+4*slot}','s_mov_b64 exec, 1',f'global_store_dword v123, v11, {s(dbg,2)}','s_mov_b64 exec, -1',L+':']
bs=lambda slot,who: stamp(slot,who,sB,B.sW,B.DBG)
B.STAMP=bs
A=Asm()
CW=''
if B.OPT.get('cw',0):
    CW='''s_getpc_b64 s[6:7]
L_pc:
s_lshr_b32 s3, s2, 3
s_lshl_b32 s3, s3, 11
v_lshl_add_u32 v4, v0, 3, s3
v_min_u32 v4, L_codeend-L_pc-8, v4
global_load_dwordx2 v[252:253], v4, s[6:7]'''
A(f'''s_cmp_ge_u32 s2, 256
s_cbranch_scc1 L_exit
{CW}
s_getreg_b32 s{sK}, hwreg(HW_REG_XCC_ID)
s_sub_u32 s{sK}, s{sK}, s2
s_and_b32 s{sK}, s{sK}, 7
s_cmp_lg_u32 s2, 0
s_cbranch_scc1 L_disp
s_load_dwordx2 s[12:13], s[0:1], 104
s_add_u32 s3, s{sK}, 1
v_mov_b32 v1, 140
v_mov_b32 v2, s3
s_waitcnt lgkmcnt(0)
s_mov_b64 exec, 1
global_store_dword v1, v2, s[12:13] sc1
s_mov_b64 exec, -1
L_disp:
s_add_u32 s3, s2, s{sK}
s_sub_u32 s3, s3, {B.OPT.get('cx',3)}
s_and_b32 s3, s3, 7
s_cmp_lg_u32 s3, 0
s_cbranch_scc1 L_bulk
s_lshr_b32 {s(C.sH)}, s2, 3''')
if B.OPT.get('hp',0): A(f's_bfe_u32 s3, s2, 0x20005\ns_and_b32 {s(C.sH)}, {s(C.sH)}, 16\ns_add_u32 {s(C.sH)}, {s(C.sH)}, s3\ns_bfe_u32 s3, s2, 0x20003\ns_lshl_b32 s3, s3, 2\ns_add_u32 {s(C.sH)}, {s(C.sH)}, s3')
if B.OPT.get('dly')==1: A('s_sleep 75')
A.extend(C.chain_body(timing=prof))
A.label('L_exit'); A('s_endpgm')
A('''L_restart:
s_waitcnt vmcnt(0) lgkmcnt(0)
s_barrier
s_lshl_b32 s3, s15, 6
v_mbcnt_lo_u32_b32 v0, -1, 0
v_mbcnt_hi_u32_b32 v0, -1, v0
v_add_u32 v0, s3, v0
s_branch L_disp''')
A.label('L_bulk')
perm=[int(c) for c in '%07d'%B.OPT.get('perm',4052163)]
tab=sum(r<<(4*(x+1)) for x,r in enumerate(perm))
A(f's_lshl_b32 s3, s3, 2\ns_lshr_b32 s3, {hex(tab)}, s3\ns_and_b32 s3, s3, 15\ns_lshl_b32 s3, s3, 5\ns_lshr_b32 {s(sB)}, s2, 3\ns_add_u32 {s(sB)}, {s(sB)}, s3')
A.extend(B.roles()); A.extend(fix(B.common())); A.extend(bs(0,0))
A(f's_cmp_ge_u32 {s(sB)}, 64\ns_cbranch_scc1 L_grp')
A('s_sleep 75' if B.OPT.get('dly')==2 else ''); A.extend(B.p1_setup()); A.extend(bs(3,0)); A.extend(bs(4,2))
A.extend(B.p1_main(True)); A.extend(bs(5,0)); A.extend(bs(6,2)); A('s_branch L_p2')
A.label('L_grp')
A(f's_cmp_ge_u32 {s(sB)}, 96\ns_cbranch_scc1 L_ln')
A('s_sleep 75' if B.OPT.get('dly')==3 else ''); A.extend(B.mod_phase(True)); A('s_branch L_p2')
A.label('L_ln'); A.extend(B.ln_phase(True)); A.extend(bs(2,96)); A.label('L_p2')
if B.OPT.get('kill'):
    A(f's_and_b32 s3, s2, 7\ns_lshr_b32 s3, {B.OPT["kill"]}, s3\ns_and_b32 s3, s3, 1\ns_cmp_eq_u32 s3, 0\ns_cbranch_scc1 L_p2k\ns_endpgm\nL_p2k:')
A('s_sleep 120' if B.OPT.get('dly')==4 else ''); A.extend(B.p2_setup(True)); A.extend(B.p2_loop('F',True)); A.extend(B.p2_loop('S',True))
A.label('L_codeend')
kn=NAME+'_kernel'
if 'wrap' in sys.argv:
    pre=['s_memrealtime s[90:91]','s_load_dwordx2 s[88:89], s[0:1], 112','s_lshl_b32 s3, s2, 3','s_add_u32 s3, s3, %d'%(120<<20),'v_mov_b32 v1, s3','s_waitcnt lgkmcnt(0)','v_mov_b32 v2, s90','global_store_dword v1, v2, s[88:89]']
    end=lambda: ['s_waitcnt vmcnt(0)','s_mov_b64 exec, -1','s_memrealtime s[90:91]','s_load_dwordx2 s[88:89], s[0:1], 112','s_lshl_b32 s3, s2, 3','s_add_u32 s3, s3, %d'%((120<<20)+4),'v_mov_b32 v1, s3','s_waitcnt lgkmcnt(0)','v_mov_b32 v2, s90','global_store_dword v1, v2, s[88:89]','s_endpgm']
    L=[]
    for l in A.lines: L+= end() if l=='s_endpgm' else [l]
    A.lines=pre+L
    def st(name,off):
        S=Asm(); S.extend(['s_memrealtime s[90:91]','s_load_dwordx2 s[88:89], s[0:1], 112','v_mov_b32 v1, %d'%((121<<20)+off),'s_waitcnt lgkmcnt(0)','v_mov_b32 v2, s90','global_store_dword v1, v2, s[88:89]']); return C.kernel_text(name,S)
    txt=f'; @launch kernel=a_kernel grid=(1,1,1) block=(64,1,1) lds=0\n; @launch kernel=m_kernel grid=(256,1,1) block=(256,1,1) lds=163840\n; @launch kernel=b_kernel grid=(1,1,1) block=(64,1,1) lds=0\n; @launch kernel=c_kernel grid=(1,1,1) block=(64,1,1) lds=0\n.amdgcn_target "amdgcn-amd-amdhsa--gfx950"\n.text\n'
    txt+=st('a_kernel',0)+st('b_kernel',4)+st('c_kernel',8)+C.kernel_text('m_kernel',A)+'.section .rodata,"a"\n'+C.kernel_desc('m_kernel')+''.join(C.kernel_desc(k,32,32) for k in ('a_kernel','b_kernel','c_kernel'))
    open(sys.argv[1],'w').write(txt); sys.exit(0)
txt='; @launch grid=(256,1,1) block=(256,1,1) lds=163840\n.amdgcn_target "amdgcn-amd-amdhsa--gfx950"\n.text\n'
txt+=C.kernel_text(kn,A)+'.section .rodata,"a"\n'+C.kernel_desc(kn)
open(sys.argv[1],'w').write(txt)
```
